```python
import torch

def _softmax(x, axis=-1):
    return torch.softmax(x, dim=axis)
def _gelu(x):
    return torch.nn.functional.gelu(x, approximate="tanh")
def _silu(x):
    return torch.nn.functional.silu(x)
def _sigmoid(x):
    return torch.sigmoid(x)
def _layernorm(x, axis=-1, eps=1e-5):
    m = x.mean(dim=axis, keepdim=True)
    v = x.var(dim=axis, keepdim=True, unbiased=False)
    return (x - m) / torch.sqrt(v + eps)
def _scatter_add(tgt, idx, src, axis=0):
    return tgt.clone().index_add_(axis, idx, src)
def _segment_sum(src, seg, n):
    out = torch.zeros((n,) + src.shape[1:], dtype=src.dtype)
    return out.index_add_(0, seg, src)
def _pad(x, pw):
    flat = tuple(v for pair in reversed(pw) for v in pair)
    return torch.nn.functional.pad(x, flat)

kernel_name = 'parallel_sum__ssm_conv_s5__glu_gated_swiglu__prompt'

def setup_inputs():

    _w = (lambda a: (lambda t: t.to(torch.bfloat16) if t.is_floating_point() else t)(torch.as_tensor(a)))
    def _A_setup():
        B, S, D = 1, 2048, 640
        P = D
        Lambda_re = -0.5 * (lambda _x: torch.exp(torch.as_tensor(_x)))((lambda *s: torch.randn(*s, dtype=torch.bfloat16) * 0.2)(P))
        Lambda_im = (lambda *s: torch.randn(*s, dtype=torch.bfloat16) * 0.8)(P) * 1.0
        B_re = (lambda *s: torch.randn(*s, dtype=torch.bfloat16) * 0.2)(P, D) * (D ** -0.5)
        B_im = (lambda *s: torch.randn(*s, dtype=torch.bfloat16) * 0.2)(P, D) * (D ** -0.5)
        C_re = (lambda *s: torch.randn(*s, dtype=torch.bfloat16) * 0.2)(D, P) * (P ** -0.5)
        C_im = (lambda *s: torch.randn(*s, dtype=torch.bfloat16) * 0.2)(D, P) * (P ** -0.5)
        log_dt = (lambda *s: torch.randn(*s, dtype=torch.bfloat16) * 0.2)(P) * 0.3 - 2.0
        Dskip = (lambda *s: torch.randn(*s, dtype=torch.bfloat16) * 0.05)(D)
        return {
            "x": _w((lambda *s: torch.randn(*s, dtype=torch.bfloat16) * 0.05)(B, S, D)),
            "Lambda_re": _w(Lambda_re),
            "Lambda_im": _w(Lambda_im),
            "B_re": _w(B_re),
            "B_im": _w(B_im),
            "C_re": _w(C_re),
            "C_im": _w(C_im),
            "log_dt": _w(log_dt),
            "Dskip": _w(Dskip),
        }
    _A_in = _A_setup()

    def _B_setup():
        B, S, D, F = 1, 2048, 640, 1536
        return {
            "x": _w((lambda *s: torch.randn(*s, dtype=torch.bfloat16) * 0.05)(B, S, D)),
            "w1": _w((lambda *s: torch.randn(*s, dtype=torch.bfloat16) * 0.4)(D, F) * (2.0 / D) ** 0.5),
            "w3": _w((lambda *s: torch.randn(*s, dtype=torch.bfloat16) * 0.4)(D, F) * (2.0 / D) ** 0.5),
            "w2": _w((lambda *s: torch.randn(*s, dtype=torch.bfloat16) * 0.4)(F, D) * (2.0 / F) ** 0.5),
        }
    _B_in = _B_setup()

    return {
        "A_x": _A_in["x"],
        "A_Lambda_re": _A_in["Lambda_re"],
        "A_Lambda_im": _A_in["Lambda_im"],
        "A_B_re": _A_in["B_re"],
        "A_B_im": _A_in["B_im"],
        "A_C_re": _A_in["C_re"],
        "A_C_im": _A_in["C_im"],
        "A_log_dt": _A_in["log_dt"],
        "A_Dskip": _A_in["Dskip"],
        "B_x": _B_in["x"],
        "B_w1": _B_in["w1"],
        "B_w3": _B_in["w3"],
        "B_w2": _B_in["w2"],
    }

def reference(A_x, A_Lambda_re, A_Lambda_im, A_B_re, A_B_im, A_C_re, A_C_im, A_log_dt, A_Dskip, B_x, B_w1, B_w3, B_w2):
    def _A_ref(x, Lambda_re, Lambda_im, B_re, B_im, C_re, C_im, log_dt, Dskip):
        Bsz, L, H = x.shape
        Lam = Lambda_re + 1j * Lambda_im
        Bmat = B_re + 1j * B_im
        Cmat = C_re + 1j * C_im
        dt = torch.exp(log_dt)
        Lam_bar = torch.exp(dt * Lam)
        B_bar = ((Lam_bar - 1.0) / Lam)[:, None] * Bmat
        Bu = torch.einsum("bld,pd->blp", x + 0j, B_bar)
        h = torch.zeros_like(Bu[:, 0, :])
        hs = []
        for t in range(L):
            h = Lam_bar[None, :] * h + Bu[:, t, :]
            hs.append(h)
        hseq = torch.stack(hs, 1)
        y = 2.0 * torch.einsum("blp,dp->bld", hseq, Cmat).real + x * Dskip[None, None, :]
        return y

    def _B_ref(x, w1, w3, w2):
        gate = torch.einsum("bsd,df->bsf", x, w1)
        up = torch.einsum("bsd,df->bsf", x, w3)
        h = _silu(gate) * up
        out = torch.einsum("bsf,fd->bsd", h, w2)
        return out

    x = A_x
    xn = _layernorm(x, axis=-1)
    return x + _A_ref(xn, A_Lambda_re, A_Lambda_im, A_B_re, A_B_im, A_C_re, A_C_im, A_log_dt, A_Dskip) + _B_ref(xn, B_w1, B_w3, B_w2)
```

```python
class Asm:
    def __init__(self):
        self.lines = []
        self.nlabel = 0
    def __call__(self, s=""):
        for l in s.split("\n"):
            l = l.strip()
            if l:
                self.lines.append(l)
    def c(self, s):
        self.lines.append("; " + s)
    def label(self, name):
        self.lines.append(name + ":")
    def newlabel(self, p="L"):
        self.nlabel += 1
        return f"{p}_{self.nlabel}"
    def text(self):
        out = []
        for l in self.lines:
            if l.endswith(":") or l.startswith(";") or l.startswith("."):
                out.append(l)
            else:
                out.append("    " + l)
        return "\n".join(out) + "\n"

def vr(b, n=1):
    return f"v{b}" if n == 1 else f"v[{b}:{b+n-1}]"
def sr(b, n=1):
    return f"s{b}" if n == 1 else f"s[{b}:{b+n-1}]"

class Queue:
    def __init__(self, asm, name, maxv):
        self.a = asm; self.name = name; self.q = []; self.maxv = maxv
    def issue(self, tag):
        self.q.append(tag)
    def need(self, tags):
        if not isinstance(tags, (list, set)):
            tags = [tags]
        last = -1
        for i, t in enumerate(self.q):
            if t in tags:
                last = i
        if last < 0:
            return None
        return len(self.q) - 1 - last
    def wait(self, tags):
        n = self.need(tags)
        if n is None:
            self.a.c(f"(no wait needed for {tags})")
            return
        n2 = min(n, self.maxv)
        self.a(f"s_waitcnt {self.name}({n2})")
        self.q = self.q[len(self.q) - n2:] if n2 > 0 else []
    def drain(self):
        self.a(f"s_waitcnt {self.name}(0)")
        self.q = []
```

```python
import sys, os
sys.path.insert(0, os.path.dirname(__file__))
from asmlib import Asm, Queue, vr, sr

OPT = dict(ts=0, stop=0, DA=6, D1=4, timeout=1 << 20)
for a in sys.argv[1:]:
    k, v = a.split("=")
    OPT[k] = int(v)
TS = OPT["ts"]; STOP = OPT["stop"]; DA = OPT["DA"]; D1 = OPT["D1"]

KNAME = "parallel_sum__ssm_conv_s5__glu_gated_swiglu__prompt_kernel"

WS_E = 0
WS_FLAG = 0x1000
WS_STAT = 0x4000
WS_CSB = 0x8000
WS_CSW = 0x10000
WS_SCAN = 0x40000
WS_ACT = 0x100000
WS_TS = 0x1000000

MISC = 147456
M_ROW = MISC
M_CS = MISC + 2048
M_LAM = MISC + 3584
M_COEF = MISC + 4864
E_BASE = 40960
TR_BASE = 61440

S_X, S_LRE, S_LIM, S_BRE, S_BIM, S_CRE, S_CIM, S_LDT = 4, 6, 8, 10, 12, 14, 16, 18
S_DSK, S_W1, S_W3, S_W2, S_OUT, S_DBG, S_WS = 20, 24, 26, 28, 30, 32, 34
SRD_X, SRD_WA, SRD_WB, SRD_W2, SRD_C, SRD_T = 36, 40, 44, 48, 52, 56
S_XCD, S_IDX, S_C, S_J, S_CB, S_WAVE, S_NONCE = 60, 61, 62, 63, 64, 65, 66
S_HB2, S_DCOL = 67, 68
S_ONES = 69
S_T0 = 70
S_SLOT, S_KX, S_KW, S_CNT, S_DELTA = 80, 81, 82, 83, 84
S_AB = 86
S_M0, S_M1 = 88, 90
S_EX = 92
S_TO = 94
S_TS = 96

A = Asm()
LOG2E = 0x3fb8aa3b
NLOG2E = 0xbfb8aa3b

def ts(idx, vtmp):
    if not TS:
        return
    A(f"""s_memrealtime s[{S_TS}:{S_TS+1}]
    s_waitcnt lgkmcnt(0)
    v_writelane_b32 v255, s{S_TS}, {idx}""")

def ts_flush(vtmp):
    if not TS:
        return
    A(f"""s_lshl_b32 s{S_T0}, s2, 3
    s_add_u32 s{S_T0}, s{S_T0}, s{S_WAVE}
    s_lshl_b32 s{S_T0}, s{S_T0}, 6
    s_add_u32 s{S_T0}, s{S_T0}, {WS_TS}
    v_mbcnt_lo_u32_b32 v{vtmp}, -1, 0
    v_mbcnt_hi_u32_b32 v{vtmp}, -1, v{vtmp}
    v_cmp_gt_u32 vcc, 16, v{vtmp}
    v_lshlrev_b32 v{vtmp}, 2, v{vtmp}
    v_add_u32 v{vtmp}, s{S_T0}, v{vtmp}
    s_and_saveexec_b64 s[{S_EX}:{S_EX+1}], vcc
    global_store_dword v{vtmp}, v255, s[{S_WS}:{S_WS+1}]
    s_mov_b64 exec, s[{S_EX}:{S_EX+1}]""")

def srd(d, p, nbytes):
    A(f"""s_mov_b32 s{d}, s{p}
    s_mov_b32 s{d+1}, s{p+1}
    s_mov_b32 s{d+2}, {nbytes}
    s_mov_b32 s{d+3}, 0x20000""")

def srd_sel(d, p1, p0, nbytes):
    A(f"""s_cselect_b32 s{d}, s{p1}, s{p0}
    s_cselect_b32 s{d+1}, s{p1+1}, s{p0+1}
    s_mov_b32 s{d+2}, {nbytes}
    s_mov_b32 s{d+3}, 0x20000""")

def spin_tail(lbl_retry, lbl_ok, code):
    A(f"""s_sleep 1
    s_sub_u32 s{S_TO}, s{S_TO}, 1
    s_cmp_lg_u32 s{S_TO}, 0
    s_cbranch_scc1 {lbl_retry}
    s_mov_b32 s{S_TO}, 1""")

VL = 254

A(f"""s_cmp_ge_u32 s2, 256
s_cbranch_scc1 L_end
s_load_dwordx16 s[4:19], s[0:1], 0
s_load_dwordx16 s[20:35], s[0:1], 64
v_lshrrev_b32 v1, 6, v0
v_and_b32 v{VL}, 63, v0
s_and_b32 s{S_XCD}, s2, 7
v_readfirstlane_b32 s{S_WAVE}, v1
s_lshr_b32 s{S_IDX}, s2, 3
s_and_b32 s{S_T0}, s{S_XCD}, 1
s_lshl_b32 s{S_T0}, s{S_T0}, 3
s_and_b32 s{S_T0+1}, s{S_IDX}, 7
s_add_u32 s{S_C}, s{S_T0}, s{S_T0+1}
s_lshr_b32 s{S_J}, s{S_IDX}, 3
s_lshr_b32 s{S_T0+2}, s{S_XCD}, 1
s_mul_i32 s{S_CB}, s{S_T0+2}, 3
s_add_u32 s{S_CB}, s{S_CB}, s{S_J}
s_sub_u32 s{S_CB}, s{S_CB}, 1
s_cmp_eq_u32 s{S_J}, 0
s_cselect_b32 s{S_CB}, s{S_T0+2}, s{S_CB}
s_lshl_b32 s{S_HB2}, s{S_T0+2}, 3
s_add_u32 s{S_HB2}, s{S_HB2}, s{S_T0+1}
s_mul_i32 s{S_DCOL}, s{S_J}, 96
s_sub_u32 s{S_DCOL}, s{S_DCOL}, 96
s_cmp_eq_u32 s{S_J}, 0
s_cselect_b32 s{S_DCOL}, 288, s{S_DCOL}
s_and_b32 s{S_T0}, s{S_XCD}, 1
s_mul_i32 s{S_T0}, s{S_T0}, 320
s_add_u32 s{S_DCOL}, s{S_DCOL}, s{S_T0}
s_mov_b32 s{S_ONES}, 0x3f803f80
s_mov_b32 s{S_TO}, {OPT['timeout']}
""")
if TS:
    A("v_mov_b32 v255, 0")
    ts(0, 2)
A(f"""s_waitcnt lgkmcnt(0)
s_load_dword s{S_NONCE}, s[{S_WS}:{S_WS+1}], {WS_E}""")
srd(SRD_X, S_X, 2621440)
A(f"s_cmp_eq_u32 s{S_J}, 0")
A(f"""s_cselect_b32 s{SRD_WA}, s{S_BRE}, s{S_W1}
s_cselect_b32 s{SRD_WA+1}, s{S_BRE+1}, s{S_W1+1}
s_mov_b32 s{SRD_WA+2}, 1966080
s_cmov_b32 s{SRD_WA+2}, 819200
s_mov_b32 s{SRD_WA+3}, 0x20000
s_cselect_b32 s{SRD_WB}, s{S_BIM}, s{S_W3}
s_cselect_b32 s{SRD_WB+1}, s{S_BIM+1}, s{S_W3+1}
s_mov_b32 s{SRD_WB+2}, s{SRD_WA+2}
s_mov_b32 s{SRD_WB+3}, 0x20000
s_cmp_ge_u32 s{S_WAVE}, 4
s_cbranch_scc1 L_loader
s_cmp_eq_u32 s{S_J}, 0
s_cbranch_scc1 L_ssm_compute
""")

def dpp_reduce16(regs):
    for sh in (8, 4, 2, 1):
        A("s_nop 1")
        for r in regs:
            A(f"v_add_f32_dpp v{r}, v{r}, v{r} row_ror:{sh} row_mask:0xf bank_mask:0xf")

def nonce_ready():
    A(f"""s_waitcnt lgkmcnt(0)
    s_add_u32 s{S_NONCE}, s{S_NONCE}, 1""")

def side_stats(T, filler):
    A(f"""v_lshrrev_b32 v{T+20}, 4, v{VL}
    s_lshl_b32 s{S_T0}, s2, 3
    s_lshl_b32 s{S_T0+1}, s{S_WAVE}, 2
    s_add_u32 s{S_T0}, s{S_T0}, s{S_T0+1}
    v_add_u32 v{T+20}, s{S_T0}, v{T+20}          ; row
    v_and_b32 v{T+21}, 15, v{VL}
    v_mul_u32_u24 v{T+22}, 1280, v{T+20}
    v_lshl_add_u32 v{T+22}, v{T+21}, 4, v{T+22}""")
    for i in range(5):
        A(f"global_load_dwordx4 v[{T+4*i}:{T+4*i+3}], v{T+22}, s[{S_X}:{S_X+1}] offset:{256*i}")
    filler()
    A(f"""v_mov_b32 v{T+24}, 0
    v_mov_b32 v{T+25}, 0
    v_mov_b32 v{T+26}, 0
    v_mov_b32 v{T+27}, 0""")
    nonce_ready()
    for i in range(5):
        A(f"s_waitcnt vmcnt({4-i})")
        for d in range(4):
            r = T + 4 * i + d
            A(f"v_dot2c_f32_bf16 v{T+24+2*(d&1)}, s{S_ONES}, v{r}")
            A(f"v_dot2c_f32_bf16 v{T+25+2*(d&1)}, v{r}, v{r}")
    A(f"""s_nop 3
    v_add_f32 v{T+24}, v{T+24}, v{T+26}
    v_add_f32 v{T+25}, v{T+25}, v{T+27}""")
    dpp_reduce16([T + 24, T + 25])
    A(f"""v_mul_f32 v{T+24}, 0x3acccccd, v{T+24}      ; mean
    v_mul_f32 v{T+25}, 0x3acccccd, v{T+25}
    v_fma_f32 v{T+25}, -v{T+24}, v{T+24}, v{T+25}
    v_max_f32 v{T+25}, 0, v{T+25}
    v_cvt_pk_bf16_f32 v{T+25}, v{T+25}, v{T+25}
    v_lshlrev_b32 v{T+25}, 16, v{T+25}
    v_add_f32 v{T+25}, 0x3727c5ac, v{T+25}
    v_cvt_pk_bf16_f32 v{T+25}, v{T+25}, v{T+25}
    v_lshlrev_b32 v{T+25}, 16, v{T+25}
    v_sqrt_f32 v{T+25}, v{T+25}
    v_lshlrev_b32 v{T+20}, 3, v{T+20}
    v_add_u32 v{T+20}, {WS_STAT}, v{T+20}
    v_cvt_pk_bf16_f32 v{T+26}, v{T+24}, v{T+25}
    v_mov_b32 v{T+27}, s{S_NONCE}
    v_cmp_eq_u32 vcc, 0, v{T+21}
    s_and_saveexec_b64 s[{S_EX}:{S_EX+1}], vcc
    global_store_dwordx2 v{T+20}, v[{T+26}:{T+27}], s[{S_WS}:{S_WS+1}] sc1
    s_mov_b64 exec, s[{S_EX}:{S_EX+1}]""")

def side_colsum_mlp(T, filler):
    SCR = 5 * 24576
    A(f"""s_mul_i32 s{S_T0}, s{S_C}, 12
    s_add_u32 s{S_T0}, s{S_T0}, s{S_CB}            ; sigma
    s_lshr_b32 s{S_T0+1}, s{S_T0}, 1               ; strip
    s_and_b32 s{S_T0+2}, s{S_T0}, 1
    s_lshl_b32 s{S_T0+2}, s{S_T0+2}, 1
    s_add_u32 s{S_T0+2}, s{S_T0+2}, s{S_WAVE}
    s_sub_u32 s{S_T0+2}, s{S_T0+2}, 2              ; k quarter
    s_cmp_ge_u32 s{S_T0+1}, 48""")
    srd_sel(SRD_T, S_W3, S_W1, 1966080)
    A(f"""s_cselect_b32 s{S_T0+3}, 48, 0
    s_cselect_b32 s{S_T0+6}, 1536, 0
    s_sub_u32 s{S_T0+1}, s{S_T0+1}, s{S_T0+3}
    s_lshl_b32 s{S_T0+1}, s{S_T0+1}, 5             ; col0
    s_mul_i32 s{S_T0+4}, s{S_T0+2}, {160*3072}
    s_lshl_b32 s{S_T0+5}, s{S_T0+1}, 1
    s_add_u32 s{S_T0+4}, s{S_T0+4}, s{S_T0+5}      ; soffset
    s_sub_u32 s{S_T0+5}, s{S_WAVE}, 2
    s_mul_i32 s{S_T0+5}, s{S_T0+5}, 10240
    s_add_u32 s{S_T0+5}, s{S_T0+5}, {SCR}
    v_lshrrev_b32 v{T}, 2, v{VL}
    v_and_b32 v{T+1}, 3, v{VL}
    v_mul_u32_u24 v{T}, 3072, v{T}
    v_lshl_add_u32 v{T}, v{T+1}, 4, v{T}""")
    for i in range(10):
        A(f"""s_add_u32 m0, s{S_T0+5}, {1024*i}
        s_add_u32 s{S_T0+7}, s{S_T0+4}, {16*3072*i}
        buffer_load_dwordx4 v{T}, s[{SRD_T}:{SRD_T+3}], s{S_T0+7} offen lds""")
    filler()
    A(f"""v_lshrrev_b32 v{T+2}, 4, v{VL}
    v_lshlrev_b32 v{T+2}, 9, v{T+2}
    v_bfe_u32 v{T+3}, v{VL}, 2, 2
    v_lshl_add_u32 v{T+2}, v{T+3}, 6, v{T+2}
    v_lshl_add_u32 v{T+2}, v{T+1}, 3, v{T+2}
    v_add_u32 v{T+2}, s{S_T0+5}, v{T+2}
    v_mov_b32 v{T+4}, s{S_ONES}
    v_mov_b32 v{T+5}, s{S_ONES}
    v_mov_b32 v{T+6}, s{S_ONES}
    v_mov_b32 v{T+7}, s{S_ONES}""")
    A(f"""s_mul_i32 s{S_T0+2}, s{S_T0+2}, 3072
    s_add_u32 s{S_T0+2}, s{S_T0+2}, s{S_T0+6}
    s_add_u32 s{S_T0+2}, s{S_T0+2}, s{S_T0+1}
    s_lshl_b32 s{S_T0+2}, s{S_T0+2}, 3
    s_add_u32 s{S_T0+2}, s{S_T0+2}, {WS_CSW}
    v_lshrrev_b32 v{T+3}, 4, v{VL}
    v_lshlrev_b32 v{T+3}, 5, v{T+3}
    v_add_u32 v{T+3}, s{S_T0+2}, v{T+3}""")
    nonce_ready()
    A("s_waitcnt vmcnt(0)")
    F = T + 16
    for ks in range(5):
        for u in range(2):
            b = F + (ks * 2 + u) * 4
            A(f"ds_read_b64_tr_b16 v[{b}:{b+1}], v{T+2} offset:{ks*2048+u*32}")
            A(f"ds_read_b64_tr_b16 v[{b+2}:{b+3}], v{T+2} offset:{ks*2048+u*32+256}")
    A("s_waitcnt lgkmcnt(0)")
    for ks in range(5):
        for u in range(2):
            b = F + (ks * 2 + u) * 4
            cin = "0" if ks == 0 else f"v[{T+8+4*u}:{T+11+4*u}]"
            A(f"v_mfma_f32_16x16x32_bf16 v[{T+8+4*u}:{T+11+4*u}], v[{b}:{b+3}], v[{T+4}:{T+7}], {cin}")
    A("s_nop 7\ns_nop 1")
    for u in range(2):
        for h in range(2):
            o = F + (u * 2 + h) * 4
            A(f"""v_mov_b32 v{o}, v{T+8+4*u+2*h}
            v_mov_b32 v{o+1}, s{S_NONCE}
            v_mov_b32 v{o+2}, v{T+9+4*u+2*h}
            v_mov_b32 v{o+3}, s{S_NONCE}""")
    A(f"""v_and_b32 v{T+1}, 15, v{VL}
    v_cmp_eq_u32 vcc, 0, v{T+1}
    s_and_saveexec_b64 s[{S_EX}:{S_EX+1}], vcc""")
    for u in range(2):
        for h in range(2):
            o = F + (u * 2 + h) * 4
            A(f"global_store_dwordx4 v{T+3}, v[{o}:{o+3}], s[{S_WS}:{S_WS+1}] offset:{u*128+h*16} sc1")
    A(f"s_mov_b64 exec, s[{S_EX}:{S_EX+1}]")

def side_rowsum_ssm(T, filler):
    A(f"""s_lshl_b32 s{S_T0}, s{S_C}, 2
    s_add_u32 s{S_T0}, s{S_T0}, s{S_CB}            ; sigma'
    s_mul_i32 s{S_T0+1}, s{S_T0}, 20
    s_sub_u32 s{S_T0+2}, s{S_WAVE}, 2
    s_lshl_b32 s{S_T0+2}, s{S_T0+2}, 3
    s_add_u32 s{S_T0+1}, s{S_T0+1}, s{S_T0+2}
    s_cmp_ge_u32 s{S_T0}, 32
    s_cselect_b32 s{S_T0+4}, s{S_BIM}, s{S_BRE}
    s_cselect_b32 s{S_T0+5}, s{S_BIM+1}, s{S_BRE+1}
    s_cselect_b32 s{S_T0+3}, 640, 0
    s_sub_u32 s{S_T0+3}, s{S_T0+1}, s{S_T0+3}
    v_lshrrev_b32 v{T+60}, 4, v{VL}
    v_and_b32 v{T+61}, 15, v{VL}
    v_add_u32 v{T+62}, s{S_T0+3}, v{T+60}
    v_mul_u32_u24 v{T+62}, 1280, v{T+62}
    v_lshl_add_u32 v{T+62}, v{T+61}, 4, v{T+62}""")
    for p in range(3):
        for i in range(5):
            b = T + 20 * p + 4 * i
            A(f"global_load_dwordx4 v[{b}:{b+3}], v{T+62}, s[{S_T0+4}:{S_T0+5}] offset:{256*i}")
        if p < 2:
            A(f"v_add_u32 v{T+62}, {4*1280}, v{T+62}")
    filler()
    for p in range(3):
        A(f"v_mov_b32 v{T+64+2*p}, 0")
    A(f"""v_add_u32 v{T+60}, s{S_T0+1}, v{T+60}
    v_lshlrev_b32 v{T+60}, 3, v{T+60}
    v_add_u32 v{T+60}, {WS_CSB}, v{T+60}""")
    nonce_ready()
    for p in range(3):
        A(f"s_waitcnt vmcnt({10-5*p})")
        for d in range(20):
            A(f"v_dot2c_f32_bf16 v{T+64+2*p}, s{S_ONES}, v{T+20*p+d}")
    A("s_nop 3")
    dpp_reduce16([T + 64, T + 66, T + 68])
    for p in range(3):
        A(f"v_mov_b32 v{T+65+2*p}, s{S_NONCE}")
    A(f"""v_cmp_eq_u32 vcc, 0, v{T+61}
    s_and_saveexec_b64 s[{S_EX}:{S_EX+1}], vcc""")
    for p in range(3):
        A(f"global_store_dwordx2 v{T+60}, v[{T+64+2*p}:{T+65+2*p}], s[{S_WS}:{S_WS+1}] offset:{32*p} sc1")
    A(f"s_mov_b64 exec, s[{S_EX}:{S_EX+1}]")

def zero_regs(lo, n):
    def f():
        for r in range(lo, lo + n):
            A(f"v_mov_b32 v{r}, 0")
    return f

def rowpat_read(dst, tmp):
    A(f"""v_bfe_u32 v{tmp}, v{VL}, 2, 2
    v_sub_u32 v{tmp}, 0, v{tmp}
    v_lshrrev_b32 v{dst}, 4, v{VL}
    v_xor_b32 v{tmp}, v{tmp}, v{dst}
    v_and_b32 v{tmp}, 3, v{tmp}
    v_and_b32 v{dst}, 15, v{VL}
    v_lshlrev_b32 v{dst}, 6, v{dst}
    v_lshl_add_u32 v{dst}, v{tmp}, 4, v{dst}""")

def gemm1_loop(kind):
    mlp = kind == "mlp"
    NB = 8 if mlp else 10
    NS = 6 if mlp else 5
    SLOT = 24576 if mlp else 28672
    XF = 128 if mlp else 160
    WF = XF + 32
    AX = WF + NB * 4
    AW = AX + 1
    nAW = 4 if mlp else 1
    D = D1
    lg = Queue(A, "lgkmcnt", 15)

    def rd_x(par, T):
        b = XF + par * 16 + T * 4
        A(f"ds_read_b128 v[{b}:{b+3}], v{AX} offset:{T*1024}")
        lg.issue(("x", par))
    def rd_w(j, gen):
        b = WF + j * 4
        if mlp:
            F, c = j // 2, j % 2
            A(f"ds_read_b64_tr_b16 v[{b}:{b+1}], v{AW+F} offset:{c*8192}")
            A(f"ds_read_b64_tr_b16 v[{b+2}:{b+3}], v{AW+F} offset:{c*8192+1024}")
            lg.issue(("w", j, gen)); lg.issue(("w", j, gen))
        else:
            G, c = j // 2, j % 2
            A(f"ds_read_b128 v[{b}:{b+3}], v{AW} offset:{c*10240+G*1024}")
            lg.issue(("w", j, gen))
    def mf(j, T, par):
        acc = (j * 4 + T) * 4
        w = WF + j * 4
        x = XF + par * 16 + T * 4
        if mlp:
            A(f"v_mfma_f32_16x16x32_bf16 v[{acc}:{acc+3}], v[{w}:{w+3}], v[{x}:{x+3}], v[{acc}:{acc+3}]")
        else:
            A(f"v_mfma_f32_16x16x32_bf16 v[{acc}:{acc+3}], v[{x}:{x+3}], v[{w}:{w+3}], v[{acc}:{acc+3}]")

    A(f"s_mov_b32 s{S_SLOT}, 0\ns_mov_b32 s{S_CNT}, 0")
    A("s_barrier")
    ts(2, 2)
    def xs(k):
        return [2 * k, 2 * k + 1] if k < 2 else []
    for j in range(D):
        rd_w(j, 0)
        for T in xs(j):
            rd_x(0, T)
    lbl = f"L_g1_{kind}"
    A.label(lbl)
    entry = list(lg.q)
    for par in range(2):
        for j in range(NB):
            tags = [("w", j, par)]
            if j == 0:
                tags.append(("x", par))
            lg.wait(tags)
            mf(j, 0, par)
            jn = j + D
            if jn == NB:
                A("s_barrier")
                A(f"""s_add_u32 s{S_SLOT}, s{S_SLOT}, 1
                s_cmp_eq_u32 s{S_SLOT}, {NS}
                s_mov_b32 s{S_DELTA}, {SLOT}
                s_cmov_b32 s{S_DELTA}, {-(NS-1)*SLOT & 0xffffffff}
                s_cselect_b32 s{S_SLOT}, 0, s{S_SLOT}""")
                A(f"v_add_u32 v{AX}, s{S_DELTA}, v{AX}")
                for i in range(nAW):
                    A(f"v_add_u32 v{AW+i}, s{S_DELTA}, v{AW+i}")
            mf(j, 1, par)
            if jn < NB:
                rd_w(jn, par)
            else:
                rd_w(jn - NB, par ^ 1)
            mf(j, 2, par)
            if jn >= NB:
                for T in xs(jn - NB):
                    rd_x(par ^ 1, T)
            mf(j, 3, par)
    A(f"""s_add_u32 s{S_CNT}, s{S_CNT}, 1
    s_cmp_lt_u32 s{S_CNT}, 10
    s_cbranch_scc1 {lbl}""")
    assert lg.q == entry[len(entry) - len(lg.q):]
    return lg, entry, AX, AW

def check_backedge(lg, entry):
    pass

G2_B = 96
G2_A = 144
def gemm2_pre_loads(NU, R):
    A(f"""s_lshl_b32 s{S_T0}, s{S_HB2}, 6
    s_lshl_b32 s{S_T0+1}, s{S_WAVE}, 4
    s_add_u32 s{S_T0}, s{S_T0}, s{S_T0+1}
    v_and_b32 v{R+4*NU+2}, 15, v{VL}
    v_add_u32 v{R+4*NU+2}, s{S_T0}, v{R+4*NU+2}        ; row t
    v_lshrrev_b32 v{R+4*NU+3}, 4, v{VL}
    v_lshlrev_b32 v{R+4*NU+3}, 3, v{R+4*NU+3}
    s_lshl_b32 s{S_T0+1}, s{S_DCOL}, 1
    v_add_u32 v{R+4*NU+3}, s{S_T0+1}, v{R+4*NU+3}
    v_mul_u32_u24 v{R+4*NU}, 1280, v{R+4*NU+2}
    v_add_u32 v{R+4*NU}, v{R+4*NU}, v{R+4*NU+3}""")
    for U in range(NU):
        A(f"global_load_dwordx2 v[{R+2*U}:{R+2*U+1}], v{R+4*NU}, s[{S_X}:{S_X+1}] offset:{32*U}")
    for U in range(NU):
        A(f"global_load_dwordx2 v[{R+2*NU+2*U}:{R+2*NU+2*U+1}], v{R+4*NU+3}, s[{S_DSK}:{S_DSK+1}] offset:{32*U}")
    A(f"""v_lshlrev_b32 v{R+4*NU+2}, 3, v{R+4*NU+2}
    v_add_u32 v{R+4*NU+2}, {WS_STAT}, v{R+4*NU+2}
    global_load_dwordx2 v[{R+4*NU}:{R+4*NU+1}], v{R+4*NU+2}, s[{S_WS}:{S_WS+1}] sc1""")

def gemm2_base(NU, R, T):
    st = R + 4 * NU
    lr, lo = A.newlabel("L_st"), A.newlabel("L_st")
    A.label(lr)
    A(f"""v_cmp_ne_u32 vcc, s{S_NONCE}, v{st+1}
    s_nop 1
    s_cbranch_vccz {lo}
    global_load_dwordx2 v[{st}:{st+1}], v{st+2}, s[{S_WS}:{S_WS+1}] sc1
    s_waitcnt vmcnt(0)""")
    spin_tail(lr, lo, 1)
    A.label(lo)
    A(f"""v_and_b32 v{st+1}, 0xffff0000, v{st}
    v_lshlrev_b32 v{st}, 16, v{st}
    v_rcp_f32 v{st+1}, v{st+1}""")
    def unpack(dst, src):
        A(f"""v_lshlrev_b32 v{dst}, 16, v{src}
        v_and_b32 v{dst+1}, 0xffff0000, v{src}
        v_lshlrev_b32 v{dst+2}, 16, v{src+1}
        v_and_b32 v{dst+3}, 0xffff0000, v{src+1}""")
    def rnd(r, t):
        A(f"""v_cvt_pk_bf16_f32 v{t}, v{r}, v{r+1}
        v_cvt_pk_bf16_f32 v{t+1}, v{r+2}, v{r+3}""")
        unpack(r, t)
    for U in range(NU):
        acc = U * 16
        unpack(acc, R + 2 * U)
        unpack(T + 4, R + 2 * NU + 2 * U)
        for h in (0, 2):
            A(f"v_pk_add_f32 v[{T+h}:{T+h+1}], v[{acc+h}:{acc+h+1}], v[{st}:{st+1}] op_sel_hi:[1,0] neg_lo:[0,1] neg_hi:[0,1]")
        rnd(T, T + 8)
        for h in (0, 2):
            A(f"v_pk_mul_f32 v[{T+h}:{T+h+1}], v[{T+h}:{T+h+1}], v[{st}:{st+1}] op_sel:[0,1] op_sel_hi:[1,1]")
        rnd(T, T + 8)
        for h in (0, 2):
            A(f"v_pk_mul_f32 v[{T+h}:{T+h+1}], v[{T+h}:{T+h+1}], v[{T+4+h}:{T+5+h}]")
        rnd(T, T + 8)
        for h in (0, 2):
            A(f"v_pk_add_f32 v[{acc+h}:{acc+h+1}], v[{acc+h}:{acc+h+1}], v[{T+h}:{T+h+1}]")

def gemm2_compute(NU, first_barrier):
    NS2 = 6 if NU == 6 else 5
    SL = NU * 4096
    slot0 = 2 if NU == 6 else 0
    RED = 0 if NU == 6 else TR_BASE
    V = 240
    vE, vO, vC = V, V + 1, V + 2
    vA = V + 3
    vT = V + 7
    RBY = NU * 32
    A(f"""v_lshrrev_b32 v{vT}, 4, v{VL}               ; q
    v_bfe_u32 v{vT+1}, v{VL}, 2, 2                     ; rr
    v_lshl_add_u32 v{vT+1}, v{vT}, 2, v{vT+1}
    s_lshl_b32 s{S_T0}, s{S_WAVE}, 5
    v_add_u32 v{vT+1}, s{S_T0}, v{vT+1}
    v_mul_u32_u24 v{vT+1}, {RBY}, v{vT+1}
    v_and_b32 v{vT+2}, 3, v{VL}
    v_lshl_add_u32 v{vT+1}, v{vT+2}, 3, v{vT+1}
    v_and_b32 v{vT+2}, 1, v{vT}
    v_lshlrev_b32 v{vT+3}, 5, v{vT+2}
    v_add_u32 v{vE}, v{vT+1}, v{vT+3}
    v_sub_u32 v{vO}, v{vT+1}, v{vT+3}
    s_lshl_b32 s{S_T0}, s{S_WAVE}, 1
    v_add_u32 v{vT+2}, s{S_T0}, v{vT+2}                ; chunk = 2w + (q&1)
    v_bfe_u32 v{vT+3}, v{VL}, 1, 3
    v_xor_b32 v{vT+2}, v{vT+2}, v{vT+3}
    v_lshrrev_b32 v{vT}, 1, v{vT}
    v_mul_u32_u24 v{vT}, {NU*2048}, v{vT}
    v_lshl_add_u32 v{vT}, v{vT+2}, 4, v{vT}
    v_and_b32 v{vT+3}, 15, v{VL}
    v_lshl_add_u32 v{vC}, v{vT+3}, 7, v{vT}
    v_lshlrev_b32 v{vT}, 4, v{VL}""")
    for Tp in range(4):
        A(f"""s_add_u32 s{S_T0}, s{S_WAVE}, {Tp}
        s_and_b32 s{S_T0}, s{S_T0}, 3
        s_lshl_b32 s{S_T0}, s{S_T0}, 10
        v_add_u32 v{vA+Tp}, s{S_T0}, v{vT}""")
    A(f"""s_mul_i32 s{S_T0}, s{S_HB2}, {88*4096}
    s_lshl_b32 s{S_T0+1}, s{S_WAVE}, 12
    s_add_u32 s{S_T0}, s{S_T0}, s{S_T0+1}
    s_add_u32 s{S_T0}, s{S_T0}, {WS_ACT}
    s_add_u32 s{S_AB}, s{S_WS}, s{S_T0}
    s_addc_u32 s{S_AB+1}, s{S_WS+1}, 0""")
    lr, lo = A.newlabel("L_fl"), A.newlabel("L_fl")
    A(f"""s_lshl_b32 s{S_T0}, s{S_HB2}, 7
    s_add_u32 s{S_T0}, s{S_T0}, {WS_FLAG}
    v_and_b32 v{vT+1}, 31, v{VL}
    v_lshlrev_b32 v{vT+1}, 2, v{vT+1}
    v_add_u32 v{vT+1}, s{S_T0}, v{vT+1}
    s_lshr_b32 s{S_T0+1}, s{S_WAVE}, 1
    s_lshl_b32 s{S_T0+1}, 0x555555, s{S_T0+1}""")
    A.label(lr)
    A(f"""global_load_dword v{vT+2}, v{vT+1}, s[{S_WS}:{S_WS+1}] sc1
    s_waitcnt vmcnt(0)
    v_cmp_eq_u32 vcc, s{S_NONCE}, v{vT+2}
    s_nop 1
    s_and_b32 s{S_T0+2}, vcc_lo, s{S_T0+1}
    s_cmp_eq_u32 s{S_T0+2}, s{S_T0+1}
    s_cbranch_scc1 {lo}""")
    spin_tail(lr, lo, 2)
    A.label(lo)
    ts(7, 2)
    vm = Queue(A, "vmcnt", 63)
    lg = Queue(A, "lgkmcnt", 15)
    def ldA(s):
        b = G2_A + (s % DA) * 16
        for Tp in range(4):
            A(f"global_load_dwordx4 v[{b+4*Tp}:{b+4*Tp+3}], v{vA+Tp}, s[{S_AB}:{S_AB+1}] sc1")
            vm.issue(("a", s))
        A(f"s_add_u32 s{S_AB}, s{S_AB}, 16384\ns_addc_u32 s{S_AB+1}, s{S_AB+1}, 0")
    def rdB(s, U):
        slot = ((slot0 + s) % NS2) * SL
        b = G2_B + (s % 2) * 24 + U * 4
        if s < 12:
            a = vT + 4 if U % 2 == 0 else vT + 5
            A(f"ds_read_b64_tr_b16 v[{b}:{b+1}], v{a} offset:{32*U}")
            A(f"ds_read_b64_tr_b16 v[{b+2}:{b+3}], v{a} offset:{32*U+16*RBY}")
            lg.issue(("b", s, U)); lg.issue(("b", s, U))
        else:
            A(f"ds_read_b128 v[{b}:{b+3}], v{vT+4} offset:{2048*U}")
            lg.issue(("b", s, U))
    def setB(s):
        slot = ((slot0 + s) % NS2) * SL
        if s < 12:
            A(f"v_add_u32 v{vT+4}, {slot}, v{vE}\nv_add_u32 v{vT+5}, {slot}, v{vO}")
        else:
            A(f"v_add_u32 v{vT+4}, {slot}, v{vC}")
    for s in range(DA):
        ldA(s)
    if first_barrier:
        A("s_barrier")
    setB(0)
    for U in range(NU):
        rdB(0, U)
    for s in range(22):
        lg.drain()
        if s < 21:
            A("s_barrier")
            setB(s + 1)
        vm.wait(("a", s))
        for U in range(NU):
            for Tp in range(4):
                acc = (U * 4 + Tp) * 4
                w = G2_B + (s % 2) * 24 + U * 4
                a = G2_A + (s % DA) * 16 + Tp * 4
                cin = "0" if (s == 0 and Tp != 0) else f"v[{acc}:{acc+3}]"
                A(f"v_mfma_f32_16x16x32_bf16 v[{acc}:{acc+3}], v[{w}:{w+3}], v[{a}:{a+3}], {cin}")
                if Tp in (0, 2) and s < 21 and 2 * U + Tp // 2 < NU:
                    rdB(s + 1, 2 * U + Tp // 2)
        if s + DA < 22:
            ldA(s + DA)
    ts(8, 2)
    A(f"v_lshlrev_b32 v{vT}, 4, v{VL}")
    for Tp in range(1, 4):
        A(f"""s_add_u32 s{S_T0}, s{S_WAVE}, {Tp}
        s_and_b32 s{S_T0}, s{S_T0}, 3
        s_mul_i32 s{S_T0}, s{S_T0}, {3*NU*1024}
        s_add_u32 s{S_T0}, s{S_T0}, {RED + (Tp-1)*NU*1024}
        v_add_u32 v{vT+Tp}, s{S_T0}, v{vT}""")
    A(f"""s_mul_i32 s{S_T0}, s{S_WAVE}, {3*NU*1024}
    s_add_u32 s{S_T0}, s{S_T0}, {RED}
    v_add_u32 v{vT}, s{S_T0}, v{vT}
    s_nop 4""")
    for U in range(NU):
        for Tp in range(1, 4):
            acc = (U * 4 + Tp) * 4
            A(f"ds_write_b128 v{vT+Tp}, v[{acc}:{acc+3}] offset:{U*1024}")
    A(f"""s_lshl_b32 s{S_T0}, s{S_HB2}, 6
    s_lshl_b32 s{S_T0+1}, s{S_WAVE}, 4
    s_add_u32 s{S_T0}, s{S_T0}, s{S_T0+1}
    v_and_b32 v{vA}, 15, v{VL}
    v_add_u32 v{vA}, s{S_T0}, v{vA}
    v_mul_u32_u24 v{vA}, 2560, v{vA}
    v_lshrrev_b32 v{vA+1}, 4, v{VL}
    v_lshl_add_u32 v{vA}, v{vA+1}, 4, v{vA}
    s_lshl_b32 s{S_T0+1}, s{S_DCOL}, 2
    v_add_u32 v{vA}, s{S_T0+1}, v{vA}
    s_waitcnt lgkmcnt(0)
    s_barrier""")
    lg = Queue(A, "lgkmcnt", 15)
    def rdR(U):
        for i in range(3):
            b = (U * 4 + 1 + i) * 4
            A(f"ds_read_b128 v[{b}:{b+3}], v{vT} offset:{(i*NU+U)*1024}")
            lg.issue(("r", U))
    for U in range(min(NU, 4)):
        rdR(U)
    for U in range(NU):
        lg.wait(("r", U))
        acc = U * 16
        for h in (0, 2):
            A(f"v_pk_add_f32 v[{acc+h}:{acc+h+1}], v[{acc+h}:{acc+h+1}], v[{acc+4+h}:{acc+5+h}]")
            A(f"v_pk_add_f32 v[{acc+8+h}:{acc+9+h}], v[{acc+8+h}:{acc+9+h}], v[{acc+12+h}:{acc+13+h}]")
        for h in (0, 2):
            A(f"v_pk_add_f32 v[{acc+h}:{acc+h+1}], v[{acc+h}:{acc+h+1}], v[{acc+8+h}:{acc+9+h}]")
        A(f"global_store_dwordx4 v{vA}, v[{acc}:{acc+3}], s[{S_OUT}:{S_OUT+1}] offset:{64*U}")
        if U + 4 < NU:
            rdR(U + 4)
    ts(9, 2)
    ts_flush(100)
    A("s_endpgm")

def publish_flag(idx_code):
    A("s_waitcnt vmcnt(0)")
    A(f"""s_lshl_b32 s{S_T0}, s{S_T0}, 5
    s_add_u32 s{S_T0}, s{S_T0}, s{S_T0+1}
    s_lshl_b32 s{S_T0}, s{S_T0}, 2
    s_add_u32 s{S_T0}, s{S_T0}, {WS_FLAG}
    v_mov_b32 v250, s{S_T0}
    v_mov_b32 v251, s{S_NONCE}
    s_mov_b64 exec, 1
    global_store_dword v250, v251, s[{S_WS}:{S_WS+1}] sc1
    s_mov_b64 exec, -1""")

A.label("L_mlp_compute")
A(f"s_cmp_ge_u32 s{S_WAVE}, 2\ns_cbranch_scc1 L_mlp_cs")
side_stats(128, zero_regs(0, 128))
A("s_branch L_mlp_go")
A.label("L_mlp_cs")
side_colsum_mlp(128, zero_regs(0, 128))
A.label("L_mlp_go")
ts(1, 2)
rowpat_read(192, 197)
A(f"""s_and_b32 s{S_T0}, s{S_WAVE}, 1
s_lshl_b32 s{S_T0}, s{S_T0}, 12
v_add_u32 v192, s{S_T0}, v192
v_lshrrev_b32 v197, 4, v{VL}              ; q
v_bfe_u32 v198, v{VL}, 2, 2               ; rr
v_and_b32 v199, 1, v197
v_lshl_add_u32 v199, v199, 2, v198        ; swizzle s
v_lshl_add_u32 v197, v197, 3, v198        ; k row
v_lshlrev_b32 v197, 8, v197
v_and_b32 v198, 3, v{VL}
v_lshl_add_u32 v197, v198, 3, v197
v_add_u32 v197, 8192, v197
s_lshr_b32 s{S_T0}, s{S_WAVE}, 1
s_lshl_b32 s{S_T0}, s{S_T0}, 2""")
for F in range(4):
    A(f"""s_add_u32 s{S_T0+1}, s{S_T0}, {F}
    v_xor_b32 v198, s{S_T0+1}, v199
    v_lshl_add_u32 v{193+F}, v198, 5, v197""")
lg, entry, AX, AW = gemm1_loop("mlp")
A("s_waitcnt lgkmcnt(0)\ns_barrier")
ts(3, 2)
PRE = 200
gemm2_pre_loads(6, PRE)
ER = 128
EC = 144
A(f"""s_and_b32 s{S_T0}, s{S_WAVE}, 1
s_lshl_b32 s{S_T0}, s{S_T0}, 10
s_add_u32 s{S_T0}, s{S_T0}, {M_ROW}
v_and_b32 v192, 15, v{VL}
v_lshlrev_b32 v192, 4, v192
v_add_u32 v192, s{S_T0}, v192
s_lshr_b32 s{S_T0}, s{S_WAVE}, 1
s_lshl_b32 s{S_T0}, s{S_T0}, 8
s_add_u32 s{S_T0}, s{S_T0}, {M_CS}
v_lshrrev_b32 v193, 4, v{VL}
v_lshlrev_b32 v193, 4, v193
v_add_u32 v193, s{S_T0}, v193""")
for T in range(4):
    A(f"ds_read_b128 v[{ER+4*T}:{ER+4*T+3}], v192 offset:{256*T}")
for F in range(4):
    for c in range(2):
        b = EC + (F * 2 + c) * 4
        A(f"ds_read_b128 v[{b}:{b+3}], v193 offset:{c*512+F*64}")
A(f"""s_lshl_b32 s{S_T0}, s{S_C}, 1
s_and_b32 s{S_T0+1}, s{S_WAVE}, 1
s_add_u32 s{S_T0}, s{S_T0}, s{S_T0+1}
s_mul_i32 s{S_T0}, s{S_T0}, 88
s_lshl_b32 s{S_T0+1}, s{S_CB}, 2
s_add_u32 s{S_T0}, s{S_T0}, s{S_T0+1}
s_and_b32 s{S_T0+1}, s{S_WAVE}, 2
s_add_u32 s{S_T0}, s{S_T0}, s{S_T0+1}
s_lshl_b32 s{S_T0}, s{S_T0}, 12
s_add_u32 s{S_T0}, s{S_T0}, {WS_ACT}
v_lshlrev_b32 v194, 4, v{VL}
v_add_u32 v194, s{S_T0}, v194
v_add_u32 v195, 4096, v194
s_waitcnt lgkmcnt(0)""")
ET = 176
EO = 184
n = 0
for u in range(2):
    for T in range(4):
        m = ER + 4 * T
        prs = []
        for F in (2 * u, 2 * u + 1):
            for h in (0, 2):
                g = ((F * 2 + 0) * 4 + T) * 4 + h
                up = ((F * 2 + 1) * 4 + T) * 4 + h
                prs.append((g, up, EC + (F * 2) * 4 + h, EC + (F * 2 + 1) * 4 + h))
        for i, (g, up, cg, cu) in enumerate(prs):
            A(f"v_pk_fma_f32 v[{g}:{g+1}], v[{cg}:{cg+1}], v[{m}:{m+1}], v[{g}:{g+1}] op_sel_hi:[1,0,1] neg_lo:[0,1,0] neg_hi:[0,1,0]")
        for i, (g, up, cg, cu) in enumerate(prs):
            e = ET + 2 * i
            A(f"v_pk_mul_f32 v[{e}:{e+1}], v[{g}:{g+1}], v[{m}:{m+1}] op_sel:[0,1] op_sel_hi:[1,1]")
        for i, (g, up, cg, cu) in enumerate(prs):
            e = ET + 2 * i
            A(f"v_exp_f32 v{e}, v{e}\nv_exp_f32 v{e+1}, v{e+1}")
            A(f"v_pk_fma_f32 v[{up}:{up+1}], v[{cu}:{cu+1}], v[{m}:{m+1}], v[{up}:{up+1}] op_sel_hi:[1,0,1] neg_lo:[0,1,0] neg_hi:[0,1,0]")
        for i, (g, up, cg, cu) in enumerate(prs):
            e = ET + 2 * i
            A(f"v_pk_fma_f32 v[{e}:{e+1}], v[{e}:{e+1}], v[{m+2}:{m+3}], v[{m+2}:{m+3}] op_sel_hi:[1,0,0]")
        for i, (g, up, cg, cu) in enumerate(prs):
            e = ET + 2 * i
            A(f"v_rcp_f32 v{e}, v{e}\nv_rcp_f32 v{e+1}, v{e+1}")
            A(f"v_pk_mul_f32 v[{g}:{g+1}], v[{g}:{g+1}], v[{up}:{up+1}]")
        for i, (g, up, cg, cu) in enumerate(prs):
            e = ET + 2 * i
            A(f"v_pk_mul_f32 v[{g}:{g+1}], v[{g}:{g+1}], v[{e}:{e+1}]")
        o = EO + 4 * (n % 2)
        for i, (g, up, cg, cu) in enumerate(prs):
            A(f"v_cvt_pk_bf16_f32 v{o+i}, v{g}, v{g+1}")
        A(f"global_store_dwordx4 v{194+u}, v[{o}:{o+3}], s[{S_WS}:{S_WS+1}] offset:{1024*T} sc1")
        n += 1
ts(4, 2)
A("s_waitcnt vmcnt(8)")
gemm2_base(6, PRE, 128)
ts(5, 2)
A(f"""s_lshl_b32 s{S_T0}, s{S_C}, 1
s_and_b32 s{S_T0+1}, s{S_WAVE}, 1
s_add_u32 s{S_T0}, s{S_T0}, s{S_T0+1}
s_lshl_b32 s{S_T0+1}, s{S_CB}, 1
s_lshr_b32 s{S_T0+2}, s{S_WAVE}, 1
s_add_u32 s{S_T0+1}, s{S_T0+1}, s{S_T0+2}""")
publish_flag(None)
ts(6, 2)
gemm2_compute(6, False)

A.label("L_ssm_compute")
A(f"s_cmp_ge_u32 s{S_WAVE}, 2\ns_cbranch_scc1 L_ssm_rs")
side_stats(160, zero_regs(0, 160))
A("s_branch L_ssm_go")
A.label("L_ssm_rs")
side_rowsum_ssm(160, zero_regs(0, 160))
A.label("L_ssm_go")
ts(1, 2)
rowpat_read(232, 234)
A(f"""s_lshr_b32 s{S_T0}, s{S_WAVE}, 1
s_mul_i32 s{S_T0}, s{S_T0}, 5120
s_add_u32 s{S_T0}, s{S_T0}, 8192
v_add_u32 v233, s{S_T0}, v232
s_and_b32 s{S_T0}, s{S_WAVE}, 1
s_lshl_b32 s{S_T0}, s{S_T0}, 12
v_add_u32 v232, s{S_T0}, v232""")
lg, entry, AX, AW = gemm1_loop("ssm")
A("s_waitcnt lgkmcnt(0)")
ts(3, 2)
PRE2 = 236
gemm2_pre_loads(2, PRE2)
def acc(G, c, m, r=0):
    return ((G * 2 + c) * 4 + m) * 4 + r
SM, SR_ = 160, 176
SCS = 192
SLAM = 202
SK = 212
SA = 222
A(f"""s_and_b32 s{S_T0}, s{S_WAVE}, 1
s_lshl_b32 s{S_T0}, s{S_T0}, 8
s_add_u32 s{S_T0}, s{S_T0}, {M_ROW}
v_lshrrev_b32 v{SA}, 4, v{VL}
v_lshlrev_b32 v{SA}, 4, v{SA}
v_add_u32 v{SA}, s{S_T0}, v{SA}
s_lshr_b32 s{S_T0+1}, s{S_WAVE}, 1
s_mul_i32 s{S_T0+1}, s{S_T0+1}, 80
v_and_b32 v{SA+1}, 15, v{VL}
v_add_u32 v{SA+1}, s{S_T0+1}, v{SA+1}
v_lshlrev_b32 v{SA+2}, 2, v{SA+1}
v_add_u32 v{SA+3}, {M_CS}, v{SA+2}
v_lshlrev_b32 v{SA+4}, 3, v{SA+1}
v_add_u32 v{SA+4}, {M_LAM}, v{SA+4}""")
for m in range(4):
    A(f"ds_read_b128 v[{SM+4*m}:{SM+4*m+3}], v{SA} offset:{64*m}")
    A(f"ds_read_b128 v[{SR_+4*m}:{SR_+4*m+3}], v{SA} offset:{512+64*m}")
for G in range(5):
    A(f"ds_read_b32 v{SCS+2*G}, v{SA+3} offset:{64*G}")
    A(f"ds_read_b32 v{SCS+2*G+1}, v{SA+3} offset:{640+64*G}")
for G in range(5):
    A(f"ds_read_b64 v[{SLAM+2*G}:{SLAM+2*G+1}], v{SA+4} offset:{128*G}")
    A(f"ds_read_b64 v[{SK+2*G}:{SK+2*G+1}], v{SA+4} offset:{M_COEF-M_LAM+128*G}")
A(f"""s_and_b32 s{S_T0}, s{S_WAVE}, 1
s_mul_i32 s{S_T0}, s{S_T0}, {8*1280}
s_add_u32 s{S_T0}, s{S_T0}, {E_BASE}
v_lshrrev_b32 v{SA+5}, 4, v{VL}
v_mul_u32_u24 v{SA+5}, 2560, v{SA+5}
v_add3_u32 v{SA+5}, v{SA+5}, v{SA+2}, s{S_T0}
s_waitcnt lgkmcnt(0)""")
def pk(op, d, a, b, c=None, sa=None, sb=None, sc=None, neg=None):
    ops = [a, b] + ([c] if c is not None else [])
    sel = [sa, sb] + ([sc] if c is not None else [])
    lo = [0 if s is None else s for s in sel]
    hi = [1 if s is None else s for s in sel]
    t = f"v_pk_{op}_f32 v[{d}:{d+1}], " + ", ".join(f"v[{o}:{o+1}]" for o in ops)
    t += " op_sel:[" + ",".join(map(str, lo)) + "] op_sel_hi:[" + ",".join(map(str, hi)) + "]"
    if neg is not None:
        nn = [1 if i == neg else 0 for i in range(len(ops))]
        t += " neg_lo:[" + ",".join(map(str, nn)) + "] neg_hi:[" + ",".join(map(str, nn)) + "]"
    A(t)
for m in range(4):
    for h in (0, 2):
        for G in range(5):
            for c in range(2):
                a = acc(G, c, m, h)
                pk("fma", a, SM + 4 * m + h, SCS + 2 * G, a, sb=c, neg=1)
        for G in range(5):
            for c in range(2):
                a = acc(G, c, m, h)
                pk("mul", a, a, SR_ + 4 * m + h)
steps = [(m, h) for m in range(4) for h in (0, 2)]
for k in range(1, 8):
    (m, h), (pm, ph) = steps[k], steps[k - 1]
    for G in range(5):
        pk("fma", acc(G, 0, m, h), acc(G, 0, pm, ph), SLAM + 2 * G, acc(G, 0, m, h), sb=0)
        pk("fma", acc(G, 1, m, h), acc(G, 1, pm, ph), SLAM + 2 * G, acc(G, 1, m, h), sb=0)
    for G in range(5):
        pk("fma", acc(G, 0, m, h), acc(G, 1, pm, ph), SLAM + 2 * G, acc(G, 0, m, h), sb=1, neg=1)
        pk("fma", acc(G, 1, m, h), acc(G, 0, pm, ph), SLAM + 2 * G, acc(G, 1, m, h), sb=1)
for G in range(5):
    for c in range(2):
        for e in range(2):
            A(f"ds_write_b32 v{SA+5}, v{acc(G,c,3,2+e)} offset:{e*1280+c*640+64*G}")
A("s_waitcnt lgkmcnt(0)\ns_barrier")
ts(4, 2)
for m, h in steps:
    for G in range(5):
        t = SM + 2 * G
        pk("mul", t, acc(G, 0, m, h), SK + 2 * G, sb=1)
    for G in range(5):
        pk("mul", acc(G, 0, m, h), acc(G, 0, m, h), SK + 2 * G, sb=0)
    for G in range(5):
        pk("fma", acc(G, 0, m, h), acc(G, 1, m, h), SK + 2 * G, acc(G, 0, m, h), sb=1)
    for G in range(5):
        t = SM + 2 * G
        pk("fma", acc(G, 1, m, h), acc(G, 1, m, h), SK + 2 * G, t, sb=0, neg=1)
A(f"""s_mul_i32 s{S_T0}, s{S_WAVE}, 20480
s_add_u32 s{S_T0}, s{S_T0}, {TR_BASE}
v_and_b32 v{SA}, 7, v{VL}
v_bfe_u32 v{SA+1}, v{VL}, 3, 1
v_lshlrev_b32 v{SA+1}, 2, v{SA+1}
v_xor_b32 v{SA}, v{SA}, v{SA+1}                ; f
v_lshrrev_b32 v{SA+1}, 4, v{VL}
v_lshlrev_b32 v{SA+1}, 1, v{SA+1}
v_xor_b32 v{SA}, v{SA}, v{SA+1}                ; (2q) ^ f
v_and_b32 v{SA+1}, 15, v{VL}
v_lshlrev_b32 v{SA+1}, 7, v{SA+1}
v_lshl_add_u32 v{SA}, v{SA}, 4, v{SA+1}
v_add_u32 v{SA}, s{S_T0}, v{SA}                ; e = 0
v_xor_b32 v{SA+1}, 16, v{SA}                   ; e = 1
v_lshrrev_b32 v{SA+2}, 4, v{VL}                ; q
v_bfe_u32 v{SA+3}, v{VL}, 2, 2                 ; rr
v_and_b32 v{SA+4}, 1, v{SA+2}
v_lshl_add_u32 v{SA+4}, v{SA+4}, 2, v{SA+3}
v_bfe_u32 v{SA+6}, v{VL}, 1, 1                 ; cc>>1
v_xor_b32 v{SA+4}, v{SA+4}, v{SA+6}
v_lshl_add_u32 v{SA+2}, v{SA+2}, 3, v{SA+3}    ; row
v_lshlrev_b32 v{SA+2}, 7, v{SA+2}
v_lshl_add_u32 v{SA+2}, v{SA+4}, 4, v{SA+2}
v_and_b32 v{SA+3}, 1, v{VL}
v_lshl_add_u32 v{SA+2}, v{SA+3}, 3, v{SA+2}
v_add_u32 v{SA+2}, s{S_T0}, v{SA+2}""")
TA = 176
for Tq in range(4):
    A(f"v_xor_b32 v{TA+2*Tq}, {32*Tq}, v{SA+2}")
    A(f"v_xor_b32 v{TA+2*Tq+1}, {(32*Tq) ^ 64}, v{SA+2}")
A(f"""s_lshl_b32 s{S_T0}, s{S_C}, 1
s_and_b32 s{S_T0+1}, s{S_WAVE}, 1
s_add_u32 s{S_T0}, s{S_T0}, s{S_T0+1}
s_mul_i32 s{S_T0}, s{S_T0}, 88
s_mul_i32 s{S_T0+1}, s{S_CB}, 10
s_add_u32 s{S_T0}, s{S_T0}, s{S_T0+1}
s_lshr_b32 s{S_T0+1}, s{S_WAVE}, 1
s_mul_i32 s{S_T0+1}, s{S_T0+1}, 5
s_add_u32 s{S_T0}, s{S_T0}, s{S_T0+1}
s_add_u32 s{S_T0}, s{S_T0}, 48
s_lshl_b32 s{S_T0}, s{S_T0}, 12
s_add_u32 s{S_T0}, s{S_T0}, {WS_ACT}
v_lshlrev_b32 v{SA+3}, 4, v{VL}
v_add_u32 v{SA+3}, s{S_T0}, v{SA+3}""")
A("s_barrier")
ts(5, 2)
SW = 184
SW = 182
def W(G, c):
    idx = G * 2 + c
    return (160 + 2 * idx) if idx < 8 else (192 + 2 * (idx - 8))
for G in range(5):
    for c in range(2):
        for e in range(2):
            A(f"ds_read_b32 v{W(G,c)+e}, v{SA+5} offset:{e*1280+c*640+64*G}")
A("s_waitcnt lgkmcnt(0)")
WT = 184
def WTm(G):
    return (184 + 2 * G) if G < 4 else 196
for k, (m, h) in enumerate(steps):
    for G in range(5):
        for c in range(2):
            pk("add", acc(G, c, m, h), acc(G, c, m, h), W(G, c))
    if k < 7:
        for G in range(5):
            pk("mul", WTm(G), W(G, 0), SLAM + 2 * G, sb=1)
        for G in range(5):
            pk("mul", W(G, 0), W(G, 0), SLAM + 2 * G, sb=0)
        for G in range(5):
            pk("fma", W(G, 0), W(G, 1), SLAM + 2 * G, W(G, 0), sb=1)
        for G in range(5):
            pk("fma", W(G, 1), W(G, 1), SLAM + 2 * G, WTm(G), sb=0, neg=2)
PK = 160
for G in range(5):
    for c in range(2):
        o = PK + 8 * c
        for e in range(2):
            for m in range(4):
                A(f"v_cvt_pk_bf16_f32 v{o+4*e+m}, v{acc(G,c,m,e)}, v{acc(G,c,m,2+e)}")
        for e in range(2):
            A(f"ds_write_b128 v{SA+e}, v[{o+4*e}:{o+4*e+3}] offset:{G*4096+c*2048}")
lg = Queue(A, "lgkmcnt", 15)
A("s_waitcnt lgkmcnt(0)")
def trG(G):
    for Tq in range(4):
        b = G * 16 + Tq * 4
        A(f"ds_read_b64_tr_b16 v[{b}:{b+1}], v{TA+2*Tq} offset:{G*4096}")
        A(f"ds_read_b64_tr_b16 v[{b+2}:{b+3}], v{TA+2*Tq+1} offset:{G*4096+512}")
        lg.issue(("t", G, Tq)); lg.issue(("t", G, Tq))
trG(0)
for G in range(5):
    if G < 4:
        trG(G + 1)
    for Tq in range(4):
        lg.wait(("t", G, Tq))
        b = G * 16 + Tq * 4
        A(f"global_store_dwordx4 v{SA+3}, v[{b}:{b+3}], s[{S_WS}:{S_WS+1}] offset:{1024*Tq} sc1")
    if G < 4:
        A(f"v_add_u32 v{SA+3}, 4096, v{SA+3}")
A("s_waitcnt vmcnt(20)")
gemm2_base(2, PRE2, 96 + 64)
A(f"""s_lshl_b32 s{S_T0}, s{S_C}, 1
s_and_b32 s{S_T0+1}, s{S_WAVE}, 1
s_add_u32 s{S_T0}, s{S_T0}, s{S_T0+1}
s_lshl_b32 s{S_T0+1}, s{S_CB}, 1
s_lshr_b32 s{S_T0+2}, s{S_WAVE}, 1
s_add_u32 s{S_T0+1}, s{S_T0+1}, s{S_T0+2}
s_add_u32 s{S_T0+1}, s{S_T0+1}, 24""")
publish_flag(None)
ts(6, 2)
gemm2_compute(2, True)

S_LW = 85
def rowpat_load(dst, tmp, ssm):
    A(f"""v_lshrrev_b32 v{tmp}, 4, v{VL}
    v_sub_u32 v{tmp+1}, 0, v{tmp}
    v_xor_b32 v{tmp+1}, v{tmp+1}, v{VL}
    v_and_b32 v{tmp+1}, 3, v{tmp+1}              ; chunk""")
    if ssm:
        A(f"""v_lshlrev_b32 v{tmp}, 4, v{tmp}
        v_bfe_u32 v{dst}, v{VL}, 2, 1
        v_lshl_add_u32 v{tmp}, v{dst}, 3, v{tmp}
        v_bfe_u32 v{dst}, v{VL}, 3, 1
        v_add_u32 v{tmp}, v{tmp}, v{dst}""")
    else:
        A(f"v_lshrrev_b32 v{tmp}, 2, v{VL}")
    A(f"""v_mul_u32_u24 v{dst}, 1280, v{tmp}
    v_lshl_add_u32 v{dst}, v{tmp+1}, 4, v{dst}""")

def g2_loader_setup(NU, VW, VC, tmp):
    srd(SRD_W2, S_W2, 1966080)
    A(f"s_cmp_ge_u32 s{S_LW}, 2")
    srd_sel(SRD_C, S_CIM, S_CRE, 819200)
    CH = 2 * NU
    magic = (65536 + CH - 1) // CH
    for i in range(NU):
        A(f"""s_mul_i32 s{S_T0}, s{S_LW}, {NU*64}
        s_add_u32 s{S_T0}, s{S_T0}, {64*i}
        v_add_u32 v{tmp}, s{S_T0}, v{VL}               ; n
        v_mul_u32_u24 v{tmp+1}, {magic}, v{tmp}
        v_lshrrev_b32 v{tmp+1}, 16, v{tmp+1}           ; row
        v_mul_u32_u24 v{tmp+2}, {CH}, v{tmp+1}
        v_sub_u32 v{tmp}, v{tmp}, v{tmp+2}             ; pos
        v_bfe_u32 v{tmp+2}, v{tmp+1}, 2, 1
        v_lshlrev_b32 v{tmp+2}, 1, v{tmp+2}
        v_xor_b32 v{tmp}, v{tmp}, v{tmp+2}
        v_mul_u32_u24 v{tmp+1}, 1280, v{tmp+1}
        v_lshl_add_u32 v{tmp}, v{tmp}, 4, v{tmp+1}
        s_lshl_b32 s{S_T0}, s{S_DCOL}, 1
        v_add_u32 v{VW+i}, s{S_T0}, v{tmp}""")
        A(f"""s_and_b32 s{S_T0}, s{S_LW}, 1
        s_mul_i32 s{S_T0}, s{S_T0}, {NU*8}
        s_add_u32 s{S_T0}, s{S_T0}, {8*i}
        v_lshrrev_b32 v{tmp}, 3, v{VL}
        v_add_u32 v{tmp}, s{S_T0}, v{tmp}              ; row
        v_lshrrev_b32 v{tmp+1}, 1, v{tmp}
        v_xor_b32 v{tmp+1}, v{tmp+1}, v{VL}
        v_and_b32 v{tmp+1}, 7, v{tmp+1}
        v_add_u32 v{tmp}, s{S_DCOL}, v{tmp}
        v_mul_u32_u24 v{tmp}, 1280, v{tmp}
        v_lshl_add_u32 v{VC+i}, v{tmp+1}, 4, v{tmp}""")
    for n in range(CH * 128):
        assert (n * magic) >> 16 == n // CH

def g2_issue(vm, NU, s, slotbase, VW, VC):
    A(f"s_add_u32 s{S_T0}, s{S_T0+8}, {slotbase}")
    if s < 12:
        A(f"s_mov_b32 s{S_T0+1}, {s*128*1280}")
    else:
        A(f"s_mov_b32 s{S_T0+1}, {(s-12)*128}")
    for i in range(NU):
        A(f"s_add_u32 m0, s{S_T0}, {1024*i}\ns_nop 0")
        if s < 12:
            A(f"buffer_load_dwordx4 v{VW+i}, s[{SRD_W2}:{SRD_W2+3}], s{S_T0+1} offen lds")
        else:
            A(f"buffer_load_dwordx4 v{VC+i}, s[{SRD_C}:{SRD_C+3}], s{S_T0+1} offen lds")
        vm.issue(("g2", s))

def poll_ssm_flags(vm, T):
    lr, lo = A.newlabel("L_sf"), A.newlabel("L_sf")
    A(f"""s_cmp_lg_u32 s{S_LW}, 3
    s_cbranch_scc1 {lo}
    s_lshl_b32 s{S_T0}, s{S_HB2}, 7
    s_add_u32 s{S_T0}, s{S_T0}, {WS_FLAG+96}
    v_and_b32 v{T}, 7, v{VL}
    v_lshlrev_b32 v{T}, 2, v{T}
    v_add_u32 v{T}, s{S_T0}, v{T}""")
    A.label(lr)
    A(f"""global_load_dword v{T+1}, v{T}, s[{S_WS}:{S_WS+1}] sc1
    s_waitcnt vmcnt(0)
    v_cmp_ne_u32 vcc, s{S_NONCE}, v{T+1}
    s_nop 1
    s_cbranch_vccz {lo}""")
    spin_tail(lr, lo, 3)
    A.label(lo)

def bump_epoch(T):
    lr, lo = A.newlabel("L_ep"), A.newlabel("L_ep")
    ld = A.newlabel("L_ep")
    A(f"""s_cmp_lg_u32 s2, 0
    s_cbranch_scc1 {ld}
    s_cmp_lg_u32 s{S_LW}, 2
    s_cbranch_scc1 {ld}
    v_lshlrev_b32 v{T}, 4, v{VL}
    v_add_u32 v{T}, {WS_FLAG}, v{T}""")
    A.label(lr)
    for i in range(4):
        A(f"global_load_dwordx4 v[{T+4+4*i}:{T+7+4*i}], v{T}, s[{S_WS}:{S_WS+1}] offset:{1024*i} sc1")
    A(f"s_waitcnt vmcnt(0)\ns_mov_b64 s[{S_M0}:{S_M0+1}], 0")
    for i in range(16):
        A(f"v_cmp_ne_u32 vcc, s{S_NONCE}, v{T+4+i}\ns_nop 1\ns_or_b64 s[{S_M0}:{S_M0+1}], s[{S_M0}:{S_M0+1}], vcc")
    A(f"s_cmp_eq_u64 s[{S_M0}:{S_M0+1}], 0\ns_cbranch_scc1 {lo}")
    spin_tail(lr, lo, 4)
    A.label(lo)
    A(f"""v_mov_b32 v{T}, {WS_E}
    v_mov_b32 v{T+1}, s{S_NONCE}
    s_mov_b64 exec, 1
    global_store_dword v{T}, v{T+1}, s[{S_WS}:{S_WS+1}] sc1
    s_mov_b64 exec, -1""")
    A.label(ld)

def g2_loader_loop(vm, NU, slot0, NS2, issued_upto, VW, VC, first_barrier_done):
    SL = NU * 4096
    nxt = issued_upto + 1
    for s in range(0 if not first_barrier_done else 1, 22):
        vm.wait(("g2", s))
        if s == 13 - DA:
            poll_ssm_flags(vm, 60)
        A("s_barrier")
        if s >= 1 and nxt < 22 and nxt <= s - 1 + NS2:
            g2_issue(vm, NU, nxt, ((slot0 + nxt) % NS2) * SL, VW, VC)
            nxt += 1
    A("s_barrier")
    bump_epoch(64)
    ts(9, 2)
    ts_flush(100)
    A("s_endpgm")

A.label("L_loader")
A(f"""s_sub_u32 s{S_LW}, s{S_WAVE}, 4
s_cmp_eq_u32 s{S_J}, 0
s_cbranch_scc1 L_ssm_loader""")

def stat_unpack(p, m, r):
    A(f"""v_and_b32 v{r}, 0xffff0000, v{p}
    v_lshlrev_b32 v{m}, 16, v{p}""")

VX, VWW = 2, 4
rowpat_load(2, 10, False)
A(f"""s_mul_i32 s{S_T0}, s{S_C}, 163840
s_mul_i32 s{S_T0+1}, s{S_LW}, {32*1280}
s_add_u32 s{S_T0}, s{S_T0}, s{S_T0+1}
v_add_u32 v2, s{S_T0}, v2
v_add_u32 v3, {16*1280}, v2
v_lshrrev_b32 v10, 4, v{VL}
s_and_b32 s{S_T0}, s{S_LW}, 1
s_lshl_b32 s{S_T0}, s{S_T0}, 2
v_or_b32 v11, s{S_T0}, v10                ; swizzle
v_lshlrev_b32 v11, 1, v11
v_and_b32 v12, 15, v{VL}
v_xor_b32 v11, v11, v12
v_mul_u32_u24 v10, 3072, v10
v_lshl_add_u32 v10, v11, 4, v10
s_mul_i32 s{S_T0}, s{S_LW}, {8*3072}
s_lshl_b32 s{S_T0+1}, s{S_CB}, 8
s_add_u32 s{S_T0}, s{S_T0}, s{S_T0+1}
v_add_u32 v4, s{S_T0}, v10
v_add_u32 v5, {4*3072}, v4
s_lshl_b32 s{S_T0+9}, s{S_LW}, 11
s_mov_b32 s{S_KX}, 0
s_mov_b32 s{S_KW}, 0""")
vm = Queue(A, "vmcnt", 63)
def mlp_issue(u, dyn=False):
    if dyn:
        A(f"s_add_u32 s{S_T0}, s{S_T0+9}, s{S_SLOT}")
    else:
        A(f"s_add_u32 s{S_T0}, s{S_T0+9}, {(u % 6) * 24576}")
    for off, v, sd, so in ((0, 2, SRD_X, S_KX), (8192, 4, SRD_WA, S_KW), (16384, 4, SRD_WB, S_KW),
                           (1024, 3, SRD_X, S_KX), (9216, 5, SRD_WA, S_KW), (17408, 5, SRD_WB, S_KW)):
        A(f"s_add_u32 m0, s{S_T0}, {off}\ns_nop 0")
        A(f"buffer_load_dwordx4 v{v}, s[{sd}:{sd+3}], s{so} offen lds")
        vm.issue(("g1", u))
    A(f"s_add_u32 s{S_KX}, s{S_KX}, 64\ns_add_u32 s{S_KW}, s{S_KW}, {32*3072}")
for u in range(5):
    mlp_issue(u)
ts(1, 2)
VW2, VC2 = 20, 30
g2_loader_setup(6, VW2, VC2, 10)
A(f"s_mul_i32 s{S_T0+8}, s{S_LW}, 6144")
A(f"""s_mul_i32 s{S_T0}, s{S_LW}, {1536*8}
s_lshl_b32 s{S_T0+1}, s{S_CB}, 10
s_add_u32 s{S_T0}, s{S_T0}, s{S_T0+1}
s_add_u32 s{S_T0}, s{S_T0}, {WS_CSW}
s_lshl_b32 s{S_T0+1}, s{S_C}, 10
s_add_u32 s{S_T0+1}, s{S_T0+1}, {WS_STAT}
s_cmp_ge_u32 s{S_LW}, 2
s_cselect_b32 s{S_T0}, s{S_T0+1}, s{S_T0}
s_cselect_b32 s{S_T0+1}, 0, {3072*8}
v_lshlrev_b32 v40, 4, v{VL}
v_add_u32 v40, s{S_T0}, v40
v_add_u32 v41, s{S_T0+1}, v40
v_add_u32 v42, s{S_T0+1}, v41
v_add_u32 v43, s{S_T0+1}, v42""")
nonce_ready()
vm.wait(("g1", 0))
A("s_barrier")
ts(2, 2)
A(f"s_mov_b32 s{S_CNT}, 1\ns_mov_b32 s{S_SLOT}, {5*24576}")
A.label("L_ml_loop")
A("s_waitcnt vmcnt(18)\ns_barrier")
q0 = list(vm.q)
mlp_issue(5, dyn=True)
A(f"""s_add_u32 s{S_SLOT}, s{S_SLOT}, 24576
s_cmp_eq_u32 s{S_SLOT}, {6*24576}
s_cselect_b32 s{S_SLOT}, 0, s{S_SLOT}
s_add_u32 s{S_CNT}, s{S_CNT}, 1
s_cmp_lt_u32 s{S_CNT}, 15
s_cbranch_scc1 L_ml_loop""")
vm.q = [("g1", u) for u in range(15, 19) for _ in range(6)]
def gran_loads():
    for i in range(4):
        A(f"global_load_dwordx4 v[{44+4*i}:{47+4*i}], v{40+i}, s[{S_WS}:{S_WS+1}] sc1")
for u in range(15, 21):
    if u <= 19:
        vm.wait(("g1", u))
    if u == 19:
        vm.wait("gran")
        lr, lo, lskip, lstat = A.newlabel("L_gr"), A.newlabel("L_gr"), A.newlabel("L_gr"), A.newlabel("L_gr")
        A(f"s_cmp_eq_u32 s{S_LW}, 2\ns_cbranch_scc1 {lskip}")
        A.label(lr)
        A(f"s_mov_b64 s[{S_M0}:{S_M0+1}], 0")
        for i in range(8):
            A(f"v_cmp_ne_u32 vcc, s{S_NONCE}, v{45+2*i}\ns_nop 1\ns_or_b64 s[{S_M0}:{S_M0+1}], s[{S_M0}:{S_M0+1}], vcc")
        A(f"s_cmp_eq_u64 s[{S_M0}:{S_M0+1}], 0\ns_cbranch_scc1 {lo}")
        gran_loads()
        A("s_waitcnt vmcnt(0)")
        spin_tail(lr, lo, 5)
        A.label(lo)
        A(f"s_cmp_eq_u32 s{S_LW}, 3\ns_cbranch_scc1 {lstat}")
        A(f"""v_add_f32 v44, v44, v48
        v_add_f32 v46, v46, v50
        v_add_f32 v52, v52, v56
        v_add_f32 v54, v54, v58
        v_add_f32 v44, v44, v52
        v_add_f32 v45, v46, v54
        s_lshl_b32 s{S_T0}, s{S_LW}, 9
        s_add_u32 s{S_T0}, s{S_T0}, {M_CS}
        v_lshlrev_b32 v46, 3, v{VL}
        v_add_u32 v46, s{S_T0}, v46
        ds_write_b64 v46, v[44:45]
        s_branch {lskip}""")
        A.label(lstat)
        for hrow, p in ((0, 44), (1, 46)):
            o = 48 + 4 * hrow
            A(f"""v_and_b32 v{o+2}, 0xffff0000, v{p}
            v_lshlrev_b32 v{o}, 16, v{p}
            v_rcp_f32 v{o+1}, v{o+2}
            v_mul_f32 v{o+2}, v{o+2}, v{o+2}
            v_mul_f32 v{o+1}, {NLOG2E}, v{o+1}""")
        A(f"""v_lshlrev_b32 v46, 5, v{VL}
        v_add_u32 v46, {M_ROW}, v46
        ds_write_b128 v46, v[48:51]
        ds_write_b128 v46, v[52:55] offset:16""")
        A.label(lskip)
        A("s_waitcnt lgkmcnt(0)")
    A("s_barrier")
    if u + 4 <= 19:
        mlp_issue(u + 4)
        if u + 4 == 19:
            gran_loads()
            for i in range(4):
                vm.issue("gran")
    elif u <= 19:
        g2_issue(vm, 6, u + 4 - 20, ((u + 4) % 6) * 24576, VW2, VC2)
vm.wait(("g2", 0))
A("s_barrier")
ts(3, 2)
g2_issue(vm, 6, 4, (24 % 6) * 24576, VW2, VC2)
g2_issue(vm, 6, 5, (25 % 6) * 24576, VW2, VC2)
g2_loader_loop(vm, 6, 2, 6, 5, VW2, VC2, True)

A.label("L_ssm_loader")
rowpat_load(2, 10, True)
rowpat_load(4, 10, False)
A(f"""s_mul_i32 s{S_T0}, s{S_C}, 163840
s_lshr_b32 s{S_T0+1}, s{S_LW}, 1
s_mul_i32 s{S_T0+1}, s{S_T0+1}, {64*1280}
s_add_u32 s{S_T0}, s{S_T0}, s{S_T0+1}
s_and_b32 s{S_T0+1}, s{S_LW}, 1
s_mul_i32 s{S_T0+1}, s{S_T0+1}, {4*1280}
s_add_u32 s{S_T0}, s{S_T0}, s{S_T0+1}
v_add_u32 v2, s{S_T0}, v2
v_add_u32 v3, {2*1280}, v2
s_mul_i32 s{S_T0}, s{S_CB}, {160*1280}
s_and_b32 s{S_T0+1}, s{S_LW}, 1
s_mul_i32 s{S_T0+1}, s{S_T0+1}, {80*1280}
s_add_u32 s{S_T0}, s{S_T0}, s{S_T0+1}
v_add_u32 v4, s{S_T0}, v4""")
for i in range(1, 5):
    A(f"v_add_u32 v{4+i}, {16*1280*i}, v4")
A(f"s_cmp_ge_u32 s{S_LW}, 2")
srd_sel(SRD_T, S_BIM, S_BRE, 819200)
A(f"""s_lshl_b32 s{S_T0+9}, s{S_LW}, 11
s_mul_i32 s{S_KW}, s{S_LW}, 5120
s_add_u32 s{S_KW}, s{S_KW}, 8192
s_mov_b32 s{S_KX}, 0""")
vm = Queue(A, "vmcnt", 63)
def ssm_issue(u, dyn=False):
    sl = f"s{S_SLOT}" if dyn else str((u % 5) * 28672)
    A(f"s_add_u32 s{S_T0}, s{S_T0+9}, {sl}\ns_add_u32 s{S_T0+1}, s{S_KW}, {sl}")
    seq = [(S_T0, 0, 2, SRD_X), (S_T0 + 1, 0, 4, SRD_T), (S_T0 + 1, 1024, 5, SRD_T), (S_T0, 1024, 3, SRD_X),
           (S_T0 + 1, 2048, 6, SRD_T), (S_T0 + 1, 3072, 7, SRD_T), (S_T0 + 1, 4096, 8, SRD_T)]
    for sb, off, v, sd in seq:
        A(f"s_add_u32 m0, s{sb}, {off}\ns_nop 0")
        A(f"buffer_load_dwordx4 v{v}, s[{sd}:{sd+3}], s{S_KX} offen lds")
        vm.issue(("g1", u))
    A(f"s_add_u32 s{S_KX}, s{S_KX}, 64")
for u in range(5):
    ssm_issue(u)
ts(1, 2)
CN = 100
LR, LI = 102, 103
L8, L128, KL = 104, 106, 108
A(f"""s_lshl_b32 s{S_T0}, s{S_LW}, 6
v_add_u32 v{CN}, s{S_T0}, v{VL}
v_min_u32 v{CN}, 159, v{CN}
s_mul_i32 s{S_T0}, s{S_CB}, 160
v_add_u32 v110, s{S_T0}, v{CN}
v_lshlrev_b32 v110, 1, v110
global_load_ushort v111, v110, s[{S_LRE}:{S_LRE+1}]
global_load_ushort v112, v110, s[{S_LIM}:{S_LIM+1}]
global_load_ushort v113, v110, s[{S_LDT}:{S_LDT+1}]""")
for i in range(3):
    vm.issue("const")
VW2, VC2 = 20, 30
g2_loader_setup(2, VW2, VC2, 10)
A(f"s_lshl_b32 s{S_T0+8}, s{S_LW}, 11")
A(f"""v_cmp_le_u32 vcc, 80, v{CN}
v_mov_b32 v41, 0
v_mov_b32 v42, {640-160}
v_cndmask_b32 v41, v41, v42, vcc
v_lshl_add_u32 v41, v{CN}, 1, v41
s_mul_i32 s{S_T0}, s{S_CB}, 160
v_add_u32 v41, s{S_T0}, v41
v_lshlrev_b32 v41, 3, v41
v_add_u32 v41, {WS_CSB}, v41
s_lshl_b32 s{S_T0+1}, s{S_C}, 10
s_add_u32 s{S_T0+1}, s{S_T0+1}, {WS_STAT}
v_lshlrev_b32 v40, 4, v{VL}
v_add_u32 v40, s{S_T0+1}, v40
s_cmp_eq_u32 s{S_LW}, 3
s_cselect_b64 vcc, -1, 0
s_nop 1
v_cndmask_b32 v40, v41, v40, vcc""")
nonce_ready()
vm.wait(("g1", 0))
A("s_barrier")
ts(2, 2)
def cmul(d, a, b, t):
    A(f"""v_mul_f32 v{t}, v{a+1}, v{b+1}
    v_mul_f32 v{t+1}, v{a+1}, v{b}
    v_fma_f32 v{t}, v{a}, v{b}, -v{t}
    v_fma_f32 v{d+1}, v{a}, v{b+1}, v{t+1}
    v_mov_b32 v{d}, v{t}""")
def ssm_consts():
    A(f"""v_lshlrev_b32 v111, 16, v111
    v_lshlrev_b32 v112, 16, v112
    v_lshlrev_b32 v113, 16, v113
    v_mul_f32 v113, {LOG2E}, v113
    v_exp_f32 v113, v113
    v_mul_f32 v114, v111, v111
    v_fma_f32 v114, v112, v112, v114
    v_cvt_pk_bf16_f32 v113, v113, v113
    v_lshlrev_b32 v113, 16, v113              ; dt
    v_rcp_f32 v114, v114
    v_mul_f32 v115, v113, v111
    v_mul_f32 v116, v113, v112
    v_mul_f32 v115, {LOG2E}, v115
    v_mul_f32 v116, 0.15915494, v116
    v_exp_f32 v115, v115
    v_rndne_f32 v117, v116
    v_sub_f32 v116, v116, v117
    v_cos_f32 v117, v116
    v_sin_f32 v116, v116
    v_add_f32 v114, v114, v114
    v_mul_f32 v{LR}, v115, v117
    v_mul_f32 v{LI}, v115, v116
    v_add_f32 v115, -1.0, v{LR}
    v_mul_f32 v116, v{LI}, v112
    v_fma_f32 v116, v115, v111, v116
    v_mul_f32 v117, v115, v112
    v_fma_f32 v117, v{LI}, v111, -v117        ; Im
    v_mul_f32 v118, v116, v114
    v_mul_f32 v119, -v117, v114
    v_lshlrev_b32 v120, 3, v{CN}
    v_add_u32 v120, {M_LAM}, v120
    ds_write_b64 v120, v[{LR}:{LI}]
    ds_write_b64 v120, v[118:119] offset:{M_COEF-M_LAM}
    v_mul_f32 v{KL}, v118, v{LR}
    v_fma_f32 v{KL}, v119, v{LI}, v{KL}
    v_mul_f32 v{KL+1}, v119, v{LR}
    v_fma_f32 v{KL+1}, -v118, v{LI}, v{KL+1}""")
    cmul(L8, LR, LR, 114)
    cmul(L8, L8, L8, 114)
    cmul(L8, L8, L8, 114)
    cmul(L128, L8, L8, 114)
    for i in range(3):
        cmul(L128, L128, L128, 114)
for u in range(1, 3):
    vm.wait(("g1", u))
    A("s_barrier")
    if u == 2:
        ssm_issue(5)
vm.wait(("g1", 3))
A("s_barrier")
ssm_issue(6)
vm.wait(("g1", 4))
vm.wait("const")
ssm_consts()
A("s_barrier")
ssm_issue(7)
A(f"s_mov_b32 s{S_CNT}, 5\ns_mov_b32 s{S_SLOT}, {(8 % 5)*28672}")
A.label("L_sl_loop")
A("s_waitcnt vmcnt(14)\ns_barrier")
ssm_issue(8, dyn=True)
A(f"""s_add_u32 s{S_SLOT}, s{S_SLOT}, 28672
s_cmp_eq_u32 s{S_SLOT}, {5*28672}
s_cselect_b32 s{S_SLOT}, 0, s{S_SLOT}
s_add_u32 s{S_CNT}, s{S_CNT}, 1
s_cmp_lt_u32 s{S_CNT}, 16
s_cbranch_scc1 L_sl_loop""")
vm.q = [("g1", u) for u in range(16, 19) for _ in range(7)]
for u in range(16, 21):
    if u <= 19:
        vm.wait(("g1", u))
    if u == 19:
        vm.wait("gran")
        lr, lo, lskip, lstat = A.newlabel("L_gr"), A.newlabel("L_gr"), A.newlabel("L_gr"), A.newlabel("L_gr")
        A.label(lr)
        A(f"""v_cmp_ne_u32 vcc, s{S_NONCE}, v45
        v_cmp_ne_u32 s[{S_M0}:{S_M0+1}], s{S_NONCE}, v47
        s_nop 1
        s_or_b64 s[{S_M0}:{S_M0+1}], s[{S_M0}:{S_M0+1}], vcc
        s_cmp_eq_u64 s[{S_M0}:{S_M0+1}], 0
        s_cbranch_scc1 {lo}
        global_load_dwordx4 v[44:47], v40, s[{S_WS}:{S_WS+1}] sc1
        s_waitcnt vmcnt(0)""")
        spin_tail(lr, lo, 6)
        A.label(lo)
        A(f"""s_cmp_eq_u32 s{S_LW}, 3
        s_cbranch_scc1 {lstat}
        v_mov_b32 v45, v46
        v_lshlrev_b32 v46, 3, v{CN}
        v_add_u32 v46, {M_CS}, v46
        ds_write_b64 v46, v[44:45]
        s_branch {lskip}""")
        A.label(lstat)
        A(f"""v_and_b32 v48, 0xffff0000, v44
        v_and_b32 v49, 0xffff0000, v46
        v_rcp_f32 v48, v48
        v_rcp_f32 v49, v49
        v_lshlrev_b32 v44, 16, v44
        v_lshlrev_b32 v46, 16, v46
        v_and_b32 v50, 32, v{VL}
        v_lshlrev_b32 v50, 1, v50
        v_and_b32 v51, 3, v{VL}
        v_lshl_add_u32 v50, v51, 4, v50
        v_bfe_u32 v51, v{VL}, 3, 2
        v_lshl_add_u32 v50, v51, 2, v50
        v_bfe_u32 v51, v{VL}, 2, 1
        v_add_u32 v50, v50, v51
        v_lshlrev_b32 v50, 2, v50
        v_add_u32 v50, {M_ROW}, v50
        ds_write2_b32 v50, v44, v46 offset0:0 offset1:2
        ds_write2_b32 v50, v48, v49 offset0:128 offset1:130""")
        A.label(lskip)
        A("s_waitcnt lgkmcnt(0)")
    A("s_barrier")
    if u == 16:
        ssm_issue(19)
        A(f"global_load_dwordx4 v[44:47], v40, s[{S_WS}:{S_WS+1}] sc1")
        vm.issue("gran")
    if u == 18:
        for s in range(5):
            g2_issue(vm, 2, s, s * 8192, VW2, VC2)
A("s_barrier")
ts(4, 2)
lmid = A.newlabel("L_mid")
A(f"s_cmp_eq_u32 s{S_LW}, 3\ns_cbranch_scc1 {lmid}")
ME = 112
ML = 144
MT = 204
A(f"""v_lshlrev_b32 v{MT}, 2, v{CN}
v_add_u32 v{MT}, {E_BASE}, v{MT}""")
for j in range(16):
    A(f"ds_read_b32 v{ME+2*j}, v{MT} offset:{j*1280}")
    A(f"ds_read_b32 v{ME+2*j+1}, v{MT} offset:{j*1280+640}")
A(f"""s_lshl_b32 s{S_T0}, s{S_CB}, 4
s_mul_i32 s{S_T0}, s{S_T0}, 2560
s_add_u32 s{S_T0}, s{S_T0}, {WS_SCAN}
v_lshlrev_b32 v{MT+1}, 4, v{CN}
v_add_u32 v{MT+1}, s{S_T0}, v{MT+1}
s_mul_i32 s{S_T0}, s{S_C}, 2560
v_add_u32 v{MT+2}, s{S_T0}, v{MT+1}
s_waitcnt lgkmcnt(0)""")
for j in range(1, 16):
    e, p = ME + 2 * j, ME + 2 * j - 2
    A(f"""v_fma_f32 v{e}, v{L8}, v{p}, v{e}
    v_fma_f32 v{e+1}, v{L8}, v{p+1}, v{e+1}
    v_fma_f32 v{e}, -v{L8+1}, v{p+1}, v{e}
    v_fma_f32 v{e+1}, v{L8+1}, v{p}, v{e+1}""")
A(f"""v_mov_b32 v{MT+4}, v{ME+30}
v_mov_b32 v{MT+5}, s{S_NONCE}
v_mov_b32 v{MT+6}, v{ME+31}
v_mov_b32 v{MT+7}, s{S_NONCE}
global_store_dwordx4 v{MT+2}, v[{MT+4}:{MT+7}], s[{S_WS}:{S_WS+1}] sc1""")
ts(5, 2)
lr, lo, lld, lck, lh = [A.newlabel("L_lb") for _ in range(5)]
def lb_loads(lbl):
    A(f"v_mov_b32 v{MT+3}, v{MT+1}")
    for k in range(15):
        A(f"""s_cmp_le_u32 s{S_C}, {k}
        s_cbranch_scc1 {lbl}
        global_load_dwordx4 v[{ML+4*k}:{ML+4*k+3}], v{MT+3}, s[{S_WS}:{S_WS+1}] sc1
        v_add_u32 v{MT+3}, 2560, v{MT+3}""")
    A.label(lbl)
lb_loads(lld)
for j in range(15, 0, -1):
    d, p = ME + 2 * j, ME + 2 * j - 2
    A(f"""v_mul_f32 v{d}, v{KL}, v{p}
    v_mul_f32 v{d+1}, v{KL+1}, v{p}
    v_fma_f32 v{d}, v{KL+1}, v{p+1}, v{d}
    v_fma_f32 v{d+1}, -v{KL}, v{p+1}, v{d+1}""")
A(f"v_mov_b32 v{ME}, 0\nv_mov_b32 v{ME+1}, 0")
A.label(lr)
A(f"s_waitcnt vmcnt(0)\ns_mov_b64 s[{S_M0}:{S_M0+1}], 0")
for k in range(15):
    A(f"""s_cmp_le_u32 s{S_C}, {k}
    s_cbranch_scc1 {lck}
    v_cmp_ne_u32 vcc, s{S_NONCE}, v{ML+4*k+1}
    v_cmp_ne_u32 s[{S_M1}:{S_M1+1}], s{S_NONCE}, v{ML+4*k+3}
    s_nop 1
    s_or_b64 s[{S_M0}:{S_M0+1}], s[{S_M0}:{S_M0+1}], vcc
    s_or_b64 s[{S_M0}:{S_M0+1}], s[{S_M0}:{S_M0+1}], s[{S_M1}:{S_M1+1}]""")
A.label(lck)
A(f"s_cmp_eq_u64 s[{S_M0}:{S_M0+1}], 0\ns_cbranch_scc1 {lo}")
lb_loads(A.newlabel("L_lb"))
spin_tail(lr, lo, 7)
A.label(lo)
ts(6, 2)
H = MT + 4
A(f"v_mov_b32 v{H}, 0\nv_mov_b32 v{H+1}, 0")
for k in range(15):
    g = ML + 4 * k
    A(f"""s_cmp_le_u32 s{S_C}, {k}
    s_cbranch_scc1 {lh}
    v_fma_f32 v{g}, v{L128}, v{H}, v{g}
    v_fma_f32 v{g+2}, v{L128}, v{H+1}, v{g+2}
    v_fma_f32 v{g}, -v{L128+1}, v{H+1}, v{g}
    v_fma_f32 v{H+1}, v{L128+1}, v{H}, v{g+2}
    v_mov_b32 v{H}, v{g}""")
A.label(lh)
Q = MT + 6
A(f"""v_mul_f32 v{Q}, v{KL}, v{H}
v_mul_f32 v{Q+1}, v{KL+1}, v{H}
v_fma_f32 v{Q}, v{KL+1}, v{H+1}, v{Q}
v_fma_f32 v{Q+1}, -v{KL}, v{H+1}, v{Q+1}""")
for j in range(16):
    d = ME + 2 * j
    A(f"""v_add_f32 v{d}, v{d}, v{Q}
    v_add_f32 v{d+1}, v{d+1}, v{Q+1}""")
    if j < 15:
        A(f"""v_mul_f32 v{H}, v{L8+1}, v{Q}
        v_mul_f32 v{Q}, v{L8}, v{Q}
        v_fma_f32 v{Q}, v{L8+1}, v{Q+1}, v{Q}
        v_fma_f32 v{Q+1}, v{L8}, v{Q+1}, -v{H}""")
    A(f"""ds_write_b32 v{MT}, v{d} offset:{j*1280}
    ds_write_b32 v{MT}, v{d+1} offset:{j*1280+640}""")
A("s_waitcnt lgkmcnt(0)")
A.label(lmid)
A("s_barrier")
ts(7, 2)
g2_loader_loop(vm, 2, 0, 5, 4, VW2, VC2, False)

A.label("L_end")
A("s_endpgm")

hdr = open(os.path.join(os.path.dirname(__file__), "header.txt")).read()
print(hdr + f"""; @launch grid=(256,1,1) block=(512,1,1) lds=163840
.amdgcn_target "amdgcn-amd-amdhsa--gfx950"
.text
.globl {KNAME}
.p2align 8
.type {KNAME},@function
{KNAME}:""")
print(A.text(), end="")
print(f""".section .rodata,"a"
.p2align 6
.amdhsa_kernel {KNAME}
  .amdhsa_next_free_vgpr 256
  .amdhsa_next_free_sgpr 102
  .amdhsa_accum_offset 256
  .amdhsa_group_segment_fixed_size 0
  .amdhsa_kernarg_size 128
  .amdhsa_user_sgpr_count 2
  .amdhsa_user_sgpr_kernarg_segment_ptr 1
  .amdhsa_system_sgpr_workgroup_id_x 1
.end_amdhsa_kernel""")
```

```python
class Asm:
    def __init__(self):
        self.lines = []
        self.nlabel = 0
    def __call__(self, s=""):
        for l in s.split("\n"):
            l = l.strip()
            if l:
                self.lines.append(l)
    def c(self, s):
        self.lines.append("; " + s)
    def label(self, name):
        self.lines.append(name + ":")
    def newlabel(self, p="L"):
        self.nlabel += 1
        return f"{p}_{self.nlabel}"
    def text(self):
        out = []
        for l in self.lines:
            if l.endswith(":") or l.startswith(";") or l.startswith("."):
                out.append(l)
            else:
                out.append("    " + l)
        return "\n".join(out) + "\n"

def vr(b, n=1):
    return f"v{b}" if n == 1 else f"v[{b}:{b+n-1}]"
def sr(b, n=1):
    return f"s{b}" if n == 1 else f"s[{b}:{b+n-1}]"

class Queue:
    def __init__(self, asm, name, maxv):
        self.a = asm; self.name = name; self.q = []; self.maxv = maxv
    def issue(self, tag):
        self.q.append(tag)
    def need(self, tags):
        if not isinstance(tags, (list, set)):
            tags = [tags]
        last = -1
        for i, t in enumerate(self.q):
            if t in tags:
                last = i
        if last < 0:
            return None
        return len(self.q) - 1 - last
    def wait(self, tags):
        n = self.need(tags)
        if n is None:
            self.a.c(f"(no wait needed for {tags})")
            return
        n2 = min(n, self.maxv)
        self.a(f"s_waitcnt {self.name}({n2})")
        self.q = self.q[len(self.q) - n2:] if n2 > 0 else []
    def drain(self):
        self.a(f"s_waitcnt {self.name}(0)")
        self.q = []
    def throttle(self, n):
        if len(self.q) > n:
            self.a(f"s_waitcnt {self.name}({n})")
            self.q = self.q[len(self.q) - n:] if n > 0 else []
```

```python
import sys, os
sys.path.insert(0, os.path.dirname(__file__))
from asmlib import Asm, Queue, vr, sr

OPT = dict(ts=0, stop=0, DA=6, D1=4, D1S=5, timeout=1 << 20, nodma=0, nomfma=0, nobar=0, noread=0, rot=0, rot2=1, pf=0, stash=8, sg1=12, amod=1)
for a in sys.argv[1:]:
    k, v = a.split("=")
    OPT[k] = int(v)
P0 = OPT.get("p0", 3)
TS = OPT["ts"]; STOP = OPT["stop"]; DA = OPT["DA"]; D1 = OPT["D1"]

KNAME = "parallel_sum__ssm_conv_s5__glu_gated_swiglu__prompt_kernel"

WS_E = 0
WS_FLAG = 0x1000
WS_STAT = 0x4000
WS_CSB = 0x8000
WS_CSW = 0x10000
WS_SCAN = 0x40000
WS_TAB = 0x80000
WS_ACT = 0x100000
WS_TS = 0x1000000

MISC = 151552
WRING = 49152
SCR = 131072
M_ROW = MISC
M_CS = MISC + 2048
M_LAM = MISC + 3584
M_COEF = MISC + 4864
E_BASE = 40960
TR_BASE = 61440

S_X, S_LRE, S_LIM, S_BRE, S_BIM, S_CRE, S_CIM, S_LDT = 4, 6, 8, 10, 12, 14, 16, 18
S_DSK, S_W1, S_W3, S_W2, S_OUT, S_DBG, S_WS = 20, 24, 26, 28, 30, 32, 34
SRD_X, SRD_WA, SRD_WB, SRD_W2, SRD_C, SRD_T = 36, 40, 44, 48, 52, 56
S_XCD, S_IDX, S_C, S_J, S_CB, S_WAVE, S_NONCE = 60, 61, 62, 63, 64, 65, 66
S_HB2, S_DCOL = 67, 68
S_ONES = 69
S_T0 = 70
S_SLOT, S_KX, S_KW, S_CNT, S_DELTA = 80, 81, 82, 83, 84
S_AB = 86
S_M0, S_M1 = 88, 90
S_EX = 92
S_TO = 94
S_TS = 96
S_ROT, S_R2A, S_R2B, S_KB, S_KS = 95, 98, 99, 100, 101

A = Asm()
LOG2E = 0x3fb8aa3b
NLOG2E = 0xbfb8aa3b

def ts(idx, vtmp):
    if not TS:
        return

    A(f"""s_memrealtime s[{S_TS}:{S_TS+1}]
    s_waitcnt lgkmcnt(0)
    v_writelane_b32 v255, s{S_TS}, {idx}""")

def tc(idx):
    if not TS:
        return
    A(f"""s_memtime s[{S_TS}:{S_TS+1}]
    s_waitcnt lgkmcnt(0)
    v_writelane_b32 v255, s{S_TS}, {idx}""")

def ts_flush(vtmp):
    if not TS:
        return
    A(f"""s_lshl_b32 s{S_T0}, s2, 3
    s_add_u32 s{S_T0}, s{S_T0}, s{S_WAVE}
    s_lshl_b32 s{S_T0}, s{S_T0}, 8
    s_add_u32 s{S_T0}, s{S_T0}, {WS_TS}
    v_lshlrev_b32 v{vtmp}, 2, v{VL}
    v_add_u32 v{vtmp}, s{S_T0}, v{vtmp}
    global_store_dword v{vtmp}, v255, s[{S_WS}:{S_WS+1}]""")

def srd(d, p, nbytes):
    A(f"""s_mov_b32 s{d}, s{p}
    s_mov_b32 s{d+1}, s{p+1}
    s_mov_b32 s{d+2}, {nbytes}
    s_mov_b32 s{d+3}, 0x20000""")

def srd_sel(d, p1, p0, nbytes):
    A(f"""s_cselect_b32 s{d}, s{p1}, s{p0}
    s_cselect_b32 s{d+1}, s{p1+1}, s{p0+1}
    s_mov_b32 s{d+2}, {nbytes}
    s_mov_b32 s{d+3}, 0x20000""")

def spin_tail(lbl_retry, lbl_ok, code):
    A(f"""s_sleep 1
    s_sub_u32 s{S_TO}, s{S_TO}, 1
    s_cmp_lg_u32 s{S_TO}, 0
    s_cbranch_scc1 {lbl_retry}
    s_mov_b32 s{S_TO}, 1""")

VL = 254
VFO = 253
FLG = MISC + 6144
S_NEED = 3
S_FR = 86
SRD_F = 52
VZ = 252
SLOW = []
def flag_test(need, vD, vP, off, pre=None, anylane=False, acc=None, nap=0, split=False):
    ls, lb, lr = A.newlabel("L_sw"), A.newlabel("L_bk"), A.newlabel("L_sr")
    cmp_ = f"v_cmp_le_u32 vcc, {need}, v{vD}" if anylane else f"v_cmp_gt_u32 vcc, {need}, v{vD}"
    bad, good = ("vccz", "vccnz") if anylane else ("vccnz", "vccz")
    A(f"s_cbranch_{bad} {ls}" if split else f"{cmp_}\ns_cbranch_{bad} {ls}")
    A.label(lb)
    mark = len(A.lines)
    A.label(ls)
    if pre:
        pre()
    if TS and acc is not None:
        A(f"s_memtime s[{S_TS}:{S_TS+1}]\ns_waitcnt lgkmcnt(0)\ns_sub_u32 s{acc}, s{acc}, s{S_TS}\ns_add_u32 s{acc+1}, s{acc+1}, 1")
        lb2 = lb
        lb = A.newlabel("L_b2")
    A.label(lr)
    if nap:
        A(f"s_sleep {nap}")
    A(f"""ds_read_b32 v{vD}, v{vP} offset:{off}
    s_waitcnt lgkmcnt(0)
    {cmp_}
    s_cbranch_{good} {lb}
    s_sub_u32 s{S_TO}, s{S_TO}, 1
    s_cmp_lg_u32 s{S_TO}, 0
    s_cbranch_scc1 {lr}
    s_mov_b32 s{S_TO}, 1
    s_branch {lb}""")
    if TS and acc is not None:
        A.label(lb)
        A(f"s_memtime s[{S_TS}:{S_TS+1}]\ns_waitcnt lgkmcnt(0)\ns_add_u32 s{acc}, s{acc}, s{S_TS}\ns_branch {lb2}")
    SLOW.extend(A.lines[mark:])
    del A.lines[mark:]
def flush_slow():
    A.lines.extend(SLOW)
    SLOW.clear()
def flag_init(base, wave_sgpr, vP, peer, aux):
    A(f"""s_lshl_b32 s{S_T0}, s{wave_sgpr}, 8
    s_add_u32 s{S_T0}, s{S_T0}, {base}
    v_lshlrev_b32 v{VFO}, 2, v{VL}
    v_add_u32 v{VFO}, s{S_T0}, v{VFO}
    v_mov_b32 v{vP}, 0
    ds_write_b32 v{VFO}, v{vP}""")
    if aux:
        A(f"ds_write_b32 v{VFO}, v{vP} offset:2048")
    peer_addr(vP, peer)
    A("s_waitcnt lgkmcnt(0)\ns_barrier")
def table_store(srd_, tmp):
    A(f"""s_lshl_b32 s{S_T0}, s2, 3
    s_add_u32 s{S_T0}, s{S_T0}, s{S_WAVE}
    s_lshl_b32 s{S_T0}, s{S_T0}, 8
    s_add_u32 s{S_T0}, s{S_T0}, {WS_TAB}
    s_add_u32 s{srd_}, s{S_WS}, s{S_T0}
    s_addc_u32 s{srd_+1}, s{S_WS+1}, 0
    s_mov_b32 s{srd_+2}, 256
    s_mov_b32 s{srd_+3}, 0x20000
    v_lshlrev_b32 v{tmp}, 2, v{VL}
    v_mov_b32 v{VZ}, 0
    buffer_store_dword v{VL}, v{tmp}, s[{srd_}:{srd_+3}], 0 offen""")
def peer_addr(vP, peer):
    A(f"""v_and_b32 v{vP}, 3, v{VL}
    v_lshlrev_b32 v{vP}, 8, v{vP}
    v_add_u32 v{vP}, {peer}, v{vP}""")


S_LW = 85
A(f"""s_cmp_ge_u32 s2, 256
s_cbranch_scc1 L_end
s_load_dwordx16 s[4:19], s[0:1], 0
s_load_dwordx16 s[20:35], s[0:1], 64
v_lshrrev_b32 v1, 6, v0
v_and_b32 v{VL}, 63, v0
s_and_b32 s{S_XCD}, s2, 7
v_readfirstlane_b32 s{S_WAVE}, v1
s_lshr_b32 s{S_IDX}, s2, 3
s_and_b32 s{S_T0}, s{S_XCD}, 1
s_lshl_b32 s{S_T0}, s{S_T0}, 3
s_and_b32 s{S_T0+1}, s{S_IDX}, 7
s_add_u32 s{S_C}, s{S_T0}, s{S_T0+1}
s_lshr_b32 s{S_J}, s{S_IDX}, 3
s_lshr_b32 s{S_T0+2}, s{S_XCD}, 1
s_mul_i32 s{S_CB}, s{S_T0+2}, 3
s_add_u32 s{S_CB}, s{S_CB}, s{S_J}
s_sub_u32 s{S_CB}, s{S_CB}, 1
s_cmp_eq_u32 s{S_J}, 0
s_cselect_b32 s{S_CB}, s{S_T0+2}, s{S_CB}
""")
if TS:
    A("v_mov_b32 v255, 0")
    ts(0, 2)
A(f"""s_cmp_lt_u32 s{S_WAVE}, 4
s_cbranch_scc1 L_compute
s_sub_u32 s{S_LW}, s{S_WAVE}, 4
s_setprio {OPT.get('pl1', 0)}""")

def late_scalars():
    A(f"""s_load_dword s{S_NONCE}, s[{S_WS}:{S_WS+1}], {WS_E}
    s_and_b32 s{S_T0+1}, s{S_IDX}, 7
    s_lshr_b32 s{S_T0+2}, s{S_XCD}, 1
    s_lshl_b32 s{S_HB2}, s{S_T0+2}, 3
    s_add_u32 s{S_HB2}, s{S_HB2}, s{S_T0+1}
    s_mul_i32 s{S_DCOL}, s{S_J}, 96
    s_sub_u32 s{S_DCOL}, s{S_DCOL}, 96
    s_cmp_eq_u32 s{S_J}, 0
    s_cselect_b32 s{S_DCOL}, 288, s{S_DCOL}
    s_and_b32 s{S_T0}, s{S_XCD}, 1
    s_mul_i32 s{S_T0}, s{S_T0}, 320
    s_add_u32 s{S_DCOL}, s{S_DCOL}, s{S_T0}
    s_mov_b32 s{S_ONES}, 0x3f803f80
    s_mov_b32 s{S_TO}, {OPT['timeout']}""")
    if OPT["rot2"]:
        A(f"""s_mul_i32 s{S_R2A}, s{S_T0+1}, 3
        s_lshr_b32 s{S_R2A}, s{S_R2A}, 1
        s_mul_i32 s{S_T0+3}, s{S_J}, 3
        s_add_u32 s{S_R2A}, s{S_R2A}, s{S_T0+3}
        s_cmp_ge_u32 s{S_R2A}, 12
        s_cselect_b32 s{S_T0+3}, 12, 0
        s_sub_u32 s{S_R2A}, s{S_R2A}, s{S_T0+3}
        s_mul_i32 s{S_R2B}, s{S_T0+1}, 5
        s_lshr_b32 s{S_R2B}, s{S_R2B}, 2
        s_mul_i32 s{S_T0+3}, s{S_J}, 5
        s_lshr_b32 s{S_T0+3}, s{S_T0+3}, 1
        s_add_u32 s{S_R2B}, s{S_R2B}, s{S_T0+3}
        s_cmp_ge_u32 s{S_R2B}, 10
        s_cselect_b32 s{S_T0+3}, 10, 0
        s_sub_u32 s{S_R2B}, s{S_R2B}, s{S_T0+3}""")
    else:
        A(f"s_mov_b32 s{S_R2A}, 0\ns_mov_b32 s{S_R2B}, 0")

HEADPOS = len(A.lines)
HEADS = []

def dpp_reduce16(regs):
    for sh in (8, 4, 2, 1):
        A("s_nop 1")
        for r in regs:
            A(f"v_add_f32_dpp v{r}, v{r}, v{r} row_ror:{sh} row_mask:0xf bank_mask:0xf")

def nonce_ready():
    A(f"""s_waitcnt lgkmcnt(0)
    s_add_u32 s{S_NONCE}, s{S_NONCE}, 1""")

def sum_bf16(regs, acc, sq=None, t=None):
    for k, r in enumerate(regs):
        if k and k % (5 if sq is not None else 8) == 0:
            yield
        A(f"v_lshlrev_b32 v{t}, 16, v{r}")
        A(f"v_and_b32 v{r}, 0xffff0000, v{r}")
        if k == 0:
            A(f"v_mov_b32 v{acc}, v{t}\nv_mov_b32 v{acc+1}, v{r}")
            if sq is not None:
                A(f"v_mul_f32 v{sq}, v{t}, v{t}\nv_mul_f32 v{sq+1}, v{r}, v{r}")
        else:
            A(f"v_add_f32 v{acc}, v{acc}, v{t}\nv_add_f32 v{acc+1}, v{acc+1}, v{r}")
            if sq is not None:
                A(f"v_fmac_f32 v{sq}, v{t}, v{t}\nv_fmac_f32 v{sq+1}, v{r}, v{r}")
    A(f"v_add_f32 v{acc}, v{acc}, v{acc+1}")
    if sq is not None:
        A(f"v_add_f32 v{sq}, v{sq}, v{sq+1}")

def reduce32(regs):
    dpp_reduce16(regs)
    A("s_nop 1")
    for r in regs:
        A(f"v_add_f32_dpp v{r}, v{r}, v{r} row_bcast:15 row_mask:0xa bank_mask:0xf")

def stat_loads(vm, T):
    A(f"""v_lshrrev_b32 v{T+10}, 5, v{VL}
    s_lshl_b32 s{S_T0}, s2, 3
    s_lshl_b32 s{S_T0+1}, s{S_LW}, 1
    s_add_u32 s{S_T0}, s{S_T0}, s{S_T0+1}
    v_add_u32 v{T+10}, s{S_T0}, v{T+10}
    v_and_b32 v{T+11}, 31, v{VL}
    v_mul_u32_u24 v{T+12}, 1280, v{T+10}
    v_lshl_add_u32 v{T+12}, v{T+11}, 3, v{T+12}""")
    for i in range(5):
        A(f"global_load_dwordx2 v[{T+2*i}:{T+2*i+1}], v{T+12}, s[{S_X}:{S_X+1}] offset:{256*i}")
        vm.issue("stat")

def stat_work(vm, T):
    vm.wait("stat")
    a, q = T + 12, T + 14
    yield from sum_bf16(list(range(T, T + 10)), a, q, T + 16)
    yield
    reduce32([a, q])
    yield
    A(f"""v_mul_f32 v{a}, 0x3acccccd, v{a}      ; mean
    v_mul_f32 v{q}, 0x3acccccd, v{q}
    v_fma_f32 v{q}, -v{a}, v{a}, v{q}
    v_max_f32 v{q}, 0, v{q}
    v_cvt_pk_bf16_f32 v{q}, v{q}, v{q}
    v_lshlrev_b32 v{q}, 16, v{q}
    v_add_f32 v{q}, 0x3727c5ac, v{q}
    v_cvt_pk_bf16_f32 v{q}, v{q}, v{q}
    v_lshlrev_b32 v{q}, 16, v{q}
    v_sqrt_f32 v{q}, v{q}
    v_lshlrev_b32 v{T+10}, 3, v{T+10}
    v_add_u32 v{T+10}, {WS_STAT}, v{T+10}
    v_cvt_pk_bf16_f32 v{a}, v{a}, v{q}
    v_mov_b32 v{a+1}, s{S_NONCE}
    v_cmp_eq_u32 vcc, 16, v{T+11}
    s_and_saveexec_b64 s[{S_EX}:{S_EX+1}], vcc
    global_store_dwordx2 v{T+10}, v[{a}:{a+1}], s[{S_WS}:{S_WS+1}] sc1
    s_mov_b64 exec, s[{S_EX}:{S_EX+1}]""")
    vm.issue("pub")

S_CS0 = 86
def colsum_loads(T):
    A(f"""s_mul_i32 s{S_T0}, s{S_C}, 12
    s_add_u32 s{S_T0}, s{S_T0}, s{S_CB}            ; sigma
    s_lshr_b32 s{S_T0+1}, s{S_T0}, 2               ; strip
    s_and_b32 s{S_T0+2}, s{S_T0}, 3                ; k quarter
    s_cmp_ge_u32 s{S_T0+1}, 24""")
    srd_sel(SRD_T, S_W3, S_W1, 1966080)
    A(f"""s_cselect_b32 s{S_T0+3}, {24*128}, 0
    s_lshl_b32 s{S_T0+4}, s{S_T0+1}, 7
    s_sub_u32 s{S_T0+4}, s{S_T0+4}, s{S_T0+3}
    s_mul_i32 s{S_T0+5}, s{S_T0+2}, {160*3072}
    s_add_u32 s{S_T0+4}, s{S_T0+4}, s{S_T0+5}      ; soffset
    s_mul_i32 s{S_CS0}, s{S_T0+2}, {3072*8}
    s_lshl_b32 s{S_T0+1}, s{S_T0+1}, 9
    s_add_u32 s{S_CS0}, s{S_CS0}, s{S_T0+1}
    s_add_u32 s{S_CS0}, s{S_CS0}, {WS_CSW}
    v_lshrrev_b32 v{T}, 3, v{VL}
    v_and_b32 v{T+1}, 7, v{VL}
    v_mul_u32_u24 v{T}, 3072, v{T}
    v_lshl_add_u32 v{T}, v{T+1}, 4, v{T}""")
    for i in range(20):
        if i % 4 == 0:
            A(f"s_mov_b32 m0, {SCR + 1024*i}")
        A(f"""s_add_u32 s{S_T0+7}, s{S_T0+4}, {8*3072*i - 1024*(i%4)}
        buffer_load_dwordx4 v{T}, s[{SRD_T}:{SRD_T+3}], s{S_T0+7} offen offset:{1024*(i%4)} lds""")

def colsum_work(T):
    A(f"""v_lshrrev_b32 v{T+2}, 4, v{VL}
    v_lshlrev_b32 v{T+3}, 5, v{T+2}
    v_lshlrev_b32 v{T+2}, 10, v{T+2}
    v_bfe_u32 v{T+1}, v{VL}, 2, 2
    v_lshl_add_u32 v{T+2}, v{T+1}, 7, v{T+2}
    v_and_b32 v{T+1}, 3, v{VL}
    v_lshl_add_u32 v{T+2}, v{T+1}, 3, v{T+2}
    v_add_u32 v{T+2}, {SCR}, v{T+2}
    v_add_u32 v{T+3}, s{S_CS0}, v{T+3}""")
    for i in range(4):
        A(f"v_mov_b32 v{T+4+i}, s{S_ONES}")
    F = T + 24
    for u in range(4):
        for ks in range(5):
            b = F + (u * 5 + ks) * 4
            A(f"ds_read_b64_tr_b16 v[{b}:{b+1}], v{T+2} offset:{ks*4096+u*32}")
            A(f"ds_read_b64_tr_b16 v[{b+2}:{b+3}], v{T+2} offset:{ks*4096+u*32+512}")
    A("s_waitcnt lgkmcnt(0)")
    for ks in range(5):
        for u in range(4):
            b = F + (u * 5 + ks) * 4
            d = T + 8 + 4 * u
            cin = "0" if ks == 0 else f"v[{d}:{d+3}]"
            A(f"v_mfma_f32_16x16x32_bf16 v[{d}:{d+3}], v[{b}:{b+3}], v[{T+4}:{T+7}], {cin}")
    A(f"""v_and_b32 v{T+1}, 15, v{VL}
    v_cmp_eq_u32 vcc, 0, v{T+1}
    s_nop 7""")
    for u in range(4):
        for h in range(2):
            o = F + (u * 2 + h) * 4
            A(f"""v_mov_b32 v{o}, v{T+8+4*u+2*h}
            v_mov_b32 v{o+1}, s{S_NONCE}
            v_mov_b32 v{o+2}, v{T+9+4*u+2*h}
            v_mov_b32 v{o+3}, s{S_NONCE}""")
    A(f"s_and_saveexec_b64 s[{S_EX}:{S_EX+1}], vcc")
    for u in range(4):
        for h in range(2):
            o = F + (u * 2 + h) * 4
            A(f"global_store_dwordx4 v{T+3}, v[{o}:{o+3}], s[{S_WS}:{S_WS+1}] offset:{u*128+h*16} sc1")
    A(f"s_mov_b64 exec, s[{S_EX}:{S_EX+1}]")

def rowsum_loads(vm, T):
    A(f"""s_lshl_b32 s{S_T0}, s{S_C}, 2
    s_add_u32 s{S_T0}, s{S_T0}, s{S_CB}            ; sigma'
    s_mul_i32 s{S_T0+1}, s{S_T0}, 20
    s_mul_i32 s{S_T0+2}, s{S_LW}, 5
    s_add_u32 s{S_T0+1}, s{S_T0+1}, s{S_T0+2}
    s_cmp_ge_u32 s{S_T0}, 32
    s_cselect_b32 s{S_T0+4}, s{S_BIM}, s{S_BRE}
    s_cselect_b32 s{S_T0+5}, s{S_BIM+1}, s{S_BRE+1}
    s_cselect_b32 s{S_T0+3}, 640, 0
    s_sub_u32 s{S_T0+1}, s{S_T0+1}, s{S_T0+3}
    v_lshrrev_b32 v{T+33}, 5, v{VL}
    v_add_u32 v{T+33}, s{S_T0+1}, v{T+33}
    v_and_b32 v{T+34}, 31, v{VL}""")
    for p in range(3):
        A(f"""v_add_u32 v{T+30+p}, {2*p}, v{T+33}
        v_min_u32 v{T+30+p}, 639, v{T+30+p}
        v_mul_u32_u24 v{T+35}, 1280, v{T+30+p}
        v_lshl_add_u32 v{T+35}, v{T+34}, 3, v{T+35}
        v_add_u32 v{T+30+p}, s{S_T0+3}, v{T+30+p}""")
        for i in range(5):
            b = T + 10 * p + 2 * i
            A(f"global_load_dwordx2 v[{b}:{b+1}], v{T+35}, s[{S_T0+4}:{S_T0+5}] offset:{256*i}")
            vm.issue("rows")

def rowsum_work(vm, T):
    vm.wait("rows")
    for p in range(3):
        yield from sum_bf16(list(range(T + 10 * p, T + 10 * p + 10)), T + 36 + 2 * p, None, T + 35)
    yield
    reduce32([T + 36, T + 38, T + 40])
    for p in range(3):
        A(f"""v_mov_b32 v{T+37+2*p}, s{S_NONCE}
        v_lshlrev_b32 v{T+30+p}, 3, v{T+30+p}
        v_add_u32 v{T+30+p}, {WS_CSB}, v{T+30+p}""")
    A(f"""v_cmp_eq_u32 vcc, 16, v{T+34}
    s_and_saveexec_b64 s[{S_EX}:{S_EX+1}], vcc""")
    for p in range(3):
        A(f"global_store_dwordx2 v{T+30+p}, v[{T+36+2*p}:{T+37+2*p}], s[{S_WS}:{S_WS+1}] sc1")
        vm.issue("pub")
    A(f"s_mov_b64 exec, s[{S_EX}:{S_EX+1}]")

def zero_regs(lo, n):
    def f():
        for r in range(lo, lo + n):
            A(f"v_mov_b32 v{r}, 0")
    return f

def rowpat_read(dst, tmp):
    A(f"""v_bfe_u32 v{tmp}, v{VL}, 1, 3
    v_lshrrev_b32 v{dst}, 4, v{VL}
    v_xor_b32 v{tmp}, v{tmp}, v{dst}
    v_and_b32 v{dst}, 15, v{VL}
    v_lshlrev_b32 v{dst}, 7, v{dst}
    v_lshl_add_u32 v{dst}, v{tmp}, 4, v{dst}""")

def touch_inputs(T):
    if not OPT["pf"]:
        return
    G = OPT.get("tg", 64)
    plan = [[(S_X, 10240)], [(S_W1, 7680), (S_BRE, 3200)], [(S_W3, 7680), (S_BIM, 3200)], [(S_W2, 7680), (S_CRE, 3200), (S_CIM, 3200)]]
    done = A.newlabel("L_ti")
    sh = G.bit_length() - 1
    for w, segs in enumerate(plan):
        nx = A.newlabel("L_ti")
        if w < 3:
            A(f"s_cmp_lg_u32 s{S_WAVE}, {w}\ns_cbranch_scc1 {nx}")
        k = 0
        for p, n in segs:
            cnt = n // G
            A(f"s_mul_i32 s{S_T0}, s2, {n}")
            for o in range(0, cnt, 64):
                A(f"""v_add_u32 v{T}, {o}, v{VL}
                v_min_u32 v{T}, {cnt-1}, v{T}
                v_lshlrev_b32 v{T}, {sh}, v{T}
                v_add_u32 v{T}, s{S_T0}, v{T}
                global_load_dword v{244+k}, v{T}, s[{p}:{p+1}]""")
                k += 1
        if w < 3:
            A(f"s_branch {done}")
            A.label(nx)
    A.label(done)
def gemm1_loop(kind):
    mlp = kind == "mlp"
    NB = 8 if mlp else 10
    NS = 5
    SLOT = 16384 if mlp else 20480
    XF = 128 if mlp else 160
    WF = XF + 32
    AX = WF + NB * 4
    AW = AX + 2
    nAW = 4 if mlp else 2
    D = D1 if mlp else OPT["D1S"]
    lg = Queue(A, "lgkmcnt", 15)

    def rd_x(ks, T):
        b = XF + ks * 16 + T * 4
        if OPT["noread"]:
            return
        A(f"ds_read_b128 v[{b}:{b+3}], v{AX+ks} offset:{T*2048}")
        lg.issue(("x", ks))
    def rd_w(j, gen, half=None):
        b = WF + j * 4
        if OPT["noread"]:
            return
        if mlp:
            F, c = j // 2, j % 2
            for h in ((0, 1) if half is None else (half,)):
                A(f"ds_read_b64_tr_b16 v[{b+2*h}:{b+2*h+1}], v{AW+F} offset:{c*8192+1024*h}")
                lg.issue(("w", j, gen))
        else:
            ks, G = j // 5, j % 5
            A(f"ds_read_b128 v[{b}:{b+3}], v{AW+ks} offset:{G*2048}")
            lg.issue(("w", j, gen))
    def mf(j, T, par):
        w = WF + j * 4
        if (OPT["nomfma"] == 1 and T > 0) or OPT["nomfma"] == 2:
            return
        if mlp:
            acc = (j * 4 + T) * 4
            x = XF + par * 16 + T * 4
            A(f"v_mfma_f32_16x16x32_bf16 v[{acc}:{acc+3}], v[{w}:{w+3}], v[{x}:{x+3}], v[{acc}:{acc+3}]")
        else:
            acc = (((j % 5) * 2 + par) * 4 + T) * 4
            x = XF + (j // 5) * 16 + T * 4
            A(f"v_mfma_f32_16x16x32_bf16 v[{acc}:{acc+3}], v[{x}:{x+3}], v[{w}:{w+3}], v[{acc}:{acc+3}]")
    def xreads(par, j):
        k = j + D - NB
        if mlp:
            return [(par ^ 1, T) for T in ([2 * k, 2 * k + 1] if 0 <= k < 2 else [])]
        if par == 1:
            return [(0, T) for T in ([2 * k, 2 * k + 1] if 0 <= k < 2 else [])]
        return [(1, T) for T in ([2 * j, 2 * j + 1] if j < 2 else [])]
    assert mlp or NB - D >= 5

    A(f"s_mov_b32 s{S_SLOT}, 0\ns_mov_b32 s{S_CNT}, 0\ns_mov_b32 s{S_KX}, 0")
    vFP, vFV, vFD = (198, 199, 228) if mlp else (248, 249, 250)
    table_store(SRD_F, XF)
    flag_init(FLG + 1024, S_WAVE, vFP, FLG, False)
    A(f"s_mov_b32 m0, s{S_T0}\ns_mov_b32 s{S_FR}, 0\ns_waitcnt vmcnt(0)")
    touch_inputs(XF)
    if OPT.get('pre0', 0):
        gemm2_pre_loads(6 if mlp else 2, PRE if mlp else PRE2)
    A(f"v_mov_b32 v{vFV}, 0\nv_mov_b32 v{vFD}, 0\ns_mov_b32 s{S_NEED}, 2")
    flag_test(1, vFD, vFP, 0)
    if TS:
        A("s_mov_b32 s56, 0\ns_mov_b32 s57, 0")
    ts(2, 2)
    tc(12)
    for j in range(D):
        rd_w(j, 0)
        for ks, T in xreads(1, j + NB - D):
            rd_x(ks, T)
    lbl = f"L_g1_{kind}"
    A(f"""s_mov_b32 s{S_T0}, {SLOT}
    s_mov_b32 s{S_T0+1}, {-(NS-1)*SLOT & 0xffffffff}
    s_mov_b32 s{S_T0+2}, 16384
    s_mov_b32 s{S_T0+3}, {-32768 & 0xffffffff}""")
    A.label(lbl)
    entry = list(lg.q)
    ring = [f"s_add_u32 s{S_SLOT}, s{S_SLOT}, 1\ns_cmp_eq_u32 s{S_SLOT}, {NS}",
            f"s_cselect_b32 s{S_DELTA}, s{S_T0+1}, s{S_T0}\ns_cselect_b32 s{S_SLOT}, 0, s{S_SLOT}"]
    xring = [f"s_add_u32 s{S_KX}, s{S_KX}, 1\ns_cmp_eq_u32 s{S_KX}, 3",
             f"s_cselect_b32 s{S_KW}, s{S_T0+3}, s{S_T0+2}\ns_cselect_b32 s{S_KX}, 0, s{S_KX}"]
    def adv(r, d):
        return f"v_add_u32 v{r}, s{d}, v{r}"
    for par in range(2):
        fill = {}
        if mlp:
            assert D == 4
            fill[(0, 2)] = ring[0]; fill[(1, 2)] = ring[1]
            fill[(2, 2)] = adv(AW, S_DELTA) + "\n" + adv(AW + 1, S_DELTA)
            fill[(6, 2)] = adv(AW + 2, S_DELTA) + f"\ns_add_u32 s{S_FR}, s{S_FR}, 4"; fill[(7, 2)] = adv(AW + 3, S_DELTA)
            fill[(6, 3)] = f"s_add_u32 s{S_NEED}, s{S_NEED}, 1"
            fpos, cpos, wpos = (1, 3), (3, 0), (7, 2)
            if par == 0:
                fill[(3, 2)] = xring[0]; fill[(3, 3)] = xring[1]
            else:
                fill[(3, 2)] = adv(AX, S_KW) + "\n" + adv(AX + 1, S_KW)
                fill[(7, 3)] = f"s_add_u32 s{S_CNT}, s{S_CNT}, 1\ns_cmp_lt_u32 s{S_CNT}, 10"
        else:
            assert D == 5
            fill[(2, 1)] = ring[0]; fill[(2, 2)] = ring[1]
            fill[(3, 1)] = adv(AW, S_DELTA); fill[(7, 1)] = adv(AW + 1, S_DELTA)
            fill[(7, 2)] = f"s_add_u32 s{S_NEED}, s{S_NEED}, 1"
            fill[(8, 3)] = f"s_add_u32 s{S_FR}, s{S_FR}, 4"
            fpos, cpos, wpos = (2, 3), (4, 2), (9, 2)
            if par == 0:
                fill[(8, 1)] = xring[0]; fill[(8, 2)] = xring[1]
            else:
                fill[(4, 1)] = adv(AX, S_KW) + "\n" + adv(AX + 1, S_KW)
                fill[(9, 1)] = f"s_add_u32 s{S_CNT}, s{S_CNT}, 1\ns_cmp_lt_u32 s{S_CNT}, 10"
        for j in range(NB):
            tags = [("w", j, par)]
            if j == 0:
                tags.append(("x", par if mlp else 0))
            if j == 5 and not mlp:
                tags.append(("x", 1))
            jn = j + D
            if jn == NB - 1:
                tags.append("flag")
            lg.wait(tags)
            acts = {0: [], 1: [], 2: [], 3: []}
            g = 0
            if jn == NB:
                acts[0].append(lambda: flag_test(f"s{S_NEED}", vFD, vFP, 0, acc=56, split=True))
                g = 1
            wj, wg = (jn, par) if jn < NB else (jn - NB, par ^ 1)
            if mlp:
                acts[g].append(lambda wj=wj, wg=wg: rd_w(wj, wg, 0))
                acts[g + 1].append(lambda wj=wj, wg=wg: rd_w(wj, wg, 1))
                g += 2
            else:
                acts[g].append(lambda wj=wj, wg=wg: rd_w(wj, wg, 0))
                g += 1
            for n_, (ks, T) in enumerate(xreads(par, j)):
                acts[min(g + n_, 3)].append(lambda ks=ks, T=T: rd_x(ks, T))
            for T in range(4):
                mf(j, T, par)
                for f in acts[T]:
                    f()
                if (j, T) in fill:
                    A(fill[(j, T)])
                if (j, T) == fpos:
                    A(f"ds_read_b32 v{vFD}, v{vFP}")
                    lg.issue("flag")
                if (j, T) == cpos:
                    A(f"v_cmp_gt_u32 vcc, s{S_NEED}, v{vFD}")
                if (j, T) == wpos:
                    A(f"buffer_load_dword v{VZ}, s[{SRD_F}:{SRD_F+3}], s{S_FR} offen lds")
    A(f"s_cbranch_scc1 {lbl}")
    assert lg.q == entry[len(entry) - len(lg.q):]
    return lg, entry, AX, AW

G2_B = 96
PRE, PRE2 = 200, 236
G2_A = 144
def g2slot(NU, s):
    return (s % 6) * 24576 if NU == 6 else (s % 5) * 8192

def rot_next(s, stepA, stepB, baseB):
    if s == 11:
        A(f"s_mul_i32 s{S_KB}, s{S_R2B}, {stepB}")
        if baseB:
            A(f"s_add_u32 s{S_KB}, s{S_KB}, {baseB}")
    elif s < 11:
        A(f"""s_add_u32 s{S_KB}, s{S_KB}, {stepA}
        s_cmp_eq_u32 s{S_KB}, {12*stepA}
        s_cselect_b32 s{S_KB}, 0, s{S_KB}""")
    elif s < 21:
        A(f"""s_add_u32 s{S_KB}, s{S_KB}, {stepB}
        s_cmp_eq_u32 s{S_KB}, {baseB+10*stepB}
        s_cselect_b32 s{S_KB}, {baseB}, s{S_KB}""")

def gemm2_pre_loads(NU, R):
    A(f"""s_lshl_b32 s{S_T0}, s{S_HB2}, 6
    s_lshl_b32 s{S_T0+1}, s{S_WAVE}, 4
    s_add_u32 s{S_T0}, s{S_T0}, s{S_T0+1}
    v_and_b32 v{R+4*NU+2}, 15, v{VL}
    v_add_u32 v{R+4*NU+2}, s{S_T0}, v{R+4*NU+2}        ; row t
    v_lshrrev_b32 v{R+4*NU+3}, 4, v{VL}
    v_lshlrev_b32 v{R+4*NU+3}, 3, v{R+4*NU+3}
    s_lshl_b32 s{S_T0+1}, s{S_DCOL}, 1
    v_add_u32 v{R+4*NU+3}, s{S_T0+1}, v{R+4*NU+3}
    v_mul_u32_u24 v{R+4*NU}, 1280, v{R+4*NU+2}
    v_add_u32 v{R+4*NU}, v{R+4*NU}, v{R+4*NU+3}""")
    for U in range(NU):
        A(f"global_load_dwordx2 v[{R+2*U}:{R+2*U+1}], v{R+4*NU}, s[{S_X}:{S_X+1}] offset:{32*U}")
    for U in range(NU):
        A(f"global_load_dwordx2 v[{R+2*NU+2*U}:{R+2*NU+2*U+1}], v{R+4*NU+3}, s[{S_DSK}:{S_DSK+1}] offset:{32*U}")
    A(f"""v_lshlrev_b32 v{R+4*NU+2}, 3, v{R+4*NU+2}
    v_add_u32 v{R+4*NU+2}, {WS_STAT}, v{R+4*NU+2}""")

def gemm2_pre_stat(NU, R):
    if not OPT.get('pre0', 0):
        gemm2_pre_loads(NU, R)
    A(f"global_load_dwordx2 v[{R+4*NU}:{R+4*NU+1}], v{R+4*NU+2}, s[{S_WS}:{S_WS+1}] sc1")

def gemm2_base(NU, R, T):
    st = R + 4 * NU
    lr, lo = A.newlabel("L_st"), A.newlabel("L_st")
    A.label(lr)
    A(f"""v_cmp_ne_u32 vcc, s{S_NONCE}, v{st+1}
    s_nop 1
    s_cbranch_vccz {lo}
    global_load_dwordx2 v[{st}:{st+1}], v{st+2}, s[{S_WS}:{S_WS+1}] sc1
    s_waitcnt vmcnt(0)""")
    spin_tail(lr, lo, 1)
    A.label(lo)
    A(f"""v_and_b32 v{st+1}, 0xffff0000, v{st}
    v_lshlrev_b32 v{st}, 16, v{st}
    v_rcp_f32 v{st+1}, v{st+1}""")
    def unpack(dst, src):
        A(f"""v_lshlrev_b32 v{dst}, 16, v{src}
        v_and_b32 v{dst+1}, 0xffff0000, v{src}
        v_lshlrev_b32 v{dst+2}, 16, v{src+1}
        v_and_b32 v{dst+3}, 0xffff0000, v{src+1}""")
    def rnd(r, t):
        A(f"""v_cvt_pk_bf16_f32 v{t}, v{r}, v{r+1}
        v_cvt_pk_bf16_f32 v{t+1}, v{r+2}, v{r+3}""")
        unpack(r, t)
    for U in range(NU):
        acc = U * 16
        unpack(acc, R + 2 * U)
        unpack(T + 4, R + 2 * NU + 2 * U)
        for h in (0, 2):
            A(f"v_pk_add_f32 v[{T+h}:{T+h+1}], v[{acc+h}:{acc+h+1}], v[{st}:{st+1}] op_sel_hi:[1,0] neg_lo:[0,1] neg_hi:[0,1]")
        rnd(T, T + 8)
        for h in (0, 2):
            A(f"v_pk_mul_f32 v[{T+h}:{T+h+1}], v[{T+h}:{T+h+1}], v[{st}:{st+1}] op_sel:[0,1] op_sel_hi:[1,1]")
        rnd(T, T + 8)
        for h in (0, 2):
            A(f"v_pk_mul_f32 v[{T+h}:{T+h+1}], v[{T+h}:{T+h+1}], v[{T+4+h}:{T+5+h}]")
        rnd(T, T + 8)
        for h in (0, 2):
            A(f"v_pk_add_f32 v[{acc+h}:{acc+h+1}], v[{acc+h}:{acc+h+1}], v[{T+h}:{T+h+1}]")

def gemm2_compute(NU):
    NS2 = 6 if NU == 6 else 5
    SL = NU * 4096
    RED = 0 if NU == 6 else TR_BASE
    V = 240
    vE, vO, vC = V, V + 1, V + 2
    vA = V + 3
    vT = V + 7
    RBY = NU * 32
    A(f"""v_lshrrev_b32 v{vT}, 4, v{VL}               ; q
    v_bfe_u32 v{vT+1}, v{VL}, 2, 2                     ; rr
    v_lshl_add_u32 v{vT+1}, v{vT}, 2, v{vT+1}
    s_lshl_b32 s{S_T0}, s{S_WAVE}, 5
    v_add_u32 v{vT+1}, s{S_T0}, v{vT+1}
    v_mul_u32_u24 v{vT+1}, {RBY}, v{vT+1}
    v_and_b32 v{vT+2}, 3, v{VL}
    v_lshl_add_u32 v{vT+1}, v{vT+2}, 3, v{vT+1}
    v_and_b32 v{vT+2}, 1, v{vT}
    v_lshlrev_b32 v{vT+3}, 5, v{vT+2}
    v_add_u32 v{vE}, v{vT+1}, v{vT+3}
    v_sub_u32 v{vO}, v{vT+1}, v{vT+3}
    s_lshl_b32 s{S_T0}, s{S_WAVE}, 1
    v_add_u32 v{vT+2}, s{S_T0}, v{vT+2}                ; chunk = 2w + (q&1)
    v_bfe_u32 v{vT+3}, v{VL}, 1, 3
    v_xor_b32 v{vT+2}, v{vT+2}, v{vT+3}
    v_lshrrev_b32 v{vT}, 1, v{vT}
    v_mul_u32_u24 v{vT}, {NU*2048}, v{vT}
    v_lshl_add_u32 v{vT}, v{vT+2}, 4, v{vT}
    v_and_b32 v{vT+3}, 15, v{VL}
    v_lshl_add_u32 v{vC}, v{vT+3}, 7, v{vT}
    v_lshlrev_b32 v{vT}, 4, v{VL}""")
    for Tp in range(4):
        A(f"""s_add_u32 s{S_T0}, s{S_WAVE}, {Tp}
        s_and_b32 s{S_T0}, s{S_T0}, 3
        s_lshl_b32 s{S_T0}, s{S_T0}, 10
        v_add_u32 v{vA+Tp}, s{S_T0}, v{vT}""")
    A(f"""s_mul_i32 s{S_T0}, s{S_HB2}, {88*4096}
    s_lshl_b32 s{S_T0+1}, s{S_WAVE}, 12
    s_add_u32 s{S_T0}, s{S_T0}, s{S_T0+1}
    s_add_u32 s{S_T0}, s{S_T0}, {WS_ACT}
    s_add_u32 s{SRD_T}, s{S_WS}, s{S_T0}
    s_addc_u32 s{SRD_T+1}, s{S_WS+1}, 0
    s_mov_b32 s{SRD_T+2}, {85*4096}
    s_mov_b32 s{SRD_T+3}, 0x20000
    s_lshl_b32 s{S_KB}, s{S_R2A}, 14""")
    lr, lo = A.newlabel("L_fl"), A.newlabel("L_fl")
    A(f"""s_lshl_b32 s{S_T0}, s{S_HB2}, 7
    s_add_u32 s{S_T0}, s{S_T0}, {WS_FLAG}
    v_and_b32 v{vT+1}, 31, v{VL}
    v_lshlrev_b32 v{vT+1}, 2, v{vT+1}
    v_add_u32 v{vT+1}, s{S_T0}, v{vT+1}
    s_lshr_b32 s{S_T0+1}, s{S_WAVE}, 1
    s_lshl_b32 s{S_T0+1}, 0x555555, s{S_T0+1}""")
    A.label(lr)
    A(f"""global_load_dword v{vT+2}, v{vT+1}, s[{S_WS}:{S_WS+1}] sc1
    s_waitcnt vmcnt(0)
    v_cmp_eq_u32 vcc, s{S_NONCE}, v{vT+2}
    s_nop 1
    s_and_b32 s{S_T0+2}, vcc_lo, s{S_T0+1}
    s_cmp_eq_u32 s{S_T0+2}, s{S_T0+1}
    s_cbranch_scc1 {lo}""")
    spin_tail(lr, lo, 2)
    A.label(lo)
    ts(7, 2)
    tc(14)
    vm = Queue(A, "vmcnt", 63)
    lg = Queue(A, "lgkmcnt", 15)
    def ldA(s):
        b = G2_A + (s % DA) * 16
        for Tp in range(4):
            A(f"buffer_load_dwordx4 v[{b+4*Tp}:{b+4*Tp+3}], v{vA+Tp}, s[{SRD_T}:{SRD_T+3}], s{S_KB} offen{['', ' sc1', ' nt', ' sc0', ' sc0 sc1'][OPT['amod']]}")
            vm.issue(("a", s))
        rot_next(s, 16384, 16384, 12 * 16384)
    def rdB(s, U):
        b = G2_B + (s % 2) * 24 + U * 4
        if s < 12:
            a = vT + 4 if U % 2 == 0 else vT + 5
            A(f"ds_read_b64_tr_b16 v[{b}:{b+1}], v{a} offset:{32*U}")
            A(f"ds_read_b64_tr_b16 v[{b+2}:{b+3}], v{a} offset:{32*U+16*RBY}")
            lg.issue(("b", s, U)); lg.issue(("b", s, U))
        else:
            A(f"ds_read_b128 v[{b}:{b+3}], v{vT+4} offset:{2048*U}")
            lg.issue(("b", s, U))
    def setB(s):
        slot = g2slot(NU, s)
        if s < 12:
            A(f"v_add_u32 v{vT+4}, {slot}, v{vE}\nv_add_u32 v{vT+5}, {slot}, v{vO}")
        else:
            A(f"v_add_u32 v{vT+4}, {slot}, v{vC}")
    vFP, vFV, vFD = vT, vT + 2, vT + 3
    peer_addr(vFP, FLG)
    R0 = OPT.get("ramp", 2)
    st = {"nxt": 0}
    def ldA1(s, Tp):
        b = G2_A + (s % DA) * 16
        A(f"buffer_load_dwordx4 v[{b+4*Tp}:{b+4*Tp+3}], v{vA+Tp}, s[{SRD_T}:{SRD_T+3}], s{S_KB} offen sc1")
        vm.issue(("a", s))
        if Tp == 3:
            rot_next(s, 16384, 16384, 12 * 16384)
    for s in range(R0):
        ldA(s)
    st["nxt"] = R0
    A(f"v_mov_b32 v{vFD}, 0")
    flag_test(22, vFD, vFP, 0)
    setB(0)
    for U in range(NU):
        rdB(0, U)
    A(f"ds_read_b32 v{vFD}, v{vFP}")
    GATE = 12 - (DA - 1)
    def stage(s, limit):
        lg.drain()
        if TS == 2:
            ts(16 + s, 2)
        vm.wait(("a", s))
        todo = []
        n = 0
        while st["nxt"] <= min(limit, s - 1 + DA, 21) and n < 2:
            todo += [(st["nxt"], Tp) for Tp in range(4)]
            st["nxt"] += 1
            n += 1
        acts = []
        acts.append(lambda: A(f"v_mov_b32 v{vFV}, {21+s}\nds_write_b32 v{VFO}, v{vFV}"))
        if s < 21:
            acts.append(lambda: flag_test(23 + s, vFD, vFP, 0))
            acts.append(lambda: setB(s + 1))
            for U in range(NU):
                acts.append(lambda U=U: rdB(s + 1, U))
        if s < 20:
            acts.append(lambda: A(f"ds_read_b32 v{vFD}, v{vFP}"))
        if s == GATE - 1:
            acts.append(lambda: A(f"ds_read_b32 v{vFV}, v{vFP} offset:2048"))
        lds = [lambda x=x: ldA1(*x) for x in todo]
        nm = 4 * NU
        sched = {i: [] for i in range(nm)}
        per = -(-len(acts) // max(nm - 2, 1))
        for i, f in enumerate(acts):
            sched[i // per].append(f)
        first = min(len(acts) // per, nm - 1) if NU == 6 else 0
        for i, f in enumerate(lds):
            sched[min(first + i * (nm - first) // len(lds), nm - 1)].append(f)
        for U in range(NU):
            for Tp in range(4):
                acc = (U * 4 + Tp) * 4
                w = G2_B + (s % 2) * 24 + U * 4
                a = G2_A + (s % DA) * 16 + Tp * 4
                cin = "0" if (s == 0 and Tp != 0) else f"v[{acc}:{acc+3}]"
                A(f"v_mfma_f32_16x16x32_bf16 v[{acc}:{acc+3}], v[{w}:{w+3}], v[{a}:{a+3}], {cin}")
                for f in sched[U * 4 + Tp]:
                    f()
    llate, ljoin = A.newlabel("L_late"), A.newlabel("L_join")
    for s in range(22):
        if s == GATE:
            assert st["nxt"] == 12
            lg.drain()
            A(f"v_cmp_le_u32 vcc, 3, v{vFV}\ns_cbranch_vccz {llate}")
            keep = (list(vm.q), list(lg.q))
            mark = len(A.lines)
            A.label(llate)
            for s2_ in range(GATE, 12):
                stage(s2_, 11)
            lr, lo = A.newlabel("L_fs"), A.newlabel("L_fs")
            A.label(lr)
            A(f"""global_load_dword v{vFV}, v{vT+1}, s[{S_WS}:{S_WS+1}] sc1
            s_waitcnt vmcnt(0)
            v_cmp_eq_u32 vcc, s{S_NONCE}, v{vFV}
            s_nop 1
            s_lshr_b32 s{S_T0+2}, vcc_lo, 24
            s_cmp_eq_u32 s{S_T0+2}, 0xff
            s_cbranch_scc1 {lo}""")
            spin_tail(lr, lo, 2)
            A.label(lo)
            vm.q = []
            for s2_ in range(12, 12 + DA - 1):
                ldA(s2_)
            A(f"s_branch {ljoin}")
            late_q = (list(vm.q), list(lg.q))
            SLOW.extend(A.lines[mark:])
            del A.lines[mark:]
            vm.q, lg.q = keep
            st["nxt"] = 12
        if s == 12:
            A.label(ljoin)
            assert vm.q[-4*(DA-1):] == late_q[0] and st["nxt"] == 12 + DA - 1
        stage(s, 21)
    ts(8, 2)
    tc(15)
    if NU == 6:
        A(f"ds_read_b32 v{vFD}, v{vFP} offset:1024\ns_waitcnt lgkmcnt(0)")
        flag_test(41, vFD, vFP, 1024)
    A(f"v_lshlrev_b32 v{vT}, 4, v{VL}")
    for Tp in range(1, 4):
        A(f"""s_add_u32 s{S_T0}, s{S_WAVE}, {Tp}
        s_and_b32 s{S_T0}, s{S_T0}, 3
        s_mul_i32 s{S_T0}, s{S_T0}, {3*NU*1024}
        s_add_u32 s{S_T0}, s{S_T0}, {RED + (Tp-1)*NU*1024}
        v_add_u32 v{vT+Tp}, s{S_T0}, v{vT}""")
    A(f"""s_mul_i32 s{S_T0}, s{S_WAVE}, {3*NU*1024}
    s_add_u32 s{S_T0}, s{S_T0}, {RED}
    v_add_u32 v{vT}, s{S_T0}, v{vT}
    s_nop 4""")
    for U in range(NU):
        for Tp in range(1, 4):
            acc = (U * 4 + Tp) * 4
            A(f"ds_write_b128 v{vT+Tp}, v[{acc}:{acc+3}] offset:{U*1024}")
    A(f"""s_lshl_b32 s{S_T0}, s{S_HB2}, 6
    s_lshl_b32 s{S_T0+1}, s{S_WAVE}, 4
    s_add_u32 s{S_T0}, s{S_T0}, s{S_T0+1}
    v_and_b32 v{vA}, 15, v{VL}
    v_add_u32 v{vA}, s{S_T0}, v{vA}
    v_mul_u32_u24 v{vA}, 2560, v{vA}
    v_lshrrev_b32 v{vA+1}, 4, v{VL}
    v_lshl_add_u32 v{vA}, v{vA+1}, 4, v{vA}
    s_lshl_b32 s{S_T0+1}, s{S_DCOL}, 2
    v_add_u32 v{vA}, s{S_T0+1}, v{vA}
    s_waitcnt lgkmcnt(0)
    s_barrier""")
    lg = Queue(A, "lgkmcnt", 15)
    def rdR(U):
        for i in range(3):
            b = (U * 4 + 1 + i) * 4
            A(f"ds_read_b128 v[{b}:{b+3}], v{vT} offset:{(i*NU+U)*1024}")
            lg.issue(("r", U))
    for U in range(min(NU, 4)):
        rdR(U)
    for U in range(NU):
        lg.wait(("r", U))
        acc = U * 16
        for h in (0, 2):
            A(f"v_pk_add_f32 v[{acc+h}:{acc+h+1}], v[{acc+h}:{acc+h+1}], v[{acc+4+h}:{acc+5+h}]")
            A(f"v_pk_add_f32 v[{acc+8+h}:{acc+9+h}], v[{acc+8+h}:{acc+9+h}], v[{acc+12+h}:{acc+13+h}]")
        for h in (0, 2):
            A(f"v_pk_add_f32 v[{acc+h}:{acc+h+1}], v[{acc+h}:{acc+h+1}], v[{acc+8+h}:{acc+9+h}]")
        A(f"global_store_dwordx4 v{vA}, v[{acc}:{acc+3}], s[{S_OUT}:{S_OUT+1}] offset:{64*U}")
        if U + 4 < NU:
            rdR(U + 4)
    ts(9, 2)
    ts_flush(100)
    A("s_endpgm")
    flush_slow()

def publish_flag(idx_code):
    A("s_waitcnt vmcnt(0)")
    A(f"""s_lshl_b32 s{S_T0}, s{S_T0}, 5
    s_add_u32 s{S_T0}, s{S_T0}, s{S_T0+1}
    s_lshl_b32 s{S_T0}, s{S_T0}, 2
    s_add_u32 s{S_T0}, s{S_T0}, {WS_FLAG}
    v_mov_b32 v250, s{S_T0}
    v_mov_b32 v251, s{S_NONCE}
    s_mov_b64 exec, 1
    global_store_dword v250, v251, s[{S_WS}:{S_WS+1}] sc1
    s_mov_b64 exec, -1""")

A.label("L_compute")
A(f"s_setprio {OPT.get('pc1', 2)}")
if OPT.get("pfc", 1):
    A(f"""s_getpc_b64 s[{S_M0}:{S_M0+1}]
    L_pcc:
    s_sub_u32 s{S_M0}, s{S_M0}, L_pcc-L_code_start
    s_subb_u32 s{S_M0+1}, s{S_M0+1}, 0
    v_lshlrev_b32 v2, 7, v0
    v_add_u32 v3, 32768, v2
    v_min_u32 v3, L_code_end-L_code_start-8, v3
    global_load_dword v246, v2, s[{S_M0}:{S_M0+1}]
    global_load_dword v247, v3, s[{S_M0}:{S_M0+1}]""")
A("s_waitcnt lgkmcnt(0)")
late_scalars()
A(f"s_cmp_eq_u32 s{S_J}, 0\ns_cbranch_scc1 L_ssm_compute")
zero_regs(0, 128)()
rowpat_read(192, 198)
A(f"""s_and_b32 s{S_T0}, s{S_WAVE}, 1
s_lshl_b32 s{S_T0}, s{S_T0}, 13
v_add_u32 v192, s{S_T0}, v192
v_xor_b32 v193, 64, v192
v_lshrrev_b32 v198, 4, v{VL}              ; q
v_bfe_u32 v199, v{VL}, 2, 2               ; rr
v_and_b32 v200, 1, v198
v_lshl_add_u32 v200, v200, 2, v199        ; swizzle s
v_lshl_add_u32 v198, v198, 3, v199        ; k row
v_lshlrev_b32 v198, 8, v198
v_and_b32 v199, 3, v{VL}
v_lshl_add_u32 v198, v199, 3, v198
v_add_u32 v198, {WRING}, v198
s_lshr_b32 s{S_T0}, s{S_WAVE}, 1
s_lshl_b32 s{S_T0}, s{S_T0}, 2""")
for F in range(4):
    A(f"""s_add_u32 s{S_T0+1}, s{S_T0}, {F}
    v_xor_b32 v199, s{S_T0+1}, v200
    v_lshl_add_u32 v{194+F}, v199, 5, v198""")
nonce_ready()
ts(1, 2)
lg, entry, AX, AW = gemm1_loop("mlp")
A("s_waitcnt lgkmcnt(0)")
ts(3, 2)
tc(13)
if TS:
    A("v_writelane_b32 v255, s56, 10\nv_writelane_b32 v255, s57, 11")
if OPT.get("solo", 0):
    ts_flush(100)
    A("s_endpgm")
A(f"s_setprio {OPT.get('pc2', 3)}")
gemm2_pre_stat(6, PRE)
ER = 128
EC = 144
A(f"""s_and_b32 s{S_T0}, s{S_WAVE}, 1
s_lshl_b32 s{S_T0}, s{S_T0}, 10
s_add_u32 s{S_T0}, s{S_T0}, {M_ROW}
v_and_b32 v192, 15, v{VL}
v_lshlrev_b32 v192, 4, v192
v_add_u32 v192, s{S_T0}, v192
s_lshr_b32 s{S_T0}, s{S_WAVE}, 1
s_lshl_b32 s{S_T0}, s{S_T0}, 8
s_add_u32 s{S_T0}, s{S_T0}, {M_CS}
v_lshrrev_b32 v193, 4, v{VL}
v_lshlrev_b32 v193, 4, v193
v_add_u32 v193, s{S_T0}, v193""")
for T in range(4):
    A(f"ds_read_b128 v[{ER+4*T}:{ER+4*T+3}], v192 offset:{256*T}")
for F in range(4):
    for c in range(2):
        b = EC + (F * 2 + c) * 4
        A(f"ds_read_b128 v[{b}:{b+3}], v193 offset:{c*512+F*64}")
A(f"""s_lshl_b32 s{S_T0}, s{S_C}, 1
s_and_b32 s{S_T0+1}, s{S_WAVE}, 1
s_add_u32 s{S_T0}, s{S_T0}, s{S_T0+1}
s_mul_i32 s{S_T0}, s{S_T0}, 88
s_lshl_b32 s{S_T0+1}, s{S_CB}, 2
s_add_u32 s{S_T0}, s{S_T0}, s{S_T0+1}
s_and_b32 s{S_T0+1}, s{S_WAVE}, 2
s_add_u32 s{S_T0}, s{S_T0}, s{S_T0+1}
s_lshl_b32 s{S_T0}, s{S_T0}, 12
s_add_u32 s{S_T0}, s{S_T0}, {WS_ACT}
v_lshlrev_b32 v194, 4, v{VL}
v_add_u32 v194, s{S_T0}, v194
v_add_u32 v195, 4096, v194
s_waitcnt lgkmcnt(0)""")
ET = 176
EO = 184
n = 0
for u in range(2):
    for T in range(4):
        m = ER + 4 * T
        prs = []
        for F in (2 * u, 2 * u + 1):
            for h in (0, 2):
                g = ((F * 2 + 0) * 4 + T) * 4 + h
                up = ((F * 2 + 1) * 4 + T) * 4 + h
                prs.append((g, up, EC + (F * 2) * 4 + h, EC + (F * 2 + 1) * 4 + h))
        for i, (g, up, cg, cu) in enumerate(prs):
            A(f"v_pk_fma_f32 v[{g}:{g+1}], v[{cg}:{cg+1}], v[{m}:{m+1}], v[{g}:{g+1}] op_sel_hi:[1,0,1] neg_lo:[0,1,0] neg_hi:[0,1,0]")
        for i, (g, up, cg, cu) in enumerate(prs):
            e = ET + 2 * i
            A(f"v_pk_mul_f32 v[{e}:{e+1}], v[{g}:{g+1}], v[{m}:{m+1}] op_sel:[0,1] op_sel_hi:[1,1]")
        for i, (g, up, cg, cu) in enumerate(prs):
            e = ET + 2 * i
            A(f"v_exp_f32 v{e}, v{e}\nv_exp_f32 v{e+1}, v{e+1}")
            A(f"v_pk_fma_f32 v[{up}:{up+1}], v[{cu}:{cu+1}], v[{m}:{m+1}], v[{up}:{up+1}] op_sel_hi:[1,0,1] neg_lo:[0,1,0] neg_hi:[0,1,0]")
        for i, (g, up, cg, cu) in enumerate(prs):
            e = ET + 2 * i
            A(f"v_pk_fma_f32 v[{e}:{e+1}], v[{e}:{e+1}], v[{m+2}:{m+3}], v[{m+2}:{m+3}] op_sel_hi:[1,0,0]")
        for i, (g, up, cg, cu) in enumerate(prs):
            e = ET + 2 * i
            A(f"v_rcp_f32 v{e}, v{e}\nv_rcp_f32 v{e+1}, v{e+1}")
            A(f"v_pk_mul_f32 v[{g}:{g+1}], v[{g}:{g+1}], v[{up}:{up+1}]")
        for i, (g, up, cg, cu) in enumerate(prs):
            e = ET + 2 * i
            A(f"v_pk_mul_f32 v[{g}:{g+1}], v[{g}:{g+1}], v[{e}:{e+1}]")
        o = EO + 4 * (n % 2)
        for i, (g, up, cg, cu) in enumerate(prs):
            A(f"v_cvt_pk_bf16_f32 v{o+i}, v{g}, v{g+1}")
        A(f"global_store_dwordx4 v{194+u}, v[{o}:{o+3}], s[{S_WS}:{S_WS+1}] offset:{1024*T} sc1")
        n += 1
ts(4, 2)
A("s_waitcnt vmcnt(8)")
gemm2_base(6, PRE, 128)
ts(5, 2)
A(f"""s_lshl_b32 s{S_T0}, s{S_C}, 1
s_and_b32 s{S_T0+1}, s{S_WAVE}, 1
s_add_u32 s{S_T0}, s{S_T0}, s{S_T0+1}
s_lshl_b32 s{S_T0+1}, s{S_CB}, 1
s_lshr_b32 s{S_T0+2}, s{S_WAVE}, 1
s_add_u32 s{S_T0+1}, s{S_T0+1}, s{S_T0+2}""")
publish_flag(None)
ts(6, 2)
gemm2_compute(6)

A.label("L_ssm_compute")
zero_regs(0, 160)()
rowpat_read(232, 236)
A(f"""s_lshr_b32 s{S_T0}, s{S_WAVE}, 1
s_mul_i32 s{S_T0}, s{S_T0}, 10240
s_add_u32 s{S_T0}, s{S_T0}, {WRING}
v_add_u32 v234, s{S_T0}, v232
v_xor_b32 v235, 64, v234
s_and_b32 s{S_T0}, s{S_WAVE}, 1
s_lshl_b32 s{S_T0}, s{S_T0}, 13
v_add_u32 v232, s{S_T0}, v232
v_xor_b32 v233, 64, v232""")
nonce_ready()
ts(1, 2)
lg, entry, AX, AW = gemm1_loop("ssm")
A("s_waitcnt lgkmcnt(0)")
ts(3, 2)
tc(13)
if TS:
    A("v_writelane_b32 v255, s56, 10\nv_writelane_b32 v255, s57, 11")
if OPT.get("solo", 0):
    ts_flush(100)
    A("s_endpgm")
A(f"s_setprio {OPT.get('pc2', 3)}")
gemm2_pre_stat(2, PRE2)
def acc(G, c, m, r=0):
    return ((G * 2 + c) * 4 + m) * 4 + r
SM, SR_ = 160, 176
SCS = 192
SLAM = 202
SK = 212
SA = 222
A(f"""s_and_b32 s{S_T0}, s{S_WAVE}, 1
s_lshl_b32 s{S_T0}, s{S_T0}, 8
s_add_u32 s{S_T0}, s{S_T0}, {M_ROW}
v_lshrrev_b32 v{SA}, 4, v{VL}
v_lshlrev_b32 v{SA}, 4, v{SA}
v_add_u32 v{SA}, s{S_T0}, v{SA}
s_lshr_b32 s{S_T0+1}, s{S_WAVE}, 1
s_mul_i32 s{S_T0+1}, s{S_T0+1}, 80
v_and_b32 v{SA+1}, 15, v{VL}
v_add_u32 v{SA+1}, s{S_T0+1}, v{SA+1}
v_lshlrev_b32 v{SA+2}, 2, v{SA+1}
v_add_u32 v{SA+3}, {M_CS}, v{SA+2}
v_lshlrev_b32 v{SA+4}, 3, v{SA+1}
v_add_u32 v{SA+4}, {M_LAM}, v{SA+4}""")
for m in range(4):
    A(f"ds_read_b128 v[{SM+4*m}:{SM+4*m+3}], v{SA} offset:{64*m}")
    A(f"ds_read_b128 v[{SR_+4*m}:{SR_+4*m+3}], v{SA} offset:{512+64*m}")
for G in range(5):
    A(f"ds_read_b32 v{SCS+2*G}, v{SA+3} offset:{64*G}")
    A(f"ds_read_b32 v{SCS+2*G+1}, v{SA+3} offset:{640+64*G}")
for G in range(5):
    A(f"ds_read_b64 v[{SLAM+2*G}:{SLAM+2*G+1}], v{SA+4} offset:{128*G}")
    A(f"ds_read_b64 v[{SK+2*G}:{SK+2*G+1}], v{SA+4} offset:{M_COEF-M_LAM+128*G}")
A(f"""s_and_b32 s{S_T0}, s{S_WAVE}, 1
s_mul_i32 s{S_T0}, s{S_T0}, {8*1280}
s_add_u32 s{S_T0}, s{S_T0}, {E_BASE}
v_lshrrev_b32 v{SA+5}, 4, v{VL}
v_mul_u32_u24 v{SA+5}, 2560, v{SA+5}
v_add3_u32 v{SA+5}, v{SA+5}, v{SA+2}, s{S_T0}
s_waitcnt lgkmcnt(0)""")
def pk(op, d, a, b, c=None, sa=None, sb=None, sc=None, neg=None):
    ops = [a, b] + ([c] if c is not None else [])
    sel = [sa, sb] + ([sc] if c is not None else [])
    lo = [0 if s is None else s for s in sel]
    hi = [1 if s is None else s for s in sel]
    t = f"v_pk_{op}_f32 v[{d}:{d+1}], " + ", ".join(f"v[{o}:{o+1}]" for o in ops)
    t += " op_sel:[" + ",".join(map(str, lo)) + "] op_sel_hi:[" + ",".join(map(str, hi)) + "]"
    if neg is not None:
        nn = [1 if i == neg else 0 for i in range(len(ops))]
        t += " neg_lo:[" + ",".join(map(str, nn)) + "] neg_hi:[" + ",".join(map(str, nn)) + "]"
    A(t)
for m in range(4):
    for h in (0, 2):
        for G in range(5):
            for c in range(2):
                a = acc(G, c, m, h)
                pk("fma", a, SM + 4 * m + h, SCS + 2 * G, a, sb=c, neg=1)
        for G in range(5):
            for c in range(2):
                a = acc(G, c, m, h)
                pk("mul", a, a, SR_ + 4 * m + h)
steps = [(m, h) for m in range(4) for h in (0, 2)]
for k in range(1, 8):
    (m, h), (pm, ph) = steps[k], steps[k - 1]
    for G in range(5):
        pk("fma", acc(G, 0, m, h), acc(G, 0, pm, ph), SLAM + 2 * G, acc(G, 0, m, h), sb=0)
        pk("fma", acc(G, 1, m, h), acc(G, 1, pm, ph), SLAM + 2 * G, acc(G, 1, m, h), sb=0)
    for G in range(5):
        pk("fma", acc(G, 0, m, h), acc(G, 1, pm, ph), SLAM + 2 * G, acc(G, 0, m, h), sb=1, neg=1)
        pk("fma", acc(G, 1, m, h), acc(G, 0, pm, ph), SLAM + 2 * G, acc(G, 1, m, h), sb=1)
A(f"ds_read_b32 v250, v248 offset:1024\ns_waitcnt lgkmcnt(0)")
flag_test(17, 250, 248, 1024)
for G in range(5):
    for c in range(2):
        for e in range(2):
            A(f"ds_write_b32 v{SA+5}, v{acc(G,c,3,2+e)} offset:{e*1280+c*640+64*G}")
A("s_waitcnt lgkmcnt(0)\ns_barrier")
ts(4, 2)
for m, h in steps:
    for G in range(5):
        t = SM + 2 * G
        pk("mul", t, acc(G, 0, m, h), SK + 2 * G, sb=1)
    for G in range(5):
        pk("mul", acc(G, 0, m, h), acc(G, 0, m, h), SK + 2 * G, sb=0)
    for G in range(5):
        pk("fma", acc(G, 0, m, h), acc(G, 1, m, h), SK + 2 * G, acc(G, 0, m, h), sb=1)
    for G in range(5):
        t = SM + 2 * G
        pk("fma", acc(G, 1, m, h), acc(G, 1, m, h), SK + 2 * G, t, sb=0, neg=1)
A(f"""s_mul_i32 s{S_T0}, s{S_WAVE}, 20480
s_add_u32 s{S_T0}, s{S_T0}, {TR_BASE}
v_and_b32 v{SA}, 7, v{VL}
v_bfe_u32 v{SA+1}, v{VL}, 3, 1
v_lshlrev_b32 v{SA+1}, 2, v{SA+1}
v_xor_b32 v{SA}, v{SA}, v{SA+1}                ; f
v_lshrrev_b32 v{SA+1}, 4, v{VL}
v_lshlrev_b32 v{SA+1}, 1, v{SA+1}
v_xor_b32 v{SA}, v{SA}, v{SA+1}                ; (2q) ^ f
v_and_b32 v{SA+1}, 15, v{VL}
v_lshlrev_b32 v{SA+1}, 7, v{SA+1}
v_lshl_add_u32 v{SA}, v{SA}, 4, v{SA+1}
v_add_u32 v{SA}, s{S_T0}, v{SA}                ; e = 0
v_xor_b32 v{SA+1}, 16, v{SA}                   ; e = 1
v_lshrrev_b32 v{SA+2}, 4, v{VL}                ; q
v_bfe_u32 v{SA+3}, v{VL}, 2, 2                 ; rr
v_and_b32 v{SA+4}, 1, v{SA+2}
v_lshl_add_u32 v{SA+4}, v{SA+4}, 2, v{SA+3}
v_bfe_u32 v{SA+6}, v{VL}, 1, 1                 ; cc>>1
v_xor_b32 v{SA+4}, v{SA+4}, v{SA+6}
v_lshl_add_u32 v{SA+2}, v{SA+2}, 3, v{SA+3}    ; row
v_lshlrev_b32 v{SA+2}, 7, v{SA+2}
v_lshl_add_u32 v{SA+2}, v{SA+4}, 4, v{SA+2}
v_and_b32 v{SA+3}, 1, v{VL}
v_lshl_add_u32 v{SA+2}, v{SA+3}, 3, v{SA+2}
v_add_u32 v{SA+2}, s{S_T0}, v{SA+2}""")
TA = 176
for Tq in range(4):
    A(f"v_xor_b32 v{TA+2*Tq}, {32*Tq}, v{SA+2}")
    A(f"v_xor_b32 v{TA+2*Tq+1}, {(32*Tq) ^ 64}, v{SA+2}")
A(f"""s_lshl_b32 s{S_T0}, s{S_C}, 1
s_and_b32 s{S_T0+1}, s{S_WAVE}, 1
s_add_u32 s{S_T0}, s{S_T0}, s{S_T0+1}
s_mul_i32 s{S_T0}, s{S_T0}, 88
s_mul_i32 s{S_T0+1}, s{S_CB}, 10
s_add_u32 s{S_T0}, s{S_T0}, s{S_T0+1}
s_lshr_b32 s{S_T0+1}, s{S_WAVE}, 1
s_mul_i32 s{S_T0+1}, s{S_T0+1}, 5
s_add_u32 s{S_T0}, s{S_T0}, s{S_T0+1}
s_add_u32 s{S_T0}, s{S_T0}, 48
s_lshl_b32 s{S_T0}, s{S_T0}, 12
s_add_u32 s{S_T0}, s{S_T0}, {WS_ACT}
v_lshlrev_b32 v{SA+3}, 4, v{VL}
v_add_u32 v{SA+3}, s{S_T0}, v{SA+3}""")
A("s_barrier")
ts(5, 2)
SW = 184
SW = 182
def W(G, c):
    idx = G * 2 + c
    return (160 + 2 * idx) if idx < 8 else (192 + 2 * (idx - 8))
for G in range(5):
    for c in range(2):
        for e in range(2):
            A(f"ds_read_b32 v{W(G,c)+e}, v{SA+5} offset:{e*1280+c*640+64*G}")
A("s_waitcnt lgkmcnt(0)")
WT = 184
def WTm(G):
    return (184 + 2 * G) if G < 4 else 196
for k, (m, h) in enumerate(steps):
    for G in range(5):
        for c in range(2):
            pk("add", acc(G, c, m, h), acc(G, c, m, h), W(G, c))
    if k < 7:
        for G in range(5):
            pk("mul", WTm(G), W(G, 0), SLAM + 2 * G, sb=1)
        for G in range(5):
            pk("mul", W(G, 0), W(G, 0), SLAM + 2 * G, sb=0)
        for G in range(5):
            pk("fma", W(G, 0), W(G, 1), SLAM + 2 * G, W(G, 0), sb=1)
        for G in range(5):
            pk("fma", W(G, 1), W(G, 1), SLAM + 2 * G, WTm(G), sb=0, neg=2)
PK = 160
for G in range(5):
    for c in range(2):
        o = PK + 8 * c
        for e in range(2):
            for m in range(4):
                A(f"v_cvt_pk_bf16_f32 v{o+4*e+m}, v{acc(G,c,m,e)}, v{acc(G,c,m,2+e)}")
        for e in range(2):
            A(f"ds_write_b128 v{SA+e}, v[{o+4*e}:{o+4*e+3}] offset:{G*4096+c*2048}")
lg = Queue(A, "lgkmcnt", 15)
A("s_waitcnt lgkmcnt(0)")
def trG(G):
    for Tq in range(4):
        b = G * 16 + Tq * 4
        A(f"ds_read_b64_tr_b16 v[{b}:{b+1}], v{TA+2*Tq} offset:{G*4096}")
        A(f"ds_read_b64_tr_b16 v[{b+2}:{b+3}], v{TA+2*Tq+1} offset:{G*4096+512}")
        lg.issue(("t", G, Tq)); lg.issue(("t", G, Tq))
trG(0)
for G in range(5):
    if G < 4:
        trG(G + 1)
    for Tq in range(4):
        lg.wait(("t", G, Tq))
        b = G * 16 + Tq * 4
        A(f"global_store_dwordx4 v{SA+3}, v[{b}:{b+3}], s[{S_WS}:{S_WS+1}] offset:{1024*Tq} sc1")
    if G < 4:
        A(f"v_add_u32 v{SA+3}, 4096, v{SA+3}")
A("s_waitcnt vmcnt(20)")
gemm2_base(2, PRE2, 96 + 64)
A(f"""s_lshl_b32 s{S_T0}, s{S_C}, 1
s_and_b32 s{S_T0+1}, s{S_WAVE}, 1
s_add_u32 s{S_T0}, s{S_T0}, s{S_T0+1}
s_lshl_b32 s{S_T0+1}, s{S_CB}, 1
s_lshr_b32 s{S_T0+2}, s{S_WAVE}, 1
s_add_u32 s{S_T0+1}, s{S_T0+1}, s{S_T0+2}
s_add_u32 s{S_T0+1}, s{S_T0+1}, 24""")
publish_flag(None)
ts(6, 2)
gemm2_compute(2)

def rowpat_load(dst, tmp, ssm):
    A(f"""v_lshrrev_b32 v{tmp}, 4, v{VL}
    v_xor_b32 v{tmp+1}, v{tmp}, v{VL}
    v_and_b32 v{tmp+1}, 7, v{tmp+1}              ; chunk""")
    if ssm:
        A(f"""v_lshrrev_b32 v{tmp}, 5, v{VL}
        v_lshlrev_b32 v{tmp}, 4, v{tmp}
        v_bfe_u32 v{dst}, v{VL}, 3, 1
        v_lshl_add_u32 v{tmp}, v{dst}, 3, v{tmp}
        v_bfe_u32 v{dst}, v{VL}, 4, 1
        v_add_u32 v{tmp}, v{tmp}, v{dst}""")
        up = 32
    else:
        A(f"v_lshrrev_b32 v{tmp}, 3, v{VL}")
        up = 8
    A(f"""v_mul_u32_u24 v{dst}, 1280, v{tmp}
    v_lshl_add_u32 v{dst}, v{tmp+1}, 4, v{dst}
    v_xor_b32 v{dst+1}, 64, v{dst}
    v_add_u32 v{dst+1}, {up*1280-1024}, v{dst+1}""")

LFP, LFV, LFD, LPA, LPD = 240, 241, 242, 243, 244
S_U, S_XS, S_S2 = 83, 84, 87
S_RET, S_SUB = 90, 30
class NoQ:
    def issue(self, t): pass
    def wait(self, t): pass
NOQ = NoQ()
def run(g):
    for _ in g:
        pass

def declare(sreg=None, imm=None):
    A(f"v_mov_b32 v{LFV}, {'s%d' % sreg if sreg is not None else imm}\nds_write_b32 v{VFO}, v{LFV}")
def wait_free(sreg):
    A(f"ds_read_b32 v{LFD}, v{LFP}\ns_waitcnt lgkmcnt(0)")
    flag_test(f"s{sreg}", LFD, LFP, 0, nap=OPT.get("nap", 0))
def stamp(idx_sreg, add):
    if TS:
        A(f"""s_memrealtime s[{S_TS}:{S_TS+1}]
        s_add_u32 m0, s{idx_sreg}, {add}
        s_waitcnt lgkmcnt(0)
        v_writelane_b32 v255, s{S_TS}, m0""")

def poll_setup():
    A(f"""s_lshl_b32 s{S_T0}, s{S_HB2}, 7
    s_add_u32 s{S_T0}, s{S_T0}, {WS_FLAG+96}
    v_and_b32 v{LPA}, 7, v{VL}
    v_lshlrev_b32 v{LPA}, 2, v{LPA}
    v_add_u32 v{LPA}, s{S_T0}, v{LPA}""")
def poll_issue():
    A(f"global_load_dword v{LPD}, v{LPA}, s[{S_WS}:{S_WS+1}] sc1")
def poll_check():
    lo = A.newlabel("L_pk")
    A(f"""v_cmp_ne_u32 vcc, s{S_NONCE}, v{LPD}
    s_cbranch_vccnz {lo}
    v_mov_b32 v{LFV}, 3
    ds_write_b32 v{VFO}, v{LFV} offset:2048""")
    A.label(lo)

VW2, VC2 = 12, 15
def g2_setup(NU, tmp):
    CH = 2 * NU
    magic = (65536 + CH - 1) // CH
    srd(SRD_W2, S_W2, 1966080)
    srd(SRD_C, S_CRE, 819200)
    srd(SRD_T, S_CIM, 819200)
    A(f"s_lshl_b32 s{S_T0}, s{S_DCOL}, 1")
    for i in range(3 if NU == 6 else 1):
        A(f"""v_add_u32 v{tmp}, {64*i}, v{VL}               ; n
        v_mul_u32_u24 v{tmp+1}, {magic}, v{tmp}
        v_lshrrev_b32 v{tmp+1}, 16, v{tmp+1}           ; row
        v_mul_u32_u24 v{tmp+2}, {CH}, v{tmp+1}
        v_sub_u32 v{tmp}, v{tmp}, v{tmp+2}             ; pos
        v_bfe_u32 v{tmp+2}, v{tmp+1}, 2, 1
        v_lshlrev_b32 v{tmp+2}, 1, v{tmp+2}
        v_xor_b32 v{tmp}, v{tmp}, v{tmp+2}
        v_mul_u32_u24 v{tmp+1}, 1280, v{tmp+1}
        v_lshl_add_u32 v{tmp}, v{tmp}, 4, v{tmp+1}
        v_add_u32 v{VW2+i}, s{S_T0}, v{tmp}""")
    for n in range(192):
        assert (n * magic) >> 16 == n // CH
    rowpat_load(VC2, tmp, False)
    A(f"""s_mul_i32 s{S_T0}, s{S_DCOL}, 1280
    v_add_u32 v{VC2}, s{S_T0}, v{VC2}
    v_add_u32 v{VC2+1}, s{S_T0}, v{VC2+1}
    s_add_u32 s{S_S2}, s{S_LW}, 1
    s_and_b32 s{S_S2}, s{S_S2}, 3
    s_add_u32 s{S_KS}, s{S_S2}, s{S_R2A}
    s_cmp_ge_u32 s{S_KS}, 12
    s_cselect_b32 s{S_T0}, 12, 0
    s_sub_u32 s{S_KS}, s{S_KS}, s{S_T0}
    s_mul_i32 s{S_KS}, s{S_KS}, {128*1280}
    v_lshlrev_b32 v236, 4, v{VL}""")
    poll_setup()

def g2_pieces(NU, k):
    out = []
    if k < 3:
        per = 3 if NU == 6 else 1
        for i in range(4 * NU):
            out.append((VW2 + i % per, SRD_W2, (i // per) * 16 * 1280, 0))
    else:
        for i in range(4 * NU):
            mat, ii = i // (2 * NU), i % (2 * NU)
            out.append((VC2 + ii % 2, SRD_T if mat else SRD_C, (ii // 2) * 16 * 1280, 1024 * (ii % 2)))
    return out
def g2_next(k):
    if k == 2:
        A(f"""s_and_b32 s{S_KS}, s{S_S2}, 3
        s_add_u32 s{S_KS}, s{S_KS}, s{S_R2B}
        s_cmp_ge_u32 s{S_KS}, 10
        s_cselect_b32 s{S_T0}, 10, 0
        s_sub_u32 s{S_KS}, s{S_KS}, s{S_T0}
        s_lshl_b32 s{S_KS}, s{S_KS}, 7""")
    else:
        step, n = (128 * 1280, 12) if k < 2 else (128, 10)
        A(f"""s_add_u32 s{S_KS}, s{S_KS}, {4*step}
        s_cmp_ge_u32 s{S_KS}, {n*step}
        s_cselect_b32 s{S_T0}, {n*step}, 0
        s_sub_u32 s{S_KS}, s{S_KS}, s{S_T0}""")
THR = OPT.get("thr", 0)
def g2_to_regs(k, thr=0):
    base = 40 + (k % 2) * 96
    last = None
    for i, (v, sd, ex, io) in enumerate(g2_pieces(6, k)):
        if ex != last:
            A(f"s_add_u32 s{S_T0+7}, s{S_KS}, {ex}")
            last = ex
        if thr and i % 4 == 0:
            A(f"s_waitcnt vmcnt({thr})")
        A(f"buffer_load_dwordx4 v[{base+4*i}:{base+4*i+3}], v{v}, s[{sd}:{sd+3}], s{S_T0+7} offen offset:{io}")
    g2_next(k)

def bump_epoch(T):
    lr, lo = A.newlabel("L_ep"), A.newlabel("L_ep")
    ld = A.newlabel("L_ep")
    A(f"""s_cmp_lg_u32 s2, 0
    s_cbranch_scc1 {ld}
    s_cmp_lg_u32 s{S_LW}, 2
    s_cbranch_scc1 {ld}
    v_lshlrev_b32 v{T}, 4, v{VL}
    v_add_u32 v{T}, {WS_FLAG}, v{T}""")
    A.label(lr)
    for i in range(4):
        A(f"global_load_dwordx4 v[{T+4+4*i}:{T+7+4*i}], v{T}, s[{S_WS}:{S_WS+1}] offset:{1024*i} sc1")
    A(f"s_waitcnt vmcnt(0)\ns_mov_b64 s[{S_M0}:{S_M0+1}], 0")
    for i in range(16):
        A(f"v_cmp_ne_u32 vcc, s{S_NONCE}, v{T+4+i}\ns_nop 1\ns_or_b64 s[{S_M0}:{S_M0+1}], s[{S_M0}:{S_M0+1}], vcc")
    A(f"s_cmp_eq_u64 s[{S_M0}:{S_M0+1}], 0\ns_cbranch_scc1 {lo}")
    spin_tail(lr, lo, 4)
    A.label(lo)
    A(f"""v_mov_b32 v{T}, {WS_E}
    v_mov_b32 v{T+1}, s{S_NONCE}
    s_mov_b64 exec, 1
    global_store_dword v{T}, v{T+1}, s[{S_WS}:{S_WS+1}] sc1
    s_mov_b64 exec, -1""")
    A.label(ld)

def prefetch(vm, T, tag):
    if not OPT["pf"]:
        return
    if not OPT.get("pfc", 1):
      for i in range(2):
        vm.issue("pf")
      A(f"""s_getpc_b64 s[{S_M0}:{S_M0+1}]
    L_pc{tag}:
    s_sub_u32 s{S_M0}, s{S_M0}, L_pc{tag}-L_code_start
    s_subb_u32 s{S_M0+1}, s{S_M0+1}, 0
    s_lshl_b32 s{S_T0}, s{S_LW}, 13
    v_lshlrev_b32 v{T}, 7, v{VL}
    v_add_u32 v{T}, s{S_T0}, v{T}
    v_add_u32 v{T+1}, 32768, v{T}
    v_min_u32 v{T+1}, L_code_end-L_code_start-8, v{T+1}
    global_load_dword v250, v{T}, s[{S_M0}:{S_M0+1}]
    global_load_dword v249, v{T+1}, s[{S_M0}:{S_M0+1}]""")
    A(f"""s_cmp_ge_u32 s{S_LW}, 2
    s_cselect_b32 s{S_T0}, 49, 59
    s_mov_b32 s{S_T0+1}, 7680
    s_cmov_b32 s{S_T0+1}, 3200
    s_cselect_b32 s{S_T0+4}, s{S_CRE}, s{S_W2}
    s_cselect_b32 s{S_T0+5}, s{S_CRE+1}, s{S_W2+1}
    s_mul_i32 s{S_T0+1}, s{S_T0+1}, s2
    s_cmp_eq_u32 s{S_LW}, 1
    s_cselect_b32 s{S_T0+2}, 3840, 0
    s_add_u32 s{S_T0+1}, s{S_T0+1}, s{S_T0+2}
    s_cmp_eq_u32 s{S_LW}, 3
    s_cselect_b32 s{S_T0+4}, s{S_CIM}, s{S_T0+4}
    s_cselect_b32 s{S_T0+5}, s{S_CIM+1}, s{S_T0+5}
    v_min_u32 v{T}, s{S_T0}, v{VL}
    v_lshlrev_b32 v{T}, 6, v{T}
    v_add_u32 v{T}, s{S_T0+1}, v{T}
    global_load_dword v248, v{T}, s[{S_T0+4}:{S_T0+5}]""")
    vm.issue("pf")


def head_begin():
    return len(A.lines)
def head_end(mark):
    HEADS.extend(A.lines[mark:])
    del A.lines[mark:]

def issue_sub(kind):
    mlp = kind == "mlp"
    SLOT = 16384 if mlp else 20480
    A.label(f"L_sub_{kind}")
    if OPT["nodma"]:
        A(f"s_cmp_ge_u32 s{S_U}, 5\ns_cbranch_scc1 L_subx_{kind}")
    lodd, lx = A.newlabel("L_is"), A.newlabel("L_is")
    def wpart(sd_list):
        if mlp:
            for g in range(4):
                A(f"s_add_u32 s{S_T0+7}, s{S_KW}, {g*8*3072}")
                for mat, sd in enumerate((SRD_WA, SRD_WB)):
                    A(f"s_add_u32 m0, s{S_SLOT}, {WRING + mat*8192 + g*2048}\ns_nop 0")
                    for h in range(2):
                        A(f"buffer_load_dwordx4 v{6+2*(g%2)+h}, s[{sd}:{sd+3}], s{S_T0+7} offen offset:{1024*h} lds")
        else:
            for g in range(5):
                A(f"s_add_u32 m0, s{S_SLOT}, {WRING + g*4096}\ns_add_u32 s{S_T0+7}, s{S_KW}, {g*32*1280}")
                for h in range(4):
                    A(f"buffer_load_dwordx4 v{6+h}, s[{SRD_WA}:{SRD_WA+3}], s{S_T0+7} offen offset:{1024*h} lds")
    wpart(None)
    A(f"s_bitcmp1_b32 s{S_U}, 0\ns_cbranch_scc1 {lx}")
    for g in range(4):
        rows = g * 32 if mlp else (g >> 1) * 64 + (g & 1) * 4
        A(f"s_add_u32 m0, s{S_XS}, {g*4096}\ns_add_u32 s{S_T0+7}, s{S_KX}, {rows*1280}")
        for h in range(4):
            A(f"buffer_load_dwordx4 v{2+h}, s[{SRD_X}:{SRD_X+3}], s{S_T0+7} offen offset:{1024*h} lds")
    A.label(lx)
    A.label(f"L_subx_{kind}")
    A(f"""s_add_u32 s{S_U}, s{S_U}, 4
    s_add_u32 s{S_KX}, s{S_KX}, 256
    s_add_u32 s{S_KW}, s{S_KW}, {4*32*3072 if mlp else 256}
    s_cmp_eq_u32 s{S_SLOT}, 0
    s_cselect_b32 s{S_SLOT}, {5*SLOT}, s{S_SLOT}
    s_sub_u32 s{S_SLOT}, s{S_SLOT}, {SLOT}
    s_cmp_eq_u32 s{S_XS}, 0
    s_cselect_b32 s{S_XS}, {3*16384}, s{S_XS}
    s_sub_u32 s{S_XS}, s{S_XS}, 16384
    s_setpc_b64 s[{S_RET}:{S_RET+1}]""")
SRD_FL = 20
def declare_dma(sreg):
    A(f"""s_lshl_b32 s{S_T0}, s{sreg}, 2
    s_lshl_b32 s{S_T0+1}, s{S_LW}, 8
    s_add_u32 m0, s{S_T0+1}, {FLG}
    s_nop 0
    buffer_load_dword v{VZ}, s[{SRD_FL}:{SRD_FL+3}], s{S_T0} offen lds""")
def call_sub():
    A(f"s_swappc_b64 s[{S_RET}:{S_RET+1}], s[{S_SUB}:{S_SUB+1}]")

def head_rest(kind):
    mlp = kind == "mlp"
    SLOT = 16384 if mlp else 20480
    nw = 16 if mlp else 20
    A(f"""s_getpc_b64 s[{S_SUB}:{S_SUB+1}]
    L_gp_{kind}:
    s_add_u32 s{S_SUB}, s{S_SUB}, L_sub_{kind}-L_gp_{kind}
    s_addc_u32 s{S_SUB+1}, s{S_SUB+1}, 0
    s_add_u32 s{S_U}, s{S_LW}, 1
    s_mul_i32 s{S_SLOT}, s{S_U}, {SLOT}
    s_lshr_b32 s{S_T0}, s{S_U}, 1
    s_lshl_b32 s{S_XS}, s{S_T0}, 14
    s_lshl_b32 s{S_KX}, s{S_T0}, 7""")
    if mlp:
        A(f"s_mul_i32 s{S_KW}, s{S_U}, {32*3072}")
    else:
        A(f"""s_mov_b32 s{S_KW}, s{S_KX}
        s_bitcmp1_b32 s{S_U}, 0
        s_cselect_b32 s{SRD_WA}, s{S_BIM}, s{S_BRE}
        s_cselect_b32 s{SRD_WA+1}, s{S_BIM+1}, s{S_BRE+1}""")
    table_store(SRD_FL, LFV)
    flag_init(FLG, S_LW, LFP, FLG + 1024, True)
    l2, l3, l4 = A.newlabel("L_hd"), A.newlabel("L_hd"), A.newlabel("L_hd")
    def chain():
        lr, lo = A.newlabel("L_ch"), A.newlabel("L_ch")
        A(f"v_add_u32 v{LPA}, {2048-256}, v{VFO}")
        A.label(lr)
        A(f"""ds_read_b32 v{LFD}, v{LPA}
        s_waitcnt lgkmcnt(0)
        v_cmp_eq_u32 vcc, 0, v{LFD}
        s_cbranch_vccnz {lr}""")
        A.label(lo)
        call_sub()
        A(f"v_mov_b32 v{LFV}, 1\nds_write_b32 v{VFO}, v{LFV} offset:2048")
    A(f"s_cmp_ge_u32 s{S_LW}, 1\ns_cbranch_scc1 {l2}")
    call_sub()
    A(f"v_mov_b32 v{LFV}, 1\nds_write_b32 v{VFO}, v{LFV} offset:2048\ns_waitcnt vmcnt({nw})")
    A(f"s_sub_u32 s{S_T0}, s{S_U}, 4")
    declare(S_T0)
    A(f"s_branch {l4}")
    A.label(l2)
    A("s_waitcnt vmcnt(0)")
    declare(S_U)
    chain()
    A.label(l4)
    A("s_waitcnt lgkmcnt(0)")
    declare_dma(S_U)
    ts(1, 2)
    late_scalars()
    if OPT.get("solo", 0) == 1:
        A("s_waitcnt vmcnt(0)")
        declare(imm=99)
        ts_flush(100)
        A("s_endpgm")
    if OPT.get("solo", 0) >= 2:
        for it in range(3):
            g1_duty()
        g1_last(lambda: None)
        A("s_waitcnt vmcnt(0)")
        ts_flush(100)
        A("s_endpgm")
    A(f"s_branch L_{kind}_loader")
    issue_sub(kind)

def g1_duty(last=False):
    A(f"s_setprio 0\ns_sub_u32 s{S_T0+6}, s{S_U}, 4")
    wait_free(S_T0 + 6)
    stamp(S_U, 16)
    call_sub()
    if not last:
        A(f"s_min_u32 s{S_T0+6}, s{S_U}, 19")
        declare_dma(S_T0 + 6)
        A(f"s_setprio {OPT.get('pls', 3)}")
def g1_last(gran):
    l16 = A.newlabel("L_l3")
    gran()
    A(f"s_cmp_eq_u32 s{S_LW}, 3\ns_cbranch_scc1 {l16}")
    g1_duty(True)
    A.label(l16)
    A(f"s_add_u32 s{S_T0+6}, s{S_U}, 1")
    declare_dma(S_T0 + 6)

def finish():
    A("s_barrier")
    bump_epoch(200)
    ts(9, 2)
    ts_flush(100)
    A("s_endpgm")
    flush_slow()

mark = head_begin()
A(f"s_cmp_eq_u32 s{S_J}, 0\ns_cbranch_scc1 L_ssm_head")
rowpat_load(2, 10, False)
A(f"""s_mul_i32 s{S_T0}, s{S_C}, 163840
v_add_u32 v2, s{S_T0}, v2
v_add_u32 v3, s{S_T0}, v3
v_add_u32 v4, {16*1280-2048}, v2
v_add_u32 v5, {16*1280-2048}, v3
v_lshrrev_b32 v10, 4, v{VL}
v_lshlrev_b32 v11, 1, v10
v_and_b32 v6, 15, v{VL}
v_xor_b32 v11, v11, v6
v_mul_u32_u24 v10, 3072, v10
v_lshl_add_u32 v10, v11, 4, v10
s_lshl_b32 s{S_T0+1}, s{S_CB}, 8
v_add_u32 v6, s{S_T0+1}, v10
v_add_u32 v7, {4*3072-1024}, v6
v_xor_b32 v8, 128, v6
v_xor_b32 v9, 128, v7
s_and_b32 s{S_T0}, s{S_LW}, 1
s_lshl_b32 s{S_T0}, s{S_T0}, 7
v_xor_b32 v10, s{S_T0}, v6
v_xor_b32 v11, s{S_T0}, v7
s_mul_i32 s{S_KX}, s{S_LW}, {32*1280}
s_mul_i32 s{S_KW}, s{S_LW}, {8*3072}
s_lshl_b32 s{S_T0}, s{S_LW}, 12
s_lshl_b32 s{S_T0+1}, s{S_LW}, 11
s_mov_b32 m0, s{S_T0}
s_waitcnt lgkmcnt(0)""")
srd(SRD_X, S_X, 2621440)
for h in range(4):
    A(f"buffer_load_dwordx4 v{2+h}, s[{SRD_X}:{SRD_X+3}], s{S_KX} offen offset:{1024*h} lds")
srd(SRD_WA, S_W1, 1966080)
srd(SRD_WB, S_W3, 1966080)
for mat, sd in enumerate((SRD_WA, SRD_WB)):
    A(f"s_add_u32 m0, s{S_T0+1}, {WRING + mat*8192}\ns_nop 0")
    for h in range(2):
        A(f"buffer_load_dwordx4 v{10+h}, s[{sd}:{sd+3}], s{S_KW} offen offset:{1024*h} lds")
head_rest("mlp")
head_end(mark)
A.label("L_mlp_loader")
vm = NOQ
GA, GD = 18, 22
def gran_loads():
    for i in range(4):
        A(f"global_load_dwordx4 v[{GD+4*i}:{GD+3+4*i}], v{GA+i}, s[{S_WS}:{S_WS+1}] sc1")
def mlp_setup3():
    A(f"""s_mul_i32 s{S_T0}, s{S_LW}, {1536*8}
    s_lshl_b32 s{S_T0+1}, s{S_CB}, 10
    s_add_u32 s{S_T0}, s{S_T0}, s{S_T0+1}
    s_add_u32 s{S_T0}, s{S_T0}, {WS_CSW}
    s_lshl_b32 s{S_T0+1}, s{S_C}, 10
    s_add_u32 s{S_T0+1}, s{S_T0+1}, {WS_STAT}
    s_cmp_ge_u32 s{S_LW}, 2
    s_cselect_b32 s{S_T0}, s{S_T0+1}, s{S_T0}
    s_cselect_b32 s{S_T0+1}, 0, {3072*8}
    v_lshlrev_b32 v{GA}, 4, v{VL}
    v_add_u32 v{GA}, s{S_T0}, v{GA}
    v_add_u32 v{GA+1}, s{S_T0+1}, v{GA}
    v_add_u32 v{GA+2}, s{S_T0+1}, v{GA+1}
    v_add_u32 v{GA+3}, s{S_T0+1}, v{GA+2}""")
def mlp_gran():
    if True:
        vm.wait("gran")
        lr, lo, lskip, lstat = A.newlabel("L_gr"), A.newlabel("L_gr"), A.newlabel("L_gr"), A.newlabel("L_gr")
        A(f"s_cmp_eq_u32 s{S_LW}, 2\ns_cbranch_scc1 {lskip}")
        A.label(lr)
        A(f"s_mov_b64 s[{S_M0}:{S_M0+1}], 0")
        for i in range(8):
            A(f"v_cmp_ne_u32 vcc, s{S_NONCE}, v{GD+1+2*i}\ns_nop 1\ns_or_b64 s[{S_M0}:{S_M0+1}], s[{S_M0}:{S_M0+1}], vcc")
        A(f"s_cmp_eq_u64 s[{S_M0}:{S_M0+1}], 0\ns_cbranch_scc1 {lo}")
        gran_loads()
        A("s_waitcnt vmcnt(0)")
        spin_tail(lr, lo, 5)
        A.label(lo)
        A(f"s_cmp_eq_u32 s{S_LW}, 3\ns_cbranch_scc1 {lstat}")
        A(f"""v_add_f32 v{GD}, v{GD}, v{GD+4}
        v_add_f32 v{GD+2}, v{GD+2}, v{GD+6}
        v_add_f32 v{GD+8}, v{GD+8}, v{GD+12}
        v_add_f32 v{GD+10}, v{GD+10}, v{GD+14}
        v_add_f32 v{GD}, v{GD}, v{GD+8}
        v_add_f32 v{GD+1}, v{GD+2}, v{GD+10}
        s_lshl_b32 s{S_T0}, s{S_LW}, 9
        s_add_u32 s{S_T0}, s{S_T0}, {M_CS}
        v_lshlrev_b32 v{GD+2}, 3, v{VL}
        v_add_u32 v{GD+2}, s{S_T0}, v{GD+2}
        ds_write_b64 v{GD+2}, v[{GD}:{GD+1}]
        s_branch {lskip}""")
        A.label(lstat)
        for hrow, p in ((0, GD), (1, GD + 2)):
            o = GD + 4 + 4 * hrow
            A(f"""v_and_b32 v{o+2}, 0xffff0000, v{p}
            v_lshlrev_b32 v{o}, 16, v{p}
            v_rcp_f32 v{o+1}, v{o+2}
            v_mul_f32 v{o+2}, v{o+2}, v{o+2}
            v_mul_f32 v{o+1}, {NLOG2E}, v{o+1}""")
        A(f"""v_lshlrev_b32 v{GD+2}, 5, v{VL}
        v_add_u32 v{GD+2}, {M_ROW}, v{GD+2}
        ds_write_b128 v{GD+2}, v[{GD+4}:{GD+7}]
        ds_write_b128 v{GD+2}, v[{GD+8}:{GD+11}] offset:16""")
        A.label(lskip)
        A("s_waitcnt lgkmcnt(0)")

nonce_ready()
stat_loads(NOQ, 40)
lnc = A.newlabel("L_nc")
A(f"s_cmp_lg_u32 s{S_LW}, 2\ns_cbranch_scc1 {lnc}")
colsum_loads(60)
A.label(lnc)
mlp_setup3()
A("s_waitcnt vmcnt(20)" if False else "")
g1_duty()
l = A.newlabel("L_x")
A(f"s_bitcmp1_b32 s{S_U}, 0\ns_cbranch_scc0 {l}\ns_waitcnt vmcnt(17)")
A.label(l)
A("s_waitcnt vmcnt(33)")
run(stat_work(NOQ, 40))
l = A.newlabel("L_nc")
A(f"s_cmp_lg_u32 s{S_LW}, 2\ns_cbranch_scc1 {l}")
colsum_work(60)
A.label(l)
g1_duty()
g2_setup(6, 232)
g1_duty()
gran_loads()
def mg():
    A("s_waitcnt vmcnt(0)")
    mlp_gran()
g1_last(mg)
A(f"s_setprio {OPT.get('pl2', 0)}")
g2_to_regs(0, THR)
g2_to_regs(1, THR)
A(f"s_mul_i32 s{S_SLOT}, s{S_S2}, 24576")
for k in range(6):
    lskip = A.newlabel("L_k")
    if k == 5:
        A(f"s_cmp_ge_u32 s{S_S2}, 22\ns_cbranch_scc1 {lskip}")
    A(f"s_add_u32 s{S_T0+6}, s{S_S2}, 15\ns_max_u32 s{S_T0+6}, s{S_T0+6}, 20")
    wait_free(S_T0 + 6)
    polled = k == 2
    if k == 4:
        l5 = A.newlabel("L_k")
        A(f"s_cmp_lt_u32 s{S_S2}, 18\ns_cbranch_scc1 {l5}\ns_waitcnt vmcnt(0)")
        A.label(l5)
    A(f"s_waitcnt vmcnt({0 if k == 5 else 24})")
    if polled:
        poll_issue()
    base = 40 + (k % 2) * 96
    A(f"v_add_u32 v237, s{S_SLOT}, v236")
    for i in range(24):
        A(f"ds_write_b128 v237, v[{base+4*i}:{base+4*i+3}] offset:{1024*i}")
    A(f"""s_add_u32 s{S_S2}, s{S_S2}, 4
    s_add_u32 s{S_T0+6}, s{S_S2}, 21""")
    declare(S_T0 + 6)
    if polled:
        A("s_waitcnt vmcnt(0)")
        poll_check()
    A(f"""s_add_u32 s{S_SLOT}, s{S_SLOT}, {4*24576}
    s_cmp_ge_u32 s{S_SLOT}, {6*24576}
    s_cselect_b32 s{S_T0}, {6*24576}, 0
    s_sub_u32 s{S_SLOT}, s{S_SLOT}, s{S_T0}""")
    if k + 2 <= 5:
        l6 = A.newlabel("L_k")
        if k == 3:
            A(f"s_cmp_ge_u32 s{S_S2}, 18\ns_cbranch_scc1 {l6}")
        A("s_waitcnt lgkmcnt(0)")
        g2_to_regs(k + 2, THR if k < 2 else 0)
        A.label(l6)
    A.label(lskip)
finish()

mark = head_begin()
A.label("L_ssm_head")
rowpat_load(2, 10, True)
rowpat_load(6, 10, False)
A(f"""s_mul_i32 s{S_T0}, s{S_C}, 163840
v_add_u32 v2, s{S_T0}, v2
v_add_u32 v3, s{S_T0}, v3
v_add_u32 v4, {2*1280-2048}, v2
v_add_u32 v5, {2*1280-2048}, v3
s_mul_i32 s{S_T0}, s{S_CB}, {160*1280}
v_add_u32 v6, s{S_T0}, v6
v_add_u32 v7, s{S_T0}, v7
v_add_u32 v8, {16*1280-2048}, v6
v_add_u32 v9, {16*1280-2048}, v7
s_lshr_b32 s{S_KX}, s{S_LW}, 1
s_mul_i32 s{S_KX}, s{S_KX}, {64*1280}
s_and_b32 s{S_T0+1}, s{S_LW}, 1
s_mul_i32 s{S_T0+1}, s{S_T0+1}, {4*1280}
s_add_u32 s{S_KX}, s{S_KX}, s{S_T0+1}
s_mul_i32 s{S_KW}, s{S_LW}, {32*1280}
s_lshl_b32 s{S_T0}, s{S_LW}, 12
s_mov_b32 m0, s{S_T0}
s_waitcnt lgkmcnt(0)""")
srd(SRD_X, S_X, 2621440)
for h in range(4):
    A(f"buffer_load_dwordx4 v{2+h}, s[{SRD_X}:{SRD_X+3}], s{S_KX} offen offset:{1024*h} lds")
srd(SRD_WA, S_BRE, 819200)
A(f"s_add_u32 m0, s{S_T0}, {WRING}\ns_nop 0")
for h in range(4):
    A(f"buffer_load_dwordx4 v{6+h}, s[{SRD_WA}:{SRD_WA+3}], s{S_KW} offen offset:{1024*h} lds")
lg4 = A.newlabel("L_g4")
A(f"""s_cmp_lg_u32 s{S_LW}, 3
s_cbranch_scc1 {lg4}
s_mov_b32 m0, {WRING + 4*4096}
s_mov_b32 s{S_KW}, {128*1280}""")
for h in range(4):
    A(f"buffer_load_dwordx4 v{6+h}, s[{SRD_WA}:{SRD_WA+3}], s{S_KW} offen offset:{1024*h} lds")
A.label(lg4)
head_rest("ssm")
head_end(mark)
A.label("L_ssm_loader")
CN = 100
LR, LI = 102, 103
L8, L128, KL = 104, 106, 108
def const_loads():
    A(f"""s_lshl_b32 s{S_T0}, s{S_LW}, 6
    v_add_u32 v{CN}, s{S_T0}, v{VL}
    v_min_u32 v{CN}, 159, v{CN}
    s_mul_i32 s{S_T0}, s{S_CB}, 160
    v_add_u32 v110, s{S_T0}, v{CN}
    v_lshlrev_b32 v110, 1, v110
    global_load_ushort v111, v110, s[{S_LRE}:{S_LRE+1}]
    global_load_ushort v112, v110, s[{S_LIM}:{S_LIM+1}]
    global_load_ushort v113, v110, s[{S_LDT}:{S_LDT+1}]""")
def ssm_setup3():
  A(f"""v_cmp_le_u32 vcc, 80, v{CN}
v_mov_b32 v41, 0
v_mov_b32 v42, {640-160}
v_cndmask_b32 v41, v41, v42, vcc
v_lshl_add_u32 v41, v{CN}, 1, v41
s_mul_i32 s{S_T0}, s{S_CB}, 160
v_add_u32 v41, s{S_T0}, v41
v_lshlrev_b32 v41, 3, v41
v_add_u32 v41, {WS_CSB}, v41
s_lshl_b32 s{S_T0+1}, s{S_C}, 10
s_add_u32 s{S_T0+1}, s{S_T0+1}, {WS_STAT}
v_lshlrev_b32 v40, 4, v{VL}
v_add_u32 v40, s{S_T0+1}, v40
s_cmp_eq_u32 s{S_LW}, 3
s_cselect_b64 vcc, -1, 0
s_nop 1
v_cndmask_b32 v40, v41, v40, vcc""")
def cmul(d, a, b, t):
    A(f"""v_mul_f32 v{t}, v{a+1}, v{b+1}
    v_mul_f32 v{t+1}, v{a+1}, v{b}
    v_fma_f32 v{t}, v{a}, v{b}, -v{t}
    v_fma_f32 v{d+1}, v{a}, v{b+1}, v{t+1}
    v_mov_b32 v{d}, v{t}""")
def ssm_consts():
    A(f"""v_lshlrev_b32 v111, 16, v111
    v_lshlrev_b32 v112, 16, v112
    v_lshlrev_b32 v113, 16, v113
    v_mul_f32 v113, {LOG2E}, v113
    v_exp_f32 v113, v113
    v_mul_f32 v114, v111, v111
    v_fma_f32 v114, v112, v112, v114
    v_cvt_pk_bf16_f32 v113, v113, v113
    v_lshlrev_b32 v113, 16, v113              ; dt
    v_rcp_f32 v114, v114
    v_mul_f32 v115, v113, v111
    v_mul_f32 v116, v113, v112
    v_mul_f32 v115, {LOG2E}, v115
    v_mul_f32 v116, 0.15915494, v116
    v_exp_f32 v115, v115
    v_rndne_f32 v117, v116
    v_sub_f32 v116, v116, v117
    v_cos_f32 v117, v116
    v_sin_f32 v116, v116
    v_add_f32 v114, v114, v114
    v_mul_f32 v{LR}, v115, v117
    v_mul_f32 v{LI}, v115, v116
    v_add_f32 v115, -1.0, v{LR}
    v_mul_f32 v116, v{LI}, v112
    v_fma_f32 v116, v115, v111, v116
    v_mul_f32 v117, v115, v112
    v_fma_f32 v117, v{LI}, v111, -v117        ; Im
    v_mul_f32 v118, v116, v114
    v_mul_f32 v119, -v117, v114
    v_lshlrev_b32 v120, 3, v{CN}
    v_add_u32 v120, {M_LAM}, v120
    ds_write_b64 v120, v[{LR}:{LI}]
    ds_write_b64 v120, v[118:119] offset:{M_COEF-M_LAM}
    v_mul_f32 v{KL}, v118, v{LR}
    v_fma_f32 v{KL}, v119, v{LI}, v{KL}
    v_mul_f32 v{KL+1}, v119, v{LR}
    v_fma_f32 v{KL+1}, -v118, v{LI}, v{KL+1}""")
    yield
    cmul(L8, LR, LR, 114)
    cmul(L8, L8, L8, 114)
    cmul(L8, L8, L8, 114)
    cmul(L128, L8, L8, 114)
    for i in range(3):
        cmul(L128, L128, L128, 114)
def ssm_gran():
    if True:
        vm.wait("gran")
        lr, lo, lskip, lstat = A.newlabel("L_gr"), A.newlabel("L_gr"), A.newlabel("L_gr"), A.newlabel("L_gr")
        A.label(lr)
        A(f"""v_cmp_ne_u32 vcc, s{S_NONCE}, v45
        v_cmp_ne_u32 s[{S_M0}:{S_M0+1}], s{S_NONCE}, v47
        s_nop 1
        s_or_b64 s[{S_M0}:{S_M0+1}], s[{S_M0}:{S_M0+1}], vcc
        s_cmp_eq_u64 s[{S_M0}:{S_M0+1}], 0
        s_cbranch_scc1 {lo}
        global_load_dwordx4 v[44:47], v40, s[{S_WS}:{S_WS+1}] sc1
        s_waitcnt vmcnt(0)""")
        spin_tail(lr, lo, 6)
        A.label(lo)
        A(f"""s_cmp_eq_u32 s{S_LW}, 3
        s_cbranch_scc1 {lstat}
        v_mov_b32 v45, v46
        v_lshlrev_b32 v46, 3, v{CN}
        v_add_u32 v46, {M_CS}, v46
        ds_write_b64 v46, v[44:45]
        s_branch {lskip}""")
        A.label(lstat)
        A(f"""v_and_b32 v48, 0xffff0000, v44
        v_and_b32 v49, 0xffff0000, v46
        v_rcp_f32 v48, v48
        v_rcp_f32 v49, v49
        v_lshlrev_b32 v44, 16, v44
        v_lshlrev_b32 v46, 16, v46
        v_and_b32 v50, 32, v{VL}
        v_lshlrev_b32 v50, 1, v50
        v_and_b32 v51, 3, v{VL}
        v_lshl_add_u32 v50, v51, 4, v50
        v_bfe_u32 v51, v{VL}, 3, 2
        v_lshl_add_u32 v50, v51, 2, v50
        v_bfe_u32 v51, v{VL}, 2, 1
        v_add_u32 v50, v50, v51
        v_lshlrev_b32 v50, 2, v50
        v_add_u32 v50, {M_ROW}, v50
        ds_write2_b32 v50, v44, v46 offset0:0 offset1:2
        ds_write2_b32 v50, v48, v49 offset0:128 offset1:130""")
        A.label(lskip)
        A("s_waitcnt lgkmcnt(0)")

nonce_ready()
stat_loads(NOQ, 190)
rowsum_loads(NOQ, 144)
const_loads()
g1_duty()
l = A.newlabel("L_x")
A(f"s_bitcmp1_b32 s{S_U}, 0\ns_cbranch_scc0 {l}\ns_waitcnt vmcnt(21)")
A.label(l)
A("s_waitcnt vmcnt(37)")
run(stat_work(NOQ, 190))
run(rowsum_work(NOQ, 144))
g1_duty()
run(ssm_consts())
ssm_setup3()
g2_setup(2, 232)
g1_duty()
A(f"global_load_dwordx4 v[44:47], v40, s[{S_WS}:{S_WS+1}] sc1")
def sg():
    A("s_waitcnt vmcnt(0)")
    ssm_gran()
g1_last(sg)
A(f"s_lshl_b32 s{S_SLOT}, s{S_S2}, 13")
SB = [52, 52, 112, 144, 176, 52]
def s_load(k):
    for i, (v, sd, ex, io) in enumerate(g2_pieces(2, k)):
        A(f"s_add_u32 s{S_T0+7}, s{S_KS}, {ex}")
        A(f"buffer_load_dwordx4 v[{SB[k]+4*i}:{SB[k]+4*i+3}], v{v}, s[{sd}:{sd+3}], s{S_T0+7} offen offset:{io}")
    g2_next(k)
def s_put(k, young):
    A(f"s_add_u32 s{S_T0+6}, s{S_S2}, 16\ns_max_u32 s{S_T0+6}, s{S_T0+6}, 20")
    wait_free(S_T0 + 6)
    A(f"s_waitcnt vmcnt({young})\nv_add_u32 v237, s{S_SLOT}, v236")
    for i in range(8):
        A(f"ds_write_b128 v237, v[{SB[k]+4*i}:{SB[k]+4*i+3}] offset:{1024*i}")
    A(f"""s_add_u32 s{S_S2}, s{S_S2}, 4
    s_add_u32 s{S_T0+6}, s{S_S2}, 21""")
    declare(S_T0 + 6)
    A(f"""s_add_u32 s{S_SLOT}, s{S_SLOT}, {4*8192}
    s_cmp_ge_u32 s{S_SLOT}, {5*8192}
    s_cselect_b32 s{S_T0}, {5*8192}, 0
    s_sub_u32 s{S_SLOT}, s{S_SLOT}, s{S_T0}""")
s_load(0)
s_put(0, 0)
A("s_waitcnt lgkmcnt(0)")
s_load(1)
A("s_barrier")
ts(4, 2)
lmid = A.newlabel("L_mid")
A(f"s_cmp_eq_u32 s{S_LW}, 3\ns_cbranch_scc1 {lmid}")
ME = 112
ML = 144
MT = 204
A(f"""v_lshlrev_b32 v{MT}, 2, v{CN}
v_add_u32 v{MT}, {E_BASE}, v{MT}""")
for j in range(16):
    A(f"ds_read_b32 v{ME+2*j}, v{MT} offset:{j*1280}")
    A(f"ds_read_b32 v{ME+2*j+1}, v{MT} offset:{j*1280+640}")
A(f"""s_lshl_b32 s{S_T0}, s{S_CB}, 4
s_mul_i32 s{S_T0}, s{S_T0}, 2560
s_add_u32 s{S_T0}, s{S_T0}, {WS_SCAN}
v_lshlrev_b32 v{MT+1}, 4, v{CN}
v_add_u32 v{MT+1}, s{S_T0}, v{MT+1}
s_mul_i32 s{S_T0}, s{S_C}, 2560
v_add_u32 v{MT+2}, s{S_T0}, v{MT+1}
s_waitcnt lgkmcnt(0)""")
for j in range(1, 16):
    e, p = ME + 2 * j, ME + 2 * j - 2
    A(f"""v_fma_f32 v{e}, v{L8}, v{p}, v{e}
    v_fma_f32 v{e+1}, v{L8}, v{p+1}, v{e+1}
    v_fma_f32 v{e}, -v{L8+1}, v{p+1}, v{e}
    v_fma_f32 v{e+1}, v{L8+1}, v{p}, v{e+1}""")
A(f"""v_mov_b32 v{MT+4}, v{ME+30}
v_mov_b32 v{MT+5}, s{S_NONCE}
v_mov_b32 v{MT+6}, v{ME+31}
v_mov_b32 v{MT+7}, s{S_NONCE}
global_store_dwordx4 v{MT+2}, v[{MT+4}:{MT+7}], s[{S_WS}:{S_WS+1}] sc1""")
ts(5, 2)
lr, lo, lld, lck, lh = [A.newlabel("L_lb") for _ in range(5)]
def lb_loads(lbl):
    A(f"v_mov_b32 v{MT+3}, v{MT+1}")
    for k in range(15):
        A(f"""s_cmp_le_u32 s{S_C}, {k}
        s_cbranch_scc1 {lbl}
        global_load_dwordx4 v[{ML+4*k}:{ML+4*k+3}], v{MT+3}, s[{S_WS}:{S_WS+1}] sc1
        v_add_u32 v{MT+3}, 2560, v{MT+3}""")
    A.label(lbl)
lb_loads(lld)
for j in range(15, 0, -1):
    d, p = ME + 2 * j, ME + 2 * j - 2
    A(f"""v_mul_f32 v{d}, v{KL}, v{p}
    v_mul_f32 v{d+1}, v{KL+1}, v{p}
    v_fma_f32 v{d}, v{KL+1}, v{p+1}, v{d}
    v_fma_f32 v{d+1}, -v{KL}, v{p+1}, v{d+1}""")
A(f"v_mov_b32 v{ME}, 0\nv_mov_b32 v{ME+1}, 0")
A.label(lr)
A(f"s_waitcnt vmcnt(0)\ns_mov_b64 s[{S_M0}:{S_M0+1}], 0")
for k in range(15):
    A(f"""s_cmp_le_u32 s{S_C}, {k}
    s_cbranch_scc1 {lck}
    v_cmp_ne_u32 vcc, s{S_NONCE}, v{ML+4*k+1}
    v_cmp_ne_u32 s[{S_M1}:{S_M1+1}], s{S_NONCE}, v{ML+4*k+3}
    s_nop 1
    s_or_b64 s[{S_M0}:{S_M0+1}], s[{S_M0}:{S_M0+1}], vcc
    s_or_b64 s[{S_M0}:{S_M0+1}], s[{S_M0}:{S_M0+1}], s[{S_M1}:{S_M1+1}]""")
A.label(lck)
A(f"s_cmp_eq_u64 s[{S_M0}:{S_M0+1}], 0\ns_cbranch_scc1 {lo}")
lb_loads(A.newlabel("L_lb"))
spin_tail(lr, lo, 7)
A.label(lo)
ts(6, 2)
H = MT + 4
A(f"v_mov_b32 v{H}, 0\nv_mov_b32 v{H+1}, 0")
for k in range(15):
    g = ML + 4 * k
    A(f"""s_cmp_le_u32 s{S_C}, {k}
    s_cbranch_scc1 {lh}
    v_fma_f32 v{g}, v{L128}, v{H}, v{g}
    v_fma_f32 v{g+2}, v{L128}, v{H+1}, v{g+2}
    v_fma_f32 v{g}, -v{L128+1}, v{H+1}, v{g}
    v_fma_f32 v{H+1}, v{L128+1}, v{H}, v{g+2}
    v_mov_b32 v{H}, v{g}""")
A.label(lh)
Q = MT + 6
A(f"""v_mul_f32 v{Q}, v{KL}, v{H}
v_mul_f32 v{Q+1}, v{KL+1}, v{H}
v_fma_f32 v{Q}, v{KL+1}, v{H+1}, v{Q}
v_fma_f32 v{Q+1}, -v{KL}, v{H+1}, v{Q+1}""")
for j in range(16):
    d = ME + 2 * j
    A(f"""v_add_f32 v{d}, v{d}, v{Q}
    v_add_f32 v{d+1}, v{d+1}, v{Q+1}""")
    if j < 15:
        A(f"""v_mul_f32 v{H}, v{L8+1}, v{Q}
        v_mul_f32 v{Q}, v{L8}, v{Q}
        v_fma_f32 v{Q}, v{L8+1}, v{Q+1}, v{Q}
        v_fma_f32 v{Q+1}, v{L8}, v{Q+1}, -v{H}""")
    A(f"""ds_write_b32 v{MT}, v{d} offset:{j*1280}
    ds_write_b32 v{MT}, v{d+1} offset:{j*1280+640}""")
A("s_waitcnt lgkmcnt(0)")
A.label(lmid)
A("s_barrier")
ts(7, 2)
for k in (2, 3, 4):
    s_load(k)
poll_issue()
s_put(1, 25)
lskip = A.newlabel("L_k")
A("s_waitcnt vmcnt(0)")
poll_check()
A(f"s_cmp_ge_u32 s{S_S2}, 10\ns_cbranch_scc1 {lskip}\ns_waitcnt lgkmcnt(0)")
s_load(5)
A.label(lskip)
for k in (2, 3, 4):
    s_put(k, 8)
lskip = A.newlabel("L_k")
A(f"s_cmp_ge_u32 s{S_S2}, 22\ns_cbranch_scc1 {lskip}")
s_put(5, 0)
A.label(lskip)
finish()

A.label("L_end")
A("s_endpgm")
A.label("L_code_end")
A.lines[HEADPOS:HEADPOS] = HEADS
A.lines.insert(0, "L_code_start:")

hdr = open(os.path.join(os.path.dirname(__file__), "header.txt")).read()
print(hdr + f"""; @launch grid=(256,1,1) block=(512,1,1) lds=163840
.amdgcn_target "amdgcn-amd-amdhsa--gfx950"
.text
.globl {KNAME}
.p2align 8
.type {KNAME},@function
{KNAME}:""")
print(A.text(), end="")
print(f""".section .rodata,"a"
.p2align 6
.amdhsa_kernel {KNAME}
  .amdhsa_next_free_vgpr 256
  .amdhsa_next_free_sgpr 102
  .amdhsa_accum_offset 256
  .amdhsa_group_segment_fixed_size 0
  .amdhsa_kernarg_size 128
  .amdhsa_user_sgpr_count 2
  .amdhsa_user_sgpr_kernarg_segment_ptr 1
  .amdhsa_system_sgpr_workgroup_id_x 1
.end_amdhsa_kernel""")
```

```python
import sys, os
sys.path.insert(0, os.path.dirname(__file__))
from asmlib import Asm, Queue, vr, sr

OPT = dict(ts=0, stop=0, DA=4, D1=4, D1S=5, timeout=1 << 20, nodma=0, nomfma=0, nobar=0, noread=0, rot=4, rot2=1, pf=0, stash=8, sg1=12, amod=1)
for a in sys.argv[1:]:
    k, v = a.split("=")
    OPT[k] = int(v)
P0 = OPT.get("p0", 3)
TS = OPT["ts"]; STOP = OPT["stop"]; DA = OPT["DA"]; D1 = OPT["D1"]

KNAME = "parallel_sum__ssm_conv_s5__glu_gated_swiglu__prompt_kernel"

WS_E = 0
WS_FLAG = 0x1000
WS_STAT = 0x4000
WS_CSB = 0x8000
WS_CSW = 0x10000
WS_SCAN = 0x40000
WS_TAB = 0x80000
WS_ACT = 0x100000
WS_TS = 0x1000000

MISC = 151552
WRING = 49152
SCR = 131072
M_ROW = MISC
M_CS = MISC + 2048
M_LAM = MISC + 3584
M_COEF = MISC + 4864
E_BASE = 40960
TR_BASE = 61440

S_X, S_LRE, S_LIM, S_BRE, S_BIM, S_CRE, S_CIM, S_LDT = 4, 6, 8, 10, 12, 14, 16, 18
S_DSK, S_W1, S_W3, S_W2, S_OUT, S_DBG, S_WS = 20, 24, 26, 28, 30, 32, 34
SRD_X, SRD_WA, SRD_WB, SRD_W2, SRD_C, SRD_T = 36, 40, 44, 48, 52, 56
S_XCD, S_IDX, S_C, S_J, S_CB, S_WAVE, S_NONCE = 60, 61, 62, 63, 64, 65, 66
S_HB2, S_DCOL = 67, 68
S_ONES = 69
S_T0 = 70
S_SLOT, S_KX, S_KW, S_CNT, S_DELTA = 80, 81, 82, 83, 84
S_AB = 86
S_M0, S_M1 = 88, 90
S_EX = 92
S_TO = 94
S_TS = 96
S_ROT, S_R2A, S_R2B, S_KB, S_KS = 95, 98, 99, 100, 101

A = Asm()
LOG2E = 0x3fb8aa3b
NLOG2E = 0xbfb8aa3b

def ts(idx, vtmp):
    if not TS:
        return

    A(f"""s_memrealtime s[{S_TS}:{S_TS+1}]
    s_waitcnt lgkmcnt(0)
    v_writelane_b32 v255, s{S_TS}, {idx}""")

def tc(idx):
    if not TS:
        return
    A(f"""s_memtime s[{S_TS}:{S_TS+1}]
    s_waitcnt lgkmcnt(0)
    v_writelane_b32 v255, s{S_TS}, {idx}""")

def ts_flush(vtmp):
    if not TS:
        return
    A(f"""s_lshl_b32 s{S_T0}, s2, 3
    s_add_u32 s{S_T0}, s{S_T0}, s{S_WAVE}
    s_lshl_b32 s{S_T0}, s{S_T0}, 8
    s_add_u32 s{S_T0}, s{S_T0}, {WS_TS}
    v_lshlrev_b32 v{vtmp}, 2, v{VL}
    v_add_u32 v{vtmp}, s{S_T0}, v{vtmp}
    global_store_dword v{vtmp}, v255, s[{S_WS}:{S_WS+1}]""")

def srd(d, p, nbytes):
    A(f"""s_mov_b32 s{d}, s{p}
    s_mov_b32 s{d+1}, s{p+1}
    s_mov_b32 s{d+2}, {nbytes}
    s_mov_b32 s{d+3}, 0x20000""")

def srd_sel(d, p1, p0, nbytes):
    A(f"""s_cselect_b32 s{d}, s{p1}, s{p0}
    s_cselect_b32 s{d+1}, s{p1+1}, s{p0+1}
    s_mov_b32 s{d+2}, {nbytes}
    s_mov_b32 s{d+3}, 0x20000""")

def spin_tail(lbl_retry, lbl_ok, code):
    A(f"""s_sleep 1
    s_sub_u32 s{S_TO}, s{S_TO}, 1
    s_cmp_lg_u32 s{S_TO}, 0
    s_cbranch_scc1 {lbl_retry}
    s_mov_b32 s{S_TO}, 1""")

VL = 254
VFO = 253
FLG = MISC + 6144
S_NEED = 3
S_FR = 86
S_LMT = 85
SRD_F = 52
VZ = 252
SLOW = []
def flag_test(need, vD, vP, off, pre=None, anylane=False, acc=None, nap=0, split=False):
    ls, lb, lr = A.newlabel("L_sw"), A.newlabel("L_bk"), A.newlabel("L_sr")
    cmp_ = f"v_cmp_le_u32 vcc, {need}, v{vD}" if anylane else f"v_cmp_gt_u32 vcc, {need}, v{vD}"
    bad, good = ("vccz", "vccnz") if anylane else ("vccnz", "vccz")
    A(f"s_cbranch_{bad} {ls}" if split else f"{cmp_}\ns_cbranch_{bad} {ls}")
    A.label(lb)
    mark = len(A.lines)
    A.label(ls)
    if pre:
        pre()
    if TS and acc is not None:
        A(f"s_memtime s[{S_TS}:{S_TS+1}]\ns_waitcnt lgkmcnt(0)\ns_sub_u32 s{acc}, s{acc}, s{S_TS}\ns_add_u32 s{acc+1}, s{acc+1}, 1")
        lb2 = lb
        lb = A.newlabel("L_b2")
    A.label(lr)
    if nap:
        A(f"s_sleep {nap}")
    A(f"""ds_read_b32 v{vD}, v{vP} offset:{off}
    s_waitcnt lgkmcnt(0)
    {cmp_}
    s_cbranch_{good} {lb}
    s_sub_u32 s{S_TO}, s{S_TO}, 1
    s_cmp_lg_u32 s{S_TO}, 0
    s_cbranch_scc1 {lr}
    s_mov_b32 s{S_TO}, 1
    s_branch {lb}""")
    if TS and acc is not None:
        A.label(lb)
        A(f"s_memtime s[{S_TS}:{S_TS+1}]\ns_waitcnt lgkmcnt(0)\ns_add_u32 s{acc}, s{acc}, s{S_TS}\ns_branch {lb2}")
    SLOW.extend(A.lines[mark:])
    del A.lines[mark:]
def flush_slow():
    A.lines.extend(SLOW)
    SLOW.clear()
def flag_init(base, wave_sgpr, vP, peer, aux):
    A(f"""s_lshl_b32 s{S_T0}, s{wave_sgpr}, 8
    s_add_u32 s{S_T0}, s{S_T0}, {base}
    v_lshlrev_b32 v{VFO}, 2, v{VL}
    v_add_u32 v{VFO}, s{S_T0}, v{VFO}
    v_mov_b32 v{vP}, 0
    ds_write_b32 v{VFO}, v{vP}""")
    if aux:
        A(f"ds_write_b32 v{VFO}, v{vP} offset:2048")
    peer_addr(vP, peer)
    A("s_waitcnt lgkmcnt(0)\ns_barrier")
def table_store(srd_, tmp):
    A(f"""s_lshl_b32 s{S_T0}, s2, 3
    s_add_u32 s{S_T0}, s{S_T0}, s{S_WAVE}
    s_lshl_b32 s{S_T0}, s{S_T0}, 8
    s_add_u32 s{S_T0}, s{S_T0}, {WS_TAB}
    s_add_u32 s{srd_}, s{S_WS}, s{S_T0}
    s_addc_u32 s{srd_+1}, s{S_WS+1}, 0
    s_mov_b32 s{srd_+2}, 256
    s_mov_b32 s{srd_+3}, 0x20000
    v_lshlrev_b32 v{tmp}, 2, v{VL}
    v_mov_b32 v{VZ}, 0
    buffer_store_dword v{VL}, v{tmp}, s[{srd_}:{srd_+3}], 0 offen""")
def peer_addr(vP, peer):
    A(f"""v_and_b32 v{vP}, 3, v{VL}
    v_lshlrev_b32 v{vP}, 8, v{vP}
    v_add_u32 v{vP}, {peer}, v{vP}""")


S_LW = 85
A(f"""s_cmp_ge_u32 s2, 256
s_cbranch_scc1 L_end
s_load_dwordx16 s[4:19], s[0:1], 0
s_load_dwordx16 s[20:35], s[0:1], 64
v_lshrrev_b32 v1, 6, v0
v_and_b32 v{VL}, 63, v0
s_and_b32 s{S_XCD}, s2, 7
v_readfirstlane_b32 s{S_WAVE}, v1
s_lshr_b32 s{S_IDX}, s2, 3
s_and_b32 s{S_T0}, s{S_XCD}, 1
s_lshl_b32 s{S_T0}, s{S_T0}, 3
s_and_b32 s{S_T0+1}, s{S_IDX}, 7
s_add_u32 s{S_C}, s{S_T0}, s{S_T0+1}
s_lshr_b32 s{S_J}, s{S_IDX}, 3
s_lshr_b32 s{S_T0+2}, s{S_XCD}, 1
s_mul_i32 s{S_CB}, s{S_T0+2}, 3
s_add_u32 s{S_CB}, s{S_CB}, s{S_J}
s_sub_u32 s{S_CB}, s{S_CB}, 1
s_cmp_eq_u32 s{S_J}, 0
s_cselect_b32 s{S_CB}, s{S_T0+2}, s{S_CB}
""")
if TS:
    A("v_mov_b32 v255, 0")
    ts(0, 2)
RG = OPT["rot"]
if RG:
    A(f"""s_lshl_b32 s{S_ROT}, s{S_J}, {1 if RG == 8 else 0}
    s_add_u32 s{S_ROT}, s{S_T0+1}, s{S_ROT}
    s_and_b32 s{S_ROT}, s{S_ROT}, {RG-1}
    s_mul_i32 s{S_ROT}, s{S_ROT}, 10
    s_lshr_b32 s{S_ROT}, s{S_ROT}, {RG.bit_length()-1}""")
else:
    A(f"s_mov_b32 s{S_ROT}, 0")
A(f"""s_cmp_lt_u32 s{S_WAVE}, 4
s_cbranch_scc1 L_compute
s_sub_u32 s{S_LW}, s{S_WAVE}, 4
s_setprio {OPT.get('pl1', 0)}""")

def late_scalars():
    A(f"""s_load_dword s{S_NONCE}, s[{S_WS}:{S_WS+1}], {WS_E}
    s_and_b32 s{S_T0+1}, s{S_IDX}, 7
    s_lshr_b32 s{S_T0+2}, s{S_XCD}, 1
    s_lshl_b32 s{S_HB2}, s{S_T0+2}, 3
    s_add_u32 s{S_HB2}, s{S_HB2}, s{S_T0+1}
    s_mul_i32 s{S_DCOL}, s{S_J}, 96
    s_sub_u32 s{S_DCOL}, s{S_DCOL}, 96
    s_cmp_eq_u32 s{S_J}, 0
    s_cselect_b32 s{S_DCOL}, 288, s{S_DCOL}
    s_and_b32 s{S_T0}, s{S_XCD}, 1
    s_mul_i32 s{S_T0}, s{S_T0}, 320
    s_add_u32 s{S_DCOL}, s{S_DCOL}, s{S_T0}
    s_mov_b32 s{S_ONES}, 0x3f803f80
    s_mov_b32 s{S_TO}, {OPT['timeout']}""")
    if OPT["rot2"]:
        A(f"""s_mul_i32 s{S_R2A}, s{S_T0+1}, 3
        s_lshr_b32 s{S_R2A}, s{S_R2A}, 1
        s_mul_i32 s{S_T0+3}, s{S_J}, 3
        s_add_u32 s{S_R2A}, s{S_R2A}, s{S_T0+3}
        s_cmp_ge_u32 s{S_R2A}, 12
        s_cselect_b32 s{S_T0+3}, 12, 0
        s_sub_u32 s{S_R2A}, s{S_R2A}, s{S_T0+3}
        s_mul_i32 s{S_R2B}, s{S_T0+1}, 5
        s_lshr_b32 s{S_R2B}, s{S_R2B}, 2
        s_mul_i32 s{S_T0+3}, s{S_J}, 5
        s_lshr_b32 s{S_T0+3}, s{S_T0+3}, 1
        s_add_u32 s{S_R2B}, s{S_R2B}, s{S_T0+3}
        s_cmp_ge_u32 s{S_R2B}, 10
        s_cselect_b32 s{S_T0+3}, 10, 0
        s_sub_u32 s{S_R2B}, s{S_R2B}, s{S_T0+3}""")
    else:
        A(f"s_mov_b32 s{S_R2A}, 0\ns_mov_b32 s{S_R2B}, 0")

HEADPOS = len(A.lines)
HEADS = []

def dpp_reduce16(regs):
    for sh in (8, 4, 2, 1):
        A("s_nop 1")
        for r in regs:
            A(f"v_add_f32_dpp v{r}, v{r}, v{r} row_ror:{sh} row_mask:0xf bank_mask:0xf")

def nonce_ready():
    A(f"""s_waitcnt lgkmcnt(0)
    s_add_u32 s{S_NONCE}, s{S_NONCE}, 1""")

def sum_bf16(regs, acc, sq=None, t=None):
    for k, r in enumerate(regs):
        if k and k % (5 if sq is not None else 8) == 0:
            yield
        A(f"v_lshlrev_b32 v{t}, 16, v{r}")
        A(f"v_and_b32 v{r}, 0xffff0000, v{r}")
        if k == 0:
            A(f"v_mov_b32 v{acc}, v{t}\nv_mov_b32 v{acc+1}, v{r}")
            if sq is not None:
                A(f"v_mul_f32 v{sq}, v{t}, v{t}\nv_mul_f32 v{sq+1}, v{r}, v{r}")
        else:
            A(f"v_add_f32 v{acc}, v{acc}, v{t}\nv_add_f32 v{acc+1}, v{acc+1}, v{r}")
            if sq is not None:
                A(f"v_fmac_f32 v{sq}, v{t}, v{t}\nv_fmac_f32 v{sq+1}, v{r}, v{r}")
    A(f"v_add_f32 v{acc}, v{acc}, v{acc+1}")
    if sq is not None:
        A(f"v_add_f32 v{sq}, v{sq}, v{sq+1}")

def reduce32(regs):
    dpp_reduce16(regs)
    A("s_nop 1")
    for r in regs:
        A(f"v_add_f32_dpp v{r}, v{r}, v{r} row_bcast:15 row_mask:0xa bank_mask:0xf")

def stat_loads(vm, T):
    A(f"""v_lshrrev_b32 v{T+10}, 5, v{VL}
    s_lshl_b32 s{S_T0}, s2, 3
    s_lshl_b32 s{S_T0+1}, s{S_LW}, 1
    s_add_u32 s{S_T0}, s{S_T0}, s{S_T0+1}
    v_add_u32 v{T+10}, s{S_T0}, v{T+10}
    v_and_b32 v{T+11}, 31, v{VL}
    v_mul_u32_u24 v{T+12}, 1280, v{T+10}
    v_lshl_add_u32 v{T+12}, v{T+11}, 3, v{T+12}""")
    for i in range(5):
        A(f"global_load_dwordx2 v[{T+2*i}:{T+2*i+1}], v{T+12}, s[{S_X}:{S_X+1}] offset:{256*i}")
        vm.issue("stat")

def stat_work(vm, T):
    vm.wait("stat")
    a, q = T + 12, T + 14
    yield from sum_bf16(list(range(T, T + 10)), a, q, T + 16)
    yield
    reduce32([a, q])
    yield
    A(f"""v_mul_f32 v{a}, 0x3acccccd, v{a}      ; mean
    v_mul_f32 v{q}, 0x3acccccd, v{q}
    v_fma_f32 v{q}, -v{a}, v{a}, v{q}
    v_max_f32 v{q}, 0, v{q}
    v_cvt_pk_bf16_f32 v{q}, v{q}, v{q}
    v_lshlrev_b32 v{q}, 16, v{q}
    v_add_f32 v{q}, 0x3727c5ac, v{q}
    v_cvt_pk_bf16_f32 v{q}, v{q}, v{q}
    v_lshlrev_b32 v{q}, 16, v{q}
    v_sqrt_f32 v{q}, v{q}
    v_lshlrev_b32 v{T+10}, 3, v{T+10}
    v_add_u32 v{T+10}, {WS_STAT}, v{T+10}
    v_cvt_pk_bf16_f32 v{a}, v{a}, v{q}
    v_mov_b32 v{a+1}, s{S_NONCE}
    v_cmp_eq_u32 vcc, 16, v{T+11}
    s_and_saveexec_b64 s[{S_EX}:{S_EX+1}], vcc
    global_store_dwordx2 v{T+10}, v[{a}:{a+1}], s[{S_WS}:{S_WS+1}] sc1
    s_mov_b64 exec, s[{S_EX}:{S_EX+1}]""")
    vm.issue("pub")

S_CS0 = 86
def colsum_loads(T):
    A(f"""s_mul_i32 s{S_T0}, s{S_C}, 12
    s_add_u32 s{S_T0}, s{S_T0}, s{S_CB}            ; sigma
    s_lshr_b32 s{S_T0+1}, s{S_T0}, 2               ; strip
    s_and_b32 s{S_T0+2}, s{S_T0}, 3                ; k quarter
    s_cmp_ge_u32 s{S_T0+1}, 24""")
    srd_sel(SRD_T, S_W3, S_W1, 1966080)
    A(f"""s_cselect_b32 s{S_T0+3}, {24*128}, 0
    s_lshl_b32 s{S_T0+4}, s{S_T0+1}, 7
    s_sub_u32 s{S_T0+4}, s{S_T0+4}, s{S_T0+3}
    s_mul_i32 s{S_T0+5}, s{S_T0+2}, {160*3072}
    s_add_u32 s{S_T0+4}, s{S_T0+4}, s{S_T0+5}      ; soffset
    s_mul_i32 s{S_CS0}, s{S_T0+2}, {3072*8}
    s_lshl_b32 s{S_T0+1}, s{S_T0+1}, 9
    s_add_u32 s{S_CS0}, s{S_CS0}, s{S_T0+1}
    s_add_u32 s{S_CS0}, s{S_CS0}, {WS_CSW}
    v_lshrrev_b32 v{T}, 3, v{VL}
    v_and_b32 v{T+1}, 7, v{VL}
    v_mul_u32_u24 v{T}, 3072, v{T}
    v_lshl_add_u32 v{T}, v{T+1}, 4, v{T}""")
    for i in range(20):
        if i % 4 == 0:
            A(f"s_mov_b32 m0, {SCR + 1024*i}")
        A(f"""s_add_u32 s{S_T0+7}, s{S_T0+4}, {8*3072*i - 1024*(i%4)}
        s_waitcnt vmcnt({OPT.get("cap", 6)})
        buffer_load_dwordx4 v{T}, s[{SRD_T}:{SRD_T+3}], s{S_T0+7} offen offset:{1024*(i%4)} lds""")

def colsum_work(T):
    A(f"""v_lshrrev_b32 v{T+2}, 4, v{VL}
    v_lshlrev_b32 v{T+3}, 5, v{T+2}
    v_lshlrev_b32 v{T+2}, 10, v{T+2}
    v_bfe_u32 v{T+1}, v{VL}, 2, 2
    v_lshl_add_u32 v{T+2}, v{T+1}, 7, v{T+2}
    v_and_b32 v{T+1}, 3, v{VL}
    v_lshl_add_u32 v{T+2}, v{T+1}, 3, v{T+2}
    v_add_u32 v{T+2}, {SCR}, v{T+2}
    v_add_u32 v{T+3}, s{S_CS0}, v{T+3}""")
    for i in range(4):
        A(f"v_mov_b32 v{T+4+i}, s{S_ONES}")
    F = T + 24
    for u in range(4):
        for ks in range(5):
            b = F + (u * 5 + ks) * 4
            A(f"ds_read_b64_tr_b16 v[{b}:{b+1}], v{T+2} offset:{ks*4096+u*32}")
            A(f"ds_read_b64_tr_b16 v[{b+2}:{b+3}], v{T+2} offset:{ks*4096+u*32+512}")
    A("s_waitcnt lgkmcnt(0)")
    for ks in range(5):
        for u in range(4):
            b = F + (u * 5 + ks) * 4
            d = T + 8 + 4 * u
            cin = "0" if ks == 0 else f"v[{d}:{d+3}]"
            A(f"v_mfma_f32_16x16x32_bf16 v[{d}:{d+3}], v[{b}:{b+3}], v[{T+4}:{T+7}], {cin}")
    A(f"""v_and_b32 v{T+1}, 15, v{VL}
    v_cmp_eq_u32 vcc, 0, v{T+1}
    s_nop 7""")
    for u in range(4):
        for h in range(2):
            o = F + (u * 2 + h) * 4
            A(f"""v_mov_b32 v{o}, v{T+8+4*u+2*h}
            v_mov_b32 v{o+1}, s{S_NONCE}
            v_mov_b32 v{o+2}, v{T+9+4*u+2*h}
            v_mov_b32 v{o+3}, s{S_NONCE}""")
    A(f"s_and_saveexec_b64 s[{S_EX}:{S_EX+1}], vcc")
    for u in range(4):
        for h in range(2):
            o = F + (u * 2 + h) * 4
            A(f"global_store_dwordx4 v{T+3}, v[{o}:{o+3}], s[{S_WS}:{S_WS+1}] offset:{u*128+h*16} sc1")
    A(f"s_mov_b64 exec, s[{S_EX}:{S_EX+1}]")

def rowsum_loads(vm, T):
    A(f"""s_lshl_b32 s{S_T0}, s{S_C}, 2
    s_add_u32 s{S_T0}, s{S_T0}, s{S_CB}            ; sigma'
    s_mul_i32 s{S_T0+1}, s{S_T0}, 20
    s_mul_i32 s{S_T0+2}, s{S_LW}, 5
    s_add_u32 s{S_T0+1}, s{S_T0+1}, s{S_T0+2}
    s_cmp_ge_u32 s{S_T0}, 32
    s_cselect_b32 s{S_T0+4}, s{S_BIM}, s{S_BRE}
    s_cselect_b32 s{S_T0+5}, s{S_BIM+1}, s{S_BRE+1}
    s_cselect_b32 s{S_T0+3}, 640, 0
    s_sub_u32 s{S_T0+1}, s{S_T0+1}, s{S_T0+3}
    v_lshrrev_b32 v{T+33}, 5, v{VL}
    v_add_u32 v{T+33}, s{S_T0+1}, v{T+33}
    v_and_b32 v{T+34}, 31, v{VL}""")
    for p in range(3):
        A(f"""v_add_u32 v{T+30+p}, {2*p}, v{T+33}
        v_min_u32 v{T+30+p}, 639, v{T+30+p}
        v_mul_u32_u24 v{T+35}, 1280, v{T+30+p}
        v_lshl_add_u32 v{T+35}, v{T+34}, 3, v{T+35}
        v_add_u32 v{T+30+p}, s{S_T0+3}, v{T+30+p}""")
        for i in range(5):
            b = T + 10 * p + 2 * i
            A(f"global_load_dwordx2 v[{b}:{b+1}], v{T+35}, s[{S_T0+4}:{S_T0+5}] offset:{256*i}")
            vm.issue("rows")

def rowsum_work(vm, T):
    vm.wait("rows")
    for p in range(3):
        yield from sum_bf16(list(range(T + 10 * p, T + 10 * p + 10)), T + 36 + 2 * p, None, T + 35)
    yield
    reduce32([T + 36, T + 38, T + 40])
    for p in range(3):
        A(f"""v_mov_b32 v{T+37+2*p}, s{S_NONCE}
        v_lshlrev_b32 v{T+30+p}, 3, v{T+30+p}
        v_add_u32 v{T+30+p}, {WS_CSB}, v{T+30+p}""")
    A(f"""v_cmp_eq_u32 vcc, 16, v{T+34}
    s_and_saveexec_b64 s[{S_EX}:{S_EX+1}], vcc""")
    for p in range(3):
        A(f"global_store_dwordx2 v{T+30+p}, v[{T+36+2*p}:{T+37+2*p}], s[{S_WS}:{S_WS+1}] sc1")
        vm.issue("pub")
    A(f"s_mov_b64 exec, s[{S_EX}:{S_EX+1}]")

def side_stats(T, filler):
    A(f"""v_lshrrev_b32 v{T+20}, 4, v{VL}
    s_lshl_b32 s{S_T0}, s2, 3
    s_lshl_b32 s{S_T0+1}, s{S_WAVE}, 2
    s_add_u32 s{S_T0}, s{S_T0}, s{S_T0+1}
    v_add_u32 v{T+20}, s{S_T0}, v{T+20}          ; row
    v_and_b32 v{T+21}, 15, v{VL}
    v_mul_u32_u24 v{T+22}, 1280, v{T+20}
    v_lshl_add_u32 v{T+22}, v{T+21}, 4, v{T+22}""")
    for i in range(5):
        A(f"global_load_dwordx4 v[{T+4*i}:{T+4*i+3}], v{T+22}, s[{S_X}:{S_X+1}] offset:{256*i}")
    filler()
    A(f"""v_mov_b32 v{T+24}, 0
    v_mov_b32 v{T+25}, 0
    v_mov_b32 v{T+26}, 0
    v_mov_b32 v{T+27}, 0""")
    nonce_ready()
    for i in range(5):
        A(f"s_waitcnt vmcnt({4-i})")
        for d in range(4):
            r = T + 4 * i + d
            A(f"v_dot2c_f32_bf16 v{T+24+2*(d&1)}, s{S_ONES}, v{r}")
            A(f"v_dot2c_f32_bf16 v{T+25+2*(d&1)}, v{r}, v{r}")
    A(f"""s_nop 3
    v_add_f32 v{T+24}, v{T+24}, v{T+26}
    v_add_f32 v{T+25}, v{T+25}, v{T+27}""")
    dpp_reduce16([T + 24, T + 25])
    A(f"""v_mul_f32 v{T+24}, 0x3acccccd, v{T+24}      ; mean
    v_mul_f32 v{T+25}, 0x3acccccd, v{T+25}
    v_fma_f32 v{T+25}, -v{T+24}, v{T+24}, v{T+25}
    v_max_f32 v{T+25}, 0, v{T+25}
    v_cvt_pk_bf16_f32 v{T+25}, v{T+25}, v{T+25}
    v_lshlrev_b32 v{T+25}, 16, v{T+25}
    v_add_f32 v{T+25}, 0x3727c5ac, v{T+25}
    v_cvt_pk_bf16_f32 v{T+25}, v{T+25}, v{T+25}
    v_lshlrev_b32 v{T+25}, 16, v{T+25}
    v_sqrt_f32 v{T+25}, v{T+25}
    v_lshlrev_b32 v{T+20}, 3, v{T+20}
    v_add_u32 v{T+20}, {WS_STAT}, v{T+20}
    v_cvt_pk_bf16_f32 v{T+26}, v{T+24}, v{T+25}
    v_mov_b32 v{T+27}, s{S_NONCE}
    v_cmp_eq_u32 vcc, 0, v{T+21}
    s_and_saveexec_b64 s[{S_EX}:{S_EX+1}], vcc
    global_store_dwordx2 v{T+20}, v[{T+26}:{T+27}], s[{S_WS}:{S_WS+1}] sc1
    s_mov_b64 exec, s[{S_EX}:{S_EX+1}]""")

def side_colsum_mlp(T, filler):
    A(f"""s_mul_i32 s{S_T0}, s{S_C}, 12
    s_add_u32 s{S_T0}, s{S_T0}, s{S_CB}            ; sigma
    s_lshr_b32 s{S_T0+1}, s{S_T0}, 1               ; strip
    s_and_b32 s{S_T0+2}, s{S_T0}, 1
    s_lshl_b32 s{S_T0+2}, s{S_T0+2}, 1
    s_add_u32 s{S_T0+2}, s{S_T0+2}, s{S_WAVE}
    s_sub_u32 s{S_T0+2}, s{S_T0+2}, 2              ; k quarter
    s_cmp_ge_u32 s{S_T0+1}, 48""")
    srd_sel(SRD_T, S_W3, S_W1, 1966080)
    A(f"""s_cselect_b32 s{S_T0+3}, 48, 0
    s_cselect_b32 s{S_T0+6}, 1536, 0
    s_sub_u32 s{S_T0+1}, s{S_T0+1}, s{S_T0+3}
    s_lshl_b32 s{S_T0+1}, s{S_T0+1}, 5             ; col0
    s_mul_i32 s{S_T0+4}, s{S_T0+2}, {160*3072}
    s_lshl_b32 s{S_T0+5}, s{S_T0+1}, 1
    s_add_u32 s{S_T0+4}, s{S_T0+4}, s{S_T0+5}      ; soffset
    s_sub_u32 s{S_T0+5}, s{S_WAVE}, 2
    s_mul_i32 s{S_T0+5}, s{S_T0+5}, 10240
    s_add_u32 s{S_T0+5}, s{S_T0+5}, {SCR}
    v_lshrrev_b32 v{T}, 2, v{VL}
    v_and_b32 v{T+1}, 3, v{VL}
    v_mul_u32_u24 v{T}, 3072, v{T}
    v_lshl_add_u32 v{T}, v{T+1}, 4, v{T}""")
    for i in range(10):
        A(f"""s_add_u32 m0, s{S_T0+5}, {1024*i}
        s_add_u32 s{S_T0+7}, s{S_T0+4}, {16*3072*i}
        buffer_load_dwordx4 v{T}, s[{SRD_T}:{SRD_T+3}], s{S_T0+7} offen lds""")
    filler()
    A(f"""v_lshrrev_b32 v{T+2}, 4, v{VL}
    v_lshlrev_b32 v{T+2}, 9, v{T+2}
    v_bfe_u32 v{T+3}, v{VL}, 2, 2
    v_lshl_add_u32 v{T+2}, v{T+3}, 6, v{T+2}
    v_lshl_add_u32 v{T+2}, v{T+1}, 3, v{T+2}
    v_add_u32 v{T+2}, s{S_T0+5}, v{T+2}
    v_mov_b32 v{T+4}, s{S_ONES}
    v_mov_b32 v{T+5}, s{S_ONES}
    v_mov_b32 v{T+6}, s{S_ONES}
    v_mov_b32 v{T+7}, s{S_ONES}""")
    A(f"""s_mul_i32 s{S_T0+2}, s{S_T0+2}, 3072
    s_add_u32 s{S_T0+2}, s{S_T0+2}, s{S_T0+6}
    s_add_u32 s{S_T0+2}, s{S_T0+2}, s{S_T0+1}
    s_lshl_b32 s{S_T0+2}, s{S_T0+2}, 3
    s_add_u32 s{S_T0+2}, s{S_T0+2}, {WS_CSW}
    v_lshrrev_b32 v{T+3}, 4, v{VL}
    v_lshlrev_b32 v{T+3}, 5, v{T+3}
    v_add_u32 v{T+3}, s{S_T0+2}, v{T+3}""")
    nonce_ready()
    A("s_waitcnt vmcnt(0)")
    F = T + 16
    for ks in range(5):
        for u in range(2):
            b = F + (ks * 2 + u) * 4
            A(f"ds_read_b64_tr_b16 v[{b}:{b+1}], v{T+2} offset:{ks*2048+u*32}")
            A(f"ds_read_b64_tr_b16 v[{b+2}:{b+3}], v{T+2} offset:{ks*2048+u*32+256}")
    A("s_waitcnt lgkmcnt(0)")
    for ks in range(5):
        for u in range(2):
            b = F + (ks * 2 + u) * 4
            cin = "0" if ks == 0 else f"v[{T+8+4*u}:{T+11+4*u}]"
            A(f"v_mfma_f32_16x16x32_bf16 v[{T+8+4*u}:{T+11+4*u}], v[{b}:{b+3}], v[{T+4}:{T+7}], {cin}")
    A("s_nop 7\ns_nop 1")
    for u in range(2):
        for h in range(2):
            o = F + (u * 2 + h) * 4
            A(f"""v_mov_b32 v{o}, v{T+8+4*u+2*h}
            v_mov_b32 v{o+1}, s{S_NONCE}
            v_mov_b32 v{o+2}, v{T+9+4*u+2*h}
            v_mov_b32 v{o+3}, s{S_NONCE}""")
    A(f"""v_and_b32 v{T+1}, 15, v{VL}
    v_cmp_eq_u32 vcc, 0, v{T+1}
    s_and_saveexec_b64 s[{S_EX}:{S_EX+1}], vcc""")
    for u in range(2):
        for h in range(2):
            o = F + (u * 2 + h) * 4
            A(f"global_store_dwordx4 v{T+3}, v[{o}:{o+3}], s[{S_WS}:{S_WS+1}] offset:{u*128+h*16} sc1")
    A(f"s_mov_b64 exec, s[{S_EX}:{S_EX+1}]")

def side_rowsum_ssm(T, filler):
    A(f"""s_lshl_b32 s{S_T0}, s{S_C}, 2
    s_add_u32 s{S_T0}, s{S_T0}, s{S_CB}            ; sigma'
    s_mul_i32 s{S_T0+1}, s{S_T0}, 20
    s_sub_u32 s{S_T0+2}, s{S_WAVE}, 2
    s_lshl_b32 s{S_T0+2}, s{S_T0+2}, 3
    s_add_u32 s{S_T0+1}, s{S_T0+1}, s{S_T0+2}
    s_cmp_ge_u32 s{S_T0}, 32
    s_cselect_b32 s{S_T0+4}, s{S_BIM}, s{S_BRE}
    s_cselect_b32 s{S_T0+5}, s{S_BIM+1}, s{S_BRE+1}
    s_cselect_b32 s{S_T0+3}, 640, 0
    s_sub_u32 s{S_T0+3}, s{S_T0+1}, s{S_T0+3}
    v_lshrrev_b32 v{T+60}, 4, v{VL}
    v_and_b32 v{T+61}, 15, v{VL}
    v_add_u32 v{T+62}, s{S_T0+3}, v{T+60}
    v_mul_u32_u24 v{T+62}, 1280, v{T+62}
    v_lshl_add_u32 v{T+62}, v{T+61}, 4, v{T+62}""")
    for p in range(3):
        for i in range(5):
            b = T + 20 * p + 4 * i
            A(f"global_load_dwordx4 v[{b}:{b+3}], v{T+62}, s[{S_T0+4}:{S_T0+5}] offset:{256*i}")
        if p < 2:
            A(f"v_add_u32 v{T+62}, {4*1280}, v{T+62}")
    filler()
    for p in range(3):
        A(f"v_mov_b32 v{T+64+2*p}, 0")
    A(f"""v_add_u32 v{T+60}, s{S_T0+1}, v{T+60}
    v_lshlrev_b32 v{T+60}, 3, v{T+60}
    v_add_u32 v{T+60}, {WS_CSB}, v{T+60}""")
    nonce_ready()
    for p in range(3):
        A(f"s_waitcnt vmcnt({10-5*p})")
        for d in range(20):
            A(f"v_dot2c_f32_bf16 v{T+64+2*p}, s{S_ONES}, v{T+20*p+d}")
    A("s_nop 3")
    dpp_reduce16([T + 64, T + 66, T + 68])
    for p in range(3):
        A(f"v_mov_b32 v{T+65+2*p}, s{S_NONCE}")
    A(f"""v_cmp_eq_u32 vcc, 0, v{T+61}
    s_and_saveexec_b64 s[{S_EX}:{S_EX+1}], vcc""")
    for p in range(3):
        A(f"global_store_dwordx2 v{T+60}, v[{T+64+2*p}:{T+65+2*p}], s[{S_WS}:{S_WS+1}] offset:{32*p} sc1")
    A(f"s_mov_b64 exec, s[{S_EX}:{S_EX+1}]")


SJ = 200
PA, PB = OPT.get('pa', 1), OPT.get('pb', 4)
def rows16_loads(T, rowreg, ptr):
    A(f"""v_and_b32 v{T+20}, 15, v{VL}
    v_mul_u32_u24 v{T+21}, 1280, v{rowreg}
    v_lshl_add_u32 v{T+21}, v{T+20}, 4, v{T+21}""")
    for i in range(5):
        A(f"global_load_dwordx4 v[{T+4*i}:{T+4*i+3}], v{T+21}, s[{ptr}:{ptr+1}] offset:{256*i}")
def stat_finish(a, q, rowreg, lanereg, lane):
    A(f"""v_mul_f32 v{a}, 0x3acccccd, v{a}      ; mean
    v_mul_f32 v{q}, 0x3acccccd, v{q}
    v_fma_f32 v{q}, -v{a}, v{a}, v{q}
    v_max_f32 v{q}, 0, v{q}
    v_cvt_pk_bf16_f32 v{q}, v{q}, v{q}
    v_lshlrev_b32 v{q}, 16, v{q}
    v_add_f32 v{q}, 0x3727c5ac, v{q}
    v_cvt_pk_bf16_f32 v{q}, v{q}, v{q}
    v_lshlrev_b32 v{q}, 16, v{q}
    v_sqrt_f32 v{q}, v{q}
    v_lshlrev_b32 v{rowreg}, 3, v{rowreg}
    v_add_u32 v{rowreg}, {WS_STAT}, v{rowreg}
    v_cvt_pk_bf16_f32 v{a}, v{a}, v{q}
    v_mov_b32 v{a+1}, s{S_NONCE}
    v_cmp_eq_u32 vcc, {lane}, v{lanereg}""")
def own_rows(dst):
    A(f"""s_lshr_b32 s{dst}, s{S_XCD}, 1
    s_lshl_b32 s{dst}, s{dst}, 2
    s_add_u32 s{dst}, s{dst}, s{S_J}
    s_lshl_b32 s{dst}, s{dst}, 3
    s_lshl_b32 s{dst+1}, s{S_C}, 7
    s_add_u32 s{dst}, s{dst}, s{dst+1}""")
def mlp_rows_loads():
    A(f"""v_lshrrev_b32 v242, 4, v{VL}
    s_lshl_b32 s{S_T0+1}, s{S_WAVE}, 2
    v_add_u32 v242, s{S_T0+1}, v242
    s_sub_u32 s{S_T0}, s{S_IDX}, 8
    s_min_u32 s{S_T0}, s{S_T0}, 19
    s_lshl_b32 s{S_T0}, s{S_T0}, 3
    s_lshr_b32 s{S_T0+1}, s{S_XCD}, 1
    s_mul_i32 s{S_T0+1}, s{S_T0+1}, 160
    s_add_u32 s{S_T0+2}, s{S_T0}, s{S_T0+1}
    s_bitcmp1_b32 s{S_XCD}, 0
    s_cselect_b32 s{S_T0+4}, s{S_BIM}, s{S_BRE}
    s_cselect_b32 s{S_T0+5}, s{S_BIM+1}, s{S_BRE+1}
    s_cselect_b32 s{S_T0+3}, 640, 0
    v_add_u32 v244, s{S_T0+2}, v242
    v_add_u32 v243, s{S_T0+3}, v244""")
    own_rows(S_T0)
    A(f"v_add_u32 v242, s{S_T0}, v242")
    rows16_loads(SJ, 242, S_X)
    rows16_loads(SJ + 20, 244, S_T0 + 4)
def mlp_rows_work():
    a, q, r = 244, 246, 228
    A(f"v_mov_b32 v{a}, 0\nv_mov_b32 v{q}, 0\nv_mov_b32 v{a+1}, 0\nv_mov_b32 v{q+1}, 0\ns_waitcnt vmcnt({2*(PB-PA)})")
    for d in range(20):
        A(f"v_dot2c_f32_bf16 v{a}, s{S_ONES}, v{SJ+d}")
        A(f"v_dot2c_f32_bf16 v{q}, v{SJ+d}, v{SJ+d}")
        A(f"v_dot2c_f32_bf16 v{[a+1, q+1][d % 2]}, s{S_ONES}, v{SJ+20+d}")
    A(f"s_nop 2\nv_add_f32 v{SJ}, v{a+1}, v{q+1}")
    dpp_reduce16([a, q, SJ])
    stat_finish(a, q, 242, SJ + 40, 0)
    A(f"""v_mov_b32 v{SJ+1}, s{S_NONCE}
    v_lshlrev_b32 v243, 3, v243
    v_add_u32 v243, {WS_CSB}, v243
    s_and_saveexec_b64 s[{S_EX}:{S_EX+1}], vcc
    global_store_dwordx2 v242, v[{a}:{a+1}], s[{S_WS}:{S_WS+1}] sc1
    global_store_dwordx2 v243, v[{SJ}:{SJ+1}], s[{S_WS}:{S_WS+1}] sc1
    s_mov_b64 exec, s[{S_EX}:{S_EX+1}]""")
def mlp_cs_loads():
    T = SJ
    A(f"""s_and_b32 s{S_T0}, s{S_IDX}, 3
    s_lshl_b32 s{S_T0+1}, s{S_CB}, 2
    s_add_u32 s{S_T0+1}, s{S_T0+1}, s{S_T0}
    s_bitcmp1_b32 s{S_IDX}, 2
    s_cselect_b32 s{S_T0}, 48, 0
    s_add_u32 s{S_T0+1}, s{S_T0+1}, s{S_T0}
    s_and_b32 s{S_T0+2}, s{S_XCD}, 1
    s_lshl_b32 s{S_T0+2}, s{S_T0+2}, 1
    s_add_u32 s{S_T0+2}, s{S_T0+2}, s{S_WAVE}
    s_sub_u32 s{S_T0+2}, s{S_T0+2}, 2              ; k quarter
    s_cmp_ge_u32 s{S_T0+1}, 48""")
    srd_sel(SRD_T, S_W3, S_W1, 1966080)
    A(f"""s_cselect_b32 s{S_T0+3}, {48*64}, 0
    s_lshl_b32 s{S_T0+4}, s{S_T0+1}, 6
    s_sub_u32 s{S_T0+4}, s{S_T0+4}, s{S_T0+3}
    s_mul_i32 s{S_T0+5}, s{S_T0+2}, {160*3072}
    s_add_u32 s{S_T0+4}, s{S_T0+4}, s{S_T0+5}      ; soffset
    s_sub_u32 s{S_T0+5}, s{S_WAVE}, 2
    s_mul_i32 s{S_T0+5}, s{S_T0+5}, 10240
    s_add_u32 s{S_T0+5}, s{S_T0+5}, {SCR}
    v_lshrrev_b32 v{T}, 2, v{VL}
    v_and_b32 v{T+1}, 3, v{VL}
    v_mul_u32_u24 v{T}, 3072, v{T}
    v_lshl_add_u32 v{T}, v{T+1}, 4, v{T}""")
    for i in range(10):
        A(f"""s_add_u32 m0, s{S_T0+5}, {1024*i}
        s_add_u32 s{S_T0+7}, s{S_T0+4}, {16*3072*i}
        buffer_load_dwordx4 v{T}, s[{SRD_T}:{SRD_T+3}], s{S_T0+7} offen lds""")
    A(f"""v_lshrrev_b32 v{T+2}, 4, v{VL}
    v_lshlrev_b32 v{T+3}, 5, v{T+2}
    v_lshlrev_b32 v{T+2}, 9, v{T+2}
    v_bfe_u32 v{T}, v{VL}, 2, 2
    v_lshl_add_u32 v{T+2}, v{T}, 6, v{T+2}
    v_lshl_add_u32 v{T+2}, v{T+1}, 3, v{T+2}
    v_add_u32 v{T+2}, s{S_T0+5}, v{T+2}
    s_mul_i32 s{S_T0+2}, s{S_T0+2}, {3072*8}
    s_lshl_b32 s{S_T0+1}, s{S_T0+1}, 8
    s_add_u32 s{S_T0+2}, s{S_T0+2}, s{S_T0+1}
    s_add_u32 s{S_T0+2}, s{S_T0+2}, {WS_CSW}
    v_add_u32 v249, s{S_T0+2}, v{T+3}
    v_and_b32 v{T+1}, 15, v{VL}""")
    for i in range(4):
        A(f"v_mov_b32 v{T+4+i}, s{S_ONES}")
def mlp_cs_work():
    T = SJ
    F = T + 8
    A(f"s_waitcnt vmcnt({2*(PB-PA)})")
    for u in range(2):
        for ks in range(5):
            b = F + (u * 5 + ks) * 4
            A(f"ds_read_b64_tr_b16 v[{b}:{b+1}], v{T+2} offset:{ks*2048+u*32}")
            A(f"ds_read_b64_tr_b16 v[{b+2}:{b+3}], v{T+2} offset:{ks*2048+u*32+256}")
    A(f"v_cmp_eq_u32 vcc, 0, v{T+1}\ns_waitcnt lgkmcnt(0)")
    D = [T, F]
    for u in range(2):
        for ks in range(5):
            b, d = F + (u * 5 + ks) * 4, D[u]
            cin = "0" if ks == 0 else f"v[{d}:{d+3}]"
            A(f"v_mfma_f32_16x16x32_bf16 v[{d}:{d+3}], v[{b}:{b+3}], v[{T+4}:{T+7}], {cin}")
    A("s_nop 7")
    for u in range(2):
        d, o = D[u], F + 4 + 8 * u
        for r in range(4):
            A(f"v_mov_b32 v{o+2*r}, v{d+r}\nv_mov_b32 v{o+2*r+1}, s{S_NONCE}")
    A(f"s_and_saveexec_b64 s[{S_EX}:{S_EX+1}], vcc")
    for u in range(2):
        for h in range(2):
            o = F + 4 + 8 * u + 4 * h
            A(f"global_store_dwordx4 v249, v[{o}:{o+3}], s[{S_WS}:{S_WS+1}] offset:{u*128+h*16} sc1")
    A(f"s_mov_b64 exec, s[{S_EX}:{S_EX+1}]")
def ssm_rows_loads():
    own_rows(S_T0)
    A(f"""v_lshrrev_b32 v246, 5, v{VL}
    s_lshl_b32 s{S_T0+1}, s{S_WAVE}, 1
    s_add_u32 s{S_T0}, s{S_T0}, s{S_T0+1}
    v_add_u32 v246, s{S_T0}, v246
    v_and_b32 v247, 31, v{VL}
    v_mul_u32_u24 v249, 1280, v246
    v_lshl_add_u32 v249, v247, 3, v249""")
    for i in range(5):
        A(f"global_load_dwordx2 v[{236+2*i}:{237+2*i}], v249, s[{S_X}:{S_X+1}] offset:{256*i}")
def ssm_rows_work():
    A(f"v_mov_b32 v249, 0\nv_mov_b32 v251, 0\ns_waitcnt vmcnt({2*(PB-PA)})")
    for d in range(10):
        A(f"v_dot2c_f32_bf16 v249, s{S_ONES}, v{236+d}")
        A(f"v_dot2c_f32_bf16 v251, v{236+d}, v{236+d}")
    A("s_nop 2\nv_mov_b32 v236, v249")
    reduce32([236, 251])
    stat_finish(236, 251, 246, 247, 16)
    A(f"""s_and_saveexec_b64 s[{S_EX}:{S_EX+1}], vcc
    global_store_dwordx2 v246, v[236:237], s[{S_WS}:{S_WS+1}] sc1
    s_mov_b64 exec, s[{S_EX}:{S_EX+1}]""")
def by_wave(lo, hi):
    l1, l2 = A.newlabel("L_bw"), A.newlabel("L_bw")
    A(f"s_cmp_ge_u32 s{S_WAVE}, 2\ns_cbranch_scc1 {l1}")
    lo()
    A(f"s_branch {l2}")
    A.label(l1)
    hi()
    A.label(l2)

def zero_regs(lo, n):
    def f():
        for r in range(lo, lo + n):
            A(f"v_mov_b32 v{r}, 0")
    return f

def rowpat_read(dst, tmp):
    A(f"""v_bfe_u32 v{tmp}, v{VL}, 1, 3
    v_lshrrev_b32 v{dst}, 4, v{VL}
    v_xor_b32 v{tmp}, v{tmp}, v{dst}
    v_and_b32 v{dst}, 15, v{VL}
    v_lshlrev_b32 v{dst}, 7, v{dst}
    v_lshl_add_u32 v{dst}, v{tmp}, 4, v{dst}""")

def touch_inputs(T):
    if not OPT["pf"]:
        return
    G = OPT.get("tg", 64)
    plan = [[(S_X, 10240)], [(S_W1, 7680), (S_BRE, 3200)], [(S_W3, 7680), (S_BIM, 3200)], [(S_W2, 7680), (S_CRE, 3200), (S_CIM, 3200)]]
    done = A.newlabel("L_ti")
    sh = G.bit_length() - 1
    for w, segs in enumerate(plan):
        nx = A.newlabel("L_ti")
        if w < 3:
            A(f"s_cmp_lg_u32 s{S_WAVE}, {w}\ns_cbranch_scc1 {nx}")
        k = 0
        for p, n in segs:
            cnt = n // G
            A(f"s_mul_i32 s{S_T0}, s2, {n}")
            for o in range(0, cnt, 64):
                A(f"""v_add_u32 v{T}, {o}, v{VL}
                v_min_u32 v{T}, {cnt-1}, v{T}
                v_lshlrev_b32 v{T}, {sh}, v{T}
                v_add_u32 v{T}, s{S_T0}, v{T}
                global_load_dword v{244+k}, v{T}, s[{p}:{p+1}]""")
                k += 1
        if w < 3:
            A(f"s_branch {done}")
            A.label(nx)
    A.label(done)
def gemm1_loop(kind):
    mlp = kind == "mlp"
    NB = 8 if mlp else 10
    NS = 5
    SLOT = 16384 if mlp else 20480
    XF = 128 if mlp else 160
    WF = XF + 32
    AX = WF + NB * 4
    AW = AX + 2
    nAW = 4 if mlp else 2
    D = D1 if mlp else OPT["D1S"]
    lg = Queue(A, "lgkmcnt", 15)

    def rd_x(ks, T):
        b = XF + ks * 16 + T * 4
        if OPT["noread"]:
            return
        A(f"ds_read_b128 v[{b}:{b+3}], v{AX+ks} offset:{T*2048}")
        lg.issue(("x", ks))
    def rd_w(j, gen, half=None):
        b = WF + j * 4
        if OPT["noread"]:
            return
        if mlp:
            F, c = j // 2, j % 2
            for h in ((0, 1) if half is None else (half,)):
                A(f"ds_read_b64_tr_b16 v[{b+2*h}:{b+2*h+1}], v{AW+F} offset:{c*8192+1024*h}")
                lg.issue(("w", j, gen))
        else:
            ks, G = j // 5, j % 5
            A(f"ds_read_b128 v[{b}:{b+3}], v{AW+ks} offset:{G*2048}")
            lg.issue(("w", j, gen))
    def mf(j, T, par):
        w = WF + j * 4
        if (OPT["nomfma"] == 1 and T > 0) or OPT["nomfma"] == 2:
            return
        if mlp:
            acc = (j * 4 + T) * 4
            x = XF + par * 16 + T * 4
            A(f"v_mfma_f32_16x16x32_bf16 v[{acc}:{acc+3}], v[{w}:{w+3}], v[{x}:{x+3}], v[{acc}:{acc+3}]")
        else:
            acc = (((j % 5) * 2 + par) * 4 + T) * 4
            x = XF + (j // 5) * 16 + T * 4
            A(f"v_mfma_f32_16x16x32_bf16 v[{acc}:{acc+3}], v[{x}:{x+3}], v[{w}:{w+3}], v[{acc}:{acc+3}]")
    def xreads(par, j):
        k = j + D - NB
        if mlp:
            return [(par ^ 1, T) for T in ([2 * k, 2 * k + 1] if 0 <= k < 2 else [])]
        if par == 1:
            return [(0, T) for T in ([2 * k, 2 * k + 1] if 0 <= k < 2 else [])]
        return [(1, T) for T in ([2 * j, 2 * j + 1] if j < 2 else [])]
    assert mlp or NB - D >= 5

    A(f"s_mov_b32 s{S_SLOT}, 0\ns_mov_b32 s{S_CNT}, 0\ns_mov_b32 s{S_KX}, 0")
    vFP, vFV, vFD = 248, 249, 250
    A(f"s_mov_b32 m0, s{S_FR+1}\ns_mov_b32 s{S_FR}, 0\ns_mov_b32 s{S_LMT}, {PA or PB}")
    if OPT.get('pre0', 0):
        gemm2_pre_loads(6 if mlp else 2, PRE if mlp else PRE2)
    A(f"v_mov_b32 v{vFD}, 0\ns_mov_b32 s{S_NEED}, 2")
    flag_test(1, vFD, vFP, 0)
    if TS:
        A("s_mov_b32 s48, 0\ns_mov_b32 s49, 0")
    ts(2, 2)
    tc(12)
    for j in range(D):
        rd_w(j, 0)
        for ks, T in xreads(1, j + NB - D):
            rd_x(ks, T)
    lbl = f"L_g1_{kind}"
    A(f"""s_mov_b32 s{S_T0}, {SLOT}
    s_mov_b32 s{S_T0+1}, {-(NS-1)*SLOT & 0xffffffff}
    s_mov_b32 s{S_T0+2}, 16384
    s_mov_b32 s{S_T0+3}, {-32768 & 0xffffffff}""")
    A.label(lbl)
    entry = list(lg.q)
    ring = [f"s_add_u32 s{S_SLOT}, s{S_SLOT}, 1\ns_cmp_eq_u32 s{S_SLOT}, {NS}",
            f"s_cselect_b32 s{S_DELTA}, s{S_T0+1}, s{S_T0}\ns_cselect_b32 s{S_SLOT}, 0, s{S_SLOT}"]
    xring = [f"s_add_u32 s{S_KX}, s{S_KX}, 1\ns_cmp_eq_u32 s{S_KX}, 3",
             f"s_cselect_b32 s{S_KW}, s{S_T0+3}, s{S_T0+2}\ns_cselect_b32 s{S_KX}, 0, s{S_KX}"]
    def adv(r, d):
        return f"v_add_u32 v{r}, s{d}, v{r}"
    for par in range(2):
        fill = {}
        if mlp:
            assert D == 4
            fill[(0, 2)] = ring[0]; fill[(1, 2)] = ring[1]
            fill[(2, 2)] = adv(AW, S_DELTA) + "\n" + adv(AW + 1, S_DELTA)
            fill[(6, 2)] = adv(AW + 2, S_DELTA) + f"\ns_add_u32 s{S_FR}, s{S_FR}, 4"; fill[(7, 2)] = adv(AW + 3, S_DELTA)
            fill[(6, 3)] = f"s_add_u32 s{S_NEED}, s{S_NEED}, 1"
            fpos, cpos, wpos = (1, 3), (3, 0), (7, 2)
            if par == 0:
                fill[(3, 2)] = xring[0]; fill[(3, 3)] = xring[1]
            else:
                fill[(3, 2)] = adv(AX, S_KW) + "\n" + adv(AX + 1, S_KW)
                fill[(7, 3)] = f"s_add_u32 s{S_CNT}, s{S_CNT}, 1\ns_cmp_lt_u32 s{S_CNT}, s{S_LMT}"
        else:
            assert D == 5
            fill[(2, 1)] = ring[0]; fill[(2, 2)] = ring[1]
            fill[(3, 1)] = adv(AW, S_DELTA); fill[(7, 1)] = adv(AW + 1, S_DELTA)
            fill[(7, 2)] = f"s_add_u32 s{S_NEED}, s{S_NEED}, 1"
            fill[(8, 3)] = f"s_add_u32 s{S_FR}, s{S_FR}, 4"
            fpos, cpos, wpos = (2, 3), (4, 2), (9, 2)
            if par == 0:
                fill[(8, 1)] = xring[0]; fill[(8, 2)] = xring[1]
            else:
                fill[(4, 1)] = adv(AX, S_KW) + "\n" + adv(AX + 1, S_KW)
                fill[(9, 1)] = f"s_add_u32 s{S_CNT}, s{S_CNT}, 1\ns_cmp_lt_u32 s{S_CNT}, s{S_LMT}"
        for j in range(NB):
            tags = [("w", j, par)]
            if j == 0:
                tags.append(("x", par if mlp else 0))
            if j == 5 and not mlp:
                tags.append(("x", 1))
            jn = j + D
            if jn == NB - 1:
                tags.append("flag")
            lg.wait(tags)
            acts = {0: [], 1: [], 2: [], 3: []}
            g = 0
            if jn == NB:
                acts[0].append(lambda: flag_test(f"s{S_NEED}", vFD, vFP, 0, acc=48, split=True))
                g = 1
            wj, wg = (jn, par) if jn < NB else (jn - NB, par ^ 1)
            if mlp:
                acts[g].append(lambda wj=wj, wg=wg: rd_w(wj, wg, 0))
                acts[g + 1].append(lambda wj=wj, wg=wg: rd_w(wj, wg, 1))
                g += 2
            else:
                acts[g].append(lambda wj=wj, wg=wg: rd_w(wj, wg, 0))
                g += 1
            for n_, (ks, T) in enumerate(xreads(par, j)):
                acts[min(g + n_, 3)].append(lambda ks=ks, T=T: rd_x(ks, T))
            for T in range(4):
                mf(j, T, par)
                for f in acts[T]:
                    f()
                if (j, T) in fill:
                    A(fill[(j, T)])
                if (j, T) == fpos:
                    A(f"ds_read_b32 v{vFD}, v{vFP}")
                    lg.issue("flag")
                if (j, T) == cpos:
                    A(f"v_cmp_gt_u32 vcc, s{S_NEED}, v{vFD}")
                if (j, T) == wpos:
                    A(f"buffer_load_dword v{VZ}, s[{SRD_F}:{SRD_F+3}], s{S_FR} offen lds")
    A(f"s_cbranch_scc1 {lbl}")
    lfin = A.newlabel("L_g1e")
    A(f"s_cmp_eq_u32 s{S_CNT}, 10\ns_cbranch_scc1 {lfin}")
    if PA:
        lw_ = A.newlabel("L_g1w")
        A(f"s_cmp_lg_u32 s{S_CNT}, {PA}\ns_cbranch_scc1 {lw_}")
        A(f"s_mov_b64 s[{S_M0}:{S_M0+1}], s[{S_T0}:{S_T0+1}]\ns_mov_b64 s[{S_M1}:{S_M1+1}], s[{S_T0+2}:{S_T0+3}]")
        if mlp:
            by_wave(mlp_rows_loads, mlp_cs_loads)
        else:
            ssm_rows_loads()
        A(f"""s_mov_b64 s[{S_T0}:{S_T0+1}], s[{S_M0}:{S_M0+1}]
        s_mov_b64 s[{S_T0+2}:{S_T0+3}], s[{S_M1}:{S_M1+1}]
        s_mov_b32 m0, s{S_FR+1}
        s_mov_b32 s{S_LMT}, {PB}
        s_branch {lbl}""")
        A.label(lw_)
    if mlp:
        by_wave(mlp_rows_work, mlp_cs_work)
    else:
        ssm_rows_work()
    A(f"s_mov_b32 s{S_LMT}, 10\ns_branch {lbl}")
    A.label(lfin)
    assert lg.q == entry[len(entry) - len(lg.q):]
    return lg, entry, AX, AW

G2_B = 96
PRE, PRE2 = 200, 236
G2_A = 144
def g2slot(NU, s):
    return (s % 6) * 24576 if NU == 6 else (s % 5) * 8192

def rot_next(s, stepA, stepB, baseB):
    if s == 11:
        A(f"s_mul_i32 s{S_KB}, s{S_R2B}, {stepB}")
        if baseB:
            A(f"s_add_u32 s{S_KB}, s{S_KB}, {baseB}")
    elif s < 11:
        A(f"""s_add_u32 s{S_KB}, s{S_KB}, {stepA}
        s_cmp_eq_u32 s{S_KB}, {12*stepA}
        s_cselect_b32 s{S_KB}, 0, s{S_KB}""")
    elif s < 21:
        A(f"""s_add_u32 s{S_KB}, s{S_KB}, {stepB}
        s_cmp_eq_u32 s{S_KB}, {baseB+10*stepB}
        s_cselect_b32 s{S_KB}, {baseB}, s{S_KB}""")

def gemm2_pre_loads(NU, R):
    A(f"""s_lshl_b32 s{S_T0}, s{S_HB2}, 6
    s_lshl_b32 s{S_T0+1}, s{S_WAVE}, 4
    s_add_u32 s{S_T0}, s{S_T0}, s{S_T0+1}
    v_and_b32 v{R+4*NU+2}, 15, v{VL}
    v_add_u32 v{R+4*NU+2}, s{S_T0}, v{R+4*NU+2}        ; row t
    v_lshrrev_b32 v{R+4*NU+3}, 4, v{VL}
    v_lshlrev_b32 v{R+4*NU+3}, 3, v{R+4*NU+3}
    s_lshl_b32 s{S_T0+1}, s{S_DCOL}, 1
    v_add_u32 v{R+4*NU+3}, s{S_T0+1}, v{R+4*NU+3}
    v_mul_u32_u24 v{R+4*NU}, 1280, v{R+4*NU+2}
    v_add_u32 v{R+4*NU}, v{R+4*NU}, v{R+4*NU+3}""")
    for U in range(NU):
        A(f"global_load_dwordx2 v[{R+2*U}:{R+2*U+1}], v{R+4*NU+(3 if OPT.get('nopre', 0) else 0)}, s[{S_X}:{S_X+1}] offset:{32*U}")
    for U in range(NU):
        A(f"global_load_dwordx2 v[{R+2*NU+2*U}:{R+2*NU+2*U+1}], v{R+4*NU+3}, s[{S_DSK}:{S_DSK+1}] offset:{32*U}")
    A(f"""v_lshlrev_b32 v{R+4*NU+2}, 3, v{R+4*NU+2}
    v_add_u32 v{R+4*NU+2}, {WS_STAT}, v{R+4*NU+2}""")

def gemm2_pre_stat(NU, R):
    if not OPT.get('pre0', 0):
        gemm2_pre_loads(NU, R)
    A(f"global_load_dwordx2 v[{R+4*NU}:{R+4*NU+1}], v{R+4*NU+2}, s[{S_WS}:{S_WS+1}] sc1")

def gemm2_base(NU, R, T):
    st = R + 4 * NU
    lr, lo = A.newlabel("L_st"), A.newlabel("L_st")
    A.label(lr)
    A(f"""v_cmp_ne_u32 vcc, s{S_NONCE}, v{st+1}
    s_nop 1
    s_cbranch_vccz {lo}
    global_load_dwordx2 v[{st}:{st+1}], v{st+2}, s[{S_WS}:{S_WS+1}] sc1
    s_waitcnt vmcnt(0)""")
    spin_tail(lr, lo, 1)
    A.label(lo)
    A(f"""v_and_b32 v{st+1}, 0xffff0000, v{st}
    v_lshlrev_b32 v{st}, 16, v{st}
    v_rcp_f32 v{st+1}, v{st+1}""")
    def unpack(dst, src):
        A(f"""v_lshlrev_b32 v{dst}, 16, v{src}
        v_and_b32 v{dst+1}, 0xffff0000, v{src}
        v_lshlrev_b32 v{dst+2}, 16, v{src+1}
        v_and_b32 v{dst+3}, 0xffff0000, v{src+1}""")
    def rnd(r, t):
        A(f"""v_cvt_pk_bf16_f32 v{t}, v{r}, v{r+1}
        v_cvt_pk_bf16_f32 v{t+1}, v{r+2}, v{r+3}""")
        unpack(r, t)
    for U in range(NU):
        acc = U * 16
        unpack(acc, R + 2 * U)
        unpack(T + 4, R + 2 * NU + 2 * U)
        for h in (0, 2):
            A(f"v_pk_add_f32 v[{T+h}:{T+h+1}], v[{acc+h}:{acc+h+1}], v[{st}:{st+1}] op_sel_hi:[1,0] neg_lo:[0,1] neg_hi:[0,1]")
        rnd(T, T + 8)
        for h in (0, 2):
            A(f"v_pk_mul_f32 v[{T+h}:{T+h+1}], v[{T+h}:{T+h+1}], v[{st}:{st+1}] op_sel:[0,1] op_sel_hi:[1,1]")
        rnd(T, T + 8)
        for h in (0, 2):
            A(f"v_pk_mul_f32 v[{T+h}:{T+h+1}], v[{T+h}:{T+h+1}], v[{T+4+h}:{T+5+h}]")
        rnd(T, T + 8)
        for h in (0, 2):
            A(f"v_pk_add_f32 v[{acc+h}:{acc+h+1}], v[{acc+h}:{acc+h+1}], v[{T+h}:{T+h+1}]")

def gemm2_compute(NU):
    NS2 = 6 if NU == 6 else 5
    SL = NU * 4096
    RED = 0 if NU == 6 else TR_BASE
    V = 240
    vE, vO, vC = V, V + 1, V + 2
    vA = V + 3
    vT = V + 7
    RBY = NU * 32
    A(f"""v_lshrrev_b32 v{vT}, 4, v{VL}               ; q
    v_bfe_u32 v{vT+1}, v{VL}, 2, 2                     ; rr
    v_lshl_add_u32 v{vT+1}, v{vT}, 2, v{vT+1}
    s_lshl_b32 s{S_T0}, s{S_WAVE}, 5
    v_add_u32 v{vT+1}, s{S_T0}, v{vT+1}
    v_mul_u32_u24 v{vT+1}, {RBY}, v{vT+1}
    v_and_b32 v{vT+2}, 3, v{VL}
    v_lshl_add_u32 v{vT+1}, v{vT+2}, 3, v{vT+1}
    v_and_b32 v{vT+2}, 1, v{vT}
    v_lshlrev_b32 v{vT+3}, 5, v{vT+2}
    v_add_u32 v{vE}, v{vT+1}, v{vT+3}
    v_sub_u32 v{vO}, v{vT+1}, v{vT+3}
    s_lshl_b32 s{S_T0}, s{S_WAVE}, 1
    v_add_u32 v{vT+2}, s{S_T0}, v{vT+2}                ; chunk = 2w + (q&1)
    v_bfe_u32 v{vT+3}, v{VL}, 1, 3
    v_xor_b32 v{vT+2}, v{vT+2}, v{vT+3}
    v_lshrrev_b32 v{vT}, 1, v{vT}
    v_mul_u32_u24 v{vT}, {NU*2048}, v{vT}
    v_lshl_add_u32 v{vT}, v{vT+2}, 4, v{vT}
    v_and_b32 v{vT+3}, 15, v{VL}
    v_lshl_add_u32 v{vC}, v{vT+3}, 7, v{vT}
    v_lshlrev_b32 v{vT}, 4, v{VL}""")
    for Tp in range(4):
        A(f"""s_add_u32 s{S_T0}, s{S_WAVE}, {Tp}
        s_and_b32 s{S_T0}, s{S_T0}, 3
        s_lshl_b32 s{S_T0}, s{S_T0}, 10
        v_add_u32 v{vA+Tp}, s{S_T0}, v{vT}""")
    A(f"""s_mul_i32 s{S_T0}, s{S_HB2}, {88*4096}
    s_lshl_b32 s{S_T0+1}, s{S_WAVE}, 12
    s_add_u32 s{S_T0}, s{S_T0}, s{S_T0+1}
    s_add_u32 s{S_T0}, s{S_T0}, {WS_ACT}
    s_add_u32 s{SRD_T}, s{S_WS}, s{S_T0}
    s_addc_u32 s{SRD_T+1}, s{S_WS+1}, 0
    s_mov_b32 s{SRD_T+2}, {85*4096}
    s_mov_b32 s{SRD_T+3}, 0x20000
    s_lshl_b32 s{S_KB}, s{S_R2A}, 14""")
    lr, lo = A.newlabel("L_fl"), A.newlabel("L_fl")
    A(f"""s_lshl_b32 s{S_T0}, s{S_HB2}, 7
    s_add_u32 s{S_T0}, s{S_T0}, {WS_FLAG}
    v_and_b32 v{vT+1}, 31, v{VL}
    v_lshlrev_b32 v{vT+1}, 2, v{vT+1}
    v_add_u32 v{vT+1}, s{S_T0}, v{vT+1}
    s_lshr_b32 s{S_T0+1}, s{S_WAVE}, 1
    s_lshl_b32 s{S_T0+1}, 0x555555, s{S_T0+1}""")
    A.label(lr)
    A(f"""global_load_dword v{vT+2}, v{vT+1}, s[{S_WS}:{S_WS+1}] sc1
    s_waitcnt vmcnt(0)
    v_cmp_eq_u32 vcc, s{S_NONCE}, v{vT+2}
    s_nop 1
    s_and_b32 s{S_T0+2}, vcc_lo, s{S_T0+1}
    s_cmp_eq_u32 s{S_T0+2}, s{S_T0+1}
    s_cbranch_scc1 {lo}""")
    spin_tail(lr, lo, 2)
    A.label(lo)
    ts(7, 2)
    tc(14)
    vm = Queue(A, "vmcnt", 63)
    lg = Queue(A, "lgkmcnt", 15)
    def ldA(s):
        b = G2_A + (s % DA) * 16
        for Tp in range(4):
            A(f"buffer_load_dwordx4 v[{b+4*Tp}:{b+4*Tp+3}], v{vA+Tp}, s[{SRD_T}:{SRD_T+3}], s{S_KB} offen{['', ' sc1', ' nt', ' sc0', ' sc0 sc1'][OPT['amod']]}")
            vm.issue(("a", s))
        rot_next(s, 16384, 16384, 12 * 16384)
    def rdB(s, U):
        b = G2_B + (s % 2) * 24 + U * 4
        if s < 12:
            a = vT + 4 if U % 2 == 0 else vT + 5
            A(f"ds_read_b64_tr_b16 v[{b}:{b+1}], v{a} offset:{32*U}")
            A(f"ds_read_b64_tr_b16 v[{b+2}:{b+3}], v{a} offset:{32*U+16*RBY}")
            lg.issue(("b", s, U)); lg.issue(("b", s, U))
        else:
            A(f"ds_read_b128 v[{b}:{b+3}], v{vT+4} offset:{2048*U}")
            lg.issue(("b", s, U))
    def setB(s):
        slot = g2slot(NU, s)
        if s < 12:
            A(f"v_add_u32 v{vT+4}, {slot}, v{vE}\nv_add_u32 v{vT+5}, {slot}, v{vO}")
        else:
            A(f"v_add_u32 v{vT+4}, {slot}, v{vC}")
    vFP, vFV, vFD = vT, vT + 2, vT + 3
    peer_addr(vFP, FLG)
    R0 = OPT.get("ramp", 2)
    st = {"nxt": 0}
    def ldA1(s, Tp):
        b = G2_A + (s % DA) * 16
        A(f"buffer_load_dwordx4 v[{b+4*Tp}:{b+4*Tp+3}], v{vA+Tp}, s[{SRD_T}:{SRD_T+3}], s{S_KB} offen sc1")
        vm.issue(("a", s))
        if Tp == 3:
            rot_next(s, 16384, 16384, 12 * 16384)
    for s in range(R0):
        ldA(s)
    st["nxt"] = R0
    A(f"v_mov_b32 v{vFD}, 0")
    flag_test(22, vFD, vFP, 0)
    setB(0)
    for U in range(NU):
        rdB(0, U)
    A(f"ds_read_b32 v{vFD}, v{vFP}")
    GATE = 12 - (DA - 1)
    def stage(s, limit):
        lg.drain()
        if TS == 2:
            ts(16 + s, 2)
        vm.wait(("a", s))
        todo = []
        n = 0
        while st["nxt"] <= min(limit, s - 1 + DA, 21) and n < 2:
            todo += [(st["nxt"], Tp) for Tp in range(4)]
            st["nxt"] += 1
            n += 1
        acts = []
        acts.append(lambda: A(f"v_mov_b32 v{vFV}, {21+s}\nds_write_b32 v{VFO}, v{vFV}"))
        if s < 21:
            acts.append(lambda: flag_test(23 + s, vFD, vFP, 0))
            acts.append(lambda: setB(s + 1))
            for U in range(NU):
                acts.append(lambda U=U: rdB(s + 1, U))
        if s < 20:
            acts.append(lambda: A(f"ds_read_b32 v{vFD}, v{vFP}"))
        if s == GATE - 1:
            acts.append(lambda: A(f"ds_read_b32 v{vFV}, v{vFP} offset:2048"))
        lds = [lambda x=x: ldA1(*x) for x in todo]
        nm = 4 * NU
        sched = {i: [] for i in range(nm)}
        per = -(-len(acts) // max(nm - 2, 1))
        for i, f in enumerate(acts):
            sched[i // per].append(f)
        first = min(len(acts) // per, nm - 1) if NU == 6 else 0
        for i, f in enumerate(lds):
            sched[min(first + i * (nm - first) // len(lds), nm - 1)].append(f)
        for U in range(NU):
            for Tp in range(4):
                acc = (U * 4 + Tp) * 4
                w = G2_B + (s % 2) * 24 + U * 4
                a = G2_A + (s % DA) * 16 + Tp * 4
                cin = "0" if (s == 0 and Tp != 0) else f"v[{acc}:{acc+3}]"
                A(f"v_mfma_f32_16x16x32_bf16 v[{acc}:{acc+3}], v[{w}:{w+3}], v[{a}:{a+3}], {cin}")
                for f in sched[U * 4 + Tp]:
                    f()
    llate, ljoin = A.newlabel("L_late"), A.newlabel("L_join")
    for s in range(22):
        if s == GATE:
            assert st["nxt"] == 12
            lg.drain()
            A(f"v_cmp_le_u32 vcc, 3, v{vFV}\ns_cbranch_vccz {llate}")
            keep = (list(vm.q), list(lg.q))
            mark = len(A.lines)
            A.label(llate)
            for s2_ in range(GATE, 12):
                stage(s2_, 11)
            lr, lo = A.newlabel("L_fs"), A.newlabel("L_fs")
            A.label(lr)
            A(f"""global_load_dword v{vFV}, v{vT+1}, s[{S_WS}:{S_WS+1}] sc1
            s_waitcnt vmcnt(0)
            v_cmp_eq_u32 vcc, s{S_NONCE}, v{vFV}
            s_nop 1
            s_lshr_b32 s{S_T0+2}, vcc_lo, 24
            s_cmp_eq_u32 s{S_T0+2}, 0xff
            s_cbranch_scc1 {lo}""")
            spin_tail(lr, lo, 2)
            A.label(lo)
            vm.q = []
            for s2_ in range(12, 12 + DA - 1):
                ldA(s2_)
            A(f"s_branch {ljoin}")
            late_q = (list(vm.q), list(lg.q))
            SLOW.extend(A.lines[mark:])
            del A.lines[mark:]
            vm.q, lg.q = keep
            st["nxt"] = 12
        if s == 12:
            A.label(ljoin)
            assert vm.q[-4*(DA-1):] == late_q[0] and st["nxt"] == 12 + DA - 1
        stage(s, 21)
    ts(8, 2)
    tc(15)
    if NU == 6:
        A(f"ds_read_b32 v{vFD}, v{vFP} offset:1024\ns_waitcnt lgkmcnt(0)")
        flag_test(41, vFD, vFP, 1024)
    A(f"v_lshlrev_b32 v{vT}, 4, v{VL}")
    for Tp in range(1, 4):
        A(f"""s_add_u32 s{S_T0}, s{S_WAVE}, {Tp}
        s_and_b32 s{S_T0}, s{S_T0}, 3
        s_mul_i32 s{S_T0}, s{S_T0}, {3*NU*1024}
        s_add_u32 s{S_T0}, s{S_T0}, {RED + (Tp-1)*NU*1024}
        v_add_u32 v{vT+Tp}, s{S_T0}, v{vT}""")
    A(f"""s_mul_i32 s{S_T0}, s{S_WAVE}, {3*NU*1024}
    s_add_u32 s{S_T0}, s{S_T0}, {RED}
    v_add_u32 v{vT}, s{S_T0}, v{vT}
    s_nop 4""")
    for U in range(NU):
        for Tp in range(1, 4):
            acc = (U * 4 + Tp) * 4
            A(f"ds_write_b128 v{vT+Tp}, v[{acc}:{acc+3}] offset:{U*1024}")
    A(f"""s_lshl_b32 s{S_T0}, s{S_HB2}, 6
    s_lshl_b32 s{S_T0+1}, s{S_WAVE}, 4
    s_add_u32 s{S_T0}, s{S_T0}, s{S_T0+1}
    v_and_b32 v{vA}, 15, v{VL}
    v_add_u32 v{vA}, s{S_T0}, v{vA}
    v_mul_u32_u24 v{vA}, 2560, v{vA}
    v_lshrrev_b32 v{vA+1}, 4, v{VL}
    v_lshl_add_u32 v{vA}, v{vA+1}, 4, v{vA}
    s_lshl_b32 s{S_T0+1}, s{S_DCOL}, 2
    v_add_u32 v{vA}, s{S_T0+1}, v{vA}
    s_waitcnt lgkmcnt(0)
    s_barrier""")
    lg = Queue(A, "lgkmcnt", 15)
    def rdR(U):
        for i in range(3):
            b = (U * 4 + 1 + i) * 4
            A(f"ds_read_b128 v[{b}:{b+3}], v{vT} offset:{(i*NU+U)*1024}")
            lg.issue(("r", U))
    for U in range(min(NU, 4)):
        rdR(U)
    for U in range(NU):
        lg.wait(("r", U))
        acc = U * 16
        for h in (0, 2):
            A(f"v_pk_add_f32 v[{acc+h}:{acc+h+1}], v[{acc+h}:{acc+h+1}], v[{acc+4+h}:{acc+5+h}]")
            A(f"v_pk_add_f32 v[{acc+8+h}:{acc+9+h}], v[{acc+8+h}:{acc+9+h}], v[{acc+12+h}:{acc+13+h}]")
        for h in (0, 2):
            A(f"v_pk_add_f32 v[{acc+h}:{acc+h+1}], v[{acc+h}:{acc+h+1}], v[{acc+8+h}:{acc+9+h}]")
        A(f"global_store_dwordx4 v{vA}, v[{acc}:{acc+3}], s[{S_OUT}:{S_OUT+1}] offset:{64*U}{['', ' sc1', ' nt', ' sc0 sc1'][OPT.get('omod', 0)]}")
        if U + 4 < NU:
            rdR(U + 4)
    ts(9, 2)
    ts_flush(100)
    A("s_endpgm")
    flush_slow()

def publish_flag(idx_code):
    A(f"""s_lshl_b32 s{S_T0}, s{S_T0}, 5
    s_add_u32 s{S_T0}, s{S_T0}, s{S_T0+1}
    s_lshl_b32 s{S_T0}, s{S_T0}, 2
    s_add_u32 s{S_T0}, s{S_T0}, {WS_FLAG}
    v_mov_b32 v250, s{S_T0}
    v_mov_b32 v251, s{S_NONCE}
    s_waitcnt vmcnt({idx_code})
    s_mov_b64 exec, 1
    global_store_dword v250, v251, s[{S_WS}:{S_WS+1}] sc1
    s_mov_b64 exec, -1""")

A.label("L_compute")
A(f"s_setprio {OPT.get('pc1', 2)}")
if OPT.get("pfc", 0):
    A(f"""s_getpc_b64 s[{S_M0}:{S_M0+1}]
    L_pcc:
    s_sub_u32 s{S_M0}, s{S_M0}, L_pcc-L_code_start
    s_subb_u32 s{S_M0+1}, s{S_M0+1}, 0
    v_lshlrev_b32 v2, 7, v0
    v_add_u32 v3, 32768, v2
    v_min_u32 v3, L_code_end-L_code_start-8, v3
    global_load_dword v246, v2, s[{S_M0}:{S_M0+1}]
    global_load_dword v247, v3, s[{S_M0}:{S_M0+1}]""")
A("s_waitcnt lgkmcnt(0)")
table_store(SRD_F, 2)
flag_init(FLG + 1024, S_WAVE, 248, FLG, False)
A(f"s_mov_b32 s{S_FR+1}, s{S_T0}")
late_scalars()
A(f"s_cmp_eq_u32 s{S_J}, 0\ns_cbranch_scc1 L_ssm_compute")
A('v_mov_b32 v249, 0')
if PA == 0:
    by_wave(mlp_rows_loads, mlp_cs_loads)
zero_regs(0, 128)()
nonce_ready()
rowpat_read(192, 198)
A(f"""s_and_b32 s{S_T0}, s{S_WAVE}, 1
s_lshl_b32 s{S_T0}, s{S_T0}, 13
v_add_u32 v192, s{S_T0}, v192
v_xor_b32 v193, 64, v192
v_lshrrev_b32 v198, 4, v{VL}              ; q
v_bfe_u32 v199, v{VL}, 2, 2               ; rr
v_and_b32 v160, 1, v198
v_lshl_add_u32 v160, v160, 2, v199        ; swizzle s
v_lshl_add_u32 v198, v198, 3, v199        ; k row
v_lshlrev_b32 v198, 8, v198
v_and_b32 v199, 3, v{VL}
v_lshl_add_u32 v198, v199, 3, v198
v_add_u32 v198, {WRING}, v198
s_lshr_b32 s{S_T0}, s{S_WAVE}, 1
s_lshl_b32 s{S_T0}, s{S_T0}, 2""")
for F in range(4):
    A(f"""s_add_u32 s{S_T0+1}, s{S_T0}, {F}
    v_xor_b32 v199, s{S_T0+1}, v160
    v_lshl_add_u32 v{194+F}, v199, 5, v198""")
ts(1, 2)
lg, entry, AX, AW = gemm1_loop("mlp")
A("s_waitcnt lgkmcnt(0)")
ts(3, 2)
tc(13)
if TS:
    A("v_writelane_b32 v255, s48, 10\nv_writelane_b32 v255, s49, 11")
if OPT.get("solo", 0):
    ts_flush(100)
    A("s_endpgm")
A(f"s_setprio {OPT.get('pc2', 3)}")
ER = 128
EC = 144
A(f"""s_and_b32 s{S_T0}, s{S_WAVE}, 1
s_lshl_b32 s{S_T0}, s{S_T0}, 10
s_add_u32 s{S_T0}, s{S_T0}, {M_ROW}
v_and_b32 v192, 15, v{VL}
v_lshlrev_b32 v192, 4, v192
v_add_u32 v192, s{S_T0}, v192
s_lshr_b32 s{S_T0}, s{S_WAVE}, 1
s_lshl_b32 s{S_T0}, s{S_T0}, 8
s_add_u32 s{S_T0}, s{S_T0}, {M_CS}
v_lshrrev_b32 v193, 4, v{VL}
v_lshlrev_b32 v193, 4, v193
v_add_u32 v193, s{S_T0}, v193""")
for T in range(4):
    A(f"ds_read_b128 v[{ER+4*T}:{ER+4*T+3}], v192 offset:{256*T}")
for F in range(4):
    for c in range(2):
        b = EC + (F * 2 + c) * 4
        A(f"ds_read_b128 v[{b}:{b+3}], v193 offset:{c*512+F*64}")
A(f"""s_lshl_b32 s{S_T0}, s{S_C}, 1
s_and_b32 s{S_T0+1}, s{S_WAVE}, 1
s_add_u32 s{S_T0}, s{S_T0}, s{S_T0+1}
s_mul_i32 s{S_T0}, s{S_T0}, 88
s_lshl_b32 s{S_T0+1}, s{S_CB}, 2
s_add_u32 s{S_T0}, s{S_T0}, s{S_T0+1}
s_and_b32 s{S_T0+1}, s{S_WAVE}, 2
s_add_u32 s{S_T0}, s{S_T0}, s{S_T0+1}
s_lshl_b32 s{S_T0}, s{S_T0}, 12
s_add_u32 s{S_T0}, s{S_T0}, {WS_ACT}
v_lshlrev_b32 v194, 4, v{VL}
v_add_u32 v194, s{S_T0}, v194
v_add_u32 v195, 4096, v194
s_waitcnt lgkmcnt(0)""")
if TS == 1:
    ts(16, 2)
ET = 176
EO = 184
n = 0
for u in range(2):
    for T in range(4):
        m = ER + 4 * T
        prs = []
        for F in (2 * u, 2 * u + 1):
            for h in (0, 2):
                g = ((F * 2 + 0) * 4 + T) * 4 + h
                up = ((F * 2 + 1) * 4 + T) * 4 + h
                prs.append((g, up, EC + (F * 2) * 4 + h, EC + (F * 2 + 1) * 4 + h))
        for i, (g, up, cg, cu) in enumerate(prs):
            A(f"v_pk_fma_f32 v[{g}:{g+1}], v[{cg}:{cg+1}], v[{m}:{m+1}], v[{g}:{g+1}] op_sel_hi:[1,0,1] neg_lo:[0,1,0] neg_hi:[0,1,0]")
        for i, (g, up, cg, cu) in enumerate(prs):
            e = ET + 2 * i
            A(f"v_pk_mul_f32 v[{e}:{e+1}], v[{g}:{g+1}], v[{m}:{m+1}] op_sel:[0,1] op_sel_hi:[1,1]")
        for i, (g, up, cg, cu) in enumerate(prs):
            e = ET + 2 * i
            A(f"v_exp_f32 v{e}, v{e}\nv_exp_f32 v{e+1}, v{e+1}")
            A(f"v_pk_fma_f32 v[{up}:{up+1}], v[{cu}:{cu+1}], v[{m}:{m+1}], v[{up}:{up+1}] op_sel_hi:[1,0,1] neg_lo:[0,1,0] neg_hi:[0,1,0]")
        for i, (g, up, cg, cu) in enumerate(prs):
            e = ET + 2 * i
            A(f"v_pk_fma_f32 v[{e}:{e+1}], v[{e}:{e+1}], v[{m+2}:{m+3}], v[{m+2}:{m+3}] op_sel_hi:[1,0,0]")
        for i, (g, up, cg, cu) in enumerate(prs):
            e = ET + 2 * i
            A(f"v_rcp_f32 v{e}, v{e}\nv_rcp_f32 v{e+1}, v{e+1}")
            A(f"v_pk_mul_f32 v[{g}:{g+1}], v[{g}:{g+1}], v[{up}:{up+1}]")
        for i, (g, up, cg, cu) in enumerate(prs):
            e = ET + 2 * i
            A(f"v_pk_mul_f32 v[{g}:{g+1}], v[{g}:{g+1}], v[{e}:{e+1}]")
        o = EO + 4 * (n % 2)
        for i, (g, up, cg, cu) in enumerate(prs):
            A(f"v_cvt_pk_bf16_f32 v{o+i}, v{g}, v{g+1}")
        if TS == 1 and n % 2 == 0:
            ts(17 + n, 2)
        if not OPT.get("nost", 0):
            A(f"global_store_dwordx4 v{194+u}, v[{o}:{o+3}], s[{S_WS}:{S_WS+1}] offset:{1024*T} sc1")
        if TS == 1 and n % 2 == 0:
            ts(18 + n, 2)
        n += 1
ts(4, 2)
gemm2_pre_stat(6, PRE)
A(f"""s_lshl_b32 s{S_T0}, s{S_C}, 1
s_and_b32 s{S_T0+1}, s{S_WAVE}, 1
s_add_u32 s{S_T0}, s{S_T0}, s{S_T0+1}
s_lshl_b32 s{S_T0+1}, s{S_CB}, 1
s_lshr_b32 s{S_T0+2}, s{S_WAVE}, 1
s_add_u32 s{S_T0+1}, s{S_T0+1}, s{S_T0+2}""")
publish_flag(13)
ts(5, 2)
A("s_waitcnt vmcnt(1)")
gemm2_base(6, PRE, 128)
ts(6, 2)
gemm2_compute(6)

A.label("L_ssm_compute")
if PA == 0:
    ssm_rows_loads()
zero_regs(0, 160)()
nonce_ready()
rowpat_read(232, 160)
A(f"""s_lshr_b32 s{S_T0}, s{S_WAVE}, 1
s_mul_i32 s{S_T0}, s{S_T0}, 10240
s_add_u32 s{S_T0}, s{S_T0}, {WRING}
v_add_u32 v234, s{S_T0}, v232
v_xor_b32 v235, 64, v234
s_and_b32 s{S_T0}, s{S_WAVE}, 1
s_lshl_b32 s{S_T0}, s{S_T0}, 13
v_add_u32 v232, s{S_T0}, v232
v_xor_b32 v233, 64, v232""")
ts(1, 2)
lg, entry, AX, AW = gemm1_loop("ssm")
A("s_waitcnt lgkmcnt(0)")
ts(3, 2)
tc(13)
if TS:
    A("v_writelane_b32 v255, s48, 10\nv_writelane_b32 v255, s49, 11")
if OPT.get("solo", 0):
    ts_flush(100)
    A("s_endpgm")
A(f"s_setprio {OPT.get('pc2', 3)}")
def acc(G, c, m, r=0):
    return ((G * 2 + c) * 4 + m) * 4 + r
SM, SR_ = 160, 176
SCS = 192
SLAM = 202
SK = 212
SA = 222
A(f"""s_and_b32 s{S_T0}, s{S_WAVE}, 1
s_lshl_b32 s{S_T0}, s{S_T0}, 8
s_add_u32 s{S_T0}, s{S_T0}, {M_ROW}
v_lshrrev_b32 v{SA}, 4, v{VL}
v_lshlrev_b32 v{SA}, 4, v{SA}
v_add_u32 v{SA}, s{S_T0}, v{SA}
s_lshr_b32 s{S_T0+1}, s{S_WAVE}, 1
s_mul_i32 s{S_T0+1}, s{S_T0+1}, 80
v_and_b32 v{SA+1}, 15, v{VL}
v_add_u32 v{SA+1}, s{S_T0+1}, v{SA+1}
v_lshlrev_b32 v{SA+2}, 2, v{SA+1}
v_add_u32 v{SA+3}, {M_CS}, v{SA+2}
v_lshlrev_b32 v{SA+4}, 3, v{SA+1}
v_add_u32 v{SA+4}, {M_LAM}, v{SA+4}""")
for m in range(4):
    A(f"ds_read_b128 v[{SM+4*m}:{SM+4*m+3}], v{SA} offset:{64*m}")
    A(f"ds_read_b128 v[{SR_+4*m}:{SR_+4*m+3}], v{SA} offset:{512+64*m}")
for G in range(5):
    A(f"ds_read_b32 v{SCS+2*G}, v{SA+3} offset:{64*G}")
    A(f"ds_read_b32 v{SCS+2*G+1}, v{SA+3} offset:{640+64*G}")
for G in range(5):
    A(f"ds_read_b64 v[{SLAM+2*G}:{SLAM+2*G+1}], v{SA+4} offset:{128*G}")
    A(f"ds_read_b64 v[{SK+2*G}:{SK+2*G+1}], v{SA+4} offset:{M_COEF-M_LAM+128*G}")
A(f"""s_and_b32 s{S_T0}, s{S_WAVE}, 1
s_mul_i32 s{S_T0}, s{S_T0}, {8*1280}
s_add_u32 s{S_T0}, s{S_T0}, {E_BASE}
v_lshrrev_b32 v{SA+5}, 4, v{VL}
v_mul_u32_u24 v{SA+5}, 2560, v{SA+5}
v_lshl_add_u32 v{SA+5}, v{SA+2}, 1, v{SA+5}
v_add_u32 v{SA+5}, s{S_T0}, v{SA+5}
v_add_u32 v{SA+7}, 1280, v{SA+5}
s_waitcnt lgkmcnt(0)""")
def pk(op, d, a, b, c=None, sa=None, sb=None, sc=None, neg=None):
    ops = [a, b] + ([c] if c is not None else [])
    sel = [sa, sb] + ([sc] if c is not None else [])
    lo = [0 if s is None else s for s in sel]
    hi = [1 if s is None else s for s in sel]
    t = f"v_pk_{op}_f32 v[{d}:{d+1}], " + ", ".join(f"v[{o}:{o+1}]" for o in ops)
    t += " op_sel:[" + ",".join(map(str, lo)) + "] op_sel_hi:[" + ",".join(map(str, hi)) + "]"
    if neg is not None:
        nn = [1 if i == neg else 0 for i in range(len(ops))]
        t += " neg_lo:[" + ",".join(map(str, nn)) + "] neg_hi:[" + ",".join(map(str, nn)) + "]"
    A(t)
for m in range(4):
    for h in (0, 2):
        for G in range(5):
            for c in range(2):
                a = acc(G, c, m, h)
                pk("fma", a, SM + 4 * m + h, SCS + 2 * G, a, sb=c, neg=1)
        for G in range(5):
            for c in range(2):
                a = acc(G, c, m, h)
                pk("mul", a, a, SR_ + 4 * m + h)
steps = [(m, h) for m in range(4) for h in (0, 2)]
for k in range(1, 8):
    (m, h), (pm, ph) = steps[k], steps[k - 1]
    for G in range(5):
        pk("fma", acc(G, 0, m, h), acc(G, 0, pm, ph), SLAM + 2 * G, acc(G, 0, m, h), sb=0)
        pk("fma", acc(G, 1, m, h), acc(G, 1, pm, ph), SLAM + 2 * G, acc(G, 1, m, h), sb=0)
    for G in range(5):
        pk("fma", acc(G, 0, m, h), acc(G, 1, pm, ph), SLAM + 2 * G, acc(G, 0, m, h), sb=1, neg=1)
        pk("fma", acc(G, 1, m, h), acc(G, 0, pm, ph), SLAM + 2 * G, acc(G, 1, m, h), sb=1)
A(f"ds_read_b32 v250, v248 offset:1024\ns_waitcnt lgkmcnt(0)")
flag_test(17, 250, 248, 1024)
for G in range(5):
    for e in range(2):
        A(f"ds_write2_b32 v{SA+5+2*e}, v{acc(G,0,3,2+e)}, v{acc(G,1,3,2+e)} offset0:{32*G} offset1:{32*G+1}")
A("s_waitcnt lgkmcnt(0)\ns_barrier")
ts(4, 2)
for m, h in steps:
    for G in range(5):
        t = SM + 2 * G
        pk("mul", t, acc(G, 0, m, h), SK + 2 * G, sb=1)
    for G in range(5):
        pk("mul", acc(G, 0, m, h), acc(G, 0, m, h), SK + 2 * G, sb=0)
    for G in range(5):
        pk("fma", acc(G, 0, m, h), acc(G, 1, m, h), SK + 2 * G, acc(G, 0, m, h), sb=1)
    for G in range(5):
        t = SM + 2 * G
        pk("fma", acc(G, 1, m, h), acc(G, 1, m, h), SK + 2 * G, t, sb=0, neg=1)
A(f"""s_mul_i32 s{S_T0}, s{S_WAVE}, 20480
s_add_u32 s{S_T0}, s{S_T0}, {TR_BASE}
v_and_b32 v{SA}, 7, v{VL}
v_bfe_u32 v{SA+1}, v{VL}, 3, 1
v_lshlrev_b32 v{SA+1}, 2, v{SA+1}
v_xor_b32 v{SA}, v{SA}, v{SA+1}                ; f
v_lshrrev_b32 v{SA+1}, 4, v{VL}
v_lshlrev_b32 v{SA+1}, 1, v{SA+1}
v_xor_b32 v{SA}, v{SA}, v{SA+1}                ; (2q) ^ f
v_and_b32 v{SA+1}, 15, v{VL}
v_lshlrev_b32 v{SA+1}, 7, v{SA+1}
v_lshl_add_u32 v{SA}, v{SA}, 4, v{SA+1}
v_add_u32 v{SA}, s{S_T0}, v{SA}                ; e = 0
v_xor_b32 v{SA+1}, 16, v{SA}                   ; e = 1
v_lshrrev_b32 v{SA+2}, 4, v{VL}                ; q
v_bfe_u32 v{SA+3}, v{VL}, 2, 2                 ; rr
v_and_b32 v{SA+4}, 1, v{SA+2}
v_lshl_add_u32 v{SA+4}, v{SA+4}, 2, v{SA+3}
v_bfe_u32 v{SA+6}, v{VL}, 1, 1                 ; cc>>1
v_xor_b32 v{SA+4}, v{SA+4}, v{SA+6}
v_lshl_add_u32 v{SA+2}, v{SA+2}, 3, v{SA+3}    ; row
v_lshlrev_b32 v{SA+2}, 7, v{SA+2}
v_lshl_add_u32 v{SA+2}, v{SA+4}, 4, v{SA+2}
v_and_b32 v{SA+3}, 1, v{VL}
v_lshl_add_u32 v{SA+2}, v{SA+3}, 3, v{SA+2}
v_add_u32 v{SA+2}, s{S_T0}, v{SA+2}""")
TA = 176
for Tq in range(4):
    A(f"v_xor_b32 v{TA+2*Tq}, {32*Tq}, v{SA+2}")
    A(f"v_xor_b32 v{TA+2*Tq+1}, {(32*Tq) ^ 64}, v{SA+2}")
A(f"""s_lshl_b32 s{S_T0}, s{S_C}, 1
s_and_b32 s{S_T0+1}, s{S_WAVE}, 1
s_add_u32 s{S_T0}, s{S_T0}, s{S_T0+1}
s_mul_i32 s{S_T0}, s{S_T0}, 88
s_mul_i32 s{S_T0+1}, s{S_CB}, 10
s_add_u32 s{S_T0}, s{S_T0}, s{S_T0+1}
s_lshr_b32 s{S_T0+1}, s{S_WAVE}, 1
s_mul_i32 s{S_T0+1}, s{S_T0+1}, 5
s_add_u32 s{S_T0}, s{S_T0}, s{S_T0+1}
s_add_u32 s{S_T0}, s{S_T0}, 48
s_lshl_b32 s{S_T0}, s{S_T0}, 12
s_add_u32 s{S_T0}, s{S_T0}, {WS_ACT}
v_lshlrev_b32 v{SA+3}, 4, v{VL}
v_add_u32 v{SA+3}, s{S_T0}, v{SA+3}""")
A("s_barrier")
ts(5, 2)
SW = 184
SW = 182
def W(G, c):
    idx = G * 2 + c
    return (160 + 2 * idx) if idx < 8 else (192 + 2 * (idx - 8))
for G in range(5):
    for c in range(2):
        for e in range(2):
            A(f"ds_read_b32 v{W(G,c)+e}, v{SA+5} offset:{e*1280+c*4+128*G}")
A("s_waitcnt lgkmcnt(0)")
WT = 184
def WTm(G):
    return (184 + 2 * G) if G < 4 else 196
for k, (m, h) in enumerate(steps):
    for G in range(5):
        for c in range(2):
            pk("add", acc(G, c, m, h), acc(G, c, m, h), W(G, c))
    if k < 7:
        for G in range(5):
            pk("mul", WTm(G), W(G, 0), SLAM + 2 * G, sb=1)
        for G in range(5):
            pk("mul", W(G, 0), W(G, 0), SLAM + 2 * G, sb=0)
        for G in range(5):
            pk("fma", W(G, 0), W(G, 1), SLAM + 2 * G, W(G, 0), sb=1)
        for G in range(5):
            pk("fma", W(G, 1), W(G, 1), SLAM + 2 * G, WTm(G), sb=0, neg=2)
PK = 160
for G in range(5):
    for c in range(2):
        o = PK + 8 * c
        for e in range(2):
            for m in range(4):
                A(f"v_cvt_pk_bf16_f32 v{o+4*e+m}, v{acc(G,c,m,e)}, v{acc(G,c,m,2+e)}")
        for e in range(2):
            A(f"ds_write_b128 v{SA+e}, v[{o+4*e}:{o+4*e+3}] offset:{G*4096+c*2048}")
lg = Queue(A, "lgkmcnt", 15)
A("s_waitcnt lgkmcnt(0)")
def trG(G):
    for Tq in range(4):
        b = G * 16 + Tq * 4
        A(f"ds_read_b64_tr_b16 v[{b}:{b+1}], v{TA+2*Tq} offset:{G*4096}")
        A(f"ds_read_b64_tr_b16 v[{b+2}:{b+3}], v{TA+2*Tq+1} offset:{G*4096+512}")
        lg.issue(("t", G, Tq)); lg.issue(("t", G, Tq))
trG(0)
for G in range(5):
    if G < 4:
        trG(G + 1)
    for Tq in range(4):
        lg.wait(("t", G, Tq))
        b = G * 16 + Tq * 4
        A(f"global_store_dwordx4 v{SA+3}, v[{b}:{b+3}], s[{S_WS}:{S_WS+1}] offset:{1024*Tq} sc1")
    if G < 4:
        A(f"v_add_u32 v{SA+3}, 4096, v{SA+3}")
gemm2_pre_stat(2, PRE2)
A(f"""s_lshl_b32 s{S_T0}, s{S_C}, 1
s_and_b32 s{S_T0+1}, s{S_WAVE}, 1
s_add_u32 s{S_T0}, s{S_T0}, s{S_T0+1}
s_lshl_b32 s{S_T0+1}, s{S_CB}, 1
s_lshr_b32 s{S_T0+2}, s{S_WAVE}, 1
s_add_u32 s{S_T0+1}, s{S_T0+1}, s{S_T0+2}
s_add_u32 s{S_T0+1}, s{S_T0+1}, 24""")
publish_flag(5)
ts(6, 2)
A("s_waitcnt vmcnt(1)")
gemm2_base(2, PRE2, 96 + 64)
gemm2_compute(2)

def rowpat_load(dst, tmp, ssm):
    A(f"""v_lshrrev_b32 v{tmp}, 4, v{VL}
    v_xor_b32 v{tmp+1}, v{tmp}, v{VL}
    v_and_b32 v{tmp+1}, 7, v{tmp+1}              ; chunk""")
    if ssm:
        A(f"""v_lshrrev_b32 v{tmp}, 5, v{VL}
        v_lshlrev_b32 v{tmp}, 4, v{tmp}
        v_bfe_u32 v{dst}, v{VL}, 3, 1
        v_lshl_add_u32 v{tmp}, v{dst}, 3, v{tmp}
        v_bfe_u32 v{dst}, v{VL}, 4, 1
        v_add_u32 v{tmp}, v{tmp}, v{dst}""")
        up = 32
    else:
        A(f"v_lshrrev_b32 v{tmp}, 3, v{VL}")
        up = 8
    A(f"""v_mul_u32_u24 v{dst}, 1280, v{tmp}
    v_lshl_add_u32 v{dst}, v{tmp+1}, 4, v{dst}
    v_xor_b32 v{dst+1}, 64, v{dst}
    v_add_u32 v{dst+1}, {up*1280-1024}, v{dst+1}""")

LFP, LFV, LFD, LPA, LPD = 240, 241, 242, 243, 244
S_U, S_XS, S_S2 = 83, 84, 87
S_RET, S_SUB = 90, 30
class NoQ:
    def issue(self, t): pass
    def wait(self, t): pass
NOQ = NoQ()
CAP = OPT.get("cap", 6)
def cap(n=None):
    A(f"s_waitcnt vmcnt({CAP if n is None else n})")
class CapQ:
    def issue(self, t):
        cap()
    def wait(self, t): pass
CAPQ = CapQ()
class Jobs:
    def __init__(self):
        self.q = []
    def add(self, g):
        self.q.append(g)
    def step(self, n=1):
        if not self.q:
            return
        A(f"s_setprio {OPT.get('pls', 3)}")
        while n > 0 and self.q:
            try:
                next(self.q[0])
            except StopIteration:
                self.q.pop(0)
            n -= 1
        A("s_setprio 0")
def run(g):
    for _ in g:
        pass

def declare(sreg=None, imm=None):
    A(f"v_mov_b32 v{LFV}, {'s%d' % sreg if sreg is not None else imm}\nds_write_b32 v{VFO}, v{LFV}")
def wait_free(sreg):
    A(f"ds_read_b32 v{LFD}, v{LFP}\ns_waitcnt lgkmcnt(0)")
    flag_test(f"s{sreg}", LFD, LFP, 0, nap=OPT.get("nap", 0))
def stamp(idx_sreg, add):
    if TS:
        A(f"""s_memrealtime s[{S_TS}:{S_TS+1}]
        s_add_u32 m0, s{idx_sreg}, {add}
        s_waitcnt lgkmcnt(0)
        v_writelane_b32 v255, s{S_TS}, m0""")

def poll_setup():
    A(f"""s_lshl_b32 s{S_T0}, s{S_HB2}, 7
    s_add_u32 s{S_T0}, s{S_T0}, {WS_FLAG+96}
    v_and_b32 v{LPA}, 7, v{VL}
    v_lshlrev_b32 v{LPA}, 2, v{LPA}
    v_add_u32 v{LPA}, s{S_T0}, v{LPA}""")
def poll_issue():
    A(f"global_load_dword v{LPD}, v{LPA}, s[{S_WS}:{S_WS+1}] sc1")
def poll_check():
    lo = A.newlabel("L_pk")
    A(f"""v_cmp_ne_u32 vcc, s{S_NONCE}, v{LPD}
    s_cbranch_vccnz {lo}
    v_mov_b32 v{LFV}, 3
    ds_write_b32 v{VFO}, v{LFV} offset:2048""")
    A.label(lo)

VW2, VC2 = 12, 15
def g2_setup(NU, tmp):
    CH = 2 * NU
    magic = (65536 + CH - 1) // CH
    srd(SRD_W2, S_W2, 1966080)
    srd(SRD_C, S_CRE, 819200)
    srd(SRD_T, S_CIM, 819200)
    A(f"s_lshl_b32 s{S_T0}, s{S_DCOL}, 1")
    for i in range(3 if NU == 6 else 1):
        A(f"""v_add_u32 v{tmp}, {64*i}, v{VL}               ; n
        v_mul_u32_u24 v{tmp+1}, {magic}, v{tmp}
        v_lshrrev_b32 v{tmp+1}, 16, v{tmp+1}           ; row
        v_mul_u32_u24 v{tmp+2}, {CH}, v{tmp+1}
        v_sub_u32 v{tmp}, v{tmp}, v{tmp+2}             ; pos
        v_bfe_u32 v{tmp+2}, v{tmp+1}, 2, 1
        v_lshlrev_b32 v{tmp+2}, 1, v{tmp+2}
        v_xor_b32 v{tmp}, v{tmp}, v{tmp+2}
        v_mul_u32_u24 v{tmp+1}, 1280, v{tmp+1}
        v_lshl_add_u32 v{tmp}, v{tmp}, 4, v{tmp+1}
        v_add_u32 v{VW2+i}, s{S_T0}, v{tmp}""")
    for n in range(192):
        assert (n * magic) >> 16 == n // CH
    rowpat_load(VC2, tmp, False)
    A(f"""s_mul_i32 s{S_T0}, s{S_DCOL}, 1280
    v_add_u32 v{VC2}, s{S_T0}, v{VC2}
    v_add_u32 v{VC2+1}, s{S_T0}, v{VC2+1}
    s_add_u32 s{S_S2}, s{S_LW}, 1
    s_and_b32 s{S_S2}, s{S_S2}, 3
    s_add_u32 s{S_KS}, s{S_S2}, s{S_R2A}
    s_cmp_ge_u32 s{S_KS}, 12
    s_cselect_b32 s{S_T0}, 12, 0
    s_sub_u32 s{S_KS}, s{S_KS}, s{S_T0}
    s_mul_i32 s{S_KS}, s{S_KS}, {128*1280}
    v_lshlrev_b32 v236, 4, v{VL}""")
    poll_setup()

def g2_pieces(NU, k):
    out = []
    if k < 3:
        per = 3 if NU == 6 else 1
        for i in range(4 * NU):
            out.append((VW2 + i % per, SRD_W2, (i // per) * 16 * 1280, 0))
    else:
        for i in range(4 * NU):
            mat, ii = i // (2 * NU), i % (2 * NU)
            out.append((VC2 + ii % 2, SRD_T if mat else SRD_C, (ii // 2) * 16 * 1280, 1024 * (ii % 2)))
    return out
def g2_next(k):
    if k == 2:
        A(f"""s_and_b32 s{S_KS}, s{S_S2}, 3
        s_add_u32 s{S_KS}, s{S_KS}, s{S_R2B}
        s_cmp_ge_u32 s{S_KS}, 10
        s_cselect_b32 s{S_T0}, 10, 0
        s_sub_u32 s{S_KS}, s{S_KS}, s{S_T0}
        s_lshl_b32 s{S_KS}, s{S_KS}, 7""")
    else:
        step, n = (128 * 1280, 12) if k < 2 else (128, 10)
        A(f"""s_add_u32 s{S_KS}, s{S_KS}, {4*step}
        s_cmp_ge_u32 s{S_KS}, {n*step}
        s_cselect_b32 s{S_T0}, {n*step}, 0
        s_sub_u32 s{S_KS}, s{S_KS}, s{S_T0}""")
THR = OPT.get("thr", 6)
def g2_to_regs_gen(k, thr, chunk):
    base = 40 + (k % 2) * 96
    last = None
    for i, (v, sd, ex, io) in enumerate(g2_pieces(6, k)):
        if i and i % chunk == 0:
            yield
            last = None
        if ex != last:
            A(f"s_add_u32 s{S_T0+7}, s{S_KS}, {ex}")
            last = ex
        if thr:
            A(f"s_waitcnt vmcnt({thr})")
        A(f"buffer_load_dwordx4 v[{base+4*i}:{base+4*i+3}], v{v}, s[{sd}:{sd+3}], s{S_T0+7} offen offset:{io}")
    g2_next(k)
def g2_to_regs(k, thr=0):
    run(g2_to_regs_gen(k, thr, 99))

def bump_epoch(T):
    lr, lo = A.newlabel("L_ep"), A.newlabel("L_ep")
    ld = A.newlabel("L_ep")
    A(f"""s_cmp_lg_u32 s2, 0
    s_cbranch_scc1 {ld}
    s_cmp_lg_u32 s{S_LW}, 2
    s_cbranch_scc1 {ld}
    v_lshlrev_b32 v{T}, 4, v{VL}
    v_add_u32 v{T}, {WS_FLAG}, v{T}""")
    A.label(lr)
    for i in range(4):
        A(f"global_load_dwordx4 v[{T+4+4*i}:{T+7+4*i}], v{T}, s[{S_WS}:{S_WS+1}] offset:{1024*i} sc1")
    A(f"s_waitcnt vmcnt(0)\ns_mov_b64 s[{S_M0}:{S_M0+1}], 0")
    for i in range(16):
        A(f"v_cmp_ne_u32 vcc, s{S_NONCE}, v{T+4+i}\ns_nop 1\ns_or_b64 s[{S_M0}:{S_M0+1}], s[{S_M0}:{S_M0+1}], vcc")
    A(f"s_cmp_eq_u64 s[{S_M0}:{S_M0+1}], 0\ns_cbranch_scc1 {lo}")
    spin_tail(lr, lo, 4)
    A.label(lo)
    A(f"""v_mov_b32 v{T}, {WS_E}
    v_mov_b32 v{T+1}, s{S_NONCE}
    s_mov_b64 exec, 1
    global_store_dword v{T}, v{T+1}, s[{S_WS}:{S_WS+1}] sc1
    s_mov_b64 exec, -1""")
    A.label(ld)

def prefetch(vm, T, tag):
    if not OPT["pf"]:
        return
    if not OPT.get("pfc", 0):
      for i in range(2):
        vm.issue("pf")
      A(f"""s_getpc_b64 s[{S_M0}:{S_M0+1}]
    L_pc{tag}:
    s_sub_u32 s{S_M0}, s{S_M0}, L_pc{tag}-L_code_start
    s_subb_u32 s{S_M0+1}, s{S_M0+1}, 0
    s_lshl_b32 s{S_T0}, s{S_LW}, 13
    v_lshlrev_b32 v{T}, 7, v{VL}
    v_add_u32 v{T}, s{S_T0}, v{T}
    v_add_u32 v{T+1}, 32768, v{T}
    v_min_u32 v{T+1}, L_code_end-L_code_start-8, v{T+1}
    global_load_dword v250, v{T}, s[{S_M0}:{S_M0+1}]
    global_load_dword v249, v{T+1}, s[{S_M0}:{S_M0+1}]""")
    A(f"""s_cmp_ge_u32 s{S_LW}, 2
    s_cselect_b32 s{S_T0}, 49, 59
    s_mov_b32 s{S_T0+1}, 7680
    s_cmov_b32 s{S_T0+1}, 3200
    s_cselect_b32 s{S_T0+4}, s{S_CRE}, s{S_W2}
    s_cselect_b32 s{S_T0+5}, s{S_CRE+1}, s{S_W2+1}
    s_mul_i32 s{S_T0+1}, s{S_T0+1}, s2
    s_cmp_eq_u32 s{S_LW}, 1
    s_cselect_b32 s{S_T0+2}, 3840, 0
    s_add_u32 s{S_T0+1}, s{S_T0+1}, s{S_T0+2}
    s_cmp_eq_u32 s{S_LW}, 3
    s_cselect_b32 s{S_T0+4}, s{S_CIM}, s{S_T0+4}
    s_cselect_b32 s{S_T0+5}, s{S_CIM+1}, s{S_T0+5}
    v_min_u32 v{T}, s{S_T0}, v{VL}
    v_lshlrev_b32 v{T}, 6, v{T}
    v_add_u32 v{T}, s{S_T0+1}, v{T}
    global_load_dword v248, v{T}, s[{S_T0+4}:{S_T0+5}]""")
    vm.issue("pf")


def head_begin():
    return len(A.lines)
def head_end(mark):
    HEADS.extend(A.lines[mark:])
    del A.lines[mark:]

def issue_sub(kind):
    mlp = kind == "mlp"
    SLOT = 16384 if mlp else 20480
    A.label(f"L_sub_{kind}")
    A(f"s_sub_u32 s{S_T0+6}, s{S_U}, 4\ns_waitcnt lgkmcnt(0)")
    flag_test(f"s{S_T0+6}", LFD, LFP, 0)
    A.label(f"L_subn_{kind}")
    stamp(S_U, 16)
    lx = A.newlabel("L_is")
    A(f"s_bitcmp1_b32 s{S_U}, 0\ns_cbranch_scc1 {lx}")
    A(f"s_add_u32 m0, s{S_XS}, s{S_T0+9}")
    for h in range(4):
        cap()
        A(f"buffer_load_dwordx4 v{2+h}, s[{SRD_X}:{SRD_X+3}], s{S_KX} offen offset:{1024*h} lds")
    A(f"""s_add_u32 s{S_XS}, s{S_XS}, 16384
    s_cmp_eq_u32 s{S_XS}, {3*16384}
    s_cselect_b32 s{S_XS}, 0, s{S_XS}""")
    if not mlp:
        A(f"s_add_u32 m0, s{S_SLOT}, s{S_T0+8}")
        for h in range(4):
            cap()
            A(f"buffer_load_dwordx4 v{6+h}, s[{SRD_WA}:{SRD_WA+3}], s{S_KX} offen offset:{1024*h} lds")
        A(f"s_add_u32 m0, m0, 4096")
        cap()
        A(f"buffer_load_dwordx4 v10, s[{SRD_WA}:{SRD_WA+3}], s{S_KX} offen lds\ns_branch {lx}b")
    A.label(lx)
    if mlp:
        for mat, sd in enumerate((SRD_WA, SRD_WB)):
            A(f"s_add_u32 m0, s{S_SLOT}, s{S_T0+8}" if mat == 0 else "s_add_u32 m0, m0, 8192")
            for h in range(2):
                cap()
                A(f"buffer_load_dwordx4 v{6+h}, s[{sd}:{sd+3}], s{S_KW} offen offset:{1024*h} lds")
        A(f"""s_add_u32 s{S_KW}, s{S_KW}, {32*3072}
        s_cmp_eq_u32 s{S_KW}, {20*32*3072}
        s_cselect_b32 s{S_KW}, 0, s{S_KW}
        s_bitcmp1_b32 s{S_U}, 0
        s_cbranch_scc0 {lx}b""")
    else:
        A(f"s_add_u32 m0, s{S_SLOT}, s{S_T0+8}")
        for h in range(4):
            cap()
            A(f"buffer_load_dwordx4 v{6+h}, s[{SRD_WB}:{SRD_WB+3}], s{S_KX} offen offset:{1024*h} lds")
        A(f"s_add_u32 m0, m0, 4096")
        cap()
        A(f"buffer_load_dwordx4 v10, s[{SRD_WB}:{SRD_WB+3}], s{S_KX} offen lds")
    A(f"""s_add_u32 s{S_KX}, s{S_KX}, 128
    s_cmp_eq_u32 s{S_KX}, 1280
    s_cselect_b32 s{S_KX}, 0, s{S_KX}""")
    A.label(f"{lx}b")
    A(f"""s_add_u32 s{S_U}, s{S_U}, 1
    s_lshl_b32 s{S_T0+7}, s{S_U}, 2
    s_mov_b32 m0, s{S_FM}
    ds_read_b32 v{LFD}, v{LFP}
    s_add_u32 s{S_SLOT}, s{S_SLOT}, {SLOT}
    s_cmp_eq_u32 s{S_SLOT}, {5*SLOT}
    s_cselect_b32 s{S_SLOT}, 0, s{S_SLOT}""")
    cap()
    A(f"""buffer_load_dword v{VZ}, s[{SRD_FL}:{SRD_FL+3}], s{S_T0+7} offen lds
    s_setpc_b64 s[{S_RET}:{S_RET+1}]""")
    flush_slow()
SRD_FL = 20
S_FM = 3
def call_sub(check=True):
    if check:
        A(f"s_swappc_b64 s[{S_RET}:{S_RET+1}], s[{S_SUB}:{S_SUB+1}]")
    else:
        A(f"s_swappc_b64 s[{S_RET}:{S_RET+1}], s[{S_SUBN}:{S_SUBN+1}]")
S_SUBN = 32
def declare_dma(sreg):
    A(f"""s_lshl_b32 s{S_T0+7}, s{sreg}, 2
    s_mov_b32 m0, s{S_FM}""")
    cap()
    A(f"buffer_load_dword v{VZ}, s[{SRD_FL}:{SRD_FL+3}], s{S_T0+7} offen lds")

def head_rest(kind):
    mlp = kind == "mlp"
    SLOT = 16384 if mlp else 20480
    table_store(SRD_FL, LFV)
    flag_init(FLG, S_LW, LFP, FLG + 1024, True)
    A(f"""s_mov_b32 s{S_FM}, s{S_T0}
    s_getpc_b64 s[{S_SUB}:{S_SUB+1}]
    L_gp_{kind}:
    s_add_u32 s{S_SUBN}, s{S_SUB}, L_subn_{kind}-L_gp_{kind}
    s_addc_u32 s{S_SUBN+1}, s{S_SUB+1}, 0
    s_add_u32 s{S_SUB}, s{S_SUB}, L_sub_{kind}-L_gp_{kind}
    s_addc_u32 s{S_SUB+1}, s{S_SUB+1}, 0
    s_mov_b32 s{S_U}, 2
    s_mov_b32 s{S_SLOT}, {2*SLOT}
    s_mov_b32 s{S_XS}, 16384
    s_mov_b32 m0, s{S_FM}
    s_mov_b32 s{S_T0+7}, 4
    buffer_load_dword v{VZ}, s[{SRD_FL}:{SRD_FL+3}], s{S_T0+7} offen lds""")
    if mlp:
        A(f"s_add_u32 s{S_KW}, s{S_KW}, {32*3072}")
        for mat, sd in enumerate((SRD_WA, SRD_WB)):
            A(f"s_add_u32 m0, s{S_T0+8}, {SLOT + mat*8192}\ns_nop 0")
            for h in range(2):
                A(f"buffer_load_dwordx4 v{6+h}, s[{sd}:{sd+3}], s{S_KW} offen offset:{1024*h} lds")
        A(f"""s_add_u32 s{S_KW}, s{S_KW}, {32*3072}
        s_cmp_eq_u32 s{S_KW}, {20*32*3072}
        s_cselect_b32 s{S_KW}, 0, s{S_KW}""")
    else:
        A(f"s_add_u32 m0, s{S_T0+8}, {SLOT}\ns_nop 0")
        for h in range(4):
            A(f"buffer_load_dwordx4 v{6+h}, s[{SRD_WB}:{SRD_WB+3}], s{S_KX} offen offset:{1024*h} lds")
        A(f"s_add_u32 m0, m0, 4096\ns_nop 0\nbuffer_load_dwordx4 v10, s[{SRD_WB}:{SRD_WB+3}], s{S_KX} offen lds")
    A(f"""s_add_u32 s{S_KX}, s{S_KX}, 128
    s_cmp_eq_u32 s{S_KX}, 1280
    s_cselect_b32 s{S_KX}, 0, s{S_KX}""")
    late_scalars()
    declare_dma(S_U)
    ts(1, 2)
    for u in range(2, 5):
        call_sub(False)
    if OPT.get("solo", 0) >= 2:
        for u in range(5, 20):
            call_sub()
        A(f"s_mov_b32 s{S_T0+6}, 21")
        declare_dma(S_T0 + 6)
        A("s_waitcnt vmcnt(0)")
        ts_flush(100)
        A("s_endpgm")
    A(f"s_branch L_{kind}_loader")
    issue_sub(kind)

GW = OPT.get('gw', 19)
def g1_main(jobs, gran_loads_, gran_work, nstep, early=None):
    for u in range(5, 20):
        if u == GW:
            A(f"s_setprio {OPT.get('pls', 3)}")
            gran_work()
            A("s_setprio 0")
        call_sub()
        if u >= 6 and u % 2 == 0 or u >= 10:
            jobs.step(nstep)
        if early and u >= 20 - early.n:
            early.step()
        if u == GW - 3:
            assert not jobs.q
            gran_loads_()
    A(f"s_add_u32 s{S_T0+6}, s{S_S2}, 21")
    declare_dma(S_T0 + 6)

def finish():
    A("s_barrier")
    bump_epoch(200)
    ts(9, 2)
    ts_flush(100)
    A("s_endpgm")
    flush_slow()

mark = head_begin()
A(f"s_cmp_eq_u32 s{S_J}, 0\ns_cbranch_scc1 L_ssm_head")
rowpat_load(2, 10, False)
A(f"""s_mul_i32 s{S_T0}, s{S_C}, 163840
s_mul_i32 s{S_T0+1}, s{S_LW}, {32*1280}
s_add_u32 s{S_T0}, s{S_T0}, s{S_T0+1}
v_add_u32 v2, s{S_T0}, v2
v_add_u32 v3, s{S_T0}, v3
v_add_u32 v4, {16*1280-2048}, v2
v_add_u32 v5, {16*1280-2048}, v3
v_lshrrev_b32 v10, 4, v{VL}
s_and_b32 s{S_T0}, s{S_LW}, 1
s_lshl_b32 s{S_T0}, s{S_T0}, 2
v_or_b32 v11, s{S_T0}, v10                ; swizzle
v_lshlrev_b32 v11, 1, v11
v_and_b32 v6, 15, v{VL}
v_xor_b32 v11, v11, v6
v_mul_u32_u24 v10, 3072, v10
v_lshl_add_u32 v10, v11, 4, v10
s_mul_i32 s{S_T0}, s{S_LW}, {8*3072}
s_lshl_b32 s{S_T0+1}, s{S_CB}, 8
s_add_u32 s{S_T0}, s{S_T0}, s{S_T0+1}
v_add_u32 v6, s{S_T0}, v10
v_add_u32 v7, {4*3072-1024}, v6
s_lshl_b32 s{S_KX}, s{S_ROT}, 7
s_mul_i32 s{S_KW}, s{S_ROT}, {64*3072}
s_lshl_b32 s{S_T0+9}, s{S_LW}, 12
s_lshl_b32 s{S_T0+8}, s{S_LW}, 11
s_add_u32 s{S_T0+8}, s{S_T0+8}, {WRING}
s_mov_b32 m0, s{S_T0+9}
s_waitcnt lgkmcnt(0)""")
srd(SRD_X, S_X, 2621440)
for h in range(4):
    A(f"buffer_load_dwordx4 v{2+h}, s[{SRD_X}:{SRD_X+3}], s{S_KX} offen offset:{1024*h} lds")
srd(SRD_WA, S_W1, 1966080)
srd(SRD_WB, S_W3, 1966080)
for mat, sd in enumerate((SRD_WA, SRD_WB)):
    A(f"s_add_u32 m0, s{S_T0+8}, {mat*8192}\ns_nop 0")
    for h in range(2):
        A(f"buffer_load_dwordx4 v{6+h}, s[{sd}:{sd+3}], s{S_KW} offen offset:{1024*h} lds")
head_rest("mlp")
head_end(mark)
A.label("L_mlp_loader")
vm = NOQ
GA, GD = 18, 22
def gran_loads():
    for i in range(4):
        cap()
        A(f"global_load_dwordx4 v[{GD+4*i}:{GD+3+4*i}], v{GA+i}, s[{S_WS}:{S_WS+1}] sc1")
def mlp_setup3():
    A(f"""s_mul_i32 s{S_T0}, s{S_LW}, {1536*8}
    s_lshl_b32 s{S_T0+1}, s{S_CB}, 10
    s_add_u32 s{S_T0}, s{S_T0}, s{S_T0+1}
    s_add_u32 s{S_T0}, s{S_T0}, {WS_CSW}
    s_lshl_b32 s{S_T0+1}, s{S_C}, 10
    s_add_u32 s{S_T0+1}, s{S_T0+1}, {WS_STAT}
    s_cmp_ge_u32 s{S_LW}, 2
    s_cselect_b32 s{S_T0}, s{S_T0+1}, s{S_T0}
    s_cselect_b32 s{S_T0+1}, 0, {3072*8}
    v_lshlrev_b32 v{GA}, 4, v{VL}
    v_add_u32 v{GA}, s{S_T0}, v{GA}
    v_add_u32 v{GA+1}, s{S_T0+1}, v{GA}
    v_add_u32 v{GA+2}, s{S_T0+1}, v{GA+1}
    v_add_u32 v{GA+3}, s{S_T0+1}, v{GA+2}""")
def mlp_gran():
    if True:
        vm.wait("gran")
        lr, lo, lskip, lstat = A.newlabel("L_gr"), A.newlabel("L_gr"), A.newlabel("L_gr"), A.newlabel("L_gr")
        A(f"s_cmp_eq_u32 s{S_LW}, 2\ns_cbranch_scc1 {lskip}")
        A.label(lr)
        A(f"s_mov_b64 s[{S_M0}:{S_M0+1}], 0")
        for i in range(8):
            A(f"v_cmp_ne_u32 vcc, s{S_NONCE}, v{GD+1+2*i}\ns_nop 1\ns_or_b64 s[{S_M0}:{S_M0+1}], s[{S_M0}:{S_M0+1}], vcc")
        A(f"s_cmp_eq_u64 s[{S_M0}:{S_M0+1}], 0\ns_cbranch_scc1 {lo}")
        gran_loads()
        A("s_waitcnt vmcnt(0)")
        spin_tail(lr, lo, 5)
        A.label(lo)
        A(f"s_cmp_eq_u32 s{S_LW}, 3\ns_cbranch_scc1 {lstat}")
        A(f"""v_add_f32 v{GD}, v{GD}, v{GD+4}
        v_add_f32 v{GD+2}, v{GD+2}, v{GD+6}
        v_add_f32 v{GD+8}, v{GD+8}, v{GD+12}
        v_add_f32 v{GD+10}, v{GD+10}, v{GD+14}
        v_add_f32 v{GD}, v{GD}, v{GD+8}
        v_add_f32 v{GD+1}, v{GD+2}, v{GD+10}
        s_lshl_b32 s{S_T0}, s{S_LW}, 9
        s_add_u32 s{S_T0}, s{S_T0}, {M_CS}
        v_lshlrev_b32 v{GD+2}, 3, v{VL}
        v_add_u32 v{GD+2}, s{S_T0}, v{GD+2}
        ds_write_b64 v{GD+2}, v[{GD}:{GD+1}]
        s_branch {lskip}""")
        A.label(lstat)
        for hrow, p in ((0, GD), (1, GD + 2)):
            o = GD + 4 + 4 * hrow
            A(f"""v_and_b32 v{o+2}, 0xffff0000, v{p}
            v_lshlrev_b32 v{o}, 16, v{p}
            v_rcp_f32 v{o+1}, v{o+2}
            v_mul_f32 v{o+2}, v{o+2}, v{o+2}
            v_mul_f32 v{o+1}, {NLOG2E}, v{o+1}""")
        A(f"""v_lshlrev_b32 v{GD+2}, 5, v{VL}
        v_add_u32 v{GD+2}, {M_ROW}, v{GD+2}
        ds_write_b128 v{GD+2}, v[{GD+4}:{GD+7}]
        ds_write_b128 v{GD+2}, v[{GD+8}:{GD+11}] offset:16""")
        A.label(lskip)
        A("s_waitcnt lgkmcnt(0)")

nonce_ready()
def only2(fn):
    l = A.newlabel("L_nc")
    A(f"s_cmp_lg_u32 s{S_LW}, 2\ns_cbranch_scc1 {l}")
    fn()
    A.label(l)
    return
    yield
def one(fn):
    fn()
    return
    yield
jobs = Jobs()
jobs.add(one(mlp_setup3))
jobs.add(one(lambda: g2_setup(6, 232)))
def mg():
    mlp_gran()
class Early:
    def __init__(self):
        self.ch = OPT.get("ech", 6)
        self.n = OPT.get("en", 0)
        self.q = [g2_to_regs_gen(0, OPT.get('thr0', CAP), self.ch)]
    def step(self):
        if self.q:
            try:
                next(self.q[0])
            except StopIteration:
                self.q.pop(0)
early = Early()
g1_main(jobs, gran_loads, mg, 1, early)
ts(47, 2)
while early.q:
    if len(early.q) == 1 and not getattr(early, "mid", 0):
        early.mid = 1
        ts(48, 2)
    early.step()
ts(49, 2)
A(f"s_setprio {OPT.get('pl2', 0)}")
A(f"s_mul_i32 s{S_SLOT}, s{S_S2}, 24576")
for k in range(6):
    lskip = A.newlabel("L_k")
    if k == 5:
        A(f"s_cmp_ge_u32 s{S_S2}, 22\ns_cbranch_scc1 {lskip}")
    A(f"s_add_u32 s{S_T0+6}, s{S_S2}, 15\ns_max_u32 s{S_T0+6}, s{S_T0+6}, 20")
    wait_free(S_T0 + 6)
    polled = k == 2
    if k == 4:
        l5 = A.newlabel("L_k")
        A(f"s_cmp_lt_u32 s{S_S2}, 18\ns_cbranch_scc1 {l5}\ns_waitcnt vmcnt(0)")
        A.label(l5)
    A(f"s_waitcnt vmcnt({0 if k in (0, 5) else 24})")
    if polled:
        poll_issue()
    base = 40 + (k % 2) * 96
    A(f"v_add_u32 v237, s{S_SLOT}, v236")
    for i in range(24):
        A(f"ds_write_b128 v237, v[{base+4*i}:{base+4*i+3}] offset:{1024*i}")
    A(f"""s_add_u32 s{S_S2}, s{S_S2}, 4
    s_add_u32 s{S_T0+6}, s{S_S2}, 21""")
    declare(S_T0 + 6)
    ts(40 + k, 2)
    if polled:
        A("s_waitcnt vmcnt(0)")
        poll_check()
    A(f"""s_add_u32 s{S_SLOT}, s{S_SLOT}, {4*24576}
    s_cmp_ge_u32 s{S_SLOT}, {6*24576}
    s_cselect_b32 s{S_T0}, {6*24576}, 0
    s_sub_u32 s{S_SLOT}, s{S_SLOT}, s{S_T0}""")
    if k == 0:
        g2_to_regs(1, OPT.get('thr1', CAP))
    if k + 2 <= 5:
        l6 = A.newlabel("L_k")
        if k == 3:
            A(f"s_cmp_ge_u32 s{S_S2}, 18\ns_cbranch_scc1 {l6}")
        A("s_waitcnt lgkmcnt(0)")
        g2_to_regs(k + 2, THR if k < 2 else OPT.get('thr2', 6))
        ts(50 + k, 2)
        A.label(l6)
    A.label(lskip)
finish()

mark = head_begin()
A.label("L_ssm_head")
rowpat_load(2, 14, True)
rowpat_load(6, 14, False)
A(f"""s_mul_i32 s{S_T0}, s{S_C}, 163840
s_lshr_b32 s{S_T0+1}, s{S_LW}, 1
s_mul_i32 s{S_T0+1}, s{S_T0+1}, {64*1280}
s_add_u32 s{S_T0}, s{S_T0}, s{S_T0+1}
s_and_b32 s{S_T0+1}, s{S_LW}, 1
s_mul_i32 s{S_T0+1}, s{S_T0+1}, {4*1280}
s_add_u32 s{S_T0}, s{S_T0}, s{S_T0+1}
v_add_u32 v2, s{S_T0}, v2
v_add_u32 v3, s{S_T0}, v3
v_add_u32 v4, {2*1280-2048}, v2
v_add_u32 v5, {2*1280-2048}, v3""")
A(f"""v_add_u32 v7, {1024-8*1280 & 0xffffffff}, v7
s_mul_i32 s{S_T0}, s{S_CB}, {160*1280}
s_mul_i32 s{S_T0+1}, s{S_LW}, {40*1280}
s_add_u32 s{S_T0}, s{S_T0}, s{S_T0+1}
s_bitcmp1_b32 s{S_LW}, 0
s_cselect_b64 vcc, -1, 0
v_add_u32 v6, s{S_T0}, v6
v_add_u32 v7, s{S_T0}, v7
v_cndmask_b32 v12, v6, v7, vcc
v_cndmask_b32 v13, v7, v6, vcc
v_mov_b32 v6, v12
v_add_u32 v7, {8*1280-1024}, v13
v_add_u32 v8, {16*1280-2048}, v12
v_add_u32 v9, {24*1280-3072}, v13
v_add_u32 v10, {32*1280}, v12
s_lshl_b32 s{S_KX}, s{S_ROT}, 7
s_lshl_b32 s{S_T0+9}, s{S_LW}, 12
s_mul_i32 s{S_T0+8}, s{S_LW}, 5120
s_add_u32 s{S_T0+8}, s{S_T0+8}, {WRING}
s_mov_b32 m0, s{S_T0+9}
s_waitcnt lgkmcnt(0)""")
srd(SRD_X, S_X, 2621440)
for h in range(4):
    A(f"buffer_load_dwordx4 v{2+h}, s[{SRD_X}:{SRD_X+3}], s{S_KX} offen offset:{1024*h} lds")
srd(SRD_WA, S_BRE, 819200)
srd(SRD_WB, S_BIM, 819200)
A(f"s_mov_b32 m0, s{S_T0+8}\ns_nop 0")
for h in range(4):
    A(f"buffer_load_dwordx4 v{6+h}, s[{SRD_WA}:{SRD_WA+3}], s{S_KX} offen offset:{1024*h} lds")
A(f"s_add_u32 m0, m0, 4096\ns_nop 0\nbuffer_load_dwordx4 v10, s[{SRD_WA}:{SRD_WA+3}], s{S_KX} offen lds")
head_rest("ssm")
head_end(mark)
A.label("L_ssm_loader")
CN = 100
LR, LI = 102, 103
L8, L128, KL = 104, 106, 108
def const_loads():
    A(f"""s_lshl_b32 s{S_T0}, s{S_LW}, 6
    v_add_u32 v{CN}, s{S_T0}, v{VL}
    v_min_u32 v{CN}, 159, v{CN}
    s_mul_i32 s{S_T0}, s{S_CB}, 160
    v_add_u32 v110, s{S_T0}, v{CN}
    v_lshlrev_b32 v110, 1, v110
    global_load_ushort v111, v110, s[{S_LRE}:{S_LRE+1}]
    global_load_ushort v112, v110, s[{S_LIM}:{S_LIM+1}]
    global_load_ushort v113, v110, s[{S_LDT}:{S_LDT+1}]""")
def ssm_setup3():
  A(f"""v_cmp_le_u32 vcc, 80, v{CN}
v_mov_b32 v41, 0
v_mov_b32 v42, {640-160}
v_cndmask_b32 v41, v41, v42, vcc
v_lshl_add_u32 v41, v{CN}, 1, v41
s_mul_i32 s{S_T0}, s{S_CB}, 160
v_add_u32 v41, s{S_T0}, v41
v_lshlrev_b32 v41, 3, v41
v_add_u32 v41, {WS_CSB}, v41
s_lshl_b32 s{S_T0+1}, s{S_C}, 10
s_add_u32 s{S_T0+1}, s{S_T0+1}, {WS_STAT}
v_lshlrev_b32 v40, 4, v{VL}
v_add_u32 v40, s{S_T0+1}, v40
s_cmp_eq_u32 s{S_LW}, 3
s_cselect_b64 vcc, -1, 0
s_nop 1
v_cndmask_b32 v40, v41, v40, vcc""")
def cmul(d, a, b, t):
    A(f"""v_mul_f32 v{t}, v{a+1}, v{b+1}
    v_mul_f32 v{t+1}, v{a+1}, v{b}
    v_fma_f32 v{t}, v{a}, v{b}, -v{t}
    v_fma_f32 v{d+1}, v{a}, v{b+1}, v{t+1}
    v_mov_b32 v{d}, v{t}""")
def ssm_consts():
    A(f"""v_lshlrev_b32 v111, 16, v111
    v_lshlrev_b32 v112, 16, v112
    v_lshlrev_b32 v113, 16, v113
    v_mul_f32 v113, {LOG2E}, v113
    v_exp_f32 v113, v113
    v_mul_f32 v114, v111, v111
    v_fma_f32 v114, v112, v112, v114
    v_cvt_pk_bf16_f32 v113, v113, v113
    v_lshlrev_b32 v113, 16, v113              ; dt
    v_rcp_f32 v114, v114
    v_mul_f32 v115, v113, v111
    v_mul_f32 v116, v113, v112
    v_mul_f32 v115, {LOG2E}, v115
    v_mul_f32 v116, 0.15915494, v116
    v_exp_f32 v115, v115
    v_rndne_f32 v117, v116
    v_sub_f32 v116, v116, v117
    v_cos_f32 v117, v116
    v_sin_f32 v116, v116
    v_add_f32 v114, v114, v114
    v_mul_f32 v{LR}, v115, v117
    v_mul_f32 v{LI}, v115, v116
    v_add_f32 v115, -1.0, v{LR}
    v_mul_f32 v116, v{LI}, v112
    v_fma_f32 v116, v115, v111, v116
    v_mul_f32 v117, v115, v112
    v_fma_f32 v117, v{LI}, v111, -v117        ; Im
    v_mul_f32 v118, v116, v114
    v_mul_f32 v119, -v117, v114
    v_lshlrev_b32 v120, 3, v{CN}
    v_add_u32 v120, {M_LAM}, v120
    ds_write_b64 v120, v[{LR}:{LI}]
    ds_write_b64 v120, v[118:119] offset:{M_COEF-M_LAM}
    v_mul_f32 v{KL}, v118, v{LR}
    v_fma_f32 v{KL}, v119, v{LI}, v{KL}
    v_mul_f32 v{KL+1}, v119, v{LR}
    v_fma_f32 v{KL+1}, -v118, v{LI}, v{KL+1}""")
    yield
    cmul(L8, LR, LR, 114)
    cmul(L8, L8, L8, 114)
    cmul(L8, L8, L8, 114)
    cmul(L128, L8, L8, 114)
    for i in range(3):
        cmul(L128, L128, L128, 114)
def ssm_gran():
    if True:
        vm.wait("gran")
        lr, lo, lskip, lstat = A.newlabel("L_gr"), A.newlabel("L_gr"), A.newlabel("L_gr"), A.newlabel("L_gr")
        A.label(lr)
        A(f"""v_cmp_ne_u32 vcc, s{S_NONCE}, v45
        v_cmp_ne_u32 s[{S_M0}:{S_M0+1}], s{S_NONCE}, v47
        s_nop 1
        s_or_b64 s[{S_M0}:{S_M0+1}], s[{S_M0}:{S_M0+1}], vcc
        s_cmp_eq_u64 s[{S_M0}:{S_M0+1}], 0
        s_cbranch_scc1 {lo}
        global_load_dwordx4 v[44:47], v40, s[{S_WS}:{S_WS+1}] sc1
        s_waitcnt vmcnt(0)""")
        spin_tail(lr, lo, 6)
        A.label(lo)
        A(f"""s_cmp_eq_u32 s{S_LW}, 3
        s_cbranch_scc1 {lstat}
        v_mov_b32 v45, v46
        v_lshlrev_b32 v46, 3, v{CN}
        v_add_u32 v46, {M_CS}, v46
        ds_write_b64 v46, v[44:45]
        s_branch {lskip}""")
        A.label(lstat)
        A(f"""v_and_b32 v48, 0xffff0000, v44
        v_and_b32 v49, 0xffff0000, v46
        v_rcp_f32 v48, v48
        v_rcp_f32 v49, v49
        v_lshlrev_b32 v44, 16, v44
        v_lshlrev_b32 v46, 16, v46
        v_and_b32 v50, 32, v{VL}
        v_lshlrev_b32 v50, 1, v50
        v_and_b32 v51, 3, v{VL}
        v_lshl_add_u32 v50, v51, 4, v50
        v_bfe_u32 v51, v{VL}, 3, 2
        v_lshl_add_u32 v50, v51, 2, v50
        v_bfe_u32 v51, v{VL}, 2, 1
        v_add_u32 v50, v50, v51
        v_lshlrev_b32 v50, 2, v50
        v_add_u32 v50, {M_ROW}, v50
        ds_write2_b32 v50, v44, v46 offset0:0 offset1:2
        ds_write2_b32 v50, v48, v49 offset0:128 offset1:130""")
        A.label(lskip)
        A("s_waitcnt lgkmcnt(0)")

nonce_ready()
const_loads()
jobs = Jobs()
jobs.add(one(lambda: None))
jobs.add(ssm_consts())
jobs.add(one(ssm_setup3))
jobs.add(one(lambda: g2_setup(2, 232)))
def gs():
    A(f"global_load_dwordx4 v[44:47], v40, s[{S_WS}:{S_WS+1}] sc1")
g1_main(jobs, gs, ssm_gran, 1)
A(f"s_lshl_b32 s{S_SLOT}, s{S_S2}, 13")
SB = [52, 52, 112, 144, 176, 52]
def s_load(k):
    for i, (v, sd, ex, io) in enumerate(g2_pieces(2, k)):
        A(f"s_add_u32 s{S_T0+7}, s{S_KS}, {ex}")
        A(f"buffer_load_dwordx4 v[{SB[k]+4*i}:{SB[k]+4*i+3}], v{v}, s[{sd}:{sd+3}], s{S_T0+7} offen offset:{io}")
    g2_next(k)
def s_put(k, young):
    A(f"s_add_u32 s{S_T0+6}, s{S_S2}, 16\ns_max_u32 s{S_T0+6}, s{S_T0+6}, 20")
    wait_free(S_T0 + 6)
    A(f"s_waitcnt vmcnt({young})\nv_add_u32 v237, s{S_SLOT}, v236")
    for i in range(8):
        A(f"ds_write_b128 v237, v[{SB[k]+4*i}:{SB[k]+4*i+3}] offset:{1024*i}")
    A(f"""s_add_u32 s{S_S2}, s{S_S2}, 4
    s_add_u32 s{S_T0+6}, s{S_S2}, 21""")
    declare(S_T0 + 6)
    A(f"""s_add_u32 s{S_SLOT}, s{S_SLOT}, {4*8192}
    s_cmp_ge_u32 s{S_SLOT}, {5*8192}
    s_cselect_b32 s{S_T0}, {5*8192}, 0
    s_sub_u32 s{S_SLOT}, s{S_SLOT}, s{S_T0}""")
s_load(0)
s_put(0, 0)
A("s_waitcnt lgkmcnt(0)")
s_load(1)
A("s_barrier")
ts(4, 2)
lmid = A.newlabel("L_mid")
A(f"s_cmp_eq_u32 s{S_LW}, 3\ns_cbranch_scc1 {lmid}")
ME = 112
ML = 144
MT = 204
A(f"""v_lshlrev_b32 v{MT}, 3, v{CN}
v_add_u32 v{MT}, {E_BASE}, v{MT}""")
for j in range(16):
    A(f"ds_read_b64 v[{ME+2*j}:{ME+2*j+1}], v{MT} offset:{j*1280}")
A(f"""s_lshl_b32 s{S_T0}, s{S_CB}, 4
s_mul_i32 s{S_T0}, s{S_T0}, 2560
s_add_u32 s{S_T0}, s{S_T0}, {WS_SCAN}
v_lshlrev_b32 v{MT+1}, 4, v{CN}
v_add_u32 v{MT+1}, s{S_T0}, v{MT+1}
s_mul_i32 s{S_T0}, s{S_C}, 2560
v_add_u32 v{MT+2}, s{S_T0}, v{MT+1}
v_mov_b32 v{MT+5}, s{S_NONCE}
v_mov_b32 v{MT+7}, s{S_NONCE}""")
def cfma(d, a, b, c, conj_a=False, conj_b=False):
    nb = " neg_hi:[0,1,0]" if conj_b else ""
    if c is None:
        A(f"v_pk_mul_f32 v[{d}:{d+1}], v[{a}:{a+1}], v[{b}:{b+1}] op_sel_hi:[0,1]" + (" neg_hi:[0,1]" if conj_b else ""))
        c = d
    else:
        A(f"v_pk_fma_f32 v[{d}:{d+1}], v[{a}:{a+1}], v[{b}:{b+1}], v[{c}:{c+1}] op_sel_hi:[0,1,1]{nb}")
    slo = 1 ^ conj_a ^ conj_b
    shi = int(conj_a)
    A(f"v_pk_fma_f32 v[{d}:{d+1}], v[{a}:{a+1}], v[{b}:{b+1}], v[{d}:{d+1}] op_sel:[1,1,0] op_sel_hi:[1,0,1] neg_lo:[{slo},0,0] neg_hi:[{shi},0,0]")
for j in range(1, 16):
    if j in (1, 5, 9, 13):
        A(f"s_waitcnt lgkmcnt({max(0, 11 - j + 1 - 0) if j < 13 else 0})")
    cfma(ME + 2 * j, L8, ME + 2 * j - 2, ME + 2 * j)
A(f"""v_mov_b32 v{MT+4}, v{ME+30}
v_mov_b32 v{MT+6}, v{ME+31}
global_store_dwordx4 v{MT+2}, v[{MT+4}:{MT+7}], s[{S_WS}:{S_WS+1}] sc1""")
ts(5, 2)
lr, lo, lld, lck, lh = [A.newlabel("L_lb") for _ in range(5)]
def lb_loads(lbl):
    A(f"v_mov_b32 v{MT+3}, v{MT+1}")
    for k in range(15):
        A(f"""s_cmp_le_u32 s{S_C}, {k}
        s_cbranch_scc1 {lbl}
        global_load_dwordx4 v[{ML+4*k}:{ML+4*k+3}], v{MT+3}, s[{S_WS}:{S_WS+1}] sc1
        v_add_u32 v{MT+3}, 2560, v{MT+3}""")
    A.label(lbl)
lb_loads(lld)
for j in range(15, 0, -1):
    cfma(ME + 2 * j, KL, ME + 2 * j - 2, None, conj_b=True)
MP = 16
A(f"v_mov_b32 v{MP+2}, v{L8}\nv_sub_f32 v{MP+3}, 0, v{L8+1}")
for j in range(2, 14):
    cfma(MP + 2 * j, MP + 2, MP + 2 * j - 2, None)
A(f"v_mov_b32 v{ME}, 0\nv_mov_b32 v{ME+1}, 0")
A.label(lr)
A(f"s_waitcnt vmcnt(0)\ns_mov_b64 s[{S_M0}:{S_M0+1}], 0")
for k in range(15):
    A(f"""s_cmp_le_u32 s{S_C}, {k}
    s_cbranch_scc1 {lck}
    v_cmp_ne_u32 vcc, s{S_NONCE}, v{ML+4*k+1}
    v_cmp_ne_u32 s[{S_M1}:{S_M1+1}], s{S_NONCE}, v{ML+4*k+3}
    s_nop 1
    s_or_b64 s[{S_M0}:{S_M0+1}], s[{S_M0}:{S_M0+1}], vcc
    s_or_b64 s[{S_M0}:{S_M0+1}], s[{S_M0}:{S_M0+1}], s[{S_M1}:{S_M1+1}]""")
A.label(lck)
A(f"s_cmp_eq_u64 s[{S_M0}:{S_M0+1}], 0\ns_cbranch_scc1 {lo}")
lb_loads(A.newlabel("L_lb"))
spin_tail(lr, lo, 7)
A.label(lo)
ts(6, 2)
H = MT + 4
A(f"v_mov_b32 v{H}, 0\nv_mov_b32 v{H+1}, 0")
for k in range(15):
    g = ML + 4 * k
    A(f"""s_cmp_le_u32 s{S_C}, {k}
    s_cbranch_scc1 {lh}
    v_mov_b32 v{g+1}, v{g+2}""")
    cfma(g, L128, H, g)
    A(f"v_mov_b64 v[{H}:{H+1}], v[{g}:{g+1}]")
A.label(lh)
Q = MT + 6
cfma(Q, KL, H, None, conj_b=True)
A(f"v_pk_add_f32 v[{ME}:{ME+1}], v[{ME}:{ME+1}], v[{Q}:{Q+1}]")
A(f"ds_write_b64 v{MT}, v[{ME}:{ME+1}]")
for j in range(1, 16):
    d = ME + 2 * j
    if j == 14:
        cfma(H, MP + 4, Q, None)
    if j < 14:
        cfma(d, MP + 2 * j, Q, d)
    else:
        cfma(d, MP + 2 * (j - 2), H, d)
    A(f"ds_write_b64 v{MT}, v[{d}:{d+1}] offset:{j*1280}")
A("s_waitcnt lgkmcnt(0)")
A.label(lmid)
A("s_barrier")
ts(7, 2)
for k in (2, 3, 4):
    s_load(k)
poll_issue()
s_put(1, 25)
lskip = A.newlabel("L_k")
A("s_waitcnt vmcnt(0)")
poll_check()
A(f"s_cmp_ge_u32 s{S_S2}, 10\ns_cbranch_scc1 {lskip}\ns_waitcnt lgkmcnt(0)")
s_load(5)
A.label(lskip)
for k in (2, 3, 4):
    s_put(k, 8)
lskip = A.newlabel("L_k")
A(f"s_cmp_ge_u32 s{S_S2}, 22\ns_cbranch_scc1 {lskip}")
s_put(5, 0)
A.label(lskip)
finish()

A.label("L_end")
A("s_endpgm")
A.label("L_code_end")
A.lines[HEADPOS:HEADPOS] = HEADS
A.lines.insert(0, "L_code_start:")

hdr = open(os.path.join(os.path.dirname(__file__), "header.txt")).read()
print(hdr + f"""; @launch grid=(256,1,1) block=(512,1,1) lds=163840
.amdgcn_target "amdgcn-amd-amdhsa--gfx950"
.text
.globl {KNAME}
.p2align 8
.type {KNAME},@function
{KNAME}:""")
print(A.text(), end="")
print(f""".section .rodata,"a"
.p2align 6
.amdhsa_kernel {KNAME}
  .amdhsa_next_free_vgpr 256
  .amdhsa_next_free_sgpr 102
  .amdhsa_accum_offset 256
  .amdhsa_group_segment_fixed_size 0
  .amdhsa_kernarg_size 128
  .amdhsa_user_sgpr_count 2
  .amdhsa_user_sgpr_kernarg_segment_ptr 1
  .amdhsa_system_sgpr_workgroup_id_x 1
.end_amdhsa_kernel""")
```

```python
import sys, os
sys.path.insert(0, os.path.dirname(__file__))
from asmlib import Asm, Queue, vr, sr

OPT = dict(ts=0, stop=0, DA=3, D1=4, D1S=5, timeout=1 << 20, nodma=0, nomfma=0, nobar=0, noread=0, rot=2, rot2=1, pf=0, stash=8, sg1=12, amod=1)
for a in sys.argv[1:]:
    k, v = a.split("=")
    OPT[k] = int(v)
P0 = OPT.get("p0", 3)
TS = OPT["ts"]; STOP = OPT["stop"]; DA = OPT["DA"]; D1 = OPT["D1"]

KNAME = "parallel_sum__ssm_conv_s5__glu_gated_swiglu__prompt_kernel"

WS_E = 0
WS_FLAG = 0x1000
WS_STAT = 0x4000
WS_CSB = 0x8000
WS_CSW = 0x10000
WS_SCAN = 0x40000
WS_TAB = 0x80000
WS_ACT = 0x100000
WS_TS = 0x1000000

MISC = 151552
WRING = 49152
SCR = 131072
M_ROW = MISC
M_CS = MISC + 2048
M_LAM = MISC + 3584
M_COEF = MISC + 4864
E_BASE = 40960
TR_BASE = 61440

S_X, S_LRE, S_LIM, S_BRE, S_BIM, S_CRE, S_CIM, S_LDT = 4, 6, 8, 10, 12, 14, 16, 18
S_DSK, S_W1, S_W3, S_W2, S_OUT, S_DBG, S_WS = 20, 24, 26, 28, 30, 32, 34
SRD_X, SRD_WA, SRD_WB, SRD_W2, SRD_C, SRD_T = 36, 40, 44, 48, 52, 56
S_XCD, S_IDX, S_C, S_J, S_CB, S_WAVE, S_NONCE = 60, 61, 62, 63, 64, 65, 66
S_HB2, S_DCOL = 67, 68
S_ONES = 69
S_T0 = 70
S_SLOT, S_KX, S_KW, S_CNT, S_DELTA = 80, 81, 82, 83, 84
S_AB = 86
S_M0, S_M1 = 88, 90
S_EX = 92
S_TO = 94
S_TS = 96
S_ROT, S_R2A, S_R2B, S_KB, S_KS = 95, 98, 99, 100, 101

A = Asm()
LOG2E = 0x3fb8aa3b
NLOG2E = 0xbfb8aa3b

def ts(idx, vtmp):
    if not TS:
        return

    A(f"""s_memrealtime s[{S_TS}:{S_TS+1}]
    s_waitcnt lgkmcnt(0)
    v_writelane_b32 v255, s{S_TS}, {idx}""")

def tc(idx):
    if not TS:
        return
    A(f"""s_memtime s[{S_TS}:{S_TS+1}]
    s_waitcnt lgkmcnt(0)
    v_writelane_b32 v255, s{S_TS}, {idx}""")

def ts_flush(vtmp):
    if not TS:
        return
    A(f"""s_lshl_b32 s{S_T0}, s2, 3
    s_add_u32 s{S_T0}, s{S_T0}, s{S_WAVE}
    s_lshl_b32 s{S_T0}, s{S_T0}, 8
    s_add_u32 s{S_T0}, s{S_T0}, {WS_TS}
    v_lshlrev_b32 v{vtmp}, 2, v{VL}
    v_add_u32 v{vtmp}, s{S_T0}, v{vtmp}
    global_store_dword v{vtmp}, v255, s[{S_WS}:{S_WS+1}]""")

def srd(d, p, nbytes):
    A(f"""s_mov_b32 s{d}, s{p}
    s_mov_b32 s{d+1}, s{p+1}
    s_mov_b32 s{d+2}, {nbytes}
    s_mov_b32 s{d+3}, 0x20000""")

def srd_sel(d, p1, p0, nbytes):
    A(f"""s_cselect_b32 s{d}, s{p1}, s{p0}
    s_cselect_b32 s{d+1}, s{p1+1}, s{p0+1}
    s_mov_b32 s{d+2}, {nbytes}
    s_mov_b32 s{d+3}, 0x20000""")

def spin_tail(lbl_retry, lbl_ok, code):
    A(f"""s_sleep {OPT.get('nap', 1) if code == 2 else 1}
    s_sub_u32 s{S_TO}, s{S_TO}, 1
    s_cmp_lg_u32 s{S_TO}, 0
    s_cbranch_scc1 {lbl_retry}
    s_mov_b32 s{S_TO}, 1""")

VL = 254
VFO = 253
FLG = MISC + 6144
FREE, AUX = FLG + 2048, FLG + 4096
S_K = 3
S_FR = 86
S_LMT = 85
SRD_F = 52
VZ = 252
SLOW = []
def flag_test(need, vD, vP, off, pre=None, anylane=False, acc=None, nap=0, split=False):
    ls, lb, lr = A.newlabel("L_sw"), A.newlabel("L_bk"), A.newlabel("L_sr")
    cmp_ = f"v_cmp_ne_u32 vcc, s{S_K}, v{vD}"
    A(f"s_cbranch_vccnz {ls}" if split else f"{cmp_}\ns_cbranch_vccnz {ls}")
    A.label(lb)
    mark = len(A.lines)
    A.label(ls)
    if TS and acc is not None:
        A(f"s_memtime s[{S_TS}:{S_TS+1}]\ns_waitcnt lgkmcnt(0)\ns_sub_u32 s{acc}, s{acc}, s{S_TS}\ns_add_u32 s{acc+1}, s{acc+1}, 1")
        lb2 = lb
        lb = A.newlabel("L_b2")
    A.label(lr)
    A(f"""ds_read_b32 v{vD}, v{vP} offset:{off}
    s_waitcnt lgkmcnt(0)
    {cmp_}
    s_cbranch_vccz {lb}
    s_sub_u32 s{S_TO}, s{S_TO}, 1
    s_cmp_lg_u32 s{S_TO}, 0
    s_cbranch_scc1 {lr}
    s_mov_b32 s{S_TO}, 1
    s_branch {lb}""")
    if TS and acc is not None:
        A.label(lb)
        A(f"s_memtime s[{S_TS}:{S_TS+1}]\ns_waitcnt lgkmcnt(0)\ns_add_u32 s{acc}, s{acc}, s{S_TS}\ns_branch {lb2}")
    SLOW.extend(A.lines[mark:])
    del A.lines[mark:]
def flag_wait(need, vD, vP, rel=0):
    off = rel + 4 * need
    A(f"ds_read_b32 v{vD}, v{vP} offset:{off}\ns_waitcnt lgkmcnt(0)")
    flag_test(need, vD, vP, off)
def flush_slow():
    A.lines.extend(SLOW)
    SLOW.clear()
def flag_init(base, wave_sgpr, vP, peer, aux):
    A(f"""s_lshl_b32 s{S_T0}, s{wave_sgpr}, 9
    s_add_u32 s{S_T0}, s{S_T0}, {base}
    v_lshlrev_b32 v{VFO}, 2, v{VL}
    v_add_u32 v{VFO}, s{S_T0}, v{VFO}
    v_mov_b32 v{VZ}, 0
    s_waitcnt lgkmcnt(0)
    v_not_b32 v{vP}, s{S_K}
    ds_write2st64_b32 v{VFO}, v{vP}, v{vP} offset0:0 offset1:1""")
    if aux:
        A(f"""s_lshl_b32 s{S_T0+1}, s{wave_sgpr}, 8
        v_lshlrev_b32 v{aux}, 2, v{VL}
        v_add_u32 v{aux}, s{S_T0+1}, v{aux}
        v_add_u32 v{aux}, {AUX}, v{aux}
        ds_write_b32 v{aux}, v{VZ}""")
    peer_addr(vP, peer)
    A("s_waitcnt lgkmcnt(0)\ns_barrier")
def peer_addr(vP, peer):
    A(f"""v_and_b32 v{vP}, 3, v{VL}
    v_lshlrev_b32 v{vP}, 9, v{vP}
    v_add_u32 v{vP}, {peer + 252}, v{vP}""")


S_LW = 85
A(f"""s_cmp_ge_u32 s2, 256
s_cbranch_scc1 L_end
s_load_dwordx16 s[4:19], s[0:1], 0
s_load_dwordx16 s[20:35], s[0:1], 64
v_lshrrev_b32 v1, 6, v0
v_and_b32 v{VL}, 63, v0
s_and_b32 s{S_XCD}, s2, 7
v_readfirstlane_b32 s{S_WAVE}, v1
s_lshr_b32 s{S_IDX}, s2, 3
s_and_b32 s{S_T0}, s{S_XCD}, 1
s_lshl_b32 s{S_T0}, s{S_T0}, 3
s_and_b32 s{S_T0+1}, s{S_IDX}, 7
s_add_u32 s{S_C}, s{S_T0}, s{S_T0+1}
s_lshr_b32 s{S_J}, s{S_IDX}, 3
s_lshr_b32 s{S_T0+2}, s{S_XCD}, 1
s_mul_i32 s{S_CB}, s{S_T0+2}, 3
s_add_u32 s{S_CB}, s{S_CB}, s{S_J}
s_sub_u32 s{S_CB}, s{S_CB}, 1
s_cmp_eq_u32 s{S_J}, 0
s_cselect_b32 s{S_CB}, s{S_T0+2}, s{S_CB}
""")
if TS:
    A("v_mov_b32 v255, 0")
    ts(0, 2)
RG = OPT["rot"]
if RG:
    A(f"""s_lshl_b32 s{S_ROT}, s{S_J}, {1 if RG == 8 else 0}
    s_add_u32 s{S_ROT}, s{S_T0+1}, s{S_ROT}
    s_and_b32 s{S_ROT}, s{S_ROT}, {RG-1}
    s_mul_i32 s{S_ROT}, s{S_ROT}, 10
    s_lshr_b32 s{S_ROT}, s{S_ROT}, {RG.bit_length()-1}""")
else:
    A(f"s_mov_b32 s{S_ROT}, 0")
A(f"""s_cmp_lt_u32 s{S_WAVE}, 4
s_cbranch_scc1 L_compute
s_sub_u32 s{S_LW}, s{S_WAVE}, 4
s_setprio {OPT.get('pl1', 0)}""")

def nonce_load():
    A(f"s_load_dword s{S_NONCE}, s[{S_WS}:{S_WS+1}], {WS_E}")
def late_scalars():
    A(f"""s_and_b32 s{S_T0+1}, s{S_IDX}, 7
    s_lshr_b32 s{S_T0+2}, s{S_XCD}, 1
    s_lshl_b32 s{S_HB2}, s{S_T0+2}, 3
    s_add_u32 s{S_HB2}, s{S_HB2}, s{S_T0+1}
    s_mul_i32 s{S_DCOL}, s{S_J}, 96
    s_sub_u32 s{S_DCOL}, s{S_DCOL}, 96
    s_cmp_eq_u32 s{S_J}, 0
    s_cselect_b32 s{S_DCOL}, 288, s{S_DCOL}
    s_and_b32 s{S_T0}, s{S_XCD}, 1
    s_mul_i32 s{S_T0}, s{S_T0}, 320
    s_add_u32 s{S_DCOL}, s{S_DCOL}, s{S_T0}
    s_mov_b32 s{S_ONES}, 0x3f803f80
    s_mov_b32 s{S_TO}, {OPT['timeout']}""")
    if OPT["rot2"]:
        A(f"""s_mul_i32 s{S_R2A}, s{S_T0+1}, 3
        s_lshr_b32 s{S_R2A}, s{S_R2A}, 1
        s_mul_i32 s{S_T0+3}, s{S_J}, 3
        s_add_u32 s{S_R2A}, s{S_R2A}, s{S_T0+3}
        s_cmp_ge_u32 s{S_R2A}, 12
        s_cselect_b32 s{S_T0+3}, 12, 0
        s_sub_u32 s{S_R2A}, s{S_R2A}, s{S_T0+3}
        s_mul_i32 s{S_R2B}, s{S_T0+1}, 5
        s_lshr_b32 s{S_R2B}, s{S_R2B}, 2
        s_mul_i32 s{S_T0+3}, s{S_J}, 5
        s_lshr_b32 s{S_T0+3}, s{S_T0+3}, 1
        s_add_u32 s{S_R2B}, s{S_R2B}, s{S_T0+3}
        s_cmp_ge_u32 s{S_R2B}, 10
        s_cselect_b32 s{S_T0+3}, 10, 0
        s_sub_u32 s{S_R2B}, s{S_R2B}, s{S_T0+3}""")
    else:
        A(f"s_mov_b32 s{S_R2A}, 0\ns_mov_b32 s{S_R2B}, 0")

HEADPOS = len(A.lines)
HEADS = []

def dpp_reduce16(regs):
    for sh in (8, 4, 2, 1):
        A("s_nop 1")
        for r in regs:
            A(f"v_add_f32_dpp v{r}, v{r}, v{r} row_ror:{sh} row_mask:0xf bank_mask:0xf")

def nonce_ready():
    A(f"""s_waitcnt lgkmcnt(0)
    s_add_u32 s{S_NONCE}, s{S_NONCE}, 1""")

def sum_bf16(regs, acc, sq=None, t=None):
    for k, r in enumerate(regs):
        if k and k % (5 if sq is not None else 8) == 0:
            yield
        A(f"v_lshlrev_b32 v{t}, 16, v{r}")
        A(f"v_and_b32 v{r}, 0xffff0000, v{r}")
        if k == 0:
            A(f"v_mov_b32 v{acc}, v{t}\nv_mov_b32 v{acc+1}, v{r}")
            if sq is not None:
                A(f"v_mul_f32 v{sq}, v{t}, v{t}\nv_mul_f32 v{sq+1}, v{r}, v{r}")
        else:
            A(f"v_add_f32 v{acc}, v{acc}, v{t}\nv_add_f32 v{acc+1}, v{acc+1}, v{r}")
            if sq is not None:
                A(f"v_fmac_f32 v{sq}, v{t}, v{t}\nv_fmac_f32 v{sq+1}, v{r}, v{r}")
    A(f"v_add_f32 v{acc}, v{acc}, v{acc+1}")
    if sq is not None:
        A(f"v_add_f32 v{sq}, v{sq}, v{sq+1}")

def reduce32(regs):
    dpp_reduce16(regs)
    A("s_nop 1")
    for r in regs:
        A(f"v_add_f32_dpp v{r}, v{r}, v{r} row_bcast:15 row_mask:0xa bank_mask:0xf")

def stat_loads(vm, T):
    A(f"""v_lshrrev_b32 v{T+10}, 5, v{VL}
    s_lshl_b32 s{S_T0}, s2, 3
    s_lshl_b32 s{S_T0+1}, s{S_LW}, 1
    s_add_u32 s{S_T0}, s{S_T0}, s{S_T0+1}
    v_add_u32 v{T+10}, s{S_T0}, v{T+10}
    v_and_b32 v{T+11}, 31, v{VL}
    v_mul_u32_u24 v{T+12}, 1280, v{T+10}
    v_lshl_add_u32 v{T+12}, v{T+11}, 3, v{T+12}""")
    for i in range(5):
        A(f"global_load_dwordx2 v[{T+2*i}:{T+2*i+1}], v{T+12}, s[{S_X}:{S_X+1}] offset:{256*i}")
        vm.issue("stat")

def stat_work(vm, T):
    vm.wait("stat")
    a, q = T + 12, T + 14
    yield from sum_bf16(list(range(T, T + 10)), a, q, T + 16)
    yield
    reduce32([a, q])
    yield
    A(f"""v_mul_f32 v{a}, 0x3acccccd, v{a}      ; mean
    v_mul_f32 v{q}, 0x3acccccd, v{q}
    v_fma_f32 v{q}, -v{a}, v{a}, v{q}
    v_max_f32 v{q}, 0, v{q}
    v_cvt_pk_bf16_f32 v{q}, v{q}, v{q}
    v_lshlrev_b32 v{q}, 16, v{q}
    v_add_f32 v{q}, 0x3727c5ac, v{q}
    v_cvt_pk_bf16_f32 v{q}, v{q}, v{q}
    v_lshlrev_b32 v{q}, 16, v{q}
    v_sqrt_f32 v{q}, v{q}
    v_lshlrev_b32 v{T+10}, 3, v{T+10}
    v_add_u32 v{T+10}, {WS_STAT}, v{T+10}
    v_cvt_pk_bf16_f32 v{a}, v{a}, v{q}
    v_mov_b32 v{a+1}, s{S_NONCE}
    v_cmp_eq_u32 vcc, 16, v{T+11}
    s_and_saveexec_b64 s[{S_EX}:{S_EX+1}], vcc
    global_store_dwordx2 v{T+10}, v[{a}:{a+1}], s[{S_WS}:{S_WS+1}] sc1
    s_mov_b64 exec, s[{S_EX}:{S_EX+1}]""")
    vm.issue("pub")

S_CS0 = 86
def colsum_loads(T):
    A(f"""s_mul_i32 s{S_T0}, s{S_C}, 12
    s_add_u32 s{S_T0}, s{S_T0}, s{S_CB}            ; sigma
    s_lshr_b32 s{S_T0+1}, s{S_T0}, 2               ; strip
    s_and_b32 s{S_T0+2}, s{S_T0}, 3                ; k quarter
    s_cmp_ge_u32 s{S_T0+1}, 24""")
    srd_sel(SRD_T, S_W3, S_W1, 1966080)
    A(f"""s_cselect_b32 s{S_T0+3}, {24*128}, 0
    s_lshl_b32 s{S_T0+4}, s{S_T0+1}, 7
    s_sub_u32 s{S_T0+4}, s{S_T0+4}, s{S_T0+3}
    s_mul_i32 s{S_T0+5}, s{S_T0+2}, {160*3072}
    s_add_u32 s{S_T0+4}, s{S_T0+4}, s{S_T0+5}      ; soffset
    s_mul_i32 s{S_CS0}, s{S_T0+2}, {3072*8}
    s_lshl_b32 s{S_T0+1}, s{S_T0+1}, 9
    s_add_u32 s{S_CS0}, s{S_CS0}, s{S_T0+1}
    s_add_u32 s{S_CS0}, s{S_CS0}, {WS_CSW}
    v_lshrrev_b32 v{T}, 3, v{VL}
    v_and_b32 v{T+1}, 7, v{VL}
    v_mul_u32_u24 v{T}, 3072, v{T}
    v_lshl_add_u32 v{T}, v{T+1}, 4, v{T}""")
    for i in range(20):
        if i % 4 == 0:
            A(f"s_mov_b32 m0, {SCR + 1024*i}")
        A(f"""s_add_u32 s{S_T0+7}, s{S_T0+4}, {8*3072*i - 1024*(i%4)}
        s_waitcnt vmcnt({OPT.get("cap", 7)})
        buffer_load_dwordx4 v{T}, s[{SRD_T}:{SRD_T+3}], s{S_T0+7} offen offset:{1024*(i%4)} lds""")

def colsum_work(T):
    A(f"""v_lshrrev_b32 v{T+2}, 4, v{VL}
    v_lshlrev_b32 v{T+3}, 5, v{T+2}
    v_lshlrev_b32 v{T+2}, 10, v{T+2}
    v_bfe_u32 v{T+1}, v{VL}, 2, 2
    v_lshl_add_u32 v{T+2}, v{T+1}, 7, v{T+2}
    v_and_b32 v{T+1}, 3, v{VL}
    v_lshl_add_u32 v{T+2}, v{T+1}, 3, v{T+2}
    v_add_u32 v{T+2}, {SCR}, v{T+2}
    v_add_u32 v{T+3}, s{S_CS0}, v{T+3}""")
    for i in range(4):
        A(f"v_mov_b32 v{T+4+i}, s{S_ONES}")
    F = T + 24
    for u in range(4):
        for ks in range(5):
            b = F + (u * 5 + ks) * 4
            A(f"ds_read_b64_tr_b16 v[{b}:{b+1}], v{T+2} offset:{ks*4096+u*32}")
            A(f"ds_read_b64_tr_b16 v[{b+2}:{b+3}], v{T+2} offset:{ks*4096+u*32+512}")
    A("s_waitcnt lgkmcnt(0)")
    for ks in range(5):
        for u in range(4):
            b = F + (u * 5 + ks) * 4
            d = T + 8 + 4 * u
            cin = "0" if ks == 0 else f"v[{d}:{d+3}]"
            A(f"v_mfma_f32_16x16x32_bf16 v[{d}:{d+3}], v[{b}:{b+3}], v[{T+4}:{T+7}], {cin}")
    A(f"""v_and_b32 v{T+1}, 15, v{VL}
    v_cmp_eq_u32 vcc, 0, v{T+1}
    s_nop 7""")
    for u in range(4):
        for h in range(2):
            o = F + (u * 2 + h) * 4
            A(f"""v_mov_b32 v{o}, v{T+8+4*u+2*h}
            v_mov_b32 v{o+1}, s{S_NONCE}
            v_mov_b32 v{o+2}, v{T+9+4*u+2*h}
            v_mov_b32 v{o+3}, s{S_NONCE}""")
    A(f"s_and_saveexec_b64 s[{S_EX}:{S_EX+1}], vcc")
    for u in range(4):
        for h in range(2):
            o = F + (u * 2 + h) * 4
            A(f"global_store_dwordx4 v{T+3}, v[{o}:{o+3}], s[{S_WS}:{S_WS+1}] offset:{u*128+h*16} sc1")
    A(f"s_mov_b64 exec, s[{S_EX}:{S_EX+1}]")

def rowsum_loads(vm, T):
    A(f"""s_lshl_b32 s{S_T0}, s{S_C}, 2
    s_add_u32 s{S_T0}, s{S_T0}, s{S_CB}            ; sigma'
    s_mul_i32 s{S_T0+1}, s{S_T0}, 20
    s_mul_i32 s{S_T0+2}, s{S_LW}, 5
    s_add_u32 s{S_T0+1}, s{S_T0+1}, s{S_T0+2}
    s_cmp_ge_u32 s{S_T0}, 32
    s_cselect_b32 s{S_T0+4}, s{S_BIM}, s{S_BRE}
    s_cselect_b32 s{S_T0+5}, s{S_BIM+1}, s{S_BRE+1}
    s_cselect_b32 s{S_T0+3}, 640, 0
    s_sub_u32 s{S_T0+1}, s{S_T0+1}, s{S_T0+3}
    v_lshrrev_b32 v{T+33}, 5, v{VL}
    v_add_u32 v{T+33}, s{S_T0+1}, v{T+33}
    v_and_b32 v{T+34}, 31, v{VL}""")
    for p in range(3):
        A(f"""v_add_u32 v{T+30+p}, {2*p}, v{T+33}
        v_min_u32 v{T+30+p}, 639, v{T+30+p}
        v_mul_u32_u24 v{T+35}, 1280, v{T+30+p}
        v_lshl_add_u32 v{T+35}, v{T+34}, 3, v{T+35}
        v_add_u32 v{T+30+p}, s{S_T0+3}, v{T+30+p}""")
        for i in range(5):
            b = T + 10 * p + 2 * i
            A(f"global_load_dwordx2 v[{b}:{b+1}], v{T+35}, s[{S_T0+4}:{S_T0+5}] offset:{256*i}")
            vm.issue("rows")

def rowsum_work(vm, T):
    vm.wait("rows")
    for p in range(3):
        yield from sum_bf16(list(range(T + 10 * p, T + 10 * p + 10)), T + 36 + 2 * p, None, T + 35)
    yield
    reduce32([T + 36, T + 38, T + 40])
    for p in range(3):
        A(f"""v_mov_b32 v{T+37+2*p}, s{S_NONCE}
        v_lshlrev_b32 v{T+30+p}, 3, v{T+30+p}
        v_add_u32 v{T+30+p}, {WS_CSB}, v{T+30+p}""")
    A(f"""v_cmp_eq_u32 vcc, 16, v{T+34}
    s_and_saveexec_b64 s[{S_EX}:{S_EX+1}], vcc""")
    for p in range(3):
        A(f"global_store_dwordx2 v{T+30+p}, v[{T+36+2*p}:{T+37+2*p}], s[{S_WS}:{S_WS+1}] sc1")
        vm.issue("pub")
    A(f"s_mov_b64 exec, s[{S_EX}:{S_EX+1}]")

def side_stats(T, filler):
    A(f"""v_lshrrev_b32 v{T+20}, 4, v{VL}
    s_lshl_b32 s{S_T0}, s2, 3
    s_lshl_b32 s{S_T0+1}, s{S_WAVE}, 2
    s_add_u32 s{S_T0}, s{S_T0}, s{S_T0+1}
    v_add_u32 v{T+20}, s{S_T0}, v{T+20}          ; row
    v_and_b32 v{T+21}, 15, v{VL}
    v_mul_u32_u24 v{T+22}, 1280, v{T+20}
    v_lshl_add_u32 v{T+22}, v{T+21}, 4, v{T+22}""")
    for i in range(5):
        A(f"global_load_dwordx4 v[{T+4*i}:{T+4*i+3}], v{T+22}, s[{S_X}:{S_X+1}] offset:{256*i}")
    filler()
    A(f"""v_mov_b32 v{T+24}, 0
    v_mov_b32 v{T+25}, 0
    v_mov_b32 v{T+26}, 0
    v_mov_b32 v{T+27}, 0""")
    nonce_ready()
    for i in range(5):
        A(f"s_waitcnt vmcnt({4-i})")
        for d in range(4):
            r = T + 4 * i + d
            A(f"v_dot2c_f32_bf16 v{T+24+2*(d&1)}, s{S_ONES}, v{r}")
            A(f"v_dot2c_f32_bf16 v{T+25+2*(d&1)}, v{r}, v{r}")
    A(f"""s_nop 3
    v_add_f32 v{T+24}, v{T+24}, v{T+26}
    v_add_f32 v{T+25}, v{T+25}, v{T+27}""")
    dpp_reduce16([T + 24, T + 25])
    A(f"""v_mul_f32 v{T+24}, 0x3acccccd, v{T+24}      ; mean
    v_mul_f32 v{T+25}, 0x3acccccd, v{T+25}
    v_fma_f32 v{T+25}, -v{T+24}, v{T+24}, v{T+25}
    v_max_f32 v{T+25}, 0, v{T+25}
    v_cvt_pk_bf16_f32 v{T+25}, v{T+25}, v{T+25}
    v_lshlrev_b32 v{T+25}, 16, v{T+25}
    v_add_f32 v{T+25}, 0x3727c5ac, v{T+25}
    v_cvt_pk_bf16_f32 v{T+25}, v{T+25}, v{T+25}
    v_lshlrev_b32 v{T+25}, 16, v{T+25}
    v_sqrt_f32 v{T+25}, v{T+25}
    v_lshlrev_b32 v{T+20}, 3, v{T+20}
    v_add_u32 v{T+20}, {WS_STAT}, v{T+20}
    v_cvt_pk_bf16_f32 v{T+26}, v{T+24}, v{T+25}
    v_mov_b32 v{T+27}, s{S_NONCE}
    v_cmp_eq_u32 vcc, 0, v{T+21}
    s_and_saveexec_b64 s[{S_EX}:{S_EX+1}], vcc
    global_store_dwordx2 v{T+20}, v[{T+26}:{T+27}], s[{S_WS}:{S_WS+1}] sc1
    s_mov_b64 exec, s[{S_EX}:{S_EX+1}]""")

def side_colsum_mlp(T, filler):
    A(f"""s_mul_i32 s{S_T0}, s{S_C}, 12
    s_add_u32 s{S_T0}, s{S_T0}, s{S_CB}            ; sigma
    s_lshr_b32 s{S_T0+1}, s{S_T0}, 1               ; strip
    s_and_b32 s{S_T0+2}, s{S_T0}, 1
    s_lshl_b32 s{S_T0+2}, s{S_T0+2}, 1
    s_add_u32 s{S_T0+2}, s{S_T0+2}, s{S_WAVE}
    s_sub_u32 s{S_T0+2}, s{S_T0+2}, 2              ; k quarter
    s_cmp_ge_u32 s{S_T0+1}, 48""")
    srd_sel(SRD_T, S_W3, S_W1, 1966080)
    A(f"""s_cselect_b32 s{S_T0+3}, 48, 0
    s_cselect_b32 s{S_T0+6}, 1536, 0
    s_sub_u32 s{S_T0+1}, s{S_T0+1}, s{S_T0+3}
    s_lshl_b32 s{S_T0+1}, s{S_T0+1}, 5             ; col0
    s_mul_i32 s{S_T0+4}, s{S_T0+2}, {160*3072}
    s_lshl_b32 s{S_T0+5}, s{S_T0+1}, 1
    s_add_u32 s{S_T0+4}, s{S_T0+4}, s{S_T0+5}      ; soffset
    s_sub_u32 s{S_T0+5}, s{S_WAVE}, 2
    s_mul_i32 s{S_T0+5}, s{S_T0+5}, 10240
    s_add_u32 s{S_T0+5}, s{S_T0+5}, {SCR}
    v_lshrrev_b32 v{T}, 2, v{VL}
    v_and_b32 v{T+1}, 3, v{VL}
    v_mul_u32_u24 v{T}, 3072, v{T}
    v_lshl_add_u32 v{T}, v{T+1}, 4, v{T}""")
    for i in range(10):
        A(f"""s_add_u32 m0, s{S_T0+5}, {1024*i}
        s_add_u32 s{S_T0+7}, s{S_T0+4}, {16*3072*i}
        buffer_load_dwordx4 v{T}, s[{SRD_T}:{SRD_T+3}], s{S_T0+7} offen lds""")
    filler()
    A(f"""v_lshrrev_b32 v{T+2}, 4, v{VL}
    v_lshlrev_b32 v{T+2}, 9, v{T+2}
    v_bfe_u32 v{T+3}, v{VL}, 2, 2
    v_lshl_add_u32 v{T+2}, v{T+3}, 6, v{T+2}
    v_lshl_add_u32 v{T+2}, v{T+1}, 3, v{T+2}
    v_add_u32 v{T+2}, s{S_T0+5}, v{T+2}
    v_mov_b32 v{T+4}, s{S_ONES}
    v_mov_b32 v{T+5}, s{S_ONES}
    v_mov_b32 v{T+6}, s{S_ONES}
    v_mov_b32 v{T+7}, s{S_ONES}""")
    A(f"""s_mul_i32 s{S_T0+2}, s{S_T0+2}, 3072
    s_add_u32 s{S_T0+2}, s{S_T0+2}, s{S_T0+6}
    s_add_u32 s{S_T0+2}, s{S_T0+2}, s{S_T0+1}
    s_lshl_b32 s{S_T0+2}, s{S_T0+2}, 3
    s_add_u32 s{S_T0+2}, s{S_T0+2}, {WS_CSW}
    v_lshrrev_b32 v{T+3}, 4, v{VL}
    v_lshlrev_b32 v{T+3}, 5, v{T+3}
    v_add_u32 v{T+3}, s{S_T0+2}, v{T+3}""")
    nonce_ready()
    A("s_waitcnt vmcnt(0)")
    F = T + 16
    for ks in range(5):
        for u in range(2):
            b = F + (ks * 2 + u) * 4
            A(f"ds_read_b64_tr_b16 v[{b}:{b+1}], v{T+2} offset:{ks*2048+u*32}")
            A(f"ds_read_b64_tr_b16 v[{b+2}:{b+3}], v{T+2} offset:{ks*2048+u*32+256}")
    A("s_waitcnt lgkmcnt(0)")
    for ks in range(5):
        for u in range(2):
            b = F + (ks * 2 + u) * 4
            cin = "0" if ks == 0 else f"v[{T+8+4*u}:{T+11+4*u}]"
            A(f"v_mfma_f32_16x16x32_bf16 v[{T+8+4*u}:{T+11+4*u}], v[{b}:{b+3}], v[{T+4}:{T+7}], {cin}")
    A("s_nop 7\ns_nop 1")
    for u in range(2):
        for h in range(2):
            o = F + (u * 2 + h) * 4
            A(f"""v_mov_b32 v{o}, v{T+8+4*u+2*h}
            v_mov_b32 v{o+1}, s{S_NONCE}
            v_mov_b32 v{o+2}, v{T+9+4*u+2*h}
            v_mov_b32 v{o+3}, s{S_NONCE}""")
    A(f"""v_and_b32 v{T+1}, 15, v{VL}
    v_cmp_eq_u32 vcc, 0, v{T+1}
    s_and_saveexec_b64 s[{S_EX}:{S_EX+1}], vcc""")
    for u in range(2):
        for h in range(2):
            o = F + (u * 2 + h) * 4
            A(f"global_store_dwordx4 v{T+3}, v[{o}:{o+3}], s[{S_WS}:{S_WS+1}] offset:{u*128+h*16} sc1")
    A(f"s_mov_b64 exec, s[{S_EX}:{S_EX+1}]")

def side_rowsum_ssm(T, filler):
    A(f"""s_lshl_b32 s{S_T0}, s{S_C}, 2
    s_add_u32 s{S_T0}, s{S_T0}, s{S_CB}            ; sigma'
    s_mul_i32 s{S_T0+1}, s{S_T0}, 20
    s_sub_u32 s{S_T0+2}, s{S_WAVE}, 2
    s_lshl_b32 s{S_T0+2}, s{S_T0+2}, 3
    s_add_u32 s{S_T0+1}, s{S_T0+1}, s{S_T0+2}
    s_cmp_ge_u32 s{S_T0}, 32
    s_cselect_b32 s{S_T0+4}, s{S_BIM}, s{S_BRE}
    s_cselect_b32 s{S_T0+5}, s{S_BIM+1}, s{S_BRE+1}
    s_cselect_b32 s{S_T0+3}, 640, 0
    s_sub_u32 s{S_T0+3}, s{S_T0+1}, s{S_T0+3}
    v_lshrrev_b32 v{T+60}, 4, v{VL}
    v_and_b32 v{T+61}, 15, v{VL}
    v_add_u32 v{T+62}, s{S_T0+3}, v{T+60}
    v_mul_u32_u24 v{T+62}, 1280, v{T+62}
    v_lshl_add_u32 v{T+62}, v{T+61}, 4, v{T+62}""")
    for p in range(3):
        for i in range(5):
            b = T + 20 * p + 4 * i
            A(f"global_load_dwordx4 v[{b}:{b+3}], v{T+62}, s[{S_T0+4}:{S_T0+5}] offset:{256*i}")
        if p < 2:
            A(f"v_add_u32 v{T+62}, {4*1280}, v{T+62}")
    filler()
    for p in range(3):
        A(f"v_mov_b32 v{T+64+2*p}, 0")
    A(f"""v_add_u32 v{T+60}, s{S_T0+1}, v{T+60}
    v_lshlrev_b32 v{T+60}, 3, v{T+60}
    v_add_u32 v{T+60}, {WS_CSB}, v{T+60}""")
    nonce_ready()
    for p in range(3):
        A(f"s_waitcnt vmcnt({10-5*p})")
        for d in range(20):
            A(f"v_dot2c_f32_bf16 v{T+64+2*p}, s{S_ONES}, v{T+20*p+d}")
    A("s_nop 3")
    dpp_reduce16([T + 64, T + 66, T + 68])
    for p in range(3):
        A(f"v_mov_b32 v{T+65+2*p}, s{S_NONCE}")
    A(f"""v_cmp_eq_u32 vcc, 0, v{T+61}
    s_and_saveexec_b64 s[{S_EX}:{S_EX+1}], vcc""")
    for p in range(3):
        A(f"global_store_dwordx2 v{T+60}, v[{T+64+2*p}:{T+65+2*p}], s[{S_WS}:{S_WS+1}] offset:{32*p} sc1")
    A(f"s_mov_b64 exec, s[{S_EX}:{S_EX+1}]")


SJ = 200
PA, PB = OPT.get('pa', 1), OPT.get('pb', 3)
def rows16_loads(T, rowreg, ptr):
    A(f"""v_and_b32 v{T+20}, 15, v{VL}
    v_mul_u32_u24 v{T+21}, 1280, v{rowreg}
    v_lshl_add_u32 v{T+21}, v{T+20}, 4, v{T+21}""")
    for i in range(5):
        A(f"global_load_dwordx4 v[{T+4*i}:{T+4*i+3}], v{T+21}, s[{ptr}:{ptr+1}] offset:{256*i}")
def stat_finish(a, q, rowreg, lanereg, lane):
    A(f"""v_mul_f32 v{a}, 0x3acccccd, v{a}      ; mean
    v_mul_f32 v{q}, 0x3acccccd, v{q}
    v_fma_f32 v{q}, -v{a}, v{a}, v{q}
    v_max_f32 v{q}, 0, v{q}
    v_cvt_pk_bf16_f32 v{q}, v{q}, v{q}
    v_lshlrev_b32 v{q}, 16, v{q}
    v_add_f32 v{q}, 0x3727c5ac, v{q}
    v_cvt_pk_bf16_f32 v{q}, v{q}, v{q}
    v_lshlrev_b32 v{q}, 16, v{q}
    v_sqrt_f32 v{q}, v{q}
    v_lshlrev_b32 v{rowreg}, 3, v{rowreg}
    v_add_u32 v{rowreg}, {WS_STAT}, v{rowreg}
    v_cvt_pk_bf16_f32 v{a}, v{a}, v{q}
    v_mov_b32 v{a+1}, s{S_NONCE}
    v_cmp_eq_u32 vcc, {lane}, v{lanereg}""")
def own_rows(dst):
    A(f"""s_lshr_b32 s{dst}, s{S_XCD}, 1
    s_lshl_b32 s{dst}, s{dst}, 2
    s_add_u32 s{dst}, s{dst}, s{S_J}
    s_lshl_b32 s{dst}, s{dst}, 3
    s_lshl_b32 s{dst+1}, s{S_C}, 7
    s_add_u32 s{dst}, s{dst}, s{dst+1}""")
def mlp_rows_loads():
    A(f"""v_lshrrev_b32 v242, 4, v{VL}
    s_lshl_b32 s{S_T0+1}, s{S_WAVE}, 2
    v_add_u32 v242, s{S_T0+1}, v242
    s_sub_u32 s{S_T0}, s{S_IDX}, 8
    s_min_u32 s{S_T0}, s{S_T0}, 19
    s_lshl_b32 s{S_T0}, s{S_T0}, 3
    s_lshr_b32 s{S_T0+1}, s{S_XCD}, 1
    s_mul_i32 s{S_T0+1}, s{S_T0+1}, 160
    s_add_u32 s{S_T0+2}, s{S_T0}, s{S_T0+1}
    s_bitcmp1_b32 s{S_XCD}, 0
    s_cselect_b32 s{S_T0+4}, s{S_BIM}, s{S_BRE}
    s_cselect_b32 s{S_T0+5}, s{S_BIM+1}, s{S_BRE+1}
    s_cselect_b32 s{S_T0+3}, 640, 0
    v_add_u32 v244, s{S_T0+2}, v242
    v_add_u32 v243, s{S_T0+3}, v244""")
    own_rows(S_T0)
    A(f"v_add_u32 v242, s{S_T0}, v242")
    rows16_loads(SJ, 242, S_X)
    rows16_loads(SJ + 20, 244, S_T0 + 4)
def mlp_rows_work():
    a, q, r = 244, 246, 228
    A(f"v_mov_b32 v{a}, 0\nv_mov_b32 v{q}, 0\nv_mov_b32 v{a+1}, 0\nv_mov_b32 v{q+1}, 0\ns_waitcnt vmcnt({2*(PB-PA)})")
    for d in range(20):
        A(f"v_dot2c_f32_bf16 v{a}, s{S_ONES}, v{SJ+d}")
        A(f"v_dot2c_f32_bf16 v{q}, v{SJ+d}, v{SJ+d}")
        A(f"v_dot2c_f32_bf16 v{[a+1, q+1][d % 2]}, s{S_ONES}, v{SJ+20+d}")
    A(f"s_nop 2\nv_add_f32 v{SJ}, v{a+1}, v{q+1}")
    dpp_reduce16([a, q, SJ])
    stat_finish(a, q, 242, SJ + 40, 0)
    A(f"""v_mov_b32 v{SJ+1}, s{S_NONCE}
    v_lshlrev_b32 v243, 3, v243
    v_add_u32 v243, {WS_CSB}, v243
    s_and_saveexec_b64 s[{S_EX}:{S_EX+1}], vcc
    global_store_dwordx2 v242, v[{a}:{a+1}], s[{S_WS}:{S_WS+1}] sc1
    global_store_dwordx2 v243, v[{SJ}:{SJ+1}], s[{S_WS}:{S_WS+1}] sc1
    s_mov_b64 exec, s[{S_EX}:{S_EX+1}]""")
def mlp_cs_loads():
    T = SJ
    A(f"""s_and_b32 s{S_T0}, s{S_IDX}, 3
    s_lshl_b32 s{S_T0+1}, s{S_CB}, 2
    s_add_u32 s{S_T0+1}, s{S_T0+1}, s{S_T0}
    s_bitcmp1_b32 s{S_IDX}, 2
    s_cselect_b32 s{S_T0}, 48, 0
    s_add_u32 s{S_T0+1}, s{S_T0+1}, s{S_T0}
    s_and_b32 s{S_T0+2}, s{S_XCD}, 1
    s_lshl_b32 s{S_T0+2}, s{S_T0+2}, 1
    s_add_u32 s{S_T0+2}, s{S_T0+2}, s{S_WAVE}
    s_sub_u32 s{S_T0+2}, s{S_T0+2}, 2              ; k quarter
    s_cmp_ge_u32 s{S_T0+1}, 48""")
    srd_sel(SRD_T, S_W3, S_W1, 1966080)
    A(f"""s_cselect_b32 s{S_T0+3}, {48*64}, 0
    s_lshl_b32 s{S_T0+4}, s{S_T0+1}, 6
    s_sub_u32 s{S_T0+4}, s{S_T0+4}, s{S_T0+3}
    s_mul_i32 s{S_T0+5}, s{S_T0+2}, {160*3072}
    s_add_u32 s{S_T0+4}, s{S_T0+4}, s{S_T0+5}      ; soffset
    s_sub_u32 s{S_T0+5}, s{S_WAVE}, 2
    s_mul_i32 s{S_T0+5}, s{S_T0+5}, 10240
    s_add_u32 s{S_T0+5}, s{S_T0+5}, {SCR}
    v_lshrrev_b32 v{T}, 2, v{VL}
    v_and_b32 v{T+1}, 3, v{VL}
    v_mul_u32_u24 v{T}, 3072, v{T}
    v_lshl_add_u32 v{T}, v{T+1}, 4, v{T}""")
    for i in range(10):
        A(f"""s_add_u32 m0, s{S_T0+5}, {1024*i}
        s_add_u32 s{S_T0+7}, s{S_T0+4}, {16*3072*i}
        buffer_load_dwordx4 v{T}, s[{SRD_T}:{SRD_T+3}], s{S_T0+7} offen lds""")
    A(f"""v_lshrrev_b32 v{T+2}, 4, v{VL}
    v_lshlrev_b32 v{T+3}, 5, v{T+2}
    v_lshlrev_b32 v{T+2}, 9, v{T+2}
    v_bfe_u32 v{T}, v{VL}, 2, 2
    v_lshl_add_u32 v{T+2}, v{T}, 6, v{T+2}
    v_lshl_add_u32 v{T+2}, v{T+1}, 3, v{T+2}
    v_add_u32 v{T+2}, s{S_T0+5}, v{T+2}
    s_mul_i32 s{S_T0+2}, s{S_T0+2}, {3072*8}
    s_lshl_b32 s{S_T0+1}, s{S_T0+1}, 8
    s_add_u32 s{S_T0+2}, s{S_T0+2}, s{S_T0+1}
    s_add_u32 s{S_T0+2}, s{S_T0+2}, {WS_CSW}
    v_add_u32 v249, s{S_T0+2}, v{T+3}
    v_and_b32 v{T+1}, 15, v{VL}""")
    for i in range(4):
        A(f"v_mov_b32 v{T+4+i}, s{S_ONES}")
def mlp_cs_work():
    T = SJ
    F = T + 8
    A(f"s_waitcnt vmcnt({2*(PB-PA)})")
    for u in range(2):
        for ks in range(5):
            b = F + (u * 5 + ks) * 4
            A(f"ds_read_b64_tr_b16 v[{b}:{b+1}], v{T+2} offset:{ks*2048+u*32}")
            A(f"ds_read_b64_tr_b16 v[{b+2}:{b+3}], v{T+2} offset:{ks*2048+u*32+256}")
    A(f"v_cmp_eq_u32 vcc, 0, v{T+1}\ns_waitcnt lgkmcnt(0)")
    D = [T, F]
    for u in range(2):
        for ks in range(5):
            b, d = F + (u * 5 + ks) * 4, D[u]
            cin = "0" if ks == 0 else f"v[{d}:{d+3}]"
            A(f"v_mfma_f32_16x16x32_bf16 v[{d}:{d+3}], v[{b}:{b+3}], v[{T+4}:{T+7}], {cin}")
    A("s_nop 7")
    for u in range(2):
        d, o = D[u], F + 4 + 8 * u
        for r in range(4):
            A(f"v_mov_b32 v{o+2*r}, v{d+r}\nv_mov_b32 v{o+2*r+1}, s{S_NONCE}")
    A(f"s_and_saveexec_b64 s[{S_EX}:{S_EX+1}], vcc")
    for u in range(2):
        for h in range(2):
            o = F + 4 + 8 * u + 4 * h
            A(f"global_store_dwordx4 v249, v[{o}:{o+3}], s[{S_WS}:{S_WS+1}] offset:{u*128+h*16} sc1")
    A(f"s_mov_b64 exec, s[{S_EX}:{S_EX+1}]")
def ssm_rows_loads():
    own_rows(S_T0)
    A(f"""v_lshrrev_b32 v246, 5, v{VL}
    s_lshl_b32 s{S_T0+1}, s{S_WAVE}, 1
    s_add_u32 s{S_T0}, s{S_T0}, s{S_T0+1}
    v_add_u32 v246, s{S_T0}, v246
    v_and_b32 v247, 31, v{VL}
    v_mul_u32_u24 v249, 1280, v246
    v_lshl_add_u32 v249, v247, 3, v249""")
    for i in range(5):
        A(f"global_load_dwordx2 v[{236+2*i}:{237+2*i}], v249, s[{S_X}:{S_X+1}] offset:{256*i}")
def ssm_rows_work():
    A(f"v_mov_b32 v249, 0\nv_mov_b32 v251, 0\ns_waitcnt vmcnt({2*(PB-PA)})")
    for d in range(10):
        A(f"v_dot2c_f32_bf16 v249, s{S_ONES}, v{236+d}")
        A(f"v_dot2c_f32_bf16 v251, v{236+d}, v{236+d}")
    A("s_nop 2\nv_mov_b32 v236, v249")
    reduce32([236, 251])
    stat_finish(236, 251, 246, 247, 16)
    A(f"""s_and_saveexec_b64 s[{S_EX}:{S_EX+1}], vcc
    global_store_dwordx2 v246, v[236:237], s[{S_WS}:{S_WS+1}] sc1
    s_mov_b64 exec, s[{S_EX}:{S_EX+1}]""")
def by_wave(lo, hi):
    l1, l2 = A.newlabel("L_bw"), A.newlabel("L_bw")
    A(f"s_cmp_ge_u32 s{S_WAVE}, 2\ns_cbranch_scc1 {l1}")
    lo()
    A(f"s_branch {l2}")
    A.label(l1)
    hi()
    A.label(l2)

def zero_regs(lo, n):
    def f():
        for r in range(lo, lo + n):
            A(f"v_mov_b32 v{r}, 0")
    return f

def rowpat_read(dst, tmp):
    A(f"""v_bfe_u32 v{tmp}, v{VL}, 1, 3
    v_lshrrev_b32 v{dst}, 4, v{VL}
    v_xor_b32 v{tmp}, v{tmp}, v{dst}
    v_and_b32 v{dst}, 15, v{VL}
    v_lshlrev_b32 v{dst}, 7, v{dst}
    v_lshl_add_u32 v{dst}, v{tmp}, 4, v{dst}""")

def touch_inputs(T):
    if not OPT["pf"]:
        return
    G = OPT.get("tg", 64)
    plan = [[(S_X, 10240)], [(S_W1, 7680), (S_BRE, 3200)], [(S_W3, 7680), (S_BIM, 3200)], [(S_W2, 7680), (S_CRE, 3200), (S_CIM, 3200)]]
    done = A.newlabel("L_ti")
    sh = G.bit_length() - 1
    for w, segs in enumerate(plan):
        nx = A.newlabel("L_ti")
        if w < 3:
            A(f"s_cmp_lg_u32 s{S_WAVE}, {w}\ns_cbranch_scc1 {nx}")
        k = 0
        for p, n in segs:
            cnt = n // G
            A(f"s_mul_i32 s{S_T0}, s2, {n}")
            for o in range(0, cnt, 64):
                A(f"""v_add_u32 v{T}, {o}, v{VL}
                v_min_u32 v{T}, {cnt-1}, v{T}
                v_lshlrev_b32 v{T}, {sh}, v{T}
                v_add_u32 v{T}, s{S_T0}, v{T}
                global_load_dword v{244+k}, v{T}, s[{p}:{p+1}]""")
                k += 1
        if w < 3:
            A(f"s_branch {done}")
            A.label(nx)
    A.label(done)
def gemm1_loop(kind):
    mlp = kind == "mlp"
    NB = 8 if mlp else 10
    NS = 5
    SLOT = 16384 if mlp else 20480
    XF = 128 if mlp else 160
    WF = XF + 32
    AX = WF + NB * 4
    AW = AX + 2
    nAW = 4 if mlp else 2
    D = D1 if mlp else OPT["D1S"]
    lg = Queue(A, "lgkmcnt", 15)

    def rd_x(ks, T):
        b = XF + ks * 16 + T * 4
        if OPT["noread"]:
            return
        A(f"ds_read_b128 v[{b}:{b+3}], v{AX+ks} offset:{T*2048}")
        lg.issue(("x", ks))
    def rd_w(j, gen, half=None):
        b = WF + j * 4
        if OPT["noread"]:
            return
        if mlp:
            F, c = j // 2, j % 2
            for h in ((0, 1) if half is None else (half,)):
                A(f"ds_read_b64_tr_b16 v[{b+2*h}:{b+2*h+1}], v{AW+F} offset:{c*8192+1024*h}")
                lg.issue(("w", j, gen))
        else:
            ks, G = j // 5, j % 5
            A(f"ds_read_b128 v[{b}:{b+3}], v{AW+ks} offset:{G*2048}")
            lg.issue(("w", j, gen))
    def mf(j, T, par):
        w = WF + j * 4
        if (OPT["nomfma"] == 1 and T > 0) or OPT["nomfma"] == 2:
            return
        if mlp:
            acc = (j * 4 + T) * 4
            x = XF + par * 16 + T * 4
            A(f"v_mfma_f32_16x16x32_bf16 v[{acc}:{acc+3}], v[{w}:{w+3}], v[{x}:{x+3}], v[{acc}:{acc+3}]")
        else:
            acc = (((j % 5) * 2 + par) * 4 + T) * 4
            x = XF + (j // 5) * 16 + T * 4
            A(f"v_mfma_f32_16x16x32_bf16 v[{acc}:{acc+3}], v[{x}:{x+3}], v[{w}:{w+3}], v[{acc}:{acc+3}]")
    def xreads(par, j):
        k = j + D - NB
        if mlp:
            return [(par ^ 1, T) for T in ([2 * k, 2 * k + 1] if 0 <= k < 2 else [])]
        if par == 1:
            return [(0, T) for T in ([2 * k, 2 * k + 1] if 0 <= k < 2 else [])]
        return [(1, T) for T in ([2 * j, 2 * j + 1] if j < 2 else [])]
    assert mlp or NB - D >= 5

    A(f"s_mov_b32 s{S_SLOT}, 0\ns_mov_b32 s{S_CNT}, 0\ns_mov_b32 s{S_KX}, 0")
    vFP, vFV, vFD = 248, 249, 250
    A(f"s_mov_b32 m0, s{S_FR}\ns_mov_b32 s{S_LMT}, {PA or PB}")
    assert PA
    if OPT.get('pre0', 0):
        gemm2_pre_loads(6 if mlp else 2, PRE if mlp else PRE2)
    flag_wait(1, vFD, vFP)
    A(f"v_add_u32 v{vFP}, 4, v{vFP}")
    if TS:
        A("s_mov_b32 s48, 0\ns_mov_b32 s49, 0")
    ts(2, 2)
    tc(12)
    for j in range(D):
        rd_w(j, 0)
        for ks, T in xreads(1, j + NB - D):
            rd_x(ks, T)
    lbl = f"L_g1_{kind}"
    A(f"""s_mov_b32 s{S_T0}, {SLOT}
    s_mov_b32 s{S_T0+1}, {-(NS-1)*SLOT & 0xffffffff}
    s_mov_b32 s{S_T0+2}, 16384
    s_mov_b32 s{S_T0+3}, {-32768 & 0xffffffff}""")
    A.label(lbl)
    entry = list(lg.q)
    ring = [f"s_add_u32 s{S_SLOT}, s{S_SLOT}, 1\ns_cmp_eq_u32 s{S_SLOT}, {NS}",
            f"s_cselect_b32 s{S_DELTA}, s{S_T0+1}, s{S_T0}\ns_cselect_b32 s{S_SLOT}, 0, s{S_SLOT}"]
    xring = [f"s_add_u32 s{S_KX}, s{S_KX}, 1\ns_cmp_eq_u32 s{S_KX}, 3",
             f"s_cselect_b32 s{S_KW}, s{S_T0+3}, s{S_T0+2}\ns_cselect_b32 s{S_KX}, 0, s{S_KX}"]
    def adv(r, d):
        return f"v_add_u32 v{r}, s{d}, v{r}"
    for par in range(2):
        fill = {}
        if mlp:
            assert D == 4
            fill[(0, 2)] = ring[0]; fill[(1, 2)] = ring[1]
            fill[(2, 2)] = adv(AW, S_DELTA) + "\n" + adv(AW + 1, S_DELTA)
            fill[(6, 2)] = adv(AW + 2, S_DELTA) + f"\ns_add_u32 m0, m0, 4"; fill[(7, 2)] = adv(AW + 3, S_DELTA)
            fill[(0, 3)] = f"v_add_u32 v{vFP}, 4, v{vFP}"
            fpos, cpos, wpos = (1, 3), (3, 0), (7, 2)
            if par == 0:
                fill[(3, 2)] = xring[0]; fill[(3, 3)] = xring[1]
            else:
                fill[(3, 2)] = adv(AX, S_KW) + "\n" + adv(AX + 1, S_KW)
                fill[(7, 3)] = f"s_add_u32 s{S_CNT}, s{S_CNT}, 1\ns_cmp_lt_u32 s{S_CNT}, s{S_LMT}"
        else:
            assert D == 5
            fill[(2, 1)] = ring[0]; fill[(2, 2)] = ring[1]
            fill[(3, 1)] = adv(AW, S_DELTA); fill[(7, 1)] = adv(AW + 1, S_DELTA)
            fill[(1, 3)] = f"v_add_u32 v{vFP}, 4, v{vFP}"
            fill[(8, 3)] = f"s_add_u32 m0, m0, 4"
            fpos, cpos, wpos = (2, 3), (4, 2), (9, 2)
            if par == 0:
                fill[(8, 1)] = xring[0]; fill[(8, 2)] = xring[1]
            else:
                fill[(4, 1)] = adv(AX, S_KW) + "\n" + adv(AX + 1, S_KW)
                fill[(9, 1)] = f"s_add_u32 s{S_CNT}, s{S_CNT}, 1\ns_cmp_lt_u32 s{S_CNT}, s{S_LMT}"
        for j in range(NB):
            tags = [("w", j, par)]
            if j == 0:
                tags.append(("x", par if mlp else 0))
            if j == 5 and not mlp:
                tags.append(("x", 1))
            jn = j + D
            if jn == NB - 1:
                tags.append("flag")
            lg.wait(tags)
            acts = {0: [], 1: [], 2: [], 3: []}
            g = 0
            if jn == NB:
                acts[0].append(lambda: flag_test(None, vFD, vFP, 0, acc=48, split=True))
                g = 1
            wj, wg = (jn, par) if jn < NB else (jn - NB, par ^ 1)
            if mlp:
                acts[g].append(lambda wj=wj, wg=wg: rd_w(wj, wg, 0))
                acts[g + 1].append(lambda wj=wj, wg=wg: rd_w(wj, wg, 1))
                g += 2
            else:
                acts[g].append(lambda wj=wj, wg=wg: rd_w(wj, wg, 0))
                g += 1
            for n_, (ks, T) in enumerate(xreads(par, j)):
                acts[min(g + n_, 3)].append(lambda ks=ks, T=T: rd_x(ks, T))
            for T in range(4):
                mf(j, T, par)
                for f in acts[T]:
                    f()
                if (j, T) in fill:
                    A(fill[(j, T)])
                if (j, T) == fpos:
                    A(f"ds_read_b32 v{vFD}, v{vFP}")
                    lg.issue("flag")
                if (j, T) == cpos:
                    A(f"v_cmp_ne_u32 vcc, s{S_K}, v{vFD}")
                if (j, T) == wpos:
                    A(f"buffer_load_dword v{VZ}, s[{SRD_F}:{SRD_F+3}], 0 offen lds")
    A(f"s_cbranch_scc1 {lbl}")
    lfin = A.newlabel("L_g1e")
    A(f"s_cmp_eq_u32 s{S_CNT}, 10\ns_cbranch_scc1 {lfin}")
    if PA:
        lw_ = A.newlabel("L_g1w")
        A(f"s_cmp_lg_u32 s{S_CNT}, {PA}\ns_cbranch_scc1 {lw_}")
        A(f"s_mov_b32 s{S_FR}, m0")
        nonce_load()
        A(f"s_mov_b64 s[{S_M0}:{S_M0+1}], s[{S_T0}:{S_T0+1}]\ns_mov_b64 s[{S_M1}:{S_M1+1}], s[{S_T0+2}:{S_T0+3}]")
        if mlp:
            by_wave(mlp_rows_loads, mlp_cs_loads)
        else:
            ssm_rows_loads()
        A(f"""s_mov_b64 s[{S_T0}:{S_T0+1}], s[{S_M0}:{S_M0+1}]
        s_mov_b64 s[{S_T0+2}:{S_T0+3}], s[{S_M1}:{S_M1+1}]
        s_mov_b32 m0, s{S_FR}
        s_mov_b32 s{S_LMT}, {PB}
        s_branch {lbl}""")
        A.label(lw_)
    nonce_ready()
    if mlp:
        by_wave(mlp_rows_work, mlp_cs_work)
    else:
        ssm_rows_work()
    A(f"s_mov_b32 s{S_LMT}, 10\ns_branch {lbl}")
    A.label(lfin)
    assert lg.q == entry[len(entry) - len(lg.q):]
    return lg, entry, AX, AW

G2_B = 96
PRE, PRE2 = 200, 236
G2_A = 144
def g2slot(NU, s):
    return (s % 6) * 24576 if NU == 6 else (s % 5) * 8192

def rot_next(s, stepA, stepB, baseB):
    if s == 11:
        A(f"s_mul_i32 s{S_KB}, s{S_R2B}, {stepB}")
        if baseB:
            A(f"s_add_u32 s{S_KB}, s{S_KB}, {baseB}")
    elif s < 11:
        A(f"""s_add_u32 s{S_KB}, s{S_KB}, {stepA}
        s_cmp_eq_u32 s{S_KB}, {12*stepA}
        s_cselect_b32 s{S_KB}, 0, s{S_KB}""")
    elif s < 21:
        A(f"""s_add_u32 s{S_KB}, s{S_KB}, {stepB}
        s_cmp_eq_u32 s{S_KB}, {baseB+10*stepB}
        s_cselect_b32 s{S_KB}, {baseB}, s{S_KB}""")

def gemm2_pre_loads(NU, R):
    A(f"""s_lshl_b32 s{S_T0}, s{S_HB2}, 6
    s_lshl_b32 s{S_T0+1}, s{S_WAVE}, 4
    s_add_u32 s{S_T0}, s{S_T0}, s{S_T0+1}
    v_and_b32 v{R+4*NU+2}, 15, v{VL}
    v_add_u32 v{R+4*NU+2}, s{S_T0}, v{R+4*NU+2}        ; row t
    v_lshrrev_b32 v{R+4*NU+3}, 4, v{VL}
    v_lshlrev_b32 v{R+4*NU+3}, 3, v{R+4*NU+3}
    s_lshl_b32 s{S_T0+1}, s{S_DCOL}, 1
    v_add_u32 v{R+4*NU+3}, s{S_T0+1}, v{R+4*NU+3}
    v_mul_u32_u24 v{R+4*NU}, 1280, v{R+4*NU+2}
    v_add_u32 v{R+4*NU}, v{R+4*NU}, v{R+4*NU+3}""")
    for U in range(NU):
        A(f"global_load_dwordx2 v[{R+2*U}:{R+2*U+1}], v{R+4*NU+(3 if OPT.get('nopre', 0) else 0)}, s[{S_X}:{S_X+1}] offset:{32*U}")
    for U in range(NU):
        A(f"global_load_dwordx2 v[{R+2*NU+2*U}:{R+2*NU+2*U+1}], v{R+4*NU+3}, s[{S_DSK}:{S_DSK+1}] offset:{32*U}")
    A(f"""v_lshlrev_b32 v{R+4*NU+2}, 3, v{R+4*NU+2}
    v_add_u32 v{R+4*NU+2}, {WS_STAT}, v{R+4*NU+2}""")

def gemm2_pre_stat(NU, R):
    if not OPT.get('pre0', 0):
        gemm2_pre_loads(NU, R)
    A(f"global_load_dwordx2 v[{R+4*NU}:{R+4*NU+1}], v{R+4*NU+2}, s[{S_WS}:{S_WS+1}] sc1")

def gemm2_base(NU, R, T):
    st = R + 4 * NU
    lr, lo = A.newlabel("L_st"), A.newlabel("L_st")
    A.label(lr)
    A(f"""v_cmp_ne_u32 vcc, s{S_NONCE}, v{st+1}
    s_nop 1
    s_cbranch_vccz {lo}
    global_load_dwordx2 v[{st}:{st+1}], v{st+2}, s[{S_WS}:{S_WS+1}] sc1
    s_waitcnt vmcnt(0)""")
    spin_tail(lr, lo, 1)
    A.label(lo)
    A(f"""v_and_b32 v{st+1}, 0xffff0000, v{st}
    v_lshlrev_b32 v{st}, 16, v{st}
    v_rcp_f32 v{st+1}, v{st+1}""")
    def unpack(dst, src):
        A(f"""v_lshlrev_b32 v{dst}, 16, v{src}
        v_and_b32 v{dst+1}, 0xffff0000, v{src}
        v_lshlrev_b32 v{dst+2}, 16, v{src+1}
        v_and_b32 v{dst+3}, 0xffff0000, v{src+1}""")
    def rnd(r, t):
        A(f"""v_cvt_pk_bf16_f32 v{t}, v{r}, v{r+1}
        v_cvt_pk_bf16_f32 v{t+1}, v{r+2}, v{r+3}""")
        unpack(r, t)
    for U in range(NU):
        acc = U * 16
        unpack(acc, R + 2 * U)
        unpack(T + 4, R + 2 * NU + 2 * U)
        for h in (0, 2):
            A(f"v_pk_add_f32 v[{T+h}:{T+h+1}], v[{acc+h}:{acc+h+1}], v[{st}:{st+1}] op_sel_hi:[1,0] neg_lo:[0,1] neg_hi:[0,1]")
        rnd(T, T + 8)
        for h in (0, 2):
            A(f"v_pk_mul_f32 v[{T+h}:{T+h+1}], v[{T+h}:{T+h+1}], v[{st}:{st+1}] op_sel:[0,1] op_sel_hi:[1,1]")
        rnd(T, T + 8)
        for h in (0, 2):
            A(f"v_pk_mul_f32 v[{T+h}:{T+h+1}], v[{T+h}:{T+h+1}], v[{T+4+h}:{T+5+h}]")
        rnd(T, T + 8)
        for h in (0, 2):
            A(f"v_pk_add_f32 v[{acc+h}:{acc+h+1}], v[{acc+h}:{acc+h+1}], v[{T+h}:{T+h+1}]")

def BASE_AT(NU):
    return 4 * 24576 if NU == 6 else TR_BASE + 24576
def base_job(NU, R, T):
    A("s_waitcnt lgkmcnt(0)")
    gemm2_pre_stat(NU, R)
    A(f"s_waitcnt vmcnt(0)\ns_setprio {OPT.get('plb', 3)}")
    gemm2_base(NU, R, T)
    A("s_setprio 0")
def base_put(NU, T):
    A(f"s_mov_b32 s{S_T0+6}, {37 if NU == 6 else 21}")
    wait_free(S_T0 + 6)
    A(f"""s_mul_i32 s{S_T0}, s{S_LW}, {NU*1024}
    s_add_u32 s{S_T0}, s{S_T0}, {BASE_AT(NU)}
    v_add_u32 v237, s{S_T0}, v236""")
    for U in range(NU):
        A(f"ds_write_b128 v237, v[{T+12+4*U}:{T+15+4*U}] offset:{1024*U}")
    A("s_waitcnt lgkmcnt(0)")

def gemm2_compute(NU):
    NS2 = 6 if NU == 6 else 5
    SL = NU * 4096
    RED = 0 if NU == 6 else TR_BASE
    V = 240
    vE, vO, vC = V, V + 1, V + 2
    vA = V + 3
    vT = V + 7
    RBY = NU * 32
    A(f"""s_lshl_b32 s{S_T0}, s{S_T0}, 5
    s_add_u32 s{S_T0}, s{S_T0}, s{S_T0+1}
    s_lshl_b32 s{S_T0}, s{S_T0}, 2
    s_add_u32 s{S_T0+3}, s{S_T0}, {WS_FLAG}""")
    R_, T_ = (PRE, 128) if NU == 6 else (200, 160)
    gemm2_pre_stat(NU, R_)
    A(f"""v_lshrrev_b32 v{vT}, 4, v{VL}               ; q
    v_bfe_u32 v{vT+1}, v{VL}, 2, 2                     ; rr
    v_lshl_add_u32 v{vT+1}, v{vT}, 2, v{vT+1}
    s_lshl_b32 s{S_T0}, s{S_WAVE}, 5
    v_add_u32 v{vT+1}, s{S_T0}, v{vT+1}
    v_mul_u32_u24 v{vT+1}, {RBY}, v{vT+1}
    v_and_b32 v{vT+2}, 3, v{VL}
    v_lshl_add_u32 v{vT+1}, v{vT+2}, 3, v{vT+1}
    v_and_b32 v{vT+2}, 1, v{vT}
    v_lshlrev_b32 v{vT+3}, 5, v{vT+2}
    v_add_u32 v{vE}, v{vT+1}, v{vT+3}
    v_sub_u32 v{vO}, v{vT+1}, v{vT+3}
    s_lshl_b32 s{S_T0}, s{S_WAVE}, 1
    v_add_u32 v{vT+2}, s{S_T0}, v{vT+2}                ; chunk = 2w + (q&1)
    v_bfe_u32 v{vT+3}, v{VL}, 1, 3
    v_xor_b32 v{vT+2}, v{vT+2}, v{vT+3}
    v_lshrrev_b32 v{vT}, 1, v{vT}
    v_mul_u32_u24 v{vT}, {NU*2048}, v{vT}
    v_lshl_add_u32 v{vT}, v{vT+2}, 4, v{vT}
    v_and_b32 v{vT+3}, 15, v{VL}
    v_lshl_add_u32 v{vC}, v{vT+3}, 7, v{vT}
    v_lshlrev_b32 v{vT}, 4, v{VL}""")
    for Tp in range(4):
        A(f"""s_add_u32 s{S_T0}, s{S_WAVE}, {Tp}
        s_and_b32 s{S_T0}, s{S_T0}, 3
        s_lshl_b32 s{S_T0}, s{S_T0}, 10
        v_add_u32 v{vA+Tp}, s{S_T0}, v{vT}""")
    A(f"""s_mul_i32 s{S_T0}, s{S_HB2}, {88*4096}
    s_lshl_b32 s{S_T0+1}, s{S_WAVE}, 12
    s_add_u32 s{S_T0}, s{S_T0}, s{S_T0+1}
    s_add_u32 s{S_T0}, s{S_T0}, {WS_ACT}
    s_add_u32 s{SRD_T}, s{S_WS}, s{S_T0}
    s_addc_u32 s{SRD_T+1}, s{S_WS+1}, 0
    s_mov_b32 s{SRD_T+2}, {85*4096}
    s_mov_b32 s{SRD_T+3}, 0x20000
    s_lshl_b32 s{S_KB}, s{S_R2A}, 14""")
    lr, lo = A.newlabel("L_fl"), A.newlabel("L_fl")
    A(f"""s_lshl_b32 s{S_T0}, s{S_HB2}, 7
    s_add_u32 s{S_T0}, s{S_T0}, {WS_FLAG}
    v_and_b32 v{vT+1}, 31, v{VL}
    v_lshlrev_b32 v{vT+1}, 2, v{vT+1}
    v_add_u32 v{vT+1}, s{S_T0}, v{vT+1}
    s_lshr_b32 s{S_T0+1}, s{S_WAVE}, 1
    s_lshl_b32 s{S_T0+1}, 0x555555, s{S_T0+1}
    v_mov_b32 v{vT+2}, s{S_T0+3}
    v_mov_b32 v{vT+3}, s{S_NONCE}
    s_waitcnt vmcnt({2*NU+1})
    s_mov_b64 exec, 1
    global_store_dword v{vT+2}, v{vT+3}, s[{S_WS}:{S_WS+1}] sc1
    s_mov_b64 exec, -1""")
    ts(6, 2)
    A("s_waitcnt vmcnt(1)")
    gemm2_base(NU, R_, T_)
    if OPT.get("nap0", 0):
        A(f"s_sleep {OPT['nap0']}")
    A.label(lr)
    A(f"""global_load_dword v{vT+2}, v{vT+1}, s[{S_WS}:{S_WS+1}] sc1
    s_waitcnt vmcnt(0)
    v_cmp_eq_u32 vcc, s{S_NONCE}, v{vT+2}
    s_nop 1
    s_and_b32 s{S_T0+2}, vcc_lo, s{S_T0+1}
    s_cmp_eq_u32 s{S_T0+2}, s{S_T0+1}
    s_cbranch_scc1 {lo}""")
    spin_tail(lr, lo, 2)
    A.label(lo)
    ts(7, 2)
    tc(14)
    vm = Queue(A, "vmcnt", 63)
    lg = Queue(A, "lgkmcnt", 15)
    def ldA(s):
        b = G2_A + (s % DA) * 16
        for Tp in range(4):
            A(f"buffer_load_dwordx4 v[{b+4*Tp}:{b+4*Tp+3}], v{vA+Tp}, s[{SRD_T}:{SRD_T+3}], s{S_KB} offen{['', ' sc1', ' nt', ' sc0', ' sc0 sc1'][OPT['amod']]}")
            vm.issue(("a", s))
        rot_next(s, 16384, 16384, 12 * 16384)
    def rdB(s, U):
        b = G2_B + (s % 2) * 24 + U * 4
        if s < 12:
            a = vT + 4 if U % 2 == 0 else vT + 5
            A(f"ds_read_b64_tr_b16 v[{b}:{b+1}], v{a} offset:{32*U}")
            A(f"ds_read_b64_tr_b16 v[{b+2}:{b+3}], v{a} offset:{32*U+16*RBY}")
            lg.issue(("b", s, U)); lg.issue(("b", s, U))
        else:
            A(f"ds_read_b128 v[{b}:{b+3}], v{vT+4} offset:{2048*U}")
            lg.issue(("b", s, U))
    def setB(s):
        slot = g2slot(NU, s)
        if s < 12:
            A(f"v_add_u32 v{vT+4}, {slot}, v{vE}\nv_add_u32 v{vT+5}, {slot}, v{vO}")
        else:
            A(f"v_add_u32 v{vT+4}, {slot}, v{vC}")
    vFP, vFV, vFD = vT, vT + 2, vT + 3
    vG = 239
    assert DA <= 5
    peer_addr(vFP, FLG)
    R0 = OPT.get("ramp", 2)
    st = {"nxt": 0}
    def ldA1(s, Tp):
        b = G2_A + (s % DA) * 16
        A(f"buffer_load_dwordx4 v[{b+4*Tp}:{b+4*Tp+3}], v{vA+Tp}, s[{SRD_T}:{SRD_T+3}], s{S_KB} offen sc1")
        vm.issue(("a", s))
        if Tp == 3:
            rot_next(s, 16384, 16384, 12 * 16384)
    for s in range(R0):
        ldA(s)
    st["nxt"] = R0
    A(f"v_mov_b32 v{vFV}, s{S_K}")
    flag_wait(22, vFD, vFP)
    setB(0)
    for U in range(NU):
        rdB(0, U)
    A(f"ds_read_b32 v{vFD}, v{vFP} offset:{4*23}")
    GATE = 12 - (DA - 1)
    def stage(s, limit):
        lg.drain()
        if TS == 2:
            ts(16 + s, 2)
        vm.wait(("a", s))
        todo = []
        n = 0
        while st["nxt"] <= min(limit, s - 1 + DA, 21) and n < 2:
            todo += [(st["nxt"], Tp) for Tp in range(4)]
            st["nxt"] += 1
            n += 1
        acts = []
        if s < 21:
            acts.append(lambda: (A(f"v_cmp_ne_u32 vcc, s{S_K}, v{vFD}"), setB(s + 1)))
            if NU == 6:
                acts.append(lambda: None)
            acts.append(lambda: flag_test(23 + s, vFD, vFP, 4 * (23 + s), split=True))
            for U in range(NU):
                acts.append(lambda U=U: rdB(s + 1, U))
        if s < 20:
            acts.append(lambda: A(f"ds_read_b32 v{vFD}, v{vFP} offset:{4*(24+s)}"))
        acts.append(lambda: A(f"ds_write_b32 v{VFO}, v{vFV} offset:{4*(21+s)}"))
        if s == GATE - 1:
            acts.append(lambda: A(f"v_lshlrev_b32 v{vG}, 4, v{VL}\nv_add_u32 v{vG}, {AUX}, v{vG}\nds_read_b32 v{vG}, v{vG}"))
        lds = [lambda x=x: ldA1(*x) for x in todo]
        nm = 4 * NU
        sched = {i: [] for i in range(nm)}
        per = -(-len(acts) // max(nm - 2, 1))
        for i, f in enumerate(acts):
            sched[i // per].append(f)
        first = min(len(acts) // per, nm - 1) if NU == 6 else 0
        for i, f in enumerate(lds):
            sched[min(first + i * (nm - first) // len(lds), nm - 1)].append(f)
        for U in range(NU):
            for Tp in range(4):
                acc = (U * 4 + Tp) * 4
                w = G2_B + (s % 2) * 24 + U * 4
                a = G2_A + (s % DA) * 16 + Tp * 4
                cin = "0" if (s == 0 and Tp != 0) else f"v[{acc}:{acc+3}]"
                A(f"v_mfma_f32_16x16x32_bf16 v[{acc}:{acc+3}], v[{w}:{w+3}], v[{a}:{a+3}], {cin}")
                for f in sched[U * 4 + Tp]:
                    f()
    llate, ljoin = A.newlabel("L_late"), A.newlabel("L_join")
    for s in range(22):
        if s == GATE:
            assert st["nxt"] == 12
            lg.drain()
            A(f"v_cmp_le_u32 vcc, 3, v{vG}\ns_cbranch_vccz {llate}")
            keep = (list(vm.q), list(lg.q))
            mark = len(A.lines)
            A.label(llate)
            for s2_ in range(GATE, 12):
                stage(s2_, 11)
            lr, lo = A.newlabel("L_fs"), A.newlabel("L_fs")
            A.label(lr)
            A(f"""global_load_dword v{vG}, v{vT+1}, s[{S_WS}:{S_WS+1}] sc1
            s_waitcnt vmcnt(0)
            v_cmp_eq_u32 vcc, s{S_NONCE}, v{vG}
            s_nop 1
            s_lshr_b32 s{S_T0+2}, vcc_lo, 24
            s_cmp_eq_u32 s{S_T0+2}, 0xff
            s_cbranch_scc1 {lo}""")
            spin_tail(lr, lo, 2)
            A.label(lo)
            vm.q = []
            for s2_ in range(12, 12 + DA - 1):
                ldA(s2_)
            A(f"s_branch {ljoin}")
            late_q = (list(vm.q), list(lg.q))
            SLOW.extend(A.lines[mark:])
            del A.lines[mark:]
            vm.q, lg.q = keep
            st["nxt"] = 12
        if s == 12:
            A.label(ljoin)
            assert vm.q[-4*(DA-1):] == late_q[0] and st["nxt"] == 12 + DA - 1
        stage(s, 21)
    ts(8, 2)
    tc(15)
    if NU == 6:
        flag_wait(41, vFD, vFP, 2048)
    A(f"v_lshlrev_b32 v{vT}, 4, v{VL}")
    for Tp in range(1, 4):
        A(f"""s_add_u32 s{S_T0}, s{S_WAVE}, {Tp}
        s_and_b32 s{S_T0}, s{S_T0}, 3
        s_mul_i32 s{S_T0}, s{S_T0}, {3*NU*1024}
        s_add_u32 s{S_T0}, s{S_T0}, {RED + (Tp-1)*NU*1024}
        v_add_u32 v{vT+Tp}, s{S_T0}, v{vT}""")
    A(f"""s_mul_i32 s{S_T0}, s{S_WAVE}, {3*NU*1024}
    s_add_u32 s{S_T0}, s{S_T0}, {RED}
    v_add_u32 v{vT}, s{S_T0}, v{vT}
    s_nop 4""")
    for U in range(NU):
        for Tp in range(1, 4):
            acc = (U * 4 + Tp) * 4
            A(f"ds_write_b128 v{vT+Tp}, v[{acc}:{acc+3}] offset:{U*1024}")
    A(f"""s_lshl_b32 s{S_T0}, s{S_HB2}, 6
    s_lshl_b32 s{S_T0+1}, s{S_WAVE}, 4
    s_add_u32 s{S_T0}, s{S_T0}, s{S_T0+1}
    v_and_b32 v{vA}, 15, v{VL}
    v_add_u32 v{vA}, s{S_T0}, v{vA}
    v_mul_u32_u24 v{vA}, 2560, v{vA}
    v_lshrrev_b32 v{vA+1}, 4, v{VL}
    v_lshl_add_u32 v{vA}, v{vA+1}, 4, v{vA}
    s_lshl_b32 s{S_T0+1}, s{S_DCOL}, 2
    v_add_u32 v{vA}, s{S_T0+1}, v{vA}
    s_waitcnt lgkmcnt(0)
    s_barrier""")
    lg = Queue(A, "lgkmcnt", 15)
    def rdR(U):
        for i in range(3):
            b = (U * 4 + 1 + i) * 4
            A(f"ds_read_b128 v[{b}:{b+3}], v{vT} offset:{(i*NU+U)*1024}")
            lg.issue(("r", U))
    for U in range(min(NU, 4)):
        rdR(U)
    for U in range(NU):
        lg.wait(("r", U))
        acc = U * 16
        for h in (0, 2):
            A(f"v_pk_add_f32 v[{acc+h}:{acc+h+1}], v[{acc+h}:{acc+h+1}], v[{acc+4+h}:{acc+5+h}]")
            A(f"v_pk_add_f32 v[{acc+8+h}:{acc+9+h}], v[{acc+8+h}:{acc+9+h}], v[{acc+12+h}:{acc+13+h}]")
        for h in (0, 2):
            A(f"v_pk_add_f32 v[{acc+h}:{acc+h+1}], v[{acc+h}:{acc+h+1}], v[{acc+8+h}:{acc+9+h}]")
        A(f"global_store_dwordx4 v{vA}, v[{acc}:{acc+3}], s[{S_OUT}:{S_OUT+1}] offset:{64*U}{['', ' sc1', ' nt', ' sc0 sc1'][OPT.get('omod', 2)]}")
        if U + 4 < NU:
            rdR(U + 4)
    ts(9, 2)
    ts_flush(100)
    A("s_endpgm")
    flush_slow()

def publish_flag(idx_code):
    A(f"""s_lshl_b32 s{S_T0}, s{S_T0}, 5
    s_add_u32 s{S_T0}, s{S_T0}, s{S_T0+1}
    s_lshl_b32 s{S_T0}, s{S_T0}, 2
    s_add_u32 s{S_T0}, s{S_T0}, {WS_FLAG}
    v_mov_b32 v250, s{S_T0}
    v_mov_b32 v251, s{S_NONCE}
    s_waitcnt vmcnt({idx_code})
    s_mov_b64 exec, 1
    global_store_dword v250, v251, s[{S_WS}:{S_WS+1}] sc1
    s_mov_b64 exec, -1""")

A.label("L_compute")
A(f"s_setprio {OPT.get('pc1', 2)}")
if OPT.get("pfc", 0):
    A(f"""s_getpc_b64 s[{S_M0}:{S_M0+1}]
    L_pcc:
    s_sub_u32 s{S_M0}, s{S_M0}, L_pcc-L_code_start
    s_subb_u32 s{S_M0+1}, s{S_M0+1}, 0
    v_lshlrev_b32 v2, 7, v0
    v_add_u32 v3, 32768, v2
    v_min_u32 v3, L_code_end-L_code_start-8, v3
    global_load_dword v246, v2, s[{S_M0}:{S_M0+1}]
    global_load_dword v247, v3, s[{S_M0}:{S_M0+1}]""")
A(f"s_waitcnt lgkmcnt(0)\ns_load_dword s{S_K}, s[{S_X}:{S_X+1}], 0")
srd(SRD_F, S_X, 4)
flag_init(FREE, S_WAVE, 248, FLG, None)
A(f"s_mov_b32 s{S_FR}, s{S_T0}")
late_scalars()
A(f"s_cmp_eq_u32 s{S_J}, 0\ns_cbranch_scc1 L_ssm_compute")
A('v_mov_b32 v249, 0')
if PA == 0:
    by_wave(mlp_rows_loads, mlp_cs_loads)
zero_regs(0, 128)()
rowpat_read(192, 198)
A(f"""s_and_b32 s{S_T0}, s{S_WAVE}, 1
s_lshl_b32 s{S_T0}, s{S_T0}, 13
v_add_u32 v192, s{S_T0}, v192
v_xor_b32 v193, 64, v192
v_lshrrev_b32 v198, 4, v{VL}              ; q
v_bfe_u32 v199, v{VL}, 2, 2               ; rr
v_and_b32 v160, 1, v198
v_lshl_add_u32 v160, v160, 2, v199        ; swizzle s
v_lshl_add_u32 v198, v198, 3, v199        ; k row
v_lshlrev_b32 v198, 8, v198
v_and_b32 v199, 3, v{VL}
v_lshl_add_u32 v198, v199, 3, v198
v_add_u32 v198, {WRING}, v198
s_lshr_b32 s{S_T0}, s{S_WAVE}, 1
s_lshl_b32 s{S_T0}, s{S_T0}, 2""")
for F in range(4):
    A(f"""s_add_u32 s{S_T0+1}, s{S_T0}, {F}
    v_xor_b32 v199, s{S_T0+1}, v160
    v_lshl_add_u32 v{194+F}, v199, 5, v198""")
ts(1, 2)
lg, entry, AX, AW = gemm1_loop("mlp")
A("s_waitcnt lgkmcnt(0)")
ts(3, 2)
tc(13)
if TS:
    A("v_writelane_b32 v255, s48, 10\nv_writelane_b32 v255, s49, 11")
if OPT.get("solo", 0):
    ts_flush(100)
    A("s_endpgm")
A(f"s_setprio {OPT.get('pc2', 3)}")
ER = 128
EC = 144
A(f"""s_and_b32 s{S_T0}, s{S_WAVE}, 1
s_lshl_b32 s{S_T0}, s{S_T0}, 10
s_add_u32 s{S_T0}, s{S_T0}, {M_ROW}
v_and_b32 v192, 15, v{VL}
v_lshlrev_b32 v192, 4, v192
v_add_u32 v192, s{S_T0}, v192
s_lshr_b32 s{S_T0}, s{S_WAVE}, 1
s_lshl_b32 s{S_T0}, s{S_T0}, 8
s_add_u32 s{S_T0}, s{S_T0}, {M_CS}
v_lshrrev_b32 v193, 4, v{VL}
v_lshlrev_b32 v193, 4, v193
v_add_u32 v193, s{S_T0}, v193""")
for T in range(4):
    A(f"ds_read_b128 v[{ER+4*T}:{ER+4*T+3}], v192 offset:{256*T}")
for F in range(4):
    for c in range(2):
        b = EC + (F * 2 + c) * 4
        A(f"ds_read_b128 v[{b}:{b+3}], v193 offset:{c*512+F*64}")
A(f"""s_lshl_b32 s{S_T0}, s{S_C}, 1
s_and_b32 s{S_T0+1}, s{S_WAVE}, 1
s_add_u32 s{S_T0}, s{S_T0}, s{S_T0+1}
s_mul_i32 s{S_T0}, s{S_T0}, 88
s_lshl_b32 s{S_T0+1}, s{S_CB}, 2
s_add_u32 s{S_T0}, s{S_T0}, s{S_T0+1}
s_and_b32 s{S_T0+1}, s{S_WAVE}, 2
s_add_u32 s{S_T0}, s{S_T0}, s{S_T0+1}
s_lshl_b32 s{S_T0}, s{S_T0}, 12
s_add_u32 s{S_T0}, s{S_T0}, {WS_ACT}
v_lshlrev_b32 v194, 4, v{VL}
v_add_u32 v194, s{S_T0}, v194
v_add_u32 v195, 4096, v194
s_waitcnt lgkmcnt(0)""")
if TS == 1:
    ts(16, 2)
ET = 176
EO = 184
n = 0
for u in range(2):
    for T in range(4):
        m = ER + 4 * T
        prs = []
        for F in (2 * u, 2 * u + 1):
            for h in (0, 2):
                g = ((F * 2 + 0) * 4 + T) * 4 + h
                up = ((F * 2 + 1) * 4 + T) * 4 + h
                prs.append((g, up, EC + (F * 2) * 4 + h, EC + (F * 2 + 1) * 4 + h))
        for i, (g, up, cg, cu) in enumerate(prs):
            A(f"v_pk_fma_f32 v[{g}:{g+1}], v[{cg}:{cg+1}], v[{m}:{m+1}], v[{g}:{g+1}] op_sel_hi:[1,0,1] neg_lo:[0,1,0] neg_hi:[0,1,0]")
        for i, (g, up, cg, cu) in enumerate(prs):
            e = ET + 2 * i
            A(f"v_pk_mul_f32 v[{e}:{e+1}], v[{g}:{g+1}], v[{m}:{m+1}] op_sel:[0,1] op_sel_hi:[1,1]")
        for i, (g, up, cg, cu) in enumerate(prs):
            e = ET + 2 * i
            A(f"v_exp_f32 v{e}, v{e}\nv_exp_f32 v{e+1}, v{e+1}")
            A(f"v_pk_fma_f32 v[{up}:{up+1}], v[{cu}:{cu+1}], v[{m}:{m+1}], v[{up}:{up+1}] op_sel_hi:[1,0,1] neg_lo:[0,1,0] neg_hi:[0,1,0]")
        for i, (g, up, cg, cu) in enumerate(prs):
            e = ET + 2 * i
            A(f"v_pk_fma_f32 v[{e}:{e+1}], v[{e}:{e+1}], v[{m+2}:{m+3}], v[{m+2}:{m+3}] op_sel_hi:[1,0,0]")
        for i, (g, up, cg, cu) in enumerate(prs):
            e = ET + 2 * i
            A(f"v_rcp_f32 v{e}, v{e}\nv_rcp_f32 v{e+1}, v{e+1}")
            A(f"v_pk_mul_f32 v[{g}:{g+1}], v[{g}:{g+1}], v[{up}:{up+1}]")
        for i, (g, up, cg, cu) in enumerate(prs):
            e = ET + 2 * i
            A(f"v_pk_mul_f32 v[{g}:{g+1}], v[{g}:{g+1}], v[{e}:{e+1}]")
        o = EO + 4 * (n % 2)
        for i, (g, up, cg, cu) in enumerate(prs):
            A(f"v_cvt_pk_bf16_f32 v{o+i}, v{g}, v{g+1}")
        if TS == 1 and n % 2 == 0:
            ts(17 + n, 2)
        if not OPT.get("nost", 0):
            A(f"global_store_dwordx4 v{194+u}, v[{o}:{o+3}], s[{S_WS}:{S_WS+1}] offset:{1024*T} sc1")
        if TS == 1 and n % 2 == 0:
            ts(18 + n, 2)
        n += 1
ts(4, 2)
A(f"""s_lshl_b32 s{S_T0}, s{S_C}, 1
s_and_b32 s{S_T0+1}, s{S_WAVE}, 1
s_add_u32 s{S_T0}, s{S_T0}, s{S_T0+1}
s_lshl_b32 s{S_T0+1}, s{S_CB}, 1
s_lshr_b32 s{S_T0+2}, s{S_WAVE}, 1
s_add_u32 s{S_T0+1}, s{S_T0+1}, s{S_T0+2}""")
gemm2_compute(6)

A.label("L_ssm_compute")
if PA == 0:
    ssm_rows_loads()
zero_regs(0, 160)()
rowpat_read(232, 160)
A(f"""s_lshr_b32 s{S_T0}, s{S_WAVE}, 1
s_mul_i32 s{S_T0}, s{S_T0}, 10240
s_add_u32 s{S_T0}, s{S_T0}, {WRING}
v_add_u32 v234, s{S_T0}, v232
v_xor_b32 v235, 64, v234
s_and_b32 s{S_T0}, s{S_WAVE}, 1
s_lshl_b32 s{S_T0}, s{S_T0}, 13
v_add_u32 v232, s{S_T0}, v232
v_xor_b32 v233, 64, v232""")
ts(1, 2)
lg, entry, AX, AW = gemm1_loop("ssm")
A("s_waitcnt lgkmcnt(0)")
ts(3, 2)
tc(13)
if TS:
    A("v_writelane_b32 v255, s48, 10\nv_writelane_b32 v255, s49, 11")
if OPT.get("solo", 0):
    ts_flush(100)
    A("s_endpgm")
A(f"s_setprio {OPT.get('pc2', 3)}")
def acc(G, c, m, r=0):
    return ((G * 2 + c) * 4 + m) * 4 + r
SM, SR_ = 160, 176
SCS = 192
SLAM = 202
SK = 212
SA = 222
A(f"""s_and_b32 s{S_T0}, s{S_WAVE}, 1
s_lshl_b32 s{S_T0}, s{S_T0}, 8
s_add_u32 s{S_T0}, s{S_T0}, {M_ROW}
v_lshrrev_b32 v{SA}, 4, v{VL}
v_lshlrev_b32 v{SA}, 4, v{SA}
v_add_u32 v{SA}, s{S_T0}, v{SA}
s_lshr_b32 s{S_T0+1}, s{S_WAVE}, 1
s_mul_i32 s{S_T0+1}, s{S_T0+1}, 80
v_and_b32 v{SA+1}, 15, v{VL}
v_add_u32 v{SA+1}, s{S_T0+1}, v{SA+1}
v_lshlrev_b32 v{SA+2}, 2, v{SA+1}
v_add_u32 v{SA+3}, {M_CS}, v{SA+2}
v_lshlrev_b32 v{SA+4}, 3, v{SA+1}
v_add_u32 v{SA+4}, {M_LAM}, v{SA+4}""")
for m in range(4):
    A(f"ds_read_b128 v[{SM+4*m}:{SM+4*m+3}], v{SA} offset:{64*m}")
    A(f"ds_read_b128 v[{SR_+4*m}:{SR_+4*m+3}], v{SA} offset:{512+64*m}")
for G in range(5):
    A(f"ds_read_b32 v{SCS+2*G}, v{SA+3} offset:{64*G}")
    A(f"ds_read_b32 v{SCS+2*G+1}, v{SA+3} offset:{640+64*G}")
for G in range(5):
    A(f"ds_read_b64 v[{SLAM+2*G}:{SLAM+2*G+1}], v{SA+4} offset:{128*G}")
    A(f"ds_read_b64 v[{SK+2*G}:{SK+2*G+1}], v{SA+4} offset:{M_COEF-M_LAM+128*G}")
A(f"""s_and_b32 s{S_T0}, s{S_WAVE}, 1
s_mul_i32 s{S_T0}, s{S_T0}, {8*1280}
s_add_u32 s{S_T0}, s{S_T0}, {E_BASE}
v_lshrrev_b32 v{SA+5}, 4, v{VL}
v_mul_u32_u24 v{SA+5}, 2560, v{SA+5}
v_lshl_add_u32 v{SA+5}, v{SA+2}, 1, v{SA+5}
v_add_u32 v{SA+5}, s{S_T0}, v{SA+5}
v_add_u32 v{SA+7}, 1280, v{SA+5}
s_waitcnt lgkmcnt(0)""")
def pk(op, d, a, b, c=None, sa=None, sb=None, sc=None, neg=None):
    ops = [a, b] + ([c] if c is not None else [])
    sel = [sa, sb] + ([sc] if c is not None else [])
    lo = [0 if s is None else s for s in sel]
    hi = [1 if s is None else s for s in sel]
    t = f"v_pk_{op}_f32 v[{d}:{d+1}], " + ", ".join(f"v[{o}:{o+1}]" for o in ops)
    t += " op_sel:[" + ",".join(map(str, lo)) + "] op_sel_hi:[" + ",".join(map(str, hi)) + "]"
    if neg is not None:
        nn = [1 if i == neg else 0 for i in range(len(ops))]
        t += " neg_lo:[" + ",".join(map(str, nn)) + "] neg_hi:[" + ",".join(map(str, nn)) + "]"
    A(t)
for m in range(4):
    for h in (0, 2):
        for G in range(5):
            for c in range(2):
                a = acc(G, c, m, h)
                pk("fma", a, SM + 4 * m + h, SCS + 2 * G, a, sb=c, neg=1)
        for G in range(5):
            for c in range(2):
                a = acc(G, c, m, h)
                pk("mul", a, a, SR_ + 4 * m + h)
steps = [(m, h) for m in range(4) for h in (0, 2)]
for k in range(1, 8):
    (m, h), (pm, ph) = steps[k], steps[k - 1]
    for G in range(5):
        pk("fma", acc(G, 0, m, h), acc(G, 0, pm, ph), SLAM + 2 * G, acc(G, 0, m, h), sb=0)
        pk("fma", acc(G, 1, m, h), acc(G, 1, pm, ph), SLAM + 2 * G, acc(G, 1, m, h), sb=0)
    for G in range(5):
        pk("fma", acc(G, 0, m, h), acc(G, 1, pm, ph), SLAM + 2 * G, acc(G, 0, m, h), sb=1, neg=1)
        pk("fma", acc(G, 1, m, h), acc(G, 0, pm, ph), SLAM + 2 * G, acc(G, 1, m, h), sb=1)
peer_addr(248, FREE)
flag_wait(17, 250, 248)
for G in range(5):
    for e in range(2):
        A(f"ds_write2_b32 v{SA+5+2*e}, v{acc(G,0,3,2+e)}, v{acc(G,1,3,2+e)} offset0:{32*G} offset1:{32*G+1}")
A("s_waitcnt lgkmcnt(0)\ns_setprio 0\ns_barrier")
ts(4, 2)
for m, h in steps:
    for G in range(5):
        t = SM + 2 * G
        pk("mul", t, acc(G, 0, m, h), SK + 2 * G, sb=1)
    for G in range(5):
        pk("mul", acc(G, 0, m, h), acc(G, 0, m, h), SK + 2 * G, sb=0)
    for G in range(5):
        pk("fma", acc(G, 0, m, h), acc(G, 1, m, h), SK + 2 * G, acc(G, 0, m, h), sb=1)
    for G in range(5):
        t = SM + 2 * G
        pk("fma", acc(G, 1, m, h), acc(G, 1, m, h), SK + 2 * G, t, sb=0, neg=1)
A(f"""s_mul_i32 s{S_T0}, s{S_WAVE}, 20480
s_add_u32 s{S_T0}, s{S_T0}, {TR_BASE}
v_and_b32 v{SA}, 7, v{VL}
v_bfe_u32 v{SA+1}, v{VL}, 3, 1
v_lshlrev_b32 v{SA+1}, 2, v{SA+1}
v_xor_b32 v{SA}, v{SA}, v{SA+1}                ; f
v_lshrrev_b32 v{SA+1}, 4, v{VL}
v_lshlrev_b32 v{SA+1}, 1, v{SA+1}
v_xor_b32 v{SA}, v{SA}, v{SA+1}                ; (2q) ^ f
v_and_b32 v{SA+1}, 15, v{VL}
v_lshlrev_b32 v{SA+1}, 7, v{SA+1}
v_lshl_add_u32 v{SA}, v{SA}, 4, v{SA+1}
v_add_u32 v{SA}, s{S_T0}, v{SA}                ; e = 0
v_xor_b32 v{SA+1}, 16, v{SA}                   ; e = 1
v_lshrrev_b32 v{SA+2}, 4, v{VL}                ; q
v_bfe_u32 v{SA+3}, v{VL}, 2, 2                 ; rr
v_and_b32 v{SA+4}, 1, v{SA+2}
v_lshl_add_u32 v{SA+4}, v{SA+4}, 2, v{SA+3}
v_bfe_u32 v{SA+6}, v{VL}, 1, 1                 ; cc>>1
v_xor_b32 v{SA+4}, v{SA+4}, v{SA+6}
v_lshl_add_u32 v{SA+2}, v{SA+2}, 3, v{SA+3}    ; row
v_lshlrev_b32 v{SA+2}, 7, v{SA+2}
v_lshl_add_u32 v{SA+2}, v{SA+4}, 4, v{SA+2}
v_and_b32 v{SA+3}, 1, v{VL}
v_lshl_add_u32 v{SA+2}, v{SA+3}, 3, v{SA+2}
v_add_u32 v{SA+2}, s{S_T0}, v{SA+2}""")
TA = 176
for Tq in range(4):
    A(f"v_xor_b32 v{TA+2*Tq}, {32*Tq}, v{SA+2}")
    A(f"v_xor_b32 v{TA+2*Tq+1}, {(32*Tq) ^ 64}, v{SA+2}")
A(f"""s_lshl_b32 s{S_T0}, s{S_C}, 1
s_and_b32 s{S_T0+1}, s{S_WAVE}, 1
s_add_u32 s{S_T0}, s{S_T0}, s{S_T0+1}
s_mul_i32 s{S_T0}, s{S_T0}, 88
s_mul_i32 s{S_T0+1}, s{S_CB}, 10
s_add_u32 s{S_T0}, s{S_T0}, s{S_T0+1}
s_lshr_b32 s{S_T0+1}, s{S_WAVE}, 1
s_mul_i32 s{S_T0+1}, s{S_T0+1}, 5
s_add_u32 s{S_T0}, s{S_T0}, s{S_T0+1}
s_add_u32 s{S_T0}, s{S_T0}, 48
s_lshl_b32 s{S_T0}, s{S_T0}, 12
s_add_u32 s{S_T0}, s{S_T0}, {WS_ACT}
v_lshlrev_b32 v{SA+3}, 4, v{VL}
v_add_u32 v{SA+3}, s{S_T0}, v{SA+3}""")
A("s_setprio 3\ns_barrier")
ts(5, 2)
SW = 184
SW = 182
def W(G, c):
    idx = G * 2 + c
    return (160 + 2 * idx) if idx < 8 else (192 + 2 * (idx - 8))
for G in range(5):
    for c in range(2):
        for e in range(2):
            A(f"ds_read_b32 v{W(G,c)+e}, v{SA+5} offset:{e*1280+c*4+128*G}")
A("s_waitcnt lgkmcnt(0)")
lg = Queue(A, "lgkmcnt", 15)
def stores(G):
    for Tq in range(4):
        lg.wait(("t", G, Tq))
        b = G * 32 + 16 + Tq * 4
        A(f"global_store_dwordx4 v{SA+3}, v[{b}:{b+3}], s[{S_WS}:{S_WS+1}] offset:{1024*Tq} sc1")
    if G < 4:
        A(f"v_add_u32 v{SA+3}, 4096, v{SA+3}")
prev = []
for Gs in ((0,), (1, 2), (3, 4)):
    for k, (m, h) in enumerate(steps):
        for G in Gs:
            for c in range(2):
                pk("add", acc(G, c, m, h), acc(G, c, m, h), W(G, c))
        if k < 7:
            for G in Gs:
                pk("mul", 196 + 2 * (G % 2), W(G, 0), SLAM + 2 * G, sb=1)
            for G in Gs:
                pk("mul", W(G, 0), W(G, 0), SLAM + 2 * G, sb=0)
            for G in Gs:
                pk("fma", W(G, 0), W(G, 1), SLAM + 2 * G, W(G, 0), sb=1)
            for G in Gs:
                pk("fma", W(G, 1), W(G, 1), SLAM + 2 * G, 196 + 2 * (G % 2), sb=0, neg=2)
        if k in (1, 3) and prev:
            if TS == 1 and prev[0] == 0:
                ts(16, 2)
            stores(prev.pop(0))
    for G in Gs:
        for c in range(2):
            o = (184 if G % 2 else 232) if c == 0 else G * 32
            for e in range(2):
                for m in range(4):
                    A(f"v_cvt_pk_bf16_f32 v{o+4*e+m}, v{acc(G,c,m,e)}, v{acc(G,c,m,2+e)}")
            for e in range(2):
                A(f"ds_write_b128 v{SA+e}, v[{o+4*e}:{o+4*e+3}] offset:{G*4096+c*2048}")
                lg.issue("w")
        for Tq in range(4):
            b = G * 32 + 16 + Tq * 4
            A(f"ds_read_b64_tr_b16 v[{b}:{b+1}], v{TA+2*Tq} offset:{G*4096}")
            A(f"ds_read_b64_tr_b16 v[{b+2}:{b+3}], v{TA+2*Tq+1} offset:{G*4096+512}")
            lg.issue(("t", G, Tq)); lg.issue(("t", G, Tq))
    prev = list(Gs)
stores(3)
stores(4)
if TS == 1:
    ts(17, 2)
A(f"""s_lshl_b32 s{S_T0}, s{S_C}, 1
s_and_b32 s{S_T0+1}, s{S_WAVE}, 1
s_add_u32 s{S_T0}, s{S_T0}, s{S_T0+1}
s_lshl_b32 s{S_T0+1}, s{S_CB}, 1
s_lshr_b32 s{S_T0+2}, s{S_WAVE}, 1
s_add_u32 s{S_T0+1}, s{S_T0+1}, s{S_T0+2}
s_add_u32 s{S_T0+1}, s{S_T0+1}, 24""")
gemm2_compute(2)

def rowpat_load(dst, tmp, ssm):
    A(f"""v_lshrrev_b32 v{tmp}, 4, v{VL}
    v_xor_b32 v{tmp+1}, v{tmp}, v{VL}
    v_and_b32 v{tmp+1}, 7, v{tmp+1}              ; chunk""")
    if ssm:
        A(f"""v_lshrrev_b32 v{tmp}, 5, v{VL}
        v_lshlrev_b32 v{tmp}, 4, v{tmp}
        v_bfe_u32 v{dst}, v{VL}, 3, 1
        v_lshl_add_u32 v{tmp}, v{dst}, 3, v{tmp}
        v_bfe_u32 v{dst}, v{VL}, 4, 1
        v_add_u32 v{tmp}, v{tmp}, v{dst}""")
        up = 32
    else:
        A(f"v_lshrrev_b32 v{tmp}, 3, v{VL}")
        up = 8
    A(f"""v_mul_u32_u24 v{dst}, 1280, v{tmp}
    v_lshl_add_u32 v{dst}, v{tmp+1}, 4, v{dst}
    v_xor_b32 v{dst+1}, 64, v{dst}
    v_add_u32 v{dst+1}, {up*1280-1024}, v{dst+1}""")

LFP, LFV, LFD, LPA, LPD = 240, 241, 242, 243, 244
S_U, S_XS, S_S2 = 83, 84, 87
S_RET, S_SUB = 90, 30
class NoQ:
    def issue(self, t): pass
    def wait(self, t): pass
NOQ = NoQ()
CAP = OPT.get("cap", 7)
def cap(n=None):
    A(f"s_waitcnt vmcnt({CAP if n is None else n})")
class CapQ:
    def issue(self, t):
        cap()
    def wait(self, t): pass
CAPQ = CapQ()
class Jobs:
    def __init__(self):
        self.q = []
    def add(self, g):
        self.q.append(g)
    def step(self, n=1):
        if not self.q:
            return
        A(f"s_setprio {OPT.get('pls', 3)}")
        while n > 0 and self.q:
            try:
                next(self.q[0])
            except StopIteration:
                self.q.pop(0)
            n -= 1
        A("s_setprio 0")
def run(g):
    for _ in g:
        pass

LAX, LFQ = 245, 246
def declare(sreg):
    A(f"""s_lshl_b32 s{sreg}, s{sreg}, 2
    v_add_u32 v{LFQ}, s{sreg}, v{VFO}
    v_mov_b32 v{LFV}, s{S_K}
    ds_write_b32 v{LFQ}, v{LFV}""")
def wait_free(sreg):
    A(f"s_lshl_b32 s{sreg}, s{sreg}, 2\nv_add_u32 v{LFQ}, s{sreg}, v{LFP}")
    flag_wait(0, LFD, LFQ)
def stamp(idx_sreg, add):
    if TS:
        A(f"""s_memrealtime s[{S_TS}:{S_TS+1}]
        s_add_u32 m0, s{idx_sreg}, {add}
        s_waitcnt lgkmcnt(0)
        v_writelane_b32 v255, s{S_TS}, m0""")

def poll_setup():
    A(f"""s_lshl_b32 s{S_T0}, s{S_HB2}, 7
    s_add_u32 s{S_T0}, s{S_T0}, {WS_FLAG+96}
    v_and_b32 v{LPA}, 7, v{VL}
    v_lshlrev_b32 v{LPA}, 2, v{LPA}
    v_add_u32 v{LPA}, s{S_T0}, v{LPA}""")
def poll_issue():
    A(f"global_load_dword v{LPD}, v{LPA}, s[{S_WS}:{S_WS+1}] sc1")
def poll_check():
    lo = A.newlabel("L_pk")
    A(f"""v_cmp_ne_u32 vcc, s{S_NONCE}, v{LPD}
    s_cbranch_vccnz {lo}
    v_mov_b32 v{LFV}, 3
    ds_write_b32 v{LAX}, v{LFV}""")
    A.label(lo)

VW2, VC2 = 12, 15
def g2_setup(NU, tmp):
    CH = 2 * NU
    magic = (65536 + CH - 1) // CH
    srd(SRD_W2, S_W2, 1966080)
    srd(SRD_C, S_CRE, 819200)
    srd(SRD_T, S_CIM, 819200)
    A(f"s_lshl_b32 s{S_T0}, s{S_DCOL}, 1")
    for i in range(3 if NU == 6 else 1):
        A(f"""v_add_u32 v{tmp}, {64*i}, v{VL}               ; n
        v_mul_u32_u24 v{tmp+1}, {magic}, v{tmp}
        v_lshrrev_b32 v{tmp+1}, 16, v{tmp+1}           ; row
        v_mul_u32_u24 v{tmp+2}, {CH}, v{tmp+1}
        v_sub_u32 v{tmp}, v{tmp}, v{tmp+2}             ; pos
        v_bfe_u32 v{tmp+2}, v{tmp+1}, 2, 1
        v_lshlrev_b32 v{tmp+2}, 1, v{tmp+2}
        v_xor_b32 v{tmp}, v{tmp}, v{tmp+2}
        v_mul_u32_u24 v{tmp+1}, 1280, v{tmp+1}
        v_lshl_add_u32 v{tmp}, v{tmp}, 4, v{tmp+1}
        v_add_u32 v{VW2+i}, s{S_T0}, v{tmp}""")
    for n in range(192):
        assert (n * magic) >> 16 == n // CH
    rowpat_load(VC2, tmp, False)
    A(f"""s_mul_i32 s{S_T0}, s{S_DCOL}, 1280
    v_add_u32 v{VC2}, s{S_T0}, v{VC2}
    v_add_u32 v{VC2+1}, s{S_T0}, v{VC2+1}
    s_add_u32 s{S_S2}, s{S_LW}, 1
    s_and_b32 s{S_S2}, s{S_S2}, 3
    s_add_u32 s{S_KS}, s{S_S2}, s{S_R2A}
    s_cmp_ge_u32 s{S_KS}, 12
    s_cselect_b32 s{S_T0}, 12, 0
    s_sub_u32 s{S_KS}, s{S_KS}, s{S_T0}
    s_mul_i32 s{S_KS}, s{S_KS}, {128*1280}
    v_lshlrev_b32 v236, 4, v{VL}""")
    poll_setup()

def g2_pieces(NU, k):
    out = []
    if k < 3:
        per = 3 if NU == 6 else 1
        for i in range(4 * NU):
            out.append((VW2 + i % per, SRD_W2, (i // per) * 16 * 1280, 0))
    else:
        for i in range(4 * NU):
            mat, ii = i // (2 * NU), i % (2 * NU)
            out.append((VC2 + ii % 2, SRD_T if mat else SRD_C, (ii // 2) * 16 * 1280, 1024 * (ii % 2)))
    return out
def g2_next(k):
    if k == 2:
        A(f"""s_and_b32 s{S_KS}, s{S_S2}, 3
        s_add_u32 s{S_KS}, s{S_KS}, s{S_R2B}
        s_cmp_ge_u32 s{S_KS}, 10
        s_cselect_b32 s{S_T0}, 10, 0
        s_sub_u32 s{S_KS}, s{S_KS}, s{S_T0}
        s_lshl_b32 s{S_KS}, s{S_KS}, 7""")
    else:
        step, n = (128 * 1280, 12) if k < 2 else (128, 10)
        A(f"""s_add_u32 s{S_KS}, s{S_KS}, {4*step}
        s_cmp_ge_u32 s{S_KS}, {n*step}
        s_cselect_b32 s{S_T0}, {n*step}, 0
        s_sub_u32 s{S_KS}, s{S_KS}, s{S_T0}""")
THR = OPT.get("thr", 8)
def g2_to_regs_gen(k, thr, chunk):
    base = 40 + (k % 2) * 96
    last = None
    for i, (v, sd, ex, io) in enumerate(g2_pieces(6, k)):
        if i and i % chunk == 0:
            yield
            last = None
        if ex != last:
            A(f"s_add_u32 s{S_T0+7}, s{S_KS}, {ex}")
            last = ex
        if thr:
            A(f"s_waitcnt vmcnt({thr})")
        A(f"buffer_load_dwordx4 v[{base+4*i}:{base+4*i+3}], v{v}, s[{sd}:{sd+3}], s{S_T0+7} offen offset:{io}")
    g2_next(k)
def g2_to_regs(k, thr=0):
    run(g2_to_regs_gen(k, thr, 99))

def bump_epoch(T):
    lr, lo = A.newlabel("L_ep"), A.newlabel("L_ep")
    ld = A.newlabel("L_ep")
    A(f"""s_cmp_lg_u32 s2, 0
    s_cbranch_scc1 {ld}
    s_cmp_lg_u32 s{S_LW}, 2
    s_cbranch_scc1 {ld}
    v_lshlrev_b32 v{T}, 4, v{VL}
    v_add_u32 v{T}, {WS_FLAG}, v{T}""")
    A.label(lr)
    for i in range(4):
        A(f"global_load_dwordx4 v[{T+4+4*i}:{T+7+4*i}], v{T}, s[{S_WS}:{S_WS+1}] offset:{1024*i} sc1")
    A(f"s_waitcnt vmcnt(0)\ns_mov_b64 s[{S_M0}:{S_M0+1}], 0")
    for i in range(16):
        A(f"v_cmp_ne_u32 vcc, s{S_NONCE}, v{T+4+i}\ns_nop 1\ns_or_b64 s[{S_M0}:{S_M0+1}], s[{S_M0}:{S_M0+1}], vcc")
    A(f"s_cmp_eq_u64 s[{S_M0}:{S_M0+1}], 0\ns_cbranch_scc1 {lo}")
    spin_tail(lr, lo, 4)
    A.label(lo)
    A(f"""v_mov_b32 v{T}, {WS_E}
    v_mov_b32 v{T+1}, s{S_NONCE}
    s_mov_b64 exec, 1
    global_store_dword v{T}, v{T+1}, s[{S_WS}:{S_WS+1}] sc1
    s_mov_b64 exec, -1""")
    A.label(ld)

def prefetch(vm, T, tag):
    if not OPT["pf"]:
        return
    if not OPT.get("pfc", 0):
      for i in range(2):
        vm.issue("pf")
      A(f"""s_getpc_b64 s[{S_M0}:{S_M0+1}]
    L_pc{tag}:
    s_sub_u32 s{S_M0}, s{S_M0}, L_pc{tag}-L_code_start
    s_subb_u32 s{S_M0+1}, s{S_M0+1}, 0
    s_lshl_b32 s{S_T0}, s{S_LW}, 13
    v_lshlrev_b32 v{T}, 7, v{VL}
    v_add_u32 v{T}, s{S_T0}, v{T}
    v_add_u32 v{T+1}, 32768, v{T}
    v_min_u32 v{T+1}, L_code_end-L_code_start-8, v{T+1}
    global_load_dword v250, v{T}, s[{S_M0}:{S_M0+1}]
    global_load_dword v249, v{T+1}, s[{S_M0}:{S_M0+1}]""")
    A(f"""s_cmp_ge_u32 s{S_LW}, 2
    s_cselect_b32 s{S_T0}, 49, 59
    s_mov_b32 s{S_T0+1}, 7680
    s_cmov_b32 s{S_T0+1}, 3200
    s_cselect_b32 s{S_T0+4}, s{S_CRE}, s{S_W2}
    s_cselect_b32 s{S_T0+5}, s{S_CRE+1}, s{S_W2+1}
    s_mul_i32 s{S_T0+1}, s{S_T0+1}, s2
    s_cmp_eq_u32 s{S_LW}, 1
    s_cselect_b32 s{S_T0+2}, 3840, 0
    s_add_u32 s{S_T0+1}, s{S_T0+1}, s{S_T0+2}
    s_cmp_eq_u32 s{S_LW}, 3
    s_cselect_b32 s{S_T0+4}, s{S_CIM}, s{S_T0+4}
    s_cselect_b32 s{S_T0+5}, s{S_CIM+1}, s{S_T0+5}
    v_min_u32 v{T}, s{S_T0}, v{VL}
    v_lshlrev_b32 v{T}, 6, v{T}
    v_add_u32 v{T}, s{S_T0+1}, v{T}
    global_load_dword v248, v{T}, s[{S_T0+4}:{S_T0+5}]""")
    vm.issue("pf")


def head_begin():
    return len(A.lines)
def head_end(mark):
    HEADS.extend(A.lines[mark:])
    del A.lines[mark:]

def issue_sub(kind):
    mlp = kind == "mlp"
    SLOT = 16384 if mlp else 20480
    A.label(f"L_sub_{kind}")
    A(f"s_waitcnt lgkmcnt(0)")
    flag_test(None, LFD, LFQ, 0)
    A.label(f"L_subn_{kind}")
    stamp(S_U, 16)
    lx = A.newlabel("L_is")
    A(f"s_bitcmp1_b32 s{S_U}, 0\ns_cbranch_scc1 {lx}")
    A(f"s_add_u32 m0, s{S_XS}, s{S_T0+9}")
    for h in range(4):
        cap()
        A(f"buffer_load_dwordx4 v{2+h}, s[{SRD_X}:{SRD_X+3}], s{S_KX} offen offset:{1024*h} lds")
    A(f"""s_add_u32 s{S_XS}, s{S_XS}, 16384
    s_cmp_eq_u32 s{S_XS}, {3*16384}
    s_cselect_b32 s{S_XS}, 0, s{S_XS}""")
    if not mlp:
        A(f"s_add_u32 m0, s{S_SLOT}, s{S_T0+8}")
        for h in range(4):
            cap()
            A(f"buffer_load_dwordx4 v{6+h}, s[{SRD_WA}:{SRD_WA+3}], s{S_KX} offen offset:{1024*h} lds")
        A(f"s_add_u32 m0, m0, 4096")
        cap()
        A(f"buffer_load_dwordx4 v10, s[{SRD_WA}:{SRD_WA+3}], s{S_KX} offen lds\ns_branch {lx}b")
    A.label(lx)
    if mlp:
        for mat, sd in enumerate((SRD_WA, SRD_WB)):
            A(f"s_add_u32 m0, s{S_SLOT}, s{S_T0+8}" if mat == 0 else "s_add_u32 m0, m0, 8192")
            for h in range(2):
                cap()
                A(f"buffer_load_dwordx4 v{6+h}, s[{sd}:{sd+3}], s{S_KW} offen offset:{1024*h} lds")
        A(f"""s_add_u32 s{S_KW}, s{S_KW}, {32*3072}
        s_cmp_eq_u32 s{S_KW}, {20*32*3072}
        s_cselect_b32 s{S_KW}, 0, s{S_KW}
        s_bitcmp1_b32 s{S_U}, 0
        s_cbranch_scc0 {lx}b""")
    else:
        A(f"s_add_u32 m0, s{S_SLOT}, s{S_T0+8}")
        for h in range(4):
            cap()
            A(f"buffer_load_dwordx4 v{6+h}, s[{SRD_WB}:{SRD_WB+3}], s{S_KX} offen offset:{1024*h} lds")
        A(f"s_add_u32 m0, m0, 4096")
        cap()
        A(f"buffer_load_dwordx4 v10, s[{SRD_WB}:{SRD_WB+3}], s{S_KX} offen lds")
    A(f"""s_add_u32 s{S_KX}, s{S_KX}, 128
    s_cmp_eq_u32 s{S_KX}, 1280
    s_cselect_b32 s{S_KX}, 0, s{S_KX}""")
    A.label(f"{lx}b")
    A(f"""s_add_u32 s{S_U}, s{S_U}, 1
    s_add_u32 s{S_FM}, s{S_FM}, 4
    v_add_u32 v{LFQ}, 4, v{LFQ}
    s_mov_b32 m0, s{S_FM}
    ds_read_b32 v{LFD}, v{LFQ}
    s_add_u32 s{S_SLOT}, s{S_SLOT}, {SLOT}
    s_cmp_eq_u32 s{S_SLOT}, {5*SLOT}
    s_cselect_b32 s{S_SLOT}, 0, s{S_SLOT}""")
    cap()
    A(f"""buffer_load_dword v{VZ}, s[{SRD_X}:{SRD_X+3}], 0 offen lds
    s_setpc_b64 s[{S_RET}:{S_RET+1}]""")
    flush_slow()
S_FM = 22
def call_sub(check=True):
    if check:
        A(f"s_swappc_b64 s[{S_RET}:{S_RET+1}], s[{S_SUB}:{S_SUB+1}]")
    else:
        A(f"s_swappc_b64 s[{S_RET}:{S_RET+1}], s[{S_SUBN}:{S_SUBN+1}]")
S_SUBN = 32
def declare_dma(sreg=None):
    if sreg is not None:
        A(f"s_lshl_b32 s{sreg}, s{sreg}, 2\ns_add_u32 s{S_FM}, s{S_FM}, s{sreg}")
    A(f"s_mov_b32 m0, s{S_FM}")
    cap()
    A(f"buffer_load_dword v{VZ}, s[{SRD_X}:{SRD_X+3}], 0 offen lds")

def head_rest(kind):
    mlp = kind == "mlp"
    SLOT = 16384 if mlp else 20480
    flag_init(FLG, S_LW, LFP, FREE, LAX)
    A(f"""s_add_u32 s{S_FM}, s{S_T0}, 4
    v_subrev_u32 v{LFQ}, 8, v{LFP}
    s_getpc_b64 s[{S_SUB}:{S_SUB+1}]
    L_gp_{kind}:
    s_add_u32 s{S_SUBN}, s{S_SUB}, L_subn_{kind}-L_gp_{kind}
    s_addc_u32 s{S_SUBN+1}, s{S_SUB+1}, 0
    s_add_u32 s{S_SUB}, s{S_SUB}, L_sub_{kind}-L_gp_{kind}
    s_addc_u32 s{S_SUB+1}, s{S_SUB+1}, 0
    s_mov_b32 s{S_U}, 2
    s_mov_b32 s{S_SLOT}, {2*SLOT}
    s_mov_b32 s{S_XS}, 16384
    s_mov_b32 m0, s{S_FM}
    s_add_u32 s{S_FM}, s{S_FM}, 4
    buffer_load_dword v{VZ}, s[{SRD_X}:{SRD_X+3}], 0 offen lds""")
    if mlp:
        A(f"s_add_u32 s{S_KW}, s{S_KW}, {32*3072}")
        for mat, sd in enumerate((SRD_WA, SRD_WB)):
            A(f"s_add_u32 m0, s{S_T0+8}, {SLOT + mat*8192}\ns_nop 0")
            for h in range(2):
                A(f"buffer_load_dwordx4 v{6+h}, s[{sd}:{sd+3}], s{S_KW} offen offset:{1024*h} lds")
        A(f"""s_add_u32 s{S_KW}, s{S_KW}, {32*3072}
        s_cmp_eq_u32 s{S_KW}, {20*32*3072}
        s_cselect_b32 s{S_KW}, 0, s{S_KW}""")
    else:
        A(f"s_add_u32 m0, s{S_T0+8}, {SLOT}\ns_nop 0")
        for h in range(4):
            A(f"buffer_load_dwordx4 v{6+h}, s[{SRD_WB}:{SRD_WB+3}], s{S_KX} offen offset:{1024*h} lds")
        A(f"s_add_u32 m0, m0, 4096\ns_nop 0\nbuffer_load_dwordx4 v10, s[{SRD_WB}:{SRD_WB+3}], s{S_KX} offen lds")
    A(f"""s_add_u32 s{S_KX}, s{S_KX}, 128
    s_cmp_eq_u32 s{S_KX}, 1280
    s_cselect_b32 s{S_KX}, 0, s{S_KX}""")
    late_scalars()
    declare_dma()
    ts(1, 2)
    for u in range(2, 5):
        call_sub(False)
    nonce_load()
    if OPT.get("solo", 0) >= 2:
        for u in range(5, 20):
            call_sub()
        A(f"s_mov_b32 s{S_T0+6}, 1")
        declare_dma(S_T0 + 6)
        A("s_waitcnt vmcnt(0)")
        ts_flush(100)
        A("s_endpgm")
    A(f"s_branch L_{kind}_loader")
    issue_sub(kind)

GW = OPT.get('gw', 19)
def g1_main(jobs, gran_loads_, gran_work, nstep, early=None):
    for u in range(5, 20):
        if u == GW:
            A(f"s_setprio {OPT.get('pls', 3)}")
            gran_work()
            A("s_setprio 0")
        call_sub()
        if u >= 6 and u % 2 == 0 or u >= 10:
            jobs.step(nstep)
        if early and u >= 20 - early.n:
            early.step()
        if u == GW - 3:
            assert not jobs.q
            gran_loads_()
    A(f"s_add_u32 s{S_T0+6}, s{S_S2}, 1")
    declare_dma(S_T0 + 6)

def finish():
    A("s_barrier")
    bump_epoch(200)
    ts(9, 2)
    ts_flush(100)
    A("s_endpgm")
    flush_slow()

mark = head_begin()
A(f"s_cmp_eq_u32 s{S_J}, 0\ns_cbranch_scc1 L_ssm_head")
rowpat_load(2, 10, False)
A(f"""s_mul_i32 s{S_T0}, s{S_C}, 163840
s_mul_i32 s{S_T0+1}, s{S_LW}, {32*1280}
s_add_u32 s{S_T0}, s{S_T0}, s{S_T0+1}
v_add_u32 v2, s{S_T0}, v2
v_add_u32 v3, s{S_T0}, v3
v_add_u32 v4, {16*1280-2048}, v2
v_add_u32 v5, {16*1280-2048}, v3
v_lshrrev_b32 v10, 4, v{VL}
s_and_b32 s{S_T0}, s{S_LW}, 1
s_lshl_b32 s{S_T0}, s{S_T0}, 2
v_or_b32 v11, s{S_T0}, v10                ; swizzle
v_lshlrev_b32 v11, 1, v11
v_and_b32 v6, 15, v{VL}
v_xor_b32 v11, v11, v6
v_mul_u32_u24 v10, 3072, v10
v_lshl_add_u32 v10, v11, 4, v10
s_mul_i32 s{S_T0}, s{S_LW}, {8*3072}
s_lshl_b32 s{S_T0+1}, s{S_CB}, 8
s_add_u32 s{S_T0}, s{S_T0}, s{S_T0+1}
v_add_u32 v6, s{S_T0}, v10
v_add_u32 v7, {4*3072-1024}, v6
s_lshl_b32 s{S_KX}, s{S_ROT}, 7
s_mul_i32 s{S_KW}, s{S_ROT}, {64*3072}
s_lshl_b32 s{S_T0+9}, s{S_LW}, 12
s_lshl_b32 s{S_T0+8}, s{S_LW}, 11
s_add_u32 s{S_T0+8}, s{S_T0+8}, {WRING}
s_mov_b32 m0, s{S_T0+9}
s_waitcnt lgkmcnt(0)
s_load_dword s{S_K}, s[{S_X}:{S_X+1}], 0""")
srd(SRD_X, S_X, 2621440)
for h in range(4):
    A(f"buffer_load_dwordx4 v{2+h}, s[{SRD_X}:{SRD_X+3}], s{S_KX} offen offset:{1024*h} lds")
srd(SRD_WA, S_W1, 1966080)
srd(SRD_WB, S_W3, 1966080)
for mat, sd in enumerate((SRD_WA, SRD_WB)):
    A(f"s_add_u32 m0, s{S_T0+8}, {mat*8192}\ns_nop 0")
    for h in range(2):
        A(f"buffer_load_dwordx4 v{6+h}, s[{sd}:{sd+3}], s{S_KW} offen offset:{1024*h} lds")
head_rest("mlp")
head_end(mark)
A.label("L_mlp_loader")
vm = NOQ
GA, GD = 18, 22
def gran_loads():
    for i in range(4):
        cap()
        A(f"global_load_dwordx4 v[{GD+4*i}:{GD+3+4*i}], v{GA+i}, s[{S_WS}:{S_WS+1}] sc1")
def mlp_setup3():
    A(f"""s_mul_i32 s{S_T0}, s{S_LW}, {1536*8}
    s_lshl_b32 s{S_T0+1}, s{S_CB}, 10
    s_add_u32 s{S_T0}, s{S_T0}, s{S_T0+1}
    s_add_u32 s{S_T0}, s{S_T0}, {WS_CSW}
    s_lshl_b32 s{S_T0+1}, s{S_C}, 10
    s_add_u32 s{S_T0+1}, s{S_T0+1}, {WS_STAT}
    s_cmp_ge_u32 s{S_LW}, 2
    s_cselect_b32 s{S_T0}, s{S_T0+1}, s{S_T0}
    s_cselect_b32 s{S_T0+1}, 0, {3072*8}
    v_lshlrev_b32 v{GA}, 4, v{VL}
    v_add_u32 v{GA}, s{S_T0}, v{GA}
    v_add_u32 v{GA+1}, s{S_T0+1}, v{GA}
    v_add_u32 v{GA+2}, s{S_T0+1}, v{GA+1}
    v_add_u32 v{GA+3}, s{S_T0+1}, v{GA+2}""")
def mlp_gran():
    if True:
        vm.wait("gran")
        lr, lo, lskip, lstat = A.newlabel("L_gr"), A.newlabel("L_gr"), A.newlabel("L_gr"), A.newlabel("L_gr")
        A(f"s_cmp_eq_u32 s{S_LW}, 2\ns_cbranch_scc1 {lskip}")
        A.label(lr)
        A(f"s_mov_b64 s[{S_M0}:{S_M0+1}], 0")
        for i in range(8):
            A(f"v_cmp_ne_u32 vcc, s{S_NONCE}, v{GD+1+2*i}\ns_nop 1\ns_or_b64 s[{S_M0}:{S_M0+1}], s[{S_M0}:{S_M0+1}], vcc")
        A(f"s_cmp_eq_u64 s[{S_M0}:{S_M0+1}], 0\ns_cbranch_scc1 {lo}")
        gran_loads()
        A("s_waitcnt vmcnt(0)")
        spin_tail(lr, lo, 5)
        A.label(lo)
        A(f"s_cmp_eq_u32 s{S_LW}, 3\ns_cbranch_scc1 {lstat}")
        A(f"""v_add_f32 v{GD}, v{GD}, v{GD+4}
        v_add_f32 v{GD+2}, v{GD+2}, v{GD+6}
        v_add_f32 v{GD+8}, v{GD+8}, v{GD+12}
        v_add_f32 v{GD+10}, v{GD+10}, v{GD+14}
        v_add_f32 v{GD}, v{GD}, v{GD+8}
        v_add_f32 v{GD+1}, v{GD+2}, v{GD+10}
        s_lshl_b32 s{S_T0}, s{S_LW}, 9
        s_add_u32 s{S_T0}, s{S_T0}, {M_CS}
        v_lshlrev_b32 v{GD+2}, 3, v{VL}
        v_add_u32 v{GD+2}, s{S_T0}, v{GD+2}
        ds_write_b64 v{GD+2}, v[{GD}:{GD+1}]
        s_branch {lskip}""")
        A.label(lstat)
        for hrow, p in ((0, GD), (1, GD + 2)):
            o = GD + 4 + 4 * hrow
            A(f"""v_and_b32 v{o+2}, 0xffff0000, v{p}
            v_lshlrev_b32 v{o}, 16, v{p}
            v_rcp_f32 v{o+1}, v{o+2}
            v_mul_f32 v{o+2}, v{o+2}, v{o+2}
            v_mul_f32 v{o+1}, {NLOG2E}, v{o+1}""")
        A(f"""v_lshlrev_b32 v{GD+2}, 5, v{VL}
        v_add_u32 v{GD+2}, {M_ROW}, v{GD+2}
        ds_write_b128 v{GD+2}, v[{GD+4}:{GD+7}]
        ds_write_b128 v{GD+2}, v[{GD+8}:{GD+11}] offset:16""")
        A.label(lskip)
        A("s_waitcnt lgkmcnt(0)")

nonce_ready()
def only2(fn):
    l = A.newlabel("L_nc")
    A(f"s_cmp_lg_u32 s{S_LW}, 2\ns_cbranch_scc1 {l}")
    fn()
    A.label(l)
    return
    yield
def one(fn):
    fn()
    return
    yield
jobs = Jobs()
jobs.add(one(mlp_setup3))
jobs.add(one(lambda: g2_setup(6, 232)))
def mg():
    mlp_gran()
class Early:
    def __init__(self):
        self.ch = OPT.get("ech", 6)
        self.n = OPT.get("en", 0)
        self.q = [g2_to_regs_gen(0, OPT.get('thr0', CAP), self.ch)]
    def step(self):
        if self.q:
            try:
                next(self.q[0])
            except StopIteration:
                self.q.pop(0)
early = Early()
g1_main(jobs, gran_loads, mg, 1, early)
ts(47, 2)
while early.q:
    early.step()
ts(48, 2)
A(f"s_setprio {OPT.get('pl2', 0)}")
A(f"s_mul_i32 s{S_SLOT}, s{S_S2}, 24576")
def m_put(k, young, g=None):
    A(f"s_add_u32 s{S_T0+6}, s{S_S2}, 15\ns_max_u32 s{S_T0+6}, s{S_T0+6}, 20")
    wait_free(S_T0 + 6)
    A(f"s_waitcnt vmcnt({young})")
    base = 40 + (k % 2) * 96
    A(f"v_add_u32 v237, s{S_SLOT}, v236")
    for i in range(24):
        A(f"ds_write_b128 v237, v[{base+4*i}:{base+4*i+3}] offset:{1024*i}")
        if g is not None and i % (3 if k else 2) == 1:
            next(g, None)
    A(f"""s_add_u32 s{S_S2}, s{S_S2}, 4
    s_add_u32 s{S_T0+6}, s{S_S2}, 21""")
    declare(S_T0 + 6)
    ts(40 + k, 2)
    A(f"""s_add_u32 s{S_SLOT}, s{S_SLOT}, {4*24576}
    s_cmp_ge_u32 s{S_SLOT}, {6*24576}
    s_cselect_b32 s{S_T0}, {6*24576}, 0
    s_sub_u32 s{S_SLOT}, s{S_SLOT}, s{S_T0}""")
    if g is not None:
        run(g)
        ts(49 + k, 2)
    A("s_waitcnt lgkmcnt(0)")
def m_gen(k, first):
    g = g2_to_regs_gen(k, OPT.get('thr1', CAP) if k == 1 else THR if k < 4 else OPT.get('thr2', 8), 1)
    for _ in range(first):
        next(g)
    return g
m_put(0, 0, m_gen(1, 0))
la, lb_ = A.newlabel("L_k"), A.newlabel("L_k")
A(f"s_cmp_ge_u32 s{S_S2}, 6\ns_cbranch_scc1 {la}")
m_put(1, 8, m_gen(2, 8))
A(f"s_branch {lb_}")
A.label(la)
run(m_gen(2, 0))
m_put(1, 24)
A.label(lb_)
g_ = m_gen(3, 8)
poll_issue()
m_put(2, 9, g_)
A("s_waitcnt vmcnt(16)")
poll_check()
m_put(3, 8, m_gen(4, 8))
A(f"s_cmp_ge_u32 s{S_S2}, 18\ns_cbranch_scc1 {la}x")
m_put(4, 8, m_gen(5, 8))
A(f"s_branch {lb_}x")
A.label(f"{la}x")
m_put(4, 0)
A.label(f"{lb_}x")
A(f"s_cmp_ge_u32 s{S_S2}, 22\ns_cbranch_scc1 {la}y")
m_put(5, 0)
A.label(f"{la}y")
finish()

mark = head_begin()
A.label("L_ssm_head")
rowpat_load(2, 14, True)
rowpat_load(6, 14, False)
A(f"""s_mul_i32 s{S_T0}, s{S_C}, 163840
s_lshr_b32 s{S_T0+1}, s{S_LW}, 1
s_mul_i32 s{S_T0+1}, s{S_T0+1}, {64*1280}
s_add_u32 s{S_T0}, s{S_T0}, s{S_T0+1}
s_and_b32 s{S_T0+1}, s{S_LW}, 1
s_mul_i32 s{S_T0+1}, s{S_T0+1}, {4*1280}
s_add_u32 s{S_T0}, s{S_T0}, s{S_T0+1}
v_add_u32 v2, s{S_T0}, v2
v_add_u32 v3, s{S_T0}, v3
v_add_u32 v4, {2*1280-2048}, v2
v_add_u32 v5, {2*1280-2048}, v3""")
A(f"""v_add_u32 v7, {1024-8*1280 & 0xffffffff}, v7
s_mul_i32 s{S_T0}, s{S_CB}, {160*1280}
s_mul_i32 s{S_T0+1}, s{S_LW}, {40*1280}
s_add_u32 s{S_T0}, s{S_T0}, s{S_T0+1}
s_bitcmp1_b32 s{S_LW}, 0
s_cselect_b64 vcc, -1, 0
v_add_u32 v6, s{S_T0}, v6
v_add_u32 v7, s{S_T0}, v7
v_cndmask_b32 v12, v6, v7, vcc
v_cndmask_b32 v13, v7, v6, vcc
v_mov_b32 v6, v12
v_add_u32 v7, {8*1280-1024}, v13
v_add_u32 v8, {16*1280-2048}, v12
v_add_u32 v9, {24*1280-3072}, v13
v_add_u32 v10, {32*1280}, v12
s_lshl_b32 s{S_KX}, s{S_ROT}, 7
s_lshl_b32 s{S_T0+9}, s{S_LW}, 12
s_mul_i32 s{S_T0+8}, s{S_LW}, 5120
s_add_u32 s{S_T0+8}, s{S_T0+8}, {WRING}
s_mov_b32 m0, s{S_T0+9}
s_waitcnt lgkmcnt(0)
s_load_dword s{S_K}, s[{S_X}:{S_X+1}], 0""")
srd(SRD_X, S_X, 2621440)
for h in range(4):
    A(f"buffer_load_dwordx4 v{2+h}, s[{SRD_X}:{SRD_X+3}], s{S_KX} offen offset:{1024*h} lds")
srd(SRD_WA, S_BRE, 819200)
srd(SRD_WB, S_BIM, 819200)
A(f"s_mov_b32 m0, s{S_T0+8}\ns_nop 0")
for h in range(4):
    A(f"buffer_load_dwordx4 v{6+h}, s[{SRD_WA}:{SRD_WA+3}], s{S_KX} offen offset:{1024*h} lds")
A(f"s_add_u32 m0, m0, 4096\ns_nop 0\nbuffer_load_dwordx4 v10, s[{SRD_WA}:{SRD_WA+3}], s{S_KX} offen lds")
head_rest("ssm")
head_end(mark)
A.label("L_ssm_loader")
CN = 100
LR, LI = 102, 103
L8, L128, KL = 104, 106, 108
def const_loads():
    A(f"""s_lshl_b32 s{S_T0}, s{S_LW}, 6
    v_add_u32 v{CN}, s{S_T0}, v{VL}
    v_min_u32 v{CN}, 159, v{CN}
    s_mul_i32 s{S_T0}, s{S_CB}, 160
    v_add_u32 v110, s{S_T0}, v{CN}
    v_lshlrev_b32 v110, 1, v110
    global_load_ushort v111, v110, s[{S_LRE}:{S_LRE+1}]
    global_load_ushort v112, v110, s[{S_LIM}:{S_LIM+1}]
    global_load_ushort v113, v110, s[{S_LDT}:{S_LDT+1}]""")
def ssm_setup3():
  A(f"""v_cmp_le_u32 vcc, 80, v{CN}
v_mov_b32 v41, 0
v_mov_b32 v42, {640-160}
v_cndmask_b32 v41, v41, v42, vcc
v_lshl_add_u32 v41, v{CN}, 1, v41
s_mul_i32 s{S_T0}, s{S_CB}, 160
v_add_u32 v41, s{S_T0}, v41
v_lshlrev_b32 v41, 3, v41
v_add_u32 v41, {WS_CSB}, v41
s_lshl_b32 s{S_T0+1}, s{S_C}, 10
s_add_u32 s{S_T0+1}, s{S_T0+1}, {WS_STAT}
v_lshlrev_b32 v40, 4, v{VL}
v_add_u32 v40, s{S_T0+1}, v40
s_cmp_eq_u32 s{S_LW}, 3
s_cselect_b64 vcc, -1, 0
s_nop 1
v_cndmask_b32 v40, v41, v40, vcc""")
def cmul(d, a, b, t):
    A(f"""v_mul_f32 v{t}, v{a+1}, v{b+1}
    v_mul_f32 v{t+1}, v{a+1}, v{b}
    v_fma_f32 v{t}, v{a}, v{b}, -v{t}
    v_fma_f32 v{d+1}, v{a}, v{b+1}, v{t+1}
    v_mov_b32 v{d}, v{t}""")
def ssm_consts():
    A(f"""v_lshlrev_b32 v111, 16, v111
    v_lshlrev_b32 v112, 16, v112
    v_lshlrev_b32 v113, 16, v113
    v_mul_f32 v113, {LOG2E}, v113
    v_exp_f32 v113, v113
    v_mul_f32 v114, v111, v111
    v_fma_f32 v114, v112, v112, v114
    v_cvt_pk_bf16_f32 v113, v113, v113
    v_lshlrev_b32 v113, 16, v113              ; dt
    v_rcp_f32 v114, v114
    v_mul_f32 v115, v113, v111
    v_mul_f32 v116, v113, v112
    v_mul_f32 v115, {LOG2E}, v115
    v_mul_f32 v116, 0.15915494, v116
    v_exp_f32 v115, v115
    v_rndne_f32 v117, v116
    v_sub_f32 v116, v116, v117
    v_cos_f32 v117, v116
    v_sin_f32 v116, v116
    v_add_f32 v114, v114, v114
    v_mul_f32 v{LR}, v115, v117
    v_mul_f32 v{LI}, v115, v116
    v_add_f32 v115, -1.0, v{LR}
    v_mul_f32 v116, v{LI}, v112
    v_fma_f32 v116, v115, v111, v116
    v_mul_f32 v117, v115, v112
    v_fma_f32 v117, v{LI}, v111, -v117        ; Im
    v_mul_f32 v118, v116, v114
    v_mul_f32 v119, -v117, v114
    v_lshlrev_b32 v120, 3, v{CN}
    v_add_u32 v120, {M_LAM}, v120
    ds_write_b64 v120, v[{LR}:{LI}]
    ds_write_b64 v120, v[118:119] offset:{M_COEF-M_LAM}
    v_mul_f32 v{KL}, v118, v{LR}
    v_fma_f32 v{KL}, v119, v{LI}, v{KL}
    v_mul_f32 v{KL+1}, v119, v{LR}
    v_fma_f32 v{KL+1}, -v118, v{LI}, v{KL+1}""")
    yield
    cmul(L8, LR, LR, 114)
    cmul(L8, L8, L8, 114)
    cmul(L8, L8, L8, 114)
    cmul(L128, L8, L8, 114)
    for i in range(3):
        cmul(L128, L128, L128, 114)
def ssm_gran():
    if True:
        vm.wait("gran")
        lr, lo, lskip, lstat = A.newlabel("L_gr"), A.newlabel("L_gr"), A.newlabel("L_gr"), A.newlabel("L_gr")
        A.label(lr)
        A(f"""v_cmp_ne_u32 vcc, s{S_NONCE}, v45
        v_cmp_ne_u32 s[{S_M0}:{S_M0+1}], s{S_NONCE}, v47
        s_nop 1
        s_or_b64 s[{S_M0}:{S_M0+1}], s[{S_M0}:{S_M0+1}], vcc
        s_cmp_eq_u64 s[{S_M0}:{S_M0+1}], 0
        s_cbranch_scc1 {lo}
        global_load_dwordx4 v[44:47], v40, s[{S_WS}:{S_WS+1}] sc1
        s_waitcnt vmcnt(0)""")
        spin_tail(lr, lo, 6)
        A.label(lo)
        A(f"""s_cmp_eq_u32 s{S_LW}, 3
        s_cbranch_scc1 {lstat}
        v_mov_b32 v45, v46
        v_lshlrev_b32 v46, 3, v{CN}
        v_add_u32 v46, {M_CS}, v46
        ds_write_b64 v46, v[44:45]
        s_branch {lskip}""")
        A.label(lstat)
        A(f"""v_and_b32 v48, 0xffff0000, v44
        v_and_b32 v49, 0xffff0000, v46
        v_rcp_f32 v48, v48
        v_rcp_f32 v49, v49
        v_lshlrev_b32 v44, 16, v44
        v_lshlrev_b32 v46, 16, v46
        v_and_b32 v50, 32, v{VL}
        v_lshlrev_b32 v50, 1, v50
        v_and_b32 v51, 3, v{VL}
        v_lshl_add_u32 v50, v51, 4, v50
        v_bfe_u32 v51, v{VL}, 3, 2
        v_lshl_add_u32 v50, v51, 2, v50
        v_bfe_u32 v51, v{VL}, 2, 1
        v_add_u32 v50, v50, v51
        v_lshlrev_b32 v50, 2, v50
        v_add_u32 v50, {M_ROW}, v50
        ds_write2_b32 v50, v44, v46 offset0:0 offset1:2
        ds_write2_b32 v50, v48, v49 offset0:128 offset1:130""")
        A.label(lskip)
        A("s_waitcnt lgkmcnt(0)")

nonce_ready()
const_loads()
jobs = Jobs()
jobs.add(one(lambda: None))
jobs.add(ssm_consts())
jobs.add(one(ssm_setup3))
jobs.add(one(lambda: g2_setup(2, 232)))
def gs():
    A(f"global_load_dwordx4 v[44:47], v40, s[{S_WS}:{S_WS+1}] sc1")
g1_main(jobs, gs, ssm_gran, 1)
A(f"s_lshl_b32 s{S_SLOT}, s{S_S2}, 13")
SB = [52, 52, 112, 144, 176, 52]
def s_load(k):
    for i, (v, sd, ex, io) in enumerate(g2_pieces(2, k)):
        A(f"s_add_u32 s{S_T0+7}, s{S_KS}, {ex}")
        if k >= 2:
            cap(OPT.get("scap", 2))
        A(f"buffer_load_dwordx4 v[{SB[k]+4*i}:{SB[k]+4*i+3}], v{v}, s[{sd}:{sd+3}], s{S_T0+7} offen offset:{io}")
    g2_next(k)
def s_put(k, young):
    A(f"s_add_u32 s{S_T0+6}, s{S_S2}, 16\ns_max_u32 s{S_T0+6}, s{S_T0+6}, 20")
    wait_free(S_T0 + 6)
    A(f"s_waitcnt vmcnt({young})\nv_add_u32 v237, s{S_SLOT}, v236")
    for i in range(8):
        A(f"ds_write_b128 v237, v[{SB[k]+4*i}:{SB[k]+4*i+3}] offset:{1024*i}")
    A(f"""s_add_u32 s{S_S2}, s{S_S2}, 4
    s_add_u32 s{S_T0+6}, s{S_S2}, 21""")
    declare(S_T0 + 6)
    A(f"""s_add_u32 s{S_SLOT}, s{S_SLOT}, {4*8192}
    s_cmp_ge_u32 s{S_SLOT}, {5*8192}
    s_cselect_b32 s{S_T0}, {5*8192}, 0
    s_sub_u32 s{S_SLOT}, s{S_SLOT}, s{S_T0}""")
s_load(0)
s_put(0, 0)
A("s_waitcnt lgkmcnt(0)")
s_load(1)
A("s_setprio 3\ns_barrier")
ts(4, 2)
lmid = A.newlabel("L_mid")
A(f"s_cmp_eq_u32 s{S_LW}, 3\ns_cbranch_scc1 {lmid}")
ME = 112
ML = 144
MT = 204
A(f"""v_lshlrev_b32 v{MT}, 3, v{CN}
v_add_u32 v{MT}, {E_BASE}, v{MT}""")
for j in range(16):
    A(f"ds_read_b64 v[{ME+2*j}:{ME+2*j+1}], v{MT} offset:{j*1280}")
A(f"""s_lshl_b32 s{S_T0}, s{S_CB}, 4
s_mul_i32 s{S_T0}, s{S_T0}, 2560
s_add_u32 s{S_T0}, s{S_T0}, {WS_SCAN}
v_lshlrev_b32 v{MT+1}, 4, v{CN}
v_add_u32 v{MT+1}, s{S_T0}, v{MT+1}
s_mul_i32 s{S_T0}, s{S_C}, 2560
v_add_u32 v{MT+2}, s{S_T0}, v{MT+1}
v_mov_b32 v{MT+5}, s{S_NONCE}
v_mov_b32 v{MT+7}, s{S_NONCE}""")
def cfma(d, a, b, c, conj_a=False, conj_b=False):
    nb = " neg_hi:[0,1,0]" if conj_b else ""
    if c is None:
        A(f"v_pk_mul_f32 v[{d}:{d+1}], v[{a}:{a+1}], v[{b}:{b+1}] op_sel_hi:[0,1]" + (" neg_hi:[0,1]" if conj_b else ""))
        c = d
    else:
        A(f"v_pk_fma_f32 v[{d}:{d+1}], v[{a}:{a+1}], v[{b}:{b+1}], v[{c}:{c+1}] op_sel_hi:[0,1,1]{nb}")
    slo = 1 ^ conj_a ^ conj_b
    shi = int(conj_a)
    A(f"v_pk_fma_f32 v[{d}:{d+1}], v[{a}:{a+1}], v[{b}:{b+1}], v[{d}:{d+1}] op_sel:[1,1,0] op_sel_hi:[1,0,1] neg_lo:[{slo},0,0] neg_hi:[{shi},0,0]")
for j in range(1, 16):
    if j in (1, 5, 9, 13):
        A(f"s_waitcnt lgkmcnt({max(0, 11 - j + 1 - 0) if j < 13 else 0})")
    cfma(ME + 2 * j, L8, ME + 2 * j - 2, ME + 2 * j)
A(f"""v_mov_b32 v{MT+4}, v{ME+30}
v_mov_b32 v{MT+6}, v{ME+31}
global_store_dwordx4 v{MT+2}, v[{MT+4}:{MT+7}], s[{S_WS}:{S_WS+1}] sc1""")
ts(5, 2)
lr, lo, lld, lck, lh = [A.newlabel("L_lb") for _ in range(5)]
def lb_loads(lbl):
    A(f"v_mov_b32 v{MT+3}, v{MT+1}")
    for k in range(15):
        A(f"""s_cmp_le_u32 s{S_C}, {k}
        s_cbranch_scc1 {lbl}
        global_load_dwordx4 v[{ML+4*k}:{ML+4*k+3}], v{MT+3}, s[{S_WS}:{S_WS+1}] sc1
        v_add_u32 v{MT+3}, 2560, v{MT+3}""")
    A.label(lbl)
lb_loads(lld)
for j in range(15, 0, -1):
    cfma(ME + 2 * j, KL, ME + 2 * j - 2, None, conj_b=True)
MP = 16
A(f"v_mov_b32 v{MP+2}, v{L8}\nv_sub_f32 v{MP+3}, 0, v{L8+1}")
for j in range(2, 14):
    cfma(MP + 2 * j, MP + 2, MP + 2 * j - 2, None)
A(f"v_mov_b32 v{ME}, 0\nv_mov_b32 v{ME+1}, 0")
A.label(lr)
A(f"s_waitcnt vmcnt(0)\ns_mov_b64 s[{S_M0}:{S_M0+1}], 0")
for k in range(15):
    A(f"""s_cmp_le_u32 s{S_C}, {k}
    s_cbranch_scc1 {lck}
    v_cmp_ne_u32 vcc, s{S_NONCE}, v{ML+4*k+1}
    v_cmp_ne_u32 s[{S_M1}:{S_M1+1}], s{S_NONCE}, v{ML+4*k+3}
    s_nop 1
    s_or_b64 s[{S_M0}:{S_M0+1}], s[{S_M0}:{S_M0+1}], vcc
    s_or_b64 s[{S_M0}:{S_M0+1}], s[{S_M0}:{S_M0+1}], s[{S_M1}:{S_M1+1}]""")
A.label(lck)
A(f"s_cmp_eq_u64 s[{S_M0}:{S_M0+1}], 0\ns_cbranch_scc1 {lo}")
lb_loads(A.newlabel("L_lb"))
spin_tail(lr, lo, 7)
A.label(lo)
ts(6, 2)
H = MT + 4
A(f"v_mov_b32 v{H}, 0\nv_mov_b32 v{H+1}, 0")
for k in range(15):
    g = ML + 4 * k
    A(f"""s_cmp_le_u32 s{S_C}, {k}
    s_cbranch_scc1 {lh}
    v_mov_b32 v{g+1}, v{g+2}""")
    cfma(g, L128, H, g)
    A(f"v_mov_b64 v[{H}:{H+1}], v[{g}:{g+1}]")
A.label(lh)
Q = MT + 6
cfma(Q, KL, H, None, conj_b=True)
A(f"v_pk_add_f32 v[{ME}:{ME+1}], v[{ME}:{ME+1}], v[{Q}:{Q+1}]")
A(f"ds_write_b64 v{MT}, v[{ME}:{ME+1}]")
for j in range(1, 16):
    d = ME + 2 * j
    if j == 14:
        cfma(H, MP + 4, Q, None)
    if j < 14:
        cfma(d, MP + 2 * j, Q, d)
    else:
        cfma(d, MP + 2 * (j - 2), H, d)
    A(f"ds_write_b64 v{MT}, v[{d}:{d+1}] offset:{j*1280}")
A("s_waitcnt lgkmcnt(0)")
A.label(lmid)
A("s_setprio 0\ns_barrier")
ts(7, 2)
s_load(2)
s_put(1, 8)
for k in (3, 4):
    s_load(k)
poll_issue()
lskip = A.newlabel("L_k")
A("s_waitcnt vmcnt(0)")
poll_check()
A(f"s_cmp_ge_u32 s{S_S2}, 10\ns_cbranch_scc1 {lskip}\ns_waitcnt lgkmcnt(0)")
s_load(5)
A.label(lskip)
for k in (2, 3, 4):
    s_put(k, 8)
lskip = A.newlabel("L_k")
A(f"s_cmp_ge_u32 s{S_S2}, 22\ns_cbranch_scc1 {lskip}")
s_put(5, 0)
A.label(lskip)
finish()

A.label("L_end")
A("s_endpgm")
A.label("L_code_end")
A.lines[HEADPOS:HEADPOS] = HEADS
A.lines.insert(0, "L_code_start:")

hdr = open(os.path.join(os.path.dirname(__file__), "header.txt")).read()
print(hdr + f"""; @launch grid=(256,1,1) block=(512,1,1) lds=163840
.amdgcn_target "amdgcn-amd-amdhsa--gfx950"
.text
.globl {KNAME}
.p2align 8
.type {KNAME},@function
{KNAME}:""")
print(A.text(), end="")
print(f""".section .rodata,"a"
.p2align 6
.amdhsa_kernel {KNAME}
  .amdhsa_next_free_vgpr 256
  .amdhsa_next_free_sgpr 102
  .amdhsa_accum_offset 256
  .amdhsa_group_segment_fixed_size 0
  .amdhsa_kernarg_size 128
  .amdhsa_user_sgpr_count 2
  .amdhsa_user_sgpr_kernarg_segment_ptr 1
  .amdhsa_system_sgpr_workgroup_id_x 1
.end_amdhsa_kernel""")
```

```python
import sys, os
sys.path.insert(0, os.path.dirname(__file__))
from asmlib import Asm, Queue, vr, sr

OPT = dict(ts=0, stop=0, DA=3, D1=4, D1S=5, timeout=1 << 20, nodma=0, nomfma=0, nobar=0, noread=0, rot=8, rot2=1, pf=0, stash=8, sg1=12, amod=1)
for a in sys.argv[1:]:
    k, v = a.split("=")
    OPT[k] = int(v)
P0 = OPT.get("p0", 3)
TS = OPT["ts"]; STOP = OPT["stop"]; DA = OPT["DA"]; D1 = OPT["D1"]

KNAME = "parallel_sum__ssm_conv_s5__glu_gated_swiglu__prompt_kernel"

WS_E = 0
WS_FLAG = 0x1000
WS_STAT = 0x4000
WS_CSB = 0x8000
WS_CSW = 0x10000
WS_SCAN = 0x40000
WS_TAB = 0x80000
WS_ACT = 0x100000
WS_TS = 0x1000000

MISC = 151552
WRING = 49152
SCR = 131072
M_ROW = MISC
M_CS = MISC + 2048
M_LAM = MISC + 3584
M_COEF = MISC + 4864
E_BASE = 81920
TR_BASE = 102400

S_X, S_LRE, S_LIM, S_BRE, S_BIM, S_CRE, S_CIM, S_LDT = 4, 6, 8, 10, 12, 14, 16, 18
S_DSK, S_W1, S_W3, S_W2, S_OUT, S_DBG, S_WS = 20, 24, 26, 28, 30, 32, 34
SRD_X, SRD_WA, SRD_WB, SRD_W2, SRD_C, SRD_T = 36, 40, 44, 48, 52, 56
S_XCD, S_IDX, S_C, S_J, S_CB, S_WAVE, S_NONCE = 60, 61, 62, 63, 64, 65, 66
S_HB2, S_DCOL, S_TG = 67, 68, 23
S_ONES = 69
S_T0 = 70
S_SLOT, S_KX, S_KW, S_CNT, S_DELTA = 80, 81, 82, 83, 84
S_AB = 86
S_M0, S_M1 = 88, 90
S_EX = 92
S_TO = 94
S_TS = 96
S_ROT, S_R2A, S_R2B, S_KB, S_KS = 95, 98, 99, 100, 101

A = Asm()
LOG2E = 0x3fb8aa3b
NLOG2E = 0xbfb8aa3b

def ts(idx, vtmp):
    if not TS:
        return

    A(f"""s_memrealtime s[{S_TS}:{S_TS+1}]
    s_waitcnt lgkmcnt(0)
    v_writelane_b32 v255, s{S_TS}, {idx}""")

def tc(idx):
    if not TS:
        return
    A(f"""s_memtime s[{S_TS}:{S_TS+1}]
    s_waitcnt lgkmcnt(0)
    v_writelane_b32 v255, s{S_TS}, {idx}""")

def ts_flush(vtmp):
    if not TS:
        return
    A(f"""s_lshl_b32 s{S_T0}, s2, 3
    s_add_u32 s{S_T0}, s{S_T0}, s{S_WAVE}
    s_lshl_b32 s{S_T0}, s{S_T0}, 8
    s_add_u32 s{S_T0}, s{S_T0}, {WS_TS}
    v_lshlrev_b32 v{vtmp}, 2, v{VL}
    v_add_u32 v{vtmp}, s{S_T0}, v{vtmp}
    global_store_dword v{vtmp}, v255, s[{S_WS}:{S_WS+1}]""")

def srd(d, p, nbytes):
    A(f"""s_mov_b32 s{d}, s{p}
    s_mov_b32 s{d+1}, s{p+1}
    s_mov_b32 s{d+2}, {nbytes}
    s_mov_b32 s{d+3}, 0x20000""")

def srd_sel(d, p1, p0, nbytes):
    A(f"""s_cselect_b32 s{d}, s{p1}, s{p0}
    s_cselect_b32 s{d+1}, s{p1+1}, s{p0+1}
    s_mov_b32 s{d+2}, {nbytes}
    s_mov_b32 s{d+3}, 0x20000""")

def spin_tail(lbl_retry, lbl_ok, code):
    A(f"""s_sleep {OPT.get('nap', 1) if code == 2 else 1}
    s_sub_u32 s{S_TO}, s{S_TO}, 1
    s_cmp_lg_u32 s{S_TO}, 0
    s_cbranch_scc1 {lbl_retry}
    s_mov_b32 s{S_TO}, 1""")

VL = 254
VFO = 253
FLG = MISC + 6144
FREE, AUX = FLG + 2048, FLG + 4096
S_K = 3
S_FR = 86
S_LMT = 85
SRD_F = 52
VZ = 252
SLOW = []
def flag_test(need, vD, vP, off, pre=None, anylane=False, acc=None, nap=0, split=False):
    ls, lb, lr = A.newlabel("L_sw"), A.newlabel("L_bk"), A.newlabel("L_sr")
    cmp_ = f"v_cmp_ne_u32 vcc, s{S_K}, v{vD}"
    A(f"s_cbranch_vccnz {ls}" if split else f"{cmp_}\ns_cbranch_vccnz {ls}")
    A.label(lb)
    mark = len(A.lines)
    A.label(ls)
    if TS and acc is not None:
        A(f"s_memtime s[{S_TS}:{S_TS+1}]\ns_waitcnt lgkmcnt(0)\ns_sub_u32 s{acc}, s{acc}, s{S_TS}\ns_add_u32 s{acc+1}, s{acc+1}, 1")
        lb2 = lb
        lb = A.newlabel("L_b2")
    A.label(lr)
    if nap:
        A(f"s_sleep {nap}")
    A(f"""ds_read_b32 v{vD}, v{vP} offset:{off}
    s_waitcnt lgkmcnt(0)
    {cmp_}
    s_cbranch_vccz {lb}
    s_sub_u32 s{S_TO}, s{S_TO}, 1
    s_cmp_lg_u32 s{S_TO}, 0
    s_cbranch_scc1 {lr}
    s_mov_b32 s{S_TO}, 1
    s_branch {lb}""")
    if TS and acc is not None:
        A.label(lb)
        A(f"s_memtime s[{S_TS}:{S_TS+1}]\ns_waitcnt lgkmcnt(0)\ns_add_u32 s{acc}, s{acc}, s{S_TS}\ns_branch {lb2}")
    SLOW.extend(A.lines[mark:])
    del A.lines[mark:]
def flag_wait(need, vD, vP, rel=0, nap=0):
    off = rel + 4 * need
    A(f"ds_read_b32 v{vD}, v{vP} offset:{off}\ns_waitcnt lgkmcnt(0)")
    flag_test(need, vD, vP, off, nap=nap)
def flush_slow():
    A.lines.extend(SLOW)
    SLOW.clear()
def flag_init(base, wave_sgpr, vP, peer, aux):
    A(f"""s_lshl_b32 s{S_T0}, s{wave_sgpr}, 9
    s_add_u32 s{S_T0}, s{S_T0}, {base}
    v_lshlrev_b32 v{VFO}, 2, v{VL}
    v_add_u32 v{VFO}, s{S_T0}, v{VFO}
    v_mov_b32 v{VZ}, 0
    s_waitcnt lgkmcnt(0)
    v_not_b32 v{vP}, s{S_K}
    ds_write2st64_b32 v{VFO}, v{vP}, v{vP} offset0:0 offset1:1""")
    if aux:
        A(f"""s_lshl_b32 s{S_T0+1}, s{wave_sgpr}, 8
        v_lshlrev_b32 v{aux}, 2, v{VL}
        v_add_u32 v{aux}, s{S_T0+1}, v{aux}
        v_add_u32 v{aux}, {AUX}, v{aux}
        ds_write_b32 v{aux}, v{VZ}""")
    peer_addr(vP, peer)
    A("s_waitcnt lgkmcnt(0)\ns_barrier")
def peer_addr(vP, peer):
    A(f"""v_and_b32 v{vP}, 3, v{VL}
    v_lshlrev_b32 v{vP}, 9, v{vP}
    v_add_u32 v{vP}, {peer + 252}, v{vP}""")


S_LW = 85
A(f"""s_cmp_ge_u32 s2, 256
s_cbranch_scc1 L_end
s_load_dwordx16 s[4:19], s[0:1], 0
s_load_dwordx16 s[20:35], s[0:1], 64
v_lshrrev_b32 v1, 6, v0
v_and_b32 v{VL}, 63, v0
s_and_b32 s{S_XCD}, s2, 7
v_readfirstlane_b32 s{S_WAVE}, v1
s_lshr_b32 s{S_IDX}, s2, 3
s_and_b32 s{S_T0}, s{S_XCD}, 1
s_lshl_b32 s{S_T0}, s{S_T0}, 3
s_and_b32 s{S_T0+1}, s{S_IDX}, 7
s_add_u32 s{S_C}, s{S_T0}, s{S_T0+1}
s_lshr_b32 s{S_J}, s{S_IDX}, 3
s_lshr_b32 s{S_T0+2}, s{S_XCD}, 1
s_mul_i32 s{S_CB}, s{S_T0+2}, 3
s_add_u32 s{S_CB}, s{S_CB}, s{S_J}
s_sub_u32 s{S_CB}, s{S_CB}, 1
s_cmp_eq_u32 s{S_J}, 0
s_cselect_b32 s{S_CB}, s{S_T0+2}, s{S_CB}
""")
if TS:
    A("v_mov_b32 v255, 0")
    ts(0, 2)
RG = OPT["rot"]
if RG:
    A(f"""s_lshl_b32 s{S_ROT}, s{S_J}, {1 if RG == 8 else 0}
    s_add_u32 s{S_ROT}, s{S_T0+1}, s{S_ROT}
    s_and_b32 s{S_ROT}, s{S_ROT}, {RG-1}
    s_mul_i32 s{S_ROT}, s{S_ROT}, 10
    s_lshr_b32 s{S_ROT}, s{S_ROT}, {RG.bit_length()-1}""")
else:
    A(f"s_mov_b32 s{S_ROT}, 0")
A(f"""s_cmp_lt_u32 s{S_WAVE}, 4
s_cbranch_scc1 L_compute
s_sub_u32 s{S_LW}, s{S_WAVE}, 4
s_setprio {OPT.get('pl1', 0)}""")

def nonce_load():
    A(f"s_load_dword s{S_NONCE}, s[{S_WS}:{S_WS+1}], {WS_E}")
def late_scalars():
    A(f"""s_sub_u32 s{S_T0}, s{S_IDX}, 8
    s_mul_i32 s{S_T0+1}, s{S_T0}, 13
    s_lshr_b32 s{S_T0+1}, s{S_T0+1}, 6          ; n/5
    s_mul_i32 s{S_T0+2}, s{S_T0+1}, 5
    s_sub_u32 s{S_T0+2}, s{S_T0}, s{S_T0+2}     ; n%5
    s_mul_i32 s{S_TG}, s{S_T0+2}, 6
    s_lshl_b32 s{S_T0+3}, s{S_IDX}, 1
    s_add_u32 s{S_T0+3}, s{S_T0+3}, 16
    s_cmp_lt_u32 s{S_IDX}, 4
    s_cselect_b32 s{S_T0+3}, 30, s{S_T0+3}
    s_min_u32 s{S_T0}, s{S_IDX}, 4
    s_cmp_eq_u32 s{S_J}, 0
    s_cselect_b32 s{S_TG}, s{S_T0+3}, s{S_TG}
    s_cselect_b32 s{S_T0+1}, s{S_T0}, s{S_T0+1}  ; strip
    s_cselect_b32 s{S_T0+2}, 5, s{S_T0+2}
    s_lshr_b32 s{S_T0}, s{S_XCD}, 1
    s_lshl_b32 s{S_T0}, s{S_T0}, 5
    s_add_u32 s{S_TG}, s{S_TG}, s{S_T0}
    s_lshr_b32 s{S_HB2}, s{S_TG}, 2
    s_lshl_b32 s{S_DCOL}, s{S_T0+1}, 6
    s_and_b32 s{S_T0}, s{S_XCD}, 1
    s_mul_i32 s{S_T0}, s{S_T0}, 320
    s_add_u32 s{S_DCOL}, s{S_DCOL}, s{S_T0}
    s_mov_b32 s{S_ONES}, 0x3f803f80
    s_mov_b32 s{S_TO}, {OPT['timeout']}""")
    if OPT["rot2"]:
        A(f"""s_add_u32 s{S_R2B}, s{S_T0+1}, s{S_T0+2}
        s_lshl_b32 s{S_R2A}, s{S_R2B}, 1
        s_cmp_ge_u32 s{S_R2A}, 12
        s_cselect_b32 s{S_T0+3}, 12, 0
        s_sub_u32 s{S_R2A}, s{S_R2A}, s{S_T0+3}
        s_lshl_b32 s{S_R2B}, s{S_R2B}, 1
        s_cmp_ge_u32 s{S_R2B}, 10
        s_cselect_b32 s{S_T0+3}, 10, 0
        s_sub_u32 s{S_R2B}, s{S_R2B}, s{S_T0+3}""")
    else:
        A(f"s_mov_b32 s{S_R2A}, 0\ns_mov_b32 s{S_R2B}, 0")
for n_ in range(24):
    assert (n_ * 13) >> 6 == n_ // 5

HEADPOS = len(A.lines)
HEADS = []

def dpp_reduce16(regs):
    for sh in (8, 4, 2, 1):
        A("s_nop 1")
        for r in regs:
            A(f"v_add_f32_dpp v{r}, v{r}, v{r} row_ror:{sh} row_mask:0xf bank_mask:0xf")

def nonce_ready():
    A(f"""s_waitcnt lgkmcnt(0)
    s_add_u32 s{S_NONCE}, s{S_NONCE}, 1""")

def sum_bf16(regs, acc, sq=None, t=None):
    for k, r in enumerate(regs):
        if k and k % (5 if sq is not None else 8) == 0:
            yield
        A(f"v_lshlrev_b32 v{t}, 16, v{r}")
        A(f"v_and_b32 v{r}, 0xffff0000, v{r}")
        if k == 0:
            A(f"v_mov_b32 v{acc}, v{t}\nv_mov_b32 v{acc+1}, v{r}")
            if sq is not None:
                A(f"v_mul_f32 v{sq}, v{t}, v{t}\nv_mul_f32 v{sq+1}, v{r}, v{r}")
        else:
            A(f"v_add_f32 v{acc}, v{acc}, v{t}\nv_add_f32 v{acc+1}, v{acc+1}, v{r}")
            if sq is not None:
                A(f"v_fmac_f32 v{sq}, v{t}, v{t}\nv_fmac_f32 v{sq+1}, v{r}, v{r}")
    A(f"v_add_f32 v{acc}, v{acc}, v{acc+1}")
    if sq is not None:
        A(f"v_add_f32 v{sq}, v{sq}, v{sq+1}")

def reduce32(regs):
    dpp_reduce16(regs)
    A("s_nop 1")
    for r in regs:
        A(f"v_add_f32_dpp v{r}, v{r}, v{r} row_bcast:15 row_mask:0xa bank_mask:0xf")

def stat_loads(vm, T):
    A(f"""v_lshrrev_b32 v{T+10}, 5, v{VL}
    s_lshl_b32 s{S_T0}, s2, 3
    s_lshl_b32 s{S_T0+1}, s{S_LW}, 1
    s_add_u32 s{S_T0}, s{S_T0}, s{S_T0+1}
    v_add_u32 v{T+10}, s{S_T0}, v{T+10}
    v_and_b32 v{T+11}, 31, v{VL}
    v_mul_u32_u24 v{T+12}, 1280, v{T+10}
    v_lshl_add_u32 v{T+12}, v{T+11}, 3, v{T+12}""")
    for i in range(5):
        A(f"global_load_dwordx2 v[{T+2*i}:{T+2*i+1}], v{T+12}, s[{S_X}:{S_X+1}] offset:{256*i}")
        vm.issue("stat")

def stat_work(vm, T):
    vm.wait("stat")
    a, q = T + 12, T + 14
    yield from sum_bf16(list(range(T, T + 10)), a, q, T + 16)
    yield
    reduce32([a, q])
    yield
    A(f"""v_mul_f32 v{a}, 0x3acccccd, v{a}      ; mean
    v_mul_f32 v{q}, 0x3acccccd, v{q}
    v_fma_f32 v{q}, -v{a}, v{a}, v{q}
    v_max_f32 v{q}, 0, v{q}
    v_cvt_pk_bf16_f32 v{q}, v{q}, v{q}
    v_lshlrev_b32 v{q}, 16, v{q}
    v_add_f32 v{q}, 0x3727c5ac, v{q}
    v_cvt_pk_bf16_f32 v{q}, v{q}, v{q}
    v_lshlrev_b32 v{q}, 16, v{q}
    v_sqrt_f32 v{q}, v{q}
    v_lshlrev_b32 v{T+10}, 3, v{T+10}
    v_add_u32 v{T+10}, {WS_STAT}, v{T+10}
    v_cvt_pk_bf16_f32 v{a}, v{a}, v{q}
    v_mov_b32 v{a+1}, s{S_NONCE}
    v_cmp_eq_u32 vcc, 16, v{T+11}
    s_and_saveexec_b64 s[{S_EX}:{S_EX+1}], vcc
    global_store_dwordx2 v{T+10}, v[{a}:{a+1}], s[{S_WS}:{S_WS+1}] sc1
    s_mov_b64 exec, s[{S_EX}:{S_EX+1}]""")
    vm.issue("pub")

S_CS0 = 86
def colsum_loads(T):
    A(f"""s_mul_i32 s{S_T0}, s{S_C}, 12
    s_add_u32 s{S_T0}, s{S_T0}, s{S_CB}            ; sigma
    s_lshr_b32 s{S_T0+1}, s{S_T0}, 2               ; strip
    s_and_b32 s{S_T0+2}, s{S_T0}, 3                ; k quarter
    s_cmp_ge_u32 s{S_T0+1}, 24""")
    srd_sel(SRD_T, S_W3, S_W1, 1966080)
    A(f"""s_cselect_b32 s{S_T0+3}, {24*128}, 0
    s_lshl_b32 s{S_T0+4}, s{S_T0+1}, 7
    s_sub_u32 s{S_T0+4}, s{S_T0+4}, s{S_T0+3}
    s_mul_i32 s{S_T0+5}, s{S_T0+2}, {160*3072}
    s_add_u32 s{S_T0+4}, s{S_T0+4}, s{S_T0+5}      ; soffset
    s_mul_i32 s{S_CS0}, s{S_T0+2}, {3072*8}
    s_lshl_b32 s{S_T0+1}, s{S_T0+1}, 9
    s_add_u32 s{S_CS0}, s{S_CS0}, s{S_T0+1}
    s_add_u32 s{S_CS0}, s{S_CS0}, {WS_CSW}
    v_lshrrev_b32 v{T}, 3, v{VL}
    v_and_b32 v{T+1}, 7, v{VL}
    v_mul_u32_u24 v{T}, 3072, v{T}
    v_lshl_add_u32 v{T}, v{T+1}, 4, v{T}""")
    for i in range(20):
        if i % 4 == 0:
            A(f"s_mov_b32 m0, {SCR + 1024*i}")
        A(f"""s_add_u32 s{S_T0+7}, s{S_T0+4}, {8*3072*i - 1024*(i%4)}
        s_waitcnt vmcnt({OPT.get("cap", 7)})
        buffer_load_dwordx4 v{T}, s[{SRD_T}:{SRD_T+3}], s{S_T0+7} offen offset:{1024*(i%4)} lds""")

def colsum_work(T):
    A(f"""v_lshrrev_b32 v{T+2}, 4, v{VL}
    v_lshlrev_b32 v{T+3}, 5, v{T+2}
    v_lshlrev_b32 v{T+2}, 10, v{T+2}
    v_bfe_u32 v{T+1}, v{VL}, 2, 2
    v_lshl_add_u32 v{T+2}, v{T+1}, 7, v{T+2}
    v_and_b32 v{T+1}, 3, v{VL}
    v_lshl_add_u32 v{T+2}, v{T+1}, 3, v{T+2}
    v_add_u32 v{T+2}, {SCR}, v{T+2}
    v_add_u32 v{T+3}, s{S_CS0}, v{T+3}""")
    for i in range(4):
        A(f"v_mov_b32 v{T+4+i}, s{S_ONES}")
    F = T + 24
    for u in range(4):
        for ks in range(5):
            b = F + (u * 5 + ks) * 4
            A(f"ds_read_b64_tr_b16 v[{b}:{b+1}], v{T+2} offset:{ks*4096+u*32}")
            A(f"ds_read_b64_tr_b16 v[{b+2}:{b+3}], v{T+2} offset:{ks*4096+u*32+512}")
    A("s_waitcnt lgkmcnt(0)")
    for ks in range(5):
        for u in range(4):
            b = F + (u * 5 + ks) * 4
            d = T + 8 + 4 * u
            cin = "0" if ks == 0 else f"v[{d}:{d+3}]"
            A(f"v_mfma_f32_16x16x32_bf16 v[{d}:{d+3}], v[{b}:{b+3}], v[{T+4}:{T+7}], {cin}")
    A(f"""v_and_b32 v{T+1}, 15, v{VL}
    v_cmp_eq_u32 vcc, 0, v{T+1}
    s_nop 7""")
    for u in range(4):
        for h in range(2):
            o = F + (u * 2 + h) * 4
            A(f"""v_mov_b32 v{o}, v{T+8+4*u+2*h}
            v_mov_b32 v{o+1}, s{S_NONCE}
            v_mov_b32 v{o+2}, v{T+9+4*u+2*h}
            v_mov_b32 v{o+3}, s{S_NONCE}""")
    A(f"s_and_saveexec_b64 s[{S_EX}:{S_EX+1}], vcc")
    for u in range(4):
        for h in range(2):
            o = F + (u * 2 + h) * 4
            A(f"global_store_dwordx4 v{T+3}, v[{o}:{o+3}], s[{S_WS}:{S_WS+1}] offset:{u*128+h*16} sc1")
    A(f"s_mov_b64 exec, s[{S_EX}:{S_EX+1}]")

def rowsum_loads(vm, T):
    A(f"""s_lshl_b32 s{S_T0}, s{S_C}, 2
    s_add_u32 s{S_T0}, s{S_T0}, s{S_CB}            ; sigma'
    s_mul_i32 s{S_T0+1}, s{S_T0}, 20
    s_mul_i32 s{S_T0+2}, s{S_LW}, 5
    s_add_u32 s{S_T0+1}, s{S_T0+1}, s{S_T0+2}
    s_cmp_ge_u32 s{S_T0}, 32
    s_cselect_b32 s{S_T0+4}, s{S_BIM}, s{S_BRE}
    s_cselect_b32 s{S_T0+5}, s{S_BIM+1}, s{S_BRE+1}
    s_cselect_b32 s{S_T0+3}, 640, 0
    s_sub_u32 s{S_T0+1}, s{S_T0+1}, s{S_T0+3}
    v_lshrrev_b32 v{T+33}, 5, v{VL}
    v_add_u32 v{T+33}, s{S_T0+1}, v{T+33}
    v_and_b32 v{T+34}, 31, v{VL}""")
    for p in range(3):
        A(f"""v_add_u32 v{T+30+p}, {2*p}, v{T+33}
        v_min_u32 v{T+30+p}, 639, v{T+30+p}
        v_mul_u32_u24 v{T+35}, 1280, v{T+30+p}
        v_lshl_add_u32 v{T+35}, v{T+34}, 3, v{T+35}
        v_add_u32 v{T+30+p}, s{S_T0+3}, v{T+30+p}""")
        for i in range(5):
            b = T + 10 * p + 2 * i
            A(f"global_load_dwordx2 v[{b}:{b+1}], v{T+35}, s[{S_T0+4}:{S_T0+5}] offset:{256*i}")
            vm.issue("rows")

def rowsum_work(vm, T):
    vm.wait("rows")
    for p in range(3):
        yield from sum_bf16(list(range(T + 10 * p, T + 10 * p + 10)), T + 36 + 2 * p, None, T + 35)
    yield
    reduce32([T + 36, T + 38, T + 40])
    for p in range(3):
        A(f"""v_mov_b32 v{T+37+2*p}, s{S_NONCE}
        v_lshlrev_b32 v{T+30+p}, 3, v{T+30+p}
        v_add_u32 v{T+30+p}, {WS_CSB}, v{T+30+p}""")
    A(f"""v_cmp_eq_u32 vcc, 16, v{T+34}
    s_and_saveexec_b64 s[{S_EX}:{S_EX+1}], vcc""")
    for p in range(3):
        A(f"global_store_dwordx2 v{T+30+p}, v[{T+36+2*p}:{T+37+2*p}], s[{S_WS}:{S_WS+1}] sc1")
        vm.issue("pub")
    A(f"s_mov_b64 exec, s[{S_EX}:{S_EX+1}]")

def side_stats(T, filler):
    A(f"""v_lshrrev_b32 v{T+20}, 4, v{VL}
    s_lshl_b32 s{S_T0}, s2, 3
    s_lshl_b32 s{S_T0+1}, s{S_WAVE}, 2
    s_add_u32 s{S_T0}, s{S_T0}, s{S_T0+1}
    v_add_u32 v{T+20}, s{S_T0}, v{T+20}          ; row
    v_and_b32 v{T+21}, 15, v{VL}
    v_mul_u32_u24 v{T+22}, 1280, v{T+20}
    v_lshl_add_u32 v{T+22}, v{T+21}, 4, v{T+22}""")
    for i in range(5):
        A(f"global_load_dwordx4 v[{T+4*i}:{T+4*i+3}], v{T+22}, s[{S_X}:{S_X+1}] offset:{256*i}")
    filler()
    A(f"""v_mov_b32 v{T+24}, 0
    v_mov_b32 v{T+25}, 0
    v_mov_b32 v{T+26}, 0
    v_mov_b32 v{T+27}, 0""")
    nonce_ready()
    for i in range(5):
        A(f"s_waitcnt vmcnt({4-i})")
        for d in range(4):
            r = T + 4 * i + d
            A(f"v_dot2c_f32_bf16 v{T+24+2*(d&1)}, s{S_ONES}, v{r}")
            A(f"v_dot2c_f32_bf16 v{T+25+2*(d&1)}, v{r}, v{r}")
    A(f"""s_nop 3
    v_add_f32 v{T+24}, v{T+24}, v{T+26}
    v_add_f32 v{T+25}, v{T+25}, v{T+27}""")
    dpp_reduce16([T + 24, T + 25])
    A(f"""v_mul_f32 v{T+24}, 0x3acccccd, v{T+24}      ; mean
    v_mul_f32 v{T+25}, 0x3acccccd, v{T+25}
    v_fma_f32 v{T+25}, -v{T+24}, v{T+24}, v{T+25}
    v_max_f32 v{T+25}, 0, v{T+25}
    v_cvt_pk_bf16_f32 v{T+25}, v{T+25}, v{T+25}
    v_lshlrev_b32 v{T+25}, 16, v{T+25}
    v_add_f32 v{T+25}, 0x3727c5ac, v{T+25}
    v_cvt_pk_bf16_f32 v{T+25}, v{T+25}, v{T+25}
    v_lshlrev_b32 v{T+25}, 16, v{T+25}
    v_sqrt_f32 v{T+25}, v{T+25}
    v_lshlrev_b32 v{T+20}, 3, v{T+20}
    v_add_u32 v{T+20}, {WS_STAT}, v{T+20}
    v_cvt_pk_bf16_f32 v{T+26}, v{T+24}, v{T+25}
    v_mov_b32 v{T+27}, s{S_NONCE}
    v_cmp_eq_u32 vcc, 0, v{T+21}
    s_and_saveexec_b64 s[{S_EX}:{S_EX+1}], vcc
    global_store_dwordx2 v{T+20}, v[{T+26}:{T+27}], s[{S_WS}:{S_WS+1}] sc1
    s_mov_b64 exec, s[{S_EX}:{S_EX+1}]""")

def side_colsum_mlp(T, filler):
    A(f"""s_mul_i32 s{S_T0}, s{S_C}, 12
    s_add_u32 s{S_T0}, s{S_T0}, s{S_CB}            ; sigma
    s_lshr_b32 s{S_T0+1}, s{S_T0}, 1               ; strip
    s_and_b32 s{S_T0+2}, s{S_T0}, 1
    s_lshl_b32 s{S_T0+2}, s{S_T0+2}, 1
    s_add_u32 s{S_T0+2}, s{S_T0+2}, s{S_WAVE}
    s_sub_u32 s{S_T0+2}, s{S_T0+2}, 2              ; k quarter
    s_cmp_ge_u32 s{S_T0+1}, 48""")
    srd_sel(SRD_T, S_W3, S_W1, 1966080)
    A(f"""s_cselect_b32 s{S_T0+3}, 48, 0
    s_cselect_b32 s{S_T0+6}, 1536, 0
    s_sub_u32 s{S_T0+1}, s{S_T0+1}, s{S_T0+3}
    s_lshl_b32 s{S_T0+1}, s{S_T0+1}, 5             ; col0
    s_mul_i32 s{S_T0+4}, s{S_T0+2}, {160*3072}
    s_lshl_b32 s{S_T0+5}, s{S_T0+1}, 1
    s_add_u32 s{S_T0+4}, s{S_T0+4}, s{S_T0+5}      ; soffset
    s_sub_u32 s{S_T0+5}, s{S_WAVE}, 2
    s_mul_i32 s{S_T0+5}, s{S_T0+5}, 10240
    s_add_u32 s{S_T0+5}, s{S_T0+5}, {SCR}
    v_lshrrev_b32 v{T}, 2, v{VL}
    v_and_b32 v{T+1}, 3, v{VL}
    v_mul_u32_u24 v{T}, 3072, v{T}
    v_lshl_add_u32 v{T}, v{T+1}, 4, v{T}""")
    for i in range(10):
        A(f"""s_add_u32 m0, s{S_T0+5}, {1024*i}
        s_add_u32 s{S_T0+7}, s{S_T0+4}, {16*3072*i}
        buffer_load_dwordx4 v{T}, s[{SRD_T}:{SRD_T+3}], s{S_T0+7} offen lds""")
    filler()
    A(f"""v_lshrrev_b32 v{T+2}, 4, v{VL}
    v_lshlrev_b32 v{T+2}, 9, v{T+2}
    v_bfe_u32 v{T+3}, v{VL}, 2, 2
    v_lshl_add_u32 v{T+2}, v{T+3}, 6, v{T+2}
    v_lshl_add_u32 v{T+2}, v{T+1}, 3, v{T+2}
    v_add_u32 v{T+2}, s{S_T0+5}, v{T+2}
    v_mov_b32 v{T+4}, s{S_ONES}
    v_mov_b32 v{T+5}, s{S_ONES}
    v_mov_b32 v{T+6}, s{S_ONES}
    v_mov_b32 v{T+7}, s{S_ONES}""")
    A(f"""s_mul_i32 s{S_T0+2}, s{S_T0+2}, 3072
    s_add_u32 s{S_T0+2}, s{S_T0+2}, s{S_T0+6}
    s_add_u32 s{S_T0+2}, s{S_T0+2}, s{S_T0+1}
    s_lshl_b32 s{S_T0+2}, s{S_T0+2}, 3
    s_add_u32 s{S_T0+2}, s{S_T0+2}, {WS_CSW}
    v_lshrrev_b32 v{T+3}, 4, v{VL}
    v_lshlrev_b32 v{T+3}, 5, v{T+3}
    v_add_u32 v{T+3}, s{S_T0+2}, v{T+3}""")
    nonce_ready()
    A("s_waitcnt vmcnt(0)")
    F = T + 16
    for ks in range(5):
        for u in range(2):
            b = F + (ks * 2 + u) * 4
            A(f"ds_read_b64_tr_b16 v[{b}:{b+1}], v{T+2} offset:{ks*2048+u*32}")
            A(f"ds_read_b64_tr_b16 v[{b+2}:{b+3}], v{T+2} offset:{ks*2048+u*32+256}")
    A("s_waitcnt lgkmcnt(0)")
    for ks in range(5):
        for u in range(2):
            b = F + (ks * 2 + u) * 4
            cin = "0" if ks == 0 else f"v[{T+8+4*u}:{T+11+4*u}]"
            A(f"v_mfma_f32_16x16x32_bf16 v[{T+8+4*u}:{T+11+4*u}], v[{b}:{b+3}], v[{T+4}:{T+7}], {cin}")
    A("s_nop 7\ns_nop 1")
    for u in range(2):
        for h in range(2):
            o = F + (u * 2 + h) * 4
            A(f"""v_mov_b32 v{o}, v{T+8+4*u+2*h}
            v_mov_b32 v{o+1}, s{S_NONCE}
            v_mov_b32 v{o+2}, v{T+9+4*u+2*h}
            v_mov_b32 v{o+3}, s{S_NONCE}""")
    A(f"""v_and_b32 v{T+1}, 15, v{VL}
    v_cmp_eq_u32 vcc, 0, v{T+1}
    s_and_saveexec_b64 s[{S_EX}:{S_EX+1}], vcc""")
    for u in range(2):
        for h in range(2):
            o = F + (u * 2 + h) * 4
            A(f"global_store_dwordx4 v{T+3}, v[{o}:{o+3}], s[{S_WS}:{S_WS+1}] offset:{u*128+h*16} sc1")
    A(f"s_mov_b64 exec, s[{S_EX}:{S_EX+1}]")

def side_rowsum_ssm(T, filler):
    A(f"""s_lshl_b32 s{S_T0}, s{S_C}, 2
    s_add_u32 s{S_T0}, s{S_T0}, s{S_CB}            ; sigma'
    s_mul_i32 s{S_T0+1}, s{S_T0}, 20
    s_sub_u32 s{S_T0+2}, s{S_WAVE}, 2
    s_lshl_b32 s{S_T0+2}, s{S_T0+2}, 3
    s_add_u32 s{S_T0+1}, s{S_T0+1}, s{S_T0+2}
    s_cmp_ge_u32 s{S_T0}, 32
    s_cselect_b32 s{S_T0+4}, s{S_BIM}, s{S_BRE}
    s_cselect_b32 s{S_T0+5}, s{S_BIM+1}, s{S_BRE+1}
    s_cselect_b32 s{S_T0+3}, 640, 0
    s_sub_u32 s{S_T0+3}, s{S_T0+1}, s{S_T0+3}
    v_lshrrev_b32 v{T+60}, 4, v{VL}
    v_and_b32 v{T+61}, 15, v{VL}
    v_add_u32 v{T+62}, s{S_T0+3}, v{T+60}
    v_mul_u32_u24 v{T+62}, 1280, v{T+62}
    v_lshl_add_u32 v{T+62}, v{T+61}, 4, v{T+62}""")
    for p in range(3):
        for i in range(5):
            b = T + 20 * p + 4 * i
            A(f"global_load_dwordx4 v[{b}:{b+3}], v{T+62}, s[{S_T0+4}:{S_T0+5}] offset:{256*i}")
        if p < 2:
            A(f"v_add_u32 v{T+62}, {4*1280}, v{T+62}")
    filler()
    for p in range(3):
        A(f"v_mov_b32 v{T+64+2*p}, 0")
    A(f"""v_add_u32 v{T+60}, s{S_T0+1}, v{T+60}
    v_lshlrev_b32 v{T+60}, 3, v{T+60}
    v_add_u32 v{T+60}, {WS_CSB}, v{T+60}""")
    nonce_ready()
    for p in range(3):
        A(f"s_waitcnt vmcnt({10-5*p})")
        for d in range(20):
            A(f"v_dot2c_f32_bf16 v{T+64+2*p}, s{S_ONES}, v{T+20*p+d}")
    A("s_nop 3")
    dpp_reduce16([T + 64, T + 66, T + 68])
    for p in range(3):
        A(f"v_mov_b32 v{T+65+2*p}, s{S_NONCE}")
    A(f"""v_cmp_eq_u32 vcc, 0, v{T+61}
    s_and_saveexec_b64 s[{S_EX}:{S_EX+1}], vcc""")
    for p in range(3):
        A(f"global_store_dwordx2 v{T+60}, v[{T+64+2*p}:{T+65+2*p}], s[{S_WS}:{S_WS+1}] offset:{32*p} sc1")
    A(f"s_mov_b64 exec, s[{S_EX}:{S_EX+1}]")


SJ = 200
PA, PB = OPT.get('pa', 2), OPT.get('pb', 4)
def rows16_loads(T, rowreg, ptr):
    A(f"""v_and_b32 v{T+20}, 15, v{VL}
    v_mul_u32_u24 v{T+21}, 1280, v{rowreg}
    v_lshl_add_u32 v{T+21}, v{T+20}, 4, v{T+21}""")
    for i in range(5):
        A(f"global_load_dwordx4 v[{T+4*i}:{T+4*i+3}], v{T+21}, s[{ptr}:{ptr+1}] offset:{256*i}")
def stat_finish(a, q, rowreg, lanereg, lane):
    A(f"""v_mul_f32 v{a}, 0x3acccccd, v{a}      ; mean
    v_mul_f32 v{q}, 0x3acccccd, v{q}
    v_fma_f32 v{q}, -v{a}, v{a}, v{q}
    v_max_f32 v{q}, 0, v{q}
    v_cvt_pk_bf16_f32 v{q}, v{q}, v{q}
    v_lshlrev_b32 v{q}, 16, v{q}
    v_add_f32 v{q}, 0x3727c5ac, v{q}
    v_cvt_pk_bf16_f32 v{q}, v{q}, v{q}
    v_lshlrev_b32 v{q}, 16, v{q}
    v_sqrt_f32 v{q}, v{q}
    v_lshlrev_b32 v{rowreg}, 3, v{rowreg}
    v_add_u32 v{rowreg}, {WS_STAT}, v{rowreg}
    v_cvt_pk_bf16_f32 v{a}, v{a}, v{q}
    v_mov_b32 v{a+1}, s{S_NONCE}
    v_cmp_eq_u32 vcc, {lane}, v{lanereg}""")
def own_rows(dst):
    A(f"""s_lshr_b32 s{dst}, s{S_XCD}, 1
    s_lshl_b32 s{dst}, s{dst}, 2
    s_add_u32 s{dst}, s{dst}, s{S_J}
    s_lshl_b32 s{dst}, s{dst}, 3
    s_lshl_b32 s{dst+1}, s{S_C}, 7
    s_add_u32 s{dst}, s{dst}, s{dst+1}""")
def mlp_rows_loads():
    A(f"""v_lshrrev_b32 v242, 4, v{VL}
    s_lshl_b32 s{S_T0+1}, s{S_WAVE}, 2
    v_add_u32 v242, s{S_T0+1}, v242
    s_sub_u32 s{S_T0}, s{S_IDX}, 8
    s_min_u32 s{S_T0}, s{S_T0}, 19
    s_lshl_b32 s{S_T0}, s{S_T0}, 3
    s_lshr_b32 s{S_T0+1}, s{S_XCD}, 1
    s_mul_i32 s{S_T0+1}, s{S_T0+1}, 160
    s_add_u32 s{S_T0+2}, s{S_T0}, s{S_T0+1}
    s_bitcmp1_b32 s{S_XCD}, 0
    s_cselect_b32 s{S_T0+4}, s{S_BIM}, s{S_BRE}
    s_cselect_b32 s{S_T0+5}, s{S_BIM+1}, s{S_BRE+1}
    s_cselect_b32 s{S_T0+3}, 640, 0
    v_add_u32 v244, s{S_T0+2}, v242
    v_add_u32 v243, s{S_T0+3}, v244""")
    own_rows(S_T0)
    A(f"v_add_u32 v242, s{S_T0}, v242")
    rows16_loads(SJ, 242, S_X)
    rows16_loads(SJ + 20, 244, S_T0 + 4)
def mlp_rows_work():
    a, q, r = 244, 246, 228
    A(f"v_mov_b32 v{a}, 0\nv_mov_b32 v{q}, 0\nv_mov_b32 v{a+1}, 0\nv_mov_b32 v{q+1}, 0\ns_waitcnt vmcnt({2*(PB-PA)})")
    for d in range(20):
        A(f"v_dot2c_f32_bf16 v{a}, s{S_ONES}, v{SJ+d}")
        A(f"v_dot2c_f32_bf16 v{q}, v{SJ+d}, v{SJ+d}")
        A(f"v_dot2c_f32_bf16 v{[a+1, q+1][d % 2]}, s{S_ONES}, v{SJ+20+d}")
    A(f"s_nop 2\nv_add_f32 v{SJ}, v{a+1}, v{q+1}")
    dpp_reduce16([a, q, SJ])
    stat_finish(a, q, 242, SJ + 40, 0)
    A(f"""v_mov_b32 v{SJ+1}, s{S_NONCE}
    v_lshlrev_b32 v243, 3, v243
    v_add_u32 v243, {WS_CSB}, v243
    s_and_saveexec_b64 s[{S_EX}:{S_EX+1}], vcc
    global_store_dwordx2 v242, v[{a}:{a+1}], s[{S_WS}:{S_WS+1}] sc1
    global_store_dwordx2 v243, v[{SJ}:{SJ+1}], s[{S_WS}:{S_WS+1}] sc1
    s_mov_b64 exec, s[{S_EX}:{S_EX+1}]""")
def mlp_cs_loads():
    T = SJ
    A(f"""s_and_b32 s{S_T0}, s{S_IDX}, 3
    s_lshl_b32 s{S_T0+1}, s{S_CB}, 2
    s_add_u32 s{S_T0+1}, s{S_T0+1}, s{S_T0}
    s_bitcmp1_b32 s{S_IDX}, 2
    s_cselect_b32 s{S_T0}, 48, 0
    s_add_u32 s{S_T0+1}, s{S_T0+1}, s{S_T0}
    s_and_b32 s{S_T0+2}, s{S_XCD}, 1
    s_lshl_b32 s{S_T0+2}, s{S_T0+2}, 1
    s_add_u32 s{S_T0+2}, s{S_T0+2}, s{S_WAVE}
    s_sub_u32 s{S_T0+2}, s{S_T0+2}, 2              ; k quarter
    s_cmp_ge_u32 s{S_T0+1}, 48""")
    srd_sel(SRD_T, S_W3, S_W1, 1966080)
    A(f"""s_cselect_b32 s{S_T0+3}, {48*64}, 0
    s_lshl_b32 s{S_T0+4}, s{S_T0+1}, 6
    s_sub_u32 s{S_T0+4}, s{S_T0+4}, s{S_T0+3}
    s_mul_i32 s{S_T0+5}, s{S_T0+2}, {160*3072}
    s_add_u32 s{S_T0+4}, s{S_T0+4}, s{S_T0+5}      ; soffset
    s_sub_u32 s{S_T0+5}, s{S_WAVE}, 2
    s_mul_i32 s{S_T0+5}, s{S_T0+5}, 10240
    s_add_u32 s{S_T0+5}, s{S_T0+5}, {SCR}
    v_lshrrev_b32 v{T}, 2, v{VL}
    v_and_b32 v{T+1}, 3, v{VL}
    v_mul_u32_u24 v{T}, 3072, v{T}
    v_lshl_add_u32 v{T}, v{T+1}, 4, v{T}""")
    for i in range(10):
        A(f"""s_add_u32 m0, s{S_T0+5}, {1024*i}
        s_add_u32 s{S_T0+7}, s{S_T0+4}, {16*3072*i}
        buffer_load_dwordx4 v{T}, s[{SRD_T}:{SRD_T+3}], s{S_T0+7} offen lds""")
    A(f"""v_lshrrev_b32 v{T+2}, 4, v{VL}
    v_lshlrev_b32 v{T+3}, 5, v{T+2}
    v_lshlrev_b32 v{T+2}, 9, v{T+2}
    v_bfe_u32 v{T}, v{VL}, 2, 2
    v_lshl_add_u32 v{T+2}, v{T}, 6, v{T+2}
    v_lshl_add_u32 v{T+2}, v{T+1}, 3, v{T+2}
    v_add_u32 v{T+2}, s{S_T0+5}, v{T+2}
    s_mul_i32 s{S_T0+2}, s{S_T0+2}, {3072*8}
    s_lshl_b32 s{S_T0+1}, s{S_T0+1}, 8
    s_add_u32 s{S_T0+2}, s{S_T0+2}, s{S_T0+1}
    s_add_u32 s{S_T0+2}, s{S_T0+2}, {WS_CSW}
    v_add_u32 v249, s{S_T0+2}, v{T+3}
    v_and_b32 v{T+1}, 15, v{VL}""")
    for i in range(4):
        A(f"v_mov_b32 v{T+4+i}, s{S_ONES}")
def mlp_cs_work():
    T = SJ
    F = T + 8
    A(f"s_waitcnt vmcnt({2*(PB-PA)})")
    for u in range(2):
        for ks in range(5):
            b = F + (u * 5 + ks) * 4
            A(f"ds_read_b64_tr_b16 v[{b}:{b+1}], v{T+2} offset:{ks*2048+u*32}")
            A(f"ds_read_b64_tr_b16 v[{b+2}:{b+3}], v{T+2} offset:{ks*2048+u*32+256}")
    A(f"v_cmp_eq_u32 vcc, 0, v{T+1}\ns_waitcnt lgkmcnt(0)")
    D = [T, F]
    for u in range(2):
        for ks in range(5):
            b, d = F + (u * 5 + ks) * 4, D[u]
            cin = "0" if ks == 0 else f"v[{d}:{d+3}]"
            A(f"v_mfma_f32_16x16x32_bf16 v[{d}:{d+3}], v[{b}:{b+3}], v[{T+4}:{T+7}], {cin}")
    A("s_nop 7")
    for u in range(2):
        d, o = D[u], F + 4 + 8 * u
        for r in range(4):
            A(f"v_mov_b32 v{o+2*r}, v{d+r}\nv_mov_b32 v{o+2*r+1}, s{S_NONCE}")
    A(f"s_and_saveexec_b64 s[{S_EX}:{S_EX+1}], vcc")
    for u in range(2):
        for h in range(2):
            o = F + 4 + 8 * u + 4 * h
            A(f"global_store_dwordx4 v249, v[{o}:{o+3}], s[{S_WS}:{S_WS+1}] offset:{u*128+h*16} sc1")
    A(f"s_mov_b64 exec, s[{S_EX}:{S_EX+1}]")
def ssm_rows_loads():
    own_rows(S_T0)
    A(f"""v_lshrrev_b32 v246, 5, v{VL}
    s_lshl_b32 s{S_T0+1}, s{S_WAVE}, 1
    s_add_u32 s{S_T0}, s{S_T0}, s{S_T0+1}
    v_add_u32 v246, s{S_T0}, v246
    v_and_b32 v247, 31, v{VL}
    v_mul_u32_u24 v249, 1280, v246
    v_lshl_add_u32 v249, v247, 3, v249""")
    for i in range(5):
        A(f"global_load_dwordx2 v[{236+2*i}:{237+2*i}], v249, s[{S_X}:{S_X+1}] offset:{256*i}")
def ssm_rows_work():
    A(f"v_mov_b32 v249, 0\nv_mov_b32 v251, 0\ns_waitcnt vmcnt({2*(PB-PA)})")
    for d in range(10):
        A(f"v_dot2c_f32_bf16 v249, s{S_ONES}, v{236+d}")
        A(f"v_dot2c_f32_bf16 v251, v{236+d}, v{236+d}")
    A("s_nop 2\nv_mov_b32 v236, v249")
    reduce32([236, 251])
    stat_finish(236, 251, 246, 247, 16)
    A(f"""s_and_saveexec_b64 s[{S_EX}:{S_EX+1}], vcc
    global_store_dwordx2 v246, v[236:237], s[{S_WS}:{S_WS+1}] sc1
    s_mov_b64 exec, s[{S_EX}:{S_EX+1}]""")
def touch_w2(T):
    G = OPT.get("tg", 128)
    sh = G.bit_length() - 1
    n2, nc = 7680 // G, 3200 // G
    if OPT.get("tm", 1):
        A(f"""s_sub_u32 s{S_T0+3}, s2, 64
        s_cmp_lt_u32 s{S_WAVE}, 2
        s_cselect_b32 s{S_T0}, 39, 33
        s_mov_b32 s{S_T0+1}, 4352
        s_cmov_b32 s{S_T0+1}, 10240
        s_cselect_b32 s{S_T0+4}, s{S_W2}, s{S_CRE}
        s_cselect_b32 s{S_T0+5}, s{S_W2+1}, s{S_CRE+1}
        s_mov_b32 s{S_T0+6}, 819196
        s_cmov_b32 s{S_T0+6}, 1966076
        s_cmp_eq_u32 s{S_WAVE}, 3
        s_cselect_b32 s{S_T0+4}, s{S_CIM}, s{S_T0+4}
        s_cselect_b32 s{S_T0+5}, s{S_CIM+1}, s{S_T0+5}
        s_mul_i32 s{S_T0+1}, s{S_T0+1}, s{S_T0+3}
        s_cmp_eq_u32 s{S_WAVE}, 1
        s_cselect_b32 s{S_T0+2}, 5120, 0
        s_add_u32 s{S_T0+1}, s{S_T0+1}, s{S_T0+2}
        v_min_u32 v{T}, s{S_T0}, v{VL}
        v_lshlrev_b32 v{T}, 7, v{T}
        v_add_u32 v{T}, s{S_T0+1}, v{T}
        v_min_u32 v{T}, s{S_T0+6}, v{T}
        global_load_dword v{T}, v{T}, s[{S_T0+4}:{S_T0+5}]""")
        return
    if G == 128:
        l = A.newlabel("L_tw")
        A(f"""s_cmp_eq_u32 s{S_WAVE}, 3
        s_cbranch_scc1 {l}
        s_cmp_eq_u32 s{S_WAVE}, 0
        s_cselect_b32 s{S_T0}, {n2-1}, {nc-1}
        s_mov_b32 s{S_T0+1}, 3200
        s_cmov_b32 s{S_T0+1}, 7680
        s_cselect_b32 s{S_T0+4}, s{S_W2}, s{S_CRE}
        s_cselect_b32 s{S_T0+5}, s{S_W2+1}, s{S_CRE+1}
        s_cmp_eq_u32 s{S_WAVE}, 2
        s_cselect_b32 s{S_T0+4}, s{S_CIM}, s{S_T0+4}
        s_cselect_b32 s{S_T0+5}, s{S_CIM+1}, s{S_T0+5}""")
    else:
        l = A.newlabel("L_tw")
        A(f"""s_cmp_lt_u32 s{S_WAVE}, 2
        s_cselect_b32 s{S_T0}, {n2//2-1}, {nc-1}
        s_mov_b32 s{S_T0+1}, 3200
        s_cmov_b32 s{S_T0+1}, 7680
        s_cselect_b32 s{S_T0+4}, s{S_W2}, s{S_CRE}
        s_cselect_b32 s{S_T0+5}, s{S_W2+1}, s{S_CRE+1}
        s_cmp_eq_u32 s{S_WAVE}, 3
        s_cselect_b32 s{S_T0+4}, s{S_CIM}, s{S_T0+4}
        s_cselect_b32 s{S_T0+5}, s{S_CIM+1}, s{S_T0+5}""")
    A(f"""s_mul_i32 s{S_T0+1}, s{S_T0+1}, s2
    s_cmp_eq_u32 s{S_WAVE}, 1
    s_cselect_b32 s{S_T0+2}, {3840 if G == 64 else 0}, 0
    s_add_u32 s{S_T0+1}, s{S_T0+1}, s{S_T0+2}
    v_min_u32 v{T}, s{S_T0}, v{VL}
    v_lshlrev_b32 v{T}, {sh}, v{T}
    v_add_u32 v{T}, s{S_T0+1}, v{T}
    global_load_dword v{T}, v{T}, s[{S_T0+4}:{S_T0+5}]""")
    A.label(l)
def by_wave(lo, hi):
    l1, l2 = A.newlabel("L_bw"), A.newlabel("L_bw")
    A(f"s_cmp_ge_u32 s{S_WAVE}, 2\ns_cbranch_scc1 {l1}")
    lo()
    A(f"s_branch {l2}")
    A.label(l1)
    hi()
    A.label(l2)

def zero_regs(lo, n):
    def f():
        for r in range(lo, lo + n):
            A(f"v_mov_b32 v{r}, 0")
    return f

def rowpat_read(dst, tmp):
    A(f"""v_bfe_u32 v{tmp}, v{VL}, 1, 3
    v_lshrrev_b32 v{dst}, 4, v{VL}
    v_xor_b32 v{tmp}, v{tmp}, v{dst}
    v_and_b32 v{dst}, 15, v{VL}
    v_lshlrev_b32 v{dst}, 7, v{dst}
    v_lshl_add_u32 v{dst}, v{tmp}, 4, v{dst}""")

def touch_inputs(T):
    if not OPT["pf"]:
        return
    G = OPT.get("tg", 64)
    plan = [[(S_X, 10240)], [(S_W1, 7680), (S_BRE, 3200)], [(S_W3, 7680), (S_BIM, 3200)], [(S_W2, 7680), (S_CRE, 3200), (S_CIM, 3200)]]
    done = A.newlabel("L_ti")
    sh = G.bit_length() - 1
    for w, segs in enumerate(plan):
        nx = A.newlabel("L_ti")
        if w < 3:
            A(f"s_cmp_lg_u32 s{S_WAVE}, {w}\ns_cbranch_scc1 {nx}")
        k = 0
        for p, n in segs:
            cnt = n // G
            A(f"s_mul_i32 s{S_T0}, s2, {n}")
            for o in range(0, cnt, 64):
                A(f"""v_add_u32 v{T}, {o}, v{VL}
                v_min_u32 v{T}, {cnt-1}, v{T}
                v_lshlrev_b32 v{T}, {sh}, v{T}
                v_add_u32 v{T}, s{S_T0}, v{T}
                global_load_dword v{244+k}, v{T}, s[{p}:{p+1}]""")
                k += 1
        if w < 3:
            A(f"s_branch {done}")
            A.label(nx)
    A.label(done)
def gemm1_loop(kind):
    mlp = kind == "mlp"
    NB = 8 if mlp else 10
    NS = 5
    SLOT = 16384 if mlp else 20480
    XF = 128 if mlp else 160
    WF = XF + 32
    AX = WF + NB * 4
    AW = AX + 2
    nAW = 4 if mlp else 2
    D = D1 if mlp else OPT["D1S"]
    lg = Queue(A, "lgkmcnt", 15)

    def rd_x(ks, T):
        b = XF + ks * 16 + T * 4
        if OPT["noread"]:
            return
        A(f"ds_read_b128 v[{b}:{b+3}], v{AX+ks} offset:{T*2048}")
        lg.issue(("x", ks))
    def rd_w(j, gen, half=None):
        b = WF + j * 4
        if OPT["noread"]:
            return
        if mlp:
            F, c = j // 2, j % 2
            for h in ((0, 1) if half is None else (half,)):
                A(f"ds_read_b64_tr_b16 v[{b+2*h}:{b+2*h+1}], v{AW+F} offset:{c*8192+1024*h}")
                lg.issue(("w", j, gen))
        else:
            ks, G = j // 5, j % 5
            A(f"ds_read_b128 v[{b}:{b+3}], v{AW+ks} offset:{G*2048}")
            lg.issue(("w", j, gen))
    def mf(j, T, par):
        w = WF + j * 4
        if (OPT["nomfma"] == 1 and T > 0) or OPT["nomfma"] == 2:
            return
        if mlp:
            acc = (j * 4 + T) * 4
            x = XF + par * 16 + T * 4
            A(f"v_mfma_f32_16x16x32_bf16 v[{acc}:{acc+3}], v[{w}:{w+3}], v[{x}:{x+3}], v[{acc}:{acc+3}]")
        else:
            acc = (((j % 5) * 2 + par) * 4 + T) * 4
            x = XF + (j // 5) * 16 + T * 4
            A(f"v_mfma_f32_16x16x32_bf16 v[{acc}:{acc+3}], v[{x}:{x+3}], v[{w}:{w+3}], v[{acc}:{acc+3}]")
    def xreads(par, j):
        k = j + D - NB
        if mlp:
            return [(par ^ 1, T) for T in ([2 * k, 2 * k + 1] if 0 <= k < 2 else [])]
        if par == 1:
            return [(0, T) for T in ([2 * k, 2 * k + 1] if 0 <= k < 2 else [])]
        return [(1, T) for T in ([2 * j, 2 * j + 1] if j < 2 else [])]
    assert mlp or NB - D >= 5

    A(f"s_mov_b32 s{S_SLOT}, 0\ns_mov_b32 s{S_CNT}, 0\ns_mov_b32 s{S_KX}, 0")
    vFP, vFV, vFD = 248, 249, 250
    A(f"s_mov_b32 m0, s{S_FR}\ns_mov_b32 s{S_LMT}, {PA or PB}")
    assert PA
    flag_wait(1, vFD, vFP)
    A(f"v_add_u32 v{vFP}, 4, v{vFP}")
    if TS:
        A("s_mov_b32 s48, 0\ns_mov_b32 s49, 0")
    ts(2, 2)
    tc(12)
    for j in range(D):
        rd_w(j, 0)
        for ks, T in xreads(1, j + NB - D):
            rd_x(ks, T)
    lbl = f"L_g1_{kind}"
    A(f"""s_mov_b32 s{S_T0}, {SLOT}
    s_mov_b32 s{S_T0+1}, {-(NS-1)*SLOT & 0xffffffff}
    s_mov_b32 s{S_T0+2}, 16384
    s_mov_b32 s{S_T0+3}, {-32768 & 0xffffffff}""")
    A.label(lbl)
    entry = list(lg.q)
    ring = [f"s_add_u32 s{S_SLOT}, s{S_SLOT}, 1\ns_cmp_eq_u32 s{S_SLOT}, {NS}",
            f"s_cselect_b32 s{S_DELTA}, s{S_T0+1}, s{S_T0}\ns_cselect_b32 s{S_SLOT}, 0, s{S_SLOT}"]
    xring = [f"s_add_u32 s{S_KX}, s{S_KX}, 1\ns_cmp_eq_u32 s{S_KX}, 3",
             f"s_cselect_b32 s{S_KW}, s{S_T0+3}, s{S_T0+2}\ns_cselect_b32 s{S_KX}, 0, s{S_KX}"]
    def adv(r, d):
        return f"v_add_u32 v{r}, s{d}, v{r}"
    for par in range(2):
        fill = {}
        if mlp:
            assert D == 4
            fill[(0, 2)] = ring[0]; fill[(1, 2)] = ring[1]
            fill[(2, 2)] = adv(AW, S_DELTA) + "\n" + adv(AW + 1, S_DELTA)
            fill[(6, 2)] = adv(AW + 2, S_DELTA) + f"\ns_add_u32 m0, m0, 4"; fill[(7, 2)] = adv(AW + 3, S_DELTA)
            fill[(0, 3)] = f"v_add_u32 v{vFP}, 4, v{vFP}"
            fpos, cpos, wpos = (1, 3), (3, 0), (7, 2)
            if par == 0:
                fill[(3, 2)] = xring[0]; fill[(3, 3)] = xring[1]
            else:
                fill[(3, 2)] = adv(AX, S_KW) + "\n" + adv(AX + 1, S_KW)
                fill[(7, 3)] = f"s_add_u32 s{S_CNT}, s{S_CNT}, 1\ns_cmp_lt_u32 s{S_CNT}, s{S_LMT}"
        else:
            assert D == 5
            fill[(2, 1)] = ring[0]; fill[(2, 2)] = ring[1]
            fill[(3, 1)] = adv(AW, S_DELTA); fill[(7, 1)] = adv(AW + 1, S_DELTA)
            fill[(1, 3)] = f"v_add_u32 v{vFP}, 4, v{vFP}"
            fill[(8, 3)] = f"s_add_u32 m0, m0, 4"
            fpos, cpos, wpos = (2, 3), (4, 2), (9, 2)
            if par == 0:
                fill[(8, 1)] = xring[0]; fill[(8, 2)] = xring[1]
            else:
                fill[(4, 1)] = adv(AX, S_KW) + "\n" + adv(AX + 1, S_KW)
                fill[(9, 1)] = f"s_add_u32 s{S_CNT}, s{S_CNT}, 1\ns_cmp_lt_u32 s{S_CNT}, s{S_LMT}"
        for j in range(NB):
            tags = [("w", j, par)]
            if j == 0:
                tags.append(("x", par if mlp else 0))
            if j == 5 and not mlp:
                tags.append(("x", 1))
            jn = j + D
            if jn == NB - 1:
                tags.append("flag")
            lg.wait(tags)
            acts = {0: [], 1: [], 2: [], 3: []}
            g = 0
            if jn == NB:
                acts[0].append(lambda: flag_test(None, vFD, vFP, 0, acc=48, split=True))
                g = 1
            wj, wg = (jn, par) if jn < NB else (jn - NB, par ^ 1)
            if mlp:
                acts[g].append(lambda wj=wj, wg=wg: rd_w(wj, wg, 0))
                acts[g + 1].append(lambda wj=wj, wg=wg: rd_w(wj, wg, 1))
                g += 2
            else:
                acts[g].append(lambda wj=wj, wg=wg: rd_w(wj, wg, 0))
                g += 1
            for n_, (ks, T) in enumerate(xreads(par, j)):
                acts[min(g + n_, 3)].append(lambda ks=ks, T=T: rd_x(ks, T))
            for T in range(4):
                mf(j, T, par)
                for f in acts[T]:
                    f()
                if (j, T) in fill:
                    A(fill[(j, T)])
                if (j, T) == fpos:
                    A(f"ds_read_b32 v{vFD}, v{vFP}")
                    lg.issue("flag")
                if (j, T) == cpos:
                    A(f"v_cmp_ne_u32 vcc, s{S_K}, v{vFD}")
                if (j, T) == wpos:
                    A(f"buffer_load_dword v{VZ}, s[{SRD_F}:{SRD_F+3}], 0 offen lds")
    A(f"s_cbranch_scc1 {lbl}")
    lfin = A.newlabel("L_g1e")
    A(f"s_cmp_eq_u32 s{S_CNT}, 10\ns_cbranch_scc1 {lfin}")
    if PA:
        lw_ = A.newlabel("L_g1w")
        A(f"s_cmp_lg_u32 s{S_CNT}, {PA}\ns_cbranch_scc1 {lw_}")
        if TS == 1:
            ts(30, 2)
        A(f"s_mov_b32 s{S_FR}, m0")
        nonce_load()
        A(f"s_mov_b64 s[{S_M0}:{S_M0+1}], s[{S_T0}:{S_T0+1}]\ns_mov_b64 s[{S_M1}:{S_M1+1}], s[{S_T0+2}:{S_T0+3}]")
        if OPT.get("tw", 3) == 2 and mlp:
            touch_w2(251)
        if mlp:
            by_wave(mlp_rows_loads, mlp_cs_loads)
        else:
            ssm_rows_loads()
        A(f"""s_mov_b64 s[{S_T0}:{S_T0+1}], s[{S_M0}:{S_M0+1}]
        s_mov_b64 s[{S_T0+2}:{S_T0+3}], s[{S_M1}:{S_M1+1}]
        s_mov_b32 m0, s{S_FR}
        s_mov_b32 s{S_LMT}, {PB}""")
        if TS == 1:
            A(f"s_memrealtime s[{S_TS}:{S_TS+1}]\ns_sleep 2\nv_writelane_b32 v255, s{S_TS}, 31")
        A(f"s_branch {lbl}")
        A.label(lw_)
    if TS == 1:
        ts(32, 2)
    nonce_ready()
    if mlp:
        by_wave(mlp_rows_work, mlp_cs_work)
        if OPT.get("tw", 3) == 3:
            A(f"s_mov_b64 s[{S_M0}:{S_M0+1}], s[{S_T0}:{S_T0+1}]\ns_mov_b64 s[{S_M1}:{S_M1+1}], s[{S_T0+2}:{S_T0+3}]")
            touch_w2(251)
            A(f"s_mov_b64 s[{S_T0}:{S_T0+1}], s[{S_M0}:{S_M0+1}]\ns_mov_b64 s[{S_T0+2}:{S_T0+3}], s[{S_M1}:{S_M1+1}]")
    else:
        ssm_rows_work()
    if TS == 1:
        ts(33, 2)
    A(f"s_mov_b32 s{S_LMT}, 10\ns_branch {lbl}")
    A.label(lfin)
    assert lg.q == entry[len(entry) - len(lg.q):]
    return lg, entry, AX, AW

G2_B = 96
G2_A = 128
NS2, SL2 = 9, 16384
def g2slot(s):
    return (s % NS2) * SL2

def rot_next(s, stepA, stepB, baseB):
    if s == 11:
        A(f"s_mul_i32 s{S_KB}, s{S_R2B}, {stepB}")
        if baseB:
            A(f"s_add_u32 s{S_KB}, s{S_KB}, {baseB}")
    elif s < 11:
        A(f"""s_add_u32 s{S_KB}, s{S_KB}, {stepA}
        s_cmp_eq_u32 s{S_KB}, {12*stepA}
        s_cselect_b32 s{S_KB}, 0, s{S_KB}""")
    elif s < 21:
        A(f"""s_add_u32 s{S_KB}, s{S_KB}, {stepB}
        s_cmp_eq_u32 s{S_KB}, {baseB+10*stepB}
        s_cselect_b32 s{S_KB}, {baseB}, s{S_KB}""")

def gemm2_compute(NT):
    RED = 4 * SL2
    vW, vC, vB = 204, 208, 212
    vA = 216
    vT = 224
    vFA, vFP, vFV, vFD, vG = 232, 233, 234, 235, 236
    X, ST, DK, TT = 128, 140, 152, 156
    A(f"""s_lshl_b32 s{S_T0}, s{S_T0}, 5
    s_add_u32 s{S_T0}, s{S_T0}, s{S_T0+1}
    s_lshl_b32 s{S_T0}, s{S_T0}, 2
    s_add_u32 s{S_T0+3}, s{S_T0}, {WS_FLAG}""")
    A(f"""s_lshl_b32 s{S_T0}, s{S_TG}, 4
    v_and_b32 v{vT}, 15, v{VL}
    v_add_u32 v{vT}, s{S_T0}, v{vT}                    ; row
    v_lshrrev_b32 v{vT+1}, 4, v{VL}
    s_lshl_b32 s{S_T0+1}, s{S_WAVE}, 4
    s_add_u32 s{S_T0+1}, s{S_T0+1}, s{S_DCOL}
    v_lshl_add_u32 v{vT+1}, v{vT+1}, 2, s{S_T0+1}      ; column
    v_mul_u32_u24 v{vT+2}, 640, v{vT}
    v_add_u32 v{vT+2}, v{vT+2}, v{vT+1}
    v_lshlrev_b32 v{vT+3}, 2, v{vT+2}
    v_lshlrev_b32 v{vT+2}, 1, v{vT+2}
    v_lshlrev_b32 v{vT+1}, 1, v{vT+1}
    v_lshlrev_b32 v{vT+4}, 3, v{vT}
    v_add_u32 v{vT+4}, {WS_STAT}, v{vT+4}""")
    for Tp in range(NT):
        A(f"global_load_dwordx2 v[{X+2*Tp}:{X+2*Tp+1}], v{vT+2}, s[{S_X}:{S_X+1}]")
        if Tp < NT - 1:
            A(f"v_add_u32 v{vT+2}, {16*1280}, v{vT+2}")
    A(f"global_load_dwordx2 v[{DK}:{DK+1}], v{vT+1}, s[{S_DSK}:{S_DSK+1}]")
    def stat_loads_():
        for Tp in range(NT):
            A(f"global_load_dwordx2 v[{ST+2*Tp}:{ST+2*Tp+1}], v{vT+4}, s[{S_WS}:{S_WS+1}] offset:{128*Tp} sc1")
    stat_loads_()
    A(f"""v_lshrrev_b32 v{vT}, 4, v{VL}               ; q
    v_bfe_u32 v{vT+1}, v{VL}, 2, 2                     ; rr
    v_lshl_add_u32 v{vT+1}, v{vT}, 2, v{vT+1}          ; 4q + rr
    v_bfe_u32 v{vT+5}, v{vT+1}, 1, 2                   ; swizzle
    s_lshl_b32 s{S_T0}, s{S_WAVE}, 5
    v_add_u32 v{vT+1}, s{S_T0}, v{vT+1}
    v_lshlrev_b32 v{vT+1}, 7, v{vT+1}
    v_and_b32 v{vT+2}, 3, v{VL}
    v_lshl_add_u32 v{vT+1}, v{vT+2}, 3, v{vT+1}
    v_and_b32 v{vT+2}, 1, v{vT}
    s_lshl_b32 s{S_T0}, s{S_WAVE}, 1
    v_add_u32 v{vT+2}, s{S_T0}, v{vT+2}                ; chunk = 2w + (q&1)
    v_bfe_u32 v{vT+6}, v{VL}, 1, 3
    v_xor_b32 v{vT+2}, v{vT+2}, v{vT+6}
    v_lshrrev_b32 v{vT}, 1, v{vT}
    v_lshlrev_b32 v{vT}, 13, v{vT}
    v_lshl_add_u32 v{vT}, v{vT+2}, 4, v{vT}
    v_and_b32 v{vT+6}, 15, v{VL}
    v_lshl_add_u32 v{vT}, v{vT+6}, 7, v{vT}""")
    for Up in range(4):
        A(f"""s_add_u32 s{S_T0}, s{S_WAVE}, {Up}
        s_and_b32 s{S_T0}, s{S_T0}, 3
        v_xor_b32 v{vT+2}, s{S_T0}, v{vT+5}
        v_lshl_add_u32 v{vW+Up}, v{vT+2}, 5, v{vT+1}
        s_lshl_b32 s{S_T0}, s{S_T0}, 11
        v_add_u32 v{vC+Up}, s{S_T0}, v{vT}""")
    A(f"v_lshlrev_b32 v{vT}, 4, v{VL}\ns_and_b32 s{S_T0+1}, s{S_TG}, 3")
    for Tp in range(NT):
        A(f"""s_add_u32 s{S_T0}, s{S_T0+1}, {Tp}
        s_lshr_b32 s{S_T0+2}, s{S_T0}, 2
        s_mul_i32 s{S_T0+2}, s{S_T0+2}, {88*4-4}
        s_add_u32 s{S_T0}, s{S_T0}, s{S_T0+2}
        s_lshl_b32 s{S_T0}, s{S_T0}, 10
        v_add_u32 v{vA+Tp}, s{S_T0}, v{vT}""")
    A(f"""s_mul_i32 s{S_T0}, s{S_HB2}, {88*4096}
    s_lshl_b32 s{S_T0+1}, s{S_WAVE}, 12
    s_add_u32 s{S_T0}, s{S_T0}, s{S_T0+1}
    s_add_u32 s{S_T0}, s{S_T0}, {WS_ACT}
    s_add_u32 s{SRD_T}, s{S_WS}, s{S_T0}
    s_addc_u32 s{SRD_T+1}, s{S_WS+1}, 0
    s_mov_b32 s{SRD_T+2}, {(88+85)*4096}
    s_mov_b32 s{SRD_T+3}, 0x20000
    s_lshl_b32 s{S_KB}, s{S_R2A}, 14""")
    lr, lo = A.newlabel("L_fl"), A.newlabel("L_fl")
    A(f"""s_lshl_b32 s{S_T0}, s{S_HB2}, 7
    s_add_u32 s{S_T0}, s{S_T0}, {WS_FLAG}
    v_and_b32 v{vFA}, {63 if NT == 6 else 31}, v{VL}
    v_lshlrev_b32 v{vFA}, 2, v{vFA}
    v_add_u32 v{vFA}, s{S_T0}, v{vFA}
    s_lshr_b32 s{S_T0+1}, s{S_WAVE}, 1
    s_lshl_b32 s{S_T0+1}, 0x555555, s{S_T0+1}
    v_mov_b32 v{vT}, s{S_T0+3}
    v_mov_b32 v{vT+1}, s{S_NONCE}
    s_waitcnt vmcnt({2*NT+1})
    s_mov_b64 exec, 1
    global_store_dword v{vT}, v{vT+1}, s[{S_WS}:{S_WS+1}] sc1
    s_mov_b64 exec, -1""")
    ts(6, 2)
    ls, lk = A.newlabel("L_st"), A.newlabel("L_st")
    A("s_waitcnt vmcnt(1)")
    A.label(ls)
    A(f"s_mov_b64 s[{S_M0}:{S_M0+1}], 0")
    for Tp in range(NT):
        A(f"v_cmp_ne_u32 vcc, s{S_NONCE}, v{ST+2*Tp+1}\ns_nop 1\ns_or_b64 s[{S_M0}:{S_M0+1}], s[{S_M0}:{S_M0+1}], vcc")
    A(f"s_cmp_eq_u64 s[{S_M0}:{S_M0+1}], 0\ns_cbranch_scc1 {lk}")
    stat_loads_()
    A("s_waitcnt vmcnt(0)")
    spin_tail(ls, lk, 1)
    A.label(lk)
    def unpack(dst, src):
        A(f"""v_and_b32 v{dst+3}, 0xffff0000, v{src+1}
        v_lshlrev_b32 v{dst+2}, 16, v{src+1}
        v_and_b32 v{dst+1}, 0xffff0000, v{src}
        v_lshlrev_b32 v{dst}, 16, v{src}""")
    def rnd(r, t):
        A(f"""v_cvt_pk_bf16_f32 v{t}, v{r}, v{r+1}
        v_cvt_pk_bf16_f32 v{t+1}, v{r+2}, v{r+3}""")
        unpack(r, t)
    unpack(DK, DK)
    for Tp in range(NT):
        st_, acc = ST + 2 * Tp, Tp * 4
        A(f"""v_and_b32 v{st_+1}, 0xffff0000, v{st_}
        v_lshlrev_b32 v{st_}, 16, v{st_}
        v_rcp_f32 v{st_+1}, v{st_+1}""")
        unpack(acc, X + 2 * Tp)
        for h in (0, 2):
            A(f"v_pk_add_f32 v[{TT+h}:{TT+h+1}], v[{acc+h}:{acc+h+1}], v[{st_}:{st_+1}] op_sel_hi:[1,0] neg_lo:[0,1] neg_hi:[0,1]")
        rnd(TT, TT + 4)
        for h in (0, 2):
            A(f"v_pk_mul_f32 v[{TT+h}:{TT+h+1}], v[{TT+h}:{TT+h+1}], v[{st_}:{st_+1}] op_sel:[0,1] op_sel_hi:[1,1]")
        rnd(TT, TT + 4)
        for h in (0, 2):
            A(f"v_pk_mul_f32 v[{TT+h}:{TT+h+1}], v[{TT+h}:{TT+h+1}], v[{DK+h}:{DK+h+1}]")
        rnd(TT, TT + 4)
        for h in (0, 2):
            A(f"v_pk_add_f32 v[{acc+h}:{acc+h+1}], v[{acc+h}:{acc+h+1}], v[{TT+h}:{TT+h+1}]")
    def poll(lr, lo, mask):
        A.label(lr)
        A(f"""global_load_dword v{vG}, v{vFA}, s[{S_WS}:{S_WS+1}] sc1
        s_waitcnt vmcnt(0)
        v_cmp_eq_u32 vcc, s{S_NONCE}, v{vG}
        s_nop 1
        s_and_b32 s{S_T0+2}, vcc_lo, vcc_hi
        s_and_b32 s{S_T0+2}, s{S_T0+2}, {mask}
        s_cmp_eq_u32 s{S_T0+2}, {mask}
        s_cbranch_scc1 {lo}""")
        spin_tail(lr, lo, 2)
        A.label(lo)
    poll(lr, lo, f"s{S_T0+1}")
    ts(7, 2)
    tc(14)
    if TS:
        A("s_mov_b32 s48, 0\ns_mov_b32 s49, 0")
    vm = Queue(A, "vmcnt", 63)
    def ldA1(s, Tp):
        b = G2_A + (s % DA) * 24
        A(f"buffer_load_dwordx4 v[{b+4*Tp}:{b+4*Tp+3}], v{vA+Tp}, s[{SRD_T}:{SRD_T+3}], s{S_KB} offen sc1")
        vm.issue(("a", s))
        if Tp == NT - 1:
            rot_next(s, 16384, 16384, 12 * 16384)
    def ldA(s):
        for Tp in range(NT):
            ldA1(s, Tp)
    def rdB(s, U):
        b = G2_B + (s % 2) * 16 + U * 4
        if s < 12:
            A(f"ds_read_b64_tr_b16 v[{b}:{b+1}], v{vB+U}")
            A(f"ds_read_b64_tr_b16 v[{b+2}:{b+3}], v{vB+U} offset:2048")
        else:
            A(f"ds_read_b128 v[{b}:{b+3}], v{vB+U}")
    def setB(s, us=range(4)):
        for U in us:
            A(f"v_add_u32 v{vB+U}, {g2slot(s)}, v{(vW if s < 12 else vC)+U}")
    assert DA == 3
    peer_addr(vFP, FLG)
    R0 = OPT.get("ramp", 2)
    st = {"nxt": R0}
    for s in range(R0):
        ldA(s)
    A(f"v_mov_b32 v{vFV}, s{S_K}")
    flag_wait(22, vFD, vFP)
    setB(0)
    for U in range(4):
        rdB(0, U)
    A(f"ds_read_b32 v{vFD}, v{vFP} offset:{4*23}")
    GATE = 12 - (DA - 1)
    def stage(s, limit):
        A(f"s_waitcnt lgkmcnt({1 if s else 0})")
        if TS == 2:
            ts(16 + s, 2)
        if TS == 3:
            A(f"s_memtime s[{S_TS}:{S_TS+1}]\ns_waitcnt lgkmcnt(0)\ns_mov_b32 s50, s{S_TS}")
        vm.wait(("a", s))
        if TS == 3:
            A(f"s_memtime s[{S_TS}:{S_TS+1}]\ns_waitcnt lgkmcnt(0)\ns_sub_u32 s50, s{S_TS}, s50\nv_writelane_b32 v255, s50, {16+s}\nv_writelane_b32 v255, s{S_TS}, {40+s}")
        todo = []
        while st["nxt"] <= min(limit, s - 1 + DA, 21) and len(todo) < 2 * NT:
            todo += [(st["nxt"], Tp) for Tp in range(NT)]
            st["nxt"] += 1
        acts = []
        if s < 21:
            acts.append(lambda: (A(f"v_cmp_ne_u32 vcc, s{S_K}, v{vFD}"), setB(s + 1, (0,))))
            acts.append(lambda: setB(s + 1, (1, 2)))
            acts.append(lambda: (flag_test(23 + s, vFD, vFP, 4 * (23 + s), split=True, acc=48), setB(s + 1, (3,))))
            for U in range(4):
                acts.append(lambda U=U: rdB(s + 1, U))
        if s < 20:
            acts.append(lambda: A(f"ds_read_b32 v{vFD}, v{vFP} offset:{4*(24+s)}"))
        if s == GATE - 1:
            acts.append(lambda: A(f"v_lshlrev_b32 v{vG}, 4, v{VL}\nv_add_u32 v{vG}, {AUX}, v{vG}\nds_read_b32 v{vG}, v{vG}"))
        acts.append(lambda: A(f"ds_write_b32 v{VFO}, v{vFV} offset:{4*(21+s)}"))
        lds = [lambda x=x: ldA1(*x) for x in todo]
        nm = 4 * NT
        sched = {i: [] for i in range(nm)}
        per = -(-len(acts) // max(nm - 2, 1))
        for i, f in enumerate(acts):
            sched[i // per].append(f)
        first = OPT.get("lf", 10) if NT == 6 else 0
        for i, f in enumerate(lds):
            sched[min(first + i * (nm - first) // len(lds), nm - 1)].append(f)
        for U in range(4):
            for Tp in range(NT):
                acc = (U * NT + Tp) * 4
                w = G2_B + (s % 2) * 16 + U * 4
                a = G2_A + (s % DA) * 24 + Tp * 4
                cin = "0" if (s == 0 and U != 0) else f"v[{acc}:{acc+3}]"
                A(f"v_mfma_f32_16x16x32_bf16 v[{acc}:{acc+3}], v[{w}:{w+3}], v[{a}:{a+3}], {cin}")
                for f in sched[U * NT + Tp]:
                    f()
    llate, ljoin = A.newlabel("L_late"), A.newlabel("L_join")
    for s in range(22):
        if s == GATE:
            assert st["nxt"] == 12
            A("s_waitcnt lgkmcnt(1)")
            A(f"v_cmp_le_u32 vcc, 3, v{vG}\ns_cbranch_vccz {llate}")
            keep = list(vm.q)
            mark = len(A.lines)
            A.label(llate)
            for s2_ in range(GATE, 12):
                stage(s2_, 11)
            poll(A.newlabel("L_fs"), A.newlabel("L_fs"), "0xff000000")
            vm.q = []
            for s2_ in range(12, 12 + DA - 1):
                ldA(s2_)
            A(f"s_branch {ljoin}")
            late_q = list(vm.q)
            SLOW.extend(A.lines[mark:])
            del A.lines[mark:]
            vm.q = keep
            st["nxt"] = 12
        if s == 12:
            A.label(ljoin)
            assert vm.q[-NT*(DA-1):] == late_q and st["nxt"] == 12 + DA - 1
        stage(s, 21)
    ts(8, 2)
    tc(15)
    if TS == 3:
        A("v_writelane_b32 v255, s48, 62\nv_writelane_b32 v255, s49, 63")
    flag_wait(38, vFD, vFP, 2048)
    A(f"v_lshlrev_b32 v{vB}, 4, v{VL}")
    for Up in range(1, 4):
        A(f"""s_add_u32 s{S_T0}, s{S_WAVE}, {Up}
        s_and_b32 s{S_T0}, s{S_T0}, 3
        s_mul_i32 s{S_T0}, s{S_T0}, {3*NT*1024}
        s_add_u32 s{S_T0}, s{S_T0}, {RED + (Up-1)*NT*1024}
        v_add_u32 v{vB+Up}, s{S_T0}, v{vB}""")
    A(f"""s_mul_i32 s{S_T0}, s{S_WAVE}, {3*NT*1024}
    s_add_u32 s{S_T0}, s{S_T0}, {RED}
    v_add_u32 v{vB}, s{S_T0}, v{vB}""")
    for Tp in range(NT):
        for Up in range(1, 4):
            acc = (Up * NT + Tp) * 4
            A(f"ds_write_b128 v{vB+Up}, v[{acc}:{acc+3}] offset:{Tp*1024}")
    A("s_waitcnt lgkmcnt(0)\ns_barrier")
    lg = Queue(A, "lgkmcnt", 15)
    def rdR(Tp):
        for i in range(3):
            b = ((1 + i) * NT + Tp) * 4
            A(f"ds_read_b128 v[{b}:{b+3}], v{vB} offset:{(i*NT+Tp)*1024}")
            lg.issue(("r", Tp))
    for Tp in range(min(NT, 4)):
        rdR(Tp)
    for Tp in range(NT):
        lg.wait(("r", Tp))
        a0, a1, a2, a3 = [(i * NT + Tp) * 4 for i in range(4)]
        for h in (0, 2):
            A(f"v_pk_add_f32 v[{a0+h}:{a0+h+1}], v[{a0+h}:{a0+h+1}], v[{a1+h}:{a1+h+1}]")
            A(f"v_pk_add_f32 v[{a2+h}:{a2+h+1}], v[{a2+h}:{a2+h+1}], v[{a3+h}:{a3+h+1}]")
        for h in (0, 2):
            A(f"v_pk_add_f32 v[{a0+h}:{a0+h+1}], v[{a0+h}:{a0+h+1}], v[{a2+h}:{a2+h+1}]")
        A(f"global_store_dwordx4 v{vT+3}, v[{a0}:{a0+3}], s[{S_OUT}:{S_OUT+1}]{['', ' sc1', ' nt', ' sc0 sc1'][OPT.get('omod', 2)]}")
        if Tp < NT - 1:
            A(f"v_add_u32 v{vT+3}, {16*2560}, v{vT+3}")
        if Tp + 4 < NT:
            rdR(Tp + 4)
    ts(9, 2)
    ts_flush(100)
    A("s_endpgm")
    flush_slow()

def publish_flag(idx_code):
    A(f"""s_lshl_b32 s{S_T0}, s{S_T0}, 5
    s_add_u32 s{S_T0}, s{S_T0}, s{S_T0+1}
    s_lshl_b32 s{S_T0}, s{S_T0}, 2
    s_add_u32 s{S_T0}, s{S_T0}, {WS_FLAG}
    v_mov_b32 v250, s{S_T0}
    v_mov_b32 v251, s{S_NONCE}
    s_waitcnt vmcnt({idx_code})
    s_mov_b64 exec, 1
    global_store_dword v250, v251, s[{S_WS}:{S_WS+1}] sc1
    s_mov_b64 exec, -1""")

A.label("L_compute")
A(f"s_setprio {OPT.get('pc1', 2)}")
if OPT.get("pfc", 1):
    A(f"""s_cmp_lg_u32 s{S_WAVE}, 3
    s_cbranch_scc1 L_pcd
    s_getpc_b64 s[{S_M0}:{S_M0+1}]
    L_pcc:
    s_sub_u32 s{S_M0}, s{S_M0}, L_pcc-L_code_start
    s_subb_u32 s{S_M0+1}, s{S_M0+1}, 0
    s_lshl_b32 s{S_T0}, s{S_IDX}, 11
    v_and_b32 v2, 15, v{VL}
    v_lshlrev_b32 v2, 7, v2
    v_add_u32 v2, s{S_T0}, v2
    v_min_u32 v2, L_code_end-L_code_start-8, v2
    global_load_dword v247, v2, s[{S_M0}:{S_M0+1}]
    L_pcd:""")
A(f"s_waitcnt lgkmcnt(0)\ns_load_dword s{S_K}, s[{S_X}:{S_X+1}], 0")
srd(SRD_F, S_X, 4)
flag_init(FREE, S_WAVE, 248, FLG, None)
A(f"s_mov_b32 s{S_FR}, s{S_T0}")
late_scalars()
A(f"s_cmp_eq_u32 s{S_J}, 0\ns_cbranch_scc1 L_ssm_compute")
if OPT.get("tw", 3) == 1:
    touch_w2(251)
A('v_mov_b32 v249, 0')
if PA == 0:
    by_wave(mlp_rows_loads, mlp_cs_loads)
zero_regs(0, 128)()
rowpat_read(192, 198)
A(f"""s_and_b32 s{S_T0}, s{S_WAVE}, 1
s_lshl_b32 s{S_T0}, s{S_T0}, 13
v_add_u32 v192, s{S_T0}, v192
v_xor_b32 v193, 64, v192
v_lshrrev_b32 v198, 4, v{VL}              ; q
v_bfe_u32 v199, v{VL}, 2, 2               ; rr
v_and_b32 v160, 1, v198
v_lshl_add_u32 v160, v160, 2, v199        ; swizzle s
v_lshl_add_u32 v198, v198, 3, v199        ; k row
v_lshlrev_b32 v198, 8, v198
v_and_b32 v199, 3, v{VL}
v_lshl_add_u32 v198, v199, 3, v198
v_add_u32 v198, {WRING}, v198
s_lshr_b32 s{S_T0}, s{S_WAVE}, 1
s_lshl_b32 s{S_T0}, s{S_T0}, 2""")
for F in range(4):
    A(f"""s_add_u32 s{S_T0+1}, s{S_T0}, {F}
    v_xor_b32 v199, s{S_T0+1}, v160
    v_lshl_add_u32 v{194+F}, v199, 5, v198""")
ts(1, 2)
lg, entry, AX, AW = gemm1_loop("mlp")
A("s_waitcnt lgkmcnt(0)")
ts(3, 2)
tc(13)
if TS:
    A("v_writelane_b32 v255, s48, 10\nv_writelane_b32 v255, s49, 11")
if OPT.get("solo", 0):
    ts_flush(100)
    A("s_endpgm")
A(f"s_setprio {OPT.get('pc2', 3)}")
ER = 128
EC = 144
A(f"""s_and_b32 s{S_T0}, s{S_WAVE}, 1
s_lshl_b32 s{S_T0}, s{S_T0}, 10
s_add_u32 s{S_T0}, s{S_T0}, {M_ROW}
v_and_b32 v192, 15, v{VL}
v_lshlrev_b32 v192, 4, v192
v_add_u32 v192, s{S_T0}, v192
s_lshr_b32 s{S_T0}, s{S_WAVE}, 1
s_lshl_b32 s{S_T0}, s{S_T0}, 8
s_add_u32 s{S_T0}, s{S_T0}, {M_CS}
v_lshrrev_b32 v193, 4, v{VL}
v_lshlrev_b32 v193, 4, v193
v_add_u32 v193, s{S_T0}, v193""")
for T in range(4):
    A(f"ds_read_b128 v[{ER+4*T}:{ER+4*T+3}], v192 offset:{256*T}")
for F in range(4):
    for c in range(2):
        b = EC + (F * 2 + c) * 4
        A(f"ds_read_b128 v[{b}:{b+3}], v193 offset:{c*512+F*64}")
A(f"""s_lshl_b32 s{S_T0}, s{S_C}, 1
s_and_b32 s{S_T0+1}, s{S_WAVE}, 1
s_add_u32 s{S_T0}, s{S_T0}, s{S_T0+1}
s_mul_i32 s{S_T0}, s{S_T0}, 88
s_lshl_b32 s{S_T0+1}, s{S_CB}, 2
s_add_u32 s{S_T0}, s{S_T0}, s{S_T0+1}
s_and_b32 s{S_T0+1}, s{S_WAVE}, 2
s_add_u32 s{S_T0}, s{S_T0}, s{S_T0+1}
s_lshl_b32 s{S_T0}, s{S_T0}, 12
s_add_u32 s{S_T0}, s{S_T0}, {WS_ACT}
v_lshlrev_b32 v194, 4, v{VL}
v_add_u32 v194, s{S_T0}, v194
v_add_u32 v195, 4096, v194
s_waitcnt lgkmcnt(0)""")
if TS == 1:
    ts(16, 2)
ET = 176
EO = 184
n = 0
for u in range(2):
    for T in range(4):
        m = ER + 4 * T
        prs = []
        for F in (2 * u, 2 * u + 1):
            for h in (0, 2):
                g = ((F * 2 + 0) * 4 + T) * 4 + h
                up = ((F * 2 + 1) * 4 + T) * 4 + h
                prs.append((g, up, EC + (F * 2) * 4 + h, EC + (F * 2 + 1) * 4 + h))
        for i, (g, up, cg, cu) in enumerate(prs):
            A(f"v_pk_fma_f32 v[{g}:{g+1}], v[{cg}:{cg+1}], v[{m}:{m+1}], v[{g}:{g+1}] op_sel_hi:[1,0,1] neg_lo:[0,1,0] neg_hi:[0,1,0]")
        for i, (g, up, cg, cu) in enumerate(prs):
            e = ET + 2 * i
            A(f"v_pk_mul_f32 v[{e}:{e+1}], v[{g}:{g+1}], v[{m}:{m+1}] op_sel:[0,1] op_sel_hi:[1,1]")
        for i, (g, up, cg, cu) in enumerate(prs):
            e = ET + 2 * i
            A(f"v_exp_f32 v{e}, v{e}\nv_exp_f32 v{e+1}, v{e+1}")
            A(f"v_pk_fma_f32 v[{up}:{up+1}], v[{cu}:{cu+1}], v[{m}:{m+1}], v[{up}:{up+1}] op_sel_hi:[1,0,1] neg_lo:[0,1,0] neg_hi:[0,1,0]")
        for i, (g, up, cg, cu) in enumerate(prs):
            e = ET + 2 * i
            A(f"v_pk_fma_f32 v[{e}:{e+1}], v[{e}:{e+1}], v[{m+2}:{m+3}], v[{m+2}:{m+3}] op_sel_hi:[1,0,0]")
        for i, (g, up, cg, cu) in enumerate(prs):
            e = ET + 2 * i
            A(f"v_rcp_f32 v{e}, v{e}\nv_rcp_f32 v{e+1}, v{e+1}")
            A(f"v_pk_mul_f32 v[{g}:{g+1}], v[{g}:{g+1}], v[{up}:{up+1}]")
        for i, (g, up, cg, cu) in enumerate(prs):
            e = ET + 2 * i
            A(f"v_pk_mul_f32 v[{g}:{g+1}], v[{g}:{g+1}], v[{e}:{e+1}]")
        o = EO + 4 * (n % 2)
        for i, (g, up, cg, cu) in enumerate(prs):
            A(f"v_cvt_pk_bf16_f32 v{o+i}, v{g}, v{g+1}")
        if TS == 1 and n % 2 == 0:
            ts(17 + n, 2)
        if not OPT.get("nost", 0):
            A(f"global_store_dwordx4 v{194+u}, v[{o}:{o+3}], s[{S_WS}:{S_WS+1}] offset:{1024*T} sc1")
        if TS == 1 and n % 2 == 0:
            ts(18 + n, 2)
        n += 1
ts(4, 2)
A(f"""s_lshl_b32 s{S_T0}, s{S_C}, 1
s_and_b32 s{S_T0+1}, s{S_WAVE}, 1
s_add_u32 s{S_T0}, s{S_T0}, s{S_T0+1}
s_lshl_b32 s{S_T0+1}, s{S_CB}, 1
s_lshr_b32 s{S_T0+2}, s{S_WAVE}, 1
s_add_u32 s{S_T0+1}, s{S_T0+1}, s{S_T0+2}""")
gemm2_compute(6)

A.label("L_ssm_compute")
if PA == 0:
    ssm_rows_loads()
zero_regs(0, 160)()
rowpat_read(232, 160)
A(f"""s_lshr_b32 s{S_T0}, s{S_WAVE}, 1
s_mul_i32 s{S_T0}, s{S_T0}, 10240
s_add_u32 s{S_T0}, s{S_T0}, {WRING}
v_add_u32 v234, s{S_T0}, v232
v_xor_b32 v235, 64, v234
s_and_b32 s{S_T0}, s{S_WAVE}, 1
s_lshl_b32 s{S_T0}, s{S_T0}, 13
v_add_u32 v232, s{S_T0}, v232
v_xor_b32 v233, 64, v232""")
ts(1, 2)
lg, entry, AX, AW = gemm1_loop("ssm")
A("s_waitcnt lgkmcnt(0)")
ts(3, 2)
tc(13)
if TS:
    A("v_writelane_b32 v255, s48, 10\nv_writelane_b32 v255, s49, 11")
if OPT.get("solo", 0):
    ts_flush(100)
    A("s_endpgm")
A(f"s_setprio {OPT.get('pc2', 3)}")
def acc(G, c, m, r=0):
    return ((G * 2 + c) * 4 + m) * 4 + r
SM, SR_ = 160, 176
SCS = 192
SLAM = 202
SK = 212
SA = 222
A(f"""s_and_b32 s{S_T0}, s{S_WAVE}, 1
s_lshl_b32 s{S_T0}, s{S_T0}, 8
s_add_u32 s{S_T0}, s{S_T0}, {M_ROW}
v_lshrrev_b32 v{SA}, 4, v{VL}
v_lshlrev_b32 v{SA}, 4, v{SA}
v_add_u32 v{SA}, s{S_T0}, v{SA}
s_lshr_b32 s{S_T0+1}, s{S_WAVE}, 1
s_mul_i32 s{S_T0+1}, s{S_T0+1}, 80
v_and_b32 v{SA+1}, 15, v{VL}
v_add_u32 v{SA+1}, s{S_T0+1}, v{SA+1}
v_lshlrev_b32 v{SA+2}, 2, v{SA+1}
v_add_u32 v{SA+3}, {M_CS}, v{SA+2}
v_lshlrev_b32 v{SA+4}, 3, v{SA+1}
v_add_u32 v{SA+4}, {M_LAM}, v{SA+4}""")
for m in range(4):
    A(f"ds_read_b128 v[{SM+4*m}:{SM+4*m+3}], v{SA} offset:{64*m}")
    A(f"ds_read_b128 v[{SR_+4*m}:{SR_+4*m+3}], v{SA} offset:{512+64*m}")
for G in range(5):
    A(f"ds_read_b32 v{SCS+2*G}, v{SA+3} offset:{64*G}")
    A(f"ds_read_b32 v{SCS+2*G+1}, v{SA+3} offset:{640+64*G}")
for G in range(5):
    A(f"ds_read_b64 v[{SLAM+2*G}:{SLAM+2*G+1}], v{SA+4} offset:{128*G}")
    A(f"ds_read_b64 v[{SK+2*G}:{SK+2*G+1}], v{SA+4} offset:{M_COEF-M_LAM+128*G}")
A(f"""s_and_b32 s{S_T0}, s{S_WAVE}, 1
s_mul_i32 s{S_T0}, s{S_T0}, {8*1280}
s_add_u32 s{S_T0}, s{S_T0}, {E_BASE}
v_lshrrev_b32 v{SA+5}, 4, v{VL}
v_mul_u32_u24 v{SA+5}, 2560, v{SA+5}
v_lshl_add_u32 v{SA+5}, v{SA+2}, 1, v{SA+5}
v_add_u32 v{SA+5}, s{S_T0}, v{SA+5}
v_add_u32 v{SA+7}, 1280, v{SA+5}
s_waitcnt lgkmcnt(0)""")
def pk(op, d, a, b, c=None, sa=None, sb=None, sc=None, neg=None):
    ops = [a, b] + ([c] if c is not None else [])
    sel = [sa, sb] + ([sc] if c is not None else [])
    lo = [0 if s is None else s for s in sel]
    hi = [1 if s is None else s for s in sel]
    t = f"v_pk_{op}_f32 v[{d}:{d+1}], " + ", ".join(f"v[{o}:{o+1}]" for o in ops)
    t += " op_sel:[" + ",".join(map(str, lo)) + "] op_sel_hi:[" + ",".join(map(str, hi)) + "]"
    if neg is not None:
        nn = [1 if i == neg else 0 for i in range(len(ops))]
        t += " neg_lo:[" + ",".join(map(str, nn)) + "] neg_hi:[" + ",".join(map(str, nn)) + "]"
    A(t)
for m in range(4):
    for h in (0, 2):
        for G in range(5):
            for c in range(2):
                a = acc(G, c, m, h)
                pk("fma", a, SM + 4 * m + h, SCS + 2 * G, a, sb=c, neg=1)
        for G in range(5):
            for c in range(2):
                a = acc(G, c, m, h)
                pk("mul", a, a, SR_ + 4 * m + h)
steps = [(m, h) for m in range(4) for h in (0, 2)]
for k in range(1, 8):
    (m, h), (pm, ph) = steps[k], steps[k - 1]
    for G in range(5):
        pk("fma", acc(G, 0, m, h), acc(G, 0, pm, ph), SLAM + 2 * G, acc(G, 0, m, h), sb=0)
        pk("fma", acc(G, 1, m, h), acc(G, 1, pm, ph), SLAM + 2 * G, acc(G, 1, m, h), sb=0)
    for G in range(5):
        pk("fma", acc(G, 0, m, h), acc(G, 1, pm, ph), SLAM + 2 * G, acc(G, 0, m, h), sb=1, neg=1)
        pk("fma", acc(G, 1, m, h), acc(G, 0, pm, ph), SLAM + 2 * G, acc(G, 1, m, h), sb=1)
peer_addr(248, FREE)
flag_wait(18, 250, 248)
for G in range(5):
    for e in range(2):
        A(f"ds_write2_b32 v{SA+5+2*e}, v{acc(G,0,3,2+e)}, v{acc(G,1,3,2+e)} offset0:{32*G} offset1:{32*G+1}")
A("s_waitcnt lgkmcnt(0)\ns_setprio 0\ns_barrier")
ts(4, 2)
for m, h in steps:
    for G in range(5):
        t = SM + 2 * G
        pk("mul", t, acc(G, 0, m, h), SK + 2 * G, sb=1)
    for G in range(5):
        pk("mul", acc(G, 0, m, h), acc(G, 0, m, h), SK + 2 * G, sb=0)
    for G in range(5):
        pk("fma", acc(G, 0, m, h), acc(G, 1, m, h), SK + 2 * G, acc(G, 0, m, h), sb=1)
    for G in range(5):
        t = SM + 2 * G
        pk("fma", acc(G, 1, m, h), acc(G, 1, m, h), SK + 2 * G, t, sb=0, neg=1)
A(f"""s_mul_i32 s{S_T0}, s{S_WAVE}, 12288
s_add_u32 s{S_T0}, s{S_T0}, {TR_BASE}
v_and_b32 v{SA}, 7, v{VL}
v_bfe_u32 v{SA+1}, v{VL}, 3, 1
v_lshlrev_b32 v{SA+1}, 2, v{SA+1}
v_xor_b32 v{SA}, v{SA}, v{SA+1}                ; f
v_lshrrev_b32 v{SA+1}, 4, v{VL}
v_lshlrev_b32 v{SA+1}, 1, v{SA+1}
v_xor_b32 v{SA}, v{SA}, v{SA+1}                ; (2q) ^ f
v_and_b32 v{SA+1}, 15, v{VL}
v_lshlrev_b32 v{SA+1}, 7, v{SA+1}
v_lshl_add_u32 v{SA}, v{SA}, 4, v{SA+1}
v_add_u32 v{SA}, s{S_T0}, v{SA}                ; e = 0
v_xor_b32 v{SA+1}, 16, v{SA}                   ; e = 1
v_lshrrev_b32 v{SA+2}, 4, v{VL}                ; q
v_bfe_u32 v{SA+3}, v{VL}, 2, 2                 ; rr
v_and_b32 v{SA+4}, 1, v{SA+2}
v_lshl_add_u32 v{SA+4}, v{SA+4}, 2, v{SA+3}
v_bfe_u32 v{SA+6}, v{VL}, 1, 1                 ; cc>>1
v_xor_b32 v{SA+4}, v{SA+4}, v{SA+6}
v_lshl_add_u32 v{SA+2}, v{SA+2}, 3, v{SA+3}    ; row
v_lshlrev_b32 v{SA+2}, 7, v{SA+2}
v_lshl_add_u32 v{SA+2}, v{SA+4}, 4, v{SA+2}
v_and_b32 v{SA+3}, 1, v{VL}
v_lshl_add_u32 v{SA+2}, v{SA+3}, 3, v{SA+2}
v_add_u32 v{SA+2}, s{S_T0}, v{SA+2}""")
TA = 176
for Tq in range(4):
    A(f"v_xor_b32 v{TA+2*Tq}, {32*Tq}, v{SA+2}")
    A(f"v_xor_b32 v{TA+2*Tq+1}, {(32*Tq) ^ 64}, v{SA+2}")
A(f"""s_lshl_b32 s{S_T0}, s{S_C}, 1
s_and_b32 s{S_T0+1}, s{S_WAVE}, 1
s_add_u32 s{S_T0}, s{S_T0}, s{S_T0+1}
s_mul_i32 s{S_T0}, s{S_T0}, 88
s_mul_i32 s{S_T0+1}, s{S_CB}, 10
s_add_u32 s{S_T0}, s{S_T0}, s{S_T0+1}
s_lshr_b32 s{S_T0+1}, s{S_WAVE}, 1
s_mul_i32 s{S_T0+1}, s{S_T0+1}, 5
s_add_u32 s{S_T0}, s{S_T0}, s{S_T0+1}
s_add_u32 s{S_T0}, s{S_T0}, 48
s_lshl_b32 s{S_T0}, s{S_T0}, 12
s_add_u32 s{S_T0}, s{S_T0}, {WS_ACT}
v_lshlrev_b32 v{SA+3}, 4, v{VL}
v_add_u32 v{SA+3}, s{S_T0}, v{SA+3}""")
A("s_setprio 3\ns_barrier")
ts(5, 2)
SW = 184
SW = 182
def W(G, c):
    idx = G * 2 + c
    return (160 + 2 * idx) if idx < 8 else (192 + 2 * (idx - 8))
for G in range(5):
    for c in range(2):
        for e in range(2):
            A(f"ds_read_b32 v{W(G,c)+e}, v{SA+5} offset:{e*1280+c*4+128*G}")
A("s_waitcnt lgkmcnt(0)")
lg = Queue(A, "lgkmcnt", 15)
def stores(G):
    for Tq in range(4):
        lg.wait(("t", G, Tq))
        b = G * 32 + 16 + Tq * 4
        A(f"global_store_dwordx4 v{SA+3}, v[{b}:{b+3}], s[{S_WS}:{S_WS+1}] offset:{1024*Tq} sc1")
    if G < 4:
        A(f"v_add_u32 v{SA+3}, 4096, v{SA+3}")
prev = []
for Gs in ((0,), (1, 2), (3, 4)):
    for k, (m, h) in enumerate(steps):
        for G in Gs:
            for c in range(2):
                pk("add", acc(G, c, m, h), acc(G, c, m, h), W(G, c))
        if k < 7:
            for G in Gs:
                pk("mul", 196 + 2 * (G % 2), W(G, 0), SLAM + 2 * G, sb=1)
            for G in Gs:
                pk("mul", W(G, 0), W(G, 0), SLAM + 2 * G, sb=0)
            for G in Gs:
                pk("fma", W(G, 0), W(G, 1), SLAM + 2 * G, W(G, 0), sb=1)
            for G in Gs:
                pk("fma", W(G, 1), W(G, 1), SLAM + 2 * G, 196 + 2 * (G % 2), sb=0, neg=2)
        if k in (1, 3) and prev:
            if TS == 1 and prev[0] == 0:
                ts(16, 2)
            stores(prev.pop(0))
    for G in Gs:
        for c in range(2):
            o = (184 if G % 2 else 232) if c == 0 else G * 32
            for e in range(2):
                for m in range(4):
                    A(f"v_cvt_pk_bf16_f32 v{o+4*e+m}, v{acc(G,c,m,e)}, v{acc(G,c,m,2+e)}")
            for e in range(2):
                A(f"ds_write_b128 v{SA+e}, v[{o+4*e}:{o+4*e+3}] offset:{(G%3)*4096+c*2048}")
                lg.issue("w")
        for Tq in range(4):
            b = G * 32 + 16 + Tq * 4
            A(f"ds_read_b64_tr_b16 v[{b}:{b+1}], v{TA+2*Tq} offset:{(G%3)*4096}")
            A(f"ds_read_b64_tr_b16 v[{b+2}:{b+3}], v{TA+2*Tq+1} offset:{(G%3)*4096+512}")
            lg.issue(("t", G, Tq)); lg.issue(("t", G, Tq))
    prev = list(Gs)
stores(3)
stores(4)
if TS == 1:
    ts(17, 2)
A(f"""s_lshl_b32 s{S_T0}, s{S_C}, 1
s_and_b32 s{S_T0+1}, s{S_WAVE}, 1
s_add_u32 s{S_T0}, s{S_T0}, s{S_T0+1}
s_lshl_b32 s{S_T0+1}, s{S_CB}, 1
s_lshr_b32 s{S_T0+2}, s{S_WAVE}, 1
s_add_u32 s{S_T0+1}, s{S_T0+1}, s{S_T0+2}
s_add_u32 s{S_T0+1}, s{S_T0+1}, 24""")
gemm2_compute(2)

def rowpat_load(dst, tmp, ssm):
    A(f"""v_lshrrev_b32 v{tmp}, 4, v{VL}
    v_xor_b32 v{tmp+1}, v{tmp}, v{VL}
    v_and_b32 v{tmp+1}, 7, v{tmp+1}              ; chunk""")
    if ssm:
        A(f"""v_lshrrev_b32 v{tmp}, 5, v{VL}
        v_lshlrev_b32 v{tmp}, 4, v{tmp}
        v_bfe_u32 v{dst}, v{VL}, 3, 1
        v_lshl_add_u32 v{tmp}, v{dst}, 3, v{tmp}
        v_bfe_u32 v{dst}, v{VL}, 4, 1
        v_add_u32 v{tmp}, v{tmp}, v{dst}""")
        up = 32
    else:
        A(f"v_lshrrev_b32 v{tmp}, 3, v{VL}")
        up = 8
    A(f"""v_mul_u32_u24 v{dst}, 1280, v{tmp}
    v_lshl_add_u32 v{dst}, v{tmp+1}, 4, v{dst}
    v_xor_b32 v{dst+1}, 64, v{dst}
    v_add_u32 v{dst+1}, {up*1280-1024}, v{dst+1}""")

LFP, LFV, LFD, LPA, LPD = 240, 241, 242, 243, 244
S_U, S_XS, S_S2 = 83, 84, 87
S_RET, S_SUB = 90, 30
class NoQ:
    def issue(self, t): pass
    def wait(self, t): pass
NOQ = NoQ()
CAP = OPT.get("cap", 8)
def cap(n=None):
    A(f"s_waitcnt vmcnt({CAP if n is None else n})")
class CapQ:
    def issue(self, t):
        cap()
    def wait(self, t): pass
CAPQ = CapQ()
class Jobs:
    def __init__(self):
        self.q = []
    def add(self, g):
        self.q.append(g)
    def step(self, n=1):
        if not self.q:
            return
        A(f"s_setprio {OPT.get('pls', 3)}")
        while n > 0 and self.q:
            try:
                next(self.q[0])
            except StopIteration:
                self.q.pop(0)
            n -= 1
        A("s_setprio 0")
def run(g):
    for _ in g:
        pass

LAX, LFQ = 245, 246
def declare(sreg):
    A(f"""s_lshl_b32 s{sreg}, s{sreg}, 2
    v_add_u32 v{LFQ}, s{sreg}, v{VFO}
    v_mov_b32 v{LFV}, s{S_K}
    ds_write_b32 v{LFQ}, v{LFV}""")
def wait_free(sreg):
    A(f"s_lshl_b32 s{sreg}, s{sreg}, 2\nv_add_u32 v{LFQ}, s{sreg}, v{LFP}")
    flag_wait(0, LFD, LFQ, nap=OPT.get('lnap', 0))
def stamp(idx_sreg, add):
    if TS:
        A(f"""s_memrealtime s[{S_TS}:{S_TS+1}]
        s_add_u32 m0, s{idx_sreg}, {add}
        s_waitcnt lgkmcnt(0)
        v_writelane_b32 v255, s{S_TS}, m0""")

def poll_setup(two):
    A(f"""s_lshl_b32 s{S_T0}, s{S_HB2}, 7
    s_add_u32 s{S_T0}, s{S_T0}, {WS_FLAG+96}
    v_and_b32 v{LPA}, 7, v{VL}
    v_lshlrev_b32 v{LPA}, 2, v{LPA}
    v_add_u32 v{LPA}, s{S_T0}, v{LPA}""")
    if two:
        A(f"v_and_b32 v{LPD}, 8, v{VL}\nv_lshl_add_u32 v{LPA}, v{LPD}, 4, v{LPA}")
def poll_issue():
    A(f"global_load_dword v{LPD}, v{LPA}, s[{S_WS}:{S_WS+1}] sc1")
def poll_check():
    lo = A.newlabel("L_pk")
    A(f"""v_cmp_ne_u32 vcc, s{S_NONCE}, v{LPD}
    s_cbranch_vccnz {lo}
    v_mov_b32 v{LFV}, 3
    ds_write_b32 v{LAX}, v{LFV}""")
    A.label(lo)

VW2, VC2 = 12, 15
def g2_setup(NT, tmp):
    srd(SRD_W2, S_W2, 1966080)
    srd(SRD_C, S_CRE, 819200)
    srd(SRD_T, S_CIM, 819200)
    A(f"""s_lshl_b32 s{S_T0}, s{S_DCOL}, 1
    v_lshrrev_b32 v{tmp}, 4, v{VL}
    v_lshlrev_b32 v{tmp}, 1, v{tmp}
    v_xor_b32 v{tmp}, v{tmp}, v{VL}
    v_and_b32 v{tmp}, 7, v{tmp}
    v_lshrrev_b32 v{tmp+1}, 3, v{VL}
    v_mul_u32_u24 v{tmp+1}, 1280, v{tmp+1}
    v_lshl_add_u32 v{tmp}, v{tmp}, 4, v{tmp+1}
    v_add_u32 v{VW2}, s{S_T0}, v{tmp}""")
    rowpat_load(VC2, tmp, False)
    A(f"""s_mul_i32 s{S_T0}, s{S_DCOL}, 1280
    v_add_u32 v{VC2}, s{S_T0}, v{VC2}
    v_add_u32 v{VC2+1}, s{S_T0}, v{VC2+1}
    s_add_u32 s{S_S2}, s{S_LW}, 1
    s_and_b32 s{S_S2}, s{S_S2}, 3
    s_add_u32 s{S_KS}, s{S_S2}, s{S_R2A}
    s_cmp_ge_u32 s{S_KS}, 12
    s_cselect_b32 s{S_T0}, 12, 0
    s_sub_u32 s{S_KS}, s{S_KS}, s{S_T0}
    s_mul_i32 s{S_KS}, s{S_KS}, {128*1280}
    v_lshlrev_b32 v236, 4, v{VL}""")
    poll_setup(NT == 6)

def g2_pieces(k):
    out = []
    for i in range(16):
        if k < 3:
            out.append((VW2, SRD_W2, i * 8 * 1280, 0))
        else:
            mat, ii = i // 8, i % 8
            out.append((VC2 + ii % 2, SRD_T if mat else SRD_C, (ii // 2) * 16 * 1280, 1024 * (ii % 2)))
    return out
def g2_next(k):
    if k == 2:
        A(f"""s_and_b32 s{S_KS}, s{S_S2}, 3
        s_add_u32 s{S_KS}, s{S_KS}, s{S_R2B}
        s_cmp_ge_u32 s{S_KS}, 10
        s_cselect_b32 s{S_T0}, 10, 0
        s_sub_u32 s{S_KS}, s{S_KS}, s{S_T0}
        s_lshl_b32 s{S_KS}, s{S_KS}, 7""")
    else:
        step, n = (128 * 1280, 12) if k < 2 else (128, 10)
        A(f"""s_add_u32 s{S_KS}, s{S_KS}, {4*step}
        s_cmp_ge_u32 s{S_KS}, {n*step}
        s_cselect_b32 s{S_T0}, {n*step}, 0
        s_sub_u32 s{S_KS}, s{S_KS}, s{S_T0}""")
THR = OPT.get("thr", 8)
def g2_load(k, base, thr):
    for i, (v, sd, ex, io) in enumerate(g2_pieces(k)):
        if i:
            yield
        A(f"s_add_u32 s{S_T0+7}, s{S_KS}, {ex}\ns_waitcnt vmcnt({thr})")
        A(f"buffer_load_dwordx4 v[{base+4*i}:{base+4*i+3}], v{v}, s[{sd}:{sd+3}], s{S_T0+7} offen offset:{io}")
    g2_next(k)
    ts(48 + k, 2)
def g2_put(k, base, young, lowest, g=None):
    A(f"s_add_u32 s{S_T0+6}, s{S_S2}, {21-NS2}\ns_max_u32 s{S_T0+6}, s{S_T0+6}, {lowest}")
    wait_free(S_T0 + 6)
    A(f"s_waitcnt vmcnt({young})\nv_add_u32 v237, s{S_SLOT}, v236")
    for i in range(16):
        A(f"ds_write_b128 v237, v[{base+4*i}:{base+4*i+3}] offset:{1024*i}")
        if g is not None and i % 2 == 1:
            next(g, None)
    A(f"""s_add_u32 s{S_S2}, s{S_S2}, 4
    s_add_u32 s{S_T0+6}, s{S_S2}, 21""")
    declare(S_T0 + 6)
    ts(40 + k, 2)
    A(f"""s_add_u32 s{S_SLOT}, s{S_SLOT}, {4*SL2}
    s_cmp_ge_u32 s{S_SLOT}, {NS2*SL2}
    s_cselect_b32 s{S_T0}, {NS2*SL2}, 0
    s_sub_u32 s{S_SLOT}, s{S_SLOT}, s{S_T0}""")
    if g is not None:
        run(g)
    A("s_waitcnt lgkmcnt(0)")

def bump_epoch(T):
    lr, lo = A.newlabel("L_ep"), A.newlabel("L_ep")
    ld = A.newlabel("L_ep")
    A(f"""s_cmp_lg_u32 s2, 0
    s_cbranch_scc1 {ld}
    s_cmp_lg_u32 s{S_LW}, 2
    s_cbranch_scc1 {ld}
    v_lshlrev_b32 v{T}, 4, v{VL}
    v_add_u32 v{T}, {WS_FLAG}, v{T}""")
    A.label(lr)
    for i in range(4):
        A(f"global_load_dwordx4 v[{T+4+4*i}:{T+7+4*i}], v{T}, s[{S_WS}:{S_WS+1}] offset:{1024*i} sc1")
    A(f"s_waitcnt vmcnt(0)\ns_mov_b64 s[{S_M0}:{S_M0+1}], 0")
    for i in range(16):
        A(f"v_cmp_ne_u32 vcc, s{S_NONCE}, v{T+4+i}\ns_nop 1\ns_or_b64 s[{S_M0}:{S_M0+1}], s[{S_M0}:{S_M0+1}], vcc")
    A(f"s_cmp_eq_u64 s[{S_M0}:{S_M0+1}], 0\ns_cbranch_scc1 {lo}")
    spin_tail(lr, lo, 4)
    A.label(lo)
    A(f"""v_mov_b32 v{T}, {WS_E}
    v_mov_b32 v{T+1}, s{S_NONCE}
    s_mov_b64 exec, 1
    global_store_dword v{T}, v{T+1}, s[{S_WS}:{S_WS+1}] sc1
    s_mov_b64 exec, -1""")
    A.label(ld)

def prefetch(vm, T, tag):
    if not OPT["pf"]:
        return
    if not OPT.get("pfc", 1):
      for i in range(2):
        vm.issue("pf")
      A(f"""s_getpc_b64 s[{S_M0}:{S_M0+1}]
    L_pc{tag}:
    s_sub_u32 s{S_M0}, s{S_M0}, L_pc{tag}-L_code_start
    s_subb_u32 s{S_M0+1}, s{S_M0+1}, 0
    s_lshl_b32 s{S_T0}, s{S_LW}, 13
    v_lshlrev_b32 v{T}, 7, v{VL}
    v_add_u32 v{T}, s{S_T0}, v{T}
    v_add_u32 v{T+1}, 32768, v{T}
    v_min_u32 v{T+1}, L_code_end-L_code_start-8, v{T+1}
    global_load_dword v250, v{T}, s[{S_M0}:{S_M0+1}]
    global_load_dword v249, v{T+1}, s[{S_M0}:{S_M0+1}]""")
    A(f"""s_cmp_ge_u32 s{S_LW}, 2
    s_cselect_b32 s{S_T0}, 49, 59
    s_mov_b32 s{S_T0+1}, 7680
    s_cmov_b32 s{S_T0+1}, 3200
    s_cselect_b32 s{S_T0+4}, s{S_CRE}, s{S_W2}
    s_cselect_b32 s{S_T0+5}, s{S_CRE+1}, s{S_W2+1}
    s_mul_i32 s{S_T0+1}, s{S_T0+1}, s2
    s_cmp_eq_u32 s{S_LW}, 1
    s_cselect_b32 s{S_T0+2}, 3840, 0
    s_add_u32 s{S_T0+1}, s{S_T0+1}, s{S_T0+2}
    s_cmp_eq_u32 s{S_LW}, 3
    s_cselect_b32 s{S_T0+4}, s{S_CIM}, s{S_T0+4}
    s_cselect_b32 s{S_T0+5}, s{S_CIM+1}, s{S_T0+5}
    v_min_u32 v{T}, s{S_T0}, v{VL}
    v_lshlrev_b32 v{T}, 6, v{T}
    v_add_u32 v{T}, s{S_T0+1}, v{T}
    global_load_dword v248, v{T}, s[{S_T0+4}:{S_T0+5}]""")
    vm.issue("pf")


def head_begin():
    return len(A.lines)
def head_end(mark):
    HEADS.extend(A.lines[mark:])
    del A.lines[mark:]

def issue_sub(kind):
    mlp = kind == "mlp"
    SLOT = 16384 if mlp else 20480
    A.label(f"L_sub_{kind}")
    A(f"s_waitcnt lgkmcnt(0)")
    flag_test(None, LFD, LFQ, 0, nap=OPT.get('lnap', 0))
    A.label(f"L_subn_{kind}")
    stamp(S_U, 16)
    lx = A.newlabel("L_is")
    A(f"s_bitcmp1_b32 s{S_U}, 0\ns_cbranch_scc1 {lx}")
    A(f"s_add_u32 m0, s{S_XS}, s{S_T0+9}")
    for h in range(4):
        cap()
        A(f"buffer_load_dwordx4 v{2+h}, s[{SRD_X}:{SRD_X+3}], s{S_KX} offen offset:{1024*h} lds")
    A(f"""s_add_u32 s{S_XS}, s{S_XS}, 16384
    s_cmp_eq_u32 s{S_XS}, {3*16384}
    s_cselect_b32 s{S_XS}, 0, s{S_XS}""")
    if not mlp:
        A(f"s_add_u32 m0, s{S_SLOT}, s{S_T0+8}")
        for h in range(4):
            cap()
            A(f"buffer_load_dwordx4 v{6+h}, s[{SRD_WA}:{SRD_WA+3}], s{S_KX} offen offset:{1024*h} lds")
        A(f"s_add_u32 m0, m0, 4096")
        cap()
        A(f"buffer_load_dwordx4 v10, s[{SRD_WA}:{SRD_WA+3}], s{S_KX} offen lds\ns_branch {lx}b")
    A.label(lx)
    if mlp:
        for mat, sd in enumerate((SRD_WA, SRD_WB)):
            A(f"s_add_u32 m0, s{S_SLOT}, s{S_T0+8}" if mat == 0 else "s_add_u32 m0, m0, 8192")
            for h in range(2):
                cap()
                A(f"buffer_load_dwordx4 v{6+h}, s[{sd}:{sd+3}], s{S_KW} offen offset:{1024*h} lds")
        A(f"""s_add_u32 s{S_KW}, s{S_KW}, {32*3072}
        s_cmp_eq_u32 s{S_KW}, {20*32*3072}
        s_cselect_b32 s{S_KW}, 0, s{S_KW}
        s_bitcmp1_b32 s{S_U}, 0
        s_cbranch_scc0 {lx}b""")
    else:
        A(f"s_add_u32 m0, s{S_SLOT}, s{S_T0+8}")
        for h in range(4):
            cap()
            A(f"buffer_load_dwordx4 v{6+h}, s[{SRD_WB}:{SRD_WB+3}], s{S_KX} offen offset:{1024*h} lds")
        A(f"s_add_u32 m0, m0, 4096")
        cap()
        A(f"buffer_load_dwordx4 v10, s[{SRD_WB}:{SRD_WB+3}], s{S_KX} offen lds")
    A(f"""s_add_u32 s{S_KX}, s{S_KX}, 128
    s_cmp_eq_u32 s{S_KX}, 1280
    s_cselect_b32 s{S_KX}, 0, s{S_KX}""")
    A.label(f"{lx}b")
    A(f"""s_add_u32 s{S_U}, s{S_U}, 1
    s_add_u32 s{S_FM}, s{S_FM}, 4
    v_add_u32 v{LFQ}, 4, v{LFQ}
    s_mov_b32 m0, s{S_FM}
    ds_read_b32 v{LFD}, v{LFQ}
    s_add_u32 s{S_SLOT}, s{S_SLOT}, {SLOT}
    s_cmp_eq_u32 s{S_SLOT}, {5*SLOT}
    s_cselect_b32 s{S_SLOT}, 0, s{S_SLOT}""")
    cap()
    A(f"""buffer_load_dword v{VZ}, s[{SRD_X}:{SRD_X+3}], 0 offen lds
    s_setpc_b64 s[{S_RET}:{S_RET+1}]""")
    flush_slow()
S_FM = 22
def call_sub(check=True):
    if check:
        A(f"s_swappc_b64 s[{S_RET}:{S_RET+1}], s[{S_SUB}:{S_SUB+1}]")
    else:
        A(f"s_swappc_b64 s[{S_RET}:{S_RET+1}], s[{S_SUBN}:{S_SUBN+1}]")
S_SUBN = 32
def declare_dma(sreg=None):
    if sreg is not None:
        A(f"s_lshl_b32 s{sreg}, s{sreg}, 2\ns_add_u32 s{S_FM}, s{S_FM}, s{sreg}")
    A(f"s_mov_b32 m0, s{S_FM}")
    cap()
    A(f"buffer_load_dword v{VZ}, s[{SRD_X}:{SRD_X+3}], 0 offen lds")

def head_rest(kind):
    mlp = kind == "mlp"
    SLOT = 16384 if mlp else 20480
    flag_init(FLG, S_LW, LFP, FREE, LAX)
    A(f"""s_add_u32 s{S_FM}, s{S_T0}, 4
    v_subrev_u32 v{LFQ}, 8, v{LFP}
    s_getpc_b64 s[{S_SUB}:{S_SUB+1}]
    L_gp_{kind}:
    s_add_u32 s{S_SUBN}, s{S_SUB}, L_subn_{kind}-L_gp_{kind}
    s_addc_u32 s{S_SUBN+1}, s{S_SUB+1}, 0
    s_add_u32 s{S_SUB}, s{S_SUB}, L_sub_{kind}-L_gp_{kind}
    s_addc_u32 s{S_SUB+1}, s{S_SUB+1}, 0
    s_mov_b32 s{S_U}, 2
    s_mov_b32 s{S_SLOT}, {2*SLOT}
    s_mov_b32 s{S_XS}, 16384
    s_mov_b32 m0, s{S_FM}
    s_add_u32 s{S_FM}, s{S_FM}, 4
    buffer_load_dword v{VZ}, s[{SRD_X}:{SRD_X+3}], 0 offen lds""")
    if mlp:
        A(f"s_add_u32 s{S_KW}, s{S_KW}, {32*3072}")
        for mat, sd in enumerate((SRD_WA, SRD_WB)):
            A(f"s_add_u32 m0, s{S_T0+8}, {SLOT + mat*8192}\ns_nop 0")
            for h in range(2):
                A(f"buffer_load_dwordx4 v{6+h}, s[{sd}:{sd+3}], s{S_KW} offen offset:{1024*h} lds")
        A(f"""s_add_u32 s{S_KW}, s{S_KW}, {32*3072}
        s_cmp_eq_u32 s{S_KW}, {20*32*3072}
        s_cselect_b32 s{S_KW}, 0, s{S_KW}""")
    else:
        A(f"s_add_u32 m0, s{S_T0+8}, {SLOT}\ns_nop 0")
        for h in range(4):
            A(f"buffer_load_dwordx4 v{6+h}, s[{SRD_WB}:{SRD_WB+3}], s{S_KX} offen offset:{1024*h} lds")
        A(f"s_add_u32 m0, m0, 4096\ns_nop 0\nbuffer_load_dwordx4 v10, s[{SRD_WB}:{SRD_WB+3}], s{S_KX} offen lds")
    A(f"""s_add_u32 s{S_KX}, s{S_KX}, 128
    s_cmp_eq_u32 s{S_KX}, 1280
    s_cselect_b32 s{S_KX}, 0, s{S_KX}""")
    late_scalars()
    declare_dma()
    ts(1, 2)
    for u in range(2, 5):
        call_sub(False)
    nonce_load()
    if OPT.get("solo", 0) >= 2:
        for u in range(5, 20):
            call_sub()
        A(f"s_mov_b32 s{S_T0+6}, 1")
        declare_dma(S_T0 + 6)
        A("s_waitcnt vmcnt(0)")
        ts_flush(100)
        A("s_endpgm")
    A(f"s_branch L_{kind}_loader")
    issue_sub(kind)

GW = OPT.get('gw', 19)
def g1_main(jobs, gran_loads_, gran_work, nstep, early=None):
    for u in range(5, 20):
        if u == GW:
            A(f"s_setprio {OPT.get('pls', 3)}")
            gran_work()
            A("s_setprio 0")
        call_sub()
        if u >= 6 and u % 2 == 0 or u >= 10:
            jobs.step(nstep)
        if early and u >= 20 - early.n:
            early.step()
        if u == GW - 3:
            assert not jobs.q
            gran_loads_()
    A(f"s_add_u32 s{S_T0+6}, s{S_S2}, 1")
    declare_dma(S_T0 + 6)

def finish():
    A("s_barrier")
    bump_epoch(200)
    ts(9, 2)
    ts_flush(100)
    A("s_endpgm")
    flush_slow()

mark = head_begin()
A(f"s_cmp_eq_u32 s{S_J}, 0\ns_cbranch_scc1 L_ssm_head")
rowpat_load(2, 10, False)
A(f"""s_mul_i32 s{S_T0}, s{S_C}, 163840
s_mul_i32 s{S_T0+1}, s{S_LW}, {32*1280}
s_add_u32 s{S_T0}, s{S_T0}, s{S_T0+1}
v_add_u32 v2, s{S_T0}, v2
v_add_u32 v3, s{S_T0}, v3
v_add_u32 v4, {16*1280-2048}, v2
v_add_u32 v5, {16*1280-2048}, v3
v_lshrrev_b32 v10, 4, v{VL}
s_and_b32 s{S_T0}, s{S_LW}, 1
s_lshl_b32 s{S_T0}, s{S_T0}, 2
v_or_b32 v11, s{S_T0}, v10                ; swizzle
v_lshlrev_b32 v11, 1, v11
v_and_b32 v6, 15, v{VL}
v_xor_b32 v11, v11, v6
v_mul_u32_u24 v10, 3072, v10
v_lshl_add_u32 v10, v11, 4, v10
s_mul_i32 s{S_T0}, s{S_LW}, {8*3072}
s_lshl_b32 s{S_T0+1}, s{S_CB}, 8
s_add_u32 s{S_T0}, s{S_T0}, s{S_T0+1}
v_add_u32 v6, s{S_T0}, v10
v_add_u32 v7, {4*3072-1024}, v6
s_lshl_b32 s{S_KX}, s{S_ROT}, 7
s_mul_i32 s{S_KW}, s{S_ROT}, {64*3072}
s_lshl_b32 s{S_T0+9}, s{S_LW}, 12
s_lshl_b32 s{S_T0+8}, s{S_LW}, 11
s_add_u32 s{S_T0+8}, s{S_T0+8}, {WRING}
s_mov_b32 m0, s{S_T0+9}
s_waitcnt lgkmcnt(0)
s_load_dword s{S_K}, s[{S_X}:{S_X+1}], 0""")
srd(SRD_X, S_X, 2621440)
for h in range(4):
    A(f"buffer_load_dwordx4 v{2+h}, s[{SRD_X}:{SRD_X+3}], s{S_KX} offen offset:{1024*h} lds")
srd(SRD_WA, S_W1, 1966080)
srd(SRD_WB, S_W3, 1966080)
for mat, sd in enumerate((SRD_WA, SRD_WB)):
    A(f"s_add_u32 m0, s{S_T0+8}, {mat*8192}\ns_nop 0")
    for h in range(2):
        A(f"buffer_load_dwordx4 v{6+h}, s[{sd}:{sd+3}], s{S_KW} offen offset:{1024*h} lds")
head_rest("mlp")
head_end(mark)
A.label("L_mlp_loader")
vm = NOQ
GA, GD = 18, 22
def gran_loads():
    for i in range(4):
        cap()
        A(f"global_load_dwordx4 v[{GD+4*i}:{GD+3+4*i}], v{GA+i}, s[{S_WS}:{S_WS+1}] sc1")
def mlp_setup3():
    A(f"""s_mul_i32 s{S_T0}, s{S_LW}, {1536*8}
    s_lshl_b32 s{S_T0+1}, s{S_CB}, 10
    s_add_u32 s{S_T0}, s{S_T0}, s{S_T0+1}
    s_add_u32 s{S_T0}, s{S_T0}, {WS_CSW}
    s_lshl_b32 s{S_T0+1}, s{S_C}, 10
    s_add_u32 s{S_T0+1}, s{S_T0+1}, {WS_STAT}
    s_cmp_ge_u32 s{S_LW}, 2
    s_cselect_b32 s{S_T0}, s{S_T0+1}, s{S_T0}
    s_cselect_b32 s{S_T0+1}, 0, {3072*8}
    v_lshlrev_b32 v{GA}, 4, v{VL}
    v_add_u32 v{GA}, s{S_T0}, v{GA}
    v_add_u32 v{GA+1}, s{S_T0+1}, v{GA}
    v_add_u32 v{GA+2}, s{S_T0+1}, v{GA+1}
    v_add_u32 v{GA+3}, s{S_T0+1}, v{GA+2}""")
def mlp_gran():
    if True:
        vm.wait("gran")
        lr, lo, lskip, lstat = A.newlabel("L_gr"), A.newlabel("L_gr"), A.newlabel("L_gr"), A.newlabel("L_gr")
        A(f"s_cmp_eq_u32 s{S_LW}, 2\ns_cbranch_scc1 {lskip}")
        A.label(lr)
        A(f"s_mov_b64 s[{S_M0}:{S_M0+1}], 0")
        for i in range(8):
            A(f"v_cmp_ne_u32 vcc, s{S_NONCE}, v{GD+1+2*i}\ns_nop 1\ns_or_b64 s[{S_M0}:{S_M0+1}], s[{S_M0}:{S_M0+1}], vcc")
        A(f"s_cmp_eq_u64 s[{S_M0}:{S_M0+1}], 0\ns_cbranch_scc1 {lo}")
        gran_loads()
        A("s_waitcnt vmcnt(0)")
        spin_tail(lr, lo, 5)
        A.label(lo)
        A(f"s_cmp_eq_u32 s{S_LW}, 3\ns_cbranch_scc1 {lstat}")
        A(f"""v_add_f32 v{GD}, v{GD}, v{GD+4}
        v_add_f32 v{GD+2}, v{GD+2}, v{GD+6}
        v_add_f32 v{GD+8}, v{GD+8}, v{GD+12}
        v_add_f32 v{GD+10}, v{GD+10}, v{GD+14}
        v_add_f32 v{GD}, v{GD}, v{GD+8}
        v_add_f32 v{GD+1}, v{GD+2}, v{GD+10}
        s_lshl_b32 s{S_T0}, s{S_LW}, 9
        s_add_u32 s{S_T0}, s{S_T0}, {M_CS}
        v_lshlrev_b32 v{GD+2}, 3, v{VL}
        v_add_u32 v{GD+2}, s{S_T0}, v{GD+2}
        ds_write_b64 v{GD+2}, v[{GD}:{GD+1}]
        s_branch {lskip}""")
        A.label(lstat)
        for hrow, p in ((0, GD), (1, GD + 2)):
            o = GD + 4 + 4 * hrow
            A(f"""v_and_b32 v{o+2}, 0xffff0000, v{p}
            v_lshlrev_b32 v{o}, 16, v{p}
            v_rcp_f32 v{o+1}, v{o+2}
            v_mul_f32 v{o+2}, v{o+2}, v{o+2}
            v_mul_f32 v{o+1}, {NLOG2E}, v{o+1}""")
        A(f"""v_lshlrev_b32 v{GD+2}, 5, v{VL}
        v_add_u32 v{GD+2}, {M_ROW}, v{GD+2}
        ds_write_b128 v{GD+2}, v[{GD+4}:{GD+7}]
        ds_write_b128 v{GD+2}, v[{GD+8}:{GD+11}] offset:16""")
        A.label(lskip)
        A("s_waitcnt lgkmcnt(0)")

nonce_ready()
def only2(fn):
    l = A.newlabel("L_nc")
    A(f"s_cmp_lg_u32 s{S_LW}, 2\ns_cbranch_scc1 {l}")
    fn()
    A.label(l)
    return
    yield
def one(fn):
    fn()
    return
    yield
jobs = Jobs()
jobs.add(one(mlp_setup3))
jobs.add(one(lambda: g2_setup(6, 232)))
def mg():
    mlp_gran()
MB = [40, 104, 168, 40, 104, 168]
T1 = OPT.get("thr1", CAP)
class Early:
    def __init__(self):
        self.n, self.ch = OPT.get("en", 0), OPT.get("ech", 2)
        def both():
            yield from g2_load(0, MB[0], CAP)
            yield
            yield from g2_load(1, MB[1], CAP)
        self.g = both()
    def step(self):
        for _ in range(self.ch):
            next(self.g, None)
early = Early()
g1_main(jobs, gran_loads, mg, 1, early)
ts(47, 2)
run(early.g)
A(f"s_lshl_b32 s{S_SLOT}, s{S_S2}, 14")
g2_put(0, MB[0], 16, 20, g2_load(2, MB[2], T1))
g2_put(1, MB[1], 16, 20, g2_load(3, MB[3], T1))
run(g2_load(4, MB[4], THR))
g2_put(2, MB[2], 32, 20)
la = A.newlabel("L_k")
A(f"s_cmp_ge_u32 s{S_S2}, 14\ns_cbranch_scc1 {la}")
run(g2_load(5, MB[5], OPT.get('thr5', THR)))
A.label(la)
for k in (3, 4):
    g2_put(k, MB[k], 0, 20)
    poll_issue()
    A("s_waitcnt vmcnt(0)")
    poll_check()
A(f"s_cmp_ge_u32 s{S_S2}, 22\ns_cbranch_scc1 {la}x")
g2_put(5, MB[5], 0, 20)
A.label(f"{la}x")
finish()

mark = head_begin()
A.label("L_ssm_head")
rowpat_load(2, 14, True)
rowpat_load(6, 14, False)
A(f"""s_mul_i32 s{S_T0}, s{S_C}, 163840
s_lshr_b32 s{S_T0+1}, s{S_LW}, 1
s_mul_i32 s{S_T0+1}, s{S_T0+1}, {64*1280}
s_add_u32 s{S_T0}, s{S_T0}, s{S_T0+1}
s_and_b32 s{S_T0+1}, s{S_LW}, 1
s_mul_i32 s{S_T0+1}, s{S_T0+1}, {4*1280}
s_add_u32 s{S_T0}, s{S_T0}, s{S_T0+1}
v_add_u32 v2, s{S_T0}, v2
v_add_u32 v3, s{S_T0}, v3
v_add_u32 v4, {2*1280-2048}, v2
v_add_u32 v5, {2*1280-2048}, v3""")
A(f"""v_add_u32 v7, {1024-8*1280 & 0xffffffff}, v7
s_mul_i32 s{S_T0}, s{S_CB}, {160*1280}
s_mul_i32 s{S_T0+1}, s{S_LW}, {40*1280}
s_add_u32 s{S_T0}, s{S_T0}, s{S_T0+1}
s_bitcmp1_b32 s{S_LW}, 0
s_cselect_b64 vcc, -1, 0
v_add_u32 v6, s{S_T0}, v6
v_add_u32 v7, s{S_T0}, v7
v_cndmask_b32 v12, v6, v7, vcc
v_cndmask_b32 v13, v7, v6, vcc
v_mov_b32 v6, v12
v_add_u32 v7, {8*1280-1024}, v13
v_add_u32 v8, {16*1280-2048}, v12
v_add_u32 v9, {24*1280-3072}, v13
v_add_u32 v10, {32*1280}, v12
s_lshl_b32 s{S_KX}, s{S_ROT}, 7
s_lshl_b32 s{S_T0+9}, s{S_LW}, 12
s_mul_i32 s{S_T0+8}, s{S_LW}, 5120
s_add_u32 s{S_T0+8}, s{S_T0+8}, {WRING}
s_mov_b32 m0, s{S_T0+9}
s_waitcnt lgkmcnt(0)
s_load_dword s{S_K}, s[{S_X}:{S_X+1}], 0""")
srd(SRD_X, S_X, 2621440)
for h in range(4):
    A(f"buffer_load_dwordx4 v{2+h}, s[{SRD_X}:{SRD_X+3}], s{S_KX} offen offset:{1024*h} lds")
srd(SRD_WA, S_BRE, 819200)
srd(SRD_WB, S_BIM, 819200)
A(f"s_mov_b32 m0, s{S_T0+8}\ns_nop 0")
for h in range(4):
    A(f"buffer_load_dwordx4 v{6+h}, s[{SRD_WA}:{SRD_WA+3}], s{S_KX} offen offset:{1024*h} lds")
A(f"s_add_u32 m0, m0, 4096\ns_nop 0\nbuffer_load_dwordx4 v10, s[{SRD_WA}:{SRD_WA+3}], s{S_KX} offen lds")
head_rest("ssm")
head_end(mark)
A.label("L_ssm_loader")
CN = 212
LR, LI = 214, 215
L8, L128, KL = 216, 218, 220
def const_loads():
    A(f"""s_lshl_b32 s{S_T0}, s{S_LW}, 6
    v_add_u32 v{CN}, s{S_T0}, v{VL}
    v_min_u32 v{CN}, 159, v{CN}
    s_mul_i32 s{S_T0}, s{S_CB}, 160
    v_add_u32 v110, s{S_T0}, v{CN}
    v_lshlrev_b32 v110, 1, v110
    global_load_ushort v111, v110, s[{S_LRE}:{S_LRE+1}]
    global_load_ushort v112, v110, s[{S_LIM}:{S_LIM+1}]
    global_load_ushort v113, v110, s[{S_LDT}:{S_LDT+1}]""")
def ssm_setup3():
  A(f"""v_cmp_le_u32 vcc, 80, v{CN}
v_mov_b32 v41, 0
v_mov_b32 v42, {640-160}
v_cndmask_b32 v41, v41, v42, vcc
v_lshl_add_u32 v41, v{CN}, 1, v41
s_mul_i32 s{S_T0}, s{S_CB}, 160
v_add_u32 v41, s{S_T0}, v41
v_lshlrev_b32 v41, 3, v41
v_add_u32 v41, {WS_CSB}, v41
s_lshl_b32 s{S_T0+1}, s{S_C}, 10
s_add_u32 s{S_T0+1}, s{S_T0+1}, {WS_STAT}
v_lshlrev_b32 v40, 4, v{VL}
v_add_u32 v40, s{S_T0+1}, v40
s_cmp_eq_u32 s{S_LW}, 3
s_cselect_b64 vcc, -1, 0
s_nop 1
v_cndmask_b32 v40, v41, v40, vcc""")
def cmul(d, a, b, t):
    A(f"""v_mul_f32 v{t}, v{a+1}, v{b+1}
    v_mul_f32 v{t+1}, v{a+1}, v{b}
    v_fma_f32 v{t}, v{a}, v{b}, -v{t}
    v_fma_f32 v{d+1}, v{a}, v{b+1}, v{t+1}
    v_mov_b32 v{d}, v{t}""")
def ssm_consts():
    A(f"""v_lshlrev_b32 v111, 16, v111
    v_lshlrev_b32 v112, 16, v112
    v_lshlrev_b32 v113, 16, v113
    v_mul_f32 v113, {LOG2E}, v113
    v_exp_f32 v113, v113
    v_mul_f32 v114, v111, v111
    v_fma_f32 v114, v112, v112, v114
    v_cvt_pk_bf16_f32 v113, v113, v113
    v_lshlrev_b32 v113, 16, v113              ; dt
    v_rcp_f32 v114, v114
    v_mul_f32 v115, v113, v111
    v_mul_f32 v116, v113, v112
    v_mul_f32 v115, {LOG2E}, v115
    v_mul_f32 v116, 0.15915494, v116
    v_exp_f32 v115, v115
    v_rndne_f32 v117, v116
    v_sub_f32 v116, v116, v117
    v_cos_f32 v117, v116
    v_sin_f32 v116, v116
    v_add_f32 v114, v114, v114
    v_mul_f32 v{LR}, v115, v117
    v_mul_f32 v{LI}, v115, v116
    v_add_f32 v115, -1.0, v{LR}
    v_mul_f32 v116, v{LI}, v112
    v_fma_f32 v116, v115, v111, v116
    v_mul_f32 v117, v115, v112
    v_fma_f32 v117, v{LI}, v111, -v117        ; Im
    v_mul_f32 v118, v116, v114
    v_mul_f32 v119, -v117, v114
    v_lshlrev_b32 v120, 3, v{CN}
    v_add_u32 v120, {M_LAM}, v120
    ds_write_b64 v120, v[{LR}:{LI}]
    ds_write_b64 v120, v[118:119] offset:{M_COEF-M_LAM}
    v_mul_f32 v{KL}, v118, v{LR}
    v_fma_f32 v{KL}, v119, v{LI}, v{KL}
    v_mul_f32 v{KL+1}, v119, v{LR}
    v_fma_f32 v{KL+1}, -v118, v{LI}, v{KL+1}""")
    yield
    cmul(L8, LR, LR, 114)
    cmul(L8, L8, L8, 114)
    cmul(L8, L8, L8, 114)
    cmul(L128, L8, L8, 114)
    for i in range(3):
        cmul(L128, L128, L128, 114)
def ssm_gran():
    if True:
        vm.wait("gran")
        lr, lo, lskip, lstat = A.newlabel("L_gr"), A.newlabel("L_gr"), A.newlabel("L_gr"), A.newlabel("L_gr")
        A.label(lr)
        A(f"""v_cmp_ne_u32 vcc, s{S_NONCE}, v45
        v_cmp_ne_u32 s[{S_M0}:{S_M0+1}], s{S_NONCE}, v47
        s_nop 1
        s_or_b64 s[{S_M0}:{S_M0+1}], s[{S_M0}:{S_M0+1}], vcc
        s_cmp_eq_u64 s[{S_M0}:{S_M0+1}], 0
        s_cbranch_scc1 {lo}
        global_load_dwordx4 v[44:47], v40, s[{S_WS}:{S_WS+1}] sc1
        s_waitcnt vmcnt(0)""")
        spin_tail(lr, lo, 6)
        A.label(lo)
        A(f"""s_cmp_eq_u32 s{S_LW}, 3
        s_cbranch_scc1 {lstat}
        v_mov_b32 v45, v46
        v_lshlrev_b32 v46, 3, v{CN}
        v_add_u32 v46, {M_CS}, v46
        ds_write_b64 v46, v[44:45]
        s_branch {lskip}""")
        A.label(lstat)
        A(f"""v_and_b32 v48, 0xffff0000, v44
        v_and_b32 v49, 0xffff0000, v46
        v_rcp_f32 v48, v48
        v_rcp_f32 v49, v49
        v_lshlrev_b32 v44, 16, v44
        v_lshlrev_b32 v46, 16, v46
        v_and_b32 v50, 32, v{VL}
        v_lshlrev_b32 v50, 1, v50
        v_and_b32 v51, 3, v{VL}
        v_lshl_add_u32 v50, v51, 4, v50
        v_bfe_u32 v51, v{VL}, 3, 2
        v_lshl_add_u32 v50, v51, 2, v50
        v_bfe_u32 v51, v{VL}, 2, 1
        v_add_u32 v50, v50, v51
        v_lshlrev_b32 v50, 2, v50
        v_add_u32 v50, {M_ROW}, v50
        ds_write2_b32 v50, v44, v46 offset0:0 offset1:2
        ds_write2_b32 v50, v48, v49 offset0:128 offset1:130""")
        A.label(lskip)
        A("s_waitcnt lgkmcnt(0)")

nonce_ready()
const_loads()
jobs = Jobs()
jobs.add(one(lambda: None))
jobs.add(ssm_consts())
jobs.add(one(ssm_setup3))
jobs.add(one(lambda: g2_setup(2, 232)))
def gs():
    A(f"global_load_dwordx4 v[44:47], v40, s[{S_WS}:{S_WS+1}] sc1")
g1_main(jobs, gs, ssm_gran, 1)
A(f"s_lshl_b32 s{S_SLOT}, s{S_S2}, 14")
SB = [44, 44, 108, 172, 44, 108]
run(g2_load(0, SB[0], CAP))
g2_put(0, SB[0], 0, 20)
run(g2_load(1, SB[1], 16))
A("s_setprio 3\ns_barrier")
ts(4, 2)
lmid = A.newlabel("L_mid")
A(f"s_cmp_eq_u32 s{S_LW}, 3\ns_cbranch_scc1 {lmid}")
ME = 112
ML = 144
MT = 204
A(f"""v_lshlrev_b32 v{MT}, 3, v{CN}
v_add_u32 v{MT}, {E_BASE}, v{MT}""")
for j in range(16):
    A(f"ds_read_b64 v[{ME+2*j}:{ME+2*j+1}], v{MT} offset:{j*1280}")
A(f"""s_lshl_b32 s{S_T0}, s{S_CB}, 4
s_mul_i32 s{S_T0}, s{S_T0}, 2560
s_add_u32 s{S_T0}, s{S_T0}, {WS_SCAN}
v_lshlrev_b32 v{MT+1}, 4, v{CN}
v_add_u32 v{MT+1}, s{S_T0}, v{MT+1}
s_mul_i32 s{S_T0}, s{S_C}, 2560
v_add_u32 v{MT+2}, s{S_T0}, v{MT+1}
v_mov_b32 v{MT+5}, s{S_NONCE}
v_mov_b32 v{MT+7}, s{S_NONCE}""")
def cfma(d, a, b, c, conj_a=False, conj_b=False):
    nb = " neg_hi:[0,1,0]" if conj_b else ""
    if c is None:
        A(f"v_pk_mul_f32 v[{d}:{d+1}], v[{a}:{a+1}], v[{b}:{b+1}] op_sel_hi:[0,1]" + (" neg_hi:[0,1]" if conj_b else ""))
        c = d
    else:
        A(f"v_pk_fma_f32 v[{d}:{d+1}], v[{a}:{a+1}], v[{b}:{b+1}], v[{c}:{c+1}] op_sel_hi:[0,1,1]{nb}")
    slo = 1 ^ conj_a ^ conj_b
    shi = int(conj_a)
    A(f"v_pk_fma_f32 v[{d}:{d+1}], v[{a}:{a+1}], v[{b}:{b+1}], v[{d}:{d+1}] op_sel:[1,1,0] op_sel_hi:[1,0,1] neg_lo:[{slo},0,0] neg_hi:[{shi},0,0]")
for j in range(1, 16):
    if j in (1, 5, 9, 13):
        A(f"s_waitcnt lgkmcnt({max(0, 11 - j + 1 - 0) if j < 13 else 0})")
    cfma(ME + 2 * j, L8, ME + 2 * j - 2, ME + 2 * j)
A(f"""v_mov_b32 v{MT+4}, v{ME+30}
v_mov_b32 v{MT+6}, v{ME+31}
global_store_dwordx4 v{MT+2}, v[{MT+4}:{MT+7}], s[{S_WS}:{S_WS+1}] sc1""")
ts(5, 2)
lr, lo, lld, lck, lh = [A.newlabel("L_lb") for _ in range(5)]
def lb_loads(lbl):
    A(f"v_mov_b32 v{MT+3}, v{MT+1}")
    for k in range(15):
        A(f"""s_cmp_le_u32 s{S_C}, {k}
        s_cbranch_scc1 {lbl}
        global_load_dwordx4 v[{ML+4*k}:{ML+4*k+3}], v{MT+3}, s[{S_WS}:{S_WS+1}] sc1
        v_add_u32 v{MT+3}, 2560, v{MT+3}""")
    A.label(lbl)
lb_loads(lld)
for j in range(15, 0, -1):
    cfma(ME + 2 * j, KL, ME + 2 * j - 2, None, conj_b=True)
MP = 16
A(f"v_mov_b32 v{MP+2}, v{L8}\nv_sub_f32 v{MP+3}, 0, v{L8+1}")
for j in range(2, 14):
    cfma(MP + 2 * j, MP + 2, MP + 2 * j - 2, None)
A(f"v_mov_b32 v{ME}, 0\nv_mov_b32 v{ME+1}, 0")
A.label(lr)
A(f"s_waitcnt vmcnt(0)\ns_mov_b64 s[{S_M0}:{S_M0+1}], 0")
for k in range(15):
    A(f"""s_cmp_le_u32 s{S_C}, {k}
    s_cbranch_scc1 {lck}
    v_cmp_ne_u32 vcc, s{S_NONCE}, v{ML+4*k+1}
    v_cmp_ne_u32 s[{S_M1}:{S_M1+1}], s{S_NONCE}, v{ML+4*k+3}
    s_nop 1
    s_or_b64 s[{S_M0}:{S_M0+1}], s[{S_M0}:{S_M0+1}], vcc
    s_or_b64 s[{S_M0}:{S_M0+1}], s[{S_M0}:{S_M0+1}], s[{S_M1}:{S_M1+1}]""")
A.label(lck)
A(f"s_cmp_eq_u64 s[{S_M0}:{S_M0+1}], 0\ns_cbranch_scc1 {lo}")
lb_loads(A.newlabel("L_lb"))
spin_tail(lr, lo, 7)
A.label(lo)
ts(6, 2)
H = MT + 4
A(f"v_mov_b32 v{H}, 0\nv_mov_b32 v{H+1}, 0")
for k in range(15):
    g = ML + 4 * k
    A(f"""s_cmp_le_u32 s{S_C}, {k}
    s_cbranch_scc1 {lh}
    v_mov_b32 v{g+1}, v{g+2}""")
    cfma(g, L128, H, g)
    A(f"v_mov_b64 v[{H}:{H+1}], v[{g}:{g+1}]")
A.label(lh)
Q = MT + 6
cfma(Q, KL, H, None, conj_b=True)
A(f"v_pk_add_f32 v[{ME}:{ME+1}], v[{ME}:{ME+1}], v[{Q}:{Q+1}]")
A(f"ds_write_b64 v{MT}, v[{ME}:{ME+1}]")
for j in range(1, 16):
    d = ME + 2 * j
    if j == 14:
        cfma(H, MP + 4, Q, None)
    if j < 14:
        cfma(d, MP + 2 * j, Q, d)
    else:
        cfma(d, MP + 2 * (j - 2), H, d)
    A(f"ds_write_b64 v{MT}, v[{d}:{d+1}] offset:{j*1280}")
A("s_waitcnt lgkmcnt(0)")
A.label(lmid)
A("s_setprio 0\ns_barrier")
ts(7, 2)
SC = OPT.get("scap", 2)
run(g2_load(2, SB[2], SC))
run(g2_load(3, SB[3], OPT.get("scap2", 3)))
A(f"s_cmp_lt_u32 s{S_S2}, 5\ns_cselect_b32 s{S_T0+5}, 20, 21")
g2_put(1, SB[1], 32, f"s{S_T0+5}")
poll_issue()
g2_put(2, SB[2], 17, 21, g2_load(4, SB[4], 5))
poll_check()
la = A.newlabel("L_k")
A(f"s_cmp_ge_u32 s{S_S2}, 14\ns_cbranch_scc1 {la}")
run(g2_load(5, SB[5], 5))
A.label(la)
for k in (3, 4):
    g2_put(k, SB[k], 0, 21)
A(f"s_cmp_ge_u32 s{S_S2}, 22\ns_cbranch_scc1 {la}x")
g2_put(5, SB[5], 0, 21)
A.label(f"{la}x")
finish()

A.label("L_end")
A("s_endpgm")
A.label("L_code_end")
A.lines[HEADPOS:HEADPOS] = HEADS
A.lines.insert(0, "L_code_start:")

hdr = open(os.path.join(os.path.dirname(__file__), "header.txt")).read()
print(hdr + f"""; @launch grid=(256,1,1) block=(512,1,1) lds=163840
.amdgcn_target "amdgcn-amd-amdhsa--gfx950"
.text
.globl {KNAME}
.p2align 8
.type {KNAME},@function
{KNAME}:""")
print(A.text(), end="")
print(f""".section .rodata,"a"
.p2align 6
.amdhsa_kernel {KNAME}
  .amdhsa_next_free_vgpr 256
  .amdhsa_next_free_sgpr 102
  .amdhsa_accum_offset 256
  .amdhsa_group_segment_fixed_size 0
  .amdhsa_kernarg_size 128
  .amdhsa_user_sgpr_count 2
  .amdhsa_user_sgpr_kernarg_segment_ptr 1
  .amdhsa_system_sgpr_workgroup_id_x 1
.end_amdhsa_kernel""")
```

```python
import sys, os
sys.path.insert(0, os.path.dirname(__file__))
from asmlib import Asm, Queue, vr, sr

OPT = dict(ts=0, stop=0, DA=3, D1=4, D1S=5, timeout=1 << 20, nodma=0, nomfma=0, nobar=0, noread=0, rot=8, rot2=1, pf=0, stash=8, sg1=12, amod=1)
for a in sys.argv[1:]:
    k, v = a.split("=")
    OPT[k] = int(v)
P0 = OPT.get("p0", 3)
TS = OPT["ts"]; STOP = OPT["stop"]; DA = OPT["DA"]; D1 = OPT["D1"]

KNAME = "parallel_sum__ssm_conv_s5__glu_gated_swiglu__prompt_kernel"

WS_E = 0
WS_FLAG = 0x1000
WS_STAT = 0x4000
WS_CSB = 0x8000
WS_CSW = 0x10000
WS_SCAN = 0x40000
WS_TAB = 0x80000
WS_ACT = 0x100000
WS_TS = 0x1000000

MISC = 151552
WRING = 49152
SCR = 131072
M_ROW = MISC
M_CS = MISC + 2048
M_LAM = MISC + 3584
M_COEF = MISC + 4864
E_BASE = 81920
TR_BASE = 102400

S_X, S_LRE, S_LIM, S_BRE, S_BIM, S_CRE, S_CIM, S_LDT = 4, 6, 8, 10, 12, 14, 16, 18
S_DSK, S_W1, S_W3, S_W2, S_OUT, S_DBG, S_WS = 20, 24, 26, 28, 30, 32, 34
SRD_X, SRD_WA, SRD_WB, SRD_W2, SRD_C, SRD_T = 36, 40, 44, 48, 52, 56
S_XCD, S_IDX, S_C, S_J, S_CB, S_WAVE, S_NONCE = 60, 61, 62, 63, 64, 65, 66
S_HB2, S_DCOL, S_TG = 67, 68, 23
S_ONES = 69
S_T0 = 70
S_SLOT, S_KX, S_KW, S_CNT, S_DELTA = 80, 81, 82, 83, 84
S_AB = 86
S_M0, S_M1 = 88, 90
S_EX = 92
S_TO = 94
S_TS = 96
S_ROT, S_R2A, S_R2B, S_KB, S_KS = 95, 98, 99, 100, 101

A = Asm()
LOG2E = 0x3fb8aa3b
NLOG2E = 0xbfb8aa3b

def ts(idx, vtmp):
    if not TS:
        return

    A(f"""s_memrealtime s[{S_TS}:{S_TS+1}]
    s_waitcnt lgkmcnt(0)
    v_writelane_b32 v255, s{S_TS}, {idx}""")

def tc(idx):
    if not TS:
        return
    A(f"""s_memtime s[{S_TS}:{S_TS+1}]
    s_waitcnt lgkmcnt(0)
    v_writelane_b32 v255, s{S_TS}, {idx}""")

def ts_flush(vtmp):
    if not TS:
        return
    A(f"""s_lshl_b32 s{S_T0}, s2, 3
    s_add_u32 s{S_T0}, s{S_T0}, s{S_WAVE}
    s_lshl_b32 s{S_T0}, s{S_T0}, 8
    s_add_u32 s{S_T0}, s{S_T0}, {WS_TS}
    v_lshlrev_b32 v{vtmp}, 2, v{VL}
    v_add_u32 v{vtmp}, s{S_T0}, v{vtmp}
    global_store_dword v{vtmp}, v255, s[{S_WS}:{S_WS+1}]""")

def srd(d, p, nbytes):
    A(f"""s_mov_b32 s{d}, s{p}
    s_mov_b32 s{d+1}, s{p+1}
    s_mov_b32 s{d+2}, {nbytes}
    s_mov_b32 s{d+3}, 0x20000""")

def srd_sel(d, p1, p0, nbytes):
    A(f"""s_cselect_b32 s{d}, s{p1}, s{p0}
    s_cselect_b32 s{d+1}, s{p1+1}, s{p0+1}
    s_mov_b32 s{d+2}, {nbytes}
    s_mov_b32 s{d+3}, 0x20000""")

def spin_tail(lbl_retry, lbl_ok, code):
    A(f"""s_sleep {OPT.get('nap', 1) if code == 2 else 1}
    s_sub_u32 s{S_TO}, s{S_TO}, 1
    s_cmp_lg_u32 s{S_TO}, 0
    s_cbranch_scc1 {lbl_retry}
    s_mov_b32 s{S_TO}, 1""")

VL = 254
VFO = 253
FLG = MISC + 6144
FREE, AUX = FLG + 2048, FLG + 4096
S_K = 3
S_FR = 86
S_LMT = 85
SRD_F = 52
VZ = 252
SLOW = []
def flag_test(need, vD, vP, off, pre=None, anylane=False, acc=None, nap=0, split=False):
    ls, lb, lr = A.newlabel("L_sw"), A.newlabel("L_bk"), A.newlabel("L_sr")
    cmp_ = f"v_cmp_ne_u32 vcc, s{S_K}, v{vD}"
    A(f"s_cbranch_vccnz {ls}" if split else f"{cmp_}\ns_cbranch_vccnz {ls}")
    A.label(lb)
    mark = len(A.lines)
    A.label(ls)
    if TS and acc is not None:
        A(f"s_memtime s[{S_TS}:{S_TS+1}]\ns_waitcnt lgkmcnt(0)\ns_sub_u32 s{acc}, s{acc}, s{S_TS}\ns_add_u32 s{acc+1}, s{acc+1}, 1")
        lb2 = lb
        lb = A.newlabel("L_b2")
    A.label(lr)
    if nap:
        A(f"s_sleep {nap}")
    A(f"""ds_read_b32 v{vD}, v{vP} offset:{off}
    s_waitcnt lgkmcnt(0)
    {cmp_}
    s_cbranch_vccz {lb}
    s_sub_u32 s{S_TO}, s{S_TO}, 1
    s_cmp_lg_u32 s{S_TO}, 0
    s_cbranch_scc1 {lr}
    s_mov_b32 s{S_TO}, 1
    s_branch {lb}""")
    if TS and acc is not None:
        A.label(lb)
        A(f"s_memtime s[{S_TS}:{S_TS+1}]\ns_waitcnt lgkmcnt(0)\ns_add_u32 s{acc}, s{acc}, s{S_TS}\ns_branch {lb2}")
    SLOW.extend(A.lines[mark:])
    del A.lines[mark:]
def flag_wait(need, vD, vP, rel=0, nap=0):
    off = rel + 4 * need
    A(f"ds_read_b32 v{vD}, v{vP} offset:{off}\ns_waitcnt lgkmcnt(0)")
    flag_test(need, vD, vP, off, nap=nap)
def flush_slow():
    A.lines.extend(SLOW)
    SLOW.clear()
def flag_init(base, wave_sgpr, vP, peer, aux):
    A(f"""s_lshl_b32 s{S_T0}, s{wave_sgpr}, 9
    s_add_u32 s{S_T0}, s{S_T0}, {base}
    v_lshlrev_b32 v{VFO}, 2, v{VL}
    v_add_u32 v{VFO}, s{S_T0}, v{VFO}
    v_mov_b32 v{VZ}, 0
    s_waitcnt lgkmcnt(0)
    v_not_b32 v{vP}, s{S_K}
    ds_write2st64_b32 v{VFO}, v{vP}, v{vP} offset0:0 offset1:1""")
    if aux:
        A(f"""s_lshl_b32 s{S_T0+1}, s{wave_sgpr}, 8
        v_lshlrev_b32 v{aux}, 2, v{VL}
        v_add_u32 v{aux}, s{S_T0+1}, v{aux}
        v_add_u32 v{aux}, {AUX}, v{aux}
        ds_write_b32 v{aux}, v{VZ}""")
    peer_addr(vP, peer)
    A("s_waitcnt lgkmcnt(0)\ns_barrier")
def peer_addr(vP, peer):
    A(f"""v_and_b32 v{vP}, 3, v{VL}
    v_lshlrev_b32 v{vP}, 9, v{vP}
    v_add_u32 v{vP}, {peer + 252}, v{vP}""")


S_LW = 85
A(f"""s_cmp_ge_u32 s2, 256
s_cbranch_scc1 L_end
s_load_dwordx16 s[4:19], s[0:1], 0
s_load_dwordx16 s[20:35], s[0:1], 64
v_lshrrev_b32 v1, 6, v0
v_and_b32 v{VL}, 63, v0
s_and_b32 s{S_XCD}, s2, 7
v_readfirstlane_b32 s{S_WAVE}, v1
s_lshr_b32 s{S_IDX}, s2, 3
s_and_b32 s{S_T0}, s{S_XCD}, 1
s_lshl_b32 s{S_T0}, s{S_T0}, 3
s_and_b32 s{S_T0+1}, s{S_IDX}, 7
s_add_u32 s{S_C}, s{S_T0}, s{S_T0+1}
s_lshr_b32 s{S_J}, s{S_IDX}, 3
s_lshr_b32 s{S_T0+2}, s{S_XCD}, 1
s_mul_i32 s{S_CB}, s{S_T0+2}, 3
s_add_u32 s{S_CB}, s{S_CB}, s{S_J}
s_sub_u32 s{S_CB}, s{S_CB}, 1
s_cmp_eq_u32 s{S_J}, 0
s_cselect_b32 s{S_CB}, s{S_T0+2}, s{S_CB}
""")
if TS:
    A("v_mov_b32 v255, 0")
    ts(0, 2)
RG = OPT["rot"]
C0 = OPT.get("c0", 1)
if RG:
    A(f"""s_lshl_b32 s{S_ROT}, s{S_J}, {1 if RG == 8 else 0}
    s_add_u32 s{S_ROT}, s{S_T0+1}, s{S_ROT}
    s_and_b32 s{S_ROT}, s{S_ROT}, {RG-1}
    s_mul_i32 s{S_ROT}, s{S_ROT}, {9 if C0 else 10}
    s_lshr_b32 s{S_ROT}, s{S_ROT}, {RG.bit_length()-1}""")
else:
    A(f"s_mov_b32 s{S_ROT}, 0")
A(f"""s_cmp_lt_u32 s{S_WAVE}, 4
s_cbranch_scc1 L_compute
s_sub_u32 s{S_LW}, s{S_WAVE}, 4
s_setprio {OPT.get('pl1', 0)}""")

def nonce_load():
    A(f"s_load_dword s{S_NONCE}, s[{S_WS}:{S_WS+1}], {WS_E}")
def late_scalars():
    A(f"""s_sub_u32 s{S_T0}, s{S_IDX}, 8
    s_mul_i32 s{S_T0+1}, s{S_T0}, 13
    s_lshr_b32 s{S_T0+1}, s{S_T0+1}, 6          ; n/5
    s_mul_i32 s{S_T0+2}, s{S_T0+1}, 5
    s_sub_u32 s{S_T0+2}, s{S_T0}, s{S_T0+2}     ; n%5
    s_mul_i32 s{S_TG}, s{S_T0+2}, 6
    s_lshl_b32 s{S_T0+3}, s{S_IDX}, 1
    s_add_u32 s{S_T0+3}, s{S_T0+3}, 16
    s_cmp_lt_u32 s{S_IDX}, 4
    s_cselect_b32 s{S_T0+3}, 30, s{S_T0+3}
    s_min_u32 s{S_T0}, s{S_IDX}, 4
    s_cmp_eq_u32 s{S_J}, 0
    s_cselect_b32 s{S_TG}, s{S_T0+3}, s{S_TG}
    s_cselect_b32 s{S_T0+1}, s{S_T0}, s{S_T0+1}  ; strip
    s_cselect_b32 s{S_T0+2}, 5, s{S_T0+2}
    s_lshr_b32 s{S_T0}, s{S_XCD}, 1
    s_lshl_b32 s{S_T0}, s{S_T0}, 5
    s_add_u32 s{S_TG}, s{S_TG}, s{S_T0}          ; first 16-row tile
    s_lshr_b32 s{S_HB2}, s{S_TG}, 2
    s_lshl_b32 s{S_DCOL}, s{S_T0+1}, 6
    s_and_b32 s{S_T0}, s{S_XCD}, 1
    s_mul_i32 s{S_T0}, s{S_T0}, 320
    s_add_u32 s{S_DCOL}, s{S_DCOL}, s{S_T0}
    s_mov_b32 s{S_ONES}, 0x3f803f80
    s_mov_b32 s{S_TO}, {OPT['timeout']}""")
    if OPT["rot2"]:
        A(f"""s_add_u32 s{S_R2B}, s{S_T0+1}, s{S_T0+2}
        s_lshl_b32 s{S_R2A}, s{S_R2B}, 1
        s_cmp_ge_u32 s{S_R2A}, 12
        s_cselect_b32 s{S_T0+3}, 12, 0
        s_sub_u32 s{S_R2A}, s{S_R2A}, s{S_T0+3}
        s_lshl_b32 s{S_R2B}, s{S_R2B}, 1
        s_cmp_ge_u32 s{S_R2B}, 10
        s_cselect_b32 s{S_T0+3}, 10, 0
        s_sub_u32 s{S_R2B}, s{S_R2B}, s{S_T0+3}""")
    else:
        A(f"s_mov_b32 s{S_R2A}, 0\ns_mov_b32 s{S_R2B}, 0")
for n_ in range(24):
    assert (n_ * 13) >> 6 == n_ // 5

HEADPOS = len(A.lines)
HEADS = []

def dpp_reduce16(regs):
    for sh in (8, 4, 2, 1):
        A("s_nop 1")
        for r in regs:
            A(f"v_add_f32_dpp v{r}, v{r}, v{r} row_ror:{sh} row_mask:0xf bank_mask:0xf")

def nonce_ready():
    A(f"""s_waitcnt lgkmcnt(0)
    s_add_u32 s{S_NONCE}, s{S_NONCE}, 1""")

def sum_bf16(regs, acc, sq=None, t=None):
    for k, r in enumerate(regs):
        if k and k % (5 if sq is not None else 8) == 0:
            yield
        A(f"v_lshlrev_b32 v{t}, 16, v{r}")
        A(f"v_and_b32 v{r}, 0xffff0000, v{r}")
        if k == 0:
            A(f"v_mov_b32 v{acc}, v{t}\nv_mov_b32 v{acc+1}, v{r}")
            if sq is not None:
                A(f"v_mul_f32 v{sq}, v{t}, v{t}\nv_mul_f32 v{sq+1}, v{r}, v{r}")
        else:
            A(f"v_add_f32 v{acc}, v{acc}, v{t}\nv_add_f32 v{acc+1}, v{acc+1}, v{r}")
            if sq is not None:
                A(f"v_fmac_f32 v{sq}, v{t}, v{t}\nv_fmac_f32 v{sq+1}, v{r}, v{r}")
    A(f"v_add_f32 v{acc}, v{acc}, v{acc+1}")
    if sq is not None:
        A(f"v_add_f32 v{sq}, v{sq}, v{sq+1}")

def reduce32(regs):
    dpp_reduce16(regs)
    A("s_nop 1")
    for r in regs:
        A(f"v_add_f32_dpp v{r}, v{r}, v{r} row_bcast:15 row_mask:0xa bank_mask:0xf")

def stat_loads(vm, T):
    A(f"""v_lshrrev_b32 v{T+10}, 5, v{VL}
    s_lshl_b32 s{S_T0}, s2, 3
    s_lshl_b32 s{S_T0+1}, s{S_LW}, 1
    s_add_u32 s{S_T0}, s{S_T0}, s{S_T0+1}
    v_add_u32 v{T+10}, s{S_T0}, v{T+10}
    v_and_b32 v{T+11}, 31, v{VL}
    v_mul_u32_u24 v{T+12}, 1280, v{T+10}
    v_lshl_add_u32 v{T+12}, v{T+11}, 3, v{T+12}""")
    for i in range(5):
        A(f"global_load_dwordx2 v[{T+2*i}:{T+2*i+1}], v{T+12}, s[{S_X}:{S_X+1}] offset:{256*i}")
        vm.issue("stat")

def stat_work(vm, T):
    vm.wait("stat")
    a, q = T + 12, T + 14
    yield from sum_bf16(list(range(T, T + 10)), a, q, T + 16)
    yield
    reduce32([a, q])
    yield
    A(f"""v_mul_f32 v{a}, 0x3acccccd, v{a}      ; mean
    v_mul_f32 v{q}, 0x3acccccd, v{q}
    v_fma_f32 v{q}, -v{a}, v{a}, v{q}
    v_max_f32 v{q}, 0, v{q}
    v_cvt_pk_bf16_f32 v{q}, v{q}, v{q}
    v_lshlrev_b32 v{q}, 16, v{q}
    v_add_f32 v{q}, 0x3727c5ac, v{q}
    v_cvt_pk_bf16_f32 v{q}, v{q}, v{q}
    v_lshlrev_b32 v{q}, 16, v{q}
    v_sqrt_f32 v{q}, v{q}
    v_lshlrev_b32 v{T+10}, 3, v{T+10}
    v_add_u32 v{T+10}, {WS_STAT}, v{T+10}
    v_cvt_pk_bf16_f32 v{a}, v{a}, v{q}
    v_mov_b32 v{a+1}, s{S_NONCE}
    v_cmp_eq_u32 vcc, 16, v{T+11}
    s_and_saveexec_b64 s[{S_EX}:{S_EX+1}], vcc
    global_store_dwordx2 v{T+10}, v[{a}:{a+1}], s[{S_WS}:{S_WS+1}] sc1
    s_mov_b64 exec, s[{S_EX}:{S_EX+1}]""")
    vm.issue("pub")

S_CS0 = 86
def colsum_loads(T):
    A(f"""s_mul_i32 s{S_T0}, s{S_C}, 12
    s_add_u32 s{S_T0}, s{S_T0}, s{S_CB}            ; sigma
    s_lshr_b32 s{S_T0+1}, s{S_T0}, 2               ; strip
    s_and_b32 s{S_T0+2}, s{S_T0}, 3                ; k quarter
    s_cmp_ge_u32 s{S_T0+1}, 24""")
    srd_sel(SRD_T, S_W3, S_W1, 1966080)
    A(f"""s_cselect_b32 s{S_T0+3}, {24*128}, 0
    s_lshl_b32 s{S_T0+4}, s{S_T0+1}, 7
    s_sub_u32 s{S_T0+4}, s{S_T0+4}, s{S_T0+3}
    s_mul_i32 s{S_T0+5}, s{S_T0+2}, {160*3072}
    s_add_u32 s{S_T0+4}, s{S_T0+4}, s{S_T0+5}      ; soffset
    s_mul_i32 s{S_CS0}, s{S_T0+2}, {3072*8}
    s_lshl_b32 s{S_T0+1}, s{S_T0+1}, 9
    s_add_u32 s{S_CS0}, s{S_CS0}, s{S_T0+1}
    s_add_u32 s{S_CS0}, s{S_CS0}, {WS_CSW}
    v_lshrrev_b32 v{T}, 3, v{VL}
    v_and_b32 v{T+1}, 7, v{VL}
    v_mul_u32_u24 v{T}, 3072, v{T}
    v_lshl_add_u32 v{T}, v{T+1}, 4, v{T}""")
    for i in range(20):
        if i % 4 == 0:
            A(f"s_mov_b32 m0, {SCR + 1024*i}")
        A(f"""s_add_u32 s{S_T0+7}, s{S_T0+4}, {8*3072*i - 1024*(i%4)}
        s_waitcnt vmcnt({OPT.get("cap", 7)})
        buffer_load_dwordx4 v{T}, s[{SRD_T}:{SRD_T+3}], s{S_T0+7} offen offset:{1024*(i%4)} lds""")

def colsum_work(T):
    A(f"""v_lshrrev_b32 v{T+2}, 4, v{VL}
    v_lshlrev_b32 v{T+3}, 5, v{T+2}
    v_lshlrev_b32 v{T+2}, 10, v{T+2}
    v_bfe_u32 v{T+1}, v{VL}, 2, 2
    v_lshl_add_u32 v{T+2}, v{T+1}, 7, v{T+2}
    v_and_b32 v{T+1}, 3, v{VL}
    v_lshl_add_u32 v{T+2}, v{T+1}, 3, v{T+2}
    v_add_u32 v{T+2}, {SCR}, v{T+2}
    v_add_u32 v{T+3}, s{S_CS0}, v{T+3}""")
    for i in range(4):
        A(f"v_mov_b32 v{T+4+i}, s{S_ONES}")
    F = T + 24
    for u in range(4):
        for ks in range(5):
            b = F + (u * 5 + ks) * 4
            A(f"ds_read_b64_tr_b16 v[{b}:{b+1}], v{T+2} offset:{ks*4096+u*32}")
            A(f"ds_read_b64_tr_b16 v[{b+2}:{b+3}], v{T+2} offset:{ks*4096+u*32+512}")
    A("s_waitcnt lgkmcnt(0)")
    for ks in range(5):
        for u in range(4):
            b = F + (u * 5 + ks) * 4
            d = T + 8 + 4 * u
            cin = "0" if ks == 0 else f"v[{d}:{d+3}]"
            A(f"v_mfma_f32_16x16x32_bf16 v[{d}:{d+3}], v[{b}:{b+3}], v[{T+4}:{T+7}], {cin}")
    A(f"""v_and_b32 v{T+1}, 15, v{VL}
    v_cmp_eq_u32 vcc, 0, v{T+1}
    s_nop 7""")
    for u in range(4):
        for h in range(2):
            o = F + (u * 2 + h) * 4
            A(f"""v_mov_b32 v{o}, v{T+8+4*u+2*h}
            v_mov_b32 v{o+1}, s{S_NONCE}
            v_mov_b32 v{o+2}, v{T+9+4*u+2*h}
            v_mov_b32 v{o+3}, s{S_NONCE}""")
    A(f"s_and_saveexec_b64 s[{S_EX}:{S_EX+1}], vcc")
    for u in range(4):
        for h in range(2):
            o = F + (u * 2 + h) * 4
            A(f"global_store_dwordx4 v{T+3}, v[{o}:{o+3}], s[{S_WS}:{S_WS+1}] offset:{u*128+h*16} sc1")
    A(f"s_mov_b64 exec, s[{S_EX}:{S_EX+1}]")

def rowsum_loads(vm, T):
    A(f"""s_lshl_b32 s{S_T0}, s{S_C}, 2
    s_add_u32 s{S_T0}, s{S_T0}, s{S_CB}            ; sigma'
    s_mul_i32 s{S_T0+1}, s{S_T0}, 20
    s_mul_i32 s{S_T0+2}, s{S_LW}, 5
    s_add_u32 s{S_T0+1}, s{S_T0+1}, s{S_T0+2}
    s_cmp_ge_u32 s{S_T0}, 32
    s_cselect_b32 s{S_T0+4}, s{S_BIM}, s{S_BRE}
    s_cselect_b32 s{S_T0+5}, s{S_BIM+1}, s{S_BRE+1}
    s_cselect_b32 s{S_T0+3}, 640, 0
    s_sub_u32 s{S_T0+1}, s{S_T0+1}, s{S_T0+3}
    v_lshrrev_b32 v{T+33}, 5, v{VL}
    v_add_u32 v{T+33}, s{S_T0+1}, v{T+33}
    v_and_b32 v{T+34}, 31, v{VL}""")
    for p in range(3):
        A(f"""v_add_u32 v{T+30+p}, {2*p}, v{T+33}
        v_min_u32 v{T+30+p}, 639, v{T+30+p}
        v_mul_u32_u24 v{T+35}, 1280, v{T+30+p}
        v_lshl_add_u32 v{T+35}, v{T+34}, 3, v{T+35}
        v_add_u32 v{T+30+p}, s{S_T0+3}, v{T+30+p}""")
        for i in range(5):
            b = T + 10 * p + 2 * i
            A(f"global_load_dwordx2 v[{b}:{b+1}], v{T+35}, s[{S_T0+4}:{S_T0+5}] offset:{256*i}")
            vm.issue("rows")

def rowsum_work(vm, T):
    vm.wait("rows")
    for p in range(3):
        yield from sum_bf16(list(range(T + 10 * p, T + 10 * p + 10)), T + 36 + 2 * p, None, T + 35)
    yield
    reduce32([T + 36, T + 38, T + 40])
    for p in range(3):
        A(f"""v_mov_b32 v{T+37+2*p}, s{S_NONCE}
        v_lshlrev_b32 v{T+30+p}, 3, v{T+30+p}
        v_add_u32 v{T+30+p}, {WS_CSB}, v{T+30+p}""")
    A(f"""v_cmp_eq_u32 vcc, 16, v{T+34}
    s_and_saveexec_b64 s[{S_EX}:{S_EX+1}], vcc""")
    for p in range(3):
        A(f"global_store_dwordx2 v{T+30+p}, v[{T+36+2*p}:{T+37+2*p}], s[{S_WS}:{S_WS+1}] sc1")
        vm.issue("pub")
    A(f"s_mov_b64 exec, s[{S_EX}:{S_EX+1}]")

def side_stats(T, filler):
    A(f"""v_lshrrev_b32 v{T+20}, 4, v{VL}
    s_lshl_b32 s{S_T0}, s2, 3
    s_lshl_b32 s{S_T0+1}, s{S_WAVE}, 2
    s_add_u32 s{S_T0}, s{S_T0}, s{S_T0+1}
    v_add_u32 v{T+20}, s{S_T0}, v{T+20}          ; row
    v_and_b32 v{T+21}, 15, v{VL}
    v_mul_u32_u24 v{T+22}, 1280, v{T+20}
    v_lshl_add_u32 v{T+22}, v{T+21}, 4, v{T+22}""")
    for i in range(5):
        A(f"global_load_dwordx4 v[{T+4*i}:{T+4*i+3}], v{T+22}, s[{S_X}:{S_X+1}] offset:{256*i}")
    filler()
    A(f"""v_mov_b32 v{T+24}, 0
    v_mov_b32 v{T+25}, 0
    v_mov_b32 v{T+26}, 0
    v_mov_b32 v{T+27}, 0""")
    nonce_ready()
    for i in range(5):
        A(f"s_waitcnt vmcnt({4-i})")
        for d in range(4):
            r = T + 4 * i + d
            A(f"v_dot2c_f32_bf16 v{T+24+2*(d&1)}, s{S_ONES}, v{r}")
            A(f"v_dot2c_f32_bf16 v{T+25+2*(d&1)}, v{r}, v{r}")
    A(f"""s_nop 3
    v_add_f32 v{T+24}, v{T+24}, v{T+26}
    v_add_f32 v{T+25}, v{T+25}, v{T+27}""")
    dpp_reduce16([T + 24, T + 25])
    A(f"""v_mul_f32 v{T+24}, 0x3acccccd, v{T+24}      ; mean
    v_mul_f32 v{T+25}, 0x3acccccd, v{T+25}
    v_fma_f32 v{T+25}, -v{T+24}, v{T+24}, v{T+25}
    v_max_f32 v{T+25}, 0, v{T+25}
    v_cvt_pk_bf16_f32 v{T+25}, v{T+25}, v{T+25}
    v_lshlrev_b32 v{T+25}, 16, v{T+25}
    v_add_f32 v{T+25}, 0x3727c5ac, v{T+25}
    v_cvt_pk_bf16_f32 v{T+25}, v{T+25}, v{T+25}
    v_lshlrev_b32 v{T+25}, 16, v{T+25}
    v_sqrt_f32 v{T+25}, v{T+25}
    v_lshlrev_b32 v{T+20}, 3, v{T+20}
    v_add_u32 v{T+20}, {WS_STAT}, v{T+20}
    v_cvt_pk_bf16_f32 v{T+26}, v{T+24}, v{T+25}
    v_mov_b32 v{T+27}, s{S_NONCE}
    v_cmp_eq_u32 vcc, 0, v{T+21}
    s_and_saveexec_b64 s[{S_EX}:{S_EX+1}], vcc
    global_store_dwordx2 v{T+20}, v[{T+26}:{T+27}], s[{S_WS}:{S_WS+1}] sc1
    s_mov_b64 exec, s[{S_EX}:{S_EX+1}]""")

def side_colsum_mlp(T, filler):
    A(f"""s_mul_i32 s{S_T0}, s{S_C}, 12
    s_add_u32 s{S_T0}, s{S_T0}, s{S_CB}            ; sigma
    s_lshr_b32 s{S_T0+1}, s{S_T0}, 1               ; strip
    s_and_b32 s{S_T0+2}, s{S_T0}, 1
    s_lshl_b32 s{S_T0+2}, s{S_T0+2}, 1
    s_add_u32 s{S_T0+2}, s{S_T0+2}, s{S_WAVE}
    s_sub_u32 s{S_T0+2}, s{S_T0+2}, 2              ; k quarter
    s_cmp_ge_u32 s{S_T0+1}, 48""")
    srd_sel(SRD_T, S_W3, S_W1, 1966080)
    A(f"""s_cselect_b32 s{S_T0+3}, 48, 0
    s_cselect_b32 s{S_T0+6}, 1536, 0
    s_sub_u32 s{S_T0+1}, s{S_T0+1}, s{S_T0+3}
    s_lshl_b32 s{S_T0+1}, s{S_T0+1}, 5             ; col0
    s_mul_i32 s{S_T0+4}, s{S_T0+2}, {160*3072}
    s_lshl_b32 s{S_T0+5}, s{S_T0+1}, 1
    s_add_u32 s{S_T0+4}, s{S_T0+4}, s{S_T0+5}      ; soffset
    s_sub_u32 s{S_T0+5}, s{S_WAVE}, 2
    s_mul_i32 s{S_T0+5}, s{S_T0+5}, 10240
    s_add_u32 s{S_T0+5}, s{S_T0+5}, {SCR}
    v_lshrrev_b32 v{T}, 2, v{VL}
    v_and_b32 v{T+1}, 3, v{VL}
    v_mul_u32_u24 v{T}, 3072, v{T}
    v_lshl_add_u32 v{T}, v{T+1}, 4, v{T}""")
    for i in range(10):
        A(f"""s_add_u32 m0, s{S_T0+5}, {1024*i}
        s_add_u32 s{S_T0+7}, s{S_T0+4}, {16*3072*i}
        buffer_load_dwordx4 v{T}, s[{SRD_T}:{SRD_T+3}], s{S_T0+7} offen lds""")
    filler()
    A(f"""v_lshrrev_b32 v{T+2}, 4, v{VL}
    v_lshlrev_b32 v{T+2}, 9, v{T+2}
    v_bfe_u32 v{T+3}, v{VL}, 2, 2
    v_lshl_add_u32 v{T+2}, v{T+3}, 6, v{T+2}
    v_lshl_add_u32 v{T+2}, v{T+1}, 3, v{T+2}
    v_add_u32 v{T+2}, s{S_T0+5}, v{T+2}
    v_mov_b32 v{T+4}, s{S_ONES}
    v_mov_b32 v{T+5}, s{S_ONES}
    v_mov_b32 v{T+6}, s{S_ONES}
    v_mov_b32 v{T+7}, s{S_ONES}""")
    A(f"""s_mul_i32 s{S_T0+2}, s{S_T0+2}, 3072
    s_add_u32 s{S_T0+2}, s{S_T0+2}, s{S_T0+6}
    s_add_u32 s{S_T0+2}, s{S_T0+2}, s{S_T0+1}
    s_lshl_b32 s{S_T0+2}, s{S_T0+2}, 3
    s_add_u32 s{S_T0+2}, s{S_T0+2}, {WS_CSW}
    v_lshrrev_b32 v{T+3}, 4, v{VL}
    v_lshlrev_b32 v{T+3}, 5, v{T+3}
    v_add_u32 v{T+3}, s{S_T0+2}, v{T+3}""")
    nonce_ready()
    A("s_waitcnt vmcnt(0)")
    F = T + 16
    for ks in range(5):
        for u in range(2):
            b = F + (ks * 2 + u) * 4
            A(f"ds_read_b64_tr_b16 v[{b}:{b+1}], v{T+2} offset:{ks*2048+u*32}")
            A(f"ds_read_b64_tr_b16 v[{b+2}:{b+3}], v{T+2} offset:{ks*2048+u*32+256}")
    A("s_waitcnt lgkmcnt(0)")
    for ks in range(5):
        for u in range(2):
            b = F + (ks * 2 + u) * 4
            cin = "0" if ks == 0 else f"v[{T+8+4*u}:{T+11+4*u}]"
            A(f"v_mfma_f32_16x16x32_bf16 v[{T+8+4*u}:{T+11+4*u}], v[{b}:{b+3}], v[{T+4}:{T+7}], {cin}")
    A("s_nop 7\ns_nop 1")
    for u in range(2):
        for h in range(2):
            o = F + (u * 2 + h) * 4
            A(f"""v_mov_b32 v{o}, v{T+8+4*u+2*h}
            v_mov_b32 v{o+1}, s{S_NONCE}
            v_mov_b32 v{o+2}, v{T+9+4*u+2*h}
            v_mov_b32 v{o+3}, s{S_NONCE}""")
    A(f"""v_and_b32 v{T+1}, 15, v{VL}
    v_cmp_eq_u32 vcc, 0, v{T+1}
    s_and_saveexec_b64 s[{S_EX}:{S_EX+1}], vcc""")
    for u in range(2):
        for h in range(2):
            o = F + (u * 2 + h) * 4
            A(f"global_store_dwordx4 v{T+3}, v[{o}:{o+3}], s[{S_WS}:{S_WS+1}] offset:{u*128+h*16} sc1")
    A(f"s_mov_b64 exec, s[{S_EX}:{S_EX+1}]")

def side_rowsum_ssm(T, filler):
    A(f"""s_lshl_b32 s{S_T0}, s{S_C}, 2
    s_add_u32 s{S_T0}, s{S_T0}, s{S_CB}            ; sigma'
    s_mul_i32 s{S_T0+1}, s{S_T0}, 20
    s_sub_u32 s{S_T0+2}, s{S_WAVE}, 2
    s_lshl_b32 s{S_T0+2}, s{S_T0+2}, 3
    s_add_u32 s{S_T0+1}, s{S_T0+1}, s{S_T0+2}
    s_cmp_ge_u32 s{S_T0}, 32
    s_cselect_b32 s{S_T0+4}, s{S_BIM}, s{S_BRE}
    s_cselect_b32 s{S_T0+5}, s{S_BIM+1}, s{S_BRE+1}
    s_cselect_b32 s{S_T0+3}, 640, 0
    s_sub_u32 s{S_T0+3}, s{S_T0+1}, s{S_T0+3}
    v_lshrrev_b32 v{T+60}, 4, v{VL}
    v_and_b32 v{T+61}, 15, v{VL}
    v_add_u32 v{T+62}, s{S_T0+3}, v{T+60}
    v_mul_u32_u24 v{T+62}, 1280, v{T+62}
    v_lshl_add_u32 v{T+62}, v{T+61}, 4, v{T+62}""")
    for p in range(3):
        for i in range(5):
            b = T + 20 * p + 4 * i
            A(f"global_load_dwordx4 v[{b}:{b+3}], v{T+62}, s[{S_T0+4}:{S_T0+5}] offset:{256*i}")
        if p < 2:
            A(f"v_add_u32 v{T+62}, {4*1280}, v{T+62}")
    filler()
    for p in range(3):
        A(f"v_mov_b32 v{T+64+2*p}, 0")
    A(f"""v_add_u32 v{T+60}, s{S_T0+1}, v{T+60}
    v_lshlrev_b32 v{T+60}, 3, v{T+60}
    v_add_u32 v{T+60}, {WS_CSB}, v{T+60}""")
    nonce_ready()
    for p in range(3):
        A(f"s_waitcnt vmcnt({10-5*p})")
        for d in range(20):
            A(f"v_dot2c_f32_bf16 v{T+64+2*p}, s{S_ONES}, v{T+20*p+d}")
    A("s_nop 3")
    dpp_reduce16([T + 64, T + 66, T + 68])
    for p in range(3):
        A(f"v_mov_b32 v{T+65+2*p}, s{S_NONCE}")
    A(f"""v_cmp_eq_u32 vcc, 0, v{T+61}
    s_and_saveexec_b64 s[{S_EX}:{S_EX+1}], vcc""")
    for p in range(3):
        A(f"global_store_dwordx2 v{T+60}, v[{T+64+2*p}:{T+65+2*p}], s[{S_WS}:{S_WS+1}] offset:{32*p} sc1")
    A(f"s_mov_b64 exec, s[{S_EX}:{S_EX+1}]")


SJ = 200
PA, PB = OPT.get('pa', 2), OPT.get('pb', 4)
def rows16_loads(T, rowreg, ptr):
    A(f"""v_and_b32 v{T+20}, 15, v{VL}
    v_mul_u32_u24 v{T+21}, 1280, v{rowreg}
    v_lshl_add_u32 v{T+21}, v{T+20}, 4, v{T+21}""")
    for i in range(5):
        A(f"global_load_dwordx4 v[{T+4*i}:{T+4*i+3}], v{T+21}, s[{ptr}:{ptr+1}] offset:{256*i}")
def stat_finish(a, q, rowreg, lanereg, lane):
    A(f"""v_mul_f32 v{a}, 0x3acccccd, v{a}      ; mean
    v_mul_f32 v{q}, 0x3acccccd, v{q}
    v_fma_f32 v{q}, -v{a}, v{a}, v{q}
    v_max_f32 v{q}, 0, v{q}
    v_cvt_pk_bf16_f32 v{q}, v{q}, v{q}
    v_lshlrev_b32 v{q}, 16, v{q}
    v_add_f32 v{q}, 0x3727c5ac, v{q}
    v_cvt_pk_bf16_f32 v{q}, v{q}, v{q}
    v_lshlrev_b32 v{q}, 16, v{q}
    v_sqrt_f32 v{q}, v{q}
    v_lshlrev_b32 v{rowreg}, 3, v{rowreg}
    v_add_u32 v{rowreg}, {WS_STAT}, v{rowreg}
    v_cvt_pk_bf16_f32 v{a}, v{a}, v{q}
    v_mov_b32 v{a+1}, s{S_NONCE}
    v_cmp_eq_u32 vcc, {lane}, v{lanereg}""")
def own_rows(dst):
    A(f"""s_lshr_b32 s{dst}, s{S_XCD}, 1
    s_lshl_b32 s{dst}, s{dst}, 2
    s_add_u32 s{dst}, s{dst}, s{S_J}
    s_lshl_b32 s{dst}, s{dst}, 3
    s_lshl_b32 s{dst+1}, s{S_C}, 7
    s_add_u32 s{dst}, s{dst}, s{dst+1}""")
def mlp_rows_loads():
    A(f"""v_lshrrev_b32 v242, 4, v{VL}
    s_lshl_b32 s{S_T0+1}, s{S_WAVE}, 2
    v_add_u32 v242, s{S_T0+1}, v242
    s_sub_u32 s{S_T0}, s{S_IDX}, 8
    s_min_u32 s{S_T0}, s{S_T0}, 19
    s_lshl_b32 s{S_T0}, s{S_T0}, 3
    s_lshr_b32 s{S_T0+1}, s{S_XCD}, 1
    s_mul_i32 s{S_T0+1}, s{S_T0+1}, 160
    s_add_u32 s{S_T0+2}, s{S_T0}, s{S_T0+1}
    s_bitcmp1_b32 s{S_XCD}, 0
    s_cselect_b32 s{S_T0+4}, s{S_BIM}, s{S_BRE}
    s_cselect_b32 s{S_T0+5}, s{S_BIM+1}, s{S_BRE+1}
    s_cselect_b32 s{S_T0+3}, 640, 0
    v_add_u32 v244, s{S_T0+2}, v242
    v_add_u32 v243, s{S_T0+3}, v244""")
    own_rows(S_T0)
    A(f"v_add_u32 v242, s{S_T0}, v242")
    rows16_loads(SJ, 242, S_X)
    rows16_loads(SJ + 20, 244, S_T0 + 4)
def mlp_rows_work():
    a, q, r = 244, 246, 228
    A(f"v_mov_b32 v{a}, 0\nv_mov_b32 v{q}, 0\nv_mov_b32 v{a+1}, 0\nv_mov_b32 v{q+1}, 0\ns_waitcnt vmcnt({2*(PB-PA)})")
    for d in range(20):
        A(f"v_dot2c_f32_bf16 v{a}, s{S_ONES}, v{SJ+d}")
        A(f"v_dot2c_f32_bf16 v{q}, v{SJ+d}, v{SJ+d}")
        A(f"v_dot2c_f32_bf16 v{[a+1, q+1][d % 2]}, s{S_ONES}, v{SJ+20+d}")
    A(f"s_nop 2\nv_add_f32 v{SJ}, v{a+1}, v{q+1}")
    dpp_reduce16([a, q, SJ])
    stat_finish(a, q, 242, SJ + 40, 0)
    A(f"""v_mov_b32 v{SJ+1}, s{S_NONCE}
    v_lshlrev_b32 v243, 3, v243
    v_add_u32 v243, {WS_CSB}, v243
    s_and_saveexec_b64 s[{S_EX}:{S_EX+1}], vcc
    global_store_dwordx2 v242, v[{a}:{a+1}], s[{S_WS}:{S_WS+1}] sc1
    global_store_dwordx2 v243, v[{SJ}:{SJ+1}], s[{S_WS}:{S_WS+1}] sc1
    s_mov_b64 exec, s[{S_EX}:{S_EX+1}]""")
def mlp_cs_loads():
    T = SJ
    A(f"""s_and_b32 s{S_T0}, s{S_IDX}, 3
    s_lshl_b32 s{S_T0+1}, s{S_CB}, 2
    s_add_u32 s{S_T0+1}, s{S_T0+1}, s{S_T0}
    s_bitcmp1_b32 s{S_IDX}, 2
    s_cselect_b32 s{S_T0}, 48, 0
    s_add_u32 s{S_T0+1}, s{S_T0+1}, s{S_T0}        ; strip : 32 columns of this workgroup's own tile
    s_and_b32 s{S_T0+2}, s{S_XCD}, 1
    s_lshl_b32 s{S_T0+2}, s{S_T0+2}, 1
    s_add_u32 s{S_T0+2}, s{S_T0+2}, s{S_WAVE}
    s_sub_u32 s{S_T0+2}, s{S_T0+2}, 2              ; k quarter
    s_cmp_ge_u32 s{S_T0+1}, 48""")
    srd_sel(SRD_T, S_W3, S_W1, 1966080)
    A(f"""s_cselect_b32 s{S_T0+3}, {48*64}, 0
    s_lshl_b32 s{S_T0+4}, s{S_T0+1}, 6
    s_sub_u32 s{S_T0+4}, s{S_T0+4}, s{S_T0+3}
    s_mul_i32 s{S_T0+5}, s{S_T0+2}, {160*3072}
    s_add_u32 s{S_T0+4}, s{S_T0+4}, s{S_T0+5}      ; soffset
    s_sub_u32 s{S_T0+5}, s{S_WAVE}, 2
    s_mul_i32 s{S_T0+5}, s{S_T0+5}, 10240
    s_add_u32 s{S_T0+5}, s{S_T0+5}, {SCR}
    v_lshrrev_b32 v{T}, 2, v{VL}
    v_and_b32 v{T+1}, 3, v{VL}
    v_mul_u32_u24 v{T}, 3072, v{T}
    v_lshl_add_u32 v{T}, v{T+1}, 4, v{T}""")
    for i in range(10):
        A(f"""s_add_u32 m0, s{S_T0+5}, {1024*i}
        s_add_u32 s{S_T0+7}, s{S_T0+4}, {16*3072*i}
        buffer_load_dwordx4 v{T}, s[{SRD_T}:{SRD_T+3}], s{S_T0+7} offen lds""")
    A(f"""v_lshrrev_b32 v{T+2}, 4, v{VL}
    v_lshlrev_b32 v{T+3}, 5, v{T+2}
    v_lshlrev_b32 v{T+2}, 9, v{T+2}
    v_bfe_u32 v{T}, v{VL}, 2, 2
    v_lshl_add_u32 v{T+2}, v{T}, 6, v{T+2}
    v_lshl_add_u32 v{T+2}, v{T+1}, 3, v{T+2}
    v_add_u32 v{T+2}, s{S_T0+5}, v{T+2}
    s_mul_i32 s{S_T0+2}, s{S_T0+2}, {3072*8}
    s_lshl_b32 s{S_T0+1}, s{S_T0+1}, 8
    s_add_u32 s{S_T0+2}, s{S_T0+2}, s{S_T0+1}
    s_add_u32 s{S_T0+2}, s{S_T0+2}, {WS_CSW}
    v_add_u32 v249, s{S_T0+2}, v{T+3}
    v_and_b32 v{T+1}, 15, v{VL}""")
    for i in range(4):
        A(f"v_mov_b32 v{T+4+i}, s{S_ONES}")
def mlp_cs_work():
    T = SJ
    F = T + 8
    A(f"s_waitcnt vmcnt({2*(PB-PA)})")
    for u in range(2):
        for ks in range(5):
            b = F + (u * 5 + ks) * 4
            A(f"ds_read_b64_tr_b16 v[{b}:{b+1}], v{T+2} offset:{ks*2048+u*32}")
            A(f"ds_read_b64_tr_b16 v[{b+2}:{b+3}], v{T+2} offset:{ks*2048+u*32+256}")
    A(f"v_cmp_eq_u32 vcc, 0, v{T+1}\ns_waitcnt lgkmcnt(0)")
    D = [T, F]
    for u in range(2):
        for ks in range(5):
            b, d = F + (u * 5 + ks) * 4, D[u]
            cin = "0" if ks == 0 else f"v[{d}:{d+3}]"
            A(f"v_mfma_f32_16x16x32_bf16 v[{d}:{d+3}], v[{b}:{b+3}], v[{T+4}:{T+7}], {cin}")
    A("s_nop 7")
    for u in range(2):
        d, o = D[u], F + 4 + 8 * u
        for r in range(4):
            A(f"v_mov_b32 v{o+2*r}, v{d+r}\nv_mov_b32 v{o+2*r+1}, s{S_NONCE}")
    A(f"s_and_saveexec_b64 s[{S_EX}:{S_EX+1}], vcc")
    for u in range(2):
        for h in range(2):
            o = F + 4 + 8 * u + 4 * h
            A(f"global_store_dwordx4 v249, v[{o}:{o+3}], s[{S_WS}:{S_WS+1}] offset:{u*128+h*16} sc1")
    A(f"s_mov_b64 exec, s[{S_EX}:{S_EX+1}]")
def ssm_rows_loads():
    own_rows(S_T0)
    A(f"""v_lshrrev_b32 v246, 5, v{VL}
    s_lshl_b32 s{S_T0+1}, s{S_WAVE}, 1
    s_add_u32 s{S_T0}, s{S_T0}, s{S_T0+1}
    v_add_u32 v246, s{S_T0}, v246
    v_and_b32 v247, 31, v{VL}
    v_mul_u32_u24 v249, 1280, v246
    v_lshl_add_u32 v249, v247, 3, v249""")
    for i in range(5):
        A(f"global_load_dwordx2 v[{236+2*i}:{237+2*i}], v249, s[{S_X}:{S_X+1}] offset:{256*i}")
def ssm_rows_work():
    A(f"v_mov_b32 v249, 0\nv_mov_b32 v251, 0\ns_waitcnt vmcnt({2*(PB-PA)})")
    for d in range(10):
        A(f"v_dot2c_f32_bf16 v249, s{S_ONES}, v{236+d}")
        A(f"v_dot2c_f32_bf16 v251, v{236+d}, v{236+d}")
    A("s_nop 2\nv_mov_b32 v236, v249")
    reduce32([236, 251])
    stat_finish(236, 251, 246, 247, 16)
    A(f"""s_and_saveexec_b64 s[{S_EX}:{S_EX+1}], vcc
    global_store_dwordx2 v246, v[236:237], s[{S_WS}:{S_WS+1}] sc1
    s_mov_b64 exec, s[{S_EX}:{S_EX+1}]""")
def touch_w2(T):
    G = OPT.get("tg", 128)
    sh = G.bit_length() - 1
    n2, nc = 7680 // G, 3200 // G
    if OPT.get("tm", 1):
        A(f"""s_sub_u32 s{S_T0+3}, s2, 64
        s_cmp_lt_u32 s{S_WAVE}, 2
        s_cselect_b32 s{S_T0}, 39, 33
        s_mov_b32 s{S_T0+1}, 4352
        s_cmov_b32 s{S_T0+1}, 10240
        s_cselect_b32 s{S_T0+4}, s{S_W2}, s{S_CRE}
        s_cselect_b32 s{S_T0+5}, s{S_W2+1}, s{S_CRE+1}
        s_mov_b32 s{S_T0+6}, 819196
        s_cmov_b32 s{S_T0+6}, 1966076
        s_cmp_eq_u32 s{S_WAVE}, 3
        s_cselect_b32 s{S_T0+4}, s{S_CIM}, s{S_T0+4}
        s_cselect_b32 s{S_T0+5}, s{S_CIM+1}, s{S_T0+5}
        s_mul_i32 s{S_T0+1}, s{S_T0+1}, s{S_T0+3}
        s_cmp_eq_u32 s{S_WAVE}, 1
        s_cselect_b32 s{S_T0+2}, 5120, 0
        s_add_u32 s{S_T0+1}, s{S_T0+1}, s{S_T0+2}
        v_min_u32 v{T}, s{S_T0}, v{VL}
        v_lshlrev_b32 v{T}, 7, v{T}
        v_add_u32 v{T}, s{S_T0+1}, v{T}
        v_min_u32 v{T}, s{S_T0+6}, v{T}
        global_load_dword v{T}, v{T}, s[{S_T0+4}:{S_T0+5}]""")
        return
    if G == 128:
        l = A.newlabel("L_tw")
        A(f"""s_cmp_eq_u32 s{S_WAVE}, 3
        s_cbranch_scc1 {l}
        s_cmp_eq_u32 s{S_WAVE}, 0
        s_cselect_b32 s{S_T0}, {n2-1}, {nc-1}
        s_mov_b32 s{S_T0+1}, 3200
        s_cmov_b32 s{S_T0+1}, 7680
        s_cselect_b32 s{S_T0+4}, s{S_W2}, s{S_CRE}
        s_cselect_b32 s{S_T0+5}, s{S_W2+1}, s{S_CRE+1}
        s_cmp_eq_u32 s{S_WAVE}, 2
        s_cselect_b32 s{S_T0+4}, s{S_CIM}, s{S_T0+4}
        s_cselect_b32 s{S_T0+5}, s{S_CIM+1}, s{S_T0+5}""")
    else:
        l = A.newlabel("L_tw")
        A(f"""s_cmp_lt_u32 s{S_WAVE}, 2
        s_cselect_b32 s{S_T0}, {n2//2-1}, {nc-1}
        s_mov_b32 s{S_T0+1}, 3200
        s_cmov_b32 s{S_T0+1}, 7680
        s_cselect_b32 s{S_T0+4}, s{S_W2}, s{S_CRE}
        s_cselect_b32 s{S_T0+5}, s{S_W2+1}, s{S_CRE+1}
        s_cmp_eq_u32 s{S_WAVE}, 3
        s_cselect_b32 s{S_T0+4}, s{S_CIM}, s{S_T0+4}
        s_cselect_b32 s{S_T0+5}, s{S_CIM+1}, s{S_T0+5}""")
    A(f"""s_mul_i32 s{S_T0+1}, s{S_T0+1}, s2
    s_cmp_eq_u32 s{S_WAVE}, 1
    s_cselect_b32 s{S_T0+2}, {3840 if G == 64 else 0}, 0
    s_add_u32 s{S_T0+1}, s{S_T0+1}, s{S_T0+2}
    v_min_u32 v{T}, s{S_T0}, v{VL}
    v_lshlrev_b32 v{T}, {sh}, v{T}
    v_add_u32 v{T}, s{S_T0+1}, v{T}
    global_load_dword v{T}, v{T}, s[{S_T0+4}:{S_T0+5}]""")
    A.label(l)
def by_wave(lo, hi):
    l1, l2 = A.newlabel("L_bw"), A.newlabel("L_bw")
    A(f"s_cmp_ge_u32 s{S_WAVE}, 2\ns_cbranch_scc1 {l1}")
    lo()
    A(f"s_branch {l2}")
    A.label(l1)
    hi()
    A.label(l2)

def zero_regs(lo, n):
    def f():
        for r in range(lo, lo + n):
            A(f"v_mov_b32 v{r}, 0")
    return f

def rowpat_read(dst, tmp):
    A(f"""v_bfe_u32 v{tmp}, v{VL}, 1, 3
    v_lshrrev_b32 v{dst}, 4, v{VL}
    v_xor_b32 v{tmp}, v{tmp}, v{dst}
    v_and_b32 v{dst}, 15, v{VL}
    v_lshlrev_b32 v{dst}, 7, v{dst}
    v_lshl_add_u32 v{dst}, v{tmp}, 4, v{dst}""")

def touch_inputs(T):
    if not OPT["pf"]:
        return
    G = OPT.get("tg", 64)
    plan = [[(S_X, 10240)], [(S_W1, 7680), (S_BRE, 3200)], [(S_W3, 7680), (S_BIM, 3200)], [(S_W2, 7680), (S_CRE, 3200), (S_CIM, 3200)]]
    done = A.newlabel("L_ti")
    sh = G.bit_length() - 1
    for w, segs in enumerate(plan):
        nx = A.newlabel("L_ti")
        if w < 3:
            A(f"s_cmp_lg_u32 s{S_WAVE}, {w}\ns_cbranch_scc1 {nx}")
        k = 0
        for p, n in segs:
            cnt = n // G
            A(f"s_mul_i32 s{S_T0}, s2, {n}")
            for o in range(0, cnt, 64):
                A(f"""v_add_u32 v{T}, {o}, v{VL}
                v_min_u32 v{T}, {cnt-1}, v{T}
                v_lshlrev_b32 v{T}, {sh}, v{T}
                v_add_u32 v{T}, s{S_T0}, v{T}
                global_load_dword v{244+k}, v{T}, s[{p}:{p+1}]""")
                k += 1
        if w < 3:
            A(f"s_branch {done}")
            A.label(nx)
    A.label(done)
def gemm1_loop(kind):
    mlp = kind == "mlp"
    NB = 8 if mlp else 10
    NS = 5
    SLOT = 16384 if mlp else 20480
    XF = 128 if mlp else 160
    WF = XF + 32
    AX = WF + NB * 4
    AW = AX + 2
    nAW = 4 if mlp else 2
    D = D1 if mlp else OPT["D1S"]
    lg = Queue(A, "lgkmcnt", 15)

    def rd_x(ks, T):
        b = XF + ks * 16 + T * 4
        if OPT["noread"]:
            return
        A(f"ds_read_b128 v[{b}:{b+3}], v{AX+ks} offset:{T*2048}")
        lg.issue(("x", ks))
    def rd_w(j, gen, half=None):
        b = WF + j * 4
        if OPT["noread"]:
            return
        if mlp:
            F, c = j // 2, j % 2
            for h in ((0, 1) if half is None else (half,)):
                A(f"ds_read_b64_tr_b16 v[{b+2*h}:{b+2*h+1}], v{AW+F} offset:{c*8192+1024*h}")
                lg.issue(("w", j, gen))
        else:
            ks, G = j // 5, j % 5
            A(f"ds_read_b128 v[{b}:{b+3}], v{AW+ks} offset:{G*2048}")
            lg.issue(("w", j, gen))
    def mf(j, T, par):
        w = WF + j * 4
        if (OPT["nomfma"] == 1 and T > 0) or OPT["nomfma"] == 2:
            return
        if mlp:
            acc = (j * 4 + T) * 4
            x = XF + par * 16 + T * 4
            A(f"v_mfma_f32_16x16x32_bf16 v[{acc}:{acc+3}], v[{w}:{w+3}], v[{x}:{x+3}], v[{acc}:{acc+3}]")
        else:
            acc = (((j % 5) * 2 + par) * 4 + T) * 4
            x = XF + (j // 5) * 16 + T * 4
            A(f"v_mfma_f32_16x16x32_bf16 v[{acc}:{acc+3}], v[{x}:{x+3}], v[{w}:{w+3}], v[{acc}:{acc+3}]")
    def xreads(par, j):
        k = j + D - NB
        if mlp:
            return [(par ^ 1, T) for T in ([2 * k, 2 * k + 1] if 0 <= k < 2 else [])]
        if par == 1:
            return [(0, T) for T in ([2 * k, 2 * k + 1] if 0 <= k < 2 else [])]
        return [(1, T) for T in ([2 * j, 2 * j + 1] if j < 2 else [])]
    assert mlp or NB - D >= 5

    A(f"s_mov_b32 s{S_SLOT}, 0\ns_mov_b32 s{S_CNT}, 0\ns_mov_b32 s{S_KX}, 0")
    vFP, vFV, vFD = 248, 249, 250
    A(f"s_mov_b32 m0, s{S_FR}\ns_mov_b32 s{S_LMT}, {PA or PB}")
    assert PA
    flag_wait(1, vFD, vFP)
    A(f"v_add_u32 v{vFP}, 4, v{vFP}")
    if TS:
        A("s_mov_b32 s48, 0\ns_mov_b32 s49, 0")
    ts(2, 2)
    tc(12)
    for j in range(D):
        rd_w(j, 0)
        for ks, T in xreads(1, j + NB - D):
            rd_x(ks, T)
    lbl = f"L_g1_{kind}"
    A(f"""s_mov_b32 s{S_T0}, {SLOT}
    s_mov_b32 s{S_T0+1}, {-(NS-1)*SLOT & 0xffffffff}
    s_mov_b32 s{S_T0+2}, 16384
    s_mov_b32 s{S_T0+3}, {-32768 & 0xffffffff}""")
    A.label(lbl)
    entry = list(lg.q)
    ring = [f"s_add_u32 s{S_SLOT}, s{S_SLOT}, 1\ns_cmp_eq_u32 s{S_SLOT}, {NS}",
            f"s_cselect_b32 s{S_DELTA}, s{S_T0+1}, s{S_T0}\ns_cselect_b32 s{S_SLOT}, 0, s{S_SLOT}"]
    xring = [f"s_add_u32 s{S_KX}, s{S_KX}, 1\ns_cmp_eq_u32 s{S_KX}, 3",
             f"s_cselect_b32 s{S_KW}, s{S_T0+3}, s{S_T0+2}\ns_cselect_b32 s{S_KX}, 0, s{S_KX}"]
    def adv(r, d):
        return f"v_add_u32 v{r}, s{d}, v{r}"
    for par in range(2):
        fill = {}
        if mlp:
            assert D == 4
            fill[(0, 2)] = ring[0]; fill[(1, 2)] = ring[1]
            fill[(2, 2)] = adv(AW, S_DELTA) + "\n" + adv(AW + 1, S_DELTA)
            fill[(6, 2)] = adv(AW + 2, S_DELTA) + f"\ns_add_u32 m0, m0, 4"; fill[(7, 2)] = adv(AW + 3, S_DELTA)
            fill[(0, 3)] = f"v_add_u32 v{vFP}, 4, v{vFP}"
            fpos, cpos, wpos = (1, 3), (3, 0), (7, 2)
            if par == 0:
                fill[(3, 2)] = xring[0]; fill[(3, 3)] = xring[1]
            else:
                fill[(3, 2)] = adv(AX, S_KW) + "\n" + adv(AX + 1, S_KW)
                fill[(7, 3)] = f"s_add_u32 s{S_CNT}, s{S_CNT}, 1\ns_cmp_lt_u32 s{S_CNT}, s{S_LMT}"
        else:
            assert D == 5
            fill[(2, 1)] = ring[0]; fill[(2, 2)] = ring[1]
            fill[(3, 1)] = adv(AW, S_DELTA); fill[(7, 1)] = adv(AW + 1, S_DELTA)
            fill[(1, 3)] = f"v_add_u32 v{vFP}, 4, v{vFP}"
            fill[(8, 3)] = f"s_add_u32 m0, m0, 4"
            fpos, cpos, wpos = (2, 3), (4, 2), (9, 2)
            if par == 0:
                fill[(8, 1)] = xring[0]; fill[(8, 2)] = xring[1]
            else:
                fill[(4, 1)] = adv(AX, S_KW) + "\n" + adv(AX + 1, S_KW)
                fill[(9, 1)] = f"s_add_u32 s{S_CNT}, s{S_CNT}, 1\ns_cmp_lt_u32 s{S_CNT}, s{S_LMT}"
        for j in range(NB):
            tags = [("w", j, par)]
            if j == 0:
                tags.append(("x", par if mlp else 0))
            if j == 5 and not mlp:
                tags.append(("x", 1))
            jn = j + D
            if jn == NB - 1:
                tags.append("flag")
            lg.wait(tags)
            acts = {0: [], 1: [], 2: [], 3: []}
            g = 0
            if jn == NB:
                acts[0].append(lambda: flag_test(None, vFD, vFP, 0, acc=48, split=True))
                g = 1
            wj, wg = (jn, par) if jn < NB else (jn - NB, par ^ 1)
            if mlp:
                acts[g].append(lambda wj=wj, wg=wg: rd_w(wj, wg, 0))
                acts[g + 1].append(lambda wj=wj, wg=wg: rd_w(wj, wg, 1))
                g += 2
            else:
                acts[g].append(lambda wj=wj, wg=wg: rd_w(wj, wg, 0))
                g += 1
            for n_, (ks, T) in enumerate(xreads(par, j)):
                acts[min(g + n_, 3)].append(lambda ks=ks, T=T: rd_x(ks, T))
            for T in range(4):
                mf(j, T, par)
                for f in acts[T]:
                    f()
                if (j, T) in fill:
                    A(fill[(j, T)])
                if (j, T) == fpos:
                    A(f"ds_read_b32 v{vFD}, v{vFP}")
                    lg.issue("flag")
                if (j, T) == cpos:
                    A(f"v_cmp_ne_u32 vcc, s{S_K}, v{vFD}")
                if (j, T) == wpos:
                    A(f"buffer_load_dword v{VZ}, s[{SRD_F}:{SRD_F+3}], 0 offen lds")
    A(f"s_cbranch_scc1 {lbl}")
    lfin = A.newlabel("L_g1e")
    A(f"s_cmp_eq_u32 s{S_CNT}, 10\ns_cbranch_scc1 {lfin}")
    if PA:
        lw_ = A.newlabel("L_g1w")
        A(f"s_cmp_lg_u32 s{S_CNT}, {PA}\ns_cbranch_scc1 {lw_}")
        if TS == 1:
            ts(30, 2)
        A(f"s_mov_b32 s{S_FR}, m0")
        nonce_load()
        A(f"s_mov_b64 s[{S_M0}:{S_M0+1}], s[{S_T0}:{S_T0+1}]\ns_mov_b64 s[{S_M1}:{S_M1+1}], s[{S_T0+2}:{S_T0+3}]")
        if OPT.get("tw", 3) == 2 and mlp:
            touch_w2(251)
        if mlp:
            by_wave(mlp_rows_loads, mlp_cs_loads)
        else:
            ssm_rows_loads()
        A(f"""s_mov_b64 s[{S_T0}:{S_T0+1}], s[{S_M0}:{S_M0+1}]
        s_mov_b64 s[{S_T0+2}:{S_T0+3}], s[{S_M1}:{S_M1+1}]
        s_mov_b32 m0, s{S_FR}
        s_mov_b32 s{S_LMT}, {PB}""")
        if TS == 1:
            A(f"s_memrealtime s[{S_TS}:{S_TS+1}]\ns_sleep 2\nv_writelane_b32 v255, s{S_TS}, 31")
        A(f"s_branch {lbl}")
        A.label(lw_)
    if TS == 1:
        ts(32, 2)
    nonce_ready()
    if mlp:
        by_wave(mlp_rows_work, mlp_cs_work)
        if OPT.get("tw", 3) == 3:
            A(f"s_mov_b64 s[{S_M0}:{S_M0+1}], s[{S_T0}:{S_T0+1}]\ns_mov_b64 s[{S_M1}:{S_M1+1}], s[{S_T0+2}:{S_T0+3}]")
            touch_w2(251)
            A(f"s_mov_b64 s[{S_T0}:{S_T0+1}], s[{S_M0}:{S_M0+1}]\ns_mov_b64 s[{S_T0+2}:{S_T0+3}], s[{S_M1}:{S_M1+1}]")
    else:
        ssm_rows_work()
    if TS == 1:
        ts(33, 2)
    A(f"s_mov_b32 s{S_LMT}, 10\ns_branch {lbl}")
    A.label(lfin)
    assert lg.q == entry[len(entry) - len(lg.q):]
    return lg, entry, AX, AW

G2_B = 96
G2_A = 128
NS2, SL2 = 9, 16384
def g2slot(s):
    return (s % NS2) * SL2

def rot_next(s, stepA, stepB, baseB):
    if s == 11:
        A(f"s_mul_i32 s{S_KB}, s{S_R2B}, {stepB}")
        if baseB:
            A(f"s_add_u32 s{S_KB}, s{S_KB}, {baseB}")
    elif s < 11:
        A(f"""s_add_u32 s{S_KB}, s{S_KB}, {stepA}
        s_cmp_eq_u32 s{S_KB}, {12*stepA}
        s_cselect_b32 s{S_KB}, 0, s{S_KB}""")
    elif s < 21:
        A(f"""s_add_u32 s{S_KB}, s{S_KB}, {stepB}
        s_cmp_eq_u32 s{S_KB}, {baseB+10*stepB}
        s_cselect_b32 s{S_KB}, {baseB}, s{S_KB}""")

def gemm2_compute(NT):
    NH = NT // 2
    DA = 3 if NT == 6 else OPT.get("DA2", 5)
    RED = 4 * SL2
    GB, GA_ = 48, 112
    vW, vC, vB = 204, 208, 212
    vA = 220
    vT = 224
    vFA, vFP, vFV, vFD, vG = 232, 233, 234, 235, 236
    X, ST, DK, TT = 128, 140, 148, 156
    A(f"""s_lshl_b32 s{S_T0}, s{S_T0}, 5
    s_add_u32 s{S_T0}, s{S_T0}, s{S_T0+1}
    s_lshl_b32 s{S_T0}, s{S_T0}, 2
    s_add_u32 s{S_T0+3}, s{S_T0}, {WS_FLAG}
    s_and_b32 s{S_T0+4}, s{S_WAVE}, 1
    s_mul_i32 s{S_T0+4}, s{S_T0+4}, {NH}
    s_add_u32 s{S_T0+4}, s{S_T0+4}, s{S_TG}            ; first row tile of this wave
    s_and_b32 s{S_T0+5}, s{S_WAVE}, 2""")
    A(f"""s_lshl_b32 s{S_T0}, s{S_T0+4}, 4
    v_and_b32 v{vT}, 15, v{VL}
    v_add_u32 v{vT}, s{S_T0}, v{vT}                    ; row
    v_lshrrev_b32 v{vT+1}, 4, v{VL}
    s_lshl_b32 s{S_T0+1}, s{S_T0+5}, 4
    s_add_u32 s{S_T0+1}, s{S_T0+1}, s{S_DCOL}
    v_lshl_add_u32 v{vT+1}, v{vT+1}, 2, s{S_T0+1}      ; column
    v_mul_u32_u24 v{vT+2}, 640, v{vT}
    v_add_u32 v{vT+2}, v{vT+2}, v{vT+1}
    v_lshlrev_b32 v{vT+3}, 2, v{vT+2}
    v_lshlrev_b32 v{vT+2}, 1, v{vT+2}
    v_lshlrev_b32 v{vT+1}, 1, v{vT+1}
    v_lshlrev_b32 v{vT+4}, 3, v{vT}
    v_add_u32 v{vT+4}, {WS_STAT}, v{vT+4}""")
    for Tp in range(NH):
        for U in range(2):
            A(f"global_load_dwordx2 v[{X+4*Tp+2*U}:{X+4*Tp+2*U+1}], v{vT+2}, s[{S_X}:{S_X+1}] offset:{32*U}")
        if Tp < NH - 1:
            A(f"v_add_u32 v{vT+2}, {16*1280}, v{vT+2}")
    for U in range(2):
        A(f"global_load_dwordx2 v[{DK+4*U}:{DK+4*U+1}], v{vT+1}, s[{S_DSK}:{S_DSK+1}] offset:{32*U}")
    def stat_loads_():
        for Tp in range(NH):
            A(f"global_load_dwordx2 v[{ST+2*Tp}:{ST+2*Tp+1}], v{vT+4}, s[{S_WS}:{S_WS+1}] offset:{128*Tp} sc1")
    stat_loads_()
    A(f"""v_lshrrev_b32 v{vT}, 4, v{VL}               ; q
    v_bfe_u32 v{vT+1}, v{VL}, 2, 2                     ; rr
    v_lshl_add_u32 v{vT+1}, v{vT}, 2, v{vT+1}          ; 4q + rr
    v_bfe_u32 v{vT+5}, v{vT+1}, 1, 2                   ; swizzle
    s_lshl_b32 s{S_T0}, s{S_T0+5}, 5
    v_add_u32 v{vT+1}, s{S_T0}, v{vT+1}
    v_lshlrev_b32 v{vT+1}, 7, v{vT+1}
    v_and_b32 v{vT+2}, 3, v{VL}
    v_lshl_add_u32 v{vT+1}, v{vT+2}, 3, v{vT+1}
    v_and_b32 v{vT+2}, 1, v{vT}
    s_lshl_b32 s{S_T0}, s{S_T0+5}, 1
    v_add_u32 v{vT+2}, s{S_T0}, v{vT+2}
    v_bfe_u32 v{vT+6}, v{VL}, 1, 3
    v_xor_b32 v{vT+2}, v{vT+2}, v{vT+6}
    v_lshrrev_b32 v{vT}, 1, v{vT}
    v_lshlrev_b32 v{vT}, 13, v{vT}
    v_lshl_add_u32 v{vT}, v{vT+2}, 4, v{vT}
    v_and_b32 v{vT+6}, 15, v{VL}
    v_lshl_add_u32 v{vT}, v{vT+6}, 7, v{vT}""")
    for Up in range(4):
        A(f"""s_xor_b32 s{S_T0}, s{S_T0+5}, {Up}
        v_xor_b32 v{vT+2}, s{S_T0}, v{vT+5}
        v_lshl_add_u32 v{vW+Up}, v{vT+2}, 5, v{vT+1}
        s_lshl_b32 s{S_T0}, s{S_T0}, 11
        v_add_u32 v{vC+Up}, s{S_T0}, v{vT}""")
    A(f"v_lshlrev_b32 v{vT}, 4, v{VL}\ns_lshl_b32 s{S_T0+1}, s{S_HB2}, 2\ns_sub_u32 s{S_T0+1}, s{S_T0+4}, s{S_T0+1}")
    for Tp in range(NH):
        A(f"""s_add_u32 s{S_T0}, s{S_T0+1}, {Tp}
        s_lshr_b32 s{S_T0+2}, s{S_T0}, 2
        s_mul_i32 s{S_T0+2}, s{S_T0+2}, {88*4-4}
        s_add_u32 s{S_T0}, s{S_T0}, s{S_T0+2}
        s_lshl_b32 s{S_T0}, s{S_T0}, 10
        v_add_u32 v{vA+Tp}, s{S_T0}, v{vT}""")
    A(f"""s_mul_i32 s{S_T0}, s{S_HB2}, {88*4096}
    s_lshl_b32 s{S_T0+1}, s{S_T0+5}, 12
    s_add_u32 s{S_T0}, s{S_T0}, s{S_T0+1}
    s_add_u32 s{S_T0}, s{S_T0}, {WS_ACT}
    s_add_u32 s{SRD_T}, s{S_WS}, s{S_T0}
    s_addc_u32 s{SRD_T+1}, s{S_WS+1}, 0
    s_mov_b32 s{SRD_T+2}, {(88+86)*4096}
    s_mov_b32 s{SRD_T+3}, 0x20000
    s_lshl_b32 s{S_KB}, s{S_R2A}, 14""")
    lr, lo = A.newlabel("L_fl"), A.newlabel("L_fl")
    A(f"""s_lshl_b32 s{S_T0}, s{S_HB2}, 7
    s_add_u32 s{S_T0}, s{S_T0}, {WS_FLAG}
    v_and_b32 v{vFA}, {63 if NT == 6 else 31}, v{VL}
    v_lshlrev_b32 v{vFA}, 2, v{vFA}
    v_add_u32 v{vFA}, s{S_T0}, v{vFA}
    s_lshr_b32 s{S_T0+1}, s{S_WAVE}, 1
    s_lshl_b32 s{S_T0+1}, 0x555555, s{S_T0+1}
    v_mov_b32 v{vT}, s{S_T0+3}
    v_mov_b32 v{vT+1}, s{S_NONCE}
    s_waitcnt vmcnt({3*NH+2})
    s_mov_b64 exec, 1
    global_store_dword v{vT}, v{vT+1}, s[{S_WS}:{S_WS+1}] sc1
    s_mov_b64 exec, -1""")
    ts(6, 2)
    ls, lk = A.newlabel("L_st"), A.newlabel("L_st")
    A("s_waitcnt vmcnt(1)")
    A.label(ls)
    A(f"s_mov_b64 s[{S_M0}:{S_M0+1}], 0")
    for Tp in range(NH):
        A(f"v_cmp_ne_u32 vcc, s{S_NONCE}, v{ST+2*Tp+1}\ns_nop 1\ns_or_b64 s[{S_M0}:{S_M0+1}], s[{S_M0}:{S_M0+1}], vcc")
    A(f"s_cmp_eq_u64 s[{S_M0}:{S_M0+1}], 0\ns_cbranch_scc1 {lk}")
    stat_loads_()
    A("s_waitcnt vmcnt(0)")
    spin_tail(ls, lk, 1)
    A.label(lk)
    def unpack(dst, src):
        A(f"""v_and_b32 v{dst+3}, 0xffff0000, v{src+1}
        v_lshlrev_b32 v{dst+2}, 16, v{src+1}
        v_and_b32 v{dst+1}, 0xffff0000, v{src}
        v_lshlrev_b32 v{dst}, 16, v{src}""")
    def rnd(r, t):
        A(f"""v_cvt_pk_bf16_f32 v{t}, v{r}, v{r+1}
        v_cvt_pk_bf16_f32 v{t+1}, v{r+2}, v{r+3}""")
        unpack(r, t)
    unpack(DK, DK)
    unpack(DK + 4, DK + 4)
    for Tp in range(NH):
        st_ = ST + 2 * Tp
        A(f"""v_and_b32 v{st_+1}, 0xffff0000, v{st_}
        v_lshlrev_b32 v{st_}, 16, v{st_}
        v_rcp_f32 v{st_+1}, v{st_+1}""")
        for U in range(2):
            acc = (U * NH + Tp) * 4
            unpack(acc, X + 4 * Tp + 2 * U)
            for h in (0, 2):
                A(f"v_pk_add_f32 v[{TT+h}:{TT+h+1}], v[{acc+h}:{acc+h+1}], v[{st_}:{st_+1}] op_sel_hi:[1,0] neg_lo:[0,1] neg_hi:[0,1]")
            rnd(TT, TT + 4)
            for h in (0, 2):
                A(f"v_pk_mul_f32 v[{TT+h}:{TT+h+1}], v[{TT+h}:{TT+h+1}], v[{st_}:{st_+1}] op_sel:[0,1] op_sel_hi:[1,1]")
            rnd(TT, TT + 4)
            for h in (0, 2):
                A(f"v_pk_mul_f32 v[{TT+h}:{TT+h+1}], v[{TT+h}:{TT+h+1}], v[{DK+4*U+h}:{DK+4*U+h+1}]")
            rnd(TT, TT + 4)
            for h in (0, 2):
                A(f"v_pk_add_f32 v[{acc+h}:{acc+h+1}], v[{acc+h}:{acc+h+1}], v[{TT+h}:{TT+h+1}]")
    A.label(lr)
    A(f"""global_load_dword v{vG}, v{vFA}, s[{S_WS}:{S_WS+1}] sc1
    s_waitcnt vmcnt(0)
    v_cmp_eq_u32 vcc, s{S_NONCE}, v{vG}
    s_nop 1
    s_and_b32 s{S_T0+2}, vcc_lo, vcc_hi
    s_and_b32 s{S_T0+2}, s{S_T0+2}, s{S_T0+1}
    s_cmp_eq_u32 s{S_T0+2}, s{S_T0+1}
    s_cbranch_scc1 {lo}""")
    spin_tail(lr, lo, 2)
    A.label(lo)
    ts(7, 2)
    tc(14)
    if TS:
        A("s_mov_b32 s48, 0\ns_mov_b32 s49, 0")
    vm = Queue(A, "vmcnt", 63)
    A(f"s_add_u32 s{S_T0+4}, s{S_KB}, 4096\nv_lshlrev_b32 v{vFA}, 4, v{VL}\nv_add_u32 v{vFA}, {AUX}, v{vFA}")
    def ldA1(s, i):
        u, Tp = i // NH, i % NH
        b = GA_ + ((s % DA) * NT + i) * 4
        A(f"buffer_load_dwordx4 v[{b}:{b+3}], v{vA+Tp}, s[{SRD_T}:{SRD_T+3}], s{S_T0+4 if u else S_KB} offen sc1")
        vm.issue(("a", s))
        if i == NT - 1:
            rot_next(s, 16384, 16384, 12 * 16384)
            if s < 21:
                A(f"s_add_u32 s{S_T0+4}, s{S_KB}, 4096")
    def ldA(s):
        for i in range(NT):
            ldA1(s, i)
    def rdB(s, j):
        u, U = j // 4, j % 4
        b = GB + (s % 2) * 32 + j * 4
        if s < 12:
            A(f"ds_read_b64_tr_b16 v[{b}:{b+1}], v{vB+U} offset:{4096*u}")
            A(f"ds_read_b64_tr_b16 v[{b+2}:{b+3}], v{vB+U} offset:{4096*u+2048}")
        else:
            A(f"ds_read_b128 v[{b}:{b+3}], v{vB+j}")
    def setB(s, us=range(4)):
        for U in us:
            A(f"v_add_u32 v{vB+U}, {g2slot(s)}, v{(vW if s < 12 else vC)+U}")
    def setB2(s, us=range(4)):
        if s >= 12:
            for U in us:
                A(f"v_xor_b32 v{vB+4+U}, 32, v{vB+U}")
    assert GA_ + DA * NT * 4 <= vW
    peer_addr(vFP, FLG)
    R0 = OPT.get("ramp", 2) if NT == 6 else DA - 1
    st = {"nxt": R0}
    for s in range(R0):
        ldA(s)
    A(f"v_mov_b32 v{vFV}, s{S_K}")
    flag_wait(22, vFD, vFP)
    setB(0)
    for j in range(8):
        rdB(0, j)
    A(f"ds_read_b32 v{vFD}, v{vFP} offset:{4*23}")
    GATE = 12 - (DA - 1)
    def stage(s, limit):
        A(f"s_waitcnt lgkmcnt({1 if s else 0})")
        if TS == 2:
            ts(16 + s, 2)
        if TS == 3:
            A(f"s_memtime s[{S_TS}:{S_TS+1}]\ns_waitcnt lgkmcnt(0)\ns_mov_b32 s50, s{S_TS}")
        vm.wait(("a", s))
        if TS == 3:
            A(f"s_memtime s[{S_TS}:{S_TS+1}]\ns_waitcnt lgkmcnt(0)\ns_sub_u32 s50, s{S_TS}, s50\nv_writelane_b32 v255, s50, {16+s}\nv_writelane_b32 v255, s{S_TS}, {40+s}")
        todo = []
        while st["nxt"] <= min(limit, s - 1 + DA, 21) and len(todo) < 2 * NT:
            todo += [(st["nxt"], i) for i in range(NT)]
            st["nxt"] += 1
        acts = []
        if s < 21:
            acts.append(lambda: (A(f"v_cmp_ne_u32 vcc, s{S_K}, v{vFD}"), setB(s + 1, (0,))))
            acts.append(lambda: setB(s + 1, (1, 2)))
            acts.append(lambda: (flag_test(23 + s, vFD, vFP, 4 * (23 + s), split=True, acc=48), setB(s + 1, (3,))))
            for j in range(8):
                acts.append(lambda j=j: (rdB(s + 1, j), setB2(s + 1, (j,)) if j < 4 else None))
        if s < 20:
            acts.append(lambda: A(f"ds_read_b32 v{vFD}, v{vFP} offset:{4*(24+s)}"))
        if s == GATE - 1:
            acts.append(lambda: A(f"ds_read_b32 v{vG}, v{vFA}"))
        acts.append(lambda: A(f"ds_write_b32 v{VFO}, v{vFV} offset:{4*(21+s)}"))
        lds = [lambda x=x: ldA1(*x) for x in todo]
        nm = 4 * NT
        sched = {i: [] for i in range(nm)}
        per = -(-len(acts) // max(nm - 2, 1))
        for i, f in enumerate(acts):
            sched[i // per].append(f)
        first = OPT.get("lf", 12) if NT == 6 else 0
        for i, f in enumerate(lds):
            sched[min(first + i * (nm - first) // len(lds), nm - 1)].append(f)
        n = 0
        for u in range(2):
            for U in range(4):
                for Tp in range(NH):
                    acc = (U * NH + Tp) * 4
                    w = GB + (s % 2) * 32 + (u * 4 + U) * 4
                    a = GA_ + ((s % DA) * NT + u * NH + Tp) * 4
                    cin = "0" if (s == 0 and u == 0 and U >= 2) else f"v[{acc}:{acc+3}]"
                    A(f"v_mfma_f32_16x16x32_bf16 v[{acc}:{acc+3}], v[{w}:{w+3}], v[{a}:{a+3}], {cin}")
                    for f in sched[n]:
                        f()
                    n += 1
    llate, ljoin = A.newlabel("L_late"), A.newlabel("L_join")
    for s in range(22):
        if s == GATE:
            assert st["nxt"] == 12
            A("s_waitcnt lgkmcnt(1)")
            A(f"v_cmp_le_u32 vcc, 3, v{vG}\ns_cbranch_vccz {llate}")
            keep = list(vm.q)
            mark = len(A.lines)
            A.label(llate)
            for s2_ in range(GATE, 12):
                stage(s2_, 11)
            lr, lo = A.newlabel("L_fs"), A.newlabel("L_fs")
            A.label(lr)
            A(f"""ds_read_b32 v{vG}, v{vFA}
            s_waitcnt lgkmcnt(0)
            v_cmp_le_u32 vcc, 3, v{vG}
            s_cbranch_vccnz {lo}""")
            spin_tail(lr, lo, 1)
            A.label(lo)
            vm.q = []
            for s2_ in range(12, 12 + DA - 1):
                ldA(s2_)
            A(f"s_branch {ljoin}")
            late_q = list(vm.q)
            SLOW.extend(A.lines[mark:])
            del A.lines[mark:]
            vm.q = keep
            st["nxt"] = 12
        if s == 12:
            A.label(ljoin)
            assert vm.q[-NT*(DA-1):] == late_q and st["nxt"] == 12 + DA - 1
        stage(s, 21)
    ts(8, 2)
    tc(15)
    if TS == 3:
        A("v_writelane_b32 v255, s48, 62\nv_writelane_b32 v255, s49, 63")
    flag_wait(35, vFD, vFP, 2048)
    A(f"""v_lshlrev_b32 v{vB}, 4, v{VL}
    s_mul_i32 s{S_T0}, s{S_WAVE}, {NT*1024}
    s_add_u32 s{S_T0}, s{S_T0}, {RED}
    v_add_u32 v{vB+1}, s{S_T0}, v{vB}
    s_xor_b32 s{S_T0}, s{S_WAVE}, 2
    s_mul_i32 s{S_T0}, s{S_T0}, {NT*1024}
    s_add_u32 s{S_T0}, s{S_T0}, {RED}
    v_add_u32 v{vB}, s{S_T0}, v{vB}""")
    for i in range(NT):
        acc = (NT + i) * 4
        A(f"ds_write_b128 v{vB+1}, v[{acc}:{acc+3}] offset:{i*1024}")
    A("s_waitcnt lgkmcnt(0)\ns_barrier")
    for i in range(NT):
        b = (NT + i) * 4
        A(f"ds_read_b128 v[{b}:{b+3}], v{vB} offset:{i*1024}")
    order = [(Tp, U) for Tp in range(NH) for U in range(2)]
    A("s_waitcnt lgkmcnt(0)")
    for Tp, U in order:
        i = U * NH + Tp
        a0, a1 = i * 4, (NT + i) * 4
        for h in (0, 2):
            A(f"v_pk_add_f32 v[{a0+h}:{a0+h+1}], v[{a0+h}:{a0+h+1}], v[{a1+h}:{a1+h+1}]")
        A(f"global_store_dwordx4 v{vT+3}, v[{a0}:{a0+3}], s[{S_OUT}:{S_OUT+1}] offset:{64*U}{['', ' sc1', ' nt', ' sc0 sc1'][OPT.get('omod', 2)]}")
        if U == 1 and Tp < NH - 1:
            A(f"v_add_u32 v{vT+3}, {16*2560}, v{vT+3}")
    ts(9, 2)
    ts_flush(200)
    A("s_endpgm")
    flush_slow()

def publish_flag(idx_code):
    A(f"""s_lshl_b32 s{S_T0}, s{S_T0}, 5
    s_add_u32 s{S_T0}, s{S_T0}, s{S_T0+1}
    s_lshl_b32 s{S_T0}, s{S_T0}, 2
    s_add_u32 s{S_T0}, s{S_T0}, {WS_FLAG}
    v_mov_b32 v250, s{S_T0}
    v_mov_b32 v251, s{S_NONCE}
    s_waitcnt vmcnt({idx_code})
    s_mov_b64 exec, 1
    global_store_dword v250, v251, s[{S_WS}:{S_WS+1}] sc1
    s_mov_b64 exec, -1""")

A.label("L_compute")
A(f"s_setprio {OPT.get('pc1', 2)}")
if OPT.get("pfc", 1):
    A(f"""s_cmp_lg_u32 s{S_WAVE}, 3
    s_cbranch_scc1 L_pcd
    s_getpc_b64 s[{S_M0}:{S_M0+1}]
    L_pcc:
    s_sub_u32 s{S_M0}, s{S_M0}, L_pcc-L_code_start
    s_subb_u32 s{S_M0+1}, s{S_M0+1}, 0
    s_lshl_b32 s{S_T0}, s{S_IDX}, 11
    v_and_b32 v2, 15, v{VL}
    v_lshlrev_b32 v2, 7, v2
    v_add_u32 v2, s{S_T0}, v2
    v_min_u32 v2, L_code_end-L_code_start-8, v2
    global_load_dword v247, v2, s[{S_M0}:{S_M0+1}]
    L_pcd:""")
A(f"s_waitcnt lgkmcnt(0)\ns_load_dword s{S_K}, s[{S_X}:{S_X+1}], 0")
srd(SRD_F, S_X, 4)
flag_init(FREE, S_WAVE, 248, FLG, None)
A(f"s_mov_b32 s{S_FR}, s{S_T0}")
late_scalars()
A(f"s_cmp_eq_u32 s{S_J}, 0\ns_cbranch_scc1 L_ssm_compute")
if OPT.get("tw", 3) == 1:
    touch_w2(251)
A('v_mov_b32 v249, 0')
if PA == 0:
    by_wave(mlp_rows_loads, mlp_cs_loads)
zero_regs(0, 128)()
rowpat_read(192, 198)
A(f"""s_and_b32 s{S_T0}, s{S_WAVE}, 1
s_lshl_b32 s{S_T0}, s{S_T0}, 13
v_add_u32 v192, s{S_T0}, v192
v_xor_b32 v193, 64, v192
v_lshrrev_b32 v198, 4, v{VL}              ; q
v_bfe_u32 v199, v{VL}, 2, 2               ; rr
v_and_b32 v160, 1, v198
v_lshl_add_u32 v160, v160, 2, v199        ; swizzle s
v_lshl_add_u32 v198, v198, 3, v199        ; k row
v_lshlrev_b32 v198, 8, v198
v_and_b32 v199, 3, v{VL}
v_lshl_add_u32 v198, v199, 3, v198
v_add_u32 v198, {WRING}, v198
s_lshr_b32 s{S_T0}, s{S_WAVE}, 1
s_lshl_b32 s{S_T0}, s{S_T0}, 2""")
for F in range(4):
    A(f"""s_add_u32 s{S_T0+1}, s{S_T0}, {F}
    v_xor_b32 v199, s{S_T0+1}, v160
    v_lshl_add_u32 v{194+F}, v199, 5, v198""")
ts(1, 2)
lg, entry, AX, AW = gemm1_loop("mlp")
A("s_waitcnt lgkmcnt(0)")
ts(3, 2)
tc(13)
if TS:
    A("v_writelane_b32 v255, s48, 10\nv_writelane_b32 v255, s49, 11")
if OPT.get("solo", 0):
    ts_flush(100)
    A("s_endpgm")
A(f"s_setprio {OPT.get('pc2', 3)}")
ER = 128
EC = 144
A(f"""s_and_b32 s{S_T0}, s{S_WAVE}, 1
s_lshl_b32 s{S_T0}, s{S_T0}, 10
s_add_u32 s{S_T0}, s{S_T0}, {M_ROW}
v_and_b32 v192, 15, v{VL}
v_lshlrev_b32 v192, 4, v192
v_add_u32 v192, s{S_T0}, v192
s_lshr_b32 s{S_T0}, s{S_WAVE}, 1
s_lshl_b32 s{S_T0}, s{S_T0}, 8
s_add_u32 s{S_T0}, s{S_T0}, {M_CS}
v_lshrrev_b32 v193, 4, v{VL}
v_lshlrev_b32 v193, 4, v193
v_add_u32 v193, s{S_T0}, v193""")
for T in range(4):
    A(f"ds_read_b128 v[{ER+4*T}:{ER+4*T+3}], v192 offset:{256*T}")
for F in range(4):
    for c in range(2):
        b = EC + (F * 2 + c) * 4
        A(f"ds_read_b128 v[{b}:{b+3}], v193 offset:{c*512+F*64}")
A(f"""s_lshl_b32 s{S_T0}, s{S_C}, 1
s_and_b32 s{S_T0+1}, s{S_WAVE}, 1
s_add_u32 s{S_T0}, s{S_T0}, s{S_T0+1}
s_mul_i32 s{S_T0}, s{S_T0}, 88
s_lshl_b32 s{S_T0+1}, s{S_CB}, 2
s_add_u32 s{S_T0}, s{S_T0}, s{S_T0+1}
s_and_b32 s{S_T0+1}, s{S_WAVE}, 2
s_add_u32 s{S_T0}, s{S_T0}, s{S_T0+1}
s_lshl_b32 s{S_T0}, s{S_T0}, 12
s_add_u32 s{S_T0}, s{S_T0}, {WS_ACT}
v_lshlrev_b32 v194, 4, v{VL}
v_add_u32 v194, s{S_T0}, v194
v_add_u32 v195, 4096, v194
s_waitcnt lgkmcnt(0)""")
if TS == 1:
    ts(16, 2)
ET = 176
EO = 184
n = 0
for u in range(2):
    for T in range(4):
        m = ER + 4 * T
        prs = []
        for F in (2 * u, 2 * u + 1):
            for h in (0, 2):
                g = ((F * 2 + 0) * 4 + T) * 4 + h
                up = ((F * 2 + 1) * 4 + T) * 4 + h
                prs.append((g, up, EC + (F * 2) * 4 + h, EC + (F * 2 + 1) * 4 + h))
        for i, (g, up, cg, cu) in enumerate(prs):
            A(f"v_pk_fma_f32 v[{g}:{g+1}], v[{cg}:{cg+1}], v[{m}:{m+1}], v[{g}:{g+1}] op_sel_hi:[1,0,1] neg_lo:[0,1,0] neg_hi:[0,1,0]")
        for i, (g, up, cg, cu) in enumerate(prs):
            e = ET + 2 * i
            A(f"v_pk_mul_f32 v[{e}:{e+1}], v[{g}:{g+1}], v[{m}:{m+1}] op_sel:[0,1] op_sel_hi:[1,1]")
        for i, (g, up, cg, cu) in enumerate(prs):
            e = ET + 2 * i
            A(f"v_exp_f32 v{e}, v{e}\nv_exp_f32 v{e+1}, v{e+1}")
            A(f"v_pk_fma_f32 v[{up}:{up+1}], v[{cu}:{cu+1}], v[{m}:{m+1}], v[{up}:{up+1}] op_sel_hi:[1,0,1] neg_lo:[0,1,0] neg_hi:[0,1,0]")
        for i, (g, up, cg, cu) in enumerate(prs):
            e = ET + 2 * i
            A(f"v_pk_fma_f32 v[{e}:{e+1}], v[{e}:{e+1}], v[{m+2}:{m+3}], v[{m+2}:{m+3}] op_sel_hi:[1,0,0]")
        for i, (g, up, cg, cu) in enumerate(prs):
            e = ET + 2 * i
            A(f"v_rcp_f32 v{e}, v{e}\nv_rcp_f32 v{e+1}, v{e+1}")
            A(f"v_pk_mul_f32 v[{g}:{g+1}], v[{g}:{g+1}], v[{up}:{up+1}]")
        for i, (g, up, cg, cu) in enumerate(prs):
            e = ET + 2 * i
            A(f"v_pk_mul_f32 v[{g}:{g+1}], v[{g}:{g+1}], v[{e}:{e+1}]")
        o = EO + 4 * (n % 2)
        for i, (g, up, cg, cu) in enumerate(prs):
            A(f"v_cvt_pk_bf16_f32 v{o+i}, v{g}, v{g+1}")
        if TS == 1 and n % 2 == 0:
            ts(17 + n, 2)
        if not OPT.get("nost", 0):
            A(f"global_store_dwordx4 v{194+u}, v[{o}:{o+3}], s[{S_WS}:{S_WS+1}] offset:{1024*T} sc1")
        if TS == 1 and n % 2 == 0:
            ts(18 + n, 2)
        n += 1
ts(4, 2)
A(f"""s_lshl_b32 s{S_T0}, s{S_C}, 1
s_and_b32 s{S_T0+1}, s{S_WAVE}, 1
s_add_u32 s{S_T0}, s{S_T0}, s{S_T0+1}
s_lshl_b32 s{S_T0+1}, s{S_CB}, 1
s_lshr_b32 s{S_T0+2}, s{S_WAVE}, 1
s_add_u32 s{S_T0+1}, s{S_T0+1}, s{S_T0+2}""")
gemm2_compute(6)

A.label("L_ssm_compute")
if PA == 0:
    ssm_rows_loads()
zero_regs(0, 160)()
rowpat_read(232, 160)
A(f"""s_lshr_b32 s{S_T0}, s{S_WAVE}, 1
s_mul_i32 s{S_T0}, s{S_T0}, 10240
s_add_u32 s{S_T0}, s{S_T0}, {WRING}
v_add_u32 v234, s{S_T0}, v232
v_xor_b32 v235, 64, v234
s_and_b32 s{S_T0}, s{S_WAVE}, 1
s_lshl_b32 s{S_T0}, s{S_T0}, 13
v_add_u32 v232, s{S_T0}, v232
v_xor_b32 v233, 64, v232""")
ts(1, 2)
lg, entry, AX, AW = gemm1_loop("ssm")
A("s_waitcnt lgkmcnt(0)")
ts(3, 2)
tc(13)
if TS:
    A("v_writelane_b32 v255, s48, 10\nv_writelane_b32 v255, s49, 11")
if OPT.get("solo", 0):
    ts_flush(100)
    A("s_endpgm")
A(f"s_setprio {OPT.get('pc2', 3)}")
def acc(G, c, m, r=0):
    return ((G * 2 + c) * 4 + m) * 4 + r
SM, SR_ = 160, 176
SCS = 192
SLAM = 202
SK = 212
SA = 222
A(f"""s_and_b32 s{S_T0}, s{S_WAVE}, 1
s_lshl_b32 s{S_T0}, s{S_T0}, 8
s_add_u32 s{S_T0}, s{S_T0}, {M_ROW}
v_lshrrev_b32 v{SA}, 4, v{VL}
v_lshlrev_b32 v{SA}, 4, v{SA}
v_add_u32 v{SA}, s{S_T0}, v{SA}
s_lshr_b32 s{S_T0+1}, s{S_WAVE}, 1
s_mul_i32 s{S_T0+1}, s{S_T0+1}, 80
v_and_b32 v{SA+1}, 15, v{VL}
v_add_u32 v{SA+1}, s{S_T0+1}, v{SA+1}
v_lshlrev_b32 v{SA+2}, 2, v{SA+1}
v_add_u32 v{SA+3}, {M_CS}, v{SA+2}
v_lshlrev_b32 v{SA+4}, 3, v{SA+1}
v_add_u32 v{SA+4}, {M_LAM}, v{SA+4}""")
for m in range(4):
    A(f"ds_read_b128 v[{SM+4*m}:{SM+4*m+3}], v{SA} offset:{64*m}")
    A(f"ds_read_b128 v[{SR_+4*m}:{SR_+4*m+3}], v{SA} offset:{512+64*m}")
for G in range(5):
    A(f"ds_read_b32 v{SCS+2*G}, v{SA+3} offset:{64*G}")
    A(f"ds_read_b32 v{SCS+2*G+1}, v{SA+3} offset:{640+64*G}")
for G in range(5):
    A(f"ds_read_b64 v[{SLAM+2*G}:{SLAM+2*G+1}], v{SA+4} offset:{128*G}")
    A(f"ds_read_b64 v[{SK+2*G}:{SK+2*G+1}], v{SA+4} offset:{M_COEF-M_LAM+128*G}")
A(f"""s_and_b32 s{S_T0}, s{S_WAVE}, 1
s_mul_i32 s{S_T0}, s{S_T0}, {8*1280}
s_add_u32 s{S_T0}, s{S_T0}, {E_BASE}
v_lshrrev_b32 v{SA+5}, 4, v{VL}
v_mul_u32_u24 v{SA+5}, 2560, v{SA+5}
v_lshl_add_u32 v{SA+5}, v{SA+2}, 1, v{SA+5}
v_add_u32 v{SA+5}, s{S_T0}, v{SA+5}
v_add_u32 v{SA+7}, 1280, v{SA+5}
s_waitcnt lgkmcnt(0)""")
def pk(op, d, a, b, c=None, sa=None, sb=None, sc=None, neg=None):
    ops = [a, b] + ([c] if c is not None else [])
    sel = [sa, sb] + ([sc] if c is not None else [])
    lo = [0 if s is None else s for s in sel]
    hi = [1 if s is None else s for s in sel]
    t = f"v_pk_{op}_f32 v[{d}:{d+1}], " + ", ".join(f"v[{o}:{o+1}]" for o in ops)
    t += " op_sel:[" + ",".join(map(str, lo)) + "] op_sel_hi:[" + ",".join(map(str, hi)) + "]"
    if neg is not None:
        nn = [1 if i == neg else 0 for i in range(len(ops))]
        t += " neg_lo:[" + ",".join(map(str, nn)) + "] neg_hi:[" + ",".join(map(str, nn)) + "]"
    A(t)
for m in range(4):
    for h in (0, 2):
        for G in range(5):
            for c in range(2):
                a = acc(G, c, m, h)
                pk("fma", a, SM + 4 * m + h, SCS + 2 * G, a, sb=c, neg=1)
        for G in range(5):
            for c in range(2):
                a = acc(G, c, m, h)
                pk("mul", a, a, SR_ + 4 * m + h)
steps = [(m, h) for m in range(4) for h in (0, 2)]
for k in range(1, 8):
    (m, h), (pm, ph) = steps[k], steps[k - 1]
    for G in range(5):
        pk("fma", acc(G, 0, m, h), acc(G, 0, pm, ph), SLAM + 2 * G, acc(G, 0, m, h), sb=0)
        pk("fma", acc(G, 1, m, h), acc(G, 1, pm, ph), SLAM + 2 * G, acc(G, 1, m, h), sb=0)
    for G in range(5):
        pk("fma", acc(G, 0, m, h), acc(G, 1, pm, ph), SLAM + 2 * G, acc(G, 0, m, h), sb=1, neg=1)
        pk("fma", acc(G, 1, m, h), acc(G, 0, pm, ph), SLAM + 2 * G, acc(G, 1, m, h), sb=1)
peer_addr(248, FREE)
flag_wait(18, 250, 248)
for G in range(5):
    for e in range(2):
        A(f"ds_write2_b32 v{SA+5+2*e}, v{acc(G,0,3,2+e)}, v{acc(G,1,3,2+e)} offset0:{32*G} offset1:{32*G+1}")
A("s_waitcnt lgkmcnt(0)\ns_setprio 0\ns_barrier")
ts(4, 2)
for m, h in steps:
    for G in range(5):
        t = SM + 2 * G
        pk("mul", t, acc(G, 0, m, h), SK + 2 * G, sb=1)
    for G in range(5):
        pk("mul", acc(G, 0, m, h), acc(G, 0, m, h), SK + 2 * G, sb=0)
    for G in range(5):
        pk("fma", acc(G, 0, m, h), acc(G, 1, m, h), SK + 2 * G, acc(G, 0, m, h), sb=1)
    for G in range(5):
        t = SM + 2 * G
        pk("fma", acc(G, 1, m, h), acc(G, 1, m, h), SK + 2 * G, t, sb=0, neg=1)
A(f"""s_mul_i32 s{S_T0}, s{S_WAVE}, 12288
s_add_u32 s{S_T0}, s{S_T0}, {TR_BASE}
v_and_b32 v{SA}, 7, v{VL}
v_bfe_u32 v{SA+1}, v{VL}, 3, 1
v_lshlrev_b32 v{SA+1}, 2, v{SA+1}
v_xor_b32 v{SA}, v{SA}, v{SA+1}                ; f
v_lshrrev_b32 v{SA+1}, 4, v{VL}
v_lshlrev_b32 v{SA+1}, 1, v{SA+1}
v_xor_b32 v{SA}, v{SA}, v{SA+1}                ; (2q) ^ f
v_and_b32 v{SA+1}, 15, v{VL}
v_lshlrev_b32 v{SA+1}, 7, v{SA+1}
v_lshl_add_u32 v{SA}, v{SA}, 4, v{SA+1}
v_add_u32 v{SA}, s{S_T0}, v{SA}                ; e = 0
v_xor_b32 v{SA+1}, 16, v{SA}                   ; e = 1
v_lshrrev_b32 v{SA+2}, 4, v{VL}                ; q
v_bfe_u32 v{SA+3}, v{VL}, 2, 2                 ; rr
v_and_b32 v{SA+4}, 1, v{SA+2}
v_lshl_add_u32 v{SA+4}, v{SA+4}, 2, v{SA+3}
v_bfe_u32 v{SA+6}, v{VL}, 1, 1                 ; cc>>1
v_xor_b32 v{SA+4}, v{SA+4}, v{SA+6}
v_lshl_add_u32 v{SA+2}, v{SA+2}, 3, v{SA+3}    ; row
v_lshlrev_b32 v{SA+2}, 7, v{SA+2}
v_lshl_add_u32 v{SA+2}, v{SA+4}, 4, v{SA+2}
v_and_b32 v{SA+3}, 1, v{VL}
v_lshl_add_u32 v{SA+2}, v{SA+3}, 3, v{SA+2}
v_add_u32 v{SA+2}, s{S_T0}, v{SA+2}""")
TA = 176
for Tq in range(4):
    A(f"v_xor_b32 v{TA+2*Tq}, {32*Tq}, v{SA+2}")
    A(f"v_xor_b32 v{TA+2*Tq+1}, {(32*Tq) ^ 64}, v{SA+2}")
A(f"""s_lshl_b32 s{S_T0}, s{S_C}, 1
s_and_b32 s{S_T0+1}, s{S_WAVE}, 1
s_add_u32 s{S_T0}, s{S_T0}, s{S_T0+1}
s_mul_i32 s{S_T0}, s{S_T0}, 88
s_mul_i32 s{S_T0+1}, s{S_CB}, 10
s_add_u32 s{S_T0}, s{S_T0}, s{S_T0+1}
s_lshr_b32 s{S_T0+1}, s{S_WAVE}, 1
s_mul_i32 s{S_T0+1}, s{S_T0+1}, 5
s_add_u32 s{S_T0}, s{S_T0}, s{S_T0+1}
s_add_u32 s{S_T0}, s{S_T0}, 48
s_lshl_b32 s{S_T0}, s{S_T0}, 12
s_add_u32 s{S_T0}, s{S_T0}, {WS_ACT}
v_lshlrev_b32 v{SA+3}, 4, v{VL}
v_add_u32 v{SA+3}, s{S_T0}, v{SA+3}""")
A("s_setprio 3\ns_barrier")
ts(5, 2)
SW = 184
SW = 182
def W(G, c):
    idx = G * 2 + c
    return (160 + 2 * idx) if idx < 8 else (192 + 2 * (idx - 8))
for G in range(5):
    for c in range(2):
        for e in range(2):
            A(f"ds_read_b32 v{W(G,c)+e}, v{SA+5} offset:{e*1280+c*4+128*G}")
A("s_waitcnt lgkmcnt(0)")
lg = Queue(A, "lgkmcnt", 15)
def stores(G):
    for Tq in range(4):
        lg.wait(("t", G, Tq))
        b = G * 32 + 16 + Tq * 4
        A(f"global_store_dwordx4 v{SA+3}, v[{b}:{b+3}], s[{S_WS}:{S_WS+1}] offset:{1024*Tq} sc1")
    if G < 4:
        A(f"v_add_u32 v{SA+3}, 4096, v{SA+3}")
def corr(G):
    out = []
    for k, (m, h) in enumerate(steps):
        for c in range(2):
            out.append(lambda c=c, m=m, h=h: pk("add", acc(G, c, m, h), acc(G, c, m, h), W(G, c)))
        if k < 7:
            out.append(lambda: pk("mul", 196, W(G, 0), SLAM + 2 * G, sb=1))
            out.append(lambda: pk("mul", W(G, 0), W(G, 0), SLAM + 2 * G, sb=0))
            out.append(lambda: pk("fma", W(G, 0), W(G, 1), SLAM + 2 * G, W(G, 0), sb=1))
            out.append(lambda: pk("fma", W(G, 1), W(G, 1), SLAM + 2 * G, 196, sb=0, neg=2))
    return out
def pack(G):
    out = []
    for c in range(2):
        o = (184 if G % 2 else 232) if c == 0 else G * 32
        for e in range(2):
            for m in range(4):
                out.append(lambda o=o, c=c, e=e, m=m: A(f"v_cvt_pk_bf16_f32 v{o+4*e+m}, v{acc(G,c,m,e)}, v{acc(G,c,m,2+e)}"))
            def wr(o=o, c=c, e=e):
                A(f"ds_write_b128 v{SA+e}, v[{o+4*e}:{o+4*e+3}] offset:{(G%3)*4096+c*2048}")
                lg.issue("w")
            out.append(wr)
    for Tq in range(4):
        def rd(Tq=Tq):
            b = G * 32 + 16 + Tq * 4
            A(f"ds_read_b64_tr_b16 v[{b}:{b+1}], v{TA+2*Tq} offset:{(G%3)*4096}")
            A(f"ds_read_b64_tr_b16 v[{b+2}:{b+3}], v{TA+2*Tq+1} offset:{(G%3)*4096+512}")
            lg.issue(("t", G, Tq)); lg.issue(("t", G, Tq))
        out.append(rd)
    return out
def store1(G, Tq):
    lg.wait(("t", G, Tq))
    b = G * 32 + 16 + Tq * 4
    A(f"global_store_dwordx4 v{SA+3}, v[{b}:{b+3}], s[{S_WS}:{S_WS+1}] offset:{1024*Tq} sc1")
    if Tq == 3:
        A(f"v_add_u32 v{SA+3}, 4096, v{SA+3}")
def weave(a, b):
    ia = ib = 0
    while ia < len(a) or ib < len(b):
        if ib >= len(b) or (ia < len(a) and ia * len(b) <= ib * len(a)):
            a[ia](); ia += 1
        else:
            b[ib](); ib += 1
for G in range(6):
    side = pack(G - 1) if G >= 1 else []
    if G >= 2:
        st4 = [lambda Tq=Tq: store1(G - 2, Tq) for Tq in range(4)]
        for i, f in enumerate(st4):
            side.insert(2 + 5 * i, f)
        if TS == 1 and G == 2:
            side.insert(0, lambda: ts(16, 2))
    weave(corr(G) if G < 5 else [], side)
stores(4)
if TS == 1:
    ts(17, 2)
A(f"""s_lshl_b32 s{S_T0}, s{S_C}, 1
s_and_b32 s{S_T0+1}, s{S_WAVE}, 1
s_add_u32 s{S_T0}, s{S_T0}, s{S_T0+1}
s_lshl_b32 s{S_T0+1}, s{S_CB}, 1
s_lshr_b32 s{S_T0+2}, s{S_WAVE}, 1
s_add_u32 s{S_T0+1}, s{S_T0+1}, s{S_T0+2}
s_add_u32 s{S_T0+1}, s{S_T0+1}, 24""")
gemm2_compute(2)

def rowpat_load(dst, tmp, ssm):
    A(f"""v_lshrrev_b32 v{tmp}, 4, v{VL}
    v_xor_b32 v{tmp+1}, v{tmp}, v{VL}
    v_and_b32 v{tmp+1}, 7, v{tmp+1}              ; chunk""")
    if ssm:
        A(f"""v_lshrrev_b32 v{tmp}, 5, v{VL}
        v_lshlrev_b32 v{tmp}, 4, v{tmp}
        v_bfe_u32 v{dst}, v{VL}, 3, 1
        v_lshl_add_u32 v{tmp}, v{dst}, 3, v{tmp}
        v_bfe_u32 v{dst}, v{VL}, 4, 1
        v_add_u32 v{tmp}, v{tmp}, v{dst}""")
        up = 32
    else:
        A(f"v_lshrrev_b32 v{tmp}, 3, v{VL}")
        up = 8
    A(f"""v_mul_u32_u24 v{dst}, 1280, v{tmp}
    v_lshl_add_u32 v{dst}, v{tmp+1}, 4, v{dst}
    v_xor_b32 v{dst+1}, 64, v{dst}
    v_add_u32 v{dst+1}, {up*1280-1024}, v{dst+1}""")

LFP, LFV, LFD, LPA, LPD = 240, 241, 242, 243, 244
S_U, S_XS, S_S2 = 83, 84, 87
S_RET, S_SUB = 90, 30
class NoQ:
    def issue(self, t): pass
    def wait(self, t): pass
NOQ = NoQ()
CAP = OPT.get("cap", 8)
def cap(n=None):
    A(f"s_waitcnt vmcnt({CAP if n is None else n})")
class CapQ:
    def issue(self, t):
        cap()
    def wait(self, t): pass
CAPQ = CapQ()
class Jobs:
    def __init__(self):
        self.q = []
    def add(self, g):
        self.q.append(g)
    def step(self, n=1):
        if not self.q:
            return
        A(f"s_setprio {OPT.get('pls', 3)}")
        while n > 0 and self.q:
            try:
                next(self.q[0])
            except StopIteration:
                self.q.pop(0)
            n -= 1
        A("s_setprio 0")
def run(g):
    for _ in g:
        pass

LAX, LFQ = 245, 246
def declare(sreg):
    A(f"""s_lshl_b32 s{sreg}, s{sreg}, 2
    v_add_u32 v{LFQ}, s{sreg}, v{VFO}
    v_mov_b32 v{LFV}, s{S_K}
    ds_write_b32 v{LFQ}, v{LFV}""")
def wait_free(sreg):
    A(f"s_lshl_b32 s{sreg}, s{sreg}, 2\nv_add_u32 v{LFQ}, s{sreg}, v{LFP}")
    flag_wait(0, LFD, LFQ, nap=OPT.get('lnap', 0))
def stamp(idx_sreg, add):
    if TS:
        A(f"""s_memrealtime s[{S_TS}:{S_TS+1}]
        s_add_u32 m0, s{idx_sreg}, {add}
        s_waitcnt lgkmcnt(0)
        v_writelane_b32 v255, s{S_TS}, m0""")

def poll_setup(two):
    A(f"""s_lshl_b32 s{S_T0}, s{S_HB2}, 7
    s_add_u32 s{S_T0}, s{S_T0}, {WS_FLAG+96}
    v_and_b32 v{LPA}, 7, v{VL}
    v_lshlrev_b32 v{LPA}, 2, v{LPA}
    v_add_u32 v{LPA}, s{S_T0}, v{LPA}""")
    if two:
        A(f"v_and_b32 v{LPD}, 8, v{VL}\nv_lshl_add_u32 v{LPA}, v{LPD}, 4, v{LPA}")
def poll_issue():
    A(f"global_load_dword v{LPD}, v{LPA}, s[{S_WS}:{S_WS+1}] sc1")
def poll_until():
    lr, lo = A.newlabel("L_pu"), A.newlabel("L_pu")
    A.label(lr)
    poll_issue()
    A(f"""s_waitcnt vmcnt(0)
    v_cmp_ne_u32 vcc, s{S_NONCE}, v{LPD}
    s_cbranch_vccz {lo}""")
    spin_tail(lr, lo, 3)
    A.label(lo)
    A(f"v_mov_b32 v{LFV}, 3\nds_write_b32 v{LAX}, v{LFV}")
def poll_check():
    lo = A.newlabel("L_pk")
    A(f"""v_cmp_ne_u32 vcc, s{S_NONCE}, v{LPD}
    s_cbranch_vccnz {lo}
    v_mov_b32 v{LFV}, 3
    ds_write_b32 v{LAX}, v{LFV}""")
    A.label(lo)

VW2, VC2 = 12, 15
def g2_setup(NT, tmp):
    srd(SRD_W2, S_W2, 1966080)
    srd(SRD_C, S_CRE, 819200)
    srd(SRD_T, S_CIM, 819200)
    A(f"""s_lshl_b32 s{S_T0}, s{S_DCOL}, 1
    v_lshrrev_b32 v{tmp}, 4, v{VL}
    v_lshlrev_b32 v{tmp}, 1, v{tmp}
    v_xor_b32 v{tmp}, v{tmp}, v{VL}
    v_and_b32 v{tmp}, 7, v{tmp}
    v_lshrrev_b32 v{tmp+1}, 3, v{VL}
    v_mul_u32_u24 v{tmp+1}, 1280, v{tmp+1}
    v_lshl_add_u32 v{tmp}, v{tmp}, 4, v{tmp+1}
    v_add_u32 v{VW2}, s{S_T0}, v{tmp}""")
    rowpat_load(VC2, tmp, False)
    A(f"""s_mul_i32 s{S_T0}, s{S_DCOL}, 1280
    v_add_u32 v{VC2}, s{S_T0}, v{VC2}
    v_add_u32 v{VC2+1}, s{S_T0}, v{VC2+1}
    s_add_u32 s{S_S2}, s{S_LW}, 1
    s_and_b32 s{S_S2}, s{S_S2}, 3
    s_add_u32 s{S_KS}, s{S_S2}, s{S_R2A}
    s_cmp_ge_u32 s{S_KS}, 12
    s_cselect_b32 s{S_T0}, 12, 0
    s_sub_u32 s{S_KS}, s{S_KS}, s{S_T0}
    s_mul_i32 s{S_KS}, s{S_KS}, {128*1280}
    v_lshlrev_b32 v236, 4, v{VL}""")
    poll_setup(NT == 6)

def g2_pieces(k):
    out = []
    for i in range(16):
        if k < 3:
            out.append((VW2, SRD_W2, i * 8 * 1280, 0))
        else:
            mat, ii = i // 8, i % 8
            out.append((VC2 + ii % 2, SRD_T if mat else SRD_C, (ii // 2) * 16 * 1280, 1024 * (ii % 2)))
    return out
def g2_next(k):
    if k == 2:
        A(f"""s_and_b32 s{S_KS}, s{S_S2}, 3
        s_add_u32 s{S_KS}, s{S_KS}, s{S_R2B}
        s_cmp_ge_u32 s{S_KS}, 10
        s_cselect_b32 s{S_T0}, 10, 0
        s_sub_u32 s{S_KS}, s{S_KS}, s{S_T0}
        s_lshl_b32 s{S_KS}, s{S_KS}, 7""")
    else:
        step, n = (128 * 1280, 12) if k < 2 else (128, 10)
        A(f"""s_add_u32 s{S_KS}, s{S_KS}, {4*step}
        s_cmp_ge_u32 s{S_KS}, {n*step}
        s_cselect_b32 s{S_T0}, {n*step}, 0
        s_sub_u32 s{S_KS}, s{S_KS}, s{S_T0}""")
THR = OPT.get("thr", 8)
def g2_load(k, base, thr):
    for i, (v, sd, ex, io) in enumerate(g2_pieces(k)):
        if i:
            yield
        A(f"s_add_u32 s{S_T0+7}, s{S_KS}, {ex}\ns_waitcnt vmcnt({thr})")
        A(f"buffer_load_dwordx4 v[{base+4*i}:{base+4*i+3}], v{v}, s[{sd}:{sd+3}], s{S_T0+7} offen offset:{io}")
    g2_next(k)
    ts(48 + k, 2)
def g2_put(k, base, young, lowest, g=None):
    A(f"s_add_u32 s{S_T0+6}, s{S_S2}, {21-NS2}\ns_max_u32 s{S_T0+6}, s{S_T0+6}, {lowest}")
    wait_free(S_T0 + 6)
    A(f"s_waitcnt vmcnt({young})\nv_add_u32 v237, s{S_SLOT}, v236")
    for i in range(16):
        A(f"ds_write_b128 v237, v[{base+4*i}:{base+4*i+3}] offset:{1024*i}")
        if g is not None and i % OPT.get('il', 1) == 0:
            next(g, None)
    A(f"""s_add_u32 s{S_S2}, s{S_S2}, 4
    s_add_u32 s{S_T0+6}, s{S_S2}, 21""")
    declare(S_T0 + 6)
    ts(40 + k, 2)
    A(f"""s_add_u32 s{S_SLOT}, s{S_SLOT}, {4*SL2}
    s_cmp_ge_u32 s{S_SLOT}, {NS2*SL2}
    s_cselect_b32 s{S_T0}, {NS2*SL2}, 0
    s_sub_u32 s{S_SLOT}, s{S_SLOT}, s{S_T0}""")
    if g is not None:
        run(g)
    A("s_waitcnt lgkmcnt(0)")

def bump_epoch(T):
    lr, lo = A.newlabel("L_ep"), A.newlabel("L_ep")
    ld = A.newlabel("L_ep")
    A(f"""s_cmp_lg_u32 s2, 0
    s_cbranch_scc1 {ld}
    s_cmp_lg_u32 s{S_LW}, 2
    s_cbranch_scc1 {ld}
    v_lshlrev_b32 v{T}, 4, v{VL}
    v_add_u32 v{T}, {WS_FLAG}, v{T}""")
    A.label(lr)
    for i in range(4):
        A(f"global_load_dwordx4 v[{T+4+4*i}:{T+7+4*i}], v{T}, s[{S_WS}:{S_WS+1}] offset:{1024*i} sc1")
    A(f"s_waitcnt vmcnt(0)\ns_mov_b64 s[{S_M0}:{S_M0+1}], 0")
    for i in range(16):
        A(f"v_cmp_ne_u32 vcc, s{S_NONCE}, v{T+4+i}\ns_nop 1\ns_or_b64 s[{S_M0}:{S_M0+1}], s[{S_M0}:{S_M0+1}], vcc")
    A(f"s_cmp_eq_u64 s[{S_M0}:{S_M0+1}], 0\ns_cbranch_scc1 {lo}")
    spin_tail(lr, lo, 4)
    A.label(lo)
    A(f"""v_mov_b32 v{T}, {WS_E}
    v_mov_b32 v{T+1}, s{S_NONCE}
    s_mov_b64 exec, 1
    global_store_dword v{T}, v{T+1}, s[{S_WS}:{S_WS+1}] sc1
    s_mov_b64 exec, -1""")
    A.label(ld)

def prefetch(vm, T, tag):
    if not OPT["pf"]:
        return
    if not OPT.get("pfc", 1):
      for i in range(2):
        vm.issue("pf")
      A(f"""s_getpc_b64 s[{S_M0}:{S_M0+1}]
    L_pc{tag}:
    s_sub_u32 s{S_M0}, s{S_M0}, L_pc{tag}-L_code_start
    s_subb_u32 s{S_M0+1}, s{S_M0+1}, 0
    s_lshl_b32 s{S_T0}, s{S_LW}, 13
    v_lshlrev_b32 v{T}, 7, v{VL}
    v_add_u32 v{T}, s{S_T0}, v{T}
    v_add_u32 v{T+1}, 32768, v{T}
    v_min_u32 v{T+1}, L_code_end-L_code_start-8, v{T+1}
    global_load_dword v250, v{T}, s[{S_M0}:{S_M0+1}]
    global_load_dword v249, v{T+1}, s[{S_M0}:{S_M0+1}]""")
    A(f"""s_cmp_ge_u32 s{S_LW}, 2
    s_cselect_b32 s{S_T0}, 49, 59
    s_mov_b32 s{S_T0+1}, 7680
    s_cmov_b32 s{S_T0+1}, 3200
    s_cselect_b32 s{S_T0+4}, s{S_CRE}, s{S_W2}
    s_cselect_b32 s{S_T0+5}, s{S_CRE+1}, s{S_W2+1}
    s_mul_i32 s{S_T0+1}, s{S_T0+1}, s2
    s_cmp_eq_u32 s{S_LW}, 1
    s_cselect_b32 s{S_T0+2}, 3840, 0
    s_add_u32 s{S_T0+1}, s{S_T0+1}, s{S_T0+2}
    s_cmp_eq_u32 s{S_LW}, 3
    s_cselect_b32 s{S_T0+4}, s{S_CIM}, s{S_T0+4}
    s_cselect_b32 s{S_T0+5}, s{S_CIM+1}, s{S_T0+5}
    v_min_u32 v{T}, s{S_T0}, v{VL}
    v_lshlrev_b32 v{T}, 6, v{T}
    v_add_u32 v{T}, s{S_T0+1}, v{T}
    global_load_dword v248, v{T}, s[{S_T0+4}:{S_T0+5}]""")
    vm.issue("pf")


def head_begin():
    return len(A.lines)
def head_end(mark):
    HEADS.extend(A.lines[mark:])
    del A.lines[mark:]

def issue_sub(kind):
    mlp = kind == "mlp"
    SLOT = 16384 if mlp else 20480
    A.label(f"L_sub_{kind}")
    A(f"s_waitcnt lgkmcnt(0)")
    flag_test(None, LFD, LFQ, 0, nap=OPT.get('lnap', 0))
    A.label(f"L_subn_{kind}")
    stamp(S_U, 16)
    lx = A.newlabel("L_is")
    A(f"s_bitcmp1_b32 s{S_U}, 0\ns_cbranch_scc1 {lx}")
    A(f"s_add_u32 m0, s{S_XS}, s{S_T0+9}")
    for h in range(4):
        cap()
        A(f"buffer_load_dwordx4 v{2+h}, s[{SRD_X}:{SRD_X+3}], s{S_KX} offen offset:{1024*h} lds")
    A(f"""s_add_u32 s{S_XS}, s{S_XS}, 16384
    s_cmp_eq_u32 s{S_XS}, {3*16384}
    s_cselect_b32 s{S_XS}, 0, s{S_XS}""")
    if not mlp:
        A(f"s_add_u32 m0, s{S_SLOT}, s{S_T0+8}")
        for h in range(4):
            cap()
            A(f"buffer_load_dwordx4 v{6+h}, s[{SRD_WA}:{SRD_WA+3}], s{S_KX} offen offset:{1024*h} lds")
        A(f"s_add_u32 m0, m0, 4096")
        cap()
        A(f"buffer_load_dwordx4 v10, s[{SRD_WA}:{SRD_WA+3}], s{S_KX} offen lds\ns_branch {lx}b")
    A.label(lx)
    if mlp:
        for mat, sd in enumerate((SRD_WA, SRD_WB)):
            A(f"s_add_u32 m0, s{S_SLOT}, s{S_T0+8}" if mat == 0 else "s_add_u32 m0, m0, 8192")
            for h in range(2):
                cap()
                A(f"buffer_load_dwordx4 v{6+h}, s[{sd}:{sd+3}], s{S_KW} offen offset:{1024*h} lds")
        A(f"""s_add_u32 s{S_KW}, s{S_KW}, {32*3072}
        s_cmp_eq_u32 s{S_KW}, {20*32*3072}
        s_cselect_b32 s{S_KW}, {64*3072 if C0 else 0}, s{S_KW}
        s_bitcmp1_b32 s{S_U}, 0
        s_cbranch_scc0 {lx}b""")
    else:
        A(f"s_add_u32 m0, s{S_SLOT}, s{S_T0+8}")
        for h in range(4):
            cap()
            A(f"buffer_load_dwordx4 v{6+h}, s[{SRD_WB}:{SRD_WB+3}], s{S_KX} offen offset:{1024*h} lds")
        A(f"s_add_u32 m0, m0, 4096")
        cap()
        A(f"buffer_load_dwordx4 v10, s[{SRD_WB}:{SRD_WB+3}], s{S_KX} offen lds")
    A(f"""s_add_u32 s{S_KX}, s{S_KX}, 128
    s_cmp_eq_u32 s{S_KX}, 1280
    s_cselect_b32 s{S_KX}, {128 if C0 else 0}, s{S_KX}""")
    A.label(f"{lx}b")
    A(f"""s_add_u32 s{S_U}, s{S_U}, 1
    s_add_u32 s{S_FM}, s{S_FM}, 4
    v_add_u32 v{LFQ}, 4, v{LFQ}
    s_mov_b32 m0, s{S_FM}
    ds_read_b32 v{LFD}, v{LFQ}
    s_add_u32 s{S_SLOT}, s{S_SLOT}, {SLOT}
    s_cmp_eq_u32 s{S_SLOT}, {5*SLOT}
    s_cselect_b32 s{S_SLOT}, 0, s{S_SLOT}""")
    cap()
    A(f"""buffer_load_dword v{VZ}, s[{SRD_X}:{SRD_X+3}], 0 offen lds
    s_setpc_b64 s[{S_RET}:{S_RET+1}]""")
    flush_slow()
S_FM = 22
def call_sub(check=True):
    if check:
        A(f"s_swappc_b64 s[{S_RET}:{S_RET+1}], s[{S_SUB}:{S_SUB+1}]")
    else:
        A(f"s_swappc_b64 s[{S_RET}:{S_RET+1}], s[{S_SUBN}:{S_SUBN+1}]")
S_SUBN = 32
def declare_dma(sreg=None):
    if sreg is not None:
        A(f"s_lshl_b32 s{sreg}, s{sreg}, 2\ns_add_u32 s{S_FM}, s{S_FM}, s{sreg}")
    A(f"s_mov_b32 m0, s{S_FM}")
    cap()
    A(f"buffer_load_dword v{VZ}, s[{SRD_X}:{SRD_X+3}], 0 offen lds")

def head_rest(kind):
    mlp = kind == "mlp"
    SLOT = 16384 if mlp else 20480
    flag_init(FLG, S_LW, LFP, FREE, LAX)
    A(f"""s_add_u32 s{S_FM}, s{S_T0}, 4
    v_subrev_u32 v{LFQ}, 8, v{LFP}
    s_getpc_b64 s[{S_SUB}:{S_SUB+1}]
    L_gp_{kind}:
    s_add_u32 s{S_SUBN}, s{S_SUB}, L_subn_{kind}-L_gp_{kind}
    s_addc_u32 s{S_SUBN+1}, s{S_SUB+1}, 0
    s_add_u32 s{S_SUB}, s{S_SUB}, L_sub_{kind}-L_gp_{kind}
    s_addc_u32 s{S_SUB+1}, s{S_SUB+1}, 0
    s_mov_b32 s{S_U}, 2
    s_mov_b32 s{S_SLOT}, {2*SLOT}
    s_mov_b32 s{S_XS}, 16384
    s_mov_b32 m0, s{S_FM}
    s_add_u32 s{S_FM}, s{S_FM}, 4
    buffer_load_dword v{VZ}, s[{SRD_X}:{SRD_X+3}], 0 offen lds""")
    if mlp:
        A(f"s_add_u32 s{S_KW}, s{S_KW}, {32*3072}")
        for mat, sd in enumerate((SRD_WA, SRD_WB)):
            A(f"s_add_u32 m0, s{S_T0+8}, {SLOT + mat*8192}\ns_nop 0")
            for h in range(2):
                A(f"buffer_load_dwordx4 v{6+h}, s[{sd}:{sd+3}], s{S_KW} offen offset:{1024*h} lds")
        A(f"""s_add_u32 s{S_KW}, s{S_KW}, {32*3072}
        s_cmp_eq_u32 s{S_KW}, {20*32*3072}
        s_cselect_b32 s{S_KW}, 0, s{S_KW}""")
    else:
        A(f"s_add_u32 m0, s{S_T0+8}, {SLOT}\ns_nop 0")
        for h in range(4):
            A(f"buffer_load_dwordx4 v{6+h}, s[{SRD_WB}:{SRD_WB+3}], s{S_KX} offen offset:{1024*h} lds")
        A(f"s_add_u32 m0, m0, 4096\ns_nop 0\nbuffer_load_dwordx4 v10, s[{SRD_WB}:{SRD_WB+3}], s{S_KX} offen lds")
    A(f"""s_add_u32 s{S_KX}, s{S_KX}, 128
    s_cmp_eq_u32 s{S_KX}, 1280
    s_cselect_b32 s{S_KX}, 0, s{S_KX}""")
    if C0:
        A(f"""s_add_u32 s{S_T0}, s{S_ROT}, 1
        s_lshl_b32 s{S_KX}, s{S_T0}, 7
        s_mul_i32 s{S_KW}, s{S_T0}, {64*3072}""")
    late_scalars()
    declare_dma()
    ts(1, 2)
    for u in range(2, 5):
        call_sub(False)
    nonce_load()
    if OPT.get("solo", 0) >= 2:
        for u in range(5, 20):
            call_sub()
        A(f"s_mov_b32 s{S_T0+6}, 1")
        declare_dma(S_T0 + 6)
        A("s_waitcnt vmcnt(0)")
        ts_flush(100)
        A("s_endpgm")
    A(f"s_branch L_{kind}_loader")
    issue_sub(kind)

GW = OPT.get('gw', 19)
def g1_main(jobs, gran_loads_, gran_work, nstep, early=None):
    for u in range(5, 20):
        if u == GW:
            A(f"s_setprio {OPT.get('pls', 3)}")
            gran_work()
            A("s_setprio 0")
        call_sub()
        if u >= 6 and u % 2 == 0 or u >= 10:
            jobs.step(nstep)
        if early and u >= 20 - early.n:
            early.step()
        if u == GW - 3:
            assert not jobs.q
            gran_loads_()
    A(f"s_add_u32 s{S_T0+6}, s{S_S2}, 1")
    declare_dma(S_T0 + 6)

def finish():
    A("s_barrier")
    bump_epoch(200)
    ts(9, 2)
    ts_flush(100)
    A("s_endpgm")
    flush_slow()

mark = head_begin()
A(f"s_cmp_eq_u32 s{S_J}, 0\ns_cbranch_scc1 L_ssm_head")
rowpat_load(2, 10, False)
A(f"""s_mul_i32 s{S_T0}, s{S_C}, 163840
s_mul_i32 s{S_T0+1}, s{S_LW}, {32*1280}
s_add_u32 s{S_T0}, s{S_T0}, s{S_T0+1}
v_add_u32 v2, s{S_T0}, v2
v_add_u32 v3, s{S_T0}, v3
v_add_u32 v4, {16*1280-2048}, v2
v_add_u32 v5, {16*1280-2048}, v3
v_lshrrev_b32 v10, 4, v{VL}
s_and_b32 s{S_T0}, s{S_LW}, 1
s_lshl_b32 s{S_T0}, s{S_T0}, 2
v_or_b32 v11, s{S_T0}, v10                ; swizzle
v_lshlrev_b32 v11, 1, v11
v_and_b32 v6, 15, v{VL}
v_xor_b32 v11, v11, v6
v_mul_u32_u24 v10, 3072, v10
v_lshl_add_u32 v10, v11, 4, v10
s_mul_i32 s{S_T0}, s{S_LW}, {8*3072}
s_lshl_b32 s{S_T0+1}, s{S_CB}, 8
s_add_u32 s{S_T0}, s{S_T0}, s{S_T0+1}
v_add_u32 v6, s{S_T0}, v10
v_add_u32 v7, {4*3072-1024}, v6
s_mul_i32 s{S_KX}, s{S_ROT}, {0 if C0 else 128}
s_mul_i32 s{S_KW}, s{S_ROT}, {0 if C0 else 64*3072}
s_lshl_b32 s{S_T0+9}, s{S_LW}, 12
s_lshl_b32 s{S_T0+8}, s{S_LW}, 11
s_add_u32 s{S_T0+8}, s{S_T0+8}, {WRING}
s_mov_b32 m0, s{S_T0+9}
s_waitcnt lgkmcnt(0)
s_load_dword s{S_K}, s[{S_X}:{S_X+1}], 0""")
srd(SRD_X, S_X, 2621440)
for h in range(4):
    A(f"buffer_load_dwordx4 v{2+h}, s[{SRD_X}:{SRD_X+3}], s{S_KX} offen offset:{1024*h} lds")
srd(SRD_WA, S_W1, 1966080)
srd(SRD_WB, S_W3, 1966080)
for mat, sd in enumerate((SRD_WA, SRD_WB)):
    A(f"s_add_u32 m0, s{S_T0+8}, {mat*8192}\ns_nop 0")
    for h in range(2):
        A(f"buffer_load_dwordx4 v{6+h}, s[{sd}:{sd+3}], s{S_KW} offen offset:{1024*h} lds")
head_rest("mlp")
head_end(mark)
A.label("L_mlp_loader")
vm = NOQ
GA, GD = 18, 22
def gran_loads():
    for i in range(4):
        cap()
        A(f"global_load_dwordx4 v[{GD+4*i}:{GD+3+4*i}], v{GA+i}, s[{S_WS}:{S_WS+1}] sc1")
def mlp_setup3():
    A(f"""s_mul_i32 s{S_T0}, s{S_LW}, {1536*8}
    s_lshl_b32 s{S_T0+1}, s{S_CB}, 10
    s_add_u32 s{S_T0}, s{S_T0}, s{S_T0+1}
    s_add_u32 s{S_T0}, s{S_T0}, {WS_CSW}
    s_lshl_b32 s{S_T0+1}, s{S_C}, 10
    s_add_u32 s{S_T0+1}, s{S_T0+1}, {WS_STAT}
    s_cmp_ge_u32 s{S_LW}, 2
    s_cselect_b32 s{S_T0}, s{S_T0+1}, s{S_T0}
    s_cselect_b32 s{S_T0+1}, 0, {3072*8}
    v_lshlrev_b32 v{GA}, 4, v{VL}
    v_add_u32 v{GA}, s{S_T0}, v{GA}
    v_add_u32 v{GA+1}, s{S_T0+1}, v{GA}
    v_add_u32 v{GA+2}, s{S_T0+1}, v{GA+1}
    v_add_u32 v{GA+3}, s{S_T0+1}, v{GA+2}""")
def mlp_gran():
    if True:
        vm.wait("gran")
        lr, lo, lskip, lstat = A.newlabel("L_gr"), A.newlabel("L_gr"), A.newlabel("L_gr"), A.newlabel("L_gr")
        A(f"s_cmp_eq_u32 s{S_LW}, 2\ns_cbranch_scc1 {lskip}")
        A.label(lr)
        A(f"s_mov_b64 s[{S_M0}:{S_M0+1}], 0")
        for i in range(8):
            A(f"v_cmp_ne_u32 vcc, s{S_NONCE}, v{GD+1+2*i}\ns_nop 1\ns_or_b64 s[{S_M0}:{S_M0+1}], s[{S_M0}:{S_M0+1}], vcc")
        A(f"s_cmp_eq_u64 s[{S_M0}:{S_M0+1}], 0\ns_cbranch_scc1 {lo}")
        gran_loads()
        A("s_waitcnt vmcnt(0)")
        spin_tail(lr, lo, 5)
        A.label(lo)
        A(f"s_cmp_eq_u32 s{S_LW}, 3\ns_cbranch_scc1 {lstat}")
        A(f"""v_add_f32 v{GD}, v{GD}, v{GD+4}
        v_add_f32 v{GD+2}, v{GD+2}, v{GD+6}
        v_add_f32 v{GD+8}, v{GD+8}, v{GD+12}
        v_add_f32 v{GD+10}, v{GD+10}, v{GD+14}
        v_add_f32 v{GD}, v{GD}, v{GD+8}
        v_add_f32 v{GD+1}, v{GD+2}, v{GD+10}
        s_lshl_b32 s{S_T0}, s{S_LW}, 9
        s_add_u32 s{S_T0}, s{S_T0}, {M_CS}
        v_lshlrev_b32 v{GD+2}, 3, v{VL}
        v_add_u32 v{GD+2}, s{S_T0}, v{GD+2}
        ds_write_b64 v{GD+2}, v[{GD}:{GD+1}]
        s_branch {lskip}""")
        A.label(lstat)
        for hrow, p in ((0, GD), (1, GD + 2)):
            o = GD + 4 + 4 * hrow
            A(f"""v_and_b32 v{o+2}, 0xffff0000, v{p}
            v_lshlrev_b32 v{o}, 16, v{p}
            v_rcp_f32 v{o+1}, v{o+2}
            v_mul_f32 v{o+2}, v{o+2}, v{o+2}
            v_mul_f32 v{o+1}, {NLOG2E}, v{o+1}""")
        A(f"""v_lshlrev_b32 v{GD+2}, 5, v{VL}
        v_add_u32 v{GD+2}, {M_ROW}, v{GD+2}
        ds_write_b128 v{GD+2}, v[{GD+4}:{GD+7}]
        ds_write_b128 v{GD+2}, v[{GD+8}:{GD+11}] offset:16""")
        A.label(lskip)
        A("s_waitcnt lgkmcnt(0)")

nonce_ready()
def only2(fn):
    l = A.newlabel("L_nc")
    A(f"s_cmp_lg_u32 s{S_LW}, 2\ns_cbranch_scc1 {l}")
    fn()
    A.label(l)
    return
    yield
def one(fn):
    fn()
    return
    yield
jobs = Jobs()
jobs.add(one(mlp_setup3))
jobs.add(one(lambda: g2_setup(6, 232)))
def mg():
    mlp_gran()
MB = [40, 104, 168, 40, 104, 168]
T1 = OPT.get("thr1", CAP)
class Early:
    def __init__(self):
        self.n, self.ch = OPT.get("en", 0), OPT.get("ech", 2)
        def both():
            yield from g2_load(0, MB[0], CAP)
            yield
            yield from g2_load(1, MB[1], CAP)
        self.g = both()
    def step(self):
        for _ in range(self.ch):
            next(self.g, None)
early = Early()
g1_main(jobs, gran_loads, mg, 1, early)
ts(47, 2)
run(early.g)
A(f"s_lshl_b32 s{S_SLOT}, s{S_S2}, 14")
if OPT.get("ord", 1):
    run(g2_load(2, MB[2], T1))
    g2_put(0, MB[0], 32, 20)
else:
    g2_put(0, MB[0], 16, 20, g2_load(2, MB[2], T1))
g2_put(1, MB[1], 16, 20, g2_load(3, MB[3], T1))
run(g2_load(4, MB[4], THR))
g2_put(2, MB[2], 32, 20)
la = A.newlabel("L_k")
A(f"s_cmp_ge_u32 s{S_S2}, 14\ns_cbranch_scc1 {la}")
g2_put(3, MB[3], 16, 20, g2_load(5, MB[5], OPT.get('thr5', THR)))
A(f"s_branch {la}b")
A.label(la)
g2_put(3, MB[3], 16, 20)
A.label(f"{la}b")
A(f"s_cmp_lg_u32 s{S_S2}, 19\ns_cbranch_scc1 {la}c")
poll_until()
A.label(f"{la}c")
g2_put(4, MB[4], 0, 20)
A(f"s_cmp_ge_u32 s{S_S2}, 22\ns_cbranch_scc1 {la}x")
g2_put(5, MB[5], 0, 20)
A.label(f"{la}x")
finish()

mark = head_begin()
A.label("L_ssm_head")
rowpat_load(2, 14, True)
rowpat_load(6, 14, False)
A(f"""s_mul_i32 s{S_T0}, s{S_C}, 163840
s_lshr_b32 s{S_T0+1}, s{S_LW}, 1
s_mul_i32 s{S_T0+1}, s{S_T0+1}, {64*1280}
s_add_u32 s{S_T0}, s{S_T0}, s{S_T0+1}
s_and_b32 s{S_T0+1}, s{S_LW}, 1
s_mul_i32 s{S_T0+1}, s{S_T0+1}, {4*1280}
s_add_u32 s{S_T0}, s{S_T0}, s{S_T0+1}
v_add_u32 v2, s{S_T0}, v2
v_add_u32 v3, s{S_T0}, v3
v_add_u32 v4, {2*1280-2048}, v2
v_add_u32 v5, {2*1280-2048}, v3""")
A(f"""v_add_u32 v7, {1024-8*1280 & 0xffffffff}, v7
s_mul_i32 s{S_T0}, s{S_CB}, {160*1280}
s_mul_i32 s{S_T0+1}, s{S_LW}, {40*1280}
s_add_u32 s{S_T0}, s{S_T0}, s{S_T0+1}
s_bitcmp1_b32 s{S_LW}, 0
s_cselect_b64 vcc, -1, 0
v_add_u32 v6, s{S_T0}, v6
v_add_u32 v7, s{S_T0}, v7
v_cndmask_b32 v12, v6, v7, vcc
v_cndmask_b32 v13, v7, v6, vcc
v_mov_b32 v6, v12
v_add_u32 v7, {8*1280-1024}, v13
v_add_u32 v8, {16*1280-2048}, v12
v_add_u32 v9, {24*1280-3072}, v13
v_add_u32 v10, {32*1280}, v12
s_mul_i32 s{S_KX}, s{S_ROT}, {0 if C0 else 128}
s_lshl_b32 s{S_T0+9}, s{S_LW}, 12
s_mul_i32 s{S_T0+8}, s{S_LW}, 5120
s_add_u32 s{S_T0+8}, s{S_T0+8}, {WRING}
s_mov_b32 m0, s{S_T0+9}
s_waitcnt lgkmcnt(0)
s_load_dword s{S_K}, s[{S_X}:{S_X+1}], 0""")
srd(SRD_X, S_X, 2621440)
for h in range(4):
    A(f"buffer_load_dwordx4 v{2+h}, s[{SRD_X}:{SRD_X+3}], s{S_KX} offen offset:{1024*h} lds")
srd(SRD_WA, S_BRE, 819200)
srd(SRD_WB, S_BIM, 819200)
A(f"s_mov_b32 m0, s{S_T0+8}\ns_nop 0")
for h in range(4):
    A(f"buffer_load_dwordx4 v{6+h}, s[{SRD_WA}:{SRD_WA+3}], s{S_KX} offen offset:{1024*h} lds")
A(f"s_add_u32 m0, m0, 4096\ns_nop 0\nbuffer_load_dwordx4 v10, s[{SRD_WA}:{SRD_WA+3}], s{S_KX} offen lds")
head_rest("ssm")
head_end(mark)
A.label("L_ssm_loader")
CN = 212
LR, LI = 214, 215
L8, L128, KL = 216, 218, 220
def const_loads():
    A(f"""s_lshl_b32 s{S_T0}, s{S_LW}, 6
    v_add_u32 v{CN}, s{S_T0}, v{VL}
    v_min_u32 v{CN}, 159, v{CN}
    s_mul_i32 s{S_T0}, s{S_CB}, 160
    v_add_u32 v110, s{S_T0}, v{CN}
    v_lshlrev_b32 v110, 1, v110
    global_load_ushort v111, v110, s[{S_LRE}:{S_LRE+1}]
    global_load_ushort v112, v110, s[{S_LIM}:{S_LIM+1}]
    global_load_ushort v113, v110, s[{S_LDT}:{S_LDT+1}]""")
def ssm_setup3():
  A(f"""v_cmp_le_u32 vcc, 80, v{CN}
v_mov_b32 v41, 0
v_mov_b32 v42, {640-160}
v_cndmask_b32 v41, v41, v42, vcc
v_lshl_add_u32 v41, v{CN}, 1, v41
s_mul_i32 s{S_T0}, s{S_CB}, 160
v_add_u32 v41, s{S_T0}, v41
v_lshlrev_b32 v41, 3, v41
v_add_u32 v41, {WS_CSB}, v41
s_lshl_b32 s{S_T0+1}, s{S_C}, 10
s_add_u32 s{S_T0+1}, s{S_T0+1}, {WS_STAT}
v_lshlrev_b32 v40, 4, v{VL}
v_add_u32 v40, s{S_T0+1}, v40
s_cmp_eq_u32 s{S_LW}, 3
s_cselect_b64 vcc, -1, 0
s_nop 1
v_cndmask_b32 v40, v41, v40, vcc""")
def cmul(d, a, b, t):
    A(f"""v_mul_f32 v{t}, v{a+1}, v{b+1}
    v_mul_f32 v{t+1}, v{a+1}, v{b}
    v_fma_f32 v{t}, v{a}, v{b}, -v{t}
    v_fma_f32 v{d+1}, v{a}, v{b+1}, v{t+1}
    v_mov_b32 v{d}, v{t}""")
def ssm_consts():
    A(f"""v_lshlrev_b32 v111, 16, v111
    v_lshlrev_b32 v112, 16, v112
    v_lshlrev_b32 v113, 16, v113
    v_mul_f32 v113, {LOG2E}, v113
    v_exp_f32 v113, v113
    v_mul_f32 v114, v111, v111
    v_fma_f32 v114, v112, v112, v114
    v_cvt_pk_bf16_f32 v113, v113, v113
    v_lshlrev_b32 v113, 16, v113              ; dt
    v_rcp_f32 v114, v114
    v_mul_f32 v115, v113, v111
    v_mul_f32 v116, v113, v112
    v_mul_f32 v115, {LOG2E}, v115
    v_mul_f32 v116, 0.15915494, v116
    v_exp_f32 v115, v115
    v_rndne_f32 v117, v116
    v_sub_f32 v116, v116, v117
    v_cos_f32 v117, v116
    v_sin_f32 v116, v116
    v_add_f32 v114, v114, v114
    v_mul_f32 v{LR}, v115, v117
    v_mul_f32 v{LI}, v115, v116
    v_add_f32 v115, -1.0, v{LR}
    v_mul_f32 v116, v{LI}, v112
    v_fma_f32 v116, v115, v111, v116
    v_mul_f32 v117, v115, v112
    v_fma_f32 v117, v{LI}, v111, -v117        ; Im
    v_mul_f32 v118, v116, v114
    v_mul_f32 v119, -v117, v114
    v_lshlrev_b32 v120, 3, v{CN}
    v_add_u32 v120, {M_LAM}, v120
    ds_write_b64 v120, v[{LR}:{LI}]
    ds_write_b64 v120, v[118:119] offset:{M_COEF-M_LAM}
    v_mul_f32 v{KL}, v118, v{LR}
    v_fma_f32 v{KL}, v119, v{LI}, v{KL}
    v_mul_f32 v{KL+1}, v119, v{LR}
    v_fma_f32 v{KL+1}, -v118, v{LI}, v{KL+1}""")
    yield
    cmul(L8, LR, LR, 114)
    cmul(L8, L8, L8, 114)
    cmul(L8, L8, L8, 114)
    cmul(L128, L8, L8, 114)
    for i in range(3):
        cmul(L128, L128, L128, 114)
def ssm_gran():
    if True:
        vm.wait("gran")
        lr, lo, lskip, lstat = A.newlabel("L_gr"), A.newlabel("L_gr"), A.newlabel("L_gr"), A.newlabel("L_gr")
        A.label(lr)
        A(f"""v_cmp_ne_u32 vcc, s{S_NONCE}, v45
        v_cmp_ne_u32 s[{S_M0}:{S_M0+1}], s{S_NONCE}, v47
        s_nop 1
        s_or_b64 s[{S_M0}:{S_M0+1}], s[{S_M0}:{S_M0+1}], vcc
        s_cmp_eq_u64 s[{S_M0}:{S_M0+1}], 0
        s_cbranch_scc1 {lo}
        global_load_dwordx4 v[44:47], v40, s[{S_WS}:{S_WS+1}] sc1
        s_waitcnt vmcnt(0)""")
        spin_tail(lr, lo, 6)
        A.label(lo)
        A(f"""s_cmp_eq_u32 s{S_LW}, 3
        s_cbranch_scc1 {lstat}
        v_mov_b32 v45, v46
        v_lshlrev_b32 v46, 3, v{CN}
        v_add_u32 v46, {M_CS}, v46
        ds_write_b64 v46, v[44:45]
        s_branch {lskip}""")
        A.label(lstat)
        A(f"""v_and_b32 v48, 0xffff0000, v44
        v_and_b32 v49, 0xffff0000, v46
        v_rcp_f32 v48, v48
        v_rcp_f32 v49, v49
        v_lshlrev_b32 v44, 16, v44
        v_lshlrev_b32 v46, 16, v46
        v_and_b32 v50, 32, v{VL}
        v_lshlrev_b32 v50, 1, v50
        v_and_b32 v51, 3, v{VL}
        v_lshl_add_u32 v50, v51, 4, v50
        v_bfe_u32 v51, v{VL}, 3, 2
        v_lshl_add_u32 v50, v51, 2, v50
        v_bfe_u32 v51, v{VL}, 2, 1
        v_add_u32 v50, v50, v51
        v_lshlrev_b32 v50, 2, v50
        v_add_u32 v50, {M_ROW}, v50
        ds_write2_b32 v50, v44, v46 offset0:0 offset1:2
        ds_write2_b32 v50, v48, v49 offset0:128 offset1:130""")
        A.label(lskip)
        A("s_waitcnt lgkmcnt(0)")

nonce_ready()
const_loads()
jobs = Jobs()
jobs.add(one(lambda: None))
jobs.add(ssm_consts())
jobs.add(one(ssm_setup3))
jobs.add(one(lambda: g2_setup(2, 232)))
def gs():
    A(f"global_load_dwordx4 v[44:47], v40, s[{S_WS}:{S_WS+1}] sc1")
g1_main(jobs, gs, ssm_gran, 1)
A(f"s_lshl_b32 s{S_SLOT}, s{S_S2}, 14")
SB = [44, 44, 108, 172, 44, 108]
run(g2_load(0, SB[0], CAP))
g2_put(0, SB[0], 0, 20)
if not OPT.get("l1late", 0):
    run(g2_load(1, SB[1], 16))
A("s_setprio 3\ns_barrier")
ts(4, 2)
lmid = A.newlabel("L_mid")
A(f"s_cmp_eq_u32 s{S_LW}, 3\ns_cbranch_scc1 {lmid}")
ME = 112
ML = 144
MT = 204
A(f"""v_lshlrev_b32 v{MT}, 3, v{CN}
v_add_u32 v{MT}, {E_BASE}, v{MT}""")
for j in range(16):
    A(f"ds_read_b64 v[{ME+2*j}:{ME+2*j+1}], v{MT} offset:{j*1280}")
A(f"""s_lshl_b32 s{S_T0}, s{S_CB}, 4
s_mul_i32 s{S_T0}, s{S_T0}, 2560
s_add_u32 s{S_T0}, s{S_T0}, {WS_SCAN}
v_lshlrev_b32 v{MT+1}, 4, v{CN}
v_add_u32 v{MT+1}, s{S_T0}, v{MT+1}
s_mul_i32 s{S_T0}, s{S_C}, 2560
v_add_u32 v{MT+2}, s{S_T0}, v{MT+1}
v_mov_b32 v{MT+5}, s{S_NONCE}
v_mov_b32 v{MT+7}, s{S_NONCE}""")
def cfma(d, a, b, c, conj_a=False, conj_b=False):
    nb = " neg_hi:[0,1,0]" if conj_b else ""
    if c is None:
        A(f"v_pk_mul_f32 v[{d}:{d+1}], v[{a}:{a+1}], v[{b}:{b+1}] op_sel_hi:[0,1]" + (" neg_hi:[0,1]" if conj_b else ""))
        c = d
    else:
        A(f"v_pk_fma_f32 v[{d}:{d+1}], v[{a}:{a+1}], v[{b}:{b+1}], v[{c}:{c+1}] op_sel_hi:[0,1,1]{nb}")
    slo = 1 ^ conj_a ^ conj_b
    shi = int(conj_a)
    A(f"v_pk_fma_f32 v[{d}:{d+1}], v[{a}:{a+1}], v[{b}:{b+1}], v[{d}:{d+1}] op_sel:[1,1,0] op_sel_hi:[1,0,1] neg_lo:[{slo},0,0] neg_hi:[{shi},0,0]")
for j in range(1, 16):
    if j in (1, 5, 9, 13):
        A(f"s_waitcnt lgkmcnt({max(0, 11 - j + 1 - 0) if j < 13 else 0})")
    cfma(ME + 2 * j, L8, ME + 2 * j - 2, ME + 2 * j)
A(f"""v_mov_b32 v{MT+4}, v{ME+30}
v_mov_b32 v{MT+6}, v{ME+31}
global_store_dwordx4 v{MT+2}, v[{MT+4}:{MT+7}], s[{S_WS}:{S_WS+1}] {['sc1', 'sc0 sc1', 'sc1 nt'][OPT.get('lbs', 0)]}""")
ts(5, 2)
lr, lo, lld, lck, lh = [A.newlabel("L_lb") for _ in range(5)]
def lb_loads(lbl):
    A(f"v_mov_b32 v{MT+3}, v{MT+1}")
    for k in range(15):
        A(f"""s_cmp_le_u32 s{S_C}, {k}
        s_cbranch_scc1 {lbl}
        global_load_dwordx4 v[{ML+4*k}:{ML+4*k+3}], v{MT+3}, s[{S_WS}:{S_WS+1}] {['sc1', 'sc0 sc1', 'sc1 nt', 'sc0 sc1 nt'][OPT.get('lbm', 0)]}
        v_add_u32 v{MT+3}, 2560, v{MT+3}""")
    A.label(lbl)
if not OPT.get("lbd", 1):
    lb_loads(lld)
for j in range(15, 0, -1):
    cfma(ME + 2 * j, KL, ME + 2 * j - 2, None, conj_b=True)
MP = 16
A(f"v_mov_b32 v{MP+2}, v{L8}\nv_sub_f32 v{MP+3}, 0, v{L8+1}")
for j in range(2, 14):
    cfma(MP + 2 * j, MP + 2, MP + 2 * j - 2, None)
A(f"v_mov_b32 v{ME}, 0\nv_mov_b32 v{ME+1}, 0")
if OPT.get("lbd", 1):
    if OPT.get("lbd", 1) > 1:
        A(f"s_sleep {OPT['lbd']}")
    lb_loads(lld)
A.label(lr)
A(f"s_waitcnt vmcnt(0)\ns_mov_b64 s[{S_M0}:{S_M0+1}], 0")
for k in range(15):
    A(f"""s_cmp_le_u32 s{S_C}, {k}
    s_cbranch_scc1 {lck}
    v_cmp_ne_u32 vcc, s{S_NONCE}, v{ML+4*k+1}
    v_cmp_ne_u32 s[{S_M1}:{S_M1+1}], s{S_NONCE}, v{ML+4*k+3}
    s_nop 1
    s_or_b64 s[{S_M0}:{S_M0+1}], s[{S_M0}:{S_M0+1}], vcc
    s_or_b64 s[{S_M0}:{S_M0+1}], s[{S_M0}:{S_M0+1}], s[{S_M1}:{S_M1+1}]""")
A.label(lck)
A(f"s_cmp_eq_u64 s[{S_M0}:{S_M0+1}], 0\ns_cbranch_scc1 {lo}")
lb_loads(A.newlabel("L_lb"))
spin_tail(lr, lo, 7)
A.label(lo)
ts(6, 2)
H = MT + 4
A(f"v_mov_b32 v{H}, 0\nv_mov_b32 v{H+1}, 0")
for k in range(15):
    g = ML + 4 * k
    A(f"""s_cmp_le_u32 s{S_C}, {k}
    s_cbranch_scc1 {lh}
    v_mov_b32 v{g+1}, v{g+2}""")
    cfma(g, L128, H, g)
    A(f"v_mov_b64 v[{H}:{H+1}], v[{g}:{g+1}]")
A.label(lh)
Q = MT + 6
cfma(Q, KL, H, None, conj_b=True)
A(f"v_pk_add_f32 v[{ME}:{ME+1}], v[{ME}:{ME+1}], v[{Q}:{Q+1}]")
A(f"ds_write_b64 v{MT}, v[{ME}:{ME+1}]")
for j in range(1, 16):
    d = ME + 2 * j
    if j == 14:
        cfma(H, MP + 4, Q, None)
    if j < 14:
        cfma(d, MP + 2 * j, Q, d)
    else:
        cfma(d, MP + 2 * (j - 2), H, d)
    A(f"ds_write_b64 v{MT}, v[{d}:{d+1}] offset:{j*1280}")
A("s_waitcnt lgkmcnt(0)")
A.label(lmid)
A("s_setprio 0\ns_barrier")
ts(7, 2)
SC = OPT.get("scap", 2)
if OPT.get("l1late", 0):
    run(g2_load(1, SB[1], SC))
run(g2_load(2, SB[2], SC))
run(g2_load(3, SB[3], OPT.get("scap2", 3)))
A(f"s_cmp_lt_u32 s{S_S2}, 5\ns_cselect_b32 s{S_T0+5}, 20, 21")
g2_put(1, SB[1], 32, f"s{S_T0+5}")
g_ = g2_load(4, SB[4], 6)
for _ in range(8):
    next(g_)
g2_put(2, SB[2], 24, 21, g_)
lpu = A.newlabel("L_k")
A(f"s_cmp_lg_u32 s{S_S2}, 15\ns_cbranch_scc1 {lpu}")
poll_until()
A.label(lpu)
la = A.newlabel("L_k")
A(f"s_cmp_ge_u32 s{S_S2}, 14\ns_cbranch_scc1 {la}")
g2_put(3, SB[3], 16, 21, g2_load(5, SB[5], 6))
g2_put(4, SB[4], 16, 21)
g2_put(5, SB[5], 0, 21)
A(f"s_branch {la}x")
A.label(la)
g2_put(3, SB[3], 16, 21)
g2_put(4, SB[4], 0, 21)
A.label(f"{la}x")
finish()

A.label("L_end")
A("s_endpgm")
A.label("L_code_end")
A.lines[HEADPOS:HEADPOS] = HEADS
A.lines.insert(0, "L_code_start:")

hdr = open(os.path.join(os.path.dirname(__file__), "header.txt")).read()
print(hdr + f"""; @launch grid=(256,1,1) block=(512,1,1) lds=163840
.amdgcn_target "amdgcn-amd-amdhsa--gfx950"
.text
.globl {KNAME}
.p2align 8
.type {KNAME},@function
{KNAME}:""")
print(A.text(), end="")
print(f""".section .rodata,"a"
.p2align 6
.amdhsa_kernel {KNAME}
  .amdhsa_next_free_vgpr 256
  .amdhsa_next_free_sgpr 102
  .amdhsa_accum_offset 256
  .amdhsa_group_segment_fixed_size 0
  .amdhsa_kernarg_size 128
  .amdhsa_user_sgpr_count 2
  .amdhsa_user_sgpr_kernarg_segment_ptr 1
  .amdhsa_system_sgpr_workgroup_id_x 1
.end_amdhsa_kernel""")
```

```python
import sys, os
sys.path.insert(0, os.path.dirname(__file__))
from asmlib import Asm, Queue, vr, sr

OPT = dict(ts=0, stop=0, DA=3, D1=4, D1S=5, timeout=1 << 20, nodma=0, nomfma=0, nobar=0, noread=0, rot=8, rot2=1, pf=0, stash=8, sg1=12, amod=1)
for a in sys.argv[1:]:
    k, v = a.split("=")
    OPT[k] = int(v)
P0 = OPT.get("p0", 3)
TS = OPT["ts"]; STOP = OPT["stop"]; DA = OPT["DA"]; D1 = OPT["D1"]

KNAME = "parallel_sum__ssm_conv_s5__glu_gated_swiglu__prompt_kernel"

WS_E = 0
WS_FLAG = 0x1000
WS_STAT = 0x4000
WS_CSB = 0x8000
WS_CSW = 0x10000
WS_SCAN = 0x40000
WS_TAB = 0x80000
WS_ACT = 0x100000
WS_TS = 0x1000000

MISC = 151552
WRING = 49152
SCR = 131072
M_ROW = MISC
M_CS = MISC + 2048
M_LAM = MISC + 3584
M_COEF = MISC + 4864
E_BASE = 81920
TR_BASE = 102400

S_X, S_LRE, S_LIM, S_BRE, S_BIM, S_CRE, S_CIM, S_LDT = 4, 6, 8, 10, 12, 14, 16, 18
S_DSK, S_W1, S_W3, S_W2, S_OUT, S_DBG, S_WS = 20, 24, 26, 28, 30, 32, 34
SRD_X, SRD_WA, SRD_WB, SRD_W2, SRD_C, SRD_T = 36, 40, 44, 48, 52, 56
S_XCD, S_IDX, S_C, S_J, S_CB, S_WAVE, S_NONCE = 60, 61, 62, 63, 64, 65, 66
S_HB2, S_DCOL, S_TG = 67, 68, 23
S_ONES = 69
S_T0 = 70
S_SLOT, S_KX, S_KW, S_CNT, S_DELTA = 80, 81, 82, 83, 84
S_AB = 86
S_M0, S_M1 = 88, 90
S_EX = 92
S_TO = 94
S_TS = 96
S_ROT, S_R2A, S_R2B, S_KB, S_KS = 95, 98, 99, 100, 101

A = Asm()
LOG2E = 0x3fb8aa3b
NLOG2E = 0xbfb8aa3b

def ts(idx, vtmp):
    if not TS:
        return

    A(f"""s_memrealtime s[{S_TS}:{S_TS+1}]
    s_waitcnt lgkmcnt(0)
    v_writelane_b32 v255, s{S_TS}, {idx}""")

def tc(idx):
    if not TS:
        return
    A(f"""s_memtime s[{S_TS}:{S_TS+1}]
    s_waitcnt lgkmcnt(0)
    v_writelane_b32 v255, s{S_TS}, {idx}""")

def ts_flush(vtmp):
    if not TS:
        return
    A(f"""s_lshl_b32 s{S_T0}, s2, 3
    s_add_u32 s{S_T0}, s{S_T0}, s{S_WAVE}
    s_lshl_b32 s{S_T0}, s{S_T0}, 8
    s_add_u32 s{S_T0}, s{S_T0}, {WS_TS}
    v_lshlrev_b32 v{vtmp}, 2, v{VL}
    v_add_u32 v{vtmp}, s{S_T0}, v{vtmp}
    global_store_dword v{vtmp}, v255, s[{S_WS}:{S_WS+1}]""")

def srd(d, p, nbytes):
    A(f"""s_mov_b32 s{d}, s{p}
    s_mov_b32 s{d+1}, s{p+1}
    s_mov_b32 s{d+2}, {nbytes}
    s_mov_b32 s{d+3}, 0x20000""")

def srd_sel(d, p1, p0, nbytes):
    A(f"""s_cselect_b32 s{d}, s{p1}, s{p0}
    s_cselect_b32 s{d+1}, s{p1+1}, s{p0+1}
    s_mov_b32 s{d+2}, {nbytes}
    s_mov_b32 s{d+3}, 0x20000""")

def spin_tail(lbl_retry, lbl_ok, code):
    A(f"""s_sleep {OPT.get('nap', 1) if code == 2 else 1}
    s_sub_u32 s{S_TO}, s{S_TO}, 1
    s_cmp_lg_u32 s{S_TO}, 0
    s_cbranch_scc1 {lbl_retry}
    s_mov_b32 s{S_TO}, 1""")

VL = 254
VFO = 253
FLG = MISC + 6144
FREE, AUX = FLG + 2048, FLG + 4096
S_K = 3
S_FR = 86
S_LMT = 85
SRD_F = 52
VZ = 252
SLOW = []
def flag_test(need, vD, vP, off, pre=None, anylane=False, acc=None, nap=0, split=False):
    ls, lb, lr = A.newlabel("L_sw"), A.newlabel("L_bk"), A.newlabel("L_sr")
    cmp_ = f"v_cmp_ne_u32 vcc, s{S_K}, v{vD}"
    A(f"s_cbranch_vccnz {ls}" if split else f"{cmp_}\ns_cbranch_vccnz {ls}")
    A.label(lb)
    mark = len(A.lines)
    A.label(ls)
    if TS and acc is not None:
        A(f"s_memtime s[{S_TS}:{S_TS+1}]\ns_waitcnt lgkmcnt(0)\ns_sub_u32 s{acc}, s{acc}, s{S_TS}\ns_add_u32 s{acc+1}, s{acc+1}, 1")
        lb2 = lb
        lb = A.newlabel("L_b2")
    A.label(lr)
    if nap:
        A(f"s_sleep {nap}")
    A(f"""ds_read_b32 v{vD}, v{vP} offset:{off}
    s_waitcnt lgkmcnt(0)
    {cmp_}
    s_cbranch_vccz {lb}
    s_sub_u32 s{S_TO}, s{S_TO}, 1
    s_cmp_lg_u32 s{S_TO}, 0
    s_cbranch_scc1 {lr}
    s_mov_b32 s{S_TO}, 1
    s_branch {lb}""")
    if TS and acc is not None:
        A.label(lb)
        A(f"s_memtime s[{S_TS}:{S_TS+1}]\ns_waitcnt lgkmcnt(0)\ns_add_u32 s{acc}, s{acc}, s{S_TS}\ns_branch {lb2}")
    SLOW.extend(A.lines[mark:])
    del A.lines[mark:]
def flag_wait(need, vD, vP, rel=0, nap=0):
    off = rel + 4 * need
    A(f"ds_read_b32 v{vD}, v{vP} offset:{off}\ns_waitcnt lgkmcnt(0)")
    flag_test(need, vD, vP, off, nap=nap)
def flush_slow():
    A.lines.extend(SLOW)
    SLOW.clear()
def flag_init(base, wave_sgpr, vP, peer, aux):
    A(f"""s_lshl_b32 s{S_T0}, s{wave_sgpr}, 9
    s_add_u32 s{S_T0}, s{S_T0}, {base}
    v_lshlrev_b32 v{VFO}, 2, v{VL}
    v_add_u32 v{VFO}, s{S_T0}, v{VFO}
    v_mov_b32 v{VZ}, 0
    s_waitcnt lgkmcnt(0)
    v_not_b32 v{vP}, s{S_K}
    ds_write2st64_b32 v{VFO}, v{vP}, v{vP} offset0:0 offset1:1""")
    if aux:
        A(f"""s_lshl_b32 s{S_T0+1}, s{wave_sgpr}, 8
        v_lshlrev_b32 v{aux}, 2, v{VL}
        v_add_u32 v{aux}, s{S_T0+1}, v{aux}
        v_add_u32 v{aux}, {AUX}, v{aux}
        ds_write_b32 v{aux}, v{VZ}""")
    peer_addr(vP, peer)
    A("s_waitcnt lgkmcnt(0)\ns_barrier")
def peer_addr(vP, peer):
    A(f"""v_and_b32 v{vP}, 3, v{VL}
    v_lshlrev_b32 v{vP}, 9, v{vP}
    v_add_u32 v{vP}, {peer + 252}, v{vP}""")


S_LW = 85
A(f"""s_cmp_ge_u32 s2, 256
s_cbranch_scc1 L_end
s_load_dwordx16 s[4:19], s[0:1], 0
s_load_dwordx16 s[20:35], s[0:1], 64
v_lshrrev_b32 v1, 6, v0
v_and_b32 v{VL}, 63, v0
s_and_b32 s{S_XCD}, s2, 7
v_readfirstlane_b32 s{S_WAVE}, v1
s_lshr_b32 s{S_IDX}, s2, 3
s_and_b32 s{S_T0}, s{S_XCD}, 1
s_lshl_b32 s{S_T0}, s{S_T0}, 3
s_and_b32 s{S_T0+1}, s{S_IDX}, 7
s_add_u32 s{S_C}, s{S_T0}, s{S_T0+1}
s_lshr_b32 s{S_J}, s{S_IDX}, 3
s_lshr_b32 s{S_T0+2}, s{S_XCD}, 1
s_mul_i32 s{S_CB}, s{S_T0+2}, 3
s_add_u32 s{S_CB}, s{S_CB}, s{S_J}
s_sub_u32 s{S_CB}, s{S_CB}, 1
s_cmp_eq_u32 s{S_J}, 0
s_cselect_b32 s{S_CB}, s{S_T0+2}, s{S_CB}
""")
if TS:
    A("v_mov_b32 v255, 0")
    ts(0, 2)
RG = OPT["rot"]
C0 = OPT.get("c0", 1)
if RG:
    A(f"""s_lshl_b32 s{S_ROT}, s{S_J}, {1 if RG == 8 else 0}
    s_add_u32 s{S_ROT}, s{S_T0+1}, s{S_ROT}
    s_and_b32 s{S_ROT}, s{S_ROT}, {RG-1}
    s_mul_i32 s{S_ROT}, s{S_ROT}, {9 if C0 else 10}
    s_lshr_b32 s{S_ROT}, s{S_ROT}, {RG.bit_length()-1}""")
else:
    A(f"s_mov_b32 s{S_ROT}, 0")
A(f"""s_cmp_lt_u32 s{S_WAVE}, 4
s_cbranch_scc1 L_compute
s_sub_u32 s{S_LW}, s{S_WAVE}, 4
s_setprio {OPT.get('pl1', 0)}""")

def nonce_load():
    A(f"s_load_dword s{S_NONCE}, s[{S_WS}:{S_WS+1}], {WS_E}")
def late_scalars():
    A(f"""s_sub_u32 s{S_T0}, s{S_IDX}, 8
    s_mul_i32 s{S_T0+1}, s{S_T0}, 13
    s_lshr_b32 s{S_T0+1}, s{S_T0+1}, 6          ; n/5
    s_mul_i32 s{S_T0+2}, s{S_T0+1}, 5
    s_sub_u32 s{S_T0+2}, s{S_T0}, s{S_T0+2}     ; n%5
    s_mul_i32 s{S_TG}, s{S_T0+2}, 6
    s_lshl_b32 s{S_T0+3}, s{S_IDX}, 1
    s_add_u32 s{S_T0+3}, s{S_T0+3}, 16
    s_cmp_lt_u32 s{S_IDX}, 4
    s_cselect_b32 s{S_T0+3}, 30, s{S_T0+3}
    s_min_u32 s{S_T0}, s{S_IDX}, 4
    s_cmp_eq_u32 s{S_J}, 0
    s_cselect_b32 s{S_TG}, s{S_T0+3}, s{S_TG}
    s_cselect_b32 s{S_T0+1}, s{S_T0}, s{S_T0+1}  ; strip
    s_cselect_b32 s{S_T0+2}, 5, s{S_T0+2}
    s_lshr_b32 s{S_T0}, s{S_XCD}, 1
    s_lshl_b32 s{S_T0}, s{S_T0}, 5
    s_add_u32 s{S_TG}, s{S_TG}, s{S_T0}          ; first 16-row tile
    s_lshr_b32 s{S_HB2}, s{S_TG}, 2
    s_lshl_b32 s{S_DCOL}, s{S_T0+1}, 6
    s_and_b32 s{S_T0}, s{S_XCD}, 1
    s_mul_i32 s{S_T0}, s{S_T0}, 320
    s_add_u32 s{S_DCOL}, s{S_DCOL}, s{S_T0}
    s_mov_b32 s{S_ONES}, 0x3f803f80
    s_mov_b32 s{S_TO}, {OPT['timeout']}""")
    if OPT["rot2"]:
        A(f"""s_add_u32 s{S_R2B}, s{S_T0+1}, s{S_T0+2}
        s_lshl_b32 s{S_R2A}, s{S_R2B}, 1
        s_cmp_ge_u32 s{S_R2A}, 12
        s_cselect_b32 s{S_T0+3}, 12, 0
        s_sub_u32 s{S_R2A}, s{S_R2A}, s{S_T0+3}
        s_lshl_b32 s{S_R2B}, s{S_R2B}, 1
        s_cmp_ge_u32 s{S_R2B}, 10
        s_cselect_b32 s{S_T0+3}, 10, 0
        s_sub_u32 s{S_R2B}, s{S_R2B}, s{S_T0+3}""")
    else:
        A(f"s_mov_b32 s{S_R2A}, 0\ns_mov_b32 s{S_R2B}, 0")
for n_ in range(24):
    assert (n_ * 13) >> 6 == n_ // 5

HEADPOS = len(A.lines)
HEADS = []

def dpp_reduce16(regs):
    for sh in (8, 4, 2, 1):
        A("s_nop 1")
        for r in regs:
            A(f"v_add_f32_dpp v{r}, v{r}, v{r} row_ror:{sh} row_mask:0xf bank_mask:0xf")

def nonce_ready():
    A(f"""s_waitcnt lgkmcnt(0)
    s_add_u32 s{S_NONCE}, s{S_NONCE}, 1""")

def sum_bf16(regs, acc, sq=None, t=None):
    for k, r in enumerate(regs):
        if k and k % (5 if sq is not None else 8) == 0:
            yield
        A(f"v_lshlrev_b32 v{t}, 16, v{r}")
        A(f"v_and_b32 v{r}, 0xffff0000, v{r}")
        if k == 0:
            A(f"v_mov_b32 v{acc}, v{t}\nv_mov_b32 v{acc+1}, v{r}")
            if sq is not None:
                A(f"v_mul_f32 v{sq}, v{t}, v{t}\nv_mul_f32 v{sq+1}, v{r}, v{r}")
        else:
            A(f"v_add_f32 v{acc}, v{acc}, v{t}\nv_add_f32 v{acc+1}, v{acc+1}, v{r}")
            if sq is not None:
                A(f"v_fmac_f32 v{sq}, v{t}, v{t}\nv_fmac_f32 v{sq+1}, v{r}, v{r}")
    A(f"v_add_f32 v{acc}, v{acc}, v{acc+1}")
    if sq is not None:
        A(f"v_add_f32 v{sq}, v{sq}, v{sq+1}")

def reduce32(regs):
    dpp_reduce16(regs)
    A("s_nop 1")
    for r in regs:
        A(f"v_add_f32_dpp v{r}, v{r}, v{r} row_bcast:15 row_mask:0xa bank_mask:0xf")

def stat_loads(vm, T):
    A(f"""v_lshrrev_b32 v{T+10}, 5, v{VL}
    s_lshl_b32 s{S_T0}, s2, 3
    s_lshl_b32 s{S_T0+1}, s{S_LW}, 1
    s_add_u32 s{S_T0}, s{S_T0}, s{S_T0+1}
    v_add_u32 v{T+10}, s{S_T0}, v{T+10}
    v_and_b32 v{T+11}, 31, v{VL}
    v_mul_u32_u24 v{T+12}, 1280, v{T+10}
    v_lshl_add_u32 v{T+12}, v{T+11}, 3, v{T+12}""")
    for i in range(5):
        A(f"global_load_dwordx2 v[{T+2*i}:{T+2*i+1}], v{T+12}, s[{S_X}:{S_X+1}] offset:{256*i}")
        vm.issue("stat")

def stat_work(vm, T):
    vm.wait("stat")
    a, q = T + 12, T + 14
    yield from sum_bf16(list(range(T, T + 10)), a, q, T + 16)
    yield
    reduce32([a, q])
    yield
    A(f"""v_mul_f32 v{a}, 0x3acccccd, v{a}      ; mean
    v_mul_f32 v{q}, 0x3acccccd, v{q}
    v_fma_f32 v{q}, -v{a}, v{a}, v{q}
    v_max_f32 v{q}, 0, v{q}
    v_cvt_pk_bf16_f32 v{q}, v{q}, v{q}
    v_lshlrev_b32 v{q}, 16, v{q}
    v_add_f32 v{q}, 0x3727c5ac, v{q}
    v_cvt_pk_bf16_f32 v{q}, v{q}, v{q}
    v_lshlrev_b32 v{q}, 16, v{q}
    v_sqrt_f32 v{q}, v{q}
    v_lshlrev_b32 v{T+10}, 3, v{T+10}
    v_add_u32 v{T+10}, {WS_STAT}, v{T+10}
    v_cvt_pk_bf16_f32 v{a}, v{a}, v{q}
    v_mov_b32 v{a+1}, s{S_NONCE}
    v_cmp_eq_u32 vcc, 16, v{T+11}
    s_and_saveexec_b64 s[{S_EX}:{S_EX+1}], vcc
    global_store_dwordx2 v{T+10}, v[{a}:{a+1}], s[{S_WS}:{S_WS+1}] sc1
    s_mov_b64 exec, s[{S_EX}:{S_EX+1}]""")
    vm.issue("pub")

S_CS0 = 86
def colsum_loads(T):
    A(f"""s_mul_i32 s{S_T0}, s{S_C}, 12
    s_add_u32 s{S_T0}, s{S_T0}, s{S_CB}            ; sigma
    s_lshr_b32 s{S_T0+1}, s{S_T0}, 2               ; strip
    s_and_b32 s{S_T0+2}, s{S_T0}, 3                ; k quarter
    s_cmp_ge_u32 s{S_T0+1}, 24""")
    srd_sel(SRD_T, S_W3, S_W1, 1966080)
    A(f"""s_cselect_b32 s{S_T0+3}, {24*128}, 0
    s_lshl_b32 s{S_T0+4}, s{S_T0+1}, 7
    s_sub_u32 s{S_T0+4}, s{S_T0+4}, s{S_T0+3}
    s_mul_i32 s{S_T0+5}, s{S_T0+2}, {160*3072}
    s_add_u32 s{S_T0+4}, s{S_T0+4}, s{S_T0+5}      ; soffset
    s_mul_i32 s{S_CS0}, s{S_T0+2}, {3072*8}
    s_lshl_b32 s{S_T0+1}, s{S_T0+1}, 9
    s_add_u32 s{S_CS0}, s{S_CS0}, s{S_T0+1}
    s_add_u32 s{S_CS0}, s{S_CS0}, {WS_CSW}
    v_lshrrev_b32 v{T}, 3, v{VL}
    v_and_b32 v{T+1}, 7, v{VL}
    v_mul_u32_u24 v{T}, 3072, v{T}
    v_lshl_add_u32 v{T}, v{T+1}, 4, v{T}""")
    for i in range(20):
        if i % 4 == 0:
            A(f"s_mov_b32 m0, {SCR + 1024*i}")
        A(f"""s_add_u32 s{S_T0+7}, s{S_T0+4}, {8*3072*i - 1024*(i%4)}
        s_waitcnt vmcnt({OPT.get("cap", 7)})
        buffer_load_dwordx4 v{T}, s[{SRD_T}:{SRD_T+3}], s{S_T0+7} offen offset:{1024*(i%4)} lds""")

def colsum_work(T):
    A(f"""v_lshrrev_b32 v{T+2}, 4, v{VL}
    v_lshlrev_b32 v{T+3}, 5, v{T+2}
    v_lshlrev_b32 v{T+2}, 10, v{T+2}
    v_bfe_u32 v{T+1}, v{VL}, 2, 2
    v_lshl_add_u32 v{T+2}, v{T+1}, 7, v{T+2}
    v_and_b32 v{T+1}, 3, v{VL}
    v_lshl_add_u32 v{T+2}, v{T+1}, 3, v{T+2}
    v_add_u32 v{T+2}, {SCR}, v{T+2}
    v_add_u32 v{T+3}, s{S_CS0}, v{T+3}""")
    for i in range(4):
        A(f"v_mov_b32 v{T+4+i}, s{S_ONES}")
    F = T + 24
    for u in range(4):
        for ks in range(5):
            b = F + (u * 5 + ks) * 4
            A(f"ds_read_b64_tr_b16 v[{b}:{b+1}], v{T+2} offset:{ks*4096+u*32}")
            A(f"ds_read_b64_tr_b16 v[{b+2}:{b+3}], v{T+2} offset:{ks*4096+u*32+512}")
    A("s_waitcnt lgkmcnt(0)")
    for ks in range(5):
        for u in range(4):
            b = F + (u * 5 + ks) * 4
            d = T + 8 + 4 * u
            cin = "0" if ks == 0 else f"v[{d}:{d+3}]"
            A(f"v_mfma_f32_16x16x32_bf16 v[{d}:{d+3}], v[{b}:{b+3}], v[{T+4}:{T+7}], {cin}")
    A(f"""v_and_b32 v{T+1}, 15, v{VL}
    v_cmp_eq_u32 vcc, 0, v{T+1}
    s_nop 7""")
    for u in range(4):
        for h in range(2):
            o = F + (u * 2 + h) * 4
            A(f"""v_mov_b32 v{o}, v{T+8+4*u+2*h}
            v_mov_b32 v{o+1}, s{S_NONCE}
            v_mov_b32 v{o+2}, v{T+9+4*u+2*h}
            v_mov_b32 v{o+3}, s{S_NONCE}""")
    A(f"s_and_saveexec_b64 s[{S_EX}:{S_EX+1}], vcc")
    for u in range(4):
        for h in range(2):
            o = F + (u * 2 + h) * 4
            A(f"global_store_dwordx4 v{T+3}, v[{o}:{o+3}], s[{S_WS}:{S_WS+1}] offset:{u*128+h*16} sc1")
    A(f"s_mov_b64 exec, s[{S_EX}:{S_EX+1}]")

def rowsum_loads(vm, T):
    A(f"""s_lshl_b32 s{S_T0}, s{S_C}, 2
    s_add_u32 s{S_T0}, s{S_T0}, s{S_CB}            ; sigma'
    s_mul_i32 s{S_T0+1}, s{S_T0}, 20
    s_mul_i32 s{S_T0+2}, s{S_LW}, 5
    s_add_u32 s{S_T0+1}, s{S_T0+1}, s{S_T0+2}
    s_cmp_ge_u32 s{S_T0}, 32
    s_cselect_b32 s{S_T0+4}, s{S_BIM}, s{S_BRE}
    s_cselect_b32 s{S_T0+5}, s{S_BIM+1}, s{S_BRE+1}
    s_cselect_b32 s{S_T0+3}, 640, 0
    s_sub_u32 s{S_T0+1}, s{S_T0+1}, s{S_T0+3}
    v_lshrrev_b32 v{T+33}, 5, v{VL}
    v_add_u32 v{T+33}, s{S_T0+1}, v{T+33}
    v_and_b32 v{T+34}, 31, v{VL}""")
    for p in range(3):
        A(f"""v_add_u32 v{T+30+p}, {2*p}, v{T+33}
        v_min_u32 v{T+30+p}, 639, v{T+30+p}
        v_mul_u32_u24 v{T+35}, 1280, v{T+30+p}
        v_lshl_add_u32 v{T+35}, v{T+34}, 3, v{T+35}
        v_add_u32 v{T+30+p}, s{S_T0+3}, v{T+30+p}""")
        for i in range(5):
            b = T + 10 * p + 2 * i
            A(f"global_load_dwordx2 v[{b}:{b+1}], v{T+35}, s[{S_T0+4}:{S_T0+5}] offset:{256*i}")
            vm.issue("rows")

def rowsum_work(vm, T):
    vm.wait("rows")
    for p in range(3):
        yield from sum_bf16(list(range(T + 10 * p, T + 10 * p + 10)), T + 36 + 2 * p, None, T + 35)
    yield
    reduce32([T + 36, T + 38, T + 40])
    for p in range(3):
        A(f"""v_mov_b32 v{T+37+2*p}, s{S_NONCE}
        v_lshlrev_b32 v{T+30+p}, 3, v{T+30+p}
        v_add_u32 v{T+30+p}, {WS_CSB}, v{T+30+p}""")
    A(f"""v_cmp_eq_u32 vcc, 16, v{T+34}
    s_and_saveexec_b64 s[{S_EX}:{S_EX+1}], vcc""")
    for p in range(3):
        A(f"global_store_dwordx2 v{T+30+p}, v[{T+36+2*p}:{T+37+2*p}], s[{S_WS}:{S_WS+1}] sc1")
        vm.issue("pub")
    A(f"s_mov_b64 exec, s[{S_EX}:{S_EX+1}]")

def side_stats(T, filler):
    A(f"""v_lshrrev_b32 v{T+20}, 4, v{VL}
    s_lshl_b32 s{S_T0}, s2, 3
    s_lshl_b32 s{S_T0+1}, s{S_WAVE}, 2
    s_add_u32 s{S_T0}, s{S_T0}, s{S_T0+1}
    v_add_u32 v{T+20}, s{S_T0}, v{T+20}          ; row
    v_and_b32 v{T+21}, 15, v{VL}
    v_mul_u32_u24 v{T+22}, 1280, v{T+20}
    v_lshl_add_u32 v{T+22}, v{T+21}, 4, v{T+22}""")
    for i in range(5):
        A(f"global_load_dwordx4 v[{T+4*i}:{T+4*i+3}], v{T+22}, s[{S_X}:{S_X+1}] offset:{256*i}")
    filler()
    A(f"""v_mov_b32 v{T+24}, 0
    v_mov_b32 v{T+25}, 0
    v_mov_b32 v{T+26}, 0
    v_mov_b32 v{T+27}, 0""")
    nonce_ready()
    for i in range(5):
        A(f"s_waitcnt vmcnt({4-i})")
        for d in range(4):
            r = T + 4 * i + d
            A(f"v_dot2c_f32_bf16 v{T+24+2*(d&1)}, s{S_ONES}, v{r}")
            A(f"v_dot2c_f32_bf16 v{T+25+2*(d&1)}, v{r}, v{r}")
    A(f"""s_nop 3
    v_add_f32 v{T+24}, v{T+24}, v{T+26}
    v_add_f32 v{T+25}, v{T+25}, v{T+27}""")
    dpp_reduce16([T + 24, T + 25])
    A(f"""v_mul_f32 v{T+24}, 0x3acccccd, v{T+24}      ; mean
    v_mul_f32 v{T+25}, 0x3acccccd, v{T+25}
    v_fma_f32 v{T+25}, -v{T+24}, v{T+24}, v{T+25}
    v_max_f32 v{T+25}, 0, v{T+25}
    v_cvt_pk_bf16_f32 v{T+25}, v{T+25}, v{T+25}
    v_lshlrev_b32 v{T+25}, 16, v{T+25}
    v_add_f32 v{T+25}, 0x3727c5ac, v{T+25}
    v_cvt_pk_bf16_f32 v{T+25}, v{T+25}, v{T+25}
    v_lshlrev_b32 v{T+25}, 16, v{T+25}
    v_sqrt_f32 v{T+25}, v{T+25}
    v_lshlrev_b32 v{T+20}, 3, v{T+20}
    v_add_u32 v{T+20}, {WS_STAT}, v{T+20}
    v_cvt_pk_bf16_f32 v{T+26}, v{T+24}, v{T+25}
    v_mov_b32 v{T+27}, s{S_NONCE}
    v_cmp_eq_u32 vcc, 0, v{T+21}
    s_and_saveexec_b64 s[{S_EX}:{S_EX+1}], vcc
    global_store_dwordx2 v{T+20}, v[{T+26}:{T+27}], s[{S_WS}:{S_WS+1}] sc1
    s_mov_b64 exec, s[{S_EX}:{S_EX+1}]""")

def side_colsum_mlp(T, filler):
    A(f"""s_mul_i32 s{S_T0}, s{S_C}, 12
    s_add_u32 s{S_T0}, s{S_T0}, s{S_CB}            ; sigma
    s_lshr_b32 s{S_T0+1}, s{S_T0}, 1               ; strip
    s_and_b32 s{S_T0+2}, s{S_T0}, 1
    s_lshl_b32 s{S_T0+2}, s{S_T0+2}, 1
    s_add_u32 s{S_T0+2}, s{S_T0+2}, s{S_WAVE}
    s_sub_u32 s{S_T0+2}, s{S_T0+2}, 2              ; k quarter
    s_cmp_ge_u32 s{S_T0+1}, 48""")
    srd_sel(SRD_T, S_W3, S_W1, 1966080)
    A(f"""s_cselect_b32 s{S_T0+3}, 48, 0
    s_cselect_b32 s{S_T0+6}, 1536, 0
    s_sub_u32 s{S_T0+1}, s{S_T0+1}, s{S_T0+3}
    s_lshl_b32 s{S_T0+1}, s{S_T0+1}, 5             ; col0
    s_mul_i32 s{S_T0+4}, s{S_T0+2}, {160*3072}
    s_lshl_b32 s{S_T0+5}, s{S_T0+1}, 1
    s_add_u32 s{S_T0+4}, s{S_T0+4}, s{S_T0+5}      ; soffset
    s_sub_u32 s{S_T0+5}, s{S_WAVE}, 2
    s_mul_i32 s{S_T0+5}, s{S_T0+5}, 10240
    s_add_u32 s{S_T0+5}, s{S_T0+5}, {SCR}
    v_lshrrev_b32 v{T}, 2, v{VL}
    v_and_b32 v{T+1}, 3, v{VL}
    v_mul_u32_u24 v{T}, 3072, v{T}
    v_lshl_add_u32 v{T}, v{T+1}, 4, v{T}""")
    for i in range(10):
        A(f"""s_add_u32 m0, s{S_T0+5}, {1024*i}
        s_add_u32 s{S_T0+7}, s{S_T0+4}, {16*3072*i}
        buffer_load_dwordx4 v{T}, s[{SRD_T}:{SRD_T+3}], s{S_T0+7} offen lds""")
    filler()
    A(f"""v_lshrrev_b32 v{T+2}, 4, v{VL}
    v_lshlrev_b32 v{T+2}, 9, v{T+2}
    v_bfe_u32 v{T+3}, v{VL}, 2, 2
    v_lshl_add_u32 v{T+2}, v{T+3}, 6, v{T+2}
    v_lshl_add_u32 v{T+2}, v{T+1}, 3, v{T+2}
    v_add_u32 v{T+2}, s{S_T0+5}, v{T+2}
    v_mov_b32 v{T+4}, s{S_ONES}
    v_mov_b32 v{T+5}, s{S_ONES}
    v_mov_b32 v{T+6}, s{S_ONES}
    v_mov_b32 v{T+7}, s{S_ONES}""")
    A(f"""s_mul_i32 s{S_T0+2}, s{S_T0+2}, 3072
    s_add_u32 s{S_T0+2}, s{S_T0+2}, s{S_T0+6}
    s_add_u32 s{S_T0+2}, s{S_T0+2}, s{S_T0+1}
    s_lshl_b32 s{S_T0+2}, s{S_T0+2}, 3
    s_add_u32 s{S_T0+2}, s{S_T0+2}, {WS_CSW}
    v_lshrrev_b32 v{T+3}, 4, v{VL}
    v_lshlrev_b32 v{T+3}, 5, v{T+3}
    v_add_u32 v{T+3}, s{S_T0+2}, v{T+3}""")
    nonce_ready()
    A("s_waitcnt vmcnt(0)")
    F = T + 16
    for ks in range(5):
        for u in range(2):
            b = F + (ks * 2 + u) * 4
            A(f"ds_read_b64_tr_b16 v[{b}:{b+1}], v{T+2} offset:{ks*2048+u*32}")
            A(f"ds_read_b64_tr_b16 v[{b+2}:{b+3}], v{T+2} offset:{ks*2048+u*32+256}")
    A("s_waitcnt lgkmcnt(0)")
    for ks in range(5):
        for u in range(2):
            b = F + (ks * 2 + u) * 4
            cin = "0" if ks == 0 else f"v[{T+8+4*u}:{T+11+4*u}]"
            A(f"v_mfma_f32_16x16x32_bf16 v[{T+8+4*u}:{T+11+4*u}], v[{b}:{b+3}], v[{T+4}:{T+7}], {cin}")
    A("s_nop 7\ns_nop 1")
    for u in range(2):
        for h in range(2):
            o = F + (u * 2 + h) * 4
            A(f"""v_mov_b32 v{o}, v{T+8+4*u+2*h}
            v_mov_b32 v{o+1}, s{S_NONCE}
            v_mov_b32 v{o+2}, v{T+9+4*u+2*h}
            v_mov_b32 v{o+3}, s{S_NONCE}""")
    A(f"""v_and_b32 v{T+1}, 15, v{VL}
    v_cmp_eq_u32 vcc, 0, v{T+1}
    s_and_saveexec_b64 s[{S_EX}:{S_EX+1}], vcc""")
    for u in range(2):
        for h in range(2):
            o = F + (u * 2 + h) * 4
            A(f"global_store_dwordx4 v{T+3}, v[{o}:{o+3}], s[{S_WS}:{S_WS+1}] offset:{u*128+h*16} sc1")
    A(f"s_mov_b64 exec, s[{S_EX}:{S_EX+1}]")

def side_rowsum_ssm(T, filler):
    A(f"""s_lshl_b32 s{S_T0}, s{S_C}, 2
    s_add_u32 s{S_T0}, s{S_T0}, s{S_CB}            ; sigma'
    s_mul_i32 s{S_T0+1}, s{S_T0}, 20
    s_sub_u32 s{S_T0+2}, s{S_WAVE}, 2
    s_lshl_b32 s{S_T0+2}, s{S_T0+2}, 3
    s_add_u32 s{S_T0+1}, s{S_T0+1}, s{S_T0+2}
    s_cmp_ge_u32 s{S_T0}, 32
    s_cselect_b32 s{S_T0+4}, s{S_BIM}, s{S_BRE}
    s_cselect_b32 s{S_T0+5}, s{S_BIM+1}, s{S_BRE+1}
    s_cselect_b32 s{S_T0+3}, 640, 0
    s_sub_u32 s{S_T0+3}, s{S_T0+1}, s{S_T0+3}
    v_lshrrev_b32 v{T+60}, 4, v{VL}
    v_and_b32 v{T+61}, 15, v{VL}
    v_add_u32 v{T+62}, s{S_T0+3}, v{T+60}
    v_mul_u32_u24 v{T+62}, 1280, v{T+62}
    v_lshl_add_u32 v{T+62}, v{T+61}, 4, v{T+62}""")
    for p in range(3):
        for i in range(5):
            b = T + 20 * p + 4 * i
            A(f"global_load_dwordx4 v[{b}:{b+3}], v{T+62}, s[{S_T0+4}:{S_T0+5}] offset:{256*i}")
        if p < 2:
            A(f"v_add_u32 v{T+62}, {4*1280}, v{T+62}")
    filler()
    for p in range(3):
        A(f"v_mov_b32 v{T+64+2*p}, 0")
    A(f"""v_add_u32 v{T+60}, s{S_T0+1}, v{T+60}
    v_lshlrev_b32 v{T+60}, 3, v{T+60}
    v_add_u32 v{T+60}, {WS_CSB}, v{T+60}""")
    nonce_ready()
    for p in range(3):
        A(f"s_waitcnt vmcnt({10-5*p})")
        for d in range(20):
            A(f"v_dot2c_f32_bf16 v{T+64+2*p}, s{S_ONES}, v{T+20*p+d}")
    A("s_nop 3")
    dpp_reduce16([T + 64, T + 66, T + 68])
    for p in range(3):
        A(f"v_mov_b32 v{T+65+2*p}, s{S_NONCE}")
    A(f"""v_cmp_eq_u32 vcc, 0, v{T+61}
    s_and_saveexec_b64 s[{S_EX}:{S_EX+1}], vcc""")
    for p in range(3):
        A(f"global_store_dwordx2 v{T+60}, v[{T+64+2*p}:{T+65+2*p}], s[{S_WS}:{S_WS+1}] offset:{32*p} sc1")
    A(f"s_mov_b64 exec, s[{S_EX}:{S_EX+1}]")


SJ = 200
PA, PB = OPT.get('pa', 2), OPT.get('pb', 4)
def rows16_loads(T, rowreg, ptr):
    A(f"""v_and_b32 v{T+20}, 15, v{VL}
    v_mul_u32_u24 v{T+21}, 1280, v{rowreg}
    v_lshl_add_u32 v{T+21}, v{T+20}, 4, v{T+21}""")
    for i in range(5):
        A(f"global_load_dwordx4 v[{T+4*i}:{T+4*i+3}], v{T+21}, s[{ptr}:{ptr+1}] offset:{256*i}")
def stat_finish(a, q, rowreg, lanereg, lane):
    A(f"""v_mul_f32 v{a}, 0x3acccccd, v{a}      ; mean
    v_mul_f32 v{q}, 0x3acccccd, v{q}
    v_fma_f32 v{q}, -v{a}, v{a}, v{q}
    v_max_f32 v{q}, 0, v{q}
    v_cvt_pk_bf16_f32 v{q}, v{q}, v{q}
    v_lshlrev_b32 v{q}, 16, v{q}
    v_add_f32 v{q}, 0x3727c5ac, v{q}
    v_cvt_pk_bf16_f32 v{q}, v{q}, v{q}
    v_lshlrev_b32 v{q}, 16, v{q}
    v_sqrt_f32 v{q}, v{q}
    v_lshlrev_b32 v{rowreg}, 3, v{rowreg}
    v_add_u32 v{rowreg}, {WS_STAT}, v{rowreg}
    v_cvt_pk_bf16_f32 v{a}, v{a}, v{q}
    v_mov_b32 v{a+1}, s{S_NONCE}
    v_cmp_eq_u32 vcc, {lane}, v{lanereg}""")
def own_rows(dst):
    A(f"""s_lshr_b32 s{dst}, s{S_XCD}, 1
    s_lshl_b32 s{dst}, s{dst}, 2
    s_add_u32 s{dst}, s{dst}, s{S_J}
    s_lshl_b32 s{dst}, s{dst}, 3
    s_lshl_b32 s{dst+1}, s{S_C}, 7
    s_add_u32 s{dst}, s{dst}, s{dst+1}""")
def mlp_rows_loads():
    A(f"""v_lshrrev_b32 v242, 4, v{VL}
    s_lshl_b32 s{S_T0+1}, s{S_WAVE}, 2
    v_add_u32 v242, s{S_T0+1}, v242
    s_sub_u32 s{S_T0}, s{S_IDX}, 8
    s_min_u32 s{S_T0}, s{S_T0}, 19
    s_lshl_b32 s{S_T0}, s{S_T0}, 3
    s_lshr_b32 s{S_T0+1}, s{S_XCD}, 1
    s_mul_i32 s{S_T0+1}, s{S_T0+1}, 160
    s_add_u32 s{S_T0+2}, s{S_T0}, s{S_T0+1}
    s_bitcmp1_b32 s{S_XCD}, 0
    s_cselect_b32 s{S_T0+4}, s{S_BIM}, s{S_BRE}
    s_cselect_b32 s{S_T0+5}, s{S_BIM+1}, s{S_BRE+1}
    s_cselect_b32 s{S_T0+3}, 640, 0
    v_add_u32 v244, s{S_T0+2}, v242
    v_add_u32 v243, s{S_T0+3}, v244""")
    own_rows(S_T0)
    A(f"v_add_u32 v242, s{S_T0}, v242")
    rows16_loads(SJ, 242, S_X)
    rows16_loads(SJ + 20, 244, S_T0 + 4)
def mlp_rows_work():
    a, q, r = 244, 246, 228
    A(f"v_mov_b32 v{a}, 0\nv_mov_b32 v{q}, 0\nv_mov_b32 v{a+1}, 0\nv_mov_b32 v{q+1}, 0\ns_waitcnt vmcnt({2*(PB-PA)})")
    for d in range(20):
        A(f"v_dot2c_f32_bf16 v{a}, s{S_ONES}, v{SJ+d}")
        A(f"v_dot2c_f32_bf16 v{q}, v{SJ+d}, v{SJ+d}")
        A(f"v_dot2c_f32_bf16 v{[a+1, q+1][d % 2]}, s{S_ONES}, v{SJ+20+d}")
    A(f"s_nop 2\nv_add_f32 v{SJ}, v{a+1}, v{q+1}")
    dpp_reduce16([a, q, SJ])
    stat_finish(a, q, 242, SJ + 40, 0)
    A(f"""v_mov_b32 v{SJ+1}, s{S_NONCE}
    v_lshlrev_b32 v243, 3, v243
    v_add_u32 v243, {WS_CSB}, v243
    s_and_saveexec_b64 s[{S_EX}:{S_EX+1}], vcc
    global_store_dwordx2 v242, v[{a}:{a+1}], s[{S_WS}:{S_WS+1}] sc1
    global_store_dwordx2 v243, v[{SJ}:{SJ+1}], s[{S_WS}:{S_WS+1}] sc1
    s_mov_b64 exec, s[{S_EX}:{S_EX+1}]""")
def mlp_cs_loads():
    T = SJ
    A(f"""s_and_b32 s{S_T0}, s{S_IDX}, 3
    s_lshl_b32 s{S_T0+1}, s{S_CB}, 2
    s_add_u32 s{S_T0+1}, s{S_T0+1}, s{S_T0}
    s_bitcmp1_b32 s{S_IDX}, 2
    s_cselect_b32 s{S_T0}, 48, 0
    s_add_u32 s{S_T0+1}, s{S_T0+1}, s{S_T0}        ; strip : 32 columns of this workgroup's own tile
    s_and_b32 s{S_T0+2}, s{S_XCD}, 1
    s_lshl_b32 s{S_T0+2}, s{S_T0+2}, 1
    s_add_u32 s{S_T0+2}, s{S_T0+2}, s{S_WAVE}
    s_sub_u32 s{S_T0+2}, s{S_T0+2}, 2              ; k quarter
    s_cmp_ge_u32 s{S_T0+1}, 48""")
    srd_sel(SRD_T, S_W3, S_W1, 1966080)
    A(f"""s_cselect_b32 s{S_T0+3}, {48*64}, 0
    s_lshl_b32 s{S_T0+4}, s{S_T0+1}, 6
    s_sub_u32 s{S_T0+4}, s{S_T0+4}, s{S_T0+3}
    s_mul_i32 s{S_T0+5}, s{S_T0+2}, {160*3072}
    s_add_u32 s{S_T0+4}, s{S_T0+4}, s{S_T0+5}      ; soffset
    s_sub_u32 s{S_T0+5}, s{S_WAVE}, 2
    s_mul_i32 s{S_T0+5}, s{S_T0+5}, 10240
    s_add_u32 s{S_T0+5}, s{S_T0+5}, {SCR}
    v_lshrrev_b32 v{T}, 2, v{VL}
    v_and_b32 v{T+1}, 3, v{VL}
    v_mul_u32_u24 v{T}, 3072, v{T}
    v_lshl_add_u32 v{T}, v{T+1}, 4, v{T}""")
    for i in range(10):
        A(f"""s_add_u32 m0, s{S_T0+5}, {1024*i}
        s_add_u32 s{S_T0+7}, s{S_T0+4}, {16*3072*i}
        buffer_load_dwordx4 v{T}, s[{SRD_T}:{SRD_T+3}], s{S_T0+7} offen lds""")
    A(f"""v_lshrrev_b32 v{T+2}, 4, v{VL}
    v_lshlrev_b32 v{T+3}, 5, v{T+2}
    v_lshlrev_b32 v{T+2}, 9, v{T+2}
    v_bfe_u32 v{T}, v{VL}, 2, 2
    v_lshl_add_u32 v{T+2}, v{T}, 6, v{T+2}
    v_lshl_add_u32 v{T+2}, v{T+1}, 3, v{T+2}
    v_add_u32 v{T+2}, s{S_T0+5}, v{T+2}
    s_mul_i32 s{S_T0+2}, s{S_T0+2}, {3072*8}
    s_lshl_b32 s{S_T0+1}, s{S_T0+1}, 8
    s_add_u32 s{S_T0+2}, s{S_T0+2}, s{S_T0+1}
    s_add_u32 s{S_T0+2}, s{S_T0+2}, {WS_CSW}
    v_add_u32 v249, s{S_T0+2}, v{T+3}
    v_and_b32 v{T+1}, 15, v{VL}""")
    for i in range(4):
        A(f"v_mov_b32 v{T+4+i}, s{S_ONES}")
def mlp_cs_work():
    T = SJ
    F = T + 8
    A(f"s_waitcnt vmcnt({2*(PB-PA)})")
    for u in range(2):
        for ks in range(5):
            b = F + (u * 5 + ks) * 4
            A(f"ds_read_b64_tr_b16 v[{b}:{b+1}], v{T+2} offset:{ks*2048+u*32}")
            A(f"ds_read_b64_tr_b16 v[{b+2}:{b+3}], v{T+2} offset:{ks*2048+u*32+256}")
    A(f"v_cmp_eq_u32 vcc, 0, v{T+1}\ns_waitcnt lgkmcnt(0)")
    D = [T, F]
    for u in range(2):
        for ks in range(5):
            b, d = F + (u * 5 + ks) * 4, D[u]
            cin = "0" if ks == 0 else f"v[{d}:{d+3}]"
            A(f"v_mfma_f32_16x16x32_bf16 v[{d}:{d+3}], v[{b}:{b+3}], v[{T+4}:{T+7}], {cin}")
    A("s_nop 7")
    for u in range(2):
        d, o = D[u], F + 4 + 8 * u
        for r in range(4):
            A(f"v_mov_b32 v{o+2*r}, v{d+r}\nv_mov_b32 v{o+2*r+1}, s{S_NONCE}")
    A(f"s_and_saveexec_b64 s[{S_EX}:{S_EX+1}], vcc")
    for u in range(2):
        for h in range(2):
            o = F + 4 + 8 * u + 4 * h
            A(f"global_store_dwordx4 v249, v[{o}:{o+3}], s[{S_WS}:{S_WS+1}] offset:{u*128+h*16} sc1")
    A(f"s_mov_b64 exec, s[{S_EX}:{S_EX+1}]")
def ssm_rows_loads():
    own_rows(S_T0)
    A(f"""v_lshrrev_b32 v246, 5, v{VL}
    s_lshl_b32 s{S_T0+1}, s{S_WAVE}, 1
    s_add_u32 s{S_T0}, s{S_T0}, s{S_T0+1}
    v_add_u32 v246, s{S_T0}, v246
    v_and_b32 v247, 31, v{VL}
    v_mul_u32_u24 v249, 1280, v246
    v_lshl_add_u32 v249, v247, 3, v249""")
    for i in range(5):
        A(f"global_load_dwordx2 v[{236+2*i}:{237+2*i}], v249, s[{S_X}:{S_X+1}] offset:{256*i}")
def ssm_rows_work():
    A(f"v_mov_b32 v249, 0\nv_mov_b32 v251, 0\ns_waitcnt vmcnt({2*(PB-PA)})")
    for d in range(10):
        A(f"v_dot2c_f32_bf16 v249, s{S_ONES}, v{236+d}")
        A(f"v_dot2c_f32_bf16 v251, v{236+d}, v{236+d}")
    A("s_nop 2\nv_mov_b32 v236, v249")
    reduce32([236, 251])
    stat_finish(236, 251, 246, 247, 16)
    A(f"""s_and_saveexec_b64 s[{S_EX}:{S_EX+1}], vcc
    global_store_dwordx2 v246, v[236:237], s[{S_WS}:{S_WS+1}] sc1
    s_mov_b64 exec, s[{S_EX}:{S_EX+1}]""")
def touch_w2(T):
    G = OPT.get("tg", 128)
    sh = G.bit_length() - 1
    n2, nc = 7680 // G, 3200 // G
    if OPT.get("tm", 1):
        A(f"""s_sub_u32 s{S_T0+3}, s2, 64
        s_cmp_lt_u32 s{S_WAVE}, 2
        s_cselect_b32 s{S_T0}, 39, 33
        s_mov_b32 s{S_T0+1}, 4352
        s_cmov_b32 s{S_T0+1}, 10240
        s_cselect_b32 s{S_T0+4}, s{S_W2}, s{S_CRE}
        s_cselect_b32 s{S_T0+5}, s{S_W2+1}, s{S_CRE+1}
        s_mov_b32 s{S_T0+6}, 819196
        s_cmov_b32 s{S_T0+6}, 1966076
        s_cmp_eq_u32 s{S_WAVE}, 3
        s_cselect_b32 s{S_T0+4}, s{S_CIM}, s{S_T0+4}
        s_cselect_b32 s{S_T0+5}, s{S_CIM+1}, s{S_T0+5}
        s_mul_i32 s{S_T0+1}, s{S_T0+1}, s{S_T0+3}
        s_cmp_eq_u32 s{S_WAVE}, 1
        s_cselect_b32 s{S_T0+2}, 5120, 0
        s_add_u32 s{S_T0+1}, s{S_T0+1}, s{S_T0+2}
        v_min_u32 v{T}, s{S_T0}, v{VL}
        v_lshlrev_b32 v{T}, 7, v{T}
        v_add_u32 v{T}, s{S_T0+1}, v{T}
        v_min_u32 v{T}, s{S_T0+6}, v{T}
        global_load_dword v{T}, v{T}, s[{S_T0+4}:{S_T0+5}]""")
        return
    if G == 128:
        l = A.newlabel("L_tw")
        A(f"""s_cmp_eq_u32 s{S_WAVE}, 3
        s_cbranch_scc1 {l}
        s_cmp_eq_u32 s{S_WAVE}, 0
        s_cselect_b32 s{S_T0}, {n2-1}, {nc-1}
        s_mov_b32 s{S_T0+1}, 3200
        s_cmov_b32 s{S_T0+1}, 7680
        s_cselect_b32 s{S_T0+4}, s{S_W2}, s{S_CRE}
        s_cselect_b32 s{S_T0+5}, s{S_W2+1}, s{S_CRE+1}
        s_cmp_eq_u32 s{S_WAVE}, 2
        s_cselect_b32 s{S_T0+4}, s{S_CIM}, s{S_T0+4}
        s_cselect_b32 s{S_T0+5}, s{S_CIM+1}, s{S_T0+5}""")
    else:
        l = A.newlabel("L_tw")
        A(f"""s_cmp_lt_u32 s{S_WAVE}, 2
        s_cselect_b32 s{S_T0}, {n2//2-1}, {nc-1}
        s_mov_b32 s{S_T0+1}, 3200
        s_cmov_b32 s{S_T0+1}, 7680
        s_cselect_b32 s{S_T0+4}, s{S_W2}, s{S_CRE}
        s_cselect_b32 s{S_T0+5}, s{S_W2+1}, s{S_CRE+1}
        s_cmp_eq_u32 s{S_WAVE}, 3
        s_cselect_b32 s{S_T0+4}, s{S_CIM}, s{S_T0+4}
        s_cselect_b32 s{S_T0+5}, s{S_CIM+1}, s{S_T0+5}""")
    A(f"""s_mul_i32 s{S_T0+1}, s{S_T0+1}, s2
    s_cmp_eq_u32 s{S_WAVE}, 1
    s_cselect_b32 s{S_T0+2}, {3840 if G == 64 else 0}, 0
    s_add_u32 s{S_T0+1}, s{S_T0+1}, s{S_T0+2}
    v_min_u32 v{T}, s{S_T0}, v{VL}
    v_lshlrev_b32 v{T}, {sh}, v{T}
    v_add_u32 v{T}, s{S_T0+1}, v{T}
    global_load_dword v{T}, v{T}, s[{S_T0+4}:{S_T0+5}]""")
    A.label(l)
def by_wave(lo, hi):
    l1, l2 = A.newlabel("L_bw"), A.newlabel("L_bw")
    A(f"s_cmp_ge_u32 s{S_WAVE}, 2\ns_cbranch_scc1 {l1}")
    lo()
    A(f"s_branch {l2}")
    A.label(l1)
    hi()
    A.label(l2)

def zero_regs(lo, n):
    def f():
        for r in range(lo, lo + n):
            A(f"v_mov_b32 v{r}, 0")
    return f

def rowpat_read(dst, tmp):
    A(f"""v_bfe_u32 v{tmp}, v{VL}, 1, 3
    v_lshrrev_b32 v{dst}, 4, v{VL}
    v_xor_b32 v{tmp}, v{tmp}, v{dst}
    v_and_b32 v{dst}, 15, v{VL}
    v_lshlrev_b32 v{dst}, 7, v{dst}
    v_lshl_add_u32 v{dst}, v{tmp}, 4, v{dst}""")

def touch_inputs(T):
    if not OPT["pf"]:
        return
    G = OPT.get("tg", 64)
    plan = [[(S_X, 10240)], [(S_W1, 7680), (S_BRE, 3200)], [(S_W3, 7680), (S_BIM, 3200)], [(S_W2, 7680), (S_CRE, 3200), (S_CIM, 3200)]]
    done = A.newlabel("L_ti")
    sh = G.bit_length() - 1
    for w, segs in enumerate(plan):
        nx = A.newlabel("L_ti")
        if w < 3:
            A(f"s_cmp_lg_u32 s{S_WAVE}, {w}\ns_cbranch_scc1 {nx}")
        k = 0
        for p, n in segs:
            cnt = n // G
            A(f"s_mul_i32 s{S_T0}, s2, {n}")
            for o in range(0, cnt, 64):
                A(f"""v_add_u32 v{T}, {o}, v{VL}
                v_min_u32 v{T}, {cnt-1}, v{T}
                v_lshlrev_b32 v{T}, {sh}, v{T}
                v_add_u32 v{T}, s{S_T0}, v{T}
                global_load_dword v{244+k}, v{T}, s[{p}:{p+1}]""")
                k += 1
        if w < 3:
            A(f"s_branch {done}")
            A.label(nx)
    A.label(done)
def gemm1_loop(kind):
    mlp = kind == "mlp"
    NB = 8 if mlp else 10
    NS = 5
    SLOT = 16384 if mlp else 20480
    XF = 128 if mlp else 160
    WF = XF + 32
    AX = WF + NB * 4
    AW = AX + 2
    nAW = 4 if mlp else 2
    D = D1 if mlp else OPT["D1S"]
    lg = Queue(A, "lgkmcnt", 15)

    def rd_x(ks, T):
        b = XF + ks * 16 + T * 4
        if OPT["noread"]:
            return
        A(f"ds_read_b128 v[{b}:{b+3}], v{AX+ks} offset:{T*2048}")
        lg.issue(("x", ks))
    def rd_w(j, gen, half=None):
        b = WF + j * 4
        if OPT["noread"]:
            return
        if mlp:
            F, c = j // 2, j % 2
            for h in ((0, 1) if half is None else (half,)):
                A(f"ds_read_b64_tr_b16 v[{b+2*h}:{b+2*h+1}], v{AW+F} offset:{c*8192+1024*h}")
                lg.issue(("w", j, gen))
        else:
            ks, G = j // 5, j % 5
            A(f"ds_read_b128 v[{b}:{b+3}], v{AW+ks} offset:{G*2048}")
            lg.issue(("w", j, gen))
    def mf(j, T, par):
        w = WF + j * 4
        if (OPT["nomfma"] == 1 and T > 0) or OPT["nomfma"] == 2:
            return
        if mlp:
            acc = (j * 4 + T) * 4
            x = XF + par * 16 + T * 4
            A(f"v_mfma_f32_16x16x32_bf16 v[{acc}:{acc+3}], v[{w}:{w+3}], v[{x}:{x+3}], v[{acc}:{acc+3}]")
        else:
            acc = (((j % 5) * 2 + par) * 4 + T) * 4
            x = XF + (j // 5) * 16 + T * 4
            A(f"v_mfma_f32_16x16x32_bf16 v[{acc}:{acc+3}], v[{x}:{x+3}], v[{w}:{w+3}], v[{acc}:{acc+3}]")
    def xreads(par, j):
        k = j + D - NB
        if mlp:
            return [(par ^ 1, T) for T in ([2 * k, 2 * k + 1] if 0 <= k < 2 else [])]
        if par == 1:
            return [(0, T) for T in ([2 * k, 2 * k + 1] if 0 <= k < 2 else [])]
        return [(1, T) for T in ([2 * j, 2 * j + 1] if j < 2 else [])]
    assert mlp or NB - D >= 5

    A(f"s_mov_b32 s{S_SLOT}, 0\ns_mov_b32 s{S_CNT}, 0\ns_mov_b32 s{S_KX}, 0")
    vFP, vFV, vFD = 248, 249, 250
    A(f"s_mov_b32 m0, s{S_FR}\ns_mov_b32 s{S_LMT}, {PA or PB}")
    assert PA
    flag_wait(1, vFD, vFP)
    A(f"v_add_u32 v{vFP}, 4, v{vFP}")
    if TS:
        A("s_mov_b32 s48, 0\ns_mov_b32 s49, 0")
    ts(2, 2)
    tc(12)
    for j in range(D):
        rd_w(j, 0)
        for ks, T in xreads(1, j + NB - D):
            rd_x(ks, T)
    lbl = f"L_g1_{kind}"
    A(f"""s_mov_b32 s{S_T0}, {SLOT}
    s_mov_b32 s{S_T0+1}, {-(NS-1)*SLOT & 0xffffffff}
    s_mov_b32 s{S_T0+2}, 16384
    s_mov_b32 s{S_T0+3}, {-32768 & 0xffffffff}""")
    A.label(lbl)
    entry = list(lg.q)
    ring = [f"s_add_u32 s{S_SLOT}, s{S_SLOT}, 1\ns_cmp_eq_u32 s{S_SLOT}, {NS}",
            f"s_cselect_b32 s{S_DELTA}, s{S_T0+1}, s{S_T0}\ns_cselect_b32 s{S_SLOT}, 0, s{S_SLOT}"]
    xring = [f"s_add_u32 s{S_KX}, s{S_KX}, 1\ns_cmp_eq_u32 s{S_KX}, 3",
             f"s_cselect_b32 s{S_KW}, s{S_T0+3}, s{S_T0+2}\ns_cselect_b32 s{S_KX}, 0, s{S_KX}"]
    def adv(r, d):
        return f"v_add_u32 v{r}, s{d}, v{r}"
    for par in range(2):
        fill = {}
        if mlp:
            assert D == 4
            fill[(0, 2)] = ring[0]; fill[(1, 2)] = ring[1]
            fill[(2, 2)] = adv(AW, S_DELTA) + "\n" + adv(AW + 1, S_DELTA)
            fill[(6, 2)] = adv(AW + 2, S_DELTA) + f"\ns_add_u32 m0, m0, 4"; fill[(7, 2)] = adv(AW + 3, S_DELTA)
            fill[(0, 3)] = f"v_add_u32 v{vFP}, 4, v{vFP}"
            fpos, cpos, wpos = (1, 3), (3, 0), (7, 2)
            if par == 0:
                fill[(3, 2)] = xring[0]; fill[(3, 3)] = xring[1]
            else:
                fill[(3, 2)] = adv(AX, S_KW) + "\n" + adv(AX + 1, S_KW)
                fill[(7, 3)] = f"s_add_u32 s{S_CNT}, s{S_CNT}, 1\ns_cmp_lt_u32 s{S_CNT}, s{S_LMT}"
        else:
            assert D == 5
            fill[(2, 1)] = ring[0]; fill[(2, 2)] = ring[1]
            fill[(3, 1)] = adv(AW, S_DELTA); fill[(7, 1)] = adv(AW + 1, S_DELTA)
            fill[(1, 3)] = f"v_add_u32 v{vFP}, 4, v{vFP}"
            fill[(8, 3)] = f"s_add_u32 m0, m0, 4"
            fpos, cpos, wpos = (2, 3), (4, 2), (9, 2)
            if par == 0:
                fill[(8, 1)] = xring[0]; fill[(8, 2)] = xring[1]
            else:
                fill[(4, 1)] = adv(AX, S_KW) + "\n" + adv(AX + 1, S_KW)
                fill[(9, 1)] = f"s_add_u32 s{S_CNT}, s{S_CNT}, 1\ns_cmp_lt_u32 s{S_CNT}, s{S_LMT}"
        for j in range(NB):
            tags = [("w", j, par)]
            if j == 0:
                tags.append(("x", par if mlp else 0))
            if j == 5 and not mlp:
                tags.append(("x", 1))
            jn = j + D
            if jn == NB - 1:
                tags.append("flag")
            lg.wait(tags)
            acts = {0: [], 1: [], 2: [], 3: []}
            g = 0
            if jn == NB:
                acts[0].append(lambda: flag_test(None, vFD, vFP, 0, acc=48, split=True))
                g = 1
            wj, wg = (jn, par) if jn < NB else (jn - NB, par ^ 1)
            if mlp:
                acts[g].append(lambda wj=wj, wg=wg: rd_w(wj, wg, 0))
                acts[g + 1].append(lambda wj=wj, wg=wg: rd_w(wj, wg, 1))
                g += 2
            else:
                acts[g].append(lambda wj=wj, wg=wg: rd_w(wj, wg, 0))
                g += 1
            for n_, (ks, T) in enumerate(xreads(par, j)):
                acts[min(g + n_, 3)].append(lambda ks=ks, T=T: rd_x(ks, T))
            for T in range(4):
                mf(j, T, par)
                for f in acts[T]:
                    f()
                if (j, T) in fill:
                    A(fill[(j, T)])
                if (j, T) == fpos:
                    A(f"ds_read_b32 v{vFD}, v{vFP}")
                    lg.issue("flag")
                if (j, T) == cpos:
                    A(f"v_cmp_ne_u32 vcc, s{S_K}, v{vFD}")
                if (j, T) == wpos:
                    A(f"buffer_load_dword v{VZ}, s[{SRD_F}:{SRD_F+3}], 0 offen lds")
    A(f"s_cbranch_scc1 {lbl}")
    lfin = A.newlabel("L_g1e")
    A(f"s_cmp_eq_u32 s{S_CNT}, 10\ns_cbranch_scc1 {lfin}")
    if PA:
        lw_ = A.newlabel("L_g1w")
        A(f"s_cmp_lg_u32 s{S_CNT}, {PA}\ns_cbranch_scc1 {lw_}")
        if TS == 1:
            ts(30, 2)
        A(f"s_mov_b32 s{S_FR}, m0")
        nonce_load()
        A(f"s_mov_b64 s[{S_M0}:{S_M0+1}], s[{S_T0}:{S_T0+1}]\ns_mov_b64 s[{S_M1}:{S_M1+1}], s[{S_T0+2}:{S_T0+3}]")
        if OPT.get("tw", 3) == 2 and mlp:
            touch_w2(251)
        if mlp:
            by_wave(mlp_rows_loads, mlp_cs_loads)
        else:
            ssm_rows_loads()
        A(f"""s_mov_b64 s[{S_T0}:{S_T0+1}], s[{S_M0}:{S_M0+1}]
        s_mov_b64 s[{S_T0+2}:{S_T0+3}], s[{S_M1}:{S_M1+1}]
        s_mov_b32 m0, s{S_FR}
        s_mov_b32 s{S_LMT}, {PB}""")
        if TS == 1:
            A(f"s_memrealtime s[{S_TS}:{S_TS+1}]\ns_sleep 2\nv_writelane_b32 v255, s{S_TS}, 31")
        A(f"s_branch {lbl}")
        A.label(lw_)
    if TS == 1:
        ts(32, 2)
    nonce_ready()
    if mlp:
        by_wave(mlp_rows_work, mlp_cs_work)
        if OPT.get("tw", 3) == 3:
            A(f"s_mov_b64 s[{S_M0}:{S_M0+1}], s[{S_T0}:{S_T0+1}]\ns_mov_b64 s[{S_M1}:{S_M1+1}], s[{S_T0+2}:{S_T0+3}]")
            touch_w2(251)
            A(f"s_mov_b64 s[{S_T0}:{S_T0+1}], s[{S_M0}:{S_M0+1}]\ns_mov_b64 s[{S_T0+2}:{S_T0+3}], s[{S_M1}:{S_M1+1}]")
    else:
        ssm_rows_work()
    if TS == 1:
        ts(33, 2)
    A(f"s_mov_b32 s{S_LMT}, 10\ns_branch {lbl}")
    A.label(lfin)
    assert lg.q == entry[len(entry) - len(lg.q):]
    return lg, entry, AX, AW

G2_B = 96
G2_A = 128
NS2, SL2 = 9, 16384
def g2slot(s):
    return (s % NS2) * SL2

def rot_next(s, stepA, stepB, baseB):
    if s == 11:
        A(f"s_mul_i32 s{S_KB}, s{S_R2B}, {stepB}")
        if baseB:
            A(f"s_add_u32 s{S_KB}, s{S_KB}, {baseB}")
    elif s < 11:
        A(f"""s_add_u32 s{S_KB}, s{S_KB}, {stepA}
        s_cmp_eq_u32 s{S_KB}, {12*stepA}
        s_cselect_b32 s{S_KB}, 0, s{S_KB}""")
    elif s < 21:
        A(f"""s_add_u32 s{S_KB}, s{S_KB}, {stepB}
        s_cmp_eq_u32 s{S_KB}, {baseB+10*stepB}
        s_cselect_b32 s{S_KB}, {baseB}, s{S_KB}""")

def gemm2_compute(NT):
    NH = NT // 2
    DA = 3 if NT == 6 else OPT.get("DA2", 5)
    RED = 4 * SL2
    GB, GA_ = 48, 112
    vW, vC, vB = 204, 208, 212
    vA = 220
    vT = 224
    vFA, vFP, vFV, vFD, vG = 232, 233, 234, 235, 236
    X, ST, DK, TT = 128, 140, 148, 156
    A(f"""s_lshl_b32 s{S_T0}, s{S_T0}, 5
    s_add_u32 s{S_T0}, s{S_T0}, s{S_T0+1}
    s_lshl_b32 s{S_T0}, s{S_T0}, 2
    s_add_u32 s{S_T0+3}, s{S_T0}, {WS_FLAG}
    s_and_b32 s{S_T0+4}, s{S_WAVE}, 1
    s_mul_i32 s{S_T0+4}, s{S_T0+4}, {NH}
    s_add_u32 s{S_T0+4}, s{S_T0+4}, s{S_TG}            ; first row tile of this wave
    s_and_b32 s{S_T0+5}, s{S_WAVE}, 2""")
    A(f"""s_lshl_b32 s{S_T0}, s{S_T0+4}, 4
    v_and_b32 v{vT}, 15, v{VL}
    v_add_u32 v{vT}, s{S_T0}, v{vT}                    ; row
    v_lshrrev_b32 v{vT+1}, 4, v{VL}
    s_lshl_b32 s{S_T0+1}, s{S_T0+5}, 4
    s_add_u32 s{S_T0+1}, s{S_T0+1}, s{S_DCOL}
    v_lshl_add_u32 v{vT+1}, v{vT+1}, 2, s{S_T0+1}      ; column
    v_mul_u32_u24 v{vT+2}, 640, v{vT}
    v_add_u32 v{vT+2}, v{vT+2}, v{vT+1}
    v_lshlrev_b32 v{vT+3}, 2, v{vT+2}
    v_lshlrev_b32 v{vT+2}, 1, v{vT+2}
    v_lshlrev_b32 v{vT+1}, 1, v{vT+1}
    v_lshlrev_b32 v{vT+4}, 3, v{vT}
    v_add_u32 v{vT+4}, {WS_STAT}, v{vT+4}""")
    for Tp in range(NH):
        for U in range(2):
            A(f"global_load_dwordx2 v[{X+4*Tp+2*U}:{X+4*Tp+2*U+1}], v{vT+2}, s[{S_X}:{S_X+1}] offset:{32*U}")
        if Tp < NH - 1:
            A(f"v_add_u32 v{vT+2}, {16*1280}, v{vT+2}")
    for U in range(2):
        A(f"global_load_dwordx2 v[{DK+4*U}:{DK+4*U+1}], v{vT+1}, s[{S_DSK}:{S_DSK+1}] offset:{32*U}")
    def stat_loads_():
        for Tp in range(NH):
            A(f"global_load_dwordx2 v[{ST+2*Tp}:{ST+2*Tp+1}], v{vT+4}, s[{S_WS}:{S_WS+1}] offset:{128*Tp} sc1")
    stat_loads_()
    A(f"""v_lshrrev_b32 v{vT}, 4, v{VL}               ; q
    v_bfe_u32 v{vT+1}, v{VL}, 2, 2                     ; rr
    v_lshl_add_u32 v{vT+1}, v{vT}, 2, v{vT+1}          ; 4q + rr
    v_bfe_u32 v{vT+5}, v{vT+1}, 1, 2                   ; swizzle
    s_lshl_b32 s{S_T0}, s{S_T0+5}, 5
    v_add_u32 v{vT+1}, s{S_T0}, v{vT+1}
    v_lshlrev_b32 v{vT+1}, 7, v{vT+1}
    v_and_b32 v{vT+2}, 3, v{VL}
    v_lshl_add_u32 v{vT+1}, v{vT+2}, 3, v{vT+1}
    v_and_b32 v{vT+2}, 1, v{vT}
    s_lshl_b32 s{S_T0}, s{S_T0+5}, 1
    v_add_u32 v{vT+2}, s{S_T0}, v{vT+2}
    v_bfe_u32 v{vT+6}, v{VL}, 1, 3
    v_xor_b32 v{vT+2}, v{vT+2}, v{vT+6}
    v_lshrrev_b32 v{vT}, 1, v{vT}
    v_lshlrev_b32 v{vT}, 13, v{vT}
    v_lshl_add_u32 v{vT}, v{vT+2}, 4, v{vT}
    v_and_b32 v{vT+6}, 15, v{VL}
    v_lshl_add_u32 v{vT}, v{vT+6}, 7, v{vT}""")
    for Up in range(4):
        A(f"""s_xor_b32 s{S_T0}, s{S_T0+5}, {Up}
        v_xor_b32 v{vT+2}, s{S_T0}, v{vT+5}
        v_lshl_add_u32 v{vW+Up}, v{vT+2}, 5, v{vT+1}
        s_lshl_b32 s{S_T0}, s{S_T0}, 11
        v_add_u32 v{vC+Up}, s{S_T0}, v{vT}""")
    A(f"v_lshlrev_b32 v{vT}, 4, v{VL}\ns_lshl_b32 s{S_T0+1}, s{S_HB2}, 2\ns_sub_u32 s{S_T0+1}, s{S_T0+4}, s{S_T0+1}")
    for Tp in range(NH):
        A(f"""s_add_u32 s{S_T0}, s{S_T0+1}, {Tp}
        s_lshr_b32 s{S_T0+2}, s{S_T0}, 2
        s_mul_i32 s{S_T0+2}, s{S_T0+2}, {88*4-4}
        s_add_u32 s{S_T0}, s{S_T0}, s{S_T0+2}
        s_lshl_b32 s{S_T0}, s{S_T0}, 10
        v_add_u32 v{vA+Tp}, s{S_T0}, v{vT}""")
    A(f"""s_mul_i32 s{S_T0}, s{S_HB2}, {88*4096}
    s_lshl_b32 s{S_T0+1}, s{S_T0+5}, 12
    s_add_u32 s{S_T0}, s{S_T0}, s{S_T0+1}
    s_add_u32 s{S_T0}, s{S_T0}, {WS_ACT}
    s_add_u32 s{SRD_T}, s{S_WS}, s{S_T0}
    s_addc_u32 s{SRD_T+1}, s{S_WS+1}, 0
    s_mov_b32 s{SRD_T+2}, {(88+86)*4096}
    s_mov_b32 s{SRD_T+3}, 0x20000
    s_lshl_b32 s{S_KB}, s{S_R2A}, 14""")
    lr, lo = A.newlabel("L_fl"), A.newlabel("L_fl")
    A(f"""s_lshl_b32 s{S_T0}, s{S_HB2}, 7
    s_add_u32 s{S_T0}, s{S_T0}, {WS_FLAG}
    v_and_b32 v{vFA}, {63 if NT == 6 else 31}, v{VL}
    v_lshlrev_b32 v{vFA}, 2, v{vFA}
    v_add_u32 v{vFA}, s{S_T0}, v{vFA}
    s_lshr_b32 s{S_T0+1}, s{S_WAVE}, 1
    s_lshl_b32 s{S_T0+1}, 0x555555, s{S_T0+1}
    v_mov_b32 v{vT}, s{S_T0+3}
    v_mov_b32 v{vT+1}, s{S_NONCE}
    s_waitcnt vmcnt({3*NH+2})
    s_mov_b64 exec, 1
    global_store_dword v{vT}, v{vT+1}, s[{S_WS}:{S_WS+1}] sc1
    s_mov_b64 exec, -1""")
    ts(6, 2)
    ls, lk = A.newlabel("L_st"), A.newlabel("L_st")
    A("s_waitcnt vmcnt(1)")
    A.label(ls)
    A(f"s_mov_b64 s[{S_M0}:{S_M0+1}], 0")
    for Tp in range(NH):
        A(f"v_cmp_ne_u32 vcc, s{S_NONCE}, v{ST+2*Tp+1}\ns_nop 1\ns_or_b64 s[{S_M0}:{S_M0+1}], s[{S_M0}:{S_M0+1}], vcc")
    A(f"s_cmp_eq_u64 s[{S_M0}:{S_M0+1}], 0\ns_cbranch_scc1 {lk}")
    stat_loads_()
    A("s_waitcnt vmcnt(0)")
    spin_tail(ls, lk, 1)
    A.label(lk)
    def unpack(dst, src):
        A(f"""v_and_b32 v{dst+3}, 0xffff0000, v{src+1}
        v_lshlrev_b32 v{dst+2}, 16, v{src+1}
        v_and_b32 v{dst+1}, 0xffff0000, v{src}
        v_lshlrev_b32 v{dst}, 16, v{src}""")
    def rnd(r, t):
        A(f"""v_cvt_pk_bf16_f32 v{t}, v{r}, v{r+1}
        v_cvt_pk_bf16_f32 v{t+1}, v{r+2}, v{r+3}""")
        unpack(r, t)
    unpack(DK, DK)
    unpack(DK + 4, DK + 4)
    EP = OPT.get("epoll", 9)
    for Tp in range(NH):
        st_ = ST + 2 * Tp
        if Tp == min(EP, NH - 1) and EP < 9:
            A(f"global_load_dword v{vG}, v{vFA}, s[{S_WS}:{S_WS+1}] sc1")
        A(f"""v_and_b32 v{st_+1}, 0xffff0000, v{st_}
        v_lshlrev_b32 v{st_}, 16, v{st_}
        v_rcp_f32 v{st_+1}, v{st_+1}""")
        for U in range(2):
            acc = (U * NH + Tp) * 4
            unpack(acc, X + 4 * Tp + 2 * U)
            for h in (0, 2):
                A(f"v_pk_add_f32 v[{TT+h}:{TT+h+1}], v[{acc+h}:{acc+h+1}], v[{st_}:{st_+1}] op_sel_hi:[1,0] neg_lo:[0,1] neg_hi:[0,1]")
            rnd(TT, TT + 4)
            for h in (0, 2):
                A(f"v_pk_mul_f32 v[{TT+h}:{TT+h+1}], v[{TT+h}:{TT+h+1}], v[{st_}:{st_+1}] op_sel:[0,1] op_sel_hi:[1,1]")
            rnd(TT, TT + 4)
            for h in (0, 2):
                A(f"v_pk_mul_f32 v[{TT+h}:{TT+h+1}], v[{TT+h}:{TT+h+1}], v[{DK+4*U+h}:{DK+4*U+h+1}]")
            rnd(TT, TT + 4)
            for h in (0, 2):
                A(f"v_pk_add_f32 v[{acc+h}:{acc+h+1}], v[{acc+h}:{acc+h+1}], v[{TT+h}:{TT+h+1}]")
    if EP < 9:
        A(f"s_branch {lr}b")
    A.label(lr)
    A(f"global_load_dword v{vG}, v{vFA}, s[{S_WS}:{S_WS+1}] sc1")
    A.label(f"{lr}b")
    A(f"""s_waitcnt vmcnt(0)
    v_cmp_eq_u32 vcc, s{S_NONCE}, v{vG}
    s_nop 1
    s_and_b32 s{S_T0+2}, vcc_lo, vcc_hi
    s_and_b32 s{S_T0+2}, s{S_T0+2}, s{S_T0+1}
    s_cmp_eq_u32 s{S_T0+2}, s{S_T0+1}
    s_cbranch_scc1 {lo}""")
    spin_tail(lr, lo, 2)
    A.label(lo)
    ts(7, 2)
    tc(14)
    if TS:
        A("s_mov_b32 s48, 0\ns_mov_b32 s49, 0")
    vm = Queue(A, "vmcnt", 63)
    A(f"s_add_u32 s{S_T0+4}, s{S_KB}, 4096\nv_lshlrev_b32 v{vFA}, 4, v{VL}\nv_add_u32 v{vFA}, {AUX}, v{vFA}")
    def ldA1(s, i):
        u, Tp = i // NH, i % NH
        b = GA_ + ((s % DA) * NT + i) * 4
        A(f"buffer_load_dwordx4 v[{b}:{b+3}], v{vA+Tp}, s[{SRD_T}:{SRD_T+3}], s{S_T0+4 if u else S_KB} offen sc1")
        vm.issue(("a", s))
        if i == NT - 1:
            rot_next(s, 16384, 16384, 12 * 16384)
            if s < 21:
                A(f"s_add_u32 s{S_T0+4}, s{S_KB}, 4096")
    def ldA(s):
        for i in range(NT):
            ldA1(s, i)
    def rdB(s, j):
        u, U = j // 4, j % 4
        b = GB + (s % 2) * 32 + j * 4
        if s < 12:
            A(f"ds_read_b64_tr_b16 v[{b}:{b+1}], v{vB+U} offset:{4096*u}")
            A(f"ds_read_b64_tr_b16 v[{b+2}:{b+3}], v{vB+U} offset:{4096*u+2048}")
        else:
            A(f"ds_read_b128 v[{b}:{b+3}], v{vB+j}")
    def setB(s, us=range(4)):
        for U in us:
            A(f"v_add_u32 v{vB+U}, {g2slot(s)}, v{(vW if s < 12 else vC)+U}")
    def setB2(s, us=range(4)):
        if s >= 12:
            for U in us:
                A(f"v_xor_b32 v{vB+4+U}, 32, v{vB+U}")
    assert GA_ + DA * NT * 4 <= vW
    peer_addr(vFP, FLG)
    R0 = OPT.get("ramp", 2) if NT == 6 else DA - 1
    st = {"nxt": R0}
    for s in range(R0):
        ldA(s)
    A(f"v_mov_b32 v{vFV}, s{S_K}")
    flag_wait(22, vFD, vFP)
    setB(0)
    for j in range(8):
        rdB(0, j)
    A(f"ds_read_b32 v{vFD}, v{vFP} offset:{4*23}")
    GATE = 12 - (DA - 1)
    def stage(s, limit):
        A(f"s_waitcnt lgkmcnt({1 if s else 0})")
        if TS == 2:
            ts(16 + s, 2)
        if TS == 3:
            A(f"s_memtime s[{S_TS}:{S_TS+1}]\ns_waitcnt lgkmcnt(0)\ns_mov_b32 s50, s{S_TS}")
        vm.wait(("a", s))
        if TS == 3:
            A(f"s_memtime s[{S_TS}:{S_TS+1}]\ns_waitcnt lgkmcnt(0)\ns_sub_u32 s50, s{S_TS}, s50\nv_writelane_b32 v255, s50, {16+s}\nv_writelane_b32 v255, s{S_TS}, {40+s}")
        todo = []
        while st["nxt"] <= min(limit, s - 1 + DA, 21) and len(todo) < 2 * NT:
            todo += [(st["nxt"], i) for i in range(NT)]
            st["nxt"] += 1
        acts = []
        if s < 21:
            acts.append(lambda: (A(f"v_cmp_ne_u32 vcc, s{S_K}, v{vFD}"), setB(s + 1, (0,))))
            acts.append(lambda: setB(s + 1, (1, 2)))
            acts.append(lambda: (flag_test(23 + s, vFD, vFP, 4 * (23 + s), split=True, acc=48), setB(s + 1, (3,))))
            for j in range(8):
                acts.append(lambda j=j: (rdB(s + 1, j), setB2(s + 1, (j,)) if j < 4 else None))
        if s < 20:
            acts.append(lambda: A(f"ds_read_b32 v{vFD}, v{vFP} offset:{4*(24+s)}"))
        if s == GATE - 1:
            acts.append(lambda: A(f"ds_read_b32 v{vG}, v{vFA}"))
        acts.append(lambda: A(f"ds_write_b32 v{VFO}, v{vFV} offset:{4*(21+s)}"))
        lds = [lambda x=x: ldA1(*x) for x in todo]
        nm = 4 * NT
        sched = {i: [] for i in range(nm)}
        per = -(-len(acts) // max(nm - 2, 1))
        for i, f in enumerate(acts):
            sched[i // per].append(f)
        first = OPT.get("lf", 12) if NT == 6 else 0
        for i, f in enumerate(lds):
            sched[min(first + i * (nm - first) // len(lds), nm - 1)].append(f)
        n = 0
        for u in range(2):
            for U in range(4):
                for Tp in range(NH):
                    acc = (U * NH + Tp) * 4
                    w = GB + (s % 2) * 32 + (u * 4 + U) * 4
                    a = GA_ + ((s % DA) * NT + u * NH + Tp) * 4
                    cin = "0" if (s == 0 and u == 0 and U >= 2) else f"v[{acc}:{acc+3}]"
                    A(f"v_mfma_f32_16x16x32_bf16 v[{acc}:{acc+3}], v[{w}:{w+3}], v[{a}:{a+3}], {cin}")
                    for f in sched[n]:
                        f()
                    n += 1
    llate, ljoin = A.newlabel("L_late"), A.newlabel("L_join")
    for s in range(22):
        if s == GATE:
            assert st["nxt"] == 12
            A("s_waitcnt lgkmcnt(1)")
            A(f"v_cmp_le_u32 vcc, 3, v{vG}\ns_cbranch_vccz {llate}")
            keep = list(vm.q)
            mark = len(A.lines)
            A.label(llate)
            for s2_ in range(GATE, 12):
                stage(s2_, 11)
            lr, lo = A.newlabel("L_fs"), A.newlabel("L_fs")
            A.label(lr)
            A(f"""ds_read_b32 v{vG}, v{vFA}
            s_waitcnt lgkmcnt(0)
            v_cmp_le_u32 vcc, 3, v{vG}
            s_cbranch_vccnz {lo}""")
            spin_tail(lr, lo, 1)
            A.label(lo)
            vm.q = []
            for s2_ in range(12, 12 + DA - 1):
                ldA(s2_)
            A(f"s_branch {ljoin}")
            late_q = list(vm.q)
            SLOW.extend(A.lines[mark:])
            del A.lines[mark:]
            vm.q = keep
            st["nxt"] = 12
        if s == 12:
            A.label(ljoin)
            assert vm.q[-NT*(DA-1):] == late_q and st["nxt"] == 12 + DA - 1
        stage(s, 21)
    ts(8, 2)
    tc(15)
    if TS == 3:
        A("v_writelane_b32 v255, s48, 62\nv_writelane_b32 v255, s49, 63")
    flag_wait(35, vFD, vFP, 2048)
    A(f"""v_lshlrev_b32 v{vB}, 4, v{VL}
    s_mul_i32 s{S_T0}, s{S_WAVE}, {NT*1024}
    s_add_u32 s{S_T0}, s{S_T0}, {RED}
    v_add_u32 v{vB+1}, s{S_T0}, v{vB}
    s_xor_b32 s{S_T0}, s{S_WAVE}, 2
    s_mul_i32 s{S_T0}, s{S_T0}, {NT*1024}
    s_add_u32 s{S_T0}, s{S_T0}, {RED}
    v_add_u32 v{vB}, s{S_T0}, v{vB}""")
    for i in range(NT):
        acc = (NT + i) * 4
        A(f"ds_write_b128 v{vB+1}, v[{acc}:{acc+3}] offset:{i*1024}")
    A("s_waitcnt lgkmcnt(0)\ns_barrier")
    for i in range(NT):
        b = (NT + i) * 4
        A(f"ds_read_b128 v[{b}:{b+3}], v{vB} offset:{i*1024}")
    order = [(Tp, U) for Tp in range(NH) for U in range(2)]
    A("s_waitcnt lgkmcnt(0)")
    for Tp, U in order:
        i = U * NH + Tp
        a0, a1 = i * 4, (NT + i) * 4
        for h in (0, 2):
            A(f"v_pk_add_f32 v[{a0+h}:{a0+h+1}], v[{a0+h}:{a0+h+1}], v[{a1+h}:{a1+h+1}]")
        A(f"global_store_dwordx4 v{vT+3}, v[{a0}:{a0+3}], s[{S_OUT}:{S_OUT+1}] offset:{64*U}{['', ' sc1', ' nt', ' sc0 sc1'][OPT.get('omod', 2)]}")
        if U == 1 and Tp < NH - 1:
            A(f"v_add_u32 v{vT+3}, {16*2560}, v{vT+3}")
    ts(9, 2)
    ts_flush(200)
    A("s_endpgm")
    flush_slow()

def publish_flag(idx_code):
    A(f"""s_lshl_b32 s{S_T0}, s{S_T0}, 5
    s_add_u32 s{S_T0}, s{S_T0}, s{S_T0+1}
    s_lshl_b32 s{S_T0}, s{S_T0}, 2
    s_add_u32 s{S_T0}, s{S_T0}, {WS_FLAG}
    v_mov_b32 v250, s{S_T0}
    v_mov_b32 v251, s{S_NONCE}
    s_waitcnt vmcnt({idx_code})
    s_mov_b64 exec, 1
    global_store_dword v250, v251, s[{S_WS}:{S_WS+1}] sc1
    s_mov_b64 exec, -1""")

A.label("L_compute")
A(f"s_setprio {OPT.get('pc1', 2)}")
if OPT.get("pfc", 1):
    A(f"""s_cmp_lg_u32 s{S_WAVE}, 3
    s_cbranch_scc1 L_pcd
    s_getpc_b64 s[{S_M0}:{S_M0+1}]
    L_pcc:
    s_sub_u32 s{S_M0}, s{S_M0}, L_pcc-L_code_start
    s_subb_u32 s{S_M0+1}, s{S_M0+1}, 0
    s_lshl_b32 s{S_T0}, s{S_IDX}, 11
    v_and_b32 v2, 15, v{VL}
    v_lshlrev_b32 v2, 7, v2
    v_add_u32 v2, s{S_T0}, v2
    v_min_u32 v2, L_code_end-L_code_start-8, v2
    global_load_dword v247, v2, s[{S_M0}:{S_M0+1}]
    L_pcd:""")
A(f"s_waitcnt lgkmcnt(0)\ns_load_dword s{S_K}, s[{S_X}:{S_X+1}], 0")
srd(SRD_F, S_X, 4)
flag_init(FREE, S_WAVE, 248, FLG, None)
A(f"s_mov_b32 s{S_FR}, s{S_T0}")
late_scalars()
A(f"s_cmp_eq_u32 s{S_J}, 0\ns_cbranch_scc1 L_ssm_compute")
if OPT.get("tw", 3) == 1:
    touch_w2(251)
A('v_mov_b32 v249, 0')
if PA == 0:
    by_wave(mlp_rows_loads, mlp_cs_loads)
zero_regs(0, 128)()
rowpat_read(192, 198)
A(f"""s_and_b32 s{S_T0}, s{S_WAVE}, 1
s_lshl_b32 s{S_T0}, s{S_T0}, 13
v_add_u32 v192, s{S_T0}, v192
v_xor_b32 v193, 64, v192
v_lshrrev_b32 v198, 4, v{VL}              ; q
v_bfe_u32 v199, v{VL}, 2, 2               ; rr
v_and_b32 v160, 1, v198
v_lshl_add_u32 v160, v160, 2, v199        ; swizzle s
v_lshl_add_u32 v198, v198, 3, v199        ; k row
v_lshlrev_b32 v198, 8, v198
v_and_b32 v199, 3, v{VL}
v_lshl_add_u32 v198, v199, 3, v198
v_add_u32 v198, {WRING}, v198
s_lshr_b32 s{S_T0}, s{S_WAVE}, 1
s_lshl_b32 s{S_T0}, s{S_T0}, 2""")
for F in range(4):
    A(f"""s_add_u32 s{S_T0+1}, s{S_T0}, {F}
    v_xor_b32 v199, s{S_T0+1}, v160
    v_lshl_add_u32 v{194+F}, v199, 5, v198""")
ts(1, 2)
lg, entry, AX, AW = gemm1_loop("mlp")
A("s_waitcnt lgkmcnt(0)")
ts(3, 2)
tc(13)
if TS:
    A("v_writelane_b32 v255, s48, 10\nv_writelane_b32 v255, s49, 11")
if OPT.get("solo", 0):
    ts_flush(100)
    A("s_endpgm")
A(f"s_setprio {OPT.get('pc2', 3)}")
ER = 128
EC = 144
A(f"""s_and_b32 s{S_T0}, s{S_WAVE}, 1
s_lshl_b32 s{S_T0}, s{S_T0}, 10
s_add_u32 s{S_T0}, s{S_T0}, {M_ROW}
v_and_b32 v192, 15, v{VL}
v_lshlrev_b32 v192, 4, v192
v_add_u32 v192, s{S_T0}, v192
s_lshr_b32 s{S_T0}, s{S_WAVE}, 1
s_lshl_b32 s{S_T0}, s{S_T0}, 8
s_add_u32 s{S_T0}, s{S_T0}, {M_CS}
v_lshrrev_b32 v193, 4, v{VL}
v_lshlrev_b32 v193, 4, v193
v_add_u32 v193, s{S_T0}, v193""")
for T in range(4):
    A(f"ds_read_b128 v[{ER+4*T}:{ER+4*T+3}], v192 offset:{256*T}")
for F in range(4):
    for c in range(2):
        b = EC + (F * 2 + c) * 4
        A(f"ds_read_b128 v[{b}:{b+3}], v193 offset:{c*512+F*64}")
A(f"""s_lshl_b32 s{S_T0}, s{S_C}, 1
s_and_b32 s{S_T0+1}, s{S_WAVE}, 1
s_add_u32 s{S_T0}, s{S_T0}, s{S_T0+1}
s_mul_i32 s{S_T0}, s{S_T0}, 88
s_lshl_b32 s{S_T0+1}, s{S_CB}, 2
s_add_u32 s{S_T0}, s{S_T0}, s{S_T0+1}
s_and_b32 s{S_T0+1}, s{S_WAVE}, 2
s_add_u32 s{S_T0}, s{S_T0}, s{S_T0+1}
s_lshl_b32 s{S_T0}, s{S_T0}, 12
s_add_u32 s{S_T0}, s{S_T0}, {WS_ACT}
v_lshlrev_b32 v194, 4, v{VL}
v_add_u32 v194, s{S_T0}, v194
v_add_u32 v195, 4096, v194
s_waitcnt lgkmcnt(0)""")
if TS == 1:
    ts(16, 2)
ET = 176
EO = 184
n = 0
for u in range(2):
    for T in range(4):
        m = ER + 4 * T
        prs = []
        for F in (2 * u, 2 * u + 1):
            for h in (0, 2):
                g = ((F * 2 + 0) * 4 + T) * 4 + h
                up = ((F * 2 + 1) * 4 + T) * 4 + h
                prs.append((g, up, EC + (F * 2) * 4 + h, EC + (F * 2 + 1) * 4 + h))
        for i, (g, up, cg, cu) in enumerate(prs):
            A(f"v_pk_fma_f32 v[{g}:{g+1}], v[{cg}:{cg+1}], v[{m}:{m+1}], v[{g}:{g+1}] op_sel_hi:[1,0,1] neg_lo:[0,1,0] neg_hi:[0,1,0]")
        for i, (g, up, cg, cu) in enumerate(prs):
            e = ET + 2 * i
            A(f"v_pk_mul_f32 v[{e}:{e+1}], v[{g}:{g+1}], v[{m}:{m+1}] op_sel:[0,1] op_sel_hi:[1,1]")
        for i, (g, up, cg, cu) in enumerate(prs):
            e = ET + 2 * i
            A(f"v_exp_f32 v{e}, v{e}\nv_exp_f32 v{e+1}, v{e+1}")
            A(f"v_pk_fma_f32 v[{up}:{up+1}], v[{cu}:{cu+1}], v[{m}:{m+1}], v[{up}:{up+1}] op_sel_hi:[1,0,1] neg_lo:[0,1,0] neg_hi:[0,1,0]")
        for i, (g, up, cg, cu) in enumerate(prs):
            e = ET + 2 * i
            A(f"v_pk_fma_f32 v[{e}:{e+1}], v[{e}:{e+1}], v[{m+2}:{m+3}], v[{m+2}:{m+3}] op_sel_hi:[1,0,0]")
        for i, (g, up, cg, cu) in enumerate(prs):
            e = ET + 2 * i
            A(f"v_rcp_f32 v{e}, v{e}\nv_rcp_f32 v{e+1}, v{e+1}")
            A(f"v_pk_mul_f32 v[{g}:{g+1}], v[{g}:{g+1}], v[{up}:{up+1}]")
        for i, (g, up, cg, cu) in enumerate(prs):
            e = ET + 2 * i
            A(f"v_pk_mul_f32 v[{g}:{g+1}], v[{g}:{g+1}], v[{e}:{e+1}]")
        o = EO + 4 * (n % 2)
        for i, (g, up, cg, cu) in enumerate(prs):
            A(f"v_cvt_pk_bf16_f32 v{o+i}, v{g}, v{g+1}")
        if TS == 1 and n % 2 == 0:
            ts(17 + n, 2)
        if not OPT.get("nost", 0):
            A(f"global_store_dwordx4 v{194+u}, v[{o}:{o+3}], s[{S_WS}:{S_WS+1}] offset:{1024*T} sc1")
        if TS == 1 and n % 2 == 0:
            ts(18 + n, 2)
        n += 1
ts(4, 2)
A(f"""s_lshl_b32 s{S_T0}, s{S_C}, 1
s_and_b32 s{S_T0+1}, s{S_WAVE}, 1
s_add_u32 s{S_T0}, s{S_T0}, s{S_T0+1}
s_lshl_b32 s{S_T0+1}, s{S_CB}, 1
s_lshr_b32 s{S_T0+2}, s{S_WAVE}, 1
s_add_u32 s{S_T0+1}, s{S_T0+1}, s{S_T0+2}""")
gemm2_compute(6)

A.label("L_ssm_compute")
if PA == 0:
    ssm_rows_loads()
zero_regs(0, 160)()
rowpat_read(232, 160)
A(f"""s_lshr_b32 s{S_T0}, s{S_WAVE}, 1
s_mul_i32 s{S_T0}, s{S_T0}, 10240
s_add_u32 s{S_T0}, s{S_T0}, {WRING}
v_add_u32 v234, s{S_T0}, v232
v_xor_b32 v235, 64, v234
s_and_b32 s{S_T0}, s{S_WAVE}, 1
s_lshl_b32 s{S_T0}, s{S_T0}, 13
v_add_u32 v232, s{S_T0}, v232
v_xor_b32 v233, 64, v232""")
ts(1, 2)
lg, entry, AX, AW = gemm1_loop("ssm")
A("s_waitcnt lgkmcnt(0)")
ts(3, 2)
tc(13)
if TS:
    A("v_writelane_b32 v255, s48, 10\nv_writelane_b32 v255, s49, 11")
if OPT.get("solo", 0):
    ts_flush(100)
    A("s_endpgm")
A(f"s_setprio {OPT.get('pc2', 3)}")
def acc(G, c, m, r=0):
    return ((G * 2 + c) * 4 + m) * 4 + r
SM, SR_ = 160, 176
SCS = 192
SLAM = 202
SK = 212
SA = 222
A(f"""s_and_b32 s{S_T0}, s{S_WAVE}, 1
s_lshl_b32 s{S_T0}, s{S_T0}, 8
s_add_u32 s{S_T0}, s{S_T0}, {M_ROW}
v_lshrrev_b32 v{SA}, 4, v{VL}
v_lshlrev_b32 v{SA}, 4, v{SA}
v_add_u32 v{SA}, s{S_T0}, v{SA}
s_lshr_b32 s{S_T0+1}, s{S_WAVE}, 1
s_mul_i32 s{S_T0+1}, s{S_T0+1}, 80
v_and_b32 v{SA+1}, 15, v{VL}
v_add_u32 v{SA+1}, s{S_T0+1}, v{SA+1}
v_lshlrev_b32 v{SA+2}, 2, v{SA+1}
v_add_u32 v{SA+3}, {M_CS}, v{SA+2}
v_lshlrev_b32 v{SA+4}, 3, v{SA+1}
v_add_u32 v{SA+4}, {M_LAM}, v{SA+4}""")
for m in range(4):
    A(f"ds_read_b128 v[{SM+4*m}:{SM+4*m+3}], v{SA} offset:{64*m}")
    A(f"ds_read_b128 v[{SR_+4*m}:{SR_+4*m+3}], v{SA} offset:{512+64*m}")
for G in range(5):
    A(f"ds_read_b32 v{SCS+2*G}, v{SA+3} offset:{64*G}")
    A(f"ds_read_b32 v{SCS+2*G+1}, v{SA+3} offset:{640+64*G}")
for G in range(5):
    A(f"ds_read_b64 v[{SLAM+2*G}:{SLAM+2*G+1}], v{SA+4} offset:{128*G}")
    A(f"ds_read_b64 v[{SK+2*G}:{SK+2*G+1}], v{SA+4} offset:{M_COEF-M_LAM+128*G}")
A(f"""s_and_b32 s{S_T0}, s{S_WAVE}, 1
s_mul_i32 s{S_T0}, s{S_T0}, {8*1280}
s_add_u32 s{S_T0}, s{S_T0}, {E_BASE}
v_lshrrev_b32 v{SA+5}, 4, v{VL}
v_mul_u32_u24 v{SA+5}, 2560, v{SA+5}
v_lshl_add_u32 v{SA+5}, v{SA+2}, 1, v{SA+5}
v_add_u32 v{SA+5}, s{S_T0}, v{SA+5}
v_add_u32 v{SA+7}, 1280, v{SA+5}
s_waitcnt lgkmcnt(0)""")
def pk(op, d, a, b, c=None, sa=None, sb=None, sc=None, neg=None):
    ops = [a, b] + ([c] if c is not None else [])
    sel = [sa, sb] + ([sc] if c is not None else [])
    lo = [0 if s is None else s for s in sel]
    hi = [1 if s is None else s for s in sel]
    t = f"v_pk_{op}_f32 v[{d}:{d+1}], " + ", ".join(f"v[{o}:{o+1}]" for o in ops)
    t += " op_sel:[" + ",".join(map(str, lo)) + "] op_sel_hi:[" + ",".join(map(str, hi)) + "]"
    if neg is not None:
        nn = [1 if i == neg else 0 for i in range(len(ops))]
        t += " neg_lo:[" + ",".join(map(str, nn)) + "] neg_hi:[" + ",".join(map(str, nn)) + "]"
    A(t)
for m in range(4):
    for h in (0, 2):
        for G in range(5):
            for c in range(2):
                a = acc(G, c, m, h)
                pk("fma", a, SM + 4 * m + h, SCS + 2 * G, a, sb=c, neg=1)
        for G in range(5):
            for c in range(2):
                a = acc(G, c, m, h)
                pk("mul", a, a, SR_ + 4 * m + h)
steps = [(m, h) for m in range(4) for h in (0, 2)]
for k in range(1, 8):
    (m, h), (pm, ph) = steps[k], steps[k - 1]
    for G in range(5):
        pk("fma", acc(G, 0, m, h), acc(G, 0, pm, ph), SLAM + 2 * G, acc(G, 0, m, h), sb=0)
        pk("fma", acc(G, 1, m, h), acc(G, 1, pm, ph), SLAM + 2 * G, acc(G, 1, m, h), sb=0)
    for G in range(5):
        pk("fma", acc(G, 0, m, h), acc(G, 1, pm, ph), SLAM + 2 * G, acc(G, 0, m, h), sb=1, neg=1)
        pk("fma", acc(G, 1, m, h), acc(G, 0, pm, ph), SLAM + 2 * G, acc(G, 1, m, h), sb=1)
peer_addr(248, FREE)
flag_wait(18, 250, 248)
for G in range(5):
    for e in range(2):
        A(f"ds_write2_b32 v{SA+5+2*e}, v{acc(G,0,3,2+e)}, v{acc(G,1,3,2+e)} offset0:{32*G} offset1:{32*G+1}")
A("s_waitcnt lgkmcnt(0)\ns_setprio 0\ns_barrier")
ts(4, 2)
for m, h in steps:
    for G in range(5):
        t = SM + 2 * G
        pk("mul", t, acc(G, 0, m, h), SK + 2 * G, sb=1)
    for G in range(5):
        pk("mul", acc(G, 0, m, h), acc(G, 0, m, h), SK + 2 * G, sb=0)
    for G in range(5):
        pk("fma", acc(G, 0, m, h), acc(G, 1, m, h), SK + 2 * G, acc(G, 0, m, h), sb=1)
    for G in range(5):
        t = SM + 2 * G
        pk("fma", acc(G, 1, m, h), acc(G, 1, m, h), SK + 2 * G, t, sb=0, neg=1)
A(f"""s_mul_i32 s{S_T0}, s{S_WAVE}, 12288
s_add_u32 s{S_T0}, s{S_T0}, {TR_BASE}
v_and_b32 v{SA}, 7, v{VL}
v_bfe_u32 v{SA+1}, v{VL}, 3, 1
v_lshlrev_b32 v{SA+1}, 2, v{SA+1}
v_xor_b32 v{SA}, v{SA}, v{SA+1}                ; f
v_lshrrev_b32 v{SA+1}, 4, v{VL}
v_lshlrev_b32 v{SA+1}, 1, v{SA+1}
v_xor_b32 v{SA}, v{SA}, v{SA+1}                ; (2q) ^ f
v_and_b32 v{SA+1}, 15, v{VL}
v_lshlrev_b32 v{SA+1}, 7, v{SA+1}
v_lshl_add_u32 v{SA}, v{SA}, 4, v{SA+1}
v_add_u32 v{SA}, s{S_T0}, v{SA}                ; e = 0
v_xor_b32 v{SA+1}, 16, v{SA}                   ; e = 1
v_lshrrev_b32 v{SA+2}, 4, v{VL}                ; q
v_bfe_u32 v{SA+3}, v{VL}, 2, 2                 ; rr
v_and_b32 v{SA+4}, 1, v{SA+2}
v_lshl_add_u32 v{SA+4}, v{SA+4}, 2, v{SA+3}
v_bfe_u32 v{SA+6}, v{VL}, 1, 1                 ; cc>>1
v_xor_b32 v{SA+4}, v{SA+4}, v{SA+6}
v_lshl_add_u32 v{SA+2}, v{SA+2}, 3, v{SA+3}    ; row
v_lshlrev_b32 v{SA+2}, 7, v{SA+2}
v_lshl_add_u32 v{SA+2}, v{SA+4}, 4, v{SA+2}
v_and_b32 v{SA+3}, 1, v{VL}
v_lshl_add_u32 v{SA+2}, v{SA+3}, 3, v{SA+2}
v_add_u32 v{SA+2}, s{S_T0}, v{SA+2}""")
TA = 176
for Tq in range(4):
    A(f"v_xor_b32 v{TA+2*Tq}, {32*Tq}, v{SA+2}")
    A(f"v_xor_b32 v{TA+2*Tq+1}, {(32*Tq) ^ 64}, v{SA+2}")
A(f"""s_lshl_b32 s{S_T0}, s{S_C}, 1
s_and_b32 s{S_T0+1}, s{S_WAVE}, 1
s_add_u32 s{S_T0}, s{S_T0}, s{S_T0+1}
s_mul_i32 s{S_T0}, s{S_T0}, 88
s_mul_i32 s{S_T0+1}, s{S_CB}, 10
s_add_u32 s{S_T0}, s{S_T0}, s{S_T0+1}
s_lshr_b32 s{S_T0+1}, s{S_WAVE}, 1
s_mul_i32 s{S_T0+1}, s{S_T0+1}, 5
s_add_u32 s{S_T0}, s{S_T0}, s{S_T0+1}
s_add_u32 s{S_T0}, s{S_T0}, 48
s_lshl_b32 s{S_T0}, s{S_T0}, 12
s_add_u32 s{S_T0}, s{S_T0}, {WS_ACT}
v_lshlrev_b32 v{SA+3}, 4, v{VL}
v_add_u32 v{SA+3}, s{S_T0}, v{SA+3}""")
A("s_setprio 3\ns_barrier")
ts(5, 2)
SW = 184
SW = 182
def W(G, c):
    idx = G * 2 + c
    return (160 + 2 * idx) if idx < 8 else (192 + 2 * (idx - 8))
for G in range(5):
    for c in range(2):
        for e in range(2):
            A(f"ds_read_b32 v{W(G,c)+e}, v{SA+5} offset:{e*1280+c*4+128*G}")
A("s_waitcnt lgkmcnt(0)")
lg = Queue(A, "lgkmcnt", 15)
def stores(G):
    for Tq in range(4):
        lg.wait(("t", G, Tq))
        b = G * 32 + 16 + Tq * 4
        A(f"global_store_dwordx4 v{SA+3}, v[{b}:{b+3}], s[{S_WS}:{S_WS+1}] offset:{1024*Tq} sc1")
    if G < 4:
        A(f"v_add_u32 v{SA+3}, 4096, v{SA+3}")
def corr(G):
    out = []
    for k, (m, h) in enumerate(steps):
        for c in range(2):
            out.append(lambda c=c, m=m, h=h: pk("add", acc(G, c, m, h), acc(G, c, m, h), W(G, c)))
        if k < 7:
            out.append(lambda: pk("mul", 196, W(G, 0), SLAM + 2 * G, sb=1))
            out.append(lambda: pk("mul", W(G, 0), W(G, 0), SLAM + 2 * G, sb=0))
            out.append(lambda: pk("fma", W(G, 0), W(G, 1), SLAM + 2 * G, W(G, 0), sb=1))
            out.append(lambda: pk("fma", W(G, 1), W(G, 1), SLAM + 2 * G, 196, sb=0, neg=2))
    return out
def pack(G):
    out = []
    for c in range(2):
        o = (184 if G % 2 else 232) if c == 0 else G * 32
        for e in range(2):
            for m in range(4):
                out.append(lambda o=o, c=c, e=e, m=m: A(f"v_cvt_pk_bf16_f32 v{o+4*e+m}, v{acc(G,c,m,e)}, v{acc(G,c,m,2+e)}"))
            def wr(o=o, c=c, e=e):
                A(f"ds_write_b128 v{SA+e}, v[{o+4*e}:{o+4*e+3}] offset:{(G%3)*4096+c*2048}")
                lg.issue("w")
            out.append(wr)
    for Tq in range(4):
        def rd(Tq=Tq):
            b = G * 32 + 16 + Tq * 4
            A(f"ds_read_b64_tr_b16 v[{b}:{b+1}], v{TA+2*Tq} offset:{(G%3)*4096}")
            A(f"ds_read_b64_tr_b16 v[{b+2}:{b+3}], v{TA+2*Tq+1} offset:{(G%3)*4096+512}")
            lg.issue(("t", G, Tq)); lg.issue(("t", G, Tq))
        out.append(rd)
    return out
def store1(G, Tq):
    lg.wait(("t", G, Tq))
    b = G * 32 + 16 + Tq * 4
    A(f"global_store_dwordx4 v{SA+3}, v[{b}:{b+3}], s[{S_WS}:{S_WS+1}] offset:{1024*Tq} sc1")
    if Tq == 3:
        A(f"v_add_u32 v{SA+3}, 4096, v{SA+3}")
def weave(a, b):
    ia = ib = 0
    while ia < len(a) or ib < len(b):
        if ib >= len(b) or (ia < len(a) and ia * len(b) <= ib * len(a)):
            a[ia](); ia += 1
        else:
            b[ib](); ib += 1
for G in range(6):
    side = pack(G - 1) if G >= 1 else []
    if G >= 2:
        st4 = [lambda Tq=Tq: store1(G - 2, Tq) for Tq in range(4)]
        for i, f in enumerate(st4):
            side.insert(2 + 5 * i, f)
        if TS == 1 and G == 2:
            side.insert(0, lambda: ts(16, 2))
    weave(corr(G) if G < 5 else [], side)
stores(4)
if TS == 1:
    ts(17, 2)
A(f"""s_lshl_b32 s{S_T0}, s{S_C}, 1
s_and_b32 s{S_T0+1}, s{S_WAVE}, 1
s_add_u32 s{S_T0}, s{S_T0}, s{S_T0+1}
s_lshl_b32 s{S_T0+1}, s{S_CB}, 1
s_lshr_b32 s{S_T0+2}, s{S_WAVE}, 1
s_add_u32 s{S_T0+1}, s{S_T0+1}, s{S_T0+2}
s_add_u32 s{S_T0+1}, s{S_T0+1}, 24""")
gemm2_compute(2)

def rowpat_load(dst, tmp, ssm):
    A(f"""v_lshrrev_b32 v{tmp}, 4, v{VL}
    v_xor_b32 v{tmp+1}, v{tmp}, v{VL}
    v_and_b32 v{tmp+1}, 7, v{tmp+1}              ; chunk""")
    if ssm:
        A(f"""v_lshrrev_b32 v{tmp}, 5, v{VL}
        v_lshlrev_b32 v{tmp}, 4, v{tmp}
        v_bfe_u32 v{dst}, v{VL}, 3, 1
        v_lshl_add_u32 v{tmp}, v{dst}, 3, v{tmp}
        v_bfe_u32 v{dst}, v{VL}, 4, 1
        v_add_u32 v{tmp}, v{tmp}, v{dst}""")
        up = 32
    else:
        A(f"v_lshrrev_b32 v{tmp}, 3, v{VL}")
        up = 8
    A(f"""v_mul_u32_u24 v{dst}, 1280, v{tmp}
    v_lshl_add_u32 v{dst}, v{tmp+1}, 4, v{dst}
    v_xor_b32 v{dst+1}, 64, v{dst}
    v_add_u32 v{dst+1}, {up*1280-1024}, v{dst+1}""")

LFP, LFV, LFD, LPA, LPD = 240, 241, 242, 243, 244
S_U, S_XS, S_S2 = 83, 84, 87
S_RET, S_SUB = 90, 30
class NoQ:
    def issue(self, t): pass
    def wait(self, t): pass
NOQ = NoQ()
CAP = OPT.get("cap", 8)
def cap(n=None):
    A(f"s_waitcnt vmcnt({CAP if n is None else n})")
class CapQ:
    def issue(self, t):
        cap()
    def wait(self, t): pass
CAPQ = CapQ()
class Jobs:
    def __init__(self):
        self.q = []
    def add(self, g):
        self.q.append(g)
    def step(self, n=1):
        if not self.q:
            return
        A(f"s_setprio {OPT.get('pls', 3)}")
        while n > 0 and self.q:
            try:
                next(self.q[0])
            except StopIteration:
                self.q.pop(0)
            n -= 1
        A("s_setprio 0")
def run(g):
    for _ in g:
        pass

LAX, LFQ = 245, 246
def declare(sreg):
    A(f"""s_lshl_b32 s{sreg}, s{sreg}, 2
    v_add_u32 v{LFQ}, s{sreg}, v{VFO}
    v_mov_b32 v{LFV}, s{S_K}
    ds_write_b32 v{LFQ}, v{LFV}""")
def wait_free(sreg):
    A(f"s_lshl_b32 s{sreg}, s{sreg}, 2\nv_add_u32 v{LFQ}, s{sreg}, v{LFP}")
    flag_wait(0, LFD, LFQ, nap=OPT.get('lnap', 0))
def stamp(idx_sreg, add):
    if TS:
        A(f"""s_memrealtime s[{S_TS}:{S_TS+1}]
        s_add_u32 m0, s{idx_sreg}, {add}
        s_waitcnt lgkmcnt(0)
        v_writelane_b32 v255, s{S_TS}, m0""")

def poll_setup(two):
    A(f"""s_lshl_b32 s{S_T0}, s{S_HB2}, 7
    s_add_u32 s{S_T0}, s{S_T0}, {WS_FLAG+96}
    v_and_b32 v{LPA}, 7, v{VL}
    v_lshlrev_b32 v{LPA}, 2, v{LPA}
    v_add_u32 v{LPA}, s{S_T0}, v{LPA}""")
    if two:
        A(f"v_and_b32 v{LPD}, 8, v{VL}\nv_lshl_add_u32 v{LPA}, v{LPD}, 4, v{LPA}")
def poll_issue():
    A(f"global_load_dword v{LPD}, v{LPA}, s[{S_WS}:{S_WS+1}] sc1")
def poll_until():
    lr, lo = A.newlabel("L_pu"), A.newlabel("L_pu")
    A.label(lr)
    poll_issue()
    A(f"""s_waitcnt vmcnt(0)
    v_cmp_ne_u32 vcc, s{S_NONCE}, v{LPD}
    s_cbranch_vccz {lo}""")
    spin_tail(lr, lo, 3)
    A.label(lo)
    A(f"v_mov_b32 v{LFV}, 3\nds_write_b32 v{LAX}, v{LFV}")
def poll_check():
    lo = A.newlabel("L_pk")
    A(f"""v_cmp_ne_u32 vcc, s{S_NONCE}, v{LPD}
    s_cbranch_vccnz {lo}
    v_mov_b32 v{LFV}, 3
    ds_write_b32 v{LAX}, v{LFV}""")
    A.label(lo)

VW2, VC2 = 12, 15
def g2_setup(NT, tmp):
    srd(SRD_W2, S_W2, 1966080)
    srd(SRD_C, S_CRE, 819200)
    srd(SRD_T, S_CIM, 819200)
    A(f"""s_lshl_b32 s{S_T0}, s{S_DCOL}, 1
    v_lshrrev_b32 v{tmp}, 4, v{VL}
    v_lshlrev_b32 v{tmp}, 1, v{tmp}
    v_xor_b32 v{tmp}, v{tmp}, v{VL}
    v_and_b32 v{tmp}, 7, v{tmp}
    v_lshrrev_b32 v{tmp+1}, 3, v{VL}
    v_mul_u32_u24 v{tmp+1}, 1280, v{tmp+1}
    v_lshl_add_u32 v{tmp}, v{tmp}, 4, v{tmp+1}
    v_add_u32 v{VW2}, s{S_T0}, v{tmp}""")
    rowpat_load(VC2, tmp, False)
    A(f"""s_mul_i32 s{S_T0}, s{S_DCOL}, 1280
    v_add_u32 v{VC2}, s{S_T0}, v{VC2}
    v_add_u32 v{VC2+1}, s{S_T0}, v{VC2+1}
    s_add_u32 s{S_S2}, s{S_LW}, 1
    s_and_b32 s{S_S2}, s{S_S2}, 3
    s_add_u32 s{S_KS}, s{S_S2}, s{S_R2A}
    s_cmp_ge_u32 s{S_KS}, 12
    s_cselect_b32 s{S_T0}, 12, 0
    s_sub_u32 s{S_KS}, s{S_KS}, s{S_T0}
    s_mul_i32 s{S_KS}, s{S_KS}, {128*1280}
    v_lshlrev_b32 v236, 4, v{VL}""")
    poll_setup(NT == 6)

def g2_pieces(k):
    out = []
    for i in range(16):
        if k < 3:
            out.append((VW2, SRD_W2, i * 8 * 1280, 0))
        else:
            mat, ii = i // 8, i % 8
            out.append((VC2 + ii % 2, SRD_T if mat else SRD_C, (ii // 2) * 16 * 1280, 1024 * (ii % 2)))
    return out
def g2_next(k):
    if k == 2:
        A(f"""s_and_b32 s{S_KS}, s{S_S2}, 3
        s_add_u32 s{S_KS}, s{S_KS}, s{S_R2B}
        s_cmp_ge_u32 s{S_KS}, 10
        s_cselect_b32 s{S_T0}, 10, 0
        s_sub_u32 s{S_KS}, s{S_KS}, s{S_T0}
        s_lshl_b32 s{S_KS}, s{S_KS}, 7""")
    else:
        step, n = (128 * 1280, 12) if k < 2 else (128, 10)
        A(f"""s_add_u32 s{S_KS}, s{S_KS}, {4*step}
        s_cmp_ge_u32 s{S_KS}, {n*step}
        s_cselect_b32 s{S_T0}, {n*step}, 0
        s_sub_u32 s{S_KS}, s{S_KS}, s{S_T0}""")
THR = OPT.get("thr", 8)
def g2_load(k, base, thr):
    for i, (v, sd, ex, io) in enumerate(g2_pieces(k)):
        if i:
            yield
        A(f"s_add_u32 s{S_T0+7}, s{S_KS}, {ex}\ns_waitcnt vmcnt({thr})")
        A(f"buffer_load_dwordx4 v[{base+4*i}:{base+4*i+3}], v{v}, s[{sd}:{sd+3}], s{S_T0+7} offen offset:{io}")
    g2_next(k)
    ts(48 + k, 2)
def g2_put(k, base, young, lowest, g=None):
    A(f"s_add_u32 s{S_T0+6}, s{S_S2}, {21-NS2}\ns_max_u32 s{S_T0+6}, s{S_T0+6}, {lowest}")
    wait_free(S_T0 + 6)
    A(f"s_waitcnt vmcnt({young})\nv_add_u32 v237, s{S_SLOT}, v236")
    for i in range(16):
        A(f"ds_write_b128 v237, v[{base+4*i}:{base+4*i+3}] offset:{1024*i}")
        if g is not None and i % OPT.get('il', 2) == OPT.get('il', 2) - 1:
            next(g, None)
    A(f"""s_add_u32 s{S_S2}, s{S_S2}, 4
    s_add_u32 s{S_T0+6}, s{S_S2}, 21""")
    declare(S_T0 + 6)
    ts(40 + k, 2)
    A(f"""s_add_u32 s{S_SLOT}, s{S_SLOT}, {4*SL2}
    s_cmp_ge_u32 s{S_SLOT}, {NS2*SL2}
    s_cselect_b32 s{S_T0}, {NS2*SL2}, 0
    s_sub_u32 s{S_SLOT}, s{S_SLOT}, s{S_T0}""")
    if g is not None:
        run(g)
    A("s_waitcnt lgkmcnt(0)")

def bump_epoch(T):
    lr, lo = A.newlabel("L_ep"), A.newlabel("L_ep")
    ld = A.newlabel("L_ep")
    A(f"""s_cmp_lg_u32 s2, 0
    s_cbranch_scc1 {ld}
    s_cmp_lg_u32 s{S_LW}, 2
    s_cbranch_scc1 {ld}
    v_lshlrev_b32 v{T}, 4, v{VL}
    v_add_u32 v{T}, {WS_FLAG}, v{T}""")
    A.label(lr)
    for i in range(4):
        A(f"global_load_dwordx4 v[{T+4+4*i}:{T+7+4*i}], v{T}, s[{S_WS}:{S_WS+1}] offset:{1024*i} sc1")
    A(f"s_waitcnt vmcnt(0)\ns_mov_b64 s[{S_M0}:{S_M0+1}], 0")
    for i in range(16):
        A(f"v_cmp_ne_u32 vcc, s{S_NONCE}, v{T+4+i}\ns_nop 1\ns_or_b64 s[{S_M0}:{S_M0+1}], s[{S_M0}:{S_M0+1}], vcc")
    A(f"s_cmp_eq_u64 s[{S_M0}:{S_M0+1}], 0\ns_cbranch_scc1 {lo}")
    spin_tail(lr, lo, 4)
    A.label(lo)
    A(f"""v_mov_b32 v{T}, {WS_E}
    v_mov_b32 v{T+1}, s{S_NONCE}
    s_mov_b64 exec, 1
    global_store_dword v{T}, v{T+1}, s[{S_WS}:{S_WS+1}] sc1
    s_mov_b64 exec, -1""")
    A.label(ld)

def prefetch(vm, T, tag):
    if not OPT["pf"]:
        return
    if not OPT.get("pfc", 1):
      for i in range(2):
        vm.issue("pf")
      A(f"""s_getpc_b64 s[{S_M0}:{S_M0+1}]
    L_pc{tag}:
    s_sub_u32 s{S_M0}, s{S_M0}, L_pc{tag}-L_code_start
    s_subb_u32 s{S_M0+1}, s{S_M0+1}, 0
    s_lshl_b32 s{S_T0}, s{S_LW}, 13
    v_lshlrev_b32 v{T}, 7, v{VL}
    v_add_u32 v{T}, s{S_T0}, v{T}
    v_add_u32 v{T+1}, 32768, v{T}
    v_min_u32 v{T+1}, L_code_end-L_code_start-8, v{T+1}
    global_load_dword v250, v{T}, s[{S_M0}:{S_M0+1}]
    global_load_dword v249, v{T+1}, s[{S_M0}:{S_M0+1}]""")
    A(f"""s_cmp_ge_u32 s{S_LW}, 2
    s_cselect_b32 s{S_T0}, 49, 59
    s_mov_b32 s{S_T0+1}, 7680
    s_cmov_b32 s{S_T0+1}, 3200
    s_cselect_b32 s{S_T0+4}, s{S_CRE}, s{S_W2}
    s_cselect_b32 s{S_T0+5}, s{S_CRE+1}, s{S_W2+1}
    s_mul_i32 s{S_T0+1}, s{S_T0+1}, s2
    s_cmp_eq_u32 s{S_LW}, 1
    s_cselect_b32 s{S_T0+2}, 3840, 0
    s_add_u32 s{S_T0+1}, s{S_T0+1}, s{S_T0+2}
    s_cmp_eq_u32 s{S_LW}, 3
    s_cselect_b32 s{S_T0+4}, s{S_CIM}, s{S_T0+4}
    s_cselect_b32 s{S_T0+5}, s{S_CIM+1}, s{S_T0+5}
    v_min_u32 v{T}, s{S_T0}, v{VL}
    v_lshlrev_b32 v{T}, 6, v{T}
    v_add_u32 v{T}, s{S_T0+1}, v{T}
    global_load_dword v248, v{T}, s[{S_T0+4}:{S_T0+5}]""")
    vm.issue("pf")


def head_begin():
    return len(A.lines)
def head_end(mark):
    HEADS.extend(A.lines[mark:])
    del A.lines[mark:]

def issue_sub(kind):
    mlp = kind == "mlp"
    SLOT = 16384 if mlp else 20480
    A.label(f"L_sub_{kind}")
    A(f"s_waitcnt lgkmcnt(0)")
    flag_test(None, LFD, LFQ, 0, nap=OPT.get('lnap', 0))
    A.label(f"L_subn_{kind}")
    stamp(S_U, 16)
    lx = A.newlabel("L_is")
    A(f"s_bitcmp1_b32 s{S_U}, 0\ns_cbranch_scc1 {lx}")
    A(f"s_add_u32 m0, s{S_XS}, s{S_T0+9}")
    for h in range(4):
        cap()
        A(f"buffer_load_dwordx4 v{2+h}, s[{SRD_X}:{SRD_X+3}], s{S_KX} offen offset:{1024*h} lds")
    A(f"""s_add_u32 s{S_XS}, s{S_XS}, 16384
    s_cmp_eq_u32 s{S_XS}, {3*16384}
    s_cselect_b32 s{S_XS}, 0, s{S_XS}""")
    if not mlp:
        A(f"s_add_u32 m0, s{S_SLOT}, s{S_T0+8}")
        for h in range(4):
            cap()
            A(f"buffer_load_dwordx4 v{6+h}, s[{SRD_WA}:{SRD_WA+3}], s{S_KX} offen offset:{1024*h} lds")
        A(f"s_add_u32 m0, m0, 4096")
        cap()
        A(f"buffer_load_dwordx4 v10, s[{SRD_WA}:{SRD_WA+3}], s{S_KX} offen lds\ns_branch {lx}b")
    A.label(lx)
    if mlp:
        for mat, sd in enumerate((SRD_WA, SRD_WB)):
            A(f"s_add_u32 m0, s{S_SLOT}, s{S_T0+8}" if mat == 0 else "s_add_u32 m0, m0, 8192")
            for h in range(2):
                cap()
                A(f"buffer_load_dwordx4 v{6+h}, s[{sd}:{sd+3}], s{S_KW} offen offset:{1024*h} lds")
        A(f"""s_add_u32 s{S_KW}, s{S_KW}, {32*3072}
        s_cmp_eq_u32 s{S_KW}, {20*32*3072}
        s_cselect_b32 s{S_KW}, {64*3072 if C0 else 0}, s{S_KW}
        s_bitcmp1_b32 s{S_U}, 0
        s_cbranch_scc0 {lx}b""")
    else:
        A(f"s_add_u32 m0, s{S_SLOT}, s{S_T0+8}")
        for h in range(4):
            cap()
            A(f"buffer_load_dwordx4 v{6+h}, s[{SRD_WB}:{SRD_WB+3}], s{S_KX} offen offset:{1024*h} lds")
        A(f"s_add_u32 m0, m0, 4096")
        cap()
        A(f"buffer_load_dwordx4 v10, s[{SRD_WB}:{SRD_WB+3}], s{S_KX} offen lds")
    A(f"""s_add_u32 s{S_KX}, s{S_KX}, 128
    s_cmp_eq_u32 s{S_KX}, 1280
    s_cselect_b32 s{S_KX}, {128 if C0 else 0}, s{S_KX}""")
    A.label(f"{lx}b")
    A(f"""s_add_u32 s{S_U}, s{S_U}, 1
    s_add_u32 s{S_FM}, s{S_FM}, 4
    v_add_u32 v{LFQ}, 4, v{LFQ}
    s_mov_b32 m0, s{S_FM}
    ds_read_b32 v{LFD}, v{LFQ}
    s_add_u32 s{S_SLOT}, s{S_SLOT}, {SLOT}
    s_cmp_eq_u32 s{S_SLOT}, {5*SLOT}
    s_cselect_b32 s{S_SLOT}, 0, s{S_SLOT}""")
    cap()
    A(f"""buffer_load_dword v{VZ}, s[{SRD_X}:{SRD_X+3}], 0 offen lds
    s_setpc_b64 s[{S_RET}:{S_RET+1}]""")
    flush_slow()
S_FM = 22
def call_sub(check=True):
    if check:
        A(f"s_swappc_b64 s[{S_RET}:{S_RET+1}], s[{S_SUB}:{S_SUB+1}]")
    else:
        A(f"s_swappc_b64 s[{S_RET}:{S_RET+1}], s[{S_SUBN}:{S_SUBN+1}]")
S_SUBN = 32
def declare_dma(sreg=None):
    if sreg is not None:
        A(f"s_lshl_b32 s{sreg}, s{sreg}, 2\ns_add_u32 s{S_FM}, s{S_FM}, s{sreg}")
    A(f"s_mov_b32 m0, s{S_FM}")
    cap()
    A(f"buffer_load_dword v{VZ}, s[{SRD_X}:{SRD_X+3}], 0 offen lds")

def head_rest(kind):
    mlp = kind == "mlp"
    SLOT = 16384 if mlp else 20480
    flag_init(FLG, S_LW, LFP, FREE, LAX)
    A(f"""s_add_u32 s{S_FM}, s{S_T0}, 4
    v_subrev_u32 v{LFQ}, 8, v{LFP}
    s_getpc_b64 s[{S_SUB}:{S_SUB+1}]
    L_gp_{kind}:
    s_add_u32 s{S_SUBN}, s{S_SUB}, L_subn_{kind}-L_gp_{kind}
    s_addc_u32 s{S_SUBN+1}, s{S_SUB+1}, 0
    s_add_u32 s{S_SUB}, s{S_SUB}, L_sub_{kind}-L_gp_{kind}
    s_addc_u32 s{S_SUB+1}, s{S_SUB+1}, 0
    s_mov_b32 s{S_U}, 2
    s_mov_b32 s{S_SLOT}, {2*SLOT}
    s_mov_b32 s{S_XS}, 16384
    s_mov_b32 m0, s{S_FM}
    s_add_u32 s{S_FM}, s{S_FM}, 4
    buffer_load_dword v{VZ}, s[{SRD_X}:{SRD_X+3}], 0 offen lds""")
    if mlp:
        A(f"s_add_u32 s{S_KW}, s{S_KW}, {32*3072}")
        for mat, sd in enumerate((SRD_WA, SRD_WB)):
            A(f"s_add_u32 m0, s{S_T0+8}, {SLOT + mat*8192}\ns_nop 0")
            for h in range(2):
                A(f"buffer_load_dwordx4 v{6+h}, s[{sd}:{sd+3}], s{S_KW} offen offset:{1024*h} lds")
        A(f"""s_add_u32 s{S_KW}, s{S_KW}, {32*3072}
        s_cmp_eq_u32 s{S_KW}, {20*32*3072}
        s_cselect_b32 s{S_KW}, 0, s{S_KW}""")
    else:
        A(f"s_add_u32 m0, s{S_T0+8}, {SLOT}\ns_nop 0")
        for h in range(4):
            A(f"buffer_load_dwordx4 v{6+h}, s[{SRD_WB}:{SRD_WB+3}], s{S_KX} offen offset:{1024*h} lds")
        A(f"s_add_u32 m0, m0, 4096\ns_nop 0\nbuffer_load_dwordx4 v10, s[{SRD_WB}:{SRD_WB+3}], s{S_KX} offen lds")
    A(f"""s_add_u32 s{S_KX}, s{S_KX}, 128
    s_cmp_eq_u32 s{S_KX}, 1280
    s_cselect_b32 s{S_KX}, 0, s{S_KX}""")
    if C0:
        A(f"""s_add_u32 s{S_T0}, s{S_ROT}, 1
        s_lshl_b32 s{S_KX}, s{S_T0}, 7
        s_mul_i32 s{S_KW}, s{S_T0}, {64*3072}""")
    late_scalars()
    declare_dma()
    ts(1, 2)
    for u in range(2, 5):
        call_sub(False)
    nonce_load()
    if OPT.get("solo", 0) >= 2:
        for u in range(5, 20):
            call_sub()
        A(f"s_mov_b32 s{S_T0+6}, 1")
        declare_dma(S_T0 + 6)
        A("s_waitcnt vmcnt(0)")
        ts_flush(100)
        A("s_endpgm")
    A(f"s_branch L_{kind}_loader")
    issue_sub(kind)

GW = OPT.get('gw', 19)
def g1_main(jobs, gran_loads_, gran_work, nstep, early=None):
    for u in range(5, 20):
        if u == GW:
            A(f"s_setprio {OPT.get('pls', 3)}")
            gran_work()
            A("s_setprio 0")
        call_sub()
        if u >= 6 and u % 2 == 0 or u >= 10:
            jobs.step(nstep)
        if early and u >= 20 - early.n:
            early.step()
        if u == GW - 3:
            assert not jobs.q
            gran_loads_()
    A(f"s_add_u32 s{S_T0+6}, s{S_S2}, 1")
    declare_dma(S_T0 + 6)

def finish():
    A("s_barrier")
    bump_epoch(200)
    ts(9, 2)
    ts_flush(100)
    A("s_endpgm")
    flush_slow()

mark = head_begin()
A(f"s_cmp_eq_u32 s{S_J}, 0\ns_cbranch_scc1 L_ssm_head")
rowpat_load(2, 10, False)
A(f"""s_mul_i32 s{S_T0}, s{S_C}, 163840
s_mul_i32 s{S_T0+1}, s{S_LW}, {32*1280}
s_add_u32 s{S_T0}, s{S_T0}, s{S_T0+1}
v_add_u32 v2, s{S_T0}, v2
v_add_u32 v3, s{S_T0}, v3
v_add_u32 v4, {16*1280-2048}, v2
v_add_u32 v5, {16*1280-2048}, v3
v_lshrrev_b32 v10, 4, v{VL}
s_and_b32 s{S_T0}, s{S_LW}, 1
s_lshl_b32 s{S_T0}, s{S_T0}, 2
v_or_b32 v11, s{S_T0}, v10                ; swizzle
v_lshlrev_b32 v11, 1, v11
v_and_b32 v6, 15, v{VL}
v_xor_b32 v11, v11, v6
v_mul_u32_u24 v10, 3072, v10
v_lshl_add_u32 v10, v11, 4, v10
s_mul_i32 s{S_T0}, s{S_LW}, {8*3072}
s_lshl_b32 s{S_T0+1}, s{S_CB}, 8
s_add_u32 s{S_T0}, s{S_T0}, s{S_T0+1}
v_add_u32 v6, s{S_T0}, v10
v_add_u32 v7, {4*3072-1024}, v6
s_mul_i32 s{S_KX}, s{S_ROT}, {0 if C0 else 128}
s_mul_i32 s{S_KW}, s{S_ROT}, {0 if C0 else 64*3072}
s_lshl_b32 s{S_T0+9}, s{S_LW}, 12
s_lshl_b32 s{S_T0+8}, s{S_LW}, 11
s_add_u32 s{S_T0+8}, s{S_T0+8}, {WRING}
s_mov_b32 m0, s{S_T0+9}
s_waitcnt lgkmcnt(0)
s_load_dword s{S_K}, s[{S_X}:{S_X+1}], 0""")
srd(SRD_X, S_X, 2621440)
for h in range(4):
    A(f"buffer_load_dwordx4 v{2+h}, s[{SRD_X}:{SRD_X+3}], s{S_KX} offen offset:{1024*h} lds")
srd(SRD_WA, S_W1, 1966080)
srd(SRD_WB, S_W3, 1966080)
for mat, sd in enumerate((SRD_WA, SRD_WB)):
    A(f"s_add_u32 m0, s{S_T0+8}, {mat*8192}\ns_nop 0")
    for h in range(2):
        A(f"buffer_load_dwordx4 v{6+h}, s[{sd}:{sd+3}], s{S_KW} offen offset:{1024*h} lds")
head_rest("mlp")
head_end(mark)
A.label("L_mlp_loader")
vm = NOQ
GA, GD = 18, 22
def gran_loads():
    for i in range(4):
        cap()
        A(f"global_load_dwordx4 v[{GD+4*i}:{GD+3+4*i}], v{GA+i}, s[{S_WS}:{S_WS+1}] sc1")
def mlp_setup3():
    A(f"""s_mul_i32 s{S_T0}, s{S_LW}, {1536*8}
    s_lshl_b32 s{S_T0+1}, s{S_CB}, 10
    s_add_u32 s{S_T0}, s{S_T0}, s{S_T0+1}
    s_add_u32 s{S_T0}, s{S_T0}, {WS_CSW}
    s_lshl_b32 s{S_T0+1}, s{S_C}, 10
    s_add_u32 s{S_T0+1}, s{S_T0+1}, {WS_STAT}
    s_cmp_ge_u32 s{S_LW}, 2
    s_cselect_b32 s{S_T0}, s{S_T0+1}, s{S_T0}
    s_cselect_b32 s{S_T0+1}, 0, {3072*8}
    v_lshlrev_b32 v{GA}, 4, v{VL}
    v_add_u32 v{GA}, s{S_T0}, v{GA}
    v_add_u32 v{GA+1}, s{S_T0+1}, v{GA}
    v_add_u32 v{GA+2}, s{S_T0+1}, v{GA+1}
    v_add_u32 v{GA+3}, s{S_T0+1}, v{GA+2}""")
def mlp_gran():
    if True:
        vm.wait("gran")
        lr, lo, lskip, lstat = A.newlabel("L_gr"), A.newlabel("L_gr"), A.newlabel("L_gr"), A.newlabel("L_gr")
        A(f"s_cmp_eq_u32 s{S_LW}, 2\ns_cbranch_scc1 {lskip}")
        A.label(lr)
        A(f"s_mov_b64 s[{S_M0}:{S_M0+1}], 0")
        for i in range(8):
            A(f"v_cmp_ne_u32 vcc, s{S_NONCE}, v{GD+1+2*i}\ns_nop 1\ns_or_b64 s[{S_M0}:{S_M0+1}], s[{S_M0}:{S_M0+1}], vcc")
        A(f"s_cmp_eq_u64 s[{S_M0}:{S_M0+1}], 0\ns_cbranch_scc1 {lo}")
        gran_loads()
        A("s_waitcnt vmcnt(0)")
        spin_tail(lr, lo, 5)
        A.label(lo)
        A(f"s_cmp_eq_u32 s{S_LW}, 3\ns_cbranch_scc1 {lstat}")
        A(f"""v_add_f32 v{GD}, v{GD}, v{GD+4}
        v_add_f32 v{GD+2}, v{GD+2}, v{GD+6}
        v_add_f32 v{GD+8}, v{GD+8}, v{GD+12}
        v_add_f32 v{GD+10}, v{GD+10}, v{GD+14}
        v_add_f32 v{GD}, v{GD}, v{GD+8}
        v_add_f32 v{GD+1}, v{GD+2}, v{GD+10}
        s_lshl_b32 s{S_T0}, s{S_LW}, 9
        s_add_u32 s{S_T0}, s{S_T0}, {M_CS}
        v_lshlrev_b32 v{GD+2}, 3, v{VL}
        v_add_u32 v{GD+2}, s{S_T0}, v{GD+2}
        ds_write_b64 v{GD+2}, v[{GD}:{GD+1}]
        s_branch {lskip}""")
        A.label(lstat)
        for hrow, p in ((0, GD), (1, GD + 2)):
            o = GD + 4 + 4 * hrow
            A(f"""v_and_b32 v{o+2}, 0xffff0000, v{p}
            v_lshlrev_b32 v{o}, 16, v{p}
            v_rcp_f32 v{o+1}, v{o+2}
            v_mul_f32 v{o+2}, v{o+2}, v{o+2}
            v_mul_f32 v{o+1}, {NLOG2E}, v{o+1}""")
        A(f"""v_lshlrev_b32 v{GD+2}, 5, v{VL}
        v_add_u32 v{GD+2}, {M_ROW}, v{GD+2}
        ds_write_b128 v{GD+2}, v[{GD+4}:{GD+7}]
        ds_write_b128 v{GD+2}, v[{GD+8}:{GD+11}] offset:16""")
        A.label(lskip)
        A("s_waitcnt lgkmcnt(0)")

nonce_ready()
def only2(fn):
    l = A.newlabel("L_nc")
    A(f"s_cmp_lg_u32 s{S_LW}, 2\ns_cbranch_scc1 {l}")
    fn()
    A.label(l)
    return
    yield
def one(fn):
    fn()
    return
    yield
jobs = Jobs()
jobs.add(one(mlp_setup3))
jobs.add(one(lambda: g2_setup(6, 232)))
def mg():
    mlp_gran()
MB = [40, 104, 168, 40, 104, 168]
T1 = OPT.get("thr1", CAP)
class Early:
    def __init__(self):
        self.n, self.ch = OPT.get("en", 0), OPT.get("ech", 2)
        def both():
            yield from g2_load(0, MB[0], CAP)
            yield
            yield from g2_load(1, MB[1], CAP)
        self.g = both()
    def step(self):
        for _ in range(self.ch):
            next(self.g, None)
early = Early()
g1_main(jobs, gran_loads, mg, 1, early)
ts(47, 2)
run(early.g)
A(f"s_lshl_b32 s{S_SLOT}, s{S_S2}, 14")
if OPT.get("ord", 0):
    run(g2_load(2, MB[2], T1))
    g2_put(0, MB[0], 32, 20)
else:
    g2_put(0, MB[0], 16, 20, g2_load(2, MB[2], T1))
g2_put(1, MB[1], 16, 20, g2_load(3, MB[3], T1))
run(g2_load(4, MB[4], THR))
g2_put(2, MB[2], 32, 20)
la = A.newlabel("L_k")
A(f"s_cmp_ge_u32 s{S_S2}, 14\ns_cbranch_scc1 {la}")
g2_put(3, MB[3], 16, 20, g2_load(5, MB[5], OPT.get('thr5', THR)))
A(f"s_branch {la}b")
A.label(la)
g2_put(3, MB[3], 16, 20)
A.label(f"{la}b")
A(f"s_cmp_lg_u32 s{S_S2}, 19\ns_cbranch_scc1 {la}c")
poll_until()
A.label(f"{la}c")
g2_put(4, MB[4], 0, 20)
A(f"s_cmp_ge_u32 s{S_S2}, 22\ns_cbranch_scc1 {la}x")
g2_put(5, MB[5], 0, 20)
A.label(f"{la}x")
finish()

mark = head_begin()
A.label("L_ssm_head")
rowpat_load(2, 14, True)
rowpat_load(6, 14, False)
A(f"""s_mul_i32 s{S_T0}, s{S_C}, 163840
s_lshr_b32 s{S_T0+1}, s{S_LW}, 1
s_mul_i32 s{S_T0+1}, s{S_T0+1}, {64*1280}
s_add_u32 s{S_T0}, s{S_T0}, s{S_T0+1}
s_and_b32 s{S_T0+1}, s{S_LW}, 1
s_mul_i32 s{S_T0+1}, s{S_T0+1}, {4*1280}
s_add_u32 s{S_T0}, s{S_T0}, s{S_T0+1}
v_add_u32 v2, s{S_T0}, v2
v_add_u32 v3, s{S_T0}, v3
v_add_u32 v4, {2*1280-2048}, v2
v_add_u32 v5, {2*1280-2048}, v3""")
A(f"""v_add_u32 v7, {1024-8*1280 & 0xffffffff}, v7
s_mul_i32 s{S_T0}, s{S_CB}, {160*1280}
s_mul_i32 s{S_T0+1}, s{S_LW}, {40*1280}
s_add_u32 s{S_T0}, s{S_T0}, s{S_T0+1}
s_bitcmp1_b32 s{S_LW}, 0
s_cselect_b64 vcc, -1, 0
v_add_u32 v6, s{S_T0}, v6
v_add_u32 v7, s{S_T0}, v7
v_cndmask_b32 v12, v6, v7, vcc
v_cndmask_b32 v13, v7, v6, vcc
v_mov_b32 v6, v12
v_add_u32 v7, {8*1280-1024}, v13
v_add_u32 v8, {16*1280-2048}, v12
v_add_u32 v9, {24*1280-3072}, v13
v_add_u32 v10, {32*1280}, v12
s_mul_i32 s{S_KX}, s{S_ROT}, {0 if C0 else 128}
s_lshl_b32 s{S_T0+9}, s{S_LW}, 12
s_mul_i32 s{S_T0+8}, s{S_LW}, 5120
s_add_u32 s{S_T0+8}, s{S_T0+8}, {WRING}
s_mov_b32 m0, s{S_T0+9}
s_waitcnt lgkmcnt(0)
s_load_dword s{S_K}, s[{S_X}:{S_X+1}], 0""")
srd(SRD_X, S_X, 2621440)
for h in range(4):
    A(f"buffer_load_dwordx4 v{2+h}, s[{SRD_X}:{SRD_X+3}], s{S_KX} offen offset:{1024*h} lds")
srd(SRD_WA, S_BRE, 819200)
srd(SRD_WB, S_BIM, 819200)
A(f"s_mov_b32 m0, s{S_T0+8}\ns_nop 0")
for h in range(4):
    A(f"buffer_load_dwordx4 v{6+h}, s[{SRD_WA}:{SRD_WA+3}], s{S_KX} offen offset:{1024*h} lds")
A(f"s_add_u32 m0, m0, 4096\ns_nop 0\nbuffer_load_dwordx4 v10, s[{SRD_WA}:{SRD_WA+3}], s{S_KX} offen lds")
head_rest("ssm")
head_end(mark)
A.label("L_ssm_loader")
CN = 212
LR, LI = 214, 215
L8, L128, KL = 216, 218, 220
def const_loads():
    A(f"""s_lshl_b32 s{S_T0}, s{S_LW}, 6
    v_add_u32 v{CN}, s{S_T0}, v{VL}
    v_min_u32 v{CN}, 159, v{CN}
    s_mul_i32 s{S_T0}, s{S_CB}, 160
    v_add_u32 v110, s{S_T0}, v{CN}
    v_lshlrev_b32 v110, 1, v110
    global_load_ushort v111, v110, s[{S_LRE}:{S_LRE+1}]
    global_load_ushort v112, v110, s[{S_LIM}:{S_LIM+1}]
    global_load_ushort v113, v110, s[{S_LDT}:{S_LDT+1}]""")
def ssm_setup3():
  A(f"""v_cmp_le_u32 vcc, 80, v{CN}
v_mov_b32 v41, 0
v_mov_b32 v42, {640-160}
v_cndmask_b32 v41, v41, v42, vcc
v_lshl_add_u32 v41, v{CN}, 1, v41
s_mul_i32 s{S_T0}, s{S_CB}, 160
v_add_u32 v41, s{S_T0}, v41
v_lshlrev_b32 v41, 3, v41
v_add_u32 v41, {WS_CSB}, v41
s_lshl_b32 s{S_T0+1}, s{S_C}, 10
s_add_u32 s{S_T0+1}, s{S_T0+1}, {WS_STAT}
v_lshlrev_b32 v40, 4, v{VL}
v_add_u32 v40, s{S_T0+1}, v40
s_cmp_eq_u32 s{S_LW}, 3
s_cselect_b64 vcc, -1, 0
s_nop 1
v_cndmask_b32 v40, v41, v40, vcc""")
def cmul(d, a, b, t):
    A(f"""v_mul_f32 v{t}, v{a+1}, v{b+1}
    v_mul_f32 v{t+1}, v{a+1}, v{b}
    v_fma_f32 v{t}, v{a}, v{b}, -v{t}
    v_fma_f32 v{d+1}, v{a}, v{b+1}, v{t+1}
    v_mov_b32 v{d}, v{t}""")
def ssm_consts():
    A(f"""v_lshlrev_b32 v111, 16, v111
    v_lshlrev_b32 v112, 16, v112
    v_lshlrev_b32 v113, 16, v113
    v_mul_f32 v113, {LOG2E}, v113
    v_exp_f32 v113, v113
    v_mul_f32 v114, v111, v111
    v_fma_f32 v114, v112, v112, v114
    v_cvt_pk_bf16_f32 v113, v113, v113
    v_lshlrev_b32 v113, 16, v113              ; dt
    v_rcp_f32 v114, v114
    v_mul_f32 v115, v113, v111
    v_mul_f32 v116, v113, v112
    v_mul_f32 v115, {LOG2E}, v115
    v_mul_f32 v116, 0.15915494, v116
    v_exp_f32 v115, v115
    v_rndne_f32 v117, v116
    v_sub_f32 v116, v116, v117
    v_cos_f32 v117, v116
    v_sin_f32 v116, v116
    v_add_f32 v114, v114, v114
    v_mul_f32 v{LR}, v115, v117
    v_mul_f32 v{LI}, v115, v116
    v_add_f32 v115, -1.0, v{LR}
    v_mul_f32 v116, v{LI}, v112
    v_fma_f32 v116, v115, v111, v116
    v_mul_f32 v117, v115, v112
    v_fma_f32 v117, v{LI}, v111, -v117        ; Im
    v_mul_f32 v118, v116, v114
    v_mul_f32 v119, -v117, v114
    v_lshlrev_b32 v120, 3, v{CN}
    v_add_u32 v120, {M_LAM}, v120
    ds_write_b64 v120, v[{LR}:{LI}]
    ds_write_b64 v120, v[118:119] offset:{M_COEF-M_LAM}
    v_mul_f32 v{KL}, v118, v{LR}
    v_fma_f32 v{KL}, v119, v{LI}, v{KL}
    v_mul_f32 v{KL+1}, v119, v{LR}
    v_fma_f32 v{KL+1}, -v118, v{LI}, v{KL+1}""")
    yield
    cmul(L8, LR, LR, 114)
    cmul(L8, L8, L8, 114)
    cmul(L8, L8, L8, 114)
    cmul(L128, L8, L8, 114)
    for i in range(3):
        cmul(L128, L128, L128, 114)
def ssm_gran():
    if True:
        vm.wait("gran")
        lr, lo, lskip, lstat = A.newlabel("L_gr"), A.newlabel("L_gr"), A.newlabel("L_gr"), A.newlabel("L_gr")
        A.label(lr)
        A(f"""v_cmp_ne_u32 vcc, s{S_NONCE}, v45
        v_cmp_ne_u32 s[{S_M0}:{S_M0+1}], s{S_NONCE}, v47
        s_nop 1
        s_or_b64 s[{S_M0}:{S_M0+1}], s[{S_M0}:{S_M0+1}], vcc
        s_cmp_eq_u64 s[{S_M0}:{S_M0+1}], 0
        s_cbranch_scc1 {lo}
        global_load_dwordx4 v[44:47], v40, s[{S_WS}:{S_WS+1}] sc1
        s_waitcnt vmcnt(0)""")
        spin_tail(lr, lo, 6)
        A.label(lo)
        A(f"""s_cmp_eq_u32 s{S_LW}, 3
        s_cbranch_scc1 {lstat}
        v_mov_b32 v45, v46
        v_lshlrev_b32 v46, 3, v{CN}
        v_add_u32 v46, {M_CS}, v46
        ds_write_b64 v46, v[44:45]
        s_branch {lskip}""")
        A.label(lstat)
        A(f"""v_and_b32 v48, 0xffff0000, v44
        v_and_b32 v49, 0xffff0000, v46
        v_rcp_f32 v48, v48
        v_rcp_f32 v49, v49
        v_lshlrev_b32 v44, 16, v44
        v_lshlrev_b32 v46, 16, v46
        v_and_b32 v50, 32, v{VL}
        v_lshlrev_b32 v50, 1, v50
        v_and_b32 v51, 3, v{VL}
        v_lshl_add_u32 v50, v51, 4, v50
        v_bfe_u32 v51, v{VL}, 3, 2
        v_lshl_add_u32 v50, v51, 2, v50
        v_bfe_u32 v51, v{VL}, 2, 1
        v_add_u32 v50, v50, v51
        v_lshlrev_b32 v50, 2, v50
        v_add_u32 v50, {M_ROW}, v50
        ds_write2_b32 v50, v44, v46 offset0:0 offset1:2
        ds_write2_b32 v50, v48, v49 offset0:128 offset1:130""")
        A.label(lskip)
        A("s_waitcnt lgkmcnt(0)")

nonce_ready()
const_loads()
jobs = Jobs()
jobs.add(one(lambda: None))
jobs.add(ssm_consts())
jobs.add(one(ssm_setup3))
jobs.add(one(lambda: g2_setup(2, 232)))
def gs():
    A(f"global_load_dwordx4 v[44:47], v40, s[{S_WS}:{S_WS+1}] sc1")
g1_main(jobs, gs, ssm_gran, 1)
A(f"s_lshl_b32 s{S_SLOT}, s{S_S2}, 14")
SB = [44, 44, 108, 172, 44, 108]
run(g2_load(0, SB[0], CAP))
g2_put(0, SB[0], 0, 20)
if not OPT.get("l1late", 0):
    run(g2_load(1, SB[1], 16))
A("s_setprio 3\ns_barrier")
ts(4, 2)
lmid = A.newlabel("L_mid")
A(f"s_cmp_eq_u32 s{S_LW}, 3\ns_cbranch_scc1 {lmid}")
ME = 112
ML = 144
MT = 204
A(f"""v_lshlrev_b32 v{MT}, 3, v{CN}
v_add_u32 v{MT}, {E_BASE}, v{MT}""")
for j in range(16):
    A(f"ds_read_b64 v[{ME+2*j}:{ME+2*j+1}], v{MT} offset:{j*1280}")
A(f"""s_lshl_b32 s{S_T0}, s{S_CB}, 4
s_mul_i32 s{S_T0}, s{S_T0}, 2560
s_add_u32 s{S_T0}, s{S_T0}, {WS_SCAN}
v_lshlrev_b32 v{MT+1}, 4, v{CN}
v_add_u32 v{MT+1}, s{S_T0}, v{MT+1}
s_mul_i32 s{S_T0}, s{S_C}, 2560
v_add_u32 v{MT+2}, s{S_T0}, v{MT+1}
v_mov_b32 v{MT+5}, s{S_NONCE}
v_mov_b32 v{MT+7}, s{S_NONCE}""")
def cfma(d, a, b, c, conj_a=False, conj_b=False):
    nb = " neg_hi:[0,1,0]" if conj_b else ""
    if c is None:
        A(f"v_pk_mul_f32 v[{d}:{d+1}], v[{a}:{a+1}], v[{b}:{b+1}] op_sel_hi:[0,1]" + (" neg_hi:[0,1]" if conj_b else ""))
        c = d
    else:
        A(f"v_pk_fma_f32 v[{d}:{d+1}], v[{a}:{a+1}], v[{b}:{b+1}], v[{c}:{c+1}] op_sel_hi:[0,1,1]{nb}")
    slo = 1 ^ conj_a ^ conj_b
    shi = int(conj_a)
    A(f"v_pk_fma_f32 v[{d}:{d+1}], v[{a}:{a+1}], v[{b}:{b+1}], v[{d}:{d+1}] op_sel:[1,1,0] op_sel_hi:[1,0,1] neg_lo:[{slo},0,0] neg_hi:[{shi},0,0]")
for j in range(1, 16):
    if j in (1, 5, 9, 13):
        A(f"s_waitcnt lgkmcnt({max(0, 11 - j + 1 - 0) if j < 13 else 0})")
    cfma(ME + 2 * j, L8, ME + 2 * j - 2, ME + 2 * j)
A(f"""v_mov_b32 v{MT+4}, v{ME+30}
v_mov_b32 v{MT+6}, v{ME+31}
global_store_dwordx4 v{MT+2}, v[{MT+4}:{MT+7}], s[{S_WS}:{S_WS+1}] {['sc1', 'sc0 sc1', 'sc1 nt'][OPT.get('lbs', 0)]}""")
ts(5, 2)
lr, lo, lld, lck, lh = [A.newlabel("L_lb") for _ in range(5)]
def lb_loads(lbl):
    A(f"v_mov_b32 v{MT+3}, v{MT+1}")
    for k in range(15):
        A(f"""s_cmp_le_u32 s{S_C}, {k}
        s_cbranch_scc1 {lbl}
        global_load_dwordx4 v[{ML+4*k}:{ML+4*k+3}], v{MT+3}, s[{S_WS}:{S_WS+1}] {['sc1', 'sc0 sc1', 'sc1 nt', 'sc0 sc1 nt'][OPT.get('lbm', 0)]}
        v_add_u32 v{MT+3}, 2560, v{MT+3}""")
    A.label(lbl)
if not OPT.get("lbd", 1):
    lb_loads(lld)
for j in range(15, 0, -1):
    cfma(ME + 2 * j, KL, ME + 2 * j - 2, None, conj_b=True)
MP = 16
A(f"v_mov_b32 v{MP+2}, v{L8}\nv_sub_f32 v{MP+3}, 0, v{L8+1}")
for j in range(2, 14):
    cfma(MP + 2 * j, MP + 2, MP + 2 * j - 2, None)
A(f"v_mov_b32 v{ME}, 0\nv_mov_b32 v{ME+1}, 0")
if OPT.get("lbd", 1):
    if OPT.get("lbd", 1) > 1:
        A(f"s_sleep {OPT['lbd']}")
    lb_loads(lld)
A.label(lr)
A(f"s_waitcnt vmcnt(0)\ns_mov_b64 s[{S_M0}:{S_M0+1}], 0")
for k in range(15):
    A(f"""s_cmp_le_u32 s{S_C}, {k}
    s_cbranch_scc1 {lck}
    v_cmp_ne_u32 vcc, s{S_NONCE}, v{ML+4*k+1}
    v_cmp_ne_u32 s[{S_M1}:{S_M1+1}], s{S_NONCE}, v{ML+4*k+3}
    s_nop 1
    s_or_b64 s[{S_M0}:{S_M0+1}], s[{S_M0}:{S_M0+1}], vcc
    s_or_b64 s[{S_M0}:{S_M0+1}], s[{S_M0}:{S_M0+1}], s[{S_M1}:{S_M1+1}]""")
A.label(lck)
A(f"s_cmp_eq_u64 s[{S_M0}:{S_M0+1}], 0\ns_cbranch_scc1 {lo}")
lb_loads(A.newlabel("L_lb"))
spin_tail(lr, lo, 7)
A.label(lo)
ts(6, 2)
H = MT + 4
A(f"v_mov_b32 v{H}, 0\nv_mov_b32 v{H+1}, 0")
for k in range(15):
    g = ML + 4 * k
    A(f"""s_cmp_le_u32 s{S_C}, {k}
    s_cbranch_scc1 {lh}
    v_mov_b32 v{g+1}, v{g+2}""")
    cfma(g, L128, H, g)
    A(f"v_mov_b64 v[{H}:{H+1}], v[{g}:{g+1}]")
A.label(lh)
Q = MT + 6
cfma(Q, KL, H, None, conj_b=True)
A(f"v_pk_add_f32 v[{ME}:{ME+1}], v[{ME}:{ME+1}], v[{Q}:{Q+1}]")
A(f"ds_write_b64 v{MT}, v[{ME}:{ME+1}]")
for j in range(1, 16):
    d = ME + 2 * j
    if j == 14:
        cfma(H, MP + 4, Q, None)
    if j < 14:
        cfma(d, MP + 2 * j, Q, d)
    else:
        cfma(d, MP + 2 * (j - 2), H, d)
    A(f"ds_write_b64 v{MT}, v[{d}:{d+1}] offset:{j*1280}")
A("s_waitcnt lgkmcnt(0)")
A.label(lmid)
A("s_setprio 0\ns_barrier")
ts(7, 2)
SC = OPT.get("scap", 2)
if OPT.get("l1late", 0):
    run(g2_load(1, SB[1], SC))
run(g2_load(2, SB[2], SC))
run(g2_load(3, SB[3], OPT.get("scap2", 3)))
A(f"s_cmp_lt_u32 s{S_S2}, 5\ns_cselect_b32 s{S_T0+5}, 20, 21")
g2_put(1, SB[1], 32, f"s{S_T0+5}")
g_ = g2_load(4, SB[4], 6)
for _ in range(8):
    next(g_)
g2_put(2, SB[2], 24, 21, g_)
lpu = A.newlabel("L_k")
A(f"s_cmp_lg_u32 s{S_S2}, 15\ns_cbranch_scc1 {lpu}")
poll_until()
A.label(lpu)
la = A.newlabel("L_k")
A(f"s_cmp_ge_u32 s{S_S2}, 14\ns_cbranch_scc1 {la}")
g2_put(3, SB[3], 16, 21, g2_load(5, SB[5], 6))
g2_put(4, SB[4], 16, 21)
g2_put(5, SB[5], 0, 21)
A(f"s_branch {la}x")
A.label(la)
g2_put(3, SB[3], 16, 21)
g2_put(4, SB[4], 0, 21)
A.label(f"{la}x")
finish()

A.label("L_end")
A("s_endpgm")
A.label("L_code_end")
A.lines[HEADPOS:HEADPOS] = HEADS
A.lines.insert(0, "L_code_start:")

hdr = open(os.path.join(os.path.dirname(__file__), "header.txt")).read()
print(hdr + f"""; @launch grid=(256,1,1) block=(512,1,1) lds=163840
.amdgcn_target "amdgcn-amd-amdhsa--gfx950"
.text
.globl {KNAME}
.p2align 8
.type {KNAME},@function
{KNAME}:""")
print(A.text(), end="")
print(f""".section .rodata,"a"
.p2align 6
.amdhsa_kernel {KNAME}
  .amdhsa_next_free_vgpr 256
  .amdhsa_next_free_sgpr 102
  .amdhsa_accum_offset 256
  .amdhsa_group_segment_fixed_size 0
  .amdhsa_kernarg_size 128
  .amdhsa_user_sgpr_count 2
  .amdhsa_user_sgpr_kernarg_segment_ptr 1
  .amdhsa_system_sgpr_workgroup_id_x 1
.end_amdhsa_kernel""")
```

```python
import sys, os
sys.path.insert(0, os.path.dirname(__file__))
from asmlib import Asm, Queue, vr, sr

OPT = dict(ts=0, stop=0, DA=3, D1=4, D1S=5, timeout=1 << 20, nodma=0, nomfma=0, nobar=0, noread=0, rot=8, rot2=1, pf=0, stash=8, sg1=12, amod=1)
for a in sys.argv[1:]:
    k, v = a.split("=")
    OPT[k] = int(v)
P0 = OPT.get("p0", 3)
TS = OPT["ts"]; STOP = OPT["stop"]; DA = OPT["DA"]; D1 = OPT["D1"]

KNAME = "parallel_sum__ssm_conv_s5__glu_gated_swiglu__prompt_kernel"

WS_E = 0
WS_FLAG = 0x1000
WS_STAT = 0x4000
WS_CSB = 0x8000
WS_CSW = 0x10000
WS_SCAN = 0x40000
WS_TAB = 0x80000
WS_ACT = 0x100000
WS_TS = 0x1000000

MISC = 151552
WRING = 49152
SCR = 131072
M_ROW = MISC
M_CS = MISC + 2048
M_LAM = MISC + 3584
M_COEF = MISC + 4864
E_BASE = 81920
TR_BASE = 102400

S_X, S_LRE, S_LIM, S_BRE, S_BIM, S_CRE, S_CIM, S_LDT = 4, 6, 8, 10, 12, 14, 16, 18
S_DSK, S_W1, S_W3, S_W2, S_OUT, S_DBG, S_WS = 20, 24, 26, 28, 30, 32, 34
SRD_X, SRD_WA, SRD_WB, SRD_W2, SRD_C, SRD_T = 36, 40, 44, 48, 52, 56
S_XCD, S_IDX, S_C, S_J, S_CB, S_WAVE, S_NONCE = 60, 61, 62, 63, 64, 65, 66
S_HB2, S_DCOL, S_TG = 67, 68, 23
S_ONES = 69
S_T0 = 70
S_SLOT, S_KX, S_KW, S_CNT, S_DELTA = 80, 81, 82, 83, 84
S_AB = 86
S_M0, S_M1 = 88, 90
S_EX = 92
S_TO = 94
S_TS = 96
S_ROT, S_R2A, S_R2B, S_KB, S_KS = 95, 98, 99, 100, 101

A = Asm()
LOG2E = 0x3fb8aa3b
NLOG2E = 0xbfb8aa3b

def ts(idx, vtmp):
    if not TS:
        return

    A(f"""s_memrealtime s[{S_TS}:{S_TS+1}]
    s_waitcnt lgkmcnt(0)
    v_writelane_b32 v255, s{S_TS}, {idx}""")

def tc(idx):
    if not TS:
        return
    A(f"""s_memtime s[{S_TS}:{S_TS+1}]
    s_waitcnt lgkmcnt(0)
    v_writelane_b32 v255, s{S_TS}, {idx}""")

def ts_flush(vtmp):
    if not TS:
        return
    A(f"""s_lshl_b32 s{S_T0}, s2, 3
    s_add_u32 s{S_T0}, s{S_T0}, s{S_WAVE}
    s_lshl_b32 s{S_T0}, s{S_T0}, 8
    s_add_u32 s{S_T0}, s{S_T0}, {WS_TS}
    v_lshlrev_b32 v{vtmp}, 2, v{VL}
    v_add_u32 v{vtmp}, s{S_T0}, v{vtmp}
    global_store_dword v{vtmp}, v255, s[{S_WS}:{S_WS+1}]""")

def srd(d, p, nbytes):
    A(f"""s_mov_b32 s{d}, s{p}
    s_mov_b32 s{d+1}, s{p+1}
    s_mov_b32 s{d+2}, {nbytes}
    s_mov_b32 s{d+3}, 0x20000""")

def srd_sel(d, p1, p0, nbytes):
    A(f"""s_cselect_b32 s{d}, s{p1}, s{p0}
    s_cselect_b32 s{d+1}, s{p1+1}, s{p0+1}
    s_mov_b32 s{d+2}, {nbytes}
    s_mov_b32 s{d+3}, 0x20000""")

def spin_tail(lbl_retry, lbl_ok, code):
    A(f"""s_sleep {OPT.get('nap', 1) if code == 2 else 1}
    s_sub_u32 s{S_TO}, s{S_TO}, 1
    s_cmp_lg_u32 s{S_TO}, 0
    s_cbranch_scc1 {lbl_retry}
    s_mov_b32 s{S_TO}, 1""")

VL = 254
VFO = 253
FLG = MISC + 6144
FREE, AUX = FLG + 2048, FLG + 4096
S_K = 3
S_FR = 86
S_LMT = 85
SRD_F = 52
VZ = 252
SLOW = []
def flag_test(need, vD, vP, off, pre=None, anylane=False, acc=None, nap=0, split=False):
    ls, lb, lr = A.newlabel("L_sw"), A.newlabel("L_bk"), A.newlabel("L_sr")
    cmp_ = f"v_cmp_ne_u32 vcc, s{S_K}, v{vD}"
    A(f"s_cbranch_vccnz {ls}" if split else f"{cmp_}\ns_cbranch_vccnz {ls}")
    A.label(lb)
    mark = len(A.lines)
    A.label(ls)
    if TS and acc is not None:
        A(f"s_memtime s[{S_TS}:{S_TS+1}]\ns_waitcnt lgkmcnt(0)\ns_sub_u32 s{acc}, s{acc}, s{S_TS}\ns_add_u32 s{acc+1}, s{acc+1}, 1")
        lb2 = lb
        lb = A.newlabel("L_b2")
    A.label(lr)
    if nap:
        A(f"s_sleep {nap}")
    A(f"""ds_read_b32 v{vD}, v{vP} offset:{off}
    s_waitcnt lgkmcnt(0)
    {cmp_}
    s_cbranch_vccz {lb}
    s_sub_u32 s{S_TO}, s{S_TO}, 1
    s_cmp_lg_u32 s{S_TO}, 0
    s_cbranch_scc1 {lr}
    s_mov_b32 s{S_TO}, 1
    s_branch {lb}""")
    if TS and acc is not None:
        A.label(lb)
        A(f"s_memtime s[{S_TS}:{S_TS+1}]\ns_waitcnt lgkmcnt(0)\ns_add_u32 s{acc}, s{acc}, s{S_TS}\ns_branch {lb2}")
    SLOW.extend(A.lines[mark:])
    del A.lines[mark:]
def flag_wait(need, vD, vP, rel=0, nap=0):
    off = rel + 4 * need
    A(f"ds_read_b32 v{vD}, v{vP} offset:{off}\ns_waitcnt lgkmcnt(0)")
    flag_test(need, vD, vP, off, nap=nap)
def flush_slow():
    A.lines.extend(SLOW)
    SLOW.clear()
def flag_init(base, wave_sgpr, vP, peer, aux):
    A(f"""s_lshl_b32 s{S_T0}, s{wave_sgpr}, 9
    s_add_u32 s{S_T0}, s{S_T0}, {base}
    v_lshlrev_b32 v{VFO}, 2, v{VL}
    v_add_u32 v{VFO}, s{S_T0}, v{VFO}
    v_mov_b32 v{VZ}, 0
    s_waitcnt lgkmcnt(0)
    v_not_b32 v{vP}, s{S_K}
    ds_write2st64_b32 v{VFO}, v{vP}, v{vP} offset0:0 offset1:1""")
    if aux:
        A(f"""s_lshl_b32 s{S_T0+1}, s{wave_sgpr}, 8
        v_lshlrev_b32 v{aux}, 2, v{VL}
        v_add_u32 v{aux}, s{S_T0+1}, v{aux}
        v_add_u32 v{aux}, {AUX}, v{aux}
        ds_write_b32 v{aux}, v{VZ}""")
    peer_addr(vP, peer)
    A("s_waitcnt lgkmcnt(0)\ns_barrier")
def peer_addr(vP, peer):
    A(f"""v_and_b32 v{vP}, 3, v{VL}
    v_lshlrev_b32 v{vP}, 9, v{vP}
    v_add_u32 v{vP}, {peer + 252}, v{vP}""")


S_LW = 85
A(f"""s_cmp_ge_u32 s2, 256
s_cbranch_scc1 L_end
s_load_dwordx16 s[4:19], s[0:1], 0
s_load_dwordx16 s[20:35], s[0:1], 64
v_lshrrev_b32 v1, 6, v0
v_and_b32 v{VL}, 63, v0
s_and_b32 s{S_XCD}, s2, 7
v_readfirstlane_b32 s{S_WAVE}, v1
s_lshr_b32 s{S_IDX}, s2, 3
s_and_b32 s{S_T0}, s{S_XCD}, 1
s_lshl_b32 s{S_T0}, s{S_T0}, 3
s_and_b32 s{S_T0+1}, s{S_IDX}, 7
s_add_u32 s{S_C}, s{S_T0}, s{S_T0+1}
s_lshr_b32 s{S_J}, s{S_IDX}, 3
s_lshr_b32 s{S_T0+2}, s{S_XCD}, 1
s_mul_i32 s{S_CB}, s{S_T0+2}, 3
s_add_u32 s{S_CB}, s{S_CB}, s{S_J}
s_sub_u32 s{S_CB}, s{S_CB}, 1
s_cmp_eq_u32 s{S_J}, 0
s_cselect_b32 s{S_CB}, s{S_T0+2}, s{S_CB}
""")
if TS:
    A("v_mov_b32 v255, 0")
    ts(0, 2)
RG = OPT["rot"]
C0 = OPT.get("c0", 1)
if RG:
    A(f"""s_lshl_b32 s{S_ROT}, s{S_J}, {1 if RG == 8 else 0}
    s_add_u32 s{S_ROT}, s{S_T0+1}, s{S_ROT}
    s_and_b32 s{S_ROT}, s{S_ROT}, {RG-1}
    s_mul_i32 s{S_ROT}, s{S_ROT}, {9 if C0 else 10}
    s_lshr_b32 s{S_ROT}, s{S_ROT}, {RG.bit_length()-1}""")
else:
    A(f"s_mov_b32 s{S_ROT}, 0")
A(f"""s_cmp_lt_u32 s{S_WAVE}, 4
s_cbranch_scc1 L_compute
s_sub_u32 s{S_LW}, s{S_WAVE}, 4
s_setprio {OPT.get('pl1', 0)}""")

def nonce_load():
    A(f"s_load_dword s{S_NONCE}, s[{S_WS}:{S_WS+1}], {WS_E}")
def late_scalars():
    A(f"""s_sub_u32 s{S_T0}, s{S_IDX}, 8
    s_mul_i32 s{S_T0+1}, s{S_T0}, 13
    s_lshr_b32 s{S_T0+1}, s{S_T0+1}, 6          ; n/5
    s_mul_i32 s{S_T0+2}, s{S_T0+1}, 5
    s_sub_u32 s{S_T0+2}, s{S_T0}, s{S_T0+2}     ; n%5
    s_mul_i32 s{S_TG}, s{S_T0+2}, 6
    s_lshl_b32 s{S_T0+3}, s{S_IDX}, 1
    s_add_u32 s{S_T0+3}, s{S_T0+3}, 16
    s_cmp_lt_u32 s{S_IDX}, 4
    s_cselect_b32 s{S_T0+3}, 30, s{S_T0+3}
    s_min_u32 s{S_T0}, s{S_IDX}, 4
    s_cmp_eq_u32 s{S_J}, 0
    s_cselect_b32 s{S_TG}, s{S_T0+3}, s{S_TG}
    s_cselect_b32 s{S_T0+1}, s{S_T0}, s{S_T0+1}  ; strip
    s_cselect_b32 s{S_T0+2}, 5, s{S_T0+2}
    s_lshr_b32 s{S_T0}, s{S_XCD}, 1
    s_lshl_b32 s{S_T0}, s{S_T0}, 5
    s_add_u32 s{S_TG}, s{S_TG}, s{S_T0}          ; first 16-row tile
    s_lshr_b32 s{S_HB2}, s{S_TG}, 2
    s_lshl_b32 s{S_DCOL}, s{S_T0+1}, 6
    s_and_b32 s{S_T0}, s{S_XCD}, 1
    s_mul_i32 s{S_T0}, s{S_T0}, 320
    s_add_u32 s{S_DCOL}, s{S_DCOL}, s{S_T0}
    s_mov_b32 s{S_ONES}, 0x3f803f80
    s_mov_b32 s{S_TO}, {OPT['timeout']}""")
    if OPT["rot2"]:
        A(f"""s_add_u32 s{S_R2B}, s{S_T0+1}, s{S_T0+2}
        s_lshl_b32 s{S_R2A}, s{S_R2B}, 1
        s_cmp_ge_u32 s{S_R2A}, 12
        s_cselect_b32 s{S_T0+3}, 12, 0
        s_sub_u32 s{S_R2A}, s{S_R2A}, s{S_T0+3}
        s_lshl_b32 s{S_R2B}, s{S_R2B}, 1
        s_cmp_ge_u32 s{S_R2B}, 10
        s_cselect_b32 s{S_T0+3}, 10, 0
        s_sub_u32 s{S_R2B}, s{S_R2B}, s{S_T0+3}""")
    else:
        A(f"s_mov_b32 s{S_R2A}, 0\ns_mov_b32 s{S_R2B}, 0")
for n_ in range(24):
    assert (n_ * 13) >> 6 == n_ // 5

HEADPOS = len(A.lines)
HEADS = []

def dpp_reduce16(regs):
    for sh in (8, 4, 2, 1):
        A("s_nop 1")
        for r in regs:
            A(f"v_add_f32_dpp v{r}, v{r}, v{r} row_ror:{sh} row_mask:0xf bank_mask:0xf")

def nonce_ready():
    A(f"""s_waitcnt lgkmcnt(0)
    s_add_u32 s{S_NONCE}, s{S_NONCE}, 1""")

def sum_bf16(regs, acc, sq=None, t=None):
    for k, r in enumerate(regs):
        if k and k % (5 if sq is not None else 8) == 0:
            yield
        A(f"v_lshlrev_b32 v{t}, 16, v{r}")
        A(f"v_and_b32 v{r}, 0xffff0000, v{r}")
        if k == 0:
            A(f"v_mov_b32 v{acc}, v{t}\nv_mov_b32 v{acc+1}, v{r}")
            if sq is not None:
                A(f"v_mul_f32 v{sq}, v{t}, v{t}\nv_mul_f32 v{sq+1}, v{r}, v{r}")
        else:
            A(f"v_add_f32 v{acc}, v{acc}, v{t}\nv_add_f32 v{acc+1}, v{acc+1}, v{r}")
            if sq is not None:
                A(f"v_fmac_f32 v{sq}, v{t}, v{t}\nv_fmac_f32 v{sq+1}, v{r}, v{r}")
    A(f"v_add_f32 v{acc}, v{acc}, v{acc+1}")
    if sq is not None:
        A(f"v_add_f32 v{sq}, v{sq}, v{sq+1}")

def reduce32(regs):
    dpp_reduce16(regs)
    A("s_nop 1")
    for r in regs:
        A(f"v_add_f32_dpp v{r}, v{r}, v{r} row_bcast:15 row_mask:0xa bank_mask:0xf")

def stat_loads(vm, T):
    A(f"""v_lshrrev_b32 v{T+10}, 5, v{VL}
    s_lshl_b32 s{S_T0}, s2, 3
    s_lshl_b32 s{S_T0+1}, s{S_LW}, 1
    s_add_u32 s{S_T0}, s{S_T0}, s{S_T0+1}
    v_add_u32 v{T+10}, s{S_T0}, v{T+10}
    v_and_b32 v{T+11}, 31, v{VL}
    v_mul_u32_u24 v{T+12}, 1280, v{T+10}
    v_lshl_add_u32 v{T+12}, v{T+11}, 3, v{T+12}""")
    for i in range(5):
        A(f"global_load_dwordx2 v[{T+2*i}:{T+2*i+1}], v{T+12}, s[{S_X}:{S_X+1}] offset:{256*i}")
        vm.issue("stat")

def stat_work(vm, T):
    vm.wait("stat")
    a, q = T + 12, T + 14
    yield from sum_bf16(list(range(T, T + 10)), a, q, T + 16)
    yield
    reduce32([a, q])
    yield
    A(f"""v_mul_f32 v{a}, 0x3acccccd, v{a}      ; mean
    v_mul_f32 v{q}, 0x3acccccd, v{q}
    v_fma_f32 v{q}, -v{a}, v{a}, v{q}
    v_max_f32 v{q}, 0, v{q}
    v_cvt_pk_bf16_f32 v{q}, v{q}, v{q}
    v_lshlrev_b32 v{q}, 16, v{q}
    v_add_f32 v{q}, 0x3727c5ac, v{q}
    v_cvt_pk_bf16_f32 v{q}, v{q}, v{q}
    v_lshlrev_b32 v{q}, 16, v{q}
    v_sqrt_f32 v{q}, v{q}
    v_lshlrev_b32 v{T+10}, 3, v{T+10}
    v_add_u32 v{T+10}, {WS_STAT}, v{T+10}
    v_cvt_pk_bf16_f32 v{a}, v{a}, v{q}
    v_mov_b32 v{a+1}, s{S_NONCE}
    v_cmp_eq_u32 vcc, 16, v{T+11}
    s_and_saveexec_b64 s[{S_EX}:{S_EX+1}], vcc
    global_store_dwordx2 v{T+10}, v[{a}:{a+1}], s[{S_WS}:{S_WS+1}] sc1
    s_mov_b64 exec, s[{S_EX}:{S_EX+1}]""")
    vm.issue("pub")

S_CS0 = 86
def colsum_loads(T):
    A(f"""s_mul_i32 s{S_T0}, s{S_C}, 12
    s_add_u32 s{S_T0}, s{S_T0}, s{S_CB}            ; sigma
    s_lshr_b32 s{S_T0+1}, s{S_T0}, 2               ; strip
    s_and_b32 s{S_T0+2}, s{S_T0}, 3                ; k quarter
    s_cmp_ge_u32 s{S_T0+1}, 24""")
    srd_sel(SRD_T, S_W3, S_W1, 1966080)
    A(f"""s_cselect_b32 s{S_T0+3}, {24*128}, 0
    s_lshl_b32 s{S_T0+4}, s{S_T0+1}, 7
    s_sub_u32 s{S_T0+4}, s{S_T0+4}, s{S_T0+3}
    s_mul_i32 s{S_T0+5}, s{S_T0+2}, {160*3072}
    s_add_u32 s{S_T0+4}, s{S_T0+4}, s{S_T0+5}      ; soffset
    s_mul_i32 s{S_CS0}, s{S_T0+2}, {3072*8}
    s_lshl_b32 s{S_T0+1}, s{S_T0+1}, 9
    s_add_u32 s{S_CS0}, s{S_CS0}, s{S_T0+1}
    s_add_u32 s{S_CS0}, s{S_CS0}, {WS_CSW}
    v_lshrrev_b32 v{T}, 3, v{VL}
    v_and_b32 v{T+1}, 7, v{VL}
    v_mul_u32_u24 v{T}, 3072, v{T}
    v_lshl_add_u32 v{T}, v{T+1}, 4, v{T}""")
    for i in range(20):
        if i % 4 == 0:
            A(f"s_mov_b32 m0, {SCR + 1024*i}")
        A(f"""s_add_u32 s{S_T0+7}, s{S_T0+4}, {8*3072*i - 1024*(i%4)}
        s_waitcnt vmcnt({OPT.get("cap", 7)})
        buffer_load_dwordx4 v{T}, s[{SRD_T}:{SRD_T+3}], s{S_T0+7} offen offset:{1024*(i%4)} lds""")

def colsum_work(T):
    A(f"""v_lshrrev_b32 v{T+2}, 4, v{VL}
    v_lshlrev_b32 v{T+3}, 5, v{T+2}
    v_lshlrev_b32 v{T+2}, 10, v{T+2}
    v_bfe_u32 v{T+1}, v{VL}, 2, 2
    v_lshl_add_u32 v{T+2}, v{T+1}, 7, v{T+2}
    v_and_b32 v{T+1}, 3, v{VL}
    v_lshl_add_u32 v{T+2}, v{T+1}, 3, v{T+2}
    v_add_u32 v{T+2}, {SCR}, v{T+2}
    v_add_u32 v{T+3}, s{S_CS0}, v{T+3}""")
    for i in range(4):
        A(f"v_mov_b32 v{T+4+i}, s{S_ONES}")
    F = T + 24
    for u in range(4):
        for ks in range(5):
            b = F + (u * 5 + ks) * 4
            A(f"ds_read_b64_tr_b16 v[{b}:{b+1}], v{T+2} offset:{ks*4096+u*32}")
            A(f"ds_read_b64_tr_b16 v[{b+2}:{b+3}], v{T+2} offset:{ks*4096+u*32+512}")
    A("s_waitcnt lgkmcnt(0)")
    for ks in range(5):
        for u in range(4):
            b = F + (u * 5 + ks) * 4
            d = T + 8 + 4 * u
            cin = "0" if ks == 0 else f"v[{d}:{d+3}]"
            A(f"v_mfma_f32_16x16x32_bf16 v[{d}:{d+3}], v[{b}:{b+3}], v[{T+4}:{T+7}], {cin}")
    A(f"""v_and_b32 v{T+1}, 15, v{VL}
    v_cmp_eq_u32 vcc, 0, v{T+1}
    s_nop 7""")
    for u in range(4):
        for h in range(2):
            o = F + (u * 2 + h) * 4
            A(f"""v_mov_b32 v{o}, v{T+8+4*u+2*h}
            v_mov_b32 v{o+1}, s{S_NONCE}
            v_mov_b32 v{o+2}, v{T+9+4*u+2*h}
            v_mov_b32 v{o+3}, s{S_NONCE}""")
    A(f"s_and_saveexec_b64 s[{S_EX}:{S_EX+1}], vcc")
    for u in range(4):
        for h in range(2):
            o = F + (u * 2 + h) * 4
            A(f"global_store_dwordx4 v{T+3}, v[{o}:{o+3}], s[{S_WS}:{S_WS+1}] offset:{u*128+h*16} sc1")
    A(f"s_mov_b64 exec, s[{S_EX}:{S_EX+1}]")

def rowsum_loads(vm, T):
    A(f"""s_lshl_b32 s{S_T0}, s{S_C}, 2
    s_add_u32 s{S_T0}, s{S_T0}, s{S_CB}            ; sigma'
    s_mul_i32 s{S_T0+1}, s{S_T0}, 20
    s_mul_i32 s{S_T0+2}, s{S_LW}, 5
    s_add_u32 s{S_T0+1}, s{S_T0+1}, s{S_T0+2}
    s_cmp_ge_u32 s{S_T0}, 32
    s_cselect_b32 s{S_T0+4}, s{S_BIM}, s{S_BRE}
    s_cselect_b32 s{S_T0+5}, s{S_BIM+1}, s{S_BRE+1}
    s_cselect_b32 s{S_T0+3}, 640, 0
    s_sub_u32 s{S_T0+1}, s{S_T0+1}, s{S_T0+3}
    v_lshrrev_b32 v{T+33}, 5, v{VL}
    v_add_u32 v{T+33}, s{S_T0+1}, v{T+33}
    v_and_b32 v{T+34}, 31, v{VL}""")
    for p in range(3):
        A(f"""v_add_u32 v{T+30+p}, {2*p}, v{T+33}
        v_min_u32 v{T+30+p}, 639, v{T+30+p}
        v_mul_u32_u24 v{T+35}, 1280, v{T+30+p}
        v_lshl_add_u32 v{T+35}, v{T+34}, 3, v{T+35}
        v_add_u32 v{T+30+p}, s{S_T0+3}, v{T+30+p}""")
        for i in range(5):
            b = T + 10 * p + 2 * i
            A(f"global_load_dwordx2 v[{b}:{b+1}], v{T+35}, s[{S_T0+4}:{S_T0+5}] offset:{256*i}")
            vm.issue("rows")

def rowsum_work(vm, T):
    vm.wait("rows")
    for p in range(3):
        yield from sum_bf16(list(range(T + 10 * p, T + 10 * p + 10)), T + 36 + 2 * p, None, T + 35)
    yield
    reduce32([T + 36, T + 38, T + 40])
    for p in range(3):
        A(f"""v_mov_b32 v{T+37+2*p}, s{S_NONCE}
        v_lshlrev_b32 v{T+30+p}, 3, v{T+30+p}
        v_add_u32 v{T+30+p}, {WS_CSB}, v{T+30+p}""")
    A(f"""v_cmp_eq_u32 vcc, 16, v{T+34}
    s_and_saveexec_b64 s[{S_EX}:{S_EX+1}], vcc""")
    for p in range(3):
        A(f"global_store_dwordx2 v{T+30+p}, v[{T+36+2*p}:{T+37+2*p}], s[{S_WS}:{S_WS+1}] sc1")
        vm.issue("pub")
    A(f"s_mov_b64 exec, s[{S_EX}:{S_EX+1}]")

def side_stats(T, filler):
    A(f"""v_lshrrev_b32 v{T+20}, 4, v{VL}
    s_lshl_b32 s{S_T0}, s2, 3
    s_lshl_b32 s{S_T0+1}, s{S_WAVE}, 2
    s_add_u32 s{S_T0}, s{S_T0}, s{S_T0+1}
    v_add_u32 v{T+20}, s{S_T0}, v{T+20}          ; row
    v_and_b32 v{T+21}, 15, v{VL}
    v_mul_u32_u24 v{T+22}, 1280, v{T+20}
    v_lshl_add_u32 v{T+22}, v{T+21}, 4, v{T+22}""")
    for i in range(5):
        A(f"global_load_dwordx4 v[{T+4*i}:{T+4*i+3}], v{T+22}, s[{S_X}:{S_X+1}] offset:{256*i}")
    filler()
    A(f"""v_mov_b32 v{T+24}, 0
    v_mov_b32 v{T+25}, 0
    v_mov_b32 v{T+26}, 0
    v_mov_b32 v{T+27}, 0""")
    nonce_ready()
    for i in range(5):
        A(f"s_waitcnt vmcnt({4-i})")
        for d in range(4):
            r = T + 4 * i + d
            A(f"v_dot2c_f32_bf16 v{T+24+2*(d&1)}, s{S_ONES}, v{r}")
            A(f"v_dot2c_f32_bf16 v{T+25+2*(d&1)}, v{r}, v{r}")
    A(f"""s_nop 3
    v_add_f32 v{T+24}, v{T+24}, v{T+26}
    v_add_f32 v{T+25}, v{T+25}, v{T+27}""")
    dpp_reduce16([T + 24, T + 25])
    A(f"""v_mul_f32 v{T+24}, 0x3acccccd, v{T+24}      ; mean
    v_mul_f32 v{T+25}, 0x3acccccd, v{T+25}
    v_fma_f32 v{T+25}, -v{T+24}, v{T+24}, v{T+25}
    v_max_f32 v{T+25}, 0, v{T+25}
    v_cvt_pk_bf16_f32 v{T+25}, v{T+25}, v{T+25}
    v_lshlrev_b32 v{T+25}, 16, v{T+25}
    v_add_f32 v{T+25}, 0x3727c5ac, v{T+25}
    v_cvt_pk_bf16_f32 v{T+25}, v{T+25}, v{T+25}
    v_lshlrev_b32 v{T+25}, 16, v{T+25}
    v_sqrt_f32 v{T+25}, v{T+25}
    v_lshlrev_b32 v{T+20}, 3, v{T+20}
    v_add_u32 v{T+20}, {WS_STAT}, v{T+20}
    v_cvt_pk_bf16_f32 v{T+26}, v{T+24}, v{T+25}
    v_mov_b32 v{T+27}, s{S_NONCE}
    v_cmp_eq_u32 vcc, 0, v{T+21}
    s_and_saveexec_b64 s[{S_EX}:{S_EX+1}], vcc
    global_store_dwordx2 v{T+20}, v[{T+26}:{T+27}], s[{S_WS}:{S_WS+1}] sc1
    s_mov_b64 exec, s[{S_EX}:{S_EX+1}]""")

def side_colsum_mlp(T, filler):
    A(f"""s_mul_i32 s{S_T0}, s{S_C}, 12
    s_add_u32 s{S_T0}, s{S_T0}, s{S_CB}            ; sigma
    s_lshr_b32 s{S_T0+1}, s{S_T0}, 1               ; strip
    s_and_b32 s{S_T0+2}, s{S_T0}, 1
    s_lshl_b32 s{S_T0+2}, s{S_T0+2}, 1
    s_add_u32 s{S_T0+2}, s{S_T0+2}, s{S_WAVE}
    s_sub_u32 s{S_T0+2}, s{S_T0+2}, 2              ; k quarter
    s_cmp_ge_u32 s{S_T0+1}, 48""")
    srd_sel(SRD_T, S_W3, S_W1, 1966080)
    A(f"""s_cselect_b32 s{S_T0+3}, 48, 0
    s_cselect_b32 s{S_T0+6}, 1536, 0
    s_sub_u32 s{S_T0+1}, s{S_T0+1}, s{S_T0+3}
    s_lshl_b32 s{S_T0+1}, s{S_T0+1}, 5             ; col0
    s_mul_i32 s{S_T0+4}, s{S_T0+2}, {160*3072}
    s_lshl_b32 s{S_T0+5}, s{S_T0+1}, 1
    s_add_u32 s{S_T0+4}, s{S_T0+4}, s{S_T0+5}      ; soffset
    s_sub_u32 s{S_T0+5}, s{S_WAVE}, 2
    s_mul_i32 s{S_T0+5}, s{S_T0+5}, 10240
    s_add_u32 s{S_T0+5}, s{S_T0+5}, {SCR}
    v_lshrrev_b32 v{T}, 2, v{VL}
    v_and_b32 v{T+1}, 3, v{VL}
    v_mul_u32_u24 v{T}, 3072, v{T}
    v_lshl_add_u32 v{T}, v{T+1}, 4, v{T}""")
    for i in range(10):
        A(f"""s_add_u32 m0, s{S_T0+5}, {1024*i}
        s_add_u32 s{S_T0+7}, s{S_T0+4}, {16*3072*i}
        buffer_load_dwordx4 v{T}, s[{SRD_T}:{SRD_T+3}], s{S_T0+7} offen lds""")
    filler()
    A(f"""v_lshrrev_b32 v{T+2}, 4, v{VL}
    v_lshlrev_b32 v{T+2}, 9, v{T+2}
    v_bfe_u32 v{T+3}, v{VL}, 2, 2
    v_lshl_add_u32 v{T+2}, v{T+3}, 6, v{T+2}
    v_lshl_add_u32 v{T+2}, v{T+1}, 3, v{T+2}
    v_add_u32 v{T+2}, s{S_T0+5}, v{T+2}
    v_mov_b32 v{T+4}, s{S_ONES}
    v_mov_b32 v{T+5}, s{S_ONES}
    v_mov_b32 v{T+6}, s{S_ONES}
    v_mov_b32 v{T+7}, s{S_ONES}""")
    A(f"""s_mul_i32 s{S_T0+2}, s{S_T0+2}, 3072
    s_add_u32 s{S_T0+2}, s{S_T0+2}, s{S_T0+6}
    s_add_u32 s{S_T0+2}, s{S_T0+2}, s{S_T0+1}
    s_lshl_b32 s{S_T0+2}, s{S_T0+2}, 3
    s_add_u32 s{S_T0+2}, s{S_T0+2}, {WS_CSW}
    v_lshrrev_b32 v{T+3}, 4, v{VL}
    v_lshlrev_b32 v{T+3}, 5, v{T+3}
    v_add_u32 v{T+3}, s{S_T0+2}, v{T+3}""")
    nonce_ready()
    A("s_waitcnt vmcnt(0)")
    F = T + 16
    for ks in range(5):
        for u in range(2):
            b = F + (ks * 2 + u) * 4
            A(f"ds_read_b64_tr_b16 v[{b}:{b+1}], v{T+2} offset:{ks*2048+u*32}")
            A(f"ds_read_b64_tr_b16 v[{b+2}:{b+3}], v{T+2} offset:{ks*2048+u*32+256}")
    A("s_waitcnt lgkmcnt(0)")
    for ks in range(5):
        for u in range(2):
            b = F + (ks * 2 + u) * 4
            cin = "0" if ks == 0 else f"v[{T+8+4*u}:{T+11+4*u}]"
            A(f"v_mfma_f32_16x16x32_bf16 v[{T+8+4*u}:{T+11+4*u}], v[{b}:{b+3}], v[{T+4}:{T+7}], {cin}")
    A("s_nop 7\ns_nop 1")
    for u in range(2):
        for h in range(2):
            o = F + (u * 2 + h) * 4
            A(f"""v_mov_b32 v{o}, v{T+8+4*u+2*h}
            v_mov_b32 v{o+1}, s{S_NONCE}
            v_mov_b32 v{o+2}, v{T+9+4*u+2*h}
            v_mov_b32 v{o+3}, s{S_NONCE}""")
    A(f"""v_and_b32 v{T+1}, 15, v{VL}
    v_cmp_eq_u32 vcc, 0, v{T+1}
    s_and_saveexec_b64 s[{S_EX}:{S_EX+1}], vcc""")
    for u in range(2):
        for h in range(2):
            o = F + (u * 2 + h) * 4
            A(f"global_store_dwordx4 v{T+3}, v[{o}:{o+3}], s[{S_WS}:{S_WS+1}] offset:{u*128+h*16} sc1")
    A(f"s_mov_b64 exec, s[{S_EX}:{S_EX+1}]")

def side_rowsum_ssm(T, filler):
    A(f"""s_lshl_b32 s{S_T0}, s{S_C}, 2
    s_add_u32 s{S_T0}, s{S_T0}, s{S_CB}            ; sigma'
    s_mul_i32 s{S_T0+1}, s{S_T0}, 20
    s_sub_u32 s{S_T0+2}, s{S_WAVE}, 2
    s_lshl_b32 s{S_T0+2}, s{S_T0+2}, 3
    s_add_u32 s{S_T0+1}, s{S_T0+1}, s{S_T0+2}
    s_cmp_ge_u32 s{S_T0}, 32
    s_cselect_b32 s{S_T0+4}, s{S_BIM}, s{S_BRE}
    s_cselect_b32 s{S_T0+5}, s{S_BIM+1}, s{S_BRE+1}
    s_cselect_b32 s{S_T0+3}, 640, 0
    s_sub_u32 s{S_T0+3}, s{S_T0+1}, s{S_T0+3}
    v_lshrrev_b32 v{T+60}, 4, v{VL}
    v_and_b32 v{T+61}, 15, v{VL}
    v_add_u32 v{T+62}, s{S_T0+3}, v{T+60}
    v_mul_u32_u24 v{T+62}, 1280, v{T+62}
    v_lshl_add_u32 v{T+62}, v{T+61}, 4, v{T+62}""")
    for p in range(3):
        for i in range(5):
            b = T + 20 * p + 4 * i
            A(f"global_load_dwordx4 v[{b}:{b+3}], v{T+62}, s[{S_T0+4}:{S_T0+5}] offset:{256*i}")
        if p < 2:
            A(f"v_add_u32 v{T+62}, {4*1280}, v{T+62}")
    filler()
    for p in range(3):
        A(f"v_mov_b32 v{T+64+2*p}, 0")
    A(f"""v_add_u32 v{T+60}, s{S_T0+1}, v{T+60}
    v_lshlrev_b32 v{T+60}, 3, v{T+60}
    v_add_u32 v{T+60}, {WS_CSB}, v{T+60}""")
    nonce_ready()
    for p in range(3):
        A(f"s_waitcnt vmcnt({10-5*p})")
        for d in range(20):
            A(f"v_dot2c_f32_bf16 v{T+64+2*p}, s{S_ONES}, v{T+20*p+d}")
    A("s_nop 3")
    dpp_reduce16([T + 64, T + 66, T + 68])
    for p in range(3):
        A(f"v_mov_b32 v{T+65+2*p}, s{S_NONCE}")
    A(f"""v_cmp_eq_u32 vcc, 0, v{T+61}
    s_and_saveexec_b64 s[{S_EX}:{S_EX+1}], vcc""")
    for p in range(3):
        A(f"global_store_dwordx2 v{T+60}, v[{T+64+2*p}:{T+65+2*p}], s[{S_WS}:{S_WS+1}] offset:{32*p} sc1")
    A(f"s_mov_b64 exec, s[{S_EX}:{S_EX+1}]")


SJ = 200
PA, PB = OPT.get('pa', 2), OPT.get('pb', 4)
def rows16_loads(T, rowreg, ptr):
    A(f"""v_and_b32 v{T+20}, 15, v{VL}
    v_mul_u32_u24 v{T+21}, 1280, v{rowreg}
    v_lshl_add_u32 v{T+21}, v{T+20}, 4, v{T+21}""")
    for i in range(5):
        A(f"global_load_dwordx4 v[{T+4*i}:{T+4*i+3}], v{T+21}, s[{ptr}:{ptr+1}] offset:{256*i}")
def stat_finish(a, q, rowreg, lanereg, lane):
    A(f"""v_mul_f32 v{a}, 0x3acccccd, v{a}      ; mean
    v_mul_f32 v{q}, 0x3acccccd, v{q}
    v_fma_f32 v{q}, -v{a}, v{a}, v{q}
    v_max_f32 v{q}, 0, v{q}
    v_cvt_pk_bf16_f32 v{q}, v{q}, v{q}
    v_lshlrev_b32 v{q}, 16, v{q}
    v_add_f32 v{q}, 0x3727c5ac, v{q}
    v_cvt_pk_bf16_f32 v{q}, v{q}, v{q}
    v_lshlrev_b32 v{q}, 16, v{q}
    v_sqrt_f32 v{q}, v{q}
    v_lshlrev_b32 v{rowreg}, 3, v{rowreg}
    v_add_u32 v{rowreg}, {WS_STAT}, v{rowreg}
    v_cvt_pk_bf16_f32 v{a}, v{a}, v{q}
    v_mov_b32 v{a+1}, s{S_NONCE}
    v_cmp_eq_u32 vcc, {lane}, v{lanereg}""")
def own_rows(dst):
    A(f"""s_lshr_b32 s{dst}, s{S_XCD}, 1
    s_lshl_b32 s{dst}, s{dst}, 2
    s_add_u32 s{dst}, s{dst}, s{S_J}
    s_lshl_b32 s{dst}, s{dst}, 3
    s_lshl_b32 s{dst+1}, s{S_C}, 7
    s_add_u32 s{dst}, s{dst}, s{dst+1}""")
def mlp_rows_loads():
    A(f"""v_lshrrev_b32 v242, 4, v{VL}
    s_lshl_b32 s{S_T0+1}, s{S_WAVE}, 2
    v_add_u32 v242, s{S_T0+1}, v242
    s_sub_u32 s{S_T0}, s{S_IDX}, 8
    s_min_u32 s{S_T0}, s{S_T0}, 19
    s_lshl_b32 s{S_T0}, s{S_T0}, 3
    s_lshr_b32 s{S_T0+1}, s{S_XCD}, 1
    s_mul_i32 s{S_T0+1}, s{S_T0+1}, 160
    s_add_u32 s{S_T0+2}, s{S_T0}, s{S_T0+1}
    s_bitcmp1_b32 s{S_XCD}, 0
    s_cselect_b32 s{S_T0+4}, s{S_BIM}, s{S_BRE}
    s_cselect_b32 s{S_T0+5}, s{S_BIM+1}, s{S_BRE+1}
    s_cselect_b32 s{S_T0+3}, 640, 0
    v_add_u32 v244, s{S_T0+2}, v242
    v_add_u32 v243, s{S_T0+3}, v244""")
    own_rows(S_T0)
    A(f"v_add_u32 v242, s{S_T0}, v242")
    rows16_loads(SJ, 242, S_X)
    rows16_loads(SJ + 20, 244, S_T0 + 4)
def mlp_rows_work():
    a, q, r = 244, 246, 228
    A(f"v_mov_b32 v{a}, 0\nv_mov_b32 v{q}, 0\nv_mov_b32 v{a+1}, 0\nv_mov_b32 v{q+1}, 0\ns_waitcnt vmcnt({2*(PB-PA)})")
    for d in range(20):
        A(f"v_dot2c_f32_bf16 v{a}, s{S_ONES}, v{SJ+d}")
        A(f"v_dot2c_f32_bf16 v{q}, v{SJ+d}, v{SJ+d}")
        A(f"v_dot2c_f32_bf16 v{[a+1, q+1][d % 2]}, s{S_ONES}, v{SJ+20+d}")
    A(f"s_nop 2\nv_add_f32 v{SJ}, v{a+1}, v{q+1}")
    dpp_reduce16([a, q, SJ])
    stat_finish(a, q, 242, SJ + 40, 0)
    A(f"""v_mov_b32 v{SJ+1}, s{S_NONCE}
    v_lshlrev_b32 v243, 3, v243
    v_add_u32 v243, {WS_CSB}, v243
    s_and_saveexec_b64 s[{S_EX}:{S_EX+1}], vcc
    global_store_dwordx2 v242, v[{a}:{a+1}], s[{S_WS}:{S_WS+1}] sc1
    global_store_dwordx2 v243, v[{SJ}:{SJ+1}], s[{S_WS}:{S_WS+1}] sc1
    s_mov_b64 exec, s[{S_EX}:{S_EX+1}]""")
def mlp_cs_loads():
    T = SJ
    A(f"""s_and_b32 s{S_T0}, s{S_IDX}, 3
    s_lshl_b32 s{S_T0+1}, s{S_CB}, 2
    s_add_u32 s{S_T0+1}, s{S_T0+1}, s{S_T0}
    s_bitcmp1_b32 s{S_IDX}, 2
    s_cselect_b32 s{S_T0}, 48, 0
    s_add_u32 s{S_T0+1}, s{S_T0+1}, s{S_T0}        ; strip : 32 columns of this workgroup's own tile
    s_and_b32 s{S_T0+2}, s{S_XCD}, 1
    s_lshl_b32 s{S_T0+2}, s{S_T0+2}, 1
    s_add_u32 s{S_T0+2}, s{S_T0+2}, s{S_WAVE}
    s_sub_u32 s{S_T0+2}, s{S_T0+2}, 2              ; k quarter
    s_cmp_ge_u32 s{S_T0+1}, 48""")
    srd_sel(SRD_T, S_W3, S_W1, 1966080)
    A(f"""s_cselect_b32 s{S_T0+3}, {48*64}, 0
    s_lshl_b32 s{S_T0+4}, s{S_T0+1}, 6
    s_sub_u32 s{S_T0+4}, s{S_T0+4}, s{S_T0+3}
    s_mul_i32 s{S_T0+5}, s{S_T0+2}, {160*3072}
    s_add_u32 s{S_T0+4}, s{S_T0+4}, s{S_T0+5}      ; soffset
    s_sub_u32 s{S_T0+5}, s{S_WAVE}, 2
    s_mul_i32 s{S_T0+5}, s{S_T0+5}, 10240
    s_add_u32 s{S_T0+5}, s{S_T0+5}, {SCR}
    v_lshrrev_b32 v{T}, 2, v{VL}
    v_and_b32 v{T+1}, 3, v{VL}
    v_mul_u32_u24 v{T}, 3072, v{T}
    v_lshl_add_u32 v{T}, v{T+1}, 4, v{T}""")
    for i in range(10):
        A(f"""s_add_u32 m0, s{S_T0+5}, {1024*i}
        s_add_u32 s{S_T0+7}, s{S_T0+4}, {16*3072*i}
        buffer_load_dwordx4 v{T}, s[{SRD_T}:{SRD_T+3}], s{S_T0+7} offen lds""")
    A(f"""v_lshrrev_b32 v{T+2}, 4, v{VL}
    v_lshlrev_b32 v{T+3}, 5, v{T+2}
    v_lshlrev_b32 v{T+2}, 9, v{T+2}
    v_bfe_u32 v{T}, v{VL}, 2, 2
    v_lshl_add_u32 v{T+2}, v{T}, 6, v{T+2}
    v_lshl_add_u32 v{T+2}, v{T+1}, 3, v{T+2}
    v_add_u32 v{T+2}, s{S_T0+5}, v{T+2}
    s_mul_i32 s{S_T0+2}, s{S_T0+2}, {3072*8}
    s_lshl_b32 s{S_T0+1}, s{S_T0+1}, 8
    s_add_u32 s{S_T0+2}, s{S_T0+2}, s{S_T0+1}
    s_add_u32 s{S_T0+2}, s{S_T0+2}, {WS_CSW}
    v_add_u32 v249, s{S_T0+2}, v{T+3}
    v_and_b32 v{T+1}, 15, v{VL}""")
    for i in range(4):
        A(f"v_mov_b32 v{T+4+i}, s{S_ONES}")
def mlp_cs_work():
    T = SJ
    F = T + 8
    A(f"s_waitcnt vmcnt({2*(PB-PA)})")
    for u in range(2):
        for ks in range(5):
            b = F + (u * 5 + ks) * 4
            A(f"ds_read_b64_tr_b16 v[{b}:{b+1}], v{T+2} offset:{ks*2048+u*32}")
            A(f"ds_read_b64_tr_b16 v[{b+2}:{b+3}], v{T+2} offset:{ks*2048+u*32+256}")
    A(f"v_cmp_eq_u32 vcc, 0, v{T+1}\ns_waitcnt lgkmcnt(0)")
    D = [T, F]
    for u in range(2):
        for ks in range(5):
            b, d = F + (u * 5 + ks) * 4, D[u]
            cin = "0" if ks == 0 else f"v[{d}:{d+3}]"
            A(f"v_mfma_f32_16x16x32_bf16 v[{d}:{d+3}], v[{b}:{b+3}], v[{T+4}:{T+7}], {cin}")
    A("s_nop 7")
    for u in range(2):
        d, o = D[u], F + 4 + 8 * u
        for r in range(4):
            A(f"v_mov_b32 v{o+2*r}, v{d+r}\nv_mov_b32 v{o+2*r+1}, s{S_NONCE}")
    A(f"s_and_saveexec_b64 s[{S_EX}:{S_EX+1}], vcc")
    for u in range(2):
        for h in range(2):
            o = F + 4 + 8 * u + 4 * h
            A(f"global_store_dwordx4 v249, v[{o}:{o+3}], s[{S_WS}:{S_WS+1}] offset:{u*128+h*16} sc1")
    A(f"s_mov_b64 exec, s[{S_EX}:{S_EX+1}]")
def ssm_rows_loads():
    own_rows(S_T0)
    A(f"""v_lshrrev_b32 v246, 5, v{VL}
    s_lshl_b32 s{S_T0+1}, s{S_WAVE}, 1
    s_add_u32 s{S_T0}, s{S_T0}, s{S_T0+1}
    v_add_u32 v246, s{S_T0}, v246
    v_and_b32 v247, 31, v{VL}
    v_mul_u32_u24 v249, 1280, v246
    v_lshl_add_u32 v249, v247, 3, v249""")
    for i in range(5):
        A(f"global_load_dwordx2 v[{236+2*i}:{237+2*i}], v249, s[{S_X}:{S_X+1}] offset:{256*i}")
def ssm_rows_work():
    A(f"s_waitcnt vmcnt({2*(PB-PA)})\nv_mov_b32 v249, 0\nv_mov_b32 v251, 0")
    for d in range(10):
        A(f"v_dot2c_f32_bf16 v249, s{S_ONES}, v{236+d}")
        A(f"v_dot2c_f32_bf16 v251, v{236+d}, v{236+d}")
    A("s_nop 2\nv_mov_b32 v236, v249")
    reduce32([236, 251])
    stat_finish(236, 251, 246, 247, 16)
    A(f"""s_and_saveexec_b64 s[{S_EX}:{S_EX+1}], vcc
    global_store_dwordx2 v246, v[236:237], s[{S_WS}:{S_WS+1}] sc1
    s_mov_b64 exec, s[{S_EX}:{S_EX+1}]""")
def touch_w2(T):
    G = OPT.get("tg", 128)
    sh = G.bit_length() - 1
    n2, nc = 7680 // G, 3200 // G
    if OPT.get("tm", 1):
        A(f"""s_sub_u32 s{S_T0+3}, s2, 64
        s_cmp_lt_u32 s{S_WAVE}, 2
        s_cselect_b32 s{S_T0}, 39, 33
        s_mov_b32 s{S_T0+1}, 4352
        s_cmov_b32 s{S_T0+1}, 10240
        s_cselect_b32 s{S_T0+4}, s{S_W2}, s{S_CRE}
        s_cselect_b32 s{S_T0+5}, s{S_W2+1}, s{S_CRE+1}
        s_mov_b32 s{S_T0+6}, 819196
        s_cmov_b32 s{S_T0+6}, 1966076
        s_cmp_eq_u32 s{S_WAVE}, 3
        s_cselect_b32 s{S_T0+4}, s{S_CIM}, s{S_T0+4}
        s_cselect_b32 s{S_T0+5}, s{S_CIM+1}, s{S_T0+5}
        s_mul_i32 s{S_T0+1}, s{S_T0+1}, s{S_T0+3}
        s_cmp_eq_u32 s{S_WAVE}, 1
        s_cselect_b32 s{S_T0+2}, 5120, 0
        s_add_u32 s{S_T0+1}, s{S_T0+1}, s{S_T0+2}
        v_min_u32 v{T}, s{S_T0}, v{VL}
        v_lshlrev_b32 v{T}, 7, v{T}
        v_add_u32 v{T}, s{S_T0+1}, v{T}
        v_min_u32 v{T}, s{S_T0+6}, v{T}
        global_load_dword v{T}, v{T}, s[{S_T0+4}:{S_T0+5}]""")
        return
    if G == 128:
        l = A.newlabel("L_tw")
        A(f"""s_cmp_eq_u32 s{S_WAVE}, 3
        s_cbranch_scc1 {l}
        s_cmp_eq_u32 s{S_WAVE}, 0
        s_cselect_b32 s{S_T0}, {n2-1}, {nc-1}
        s_mov_b32 s{S_T0+1}, 3200
        s_cmov_b32 s{S_T0+1}, 7680
        s_cselect_b32 s{S_T0+4}, s{S_W2}, s{S_CRE}
        s_cselect_b32 s{S_T0+5}, s{S_W2+1}, s{S_CRE+1}
        s_cmp_eq_u32 s{S_WAVE}, 2
        s_cselect_b32 s{S_T0+4}, s{S_CIM}, s{S_T0+4}
        s_cselect_b32 s{S_T0+5}, s{S_CIM+1}, s{S_T0+5}""")
    else:
        l = A.newlabel("L_tw")
        A(f"""s_cmp_lt_u32 s{S_WAVE}, 2
        s_cselect_b32 s{S_T0}, {n2//2-1}, {nc-1}
        s_mov_b32 s{S_T0+1}, 3200
        s_cmov_b32 s{S_T0+1}, 7680
        s_cselect_b32 s{S_T0+4}, s{S_W2}, s{S_CRE}
        s_cselect_b32 s{S_T0+5}, s{S_W2+1}, s{S_CRE+1}
        s_cmp_eq_u32 s{S_WAVE}, 3
        s_cselect_b32 s{S_T0+4}, s{S_CIM}, s{S_T0+4}
        s_cselect_b32 s{S_T0+5}, s{S_CIM+1}, s{S_T0+5}""")
    A(f"""s_mul_i32 s{S_T0+1}, s{S_T0+1}, s2
    s_cmp_eq_u32 s{S_WAVE}, 1
    s_cselect_b32 s{S_T0+2}, {3840 if G == 64 else 0}, 0
    s_add_u32 s{S_T0+1}, s{S_T0+1}, s{S_T0+2}
    v_min_u32 v{T}, s{S_T0}, v{VL}
    v_lshlrev_b32 v{T}, {sh}, v{T}
    v_add_u32 v{T}, s{S_T0+1}, v{T}
    global_load_dword v{T}, v{T}, s[{S_T0+4}:{S_T0+5}]""")
    A.label(l)
def touch_pages(T, D_):
    l = A.newlabel("L_tp")
    A(f"""s_cmp_lg_u32 s{S_WAVE}, 1
    s_cbranch_scc1 {l}
    s_mul_i32 s{S_T0}, s{S_TG}, {16*2560}
    s_lshl_b32 s{S_T0+1}, s{S_DCOL}, 2
    s_add_u32 s{S_T0}, s{S_T0}, s{S_T0+1}
    v_and_b32 v{T}, 1, v{VL}
    v_mul_u32_u24 v{T}, {31*2560}, v{T}
    v_add_u32 v{T}, s{S_T0}, v{T}
    global_load_dword v{D_}, v{T}, s[{S_OUT}:{S_OUT+1}]
    s_lshl_b32 s{S_T0}, s{S_C}, 1
    s_mul_i32 s{S_T0}, s{S_T0}, 88
    s_lshl_b32 s{S_T0+1}, s{S_CB}, 2
    s_mul_i32 s{S_T0+2}, s{S_CB}, 10
    s_add_u32 s{S_T0+2}, s{S_T0+2}, 48
    s_cmp_eq_u32 s{S_J}, 0
    s_cselect_b32 s{S_T0+1}, s{S_T0+2}, s{S_T0+1}
    s_add_u32 s{S_T0}, s{S_T0}, s{S_T0+1}
    s_lshl_b32 s{S_T0}, s{S_T0}, 12
    s_add_u32 s{S_T0}, s{S_T0}, {WS_ACT}
    v_and_b32 v{T}, 1, v{VL}
    v_mul_u32_u24 v{T}, {88*4096}, v{T}
    v_add_u32 v{T}, s{S_T0}, v{T}
    global_load_dword v{D_}, v{T}, s[{S_WS}:{S_WS+1}]""")
    A.label(l)
def by_wave(lo, hi):
    l1, l2 = A.newlabel("L_bw"), A.newlabel("L_bw")
    A(f"s_cmp_ge_u32 s{S_WAVE}, 2\ns_cbranch_scc1 {l1}")
    lo()
    A(f"s_branch {l2}")
    A.label(l1)
    hi()
    A.label(l2)

def zero_regs(lo, n):
    def f():
        for r in range(lo, lo + n):
            A(f"v_mov_b32 v{r}, 0")
    return f

def rowpat_read(dst, tmp):
    A(f"""v_bfe_u32 v{tmp}, v{VL}, 1, 3
    v_lshrrev_b32 v{dst}, 4, v{VL}
    v_xor_b32 v{tmp}, v{tmp}, v{dst}
    v_and_b32 v{dst}, 15, v{VL}
    v_lshlrev_b32 v{dst}, 7, v{dst}
    v_lshl_add_u32 v{dst}, v{tmp}, 4, v{dst}""")

def touch_inputs(T):
    if not OPT["pf"]:
        return
    G = OPT.get("tg", 64)
    plan = [[(S_X, 10240)], [(S_W1, 7680), (S_BRE, 3200)], [(S_W3, 7680), (S_BIM, 3200)], [(S_W2, 7680), (S_CRE, 3200), (S_CIM, 3200)]]
    done = A.newlabel("L_ti")
    sh = G.bit_length() - 1
    for w, segs in enumerate(plan):
        nx = A.newlabel("L_ti")
        if w < 3:
            A(f"s_cmp_lg_u32 s{S_WAVE}, {w}\ns_cbranch_scc1 {nx}")
        k = 0
        for p, n in segs:
            cnt = n // G
            A(f"s_mul_i32 s{S_T0}, s2, {n}")
            for o in range(0, cnt, 64):
                A(f"""v_add_u32 v{T}, {o}, v{VL}
                v_min_u32 v{T}, {cnt-1}, v{T}
                v_lshlrev_b32 v{T}, {sh}, v{T}
                v_add_u32 v{T}, s{S_T0}, v{T}
                global_load_dword v{244+k}, v{T}, s[{p}:{p+1}]""")
                k += 1
        if w < 3:
            A(f"s_branch {done}")
            A.label(nx)
    A.label(done)
def gemm1_loop(kind):
    mlp = kind == "mlp"
    NB = 8 if mlp else 10
    NS = 5
    SLOT = 16384 if mlp else 20480
    XF = 128 if mlp else 160
    WF = XF + 32
    AX = WF + NB * 4
    AW = AX + 2
    nAW = 4 if mlp else 2
    D = D1 if mlp else OPT["D1S"]
    lg = Queue(A, "lgkmcnt", 15)

    def rd_x(ks, T):
        b = XF + ks * 16 + T * 4
        if OPT["noread"]:
            return
        A(f"ds_read_b128 v[{b}:{b+3}], v{AX+ks} offset:{T*2048}")
        lg.issue(("x", ks))
    def rd_w(j, gen, half=None):
        b = WF + j * 4
        if OPT["noread"]:
            return
        if mlp:
            F, c = j // 2, j % 2
            for h in ((0, 1) if half is None else (half,)):
                A(f"ds_read_b64_tr_b16 v[{b+2*h}:{b+2*h+1}], v{AW+F} offset:{c*8192+1024*h}")
                lg.issue(("w", j, gen))
        else:
            ks, G = j // 5, j % 5
            A(f"ds_read_b128 v[{b}:{b+3}], v{AW+ks} offset:{G*2048}")
            lg.issue(("w", j, gen))
    def mf(j, T, par):
        w = WF + j * 4
        if (OPT["nomfma"] == 1 and T > 0) or OPT["nomfma"] == 2:
            return
        if mlp:
            acc = (j * 4 + T) * 4
            x = XF + par * 16 + T * 4
            A(f"v_mfma_f32_16x16x32_bf16 v[{acc}:{acc+3}], v[{w}:{w+3}], v[{x}:{x+3}], v[{acc}:{acc+3}]")
        else:
            acc = (((j % 5) * 2 + par) * 4 + T) * 4
            x = XF + (j // 5) * 16 + T * 4
            A(f"v_mfma_f32_16x16x32_bf16 v[{acc}:{acc+3}], v[{x}:{x+3}], v[{w}:{w+3}], v[{acc}:{acc+3}]")
    def xreads(par, j):
        k = j + D - NB
        if mlp:
            return [(par ^ 1, T) for T in ([2 * k, 2 * k + 1] if 0 <= k < 2 else [])]
        if par == 1:
            return [(0, T) for T in ([2 * k, 2 * k + 1] if 0 <= k < 2 else [])]
        return [(1, T) for T in ([2 * j, 2 * j + 1] if j < 2 else [])]
    assert mlp or NB - D >= 5

    A(f"s_mov_b32 s{S_SLOT}, 0\ns_mov_b32 s{S_CNT}, 0\ns_mov_b32 s{S_KX}, 0")
    vFP, vFV, vFD = 248, 249, 250
    A(f"s_mov_b32 m0, s{S_FR}\ns_mov_b32 s{S_LMT}, {PA or PB}")
    assert PA
    flag_wait(1, vFD, vFP)
    A(f"v_add_u32 v{vFP}, 4, v{vFP}")
    if TS:
        A("s_mov_b32 s48, 0\ns_mov_b32 s49, 0")
    ts(2, 2)
    tc(12)
    for j in range(D):
        rd_w(j, 0)
        for ks, T in xreads(1, j + NB - D):
            rd_x(ks, T)
    lbl = f"L_g1_{kind}"
    A(f"""s_mov_b32 s{S_T0}, {SLOT}
    s_mov_b32 s{S_T0+1}, {-(NS-1)*SLOT & 0xffffffff}
    s_mov_b32 s{S_T0+2}, 16384
    s_mov_b32 s{S_T0+3}, {-32768 & 0xffffffff}""")
    A.label(lbl)
    entry = list(lg.q)
    ring = [f"s_add_u32 s{S_SLOT}, s{S_SLOT}, 1\ns_cmp_eq_u32 s{S_SLOT}, {NS}",
            f"s_cselect_b32 s{S_DELTA}, s{S_T0+1}, s{S_T0}\ns_cselect_b32 s{S_SLOT}, 0, s{S_SLOT}"]
    xring = [f"s_add_u32 s{S_KX}, s{S_KX}, 1\ns_cmp_eq_u32 s{S_KX}, 3",
             f"s_cselect_b32 s{S_KW}, s{S_T0+3}, s{S_T0+2}\ns_cselect_b32 s{S_KX}, 0, s{S_KX}"]
    def adv(r, d):
        return f"v_add_u32 v{r}, s{d}, v{r}"
    for par in range(2):
        fill = {}
        if mlp:
            assert D == 4
            fill[(0, 2)] = ring[0]; fill[(1, 2)] = ring[1]
            fill[(2, 2)] = adv(AW, S_DELTA) + "\n" + adv(AW + 1, S_DELTA)
            fill[(6, 2)] = adv(AW + 2, S_DELTA) + f"\ns_add_u32 m0, m0, 4"; fill[(7, 2)] = adv(AW + 3, S_DELTA)
            fill[(0, 3)] = f"v_add_u32 v{vFP}, 4, v{vFP}"
            fpos, cpos, wpos = (1, 3), (3, 0), (7, 2)
            if par == 0:
                fill[(3, 2)] = xring[0]; fill[(3, 3)] = xring[1]
            else:
                fill[(3, 2)] = adv(AX, S_KW) + "\n" + adv(AX + 1, S_KW)
                fill[(7, 3)] = f"s_add_u32 s{S_CNT}, s{S_CNT}, 1\ns_cmp_lt_u32 s{S_CNT}, s{S_LMT}"
        else:
            assert D == 5
            fill[(2, 1)] = ring[0]; fill[(2, 2)] = ring[1]
            fill[(3, 1)] = adv(AW, S_DELTA); fill[(7, 1)] = adv(AW + 1, S_DELTA)
            fill[(1, 3)] = f"v_add_u32 v{vFP}, 4, v{vFP}"
            fill[(8, 3)] = f"s_add_u32 m0, m0, 4"
            fpos, cpos, wpos = (2, 3), (4, 2), (9, 2)
            if par == 0:
                fill[(8, 1)] = xring[0]; fill[(8, 2)] = xring[1]
            else:
                fill[(4, 1)] = adv(AX, S_KW) + "\n" + adv(AX + 1, S_KW)
                fill[(9, 1)] = f"s_add_u32 s{S_CNT}, s{S_CNT}, 1\ns_cmp_lt_u32 s{S_CNT}, s{S_LMT}"
        for j in range(NB):
            tags = [("w", j, par)]
            if j == 0:
                tags.append(("x", par if mlp else 0))
            if j == 5 and not mlp:
                tags.append(("x", 1))
            jn = j + D
            if jn == NB - 1:
                tags.append("flag")
            lg.wait(tags)
            acts = {0: [], 1: [], 2: [], 3: []}
            g = 0
            if jn == NB:
                acts[0].append(lambda: flag_test(None, vFD, vFP, 0, acc=48, split=True))
                g = 1
            wj, wg = (jn, par) if jn < NB else (jn - NB, par ^ 1)
            if mlp:
                acts[g].append(lambda wj=wj, wg=wg: rd_w(wj, wg, 0))
                acts[g + 1].append(lambda wj=wj, wg=wg: rd_w(wj, wg, 1))
                g += 2
            else:
                acts[g].append(lambda wj=wj, wg=wg: rd_w(wj, wg, 0))
                g += 1
            for n_, (ks, T) in enumerate(xreads(par, j)):
                acts[min(g + n_, 3)].append(lambda ks=ks, T=T: rd_x(ks, T))
            for T in range(4):
                mf(j, T, par)
                for f in acts[T]:
                    f()
                if (j, T) in fill:
                    A(fill[(j, T)])
                if (j, T) == fpos:
                    A(f"ds_read_b32 v{vFD}, v{vFP}")
                    lg.issue("flag")
                if (j, T) == cpos:
                    A(f"v_cmp_ne_u32 vcc, s{S_K}, v{vFD}")
                if (j, T) == wpos:
                    A(f"buffer_load_dword v{VZ}, s[{SRD_F}:{SRD_F+3}], 0 offen lds")
    A(f"s_cbranch_scc1 {lbl}")
    lfin = A.newlabel("L_g1e")
    A(f"s_cmp_eq_u32 s{S_CNT}, 10\ns_cbranch_scc1 {lfin}")
    if PA:
        lw_ = A.newlabel("L_g1w")
        A(f"s_cmp_lg_u32 s{S_CNT}, {PA}\ns_cbranch_scc1 {lw_}")
        if TS == 1:
            ts(30, 2)
        A(f"s_mov_b32 s{S_FR}, m0")
        nonce_load()
        A(f"s_mov_b64 s[{S_M0}:{S_M0+1}], s[{S_T0}:{S_T0+1}]\ns_mov_b64 s[{S_M1}:{S_M1+1}], s[{S_T0+2}:{S_T0+3}]")
        if OPT.get("tp", 0):
            touch_pages(*((198, 199) if mlp else (249, 251)))
        if OPT.get("tw", 3) == 2 and mlp:
            touch_w2(251)
        if mlp:
            by_wave(mlp_rows_loads, mlp_cs_loads)
        else:
            ssm_rows_loads()
        A(f"""s_mov_b64 s[{S_T0}:{S_T0+1}], s[{S_M0}:{S_M0+1}]
        s_mov_b64 s[{S_T0+2}:{S_T0+3}], s[{S_M1}:{S_M1+1}]
        s_mov_b32 m0, s{S_FR}
        s_mov_b32 s{S_LMT}, {PB}""")
        if TS == 1:
            A(f"s_memrealtime s[{S_TS}:{S_TS+1}]\ns_sleep 2\nv_writelane_b32 v255, s{S_TS}, 31")
        A(f"s_branch {lbl}")
        A.label(lw_)
    if TS == 1:
        ts(32, 2)
    nonce_ready()
    if mlp:
        by_wave(mlp_rows_work, mlp_cs_work)
        if OPT.get("tw", 3) == 3:
            A(f"s_mov_b64 s[{S_M0}:{S_M0+1}], s[{S_T0}:{S_T0+1}]\ns_mov_b64 s[{S_M1}:{S_M1+1}], s[{S_T0+2}:{S_T0+3}]")
            touch_w2(251)
            A(f"s_mov_b64 s[{S_T0}:{S_T0+1}], s[{S_M0}:{S_M0+1}]\ns_mov_b64 s[{S_T0+2}:{S_T0+3}], s[{S_M1}:{S_M1+1}]")
    else:
        ssm_rows_work()
    if TS == 1:
        ts(33, 2)
    A(f"s_mov_b32 s{S_LMT}, 10\ns_branch {lbl}")
    A.label(lfin)
    assert lg.q == entry[len(entry) - len(lg.q):]
    return lg, entry, AX, AW

G2_B = 96
G2_A = 128
NS2, SL2 = 9, 16384
def g2slot(s):
    return (s % NS2) * SL2

def rot_next(s, stepA, stepB, baseB):
    if s == 11:
        A(f"s_mul_i32 s{S_KB}, s{S_R2B}, {stepB}")
        if baseB:
            A(f"s_add_u32 s{S_KB}, s{S_KB}, {baseB}")
    elif s < 11:
        A(f"""s_add_u32 s{S_KB}, s{S_KB}, {stepA}
        s_cmp_eq_u32 s{S_KB}, {12*stepA}
        s_cselect_b32 s{S_KB}, 0, s{S_KB}""")
    elif s < 21:
        A(f"""s_add_u32 s{S_KB}, s{S_KB}, {stepB}
        s_cmp_eq_u32 s{S_KB}, {baseB+10*stepB}
        s_cselect_b32 s{S_KB}, {baseB}, s{S_KB}""")

def gemm2_compute(NT):
    NH = NT // 2
    DA = 3 if NT == 6 else OPT.get("DA2", 5)
    RED = 4 * SL2
    GB, GA_ = 48, 112
    vW, vC, vB = 204, 208, 212
    vA = 220
    vT = 224
    vFA, vFP, vFV, vFD, vG = 232, 233, 234, 235, 236
    X, ST, DK, TT = 128, 140, 148, 156
    A(f"""s_lshl_b32 s{S_T0}, s{S_T0}, 5
    s_add_u32 s{S_T0}, s{S_T0}, s{S_T0+1}
    s_lshl_b32 s{S_T0}, s{S_T0}, 2
    s_add_u32 s{S_T0+3}, s{S_T0}, {WS_FLAG}
    s_and_b32 s{S_T0+4}, s{S_WAVE}, 1
    s_mul_i32 s{S_T0+4}, s{S_T0+4}, {NH}
    s_add_u32 s{S_T0+4}, s{S_T0+4}, s{S_TG}            ; first row tile of this wave
    s_and_b32 s{S_T0+5}, s{S_WAVE}, 2""")
    A(f"""s_lshl_b32 s{S_T0}, s{S_T0+4}, 4
    v_and_b32 v{vT}, 15, v{VL}
    v_add_u32 v{vT}, s{S_T0}, v{vT}                    ; row
    v_lshrrev_b32 v{vT+1}, 4, v{VL}
    s_lshl_b32 s{S_T0+1}, s{S_T0+5}, 4
    s_add_u32 s{S_T0+1}, s{S_T0+1}, s{S_DCOL}
    v_lshl_add_u32 v{vT+1}, v{vT+1}, 2, s{S_T0+1}      ; column
    v_mul_u32_u24 v{vT+2}, 640, v{vT}
    v_add_u32 v{vT+2}, v{vT+2}, v{vT+1}
    v_lshlrev_b32 v{vT+3}, 2, v{vT+2}
    v_lshlrev_b32 v{vT+2}, 1, v{vT+2}
    v_lshlrev_b32 v{vT+1}, 1, v{vT+1}
    v_lshlrev_b32 v{vT+4}, 3, v{vT}
    v_add_u32 v{vT+4}, {WS_STAT}, v{vT+4}""")
    for Tp in range(NH):
        for U in range(2):
            A(f"global_load_dwordx2 v[{X+4*Tp+2*U}:{X+4*Tp+2*U+1}], v{vT+2}, s[{S_X}:{S_X+1}] offset:{32*U}")
        if Tp < NH - 1:
            A(f"v_add_u32 v{vT+2}, {16*1280}, v{vT+2}")
    for U in range(2):
        A(f"global_load_dwordx2 v[{DK+4*U}:{DK+4*U+1}], v{vT+1}, s[{S_DSK}:{S_DSK+1}] offset:{32*U}")
    def stat_loads_():
        for Tp in range(NH):
            A(f"global_load_dwordx2 v[{ST+2*Tp}:{ST+2*Tp+1}], v{vT+4}, s[{S_WS}:{S_WS+1}] offset:{128*Tp} sc1")
    stat_loads_()
    A(f"""v_lshrrev_b32 v{vT}, 4, v{VL}               ; q
    v_bfe_u32 v{vT+1}, v{VL}, 2, 2                     ; rr
    v_lshl_add_u32 v{vT+1}, v{vT}, 2, v{vT+1}          ; 4q + rr
    v_bfe_u32 v{vT+5}, v{vT+1}, 1, 2                   ; swizzle
    s_lshl_b32 s{S_T0}, s{S_T0+5}, 5
    v_add_u32 v{vT+1}, s{S_T0}, v{vT+1}
    v_lshlrev_b32 v{vT+1}, 7, v{vT+1}
    v_and_b32 v{vT+2}, 3, v{VL}
    v_lshl_add_u32 v{vT+1}, v{vT+2}, 3, v{vT+1}
    v_and_b32 v{vT+2}, 1, v{vT}
    s_lshl_b32 s{S_T0}, s{S_T0+5}, 1
    v_add_u32 v{vT+2}, s{S_T0}, v{vT+2}
    v_bfe_u32 v{vT+6}, v{VL}, 1, 3
    v_xor_b32 v{vT+2}, v{vT+2}, v{vT+6}
    v_lshrrev_b32 v{vT}, 1, v{vT}
    v_lshlrev_b32 v{vT}, 13, v{vT}
    v_lshl_add_u32 v{vT}, v{vT+2}, 4, v{vT}
    v_and_b32 v{vT+6}, 15, v{VL}
    v_lshl_add_u32 v{vT}, v{vT+6}, 7, v{vT}""")
    for Up in range(4):
        A(f"""s_xor_b32 s{S_T0}, s{S_T0+5}, {Up}
        v_xor_b32 v{vT+2}, s{S_T0}, v{vT+5}
        v_lshl_add_u32 v{vW+Up}, v{vT+2}, 5, v{vT+1}
        s_lshl_b32 s{S_T0}, s{S_T0}, 11
        v_add_u32 v{vC+Up}, s{S_T0}, v{vT}""")
    A(f"v_lshlrev_b32 v{vT}, 4, v{VL}\ns_lshl_b32 s{S_T0+1}, s{S_HB2}, 2\ns_sub_u32 s{S_T0+1}, s{S_T0+4}, s{S_T0+1}")
    for Tp in range(NH):
        A(f"""s_add_u32 s{S_T0}, s{S_T0+1}, {Tp}
        s_lshr_b32 s{S_T0+2}, s{S_T0}, 2
        s_mul_i32 s{S_T0+2}, s{S_T0+2}, {88*4-4}
        s_add_u32 s{S_T0}, s{S_T0}, s{S_T0+2}
        s_lshl_b32 s{S_T0}, s{S_T0}, 10
        v_add_u32 v{vA+Tp}, s{S_T0}, v{vT}""")
    A(f"""s_mul_i32 s{S_T0}, s{S_HB2}, {88*4096}
    s_lshl_b32 s{S_T0+1}, s{S_T0+5}, 12
    s_add_u32 s{S_T0}, s{S_T0}, s{S_T0+1}
    s_add_u32 s{S_T0}, s{S_T0}, {WS_ACT}
    s_add_u32 s{SRD_T}, s{S_WS}, s{S_T0}
    s_addc_u32 s{SRD_T+1}, s{S_WS+1}, 0
    s_mov_b32 s{SRD_T+2}, {(88+86)*4096}
    s_mov_b32 s{SRD_T+3}, 0x20000
    s_lshl_b32 s{S_KB}, s{S_R2A}, 14""")
    lr, lo = A.newlabel("L_fl"), A.newlabel("L_fl")
    A(f"""s_lshl_b32 s{S_T0}, s{S_HB2}, 7
    s_add_u32 s{S_T0}, s{S_T0}, {WS_FLAG}
    v_and_b32 v{vFA}, {63 if NT == 6 else 31}, v{VL}
    v_lshlrev_b32 v{vFA}, 2, v{vFA}
    v_add_u32 v{vFA}, s{S_T0}, v{vFA}
    s_lshr_b32 s{S_T0+1}, s{S_WAVE}, 1
    s_lshl_b32 s{S_T0+1}, 0x555555, s{S_T0+1}
    v_mov_b32 v{vT}, s{S_T0+3}
    v_mov_b32 v{vT+1}, s{S_NONCE}
    s_waitcnt vmcnt({3*NH+2})
    s_mov_b64 exec, 1
    global_store_dword v{vT}, v{vT+1}, s[{S_WS}:{S_WS+1}] sc1
    s_mov_b64 exec, -1""")
    ts(6, 2)
    ls, lk = A.newlabel("L_st"), A.newlabel("L_st")
    A("s_waitcnt vmcnt(1)")
    A.label(ls)
    A(f"s_mov_b64 s[{S_M0}:{S_M0+1}], 0")
    for Tp in range(NH):
        A(f"v_cmp_ne_u32 vcc, s{S_NONCE}, v{ST+2*Tp+1}\ns_nop 1\ns_or_b64 s[{S_M0}:{S_M0+1}], s[{S_M0}:{S_M0+1}], vcc")
    A(f"s_cmp_eq_u64 s[{S_M0}:{S_M0+1}], 0\ns_cbranch_scc1 {lk}")
    stat_loads_()
    A("s_waitcnt vmcnt(0)")
    spin_tail(ls, lk, 1)
    A.label(lk)
    def unpack(dst, src):
        A(f"""v_and_b32 v{dst+3}, 0xffff0000, v{src+1}
        v_lshlrev_b32 v{dst+2}, 16, v{src+1}
        v_and_b32 v{dst+1}, 0xffff0000, v{src}
        v_lshlrev_b32 v{dst}, 16, v{src}""")
    def rnd(r, t):
        A(f"""v_cvt_pk_bf16_f32 v{t}, v{r}, v{r+1}
        v_cvt_pk_bf16_f32 v{t+1}, v{r+2}, v{r+3}""")
        unpack(r, t)
    unpack(DK, DK)
    unpack(DK + 4, DK + 4)
    EP = OPT.get("epoll", 9)
    for Tp in range(NH):
        st_ = ST + 2 * Tp
        if Tp == min(EP, NH - 1) and EP < 9:
            A(f"global_load_dword v{vG}, v{vFA}, s[{S_WS}:{S_WS+1}] sc1")
        A(f"""v_and_b32 v{st_+1}, 0xffff0000, v{st_}
        v_lshlrev_b32 v{st_}, 16, v{st_}
        v_rcp_f32 v{st_+1}, v{st_+1}""")
        for U in range(2):
            acc = (U * NH + Tp) * 4
            unpack(acc, X + 4 * Tp + 2 * U)
            for h in (0, 2):
                A(f"v_pk_add_f32 v[{TT+h}:{TT+h+1}], v[{acc+h}:{acc+h+1}], v[{st_}:{st_+1}] op_sel_hi:[1,0] neg_lo:[0,1] neg_hi:[0,1]")
            rnd(TT, TT + 4)
            for h in (0, 2):
                A(f"v_pk_mul_f32 v[{TT+h}:{TT+h+1}], v[{TT+h}:{TT+h+1}], v[{st_}:{st_+1}] op_sel:[0,1] op_sel_hi:[1,1]")
            rnd(TT, TT + 4)
            for h in (0, 2):
                A(f"v_pk_mul_f32 v[{TT+h}:{TT+h+1}], v[{TT+h}:{TT+h+1}], v[{DK+4*U+h}:{DK+4*U+h+1}]")
            rnd(TT, TT + 4)
            for h in (0, 2):
                A(f"v_pk_add_f32 v[{acc+h}:{acc+h+1}], v[{acc+h}:{acc+h+1}], v[{TT+h}:{TT+h+1}]")
    if EP < 9:
        A(f"s_branch {lr}b")
    A.label(lr)
    A(f"global_load_dword v{vG}, v{vFA}, s[{S_WS}:{S_WS+1}] sc1")
    A.label(f"{lr}b")
    A(f"""s_waitcnt vmcnt(0)
    v_cmp_eq_u32 vcc, s{S_NONCE}, v{vG}
    s_nop 1
    s_and_b32 s{S_T0+2}, vcc_lo, vcc_hi
    s_and_b32 s{S_T0+2}, s{S_T0+2}, s{S_T0+1}
    s_cmp_eq_u32 s{S_T0+2}, s{S_T0+1}
    s_cbranch_scc1 {lo}""")
    spin_tail(lr, lo, 2)
    A.label(lo)
    ts(7, 2)
    tc(14)
    if TS:
        A("s_mov_b32 s48, 0\ns_mov_b32 s49, 0")
    vm = Queue(A, "vmcnt", 63)
    A(f"s_add_u32 s{S_T0+4}, s{S_KB}, 4096\nv_lshlrev_b32 v{vFA}, 4, v{VL}\nv_add_u32 v{vFA}, {AUX}, v{vFA}")
    def ldA1(s, i):
        u, Tp = i // NH, i % NH
        b = GA_ + ((s % DA) * NT + i) * 4
        A(f"buffer_load_dwordx4 v[{b}:{b+3}], v{vA+Tp}, s[{SRD_T}:{SRD_T+3}], s{S_T0+4 if u else S_KB} offen sc1")
        vm.issue(("a", s))
        if i == NT - 1:
            rot_next(s, 16384, 16384, 12 * 16384)
            if s < 21:
                A(f"s_add_u32 s{S_T0+4}, s{S_KB}, 4096")
    def ldA(s):
        for i in range(NT):
            ldA1(s, i)
    def rdB(s, j):
        u, U = j // 4, j % 4
        b = GB + (s % 2) * 32 + j * 4
        if s < 12:
            A(f"ds_read_b64_tr_b16 v[{b}:{b+1}], v{vB+U} offset:{4096*u}")
            A(f"ds_read_b64_tr_b16 v[{b+2}:{b+3}], v{vB+U} offset:{4096*u+2048}")
        else:
            A(f"ds_read_b128 v[{b}:{b+3}], v{vB+j}")
    def setB(s, us=range(4)):
        for U in us:
            A(f"v_add_u32 v{vB+U}, {g2slot(s)}, v{(vW if s < 12 else vC)+U}")
    def setB2(s, us=range(4)):
        if s >= 12:
            for U in us:
                A(f"v_xor_b32 v{vB+4+U}, 32, v{vB+U}")
    assert GA_ + DA * NT * 4 <= vW
    peer_addr(vFP, FLG)
    R0 = OPT.get("ramp", 2) if NT == 6 else DA - 1
    st = {"nxt": R0}
    for s in range(R0):
        ldA(s)
    A(f"v_mov_b32 v{vFV}, s{S_K}")
    flag_wait(22, vFD, vFP)
    setB(0)
    for j in range(8):
        rdB(0, j)
    A(f"ds_read_b32 v{vFD}, v{vFP} offset:{4*23}")
    GATE = 12 - (DA - 1)
    def stage(s, limit):
        A(f"s_waitcnt lgkmcnt({1 if s else 0})")
        if TS == 2:
            ts(16 + s, 2)
        if TS == 3:
            A(f"s_memtime s[{S_TS}:{S_TS+1}]\ns_waitcnt lgkmcnt(0)\ns_mov_b32 s50, s{S_TS}")
        vm.wait(("a", s))
        if TS == 3:
            A(f"s_memtime s[{S_TS}:{S_TS+1}]\ns_waitcnt lgkmcnt(0)\ns_sub_u32 s50, s{S_TS}, s50\nv_writelane_b32 v255, s50, {16+s}\nv_writelane_b32 v255, s{S_TS}, {40+s}")
        todo = []
        while st["nxt"] <= min(limit, s - 1 + DA, 21) and len(todo) < 2 * NT:
            todo += [(st["nxt"], i) for i in range(NT)]
            st["nxt"] += 1
        acts = []
        if s < 21:
            acts.append(lambda: (A(f"v_cmp_ne_u32 vcc, s{S_K}, v{vFD}"), setB(s + 1, (0,))))
            acts.append(lambda: setB(s + 1, (1, 2)))
            acts.append(lambda: (flag_test(23 + s, vFD, vFP, 4 * (23 + s), split=True, acc=48), setB(s + 1, (3,))))
            for j in range(8):
                acts.append(lambda j=j: (rdB(s + 1, j), setB2(s + 1, (j,)) if j < 4 else None))
        if s < 20:
            acts.append(lambda: A(f"ds_read_b32 v{vFD}, v{vFP} offset:{4*(24+s)}"))
        if s == GATE - 1:
            acts.append(lambda: A(f"ds_read_b32 v{vG}, v{vFA}"))
        acts.append(lambda: A(f"ds_write_b32 v{VFO}, v{vFV} offset:{4*(21+s)}"))
        lds = [lambda x=x: ldA1(*x) for x in todo]
        nm = 4 * NT
        sched = {i: [] for i in range(nm)}
        per = -(-len(acts) // max(nm - 2, 1))
        for i, f in enumerate(acts):
            sched[i // per].append(f)
        first = OPT.get("lf", 12) if NT == 6 else 0
        for i, f in enumerate(lds):
            sched[min(first + i * (nm - first) // len(lds), nm - 1)].append(f)
        n = 0
        for u in range(2):
            for U in range(4):
                for Tp in range(NH):
                    acc = (U * NH + Tp) * 4
                    w = GB + (s % 2) * 32 + (u * 4 + U) * 4
                    a = GA_ + ((s % DA) * NT + u * NH + Tp) * 4
                    cin = "0" if (s == 0 and u == 0 and U >= 2) else f"v[{acc}:{acc+3}]"
                    A(f"v_mfma_f32_16x16x32_bf16 v[{acc}:{acc+3}], v[{w}:{w+3}], v[{a}:{a+3}], {cin}")
                    for f in sched[n]:
                        f()
                    n += 1
    llate, ljoin = A.newlabel("L_late"), A.newlabel("L_join")
    for s in range(22):
        if s == GATE:
            assert st["nxt"] == 12
            A("s_waitcnt lgkmcnt(1)")
            A(f"v_cmp_le_u32 vcc, 3, v{vG}\ns_cbranch_vccz {llate}")
            keep = list(vm.q)
            mark = len(A.lines)
            A.label(llate)
            for s2_ in range(GATE, 12):
                stage(s2_, 11)
            lr, lo = A.newlabel("L_fs"), A.newlabel("L_fs")
            A.label(lr)
            A(f"""ds_read_b32 v{vG}, v{vFA}
            s_waitcnt lgkmcnt(0)
            v_cmp_le_u32 vcc, 3, v{vG}
            s_cbranch_vccnz {lo}""")
            spin_tail(lr, lo, 1)
            A.label(lo)
            vm.q = []
            for s2_ in range(12, 12 + DA - 1):
                ldA(s2_)
            A(f"s_branch {ljoin}")
            late_q = list(vm.q)
            SLOW.extend(A.lines[mark:])
            del A.lines[mark:]
            vm.q = keep
            st["nxt"] = 12
        if s == 12:
            A.label(ljoin)
            assert vm.q[-NT*(DA-1):] == late_q and st["nxt"] == 12 + DA - 1
        stage(s, 21)
    ts(8, 2)
    tc(15)
    if TS == 3:
        A("v_writelane_b32 v255, s48, 62\nv_writelane_b32 v255, s49, 63")
    flag_wait(35, vFD, vFP, 2048)
    A(f"""v_lshlrev_b32 v{vB}, 4, v{VL}
    s_mul_i32 s{S_T0}, s{S_WAVE}, {NT*1024}
    s_add_u32 s{S_T0}, s{S_T0}, {RED}
    v_add_u32 v{vB+1}, s{S_T0}, v{vB}
    s_xor_b32 s{S_T0}, s{S_WAVE}, 2
    s_mul_i32 s{S_T0}, s{S_T0}, {NT*1024}
    s_add_u32 s{S_T0}, s{S_T0}, {RED}
    v_add_u32 v{vB}, s{S_T0}, v{vB}""")
    for i in range(NT):
        acc = (NT + i) * 4
        A(f"ds_write_b128 v{vB+1}, v[{acc}:{acc+3}] offset:{i*1024}")
    A("s_waitcnt lgkmcnt(0)\ns_barrier")
    for i in range(NT):
        b = (NT + i) * 4
        A(f"ds_read_b128 v[{b}:{b+3}], v{vB} offset:{i*1024}")
    order = [(Tp, U) for Tp in range(NH) for U in range(2)]
    A("s_waitcnt lgkmcnt(0)")
    for Tp, U in order:
        i = U * NH + Tp
        a0, a1 = i * 4, (NT + i) * 4
        for h in (0, 2):
            A(f"v_pk_add_f32 v[{a0+h}:{a0+h+1}], v[{a0+h}:{a0+h+1}], v[{a1+h}:{a1+h+1}]")
        A(f"global_store_dwordx4 v{vT+3}, v[{a0}:{a0+3}], s[{S_OUT}:{S_OUT+1}] offset:{64*U}{['', ' sc1', ' nt', ' sc0 sc1'][OPT.get('omod', 2)]}")
        if U == 1 and Tp < NH - 1:
            A(f"v_add_u32 v{vT+3}, {16*2560}, v{vT+3}")
    ts(9, 2)
    ts_flush(200)
    A("s_endpgm")
    flush_slow()

def publish_flag(idx_code):
    A(f"""s_lshl_b32 s{S_T0}, s{S_T0}, 5
    s_add_u32 s{S_T0}, s{S_T0}, s{S_T0+1}
    s_lshl_b32 s{S_T0}, s{S_T0}, 2
    s_add_u32 s{S_T0}, s{S_T0}, {WS_FLAG}
    v_mov_b32 v250, s{S_T0}
    v_mov_b32 v251, s{S_NONCE}
    s_waitcnt vmcnt({idx_code})
    s_mov_b64 exec, 1
    global_store_dword v250, v251, s[{S_WS}:{S_WS+1}] sc1
    s_mov_b64 exec, -1""")

A.label("L_compute")
A(f"s_setprio {OPT.get('pc1', 2)}")
if OPT.get("pfc", 1):
    A(f"""s_cmp_lg_u32 s{S_WAVE}, 3
    s_cbranch_scc1 L_pcd
    s_getpc_b64 s[{S_M0}:{S_M0+1}]
    L_pcc:
    s_sub_u32 s{S_M0}, s{S_M0}, L_pcc-L_code_start
    s_subb_u32 s{S_M0+1}, s{S_M0+1}, 0
    s_lshl_b32 s{S_T0}, s{S_IDX}, 11
    v_and_b32 v2, 15, v{VL}
    v_lshlrev_b32 v2, 7, v2
    v_add_u32 v2, s{S_T0}, v2
    v_min_u32 v2, L_code_end-L_code_start-8, v2
    global_load_dword v247, v2, s[{S_M0}:{S_M0+1}]
    L_pcd:""")
A(f"s_waitcnt lgkmcnt(0)\ns_load_dword s{S_K}, s[{S_X}:{S_X+1}], 0")
srd(SRD_F, S_X, 4)
flag_init(FREE, S_WAVE, 248, FLG, None)
A(f"s_mov_b32 s{S_FR}, s{S_T0}")
late_scalars()
A(f"s_cmp_eq_u32 s{S_J}, 0\ns_cbranch_scc1 L_ssm_compute")
if OPT.get("tw", 3) == 1:
    touch_w2(251)
A('v_mov_b32 v249, 0')
if PA == 0:
    by_wave(mlp_rows_loads, mlp_cs_loads)
zero_regs(0, 128)()
rowpat_read(192, 198)
A(f"""s_and_b32 s{S_T0}, s{S_WAVE}, 1
s_lshl_b32 s{S_T0}, s{S_T0}, 13
v_add_u32 v192, s{S_T0}, v192
v_xor_b32 v193, 64, v192
v_lshrrev_b32 v198, 4, v{VL}              ; q
v_bfe_u32 v199, v{VL}, 2, 2               ; rr
v_and_b32 v160, 1, v198
v_lshl_add_u32 v160, v160, 2, v199        ; swizzle s
v_lshl_add_u32 v198, v198, 3, v199        ; k row
v_lshlrev_b32 v198, 8, v198
v_and_b32 v199, 3, v{VL}
v_lshl_add_u32 v198, v199, 3, v198
v_add_u32 v198, {WRING}, v198
s_lshr_b32 s{S_T0}, s{S_WAVE}, 1
s_lshl_b32 s{S_T0}, s{S_T0}, 2""")
for F in range(4):
    A(f"""s_add_u32 s{S_T0+1}, s{S_T0}, {F}
    v_xor_b32 v199, s{S_T0+1}, v160
    v_lshl_add_u32 v{194+F}, v199, 5, v198""")
ts(1, 2)
lg, entry, AX, AW = gemm1_loop("mlp")
A("s_waitcnt lgkmcnt(0)")
ts(3, 2)
tc(13)
if TS:
    A("v_writelane_b32 v255, s48, 10\nv_writelane_b32 v255, s49, 11")
if OPT.get("solo", 0):
    ts_flush(100)
    A("s_endpgm")
A(f"s_setprio {OPT.get('pc2', 3)}")
ER = 128
EC = 144
A(f"""s_and_b32 s{S_T0}, s{S_WAVE}, 1
s_lshl_b32 s{S_T0}, s{S_T0}, 10
s_add_u32 s{S_T0}, s{S_T0}, {M_ROW}
v_and_b32 v192, 15, v{VL}
v_lshlrev_b32 v192, 4, v192
v_add_u32 v192, s{S_T0}, v192
s_lshr_b32 s{S_T0}, s{S_WAVE}, 1
s_lshl_b32 s{S_T0}, s{S_T0}, 8
s_add_u32 s{S_T0}, s{S_T0}, {M_CS}
v_lshrrev_b32 v193, 4, v{VL}
v_lshlrev_b32 v193, 4, v193
v_add_u32 v193, s{S_T0}, v193""")
for T in range(4):
    A(f"ds_read_b128 v[{ER+4*T}:{ER+4*T+3}], v192 offset:{256*T}")
for F in range(4):
    for c in range(2):
        b = EC + (F * 2 + c) * 4
        A(f"ds_read_b128 v[{b}:{b+3}], v193 offset:{c*512+F*64}")
A(f"""s_lshl_b32 s{S_T0}, s{S_C}, 1
s_and_b32 s{S_T0+1}, s{S_WAVE}, 1
s_add_u32 s{S_T0}, s{S_T0}, s{S_T0+1}
s_mul_i32 s{S_T0}, s{S_T0}, 88
s_lshl_b32 s{S_T0+1}, s{S_CB}, 2
s_add_u32 s{S_T0}, s{S_T0}, s{S_T0+1}
s_and_b32 s{S_T0+1}, s{S_WAVE}, 2
s_add_u32 s{S_T0}, s{S_T0}, s{S_T0+1}
s_lshl_b32 s{S_T0}, s{S_T0}, 12
s_add_u32 s{S_T0}, s{S_T0}, {WS_ACT}
v_lshlrev_b32 v194, 4, v{VL}
v_add_u32 v194, s{S_T0}, v194
v_add_u32 v195, 4096, v194
s_waitcnt lgkmcnt(0)""")
if TS == 1:
    ts(16, 2)
ET = 176
EO = 184
n = 0
for u in range(2):
    for T in range(4):
        m = ER + 4 * T
        prs = []
        for F in (2 * u, 2 * u + 1):
            for h in (0, 2):
                g = ((F * 2 + 0) * 4 + T) * 4 + h
                up = ((F * 2 + 1) * 4 + T) * 4 + h
                prs.append((g, up, EC + (F * 2) * 4 + h, EC + (F * 2 + 1) * 4 + h))
        for i, (g, up, cg, cu) in enumerate(prs):
            A(f"v_pk_fma_f32 v[{g}:{g+1}], v[{cg}:{cg+1}], v[{m}:{m+1}], v[{g}:{g+1}] op_sel_hi:[1,0,1] neg_lo:[0,1,0] neg_hi:[0,1,0]")
        for i, (g, up, cg, cu) in enumerate(prs):
            e = ET + 2 * i
            A(f"v_pk_mul_f32 v[{e}:{e+1}], v[{g}:{g+1}], v[{m}:{m+1}] op_sel:[0,1] op_sel_hi:[1,1]")
        for i, (g, up, cg, cu) in enumerate(prs):
            e = ET + 2 * i
            A(f"v_exp_f32 v{e}, v{e}\nv_exp_f32 v{e+1}, v{e+1}")
            A(f"v_pk_fma_f32 v[{up}:{up+1}], v[{cu}:{cu+1}], v[{m}:{m+1}], v[{up}:{up+1}] op_sel_hi:[1,0,1] neg_lo:[0,1,0] neg_hi:[0,1,0]")
        for i, (g, up, cg, cu) in enumerate(prs):
            e = ET + 2 * i
            A(f"v_pk_fma_f32 v[{e}:{e+1}], v[{e}:{e+1}], v[{m+2}:{m+3}], v[{m+2}:{m+3}] op_sel_hi:[1,0,0]")
        for i, (g, up, cg, cu) in enumerate(prs):
            e = ET + 2 * i
            A(f"v_rcp_f32 v{e}, v{e}\nv_rcp_f32 v{e+1}, v{e+1}")
            A(f"v_pk_mul_f32 v[{g}:{g+1}], v[{g}:{g+1}], v[{up}:{up+1}]")
        for i, (g, up, cg, cu) in enumerate(prs):
            e = ET + 2 * i
            A(f"v_pk_mul_f32 v[{g}:{g+1}], v[{g}:{g+1}], v[{e}:{e+1}]")
        o = EO + 4 * (n % 2)
        for i, (g, up, cg, cu) in enumerate(prs):
            A(f"v_cvt_pk_bf16_f32 v{o+i}, v{g}, v{g+1}")
        if TS == 1 and n % 2 == 0:
            ts(17 + n, 2)
        if not OPT.get("nost", 0):
            A(f"global_store_dwordx4 v{194+u}, v[{o}:{o+3}], s[{S_WS}:{S_WS+1}] offset:{1024*T} sc1")
        if TS == 1 and n % 2 == 0:
            ts(18 + n, 2)
        n += 1
ts(4, 2)
A(f"""s_lshl_b32 s{S_T0}, s{S_C}, 1
s_and_b32 s{S_T0+1}, s{S_WAVE}, 1
s_add_u32 s{S_T0}, s{S_T0}, s{S_T0+1}
s_lshl_b32 s{S_T0+1}, s{S_CB}, 1
s_lshr_b32 s{S_T0+2}, s{S_WAVE}, 1
s_add_u32 s{S_T0+1}, s{S_T0+1}, s{S_T0+2}""")
gemm2_compute(6)

A.label("L_ssm_compute")
if PA == 0:
    ssm_rows_loads()
zero_regs(0, 160)()
rowpat_read(232, 160)
A(f"""s_lshr_b32 s{S_T0}, s{S_WAVE}, 1
s_mul_i32 s{S_T0}, s{S_T0}, 10240
s_add_u32 s{S_T0}, s{S_T0}, {WRING}
v_add_u32 v234, s{S_T0}, v232
v_xor_b32 v235, 64, v234
s_and_b32 s{S_T0}, s{S_WAVE}, 1
s_lshl_b32 s{S_T0}, s{S_T0}, 13
v_add_u32 v232, s{S_T0}, v232
v_xor_b32 v233, 64, v232""")
ts(1, 2)
lg, entry, AX, AW = gemm1_loop("ssm")
A("s_waitcnt lgkmcnt(0)")
ts(3, 2)
tc(13)
if TS:
    A("v_writelane_b32 v255, s48, 10\nv_writelane_b32 v255, s49, 11")
if OPT.get("solo", 0):
    ts_flush(100)
    A("s_endpgm")
A(f"s_setprio {OPT.get('pc2', 3)}")
def acc(G, c, m, r=0):
    return ((G * 2 + c) * 4 + m) * 4 + r
SM, SR_ = 160, 176
SCS = 192
SLAM = 202
SK = 212
SA = 222
A(f"""s_and_b32 s{S_T0}, s{S_WAVE}, 1
s_lshl_b32 s{S_T0}, s{S_T0}, 8
s_add_u32 s{S_T0}, s{S_T0}, {M_ROW}
v_lshrrev_b32 v{SA}, 4, v{VL}
v_lshlrev_b32 v{SA}, 4, v{SA}
v_add_u32 v{SA}, s{S_T0}, v{SA}
s_lshr_b32 s{S_T0+1}, s{S_WAVE}, 1
s_mul_i32 s{S_T0+1}, s{S_T0+1}, 80
v_and_b32 v{SA+1}, 15, v{VL}
v_add_u32 v{SA+1}, s{S_T0+1}, v{SA+1}
v_lshlrev_b32 v{SA+2}, 2, v{SA+1}
v_add_u32 v{SA+3}, {M_CS}, v{SA+2}
v_lshlrev_b32 v{SA+4}, 3, v{SA+1}
v_add_u32 v{SA+4}, {M_LAM}, v{SA+4}""")
for m in range(4):
    A(f"ds_read_b128 v[{SM+4*m}:{SM+4*m+3}], v{SA} offset:{64*m}")
    A(f"ds_read_b128 v[{SR_+4*m}:{SR_+4*m+3}], v{SA} offset:{512+64*m}")
for G in range(5):
    A(f"ds_read_b32 v{SCS+2*G}, v{SA+3} offset:{64*G}")
    A(f"ds_read_b32 v{SCS+2*G+1}, v{SA+3} offset:{640+64*G}")
for G in range(5):
    A(f"ds_read_b64 v[{SLAM+2*G}:{SLAM+2*G+1}], v{SA+4} offset:{128*G}")
    A(f"ds_read_b64 v[{SK+2*G}:{SK+2*G+1}], v{SA+4} offset:{M_COEF-M_LAM+128*G}")
A(f"""s_and_b32 s{S_T0}, s{S_WAVE}, 1
s_mul_i32 s{S_T0}, s{S_T0}, {8*1280}
s_add_u32 s{S_T0}, s{S_T0}, {E_BASE}
v_lshrrev_b32 v{SA+5}, 4, v{VL}
v_mul_u32_u24 v{SA+5}, 2560, v{SA+5}
v_lshl_add_u32 v{SA+5}, v{SA+2}, 1, v{SA+5}
v_add_u32 v{SA+5}, s{S_T0}, v{SA+5}
v_add_u32 v{SA+7}, 1280, v{SA+5}
s_waitcnt lgkmcnt(0)""")
def pk(op, d, a, b, c=None, sa=None, sb=None, sc=None, neg=None):
    ops = [a, b] + ([c] if c is not None else [])
    sel = [sa, sb] + ([sc] if c is not None else [])
    lo = [0 if s is None else s for s in sel]
    hi = [1 if s is None else s for s in sel]
    t = f"v_pk_{op}_f32 v[{d}:{d+1}], " + ", ".join(f"v[{o}:{o+1}]" for o in ops)
    t += " op_sel:[" + ",".join(map(str, lo)) + "] op_sel_hi:[" + ",".join(map(str, hi)) + "]"
    if neg is not None:
        nn = [1 if i == neg else 0 for i in range(len(ops))]
        t += " neg_lo:[" + ",".join(map(str, nn)) + "] neg_hi:[" + ",".join(map(str, nn)) + "]"
    A(t)
for m in range(4):
    for h in (0, 2):
        for G in range(5):
            for c in range(2):
                a = acc(G, c, m, h)
                pk("fma", a, SM + 4 * m + h, SCS + 2 * G, a, sb=c, neg=1)
        for G in range(5):
            for c in range(2):
                a = acc(G, c, m, h)
                pk("mul", a, a, SR_ + 4 * m + h)
steps = [(m, h) for m in range(4) for h in (0, 2)]
for k in range(1, 8):
    (m, h), (pm, ph) = steps[k], steps[k - 1]
    for G in range(5):
        pk("fma", acc(G, 0, m, h), acc(G, 0, pm, ph), SLAM + 2 * G, acc(G, 0, m, h), sb=0)
        pk("fma", acc(G, 1, m, h), acc(G, 1, pm, ph), SLAM + 2 * G, acc(G, 1, m, h), sb=0)
    for G in range(5):
        pk("fma", acc(G, 0, m, h), acc(G, 1, pm, ph), SLAM + 2 * G, acc(G, 0, m, h), sb=1, neg=1)
        pk("fma", acc(G, 1, m, h), acc(G, 0, pm, ph), SLAM + 2 * G, acc(G, 1, m, h), sb=1)
peer_addr(248, FREE)
flag_wait(18, 250, 248)
for G in range(5):
    for e in range(2):
        A(f"ds_write2_b32 v{SA+5+2*e}, v{acc(G,0,3,2+e)}, v{acc(G,1,3,2+e)} offset0:{32*G} offset1:{32*G+1}")
A("s_waitcnt lgkmcnt(0)\ns_setprio 0\ns_barrier")
ts(4, 2)
for m, h in steps:
    for G in range(5):
        t = SM + 2 * G
        pk("mul", t, acc(G, 0, m, h), SK + 2 * G, sb=1)
    for G in range(5):
        pk("mul", acc(G, 0, m, h), acc(G, 0, m, h), SK + 2 * G, sb=0)
    for G in range(5):
        pk("fma", acc(G, 0, m, h), acc(G, 1, m, h), SK + 2 * G, acc(G, 0, m, h), sb=1)
    for G in range(5):
        t = SM + 2 * G
        pk("fma", acc(G, 1, m, h), acc(G, 1, m, h), SK + 2 * G, t, sb=0, neg=1)
A(f"""s_mul_i32 s{S_T0}, s{S_WAVE}, 12288
s_add_u32 s{S_T0}, s{S_T0}, {TR_BASE}
v_and_b32 v{SA}, 7, v{VL}
v_bfe_u32 v{SA+1}, v{VL}, 3, 1
v_lshlrev_b32 v{SA+1}, 2, v{SA+1}
v_xor_b32 v{SA}, v{SA}, v{SA+1}                ; f
v_lshrrev_b32 v{SA+1}, 4, v{VL}
v_lshlrev_b32 v{SA+1}, 1, v{SA+1}
v_xor_b32 v{SA}, v{SA}, v{SA+1}                ; (2q) ^ f
v_and_b32 v{SA+1}, 15, v{VL}
v_lshlrev_b32 v{SA+1}, 7, v{SA+1}
v_lshl_add_u32 v{SA}, v{SA}, 4, v{SA+1}
v_add_u32 v{SA}, s{S_T0}, v{SA}                ; e = 0
v_xor_b32 v{SA+1}, 16, v{SA}                   ; e = 1
v_lshrrev_b32 v{SA+2}, 4, v{VL}                ; q
v_bfe_u32 v{SA+3}, v{VL}, 2, 2                 ; rr
v_and_b32 v{SA+4}, 1, v{SA+2}
v_lshl_add_u32 v{SA+4}, v{SA+4}, 2, v{SA+3}
v_bfe_u32 v{SA+6}, v{VL}, 1, 1                 ; cc>>1
v_xor_b32 v{SA+4}, v{SA+4}, v{SA+6}
v_lshl_add_u32 v{SA+2}, v{SA+2}, 3, v{SA+3}    ; row
v_lshlrev_b32 v{SA+2}, 7, v{SA+2}
v_lshl_add_u32 v{SA+2}, v{SA+4}, 4, v{SA+2}
v_and_b32 v{SA+3}, 1, v{VL}
v_lshl_add_u32 v{SA+2}, v{SA+3}, 3, v{SA+2}
v_add_u32 v{SA+2}, s{S_T0}, v{SA+2}""")
TA = 176
for Tq in range(4):
    A(f"v_xor_b32 v{TA+2*Tq}, {32*Tq}, v{SA+2}")
    A(f"v_xor_b32 v{TA+2*Tq+1}, {(32*Tq) ^ 64}, v{SA+2}")
A(f"""s_lshl_b32 s{S_T0}, s{S_C}, 1
s_and_b32 s{S_T0+1}, s{S_WAVE}, 1
s_add_u32 s{S_T0}, s{S_T0}, s{S_T0+1}
s_mul_i32 s{S_T0}, s{S_T0}, 88
s_mul_i32 s{S_T0+1}, s{S_CB}, 10
s_add_u32 s{S_T0}, s{S_T0}, s{S_T0+1}
s_lshr_b32 s{S_T0+1}, s{S_WAVE}, 1
s_mul_i32 s{S_T0+1}, s{S_T0+1}, 5
s_add_u32 s{S_T0}, s{S_T0}, s{S_T0+1}
s_add_u32 s{S_T0}, s{S_T0}, 48
s_lshl_b32 s{S_T0}, s{S_T0}, 12
s_add_u32 s{S_T0}, s{S_T0}, {WS_ACT}
v_lshlrev_b32 v{SA+3}, 4, v{VL}
v_add_u32 v{SA+3}, s{S_T0}, v{SA+3}""")
A("s_setprio 3\ns_barrier")
ts(5, 2)
SW = 184
SW = 182
def W(G, c):
    idx = G * 2 + c
    return (160 + 2 * idx) if idx < 8 else (192 + 2 * (idx - 8))
for G in range(5):
    for c in range(2):
        for e in range(2):
            A(f"ds_read_b32 v{W(G,c)+e}, v{SA+5} offset:{e*1280+c*4+128*G}")
A("s_waitcnt lgkmcnt(0)")
lg = Queue(A, "lgkmcnt", 15)
def stores(G):
    for Tq in range(4):
        lg.wait(("t", G, Tq))
        b = G * 32 + 16 + Tq * 4
        A(f"global_store_dwordx4 v{SA+3}, v[{b}:{b+3}], s[{S_WS}:{S_WS+1}] offset:{1024*Tq} sc1")
    if G < 4:
        A(f"v_add_u32 v{SA+3}, 4096, v{SA+3}")
def corr(G):
    out = []
    for k, (m, h) in enumerate(steps):
        for c in range(2):
            out.append(lambda c=c, m=m, h=h: pk("add", acc(G, c, m, h), acc(G, c, m, h), W(G, c)))
        if k < 7:
            out.append(lambda: pk("mul", 196, W(G, 0), SLAM + 2 * G, sb=1))
            out.append(lambda: pk("mul", W(G, 0), W(G, 0), SLAM + 2 * G, sb=0))
            out.append(lambda: pk("fma", W(G, 0), W(G, 1), SLAM + 2 * G, W(G, 0), sb=1))
            out.append(lambda: pk("fma", W(G, 1), W(G, 1), SLAM + 2 * G, 196, sb=0, neg=2))
    return out
def pack(G):
    out = []
    for c in range(2):
        o = (184 if G % 2 else 232) if c == 0 else G * 32
        for e in range(2):
            for m in range(4):
                out.append(lambda o=o, c=c, e=e, m=m: A(f"v_cvt_pk_bf16_f32 v{o+4*e+m}, v{acc(G,c,m,e)}, v{acc(G,c,m,2+e)}"))
            def wr(o=o, c=c, e=e):
                A(f"ds_write_b128 v{SA+e}, v[{o+4*e}:{o+4*e+3}] offset:{(G%3)*4096+c*2048}")
                lg.issue("w")
            out.append(wr)
    for Tq in range(4):
        def rd(Tq=Tq):
            b = G * 32 + 16 + Tq * 4
            A(f"ds_read_b64_tr_b16 v[{b}:{b+1}], v{TA+2*Tq} offset:{(G%3)*4096}")
            A(f"ds_read_b64_tr_b16 v[{b+2}:{b+3}], v{TA+2*Tq+1} offset:{(G%3)*4096+512}")
            lg.issue(("t", G, Tq)); lg.issue(("t", G, Tq))
        out.append(rd)
    return out
def store1(G, Tq):
    lg.wait(("t", G, Tq))
    b = G * 32 + 16 + Tq * 4
    A(f"global_store_dwordx4 v{SA+3}, v[{b}:{b+3}], s[{S_WS}:{S_WS+1}] offset:{1024*Tq} sc1")
    if Tq == 3:
        A(f"v_add_u32 v{SA+3}, 4096, v{SA+3}")
def weave(a, b):
    ia = ib = 0
    while ia < len(a) or ib < len(b):
        if ib >= len(b) or (ia < len(a) and ia * len(b) <= ib * len(a)):
            a[ia](); ia += 1
        else:
            b[ib](); ib += 1
for G in range(6):
    side = pack(G - 1) if G >= 1 else []
    if G >= 2:
        st4 = [lambda Tq=Tq: store1(G - 2, Tq) for Tq in range(4)]
        for i, f in enumerate(st4):
            side.insert(2 + 5 * i, f)
        if TS == 1 and G == 2:
            side.insert(0, lambda: ts(16, 2))
    weave(corr(G) if G < 5 else [], side)
stores(4)
if TS == 1:
    ts(17, 2)
A(f"""s_lshl_b32 s{S_T0}, s{S_C}, 1
s_and_b32 s{S_T0+1}, s{S_WAVE}, 1
s_add_u32 s{S_T0}, s{S_T0}, s{S_T0+1}
s_lshl_b32 s{S_T0+1}, s{S_CB}, 1
s_lshr_b32 s{S_T0+2}, s{S_WAVE}, 1
s_add_u32 s{S_T0+1}, s{S_T0+1}, s{S_T0+2}
s_add_u32 s{S_T0+1}, s{S_T0+1}, 24""")
gemm2_compute(2)

def rowpat_load(dst, tmp, ssm):
    A(f"""v_lshrrev_b32 v{tmp}, 4, v{VL}
    v_xor_b32 v{tmp+1}, v{tmp}, v{VL}
    v_and_b32 v{tmp+1}, 7, v{tmp+1}              ; chunk""")
    if ssm:
        A(f"""v_lshrrev_b32 v{tmp}, 5, v{VL}
        v_lshlrev_b32 v{tmp}, 4, v{tmp}
        v_bfe_u32 v{dst}, v{VL}, 3, 1
        v_lshl_add_u32 v{tmp}, v{dst}, 3, v{tmp}
        v_bfe_u32 v{dst}, v{VL}, 4, 1
        v_add_u32 v{tmp}, v{tmp}, v{dst}""")
        up = 32
    else:
        A(f"v_lshrrev_b32 v{tmp}, 3, v{VL}")
        up = 8
    A(f"""v_mul_u32_u24 v{dst}, 1280, v{tmp}
    v_lshl_add_u32 v{dst}, v{tmp+1}, 4, v{dst}
    v_xor_b32 v{dst+1}, 64, v{dst}
    v_add_u32 v{dst+1}, {up*1280-1024}, v{dst+1}""")

LFP, LFV, LFD, LPA, LPD = 240, 241, 242, 243, 244
S_U, S_XS, S_S2 = 83, 84, 87
S_RET, S_SUB = 90, 30
class NoQ:
    def issue(self, t): pass
    def wait(self, t): pass
NOQ = NoQ()
CAP = OPT.get("cap", 8)
def cap(n=None):
    A(f"s_waitcnt vmcnt({CAP if n is None else n})")
class CapQ:
    def issue(self, t):
        cap()
    def wait(self, t): pass
CAPQ = CapQ()
class Jobs:
    def __init__(self):
        self.q = []
    def add(self, g):
        self.q.append(g)
    def step(self, n=1):
        if not self.q:
            return
        A(f"s_setprio {OPT.get('pls', 3)}")
        while n > 0 and self.q:
            try:
                next(self.q[0])
            except StopIteration:
                self.q.pop(0)
            n -= 1
        A("s_setprio 0")
def run(g):
    for _ in g:
        pass

LAX, LFQ = 245, 246
def declare(sreg):
    A(f"""s_lshl_b32 s{sreg}, s{sreg}, 2
    v_add_u32 v{LFQ}, s{sreg}, v{VFO}
    v_mov_b32 v{LFV}, s{S_K}
    ds_write_b32 v{LFQ}, v{LFV}""")
def wait_free(sreg):
    A(f"s_lshl_b32 s{sreg}, s{sreg}, 2\nv_add_u32 v{LFQ}, s{sreg}, v{LFP}")
    flag_wait(0, LFD, LFQ, nap=OPT.get('lnap', 0))
def stamp(idx_sreg, add):
    if TS:
        A(f"""s_memrealtime s[{S_TS}:{S_TS+1}]
        s_add_u32 m0, s{idx_sreg}, {add}
        s_waitcnt lgkmcnt(0)
        v_writelane_b32 v255, s{S_TS}, m0""")

def poll_setup(two):
    A(f"""s_lshl_b32 s{S_T0}, s{S_HB2}, 7
    s_add_u32 s{S_T0}, s{S_T0}, {WS_FLAG+96}
    v_and_b32 v{LPA}, 7, v{VL}
    v_lshlrev_b32 v{LPA}, 2, v{LPA}
    v_add_u32 v{LPA}, s{S_T0}, v{LPA}""")
    if two:
        A(f"v_and_b32 v{LPD}, 8, v{VL}\nv_lshl_add_u32 v{LPA}, v{LPD}, 4, v{LPA}")
def poll_issue():
    A(f"global_load_dword v{LPD}, v{LPA}, s[{S_WS}:{S_WS+1}] sc1")
def poll_until():
    lr, lo = A.newlabel("L_pu"), A.newlabel("L_pu")
    A.label(lr)
    poll_issue()
    A(f"""s_waitcnt vmcnt(0)
    v_cmp_ne_u32 vcc, s{S_NONCE}, v{LPD}
    s_cbranch_vccz {lo}""")
    spin_tail(lr, lo, 3)
    A.label(lo)
    A(f"v_mov_b32 v{LFV}, 3\nds_write_b32 v{LAX}, v{LFV}")
def poll_check():
    lo = A.newlabel("L_pk")
    A(f"""v_cmp_ne_u32 vcc, s{S_NONCE}, v{LPD}
    s_cbranch_vccnz {lo}
    v_mov_b32 v{LFV}, 3
    ds_write_b32 v{LAX}, v{LFV}""")
    A.label(lo)

VW2, VC2 = 12, 15
def g2_setup(NT, tmp):
    srd(SRD_W2, S_W2, 1966080)
    srd(SRD_C, S_CRE, 819200)
    srd(SRD_T, S_CIM, 819200)
    A(f"""s_lshl_b32 s{S_T0}, s{S_DCOL}, 1
    v_lshrrev_b32 v{tmp}, 4, v{VL}
    v_lshlrev_b32 v{tmp}, 1, v{tmp}
    v_xor_b32 v{tmp}, v{tmp}, v{VL}
    v_and_b32 v{tmp}, 7, v{tmp}
    v_lshrrev_b32 v{tmp+1}, 3, v{VL}
    v_mul_u32_u24 v{tmp+1}, 1280, v{tmp+1}
    v_lshl_add_u32 v{tmp}, v{tmp}, 4, v{tmp+1}
    v_add_u32 v{VW2}, s{S_T0}, v{tmp}""")
    rowpat_load(VC2, tmp, False)
    A(f"""s_mul_i32 s{S_T0}, s{S_DCOL}, 1280
    v_add_u32 v{VC2}, s{S_T0}, v{VC2}
    v_add_u32 v{VC2+1}, s{S_T0}, v{VC2+1}
    s_add_u32 s{S_S2}, s{S_LW}, 1
    s_and_b32 s{S_S2}, s{S_S2}, 3
    s_add_u32 s{S_KS}, s{S_S2}, s{S_R2A}
    s_cmp_ge_u32 s{S_KS}, 12
    s_cselect_b32 s{S_T0}, 12, 0
    s_sub_u32 s{S_KS}, s{S_KS}, s{S_T0}
    s_mul_i32 s{S_KS}, s{S_KS}, {128*1280}
    v_lshlrev_b32 v236, 4, v{VL}""")
    poll_setup(NT == 6)

def g2_pieces(k):
    out = []
    for i in range(16):
        if k < 3:
            out.append((VW2, SRD_W2, i * 8 * 1280, 0))
        else:
            mat, ii = i // 8, i % 8
            out.append((VC2 + ii % 2, SRD_T if mat else SRD_C, (ii // 2) * 16 * 1280, 1024 * (ii % 2)))
    return out
def g2_next(k):
    if k == 2:
        A(f"""s_and_b32 s{S_KS}, s{S_S2}, 3
        s_add_u32 s{S_KS}, s{S_KS}, s{S_R2B}
        s_cmp_ge_u32 s{S_KS}, 10
        s_cselect_b32 s{S_T0}, 10, 0
        s_sub_u32 s{S_KS}, s{S_KS}, s{S_T0}
        s_lshl_b32 s{S_KS}, s{S_KS}, 7""")
    else:
        step, n = (128 * 1280, 12) if k < 2 else (128, 10)
        A(f"""s_add_u32 s{S_KS}, s{S_KS}, {4*step}
        s_cmp_ge_u32 s{S_KS}, {n*step}
        s_cselect_b32 s{S_T0}, {n*step}, 0
        s_sub_u32 s{S_KS}, s{S_KS}, s{S_T0}""")
THR = OPT.get("thr", 8)
def g2_load(k, base, thr):
    for i, (v, sd, ex, io) in enumerate(g2_pieces(k)):
        if i:
            yield
        A(f"s_add_u32 s{S_T0+7}, s{S_KS}, {ex}\ns_waitcnt vmcnt({thr})")
        A(f"buffer_load_dwordx4 v[{base+4*i}:{base+4*i+3}], v{v}, s[{sd}:{sd+3}], s{S_T0+7} offen offset:{io}")
    g2_next(k)
    ts(48 + k, 2)
def g2_put(k, base, young, lowest, g=None):
    A(f"s_add_u32 s{S_T0+6}, s{S_S2}, {21-NS2}\ns_max_u32 s{S_T0+6}, s{S_T0+6}, {lowest}")
    wait_free(S_T0 + 6)
    A(f"s_waitcnt vmcnt({young})\nv_add_u32 v237, s{S_SLOT}, v236")
    for i in range(16):
        A(f"ds_write_b128 v237, v[{base+4*i}:{base+4*i+3}] offset:{1024*i}")
        if g is not None and i % OPT.get('il', 2) == OPT.get('il', 2) - 1:
            next(g, None)
    A(f"""s_add_u32 s{S_S2}, s{S_S2}, 4
    s_add_u32 s{S_T0+6}, s{S_S2}, 21""")
    declare(S_T0 + 6)
    ts(40 + k, 2)
    A(f"""s_add_u32 s{S_SLOT}, s{S_SLOT}, {4*SL2}
    s_cmp_ge_u32 s{S_SLOT}, {NS2*SL2}
    s_cselect_b32 s{S_T0}, {NS2*SL2}, 0
    s_sub_u32 s{S_SLOT}, s{S_SLOT}, s{S_T0}""")
    if g is not None:
        run(g)
    A("s_waitcnt lgkmcnt(0)")

def bump_epoch(T):
    lr, lo = A.newlabel("L_ep"), A.newlabel("L_ep")
    ld = A.newlabel("L_ep")
    A(f"""s_cmp_lg_u32 s2, 0
    s_cbranch_scc1 {ld}
    s_cmp_lg_u32 s{S_LW}, 2
    s_cbranch_scc1 {ld}
    v_lshlrev_b32 v{T}, 4, v{VL}
    v_add_u32 v{T}, {WS_FLAG}, v{T}""")
    A.label(lr)
    for i in range(4):
        A(f"global_load_dwordx4 v[{T+4+4*i}:{T+7+4*i}], v{T}, s[{S_WS}:{S_WS+1}] offset:{1024*i} sc1")
    A(f"s_waitcnt vmcnt(0)\ns_mov_b64 s[{S_M0}:{S_M0+1}], 0")
    for i in range(16):
        A(f"v_cmp_ne_u32 vcc, s{S_NONCE}, v{T+4+i}\ns_nop 1\ns_or_b64 s[{S_M0}:{S_M0+1}], s[{S_M0}:{S_M0+1}], vcc")
    A(f"s_cmp_eq_u64 s[{S_M0}:{S_M0+1}], 0\ns_cbranch_scc1 {lo}")
    spin_tail(lr, lo, 4)
    A.label(lo)
    A(f"""v_mov_b32 v{T}, {WS_E}
    v_mov_b32 v{T+1}, s{S_NONCE}
    s_mov_b64 exec, 1
    global_store_dword v{T}, v{T+1}, s[{S_WS}:{S_WS+1}] sc1
    s_mov_b64 exec, -1""")
    A.label(ld)

def prefetch(vm, T, tag):
    if not OPT["pf"]:
        return
    if not OPT.get("pfc", 1):
      for i in range(2):
        vm.issue("pf")
      A(f"""s_getpc_b64 s[{S_M0}:{S_M0+1}]
    L_pc{tag}:
    s_sub_u32 s{S_M0}, s{S_M0}, L_pc{tag}-L_code_start
    s_subb_u32 s{S_M0+1}, s{S_M0+1}, 0
    s_lshl_b32 s{S_T0}, s{S_LW}, 13
    v_lshlrev_b32 v{T}, 7, v{VL}
    v_add_u32 v{T}, s{S_T0}, v{T}
    v_add_u32 v{T+1}, 32768, v{T}
    v_min_u32 v{T+1}, L_code_end-L_code_start-8, v{T+1}
    global_load_dword v250, v{T}, s[{S_M0}:{S_M0+1}]
    global_load_dword v249, v{T+1}, s[{S_M0}:{S_M0+1}]""")
    A(f"""s_cmp_ge_u32 s{S_LW}, 2
    s_cselect_b32 s{S_T0}, 49, 59
    s_mov_b32 s{S_T0+1}, 7680
    s_cmov_b32 s{S_T0+1}, 3200
    s_cselect_b32 s{S_T0+4}, s{S_CRE}, s{S_W2}
    s_cselect_b32 s{S_T0+5}, s{S_CRE+1}, s{S_W2+1}
    s_mul_i32 s{S_T0+1}, s{S_T0+1}, s2
    s_cmp_eq_u32 s{S_LW}, 1
    s_cselect_b32 s{S_T0+2}, 3840, 0
    s_add_u32 s{S_T0+1}, s{S_T0+1}, s{S_T0+2}
    s_cmp_eq_u32 s{S_LW}, 3
    s_cselect_b32 s{S_T0+4}, s{S_CIM}, s{S_T0+4}
    s_cselect_b32 s{S_T0+5}, s{S_CIM+1}, s{S_T0+5}
    v_min_u32 v{T}, s{S_T0}, v{VL}
    v_lshlrev_b32 v{T}, 6, v{T}
    v_add_u32 v{T}, s{S_T0+1}, v{T}
    global_load_dword v248, v{T}, s[{S_T0+4}:{S_T0+5}]""")
    vm.issue("pf")


def head_begin():
    return len(A.lines)
def head_end(mark):
    HEADS.extend(A.lines[mark:])
    del A.lines[mark:]

def issue_sub(kind):
    mlp = kind == "mlp"
    SLOT = 16384 if mlp else 20480
    A.label(f"L_sub_{kind}")
    A(f"s_waitcnt lgkmcnt(0)")
    flag_test(None, LFD, LFQ, 0, nap=OPT.get('lnap', 0))
    A.label(f"L_subn_{kind}")
    stamp(S_U, 16)
    lx = A.newlabel("L_is")
    A(f"s_bitcmp1_b32 s{S_U}, 0\ns_cbranch_scc1 {lx}")
    A(f"s_add_u32 m0, s{S_XS}, s{S_T0+9}")
    for h in range(4):
        cap()
        A(f"buffer_load_dwordx4 v{2+h}, s[{SRD_X}:{SRD_X+3}], s{S_KX} offen offset:{1024*h} lds")
    A(f"""s_add_u32 s{S_XS}, s{S_XS}, 16384
    s_cmp_eq_u32 s{S_XS}, {3*16384}
    s_cselect_b32 s{S_XS}, 0, s{S_XS}""")
    if not mlp:
        A(f"s_add_u32 m0, s{S_SLOT}, s{S_T0+8}")
        for h in range(4):
            cap()
            A(f"buffer_load_dwordx4 v{6+h}, s[{SRD_WA}:{SRD_WA+3}], s{S_KX} offen offset:{1024*h} lds")
        A(f"s_add_u32 m0, m0, 4096")
        cap()
        A(f"buffer_load_dwordx4 v10, s[{SRD_WA}:{SRD_WA+3}], s{S_KX} offen lds\ns_branch {lx}b")
    A.label(lx)
    if mlp:
        for mat, sd in enumerate((SRD_WA, SRD_WB)):
            A(f"s_add_u32 m0, s{S_SLOT}, s{S_T0+8}" if mat == 0 else "s_add_u32 m0, m0, 8192")
            for h in range(2):
                cap()
                A(f"buffer_load_dwordx4 v{6+h}, s[{sd}:{sd+3}], s{S_KW} offen offset:{1024*h} lds")
        A(f"""s_add_u32 s{S_KW}, s{S_KW}, {32*3072}
        s_cmp_eq_u32 s{S_KW}, {20*32*3072}
        s_cselect_b32 s{S_KW}, {64*3072 if C0 else 0}, s{S_KW}
        s_bitcmp1_b32 s{S_U}, 0
        s_cbranch_scc0 {lx}b""")
    else:
        A(f"s_add_u32 m0, s{S_SLOT}, s{S_T0+8}")
        for h in range(4):
            cap()
            A(f"buffer_load_dwordx4 v{6+h}, s[{SRD_WB}:{SRD_WB+3}], s{S_KX} offen offset:{1024*h} lds")
        A(f"s_add_u32 m0, m0, 4096")
        cap()
        A(f"buffer_load_dwordx4 v10, s[{SRD_WB}:{SRD_WB+3}], s{S_KX} offen lds")
    A(f"""s_add_u32 s{S_KX}, s{S_KX}, 128
    s_cmp_eq_u32 s{S_KX}, 1280
    s_cselect_b32 s{S_KX}, {128 if C0 else 0}, s{S_KX}""")
    A.label(f"{lx}b")
    A(f"""s_add_u32 s{S_U}, s{S_U}, 1
    s_add_u32 s{S_FM}, s{S_FM}, 4
    v_add_u32 v{LFQ}, 4, v{LFQ}
    s_mov_b32 m0, s{S_FM}
    ds_read_b32 v{LFD}, v{LFQ}
    s_add_u32 s{S_SLOT}, s{S_SLOT}, {SLOT}
    s_cmp_eq_u32 s{S_SLOT}, {5*SLOT}
    s_cselect_b32 s{S_SLOT}, 0, s{S_SLOT}""")
    cap()
    A(f"""buffer_load_dword v{VZ}, s[{SRD_X}:{SRD_X+3}], 0 offen lds
    s_setpc_b64 s[{S_RET}:{S_RET+1}]""")
    flush_slow()
S_FM = 22
def call_sub(check=True):
    if check:
        A(f"s_swappc_b64 s[{S_RET}:{S_RET+1}], s[{S_SUB}:{S_SUB+1}]")
    else:
        A(f"s_swappc_b64 s[{S_RET}:{S_RET+1}], s[{S_SUBN}:{S_SUBN+1}]")
S_SUBN = 32
def declare_dma(sreg=None):
    if sreg is not None:
        A(f"s_lshl_b32 s{sreg}, s{sreg}, 2\ns_add_u32 s{S_FM}, s{S_FM}, s{sreg}")
    A(f"s_mov_b32 m0, s{S_FM}")
    cap()
    A(f"buffer_load_dword v{VZ}, s[{SRD_X}:{SRD_X+3}], 0 offen lds")

def head_rest(kind):
    mlp = kind == "mlp"
    SLOT = 16384 if mlp else 20480
    flag_init(FLG, S_LW, LFP, FREE, LAX)
    A(f"""s_add_u32 s{S_FM}, s{S_T0}, 4
    v_subrev_u32 v{LFQ}, 8, v{LFP}
    s_getpc_b64 s[{S_SUB}:{S_SUB+1}]
    L_gp_{kind}:
    s_add_u32 s{S_SUBN}, s{S_SUB}, L_subn_{kind}-L_gp_{kind}
    s_addc_u32 s{S_SUBN+1}, s{S_SUB+1}, 0
    s_add_u32 s{S_SUB}, s{S_SUB}, L_sub_{kind}-L_gp_{kind}
    s_addc_u32 s{S_SUB+1}, s{S_SUB+1}, 0
    s_mov_b32 s{S_U}, 2
    s_mov_b32 s{S_SLOT}, {2*SLOT}
    s_mov_b32 s{S_XS}, 16384
    s_mov_b32 m0, s{S_FM}
    s_add_u32 s{S_FM}, s{S_FM}, 4
    buffer_load_dword v{VZ}, s[{SRD_X}:{SRD_X+3}], 0 offen lds""")
    if mlp:
        A(f"s_add_u32 s{S_KW}, s{S_KW}, {32*3072}")
        for mat, sd in enumerate((SRD_WA, SRD_WB)):
            A(f"s_add_u32 m0, s{S_T0+8}, {SLOT + mat*8192}\ns_nop 0")
            for h in range(2):
                A(f"buffer_load_dwordx4 v{6+h}, s[{sd}:{sd+3}], s{S_KW} offen offset:{1024*h} lds")
        A(f"""s_add_u32 s{S_KW}, s{S_KW}, {32*3072}
        s_cmp_eq_u32 s{S_KW}, {20*32*3072}
        s_cselect_b32 s{S_KW}, 0, s{S_KW}""")
    else:
        A(f"s_add_u32 m0, s{S_T0+8}, {SLOT}\ns_nop 0")
        for h in range(4):
            A(f"buffer_load_dwordx4 v{6+h}, s[{SRD_WB}:{SRD_WB+3}], s{S_KX} offen offset:{1024*h} lds")
        A(f"s_add_u32 m0, m0, 4096\ns_nop 0\nbuffer_load_dwordx4 v10, s[{SRD_WB}:{SRD_WB+3}], s{S_KX} offen lds")
    A(f"""s_add_u32 s{S_KX}, s{S_KX}, 128
    s_cmp_eq_u32 s{S_KX}, 1280
    s_cselect_b32 s{S_KX}, 0, s{S_KX}""")
    if C0:
        A(f"""s_add_u32 s{S_T0}, s{S_ROT}, 1
        s_lshl_b32 s{S_KX}, s{S_T0}, 7
        s_mul_i32 s{S_KW}, s{S_T0}, {64*3072}""")
    late_scalars()
    declare_dma()
    ts(1, 2)
    for u in range(2, 5):
        call_sub(False)
    nonce_load()
    if OPT.get("solo", 0) >= 2:
        for u in range(5, 20):
            call_sub()
        A(f"s_mov_b32 s{S_T0+6}, 1")
        declare_dma(S_T0 + 6)
        A("s_waitcnt vmcnt(0)")
        ts_flush(100)
        A("s_endpgm")
    A(f"s_branch L_{kind}_loader")
    issue_sub(kind)

GW = OPT.get('gw', 19)
def g1_main(jobs, gran_loads_, gran_work, nstep, early=None):
    for u in range(5, 20):
        if u == GW:
            A(f"s_setprio {OPT.get('pls', 3)}")
            gran_work()
            A("s_setprio 0")
        call_sub()
        if u >= 6 and u % 2 == 0 or u >= 10:
            jobs.step(nstep)
        if early and u >= 20 - early.n:
            early.step()
        if u == GW - 3:
            assert not jobs.q
            gran_loads_()
    A(f"s_add_u32 s{S_T0+6}, s{S_S2}, 1")
    declare_dma(S_T0 + 6)

def finish():
    A("s_barrier")
    bump_epoch(200)
    ts(9, 2)
    ts_flush(100)
    A("s_endpgm")
    flush_slow()

mark = head_begin()
A(f"s_cmp_eq_u32 s{S_J}, 0\ns_cbranch_scc1 L_ssm_head")
rowpat_load(2, 10, False)
A(f"""s_mul_i32 s{S_T0}, s{S_C}, 163840
s_mul_i32 s{S_T0+1}, s{S_LW}, {32*1280}
s_add_u32 s{S_T0}, s{S_T0}, s{S_T0+1}
v_add_u32 v2, s{S_T0}, v2
v_add_u32 v3, s{S_T0}, v3
v_add_u32 v4, {16*1280-2048}, v2
v_add_u32 v5, {16*1280-2048}, v3
v_lshrrev_b32 v10, 4, v{VL}
s_and_b32 s{S_T0}, s{S_LW}, 1
s_lshl_b32 s{S_T0}, s{S_T0}, 2
v_or_b32 v11, s{S_T0}, v10                ; swizzle
v_lshlrev_b32 v11, 1, v11
v_and_b32 v6, 15, v{VL}
v_xor_b32 v11, v11, v6
v_mul_u32_u24 v10, 3072, v10
v_lshl_add_u32 v10, v11, 4, v10
s_mul_i32 s{S_T0}, s{S_LW}, {8*3072}
s_lshl_b32 s{S_T0+1}, s{S_CB}, 8
s_add_u32 s{S_T0}, s{S_T0}, s{S_T0+1}
v_add_u32 v6, s{S_T0}, v10
v_add_u32 v7, {4*3072-1024}, v6
s_mul_i32 s{S_KX}, s{S_ROT}, {0 if C0 else 128}
s_mul_i32 s{S_KW}, s{S_ROT}, {0 if C0 else 64*3072}
s_lshl_b32 s{S_T0+9}, s{S_LW}, 12
s_lshl_b32 s{S_T0+8}, s{S_LW}, 11
s_add_u32 s{S_T0+8}, s{S_T0+8}, {WRING}
s_mov_b32 m0, s{S_T0+9}
s_waitcnt lgkmcnt(0)
s_load_dword s{S_K}, s[{S_X}:{S_X+1}], 0""")
srd(SRD_X, S_X, 2621440)
for h in range(4):
    A(f"buffer_load_dwordx4 v{2+h}, s[{SRD_X}:{SRD_X+3}], s{S_KX} offen offset:{1024*h} lds")
srd(SRD_WA, S_W1, 1966080)
srd(SRD_WB, S_W3, 1966080)
for mat, sd in enumerate((SRD_WA, SRD_WB)):
    A(f"s_add_u32 m0, s{S_T0+8}, {mat*8192}\ns_nop 0")
    for h in range(2):
        A(f"buffer_load_dwordx4 v{6+h}, s[{sd}:{sd+3}], s{S_KW} offen offset:{1024*h} lds")
head_rest("mlp")
head_end(mark)
A.label("L_mlp_loader")
vm = NOQ
GA, GD = 18, 22
def gran_loads():
    for i in range(4):
        cap()
        A(f"global_load_dwordx4 v[{GD+4*i}:{GD+3+4*i}], v{GA+i}, s[{S_WS}:{S_WS+1}] sc1")
def mlp_setup3():
    A(f"""s_mul_i32 s{S_T0}, s{S_LW}, {1536*8}
    s_lshl_b32 s{S_T0+1}, s{S_CB}, 10
    s_add_u32 s{S_T0}, s{S_T0}, s{S_T0+1}
    s_add_u32 s{S_T0}, s{S_T0}, {WS_CSW}
    s_lshl_b32 s{S_T0+1}, s{S_C}, 10
    s_add_u32 s{S_T0+1}, s{S_T0+1}, {WS_STAT}
    s_cmp_ge_u32 s{S_LW}, 2
    s_cselect_b32 s{S_T0}, s{S_T0+1}, s{S_T0}
    s_cselect_b32 s{S_T0+1}, 0, {3072*8}
    v_lshlrev_b32 v{GA}, 4, v{VL}
    v_add_u32 v{GA}, s{S_T0}, v{GA}
    v_add_u32 v{GA+1}, s{S_T0+1}, v{GA}
    v_add_u32 v{GA+2}, s{S_T0+1}, v{GA+1}
    v_add_u32 v{GA+3}, s{S_T0+1}, v{GA+2}""")
def mlp_gran():
    if True:
        vm.wait("gran")
        lr, lo, lskip, lstat = A.newlabel("L_gr"), A.newlabel("L_gr"), A.newlabel("L_gr"), A.newlabel("L_gr")
        A(f"s_cmp_eq_u32 s{S_LW}, 2\ns_cbranch_scc1 {lskip}")
        A.label(lr)
        A(f"s_mov_b64 s[{S_M0}:{S_M0+1}], 0")
        for i in range(8):
            A(f"v_cmp_ne_u32 vcc, s{S_NONCE}, v{GD+1+2*i}\ns_nop 1\ns_or_b64 s[{S_M0}:{S_M0+1}], s[{S_M0}:{S_M0+1}], vcc")
        A(f"s_cmp_eq_u64 s[{S_M0}:{S_M0+1}], 0\ns_cbranch_scc1 {lo}")
        gran_loads()
        A("s_waitcnt vmcnt(0)")
        spin_tail(lr, lo, 5)
        A.label(lo)
        A(f"s_cmp_eq_u32 s{S_LW}, 3\ns_cbranch_scc1 {lstat}")
        A(f"""v_add_f32 v{GD}, v{GD}, v{GD+4}
        v_add_f32 v{GD+2}, v{GD+2}, v{GD+6}
        v_add_f32 v{GD+8}, v{GD+8}, v{GD+12}
        v_add_f32 v{GD+10}, v{GD+10}, v{GD+14}
        v_add_f32 v{GD}, v{GD}, v{GD+8}
        v_add_f32 v{GD+1}, v{GD+2}, v{GD+10}
        s_lshl_b32 s{S_T0}, s{S_LW}, 9
        s_add_u32 s{S_T0}, s{S_T0}, {M_CS}
        v_lshlrev_b32 v{GD+2}, 3, v{VL}
        v_add_u32 v{GD+2}, s{S_T0}, v{GD+2}
        ds_write_b64 v{GD+2}, v[{GD}:{GD+1}]
        s_branch {lskip}""")
        A.label(lstat)
        for hrow, p in ((0, GD), (1, GD + 2)):
            o = GD + 4 + 4 * hrow
            A(f"""v_and_b32 v{o+2}, 0xffff0000, v{p}
            v_lshlrev_b32 v{o}, 16, v{p}
            v_rcp_f32 v{o+1}, v{o+2}
            v_mul_f32 v{o+2}, v{o+2}, v{o+2}
            v_mul_f32 v{o+1}, {NLOG2E}, v{o+1}""")
        A(f"""v_lshlrev_b32 v{GD+2}, 5, v{VL}
        v_add_u32 v{GD+2}, {M_ROW}, v{GD+2}
        ds_write_b128 v{GD+2}, v[{GD+4}:{GD+7}]
        ds_write_b128 v{GD+2}, v[{GD+8}:{GD+11}] offset:16""")
        A.label(lskip)
        A("s_waitcnt lgkmcnt(0)")

nonce_ready()
def only2(fn):
    l = A.newlabel("L_nc")
    A(f"s_cmp_lg_u32 s{S_LW}, 2\ns_cbranch_scc1 {l}")
    fn()
    A.label(l)
    return
    yield
def one(fn):
    fn()
    return
    yield
jobs = Jobs()
jobs.add(one(mlp_setup3))
jobs.add(one(lambda: g2_setup(6, 232)))
def mg():
    mlp_gran()
MB = [40, 104, 168, 40, 104, 168]
T1 = OPT.get("thr1", CAP)
class Early:
    def __init__(self):
        self.n, self.ch = OPT.get("en", 0), OPT.get("ech", 2)
        def both():
            yield from g2_load(0, MB[0], CAP)
            yield
            yield from g2_load(1, MB[1], CAP)
        self.g = both()
    def step(self):
        for _ in range(self.ch):
            next(self.g, None)
early = Early()
g1_main(jobs, gran_loads, mg, 1, early)
ts(47, 2)
run(early.g)
A(f"s_lshl_b32 s{S_SLOT}, s{S_S2}, 14")
if OPT.get("ord", 0):
    run(g2_load(2, MB[2], T1))
    g2_put(0, MB[0], 32, 20)
else:
    g2_put(0, MB[0], 16, 20, g2_load(2, MB[2], T1))
g2_put(1, MB[1], 16, 20, g2_load(3, MB[3], T1))
run(g2_load(4, MB[4], THR))
g2_put(2, MB[2], 32, 20)
la = A.newlabel("L_k")
A(f"s_cmp_ge_u32 s{S_S2}, 14\ns_cbranch_scc1 {la}")
g2_put(3, MB[3], 16, 20, g2_load(5, MB[5], OPT.get('thr5', THR)))
A(f"s_branch {la}b")
A.label(la)
g2_put(3, MB[3], 16, 20)
A.label(f"{la}b")
A(f"s_cmp_lg_u32 s{S_S2}, 19\ns_cbranch_scc1 {la}c")
poll_until()
A.label(f"{la}c")
g2_put(4, MB[4], 0, 20)
A(f"s_cmp_ge_u32 s{S_S2}, 22\ns_cbranch_scc1 {la}x")
g2_put(5, MB[5], 0, 20)
A.label(f"{la}x")
finish()

mark = head_begin()
A.label("L_ssm_head")
rowpat_load(2, 14, True)
rowpat_load(6, 14, False)
A(f"""s_mul_i32 s{S_T0}, s{S_C}, 163840
s_lshr_b32 s{S_T0+1}, s{S_LW}, 1
s_mul_i32 s{S_T0+1}, s{S_T0+1}, {64*1280}
s_add_u32 s{S_T0}, s{S_T0}, s{S_T0+1}
s_and_b32 s{S_T0+1}, s{S_LW}, 1
s_mul_i32 s{S_T0+1}, s{S_T0+1}, {4*1280}
s_add_u32 s{S_T0}, s{S_T0}, s{S_T0+1}
v_add_u32 v2, s{S_T0}, v2
v_add_u32 v3, s{S_T0}, v3
v_add_u32 v4, {2*1280-2048}, v2
v_add_u32 v5, {2*1280-2048}, v3""")
A(f"""v_add_u32 v7, {1024-8*1280 & 0xffffffff}, v7
s_mul_i32 s{S_T0}, s{S_CB}, {160*1280}
s_mul_i32 s{S_T0+1}, s{S_LW}, {40*1280}
s_add_u32 s{S_T0}, s{S_T0}, s{S_T0+1}
s_bitcmp1_b32 s{S_LW}, 0
s_cselect_b64 vcc, -1, 0
v_add_u32 v6, s{S_T0}, v6
v_add_u32 v7, s{S_T0}, v7
v_cndmask_b32 v12, v6, v7, vcc
v_cndmask_b32 v13, v7, v6, vcc
v_mov_b32 v6, v12
v_add_u32 v7, {8*1280-1024}, v13
v_add_u32 v8, {16*1280-2048}, v12
v_add_u32 v9, {24*1280-3072}, v13
v_add_u32 v10, {32*1280}, v12
s_mul_i32 s{S_KX}, s{S_ROT}, {0 if C0 else 128}
s_lshl_b32 s{S_T0+9}, s{S_LW}, 12
s_mul_i32 s{S_T0+8}, s{S_LW}, 5120
s_add_u32 s{S_T0+8}, s{S_T0+8}, {WRING}
s_mov_b32 m0, s{S_T0+9}
s_waitcnt lgkmcnt(0)
s_load_dword s{S_K}, s[{S_X}:{S_X+1}], 0""")
srd(SRD_X, S_X, 2621440)
for h in range(4):
    A(f"buffer_load_dwordx4 v{2+h}, s[{SRD_X}:{SRD_X+3}], s{S_KX} offen offset:{1024*h} lds")
srd(SRD_WA, S_BRE, 819200)
srd(SRD_WB, S_BIM, 819200)
A(f"s_mov_b32 m0, s{S_T0+8}\ns_nop 0")
for h in range(4):
    A(f"buffer_load_dwordx4 v{6+h}, s[{SRD_WA}:{SRD_WA+3}], s{S_KX} offen offset:{1024*h} lds")
A(f"s_add_u32 m0, m0, 4096\ns_nop 0\nbuffer_load_dwordx4 v10, s[{SRD_WA}:{SRD_WA+3}], s{S_KX} offen lds")
head_rest("ssm")
head_end(mark)
A.label("L_ssm_loader")
CN = 212
LR, LI = 214, 215
L8, L128, KL = 216, 218, 220
def const_loads():
    A(f"""s_lshl_b32 s{S_T0}, s{S_LW}, 6
    v_add_u32 v{CN}, s{S_T0}, v{VL}
    v_min_u32 v{CN}, 159, v{CN}
    s_mul_i32 s{S_T0}, s{S_CB}, 160
    v_add_u32 v110, s{S_T0}, v{CN}
    v_lshlrev_b32 v110, 1, v110
    global_load_ushort v111, v110, s[{S_LRE}:{S_LRE+1}]
    global_load_ushort v112, v110, s[{S_LIM}:{S_LIM+1}]
    global_load_ushort v113, v110, s[{S_LDT}:{S_LDT+1}]""")
def ssm_setup3():
  A(f"""v_cmp_le_u32 vcc, 80, v{CN}
v_mov_b32 v41, 0
v_mov_b32 v42, {640-160}
v_cndmask_b32 v41, v41, v42, vcc
v_lshl_add_u32 v41, v{CN}, 1, v41
s_mul_i32 s{S_T0}, s{S_CB}, 160
v_add_u32 v41, s{S_T0}, v41
v_lshlrev_b32 v41, 3, v41
v_add_u32 v41, {WS_CSB}, v41
s_lshl_b32 s{S_T0+1}, s{S_C}, 10
s_add_u32 s{S_T0+1}, s{S_T0+1}, {WS_STAT}
v_lshlrev_b32 v40, 4, v{VL}
v_add_u32 v40, s{S_T0+1}, v40
s_cmp_eq_u32 s{S_LW}, 3
s_cselect_b64 vcc, -1, 0
s_nop 1
v_cndmask_b32 v40, v41, v40, vcc""")
def cmul(d, a, b, t):
    A(f"""v_mul_f32 v{t}, v{a+1}, v{b+1}
    v_mul_f32 v{t+1}, v{a+1}, v{b}
    v_fma_f32 v{t}, v{a}, v{b}, -v{t}
    v_fma_f32 v{d+1}, v{a}, v{b+1}, v{t+1}
    v_mov_b32 v{d}, v{t}""")
def ssm_consts():
    A(f"""v_lshlrev_b32 v111, 16, v111
    v_lshlrev_b32 v112, 16, v112
    v_lshlrev_b32 v113, 16, v113
    v_mul_f32 v113, {LOG2E}, v113
    v_exp_f32 v113, v113
    v_mul_f32 v114, v111, v111
    v_fma_f32 v114, v112, v112, v114
    v_cvt_pk_bf16_f32 v113, v113, v113
    v_lshlrev_b32 v113, 16, v113              ; dt
    v_rcp_f32 v114, v114
    v_mul_f32 v115, v113, v111
    v_mul_f32 v116, v113, v112
    v_mul_f32 v115, {LOG2E}, v115
    v_mul_f32 v116, 0.15915494, v116
    v_exp_f32 v115, v115
    v_rndne_f32 v117, v116
    v_sub_f32 v116, v116, v117
    v_cos_f32 v117, v116
    v_sin_f32 v116, v116
    v_add_f32 v114, v114, v114
    v_mul_f32 v{LR}, v115, v117
    v_mul_f32 v{LI}, v115, v116
    v_add_f32 v115, -1.0, v{LR}
    v_mul_f32 v116, v{LI}, v112
    v_fma_f32 v116, v115, v111, v116
    v_mul_f32 v117, v115, v112
    v_fma_f32 v117, v{LI}, v111, -v117        ; Im
    v_mul_f32 v118, v116, v114
    v_mul_f32 v119, -v117, v114
    v_lshlrev_b32 v120, 3, v{CN}
    v_add_u32 v120, {M_LAM}, v120
    ds_write_b64 v120, v[{LR}:{LI}]
    ds_write_b64 v120, v[118:119] offset:{M_COEF-M_LAM}
    v_mul_f32 v{KL}, v118, v{LR}
    v_fma_f32 v{KL}, v119, v{LI}, v{KL}
    v_mul_f32 v{KL+1}, v119, v{LR}
    v_fma_f32 v{KL+1}, -v118, v{LI}, v{KL+1}""")
    yield
    cmul(L8, LR, LR, 114)
    cmul(L8, L8, L8, 114)
    cmul(L8, L8, L8, 114)
    cmul(L128, L8, L8, 114)
    for i in range(3):
        cmul(L128, L128, L128, 114)
def ssm_gran():
    if True:
        vm.wait("gran")
        lr, lo, lskip, lstat = A.newlabel("L_gr"), A.newlabel("L_gr"), A.newlabel("L_gr"), A.newlabel("L_gr")
        A.label(lr)
        A(f"""v_cmp_ne_u32 vcc, s{S_NONCE}, v45
        v_cmp_ne_u32 s[{S_M0}:{S_M0+1}], s{S_NONCE}, v47
        s_nop 1
        s_or_b64 s[{S_M0}:{S_M0+1}], s[{S_M0}:{S_M0+1}], vcc
        s_cmp_eq_u64 s[{S_M0}:{S_M0+1}], 0
        s_cbranch_scc1 {lo}
        global_load_dwordx4 v[44:47], v40, s[{S_WS}:{S_WS+1}] sc1
        s_waitcnt vmcnt(0)""")
        spin_tail(lr, lo, 6)
        A.label(lo)
        A(f"""s_cmp_eq_u32 s{S_LW}, 3
        s_cbranch_scc1 {lstat}
        v_mov_b32 v45, v46
        v_lshlrev_b32 v46, 3, v{CN}
        v_add_u32 v46, {M_CS}, v46
        ds_write_b64 v46, v[44:45]
        s_branch {lskip}""")
        A.label(lstat)
        A(f"""v_and_b32 v48, 0xffff0000, v44
        v_and_b32 v49, 0xffff0000, v46
        v_rcp_f32 v48, v48
        v_rcp_f32 v49, v49
        v_lshlrev_b32 v44, 16, v44
        v_lshlrev_b32 v46, 16, v46
        v_and_b32 v50, 32, v{VL}
        v_lshlrev_b32 v50, 1, v50
        v_and_b32 v51, 3, v{VL}
        v_lshl_add_u32 v50, v51, 4, v50
        v_bfe_u32 v51, v{VL}, 3, 2
        v_lshl_add_u32 v50, v51, 2, v50
        v_bfe_u32 v51, v{VL}, 2, 1
        v_add_u32 v50, v50, v51
        v_lshlrev_b32 v50, 2, v50
        v_add_u32 v50, {M_ROW}, v50
        ds_write2_b32 v50, v44, v46 offset0:0 offset1:2
        ds_write2_b32 v50, v48, v49 offset0:128 offset1:130""")
        A.label(lskip)
        A("s_waitcnt lgkmcnt(0)")

nonce_ready()
const_loads()
jobs = Jobs()
jobs.add(one(lambda: None))
jobs.add(ssm_consts())
jobs.add(one(ssm_setup3))
jobs.add(one(lambda: g2_setup(2, 232)))
def gs():
    A(f"global_load_dwordx4 v[44:47], v40, s[{S_WS}:{S_WS+1}] sc1")
g1_main(jobs, gs, ssm_gran, 1)
A(f"s_lshl_b32 s{S_SLOT}, s{S_S2}, 14")
SB = [44, 44, 108, 172, 44, 108]
run(g2_load(0, SB[0], CAP))
g2_put(0, SB[0], 0, 20)
if not OPT.get("l1late", 0):
    run(g2_load(1, SB[1], 16))
A("s_setprio 3\ns_barrier")
ts(4, 2)
lmid = A.newlabel("L_mid")
A(f"s_cmp_eq_u32 s{S_LW}, 3\ns_cbranch_scc1 {lmid}")
ME = 112
ML = 144
MT = 204
A(f"""v_lshlrev_b32 v{MT}, 3, v{CN}
v_add_u32 v{MT}, {E_BASE}, v{MT}""")
for j in range(16):
    A(f"ds_read_b64 v[{ME+2*j}:{ME+2*j+1}], v{MT} offset:{j*1280}")
A(f"""s_lshl_b32 s{S_T0}, s{S_CB}, 4
s_mul_i32 s{S_T0}, s{S_T0}, 2560
s_add_u32 s{S_T0}, s{S_T0}, {WS_SCAN}
v_lshlrev_b32 v{MT+1}, 4, v{CN}
v_add_u32 v{MT+1}, s{S_T0}, v{MT+1}
s_mul_i32 s{S_T0}, s{S_C}, 2560
v_add_u32 v{MT+2}, s{S_T0}, v{MT+1}
v_mov_b32 v{MT+5}, s{S_NONCE}
v_mov_b32 v{MT+7}, s{S_NONCE}""")
def cfma(d, a, b, c, conj_a=False, conj_b=False):
    nb = " neg_hi:[0,1,0]" if conj_b else ""
    if c is None:
        A(f"v_pk_mul_f32 v[{d}:{d+1}], v[{a}:{a+1}], v[{b}:{b+1}] op_sel_hi:[0,1]" + (" neg_hi:[0,1]" if conj_b else ""))
        c = d
    else:
        A(f"v_pk_fma_f32 v[{d}:{d+1}], v[{a}:{a+1}], v[{b}:{b+1}], v[{c}:{c+1}] op_sel_hi:[0,1,1]{nb}")
    slo = 1 ^ conj_a ^ conj_b
    shi = int(conj_a)
    A(f"v_pk_fma_f32 v[{d}:{d+1}], v[{a}:{a+1}], v[{b}:{b+1}], v[{d}:{d+1}] op_sel:[1,1,0] op_sel_hi:[1,0,1] neg_lo:[{slo},0,0] neg_hi:[{shi},0,0]")
for j in range(1, 16):
    if j in (1, 5, 9, 13):
        A(f"s_waitcnt lgkmcnt({max(0, 11 - j + 1 - 0) if j < 13 else 0})")
    cfma(ME + 2 * j, L8, ME + 2 * j - 2, ME + 2 * j)
A(f"""v_mov_b32 v{MT+4}, v{ME+30}
v_mov_b32 v{MT+6}, v{ME+31}
global_store_dwordx4 v{MT+2}, v[{MT+4}:{MT+7}], s[{S_WS}:{S_WS+1}] {['sc1', 'sc0 sc1', 'sc1 nt'][OPT.get('lbs', 0)]}""")
ts(5, 2)
lr, lo, lld, lck, lh = [A.newlabel("L_lb") for _ in range(5)]
def lb_loads(lbl):
    A(f"v_mov_b32 v{MT+3}, v{MT+1}")
    for k in range(15):
        A(f"""s_cmp_le_u32 s{S_C}, {k}
        s_cbranch_scc1 {lbl}
        global_load_dwordx4 v[{ML+4*k}:{ML+4*k+3}], v{MT+3}, s[{S_WS}:{S_WS+1}] {['sc1', 'sc0 sc1', 'sc1 nt', 'sc0 sc1 nt'][OPT.get('lbm', 0)]}
        v_add_u32 v{MT+3}, 2560, v{MT+3}""")
    A.label(lbl)
if not OPT.get("lbd", 1):
    lb_loads(lld)
for j in range(15, 0, -1):
    cfma(ME + 2 * j, KL, ME + 2 * j - 2, None, conj_b=True)
MP = 16
A(f"v_mov_b32 v{MP+2}, v{L8}\nv_sub_f32 v{MP+3}, 0, v{L8+1}")
for j in range(2, 14):
    cfma(MP + 2 * j, MP + 2, MP + 2 * j - 2, None)
A(f"v_mov_b32 v{ME}, 0\nv_mov_b32 v{ME+1}, 0")
if OPT.get("lbd", 1):
    if OPT.get("lbd", 1) > 1:
        A(f"s_sleep {OPT['lbd']}")
    lb_loads(lld)
A.label(lr)
A(f"s_waitcnt vmcnt(0)\ns_mov_b64 s[{S_M0}:{S_M0+1}], 0")
for k in range(15):
    A(f"""s_cmp_le_u32 s{S_C}, {k}
    s_cbranch_scc1 {lck}
    v_cmp_ne_u32 vcc, s{S_NONCE}, v{ML+4*k+1}
    v_cmp_ne_u32 s[{S_M1}:{S_M1+1}], s{S_NONCE}, v{ML+4*k+3}
    s_nop 1
    s_or_b64 s[{S_M0}:{S_M0+1}], s[{S_M0}:{S_M0+1}], vcc
    s_or_b64 s[{S_M0}:{S_M0+1}], s[{S_M0}:{S_M0+1}], s[{S_M1}:{S_M1+1}]""")
A.label(lck)
A(f"s_cmp_eq_u64 s[{S_M0}:{S_M0+1}], 0\ns_cbranch_scc1 {lo}")
lb_loads(A.newlabel("L_lb"))
spin_tail(lr, lo, 7)
A.label(lo)
ts(6, 2)
H = MT + 4
A(f"v_mov_b32 v{H}, 0\nv_mov_b32 v{H+1}, 0")
for k in range(15):
    g = ML + 4 * k
    A(f"""s_cmp_le_u32 s{S_C}, {k}
    s_cbranch_scc1 {lh}
    v_mov_b32 v{g+1}, v{g+2}""")
    cfma(g, L128, H, g)
    A(f"v_mov_b64 v[{H}:{H+1}], v[{g}:{g+1}]")
A.label(lh)
Q = MT + 6
cfma(Q, KL, H, None, conj_b=True)
A(f"v_pk_add_f32 v[{ME}:{ME+1}], v[{ME}:{ME+1}], v[{Q}:{Q+1}]")
A(f"ds_write_b64 v{MT}, v[{ME}:{ME+1}]")
for j in range(1, 16):
    d = ME + 2 * j
    if j == 14:
        cfma(H, MP + 4, Q, None)
    if j < 14:
        cfma(d, MP + 2 * j, Q, d)
    else:
        cfma(d, MP + 2 * (j - 2), H, d)
    A(f"ds_write_b64 v{MT}, v[{d}:{d+1}] offset:{j*1280}")
A("s_waitcnt lgkmcnt(0)")
A.label(lmid)
A("s_setprio 0\ns_barrier")
ts(7, 2)
SC = OPT.get("scap", 2)
if OPT.get("l1late", 0):
    run(g2_load(1, SB[1], SC))
run(g2_load(2, SB[2], SC))
run(g2_load(3, SB[3], OPT.get("scap2", 3)))
A(f"s_cmp_lt_u32 s{S_S2}, 5\ns_cselect_b32 s{S_T0+5}, 20, 21")
g2_put(1, SB[1], 32, f"s{S_T0+5}")
g_ = g2_load(4, SB[4], 6)
for _ in range(8):
    next(g_)
g2_put(2, SB[2], 24, 21, g_)
lpu = A.newlabel("L_k")
A(f"s_cmp_lg_u32 s{S_S2}, 15\ns_cbranch_scc1 {lpu}")
poll_until()
A.label(lpu)
la = A.newlabel("L_k")
A(f"s_cmp_ge_u32 s{S_S2}, 14\ns_cbranch_scc1 {la}")
g2_put(3, SB[3], 16, 21, g2_load(5, SB[5], 6))
g2_put(4, SB[4], 16, 21)
g2_put(5, SB[5], 0, 21)
A(f"s_branch {la}x")
A.label(la)
g2_put(3, SB[3], 16, 21)
g2_put(4, SB[4], 0, 21)
A.label(f"{la}x")
finish()

A.label("L_end")
A("s_endpgm")
A.label("L_code_end")
A.lines[HEADPOS:HEADPOS] = HEADS
A.lines.insert(0, "L_code_start:")

hdr = open(os.path.join(os.path.dirname(__file__), "header.txt")).read()
print(hdr + f"""; @launch grid=(256,1,1) block=(512,1,1) lds=163840
.amdgcn_target "amdgcn-amd-amdhsa--gfx950"
.text
.globl {KNAME}
.p2align 8
.type {KNAME},@function
{KNAME}:""")
print(A.text(), end="")
print(f""".section .rodata,"a"
.p2align 6
.amdhsa_kernel {KNAME}
  .amdhsa_next_free_vgpr 256
  .amdhsa_next_free_sgpr 102
  .amdhsa_accum_offset 256
  .amdhsa_group_segment_fixed_size 0
  .amdhsa_kernarg_size 128
  .amdhsa_user_sgpr_count 2
  .amdhsa_user_sgpr_kernarg_segment_ptr 1
  .amdhsa_system_sgpr_workgroup_id_x 1
.end_amdhsa_kernel""")
```

```python
import sys, os
sys.path.insert(0, os.path.dirname(__file__))
from asmlib import Asm, Queue, vr, sr

OPT = dict(ts=0, stop=0, DA=3, D1=4, D1S=5, timeout=1 << 20, nodma=0, nomfma=0, nobar=0, noread=0, rot=8, rot2=1, pf=0, stash=8, sg1=12, amod=1)
for a in sys.argv[1:]:
    k, v = a.split("=")
    OPT[k] = int(v)
P0 = OPT.get("p0", 3)
TS = OPT["ts"]; STOP = OPT["stop"]; DA = OPT["DA"]; D1 = OPT["D1"]

KNAME = "parallel_sum__ssm_conv_s5__glu_gated_swiglu__prompt_kernel"

WS_E = 0
WS_FLAG = 0x1000
WS_STAT = 0x4000
WS_CSB = 0x8000
WS_CSW = 0x10000
WS_SCAN = 0x40000
WS_TAB = 0x80000
WS_ACT = 0x100000
WS_TS = 0x1000000

MISC = 151552
WRING = 49152
SCR = 131072
M_ROW = MISC
M_CS = MISC + 2048
M_LAM = MISC + 3584
M_COEF = MISC + 4864
E_BASE = 81920
TR_BASE = 102400

S_X, S_LRE, S_LIM, S_BRE, S_BIM, S_CRE, S_CIM, S_LDT = 4, 6, 8, 10, 12, 14, 16, 18
S_DSK, S_W1, S_W3, S_W2, S_OUT, S_DBG, S_WS = 20, 24, 26, 28, 30, 32, 34
SRD_X, SRD_WA, SRD_WB, SRD_W2, SRD_C, SRD_T = 36, 40, 44, 48, 52, 56
S_XCD, S_IDX, S_C, S_J, S_CB, S_WAVE, S_NONCE = 60, 61, 62, 63, 64, 65, 66
S_HB2, S_DCOL, S_TG = 67, 68, 23
S_ONES = 69
S_T0 = 70
S_SLOT, S_KX, S_KW, S_CNT, S_DELTA = 80, 81, 82, 83, 84
S_AB = 86
S_M0, S_M1 = 88, 90
S_EX = 92
S_TO = 94
S_TS = 96
S_ROT, S_R2A, S_R2B, S_KB, S_KS = 95, 98, 99, 100, 101

A = Asm()
LOG2E = 0x3fb8aa3b
NLOG2E = 0xbfb8aa3b

def ts(idx, vtmp):
    if not TS:
        return

    A(f"""s_memrealtime s[{S_TS}:{S_TS+1}]
    s_waitcnt lgkmcnt(0)
    v_writelane_b32 v255, s{S_TS}, {idx}""")

def tc(idx):
    if not TS:
        return
    A(f"""s_memtime s[{S_TS}:{S_TS+1}]
    s_waitcnt lgkmcnt(0)
    v_writelane_b32 v255, s{S_TS}, {idx}""")

def ts_flush(vtmp):
    if not TS:
        return
    A(f"""s_lshl_b32 s{S_T0}, s2, 3
    s_add_u32 s{S_T0}, s{S_T0}, s{S_WAVE}
    s_lshl_b32 s{S_T0}, s{S_T0}, 8
    s_add_u32 s{S_T0}, s{S_T0}, {WS_TS}
    v_lshlrev_b32 v{vtmp}, 2, v{VL}
    v_add_u32 v{vtmp}, s{S_T0}, v{vtmp}
    global_store_dword v{vtmp}, v255, s[{S_WS}:{S_WS+1}]""")

def srd(d, p, nbytes):
    A(f"""s_mov_b32 s{d}, s{p}
    s_mov_b32 s{d+1}, s{p+1}
    s_mov_b32 s{d+2}, {nbytes}
    s_mov_b32 s{d+3}, 0x20000""")

def srd_sel(d, p1, p0, nbytes):
    A(f"""s_cselect_b32 s{d}, s{p1}, s{p0}
    s_cselect_b32 s{d+1}, s{p1+1}, s{p0+1}
    s_mov_b32 s{d+2}, {nbytes}
    s_mov_b32 s{d+3}, 0x20000""")

def spin_tail(lbl_retry, lbl_ok, code):
    A(f"""s_sleep {OPT.get('nap', 1) if code == 2 else 1}
    s_sub_u32 s{S_TO}, s{S_TO}, 1
    s_cmp_lg_u32 s{S_TO}, 0
    s_cbranch_scc1 {lbl_retry}
    s_mov_b32 s{S_TO}, 1""")

VL = 254
VFO = 253
FLG = MISC + 6144
FREE, AUX = FLG + 2048, FLG + 4096
S_K = 3
S_FR = 86
S_LMT = 85
SRD_F = 52
VZ = 252
SLOW = []
def flag_test(need, vD, vP, off, pre=None, anylane=False, acc=None, nap=0, split=False):
    ls, lb, lr = A.newlabel("L_sw"), A.newlabel("L_bk"), A.newlabel("L_sr")
    cmp_ = f"v_cmp_ne_u32 vcc, s{S_K}, v{vD}"
    A(f"s_cbranch_vccnz {ls}" if split else f"{cmp_}\ns_cbranch_vccnz {ls}")
    A.label(lb)
    mark = len(A.lines)
    A.label(ls)
    if TS and acc is not None:
        A(f"s_memtime s[{S_TS}:{S_TS+1}]\ns_waitcnt lgkmcnt(0)\ns_sub_u32 s{acc}, s{acc}, s{S_TS}\ns_add_u32 s{acc+1}, s{acc+1}, 1")
        lb2 = lb
        lb = A.newlabel("L_b2")
    A.label(lr)
    if nap:
        A(f"s_sleep {nap}")
    A(f"""ds_read_b32 v{vD}, v{vP} offset:{off}
    s_waitcnt lgkmcnt(0)
    {cmp_}
    s_cbranch_vccz {lb}
    s_sub_u32 s{S_TO}, s{S_TO}, 1
    s_cmp_lg_u32 s{S_TO}, 0
    s_cbranch_scc1 {lr}
    s_mov_b32 s{S_TO}, 1
    s_branch {lb}""")
    if TS and acc is not None:
        A.label(lb)
        A(f"s_memtime s[{S_TS}:{S_TS+1}]\ns_waitcnt lgkmcnt(0)\ns_add_u32 s{acc}, s{acc}, s{S_TS}\ns_branch {lb2}")
    SLOW.extend(A.lines[mark:])
    del A.lines[mark:]
def flag_wait(need, vD, vP, rel=0, nap=0):
    off = rel + 4 * need
    A(f"ds_read_b32 v{vD}, v{vP} offset:{off}\ns_waitcnt lgkmcnt(0)")
    flag_test(need, vD, vP, off, nap=nap)
def flush_slow():
    A.lines.extend(SLOW)
    SLOW.clear()
def flag_init(base, wave_sgpr, vP, peer, aux):
    A(f"""s_lshl_b32 s{S_T0}, s{wave_sgpr}, 9
    s_add_u32 s{S_T0}, s{S_T0}, {base}
    v_lshlrev_b32 v{VFO}, 2, v{VL}
    v_add_u32 v{VFO}, s{S_T0}, v{VFO}
    v_mov_b32 v{VZ}, 0
    s_waitcnt lgkmcnt(0)
    v_not_b32 v{vP}, s{S_K}
    ds_write2st64_b32 v{VFO}, v{vP}, v{vP} offset0:0 offset1:1""")
    if aux:
        A(f"""s_lshl_b32 s{S_T0+1}, s{wave_sgpr}, 8
        v_lshlrev_b32 v{aux}, 2, v{VL}
        v_add_u32 v{aux}, s{S_T0+1}, v{aux}
        v_add_u32 v{aux}, {AUX}, v{aux}
        ds_write_b32 v{aux}, v{VZ}""")
    peer_addr(vP, peer)
    A("s_waitcnt lgkmcnt(0)\ns_barrier")
def peer_addr(vP, peer):
    A(f"""v_and_b32 v{vP}, 3, v{VL}
    v_lshlrev_b32 v{vP}, 9, v{vP}
    v_add_u32 v{vP}, {peer + 252}, v{vP}""")


S_LW = 85
A(f"""s_cmp_ge_u32 s2, 256
s_cbranch_scc1 L_end
s_load_dwordx16 s[4:19], s[0:1], 0
s_load_dwordx16 s[20:35], s[0:1], 64
v_lshrrev_b32 v1, 6, v0
v_and_b32 v{VL}, 63, v0
s_and_b32 s{S_XCD}, s2, 7
v_readfirstlane_b32 s{S_WAVE}, v1
s_lshr_b32 s{S_IDX}, s2, 3
s_and_b32 s{S_T0}, s{S_XCD}, 1
s_lshl_b32 s{S_T0}, s{S_T0}, 3
s_and_b32 s{S_T0+1}, s{S_IDX}, 7
s_add_u32 s{S_C}, s{S_T0}, s{S_T0+1}
s_lshr_b32 s{S_J}, s{S_IDX}, 3
s_lshr_b32 s{S_T0+2}, s{S_XCD}, 1
s_mul_i32 s{S_CB}, s{S_T0+2}, 3
s_add_u32 s{S_CB}, s{S_CB}, s{S_J}
s_sub_u32 s{S_CB}, s{S_CB}, 1
s_cmp_eq_u32 s{S_J}, 0
s_cselect_b32 s{S_CB}, s{S_T0+2}, s{S_CB}
""")
if TS:
    A("v_mov_b32 v255, 0")
    ts(0, 2)
RG = OPT["rot"]
C0 = OPT.get("c0", 1)
if RG:
    A(f"""s_lshl_b32 s{S_ROT}, s{S_J}, {1 if RG == 8 else 0}
    s_add_u32 s{S_ROT}, s{S_T0+1}, s{S_ROT}
    s_and_b32 s{S_ROT}, s{S_ROT}, {RG-1}
    s_mul_i32 s{S_ROT}, s{S_ROT}, {9 if C0 else 10}
    s_lshr_b32 s{S_ROT}, s{S_ROT}, {RG.bit_length()-1}""")
else:
    A(f"s_mov_b32 s{S_ROT}, 0")
A(f"""s_cmp_lt_u32 s{S_WAVE}, 4
s_cbranch_scc1 L_compute
s_sub_u32 s{S_LW}, s{S_WAVE}, 4
s_setprio {OPT.get('pl1', 0)}""")

def nonce_load():
    A(f"s_load_dword s{S_NONCE}, s[{S_WS}:{S_WS+1}], {WS_E}")
def late_scalars():
    A(f"""s_sub_u32 s{S_T0}, s{S_IDX}, 8
    s_mul_i32 s{S_T0+1}, s{S_T0}, 13
    s_lshr_b32 s{S_T0+1}, s{S_T0+1}, 6          ; n/5
    s_mul_i32 s{S_T0+2}, s{S_T0+1}, 5
    s_sub_u32 s{S_T0+2}, s{S_T0}, s{S_T0+2}     ; n%5
    s_mul_i32 s{S_TG}, s{S_T0+2}, 6
    s_lshl_b32 s{S_T0+3}, s{S_IDX}, 1
    s_add_u32 s{S_T0+3}, s{S_T0+3}, 16
    s_cmp_lt_u32 s{S_IDX}, 4
    s_cselect_b32 s{S_T0+3}, 30, s{S_T0+3}
    s_min_u32 s{S_T0}, s{S_IDX}, 4
    s_cmp_eq_u32 s{S_J}, 0
    s_cselect_b32 s{S_TG}, s{S_T0+3}, s{S_TG}
    s_cselect_b32 s{S_T0+1}, s{S_T0}, s{S_T0+1}  ; strip
    s_cselect_b32 s{S_T0+2}, 5, s{S_T0+2}
    s_lshr_b32 s{S_T0}, s{S_XCD}, 1
    s_lshl_b32 s{S_T0}, s{S_T0}, 5
    s_add_u32 s{S_TG}, s{S_TG}, s{S_T0}          ; first 16-row tile
    s_lshr_b32 s{S_HB2}, s{S_TG}, 2
    s_lshl_b32 s{S_DCOL}, s{S_T0+1}, 6
    s_and_b32 s{S_T0}, s{S_XCD}, 1
    s_mul_i32 s{S_T0}, s{S_T0}, 320
    s_add_u32 s{S_DCOL}, s{S_DCOL}, s{S_T0}
    s_mov_b32 s{S_ONES}, 0x3f803f80
    s_mov_b32 s{S_TO}, {OPT['timeout']}""")
    if OPT["rot2"]:
        A(f"""s_add_u32 s{S_R2B}, s{S_T0+1}, s{S_T0+2}
        s_lshl_b32 s{S_R2A}, s{S_R2B}, 1
        s_cmp_ge_u32 s{S_R2A}, 12
        s_cselect_b32 s{S_T0+3}, 12, 0
        s_sub_u32 s{S_R2A}, s{S_R2A}, s{S_T0+3}
        s_lshl_b32 s{S_R2B}, s{S_R2B}, 1
        s_cmp_ge_u32 s{S_R2B}, 10
        s_cselect_b32 s{S_T0+3}, 10, 0
        s_sub_u32 s{S_R2B}, s{S_R2B}, s{S_T0+3}""")
    else:
        A(f"s_mov_b32 s{S_R2A}, 0\ns_mov_b32 s{S_R2B}, 0")
for n_ in range(24):
    assert (n_ * 13) >> 6 == n_ // 5

HEADPOS = len(A.lines)
HEADS = []

def dpp_reduce16(regs):
    for sh in (8, 4, 2, 1):
        A("s_nop 1")
        for r in regs:
            A(f"v_add_f32_dpp v{r}, v{r}, v{r} row_ror:{sh} row_mask:0xf bank_mask:0xf")

def nonce_ready():
    A(f"""s_waitcnt lgkmcnt(0)
    s_add_u32 s{S_NONCE}, s{S_NONCE}, 1""")

def sum_bf16(regs, acc, sq=None, t=None):
    for k, r in enumerate(regs):
        if k and k % (5 if sq is not None else 8) == 0:
            yield
        A(f"v_lshlrev_b32 v{t}, 16, v{r}")
        A(f"v_and_b32 v{r}, 0xffff0000, v{r}")
        if k == 0:
            A(f"v_mov_b32 v{acc}, v{t}\nv_mov_b32 v{acc+1}, v{r}")
            if sq is not None:
                A(f"v_mul_f32 v{sq}, v{t}, v{t}\nv_mul_f32 v{sq+1}, v{r}, v{r}")
        else:
            A(f"v_add_f32 v{acc}, v{acc}, v{t}\nv_add_f32 v{acc+1}, v{acc+1}, v{r}")
            if sq is not None:
                A(f"v_fmac_f32 v{sq}, v{t}, v{t}\nv_fmac_f32 v{sq+1}, v{r}, v{r}")
    A(f"v_add_f32 v{acc}, v{acc}, v{acc+1}")
    if sq is not None:
        A(f"v_add_f32 v{sq}, v{sq}, v{sq+1}")

def reduce32(regs):
    dpp_reduce16(regs)
    A("s_nop 1")
    for r in regs:
        A(f"v_add_f32_dpp v{r}, v{r}, v{r} row_bcast:15 row_mask:0xa bank_mask:0xf")

def stat_loads(vm, T):
    A(f"""v_lshrrev_b32 v{T+10}, 5, v{VL}
    s_lshl_b32 s{S_T0}, s2, 3
    s_lshl_b32 s{S_T0+1}, s{S_LW}, 1
    s_add_u32 s{S_T0}, s{S_T0}, s{S_T0+1}
    v_add_u32 v{T+10}, s{S_T0}, v{T+10}
    v_and_b32 v{T+11}, 31, v{VL}
    v_mul_u32_u24 v{T+12}, 1280, v{T+10}
    v_lshl_add_u32 v{T+12}, v{T+11}, 3, v{T+12}""")
    for i in range(5):
        A(f"global_load_dwordx2 v[{T+2*i}:{T+2*i+1}], v{T+12}, s[{S_X}:{S_X+1}] offset:{256*i}")
        vm.issue("stat")

def stat_work(vm, T):
    vm.wait("stat")
    a, q = T + 12, T + 14
    yield from sum_bf16(list(range(T, T + 10)), a, q, T + 16)
    yield
    reduce32([a, q])
    yield
    A(f"""v_mul_f32 v{a}, 0x3acccccd, v{a}      ; mean
    v_mul_f32 v{q}, 0x3acccccd, v{q}
    v_fma_f32 v{q}, -v{a}, v{a}, v{q}
    v_max_f32 v{q}, 0, v{q}
    v_cvt_pk_bf16_f32 v{q}, v{q}, v{q}
    v_lshlrev_b32 v{q}, 16, v{q}
    v_add_f32 v{q}, 0x3727c5ac, v{q}
    v_cvt_pk_bf16_f32 v{q}, v{q}, v{q}
    v_lshlrev_b32 v{q}, 16, v{q}
    v_sqrt_f32 v{q}, v{q}
    v_lshlrev_b32 v{T+10}, 3, v{T+10}
    v_add_u32 v{T+10}, {WS_STAT}, v{T+10}
    v_cvt_pk_bf16_f32 v{a}, v{a}, v{q}
    v_mov_b32 v{a+1}, s{S_NONCE}
    v_cmp_eq_u32 vcc, 16, v{T+11}
    s_and_saveexec_b64 s[{S_EX}:{S_EX+1}], vcc
    global_store_dwordx2 v{T+10}, v[{a}:{a+1}], s[{S_WS}:{S_WS+1}] sc1
    s_mov_b64 exec, s[{S_EX}:{S_EX+1}]""")
    vm.issue("pub")

S_CS0 = 86
def colsum_loads(T):
    A(f"""s_mul_i32 s{S_T0}, s{S_C}, 12
    s_add_u32 s{S_T0}, s{S_T0}, s{S_CB}            ; sigma
    s_lshr_b32 s{S_T0+1}, s{S_T0}, 2               ; strip
    s_and_b32 s{S_T0+2}, s{S_T0}, 3                ; k quarter
    s_cmp_ge_u32 s{S_T0+1}, 24""")
    srd_sel(SRD_T, S_W3, S_W1, 1966080)
    A(f"""s_cselect_b32 s{S_T0+3}, {24*128}, 0
    s_lshl_b32 s{S_T0+4}, s{S_T0+1}, 7
    s_sub_u32 s{S_T0+4}, s{S_T0+4}, s{S_T0+3}
    s_mul_i32 s{S_T0+5}, s{S_T0+2}, {160*3072}
    s_add_u32 s{S_T0+4}, s{S_T0+4}, s{S_T0+5}      ; soffset
    s_mul_i32 s{S_CS0}, s{S_T0+2}, {3072*8}
    s_lshl_b32 s{S_T0+1}, s{S_T0+1}, 9
    s_add_u32 s{S_CS0}, s{S_CS0}, s{S_T0+1}
    s_add_u32 s{S_CS0}, s{S_CS0}, {WS_CSW}
    v_lshrrev_b32 v{T}, 3, v{VL}
    v_and_b32 v{T+1}, 7, v{VL}
    v_mul_u32_u24 v{T}, 3072, v{T}
    v_lshl_add_u32 v{T}, v{T+1}, 4, v{T}""")
    for i in range(20):
        if i % 4 == 0:
            A(f"s_mov_b32 m0, {SCR + 1024*i}")
        A(f"""s_add_u32 s{S_T0+7}, s{S_T0+4}, {8*3072*i - 1024*(i%4)}
        s_waitcnt vmcnt({OPT.get("cap", 7)})
        buffer_load_dwordx4 v{T}, s[{SRD_T}:{SRD_T+3}], s{S_T0+7} offen offset:{1024*(i%4)} lds""")

def colsum_work(T):
    A(f"""v_lshrrev_b32 v{T+2}, 4, v{VL}
    v_lshlrev_b32 v{T+3}, 5, v{T+2}
    v_lshlrev_b32 v{T+2}, 10, v{T+2}
    v_bfe_u32 v{T+1}, v{VL}, 2, 2
    v_lshl_add_u32 v{T+2}, v{T+1}, 7, v{T+2}
    v_and_b32 v{T+1}, 3, v{VL}
    v_lshl_add_u32 v{T+2}, v{T+1}, 3, v{T+2}
    v_add_u32 v{T+2}, {SCR}, v{T+2}
    v_add_u32 v{T+3}, s{S_CS0}, v{T+3}""")
    for i in range(4):
        A(f"v_mov_b32 v{T+4+i}, s{S_ONES}")
    F = T + 24
    for u in range(4):
        for ks in range(5):
            b = F + (u * 5 + ks) * 4
            A(f"ds_read_b64_tr_b16 v[{b}:{b+1}], v{T+2} offset:{ks*4096+u*32}")
            A(f"ds_read_b64_tr_b16 v[{b+2}:{b+3}], v{T+2} offset:{ks*4096+u*32+512}")
    A("s_waitcnt lgkmcnt(0)")
    for ks in range(5):
        for u in range(4):
            b = F + (u * 5 + ks) * 4
            d = T + 8 + 4 * u
            cin = "0" if ks == 0 else f"v[{d}:{d+3}]"
            A(f"v_mfma_f32_16x16x32_bf16 v[{d}:{d+3}], v[{b}:{b+3}], v[{T+4}:{T+7}], {cin}")
    A(f"""v_and_b32 v{T+1}, 15, v{VL}
    v_cmp_eq_u32 vcc, 0, v{T+1}
    s_nop 7""")
    for u in range(4):
        for h in range(2):
            o = F + (u * 2 + h) * 4
            A(f"""v_mov_b32 v{o}, v{T+8+4*u+2*h}
            v_mov_b32 v{o+1}, s{S_NONCE}
            v_mov_b32 v{o+2}, v{T+9+4*u+2*h}
            v_mov_b32 v{o+3}, s{S_NONCE}""")
    A(f"s_and_saveexec_b64 s[{S_EX}:{S_EX+1}], vcc")
    for u in range(4):
        for h in range(2):
            o = F + (u * 2 + h) * 4
            A(f"global_store_dwordx4 v{T+3}, v[{o}:{o+3}], s[{S_WS}:{S_WS+1}] offset:{u*128+h*16} sc1")
    A(f"s_mov_b64 exec, s[{S_EX}:{S_EX+1}]")

def rowsum_loads(vm, T):
    A(f"""s_lshl_b32 s{S_T0}, s{S_C}, 2
    s_add_u32 s{S_T0}, s{S_T0}, s{S_CB}            ; sigma'
    s_mul_i32 s{S_T0+1}, s{S_T0}, 20
    s_mul_i32 s{S_T0+2}, s{S_LW}, 5
    s_add_u32 s{S_T0+1}, s{S_T0+1}, s{S_T0+2}
    s_cmp_ge_u32 s{S_T0}, 32
    s_cselect_b32 s{S_T0+4}, s{S_BIM}, s{S_BRE}
    s_cselect_b32 s{S_T0+5}, s{S_BIM+1}, s{S_BRE+1}
    s_cselect_b32 s{S_T0+3}, 640, 0
    s_sub_u32 s{S_T0+1}, s{S_T0+1}, s{S_T0+3}
    v_lshrrev_b32 v{T+33}, 5, v{VL}
    v_add_u32 v{T+33}, s{S_T0+1}, v{T+33}
    v_and_b32 v{T+34}, 31, v{VL}""")
    for p in range(3):
        A(f"""v_add_u32 v{T+30+p}, {2*p}, v{T+33}
        v_min_u32 v{T+30+p}, 639, v{T+30+p}
        v_mul_u32_u24 v{T+35}, 1280, v{T+30+p}
        v_lshl_add_u32 v{T+35}, v{T+34}, 3, v{T+35}
        v_add_u32 v{T+30+p}, s{S_T0+3}, v{T+30+p}""")
        for i in range(5):
            b = T + 10 * p + 2 * i
            A(f"global_load_dwordx2 v[{b}:{b+1}], v{T+35}, s[{S_T0+4}:{S_T0+5}] offset:{256*i}")
            vm.issue("rows")

def rowsum_work(vm, T):
    vm.wait("rows")
    for p in range(3):
        yield from sum_bf16(list(range(T + 10 * p, T + 10 * p + 10)), T + 36 + 2 * p, None, T + 35)
    yield
    reduce32([T + 36, T + 38, T + 40])
    for p in range(3):
        A(f"""v_mov_b32 v{T+37+2*p}, s{S_NONCE}
        v_lshlrev_b32 v{T+30+p}, 3, v{T+30+p}
        v_add_u32 v{T+30+p}, {WS_CSB}, v{T+30+p}""")
    A(f"""v_cmp_eq_u32 vcc, 16, v{T+34}
    s_and_saveexec_b64 s[{S_EX}:{S_EX+1}], vcc""")
    for p in range(3):
        A(f"global_store_dwordx2 v{T+30+p}, v[{T+36+2*p}:{T+37+2*p}], s[{S_WS}:{S_WS+1}] sc1")
        vm.issue("pub")
    A(f"s_mov_b64 exec, s[{S_EX}:{S_EX+1}]")

def side_stats(T, filler):
    A(f"""v_lshrrev_b32 v{T+20}, 4, v{VL}
    s_lshl_b32 s{S_T0}, s2, 3
    s_lshl_b32 s{S_T0+1}, s{S_WAVE}, 2
    s_add_u32 s{S_T0}, s{S_T0}, s{S_T0+1}
    v_add_u32 v{T+20}, s{S_T0}, v{T+20}          ; row
    v_and_b32 v{T+21}, 15, v{VL}
    v_mul_u32_u24 v{T+22}, 1280, v{T+20}
    v_lshl_add_u32 v{T+22}, v{T+21}, 4, v{T+22}""")
    for i in range(5):
        A(f"global_load_dwordx4 v[{T+4*i}:{T+4*i+3}], v{T+22}, s[{S_X}:{S_X+1}] offset:{256*i}")
    filler()
    A(f"""v_mov_b32 v{T+24}, 0
    v_mov_b32 v{T+25}, 0
    v_mov_b32 v{T+26}, 0
    v_mov_b32 v{T+27}, 0""")
    nonce_ready()
    for i in range(5):
        A(f"s_waitcnt vmcnt({4-i})")
        for d in range(4):
            r = T + 4 * i + d
            A(f"v_dot2c_f32_bf16 v{T+24+2*(d&1)}, s{S_ONES}, v{r}")
            A(f"v_dot2c_f32_bf16 v{T+25+2*(d&1)}, v{r}, v{r}")
    A(f"""s_nop 3
    v_add_f32 v{T+24}, v{T+24}, v{T+26}
    v_add_f32 v{T+25}, v{T+25}, v{T+27}""")
    dpp_reduce16([T + 24, T + 25])
    A(f"""v_mul_f32 v{T+24}, 0x3acccccd, v{T+24}      ; mean
    v_mul_f32 v{T+25}, 0x3acccccd, v{T+25}
    v_fma_f32 v{T+25}, -v{T+24}, v{T+24}, v{T+25}
    v_max_f32 v{T+25}, 0, v{T+25}
    v_cvt_pk_bf16_f32 v{T+25}, v{T+25}, v{T+25}
    v_lshlrev_b32 v{T+25}, 16, v{T+25}
    v_add_f32 v{T+25}, 0x3727c5ac, v{T+25}
    v_cvt_pk_bf16_f32 v{T+25}, v{T+25}, v{T+25}
    v_lshlrev_b32 v{T+25}, 16, v{T+25}
    v_sqrt_f32 v{T+25}, v{T+25}
    v_lshlrev_b32 v{T+20}, 3, v{T+20}
    v_add_u32 v{T+20}, {WS_STAT}, v{T+20}
    v_cvt_pk_bf16_f32 v{T+26}, v{T+24}, v{T+25}
    v_mov_b32 v{T+27}, s{S_NONCE}
    v_cmp_eq_u32 vcc, 0, v{T+21}
    s_and_saveexec_b64 s[{S_EX}:{S_EX+1}], vcc
    global_store_dwordx2 v{T+20}, v[{T+26}:{T+27}], s[{S_WS}:{S_WS+1}] sc1
    s_mov_b64 exec, s[{S_EX}:{S_EX+1}]""")

def side_colsum_mlp(T, filler):
    A(f"""s_mul_i32 s{S_T0}, s{S_C}, 12
    s_add_u32 s{S_T0}, s{S_T0}, s{S_CB}            ; sigma
    s_lshr_b32 s{S_T0+1}, s{S_T0}, 1               ; strip
    s_and_b32 s{S_T0+2}, s{S_T0}, 1
    s_lshl_b32 s{S_T0+2}, s{S_T0+2}, 1
    s_add_u32 s{S_T0+2}, s{S_T0+2}, s{S_WAVE}
    s_sub_u32 s{S_T0+2}, s{S_T0+2}, 2              ; k quarter
    s_cmp_ge_u32 s{S_T0+1}, 48""")
    srd_sel(SRD_T, S_W3, S_W1, 1966080)
    A(f"""s_cselect_b32 s{S_T0+3}, 48, 0
    s_cselect_b32 s{S_T0+6}, 1536, 0
    s_sub_u32 s{S_T0+1}, s{S_T0+1}, s{S_T0+3}
    s_lshl_b32 s{S_T0+1}, s{S_T0+1}, 5             ; col0
    s_mul_i32 s{S_T0+4}, s{S_T0+2}, {160*3072}
    s_lshl_b32 s{S_T0+5}, s{S_T0+1}, 1
    s_add_u32 s{S_T0+4}, s{S_T0+4}, s{S_T0+5}      ; soffset
    s_sub_u32 s{S_T0+5}, s{S_WAVE}, 2
    s_mul_i32 s{S_T0+5}, s{S_T0+5}, 10240
    s_add_u32 s{S_T0+5}, s{S_T0+5}, {SCR}
    v_lshrrev_b32 v{T}, 2, v{VL}
    v_and_b32 v{T+1}, 3, v{VL}
    v_mul_u32_u24 v{T}, 3072, v{T}
    v_lshl_add_u32 v{T}, v{T+1}, 4, v{T}""")
    for i in range(10):
        A(f"""s_add_u32 m0, s{S_T0+5}, {1024*i}
        s_add_u32 s{S_T0+7}, s{S_T0+4}, {16*3072*i}
        buffer_load_dwordx4 v{T}, s[{SRD_T}:{SRD_T+3}], s{S_T0+7} offen lds""")
    filler()
    A(f"""v_lshrrev_b32 v{T+2}, 4, v{VL}
    v_lshlrev_b32 v{T+2}, 9, v{T+2}
    v_bfe_u32 v{T+3}, v{VL}, 2, 2
    v_lshl_add_u32 v{T+2}, v{T+3}, 6, v{T+2}
    v_lshl_add_u32 v{T+2}, v{T+1}, 3, v{T+2}
    v_add_u32 v{T+2}, s{S_T0+5}, v{T+2}
    v_mov_b32 v{T+4}, s{S_ONES}
    v_mov_b32 v{T+5}, s{S_ONES}
    v_mov_b32 v{T+6}, s{S_ONES}
    v_mov_b32 v{T+7}, s{S_ONES}""")
    A(f"""s_mul_i32 s{S_T0+2}, s{S_T0+2}, 3072
    s_add_u32 s{S_T0+2}, s{S_T0+2}, s{S_T0+6}
    s_add_u32 s{S_T0+2}, s{S_T0+2}, s{S_T0+1}
    s_lshl_b32 s{S_T0+2}, s{S_T0+2}, 3
    s_add_u32 s{S_T0+2}, s{S_T0+2}, {WS_CSW}
    v_lshrrev_b32 v{T+3}, 4, v{VL}
    v_lshlrev_b32 v{T+3}, 5, v{T+3}
    v_add_u32 v{T+3}, s{S_T0+2}, v{T+3}""")
    nonce_ready()
    A("s_waitcnt vmcnt(0)")
    F = T + 16
    for ks in range(5):
        for u in range(2):
            b = F + (ks * 2 + u) * 4
            A(f"ds_read_b64_tr_b16 v[{b}:{b+1}], v{T+2} offset:{ks*2048+u*32}")
            A(f"ds_read_b64_tr_b16 v[{b+2}:{b+3}], v{T+2} offset:{ks*2048+u*32+256}")
    A("s_waitcnt lgkmcnt(0)")
    for ks in range(5):
        for u in range(2):
            b = F + (ks * 2 + u) * 4
            cin = "0" if ks == 0 else f"v[{T+8+4*u}:{T+11+4*u}]"
            A(f"v_mfma_f32_16x16x32_bf16 v[{T+8+4*u}:{T+11+4*u}], v[{b}:{b+3}], v[{T+4}:{T+7}], {cin}")
    A("s_nop 7\ns_nop 1")
    for u in range(2):
        for h in range(2):
            o = F + (u * 2 + h) * 4
            A(f"""v_mov_b32 v{o}, v{T+8+4*u+2*h}
            v_mov_b32 v{o+1}, s{S_NONCE}
            v_mov_b32 v{o+2}, v{T+9+4*u+2*h}
            v_mov_b32 v{o+3}, s{S_NONCE}""")
    A(f"""v_and_b32 v{T+1}, 15, v{VL}
    v_cmp_eq_u32 vcc, 0, v{T+1}
    s_and_saveexec_b64 s[{S_EX}:{S_EX+1}], vcc""")
    for u in range(2):
        for h in range(2):
            o = F + (u * 2 + h) * 4
            A(f"global_store_dwordx4 v{T+3}, v[{o}:{o+3}], s[{S_WS}:{S_WS+1}] offset:{u*128+h*16} sc1")
    A(f"s_mov_b64 exec, s[{S_EX}:{S_EX+1}]")

def side_rowsum_ssm(T, filler):
    A(f"""s_lshl_b32 s{S_T0}, s{S_C}, 2
    s_add_u32 s{S_T0}, s{S_T0}, s{S_CB}            ; sigma'
    s_mul_i32 s{S_T0+1}, s{S_T0}, 20
    s_sub_u32 s{S_T0+2}, s{S_WAVE}, 2
    s_lshl_b32 s{S_T0+2}, s{S_T0+2}, 3
    s_add_u32 s{S_T0+1}, s{S_T0+1}, s{S_T0+2}
    s_cmp_ge_u32 s{S_T0}, 32
    s_cselect_b32 s{S_T0+4}, s{S_BIM}, s{S_BRE}
    s_cselect_b32 s{S_T0+5}, s{S_BIM+1}, s{S_BRE+1}
    s_cselect_b32 s{S_T0+3}, 640, 0
    s_sub_u32 s{S_T0+3}, s{S_T0+1}, s{S_T0+3}
    v_lshrrev_b32 v{T+60}, 4, v{VL}
    v_and_b32 v{T+61}, 15, v{VL}
    v_add_u32 v{T+62}, s{S_T0+3}, v{T+60}
    v_mul_u32_u24 v{T+62}, 1280, v{T+62}
    v_lshl_add_u32 v{T+62}, v{T+61}, 4, v{T+62}""")
    for p in range(3):
        for i in range(5):
            b = T + 20 * p + 4 * i
            A(f"global_load_dwordx4 v[{b}:{b+3}], v{T+62}, s[{S_T0+4}:{S_T0+5}] offset:{256*i}")
        if p < 2:
            A(f"v_add_u32 v{T+62}, {4*1280}, v{T+62}")
    filler()
    for p in range(3):
        A(f"v_mov_b32 v{T+64+2*p}, 0")
    A(f"""v_add_u32 v{T+60}, s{S_T0+1}, v{T+60}
    v_lshlrev_b32 v{T+60}, 3, v{T+60}
    v_add_u32 v{T+60}, {WS_CSB}, v{T+60}""")
    nonce_ready()
    for p in range(3):
        A(f"s_waitcnt vmcnt({10-5*p})")
        for d in range(20):
            A(f"v_dot2c_f32_bf16 v{T+64+2*p}, s{S_ONES}, v{T+20*p+d}")
    A("s_nop 3")
    dpp_reduce16([T + 64, T + 66, T + 68])
    for p in range(3):
        A(f"v_mov_b32 v{T+65+2*p}, s{S_NONCE}")
    A(f"""v_cmp_eq_u32 vcc, 0, v{T+61}
    s_and_saveexec_b64 s[{S_EX}:{S_EX+1}], vcc""")
    for p in range(3):
        A(f"global_store_dwordx2 v{T+60}, v[{T+64+2*p}:{T+65+2*p}], s[{S_WS}:{S_WS+1}] offset:{32*p} sc1")
    A(f"s_mov_b64 exec, s[{S_EX}:{S_EX+1}]")


SJ = 200
PA, PB = OPT.get('pa', 2), OPT.get('pb', 5)
def rows16_loads(T, rowreg, ptr):
    A(f"""v_and_b32 v{T+20}, 15, v{VL}
    v_mul_u32_u24 v{T+21}, 1280, v{rowreg}
    v_lshl_add_u32 v{T+21}, v{T+20}, 4, v{T+21}""")
    for i in range(5):
        A(f"global_load_dwordx4 v[{T+4*i}:{T+4*i+3}], v{T+21}, s[{ptr}:{ptr+1}] offset:{256*i}")
def stat_finish(a, q, rowreg, lanereg, lane):
    A(f"""v_mul_f32 v{a}, 0x3acccccd, v{a}      ; mean
    v_mul_f32 v{q}, 0x3acccccd, v{q}
    v_fma_f32 v{q}, -v{a}, v{a}, v{q}
    v_max_f32 v{q}, 0, v{q}
    v_cvt_pk_bf16_f32 v{q}, v{q}, v{q}
    v_lshlrev_b32 v{q}, 16, v{q}
    v_add_f32 v{q}, 0x3727c5ac, v{q}
    v_cvt_pk_bf16_f32 v{q}, v{q}, v{q}
    v_lshlrev_b32 v{q}, 16, v{q}
    v_sqrt_f32 v{q}, v{q}
    v_lshlrev_b32 v{rowreg}, 3, v{rowreg}
    v_add_u32 v{rowreg}, {WS_STAT}, v{rowreg}
    v_cvt_pk_bf16_f32 v{a}, v{a}, v{q}
    v_mov_b32 v{a+1}, s{S_NONCE}
    v_cmp_eq_u32 vcc, {lane}, v{lanereg}""")
def own_rows(dst):
    A(f"""s_lshr_b32 s{dst}, s{S_XCD}, 1
    s_lshl_b32 s{dst}, s{dst}, 2
    s_add_u32 s{dst}, s{dst}, s{S_J}
    s_lshl_b32 s{dst}, s{dst}, 3
    s_lshl_b32 s{dst+1}, s{S_C}, 7
    s_add_u32 s{dst}, s{dst}, s{dst+1}""")
def mlp_rows_loads():
    A(f"""v_lshrrev_b32 v242, 4, v{VL}
    s_lshl_b32 s{S_T0+1}, s{S_WAVE}, 2
    v_add_u32 v242, s{S_T0+1}, v242
    s_sub_u32 s{S_T0}, s{S_IDX}, 8
    s_min_u32 s{S_T0}, s{S_T0}, 19
    s_lshl_b32 s{S_T0}, s{S_T0}, 3
    s_lshr_b32 s{S_T0+1}, s{S_XCD}, 1
    s_mul_i32 s{S_T0+1}, s{S_T0+1}, 160
    s_add_u32 s{S_T0+2}, s{S_T0}, s{S_T0+1}
    s_bitcmp1_b32 s{S_XCD}, 0
    s_cselect_b32 s{S_T0+4}, s{S_BIM}, s{S_BRE}
    s_cselect_b32 s{S_T0+5}, s{S_BIM+1}, s{S_BRE+1}
    s_cselect_b32 s{S_T0+3}, 640, 0
    v_add_u32 v244, s{S_T0+2}, v242
    v_add_u32 v243, s{S_T0+3}, v244""")
    own_rows(S_T0)
    A(f"v_add_u32 v242, s{S_T0}, v242")
    rows16_loads(SJ, 242, S_X)
    rows16_loads(SJ + 20, 244, S_T0 + 4)
def mlp_rows_work():
    a, q, r = 244, 246, 228
    A(f"v_mov_b32 v{a}, 0\nv_mov_b32 v{q}, 0\nv_mov_b32 v{a+1}, 0\nv_mov_b32 v{q+1}, 0\ns_waitcnt vmcnt({2*(PB-PA)})")
    for d in range(20):
        A(f"v_dot2c_f32_bf16 v{a}, s{S_ONES}, v{SJ+d}")
        A(f"v_dot2c_f32_bf16 v{q}, v{SJ+d}, v{SJ+d}")
        A(f"v_dot2c_f32_bf16 v{[a+1, q+1][d % 2]}, s{S_ONES}, v{SJ+20+d}")
    A(f"s_nop 2\nv_add_f32 v{SJ}, v{a+1}, v{q+1}")
    dpp_reduce16([a, q, SJ])
    stat_finish(a, q, 242, SJ + 40, 0)
    A(f"""v_mov_b32 v{SJ+1}, s{S_NONCE}
    v_lshlrev_b32 v243, 3, v243
    v_add_u32 v243, {WS_CSB}, v243
    s_and_saveexec_b64 s[{S_EX}:{S_EX+1}], vcc
    global_store_dwordx2 v242, v[{a}:{a+1}], s[{S_WS}:{S_WS+1}] sc1
    global_store_dwordx2 v243, v[{SJ}:{SJ+1}], s[{S_WS}:{S_WS+1}] sc1
    s_mov_b64 exec, s[{S_EX}:{S_EX+1}]""")
def cs_scalars(wreg, wsub):
    A(f"""s_and_b32 s{S_T0}, s{S_IDX}, 3
    s_lshl_b32 s{S_T0+1}, s{S_CB}, 2
    s_add_u32 s{S_T0+1}, s{S_T0+1}, s{S_T0}
    s_bitcmp1_b32 s{S_IDX}, 2
    s_cselect_b32 s{S_T0}, 48, 0
    s_add_u32 s{S_T0+1}, s{S_T0+1}, s{S_T0}        ; strip : 32 columns of this workgroup's own tile
    s_and_b32 s{S_T0+2}, s{S_XCD}, 1
    s_lshl_b32 s{S_T0+2}, s{S_T0+2}, 1
    s_sub_u32 s{S_T0+5}, s{wreg}, {wsub}
    s_add_u32 s{S_T0+2}, s{S_T0+2}, s{S_T0+5}      ; k quarter
    s_mul_i32 s{S_T0+5}, s{S_T0+5}, 10240
    s_add_u32 s{S_T0+5}, s{S_T0+5}, {SCR}""")
def cs_dma(T, first, n, capped):
    A(f"s_cmp_ge_u32 s{S_T0+1}, 48")
    srd_sel(SRD_T, S_W3, S_W1, 1966080)
    A(f"""s_cselect_b32 s{S_T0+3}, {48*64}, 0
    s_lshl_b32 s{S_T0+4}, s{S_T0+1}, 6
    s_sub_u32 s{S_T0+4}, s{S_T0+4}, s{S_T0+3}
    s_mul_i32 s{S_T0+3}, s{S_T0+2}, {160*3072}
    s_add_u32 s{S_T0+4}, s{S_T0+4}, s{S_T0+3}      ; soffset
    v_lshrrev_b32 v{T}, 2, v{VL}
    v_and_b32 v{T+1}, 3, v{VL}
    v_mul_u32_u24 v{T}, 3072, v{T}
    v_lshl_add_u32 v{T}, v{T+1}, 4, v{T}""")
    if first is not None:
        A(f"""s_mul_i32 s{S_T0+3}, s{first}, {5*16*3072}
        s_add_u32 s{S_T0+4}, s{S_T0+4}, s{S_T0+3}
        s_mul_i32 s{S_T0+3}, s{first}, 5120
        s_add_u32 s{S_T0+5}, s{S_T0+5}, s{S_T0+3}""")
    for i in range(n):
        A(f"s_add_u32 m0, s{S_T0+5}, {1024*i}\ns_add_u32 s{S_T0+7}, s{S_T0+4}, {16*3072*i}")
        if capped:
            cap()
        A(f"buffer_load_dwordx4 v{T}, s[{SRD_T}:{SRD_T+3}], s{S_T0+7} offen lds")
def cs_by_loader():
    A(f"s_lshr_b32 s{S_T0+6}, s{S_LW}, 1")
    cs_scalars(S_T0 + 6, 0)
    A(f"s_and_b32 s{S_T0+6}, s{S_LW}, 1")
    cs_dma(232, S_T0 + 6, 5, True)
CSL = OPT.get("csl", 1)
def mlp_cs_loads():
    T = SJ
    cs_scalars(S_WAVE, 2)
    if not CSL:
        cs_dma(T, None, 10, False)
    A(f"""v_and_b32 v{T+1}, 3, v{VL}
    v_lshrrev_b32 v{T+2}, 4, v{VL}
    v_lshlrev_b32 v{T+3}, 5, v{T+2}
    v_lshlrev_b32 v{T+2}, 9, v{T+2}
    v_bfe_u32 v{T}, v{VL}, 2, 2
    v_lshl_add_u32 v{T+2}, v{T}, 6, v{T+2}
    v_lshl_add_u32 v{T+2}, v{T+1}, 3, v{T+2}
    v_add_u32 v{T+2}, s{S_T0+5}, v{T+2}
    s_mul_i32 s{S_T0+2}, s{S_T0+2}, {3072*8}
    s_lshl_b32 s{S_T0+1}, s{S_T0+1}, 8
    s_add_u32 s{S_T0+2}, s{S_T0+2}, s{S_T0+1}
    s_add_u32 s{S_T0+2}, s{S_T0+2}, {WS_CSW}
    v_add_u32 v249, s{S_T0+2}, v{T+3}
    v_and_b32 v{T+1}, 15, v{VL}""")
    for i in range(4):
        A(f"v_mov_b32 v{T+4+i}, s{S_ONES}")
def mlp_cs_work():
    T = SJ
    F = T + 8
    A(f"s_waitcnt vmcnt({2*(PB-PA)})")
    for u in range(2):
        for ks in range(5):
            b = F + (u * 5 + ks) * 4
            A(f"ds_read_b64_tr_b16 v[{b}:{b+1}], v{T+2} offset:{ks*2048+u*32}")
            A(f"ds_read_b64_tr_b16 v[{b+2}:{b+3}], v{T+2} offset:{ks*2048+u*32+256}")
    A(f"v_cmp_eq_u32 vcc, 0, v{T+1}\ns_waitcnt lgkmcnt(0)")
    D = [T, F]
    for u in range(2):
        for ks in range(5):
            b, d = F + (u * 5 + ks) * 4, D[u]
            cin = "0" if ks == 0 else f"v[{d}:{d+3}]"
            A(f"v_mfma_f32_16x16x32_bf16 v[{d}:{d+3}], v[{b}:{b+3}], v[{T+4}:{T+7}], {cin}")
    A("s_nop 7")
    for u in range(2):
        d, o = D[u], F + 4 + 8 * u
        for r in range(4):
            A(f"v_mov_b32 v{o+2*r}, v{d+r}\nv_mov_b32 v{o+2*r+1}, s{S_NONCE}")
    A(f"s_and_saveexec_b64 s[{S_EX}:{S_EX+1}], vcc")
    for u in range(2):
        for h in range(2):
            o = F + 4 + 8 * u + 4 * h
            A(f"global_store_dwordx4 v249, v[{o}:{o+3}], s[{S_WS}:{S_WS+1}] offset:{u*128+h*16} sc1")
    A(f"s_mov_b64 exec, s[{S_EX}:{S_EX+1}]")
def ssm_rows_loads():
    own_rows(S_T0)
    A(f"""v_lshrrev_b32 v246, 5, v{VL}
    s_lshl_b32 s{S_T0+1}, s{S_WAVE}, 1
    s_add_u32 s{S_T0}, s{S_T0}, s{S_T0+1}
    v_add_u32 v246, s{S_T0}, v246
    v_and_b32 v247, 31, v{VL}
    v_mul_u32_u24 v249, 1280, v246
    v_lshl_add_u32 v249, v247, 3, v249""")
    for i in range(5):
        A(f"global_load_dwordx2 v[{236+2*i}:{237+2*i}], v249, s[{S_X}:{S_X+1}] offset:{256*i}")
def ssm_rows_work():
    A(f"s_waitcnt vmcnt({2*(PB-PA)})\nv_mov_b32 v249, 0\nv_mov_b32 v251, 0")
    for d in range(10):
        A(f"v_dot2c_f32_bf16 v249, s{S_ONES}, v{236+d}")
        A(f"v_dot2c_f32_bf16 v251, v{236+d}, v{236+d}")
    A("s_nop 2\nv_mov_b32 v236, v249")
    reduce32([236, 251])
    stat_finish(236, 251, 246, 247, 16)
    A(f"""s_and_saveexec_b64 s[{S_EX}:{S_EX+1}], vcc
    global_store_dwordx2 v246, v[236:237], s[{S_WS}:{S_WS+1}] sc1
    s_mov_b64 exec, s[{S_EX}:{S_EX+1}]""")
def touch_w2(T, S_WAVE=S_WAVE):
    G = OPT.get("tg", 128)
    sh = G.bit_length() - 1
    n2, nc = 7680 // G, 3200 // G
    if OPT.get("tm", 1):
        A(f"""s_sub_u32 s{S_T0+3}, s2, 64
        s_cmp_lt_u32 s{S_WAVE}, 2
        s_cselect_b32 s{S_T0}, 39, 33
        s_mov_b32 s{S_T0+1}, 4352
        s_cmov_b32 s{S_T0+1}, 10240
        s_cselect_b32 s{S_T0+4}, s{S_W2}, s{S_CRE}
        s_cselect_b32 s{S_T0+5}, s{S_W2+1}, s{S_CRE+1}
        s_mov_b32 s{S_T0+6}, 819196
        s_cmov_b32 s{S_T0+6}, 1966076
        s_cmp_eq_u32 s{S_WAVE}, 3
        s_cselect_b32 s{S_T0+4}, s{S_CIM}, s{S_T0+4}
        s_cselect_b32 s{S_T0+5}, s{S_CIM+1}, s{S_T0+5}
        s_mul_i32 s{S_T0+1}, s{S_T0+1}, s{S_T0+3}
        s_cmp_eq_u32 s{S_WAVE}, 1
        s_cselect_b32 s{S_T0+2}, 5120, 0
        s_add_u32 s{S_T0+1}, s{S_T0+1}, s{S_T0+2}
        v_min_u32 v{T}, s{S_T0}, v{VL}
        v_lshlrev_b32 v{T}, 7, v{T}
        v_add_u32 v{T}, s{S_T0+1}, v{T}
        v_min_u32 v{T}, s{S_T0+6}, v{T}
        global_load_dword v{T}, v{T}, s[{S_T0+4}:{S_T0+5}]""")
        return
    if G == 128:
        l = A.newlabel("L_tw")
        A(f"""s_cmp_eq_u32 s{S_WAVE}, 3
        s_cbranch_scc1 {l}
        s_cmp_eq_u32 s{S_WAVE}, 0
        s_cselect_b32 s{S_T0}, {n2-1}, {nc-1}
        s_mov_b32 s{S_T0+1}, 3200
        s_cmov_b32 s{S_T0+1}, 7680
        s_cselect_b32 s{S_T0+4}, s{S_W2}, s{S_CRE}
        s_cselect_b32 s{S_T0+5}, s{S_W2+1}, s{S_CRE+1}
        s_cmp_eq_u32 s{S_WAVE}, 2
        s_cselect_b32 s{S_T0+4}, s{S_CIM}, s{S_T0+4}
        s_cselect_b32 s{S_T0+5}, s{S_CIM+1}, s{S_T0+5}""")
    else:
        l = A.newlabel("L_tw")
        A(f"""s_cmp_lt_u32 s{S_WAVE}, 2
        s_cselect_b32 s{S_T0}, {n2//2-1}, {nc-1}
        s_mov_b32 s{S_T0+1}, 3200
        s_cmov_b32 s{S_T0+1}, 7680
        s_cselect_b32 s{S_T0+4}, s{S_W2}, s{S_CRE}
        s_cselect_b32 s{S_T0+5}, s{S_W2+1}, s{S_CRE+1}
        s_cmp_eq_u32 s{S_WAVE}, 3
        s_cselect_b32 s{S_T0+4}, s{S_CIM}, s{S_T0+4}
        s_cselect_b32 s{S_T0+5}, s{S_CIM+1}, s{S_T0+5}""")
    A(f"""s_mul_i32 s{S_T0+1}, s{S_T0+1}, s2
    s_cmp_eq_u32 s{S_WAVE}, 1
    s_cselect_b32 s{S_T0+2}, {3840 if G == 64 else 0}, 0
    s_add_u32 s{S_T0+1}, s{S_T0+1}, s{S_T0+2}
    v_min_u32 v{T}, s{S_T0}, v{VL}
    v_lshlrev_b32 v{T}, {sh}, v{T}
    v_add_u32 v{T}, s{S_T0+1}, v{T}
    global_load_dword v{T}, v{T}, s[{S_T0+4}:{S_T0+5}]""")
    A.label(l)
def touch_pages(T, D_):
    l = A.newlabel("L_tp")
    A(f"""s_cmp_lg_u32 s{S_WAVE}, 1
    s_cbranch_scc1 {l}
    s_mul_i32 s{S_T0}, s{S_TG}, {16*2560}
    s_lshl_b32 s{S_T0+1}, s{S_DCOL}, 2
    s_add_u32 s{S_T0}, s{S_T0}, s{S_T0+1}
    v_and_b32 v{T}, 1, v{VL}
    v_mul_u32_u24 v{T}, {31*2560}, v{T}
    v_add_u32 v{T}, s{S_T0}, v{T}
    global_load_dword v{D_}, v{T}, s[{S_OUT}:{S_OUT+1}]
    s_lshl_b32 s{S_T0}, s{S_C}, 1
    s_mul_i32 s{S_T0}, s{S_T0}, 88
    s_lshl_b32 s{S_T0+1}, s{S_CB}, 2
    s_mul_i32 s{S_T0+2}, s{S_CB}, 10
    s_add_u32 s{S_T0+2}, s{S_T0+2}, 48
    s_cmp_eq_u32 s{S_J}, 0
    s_cselect_b32 s{S_T0+1}, s{S_T0+2}, s{S_T0+1}
    s_add_u32 s{S_T0}, s{S_T0}, s{S_T0+1}
    s_lshl_b32 s{S_T0}, s{S_T0}, 12
    s_add_u32 s{S_T0}, s{S_T0}, {WS_ACT}
    v_and_b32 v{T}, 1, v{VL}
    v_mul_u32_u24 v{T}, {88*4096}, v{T}
    v_add_u32 v{T}, s{S_T0}, v{T}
    global_load_dword v{D_}, v{T}, s[{S_WS}:{S_WS+1}]""")
    A.label(l)
def by_wave(lo, hi):
    l1, l2 = A.newlabel("L_bw"), A.newlabel("L_bw")
    A(f"s_cmp_ge_u32 s{S_WAVE}, 2\ns_cbranch_scc1 {l1}")
    lo()
    A(f"s_branch {l2}")
    A.label(l1)
    hi()
    A.label(l2)

def zero_regs(lo, n):
    def f():
        for r in range(lo, lo + n):
            A(f"v_mov_b32 v{r}, 0")
    return f

def rowpat_read(dst, tmp):
    A(f"""v_bfe_u32 v{tmp}, v{VL}, 1, 3
    v_lshrrev_b32 v{dst}, 4, v{VL}
    v_xor_b32 v{tmp}, v{tmp}, v{dst}
    v_and_b32 v{dst}, 15, v{VL}
    v_lshlrev_b32 v{dst}, 7, v{dst}
    v_lshl_add_u32 v{dst}, v{tmp}, 4, v{dst}""")

def touch_inputs(T):
    if not OPT["pf"]:
        return
    G = OPT.get("tg", 64)
    plan = [[(S_X, 10240)], [(S_W1, 7680), (S_BRE, 3200)], [(S_W3, 7680), (S_BIM, 3200)], [(S_W2, 7680), (S_CRE, 3200), (S_CIM, 3200)]]
    done = A.newlabel("L_ti")
    sh = G.bit_length() - 1
    for w, segs in enumerate(plan):
        nx = A.newlabel("L_ti")
        if w < 3:
            A(f"s_cmp_lg_u32 s{S_WAVE}, {w}\ns_cbranch_scc1 {nx}")
        k = 0
        for p, n in segs:
            cnt = n // G
            A(f"s_mul_i32 s{S_T0}, s2, {n}")
            for o in range(0, cnt, 64):
                A(f"""v_add_u32 v{T}, {o}, v{VL}
                v_min_u32 v{T}, {cnt-1}, v{T}
                v_lshlrev_b32 v{T}, {sh}, v{T}
                v_add_u32 v{T}, s{S_T0}, v{T}
                global_load_dword v{244+k}, v{T}, s[{p}:{p+1}]""")
                k += 1
        if w < 3:
            A(f"s_branch {done}")
            A.label(nx)
    A.label(done)
def gemm1_loop(kind):
    mlp = kind == "mlp"
    NB = 8 if mlp else 10
    NS = 5
    SLOT = 16384 if mlp else 20480
    XF = 128 if mlp else 160
    WF = XF + 32
    AX = WF + NB * 4
    AW = AX + 2
    nAW = 4 if mlp else 2
    D = D1 if mlp else OPT["D1S"]
    lg = Queue(A, "lgkmcnt", 15)

    def rd_x(ks, T):
        b = XF + ks * 16 + T * 4
        if OPT["noread"]:
            return
        A(f"ds_read_b128 v[{b}:{b+3}], v{AX+ks} offset:{T*2048}")
        lg.issue(("x", ks))
    def rd_w(j, gen, half=None):
        b = WF + j * 4
        if OPT["noread"]:
            return
        if mlp:
            F, c = j // 2, j % 2
            for h in ((0, 1) if half is None else (half,)):
                A(f"ds_read_b64_tr_b16 v[{b+2*h}:{b+2*h+1}], v{AW+F} offset:{c*8192+1024*h}")
                lg.issue(("w", j, gen))
        else:
            ks, G = j // 5, j % 5
            A(f"ds_read_b128 v[{b}:{b+3}], v{AW+ks} offset:{G*2048}")
            lg.issue(("w", j, gen))
    def mf(j, T, par):
        w = WF + j * 4
        if (OPT["nomfma"] == 1 and T > 0) or OPT["nomfma"] == 2:
            return
        if mlp:
            acc = (j * 4 + T) * 4
            x = XF + par * 16 + T * 4
            A(f"v_mfma_f32_16x16x32_bf16 v[{acc}:{acc+3}], v[{w}:{w+3}], v[{x}:{x+3}], v[{acc}:{acc+3}]")
        else:
            acc = (((j % 5) * 2 + par) * 4 + T) * 4
            x = XF + (j // 5) * 16 + T * 4
            A(f"v_mfma_f32_16x16x32_bf16 v[{acc}:{acc+3}], v[{x}:{x+3}], v[{w}:{w+3}], v[{acc}:{acc+3}]")
    def xreads(par, j):
        k = j + D - NB
        if mlp:
            return [(par ^ 1, T) for T in ([2 * k, 2 * k + 1] if 0 <= k < 2 else [])]
        if par == 1:
            return [(0, T) for T in ([2 * k, 2 * k + 1] if 0 <= k < 2 else [])]
        return [(1, T) for T in ([2 * j, 2 * j + 1] if j < 2 else [])]
    assert mlp or NB - D >= 5

    A(f"s_mov_b32 s{S_SLOT}, 0\ns_mov_b32 s{S_CNT}, 0\ns_mov_b32 s{S_KX}, 0")
    vFP, vFV, vFD = 248, 249, 250
    A(f"s_mov_b32 m0, s{S_FR}\ns_mov_b32 s{S_LMT}, {PA or PB}")
    assert PA
    flag_wait(1, vFD, vFP)
    A(f"v_add_u32 v{vFP}, 4, v{vFP}")
    if TS:
        A("s_mov_b32 s48, 0\ns_mov_b32 s49, 0")
    ts(2, 2)
    tc(12)
    for j in range(D):
        rd_w(j, 0)
        for ks, T in xreads(1, j + NB - D):
            rd_x(ks, T)
    lbl = f"L_g1_{kind}"
    A(f"""s_mov_b32 s{S_T0}, {SLOT}
    s_mov_b32 s{S_T0+1}, {-(NS-1)*SLOT & 0xffffffff}
    s_mov_b32 s{S_T0+2}, 16384
    s_mov_b32 s{S_T0+3}, {-32768 & 0xffffffff}""")
    A.label(lbl)
    entry = list(lg.q)
    ring = [f"s_add_u32 s{S_SLOT}, s{S_SLOT}, 1\ns_cmp_eq_u32 s{S_SLOT}, {NS}",
            f"s_cselect_b32 s{S_DELTA}, s{S_T0+1}, s{S_T0}\ns_cselect_b32 s{S_SLOT}, 0, s{S_SLOT}"]
    xring = [f"s_add_u32 s{S_KX}, s{S_KX}, 1\ns_cmp_eq_u32 s{S_KX}, 3",
             f"s_cselect_b32 s{S_KW}, s{S_T0+3}, s{S_T0+2}\ns_cselect_b32 s{S_KX}, 0, s{S_KX}"]
    def adv(r, d):
        return f"v_add_u32 v{r}, s{d}, v{r}"
    for par in range(2):
        fill = {}
        if mlp:
            assert D == 4
            fill[(0, 2)] = ring[0]; fill[(1, 2)] = ring[1]
            fill[(2, 2)] = adv(AW, S_DELTA) + "\n" + adv(AW + 1, S_DELTA)
            fill[(6, 2)] = adv(AW + 2, S_DELTA) + f"\ns_add_u32 m0, m0, 4"; fill[(7, 2)] = adv(AW + 3, S_DELTA)
            fill[(0, 3)] = f"v_add_u32 v{vFP}, 4, v{vFP}"
            fpos, cpos, wpos = (1, 3), (3, 0), (7, 2)
            if par == 0:
                fill[(3, 2)] = xring[0]; fill[(3, 3)] = xring[1]
            else:
                fill[(3, 2)] = adv(AX, S_KW) + "\n" + adv(AX + 1, S_KW)
                fill[(7, 3)] = f"s_add_u32 s{S_CNT}, s{S_CNT}, 1\ns_cmp_lt_u32 s{S_CNT}, s{S_LMT}"
        else:
            assert D == 5
            fill[(2, 1)] = ring[0]; fill[(2, 2)] = ring[1]
            fill[(3, 1)] = adv(AW, S_DELTA); fill[(7, 1)] = adv(AW + 1, S_DELTA)
            fill[(1, 3)] = f"v_add_u32 v{vFP}, 4, v{vFP}"
            fill[(8, 3)] = f"s_add_u32 m0, m0, 4"
            fpos, cpos, wpos = (2, 3), (4, 2), (9, 2)
            if par == 0:
                fill[(8, 1)] = xring[0]; fill[(8, 2)] = xring[1]
            else:
                fill[(4, 1)] = adv(AX, S_KW) + "\n" + adv(AX + 1, S_KW)
                fill[(9, 1)] = f"s_add_u32 s{S_CNT}, s{S_CNT}, 1\ns_cmp_lt_u32 s{S_CNT}, s{S_LMT}"
        for j in range(NB):
            tags = [("w", j, par)]
            if j == 0:
                tags.append(("x", par if mlp else 0))
            if j == 5 and not mlp:
                tags.append(("x", 1))
            jn = j + D
            if jn == NB - 1:
                tags.append("flag")
            lg.wait(tags)
            acts = {0: [], 1: [], 2: [], 3: []}
            g = 0
            if jn == NB:
                acts[0].append(lambda: flag_test(None, vFD, vFP, 0, acc=48, split=True))
                g = 1
            wj, wg = (jn, par) if jn < NB else (jn - NB, par ^ 1)
            if mlp:
                acts[g].append(lambda wj=wj, wg=wg: rd_w(wj, wg, 0))
                acts[g + 1].append(lambda wj=wj, wg=wg: rd_w(wj, wg, 1))
                g += 2
            else:
                acts[g].append(lambda wj=wj, wg=wg: rd_w(wj, wg, 0))
                g += 1
            for n_, (ks, T) in enumerate(xreads(par, j)):
                acts[min(g + n_, 3)].append(lambda ks=ks, T=T: rd_x(ks, T))
            for T in range(4):
                mf(j, T, par)
                for f in acts[T]:
                    f()
                if (j, T) in fill:
                    A(fill[(j, T)])
                if (j, T) == fpos:
                    A(f"ds_read_b32 v{vFD}, v{vFP}")
                    lg.issue("flag")
                if (j, T) == cpos:
                    A(f"v_cmp_ne_u32 vcc, s{S_K}, v{vFD}")
                if (j, T) == wpos:
                    A(f"buffer_load_dword v{VZ}, s[{SRD_F}:{SRD_F+3}], 0 offen lds")
    A(f"s_cbranch_scc1 {lbl}")
    lfin = A.newlabel("L_g1e")
    A(f"s_cmp_eq_u32 s{S_CNT}, 10\ns_cbranch_scc1 {lfin}")
    if PA:
        lw_ = A.newlabel("L_g1w")
        A(f"s_cmp_lg_u32 s{S_CNT}, {PA}\ns_cbranch_scc1 {lw_}")
        if TS == 1:
            ts(30, 2)
        A(f"s_mov_b32 s{S_FR}, m0")
        nonce_load()
        A(f"s_mov_b64 s[{S_M0}:{S_M0+1}], s[{S_T0}:{S_T0+1}]\ns_mov_b64 s[{S_M1}:{S_M1+1}], s[{S_T0+2}:{S_T0+3}]")
        if OPT.get("tp", 0):
            touch_pages(*((198, 199) if mlp else (249, 251)))
        if OPT.get("tw", 3) == 2 and mlp:
            touch_w2(251)
        if mlp:
            by_wave(mlp_rows_loads, mlp_cs_loads)
        else:
            ssm_rows_loads()
        A(f"""s_mov_b64 s[{S_T0}:{S_T0+1}], s[{S_M0}:{S_M0+1}]
        s_mov_b64 s[{S_T0+2}:{S_T0+3}], s[{S_M1}:{S_M1+1}]
        s_mov_b32 m0, s{S_FR}
        s_mov_b32 s{S_LMT}, {PB}""")
        if TS == 1:
            A(f"s_memrealtime s[{S_TS}:{S_TS+1}]\ns_sleep 2\nv_writelane_b32 v255, s{S_TS}, 31")
        A(f"s_branch {lbl}")
        A.label(lw_)
    if TS == 1:
        ts(32, 2)
    nonce_ready()
    if mlp:
        by_wave(mlp_rows_work, mlp_cs_work)
        if OPT.get("tw", 3) == 3:
            A(f"s_mov_b64 s[{S_M0}:{S_M0+1}], s[{S_T0}:{S_T0+1}]\ns_mov_b64 s[{S_M1}:{S_M1+1}], s[{S_T0+2}:{S_T0+3}]")
            touch_w2(251)
            A(f"s_mov_b64 s[{S_T0}:{S_T0+1}], s[{S_M0}:{S_M0+1}]\ns_mov_b64 s[{S_T0+2}:{S_T0+3}], s[{S_M1}:{S_M1+1}]")
    else:
        ssm_rows_work()
    if TS == 1:
        ts(33, 2)
    A(f"s_mov_b32 s{S_LMT}, 10\ns_branch {lbl}")
    A.label(lfin)
    assert lg.q == entry[len(entry) - len(lg.q):]
    return lg, entry, AX, AW

G2_B = 96
G2_A = 128
NS2, SL2 = 9, 16384
def g2slot(s):
    return (s % NS2) * SL2

def rot_next(s, stepA, stepB, baseB):
    if s == 11:
        A(f"s_mul_i32 s{S_KB}, s{S_R2B}, {stepB}")
        if baseB:
            A(f"s_add_u32 s{S_KB}, s{S_KB}, {baseB}")
    elif s < 11:
        A(f"""s_add_u32 s{S_KB}, s{S_KB}, {stepA}
        s_cmp_eq_u32 s{S_KB}, {12*stepA}
        s_cselect_b32 s{S_KB}, 0, s{S_KB}""")
    elif s < 21:
        A(f"""s_add_u32 s{S_KB}, s{S_KB}, {stepB}
        s_cmp_eq_u32 s{S_KB}, {baseB+10*stepB}
        s_cselect_b32 s{S_KB}, {baseB}, s{S_KB}""")

def gemm2_compute(NT):
    NH = NT // 2
    DA = 3 if NT == 6 else OPT.get("DA2", 5)
    RED = 4 * SL2
    GB, GA_ = 48, 112
    vW, vC, vB = 204, 208, 212
    vA = 220
    vT = 224
    vFA, vFP, vFV, vFD, vG = 232, 233, 234, 235, 236
    X, ST, DK, TT = 128, 140, 148, 156
    A(f"""s_lshl_b32 s{S_T0}, s{S_T0}, 5
    s_add_u32 s{S_T0}, s{S_T0}, s{S_T0+1}
    s_lshl_b32 s{S_T0}, s{S_T0}, 2
    s_add_u32 s{S_T0+3}, s{S_T0}, {WS_FLAG}
    s_and_b32 s{S_T0+4}, s{S_WAVE}, 1
    s_mul_i32 s{S_T0+4}, s{S_T0+4}, {NH}
    s_add_u32 s{S_T0+4}, s{S_T0+4}, s{S_TG}            ; first row tile of this wave
    s_and_b32 s{S_T0+5}, s{S_WAVE}, 2""")
    A(f"""s_lshl_b32 s{S_T0}, s{S_T0+4}, 4
    v_and_b32 v{vT}, 15, v{VL}
    v_add_u32 v{vT}, s{S_T0}, v{vT}                    ; row
    v_lshrrev_b32 v{vT+1}, 4, v{VL}
    s_lshl_b32 s{S_T0+1}, s{S_T0+5}, 4
    s_add_u32 s{S_T0+1}, s{S_T0+1}, s{S_DCOL}
    v_lshl_add_u32 v{vT+1}, v{vT+1}, 2, s{S_T0+1}      ; column
    v_mul_u32_u24 v{vT+2}, 640, v{vT}
    v_add_u32 v{vT+2}, v{vT+2}, v{vT+1}
    v_lshlrev_b32 v{vT+3}, 2, v{vT+2}
    v_lshlrev_b32 v{vT+2}, 1, v{vT+2}
    v_lshlrev_b32 v{vT+1}, 1, v{vT+1}
    v_lshlrev_b32 v{vT+4}, 3, v{vT}
    v_add_u32 v{vT+4}, {WS_STAT}, v{vT+4}""")
    for Tp in range(NH):
        for U in range(2):
            A(f"global_load_dwordx2 v[{X+4*Tp+2*U}:{X+4*Tp+2*U+1}], v{vT+2}, s[{S_X}:{S_X+1}] offset:{32*U}")
        if Tp < NH - 1:
            A(f"v_add_u32 v{vT+2}, {16*1280}, v{vT+2}")
    for U in range(2):
        A(f"global_load_dwordx2 v[{DK+4*U}:{DK+4*U+1}], v{vT+1}, s[{S_DSK}:{S_DSK+1}] offset:{32*U}")
    def stat_loads_():
        for Tp in range(NH):
            A(f"global_load_dwordx2 v[{ST+2*Tp}:{ST+2*Tp+1}], v{vT+4}, s[{S_WS}:{S_WS+1}] offset:{128*Tp} sc1")
    stat_loads_()
    A(f"""v_lshrrev_b32 v{vT}, 4, v{VL}               ; q
    v_bfe_u32 v{vT+1}, v{VL}, 2, 2                     ; rr
    v_lshl_add_u32 v{vT+1}, v{vT}, 2, v{vT+1}          ; 4q + rr
    v_bfe_u32 v{vT+5}, v{vT+1}, 1, 2                   ; swizzle
    s_lshl_b32 s{S_T0}, s{S_T0+5}, 5
    v_add_u32 v{vT+1}, s{S_T0}, v{vT+1}
    v_lshlrev_b32 v{vT+1}, 7, v{vT+1}
    v_and_b32 v{vT+2}, 3, v{VL}
    v_lshl_add_u32 v{vT+1}, v{vT+2}, 3, v{vT+1}
    v_and_b32 v{vT+2}, 1, v{vT}
    s_lshl_b32 s{S_T0}, s{S_T0+5}, 1
    v_add_u32 v{vT+2}, s{S_T0}, v{vT+2}
    v_bfe_u32 v{vT+6}, v{VL}, 1, 3
    v_xor_b32 v{vT+2}, v{vT+2}, v{vT+6}
    v_lshrrev_b32 v{vT}, 1, v{vT}
    v_lshlrev_b32 v{vT}, 13, v{vT}
    v_lshl_add_u32 v{vT}, v{vT+2}, 4, v{vT}
    v_and_b32 v{vT+6}, 15, v{VL}
    v_lshl_add_u32 v{vT}, v{vT+6}, 7, v{vT}""")
    for Up in range(4):
        A(f"""s_xor_b32 s{S_T0}, s{S_T0+5}, {Up}
        v_xor_b32 v{vT+2}, s{S_T0}, v{vT+5}
        v_lshl_add_u32 v{vW+Up}, v{vT+2}, 5, v{vT+1}
        s_lshl_b32 s{S_T0}, s{S_T0}, 11
        v_add_u32 v{vC+Up}, s{S_T0}, v{vT}""")
    A(f"v_lshlrev_b32 v{vT}, 4, v{VL}\ns_lshl_b32 s{S_T0+1}, s{S_HB2}, 2\ns_sub_u32 s{S_T0+1}, s{S_T0+4}, s{S_T0+1}")
    for Tp in range(NH):
        A(f"""s_add_u32 s{S_T0}, s{S_T0+1}, {Tp}
        s_lshr_b32 s{S_T0+2}, s{S_T0}, 2
        s_mul_i32 s{S_T0+2}, s{S_T0+2}, {88*4-4}
        s_add_u32 s{S_T0}, s{S_T0}, s{S_T0+2}
        s_lshl_b32 s{S_T0}, s{S_T0}, 10
        v_add_u32 v{vA+Tp}, s{S_T0}, v{vT}""")
    A(f"""s_mul_i32 s{S_T0}, s{S_HB2}, {88*4096}
    s_lshl_b32 s{S_T0+1}, s{S_T0+5}, 12
    s_add_u32 s{S_T0}, s{S_T0}, s{S_T0+1}
    s_add_u32 s{S_T0}, s{S_T0}, {WS_ACT}
    s_add_u32 s{SRD_T}, s{S_WS}, s{S_T0}
    s_addc_u32 s{SRD_T+1}, s{S_WS+1}, 0
    s_mov_b32 s{SRD_T+2}, {(88+86)*4096}
    s_mov_b32 s{SRD_T+3}, 0x20000
    s_lshl_b32 s{S_KB}, s{S_R2A}, 14""")
    lr, lo = A.newlabel("L_fl"), A.newlabel("L_fl")
    A(f"""s_lshl_b32 s{S_T0}, s{S_HB2}, 7
    s_add_u32 s{S_T0}, s{S_T0}, {WS_FLAG}
    v_and_b32 v{vFA}, {63 if NT == 6 else 31}, v{VL}
    v_lshlrev_b32 v{vFA}, 2, v{vFA}
    v_add_u32 v{vFA}, s{S_T0}, v{vFA}
    s_lshr_b32 s{S_T0+1}, s{S_WAVE}, 1
    s_lshl_b32 s{S_T0+1}, 0x555555, s{S_T0+1}
    v_mov_b32 v{vT}, s{S_T0+3}
    v_mov_b32 v{vT+1}, s{S_NONCE}
    s_waitcnt vmcnt({3*NH+2})
    s_mov_b64 exec, 1
    global_store_dword v{vT}, v{vT+1}, s[{S_WS}:{S_WS+1}] sc1
    s_mov_b64 exec, -1""")
    ts(6, 2)
    ls, lk = A.newlabel("L_st"), A.newlabel("L_st")
    if OPT.get("nobase", 0):
        A(f"s_branch {lk}")
    A("s_waitcnt vmcnt(1)")
    A.label(ls)
    A(f"s_mov_b64 s[{S_M0}:{S_M0+1}], 0")
    for Tp in range(NH):
        A(f"v_cmp_ne_u32 vcc, s{S_NONCE}, v{ST+2*Tp+1}\ns_nop 1\ns_or_b64 s[{S_M0}:{S_M0+1}], s[{S_M0}:{S_M0+1}], vcc")
    A(f"s_cmp_eq_u64 s[{S_M0}:{S_M0+1}], 0\ns_cbranch_scc1 {lk}")
    stat_loads_()
    A("s_waitcnt vmcnt(0)")
    spin_tail(ls, lk, 1)
    A.label(lk)
    def unpack(dst, src):
        A(f"""v_and_b32 v{dst+3}, 0xffff0000, v{src+1}
        v_lshlrev_b32 v{dst+2}, 16, v{src+1}
        v_and_b32 v{dst+1}, 0xffff0000, v{src}
        v_lshlrev_b32 v{dst}, 16, v{src}""")
    def rnd(r, t):
        A(f"""v_cvt_pk_bf16_f32 v{t}, v{r}, v{r+1}
        v_cvt_pk_bf16_f32 v{t+1}, v{r+2}, v{r+3}""")
        unpack(r, t)
    unpack(DK, DK)
    unpack(DK + 4, DK + 4)
    EP = OPT.get("epoll", 9)
    for Tp in range(NH if not OPT.get("nobase", 0) else 0):
        st_ = ST + 2 * Tp
        if Tp == min(EP, NH - 1) and EP < 9:
            A(f"global_load_dword v{vG}, v{vFA}, s[{S_WS}:{S_WS+1}] sc1")
        A(f"""v_and_b32 v{st_+1}, 0xffff0000, v{st_}
        v_lshlrev_b32 v{st_}, 16, v{st_}
        v_rcp_f32 v{st_+1}, v{st_+1}""")
        for U in range(2):
            acc = (U * NH + Tp) * 4
            unpack(acc, X + 4 * Tp + 2 * U)
            for h in (0, 2):
                A(f"v_pk_add_f32 v[{TT+h}:{TT+h+1}], v[{acc+h}:{acc+h+1}], v[{st_}:{st_+1}] op_sel_hi:[1,0] neg_lo:[0,1] neg_hi:[0,1]")
            rnd(TT, TT + 4)
            for h in (0, 2):
                A(f"v_pk_mul_f32 v[{TT+h}:{TT+h+1}], v[{TT+h}:{TT+h+1}], v[{st_}:{st_+1}] op_sel:[0,1] op_sel_hi:[1,1]")
            rnd(TT, TT + 4)
            for h in (0, 2):
                A(f"v_pk_mul_f32 v[{TT+h}:{TT+h+1}], v[{TT+h}:{TT+h+1}], v[{DK+4*U+h}:{DK+4*U+h+1}]")
            rnd(TT, TT + 4)
            for h in (0, 2):
                A(f"v_pk_add_f32 v[{acc+h}:{acc+h+1}], v[{acc+h}:{acc+h+1}], v[{TT+h}:{TT+h+1}]")
    if EP < 9:
        A(f"s_branch {lr}b")
    A.label(lr)
    A(f"global_load_dword v{vG}, v{vFA}, s[{S_WS}:{S_WS+1}] sc1")
    A.label(f"{lr}b")
    A(f"""s_waitcnt vmcnt(0)
    v_cmp_eq_u32 vcc, s{S_NONCE}, v{vG}
    s_nop 1
    s_and_b32 s{S_T0+2}, vcc_lo, vcc_hi
    s_and_b32 s{S_T0+2}, s{S_T0+2}, s{S_T0+1}
    s_cmp_eq_u32 s{S_T0+2}, s{S_T0+1}
    s_cbranch_scc1 {lo}""")
    if OPT.get("nogate", 0) < 2:
        spin_tail(lr, lo, 2)
    A.label(lo)
    ts(7, 2)
    tc(14)
    if TS:
        A("s_mov_b32 s48, 0\ns_mov_b32 s49, 0")
    vm = Queue(A, "vmcnt", 63)
    A(f"s_add_u32 s{S_T0+4}, s{S_KB}, 4096\nv_lshlrev_b32 v{vFA}, 4, v{VL}\nv_add_u32 v{vFA}, {AUX}, v{vFA}")
    def ldA1(s, i):
        u, Tp = i // NH, i % NH
        b = GA_ + ((s % DA) * NT + i) * 4
        A(f"buffer_load_dwordx4 v[{b}:{b+3}], v{vA+Tp}, s[{SRD_T}:{SRD_T+3}], s{S_T0+4 if u else S_KB} offen sc1")
        vm.issue(("a", s))
        if i == NT - 1:
            rot_next(s, 16384, 16384, 12 * 16384)
            if s < 21:
                A(f"s_add_u32 s{S_T0+4}, s{S_KB}, 4096")
    def ldA(s):
        for i in range(NT):
            ldA1(s, i)
    def rdB(s, j):
        u, U = j // 4, j % 4
        b = GB + (s % 2) * 32 + j * 4
        if s < 12:
            A(f"ds_read_b64_tr_b16 v[{b}:{b+1}], v{vB+U} offset:{4096*u}")
            A(f"ds_read_b64_tr_b16 v[{b+2}:{b+3}], v{vB+U} offset:{4096*u+2048}")
        else:
            A(f"ds_read_b128 v[{b}:{b+3}], v{vB+j}")
    def setB(s, us=range(4)):
        for U in us:
            A(f"v_add_u32 v{vB+U}, {g2slot(s)}, v{(vW if s < 12 else vC)+U}")
    def setB2(s, us=range(4)):
        if s >= 12:
            for U in us:
                A(f"v_xor_b32 v{vB+4+U}, 32, v{vB+U}")
    assert GA_ + DA * NT * 4 <= vW
    peer_addr(vFP, FLG)
    R0 = OPT.get("ramp", 2) if NT == 6 else DA - 1
    st = {"nxt": R0}
    for s in range(R0):
        ldA(s)
    A(f"v_mov_b32 v{vFV}, s{S_K}")
    flag_wait(22, vFD, vFP)
    setB(0)
    for j in range(8):
        rdB(0, j)
    A(f"ds_read_b32 v{vFD}, v{vFP} offset:{4*23}")
    GATE = 12 - (DA - 1)
    def stage(s, limit):
        A(f"s_waitcnt lgkmcnt({1 if s else 0})")
        if TS == 2:
            ts(16 + s, 2)
        if TS == 3:
            A(f"s_memtime s[{S_TS}:{S_TS+1}]\ns_waitcnt lgkmcnt(0)\ns_mov_b32 s50, s{S_TS}")
        vm.wait(("a", s))
        if TS == 3:
            A(f"s_memtime s[{S_TS}:{S_TS+1}]\ns_waitcnt lgkmcnt(0)\ns_sub_u32 s50, s{S_TS}, s50\nv_writelane_b32 v255, s50, {16+s}\nv_writelane_b32 v255, s{S_TS}, {40+s}")
        todo = []
        while st["nxt"] <= min(limit, s - 1 + DA, 21) and len(todo) < 2 * NT:
            todo += [(st["nxt"], i) for i in range(NT)]
            st["nxt"] += 1
        acts = []
        if s < 21:
            acts.append(lambda: (A(f"v_cmp_ne_u32 vcc, s{S_K}, v{vFD}"), setB(s + 1, (0,))))
            acts.append(lambda: setB(s + 1, (1, 2)))
            acts.append(lambda: (flag_test(23 + s, vFD, vFP, 4 * (23 + s), split=True, acc=48), setB(s + 1, (3,))))
            for j in range(8):
                acts.append(lambda j=j: (rdB(s + 1, j), setB2(s + 1, (j,)) if j < 4 else None))
        if s < 20:
            acts.append(lambda: A(f"ds_read_b32 v{vFD}, v{vFP} offset:{4*(24+s)}"))
        if s == GATE - 1:
            acts.append(lambda: A(f"ds_read_b32 v{vG}, v{vFA}"))
        acts.append(lambda: A(f"ds_write_b32 v{VFO}, v{vFV} offset:{4*(22+s)}"))
        lds = [lambda x=x: ldA1(*x) for x in todo]
        nm = 4 * NT
        sched = {i: [] for i in range(nm)}
        per = -(-len(acts) // max(nm - 2, 1))
        for i, f in enumerate(acts):
            sched[i // per].append(f)
        first = OPT.get("lf", 12) if NT == 6 else 0
        for i, f in enumerate(lds):
            sched[min(first + i * (nm - first) // len(lds), nm - 1)].append(f)
        n = 0
        for u in range(2):
            for U in range(4):
                for Tp in range(NH):
                    acc = (U * NH + Tp) * 4
                    w = GB + (s % 2) * 32 + (u * 4 + U) * 4
                    a = GA_ + ((s % DA) * NT + u * NH + Tp) * 4
                    cin = "0" if (s == 0 and u == 0 and U >= 2) else f"v[{acc}:{acc+3}]"
                    A(f"v_mfma_f32_16x16x32_bf16 v[{acc}:{acc+3}], v[{w}:{w+3}], v[{a}:{a+3}], {cin}")
                    for f in sched[n]:
                        f()
                    n += 1
    llate, ljoin = A.newlabel("L_late"), A.newlabel("L_join")
    for s in range(22):
        if s == GATE:
            assert st["nxt"] == 12
            A("s_waitcnt lgkmcnt(1)")
            if not OPT.get("nogate", 0):
                A(f"v_cmp_le_u32 vcc, 3, v{vG}\ns_cbranch_vccz {llate}")
            keep = list(vm.q)
            mark = len(A.lines)
            A.label(llate)
            for s2_ in range(GATE, 12):
                stage(s2_, 11)
            lr, lo = A.newlabel("L_fs"), A.newlabel("L_fs")
            A.label(lr)
            A(f"""ds_read_b32 v{vG}, v{vFA}
            s_waitcnt lgkmcnt(0)
            v_cmp_le_u32 vcc, 3, v{vG}
            s_cbranch_vccnz {lo}""")
            spin_tail(lr, lo, 1)
            A.label(lo)
            vm.q = []
            for s2_ in range(12, 12 + DA - 1):
                ldA(s2_)
            A(f"s_branch {ljoin}")
            late_q = list(vm.q)
            SLOW.extend(A.lines[mark:])
            del A.lines[mark:]
            vm.q = keep
            st["nxt"] = 12
        if s == 12:
            A.label(ljoin)
            assert vm.q[-NT*(DA-1):] == late_q and st["nxt"] == 12 + DA - 1
        stage(s, 21)
    ts(8, 2)
    tc(15)
    if TS == 3:
        A("v_writelane_b32 v255, s48, 62\nv_writelane_b32 v255, s49, 63")
    flag_wait(36, vFD, vFP, 2048)
    A(f"""v_lshlrev_b32 v{vB}, 4, v{VL}
    s_mul_i32 s{S_T0}, s{S_WAVE}, {NT*1024}
    s_add_u32 s{S_T0}, s{S_T0}, {RED}
    v_add_u32 v{vB+1}, s{S_T0}, v{vB}
    s_xor_b32 s{S_T0}, s{S_WAVE}, 2
    s_mul_i32 s{S_T0}, s{S_T0}, {NT*1024}
    s_add_u32 s{S_T0}, s{S_T0}, {RED}
    v_add_u32 v{vB}, s{S_T0}, v{vB}""")
    for i in range(NT):
        acc = (NT + i) * 4
        A(f"ds_write_b128 v{vB+1}, v[{acc}:{acc+3}] offset:{i*1024}")
    A("s_waitcnt lgkmcnt(0)\ns_barrier")
    for i in range(NT):
        b = (NT + i) * 4
        A(f"ds_read_b128 v[{b}:{b+3}], v{vB} offset:{i*1024}")
    order = [(Tp, U) for Tp in range(NH) for U in range(2)]
    A("s_waitcnt lgkmcnt(0)")
    for Tp, U in order:
        i = U * NH + Tp
        a0, a1 = i * 4, (NT + i) * 4
        for h in (0, 2):
            A(f"v_pk_add_f32 v[{a0+h}:{a0+h+1}], v[{a0+h}:{a0+h+1}], v[{a1+h}:{a1+h+1}]")
        A(f"global_store_dwordx4 v{vT+3}, v[{a0}:{a0+3}], s[{S_OUT}:{S_OUT+1}] offset:{64*U}{['', ' sc1', ' nt', ' sc0 sc1'][OPT.get('omod', 2)]}")
        if U == 1 and Tp < NH - 1:
            A(f"v_add_u32 v{vT+3}, {16*2560}, v{vT+3}")
    ts(9, 2)
    ts_flush(200)
    A("s_endpgm")
    flush_slow()

def publish_flag(idx_code):
    A(f"""s_lshl_b32 s{S_T0}, s{S_T0}, 5
    s_add_u32 s{S_T0}, s{S_T0}, s{S_T0+1}
    s_lshl_b32 s{S_T0}, s{S_T0}, 2
    s_add_u32 s{S_T0}, s{S_T0}, {WS_FLAG}
    v_mov_b32 v250, s{S_T0}
    v_mov_b32 v251, s{S_NONCE}
    s_waitcnt vmcnt({idx_code})
    s_mov_b64 exec, 1
    global_store_dword v250, v251, s[{S_WS}:{S_WS+1}] sc1
    s_mov_b64 exec, -1""")

A.label("L_compute")
A(f"s_setprio {OPT.get('pc1', 2)}")
if OPT.get("pfc", 1):
    A(f"""s_cmp_lg_u32 s{S_WAVE}, 3
    s_cbranch_scc1 L_pcd
    s_getpc_b64 s[{S_M0}:{S_M0+1}]
    L_pcc:
    s_sub_u32 s{S_M0}, s{S_M0}, L_pcc-L_code_start
    s_subb_u32 s{S_M0+1}, s{S_M0+1}, 0
    s_lshl_b32 s{S_T0}, s{S_IDX}, 11
    v_and_b32 v2, 15, v{VL}
    v_lshlrev_b32 v2, 7, v2
    v_add_u32 v2, s{S_T0}, v2
    v_min_u32 v2, L_code_end-L_code_start-8, v2
    global_load_dword v247, v2, s[{S_M0}:{S_M0+1}]
    L_pcd:""")
A(f"s_waitcnt lgkmcnt(0)\ns_load_dword s{S_K}, s[{S_X}:{S_X+1}], 0")
srd(SRD_F, S_X, 4)
flag_init(FREE, S_WAVE, 248, FLG, None)
A(f"s_mov_b32 s{S_FR}, s{S_T0}")
late_scalars()
A(f"s_cmp_eq_u32 s{S_J}, 0\ns_cbranch_scc1 L_ssm_compute")
if OPT.get("tw", 3) == 1:
    touch_w2(251)
A('v_mov_b32 v249, 0')
if PA == 0:
    by_wave(mlp_rows_loads, mlp_cs_loads)
zero_regs(0, 128)()
rowpat_read(192, 198)
A(f"""s_and_b32 s{S_T0}, s{S_WAVE}, 1
s_lshl_b32 s{S_T0}, s{S_T0}, 13
v_add_u32 v192, s{S_T0}, v192
v_xor_b32 v193, 64, v192
v_lshrrev_b32 v198, 4, v{VL}              ; q
v_bfe_u32 v199, v{VL}, 2, 2               ; rr
v_and_b32 v160, 1, v198
v_lshl_add_u32 v160, v160, 2, v199        ; swizzle s
v_lshl_add_u32 v198, v198, 3, v199        ; k row
v_lshlrev_b32 v198, 8, v198
v_and_b32 v199, 3, v{VL}
v_lshl_add_u32 v198, v199, 3, v198
v_add_u32 v198, {WRING}, v198
s_lshr_b32 s{S_T0}, s{S_WAVE}, 1
s_lshl_b32 s{S_T0}, s{S_T0}, 2""")
for F in range(4):
    A(f"""s_add_u32 s{S_T0+1}, s{S_T0}, {F}
    v_xor_b32 v199, s{S_T0+1}, v160
    v_lshl_add_u32 v{194+F}, v199, 5, v198""")
ts(1, 2)
lg, entry, AX, AW = gemm1_loop("mlp")
A("s_waitcnt lgkmcnt(0)")
ts(3, 2)
tc(13)
if TS:
    A("v_writelane_b32 v255, s48, 10\nv_writelane_b32 v255, s49, 11")
if OPT.get("solo", 0):
    ts_flush(100)
    A("s_endpgm")
A(f"s_setprio {OPT.get('pc2', 3)}")
ER = 128
EC = 144
A(f"""s_and_b32 s{S_T0}, s{S_WAVE}, 1
s_lshl_b32 s{S_T0}, s{S_T0}, 10
s_add_u32 s{S_T0}, s{S_T0}, {M_ROW}
v_and_b32 v192, 15, v{VL}
v_lshlrev_b32 v192, 4, v192
v_add_u32 v192, s{S_T0}, v192
s_lshr_b32 s{S_T0}, s{S_WAVE}, 1
s_lshl_b32 s{S_T0}, s{S_T0}, 8
s_add_u32 s{S_T0}, s{S_T0}, {M_CS}
v_lshrrev_b32 v193, 4, v{VL}
v_lshlrev_b32 v193, 4, v193
v_add_u32 v193, s{S_T0}, v193""")
for T in range(4):
    A(f"ds_read_b128 v[{ER+4*T}:{ER+4*T+3}], v192 offset:{256*T}")
for F in range(4):
    for c in range(2):
        b = EC + (F * 2 + c) * 4
        A(f"ds_read_b128 v[{b}:{b+3}], v193 offset:{c*512+F*64}")
A(f"""s_lshl_b32 s{S_T0}, s{S_C}, 1
s_and_b32 s{S_T0+1}, s{S_WAVE}, 1
s_add_u32 s{S_T0}, s{S_T0}, s{S_T0+1}
s_mul_i32 s{S_T0}, s{S_T0}, 88
s_lshl_b32 s{S_T0+1}, s{S_CB}, 2
s_add_u32 s{S_T0}, s{S_T0}, s{S_T0+1}
s_and_b32 s{S_T0+1}, s{S_WAVE}, 2
s_add_u32 s{S_T0}, s{S_T0}, s{S_T0+1}
s_lshl_b32 s{S_T0}, s{S_T0}, 12
s_add_u32 s{S_T0}, s{S_T0}, {WS_ACT}
v_lshlrev_b32 v194, 4, v{VL}
v_add_u32 v194, s{S_T0}, v194
v_add_u32 v195, 4096, v194
s_waitcnt lgkmcnt(0)""")
if TS == 1:
    ts(16, 2)
ET = 176
EO = 184
n = 0
for u in range(2):
    for T in range(4):
        m = ER + 4 * T
        prs = []
        for F in (2 * u, 2 * u + 1):
            for h in (0, 2):
                g = ((F * 2 + 0) * 4 + T) * 4 + h
                up = ((F * 2 + 1) * 4 + T) * 4 + h
                prs.append((g, up, EC + (F * 2) * 4 + h, EC + (F * 2 + 1) * 4 + h))
        for i, (g, up, cg, cu) in enumerate(prs):
            A(f"v_pk_fma_f32 v[{g}:{g+1}], v[{cg}:{cg+1}], v[{m}:{m+1}], v[{g}:{g+1}] op_sel_hi:[1,0,1] neg_lo:[0,1,0] neg_hi:[0,1,0]")
        for i, (g, up, cg, cu) in enumerate(prs):
            e = ET + 2 * i
            A(f"v_pk_mul_f32 v[{e}:{e+1}], v[{g}:{g+1}], v[{m}:{m+1}] op_sel:[0,1] op_sel_hi:[1,1]")
        for i, (g, up, cg, cu) in enumerate(prs):
            e = ET + 2 * i
            A(f"v_exp_f32 v{e}, v{e}\nv_exp_f32 v{e+1}, v{e+1}")
            A(f"v_pk_fma_f32 v[{up}:{up+1}], v[{cu}:{cu+1}], v[{m}:{m+1}], v[{up}:{up+1}] op_sel_hi:[1,0,1] neg_lo:[0,1,0] neg_hi:[0,1,0]")
        for i, (g, up, cg, cu) in enumerate(prs):
            e = ET + 2 * i
            A(f"v_pk_fma_f32 v[{e}:{e+1}], v[{e}:{e+1}], v[{m+2}:{m+3}], v[{m+2}:{m+3}] op_sel_hi:[1,0,0]")
        for i, (g, up, cg, cu) in enumerate(prs):
            e = ET + 2 * i
            A(f"v_rcp_f32 v{e}, v{e}\nv_rcp_f32 v{e+1}, v{e+1}")
            A(f"v_pk_mul_f32 v[{g}:{g+1}], v[{g}:{g+1}], v[{up}:{up+1}]")
        for i, (g, up, cg, cu) in enumerate(prs):
            e = ET + 2 * i
            A(f"v_pk_mul_f32 v[{g}:{g+1}], v[{g}:{g+1}], v[{e}:{e+1}]")
        o = EO + 4 * (n % 2)
        for i, (g, up, cg, cu) in enumerate(prs):
            A(f"v_cvt_pk_bf16_f32 v{o+i}, v{g}, v{g+1}")
        if TS == 1 and n % 2 == 0:
            ts(17 + n, 2)
        if not OPT.get("nost", 0):
            A(f"global_store_dwordx4 v{194+u}, v[{o}:{o+3}], s[{S_WS}:{S_WS+1}] offset:{1024*T} sc1")
        if TS == 1 and n % 2 == 0:
            ts(18 + n, 2)
        n += 1
ts(4, 2)
A(f"""s_lshl_b32 s{S_T0}, s{S_C}, 1
s_and_b32 s{S_T0+1}, s{S_WAVE}, 1
s_add_u32 s{S_T0}, s{S_T0}, s{S_T0+1}
s_lshl_b32 s{S_T0+1}, s{S_CB}, 1
s_lshr_b32 s{S_T0+2}, s{S_WAVE}, 1
s_add_u32 s{S_T0+1}, s{S_T0+1}, s{S_T0+2}""")
gemm2_compute(6)

A.label("L_ssm_compute")
if PA == 0:
    ssm_rows_loads()
zero_regs(0, 160)()
rowpat_read(232, 160)
A(f"""s_lshr_b32 s{S_T0}, s{S_WAVE}, 1
s_mul_i32 s{S_T0}, s{S_T0}, 10240
s_add_u32 s{S_T0}, s{S_T0}, {WRING}
v_add_u32 v234, s{S_T0}, v232
v_xor_b32 v235, 64, v234
s_and_b32 s{S_T0}, s{S_WAVE}, 1
s_lshl_b32 s{S_T0}, s{S_T0}, 13
v_add_u32 v232, s{S_T0}, v232
v_xor_b32 v233, 64, v232""")
ts(1, 2)
lg, entry, AX, AW = gemm1_loop("ssm")
A("s_waitcnt lgkmcnt(0)")
ts(3, 2)
tc(13)
if TS:
    A("v_writelane_b32 v255, s48, 10\nv_writelane_b32 v255, s49, 11")
if OPT.get("solo", 0):
    ts_flush(100)
    A("s_endpgm")
A(f"s_setprio {OPT.get('pc2', 3)}")
def acc(G, c, m, r=0):
    return ((G * 2 + c) * 4 + m) * 4 + r
SM, SR_ = 160, 176
SCS = 192
SLAM = 202
SK = 212
SA = 222
A(f"""s_and_b32 s{S_T0}, s{S_WAVE}, 1
s_lshl_b32 s{S_T0}, s{S_T0}, 8
s_add_u32 s{S_T0}, s{S_T0}, {M_ROW}
v_lshrrev_b32 v{SA}, 4, v{VL}
v_lshlrev_b32 v{SA}, 4, v{SA}
v_add_u32 v{SA}, s{S_T0}, v{SA}
s_lshr_b32 s{S_T0+1}, s{S_WAVE}, 1
s_mul_i32 s{S_T0+1}, s{S_T0+1}, 80
v_and_b32 v{SA+1}, 15, v{VL}
v_add_u32 v{SA+1}, s{S_T0+1}, v{SA+1}
v_lshlrev_b32 v{SA+2}, 2, v{SA+1}
v_add_u32 v{SA+3}, {M_CS}, v{SA+2}
v_lshlrev_b32 v{SA+4}, 3, v{SA+1}
v_add_u32 v{SA+4}, {M_LAM}, v{SA+4}""")
for m in range(4):
    A(f"ds_read_b128 v[{SM+4*m}:{SM+4*m+3}], v{SA} offset:{64*m}")
    A(f"ds_read_b128 v[{SR_+4*m}:{SR_+4*m+3}], v{SA} offset:{512+64*m}")
for G in range(5):
    A(f"ds_read_b32 v{SCS+2*G}, v{SA+3} offset:{64*G}")
    A(f"ds_read_b32 v{SCS+2*G+1}, v{SA+3} offset:{640+64*G}")
for G in range(5):
    A(f"ds_read_b64 v[{SLAM+2*G}:{SLAM+2*G+1}], v{SA+4} offset:{128*G}")
    A(f"ds_read_b64 v[{SK+2*G}:{SK+2*G+1}], v{SA+4} offset:{M_COEF-M_LAM+128*G}")
A(f"""s_and_b32 s{S_T0}, s{S_WAVE}, 1
s_mul_i32 s{S_T0}, s{S_T0}, {8*1280}
s_add_u32 s{S_T0}, s{S_T0}, {E_BASE}
v_lshrrev_b32 v{SA+5}, 4, v{VL}
v_mul_u32_u24 v{SA+5}, 2560, v{SA+5}
v_lshl_add_u32 v{SA+5}, v{SA+2}, 1, v{SA+5}
v_add_u32 v{SA+5}, s{S_T0}, v{SA+5}
v_add_u32 v{SA+7}, 1280, v{SA+5}
s_waitcnt lgkmcnt(0)""")
def pk(op, d, a, b, c=None, sa=None, sb=None, sc=None, neg=None):
    ops = [a, b] + ([c] if c is not None else [])
    sel = [sa, sb] + ([sc] if c is not None else [])
    lo = [0 if s is None else s for s in sel]
    hi = [1 if s is None else s for s in sel]
    t = f"v_pk_{op}_f32 v[{d}:{d+1}], " + ", ".join(f"v[{o}:{o+1}]" for o in ops)
    t += " op_sel:[" + ",".join(map(str, lo)) + "] op_sel_hi:[" + ",".join(map(str, hi)) + "]"
    if neg is not None:
        nn = [1 if i == neg else 0 for i in range(len(ops))]
        t += " neg_lo:[" + ",".join(map(str, nn)) + "] neg_hi:[" + ",".join(map(str, nn)) + "]"
    A(t)
for m in range(4):
    for h in (0, 2):
        for G in range(5):
            for c in range(2):
                a = acc(G, c, m, h)
                pk("fma", a, SM + 4 * m + h, SCS + 2 * G, a, sb=c, neg=1)
        for G in range(5):
            for c in range(2):
                a = acc(G, c, m, h)
                pk("mul", a, a, SR_ + 4 * m + h)
steps = [(m, h) for m in range(4) for h in (0, 2)]
for k in range(1, 8):
    (m, h), (pm, ph) = steps[k], steps[k - 1]
    for G in range(5):
        pk("fma", acc(G, 0, m, h), acc(G, 0, pm, ph), SLAM + 2 * G, acc(G, 0, m, h), sb=0)
        pk("fma", acc(G, 1, m, h), acc(G, 1, pm, ph), SLAM + 2 * G, acc(G, 1, m, h), sb=0)
    for G in range(5):
        pk("fma", acc(G, 0, m, h), acc(G, 1, pm, ph), SLAM + 2 * G, acc(G, 0, m, h), sb=1, neg=1)
        pk("fma", acc(G, 1, m, h), acc(G, 0, pm, ph), SLAM + 2 * G, acc(G, 1, m, h), sb=1)
peer_addr(248, FREE)
flag_wait(18, 250, 248)
for G in range(5):
    for e in range(2):
        A(f"ds_write2_b32 v{SA+5+2*e}, v{acc(G,0,3,2+e)}, v{acc(G,1,3,2+e)} offset0:{32*G} offset1:{32*G+1}")
A("s_waitcnt lgkmcnt(0)\ns_setprio 0\ns_barrier")
ts(4, 2)
for m, h in steps:
    for G in range(5):
        t = SM + 2 * G
        pk("mul", t, acc(G, 0, m, h), SK + 2 * G, sb=1)
    for G in range(5):
        pk("mul", acc(G, 0, m, h), acc(G, 0, m, h), SK + 2 * G, sb=0)
    for G in range(5):
        pk("fma", acc(G, 0, m, h), acc(G, 1, m, h), SK + 2 * G, acc(G, 0, m, h), sb=1)
    for G in range(5):
        t = SM + 2 * G
        pk("fma", acc(G, 1, m, h), acc(G, 1, m, h), SK + 2 * G, t, sb=0, neg=1)
A(f"""s_mul_i32 s{S_T0}, s{S_WAVE}, 12288
s_add_u32 s{S_T0}, s{S_T0}, {TR_BASE}
v_and_b32 v{SA}, 7, v{VL}
v_bfe_u32 v{SA+1}, v{VL}, 3, 1
v_lshlrev_b32 v{SA+1}, 2, v{SA+1}
v_xor_b32 v{SA}, v{SA}, v{SA+1}                ; f
v_lshrrev_b32 v{SA+1}, 4, v{VL}
v_lshlrev_b32 v{SA+1}, 1, v{SA+1}
v_xor_b32 v{SA}, v{SA}, v{SA+1}                ; (2q) ^ f
v_and_b32 v{SA+1}, 15, v{VL}
v_lshlrev_b32 v{SA+1}, 7, v{SA+1}
v_lshl_add_u32 v{SA}, v{SA}, 4, v{SA+1}
v_add_u32 v{SA}, s{S_T0}, v{SA}                ; e = 0
v_xor_b32 v{SA+1}, 16, v{SA}                   ; e = 1
v_lshrrev_b32 v{SA+2}, 4, v{VL}                ; q
v_bfe_u32 v{SA+3}, v{VL}, 2, 2                 ; rr
v_and_b32 v{SA+4}, 1, v{SA+2}
v_lshl_add_u32 v{SA+4}, v{SA+4}, 2, v{SA+3}
v_bfe_u32 v{SA+6}, v{VL}, 1, 1                 ; cc>>1
v_xor_b32 v{SA+4}, v{SA+4}, v{SA+6}
v_lshl_add_u32 v{SA+2}, v{SA+2}, 3, v{SA+3}    ; row
v_lshlrev_b32 v{SA+2}, 7, v{SA+2}
v_lshl_add_u32 v{SA+2}, v{SA+4}, 4, v{SA+2}
v_and_b32 v{SA+3}, 1, v{VL}
v_lshl_add_u32 v{SA+2}, v{SA+3}, 3, v{SA+2}
v_add_u32 v{SA+2}, s{S_T0}, v{SA+2}""")
TA = 176
for Tq in range(4):
    A(f"v_xor_b32 v{TA+2*Tq}, {32*Tq}, v{SA+2}")
    A(f"v_xor_b32 v{TA+2*Tq+1}, {(32*Tq) ^ 64}, v{SA+2}")
A(f"""s_lshl_b32 s{S_T0}, s{S_C}, 1
s_and_b32 s{S_T0+1}, s{S_WAVE}, 1
s_add_u32 s{S_T0}, s{S_T0}, s{S_T0+1}
s_mul_i32 s{S_T0}, s{S_T0}, 88
s_mul_i32 s{S_T0+1}, s{S_CB}, 10
s_add_u32 s{S_T0}, s{S_T0}, s{S_T0+1}
s_lshr_b32 s{S_T0+1}, s{S_WAVE}, 1
s_mul_i32 s{S_T0+1}, s{S_T0+1}, 5
s_add_u32 s{S_T0}, s{S_T0}, s{S_T0+1}
s_add_u32 s{S_T0}, s{S_T0}, 48
s_lshl_b32 s{S_T0}, s{S_T0}, 12
s_add_u32 s{S_T0}, s{S_T0}, {WS_ACT}
v_lshlrev_b32 v{SA+3}, 4, v{VL}
v_add_u32 v{SA+3}, s{S_T0}, v{SA+3}""")
A("s_setprio 3\ns_barrier")
ts(5, 2)
SW = 184
SW = 182
def W(G, c):
    idx = G * 2 + c
    return (160 + 2 * idx) if idx < 8 else (192 + 2 * (idx - 8))
for G in range(5):
    for c in range(2):
        for e in range(2):
            A(f"ds_read_b32 v{W(G,c)+e}, v{SA+5} offset:{e*1280+c*4+128*G}")
A("s_waitcnt lgkmcnt(0)")
lg = Queue(A, "lgkmcnt", 15)
def stores(G):
    for Tq in range(4):
        lg.wait(("t", G, Tq))
        b = G * 32 + 16 + Tq * 4
        A(f"global_store_dwordx4 v{SA+3}, v[{b}:{b+3}], s[{S_WS}:{S_WS+1}] offset:{1024*Tq} sc1")
    if G < 4:
        A(f"v_add_u32 v{SA+3}, 4096, v{SA+3}")
def corr(G):
    out = []
    for k, (m, h) in enumerate(steps):
        for c in range(2):
            out.append(lambda c=c, m=m, h=h: pk("add", acc(G, c, m, h), acc(G, c, m, h), W(G, c)))
        if k < 7:
            out.append(lambda: pk("mul", 196, W(G, 0), SLAM + 2 * G, sb=1))
            out.append(lambda: pk("mul", W(G, 0), W(G, 0), SLAM + 2 * G, sb=0))
            out.append(lambda: pk("fma", W(G, 0), W(G, 1), SLAM + 2 * G, W(G, 0), sb=1))
            out.append(lambda: pk("fma", W(G, 1), W(G, 1), SLAM + 2 * G, 196, sb=0, neg=2))
    return out
def pack(G):
    out = []
    for c in range(2):
        o = (184 if G % 2 else 232) if c == 0 else G * 32
        for e in range(2):
            for m in range(4):
                out.append(lambda o=o, c=c, e=e, m=m: A(f"v_cvt_pk_bf16_f32 v{o+4*e+m}, v{acc(G,c,m,e)}, v{acc(G,c,m,2+e)}"))
            def wr(o=o, c=c, e=e):
                A(f"ds_write_b128 v{SA+e}, v[{o+4*e}:{o+4*e+3}] offset:{(G%3)*4096+c*2048}")
                lg.issue("w")
            out.append(wr)
    for Tq in range(4):
        def rd(Tq=Tq):
            b = G * 32 + 16 + Tq * 4
            A(f"ds_read_b64_tr_b16 v[{b}:{b+1}], v{TA+2*Tq} offset:{(G%3)*4096}")
            A(f"ds_read_b64_tr_b16 v[{b+2}:{b+3}], v{TA+2*Tq+1} offset:{(G%3)*4096+512}")
            lg.issue(("t", G, Tq)); lg.issue(("t", G, Tq))
        out.append(rd)
    return out
def store1(G, Tq):
    lg.wait(("t", G, Tq))
    b = G * 32 + 16 + Tq * 4
    A(f"global_store_dwordx4 v{SA+3}, v[{b}:{b+3}], s[{S_WS}:{S_WS+1}] offset:{1024*Tq} sc1")
    if Tq == 3:
        A(f"v_add_u32 v{SA+3}, 4096, v{SA+3}")
def weave(a, b):
    ia = ib = 0
    while ia < len(a) or ib < len(b):
        if ib >= len(b) or (ia < len(a) and ia * len(b) <= ib * len(a)):
            a[ia](); ia += 1
        else:
            b[ib](); ib += 1
for G in range(6):
    side = pack(G - 1) if G >= 1 else []
    if G >= 2:
        st4 = [lambda Tq=Tq: store1(G - 2, Tq) for Tq in range(4)]
        for i, f in enumerate(st4):
            side.insert(2 + 5 * i, f)
        if TS == 1 and G == 2:
            side.insert(0, lambda: ts(16, 2))
    weave(corr(G) if G < 5 else [], side)
stores(4)
A(f"v_mov_b32 v196, s{S_K}\nds_write_b32 v{VFO}, v196 offset:{4*21}")
if TS == 1:
    ts(17, 2)
A(f"""s_lshl_b32 s{S_T0}, s{S_C}, 1
s_and_b32 s{S_T0+1}, s{S_WAVE}, 1
s_add_u32 s{S_T0}, s{S_T0}, s{S_T0+1}
s_lshl_b32 s{S_T0+1}, s{S_CB}, 1
s_lshr_b32 s{S_T0+2}, s{S_WAVE}, 1
s_add_u32 s{S_T0+1}, s{S_T0+1}, s{S_T0+2}
s_add_u32 s{S_T0+1}, s{S_T0+1}, 24""")
gemm2_compute(2)

def rowpat_load(dst, tmp, ssm):
    A(f"""v_lshrrev_b32 v{tmp}, 4, v{VL}
    v_xor_b32 v{tmp+1}, v{tmp}, v{VL}
    v_and_b32 v{tmp+1}, 7, v{tmp+1}              ; chunk""")
    if ssm:
        A(f"""v_lshrrev_b32 v{tmp}, 5, v{VL}
        v_lshlrev_b32 v{tmp}, 4, v{tmp}
        v_bfe_u32 v{dst}, v{VL}, 3, 1
        v_lshl_add_u32 v{tmp}, v{dst}, 3, v{tmp}
        v_bfe_u32 v{dst}, v{VL}, 4, 1
        v_add_u32 v{tmp}, v{tmp}, v{dst}""")
        up = 32
    else:
        A(f"v_lshrrev_b32 v{tmp}, 3, v{VL}")
        up = 8
    A(f"""v_mul_u32_u24 v{dst}, 1280, v{tmp}
    v_lshl_add_u32 v{dst}, v{tmp+1}, 4, v{dst}
    v_xor_b32 v{dst+1}, 64, v{dst}
    v_add_u32 v{dst+1}, {up*1280-1024}, v{dst+1}""")

LFP, LFV, LFD, LPA, LPD = 240, 241, 242, 243, 244
S_U, S_XS, S_S2 = 83, 84, 87
S_RET, S_SUB = 90, 30
class NoQ:
    def issue(self, t): pass
    def wait(self, t): pass
NOQ = NoQ()
CAP = OPT.get("cap", 8)
def cap(n=None):
    A(f"s_waitcnt vmcnt({CAP if n is None else n})")
class CapQ:
    def issue(self, t):
        cap()
    def wait(self, t): pass
CAPQ = CapQ()
class Jobs:
    def __init__(self):
        self.q = []
    def add(self, g):
        self.q.append(g)
    def step(self, n=1):
        if not self.q:
            return
        A(f"s_setprio {OPT.get('pls', 3)}")
        while n > 0 and self.q:
            try:
                next(self.q[0])
            except StopIteration:
                self.q.pop(0)
            n -= 1
        A("s_setprio 0")
def run(g):
    for _ in g:
        pass

LAX, LFQ = 245, 246
def declare(sreg):
    A(f"""s_lshl_b32 s{sreg}, s{sreg}, 2
    v_add_u32 v{LFQ}, s{sreg}, v{VFO}
    v_mov_b32 v{LFV}, s{S_K}
    ds_write_b32 v{LFQ}, v{LFV}""")
def wait_free(sreg):
    A(f"s_lshl_b32 s{sreg}, s{sreg}, 2\nv_add_u32 v{LFQ}, s{sreg}, v{LFP}")
    flag_wait(0, LFD, LFQ, nap=OPT.get('lnap', 0))
def stamp(idx_sreg, add):
    if TS:
        A(f"""s_memrealtime s[{S_TS}:{S_TS+1}]
        s_add_u32 m0, s{idx_sreg}, {add}
        s_waitcnt lgkmcnt(0)
        v_writelane_b32 v255, s{S_TS}, m0""")

def poll_setup(two):
    A(f"""s_lshl_b32 s{S_T0}, s{S_HB2}, 7
    s_add_u32 s{S_T0}, s{S_T0}, {WS_FLAG+96}
    v_and_b32 v{LPA}, 7, v{VL}
    v_lshlrev_b32 v{LPA}, 2, v{LPA}
    v_add_u32 v{LPA}, s{S_T0}, v{LPA}""")
    if two:
        A(f"v_and_b32 v{LPD}, 8, v{VL}\nv_lshl_add_u32 v{LPA}, v{LPD}, 4, v{LPA}")
def poll_issue():
    A(f"global_load_dword v{LPD}, v{LPA}, s[{S_WS}:{S_WS+1}] sc1")
def poll_until():
    if OPT.get("nogate", 0):
        return
    lr, lo = A.newlabel("L_pu"), A.newlabel("L_pu")
    A.label(lr)
    poll_issue()
    A(f"""s_waitcnt vmcnt(0)
    v_cmp_ne_u32 vcc, s{S_NONCE}, v{LPD}
    s_cbranch_vccz {lo}""")
    spin_tail(lr, lo, 3)
    A.label(lo)
    A(f"v_mov_b32 v{LFV}, 3\nds_write_b32 v{LAX}, v{LFV}")
def poll_check():
    lo = A.newlabel("L_pk")
    A(f"""v_cmp_ne_u32 vcc, s{S_NONCE}, v{LPD}
    s_cbranch_vccnz {lo}
    v_mov_b32 v{LFV}, 3
    ds_write_b32 v{LAX}, v{LFV}""")
    A.label(lo)

VW2, VC2 = 12, 15
def g2_setup(NT, tmp):
    srd(SRD_W2, S_W2, 1966080)
    srd(SRD_C, S_CRE, 819200)
    srd(SRD_T, S_CIM, 819200)
    A(f"""s_lshl_b32 s{S_T0}, s{S_DCOL}, 1
    v_lshrrev_b32 v{tmp}, 4, v{VL}
    v_lshlrev_b32 v{tmp}, 1, v{tmp}
    v_xor_b32 v{tmp}, v{tmp}, v{VL}
    v_and_b32 v{tmp}, 7, v{tmp}
    v_lshrrev_b32 v{tmp+1}, 3, v{VL}
    v_mul_u32_u24 v{tmp+1}, 1280, v{tmp+1}
    v_lshl_add_u32 v{tmp}, v{tmp}, 4, v{tmp+1}
    v_add_u32 v{VW2}, s{S_T0}, v{tmp}""")
    rowpat_load(VC2, tmp, False)
    A(f"""s_mul_i32 s{S_T0}, s{S_DCOL}, 1280
    v_add_u32 v{VC2}, s{S_T0}, v{VC2}
    v_add_u32 v{VC2+1}, s{S_T0}, v{VC2+1}
    s_add_u32 s{S_S2}, s{S_LW}, 1
    s_and_b32 s{S_S2}, s{S_S2}, 3
    s_add_u32 s{S_KS}, s{S_S2}, s{S_R2A}
    s_cmp_ge_u32 s{S_KS}, 12
    s_cselect_b32 s{S_T0}, 12, 0
    s_sub_u32 s{S_KS}, s{S_KS}, s{S_T0}
    s_mul_i32 s{S_KS}, s{S_KS}, {128*1280}
    v_lshlrev_b32 v236, 4, v{VL}""")
    poll_setup(NT == 6)

def g2_pieces(k):
    out = []
    for i in range(16):
        if k < 3:
            out.append((VW2, SRD_W2, i * 8 * 1280, 0))
        else:
            mat, ii = i // 8, i % 8
            out.append((VC2 + ii % 2, SRD_T if mat else SRD_C, (ii // 2) * 16 * 1280, 1024 * (ii % 2)))
    return out
def g2_next(k):
    if k == 2:
        A(f"""s_and_b32 s{S_KS}, s{S_S2}, 3
        s_add_u32 s{S_KS}, s{S_KS}, s{S_R2B}
        s_cmp_ge_u32 s{S_KS}, 10
        s_cselect_b32 s{S_T0}, 10, 0
        s_sub_u32 s{S_KS}, s{S_KS}, s{S_T0}
        s_lshl_b32 s{S_KS}, s{S_KS}, 7""")
    else:
        step, n = (128 * 1280, 12) if k < 2 else (128, 10)
        A(f"""s_add_u32 s{S_KS}, s{S_KS}, {4*step}
        s_cmp_ge_u32 s{S_KS}, {n*step}
        s_cselect_b32 s{S_T0}, {n*step}, 0
        s_sub_u32 s{S_KS}, s{S_KS}, s{S_T0}""")
THR = OPT.get("thr", 8)
def g2_load(k, base, thr):
    for i, (v, sd, ex, io) in enumerate(g2_pieces(k)):
        if i:
            yield
        A(f"s_add_u32 s{S_T0+7}, s{S_KS}, {ex}\ns_waitcnt vmcnt({thr})")
        A(f"buffer_load_dwordx4 v[{base+4*i}:{base+4*i+3}], v{v}, s[{sd}:{sd+3}], s{S_T0+7} offen offset:{io}")
    g2_next(k)
    ts(48 + k, 2)
def g2_put(k, base, young, lowest, g=None):
    A(f"s_add_u32 s{S_T0+6}, s{S_S2}, {22-NS2}\ns_max_u32 s{S_T0+6}, s{S_T0+6}, {lowest}")
    wait_free(S_T0 + 6)
    A(f"s_waitcnt vmcnt({young})\nv_add_u32 v237, s{S_SLOT}, v236")
    for i in range(16):
        A(f"ds_write_b128 v237, v[{base+4*i}:{base+4*i+3}] offset:{1024*i}")
        if g is not None and i % OPT.get('il', 2) == OPT.get('il', 2) - 1:
            next(g, None)
    A(f"""s_add_u32 s{S_S2}, s{S_S2}, 4
    s_add_u32 s{S_T0+6}, s{S_S2}, 21""")
    declare(S_T0 + 6)
    ts(40 + k, 2)
    A(f"""s_add_u32 s{S_SLOT}, s{S_SLOT}, {4*SL2}
    s_cmp_ge_u32 s{S_SLOT}, {NS2*SL2}
    s_cselect_b32 s{S_T0}, {NS2*SL2}, 0
    s_sub_u32 s{S_SLOT}, s{S_SLOT}, s{S_T0}""")
    if g is not None:
        run(g)
    A("s_waitcnt lgkmcnt(0)")

def bump_epoch(T):
    lr, lo = A.newlabel("L_ep"), A.newlabel("L_ep")
    ld = A.newlabel("L_ep")
    A(f"""s_cmp_lg_u32 s2, 0
    s_cbranch_scc1 {ld}
    s_cmp_lg_u32 s{S_LW}, 2
    s_cbranch_scc1 {ld}
    v_lshlrev_b32 v{T}, 4, v{VL}
    v_add_u32 v{T}, {WS_FLAG}, v{T}""")
    A.label(lr)
    for i in range(4):
        A(f"global_load_dwordx4 v[{T+4+4*i}:{T+7+4*i}], v{T}, s[{S_WS}:{S_WS+1}] offset:{1024*i} sc1")
    A(f"s_waitcnt vmcnt(0)\ns_mov_b64 s[{S_M0}:{S_M0+1}], 0")
    for i in range(16):
        A(f"v_cmp_ne_u32 vcc, s{S_NONCE}, v{T+4+i}\ns_nop 1\ns_or_b64 s[{S_M0}:{S_M0+1}], s[{S_M0}:{S_M0+1}], vcc")
    A(f"s_cmp_eq_u64 s[{S_M0}:{S_M0+1}], 0\ns_cbranch_scc1 {lo}")
    spin_tail(lr, lo, 4)
    A.label(lo)
    A(f"""v_mov_b32 v{T}, {WS_E}
    v_mov_b32 v{T+1}, s{S_NONCE}
    s_mov_b64 exec, 1
    global_store_dword v{T}, v{T+1}, s[{S_WS}:{S_WS+1}] sc1
    s_mov_b64 exec, -1""")
    A.label(ld)

def prefetch(vm, T, tag):
    if not OPT["pf"]:
        return
    if not OPT.get("pfc", 1):
      for i in range(2):
        vm.issue("pf")
      A(f"""s_getpc_b64 s[{S_M0}:{S_M0+1}]
    L_pc{tag}:
    s_sub_u32 s{S_M0}, s{S_M0}, L_pc{tag}-L_code_start
    s_subb_u32 s{S_M0+1}, s{S_M0+1}, 0
    s_lshl_b32 s{S_T0}, s{S_LW}, 13
    v_lshlrev_b32 v{T}, 7, v{VL}
    v_add_u32 v{T}, s{S_T0}, v{T}
    v_add_u32 v{T+1}, 32768, v{T}
    v_min_u32 v{T+1}, L_code_end-L_code_start-8, v{T+1}
    global_load_dword v250, v{T}, s[{S_M0}:{S_M0+1}]
    global_load_dword v249, v{T+1}, s[{S_M0}:{S_M0+1}]""")
    A(f"""s_cmp_ge_u32 s{S_LW}, 2
    s_cselect_b32 s{S_T0}, 49, 59
    s_mov_b32 s{S_T0+1}, 7680
    s_cmov_b32 s{S_T0+1}, 3200
    s_cselect_b32 s{S_T0+4}, s{S_CRE}, s{S_W2}
    s_cselect_b32 s{S_T0+5}, s{S_CRE+1}, s{S_W2+1}
    s_mul_i32 s{S_T0+1}, s{S_T0+1}, s2
    s_cmp_eq_u32 s{S_LW}, 1
    s_cselect_b32 s{S_T0+2}, 3840, 0
    s_add_u32 s{S_T0+1}, s{S_T0+1}, s{S_T0+2}
    s_cmp_eq_u32 s{S_LW}, 3
    s_cselect_b32 s{S_T0+4}, s{S_CIM}, s{S_T0+4}
    s_cselect_b32 s{S_T0+5}, s{S_CIM+1}, s{S_T0+5}
    v_min_u32 v{T}, s{S_T0}, v{VL}
    v_lshlrev_b32 v{T}, 6, v{T}
    v_add_u32 v{T}, s{S_T0+1}, v{T}
    global_load_dword v248, v{T}, s[{S_T0+4}:{S_T0+5}]""")
    vm.issue("pf")


def head_begin():
    return len(A.lines)
def head_end(mark):
    HEADS.extend(A.lines[mark:])
    del A.lines[mark:]

def issue_sub(kind):
    mlp = kind == "mlp"
    SLOT = 16384 if mlp else 20480
    A.label(f"L_sub_{kind}")
    A(f"s_waitcnt lgkmcnt(0)")
    flag_test(None, LFD, LFQ, 0, nap=OPT.get('lnap', 0))
    A.label(f"L_subn_{kind}")
    stamp(S_U, 16)
    lx = A.newlabel("L_is")
    A(f"s_bitcmp1_b32 s{S_U}, 0\ns_cbranch_scc1 {lx}")
    A(f"s_add_u32 m0, s{S_XS}, s{S_T0+9}")
    for h in range(4):
        cap()
        A(f"buffer_load_dwordx4 v{2+h}, s[{SRD_X}:{SRD_X+3}], s{S_KX} offen offset:{1024*h} lds")
    A(f"""s_add_u32 s{S_XS}, s{S_XS}, 16384
    s_cmp_eq_u32 s{S_XS}, {3*16384}
    s_cselect_b32 s{S_XS}, 0, s{S_XS}""")
    if not mlp:
        A(f"s_add_u32 m0, s{S_SLOT}, s{S_T0+8}")
        for h in range(4):
            cap()
            A(f"buffer_load_dwordx4 v{6+h}, s[{SRD_WA}:{SRD_WA+3}], s{S_KX} offen offset:{1024*h} lds")
        A(f"s_add_u32 m0, m0, 4096")
        cap()
        A(f"buffer_load_dwordx4 v10, s[{SRD_WA}:{SRD_WA+3}], s{S_KX} offen lds\ns_branch {lx}b")
    A.label(lx)
    if mlp:
        for mat, sd in enumerate((SRD_WA, SRD_WB)):
            A(f"s_add_u32 m0, s{S_SLOT}, s{S_T0+8}" if mat == 0 else "s_add_u32 m0, m0, 8192")
            for h in range(2):
                cap()
                A(f"buffer_load_dwordx4 v{6+h}, s[{sd}:{sd+3}], s{S_KW} offen offset:{1024*h} lds")
        A(f"""s_add_u32 s{S_KW}, s{S_KW}, {32*3072}
        s_cmp_eq_u32 s{S_KW}, {20*32*3072}
        s_cselect_b32 s{S_KW}, {64*3072 if C0 else 0}, s{S_KW}
        s_bitcmp1_b32 s{S_U}, 0
        s_cbranch_scc0 {lx}b""")
    else:
        A(f"s_add_u32 m0, s{S_SLOT}, s{S_T0+8}")
        for h in range(4):
            cap()
            A(f"buffer_load_dwordx4 v{6+h}, s[{SRD_WB}:{SRD_WB+3}], s{S_KX} offen offset:{1024*h} lds")
        A(f"s_add_u32 m0, m0, 4096")
        cap()
        A(f"buffer_load_dwordx4 v10, s[{SRD_WB}:{SRD_WB+3}], s{S_KX} offen lds")
    A(f"""s_add_u32 s{S_KX}, s{S_KX}, 128
    s_cmp_eq_u32 s{S_KX}, 1280
    s_cselect_b32 s{S_KX}, {128 if C0 else 0}, s{S_KX}""")
    A.label(f"{lx}b")
    A(f"""s_add_u32 s{S_U}, s{S_U}, 1
    s_add_u32 s{S_FM}, s{S_FM}, 4
    v_add_u32 v{LFQ}, 4, v{LFQ}
    s_mov_b32 m0, s{S_FM}
    ds_read_b32 v{LFD}, v{LFQ}
    s_add_u32 s{S_SLOT}, s{S_SLOT}, {SLOT}
    s_cmp_eq_u32 s{S_SLOT}, {5*SLOT}
    s_cselect_b32 s{S_SLOT}, 0, s{S_SLOT}""")
    cap()
    A(f"""buffer_load_dword v{VZ}, s[{SRD_X}:{SRD_X+3}], 0 offen lds
    s_setpc_b64 s[{S_RET}:{S_RET+1}]""")
    flush_slow()
S_FM = 22
def call_sub(check=True):
    if check:
        A(f"s_swappc_b64 s[{S_RET}:{S_RET+1}], s[{S_SUB}:{S_SUB+1}]")
    else:
        A(f"s_swappc_b64 s[{S_RET}:{S_RET+1}], s[{S_SUBN}:{S_SUBN+1}]")
S_SUBN = 32
def declare_dma(sreg=None):
    if sreg is not None:
        A(f"s_lshl_b32 s{sreg}, s{sreg}, 2\ns_add_u32 s{S_FM}, s{S_FM}, s{sreg}")
    A(f"s_mov_b32 m0, s{S_FM}")
    cap()
    A(f"buffer_load_dword v{VZ}, s[{SRD_X}:{SRD_X+3}], 0 offen lds")

def head_rest(kind):
    mlp = kind == "mlp"
    SLOT = 16384 if mlp else 20480
    flag_init(FLG, S_LW, LFP, FREE, LAX)
    A(f"""s_add_u32 s{S_FM}, s{S_T0}, 4
    v_subrev_u32 v{LFQ}, 8, v{LFP}
    s_getpc_b64 s[{S_SUB}:{S_SUB+1}]
    L_gp_{kind}:
    s_add_u32 s{S_SUBN}, s{S_SUB}, L_subn_{kind}-L_gp_{kind}
    s_addc_u32 s{S_SUBN+1}, s{S_SUB+1}, 0
    s_add_u32 s{S_SUB}, s{S_SUB}, L_sub_{kind}-L_gp_{kind}
    s_addc_u32 s{S_SUB+1}, s{S_SUB+1}, 0
    s_mov_b32 s{S_U}, 2
    s_mov_b32 s{S_SLOT}, {2*SLOT}
    s_mov_b32 s{S_XS}, 16384
    s_mov_b32 m0, s{S_FM}
    s_add_u32 s{S_FM}, s{S_FM}, 4
    buffer_load_dword v{VZ}, s[{SRD_X}:{SRD_X+3}], 0 offen lds""")
    if mlp:
        A(f"s_add_u32 s{S_KW}, s{S_KW}, {32*3072}")
        for mat, sd in enumerate((SRD_WA, SRD_WB)):
            A(f"s_add_u32 m0, s{S_T0+8}, {SLOT + mat*8192}\ns_nop 0")
            for h in range(2):
                A(f"buffer_load_dwordx4 v{6+h}, s[{sd}:{sd+3}], s{S_KW} offen offset:{1024*h} lds")
        A(f"""s_add_u32 s{S_KW}, s{S_KW}, {32*3072}
        s_cmp_eq_u32 s{S_KW}, {20*32*3072}
        s_cselect_b32 s{S_KW}, 0, s{S_KW}""")
    else:
        A(f"s_add_u32 m0, s{S_T0+8}, {SLOT}\ns_nop 0")
        for h in range(4):
            A(f"buffer_load_dwordx4 v{6+h}, s[{SRD_WB}:{SRD_WB+3}], s{S_KX} offen offset:{1024*h} lds")
        A(f"s_add_u32 m0, m0, 4096\ns_nop 0\nbuffer_load_dwordx4 v10, s[{SRD_WB}:{SRD_WB+3}], s{S_KX} offen lds")
    A(f"""s_add_u32 s{S_KX}, s{S_KX}, 128
    s_cmp_eq_u32 s{S_KX}, 1280
    s_cselect_b32 s{S_KX}, 0, s{S_KX}""")
    if C0:
        A(f"""s_add_u32 s{S_T0}, s{S_ROT}, 1
        s_lshl_b32 s{S_KX}, s{S_T0}, 7
        s_mul_i32 s{S_KW}, s{S_T0}, {64*3072}""")
    late_scalars()
    declare_dma()
    ts(1, 2)
    for u in range(2, 5):
        call_sub(False)
    nonce_load()
    if OPT.get("solo", 0) >= 2:
        for u in range(5, 20):
            call_sub()
        A(f"s_mov_b32 s{S_T0+6}, 1")
        declare_dma(S_T0 + 6)
        A("s_waitcnt vmcnt(0)")
        ts_flush(100)
        A("s_endpgm")
    A(f"s_branch L_{kind}_loader")
    issue_sub(kind)

GW = OPT.get('gw', 19)
def g1_main(jobs, gran_loads_, gran_work, nstep, early=None):
    for u in range(5, 20):
        if u == GW:
            A(f"s_setprio {OPT.get('pls', 3)}")
            gran_work()
            A("s_setprio 0")
        call_sub()
        if u >= 6 and u % 2 == 0 or u >= 10:
            jobs.step(nstep)
        if early and OPT.get("tw", 3) == 5 and u == OPT.get("twu", 17):
            touch_w2(233, S_LW)
        if early and u >= 20 - early.n:
            early.step()
        if u == GW - 3:
            assert not jobs.q
            gran_loads_()
    A(f"s_add_u32 s{S_T0+6}, s{S_S2}, 1")
    declare_dma(S_T0 + 6)

def finish():
    A("s_barrier")
    bump_epoch(200)
    ts(9, 2)
    ts_flush(100)
    A("s_endpgm")
    flush_slow()

mark = head_begin()
A(f"s_cmp_eq_u32 s{S_J}, 0\ns_cbranch_scc1 L_ssm_head")
rowpat_load(2, 10, False)
A(f"""s_mul_i32 s{S_T0}, s{S_C}, 163840
s_mul_i32 s{S_T0+1}, s{S_LW}, {32*1280}
s_add_u32 s{S_T0}, s{S_T0}, s{S_T0+1}
v_add_u32 v2, s{S_T0}, v2
v_add_u32 v3, s{S_T0}, v3
v_add_u32 v4, {16*1280-2048}, v2
v_add_u32 v5, {16*1280-2048}, v3
v_lshrrev_b32 v10, 4, v{VL}
s_and_b32 s{S_T0}, s{S_LW}, 1
s_lshl_b32 s{S_T0}, s{S_T0}, 2
v_or_b32 v11, s{S_T0}, v10                ; swizzle
v_lshlrev_b32 v11, 1, v11
v_and_b32 v6, 15, v{VL}
v_xor_b32 v11, v11, v6
v_mul_u32_u24 v10, 3072, v10
v_lshl_add_u32 v10, v11, 4, v10
s_mul_i32 s{S_T0}, s{S_LW}, {8*3072}
s_lshl_b32 s{S_T0+1}, s{S_CB}, 8
s_add_u32 s{S_T0}, s{S_T0}, s{S_T0+1}
v_add_u32 v6, s{S_T0}, v10
v_add_u32 v7, {4*3072-1024}, v6
s_mul_i32 s{S_KX}, s{S_ROT}, {0 if C0 else 128}
s_mul_i32 s{S_KW}, s{S_ROT}, {0 if C0 else 64*3072}
s_lshl_b32 s{S_T0+9}, s{S_LW}, 12
s_lshl_b32 s{S_T0+8}, s{S_LW}, 11
s_add_u32 s{S_T0+8}, s{S_T0+8}, {WRING}
s_mov_b32 m0, s{S_T0+9}
s_waitcnt lgkmcnt(0)
s_load_dword s{S_K}, s[{S_X}:{S_X+1}], 0""")
srd(SRD_X, S_X, 2621440)
for h in range(4):
    A(f"buffer_load_dwordx4 v{2+h}, s[{SRD_X}:{SRD_X+3}], s{S_KX} offen offset:{1024*h} lds")
srd(SRD_WA, S_W1, 1966080)
srd(SRD_WB, S_W3, 1966080)
for mat, sd in enumerate((SRD_WA, SRD_WB)):
    A(f"s_add_u32 m0, s{S_T0+8}, {mat*8192}\ns_nop 0")
    for h in range(2):
        A(f"buffer_load_dwordx4 v{6+h}, s[{sd}:{sd+3}], s{S_KW} offen offset:{1024*h} lds")
head_rest("mlp")
head_end(mark)
A.label("L_mlp_loader")
vm = NOQ
GA, GD = 18, 22
def gran_loads():
    for i in range(4):
        cap()
        A(f"global_load_dwordx4 v[{GD+4*i}:{GD+3+4*i}], v{GA+i}, s[{S_WS}:{S_WS+1}] sc1")
def mlp_setup3():
    A(f"""s_mul_i32 s{S_T0}, s{S_LW}, {1536*8}
    s_lshl_b32 s{S_T0+1}, s{S_CB}, 10
    s_add_u32 s{S_T0}, s{S_T0}, s{S_T0+1}
    s_add_u32 s{S_T0}, s{S_T0}, {WS_CSW}
    s_lshl_b32 s{S_T0+1}, s{S_C}, 10
    s_add_u32 s{S_T0+1}, s{S_T0+1}, {WS_STAT}
    s_cmp_ge_u32 s{S_LW}, 2
    s_cselect_b32 s{S_T0}, s{S_T0+1}, s{S_T0}
    s_cselect_b32 s{S_T0+1}, 0, {3072*8}
    v_lshlrev_b32 v{GA}, 4, v{VL}
    v_add_u32 v{GA}, s{S_T0}, v{GA}
    v_add_u32 v{GA+1}, s{S_T0+1}, v{GA}
    v_add_u32 v{GA+2}, s{S_T0+1}, v{GA+1}
    v_add_u32 v{GA+3}, s{S_T0+1}, v{GA+2}""")
def mlp_gran():
    if True:
        vm.wait("gran")
        lr, lo, lskip, lstat = A.newlabel("L_gr"), A.newlabel("L_gr"), A.newlabel("L_gr"), A.newlabel("L_gr")
        A(f"s_cmp_eq_u32 s{S_LW}, 2\ns_cbranch_scc1 {lskip}")
        A.label(lr)
        A(f"s_mov_b64 s[{S_M0}:{S_M0+1}], 0")
        for i in range(8):
            A(f"v_cmp_ne_u32 vcc, s{S_NONCE}, v{GD+1+2*i}\ns_nop 1\ns_or_b64 s[{S_M0}:{S_M0+1}], s[{S_M0}:{S_M0+1}], vcc")
        A(f"s_cmp_eq_u64 s[{S_M0}:{S_M0+1}], 0\ns_cbranch_scc1 {lo}")
        gran_loads()
        A("s_waitcnt vmcnt(0)")
        spin_tail(lr, lo, 5)
        A.label(lo)
        A(f"s_cmp_eq_u32 s{S_LW}, 3\ns_cbranch_scc1 {lstat}")
        A(f"""v_add_f32 v{GD}, v{GD}, v{GD+4}
        v_add_f32 v{GD+2}, v{GD+2}, v{GD+6}
        v_add_f32 v{GD+8}, v{GD+8}, v{GD+12}
        v_add_f32 v{GD+10}, v{GD+10}, v{GD+14}
        v_add_f32 v{GD}, v{GD}, v{GD+8}
        v_add_f32 v{GD+1}, v{GD+2}, v{GD+10}
        s_lshl_b32 s{S_T0}, s{S_LW}, 9
        s_add_u32 s{S_T0}, s{S_T0}, {M_CS}
        v_lshlrev_b32 v{GD+2}, 3, v{VL}
        v_add_u32 v{GD+2}, s{S_T0}, v{GD+2}
        ds_write_b64 v{GD+2}, v[{GD}:{GD+1}]
        s_branch {lskip}""")
        A.label(lstat)
        for hrow, p in ((0, GD), (1, GD + 2)):
            o = GD + 4 + 4 * hrow
            A(f"""v_and_b32 v{o+2}, 0xffff0000, v{p}
            v_lshlrev_b32 v{o}, 16, v{p}
            v_rcp_f32 v{o+1}, v{o+2}
            v_mul_f32 v{o+2}, v{o+2}, v{o+2}
            v_mul_f32 v{o+1}, {NLOG2E}, v{o+1}""")
        A(f"""v_lshlrev_b32 v{GD+2}, 5, v{VL}
        v_add_u32 v{GD+2}, {M_ROW}, v{GD+2}
        ds_write_b128 v{GD+2}, v[{GD+4}:{GD+7}]
        ds_write_b128 v{GD+2}, v[{GD+8}:{GD+11}] offset:16""")
        A.label(lskip)
        A("s_waitcnt lgkmcnt(0)")

nonce_ready()
def only2(fn):
    l = A.newlabel("L_nc")
    A(f"s_cmp_lg_u32 s{S_LW}, 2\ns_cbranch_scc1 {l}")
    fn()
    A.label(l)
    return
    yield
def one(fn):
    fn()
    return
    yield
jobs = Jobs()
if CSL:
    assert PB >= 4
    jobs.add(one(cs_by_loader))
jobs.add(one(mlp_setup3))
jobs.add(one(lambda: g2_setup(6, 232)))
def mg():
    mlp_gran()
MB = [40, 104, 168, 40, 104, 168]
T1 = OPT.get("thr1", CAP)
class Early:
    def __init__(self):
        self.n, self.ch = OPT.get("en", 0), OPT.get("ech", 2)
        def both():
            yield from g2_load(0, MB[0], CAP)
            yield
            yield from g2_load(1, MB[1], CAP)
        self.g = both()
    def step(self):
        for _ in range(self.ch):
            next(self.g, None)
early = Early()
g1_main(jobs, gran_loads, mg, 1, early)
if OPT.get("tw", 3) == 4:
    touch_w2(233, S_LW)
ts(47, 2)
run(early.g)
A(f"s_lshl_b32 s{S_SLOT}, s{S_S2}, 14")
if OPT.get("ord", 0):
    run(g2_load(2, MB[2], T1))
    g2_put(0, MB[0], 32, 20)
else:
    g2_put(0, MB[0], 16, 20, g2_load(2, MB[2], T1))
g2_put(1, MB[1], 16, 20, g2_load(3, MB[3], T1))
run(g2_load(4, MB[4], THR))
g2_put(2, MB[2], 32, 20)
la = A.newlabel("L_k")
A(f"s_cmp_ge_u32 s{S_S2}, 14\ns_cbranch_scc1 {la}")
g2_put(3, MB[3], 16, 20, g2_load(5, MB[5], OPT.get('thr5', THR)))
A(f"s_branch {la}b")
A.label(la)
g2_put(3, MB[3], 16, 20)
A.label(f"{la}b")
A(f"s_cmp_lg_u32 s{S_S2}, 19\ns_cbranch_scc1 {la}c")
poll_until()
A.label(f"{la}c")
g2_put(4, MB[4], 0, 20)
A(f"s_cmp_ge_u32 s{S_S2}, 22\ns_cbranch_scc1 {la}x")
g2_put(5, MB[5], 0, 20)
A.label(f"{la}x")
finish()

mark = head_begin()
A.label("L_ssm_head")
rowpat_load(2, 14, True)
rowpat_load(6, 14, False)
A(f"""s_mul_i32 s{S_T0}, s{S_C}, 163840
s_lshr_b32 s{S_T0+1}, s{S_LW}, 1
s_mul_i32 s{S_T0+1}, s{S_T0+1}, {64*1280}
s_add_u32 s{S_T0}, s{S_T0}, s{S_T0+1}
s_and_b32 s{S_T0+1}, s{S_LW}, 1
s_mul_i32 s{S_T0+1}, s{S_T0+1}, {4*1280}
s_add_u32 s{S_T0}, s{S_T0}, s{S_T0+1}
v_add_u32 v2, s{S_T0}, v2
v_add_u32 v3, s{S_T0}, v3
v_add_u32 v4, {2*1280-2048}, v2
v_add_u32 v5, {2*1280-2048}, v3""")
A(f"""v_add_u32 v7, {1024-8*1280 & 0xffffffff}, v7
s_mul_i32 s{S_T0}, s{S_CB}, {160*1280}
s_mul_i32 s{S_T0+1}, s{S_LW}, {40*1280}
s_add_u32 s{S_T0}, s{S_T0}, s{S_T0+1}
s_bitcmp1_b32 s{S_LW}, 0
s_cselect_b64 vcc, -1, 0
v_add_u32 v6, s{S_T0}, v6
v_add_u32 v7, s{S_T0}, v7
v_cndmask_b32 v12, v6, v7, vcc
v_cndmask_b32 v13, v7, v6, vcc
v_mov_b32 v6, v12
v_add_u32 v7, {8*1280-1024}, v13
v_add_u32 v8, {16*1280-2048}, v12
v_add_u32 v9, {24*1280-3072}, v13
v_add_u32 v10, {32*1280}, v12
s_mul_i32 s{S_KX}, s{S_ROT}, {0 if C0 else 128}
s_lshl_b32 s{S_T0+9}, s{S_LW}, 12
s_mul_i32 s{S_T0+8}, s{S_LW}, 5120
s_add_u32 s{S_T0+8}, s{S_T0+8}, {WRING}
s_mov_b32 m0, s{S_T0+9}
s_waitcnt lgkmcnt(0)
s_load_dword s{S_K}, s[{S_X}:{S_X+1}], 0""")
srd(SRD_X, S_X, 2621440)
for h in range(4):
    A(f"buffer_load_dwordx4 v{2+h}, s[{SRD_X}:{SRD_X+3}], s{S_KX} offen offset:{1024*h} lds")
srd(SRD_WA, S_BRE, 819200)
srd(SRD_WB, S_BIM, 819200)
A(f"s_mov_b32 m0, s{S_T0+8}\ns_nop 0")
for h in range(4):
    A(f"buffer_load_dwordx4 v{6+h}, s[{SRD_WA}:{SRD_WA+3}], s{S_KX} offen offset:{1024*h} lds")
A(f"s_add_u32 m0, m0, 4096\ns_nop 0\nbuffer_load_dwordx4 v10, s[{SRD_WA}:{SRD_WA+3}], s{S_KX} offen lds")
head_rest("ssm")
head_end(mark)
A.label("L_ssm_loader")
CN = 212
LR, LI = 214, 215
L8, L128, KL = 216, 218, 220
def const_loads():
    A(f"""s_lshl_b32 s{S_T0}, s{S_LW}, 6
    v_add_u32 v{CN}, s{S_T0}, v{VL}
    v_min_u32 v{CN}, 159, v{CN}
    s_mul_i32 s{S_T0}, s{S_CB}, 160
    v_add_u32 v110, s{S_T0}, v{CN}
    v_lshlrev_b32 v110, 1, v110
    global_load_ushort v111, v110, s[{S_LRE}:{S_LRE+1}]
    global_load_ushort v112, v110, s[{S_LIM}:{S_LIM+1}]
    global_load_ushort v113, v110, s[{S_LDT}:{S_LDT+1}]""")
def ssm_setup3():
  A(f"""v_cmp_le_u32 vcc, 80, v{CN}
v_mov_b32 v41, 0
v_mov_b32 v42, {640-160}
v_cndmask_b32 v41, v41, v42, vcc
v_lshl_add_u32 v41, v{CN}, 1, v41
s_mul_i32 s{S_T0}, s{S_CB}, 160
v_add_u32 v41, s{S_T0}, v41
v_lshlrev_b32 v41, 3, v41
v_add_u32 v41, {WS_CSB}, v41
s_lshl_b32 s{S_T0+1}, s{S_C}, 10
s_add_u32 s{S_T0+1}, s{S_T0+1}, {WS_STAT}
v_lshlrev_b32 v40, 4, v{VL}
v_add_u32 v40, s{S_T0+1}, v40
s_cmp_eq_u32 s{S_LW}, 3
s_cselect_b64 vcc, -1, 0
s_nop 1
v_cndmask_b32 v40, v41, v40, vcc""")
def cmul(d, a, b, t):
    A(f"""v_mul_f32 v{t}, v{a+1}, v{b+1}
    v_mul_f32 v{t+1}, v{a+1}, v{b}
    v_fma_f32 v{t}, v{a}, v{b}, -v{t}
    v_fma_f32 v{d+1}, v{a}, v{b+1}, v{t+1}
    v_mov_b32 v{d}, v{t}""")
def ssm_consts():
    A(f"""v_lshlrev_b32 v111, 16, v111
    v_lshlrev_b32 v112, 16, v112
    v_lshlrev_b32 v113, 16, v113
    v_mul_f32 v113, {LOG2E}, v113
    v_exp_f32 v113, v113
    v_mul_f32 v114, v111, v111
    v_fma_f32 v114, v112, v112, v114
    v_cvt_pk_bf16_f32 v113, v113, v113
    v_lshlrev_b32 v113, 16, v113              ; dt
    v_rcp_f32 v114, v114
    v_mul_f32 v115, v113, v111
    v_mul_f32 v116, v113, v112
    v_mul_f32 v115, {LOG2E}, v115
    v_mul_f32 v116, 0.15915494, v116
    v_exp_f32 v115, v115
    v_rndne_f32 v117, v116
    v_sub_f32 v116, v116, v117
    v_cos_f32 v117, v116
    v_sin_f32 v116, v116
    v_add_f32 v114, v114, v114
    v_mul_f32 v{LR}, v115, v117
    v_mul_f32 v{LI}, v115, v116
    v_add_f32 v115, -1.0, v{LR}
    v_mul_f32 v116, v{LI}, v112
    v_fma_f32 v116, v115, v111, v116
    v_mul_f32 v117, v115, v112
    v_fma_f32 v117, v{LI}, v111, -v117        ; Im
    v_mul_f32 v118, v116, v114
    v_mul_f32 v119, -v117, v114
    v_lshlrev_b32 v120, 3, v{CN}
    v_add_u32 v120, {M_LAM}, v120
    ds_write_b64 v120, v[{LR}:{LI}]
    ds_write_b64 v120, v[118:119] offset:{M_COEF-M_LAM}
    v_mul_f32 v{KL}, v118, v{LR}
    v_fma_f32 v{KL}, v119, v{LI}, v{KL}
    v_mul_f32 v{KL+1}, v119, v{LR}
    v_fma_f32 v{KL+1}, -v118, v{LI}, v{KL+1}""")
    yield
    cmul(L8, LR, LR, 114)
    cmul(L8, L8, L8, 114)
    cmul(L8, L8, L8, 114)
    cmul(L128, L8, L8, 114)
    for i in range(3):
        cmul(L128, L128, L128, 114)
def ssm_gran():
    if True:
        vm.wait("gran")
        lr, lo, lskip, lstat = A.newlabel("L_gr"), A.newlabel("L_gr"), A.newlabel("L_gr"), A.newlabel("L_gr")
        A.label(lr)
        A(f"""v_cmp_ne_u32 vcc, s{S_NONCE}, v45
        v_cmp_ne_u32 s[{S_M0}:{S_M0+1}], s{S_NONCE}, v47
        s_nop 1
        s_or_b64 s[{S_M0}:{S_M0+1}], s[{S_M0}:{S_M0+1}], vcc
        s_cmp_eq_u64 s[{S_M0}:{S_M0+1}], 0
        s_cbranch_scc1 {lo}
        global_load_dwordx4 v[44:47], v40, s[{S_WS}:{S_WS+1}] sc1
        s_waitcnt vmcnt(0)""")
        spin_tail(lr, lo, 6)
        A.label(lo)
        A(f"""s_cmp_eq_u32 s{S_LW}, 3
        s_cbranch_scc1 {lstat}
        v_mov_b32 v45, v46
        v_lshlrev_b32 v46, 3, v{CN}
        v_add_u32 v46, {M_CS}, v46
        ds_write_b64 v46, v[44:45]
        s_branch {lskip}""")
        A.label(lstat)
        A(f"""v_and_b32 v48, 0xffff0000, v44
        v_and_b32 v49, 0xffff0000, v46
        v_rcp_f32 v48, v48
        v_rcp_f32 v49, v49
        v_lshlrev_b32 v44, 16, v44
        v_lshlrev_b32 v46, 16, v46
        v_and_b32 v50, 32, v{VL}
        v_lshlrev_b32 v50, 1, v50
        v_and_b32 v51, 3, v{VL}
        v_lshl_add_u32 v50, v51, 4, v50
        v_bfe_u32 v51, v{VL}, 3, 2
        v_lshl_add_u32 v50, v51, 2, v50
        v_bfe_u32 v51, v{VL}, 2, 1
        v_add_u32 v50, v50, v51
        v_lshlrev_b32 v50, 2, v50
        v_add_u32 v50, {M_ROW}, v50
        ds_write2_b32 v50, v44, v46 offset0:0 offset1:2
        ds_write2_b32 v50, v48, v49 offset0:128 offset1:130""")
        A.label(lskip)
        A("s_waitcnt lgkmcnt(0)")

nonce_ready()
const_loads()
jobs = Jobs()
jobs.add(one(lambda: None))
jobs.add(ssm_consts())
jobs.add(one(ssm_setup3))
jobs.add(one(lambda: g2_setup(2, 232)))
def gs():
    A(f"global_load_dwordx4 v[44:47], v40, s[{S_WS}:{S_WS+1}] sc1")
g1_main(jobs, gs, ssm_gran, 1)
A(f"s_lshl_b32 s{S_SLOT}, s{S_S2}, 14")
SB = [44, 44, 108, 172, 44, 108]
run(g2_load(0, SB[0], CAP))
g2_put(0, SB[0], 0, 20)
if not OPT.get("l1late", 0):
    run(g2_load(1, SB[1], 16))
A("s_setprio 3\ns_barrier")
ts(4, 2)
lmid = A.newlabel("L_mid")
A(f"s_cmp_eq_u32 s{S_LW}, 3\ns_cbranch_scc1 {lmid}")
ME = 112
ML = 144
MT = 204
A(f"""v_lshlrev_b32 v{MT}, 3, v{CN}
v_add_u32 v{MT}, {E_BASE}, v{MT}""")
for j in range(16):
    A(f"ds_read_b64 v[{ME+2*j}:{ME+2*j+1}], v{MT} offset:{j*1280}")
A(f"""s_lshl_b32 s{S_T0}, s{S_CB}, 4
s_mul_i32 s{S_T0}, s{S_T0}, 2560
s_add_u32 s{S_T0}, s{S_T0}, {WS_SCAN}
v_lshlrev_b32 v{MT+1}, 4, v{CN}
v_add_u32 v{MT+1}, s{S_T0}, v{MT+1}
s_mul_i32 s{S_T0}, s{S_C}, 2560
v_add_u32 v{MT+2}, s{S_T0}, v{MT+1}
v_mov_b32 v{MT+5}, s{S_NONCE}
v_mov_b32 v{MT+7}, s{S_NONCE}""")
def cfma(d, a, b, c, conj_a=False, conj_b=False):
    nb = " neg_hi:[0,1,0]" if conj_b else ""
    if c is None:
        A(f"v_pk_mul_f32 v[{d}:{d+1}], v[{a}:{a+1}], v[{b}:{b+1}] op_sel_hi:[0,1]" + (" neg_hi:[0,1]" if conj_b else ""))
        c = d
    else:
        A(f"v_pk_fma_f32 v[{d}:{d+1}], v[{a}:{a+1}], v[{b}:{b+1}], v[{c}:{c+1}] op_sel_hi:[0,1,1]{nb}")
    slo = 1 ^ conj_a ^ conj_b
    shi = int(conj_a)
    A(f"v_pk_fma_f32 v[{d}:{d+1}], v[{a}:{a+1}], v[{b}:{b+1}], v[{d}:{d+1}] op_sel:[1,1,0] op_sel_hi:[1,0,1] neg_lo:[{slo},0,0] neg_hi:[{shi},0,0]")
for j in range(1, 16):
    if j in (1, 5, 9, 13):
        A(f"s_waitcnt lgkmcnt({max(0, 11 - j + 1 - 0) if j < 13 else 0})")
    cfma(ME + 2 * j, L8, ME + 2 * j - 2, ME + 2 * j)
A(f"""v_mov_b32 v{MT+4}, v{ME+30}
v_mov_b32 v{MT+6}, v{ME+31}
global_store_dwordx4 v{MT+2}, v[{MT+4}:{MT+7}], s[{S_WS}:{S_WS+1}] {['sc1', 'sc0 sc1', 'sc1 nt'][OPT.get('lbs', 0)]}""")
ts(5, 2)
lr, lo, lld, lck, lh = [A.newlabel("L_lb") for _ in range(5)]
def lb_loads(lbl):
    A(f"v_mov_b32 v{MT+3}, v{MT+1}")
    for k in range(15):
        A(f"""s_cmp_le_u32 s{S_C}, {k}
        s_cbranch_scc1 {lbl}
        global_load_dwordx4 v[{ML+4*k}:{ML+4*k+3}], v{MT+3}, s[{S_WS}:{S_WS+1}] {['sc1', 'sc0 sc1', 'sc1 nt', 'sc0 sc1 nt'][OPT.get('lbm', 0)]}
        v_add_u32 v{MT+3}, 2560, v{MT+3}""")
    A.label(lbl)
if not OPT.get("lbd", 1):
    lb_loads(lld)
for j in range(15, 0, -1):
    cfma(ME + 2 * j, KL, ME + 2 * j - 2, None, conj_b=True)
MP = 16
A(f"v_mov_b32 v{MP+2}, v{L8}\nv_sub_f32 v{MP+3}, 0, v{L8+1}")
for j in range(2, 14):
    cfma(MP + 2 * j, MP + 2, MP + 2 * j - 2, None)
A(f"v_mov_b32 v{ME}, 0\nv_mov_b32 v{ME+1}, 0")
if OPT.get("lbd", 1):
    if OPT.get("lbd", 1) > 1:
        A(f"s_sleep {OPT['lbd']}")
    lb_loads(lld)
A.label(lr)
A(f"s_waitcnt vmcnt(0)\ns_mov_b64 s[{S_M0}:{S_M0+1}], 0")
for k in range(15):
    A(f"""s_cmp_le_u32 s{S_C}, {k}
    s_cbranch_scc1 {lck}
    v_cmp_ne_u32 vcc, s{S_NONCE}, v{ML+4*k+1}
    v_cmp_ne_u32 s[{S_M1}:{S_M1+1}], s{S_NONCE}, v{ML+4*k+3}
    s_nop 1
    s_or_b64 s[{S_M0}:{S_M0+1}], s[{S_M0}:{S_M0+1}], vcc
    s_or_b64 s[{S_M0}:{S_M0+1}], s[{S_M0}:{S_M0+1}], s[{S_M1}:{S_M1+1}]""")
A.label(lck)
A(f"s_cmp_eq_u64 s[{S_M0}:{S_M0+1}], 0\ns_cbranch_scc1 {lo}")
lb_loads(A.newlabel("L_lb"))
spin_tail(lr, lo, 7)
A.label(lo)
ts(6, 2)
H = MT + 4
A(f"v_mov_b32 v{H}, 0\nv_mov_b32 v{H+1}, 0")
for k in range(15):
    g = ML + 4 * k
    A(f"""s_cmp_le_u32 s{S_C}, {k}
    s_cbranch_scc1 {lh}
    v_mov_b32 v{g+1}, v{g+2}""")
    cfma(g, L128, H, g)
    A(f"v_mov_b64 v[{H}:{H+1}], v[{g}:{g+1}]")
A.label(lh)
Q = MT + 6
cfma(Q, KL, H, None, conj_b=True)
A(f"v_pk_add_f32 v[{ME}:{ME+1}], v[{ME}:{ME+1}], v[{Q}:{Q+1}]")
A(f"ds_write_b64 v{MT}, v[{ME}:{ME+1}]")
for j in range(1, 16):
    d = ME + 2 * j
    if j == 14:
        cfma(H, MP + 4, Q, None)
    if j < 14:
        cfma(d, MP + 2 * j, Q, d)
    else:
        cfma(d, MP + 2 * (j - 2), H, d)
    A(f"ds_write_b64 v{MT}, v[{d}:{d+1}] offset:{j*1280}")
A("s_waitcnt lgkmcnt(0)")
A.label(lmid)
A("s_setprio 0\ns_barrier")
ts(7, 2)
SC = OPT.get("scap", 3)
if OPT.get("l1late", 0):
    run(g2_load(1, SB[1], SC))
run(g2_load(2, SB[2], SC))
run(g2_load(3, SB[3], OPT.get("scap2", 6)))
A(f"s_cmp_lt_u32 s{S_S2}, 5\ns_cselect_b32 s{S_T0+5}, 20, 21")
g2_put(1, SB[1], 32, f"s{S_T0+5}")
run(g2_load(4, SB[4], 24))
g2_put(2, SB[2], 32, 21)
la = A.newlabel("L_k")
A(f"s_cmp_ge_u32 s{S_S2}, 14\ns_cbranch_scc1 {la}")
run(g2_load(5, SB[5], 24))
g2_put(3, SB[3], 32, 21)
g2_put(4, SB[4], 16, 21)
g2_put(5, SB[5], 0, 21)
A(f"s_branch {la}x")
A.label(la)
A(f"s_cmp_lg_u32 s{S_S2}, 15\ns_cbranch_scc1 {la}p")
poll_until()
A.label(f"{la}p")
g2_put(3, SB[3], 16, 21)
g2_put(4, SB[4], 0, 21)
A.label(f"{la}x")
finish()

A.label("L_end")
A("s_endpgm")
A.label("L_code_end")
A.lines[HEADPOS:HEADPOS] = HEADS
A.lines.insert(0, "L_code_start:")

hdr = open(os.path.join(os.path.dirname(__file__), "header.txt")).read()
print(hdr + f"""; @launch grid=(256,1,1) block=(512,1,1) lds=163840
.amdgcn_target "amdgcn-amd-amdhsa--gfx950"
.text
.globl {KNAME}
.p2align 8
.type {KNAME},@function
{KNAME}:""")
print(A.text(), end="")
print(f""".section .rodata,"a"
.p2align 6
.amdhsa_kernel {KNAME}
  .amdhsa_next_free_vgpr 256
  .amdhsa_next_free_sgpr 102
  .amdhsa_accum_offset 256
  .amdhsa_group_segment_fixed_size 0
  .amdhsa_kernarg_size 128
  .amdhsa_user_sgpr_count 2
  .amdhsa_user_sgpr_kernarg_segment_ptr 1
  .amdhsa_system_sgpr_workgroup_id_x 1
.end_amdhsa_kernel""")
```

```python
import sys, os
sys.path.insert(0, os.path.dirname(__file__))
from asmlib import Asm, Queue, vr, sr

OPT = dict(ts=0, stop=0, DA=3, D1=4, D1S=5, timeout=1 << 20, nodma=0, nomfma=0, nobar=0, noread=0, rot=8, rot2=1, pf=0, stash=8, sg1=12, amod=1)
for a in sys.argv[1:]:
    k, v = a.split("=")
    OPT[k] = int(v)
P0 = OPT.get("p0", 3)
TS = OPT["ts"]; STOP = OPT["stop"]; DA = OPT["DA"]; D1 = OPT["D1"]

KNAME = "parallel_sum__ssm_conv_s5__glu_gated_swiglu__prompt_kernel"

WS_E = 0
FSH = OPT.get('fsh', 7)
WS_FLAG = 0x80000
WS_STAT = 0x4000
WS_CSB = 0x8000
WS_CSW = 0x10000
WS_SCAN = 0x40000
WS_TAB = 0x80000
WS_ACT = 0x100000
WS_TS = 0x1000000

MISC = 151552
WRING = 49152
SCR = 131072
M_ROW = MISC
M_CS = MISC + 2048
M_LAM = MISC + 3584
M_COEF = MISC + 4864
E_BASE = 81920
TR_BASE = 102400

S_X, S_LRE, S_LIM, S_BRE, S_BIM, S_CRE, S_CIM, S_LDT = 4, 6, 8, 10, 12, 14, 16, 18
S_DSK, S_W1, S_W3, S_W2, S_OUT, S_DBG, S_WS = 20, 24, 26, 28, 30, 32, 34
SRD_X, SRD_WA, SRD_WB, SRD_W2, SRD_C, SRD_T = 36, 40, 44, 48, 52, 56
S_XCD, S_IDX, S_C, S_J, S_CB, S_WAVE, S_NONCE = 60, 61, 62, 63, 64, 65, 66
S_HB2, S_DCOL, S_TG = 67, 68, 23
S_ONES = 69
S_T0 = 70
S_SLOT, S_KX, S_KW, S_CNT, S_DELTA = 80, 81, 82, 83, 84
S_AB = 86
S_M0, S_M1 = 88, 90
S_EX = 92
S_TO = 94
S_TS = 96
S_ROT, S_R2A, S_R2B, S_KB, S_KS = 95, 98, 99, 100, 101

A = Asm()
LOG2E = 0x3fb8aa3b
NLOG2E = 0xbfb8aa3b

def ts(idx, vtmp):
    if not TS:
        return

    A(f"""s_memrealtime s[{S_TS}:{S_TS+1}]
    s_waitcnt lgkmcnt(0)
    v_writelane_b32 v255, s{S_TS}, {idx}""")

def tc(idx):
    if not TS:
        return
    A(f"""s_memtime s[{S_TS}:{S_TS+1}]
    s_waitcnt lgkmcnt(0)
    v_writelane_b32 v255, s{S_TS}, {idx}""")

def ts_flush(vtmp):
    if not TS:
        return
    A(f"""s_lshl_b32 s{S_T0}, s2, 3
    s_add_u32 s{S_T0}, s{S_T0}, s{S_WAVE}
    s_lshl_b32 s{S_T0}, s{S_T0}, 8
    s_add_u32 s{S_T0}, s{S_T0}, {WS_TS}
    v_lshlrev_b32 v{vtmp}, 2, v{VL}
    v_add_u32 v{vtmp}, s{S_T0}, v{vtmp}
    global_store_dword v{vtmp}, v255, s[{S_WS}:{S_WS+1}]""")

def srd(d, p, nbytes):
    A(f"""s_mov_b32 s{d}, s{p}
    s_mov_b32 s{d+1}, s{p+1}
    s_mov_b32 s{d+2}, {nbytes}
    s_mov_b32 s{d+3}, 0x20000""")

def srd_sel(d, p1, p0, nbytes):
    A(f"""s_cselect_b32 s{d}, s{p1}, s{p0}
    s_cselect_b32 s{d+1}, s{p1+1}, s{p0+1}
    s_mov_b32 s{d+2}, {nbytes}
    s_mov_b32 s{d+3}, 0x20000""")

def spin_tail(lbl_retry, lbl_ok, code):
    A(f"""s_sleep {OPT.get('nap', 1) if code == 2 else 1}
    s_sub_u32 s{S_TO}, s{S_TO}, 1
    s_cmp_lg_u32 s{S_TO}, 0
    s_cbranch_scc1 {lbl_retry}
    s_mov_b32 s{S_TO}, 1""")

VL = 254
VFO = 253
FLG = MISC + 6144
FREE, AUX = FLG + 2048, FLG + 4096
S_K = 3
S_FR = 86
S_LMT = 85
SRD_F = 52
VZ = 252
SLOW = []
def flag_test(need, vD, vP, off, pre=None, anylane=False, acc=None, nap=0, split=False):
    ls, lb, lr = A.newlabel("L_sw"), A.newlabel("L_bk"), A.newlabel("L_sr")
    cmp_ = f"v_cmp_ne_u32 vcc, s{S_K}, v{vD}"
    A(f"s_cbranch_vccnz {ls}" if split else f"{cmp_}\ns_cbranch_vccnz {ls}")
    A.label(lb)
    mark = len(A.lines)
    A.label(ls)
    if TS and acc is not None:
        A(f"s_memtime s[{S_TS}:{S_TS+1}]\ns_waitcnt lgkmcnt(0)\ns_sub_u32 s{acc}, s{acc}, s{S_TS}\ns_add_u32 s{acc+1}, s{acc+1}, 1")
        lb2 = lb
        lb = A.newlabel("L_b2")
    A.label(lr)
    if nap:
        A(f"s_sleep {nap}")
    A(f"""ds_read_b32 v{vD}, v{vP} offset:{off}
    s_waitcnt lgkmcnt(0)
    {cmp_}
    s_cbranch_vccz {lb}
    s_sub_u32 s{S_TO}, s{S_TO}, 1
    s_cmp_lg_u32 s{S_TO}, 0
    s_cbranch_scc1 {lr}
    s_mov_b32 s{S_TO}, 1
    s_branch {lb}""")
    if TS and acc is not None:
        A.label(lb)
        A(f"s_memtime s[{S_TS}:{S_TS+1}]\ns_waitcnt lgkmcnt(0)\ns_add_u32 s{acc}, s{acc}, s{S_TS}\ns_branch {lb2}")
    SLOW.extend(A.lines[mark:])
    del A.lines[mark:]
def flag_wait(need, vD, vP, rel=0, nap=0):
    off = rel + 4 * need
    A(f"ds_read_b32 v{vD}, v{vP} offset:{off}\ns_waitcnt lgkmcnt(0)")
    flag_test(need, vD, vP, off, nap=nap)
def flush_slow():
    A.lines.extend(SLOW)
    SLOW.clear()
def flag_init(base, wave_sgpr, vP, peer, aux):
    A(f"""s_lshl_b32 s{S_T0}, s{wave_sgpr}, 9
    s_add_u32 s{S_T0}, s{S_T0}, {base}
    v_lshlrev_b32 v{VFO}, 2, v{VL}
    v_add_u32 v{VFO}, s{S_T0}, v{VFO}
    v_mov_b32 v{VZ}, 0
    s_waitcnt lgkmcnt(0)
    v_not_b32 v{vP}, s{S_K}
    ds_write2st64_b32 v{VFO}, v{vP}, v{vP} offset0:0 offset1:1""")
    if aux:
        A(f"""s_lshl_b32 s{S_T0+1}, s{wave_sgpr}, 8
        v_lshlrev_b32 v{aux}, 2, v{VL}
        v_add_u32 v{aux}, s{S_T0+1}, v{aux}
        v_add_u32 v{aux}, {AUX}, v{aux}
        ds_write_b32 v{aux}, v{VZ}""")
    peer_addr(vP, peer)
    A("s_waitcnt lgkmcnt(0)\ns_barrier")
def peer_addr(vP, peer):
    A(f"""v_and_b32 v{vP}, 3, v{VL}
    v_lshlrev_b32 v{vP}, 9, v{vP}
    v_add_u32 v{vP}, {peer + 252}, v{vP}""")


S_LW = 85
A(f"""s_cmp_ge_u32 s2, 256
s_cbranch_scc1 L_end
s_load_dwordx16 s[4:19], s[0:1], 0
s_load_dwordx16 s[20:35], s[0:1], 64
v_lshrrev_b32 v1, 6, v0
v_and_b32 v{VL}, 63, v0
s_and_b32 s{S_XCD}, s2, 7
v_readfirstlane_b32 s{S_WAVE}, v1
s_lshr_b32 s{S_IDX}, s2, 3
s_and_b32 s{S_T0}, s{S_XCD}, 1
s_lshl_b32 s{S_T0}, s{S_T0}, 3
s_and_b32 s{S_T0+1}, s{S_IDX}, 7
s_add_u32 s{S_C}, s{S_T0}, s{S_T0+1}
s_lshr_b32 s{S_J}, s{S_IDX}, 3
s_lshr_b32 s{S_T0+2}, s{S_XCD}, 1
s_mul_i32 s{S_CB}, s{S_T0+2}, 3
s_add_u32 s{S_CB}, s{S_CB}, s{S_J}
s_sub_u32 s{S_CB}, s{S_CB}, 1
s_cmp_eq_u32 s{S_J}, 0
s_cselect_b32 s{S_CB}, s{S_T0+2}, s{S_CB}
""")
if TS:
    A("v_mov_b32 v255, 0")
    ts(0, 2)
RG = OPT["rot"]
C0 = OPT.get("c0", 1)
if RG:
    A(f"""s_lshl_b32 s{S_ROT}, s{S_J}, {1 if RG == 8 else 0}
    s_add_u32 s{S_ROT}, s{S_T0+1}, s{S_ROT}
    s_and_b32 s{S_ROT}, s{S_ROT}, {RG-1}
    s_mul_i32 s{S_ROT}, s{S_ROT}, {9 if C0 else 10}
    s_lshr_b32 s{S_ROT}, s{S_ROT}, {RG.bit_length()-1}""")
else:
    A(f"s_mov_b32 s{S_ROT}, 0")
A(f"""s_cmp_lt_u32 s{S_WAVE}, 4
s_cbranch_scc1 L_compute
s_sub_u32 s{S_LW}, s{S_WAVE}, 4
s_setprio {OPT.get('pl1', 0)}""")

def nonce_load():
    A(f"s_load_dword s{S_NONCE}, s[{S_WS}:{S_WS+1}], {WS_E}")
def late_scalars():
    A(f"""s_sub_u32 s{S_T0}, s{S_IDX}, 8
    s_mul_i32 s{S_T0+1}, s{S_T0}, 13
    s_lshr_b32 s{S_T0+1}, s{S_T0+1}, 6          ; n/5
    s_mul_i32 s{S_T0+2}, s{S_T0+1}, 5
    s_sub_u32 s{S_T0+2}, s{S_T0}, s{S_T0+2}     ; n%5
    s_mul_i32 s{S_TG}, s{S_T0+2}, 6
    s_lshl_b32 s{S_T0+3}, s{S_IDX}, 1
    s_add_u32 s{S_T0+3}, s{S_T0+3}, 16
    s_cmp_lt_u32 s{S_IDX}, 4
    s_cselect_b32 s{S_T0+3}, 30, s{S_T0+3}
    s_min_u32 s{S_T0}, s{S_IDX}, 4
    s_cmp_eq_u32 s{S_J}, 0
    s_cselect_b32 s{S_TG}, s{S_T0+3}, s{S_TG}
    s_cselect_b32 s{S_T0+1}, s{S_T0}, s{S_T0+1}  ; strip
    s_cselect_b32 s{S_T0+2}, 5, s{S_T0+2}
    s_lshr_b32 s{S_T0}, s{S_XCD}, 1
    s_lshl_b32 s{S_T0}, s{S_T0}, 5
    s_add_u32 s{S_TG}, s{S_TG}, s{S_T0}          ; first 16-row tile
    s_lshr_b32 s{S_HB2}, s{S_TG}, 2
    s_lshl_b32 s{S_DCOL}, s{S_T0+1}, 6
    s_and_b32 s{S_T0}, s{S_XCD}, 1
    s_mul_i32 s{S_T0}, s{S_T0}, 320
    s_add_u32 s{S_DCOL}, s{S_DCOL}, s{S_T0}
    s_mov_b32 s{S_ONES}, 0x3f803f80
    s_mov_b32 s{S_TO}, {OPT['timeout']}""")
    if OPT["rot2"]:
        A(f"""s_add_u32 s{S_R2B}, s{S_T0+1}, s{S_T0+2}
        s_lshl_b32 s{S_R2A}, s{S_R2B}, 1
        s_cmp_ge_u32 s{S_R2A}, 12
        s_cselect_b32 s{S_T0+3}, 12, 0
        s_sub_u32 s{S_R2A}, s{S_R2A}, s{S_T0+3}
        s_lshl_b32 s{S_R2B}, s{S_R2B}, 1
        s_cmp_ge_u32 s{S_R2B}, 10
        s_cselect_b32 s{S_T0+3}, 10, 0
        s_sub_u32 s{S_R2B}, s{S_R2B}, s{S_T0+3}""")
    else:
        A(f"s_mov_b32 s{S_R2A}, 0\ns_mov_b32 s{S_R2B}, 0")
for n_ in range(24):
    assert (n_ * 13) >> 6 == n_ // 5

HEADPOS = len(A.lines)
HEADS = []

def dpp_reduce16(regs):
    for sh in (8, 4, 2, 1):
        A("s_nop 1")
        for r in regs:
            A(f"v_add_f32_dpp v{r}, v{r}, v{r} row_ror:{sh} row_mask:0xf bank_mask:0xf")

def nonce_ready():
    A(f"""s_waitcnt lgkmcnt(0)
    s_add_u32 s{S_NONCE}, s{S_NONCE}, 1""")

def sum_bf16(regs, acc, sq=None, t=None):
    for k, r in enumerate(regs):
        if k and k % (5 if sq is not None else 8) == 0:
            yield
        A(f"v_lshlrev_b32 v{t}, 16, v{r}")
        A(f"v_and_b32 v{r}, 0xffff0000, v{r}")
        if k == 0:
            A(f"v_mov_b32 v{acc}, v{t}\nv_mov_b32 v{acc+1}, v{r}")
            if sq is not None:
                A(f"v_mul_f32 v{sq}, v{t}, v{t}\nv_mul_f32 v{sq+1}, v{r}, v{r}")
        else:
            A(f"v_add_f32 v{acc}, v{acc}, v{t}\nv_add_f32 v{acc+1}, v{acc+1}, v{r}")
            if sq is not None:
                A(f"v_fmac_f32 v{sq}, v{t}, v{t}\nv_fmac_f32 v{sq+1}, v{r}, v{r}")
    A(f"v_add_f32 v{acc}, v{acc}, v{acc+1}")
    if sq is not None:
        A(f"v_add_f32 v{sq}, v{sq}, v{sq+1}")

def reduce32(regs):
    dpp_reduce16(regs)
    A("s_nop 1")
    for r in regs:
        A(f"v_add_f32_dpp v{r}, v{r}, v{r} row_bcast:15 row_mask:0xa bank_mask:0xf")

def stat_loads(vm, T):
    A(f"""v_lshrrev_b32 v{T+10}, 5, v{VL}
    s_lshl_b32 s{S_T0}, s2, 3
    s_lshl_b32 s{S_T0+1}, s{S_LW}, 1
    s_add_u32 s{S_T0}, s{S_T0}, s{S_T0+1}
    v_add_u32 v{T+10}, s{S_T0}, v{T+10}
    v_and_b32 v{T+11}, 31, v{VL}
    v_mul_u32_u24 v{T+12}, 1280, v{T+10}
    v_lshl_add_u32 v{T+12}, v{T+11}, 3, v{T+12}""")
    for i in range(5):
        A(f"global_load_dwordx2 v[{T+2*i}:{T+2*i+1}], v{T+12}, s[{S_X}:{S_X+1}] offset:{256*i}")
        vm.issue("stat")

def stat_work(vm, T):
    vm.wait("stat")
    a, q = T + 12, T + 14
    yield from sum_bf16(list(range(T, T + 10)), a, q, T + 16)
    yield
    reduce32([a, q])
    yield
    A(f"""v_mul_f32 v{a}, 0x3acccccd, v{a}      ; mean
    v_mul_f32 v{q}, 0x3acccccd, v{q}
    v_fma_f32 v{q}, -v{a}, v{a}, v{q}
    v_max_f32 v{q}, 0, v{q}
    v_cvt_pk_bf16_f32 v{q}, v{q}, v{q}
    v_lshlrev_b32 v{q}, 16, v{q}
    v_add_f32 v{q}, 0x3727c5ac, v{q}
    v_cvt_pk_bf16_f32 v{q}, v{q}, v{q}
    v_lshlrev_b32 v{q}, 16, v{q}
    v_sqrt_f32 v{q}, v{q}
    v_lshlrev_b32 v{T+10}, 3, v{T+10}
    v_add_u32 v{T+10}, {WS_STAT}, v{T+10}
    v_cvt_pk_bf16_f32 v{a}, v{a}, v{q}
    v_mov_b32 v{a+1}, s{S_NONCE}
    v_cmp_eq_u32 vcc, 16, v{T+11}
    s_and_saveexec_b64 s[{S_EX}:{S_EX+1}], vcc
    global_store_dwordx2 v{T+10}, v[{a}:{a+1}], s[{S_WS}:{S_WS+1}] sc1
    s_mov_b64 exec, s[{S_EX}:{S_EX+1}]""")
    vm.issue("pub")

S_CS0 = 86
def colsum_loads(T):
    A(f"""s_mul_i32 s{S_T0}, s{S_C}, 12
    s_add_u32 s{S_T0}, s{S_T0}, s{S_CB}            ; sigma
    s_lshr_b32 s{S_T0+1}, s{S_T0}, 2               ; strip
    s_and_b32 s{S_T0+2}, s{S_T0}, 3                ; k quarter
    s_cmp_ge_u32 s{S_T0+1}, 24""")
    srd_sel(SRD_T, S_W3, S_W1, 1966080)
    A(f"""s_cselect_b32 s{S_T0+3}, {24*128}, 0
    s_lshl_b32 s{S_T0+4}, s{S_T0+1}, 7
    s_sub_u32 s{S_T0+4}, s{S_T0+4}, s{S_T0+3}
    s_mul_i32 s{S_T0+5}, s{S_T0+2}, {160*3072}
    s_add_u32 s{S_T0+4}, s{S_T0+4}, s{S_T0+5}      ; soffset
    s_mul_i32 s{S_CS0}, s{S_T0+2}, {3072*8}
    s_lshl_b32 s{S_T0+1}, s{S_T0+1}, 9
    s_add_u32 s{S_CS0}, s{S_CS0}, s{S_T0+1}
    s_add_u32 s{S_CS0}, s{S_CS0}, {WS_CSW}
    v_lshrrev_b32 v{T}, 3, v{VL}
    v_and_b32 v{T+1}, 7, v{VL}
    v_mul_u32_u24 v{T}, 3072, v{T}
    v_lshl_add_u32 v{T}, v{T+1}, 4, v{T}""")
    for i in range(20):
        if i % 4 == 0:
            A(f"s_mov_b32 m0, {SCR + 1024*i}")
        A(f"""s_add_u32 s{S_T0+7}, s{S_T0+4}, {8*3072*i - 1024*(i%4)}
        s_waitcnt vmcnt({OPT.get("cap", 7)})
        buffer_load_dwordx4 v{T}, s[{SRD_T}:{SRD_T+3}], s{S_T0+7} offen offset:{1024*(i%4)} lds""")

def colsum_work(T):
    A(f"""v_lshrrev_b32 v{T+2}, 4, v{VL}
    v_lshlrev_b32 v{T+3}, 5, v{T+2}
    v_lshlrev_b32 v{T+2}, 10, v{T+2}
    v_bfe_u32 v{T+1}, v{VL}, 2, 2
    v_lshl_add_u32 v{T+2}, v{T+1}, 7, v{T+2}
    v_and_b32 v{T+1}, 3, v{VL}
    v_lshl_add_u32 v{T+2}, v{T+1}, 3, v{T+2}
    v_add_u32 v{T+2}, {SCR}, v{T+2}
    v_add_u32 v{T+3}, s{S_CS0}, v{T+3}""")
    for i in range(4):
        A(f"v_mov_b32 v{T+4+i}, s{S_ONES}")
    F = T + 24
    for u in range(4):
        for ks in range(5):
            b = F + (u * 5 + ks) * 4
            A(f"ds_read_b64_tr_b16 v[{b}:{b+1}], v{T+2} offset:{ks*4096+u*32}")
            A(f"ds_read_b64_tr_b16 v[{b+2}:{b+3}], v{T+2} offset:{ks*4096+u*32+512}")
    A("s_waitcnt lgkmcnt(0)")
    for ks in range(5):
        for u in range(4):
            b = F + (u * 5 + ks) * 4
            d = T + 8 + 4 * u
            cin = "0" if ks == 0 else f"v[{d}:{d+3}]"
            A(f"v_mfma_f32_16x16x32_bf16 v[{d}:{d+3}], v[{b}:{b+3}], v[{T+4}:{T+7}], {cin}")
    A(f"""v_and_b32 v{T+1}, 15, v{VL}
    v_cmp_eq_u32 vcc, 0, v{T+1}
    s_nop 7""")
    for u in range(4):
        for h in range(2):
            o = F + (u * 2 + h) * 4
            A(f"""v_mov_b32 v{o}, v{T+8+4*u+2*h}
            v_mov_b32 v{o+1}, s{S_NONCE}
            v_mov_b32 v{o+2}, v{T+9+4*u+2*h}
            v_mov_b32 v{o+3}, s{S_NONCE}""")
    A(f"s_and_saveexec_b64 s[{S_EX}:{S_EX+1}], vcc")
    for u in range(4):
        for h in range(2):
            o = F + (u * 2 + h) * 4
            A(f"global_store_dwordx4 v{T+3}, v[{o}:{o+3}], s[{S_WS}:{S_WS+1}] offset:{u*128+h*16} sc1")
    A(f"s_mov_b64 exec, s[{S_EX}:{S_EX+1}]")

def rowsum_loads(vm, T):
    A(f"""s_lshl_b32 s{S_T0}, s{S_C}, 2
    s_add_u32 s{S_T0}, s{S_T0}, s{S_CB}            ; sigma'
    s_mul_i32 s{S_T0+1}, s{S_T0}, 20
    s_mul_i32 s{S_T0+2}, s{S_LW}, 5
    s_add_u32 s{S_T0+1}, s{S_T0+1}, s{S_T0+2}
    s_cmp_ge_u32 s{S_T0}, 32
    s_cselect_b32 s{S_T0+4}, s{S_BIM}, s{S_BRE}
    s_cselect_b32 s{S_T0+5}, s{S_BIM+1}, s{S_BRE+1}
    s_cselect_b32 s{S_T0+3}, 640, 0
    s_sub_u32 s{S_T0+1}, s{S_T0+1}, s{S_T0+3}
    v_lshrrev_b32 v{T+33}, 5, v{VL}
    v_add_u32 v{T+33}, s{S_T0+1}, v{T+33}
    v_and_b32 v{T+34}, 31, v{VL}""")
    for p in range(3):
        A(f"""v_add_u32 v{T+30+p}, {2*p}, v{T+33}
        v_min_u32 v{T+30+p}, 639, v{T+30+p}
        v_mul_u32_u24 v{T+35}, 1280, v{T+30+p}
        v_lshl_add_u32 v{T+35}, v{T+34}, 3, v{T+35}
        v_add_u32 v{T+30+p}, s{S_T0+3}, v{T+30+p}""")
        for i in range(5):
            b = T + 10 * p + 2 * i
            A(f"global_load_dwordx2 v[{b}:{b+1}], v{T+35}, s[{S_T0+4}:{S_T0+5}] offset:{256*i}")
            vm.issue("rows")

def rowsum_work(vm, T):
    vm.wait("rows")
    for p in range(3):
        yield from sum_bf16(list(range(T + 10 * p, T + 10 * p + 10)), T + 36 + 2 * p, None, T + 35)
    yield
    reduce32([T + 36, T + 38, T + 40])
    for p in range(3):
        A(f"""v_mov_b32 v{T+37+2*p}, s{S_NONCE}
        v_lshlrev_b32 v{T+30+p}, 3, v{T+30+p}
        v_add_u32 v{T+30+p}, {WS_CSB}, v{T+30+p}""")
    A(f"""v_cmp_eq_u32 vcc, 16, v{T+34}
    s_and_saveexec_b64 s[{S_EX}:{S_EX+1}], vcc""")
    for p in range(3):
        A(f"global_store_dwordx2 v{T+30+p}, v[{T+36+2*p}:{T+37+2*p}], s[{S_WS}:{S_WS+1}] sc1")
        vm.issue("pub")
    A(f"s_mov_b64 exec, s[{S_EX}:{S_EX+1}]")

def side_stats(T, filler):
    A(f"""v_lshrrev_b32 v{T+20}, 4, v{VL}
    s_lshl_b32 s{S_T0}, s2, 3
    s_lshl_b32 s{S_T0+1}, s{S_WAVE}, 2
    s_add_u32 s{S_T0}, s{S_T0}, s{S_T0+1}
    v_add_u32 v{T+20}, s{S_T0}, v{T+20}          ; row
    v_and_b32 v{T+21}, 15, v{VL}
    v_mul_u32_u24 v{T+22}, 1280, v{T+20}
    v_lshl_add_u32 v{T+22}, v{T+21}, 4, v{T+22}""")
    for i in range(5):
        A(f"global_load_dwordx4 v[{T+4*i}:{T+4*i+3}], v{T+22}, s[{S_X}:{S_X+1}] offset:{256*i}")
    filler()
    A(f"""v_mov_b32 v{T+24}, 0
    v_mov_b32 v{T+25}, 0
    v_mov_b32 v{T+26}, 0
    v_mov_b32 v{T+27}, 0""")
    nonce_ready()
    for i in range(5):
        A(f"s_waitcnt vmcnt({4-i})")
        for d in range(4):
            r = T + 4 * i + d
            A(f"v_dot2c_f32_bf16 v{T+24+2*(d&1)}, s{S_ONES}, v{r}")
            A(f"v_dot2c_f32_bf16 v{T+25+2*(d&1)}, v{r}, v{r}")
    A(f"""s_nop 3
    v_add_f32 v{T+24}, v{T+24}, v{T+26}
    v_add_f32 v{T+25}, v{T+25}, v{T+27}""")
    dpp_reduce16([T + 24, T + 25])
    A(f"""v_mul_f32 v{T+24}, 0x3acccccd, v{T+24}      ; mean
    v_mul_f32 v{T+25}, 0x3acccccd, v{T+25}
    v_fma_f32 v{T+25}, -v{T+24}, v{T+24}, v{T+25}
    v_max_f32 v{T+25}, 0, v{T+25}
    v_cvt_pk_bf16_f32 v{T+25}, v{T+25}, v{T+25}
    v_lshlrev_b32 v{T+25}, 16, v{T+25}
    v_add_f32 v{T+25}, 0x3727c5ac, v{T+25}
    v_cvt_pk_bf16_f32 v{T+25}, v{T+25}, v{T+25}
    v_lshlrev_b32 v{T+25}, 16, v{T+25}
    v_sqrt_f32 v{T+25}, v{T+25}
    v_lshlrev_b32 v{T+20}, 3, v{T+20}
    v_add_u32 v{T+20}, {WS_STAT}, v{T+20}
    v_cvt_pk_bf16_f32 v{T+26}, v{T+24}, v{T+25}
    v_mov_b32 v{T+27}, s{S_NONCE}
    v_cmp_eq_u32 vcc, 0, v{T+21}
    s_and_saveexec_b64 s[{S_EX}:{S_EX+1}], vcc
    global_store_dwordx2 v{T+20}, v[{T+26}:{T+27}], s[{S_WS}:{S_WS+1}] sc1
    s_mov_b64 exec, s[{S_EX}:{S_EX+1}]""")

def side_colsum_mlp(T, filler):
    A(f"""s_mul_i32 s{S_T0}, s{S_C}, 12
    s_add_u32 s{S_T0}, s{S_T0}, s{S_CB}            ; sigma
    s_lshr_b32 s{S_T0+1}, s{S_T0}, 1               ; strip
    s_and_b32 s{S_T0+2}, s{S_T0}, 1
    s_lshl_b32 s{S_T0+2}, s{S_T0+2}, 1
    s_add_u32 s{S_T0+2}, s{S_T0+2}, s{S_WAVE}
    s_sub_u32 s{S_T0+2}, s{S_T0+2}, 2              ; k quarter
    s_cmp_ge_u32 s{S_T0+1}, 48""")
    srd_sel(SRD_T, S_W3, S_W1, 1966080)
    A(f"""s_cselect_b32 s{S_T0+3}, 48, 0
    s_cselect_b32 s{S_T0+6}, 1536, 0
    s_sub_u32 s{S_T0+1}, s{S_T0+1}, s{S_T0+3}
    s_lshl_b32 s{S_T0+1}, s{S_T0+1}, 5             ; col0
    s_mul_i32 s{S_T0+4}, s{S_T0+2}, {160*3072}
    s_lshl_b32 s{S_T0+5}, s{S_T0+1}, 1
    s_add_u32 s{S_T0+4}, s{S_T0+4}, s{S_T0+5}      ; soffset
    s_sub_u32 s{S_T0+5}, s{S_WAVE}, 2
    s_mul_i32 s{S_T0+5}, s{S_T0+5}, 10240
    s_add_u32 s{S_T0+5}, s{S_T0+5}, {SCR}
    v_lshrrev_b32 v{T}, 2, v{VL}
    v_and_b32 v{T+1}, 3, v{VL}
    v_mul_u32_u24 v{T}, 3072, v{T}
    v_lshl_add_u32 v{T}, v{T+1}, 4, v{T}""")
    for i in range(10):
        A(f"""s_add_u32 m0, s{S_T0+5}, {1024*i}
        s_add_u32 s{S_T0+7}, s{S_T0+4}, {16*3072*i}
        buffer_load_dwordx4 v{T}, s[{SRD_T}:{SRD_T+3}], s{S_T0+7} offen lds""")
    filler()
    A(f"""v_lshrrev_b32 v{T+2}, 4, v{VL}
    v_lshlrev_b32 v{T+2}, 9, v{T+2}
    v_bfe_u32 v{T+3}, v{VL}, 2, 2
    v_lshl_add_u32 v{T+2}, v{T+3}, 6, v{T+2}
    v_lshl_add_u32 v{T+2}, v{T+1}, 3, v{T+2}
    v_add_u32 v{T+2}, s{S_T0+5}, v{T+2}
    v_mov_b32 v{T+4}, s{S_ONES}
    v_mov_b32 v{T+5}, s{S_ONES}
    v_mov_b32 v{T+6}, s{S_ONES}
    v_mov_b32 v{T+7}, s{S_ONES}""")
    A(f"""s_mul_i32 s{S_T0+2}, s{S_T0+2}, 3072
    s_add_u32 s{S_T0+2}, s{S_T0+2}, s{S_T0+6}
    s_add_u32 s{S_T0+2}, s{S_T0+2}, s{S_T0+1}
    s_lshl_b32 s{S_T0+2}, s{S_T0+2}, 3
    s_add_u32 s{S_T0+2}, s{S_T0+2}, {WS_CSW}
    v_lshrrev_b32 v{T+3}, 4, v{VL}
    v_lshlrev_b32 v{T+3}, 5, v{T+3}
    v_add_u32 v{T+3}, s{S_T0+2}, v{T+3}""")
    nonce_ready()
    A("s_waitcnt vmcnt(0)")
    F = T + 16
    for ks in range(5):
        for u in range(2):
            b = F + (ks * 2 + u) * 4
            A(f"ds_read_b64_tr_b16 v[{b}:{b+1}], v{T+2} offset:{ks*2048+u*32}")
            A(f"ds_read_b64_tr_b16 v[{b+2}:{b+3}], v{T+2} offset:{ks*2048+u*32+256}")
    A("s_waitcnt lgkmcnt(0)")
    for ks in range(5):
        for u in range(2):
            b = F + (ks * 2 + u) * 4
            cin = "0" if ks == 0 else f"v[{T+8+4*u}:{T+11+4*u}]"
            A(f"v_mfma_f32_16x16x32_bf16 v[{T+8+4*u}:{T+11+4*u}], v[{b}:{b+3}], v[{T+4}:{T+7}], {cin}")
    A("s_nop 7\ns_nop 1")
    for u in range(2):
        for h in range(2):
            o = F + (u * 2 + h) * 4
            A(f"""v_mov_b32 v{o}, v{T+8+4*u+2*h}
            v_mov_b32 v{o+1}, s{S_NONCE}
            v_mov_b32 v{o+2}, v{T+9+4*u+2*h}
            v_mov_b32 v{o+3}, s{S_NONCE}""")
    A(f"""v_and_b32 v{T+1}, 15, v{VL}
    v_cmp_eq_u32 vcc, 0, v{T+1}
    s_and_saveexec_b64 s[{S_EX}:{S_EX+1}], vcc""")
    for u in range(2):
        for h in range(2):
            o = F + (u * 2 + h) * 4
            A(f"global_store_dwordx4 v{T+3}, v[{o}:{o+3}], s[{S_WS}:{S_WS+1}] offset:{u*128+h*16} sc1")
    A(f"s_mov_b64 exec, s[{S_EX}:{S_EX+1}]")

def side_rowsum_ssm(T, filler):
    A(f"""s_lshl_b32 s{S_T0}, s{S_C}, 2
    s_add_u32 s{S_T0}, s{S_T0}, s{S_CB}            ; sigma'
    s_mul_i32 s{S_T0+1}, s{S_T0}, 20
    s_sub_u32 s{S_T0+2}, s{S_WAVE}, 2
    s_lshl_b32 s{S_T0+2}, s{S_T0+2}, 3
    s_add_u32 s{S_T0+1}, s{S_T0+1}, s{S_T0+2}
    s_cmp_ge_u32 s{S_T0}, 32
    s_cselect_b32 s{S_T0+4}, s{S_BIM}, s{S_BRE}
    s_cselect_b32 s{S_T0+5}, s{S_BIM+1}, s{S_BRE+1}
    s_cselect_b32 s{S_T0+3}, 640, 0
    s_sub_u32 s{S_T0+3}, s{S_T0+1}, s{S_T0+3}
    v_lshrrev_b32 v{T+60}, 4, v{VL}
    v_and_b32 v{T+61}, 15, v{VL}
    v_add_u32 v{T+62}, s{S_T0+3}, v{T+60}
    v_mul_u32_u24 v{T+62}, 1280, v{T+62}
    v_lshl_add_u32 v{T+62}, v{T+61}, 4, v{T+62}""")
    for p in range(3):
        for i in range(5):
            b = T + 20 * p + 4 * i
            A(f"global_load_dwordx4 v[{b}:{b+3}], v{T+62}, s[{S_T0+4}:{S_T0+5}] offset:{256*i}")
        if p < 2:
            A(f"v_add_u32 v{T+62}, {4*1280}, v{T+62}")
    filler()
    for p in range(3):
        A(f"v_mov_b32 v{T+64+2*p}, 0")
    A(f"""v_add_u32 v{T+60}, s{S_T0+1}, v{T+60}
    v_lshlrev_b32 v{T+60}, 3, v{T+60}
    v_add_u32 v{T+60}, {WS_CSB}, v{T+60}""")
    nonce_ready()
    for p in range(3):
        A(f"s_waitcnt vmcnt({10-5*p})")
        for d in range(20):
            A(f"v_dot2c_f32_bf16 v{T+64+2*p}, s{S_ONES}, v{T+20*p+d}")
    A("s_nop 3")
    dpp_reduce16([T + 64, T + 66, T + 68])
    for p in range(3):
        A(f"v_mov_b32 v{T+65+2*p}, s{S_NONCE}")
    A(f"""v_cmp_eq_u32 vcc, 0, v{T+61}
    s_and_saveexec_b64 s[{S_EX}:{S_EX+1}], vcc""")
    for p in range(3):
        A(f"global_store_dwordx2 v{T+60}, v[{T+64+2*p}:{T+65+2*p}], s[{S_WS}:{S_WS+1}] offset:{32*p} sc1")
    A(f"s_mov_b64 exec, s[{S_EX}:{S_EX+1}]")


SJ = 200
PA, PB = OPT.get('pa', 2), OPT.get('pb', 5)
def rows16_loads(T, rowreg, ptr):
    A(f"""v_and_b32 v{T+20}, 15, v{VL}
    v_mul_u32_u24 v{T+21}, 1280, v{rowreg}
    v_lshl_add_u32 v{T+21}, v{T+20}, 4, v{T+21}""")
    for i in range(5):
        A(f"global_load_dwordx4 v[{T+4*i}:{T+4*i+3}], v{T+21}, s[{ptr}:{ptr+1}] offset:{256*i}")
def stat_finish(a, q, rowreg, lanereg, lane):
    A(f"""v_mul_f32 v{a}, 0x3acccccd, v{a}      ; mean
    v_mul_f32 v{q}, 0x3acccccd, v{q}
    v_fma_f32 v{q}, -v{a}, v{a}, v{q}
    v_max_f32 v{q}, 0, v{q}
    v_cvt_pk_bf16_f32 v{q}, v{q}, v{q}
    v_lshlrev_b32 v{q}, 16, v{q}
    v_add_f32 v{q}, 0x3727c5ac, v{q}
    v_cvt_pk_bf16_f32 v{q}, v{q}, v{q}
    v_lshlrev_b32 v{q}, 16, v{q}
    v_sqrt_f32 v{q}, v{q}
    v_lshlrev_b32 v{rowreg}, 3, v{rowreg}
    v_add_u32 v{rowreg}, {WS_STAT}, v{rowreg}
    v_cvt_pk_bf16_f32 v{a}, v{a}, v{q}
    v_mov_b32 v{a+1}, s{S_NONCE}
    v_cmp_eq_u32 vcc, {lane}, v{lanereg}""")
def own_rows(dst):
    A(f"""s_lshr_b32 s{dst}, s{S_XCD}, 1
    s_lshl_b32 s{dst}, s{dst}, 2
    s_add_u32 s{dst}, s{dst}, s{S_J}
    s_lshl_b32 s{dst}, s{dst}, 3
    s_lshl_b32 s{dst+1}, s{S_C}, 7
    s_add_u32 s{dst}, s{dst}, s{dst+1}""")
def mlp_rows_loads():
    A(f"""v_lshrrev_b32 v242, 4, v{VL}
    s_lshl_b32 s{S_T0+1}, s{S_WAVE}, 2
    v_add_u32 v242, s{S_T0+1}, v242
    s_sub_u32 s{S_T0}, s{S_IDX}, 8
    s_min_u32 s{S_T0}, s{S_T0}, 19
    s_lshl_b32 s{S_T0}, s{S_T0}, 3
    s_lshr_b32 s{S_T0+1}, s{S_XCD}, 1
    s_mul_i32 s{S_T0+1}, s{S_T0+1}, 160
    s_add_u32 s{S_T0+2}, s{S_T0}, s{S_T0+1}
    s_bitcmp1_b32 s{S_XCD}, 0
    s_cselect_b32 s{S_T0+4}, s{S_BIM}, s{S_BRE}
    s_cselect_b32 s{S_T0+5}, s{S_BIM+1}, s{S_BRE+1}
    s_cselect_b32 s{S_T0+3}, 640, 0
    v_add_u32 v244, s{S_T0+2}, v242
    v_add_u32 v243, s{S_T0+3}, v244""")
    own_rows(S_T0)
    A(f"v_add_u32 v242, s{S_T0}, v242")
    rows16_loads(SJ, 242, S_X)
    rows16_loads(SJ + 20, 244, S_T0 + 4)
def mlp_rows_work():
    a, q, r = 244, 246, 228
    A(f"v_mov_b32 v{a}, 0\nv_mov_b32 v{q}, 0\nv_mov_b32 v{a+1}, 0\nv_mov_b32 v{q+1}, 0\ns_waitcnt vmcnt({2*(PB-PA)})")
    for d in range(20):
        A(f"v_dot2c_f32_bf16 v{a}, s{S_ONES}, v{SJ+d}")
        A(f"v_dot2c_f32_bf16 v{q}, v{SJ+d}, v{SJ+d}")
        A(f"v_dot2c_f32_bf16 v{[a+1, q+1][d % 2]}, s{S_ONES}, v{SJ+20+d}")
    A(f"s_nop 2\nv_add_f32 v{SJ}, v{a+1}, v{q+1}")
    dpp_reduce16([a, q, SJ])
    stat_finish(a, q, 242, SJ + 40, 0)
    A(f"""v_mov_b32 v{SJ+1}, s{S_NONCE}
    v_lshlrev_b32 v243, 3, v243
    v_add_u32 v243, {WS_CSB}, v243
    s_and_saveexec_b64 s[{S_EX}:{S_EX+1}], vcc
    global_store_dwordx2 v242, v[{a}:{a+1}], s[{S_WS}:{S_WS+1}] sc1
    global_store_dwordx2 v243, v[{SJ}:{SJ+1}], s[{S_WS}:{S_WS+1}] sc1
    s_mov_b64 exec, s[{S_EX}:{S_EX+1}]""")
def cs_scalars(wreg, wsub):
    A(f"""s_and_b32 s{S_T0}, s{S_IDX}, 3
    s_lshl_b32 s{S_T0+1}, s{S_CB}, 2
    s_add_u32 s{S_T0+1}, s{S_T0+1}, s{S_T0}
    s_bitcmp1_b32 s{S_IDX}, 2
    s_cselect_b32 s{S_T0}, 48, 0
    s_add_u32 s{S_T0+1}, s{S_T0+1}, s{S_T0}        ; strip : 32 columns of this workgroup's own tile
    s_and_b32 s{S_T0+2}, s{S_XCD}, 1
    s_lshl_b32 s{S_T0+2}, s{S_T0+2}, 1
    s_sub_u32 s{S_T0+5}, s{wreg}, {wsub}
    s_add_u32 s{S_T0+2}, s{S_T0+2}, s{S_T0+5}      ; k quarter
    s_mul_i32 s{S_T0+5}, s{S_T0+5}, 10240
    s_add_u32 s{S_T0+5}, s{S_T0+5}, {SCR}""")
def cs_dma(T, first, n, capped):
    A(f"s_cmp_ge_u32 s{S_T0+1}, 48")
    srd_sel(SRD_T, S_W3, S_W1, 1966080)
    A(f"""s_cselect_b32 s{S_T0+3}, {48*64}, 0
    s_lshl_b32 s{S_T0+4}, s{S_T0+1}, 6
    s_sub_u32 s{S_T0+4}, s{S_T0+4}, s{S_T0+3}
    s_mul_i32 s{S_T0+3}, s{S_T0+2}, {160*3072}
    s_add_u32 s{S_T0+4}, s{S_T0+4}, s{S_T0+3}      ; soffset
    v_lshrrev_b32 v{T}, 2, v{VL}
    v_and_b32 v{T+1}, 3, v{VL}
    v_mul_u32_u24 v{T}, 3072, v{T}
    v_lshl_add_u32 v{T}, v{T+1}, 4, v{T}""")
    if first is not None:
        A(f"""s_mul_i32 s{S_T0+3}, s{first}, {5*16*3072}
        s_add_u32 s{S_T0+4}, s{S_T0+4}, s{S_T0+3}
        s_mul_i32 s{S_T0+3}, s{first}, 5120
        s_add_u32 s{S_T0+5}, s{S_T0+5}, s{S_T0+3}""")
    for i in range(n):
        A(f"s_add_u32 m0, s{S_T0+5}, {1024*i}\ns_add_u32 s{S_T0+7}, s{S_T0+4}, {16*3072*i}")
        if capped:
            cap()
        A(f"buffer_load_dwordx4 v{T}, s[{SRD_T}:{SRD_T+3}], s{S_T0+7} offen lds")
def cs_by_loader():
    A(f"s_lshr_b32 s{S_T0+6}, s{S_LW}, 1")
    cs_scalars(S_T0 + 6, 0)
    A(f"s_and_b32 s{S_T0+6}, s{S_LW}, 1")
    cs_dma(232, S_T0 + 6, 5, True)
CSL = OPT.get("csl", 1)
def mlp_cs_loads():
    T = SJ
    cs_scalars(S_WAVE, 2)
    if not CSL:
        cs_dma(T, None, 10, False)
    A(f"""v_and_b32 v{T+1}, 3, v{VL}
    v_lshrrev_b32 v{T+2}, 4, v{VL}
    v_lshlrev_b32 v{T+3}, 5, v{T+2}
    v_lshlrev_b32 v{T+2}, 9, v{T+2}
    v_bfe_u32 v{T}, v{VL}, 2, 2
    v_lshl_add_u32 v{T+2}, v{T}, 6, v{T+2}
    v_lshl_add_u32 v{T+2}, v{T+1}, 3, v{T+2}
    v_add_u32 v{T+2}, s{S_T0+5}, v{T+2}
    s_mul_i32 s{S_T0+2}, s{S_T0+2}, {3072*8}
    s_lshl_b32 s{S_T0+1}, s{S_T0+1}, 8
    s_add_u32 s{S_T0+2}, s{S_T0+2}, s{S_T0+1}
    s_add_u32 s{S_T0+2}, s{S_T0+2}, {WS_CSW}
    v_add_u32 v249, s{S_T0+2}, v{T+3}
    v_and_b32 v{T+1}, 15, v{VL}""")
    for i in range(4):
        A(f"v_mov_b32 v{T+4+i}, s{S_ONES}")
def mlp_cs_work():
    T = SJ
    F = T + 8
    A(f"s_waitcnt vmcnt({2*(PB-PA)})")
    for u in range(2):
        for ks in range(5):
            b = F + (u * 5 + ks) * 4
            A(f"ds_read_b64_tr_b16 v[{b}:{b+1}], v{T+2} offset:{ks*2048+u*32}")
            A(f"ds_read_b64_tr_b16 v[{b+2}:{b+3}], v{T+2} offset:{ks*2048+u*32+256}")
    A(f"v_cmp_eq_u32 vcc, 0, v{T+1}\ns_waitcnt lgkmcnt(0)")
    D = [T, F]
    for u in range(2):
        for ks in range(5):
            b, d = F + (u * 5 + ks) * 4, D[u]
            cin = "0" if ks == 0 else f"v[{d}:{d+3}]"
            A(f"v_mfma_f32_16x16x32_bf16 v[{d}:{d+3}], v[{b}:{b+3}], v[{T+4}:{T+7}], {cin}")
    A("s_nop 7")
    for u in range(2):
        d, o = D[u], F + 4 + 8 * u
        for r in range(4):
            A(f"v_mov_b32 v{o+2*r}, v{d+r}\nv_mov_b32 v{o+2*r+1}, s{S_NONCE}")
    A(f"s_and_saveexec_b64 s[{S_EX}:{S_EX+1}], vcc")
    for u in range(2):
        for h in range(2):
            o = F + 4 + 8 * u + 4 * h
            A(f"global_store_dwordx4 v249, v[{o}:{o+3}], s[{S_WS}:{S_WS+1}] offset:{u*128+h*16} sc1")
    A(f"s_mov_b64 exec, s[{S_EX}:{S_EX+1}]")
def ssm_rows_loads():
    own_rows(S_T0)
    A(f"""v_lshrrev_b32 v246, 5, v{VL}
    s_lshl_b32 s{S_T0+1}, s{S_WAVE}, 1
    s_add_u32 s{S_T0}, s{S_T0}, s{S_T0+1}
    v_add_u32 v246, s{S_T0}, v246
    v_and_b32 v247, 31, v{VL}
    v_mul_u32_u24 v249, 1280, v246
    v_lshl_add_u32 v249, v247, 3, v249""")
    for i in range(5):
        A(f"global_load_dwordx2 v[{236+2*i}:{237+2*i}], v249, s[{S_X}:{S_X+1}] offset:{256*i}")
def ssm_rows_work():
    A(f"s_waitcnt vmcnt({2*(PB-PA)})\nv_mov_b32 v249, 0\nv_mov_b32 v251, 0")
    for d in range(10):
        A(f"v_dot2c_f32_bf16 v249, s{S_ONES}, v{236+d}")
        A(f"v_dot2c_f32_bf16 v251, v{236+d}, v{236+d}")
    A("s_nop 2\nv_mov_b32 v236, v249")
    reduce32([236, 251])
    stat_finish(236, 251, 246, 247, 16)
    A(f"""s_and_saveexec_b64 s[{S_EX}:{S_EX+1}], vcc
    global_store_dwordx2 v246, v[236:237], s[{S_WS}:{S_WS+1}] sc1
    s_mov_b64 exec, s[{S_EX}:{S_EX+1}]""")
def touch_w2(T, S_WAVE=S_WAVE):
    G = OPT.get("tg", 128)
    sh = G.bit_length() - 1
    n2, nc = 7680 // G, 3200 // G
    if OPT.get("tm", 1):
        A(f"""s_sub_u32 s{S_T0+3}, s2, 64
        s_cmp_lt_u32 s{S_WAVE}, 2
        s_cselect_b32 s{S_T0}, 39, 33
        s_mov_b32 s{S_T0+1}, 4352
        s_cmov_b32 s{S_T0+1}, 10240
        s_cselect_b32 s{S_T0+4}, s{S_W2}, s{S_CRE}
        s_cselect_b32 s{S_T0+5}, s{S_W2+1}, s{S_CRE+1}
        s_mov_b32 s{S_T0+6}, 819196
        s_cmov_b32 s{S_T0+6}, 1966076
        s_cmp_eq_u32 s{S_WAVE}, 3
        s_cselect_b32 s{S_T0+4}, s{S_CIM}, s{S_T0+4}
        s_cselect_b32 s{S_T0+5}, s{S_CIM+1}, s{S_T0+5}
        s_mul_i32 s{S_T0+1}, s{S_T0+1}, s{S_T0+3}
        s_cmp_eq_u32 s{S_WAVE}, 1
        s_cselect_b32 s{S_T0+2}, 5120, 0
        s_add_u32 s{S_T0+1}, s{S_T0+1}, s{S_T0+2}
        v_min_u32 v{T}, s{S_T0}, v{VL}
        v_lshlrev_b32 v{T}, 7, v{T}
        v_add_u32 v{T}, s{S_T0+1}, v{T}
        v_min_u32 v{T}, s{S_T0+6}, v{T}
        global_load_dword v{T}, v{T}, s[{S_T0+4}:{S_T0+5}]""")
        return
    if G == 128:
        l = A.newlabel("L_tw")
        A(f"""s_cmp_eq_u32 s{S_WAVE}, 3
        s_cbranch_scc1 {l}
        s_cmp_eq_u32 s{S_WAVE}, 0
        s_cselect_b32 s{S_T0}, {n2-1}, {nc-1}
        s_mov_b32 s{S_T0+1}, 3200
        s_cmov_b32 s{S_T0+1}, 7680
        s_cselect_b32 s{S_T0+4}, s{S_W2}, s{S_CRE}
        s_cselect_b32 s{S_T0+5}, s{S_W2+1}, s{S_CRE+1}
        s_cmp_eq_u32 s{S_WAVE}, 2
        s_cselect_b32 s{S_T0+4}, s{S_CIM}, s{S_T0+4}
        s_cselect_b32 s{S_T0+5}, s{S_CIM+1}, s{S_T0+5}""")
    else:
        l = A.newlabel("L_tw")
        A(f"""s_cmp_lt_u32 s{S_WAVE}, 2
        s_cselect_b32 s{S_T0}, {n2//2-1}, {nc-1}
        s_mov_b32 s{S_T0+1}, 3200
        s_cmov_b32 s{S_T0+1}, 7680
        s_cselect_b32 s{S_T0+4}, s{S_W2}, s{S_CRE}
        s_cselect_b32 s{S_T0+5}, s{S_W2+1}, s{S_CRE+1}
        s_cmp_eq_u32 s{S_WAVE}, 3
        s_cselect_b32 s{S_T0+4}, s{S_CIM}, s{S_T0+4}
        s_cselect_b32 s{S_T0+5}, s{S_CIM+1}, s{S_T0+5}""")
    A(f"""s_mul_i32 s{S_T0+1}, s{S_T0+1}, s2
    s_cmp_eq_u32 s{S_WAVE}, 1
    s_cselect_b32 s{S_T0+2}, {3840 if G == 64 else 0}, 0
    s_add_u32 s{S_T0+1}, s{S_T0+1}, s{S_T0+2}
    v_min_u32 v{T}, s{S_T0}, v{VL}
    v_lshlrev_b32 v{T}, {sh}, v{T}
    v_add_u32 v{T}, s{S_T0+1}, v{T}
    global_load_dword v{T}, v{T}, s[{S_T0+4}:{S_T0+5}]""")
    A.label(l)
def touch_pages(T, D_):
    l = A.newlabel("L_tp")
    A(f"""s_cmp_lg_u32 s{S_WAVE}, 1
    s_cbranch_scc1 {l}
    s_mul_i32 s{S_T0}, s{S_TG}, {16*2560}
    s_lshl_b32 s{S_T0+1}, s{S_DCOL}, 2
    s_add_u32 s{S_T0}, s{S_T0}, s{S_T0+1}
    v_and_b32 v{T}, 1, v{VL}
    v_mul_u32_u24 v{T}, {31*2560}, v{T}
    v_add_u32 v{T}, s{S_T0}, v{T}
    global_load_dword v{D_}, v{T}, s[{S_OUT}:{S_OUT+1}]
    s_lshl_b32 s{S_T0}, s{S_C}, 1
    s_mul_i32 s{S_T0}, s{S_T0}, 88
    s_lshl_b32 s{S_T0+1}, s{S_CB}, 2
    s_mul_i32 s{S_T0+2}, s{S_CB}, 10
    s_add_u32 s{S_T0+2}, s{S_T0+2}, 48
    s_cmp_eq_u32 s{S_J}, 0
    s_cselect_b32 s{S_T0+1}, s{S_T0+2}, s{S_T0+1}
    s_add_u32 s{S_T0}, s{S_T0}, s{S_T0+1}
    s_lshl_b32 s{S_T0}, s{S_T0}, 12
    s_add_u32 s{S_T0}, s{S_T0}, {WS_ACT}
    v_and_b32 v{T}, 1, v{VL}
    v_mul_u32_u24 v{T}, {88*4096}, v{T}
    v_add_u32 v{T}, s{S_T0}, v{T}
    global_load_dword v{D_}, v{T}, s[{S_WS}:{S_WS+1}]""")
    A.label(l)
def by_wave(lo, hi):
    l1, l2 = A.newlabel("L_bw"), A.newlabel("L_bw")
    A(f"s_cmp_ge_u32 s{S_WAVE}, 2\ns_cbranch_scc1 {l1}")
    lo()
    A(f"s_branch {l2}")
    A.label(l1)
    hi()
    A.label(l2)

def zero_regs(lo, n):
    def f():
        for r in range(lo, lo + n):
            A(f"v_mov_b32 v{r}, 0")
    return f

def rowpat_read(dst, tmp):
    A(f"""v_bfe_u32 v{tmp}, v{VL}, 1, 3
    v_lshrrev_b32 v{dst}, 4, v{VL}
    v_xor_b32 v{tmp}, v{tmp}, v{dst}
    v_and_b32 v{dst}, 15, v{VL}
    v_lshlrev_b32 v{dst}, 7, v{dst}
    v_lshl_add_u32 v{dst}, v{tmp}, 4, v{dst}""")

def touch_inputs(T):
    if not OPT["pf"]:
        return
    G = OPT.get("tg", 64)
    plan = [[(S_X, 10240)], [(S_W1, 7680), (S_BRE, 3200)], [(S_W3, 7680), (S_BIM, 3200)], [(S_W2, 7680), (S_CRE, 3200), (S_CIM, 3200)]]
    done = A.newlabel("L_ti")
    sh = G.bit_length() - 1
    for w, segs in enumerate(plan):
        nx = A.newlabel("L_ti")
        if w < 3:
            A(f"s_cmp_lg_u32 s{S_WAVE}, {w}\ns_cbranch_scc1 {nx}")
        k = 0
        for p, n in segs:
            cnt = n // G
            A(f"s_mul_i32 s{S_T0}, s2, {n}")
            for o in range(0, cnt, 64):
                A(f"""v_add_u32 v{T}, {o}, v{VL}
                v_min_u32 v{T}, {cnt-1}, v{T}
                v_lshlrev_b32 v{T}, {sh}, v{T}
                v_add_u32 v{T}, s{S_T0}, v{T}
                global_load_dword v{244+k}, v{T}, s[{p}:{p+1}]""")
                k += 1
        if w < 3:
            A(f"s_branch {done}")
            A.label(nx)
    A.label(done)
XE = OPT.get("xe", 2)
XL = 131072
XE_X, XE_D = 236, 228
def g2_rows(vT, X, DK, NH=3):
    A(f"""s_and_b32 s{S_T0+4}, s{S_WAVE}, 1
    s_mul_i32 s{S_T0+4}, s{S_T0+4}, {NH}
    s_add_u32 s{S_T0+4}, s{S_T0+4}, s{S_TG}            ; first row tile of this wave
    s_and_b32 s{S_T0+5}, s{S_WAVE}, 2
    s_lshl_b32 s{S_T0}, s{S_T0+4}, 4
    v_and_b32 v{vT}, 15, v{VL}
    v_add_u32 v{vT}, s{S_T0}, v{vT}                    ; row
    v_lshrrev_b32 v{vT+1}, 4, v{VL}
    s_lshl_b32 s{S_T0+1}, s{S_T0+5}, 4
    s_add_u32 s{S_T0+1}, s{S_T0+1}, s{S_DCOL}
    v_lshl_add_u32 v{vT+1}, v{vT+1}, 2, s{S_T0+1}      ; column
    v_mul_u32_u24 v{vT+2}, 640, v{vT}
    v_add_u32 v{vT+2}, v{vT+2}, v{vT+1}
    v_lshlrev_b32 v{vT+3}, 2, v{vT+2}
    v_lshlrev_b32 v{vT+2}, 1, v{vT+2}
    v_lshlrev_b32 v{vT+1}, 1, v{vT+1}
    v_lshlrev_b32 v{vT+4}, 3, v{vT}
    v_add_u32 v{vT+4}, {WS_STAT}, v{vT+4}""")
    if X is None:
        return
    for Tp in range(NH):
        for U in range(2):
            A(f"global_load_dwordx2 v[{X+4*Tp+2*U}:{X+4*Tp+2*U+1}], v{vT+2}, s[{S_X}:{S_X+1}] offset:{32*U}")
        if Tp < NH - 1:
            A(f"v_add_u32 v{vT+2}, {16*1280}, v{vT+2}")
    for U in range(2):
        A(f"global_load_dwordx2 v[{DK+4*U}:{DK+4*U+1}], v{vT+1}, s[{S_DSK}:{S_DSK+1}] offset:{32*U}")

def gemm1_loop(kind):
    mlp = kind == "mlp"
    NB = 8 if mlp else 10
    NS = 5
    SLOT = 16384 if mlp else 20480
    XF = 128 if mlp else 160
    WF = XF + 32
    AX = WF + NB * 4
    AW = AX + 2
    nAW = 4 if mlp else 2
    D = D1 if mlp else OPT["D1S"]
    lg = Queue(A, "lgkmcnt", 15)

    def rd_x(ks, T):
        b = XF + ks * 16 + T * 4
        if OPT["noread"]:
            return
        A(f"ds_read_b128 v[{b}:{b+3}], v{AX+ks} offset:{T*2048}")
        lg.issue(("x", ks))
    def rd_w(j, gen, half=None):
        b = WF + j * 4
        if OPT["noread"]:
            return
        if mlp:
            F, c = j // 2, j % 2
            for h in ((0, 1) if half is None else (half,)):
                A(f"ds_read_b64_tr_b16 v[{b+2*h}:{b+2*h+1}], v{AW+F} offset:{c*8192+1024*h}")
                lg.issue(("w", j, gen))
        else:
            ks, G = j // 5, j % 5
            A(f"ds_read_b128 v[{b}:{b+3}], v{AW+ks} offset:{G*2048}")
            lg.issue(("w", j, gen))
    def mf(j, T, par):
        w = WF + j * 4
        if (OPT["nomfma"] == 1 and T > 0) or OPT["nomfma"] == 2:
            return
        if mlp:
            acc = (j * 4 + T) * 4
            x = XF + par * 16 + T * 4
            A(f"v_mfma_f32_16x16x32_bf16 v[{acc}:{acc+3}], v[{w}:{w+3}], v[{x}:{x+3}], v[{acc}:{acc+3}]")
        else:
            acc = (((j % 5) * 2 + par) * 4 + T) * 4
            x = XF + (j // 5) * 16 + T * 4
            A(f"v_mfma_f32_16x16x32_bf16 v[{acc}:{acc+3}], v[{x}:{x+3}], v[{w}:{w+3}], v[{acc}:{acc+3}]")
    def xreads(par, j):
        k = j + D - NB
        if mlp:
            return [(par ^ 1, T) for T in ([2 * k, 2 * k + 1] if 0 <= k < 2 else [])]
        if par == 1:
            return [(0, T) for T in ([2 * k, 2 * k + 1] if 0 <= k < 2 else [])]
        return [(1, T) for T in ([2 * j, 2 * j + 1] if j < 2 else [])]
    assert mlp or NB - D >= 5

    A(f"s_mov_b32 s{S_SLOT}, 0\ns_mov_b32 s{S_CNT}, 0\ns_mov_b32 s{S_KX}, 0")
    vFP, vFV, vFD = 248, 249, 250
    A(f"s_mov_b32 m0, s{S_FR}\ns_mov_b32 s{S_LMT}, {PA or PB}")
    assert PA
    flag_wait(1, vFD, vFP)
    A(f"v_add_u32 v{vFP}, 4, v{vFP}")
    if TS:
        A("s_mov_b32 s48, 0\ns_mov_b32 s49, 0")
    ts(2, 2)
    tc(12)
    for j in range(D):
        rd_w(j, 0)
        for ks, T in xreads(1, j + NB - D):
            rd_x(ks, T)
    lbl = f"L_g1_{kind}"
    A(f"""s_mov_b32 s{S_T0}, {SLOT}
    s_mov_b32 s{S_T0+1}, {-(NS-1)*SLOT & 0xffffffff}
    s_mov_b32 s{S_T0+2}, 16384
    s_mov_b32 s{S_T0+3}, {-32768 & 0xffffffff}""")
    A.label(lbl)
    entry = list(lg.q)
    ring = [f"s_add_u32 s{S_SLOT}, s{S_SLOT}, 1\ns_cmp_eq_u32 s{S_SLOT}, {NS}",
            f"s_cselect_b32 s{S_DELTA}, s{S_T0+1}, s{S_T0}\ns_cselect_b32 s{S_SLOT}, 0, s{S_SLOT}"]
    xring = [f"s_add_u32 s{S_KX}, s{S_KX}, 1\ns_cmp_eq_u32 s{S_KX}, 3",
             f"s_cselect_b32 s{S_KW}, s{S_T0+3}, s{S_T0+2}\ns_cselect_b32 s{S_KX}, 0, s{S_KX}"]
    def adv(r, d):
        return f"v_add_u32 v{r}, s{d}, v{r}"
    for par in range(2):
        fill = {}
        if mlp:
            assert D == 4
            fill[(0, 2)] = ring[0]; fill[(1, 2)] = ring[1]
            fill[(2, 2)] = adv(AW, S_DELTA) + "\n" + adv(AW + 1, S_DELTA)
            fill[(6, 2)] = adv(AW + 2, S_DELTA) + f"\ns_add_u32 m0, m0, 4"; fill[(7, 2)] = adv(AW + 3, S_DELTA)
            fill[(0, 3)] = f"v_add_u32 v{vFP}, 4, v{vFP}"
            fpos, cpos, wpos = (1, 3), (3, 0), (7, 2)
            if par == 0:
                fill[(3, 2)] = xring[0]; fill[(3, 3)] = xring[1]
            else:
                fill[(3, 2)] = adv(AX, S_KW) + "\n" + adv(AX + 1, S_KW)
                fill[(7, 3)] = f"s_add_u32 s{S_CNT}, s{S_CNT}, 1\ns_cmp_lt_u32 s{S_CNT}, s{S_LMT}"
        else:
            assert D == 5
            fill[(2, 1)] = ring[0]; fill[(2, 2)] = ring[1]
            fill[(3, 1)] = adv(AW, S_DELTA); fill[(7, 1)] = adv(AW + 1, S_DELTA)
            fill[(1, 3)] = f"v_add_u32 v{vFP}, 4, v{vFP}"
            fill[(8, 3)] = f"s_add_u32 m0, m0, 4"
            fpos, cpos, wpos = (2, 3), (4, 2), (9, 2)
            if par == 0:
                fill[(8, 1)] = xring[0]; fill[(8, 2)] = xring[1]
            else:
                fill[(4, 1)] = adv(AX, S_KW) + "\n" + adv(AX + 1, S_KW)
                fill[(9, 1)] = f"s_add_u32 s{S_CNT}, s{S_CNT}, 1\ns_cmp_lt_u32 s{S_CNT}, s{S_LMT}"
        for j in range(NB):
            tags = [("w", j, par)]
            if j == 0:
                tags.append(("x", par if mlp else 0))
            if j == 5 and not mlp:
                tags.append(("x", 1))
            jn = j + D
            if jn == NB - 1:
                tags.append("flag")
            lg.wait(tags)
            acts = {0: [], 1: [], 2: [], 3: []}
            g = 0
            if jn == NB:
                acts[0].append(lambda: flag_test(None, vFD, vFP, 0, acc=48, split=True))
                g = 1
            wj, wg = (jn, par) if jn < NB else (jn - NB, par ^ 1)
            if mlp:
                acts[g].append(lambda wj=wj, wg=wg: rd_w(wj, wg, 0))
                acts[g + 1].append(lambda wj=wj, wg=wg: rd_w(wj, wg, 1))
                g += 2
            else:
                acts[g].append(lambda wj=wj, wg=wg: rd_w(wj, wg, 0))
                g += 1
            for n_, (ks, T) in enumerate(xreads(par, j)):
                acts[min(g + n_, 3)].append(lambda ks=ks, T=T: rd_x(ks, T))
            for T in range(4):
                mf(j, T, par)
                for f in acts[T]:
                    f()
                if (j, T) in fill:
                    A(fill[(j, T)])
                if (j, T) == fpos:
                    A(f"ds_read_b32 v{vFD}, v{vFP}")
                    lg.issue("flag")
                if (j, T) == cpos:
                    A(f"v_cmp_ne_u32 vcc, s{S_K}, v{vFD}")
                if (j, T) == wpos:
                    A(f"buffer_load_dword v{VZ}, s[{SRD_F}:{SRD_F+3}], 0 offen lds")
    A(f"s_cbranch_scc1 {lbl}")
    lfin = A.newlabel("L_g1e")
    A(f"s_cmp_eq_u32 s{S_CNT}, 10\ns_cbranch_scc1 {lfin}")
    if PA:
        lw_ = A.newlabel("L_g1w")
        A(f"s_cmp_lg_u32 s{S_CNT}, {PA}\ns_cbranch_scc1 {lw_}")
        if TS == 1:
            ts(30, 2)
        A(f"s_mov_b32 s{S_FR}, m0")
        nonce_load()
        A(f"s_mov_b64 s[{S_M0}:{S_M0+1}], s[{S_T0}:{S_T0+1}]\ns_mov_b64 s[{S_M1}:{S_M1+1}], s[{S_T0+2}:{S_T0+3}]")
        if OPT.get("tp", 0):
            touch_pages(*((198, 199) if mlp else (249, 251)))
        if OPT.get("tw", 3) == 2 and mlp:
            touch_w2(251)
        if mlp:
            by_wave(mlp_rows_loads, mlp_cs_loads)
        else:
            ssm_rows_loads()
        A(f"""s_mov_b64 s[{S_T0}:{S_T0+1}], s[{S_M0}:{S_M0+1}]
        s_mov_b64 s[{S_T0+2}:{S_T0+3}], s[{S_M1}:{S_M1+1}]
        s_mov_b32 m0, s{S_FR}
        s_mov_b32 s{S_LMT}, {PB}""")
        if TS == 1:
            A(f"s_memrealtime s[{S_TS}:{S_TS+1}]\ns_sleep 2\nv_writelane_b32 v255, s{S_TS}, 31")
        A(f"s_branch {lbl}")
        A.label(lw_)
    if TS == 1:
        ts(32, 2)
    nonce_ready()
    if mlp:
        by_wave(mlp_rows_work, mlp_cs_work)
        if OPT.get("tw", 3) == 3:
            A(f"s_mov_b64 s[{S_M0}:{S_M0+1}], s[{S_T0}:{S_T0+1}]\ns_mov_b64 s[{S_M1}:{S_M1+1}], s[{S_T0+2}:{S_T0+3}]")
            touch_w2(251)
            if XE == 1:
                g2_rows(200, XE_X, XE_D)
            A(f"s_mov_b64 s[{S_T0}:{S_T0+1}], s[{S_M0}:{S_M0+1}]\ns_mov_b64 s[{S_T0+2}:{S_T0+3}], s[{S_M1}:{S_M1+1}]")
    else:
        ssm_rows_work()
    if TS == 1:
        ts(33, 2)
    A(f"s_mov_b32 s{S_LMT}, 10\ns_branch {lbl}")
    A.label(lfin)
    assert lg.q == entry[len(entry) - len(lg.q):]
    return lg, entry, AX, AW

G2_B = 96
G2_A = 128
NS2, SL2 = 9, 16384
def g2slot(s):
    return (s % NS2) * SL2

def rot_next(s, stepA, stepB, baseB):
    if s == 11:
        A(f"s_mul_i32 s{S_KB}, s{S_R2B}, {stepB}")
        if baseB:
            A(f"s_add_u32 s{S_KB}, s{S_KB}, {baseB}")
    elif s < 11:
        A(f"""s_add_u32 s{S_KB}, s{S_KB}, {stepA}
        s_cmp_eq_u32 s{S_KB}, {12*stepA}
        s_cselect_b32 s{S_KB}, 0, s{S_KB}""")
    elif s < 21:
        A(f"""s_add_u32 s{S_KB}, s{S_KB}, {stepB}
        s_cmp_eq_u32 s{S_KB}, {baseB+10*stepB}
        s_cselect_b32 s{S_KB}, {baseB}, s{S_KB}""")

def gemm2_compute(NT):
    NH = NT // 2
    DA = 3 if NT == 6 else OPT.get("DA2", 5)
    RED = 4 * SL2
    GB, GA_ = 48, 112
    vW, vC, vB = 204, 208, 212
    vA = 220
    vT = 196
    vFA, vFP, vFV, vFD, vG = 248, 249, 250, 251, 223
    X, ST, DK, TT = 128, 140, 148, 156
    A(f"""s_lshl_b32 s{S_T0}, s{S_T0}, 5
    s_add_u32 s{S_T0}, s{S_T0}, s{S_T0+1}
    s_lshl_b32 s{S_T0}, s{S_T0}, {FSH}
    s_add_u32 s{S_T0+3}, s{S_T0}, {WS_FLAG}""")
    if XE == 2:
        g2_rows(vT, None, None)
        A(f"""s_and_b32 s{S_T0}, s{S_WAVE}, 1
        s_mul_i32 s{S_T0}, s{S_T0}, {NH*16}
        v_and_b32 v{vT}, 15, v{VL}
        v_add_u32 v{vT}, s{S_T0}, v{vT}
        v_lshrrev_b32 v{vT+1}, 4, v{VL}
        v_lshlrev_b32 v{vT+1}, 3, v{vT+1}
        s_lshl_b32 s{S_T0}, s{S_T0+5}, 5
        s_add_u32 s{S_T0}, s{S_T0}, {XL}
        v_add_u32 v{vT+1}, s{S_T0}, v{vT+1}
        v_lshl_add_u32 v{vT+2}, v{vT}, 7, v{vT+1}
        v_lshlrev_b32 v{vT}, 2, v{vT}
        v_add_u32 v{vT}, {XL+13312}, v{vT}""")
        for Tp in range(NH):
            for U in range(2):
                A(f"ds_read_b64 v[{X+4*Tp+2*U}:{X+4*Tp+2*U+1}], v{vT+2} offset:{2048*Tp+32*U}")
            A(f"ds_read_b32 v{ST+2*Tp}, v{vT} offset:{64*Tp}")
        for U in range(2):
            A(f"ds_read_b64 v[{DK+4*U}:{DK+4*U+1}], v{vT+1} offset:{12288+32*U}")
    elif XE:
        X, DK = XE_X, XE_D
        g2_rows(vT, None, None)
    else:
        g2_rows(vT, X, DK)
    def stat_loads_():
        for Tp in range(NH):
            A(f"global_load_dwordx2 v[{ST+2*Tp}:{ST+2*Tp+1}], v{vT+4}, s[{S_WS}:{S_WS+1}] offset:{128*Tp} sc1")
    if XE != 2:
        stat_loads_()
    A(f"""v_lshrrev_b32 v{vT}, 4, v{VL}               ; q
    v_bfe_u32 v{vT+1}, v{VL}, 2, 2                     ; rr
    v_lshl_add_u32 v{vT+1}, v{vT}, 2, v{vT+1}          ; 4q + rr
    v_bfe_u32 v{vT+5}, v{vT+1}, 1, 2                   ; swizzle
    s_lshl_b32 s{S_T0}, s{S_T0+5}, 5
    v_add_u32 v{vT+1}, s{S_T0}, v{vT+1}
    v_lshlrev_b32 v{vT+1}, 7, v{vT+1}
    v_and_b32 v{vT+2}, 3, v{VL}
    v_lshl_add_u32 v{vT+1}, v{vT+2}, 3, v{vT+1}
    v_and_b32 v{vT+2}, 1, v{vT}
    s_lshl_b32 s{S_T0}, s{S_T0+5}, 1
    v_add_u32 v{vT+2}, s{S_T0}, v{vT+2}
    v_bfe_u32 v{vT+6}, v{VL}, 1, 3
    v_xor_b32 v{vT+2}, v{vT+2}, v{vT+6}
    v_lshrrev_b32 v{vT}, 1, v{vT}
    v_lshlrev_b32 v{vT}, 13, v{vT}
    v_lshl_add_u32 v{vT}, v{vT+2}, 4, v{vT}
    v_and_b32 v{vT+6}, 15, v{VL}
    v_lshl_add_u32 v{vT}, v{vT+6}, 7, v{vT}""")
    for Up in range(4):
        A(f"""s_xor_b32 s{S_T0}, s{S_T0+5}, {Up}
        v_xor_b32 v{vT+2}, s{S_T0}, v{vT+5}
        v_lshl_add_u32 v{vW+Up}, v{vT+2}, 5, v{vT+1}
        s_lshl_b32 s{S_T0}, s{S_T0}, 11
        v_add_u32 v{vC+Up}, s{S_T0}, v{vT}""")
    A(f"v_lshlrev_b32 v{vT}, 4, v{VL}\ns_lshl_b32 s{S_T0+1}, s{S_HB2}, 2\ns_sub_u32 s{S_T0+1}, s{S_T0+4}, s{S_T0+1}")
    for Tp in range(NH):
        A(f"""s_add_u32 s{S_T0}, s{S_T0+1}, {Tp}
        s_lshr_b32 s{S_T0+2}, s{S_T0}, 2
        s_mul_i32 s{S_T0+2}, s{S_T0+2}, {88*4-4}
        s_add_u32 s{S_T0}, s{S_T0}, s{S_T0+2}
        s_lshl_b32 s{S_T0}, s{S_T0}, 10
        v_add_u32 v{vA+Tp}, s{S_T0}, v{vT}""")
    A(f"""s_mul_i32 s{S_T0}, s{S_HB2}, {88*4096}
    s_lshl_b32 s{S_T0+1}, s{S_T0+5}, 12
    s_add_u32 s{S_T0}, s{S_T0}, s{S_T0+1}
    s_add_u32 s{S_T0}, s{S_T0}, {WS_ACT}
    s_add_u32 s{SRD_T}, s{S_WS}, s{S_T0}
    s_addc_u32 s{SRD_T+1}, s{S_WS+1}, 0
    s_mov_b32 s{SRD_T+2}, {(88+86)*4096}
    s_mov_b32 s{SRD_T+3}, 0x20000
    s_lshl_b32 s{S_KB}, s{S_R2A}, 14""")
    lr, lo = A.newlabel("L_fl"), A.newlabel("L_fl")
    A(f"""s_lshl_b32 s{S_T0}, s{S_HB2}, {5+FSH}
    s_add_u32 s{S_T0}, s{S_T0}, {WS_FLAG}
    v_and_b32 v{vFA}, {63 if NT == 6 else 31}, v{VL}
    v_lshlrev_b32 v{vFA}, {FSH}, v{vFA}
    v_add_u32 v{vFA}, s{S_T0}, v{vFA}
    s_lshr_b32 s{S_T0+1}, s{S_WAVE}, 1
    s_lshl_b32 s{S_T0+1}, 0x555555, s{S_T0+1}
""")
    def publish(young):
        A(f"""v_mov_b32 v{vT}, s{S_T0+3}
        v_mov_b32 v{vT+1}, s{S_NONCE}
        s_waitcnt vmcnt({young})
        s_mov_b64 exec, 1
        global_store_dword v{vT}, v{vT+1}, s[{S_WS}:{S_WS+1}] sc1
        s_mov_b64 exec, -1""")
        ts(6, 2)
    LATE = XE == 2 and OPT.get("plate", 0)
    if not LATE:
        publish(0 if XE == 2 else NH if XE else 3 * NH + 2)
    ls, lk = A.newlabel("L_st"), A.newlabel("L_st")
    if XE == 2:
        A(f"s_waitcnt lgkmcnt(0)\nv_mov_b32 v{vFV}, s{S_K}\nds_write_b32 v{VFO}, v{vFV} offset:{4*21}\ns_branch {lk}")
    A("s_waitcnt vmcnt(1)")
    A.label(ls)
    A(f"s_mov_b64 s[{S_M0}:{S_M0+1}], 0")
    for Tp in range(NH):
        A(f"v_cmp_ne_u32 vcc, s{S_NONCE}, v{ST+2*Tp+1}\ns_nop 1\ns_or_b64 s[{S_M0}:{S_M0+1}], s[{S_M0}:{S_M0+1}], vcc")
    A(f"s_cmp_eq_u64 s[{S_M0}:{S_M0+1}], 0\ns_cbranch_scc1 {lk}")
    stat_loads_()
    A("s_waitcnt vmcnt(0)")
    spin_tail(ls, lk, 1)
    A.label(lk)
    def unpack(dst, src):
        A(f"""v_and_b32 v{dst+3}, 0xffff0000, v{src+1}
        v_lshlrev_b32 v{dst+2}, 16, v{src+1}
        v_and_b32 v{dst+1}, 0xffff0000, v{src}
        v_lshlrev_b32 v{dst}, 16, v{src}""")
    def rnd(r, t):
        A(f"""v_cvt_pk_bf16_f32 v{t}, v{r}, v{r+1}
        v_cvt_pk_bf16_f32 v{t+1}, v{r+2}, v{r+3}""")
        unpack(r, t)
    unpack(DK, DK)
    unpack(DK + 4, DK + 4)
    EP = OPT.get("epoll", 9)
    for Tp in range(NH if not OPT.get("nobase", 0) else 0):
        st_ = ST + 2 * Tp
        if Tp == min(EP, NH - 1) and EP < 9:
            A(f"global_load_dword v{vG}, v{vFA}, s[{S_WS}:{S_WS+1}] sc1")
        A(f"""v_and_b32 v{st_+1}, 0xffff0000, v{st_}
        v_lshlrev_b32 v{st_}, 16, v{st_}
        v_rcp_f32 v{st_+1}, v{st_+1}""")
        for U in range(2):
            acc = (U * NH + Tp) * 4
            unpack(acc, X + 4 * Tp + 2 * U)
            for h in (0, 2):
                A(f"v_pk_add_f32 v[{TT+h}:{TT+h+1}], v[{acc+h}:{acc+h+1}], v[{st_}:{st_+1}] op_sel_hi:[1,0] neg_lo:[0,1] neg_hi:[0,1]")
            rnd(TT, TT + 4)
            for h in (0, 2):
                A(f"v_pk_mul_f32 v[{TT+h}:{TT+h+1}], v[{TT+h}:{TT+h+1}], v[{st_}:{st_+1}] op_sel:[0,1] op_sel_hi:[1,1]")
            rnd(TT, TT + 4)
            for h in (0, 2):
                A(f"v_pk_mul_f32 v[{TT+h}:{TT+h+1}], v[{TT+h}:{TT+h+1}], v[{DK+4*U+h}:{DK+4*U+h+1}]")
            rnd(TT, TT + 4)
            for h in (0, 2):
                A(f"v_pk_add_f32 v[{acc+h}:{acc+h+1}], v[{acc+h}:{acc+h+1}], v[{TT+h}:{TT+h+1}]")
    if LATE:
        publish(0)
    if OPT.get("nap0", 0):
        A(f"s_sleep {OPT['nap0']}")
    if EP < 9:
        A(f"s_branch {lr}b")
    A(f"s_mov_b32 exec_lo, s{S_T0+1}\ns_mov_b32 exec_hi, s{S_T0+1}")
    A.label(lr)
    A(f"global_load_dword v{vG}, v{vFA}, s[{S_WS}:{S_WS+1}] sc1")
    A.label(f"{lr}b")
    A(f"""s_waitcnt vmcnt(0)
    v_cmp_ne_u32 vcc, s{S_NONCE}, v{vG}
    s_cbranch_vccz {lo}""")
    if OPT.get("nogate", 0) < 2:
        spin_tail(lr, lo, 2)
    A.label(lo)
    A("s_mov_b64 exec, -1")
    ts(7, 2)
    tc(14)
    if TS:
        A("s_mov_b32 s48, 0\ns_mov_b32 s49, 0")
    vm = Queue(A, "vmcnt", 63)
    A(f"s_add_u32 s{S_T0+4}, s{S_KB}, 4096\nv_lshlrev_b32 v{vFA}, 4, v{VL}\nv_add_u32 v{vFA}, {AUX}, v{vFA}")
    def ldA1(s, i):
        u, Tp = i // NH, i % NH
        b = GA_ + ((s % DA) * NT + i) * 4
        A(f"buffer_load_dwordx4 v[{b}:{b+3}], v{vA+Tp}, s[{SRD_T}:{SRD_T+3}], s{S_T0+4 if u else S_KB} offen sc1")
        vm.issue(("a", s))
        if i == NT - 1:
            rot_next(s, 16384, 16384, 12 * 16384)
            if s < 21:
                A(f"s_add_u32 s{S_T0+4}, s{S_KB}, 4096")
    def ldA(s):
        for i in range(NT):
            ldA1(s, i)
    def rdB(s, j):
        u, U = j // 4, j % 4
        b = GB + (s % 2) * 32 + j * 4
        if s < 12:
            A(f"ds_read_b64_tr_b16 v[{b}:{b+1}], v{vB+U} offset:{4096*u}")
            A(f"ds_read_b64_tr_b16 v[{b+2}:{b+3}], v{vB+U} offset:{4096*u+2048}")
        else:
            A(f"ds_read_b128 v[{b}:{b+3}], v{vB+j}")
    def setB(s, us=range(4)):
        for U in us:
            A(f"v_add_u32 v{vB+U}, {g2slot(s)}, v{(vW if s < 12 else vC)+U}")
    def setB2(s, us=range(4)):
        if s >= 12:
            for U in us:
                A(f"v_xor_b32 v{vB+4+U}, 32, v{vB+U}")
    assert GA_ + DA * NT * 4 <= vW
    peer_addr(vFP, FLG)
    R0 = OPT.get("ramp", 2) if NT == 6 else DA - 1
    st = {"nxt": R0}
    for s in range(R0):
        ldA(s)
    A(f"v_mov_b32 v{vFV}, s{S_K}")
    flag_wait(22, vFD, vFP)
    setB(0)
    for j in range(8):
        rdB(0, j)
    A(f"ds_read_b32 v{vFD}, v{vFP} offset:{4*23}")
    GATE = 12 - (DA - 1)
    def stage(s, limit):
        A(f"s_waitcnt lgkmcnt({1 if s else 0})")
        if TS == 2:
            ts(16 + s, 2)
        if TS == 3:
            A(f"s_memtime s[{S_TS}:{S_TS+1}]\ns_waitcnt lgkmcnt(0)\ns_mov_b32 s50, s{S_TS}")
        vm.wait(("a", s))
        if TS == 3:
            A(f"s_memtime s[{S_TS}:{S_TS+1}]\ns_waitcnt lgkmcnt(0)\ns_sub_u32 s50, s{S_TS}, s50\nv_writelane_b32 v255, s50, {16+s}\nv_writelane_b32 v255, s{S_TS}, {40+s}")
        todo = []
        while st["nxt"] <= min(limit, s - 1 + DA, 21) and len(todo) < 2 * NT:
            todo += [(st["nxt"], i) for i in range(NT)]
            st["nxt"] += 1
        acts = []
        if s < 21:
            acts.append(lambda: (A(f"v_cmp_ne_u32 vcc, s{S_K}, v{vFD}"), setB(s + 1, (0,))))
            acts.append(lambda: setB(s + 1, (1, 2)))
            acts.append(lambda: (flag_test(23 + s, vFD, vFP, 4 * (23 + s), split=True, acc=48), setB(s + 1, (3,))))
            for j in range(8):
                acts.append(lambda j=j: (rdB(s + 1, j), setB2(s + 1, (j,)) if j < 4 else None))
        if s < 20:
            acts.append(lambda: A(f"ds_read_b32 v{vFD}, v{vFP} offset:{4*(24+s)}"))
        if s == GATE - 1:
            acts.append(lambda: A(f"ds_read_b32 v{vG}, v{vFA}"))
        acts.append(lambda: A(f"ds_write_b32 v{VFO}, v{vFV} offset:{4*(22+s)}"))
        lds = [lambda x=x: ldA1(*x) for x in todo]
        nm = 4 * NT
        sched = {i: [] for i in range(nm)}
        per = -(-len(acts) // max(nm - 2, 1))
        for i, f in enumerate(acts):
            sched[i // per].append(f)
        first = OPT.get("lf", 12) if NT == 6 else 0
        for i, f in enumerate(lds):
            sched[min(first + i * (nm - first) // len(lds), nm - 1)].append(f)
        n = 0
        for u in range(2):
            for U in range(4):
                for Tp in range(NH):
                    acc = (U * NH + Tp) * 4
                    w = GB + (s % 2) * 32 + (u * 4 + U) * 4
                    a = GA_ + ((s % DA) * NT + u * NH + Tp) * 4
                    cin = "0" if (s == 0 and u == 0 and U >= 2) else f"v[{acc}:{acc+3}]"
                    A(f"v_mfma_f32_16x16x32_bf16 v[{acc}:{acc+3}], v[{w}:{w+3}], v[{a}:{a+3}], {cin}")
                    for f in sched[n]:
                        f()
                    n += 1
    llate, ljoin = A.newlabel("L_late"), A.newlabel("L_join")
    for s in range(22):
        if s == GATE:
            assert st["nxt"] == 12
            A("s_waitcnt lgkmcnt(1)")
            if not OPT.get("nogate", 0):
                A(f"v_cmp_le_u32 vcc, 3, v{vG}\ns_cbranch_vccz {llate}")
            keep = list(vm.q)
            mark = len(A.lines)
            A.label(llate)
            for s2_ in range(GATE, 12):
                stage(s2_, 11)
            lr, lo = A.newlabel("L_fs"), A.newlabel("L_fs")
            A.label(lr)
            A(f"""ds_read_b32 v{vG}, v{vFA}
            s_waitcnt lgkmcnt(0)
            v_cmp_le_u32 vcc, 3, v{vG}
            s_cbranch_vccnz {lo}""")
            spin_tail(lr, lo, 1)
            A.label(lo)
            vm.q = []
            for s2_ in range(12, 12 + DA - 1):
                ldA(s2_)
            A(f"s_branch {ljoin}")
            late_q = list(vm.q)
            SLOW.extend(A.lines[mark:])
            del A.lines[mark:]
            vm.q = keep
            st["nxt"] = 12
        if s == 12:
            A.label(ljoin)
            assert vm.q[-NT*(DA-1):] == late_q and st["nxt"] == 12 + DA - 1
        stage(s, 21)
    ts(8, 2)
    tc(15)
    if TS == 3:
        A("v_writelane_b32 v255, s48, 62\nv_writelane_b32 v255, s49, 63")
    flag_wait(36, vFD, vFP, 2048)
    A(f"""v_lshlrev_b32 v{vB}, 4, v{VL}
    s_mul_i32 s{S_T0}, s{S_WAVE}, {NT*1024}
    s_add_u32 s{S_T0}, s{S_T0}, {RED}
    v_add_u32 v{vB+1}, s{S_T0}, v{vB}
    s_xor_b32 s{S_T0}, s{S_WAVE}, 2
    s_mul_i32 s{S_T0}, s{S_T0}, {NT*1024}
    s_add_u32 s{S_T0}, s{S_T0}, {RED}
    v_add_u32 v{vB}, s{S_T0}, v{vB}""")
    for i in range(NT):
        acc = (NT + i) * 4
        A(f"ds_write_b128 v{vB+1}, v[{acc}:{acc+3}] offset:{i*1024}")
    A("s_waitcnt lgkmcnt(0)\ns_barrier")
    for i in range(NT):
        b = (NT + i) * 4
        A(f"ds_read_b128 v[{b}:{b+3}], v{vB} offset:{i*1024}")
    order = [(Tp, U) for Tp in range(NH) for U in range(2)]
    A("s_waitcnt lgkmcnt(0)")
    for Tp, U in order:
        i = U * NH + Tp
        a0, a1 = i * 4, (NT + i) * 4
        for h in (0, 2):
            A(f"v_pk_add_f32 v[{a0+h}:{a0+h+1}], v[{a0+h}:{a0+h+1}], v[{a1+h}:{a1+h+1}]")
        A(f"global_store_dwordx4 v{vT+3}, v[{a0}:{a0+3}], s[{S_OUT}:{S_OUT+1}] offset:{64*U}{['', ' sc1', ' nt', ' sc0 sc1'][OPT.get('omod', 2)]}")
        if U == 1 and Tp < NH - 1:
            A(f"v_add_u32 v{vT+3}, {16*2560}, v{vT+3}")
    ts(9, 2)
    ts_flush(200)
    A("s_endpgm")
    flush_slow()

def gemm2_small(NT):
    LB = OPT.get("LB", 2)
    G2_B, G2_A = 32, 128
    DA = 3 if NT == 6 else OPT.get("DA2", 6)
    RED = 4 * SL2
    vW, vC, vB = 204, 208, 212
    vA = 216
    vT = 224
    vFA, vFP, vFV, vFD, vG = 232, 233, 234, 235, 236
    X, ST, DK, TT = 180, 184, 188, 192
    A(f"""s_lshl_b32 s{S_T0}, s{S_T0}, 5
    s_add_u32 s{S_T0}, s{S_T0}, s{S_T0+1}
    s_lshl_b32 s{S_T0}, s{S_T0}, {FSH}
    s_add_u32 s{S_T0+3}, s{S_T0}, {WS_FLAG}""")
    A(f"""s_lshl_b32 s{S_T0}, s{S_TG}, 4
    v_and_b32 v{vT}, 15, v{VL}
    v_add_u32 v{vT}, s{S_T0}, v{vT}                    ; row
    v_lshrrev_b32 v{vT+1}, 4, v{VL}
    s_lshl_b32 s{S_T0+1}, s{S_WAVE}, 4
    s_add_u32 s{S_T0+1}, s{S_T0+1}, s{S_DCOL}
    v_lshl_add_u32 v{vT+1}, v{vT+1}, 2, s{S_T0+1}      ; column
    v_mul_u32_u24 v{vT+2}, 640, v{vT}
    v_add_u32 v{vT+2}, v{vT+2}, v{vT+1}
    v_lshlrev_b32 v{vT+3}, 2, v{vT+2}
    v_lshlrev_b32 v{vT+2}, 1, v{vT+2}
    v_lshlrev_b32 v{vT+1}, 1, v{vT+1}
    v_lshlrev_b32 v{vT+4}, 3, v{vT}
    v_add_u32 v{vT+4}, {WS_STAT}, v{vT+4}""")
    for Tp in range(NT):
        A(f"global_load_dwordx2 v[{X+2*Tp}:{X+2*Tp+1}], v{vT+2}, s[{S_X}:{S_X+1}]")
        if Tp < NT - 1:
            A(f"v_add_u32 v{vT+2}, {16*1280}, v{vT+2}")
    A(f"global_load_dwordx2 v[{DK}:{DK+1}], v{vT+1}, s[{S_DSK}:{S_DSK+1}]")
    def stat_loads_():
        for Tp in range(NT):
            A(f"global_load_dwordx2 v[{ST+2*Tp}:{ST+2*Tp+1}], v{vT+4}, s[{S_WS}:{S_WS+1}] offset:{128*Tp} sc1")
    stat_loads_()
    A(f"""v_lshrrev_b32 v{vT}, 4, v{VL}               ; q
    v_bfe_u32 v{vT+1}, v{VL}, 2, 2                     ; rr
    v_lshl_add_u32 v{vT+1}, v{vT}, 2, v{vT+1}          ; 4q + rr
    v_bfe_u32 v{vT+5}, v{vT+1}, 1, 2                   ; swizzle
    s_lshl_b32 s{S_T0}, s{S_WAVE}, 5
    v_add_u32 v{vT+1}, s{S_T0}, v{vT+1}
    v_lshlrev_b32 v{vT+1}, 7, v{vT+1}
    v_and_b32 v{vT+2}, 3, v{VL}
    v_lshl_add_u32 v{vT+1}, v{vT+2}, 3, v{vT+1}
    v_and_b32 v{vT+2}, 1, v{vT}
    s_lshl_b32 s{S_T0}, s{S_WAVE}, 1
    v_add_u32 v{vT+2}, s{S_T0}, v{vT+2}                ; chunk = 2w + (q&1)
    v_bfe_u32 v{vT+6}, v{VL}, 1, 3
    v_xor_b32 v{vT+2}, v{vT+2}, v{vT+6}
    v_lshrrev_b32 v{vT}, 1, v{vT}
    v_lshlrev_b32 v{vT}, 13, v{vT}
    v_lshl_add_u32 v{vT}, v{vT+2}, 4, v{vT}
    v_and_b32 v{vT+6}, 15, v{VL}
    v_lshl_add_u32 v{vT}, v{vT+6}, 7, v{vT}""")
    for Up in range(4):
        A(f"""s_add_u32 s{S_T0}, s{S_WAVE}, {Up}
        s_and_b32 s{S_T0}, s{S_T0}, 3
        v_xor_b32 v{vT+2}, s{S_T0}, v{vT+5}
        v_lshl_add_u32 v{vW+Up}, v{vT+2}, 5, v{vT+1}
        s_lshl_b32 s{S_T0}, s{S_T0}, 11
        v_add_u32 v{vC+Up}, s{S_T0}, v{vT}""")
    A(f"v_lshlrev_b32 v{vT}, 4, v{VL}\ns_and_b32 s{S_T0+1}, s{S_TG}, 3")
    for Tp in range(NT):
        A(f"""s_add_u32 s{S_T0}, s{S_T0+1}, {Tp}
        s_lshr_b32 s{S_T0+2}, s{S_T0}, 2
        s_mul_i32 s{S_T0+2}, s{S_T0+2}, {88*4-4}
        s_add_u32 s{S_T0}, s{S_T0}, s{S_T0+2}
        s_lshl_b32 s{S_T0}, s{S_T0}, 10
        v_add_u32 v{vA+Tp}, s{S_T0}, v{vT}""")
    A(f"""s_mul_i32 s{S_T0}, s{S_HB2}, {88*4096}
    s_lshl_b32 s{S_T0+1}, s{S_WAVE}, 12
    s_add_u32 s{S_T0}, s{S_T0}, s{S_T0+1}
    s_add_u32 s{S_T0}, s{S_T0}, {WS_ACT}
    s_add_u32 s{SRD_T}, s{S_WS}, s{S_T0}
    s_addc_u32 s{SRD_T+1}, s{S_WS+1}, 0
    s_mov_b32 s{SRD_T+2}, {(88+85)*4096}
    s_mov_b32 s{SRD_T+3}, 0x20000
    s_lshl_b32 s{S_KB}, s{S_R2A}, 14""")
    lr, lo = A.newlabel("L_fl"), A.newlabel("L_fl")
    A(f"""s_lshl_b32 s{S_T0}, s{S_HB2}, {5+FSH}
    s_add_u32 s{S_T0}, s{S_T0}, {WS_FLAG}
    v_and_b32 v{vFA}, {63 if NT == 6 else 31}, v{VL}
    v_lshlrev_b32 v{vFA}, {FSH}, v{vFA}
    v_add_u32 v{vFA}, s{S_T0}, v{vFA}
    s_lshr_b32 s{S_T0+1}, s{S_WAVE}, 1
    s_lshl_b32 s{S_T0+1}, 0x555555, s{S_T0+1}
    v_mov_b32 v{vT}, s{S_T0+3}
    v_mov_b32 v{vT+1}, s{S_NONCE}
    s_mov_b32 exec_lo, s{S_T0+1}
    s_mov_b32 exec_hi, 0
    global_load_dword v{vG}, v{vFA}, s[{S_WS}:{S_WS+1}] sc1
    s_waitcnt vmcnt({2*NT+2})
    s_mov_b64 exec, 1
    global_store_dword v{vT}, v{vT+1}, s[{S_WS}:{S_WS+1}] sc1
    s_mov_b64 exec, -1""")
    ts(6, 2)
    def poll(lr, lo, mask):
        A(f"s_mov_b32 exec_lo, {mask}\ns_mov_b32 exec_hi, 0\ns_waitcnt vmcnt(1)\ns_branch {lr}b")
        A.label(lr)
        A(f"global_load_dword v{vG}, v{vFA}, s[{S_WS}:{S_WS+1}] sc1\ns_waitcnt vmcnt(0)")
        A.label(f"{lr}b")
        A(f"v_cmp_ne_u32 vcc, s{S_NONCE}, v{vG}\ns_cbranch_vccz {lo}")
        spin_tail(lr, lo, 2)
        A.label(lo)
        A("s_mov_b64 exec, -1")
    poll(lr, lo, f"s{S_T0+1}")
    ts(7, 2)
    tc(14)
    if TS:
        A("s_mov_b32 s48, 0\ns_mov_b32 s49, 0")
    vm = Queue(A, "vmcnt", 63)
    def ldA1(s, Tp):
        b = G2_A + (s % DA) * 4 * NT
        A(f"buffer_load_dwordx4 v[{b+4*Tp}:{b+4*Tp+3}], v{vA+Tp}, s[{SRD_T}:{SRD_T+3}], s{S_KB} offen sc1")
        vm.issue(("a", s))
        if Tp == NT - 1:
            rot_next(s, 16384, 16384, 12 * 16384)
    def ldA(s):
        for Tp in range(NT):
            ldA1(s, Tp)
    def rdB(s, U):
        b = G2_B + (s % (LB + 1)) * 16 + U * 4
        if s < 12:
            A(f"ds_read_b64_tr_b16 v[{b}:{b+1}], v{vB+U}")
            A(f"ds_read_b64_tr_b16 v[{b+2}:{b+3}], v{vB+U} offset:2048")
            lq.issue(("b", s))
        else:
            A(f"ds_read_b128 v[{b}:{b+3}], v{vB+U}")
        lq.issue(("b", s))
    def setB(s, us=range(4)):
        for U in us:
            A(f"v_add_u32 v{vB+U}, {g2slot(s)}, v{(vW if s < 12 else vC)+U}")
    assert G2_A + DA * NT * 4 <= 180
    peer_addr(vFP, FLG)
    R0 = OPT.get("ramp", 2) if NT == 6 else DA - 1
    st = {"nxt": R0}
    for s in range(R0):
        ldA(s)
    ls, lk = A.newlabel("L_st"), A.newlabel("L_st")
    A.label(ls)
    A(f"s_mov_b64 s[{S_M0}:{S_M0+1}], 0")
    for Tp in range(NT):
        A(f"v_cmp_ne_u32 vcc, s{S_NONCE}, v{ST+2*Tp+1}\ns_nop 1\ns_or_b64 s[{S_M0}:{S_M0+1}], s[{S_M0}:{S_M0+1}], vcc")
    A(f"s_cmp_eq_u64 s[{S_M0}:{S_M0+1}], 0\ns_cbranch_scc1 {lk}")
    stat_loads_()
    A("s_waitcnt vmcnt(0)")
    spin_tail(ls, lk, 1)
    A.label(lk)
    def unpack(dst, src):
        A(f"""v_and_b32 v{dst+3}, 0xffff0000, v{src+1}
        v_lshlrev_b32 v{dst+2}, 16, v{src+1}
        v_and_b32 v{dst+1}, 0xffff0000, v{src}
        v_lshlrev_b32 v{dst}, 16, v{src}""")
    def rnd(r, t):
        A(f"""v_cvt_pk_bf16_f32 v{t}, v{r}, v{r+1}
        v_cvt_pk_bf16_f32 v{t+1}, v{r+2}, v{r+3}""")
        unpack(r, t)
    unpack(DK, DK)
    for Tp in range(NT):
        st_, acc = ST + 2 * Tp, Tp * 4
        A(f"""v_and_b32 v{st_+1}, 0xffff0000, v{st_}
        v_lshlrev_b32 v{st_}, 16, v{st_}
        v_rcp_f32 v{st_+1}, v{st_+1}""")
        unpack(acc, X + 2 * Tp)
        for h in (0, 2):
            A(f"v_pk_add_f32 v[{TT+h}:{TT+h+1}], v[{acc+h}:{acc+h+1}], v[{st_}:{st_+1}] op_sel_hi:[1,0] neg_lo:[0,1] neg_hi:[0,1]")
        rnd(TT, TT + 4)
        for h in (0, 2):
            A(f"v_pk_mul_f32 v[{TT+h}:{TT+h+1}], v[{TT+h}:{TT+h+1}], v[{st_}:{st_+1}] op_sel:[0,1] op_sel_hi:[1,1]")
        rnd(TT, TT + 4)
        for h in (0, 2):
            A(f"v_pk_mul_f32 v[{TT+h}:{TT+h+1}], v[{TT+h}:{TT+h+1}], v[{DK+h}:{DK+h+1}]")
        rnd(TT, TT + 4)
        for h in (0, 2):
            A(f"v_pk_add_f32 v[{acc+h}:{acc+h+1}], v[{acc+h}:{acc+h+1}], v[{TT+h}:{TT+h+1}]")
    A(f"v_mov_b32 v{vFV}, s{S_K}")
    flag_wait(21 + LB, vFD, vFP)
    lq = Queue(A, "lgkmcnt", 15)
    A(f"v_lshlrev_b32 v{vFA}, 4, v{VL}\nv_add_u32 v{vFA}, {AUX}, v{vFA}")
    A(f"ds_read_b32 v{vFD}, v{vFP} offset:{4*(22+LB)}")
    lq.issue(("f", 0))
    for s in range(LB):
        setB(s)
        for U in range(4):
            rdB(s, U)
    GATE = 12 - (DA - 1)
    def stage(s, limit):
        lq.wait(("b", s))
        if TS == 2:
            ts(16 + s, 2)
        if TS == 3:
            A(f"s_memtime s[{S_TS}:{S_TS+1}]\ns_waitcnt lgkmcnt(0)\ns_mov_b32 s50, s{S_TS}")
        vm.wait(("a", s))
        if TS == 3:
            A(f"s_memtime s[{S_TS}:{S_TS+1}]\ns_waitcnt lgkmcnt(0)\ns_sub_u32 s50, s{S_TS}, s50\nv_writelane_b32 v255, s50, {16+s}\nv_writelane_b32 v255, s{S_TS}, {40+s}")
        todo = []
        while st["nxt"] <= min(limit, s - 1 + DA, 21) and len(todo) < 2 * NT:
            todo += [(st["nxt"], Tp) for Tp in range(NT)]
            st["nxt"] += 1
        acts = []
        def mark():
            A(f"ds_write_b32 v{VFO}, v{vFV} offset:{4*(22+s)}")
            lq.issue("m")
        acts.append(mark)
        n_ = s + LB
        if n_ <= 21:
            acts.append(lambda: (setB(n_), lq.wait(("f", s)), flag_test(22 + n_, vFD, vFP, 4 * (22 + n_), acc=48)))
            if n_ < 21:
                acts.append(lambda: (A(f"ds_read_b32 v{vFD}, v{vFP} offset:{4*(23+n_)}"), lq.issue(("f", s + 1))))
            acts.append(lambda: (rdB(n_, 0), rdB(n_, 1)))
            acts.append(lambda: (rdB(n_, 2), rdB(n_, 3)))
        if s == GATE - 1:
            acts.append(lambda: (A(f"ds_read_b32 v{vG}, v{vFA}"), lq.issue("g")))
        lds = [lambda x=x: ldA1(*x) for x in todo]
        nm = 4 * NT
        sched = {i: [] for i in range(nm)}
        per = -(-len(acts) // max(nm - 2, 1))
        for i, f in enumerate(acts):
            sched[i // per].append(f)
        first = OPT.get("lf", 10) if NT == 6 else 0
        for i, f in enumerate(lds):
            sched[min(first + i * (nm - first) // len(lds), nm - 1)].append(f)
        for U in range(4):
            for Tp in range(NT):
                acc = (U * NT + Tp) * 4
                w = G2_B + (s % (LB + 1)) * 16 + U * 4
                a = G2_A + (s % DA) * 4 * NT + Tp * 4
                cin = "0" if (s == 0 and U != 0) else f"v[{acc}:{acc+3}]"
                A(f"v_mfma_f32_16x16x32_bf16 v[{acc}:{acc+3}], v[{w}:{w+3}], v[{a}:{a+3}], {cin}")
                for f in sched[U * NT + Tp]:
                    f()
    llate, ljoin = A.newlabel("L_late"), A.newlabel("L_join")
    for s in range(22):
        if s == GATE:
            assert st["nxt"] == 12
            lq.wait("g")
            A(f"v_cmp_le_u32 vcc, 3, v{vG}\ns_cbranch_vccz {llate}")
            keep = list(vm.q)
            keepl = list(lq.q)
            mark = len(A.lines)
            A.label(llate)
            for s2_ in range(GATE, 12):
                stage(s2_, 11)
            lr, lo = A.newlabel("L_fs"), A.newlabel("L_fs")
            A.label(lr)
            A(f"""ds_read_b32 v{vG}, v{vFA}
            s_waitcnt lgkmcnt(0)
            v_cmp_le_u32 vcc, 3, v{vG}
            s_cbranch_vccnz {lo}""")
            spin_tail(lr, lo, 1)
            A.label(lo)
            vm.q = []
            for s2_ in range(12, 12 + DA - 1):
                ldA(s2_)
            A(f"s_branch {ljoin}")
            late_q = list(vm.q)
            SLOW.extend(A.lines[mark:])
            del A.lines[mark:]
            vm.q = keep
            lq.q = keepl
            st["nxt"] = 12
        if s == 12:
            A.label(ljoin)
            assert vm.q[-NT*(DA-1):] == late_q and st["nxt"] == 12 + DA - 1
        stage(s, 21)
    ts(8, 2)
    tc(15)
    if TS == 3:
        A("v_writelane_b32 v255, s48, 62\nv_writelane_b32 v255, s49, 63")
    flag_wait(36, vFD, vFP, 2048)
    A(f"v_lshlrev_b32 v{vB}, 4, v{VL}")
    for Up in range(1, 4):
        A(f"""s_add_u32 s{S_T0}, s{S_WAVE}, {Up}
        s_and_b32 s{S_T0}, s{S_T0}, 3
        s_mul_i32 s{S_T0}, s{S_T0}, {3*NT*1024}
        s_add_u32 s{S_T0}, s{S_T0}, {RED + (Up-1)*NT*1024}
        v_add_u32 v{vB+Up}, s{S_T0}, v{vB}""")
    A(f"""s_mul_i32 s{S_T0}, s{S_WAVE}, {3*NT*1024}
    s_add_u32 s{S_T0}, s{S_T0}, {RED}
    v_add_u32 v{vB}, s{S_T0}, v{vB}""")
    for Tp in range(NT):
        for Up in range(1, 4):
            acc = (Up * NT + Tp) * 4
            A(f"ds_write_b128 v{vB+Up}, v[{acc}:{acc+3}] offset:{Tp*1024}")
    A("s_waitcnt lgkmcnt(0)\ns_barrier")
    lg = Queue(A, "lgkmcnt", 15)
    def rdR(Tp):
        for i in range(3):
            b = ((1 + i) * NT + Tp) * 4
            A(f"ds_read_b128 v[{b}:{b+3}], v{vB} offset:{(i*NT+Tp)*1024}")
            lg.issue(("r", Tp))
    for Tp in range(min(NT, 4)):
        rdR(Tp)
    for Tp in range(NT):
        lg.wait(("r", Tp))
        a0, a1, a2, a3 = [(i * NT + Tp) * 4 for i in range(4)]
        for h in (0, 2):
            A(f"v_pk_add_f32 v[{a0+h}:{a0+h+1}], v[{a0+h}:{a0+h+1}], v[{a1+h}:{a1+h+1}]")
            A(f"v_pk_add_f32 v[{a2+h}:{a2+h+1}], v[{a2+h}:{a2+h+1}], v[{a3+h}:{a3+h+1}]")
        for h in (0, 2):
            A(f"v_pk_add_f32 v[{a0+h}:{a0+h+1}], v[{a0+h}:{a0+h+1}], v[{a2+h}:{a2+h+1}]")
        A(f"global_store_dwordx4 v{vT+3}, v[{a0}:{a0+3}], s[{S_OUT}:{S_OUT+1}]{['', ' sc1', ' nt', ' sc0 sc1'][OPT.get('omod', 2)]}")
        if Tp < NT - 1:
            A(f"v_add_u32 v{vT+3}, {16*2560}, v{vT+3}")
        if Tp + 4 < NT:
            rdR(Tp + 4)
    ts(9, 2)
    ts_flush(200)
    A("s_endpgm")
    flush_slow()

def publish_flag(idx_code):
    A(f"""s_lshl_b32 s{S_T0}, s{S_T0}, 5
    s_add_u32 s{S_T0}, s{S_T0}, s{S_T0+1}
    s_lshl_b32 s{S_T0}, s{S_T0}, 2
    s_add_u32 s{S_T0}, s{S_T0}, {WS_FLAG}
    v_mov_b32 v250, s{S_T0}
    v_mov_b32 v251, s{S_NONCE}
    s_waitcnt vmcnt({idx_code})
    s_mov_b64 exec, 1
    global_store_dword v250, v251, s[{S_WS}:{S_WS+1}] sc1
    s_mov_b64 exec, -1""")

A.label("L_compute")
A(f"s_setprio {OPT.get('pc1', 2)}")
if OPT.get("pfc", 1):
    A(f"""s_cmp_lg_u32 s{S_WAVE}, 3
    s_cbranch_scc1 L_pcd
    s_getpc_b64 s[{S_M0}:{S_M0+1}]
    L_pcc:
    s_sub_u32 s{S_M0}, s{S_M0}, L_pcc-L_code_start
    s_subb_u32 s{S_M0+1}, s{S_M0+1}, 0
    s_lshl_b32 s{S_T0}, s{S_IDX}, 11
    v_and_b32 v2, 15, v{VL}
    v_lshlrev_b32 v2, 7, v2
    v_add_u32 v2, s{S_T0}, v2
    v_min_u32 v2, L_code_end-L_code_start-8, v2
    global_load_dword v247, v2, s[{S_M0}:{S_M0+1}]
    L_pcd:""")
A(f"s_waitcnt lgkmcnt(0)\ns_load_dword s{S_K}, s[{S_X}:{S_X+1}], 0")
srd(SRD_F, S_X, 4)
flag_init(FREE, S_WAVE, 248, FLG, None)
A(f"s_mov_b32 s{S_FR}, s{S_T0}")
late_scalars()
A(f"s_cmp_eq_u32 s{S_J}, 0\ns_cbranch_scc1 L_ssm_compute")
if OPT.get("tw", 3) == 1:
    touch_w2(251)
A('v_mov_b32 v249, 0')
if PA == 0:
    by_wave(mlp_rows_loads, mlp_cs_loads)
zero_regs(0, 128)()
rowpat_read(192, 198)
A(f"""s_and_b32 s{S_T0}, s{S_WAVE}, 1
s_lshl_b32 s{S_T0}, s{S_T0}, 13
v_add_u32 v192, s{S_T0}, v192
v_xor_b32 v193, 64, v192
v_lshrrev_b32 v198, 4, v{VL}              ; q
v_bfe_u32 v199, v{VL}, 2, 2               ; rr
v_and_b32 v160, 1, v198
v_lshl_add_u32 v160, v160, 2, v199        ; swizzle s
v_lshl_add_u32 v198, v198, 3, v199        ; k row
v_lshlrev_b32 v198, 8, v198
v_and_b32 v199, 3, v{VL}
v_lshl_add_u32 v198, v199, 3, v198
v_add_u32 v198, {WRING}, v198
s_lshr_b32 s{S_T0}, s{S_WAVE}, 1
s_lshl_b32 s{S_T0}, s{S_T0}, 2""")
for F in range(4):
    A(f"""s_add_u32 s{S_T0+1}, s{S_T0}, {F}
    v_xor_b32 v199, s{S_T0+1}, v160
    v_lshl_add_u32 v{194+F}, v199, 5, v198""")
ts(1, 2)
lg, entry, AX, AW = gemm1_loop("mlp")
A("s_waitcnt lgkmcnt(0)")
ts(3, 2)
tc(13)
if TS:
    A("v_writelane_b32 v255, s48, 10\nv_writelane_b32 v255, s49, 11")
if OPT.get("solo", 0):
    ts_flush(100)
    A("s_endpgm")
A(f"s_setprio {OPT.get('pc2', 3)}")
ER = 128
EC = 144
A(f"""s_and_b32 s{S_T0}, s{S_WAVE}, 1
s_lshl_b32 s{S_T0}, s{S_T0}, 10
s_add_u32 s{S_T0}, s{S_T0}, {M_ROW}
v_and_b32 v192, 15, v{VL}
v_lshlrev_b32 v192, 4, v192
v_add_u32 v192, s{S_T0}, v192
s_lshr_b32 s{S_T0}, s{S_WAVE}, 1
s_lshl_b32 s{S_T0}, s{S_T0}, 8
s_add_u32 s{S_T0}, s{S_T0}, {M_CS}
v_lshrrev_b32 v193, 4, v{VL}
v_lshlrev_b32 v193, 4, v193
v_add_u32 v193, s{S_T0}, v193""")
for T in range(4):
    A(f"ds_read_b128 v[{ER+4*T}:{ER+4*T+3}], v192 offset:{256*T}")
for F in range(4):
    for c in range(2):
        b = EC + (F * 2 + c) * 4
        A(f"ds_read_b128 v[{b}:{b+3}], v193 offset:{c*512+F*64}")
A(f"""s_lshl_b32 s{S_T0}, s{S_C}, 1
s_and_b32 s{S_T0+1}, s{S_WAVE}, 1
s_add_u32 s{S_T0}, s{S_T0}, s{S_T0+1}
s_mul_i32 s{S_T0}, s{S_T0}, 88
s_lshl_b32 s{S_T0+1}, s{S_CB}, 2
s_add_u32 s{S_T0}, s{S_T0}, s{S_T0+1}
s_and_b32 s{S_T0+1}, s{S_WAVE}, 2
s_add_u32 s{S_T0}, s{S_T0}, s{S_T0+1}
s_lshl_b32 s{S_T0}, s{S_T0}, 12
s_add_u32 s{S_T0}, s{S_T0}, {WS_ACT}
v_lshlrev_b32 v194, 4, v{VL}
v_add_u32 v194, s{S_T0}, v194
v_add_u32 v195, 4096, v194
s_waitcnt lgkmcnt(0)""")
if TS == 1:
    ts(16, 2)
ET = 176
EO = 184
n = 0
for u in range(2):
    for T in range(4):
        m = ER + 4 * T
        prs = []
        for F in (2 * u, 2 * u + 1):
            for h in (0, 2):
                g = ((F * 2 + 0) * 4 + T) * 4 + h
                up = ((F * 2 + 1) * 4 + T) * 4 + h
                prs.append((g, up, EC + (F * 2) * 4 + h, EC + (F * 2 + 1) * 4 + h))
        for i, (g, up, cg, cu) in enumerate(prs):
            A(f"v_pk_fma_f32 v[{g}:{g+1}], v[{cg}:{cg+1}], v[{m}:{m+1}], v[{g}:{g+1}] op_sel_hi:[1,0,1] neg_lo:[0,1,0] neg_hi:[0,1,0]")
        for i, (g, up, cg, cu) in enumerate(prs):
            e = ET + 2 * i
            A(f"v_pk_mul_f32 v[{e}:{e+1}], v[{g}:{g+1}], v[{m}:{m+1}] op_sel:[0,1] op_sel_hi:[1,1]")
        for i, (g, up, cg, cu) in enumerate(prs):
            e = ET + 2 * i
            A(f"v_exp_f32 v{e}, v{e}\nv_exp_f32 v{e+1}, v{e+1}")
            A(f"v_pk_fma_f32 v[{up}:{up+1}], v[{cu}:{cu+1}], v[{m}:{m+1}], v[{up}:{up+1}] op_sel_hi:[1,0,1] neg_lo:[0,1,0] neg_hi:[0,1,0]")
        for i, (g, up, cg, cu) in enumerate(prs):
            e = ET + 2 * i
            A(f"v_pk_fma_f32 v[{e}:{e+1}], v[{e}:{e+1}], v[{m+2}:{m+3}], v[{m+2}:{m+3}] op_sel_hi:[1,0,0]")
        for i, (g, up, cg, cu) in enumerate(prs):
            e = ET + 2 * i
            A(f"v_rcp_f32 v{e}, v{e}\nv_rcp_f32 v{e+1}, v{e+1}")
            A(f"v_pk_mul_f32 v[{g}:{g+1}], v[{g}:{g+1}], v[{up}:{up+1}]")
        for i, (g, up, cg, cu) in enumerate(prs):
            e = ET + 2 * i
            A(f"v_pk_mul_f32 v[{g}:{g+1}], v[{g}:{g+1}], v[{e}:{e+1}]")
        o = EO + 4 * (n % 2)
        for i, (g, up, cg, cu) in enumerate(prs):
            A(f"v_cvt_pk_bf16_f32 v{o+i}, v{g}, v{g+1}")
        if TS == 1 and n % 2 == 0:
            ts(17 + n, 2)
        if not OPT.get("nost", 0):
            A(f"global_store_dwordx4 v{194+u}, v[{o}:{o+3}], s[{S_WS}:{S_WS+1}] offset:{1024*T} sc1")
        if TS == 1 and n % 2 == 0:
            ts(18 + n, 2)
        n += 1
ts(4, 2)
A(f"""s_lshl_b32 s{S_T0}, s{S_C}, 1
s_and_b32 s{S_T0+1}, s{S_WAVE}, 1
s_add_u32 s{S_T0}, s{S_T0}, s{S_T0+1}
s_lshl_b32 s{S_T0+1}, s{S_CB}, 1
s_lshr_b32 s{S_T0+2}, s{S_WAVE}, 1
s_add_u32 s{S_T0+1}, s{S_T0+1}, s{S_T0+2}""")
gemm2_compute(6)

A.label("L_ssm_compute")
if PA == 0:
    ssm_rows_loads()
zero_regs(0, 160)()
rowpat_read(232, 160)
A(f"""s_lshr_b32 s{S_T0}, s{S_WAVE}, 1
s_mul_i32 s{S_T0}, s{S_T0}, 10240
s_add_u32 s{S_T0}, s{S_T0}, {WRING}
v_add_u32 v234, s{S_T0}, v232
v_xor_b32 v235, 64, v234
s_and_b32 s{S_T0}, s{S_WAVE}, 1
s_lshl_b32 s{S_T0}, s{S_T0}, 13
v_add_u32 v232, s{S_T0}, v232
v_xor_b32 v233, 64, v232""")
ts(1, 2)
lg, entry, AX, AW = gemm1_loop("ssm")
A("s_waitcnt lgkmcnt(0)")
ts(3, 2)
tc(13)
if TS:
    A("v_writelane_b32 v255, s48, 10\nv_writelane_b32 v255, s49, 11")
if OPT.get("solo", 0):
    ts_flush(100)
    A("s_endpgm")
A(f"s_setprio {OPT.get('pc2', 3)}")
def acc(G, c, m, r=0):
    return ((G * 2 + c) * 4 + m) * 4 + r
SM, SR_ = 160, 176
SCS = 192
SLAM = 202
SK = 212
SA = 222
A(f"""s_and_b32 s{S_T0}, s{S_WAVE}, 1
s_lshl_b32 s{S_T0}, s{S_T0}, 8
s_add_u32 s{S_T0}, s{S_T0}, {M_ROW}
v_lshrrev_b32 v{SA}, 4, v{VL}
v_lshlrev_b32 v{SA}, 4, v{SA}
v_add_u32 v{SA}, s{S_T0}, v{SA}
s_lshr_b32 s{S_T0+1}, s{S_WAVE}, 1
s_mul_i32 s{S_T0+1}, s{S_T0+1}, 80
v_and_b32 v{SA+1}, 15, v{VL}
v_add_u32 v{SA+1}, s{S_T0+1}, v{SA+1}
v_lshlrev_b32 v{SA+2}, 2, v{SA+1}
v_add_u32 v{SA+3}, {M_CS}, v{SA+2}
v_lshlrev_b32 v{SA+4}, 3, v{SA+1}
v_add_u32 v{SA+4}, {M_LAM}, v{SA+4}""")
for m in range(4):
    A(f"ds_read_b128 v[{SM+4*m}:{SM+4*m+3}], v{SA} offset:{64*m}")
    A(f"ds_read_b128 v[{SR_+4*m}:{SR_+4*m+3}], v{SA} offset:{512+64*m}")
for G in range(5):
    A(f"ds_read_b32 v{SCS+2*G}, v{SA+3} offset:{64*G}")
    A(f"ds_read_b32 v{SCS+2*G+1}, v{SA+3} offset:{640+64*G}")
for G in range(5):
    A(f"ds_read_b64 v[{SLAM+2*G}:{SLAM+2*G+1}], v{SA+4} offset:{128*G}")
    A(f"ds_read_b64 v[{SK+2*G}:{SK+2*G+1}], v{SA+4} offset:{M_COEF-M_LAM+128*G}")
A(f"""s_and_b32 s{S_T0}, s{S_WAVE}, 1
s_mul_i32 s{S_T0}, s{S_T0}, {8*1280}
s_add_u32 s{S_T0}, s{S_T0}, {E_BASE}
v_lshrrev_b32 v{SA+5}, 4, v{VL}
v_mul_u32_u24 v{SA+5}, 2560, v{SA+5}
v_lshl_add_u32 v{SA+5}, v{SA+2}, 1, v{SA+5}
v_add_u32 v{SA+5}, s{S_T0}, v{SA+5}
v_add_u32 v{SA+7}, 1280, v{SA+5}
s_waitcnt lgkmcnt(0)""")
def pk(op, d, a, b, c=None, sa=None, sb=None, sc=None, neg=None):
    ops = [a, b] + ([c] if c is not None else [])
    sel = [sa, sb] + ([sc] if c is not None else [])
    lo = [0 if s is None else s for s in sel]
    hi = [1 if s is None else s for s in sel]
    t = f"v_pk_{op}_f32 v[{d}:{d+1}], " + ", ".join(f"v[{o}:{o+1}]" for o in ops)
    t += " op_sel:[" + ",".join(map(str, lo)) + "] op_sel_hi:[" + ",".join(map(str, hi)) + "]"
    if neg is not None:
        nn = [1 if i == neg else 0 for i in range(len(ops))]
        t += " neg_lo:[" + ",".join(map(str, nn)) + "] neg_hi:[" + ",".join(map(str, nn)) + "]"
    A(t)
for m in range(4):
    for h in (0, 2):
        for G in range(5):
            for c in range(2):
                a = acc(G, c, m, h)
                pk("fma", a, SM + 4 * m + h, SCS + 2 * G, a, sb=c, neg=1)
        for G in range(5):
            for c in range(2):
                a = acc(G, c, m, h)
                pk("mul", a, a, SR_ + 4 * m + h)
steps = [(m, h) for m in range(4) for h in (0, 2)]
for k in range(1, 8):
    (m, h), (pm, ph) = steps[k], steps[k - 1]
    for G in range(5):
        pk("fma", acc(G, 0, m, h), acc(G, 0, pm, ph), SLAM + 2 * G, acc(G, 0, m, h), sb=0)
        pk("fma", acc(G, 1, m, h), acc(G, 1, pm, ph), SLAM + 2 * G, acc(G, 1, m, h), sb=0)
    for G in range(5):
        pk("fma", acc(G, 0, m, h), acc(G, 1, pm, ph), SLAM + 2 * G, acc(G, 0, m, h), sb=1, neg=1)
        pk("fma", acc(G, 1, m, h), acc(G, 0, pm, ph), SLAM + 2 * G, acc(G, 1, m, h), sb=1)
peer_addr(248, FREE)
flag_wait(18, 250, 248)
for G in range(5):
    for e in range(2):
        A(f"ds_write2_b32 v{SA+5+2*e}, v{acc(G,0,3,2+e)}, v{acc(G,1,3,2+e)} offset0:{32*G} offset1:{32*G+1}")
A("s_waitcnt lgkmcnt(0)\ns_setprio 0\ns_barrier")
ts(4, 2)
for m, h in steps:
    for G in range(5):
        t = SM + 2 * G
        pk("mul", t, acc(G, 0, m, h), SK + 2 * G, sb=1)
    for G in range(5):
        pk("mul", acc(G, 0, m, h), acc(G, 0, m, h), SK + 2 * G, sb=0)
    for G in range(5):
        pk("fma", acc(G, 0, m, h), acc(G, 1, m, h), SK + 2 * G, acc(G, 0, m, h), sb=1)
    for G in range(5):
        t = SM + 2 * G
        pk("fma", acc(G, 1, m, h), acc(G, 1, m, h), SK + 2 * G, t, sb=0, neg=1)
A(f"""s_mul_i32 s{S_T0}, s{S_WAVE}, 12288
s_add_u32 s{S_T0}, s{S_T0}, {TR_BASE}
v_and_b32 v{SA}, 7, v{VL}
v_bfe_u32 v{SA+1}, v{VL}, 3, 1
v_lshlrev_b32 v{SA+1}, 2, v{SA+1}
v_xor_b32 v{SA}, v{SA}, v{SA+1}                ; f
v_lshrrev_b32 v{SA+1}, 4, v{VL}
v_lshlrev_b32 v{SA+1}, 1, v{SA+1}
v_xor_b32 v{SA}, v{SA}, v{SA+1}                ; (2q) ^ f
v_and_b32 v{SA+1}, 15, v{VL}
v_lshlrev_b32 v{SA+1}, 7, v{SA+1}
v_lshl_add_u32 v{SA}, v{SA}, 4, v{SA+1}
v_add_u32 v{SA}, s{S_T0}, v{SA}                ; e = 0
v_xor_b32 v{SA+1}, 16, v{SA}                   ; e = 1
v_lshrrev_b32 v{SA+2}, 4, v{VL}                ; q
v_bfe_u32 v{SA+3}, v{VL}, 2, 2                 ; rr
v_and_b32 v{SA+4}, 1, v{SA+2}
v_lshl_add_u32 v{SA+4}, v{SA+4}, 2, v{SA+3}
v_bfe_u32 v{SA+6}, v{VL}, 1, 1                 ; cc>>1
v_xor_b32 v{SA+4}, v{SA+4}, v{SA+6}
v_lshl_add_u32 v{SA+2}, v{SA+2}, 3, v{SA+3}    ; row
v_lshlrev_b32 v{SA+2}, 7, v{SA+2}
v_lshl_add_u32 v{SA+2}, v{SA+4}, 4, v{SA+2}
v_and_b32 v{SA+3}, 1, v{VL}
v_lshl_add_u32 v{SA+2}, v{SA+3}, 3, v{SA+2}
v_add_u32 v{SA+2}, s{S_T0}, v{SA+2}""")
TA = 176
for Tq in range(4):
    A(f"v_xor_b32 v{TA+2*Tq}, {32*Tq}, v{SA+2}")
    A(f"v_xor_b32 v{TA+2*Tq+1}, {(32*Tq) ^ 64}, v{SA+2}")
A(f"""s_lshl_b32 s{S_T0}, s{S_C}, 1
s_and_b32 s{S_T0+1}, s{S_WAVE}, 1
s_add_u32 s{S_T0}, s{S_T0}, s{S_T0+1}
s_mul_i32 s{S_T0}, s{S_T0}, 88
s_mul_i32 s{S_T0+1}, s{S_CB}, 10
s_add_u32 s{S_T0}, s{S_T0}, s{S_T0+1}
s_lshr_b32 s{S_T0+1}, s{S_WAVE}, 1
s_mul_i32 s{S_T0+1}, s{S_T0+1}, 5
s_add_u32 s{S_T0}, s{S_T0}, s{S_T0+1}
s_add_u32 s{S_T0}, s{S_T0}, 48
s_lshl_b32 s{S_T0}, s{S_T0}, 12
s_add_u32 s{S_T0}, s{S_T0}, {WS_ACT}
v_lshlrev_b32 v{SA+3}, 4, v{VL}
v_add_u32 v{SA+3}, s{S_T0}, v{SA+3}""")
A("s_setprio 3\ns_barrier")
ts(5, 2)
SW = 184
SW = 182
def W(G, c):
    idx = G * 2 + c
    return (160 + 2 * idx) if idx < 8 else (192 + 2 * (idx - 8))
for G in range(5):
    for c in range(2):
        for e in range(2):
            A(f"ds_read_b32 v{W(G,c)+e}, v{SA+5} offset:{e*1280+c*4+128*G}")
A("s_waitcnt lgkmcnt(0)")
lg = Queue(A, "lgkmcnt", 15)
def stores(G):
    for Tq in range(4):
        lg.wait(("t", G, Tq))
        b = G * 32 + 16 + Tq * 4
        A(f"global_store_dwordx4 v{SA+3}, v[{b}:{b+3}], s[{S_WS}:{S_WS+1}] offset:{1024*Tq} sc1")
    if G < 4:
        A(f"v_add_u32 v{SA+3}, 4096, v{SA+3}")
def corr(G):
    out = []
    for k, (m, h) in enumerate(steps):
        for c in range(2):
            out.append(lambda c=c, m=m, h=h: pk("add", acc(G, c, m, h), acc(G, c, m, h), W(G, c)))
        if k < 7:
            out.append(lambda: pk("mul", 196, W(G, 0), SLAM + 2 * G, sb=1))
            out.append(lambda: pk("mul", W(G, 0), W(G, 0), SLAM + 2 * G, sb=0))
            out.append(lambda: pk("fma", W(G, 0), W(G, 1), SLAM + 2 * G, W(G, 0), sb=1))
            out.append(lambda: pk("fma", W(G, 1), W(G, 1), SLAM + 2 * G, 196, sb=0, neg=2))
    return out
def pack(G):
    out = []
    for c in range(2):
        o = (184 if G % 2 else 232) if c == 0 else G * 32
        for e in range(2):
            for m in range(4):
                out.append(lambda o=o, c=c, e=e, m=m: A(f"v_cvt_pk_bf16_f32 v{o+4*e+m}, v{acc(G,c,m,e)}, v{acc(G,c,m,2+e)}"))
            def wr(o=o, c=c, e=e):
                A(f"ds_write_b128 v{SA+e}, v[{o+4*e}:{o+4*e+3}] offset:{(G%3)*4096+c*2048}")
                lg.issue("w")
            out.append(wr)
    for Tq in range(4):
        def rd(Tq=Tq):
            b = G * 32 + 16 + Tq * 4
            A(f"ds_read_b64_tr_b16 v[{b}:{b+1}], v{TA+2*Tq} offset:{(G%3)*4096}")
            A(f"ds_read_b64_tr_b16 v[{b+2}:{b+3}], v{TA+2*Tq+1} offset:{(G%3)*4096+512}")
            lg.issue(("t", G, Tq)); lg.issue(("t", G, Tq))
        out.append(rd)
    return out
def store1(G, Tq):
    lg.wait(("t", G, Tq))
    b = G * 32 + 16 + Tq * 4
    A(f"global_store_dwordx4 v{SA+3}, v[{b}:{b+3}], s[{S_WS}:{S_WS+1}] offset:{1024*Tq} sc1")
    if Tq == 3:
        A(f"v_add_u32 v{SA+3}, 4096, v{SA+3}")
def weave(a, b):
    ia = ib = 0
    while ia < len(a) or ib < len(b):
        if ib >= len(b) or (ia < len(a) and ia * len(b) <= ib * len(a)):
            a[ia](); ia += 1
        else:
            b[ib](); ib += 1
for G in range(6):
    side = pack(G - 1) if G >= 1 else []
    if G >= 2:
        st4 = [lambda Tq=Tq: store1(G - 2, Tq) for Tq in range(4)]
        for i, f in enumerate(st4):
            side.insert(2 + 5 * i, f)
        if TS == 1 and G == 2:
            side.insert(0, lambda: ts(16, 2))
    weave(corr(G) if G < 5 else [], side)
stores(4)
A(f"v_mov_b32 v196, s{S_K}\nds_write_b32 v{VFO}, v196 offset:{4*21}")
if TS == 1:
    ts(17, 2)
A(f"""s_lshl_b32 s{S_T0}, s{S_C}, 1
s_and_b32 s{S_T0+1}, s{S_WAVE}, 1
s_add_u32 s{S_T0}, s{S_T0}, s{S_T0+1}
s_lshl_b32 s{S_T0+1}, s{S_CB}, 1
s_lshr_b32 s{S_T0+2}, s{S_WAVE}, 1
s_add_u32 s{S_T0+1}, s{S_T0+1}, s{S_T0+2}
s_add_u32 s{S_T0+1}, s{S_T0+1}, 24""")
(gemm2_small if OPT.get('small', 1) else gemm2_compute)(2)

def rowpat_load(dst, tmp, ssm):
    A(f"""v_lshrrev_b32 v{tmp}, 4, v{VL}
    v_xor_b32 v{tmp+1}, v{tmp}, v{VL}
    v_and_b32 v{tmp+1}, 7, v{tmp+1}              ; chunk""")
    if ssm:
        A(f"""v_lshrrev_b32 v{tmp}, 5, v{VL}
        v_lshlrev_b32 v{tmp}, 4, v{tmp}
        v_bfe_u32 v{dst}, v{VL}, 3, 1
        v_lshl_add_u32 v{tmp}, v{dst}, 3, v{tmp}
        v_bfe_u32 v{dst}, v{VL}, 4, 1
        v_add_u32 v{tmp}, v{tmp}, v{dst}""")
        up = 32
    else:
        A(f"v_lshrrev_b32 v{tmp}, 3, v{VL}")
        up = 8
    A(f"""v_mul_u32_u24 v{dst}, 1280, v{tmp}
    v_lshl_add_u32 v{dst}, v{tmp+1}, 4, v{dst}
    v_xor_b32 v{dst+1}, 64, v{dst}
    v_add_u32 v{dst+1}, {up*1280-1024}, v{dst+1}""")

LFP, LFV, LFD, LPA, LPD = 240, 241, 242, 243, 244
S_U, S_XS, S_S2 = 83, 84, 87
S_RET, S_SUB = 90, 30
class NoQ:
    def issue(self, t): pass
    def wait(self, t): pass
NOQ = NoQ()
CAP = OPT.get("cap", 9)
def cap(n=None):
    A(f"s_waitcnt vmcnt({CAP if n is None else n})")
class CapQ:
    def issue(self, t):
        cap()
    def wait(self, t): pass
CAPQ = CapQ()
class Jobs:
    def __init__(self):
        self.q = []
    def add(self, g):
        self.q.append(g)
    def step(self, n=1):
        if not self.q:
            return
        A(f"s_setprio {OPT.get('pls', 3)}")
        while n > 0 and self.q:
            try:
                next(self.q[0])
            except StopIteration:
                self.q.pop(0)
            n -= 1
        A("s_setprio 0")
def run(g):
    for _ in g:
        pass

LAX, LFQ = 245, 246
def declare(sreg):
    A(f"""s_lshl_b32 s{sreg}, s{sreg}, 2
    v_add_u32 v{LFQ}, s{sreg}, v{VFO}
    v_mov_b32 v{LFV}, s{S_K}
    ds_write_b32 v{LFQ}, v{LFV}""")
def wait_free(sreg):
    A(f"s_lshl_b32 s{sreg}, s{sreg}, 2\nv_add_u32 v{LFQ}, s{sreg}, v{LFP}")
    flag_wait(0, LFD, LFQ, nap=OPT.get('lnap', 0))
def stamp(idx_sreg, add):
    if TS:
        A(f"""s_memrealtime s[{S_TS}:{S_TS+1}]
        s_add_u32 m0, s{idx_sreg}, {add}
        s_waitcnt lgkmcnt(0)
        v_writelane_b32 v255, s{S_TS}, m0""")

def poll_setup(two):
    A(f"""s_lshl_b32 s{S_T0}, s{S_HB2}, {5+FSH}
    s_add_u32 s{S_T0}, s{S_T0}, {WS_FLAG + (24 << FSH)}
    v_and_b32 v{LPA}, 7, v{VL}
    v_lshlrev_b32 v{LPA}, {FSH}, v{LPA}
    v_add_u32 v{LPA}, s{S_T0}, v{LPA}""")
    if two:
        A(f"v_and_b32 v{LPD}, 8, v{VL}\nv_lshl_add_u32 v{LPA}, v{LPD}, {2+FSH}, v{LPA}")
def poll_issue():
    A(f"global_load_dword v{LPD}, v{LPA}, s[{S_WS}:{S_WS+1}] sc1")
def poll_until():
    if OPT.get("nogate", 0):
        return
    lr, lo = A.newlabel("L_pu"), A.newlabel("L_pu")
    A.label(lr)
    poll_issue()
    A(f"""s_waitcnt vmcnt(0)
    v_cmp_ne_u32 vcc, s{S_NONCE}, v{LPD}
    s_cbranch_vccz {lo}""")
    spin_tail(lr, lo, 3)
    A.label(lo)
    A(f"v_mov_b32 v{LFV}, 3\nds_write_b32 v{LAX}, v{LFV}")
def poll_check():
    lo = A.newlabel("L_pk")
    A(f"""v_cmp_ne_u32 vcc, s{S_NONCE}, v{LPD}
    s_cbranch_vccnz {lo}
    v_mov_b32 v{LFV}, 3
    ds_write_b32 v{LAX}, v{LFV}""")
    A.label(lo)

VW2, VC2 = 12, 15
def g2_setup(NT, tmp):
    srd(SRD_W2, S_W2, 1966080)
    srd(SRD_C, S_CRE, 819200)
    srd(SRD_T, S_CIM, 819200)
    A(f"""s_lshl_b32 s{S_T0}, s{S_DCOL}, 1
    v_lshrrev_b32 v{tmp}, 4, v{VL}
    v_lshlrev_b32 v{tmp}, 1, v{tmp}
    v_xor_b32 v{tmp}, v{tmp}, v{VL}
    v_and_b32 v{tmp}, 7, v{tmp}
    v_lshrrev_b32 v{tmp+1}, 3, v{VL}
    v_mul_u32_u24 v{tmp+1}, 1280, v{tmp+1}
    v_lshl_add_u32 v{tmp}, v{tmp}, 4, v{tmp+1}
    v_add_u32 v{VW2}, s{S_T0}, v{tmp}""")
    rowpat_load(VC2, tmp, False)
    A(f"""s_mul_i32 s{S_T0}, s{S_DCOL}, 1280
    v_add_u32 v{VC2}, s{S_T0}, v{VC2}
    v_add_u32 v{VC2+1}, s{S_T0}, v{VC2+1}
    s_add_u32 s{S_S2}, s{S_LW}, 1
    s_and_b32 s{S_S2}, s{S_S2}, 3
    s_add_u32 s{S_KS}, s{S_S2}, s{S_R2A}
    s_cmp_ge_u32 s{S_KS}, 12
    s_cselect_b32 s{S_T0}, 12, 0
    s_sub_u32 s{S_KS}, s{S_KS}, s{S_T0}
    s_mul_i32 s{S_KS}, s{S_KS}, {128*1280}
    v_lshlrev_b32 v236, 4, v{VL}""")
    poll_setup(NT == 6)

def g2_pieces(k):
    out = []
    for i in range(16):
        if k < 3:
            out.append((VW2, SRD_W2, i * 8 * 1280, 0))
        else:
            mat, ii = i // 8, i % 8
            out.append((VC2 + ii % 2, SRD_T if mat else SRD_C, (ii // 2) * 16 * 1280, 1024 * (ii % 2)))
    return out
def g2_next(k):
    if k == 2:
        A(f"""s_and_b32 s{S_KS}, s{S_S2}, 3
        s_add_u32 s{S_KS}, s{S_KS}, s{S_R2B}
        s_cmp_ge_u32 s{S_KS}, 10
        s_cselect_b32 s{S_T0}, 10, 0
        s_sub_u32 s{S_KS}, s{S_KS}, s{S_T0}
        s_lshl_b32 s{S_KS}, s{S_KS}, 7""")
    else:
        step, n = (128 * 1280, 12) if k < 2 else (128, 10)
        A(f"""s_add_u32 s{S_KS}, s{S_KS}, {4*step}
        s_cmp_ge_u32 s{S_KS}, {n*step}
        s_cselect_b32 s{S_T0}, {n*step}, 0
        s_sub_u32 s{S_KS}, s{S_KS}, s{S_T0}""")
THR = OPT.get("thr", 8)
def g2_load(k, base, thr):
    for i, (v, sd, ex, io) in enumerate(g2_pieces(k)):
        if i:
            yield
        A(f"s_add_u32 s{S_T0+7}, s{S_KS}, {ex}\ns_waitcnt vmcnt({thr})")
        A(f"buffer_load_dwordx4 v[{base+4*i}:{base+4*i+3}], v{v}, s[{sd}:{sd+3}], s{S_T0+7} offen offset:{io}")
    g2_next(k)
    ts(48 + k, 2)
def g2_put(k, base, young, lowest, g=None):
    A(f"s_add_u32 s{S_T0+6}, s{S_S2}, {22-NS2}\ns_max_u32 s{S_T0+6}, s{S_T0+6}, {lowest}")
    wait_free(S_T0 + 6)
    A(f"s_waitcnt vmcnt({young})\nv_add_u32 v237, s{S_SLOT}, v236")
    for i in range(16):
        A(f"ds_write_b128 v237, v[{base+4*i}:{base+4*i+3}] offset:{1024*i}")
        if g is not None and i % OPT.get('il', 2) == OPT.get('il', 2) - 1:
            next(g, None)
    A(f"""s_add_u32 s{S_S2}, s{S_S2}, 4
    s_add_u32 s{S_T0+6}, s{S_S2}, 21""")
    declare(S_T0 + 6)
    ts(40 + k, 2)
    A(f"""s_add_u32 s{S_SLOT}, s{S_SLOT}, {4*SL2}
    s_cmp_ge_u32 s{S_SLOT}, {NS2*SL2}
    s_cselect_b32 s{S_T0}, {NS2*SL2}, 0
    s_sub_u32 s{S_SLOT}, s{S_SLOT}, s{S_T0}""")
    if g is not None:
        run(g)
    A("s_waitcnt lgkmcnt(0)")

def bump_epoch(T):
    lr, lo = A.newlabel("L_ep"), A.newlabel("L_ep")
    ld = A.newlabel("L_ep")
    A(f"""s_cmp_lg_u32 s2, 0
    s_cbranch_scc1 {ld}
    s_cmp_lg_u32 s{S_LW}, 2
    s_cbranch_scc1 {ld}
    v_lshlrev_b32 v{T}, {FSH}, v{VL}""")
    A.label(lr)
    A(f"v_add_u32 v{T+1}, {WS_FLAG}, v{T}")
    for i in range(16):
        A(f"global_load_dword v{T+4+i}, v{T+1}, s[{S_WS}:{S_WS+1}] sc1\nv_add_u32 v{T+1}, {64 << FSH}, v{T+1}")
    A(f"s_waitcnt vmcnt(0)\ns_mov_b64 s[{S_M0}:{S_M0+1}], 0")
    for i in range(16):
        A(f"v_cmp_ne_u32 vcc, s{S_NONCE}, v{T+4+i}\ns_nop 1\ns_or_b64 s[{S_M0}:{S_M0+1}], s[{S_M0}:{S_M0+1}], vcc")
    A(f"s_cmp_eq_u64 s[{S_M0}:{S_M0+1}], 0\ns_cbranch_scc1 {lo}")
    spin_tail(lr, lo, 4)
    A.label(lo)
    A(f"""v_mov_b32 v{T}, {WS_E}
    v_mov_b32 v{T+1}, s{S_NONCE}
    s_mov_b64 exec, 1
    global_store_dword v{T}, v{T+1}, s[{S_WS}:{S_WS+1}] sc1
    s_mov_b64 exec, -1""")
    A.label(ld)

def prefetch(vm, T, tag):
    if not OPT["pf"]:
        return
    if not OPT.get("pfc", 1):
      for i in range(2):
        vm.issue("pf")
      A(f"""s_getpc_b64 s[{S_M0}:{S_M0+1}]
    L_pc{tag}:
    s_sub_u32 s{S_M0}, s{S_M0}, L_pc{tag}-L_code_start
    s_subb_u32 s{S_M0+1}, s{S_M0+1}, 0
    s_lshl_b32 s{S_T0}, s{S_LW}, 13
    v_lshlrev_b32 v{T}, 7, v{VL}
    v_add_u32 v{T}, s{S_T0}, v{T}
    v_add_u32 v{T+1}, 32768, v{T}
    v_min_u32 v{T+1}, L_code_end-L_code_start-8, v{T+1}
    global_load_dword v250, v{T}, s[{S_M0}:{S_M0+1}]
    global_load_dword v249, v{T+1}, s[{S_M0}:{S_M0+1}]""")
    A(f"""s_cmp_ge_u32 s{S_LW}, 2
    s_cselect_b32 s{S_T0}, 49, 59
    s_mov_b32 s{S_T0+1}, 7680
    s_cmov_b32 s{S_T0+1}, 3200
    s_cselect_b32 s{S_T0+4}, s{S_CRE}, s{S_W2}
    s_cselect_b32 s{S_T0+5}, s{S_CRE+1}, s{S_W2+1}
    s_mul_i32 s{S_T0+1}, s{S_T0+1}, s2
    s_cmp_eq_u32 s{S_LW}, 1
    s_cselect_b32 s{S_T0+2}, 3840, 0
    s_add_u32 s{S_T0+1}, s{S_T0+1}, s{S_T0+2}
    s_cmp_eq_u32 s{S_LW}, 3
    s_cselect_b32 s{S_T0+4}, s{S_CIM}, s{S_T0+4}
    s_cselect_b32 s{S_T0+5}, s{S_CIM+1}, s{S_T0+5}
    v_min_u32 v{T}, s{S_T0}, v{VL}
    v_lshlrev_b32 v{T}, 6, v{T}
    v_add_u32 v{T}, s{S_T0+1}, v{T}
    global_load_dword v248, v{T}, s[{S_T0+4}:{S_T0+5}]""")
    vm.issue("pf")


def head_begin():
    return len(A.lines)
def head_end(mark):
    HEADS.extend(A.lines[mark:])
    del A.lines[mark:]

def issue_sub(kind):
    mlp = kind == "mlp"
    SLOT = 16384 if mlp else 20480
    A.label(f"L_sub_{kind}")
    A(f"s_waitcnt lgkmcnt(0)")
    flag_test(None, LFD, LFQ, 0, nap=OPT.get('lnap', 0))
    A.label(f"L_subn_{kind}")
    stamp(S_U, 16)
    lx = A.newlabel("L_is")
    A(f"s_bitcmp1_b32 s{S_U}, 0\ns_cbranch_scc1 {lx}")
    A(f"s_add_u32 m0, s{S_XS}, s{S_T0+9}")
    for h in range(4):
        cap()
        A(f"buffer_load_dwordx4 v{2+h}, s[{SRD_X}:{SRD_X+3}], s{S_KX} offen offset:{1024*h} lds")
    A(f"""s_add_u32 s{S_XS}, s{S_XS}, 16384
    s_cmp_eq_u32 s{S_XS}, {3*16384}
    s_cselect_b32 s{S_XS}, 0, s{S_XS}""")
    if not mlp:
        A(f"s_add_u32 m0, s{S_SLOT}, s{S_T0+8}")
        for h in range(4):
            cap()
            A(f"buffer_load_dwordx4 v{6+h}, s[{SRD_WA}:{SRD_WA+3}], s{S_KX} offen offset:{1024*h} lds")
        A(f"s_add_u32 m0, m0, 4096")
        cap()
        A(f"buffer_load_dwordx4 v10, s[{SRD_WA}:{SRD_WA+3}], s{S_KX} offen lds\ns_branch {lx}b")
    A.label(lx)
    if mlp:
        for mat, sd in enumerate((SRD_WA, SRD_WB)):
            A(f"s_add_u32 m0, s{S_SLOT}, s{S_T0+8}" if mat == 0 else "s_add_u32 m0, m0, 8192")
            for h in range(2):
                cap()
                A(f"buffer_load_dwordx4 v{6+h}, s[{sd}:{sd+3}], s{S_KW} offen offset:{1024*h} lds")
        A(f"""s_add_u32 s{S_KW}, s{S_KW}, {32*3072}
        s_cmp_eq_u32 s{S_KW}, {20*32*3072}
        s_cselect_b32 s{S_KW}, {64*3072 if C0 else 0}, s{S_KW}
        s_bitcmp1_b32 s{S_U}, 0
        s_cbranch_scc0 {lx}b""")
    else:
        A(f"s_add_u32 m0, s{S_SLOT}, s{S_T0+8}")
        for h in range(4):
            cap()
            A(f"buffer_load_dwordx4 v{6+h}, s[{SRD_WB}:{SRD_WB+3}], s{S_KX} offen offset:{1024*h} lds")
        A(f"s_add_u32 m0, m0, 4096")
        cap()
        A(f"buffer_load_dwordx4 v10, s[{SRD_WB}:{SRD_WB+3}], s{S_KX} offen lds")
    A(f"""s_add_u32 s{S_KX}, s{S_KX}, 128
    s_cmp_eq_u32 s{S_KX}, 1280
    s_cselect_b32 s{S_KX}, {128 if C0 else 0}, s{S_KX}""")
    A.label(f"{lx}b")
    A(f"""s_add_u32 s{S_U}, s{S_U}, 1
    s_add_u32 s{S_FM}, s{S_FM}, 4
    v_add_u32 v{LFQ}, 4, v{LFQ}
    s_mov_b32 m0, s{S_FM}
    ds_read_b32 v{LFD}, v{LFQ}
    s_add_u32 s{S_SLOT}, s{S_SLOT}, {SLOT}
    s_cmp_eq_u32 s{S_SLOT}, {5*SLOT}
    s_cselect_b32 s{S_SLOT}, 0, s{S_SLOT}""")
    cap()
    A(f"""buffer_load_dword v{VZ}, s[{SRD_X}:{SRD_X+3}], 0 offen lds
    s_setpc_b64 s[{S_RET}:{S_RET+1}]""")
    flush_slow()
S_FM = 22
def call_sub(check=True):
    if check:
        A(f"s_swappc_b64 s[{S_RET}:{S_RET+1}], s[{S_SUB}:{S_SUB+1}]")
    else:
        A(f"s_swappc_b64 s[{S_RET}:{S_RET+1}], s[{S_SUBN}:{S_SUBN+1}]")
S_SUBN = 32
def declare_dma(sreg=None):
    if sreg is not None:
        A(f"s_lshl_b32 s{sreg}, s{sreg}, 2\ns_add_u32 s{S_FM}, s{S_FM}, s{sreg}")
    A(f"s_mov_b32 m0, s{S_FM}")
    cap()
    A(f"buffer_load_dword v{VZ}, s[{SRD_X}:{SRD_X+3}], 0 offen lds")

def head_rest(kind):
    mlp = kind == "mlp"
    SLOT = 16384 if mlp else 20480
    flag_init(FLG, S_LW, LFP, FREE, LAX)
    A(f"""s_add_u32 s{S_FM}, s{S_T0}, 4
    v_subrev_u32 v{LFQ}, 8, v{LFP}
    s_getpc_b64 s[{S_SUB}:{S_SUB+1}]
    L_gp_{kind}:
    s_add_u32 s{S_SUBN}, s{S_SUB}, L_subn_{kind}-L_gp_{kind}
    s_addc_u32 s{S_SUBN+1}, s{S_SUB+1}, 0
    s_add_u32 s{S_SUB}, s{S_SUB}, L_sub_{kind}-L_gp_{kind}
    s_addc_u32 s{S_SUB+1}, s{S_SUB+1}, 0
    s_mov_b32 s{S_U}, 2
    s_mov_b32 s{S_SLOT}, {2*SLOT}
    s_mov_b32 s{S_XS}, 16384
    s_mov_b32 m0, s{S_FM}
    s_add_u32 s{S_FM}, s{S_FM}, 4
    buffer_load_dword v{VZ}, s[{SRD_X}:{SRD_X+3}], 0 offen lds""")
    if mlp:
        A(f"s_add_u32 s{S_KW}, s{S_KW}, {32*3072}")
        for mat, sd in enumerate((SRD_WA, SRD_WB)):
            A(f"s_add_u32 m0, s{S_T0+8}, {SLOT + mat*8192}\ns_nop 0")
            for h in range(2):
                A(f"buffer_load_dwordx4 v{6+h}, s[{sd}:{sd+3}], s{S_KW} offen offset:{1024*h} lds")
        A(f"""s_add_u32 s{S_KW}, s{S_KW}, {32*3072}
        s_cmp_eq_u32 s{S_KW}, {20*32*3072}
        s_cselect_b32 s{S_KW}, 0, s{S_KW}""")
    else:
        A(f"s_add_u32 m0, s{S_T0+8}, {SLOT}\ns_nop 0")
        for h in range(4):
            A(f"buffer_load_dwordx4 v{6+h}, s[{SRD_WB}:{SRD_WB+3}], s{S_KX} offen offset:{1024*h} lds")
        A(f"s_add_u32 m0, m0, 4096\ns_nop 0\nbuffer_load_dwordx4 v10, s[{SRD_WB}:{SRD_WB+3}], s{S_KX} offen lds")
    A(f"""s_add_u32 s{S_KX}, s{S_KX}, 128
    s_cmp_eq_u32 s{S_KX}, 1280
    s_cselect_b32 s{S_KX}, 0, s{S_KX}""")
    if C0:
        A(f"""s_add_u32 s{S_T0}, s{S_ROT}, 1
        s_lshl_b32 s{S_KX}, s{S_T0}, 7
        s_mul_i32 s{S_KW}, s{S_T0}, {64*3072}""")
    late_scalars()
    declare_dma()
    ts(1, 2)
    for u in range(2, 5):
        call_sub(False)
    nonce_load()
    if OPT.get("solo", 0) >= 2:
        for u in range(5, 20):
            call_sub()
        A(f"s_mov_b32 s{S_T0+6}, 1")
        declare_dma(S_T0 + 6)
        A("s_waitcnt vmcnt(0)")
        ts_flush(100)
        A("s_endpgm")
    A(f"s_branch L_{kind}_loader")
    issue_sub(kind)

GW = OPT.get('gw', 19)
def g1_main(jobs, gran_loads_, gran_work, nstep, early=None):
    for u in range(5, 20):
        if u == GW:
            A(f"s_setprio {OPT.get('pls', 3)}")
            gran_work()
            A("s_setprio 0")
        call_sub()
        if u >= 6 and u % 2 == 0 or u >= 10:
            jobs.step(nstep)
        if early and OPT.get("tw", 3) == 5 and u == OPT.get("twu", 17):
            touch_w2(233, S_LW)
        if early and u >= 20 - early.n:
            early.step()
        if u == GW - 3:
            assert not jobs.q
            gran_loads_()
    A(f"s_add_u32 s{S_T0+6}, s{S_S2}, 1")
    declare_dma(S_T0 + 6)

def finish():
    A("s_barrier")
    bump_epoch(200)
    ts(9, 2)
    ts_flush(100)
    A("s_endpgm")
    flush_slow()

mark = head_begin()
A(f"s_cmp_eq_u32 s{S_J}, 0\ns_cbranch_scc1 L_ssm_head")
rowpat_load(2, 10, False)
A(f"""s_mul_i32 s{S_T0}, s{S_C}, 163840
s_mul_i32 s{S_T0+1}, s{S_LW}, {32*1280}
s_add_u32 s{S_T0}, s{S_T0}, s{S_T0+1}
v_add_u32 v2, s{S_T0}, v2
v_add_u32 v3, s{S_T0}, v3
v_add_u32 v4, {16*1280-2048}, v2
v_add_u32 v5, {16*1280-2048}, v3
v_lshrrev_b32 v10, 4, v{VL}
s_and_b32 s{S_T0}, s{S_LW}, 1
s_lshl_b32 s{S_T0}, s{S_T0}, 2
v_or_b32 v11, s{S_T0}, v10                ; swizzle
v_lshlrev_b32 v11, 1, v11
v_and_b32 v6, 15, v{VL}
v_xor_b32 v11, v11, v6
v_mul_u32_u24 v10, 3072, v10
v_lshl_add_u32 v10, v11, 4, v10
s_mul_i32 s{S_T0}, s{S_LW}, {8*3072}
s_lshl_b32 s{S_T0+1}, s{S_CB}, 8
s_add_u32 s{S_T0}, s{S_T0}, s{S_T0+1}
v_add_u32 v6, s{S_T0}, v10
v_add_u32 v7, {4*3072-1024}, v6
s_mul_i32 s{S_KX}, s{S_ROT}, {0 if C0 else 128}
s_mul_i32 s{S_KW}, s{S_ROT}, {0 if C0 else 64*3072}
s_lshl_b32 s{S_T0+9}, s{S_LW}, 12
s_lshl_b32 s{S_T0+8}, s{S_LW}, 11
s_add_u32 s{S_T0+8}, s{S_T0+8}, {WRING}
s_mov_b32 m0, s{S_T0+9}
s_waitcnt lgkmcnt(0)
s_load_dword s{S_K}, s[{S_X}:{S_X+1}], 0""")
srd(SRD_X, S_X, 2621440)
for h in range(4):
    A(f"buffer_load_dwordx4 v{2+h}, s[{SRD_X}:{SRD_X+3}], s{S_KX} offen offset:{1024*h} lds")
srd(SRD_WA, S_W1, 1966080)
srd(SRD_WB, S_W3, 1966080)
for mat, sd in enumerate((SRD_WA, SRD_WB)):
    A(f"s_add_u32 m0, s{S_T0+8}, {mat*8192}\ns_nop 0")
    for h in range(2):
        A(f"buffer_load_dwordx4 v{6+h}, s[{sd}:{sd+3}], s{S_KW} offen offset:{1024*h} lds")
head_rest("mlp")
head_end(mark)
A.label("L_mlp_loader")
vm = NOQ
GA, GD = 18, 22
def gran_loads():
    for i in range(4):
        cap()
        A(f"global_load_dwordx4 v[{GD+4*i}:{GD+3+4*i}], v{GA+i}, s[{S_WS}:{S_WS+1}] sc1")
def mlp_setup3():
    A(f"""s_mul_i32 s{S_T0}, s{S_LW}, {1536*8}
    s_lshl_b32 s{S_T0+1}, s{S_CB}, 10
    s_add_u32 s{S_T0}, s{S_T0}, s{S_T0+1}
    s_add_u32 s{S_T0}, s{S_T0}, {WS_CSW}
    s_lshl_b32 s{S_T0+1}, s{S_C}, 10
    s_add_u32 s{S_T0+1}, s{S_T0+1}, {WS_STAT}
    s_lshl_b32 s{S_T0+2}, s{S_TG}, 7
    s_add_u32 s{S_T0+2}, s{S_T0+2}, {WS_STAT}
    s_cmp_eq_u32 s{S_LW}, 2
    s_cselect_b32 s{S_T0+1}, s{S_T0+2}, s{S_T0+1}
    s_cmp_ge_u32 s{S_LW}, 2
    s_cselect_b32 s{S_T0}, s{S_T0+1}, s{S_T0}
    s_cselect_b32 s{S_T0+1}, 0, {3072*8}
    v_lshlrev_b32 v{GA}, 4, v{VL}
    v_add_u32 v{GA}, s{S_T0}, v{GA}
    v_add_u32 v{GA+1}, s{S_T0+1}, v{GA}
    v_add_u32 v{GA+2}, s{S_T0+1}, v{GA+1}
    v_add_u32 v{GA+3}, s{S_T0+1}, v{GA+2}""")
def mlp_gran():
    if True:
        vm.wait("gran")
        lr, lo, lskip, lstat = A.newlabel("L_gr"), A.newlabel("L_gr"), A.newlabel("L_gr"), A.newlabel("L_gr")
        A.label(lr)
        A(f"s_mov_b64 s[{S_M0}:{S_M0+1}], 0")
        for i in range(8):
            A(f"v_cmp_ne_u32 vcc, s{S_NONCE}, v{GD+1+2*i}\ns_nop 1\ns_or_b64 s[{S_M0}:{S_M0+1}], s[{S_M0}:{S_M0+1}], vcc")
        A(f"s_cmp_eq_u64 s[{S_M0}:{S_M0+1}], 0\ns_cbranch_scc1 {lo}")
        gran_loads()
        A("s_waitcnt vmcnt(0)")
        spin_tail(lr, lo, 5)
        A.label(lo)
        A(f"s_cmp_eq_u32 s{S_LW}, 3\ns_cbranch_scc1 {lstat}")
        A(f"""s_cmp_lg_u32 s{S_LW}, 2
        s_cbranch_scc1 {lstat}c
        v_lshlrev_b32 v{GD+1}, 3, v{VL}
        v_add_u32 v{GD+1}, {XL+13312}, v{GD+1}
        ds_write2_b32 v{GD+1}, v{GD}, v{GD+2} offset0:0 offset1:1
        s_branch {lskip}""")
        A.label(f"{lstat}c")
        A(f"""v_add_f32 v{GD}, v{GD}, v{GD+4}
        v_add_f32 v{GD+2}, v{GD+2}, v{GD+6}
        v_add_f32 v{GD+8}, v{GD+8}, v{GD+12}
        v_add_f32 v{GD+10}, v{GD+10}, v{GD+14}
        v_add_f32 v{GD}, v{GD}, v{GD+8}
        v_add_f32 v{GD+1}, v{GD+2}, v{GD+10}
        s_lshl_b32 s{S_T0}, s{S_LW}, 9
        s_add_u32 s{S_T0}, s{S_T0}, {M_CS}
        v_lshlrev_b32 v{GD+2}, 3, v{VL}
        v_add_u32 v{GD+2}, s{S_T0}, v{GD+2}
        ds_write_b64 v{GD+2}, v[{GD}:{GD+1}]
        s_branch {lskip}""")
        A.label(lstat)
        for hrow, p in ((0, GD), (1, GD + 2)):
            o = GD + 4 + 4 * hrow
            A(f"""v_and_b32 v{o+2}, 0xffff0000, v{p}
            v_lshlrev_b32 v{o}, 16, v{p}
            v_rcp_f32 v{o+1}, v{o+2}
            v_mul_f32 v{o+2}, v{o+2}, v{o+2}
            v_mul_f32 v{o+1}, {NLOG2E}, v{o+1}""")
        A(f"""v_lshlrev_b32 v{GD+2}, 5, v{VL}
        v_add_u32 v{GD+2}, {M_ROW}, v{GD+2}
        ds_write_b128 v{GD+2}, v[{GD+4}:{GD+7}]
        ds_write_b128 v{GD+2}, v[{GD+8}:{GD+11}] offset:16""")
        A.label(lskip)
        A("s_waitcnt lgkmcnt(0)")

nonce_ready()
def only2(fn):
    l = A.newlabel("L_nc")
    A(f"s_cmp_lg_u32 s{S_LW}, 2\ns_cbranch_scc1 {l}")
    fn()
    A.label(l)
    return
    yield
def one(fn):
    fn()
    return
    yield
jobs = Jobs()
if CSL:
    assert PB >= 4
    jobs.add(one(cs_by_loader))
jobs.add(one(mlp_setup3))
jobs.add(one(lambda: g2_setup(6, 232)))
def x_tile():
    A(f"""s_lshl_b32 s{S_T0}, s{S_TG}, 4
    s_mul_i32 s{S_T0+1}, s{S_LW}, 24
    s_add_u32 s{S_T0}, s{S_T0}, s{S_T0+1}
    s_mul_i32 s{S_T0}, s{S_T0}, 1280
    s_lshl_b32 s{S_T0+1}, s{S_DCOL}, 1
    s_add_u32 s{S_T0}, s{S_T0}, s{S_T0+1}
    v_lshrrev_b32 v232, 3, v{VL}
    v_mul_u32_u24 v232, 1280, v232
    v_and_b32 v233, 7, v{VL}
    v_lshl_add_u32 v232, v233, 4, v232
    s_mul_i32 s{S_T0+2}, s{S_LW}, 3072""")
    for i in range(3):
        A(f"s_add_u32 m0, s{S_T0+2}, {XL+1024*i}\ns_add_u32 s{S_T0+7}, s{S_T0}, {8*1280*i}")
        cap()
        A(f"buffer_load_dwordx4 v232, s[{SRD_X}:{SRD_X+3}], s{S_T0+7} offen lds")
    A(f"""s_mov_b32 s{S_M0}, s{S_DSK}
    s_mov_b32 s{S_M0+1}, s{S_DSK+1}
    s_mov_b32 s{S_M0+2}, 1280
    s_mov_b32 s{S_M0+3}, 0x20000
    s_mov_b32 m0, {XL+12288}
    v_lshlrev_b32 v233, 4, v{VL}
    buffer_load_dwordx4 v233, s[{S_M0}:{S_M0+3}], s{S_T0+1} offen lds""")
def mg():
    mlp_gran()
    if XE == 2:
        x_tile()
MB = [40, 104, 168, 40, 104, 168]
T1 = OPT.get("thr1", CAP)
class Early:
    def __init__(self):
        self.n, self.ch = OPT.get("en", 0), OPT.get("ech", 2)
        def both():
            yield from g2_load(0, MB[0], CAP)
            yield
            yield from g2_load(1, MB[1], CAP)
        self.g = both()
    def step(self):
        for _ in range(self.ch):
            next(self.g, None)
early = Early()
g1_main(jobs, gran_loads, mg, 1, early)
if OPT.get("tw", 3) == 4:
    touch_w2(233, S_LW)
ts(47, 2)
run(early.g)
A(f"s_lshl_b32 s{S_SLOT}, s{S_S2}, 14")
if OPT.get("ord", 0):
    run(g2_load(2, MB[2], T1))
    g2_put(0, MB[0], 32, 20)
else:
    g2_put(0, MB[0], 16, 20, g2_load(2, MB[2], T1))
g2_put(1, MB[1], 16, 20, g2_load(3, MB[3], T1))
run(g2_load(4, MB[4], THR))
g2_put(2, MB[2], 32, 21 if XE == 2 else 20)
la = A.newlabel("L_k")
A(f"s_cmp_ge_u32 s{S_S2}, 14\ns_cbranch_scc1 {la}")
g2_put(3, MB[3], 16, 20, g2_load(5, MB[5], OPT.get('thr5', THR)))
A(f"s_branch {la}b")
A.label(la)
g2_put(3, MB[3], 16, 20)
A.label(f"{la}b")
A(f"s_cmp_lg_u32 s{S_S2}, 19\ns_cbranch_scc1 {la}c")
poll_until()
A.label(f"{la}c")
g2_put(4, MB[4], 0, 20)
A(f"s_cmp_ge_u32 s{S_S2}, 22\ns_cbranch_scc1 {la}x")
g2_put(5, MB[5], 0, 20)
A.label(f"{la}x")
finish()

mark = head_begin()
A.label("L_ssm_head")
rowpat_load(2, 14, True)
rowpat_load(6, 14, False)
A(f"""s_mul_i32 s{S_T0}, s{S_C}, 163840
s_lshr_b32 s{S_T0+1}, s{S_LW}, 1
s_mul_i32 s{S_T0+1}, s{S_T0+1}, {64*1280}
s_add_u32 s{S_T0}, s{S_T0}, s{S_T0+1}
s_and_b32 s{S_T0+1}, s{S_LW}, 1
s_mul_i32 s{S_T0+1}, s{S_T0+1}, {4*1280}
s_add_u32 s{S_T0}, s{S_T0}, s{S_T0+1}
v_add_u32 v2, s{S_T0}, v2
v_add_u32 v3, s{S_T0}, v3
v_add_u32 v4, {2*1280-2048}, v2
v_add_u32 v5, {2*1280-2048}, v3""")
A(f"""v_add_u32 v7, {1024-8*1280 & 0xffffffff}, v7
s_mul_i32 s{S_T0}, s{S_CB}, {160*1280}
s_mul_i32 s{S_T0+1}, s{S_LW}, {40*1280}
s_add_u32 s{S_T0}, s{S_T0}, s{S_T0+1}
s_bitcmp1_b32 s{S_LW}, 0
s_cselect_b64 vcc, -1, 0
v_add_u32 v6, s{S_T0}, v6
v_add_u32 v7, s{S_T0}, v7
v_cndmask_b32 v12, v6, v7, vcc
v_cndmask_b32 v13, v7, v6, vcc
v_mov_b32 v6, v12
v_add_u32 v7, {8*1280-1024}, v13
v_add_u32 v8, {16*1280-2048}, v12
v_add_u32 v9, {24*1280-3072}, v13
v_add_u32 v10, {32*1280}, v12
s_mul_i32 s{S_KX}, s{S_ROT}, {0 if C0 else 128}
s_lshl_b32 s{S_T0+9}, s{S_LW}, 12
s_mul_i32 s{S_T0+8}, s{S_LW}, 5120
s_add_u32 s{S_T0+8}, s{S_T0+8}, {WRING}
s_mov_b32 m0, s{S_T0+9}
s_waitcnt lgkmcnt(0)
s_load_dword s{S_K}, s[{S_X}:{S_X+1}], 0""")
srd(SRD_X, S_X, 2621440)
for h in range(4):
    A(f"buffer_load_dwordx4 v{2+h}, s[{SRD_X}:{SRD_X+3}], s{S_KX} offen offset:{1024*h} lds")
srd(SRD_WA, S_BRE, 819200)
srd(SRD_WB, S_BIM, 819200)
A(f"s_mov_b32 m0, s{S_T0+8}\ns_nop 0")
for h in range(4):
    A(f"buffer_load_dwordx4 v{6+h}, s[{SRD_WA}:{SRD_WA+3}], s{S_KX} offen offset:{1024*h} lds")
A(f"s_add_u32 m0, m0, 4096\ns_nop 0\nbuffer_load_dwordx4 v10, s[{SRD_WA}:{SRD_WA+3}], s{S_KX} offen lds")
head_rest("ssm")
head_end(mark)
A.label("L_ssm_loader")
CN = 212
LR, LI = 214, 215
L8, L128, KL = 216, 218, 220
def const_loads():
    A(f"""s_lshl_b32 s{S_T0}, s{S_LW}, 6
    v_add_u32 v{CN}, s{S_T0}, v{VL}
    v_min_u32 v{CN}, 159, v{CN}
    s_mul_i32 s{S_T0}, s{S_CB}, 160
    v_add_u32 v110, s{S_T0}, v{CN}
    v_lshlrev_b32 v110, 1, v110
    global_load_ushort v111, v110, s[{S_LRE}:{S_LRE+1}]
    global_load_ushort v112, v110, s[{S_LIM}:{S_LIM+1}]
    global_load_ushort v113, v110, s[{S_LDT}:{S_LDT+1}]""")
def ssm_setup3():
  A(f"""v_cmp_le_u32 vcc, 80, v{CN}
v_mov_b32 v41, 0
v_mov_b32 v42, {640-160}
v_cndmask_b32 v41, v41, v42, vcc
v_lshl_add_u32 v41, v{CN}, 1, v41
s_mul_i32 s{S_T0}, s{S_CB}, 160
v_add_u32 v41, s{S_T0}, v41
v_lshlrev_b32 v41, 3, v41
v_add_u32 v41, {WS_CSB}, v41
s_lshl_b32 s{S_T0+1}, s{S_C}, 10
s_add_u32 s{S_T0+1}, s{S_T0+1}, {WS_STAT}
v_lshlrev_b32 v40, 4, v{VL}
v_add_u32 v40, s{S_T0+1}, v40
s_cmp_eq_u32 s{S_LW}, 3
s_cselect_b64 vcc, -1, 0
s_nop 1
v_cndmask_b32 v40, v41, v40, vcc""")
def cmul(d, a, b, t):
    A(f"""v_mul_f32 v{t}, v{a+1}, v{b+1}
    v_mul_f32 v{t+1}, v{a+1}, v{b}
    v_fma_f32 v{t}, v{a}, v{b}, -v{t}
    v_fma_f32 v{d+1}, v{a}, v{b+1}, v{t+1}
    v_mov_b32 v{d}, v{t}""")
def ssm_consts():
    A(f"""v_lshlrev_b32 v111, 16, v111
    v_lshlrev_b32 v112, 16, v112
    v_lshlrev_b32 v113, 16, v113
    v_mul_f32 v113, {LOG2E}, v113
    v_exp_f32 v113, v113
    v_mul_f32 v114, v111, v111
    v_fma_f32 v114, v112, v112, v114
    v_cvt_pk_bf16_f32 v113, v113, v113
    v_lshlrev_b32 v113, 16, v113              ; dt
    v_rcp_f32 v114, v114
    v_mul_f32 v115, v113, v111
    v_mul_f32 v116, v113, v112
    v_mul_f32 v115, {LOG2E}, v115
    v_mul_f32 v116, 0.15915494, v116
    v_exp_f32 v115, v115
    v_rndne_f32 v117, v116
    v_sub_f32 v116, v116, v117
    v_cos_f32 v117, v116
    v_sin_f32 v116, v116
    v_add_f32 v114, v114, v114
    v_mul_f32 v{LR}, v115, v117
    v_mul_f32 v{LI}, v115, v116
    v_add_f32 v115, -1.0, v{LR}
    v_mul_f32 v116, v{LI}, v112
    v_fma_f32 v116, v115, v111, v116
    v_mul_f32 v117, v115, v112
    v_fma_f32 v117, v{LI}, v111, -v117        ; Im
    v_mul_f32 v118, v116, v114
    v_mul_f32 v119, -v117, v114
    v_lshlrev_b32 v120, 3, v{CN}
    v_add_u32 v120, {M_LAM}, v120
    ds_write_b64 v120, v[{LR}:{LI}]
    ds_write_b64 v120, v[118:119] offset:{M_COEF-M_LAM}
    v_mul_f32 v{KL}, v118, v{LR}
    v_fma_f32 v{KL}, v119, v{LI}, v{KL}
    v_mul_f32 v{KL+1}, v119, v{LR}
    v_fma_f32 v{KL+1}, -v118, v{LI}, v{KL+1}""")
    yield
    cmul(L8, LR, LR, 114)
    cmul(L8, L8, L8, 114)
    cmul(L8, L8, L8, 114)
    cmul(L128, L8, L8, 114)
    for i in range(3):
        cmul(L128, L128, L128, 114)
def ssm_gran():
    if True:
        vm.wait("gran")
        lr, lo, lskip, lstat = A.newlabel("L_gr"), A.newlabel("L_gr"), A.newlabel("L_gr"), A.newlabel("L_gr")
        A.label(lr)
        A(f"""v_cmp_ne_u32 vcc, s{S_NONCE}, v45
        v_cmp_ne_u32 s[{S_M0}:{S_M0+1}], s{S_NONCE}, v47
        s_nop 1
        s_or_b64 s[{S_M0}:{S_M0+1}], s[{S_M0}:{S_M0+1}], vcc
        s_cmp_eq_u64 s[{S_M0}:{S_M0+1}], 0
        s_cbranch_scc1 {lo}
        global_load_dwordx4 v[44:47], v40, s[{S_WS}:{S_WS+1}] sc1
        s_waitcnt vmcnt(0)""")
        spin_tail(lr, lo, 6)
        A.label(lo)
        A(f"""s_cmp_eq_u32 s{S_LW}, 3
        s_cbranch_scc1 {lstat}
        v_mov_b32 v45, v46
        v_lshlrev_b32 v46, 3, v{CN}
        v_add_u32 v46, {M_CS}, v46
        ds_write_b64 v46, v[44:45]
        s_branch {lskip}""")
        A.label(lstat)
        A(f"""v_and_b32 v48, 0xffff0000, v44
        v_and_b32 v49, 0xffff0000, v46
        v_rcp_f32 v48, v48
        v_rcp_f32 v49, v49
        v_lshlrev_b32 v44, 16, v44
        v_lshlrev_b32 v46, 16, v46
        v_and_b32 v50, 32, v{VL}
        v_lshlrev_b32 v50, 1, v50
        v_and_b32 v51, 3, v{VL}
        v_lshl_add_u32 v50, v51, 4, v50
        v_bfe_u32 v51, v{VL}, 3, 2
        v_lshl_add_u32 v50, v51, 2, v50
        v_bfe_u32 v51, v{VL}, 2, 1
        v_add_u32 v50, v50, v51
        v_lshlrev_b32 v50, 2, v50
        v_add_u32 v50, {M_ROW}, v50
        ds_write2_b32 v50, v44, v46 offset0:0 offset1:2
        ds_write2_b32 v50, v48, v49 offset0:128 offset1:130""")
        A.label(lskip)
        A("s_waitcnt lgkmcnt(0)")

nonce_ready()
const_loads()
jobs = Jobs()
jobs.add(one(lambda: None))
jobs.add(ssm_consts())
jobs.add(one(ssm_setup3))
jobs.add(one(lambda: g2_setup(2, 232)))
def gs():
    A(f"global_load_dwordx4 v[44:47], v40, s[{S_WS}:{S_WS+1}] sc1")
g1_main(jobs, gs, ssm_gran, 1)
A(f"s_lshl_b32 s{S_SLOT}, s{S_S2}, 14")
SB = [44, 44, 108, 172, 44, 108]
run(g2_load(0, SB[0], CAP))
g2_put(0, SB[0], 0, 20)
if not OPT.get("l1late", 0):
    run(g2_load(1, SB[1], 16))
A("s_setprio 3\ns_barrier")
ts(4, 2)
lmid = A.newlabel("L_mid")
A(f"s_cmp_eq_u32 s{S_LW}, 3\ns_cbranch_scc1 {lmid}")
ME = 112
ML = 144
MT = 204
A(f"""v_lshlrev_b32 v{MT}, 3, v{CN}
v_add_u32 v{MT}, {E_BASE}, v{MT}""")
for j in range(16):
    A(f"ds_read_b64 v[{ME+2*j}:{ME+2*j+1}], v{MT} offset:{j*1280}")
A(f"""s_lshl_b32 s{S_T0}, s{S_CB}, 4
s_mul_i32 s{S_T0}, s{S_T0}, 2560
s_add_u32 s{S_T0}, s{S_T0}, {WS_SCAN}
v_lshlrev_b32 v{MT+1}, 4, v{CN}
v_add_u32 v{MT+1}, s{S_T0}, v{MT+1}
s_mul_i32 s{S_T0}, s{S_C}, 2560
v_add_u32 v{MT+2}, s{S_T0}, v{MT+1}
v_mov_b32 v{MT+5}, s{S_NONCE}
v_mov_b32 v{MT+7}, s{S_NONCE}""")
def cfma(d, a, b, c, conj_a=False, conj_b=False):
    nb = " neg_hi:[0,1,0]" if conj_b else ""
    if c is None:
        A(f"v_pk_mul_f32 v[{d}:{d+1}], v[{a}:{a+1}], v[{b}:{b+1}] op_sel_hi:[0,1]" + (" neg_hi:[0,1]" if conj_b else ""))
        c = d
    else:
        A(f"v_pk_fma_f32 v[{d}:{d+1}], v[{a}:{a+1}], v[{b}:{b+1}], v[{c}:{c+1}] op_sel_hi:[0,1,1]{nb}")
    slo = 1 ^ conj_a ^ conj_b
    shi = int(conj_a)
    A(f"v_pk_fma_f32 v[{d}:{d+1}], v[{a}:{a+1}], v[{b}:{b+1}], v[{d}:{d+1}] op_sel:[1,1,0] op_sel_hi:[1,0,1] neg_lo:[{slo},0,0] neg_hi:[{shi},0,0]")
for j in range(1, 16):
    if j in (1, 5, 9, 13):
        A(f"s_waitcnt lgkmcnt({max(0, 11 - j + 1 - 0) if j < 13 else 0})")
    cfma(ME + 2 * j, L8, ME + 2 * j - 2, ME + 2 * j)
A(f"""v_mov_b32 v{MT+4}, v{ME+30}
v_mov_b32 v{MT+6}, v{ME+31}
global_store_dwordx4 v{MT+2}, v[{MT+4}:{MT+7}], s[{S_WS}:{S_WS+1}] {['sc1', 'sc0 sc1', 'sc1 nt'][OPT.get('lbs', 0)]}""")
ts(5, 2)
lr, lo, lld, lck, lh = [A.newlabel("L_lb") for _ in range(5)]
def lb_loads(lbl):
    A(f"v_mov_b32 v{MT+3}, v{MT+1}")
    for k in range(15):
        A(f"""s_cmp_le_u32 s{S_C}, {k}
        s_cbranch_scc1 {lbl}
        global_load_dwordx4 v[{ML+4*k}:{ML+4*k+3}], v{MT+3}, s[{S_WS}:{S_WS+1}] {['sc1', 'sc0 sc1', 'sc1 nt', 'sc0 sc1 nt'][OPT.get('lbm', 0)]}
        v_add_u32 v{MT+3}, 2560, v{MT+3}""")
    A.label(lbl)
if not OPT.get("lbd", 1):
    lb_loads(lld)
for j in range(15, 0, -1):
    cfma(ME + 2 * j, KL, ME + 2 * j - 2, None, conj_b=True)
MP = 16
A(f"v_mov_b32 v{MP+2}, v{L8}\nv_sub_f32 v{MP+3}, 0, v{L8+1}")
for j in range(2, 14):
    cfma(MP + 2 * j, MP + 2, MP + 2 * j - 2, None)
A(f"v_mov_b32 v{ME}, 0\nv_mov_b32 v{ME+1}, 0")
if OPT.get("lbd", 1):
    if OPT.get("lbd", 1) > 1:
        A(f"s_sleep {OPT['lbd']}")
    lb_loads(lld)
A.label(lr)
A(f"s_waitcnt vmcnt(0)\ns_mov_b64 s[{S_M0}:{S_M0+1}], 0")
for k in range(15):
    A(f"""s_cmp_le_u32 s{S_C}, {k}
    s_cbranch_scc1 {lck}
    v_cmp_ne_u32 vcc, s{S_NONCE}, v{ML+4*k+1}
    v_cmp_ne_u32 s[{S_M1}:{S_M1+1}], s{S_NONCE}, v{ML+4*k+3}
    s_nop 1
    s_or_b64 s[{S_M0}:{S_M0+1}], s[{S_M0}:{S_M0+1}], vcc
    s_or_b64 s[{S_M0}:{S_M0+1}], s[{S_M0}:{S_M0+1}], s[{S_M1}:{S_M1+1}]""")
A.label(lck)
A(f"s_cmp_eq_u64 s[{S_M0}:{S_M0+1}], 0\ns_cbranch_scc1 {lo}")
lb_loads(A.newlabel("L_lb"))
spin_tail(lr, lo, 7)
A.label(lo)
ts(6, 2)
H = MT + 4
A(f"v_mov_b32 v{H}, 0\nv_mov_b32 v{H+1}, 0")
for k in range(15):
    g = ML + 4 * k
    A(f"""s_cmp_le_u32 s{S_C}, {k}
    s_cbranch_scc1 {lh}
    v_mov_b32 v{g+1}, v{g+2}""")
    cfma(g, L128, H, g)
    A(f"v_mov_b64 v[{H}:{H+1}], v[{g}:{g+1}]")
A.label(lh)
Q = MT + 6
cfma(Q, KL, H, None, conj_b=True)
A(f"v_pk_add_f32 v[{ME}:{ME+1}], v[{ME}:{ME+1}], v[{Q}:{Q+1}]")
A(f"ds_write_b64 v{MT}, v[{ME}:{ME+1}]")
for j in range(1, 16):
    d = ME + 2 * j
    if j == 14:
        cfma(H, MP + 4, Q, None)
    if j < 14:
        cfma(d, MP + 2 * j, Q, d)
    else:
        cfma(d, MP + 2 * (j - 2), H, d)
    A(f"ds_write_b64 v{MT}, v[{d}:{d+1}] offset:{j*1280}")
A("s_waitcnt lgkmcnt(0)")
A.label(lmid)
A("s_setprio 0\ns_barrier")
ts(7, 2)
SC = OPT.get("scap", 4)
if OPT.get("l1late", 0):
    run(g2_load(1, SB[1], SC))
run(g2_load(2, SB[2], SC))
run(g2_load(3, SB[3], OPT.get("scap2", 8)))
A(f"s_cmp_lt_u32 s{S_S2}, 5\ns_cselect_b32 s{S_T0+5}, 20, 21")
g2_put(1, SB[1], 32, f"s{S_T0+5}")
run(g2_load(4, SB[4], 24))
g2_put(2, SB[2], 32, 21)
la = A.newlabel("L_k")
A(f"s_cmp_ge_u32 s{S_S2}, 14\ns_cbranch_scc1 {la}")
run(g2_load(5, SB[5], 24))
g2_put(3, SB[3], 32, 21)
g2_put(4, SB[4], 16, 21)
g2_put(5, SB[5], 0, 21)
A(f"s_branch {la}x")
A.label(la)
A(f"s_cmp_lg_u32 s{S_S2}, 15\ns_cbranch_scc1 {la}p")
poll_until()
A.label(f"{la}p")
g2_put(3, SB[3], 16, 21)
g2_put(4, SB[4], 0, 21)
A.label(f"{la}x")
finish()

A.label("L_end")
A("s_endpgm")
A.label("L_code_end")
A.lines[HEADPOS:HEADPOS] = HEADS
A.lines.insert(0, "L_code_start:")

DOC = """; ---------------------------------------------------------------------------------------------------------
;   GEMM 1 : raw x times [w1 | w3] (192 workgroups, 128 x 256 tiles) or [B_re | B_im] (64 workgroups, 128 x 320).
;            are made once per row / column by side jobs and handed round as {value, tag} granules in d_ws.
;   epilogue : SwiGLU -> H (bf16), or exact chunked scan (local scan, chunk end states exchanged through d_ws,
; ---------------------------------------------------------------------------------------------------------
"""
hdr = open(os.path.join(os.path.dirname(__file__), "header.txt")).read()
print(hdr + f"""; @launch grid=(256,1,1) block=(512,1,1) lds=163840
{DOC}.amdgcn_target "amdgcn-amd-amdhsa--gfx950"
.text
.globl {KNAME}
.p2align 8
.type {KNAME},@function
{KNAME}:""")
print(A.text(), end="")
print(f""".section .rodata,"a"
.p2align 6
.amdhsa_kernel {KNAME}
  .amdhsa_next_free_vgpr 256
  .amdhsa_next_free_sgpr 102
  .amdhsa_accum_offset 256
  .amdhsa_group_segment_fixed_size 0
  .amdhsa_kernarg_size 128
  .amdhsa_user_sgpr_count 2
  .amdhsa_user_sgpr_kernarg_segment_ptr 1
  .amdhsa_system_sgpr_workgroup_id_x 1
.end_amdhsa_kernel""")
```

```python
import sys, os
sys.path.insert(0, os.path.dirname(__file__))
from asmlib import Asm, Queue, vr, sr

OPT = dict(ts=0, stop=0, DA=3, D1=4, D1S=5, timeout=1 << 20, nodma=0, nomfma=0, nobar=0, noread=0, rot=8, rot2=1, pf=0, stash=8, sg1=12, amod=1)
for a in sys.argv[1:]:
    k, v = a.split("=")
    OPT[k] = int(v)
P0 = OPT.get("p0", 3)
TS = OPT["ts"]; STOP = OPT["stop"]; DA = OPT["DA"]; D1 = OPT["D1"]

KNAME = "parallel_sum__ssm_conv_s5__glu_gated_swiglu__prompt_kernel"

WS_E = 0
FSH = OPT.get('fsh', 7)
WS_FLAG = 0xC00000
NREP = OPT.get('nrep', 1)
REPS = 0x20000
NR2 = OPT.get('nr2', 1)
WS_STAT = 0x4000
WS_CSB = 0x8000
WS_CSW = 0x10000
WS_SCAN = 0xD00000
WS_TAB = 0x80000
WS_ACT = 0x100000
WS_TS = 0x1000000

MISC = 151552
WRING = 49152
SCR = 131072
M_ROW = MISC
M_CS = MISC + 2048
M_LAM = MISC + 3584
M_COEF = MISC + 4864
E_BASE = 81920
TR_BASE = 102400

S_X, S_LRE, S_LIM, S_BRE, S_BIM, S_CRE, S_CIM, S_LDT = 4, 6, 8, 10, 12, 14, 16, 18
S_DSK, S_W1, S_W3, S_W2, S_OUT, S_DBG, S_WS = 20, 24, 26, 28, 30, 32, 34
SRD_X, SRD_WA, SRD_WB, SRD_W2, SRD_C, SRD_T = 36, 40, 44, 48, 52, 56
S_XCD, S_IDX, S_C, S_J, S_CB, S_WAVE, S_NONCE = 60, 61, 62, 63, 64, 65, 66
S_HB2, S_DCOL, S_TG = 67, 68, 23
S_ONES = 69
S_T0 = 70
S_SLOT, S_KX, S_KW, S_CNT, S_DELTA = 80, 81, 82, 83, 84
S_AB = 86
S_M0, S_M1 = 88, 90
S_EX = 92
S_TO = 94
S_TS = 96
S_ROT, S_R2A, S_R2B, S_KB, S_KS = 95, 98, 99, 100, 101

A = Asm()
LOG2E = 0x3fb8aa3b
NLOG2E = 0xbfb8aa3b

def ts(idx, vtmp):
    if not TS:
        return

    A(f"""s_memrealtime s[{S_TS}:{S_TS+1}]
    s_waitcnt lgkmcnt(0)
    v_writelane_b32 v255, s{S_TS}, {idx}""")

def tc(idx):
    if not TS:
        return
    A(f"""s_memtime s[{S_TS}:{S_TS+1}]
    s_waitcnt lgkmcnt(0)
    v_writelane_b32 v255, s{S_TS}, {idx}""")

def ts_flush(vtmp):
    if not TS:
        return
    A(f"""s_lshl_b32 s{S_T0}, s2, 3
    s_add_u32 s{S_T0}, s{S_T0}, s{S_WAVE}
    s_lshl_b32 s{S_T0}, s{S_T0}, 8
    s_add_u32 s{S_T0}, s{S_T0}, {WS_TS}
    v_lshlrev_b32 v{vtmp}, 2, v{VL}
    v_add_u32 v{vtmp}, s{S_T0}, v{vtmp}
    global_store_dword v{vtmp}, v255, s[{S_WS}:{S_WS+1}]""")

def srd(d, p, nbytes):
    A(f"""s_mov_b32 s{d}, s{p}
    s_mov_b32 s{d+1}, s{p+1}
    s_mov_b32 s{d+2}, {nbytes}
    s_mov_b32 s{d+3}, 0x20000""")

def srd_sel(d, p1, p0, nbytes):
    A(f"""s_cselect_b32 s{d}, s{p1}, s{p0}
    s_cselect_b32 s{d+1}, s{p1+1}, s{p0+1}
    s_mov_b32 s{d+2}, {nbytes}
    s_mov_b32 s{d+3}, 0x20000""")

def spin_tail(lbl_retry, lbl_ok, code):
    A(f"""s_sleep {OPT.get('nap', 1) if code == 2 else 1}
    s_sub_u32 s{S_TO}, s{S_TO}, 1
    s_cmp_lg_u32 s{S_TO}, 0
    s_cbranch_scc1 {lbl_retry}
    s_mov_b32 s{S_TO}, 1""")

VL = 254
VFO = 253
FLG = MISC + 6144
FREE, AUX, GO = FLG + 2048, FLG + 4096, FLG + 5120
S_K = 3
S_FR = 86
S_LMT = 85
S_RP = 87
SRD_F = 52
VZ = 252
SLOW = []
def flag_test(need, vD, vP, off, pre=None, anylane=False, acc=None, nap=0, split=False):
    ls, lb, lr = A.newlabel("L_sw"), A.newlabel("L_bk"), A.newlabel("L_sr")
    cmp_ = f"v_cmp_ne_u32 vcc, s{S_K}, v{vD}"
    A(f"s_cbranch_vccnz {ls}" if split else f"{cmp_}\ns_cbranch_vccnz {ls}")
    A.label(lb)
    mark = len(A.lines)
    A.label(ls)
    if TS and acc is not None:
        A(f"s_memtime s[{S_TS}:{S_TS+1}]\ns_waitcnt lgkmcnt(0)\ns_sub_u32 s{acc}, s{acc}, s{S_TS}\ns_add_u32 s{acc+1}, s{acc+1}, 1")
        lb2 = lb
        lb = A.newlabel("L_b2")
    A.label(lr)
    if nap:
        A(f"s_sleep {nap}")
    A(f"""ds_read_b32 v{vD}, v{vP} offset:{off}
    s_waitcnt lgkmcnt(0)
    {cmp_}
    s_cbranch_vccz {lb}
    s_sub_u32 s{S_TO}, s{S_TO}, 1
    s_cmp_lg_u32 s{S_TO}, 0
    s_cbranch_scc1 {lr}
    s_mov_b32 s{S_TO}, 1
    s_branch {lb}""")
    if TS and acc is not None:
        A.label(lb)
        A(f"s_memtime s[{S_TS}:{S_TS+1}]\ns_waitcnt lgkmcnt(0)\ns_add_u32 s{acc}, s{acc}, s{S_TS}\ns_branch {lb2}")
    SLOW.extend(A.lines[mark:])
    del A.lines[mark:]
def flag_wait(need, vD, vP, rel=0, nap=0):
    off = rel + 4 * need
    A(f"ds_read_b32 v{vD}, v{vP} offset:{off}\ns_waitcnt lgkmcnt(0)")
    flag_test(need, vD, vP, off, nap=nap)
def next_copy(v, n, step, sreg):
    A(f"""s_add_u32 s{sreg}, s{sreg}, 1
    s_cmp_lt_u32 s{sreg}, {n}
    s_cselect_b32 s{S_T0+7}, {step}, 0
    v_add_u32 v{v}, s{S_T0+7}, v{v}""")
def flush_slow():
    A.lines.extend(SLOW)
    SLOW.clear()
def flag_init(base, wave_sgpr, vP, peer, aux):
    A(f"""s_lshl_b32 s{S_T0}, s{wave_sgpr}, 9
    s_add_u32 s{S_T0}, s{S_T0}, {base}
    v_lshlrev_b32 v{VFO}, 2, v{VL}
    v_add_u32 v{VFO}, s{S_T0}, v{VFO}
    v_mov_b32 v{VZ}, 0
    s_waitcnt lgkmcnt(0)
    v_not_b32 v{vP}, s{S_K}
    ds_write2st64_b32 v{VFO}, v{vP}, v{vP} offset0:0 offset1:1""")
    if aux:
        A(f"""s_lshl_b32 s{S_T0+1}, s{wave_sgpr}, 8
        v_lshlrev_b32 v{aux}, 2, v{VL}
        v_add_u32 v{aux}, s{S_T0+1}, v{aux}
        v_add_u32 v{aux}, {AUX}, v{aux}
        ds_write_b32 v{aux}, v{VZ}""")
    peer_addr(vP, peer)
    A("s_waitcnt lgkmcnt(0)\ns_barrier")
def peer_addr(vP, peer):
    A(f"""v_and_b32 v{vP}, 3, v{VL}
    v_lshlrev_b32 v{vP}, 9, v{vP}
    v_add_u32 v{vP}, {peer + 252}, v{vP}""")


S_LW = 85
A(f"""s_cmp_ge_u32 s2, 256
s_cbranch_scc1 L_end
s_load_dwordx16 s[4:19], s[0:1], 0
s_load_dwordx16 s[20:35], s[0:1], 64
v_lshrrev_b32 v1, 6, v0
v_and_b32 v{VL}, 63, v0
s_and_b32 s{S_XCD}, s2, 7
v_readfirstlane_b32 s{S_WAVE}, v1
s_lshr_b32 s{S_IDX}, s2, 3
s_and_b32 s{S_T0}, s{S_XCD}, 1
s_lshl_b32 s{S_T0}, s{S_T0}, 3
s_and_b32 s{S_T0+1}, s{S_IDX}, 7
s_add_u32 s{S_C}, s{S_T0}, s{S_T0+1}
s_lshr_b32 s{S_J}, s{S_IDX}, 3
s_lshr_b32 s{S_T0+2}, s{S_XCD}, 1
s_mul_i32 s{S_CB}, s{S_T0+2}, 3
s_add_u32 s{S_CB}, s{S_CB}, s{S_J}
s_sub_u32 s{S_CB}, s{S_CB}, 1
s_cmp_eq_u32 s{S_J}, 0
s_cselect_b32 s{S_CB}, s{S_T0+2}, s{S_CB}
""")
if TS:
    A("v_mov_b32 v255, 0")
    ts(0, 2)
RG = OPT["rot"]
C0 = OPT.get("c0", 1)
if RG:
    A(f"""s_lshl_b32 s{S_ROT}, s{S_J}, {1 if RG == 8 else 0}
    s_add_u32 s{S_ROT}, s{S_T0+1}, s{S_ROT}
    s_and_b32 s{S_ROT}, s{S_ROT}, {RG-1}
    s_mul_i32 s{S_ROT}, s{S_ROT}, {9 if C0 else 10}
    s_lshr_b32 s{S_ROT}, s{S_ROT}, {RG.bit_length()-1}""")
else:
    A(f"s_mov_b32 s{S_ROT}, 0")
A(f"""s_cmp_lt_u32 s{S_WAVE}, 4
s_cbranch_scc1 L_compute
s_sub_u32 s{S_LW}, s{S_WAVE}, 4
s_setprio {OPT.get('pl1', 0)}""")

def nonce_load():
    A(f"s_load_dword s{S_NONCE}, s[{S_WS}:{S_WS+1}], {WS_E}")
def late_scalars():
    A(f"""s_sub_u32 s{S_T0}, s{S_IDX}, 8
    s_mul_i32 s{S_T0+1}, s{S_T0}, 13
    s_lshr_b32 s{S_T0+1}, s{S_T0+1}, 6          ; n/5
    s_mul_i32 s{S_T0+2}, s{S_T0+1}, 5
    s_sub_u32 s{S_T0+2}, s{S_T0}, s{S_T0+2}     ; n%5
    s_mul_i32 s{S_TG}, s{S_T0+2}, 6
    s_lshl_b32 s{S_T0+3}, s{S_IDX}, 1
    s_add_u32 s{S_T0+3}, s{S_T0+3}, 16
    s_cmp_lt_u32 s{S_IDX}, 4
    s_cselect_b32 s{S_T0+3}, 30, s{S_T0+3}
    s_min_u32 s{S_T0}, s{S_IDX}, 4
    s_cmp_eq_u32 s{S_J}, 0
    s_cselect_b32 s{S_TG}, s{S_T0+3}, s{S_TG}
    s_cselect_b32 s{S_T0+1}, s{S_T0}, s{S_T0+1}  ; strip
    s_cselect_b32 s{S_T0+2}, 5, s{S_T0+2}
    s_lshr_b32 s{S_T0}, s{S_XCD}, 1
    s_lshl_b32 s{S_T0}, s{S_T0}, 5
    s_add_u32 s{S_TG}, s{S_TG}, s{S_T0}          ; first 16-row tile
    s_lshr_b32 s{S_HB2}, s{S_TG}, 2
    s_lshl_b32 s{S_DCOL}, s{S_T0+1}, 6
    s_and_b32 s{S_T0}, s{S_XCD}, 1
    s_mul_i32 s{S_T0}, s{S_T0}, 320
    s_add_u32 s{S_DCOL}, s{S_DCOL}, s{S_T0}
    s_mov_b32 s{S_ONES}, 0x3f803f80
    s_mov_b32 s{S_TO}, {OPT['timeout']}""")
    if OPT["rot2"]:
        A(f"""s_add_u32 s{S_R2B}, s{S_T0+1}, s{S_T0+2}
        s_lshl_b32 s{S_R2A}, s{S_R2B}, 1
        s_cmp_ge_u32 s{S_R2A}, 12
        s_cselect_b32 s{S_T0+3}, 12, 0
        s_sub_u32 s{S_R2A}, s{S_R2A}, s{S_T0+3}
        s_lshl_b32 s{S_R2B}, s{S_R2B}, 1
        s_cmp_ge_u32 s{S_R2B}, 10
        s_cselect_b32 s{S_T0+3}, 10, 0
        s_sub_u32 s{S_R2B}, s{S_R2B}, s{S_T0+3}""")
    else:
        A(f"s_mov_b32 s{S_R2A}, 0\ns_mov_b32 s{S_R2B}, 0")
for n_ in range(24):
    assert (n_ * 13) >> 6 == n_ // 5

HEADPOS = len(A.lines)
HEADS = []

def dpp_reduce16(regs):
    for sh in (8, 4, 2, 1):
        A("s_nop 1")
        for r in regs:
            A(f"v_add_f32_dpp v{r}, v{r}, v{r} row_ror:{sh} row_mask:0xf bank_mask:0xf")

def nonce_ready():
    A(f"""s_waitcnt lgkmcnt(0)
    s_add_u32 s{S_NONCE}, s{S_NONCE}, 1""")

def sum_bf16(regs, acc, sq=None, t=None):
    for k, r in enumerate(regs):
        if k and k % (5 if sq is not None else 8) == 0:
            yield
        A(f"v_lshlrev_b32 v{t}, 16, v{r}")
        A(f"v_and_b32 v{r}, 0xffff0000, v{r}")
        if k == 0:
            A(f"v_mov_b32 v{acc}, v{t}\nv_mov_b32 v{acc+1}, v{r}")
            if sq is not None:
                A(f"v_mul_f32 v{sq}, v{t}, v{t}\nv_mul_f32 v{sq+1}, v{r}, v{r}")
        else:
            A(f"v_add_f32 v{acc}, v{acc}, v{t}\nv_add_f32 v{acc+1}, v{acc+1}, v{r}")
            if sq is not None:
                A(f"v_fmac_f32 v{sq}, v{t}, v{t}\nv_fmac_f32 v{sq+1}, v{r}, v{r}")
    A(f"v_add_f32 v{acc}, v{acc}, v{acc+1}")
    if sq is not None:
        A(f"v_add_f32 v{sq}, v{sq}, v{sq+1}")

def reduce32(regs):
    dpp_reduce16(regs)
    A("s_nop 1")
    for r in regs:
        A(f"v_add_f32_dpp v{r}, v{r}, v{r} row_bcast:15 row_mask:0xa bank_mask:0xf")

def stat_loads(vm, T):
    A(f"""v_lshrrev_b32 v{T+10}, 5, v{VL}
    s_lshl_b32 s{S_T0}, s2, 3
    s_lshl_b32 s{S_T0+1}, s{S_LW}, 1
    s_add_u32 s{S_T0}, s{S_T0}, s{S_T0+1}
    v_add_u32 v{T+10}, s{S_T0}, v{T+10}
    v_and_b32 v{T+11}, 31, v{VL}
    v_mul_u32_u24 v{T+12}, 1280, v{T+10}
    v_lshl_add_u32 v{T+12}, v{T+11}, 3, v{T+12}""")
    for i in range(5):
        A(f"global_load_dwordx2 v[{T+2*i}:{T+2*i+1}], v{T+12}, s[{S_X}:{S_X+1}] offset:{256*i}")
        vm.issue("stat")

def stat_work(vm, T):
    vm.wait("stat")
    a, q = T + 12, T + 14
    yield from sum_bf16(list(range(T, T + 10)), a, q, T + 16)
    yield
    reduce32([a, q])
    yield
    A(f"""v_mul_f32 v{a}, 0x3acccccd, v{a}      ; mean
    v_mul_f32 v{q}, 0x3acccccd, v{q}
    v_fma_f32 v{q}, -v{a}, v{a}, v{q}
    v_max_f32 v{q}, 0, v{q}
    v_cvt_pk_bf16_f32 v{q}, v{q}, v{q}
    v_lshlrev_b32 v{q}, 16, v{q}
    v_add_f32 v{q}, 0x3727c5ac, v{q}
    v_cvt_pk_bf16_f32 v{q}, v{q}, v{q}
    v_lshlrev_b32 v{q}, 16, v{q}
    v_sqrt_f32 v{q}, v{q}
    v_lshlrev_b32 v{T+10}, 3, v{T+10}
    v_add_u32 v{T+10}, {WS_STAT}, v{T+10}
    v_cvt_pk_bf16_f32 v{a}, v{a}, v{q}
    v_mov_b32 v{a+1}, s{S_NONCE}
    v_cmp_eq_u32 vcc, 16, v{T+11}
    s_and_saveexec_b64 s[{S_EX}:{S_EX+1}], vcc
    global_store_dwordx2 v{T+10}, v[{a}:{a+1}], s[{S_WS}:{S_WS+1}] sc1
    s_mov_b64 exec, s[{S_EX}:{S_EX+1}]""")
    vm.issue("pub")

S_CS0 = 86
def colsum_loads(T):
    A(f"""s_mul_i32 s{S_T0}, s{S_C}, 12
    s_add_u32 s{S_T0}, s{S_T0}, s{S_CB}            ; sigma
    s_lshr_b32 s{S_T0+1}, s{S_T0}, 2               ; strip
    s_and_b32 s{S_T0+2}, s{S_T0}, 3                ; k quarter
    s_cmp_ge_u32 s{S_T0+1}, 24""")
    srd_sel(SRD_T, S_W3, S_W1, 1966080)
    A(f"""s_cselect_b32 s{S_T0+3}, {24*128}, 0
    s_lshl_b32 s{S_T0+4}, s{S_T0+1}, 7
    s_sub_u32 s{S_T0+4}, s{S_T0+4}, s{S_T0+3}
    s_mul_i32 s{S_T0+5}, s{S_T0+2}, {160*3072}
    s_add_u32 s{S_T0+4}, s{S_T0+4}, s{S_T0+5}      ; soffset
    s_mul_i32 s{S_CS0}, s{S_T0+2}, {3072*8}
    s_lshl_b32 s{S_T0+1}, s{S_T0+1}, 9
    s_add_u32 s{S_CS0}, s{S_CS0}, s{S_T0+1}
    s_add_u32 s{S_CS0}, s{S_CS0}, {WS_CSW}
    v_lshrrev_b32 v{T}, 3, v{VL}
    v_and_b32 v{T+1}, 7, v{VL}
    v_mul_u32_u24 v{T}, 3072, v{T}
    v_lshl_add_u32 v{T}, v{T+1}, 4, v{T}""")
    for i in range(20):
        if i % 4 == 0:
            A(f"s_mov_b32 m0, {SCR + 1024*i}")
        A(f"""s_add_u32 s{S_T0+7}, s{S_T0+4}, {8*3072*i - 1024*(i%4)}
        s_waitcnt vmcnt({OPT.get("cap", 7)})
        buffer_load_dwordx4 v{T}, s[{SRD_T}:{SRD_T+3}], s{S_T0+7} offen offset:{1024*(i%4)} lds""")

def colsum_work(T):
    A(f"""v_lshrrev_b32 v{T+2}, 4, v{VL}
    v_lshlrev_b32 v{T+3}, 5, v{T+2}
    v_lshlrev_b32 v{T+2}, 10, v{T+2}
    v_bfe_u32 v{T+1}, v{VL}, 2, 2
    v_lshl_add_u32 v{T+2}, v{T+1}, 7, v{T+2}
    v_and_b32 v{T+1}, 3, v{VL}
    v_lshl_add_u32 v{T+2}, v{T+1}, 3, v{T+2}
    v_add_u32 v{T+2}, {SCR}, v{T+2}
    v_add_u32 v{T+3}, s{S_CS0}, v{T+3}""")
    for i in range(4):
        A(f"v_mov_b32 v{T+4+i}, s{S_ONES}")
    F = T + 24
    for u in range(4):
        for ks in range(5):
            b = F + (u * 5 + ks) * 4
            A(f"ds_read_b64_tr_b16 v[{b}:{b+1}], v{T+2} offset:{ks*4096+u*32}")
            A(f"ds_read_b64_tr_b16 v[{b+2}:{b+3}], v{T+2} offset:{ks*4096+u*32+512}")
    A("s_waitcnt lgkmcnt(0)")
    for ks in range(5):
        for u in range(4):
            b = F + (u * 5 + ks) * 4
            d = T + 8 + 4 * u
            cin = "0" if ks == 0 else f"v[{d}:{d+3}]"
            A(f"v_mfma_f32_16x16x32_bf16 v[{d}:{d+3}], v[{b}:{b+3}], v[{T+4}:{T+7}], {cin}")
    A(f"""v_and_b32 v{T+1}, 15, v{VL}
    v_cmp_eq_u32 vcc, 0, v{T+1}
    s_nop 7""")
    for u in range(4):
        for h in range(2):
            o = F + (u * 2 + h) * 4
            A(f"""v_mov_b32 v{o}, v{T+8+4*u+2*h}
            v_mov_b32 v{o+1}, s{S_NONCE}
            v_mov_b32 v{o+2}, v{T+9+4*u+2*h}
            v_mov_b32 v{o+3}, s{S_NONCE}""")
    A(f"s_and_saveexec_b64 s[{S_EX}:{S_EX+1}], vcc")
    for u in range(4):
        for h in range(2):
            o = F + (u * 2 + h) * 4
            A(f"global_store_dwordx4 v{T+3}, v[{o}:{o+3}], s[{S_WS}:{S_WS+1}] offset:{u*128+h*16} sc1")
    A(f"s_mov_b64 exec, s[{S_EX}:{S_EX+1}]")

def rowsum_loads(vm, T):
    A(f"""s_lshl_b32 s{S_T0}, s{S_C}, 2
    s_add_u32 s{S_T0}, s{S_T0}, s{S_CB}            ; sigma'
    s_mul_i32 s{S_T0+1}, s{S_T0}, 20
    s_mul_i32 s{S_T0+2}, s{S_LW}, 5
    s_add_u32 s{S_T0+1}, s{S_T0+1}, s{S_T0+2}
    s_cmp_ge_u32 s{S_T0}, 32
    s_cselect_b32 s{S_T0+4}, s{S_BIM}, s{S_BRE}
    s_cselect_b32 s{S_T0+5}, s{S_BIM+1}, s{S_BRE+1}
    s_cselect_b32 s{S_T0+3}, 640, 0
    s_sub_u32 s{S_T0+1}, s{S_T0+1}, s{S_T0+3}
    v_lshrrev_b32 v{T+33}, 5, v{VL}
    v_add_u32 v{T+33}, s{S_T0+1}, v{T+33}
    v_and_b32 v{T+34}, 31, v{VL}""")
    for p in range(3):
        A(f"""v_add_u32 v{T+30+p}, {2*p}, v{T+33}
        v_min_u32 v{T+30+p}, 639, v{T+30+p}
        v_mul_u32_u24 v{T+35}, 1280, v{T+30+p}
        v_lshl_add_u32 v{T+35}, v{T+34}, 3, v{T+35}
        v_add_u32 v{T+30+p}, s{S_T0+3}, v{T+30+p}""")
        for i in range(5):
            b = T + 10 * p + 2 * i
            A(f"global_load_dwordx2 v[{b}:{b+1}], v{T+35}, s[{S_T0+4}:{S_T0+5}] offset:{256*i}")
            vm.issue("rows")

def rowsum_work(vm, T):
    vm.wait("rows")
    for p in range(3):
        yield from sum_bf16(list(range(T + 10 * p, T + 10 * p + 10)), T + 36 + 2 * p, None, T + 35)
    yield
    reduce32([T + 36, T + 38, T + 40])
    for p in range(3):
        A(f"""v_mov_b32 v{T+37+2*p}, s{S_NONCE}
        v_lshlrev_b32 v{T+30+p}, 3, v{T+30+p}
        v_add_u32 v{T+30+p}, {WS_CSB}, v{T+30+p}""")
    A(f"""v_cmp_eq_u32 vcc, 16, v{T+34}
    s_and_saveexec_b64 s[{S_EX}:{S_EX+1}], vcc""")
    for p in range(3):
        A(f"global_store_dwordx2 v{T+30+p}, v[{T+36+2*p}:{T+37+2*p}], s[{S_WS}:{S_WS+1}] sc1")
        vm.issue("pub")
    A(f"s_mov_b64 exec, s[{S_EX}:{S_EX+1}]")

def side_stats(T, filler):
    A(f"""v_lshrrev_b32 v{T+20}, 4, v{VL}
    s_lshl_b32 s{S_T0}, s2, 3
    s_lshl_b32 s{S_T0+1}, s{S_WAVE}, 2
    s_add_u32 s{S_T0}, s{S_T0}, s{S_T0+1}
    v_add_u32 v{T+20}, s{S_T0}, v{T+20}          ; row
    v_and_b32 v{T+21}, 15, v{VL}
    v_mul_u32_u24 v{T+22}, 1280, v{T+20}
    v_lshl_add_u32 v{T+22}, v{T+21}, 4, v{T+22}""")
    for i in range(5):
        A(f"global_load_dwordx4 v[{T+4*i}:{T+4*i+3}], v{T+22}, s[{S_X}:{S_X+1}] offset:{256*i}")
    filler()
    A(f"""v_mov_b32 v{T+24}, 0
    v_mov_b32 v{T+25}, 0
    v_mov_b32 v{T+26}, 0
    v_mov_b32 v{T+27}, 0""")
    nonce_ready()
    for i in range(5):
        A(f"s_waitcnt vmcnt({4-i})")
        for d in range(4):
            r = T + 4 * i + d
            A(f"v_dot2c_f32_bf16 v{T+24+2*(d&1)}, s{S_ONES}, v{r}")
            A(f"v_dot2c_f32_bf16 v{T+25+2*(d&1)}, v{r}, v{r}")
    A(f"""s_nop 3
    v_add_f32 v{T+24}, v{T+24}, v{T+26}
    v_add_f32 v{T+25}, v{T+25}, v{T+27}""")
    dpp_reduce16([T + 24, T + 25])
    A(f"""v_mul_f32 v{T+24}, 0x3acccccd, v{T+24}      ; mean
    v_mul_f32 v{T+25}, 0x3acccccd, v{T+25}
    v_fma_f32 v{T+25}, -v{T+24}, v{T+24}, v{T+25}
    v_max_f32 v{T+25}, 0, v{T+25}
    v_cvt_pk_bf16_f32 v{T+25}, v{T+25}, v{T+25}
    v_lshlrev_b32 v{T+25}, 16, v{T+25}
    v_add_f32 v{T+25}, 0x3727c5ac, v{T+25}
    v_cvt_pk_bf16_f32 v{T+25}, v{T+25}, v{T+25}
    v_lshlrev_b32 v{T+25}, 16, v{T+25}
    v_sqrt_f32 v{T+25}, v{T+25}
    v_lshlrev_b32 v{T+20}, 3, v{T+20}
    v_add_u32 v{T+20}, {WS_STAT}, v{T+20}
    v_cvt_pk_bf16_f32 v{T+26}, v{T+24}, v{T+25}
    v_mov_b32 v{T+27}, s{S_NONCE}
    v_cmp_eq_u32 vcc, 0, v{T+21}
    s_and_saveexec_b64 s[{S_EX}:{S_EX+1}], vcc
    global_store_dwordx2 v{T+20}, v[{T+26}:{T+27}], s[{S_WS}:{S_WS+1}] sc1
    s_mov_b64 exec, s[{S_EX}:{S_EX+1}]""")

def side_colsum_mlp(T, filler):
    A(f"""s_mul_i32 s{S_T0}, s{S_C}, 12
    s_add_u32 s{S_T0}, s{S_T0}, s{S_CB}            ; sigma
    s_lshr_b32 s{S_T0+1}, s{S_T0}, 1               ; strip
    s_and_b32 s{S_T0+2}, s{S_T0}, 1
    s_lshl_b32 s{S_T0+2}, s{S_T0+2}, 1
    s_add_u32 s{S_T0+2}, s{S_T0+2}, s{S_WAVE}
    s_sub_u32 s{S_T0+2}, s{S_T0+2}, 2              ; k quarter
    s_cmp_ge_u32 s{S_T0+1}, 48""")
    srd_sel(SRD_T, S_W3, S_W1, 1966080)
    A(f"""s_cselect_b32 s{S_T0+3}, 48, 0
    s_cselect_b32 s{S_T0+6}, 1536, 0
    s_sub_u32 s{S_T0+1}, s{S_T0+1}, s{S_T0+3}
    s_lshl_b32 s{S_T0+1}, s{S_T0+1}, 5             ; col0
    s_mul_i32 s{S_T0+4}, s{S_T0+2}, {160*3072}
    s_lshl_b32 s{S_T0+5}, s{S_T0+1}, 1
    s_add_u32 s{S_T0+4}, s{S_T0+4}, s{S_T0+5}      ; soffset
    s_sub_u32 s{S_T0+5}, s{S_WAVE}, 2
    s_mul_i32 s{S_T0+5}, s{S_T0+5}, 10240
    s_add_u32 s{S_T0+5}, s{S_T0+5}, {SCR}
    v_lshrrev_b32 v{T}, 2, v{VL}
    v_and_b32 v{T+1}, 3, v{VL}
    v_mul_u32_u24 v{T}, 3072, v{T}
    v_lshl_add_u32 v{T}, v{T+1}, 4, v{T}""")
    for i in range(10):
        A(f"""s_add_u32 m0, s{S_T0+5}, {1024*i}
        s_add_u32 s{S_T0+7}, s{S_T0+4}, {16*3072*i}
        buffer_load_dwordx4 v{T}, s[{SRD_T}:{SRD_T+3}], s{S_T0+7} offen lds""")
    filler()
    A(f"""v_lshrrev_b32 v{T+2}, 4, v{VL}
    v_lshlrev_b32 v{T+2}, 9, v{T+2}
    v_bfe_u32 v{T+3}, v{VL}, 2, 2
    v_lshl_add_u32 v{T+2}, v{T+3}, 6, v{T+2}
    v_lshl_add_u32 v{T+2}, v{T+1}, 3, v{T+2}
    v_add_u32 v{T+2}, s{S_T0+5}, v{T+2}
    v_mov_b32 v{T+4}, s{S_ONES}
    v_mov_b32 v{T+5}, s{S_ONES}
    v_mov_b32 v{T+6}, s{S_ONES}
    v_mov_b32 v{T+7}, s{S_ONES}""")
    A(f"""s_mul_i32 s{S_T0+2}, s{S_T0+2}, 3072
    s_add_u32 s{S_T0+2}, s{S_T0+2}, s{S_T0+6}
    s_add_u32 s{S_T0+2}, s{S_T0+2}, s{S_T0+1}
    s_lshl_b32 s{S_T0+2}, s{S_T0+2}, 3
    s_add_u32 s{S_T0+2}, s{S_T0+2}, {WS_CSW}
    v_lshrrev_b32 v{T+3}, 4, v{VL}
    v_lshlrev_b32 v{T+3}, 5, v{T+3}
    v_add_u32 v{T+3}, s{S_T0+2}, v{T+3}""")
    nonce_ready()
    A("s_waitcnt vmcnt(0)")
    F = T + 16
    for ks in range(5):
        for u in range(2):
            b = F + (ks * 2 + u) * 4
            A(f"ds_read_b64_tr_b16 v[{b}:{b+1}], v{T+2} offset:{ks*2048+u*32}")
            A(f"ds_read_b64_tr_b16 v[{b+2}:{b+3}], v{T+2} offset:{ks*2048+u*32+256}")
    A("s_waitcnt lgkmcnt(0)")
    for ks in range(5):
        for u in range(2):
            b = F + (ks * 2 + u) * 4
            cin = "0" if ks == 0 else f"v[{T+8+4*u}:{T+11+4*u}]"
            A(f"v_mfma_f32_16x16x32_bf16 v[{T+8+4*u}:{T+11+4*u}], v[{b}:{b+3}], v[{T+4}:{T+7}], {cin}")
    A("s_nop 7\ns_nop 1")
    for u in range(2):
        for h in range(2):
            o = F + (u * 2 + h) * 4
            A(f"""v_mov_b32 v{o}, v{T+8+4*u+2*h}
            v_mov_b32 v{o+1}, s{S_NONCE}
            v_mov_b32 v{o+2}, v{T+9+4*u+2*h}
            v_mov_b32 v{o+3}, s{S_NONCE}""")
    A(f"""v_and_b32 v{T+1}, 15, v{VL}
    v_cmp_eq_u32 vcc, 0, v{T+1}
    s_and_saveexec_b64 s[{S_EX}:{S_EX+1}], vcc""")
    for u in range(2):
        for h in range(2):
            o = F + (u * 2 + h) * 4
            A(f"global_store_dwordx4 v{T+3}, v[{o}:{o+3}], s[{S_WS}:{S_WS+1}] offset:{u*128+h*16} sc1")
    A(f"s_mov_b64 exec, s[{S_EX}:{S_EX+1}]")

def side_rowsum_ssm(T, filler):
    A(f"""s_lshl_b32 s{S_T0}, s{S_C}, 2
    s_add_u32 s{S_T0}, s{S_T0}, s{S_CB}            ; sigma'
    s_mul_i32 s{S_T0+1}, s{S_T0}, 20
    s_sub_u32 s{S_T0+2}, s{S_WAVE}, 2
    s_lshl_b32 s{S_T0+2}, s{S_T0+2}, 3
    s_add_u32 s{S_T0+1}, s{S_T0+1}, s{S_T0+2}
    s_cmp_ge_u32 s{S_T0}, 32
    s_cselect_b32 s{S_T0+4}, s{S_BIM}, s{S_BRE}
    s_cselect_b32 s{S_T0+5}, s{S_BIM+1}, s{S_BRE+1}
    s_cselect_b32 s{S_T0+3}, 640, 0
    s_sub_u32 s{S_T0+3}, s{S_T0+1}, s{S_T0+3}
    v_lshrrev_b32 v{T+60}, 4, v{VL}
    v_and_b32 v{T+61}, 15, v{VL}
    v_add_u32 v{T+62}, s{S_T0+3}, v{T+60}
    v_mul_u32_u24 v{T+62}, 1280, v{T+62}
    v_lshl_add_u32 v{T+62}, v{T+61}, 4, v{T+62}""")
    for p in range(3):
        for i in range(5):
            b = T + 20 * p + 4 * i
            A(f"global_load_dwordx4 v[{b}:{b+3}], v{T+62}, s[{S_T0+4}:{S_T0+5}] offset:{256*i}")
        if p < 2:
            A(f"v_add_u32 v{T+62}, {4*1280}, v{T+62}")
    filler()
    for p in range(3):
        A(f"v_mov_b32 v{T+64+2*p}, 0")
    A(f"""v_add_u32 v{T+60}, s{S_T0+1}, v{T+60}
    v_lshlrev_b32 v{T+60}, 3, v{T+60}
    v_add_u32 v{T+60}, {WS_CSB}, v{T+60}""")
    nonce_ready()
    for p in range(3):
        A(f"s_waitcnt vmcnt({10-5*p})")
        for d in range(20):
            A(f"v_dot2c_f32_bf16 v{T+64+2*p}, s{S_ONES}, v{T+20*p+d}")
    A("s_nop 3")
    dpp_reduce16([T + 64, T + 66, T + 68])
    for p in range(3):
        A(f"v_mov_b32 v{T+65+2*p}, s{S_NONCE}")
    A(f"""v_cmp_eq_u32 vcc, 0, v{T+61}
    s_and_saveexec_b64 s[{S_EX}:{S_EX+1}], vcc""")
    for p in range(3):
        A(f"global_store_dwordx2 v{T+60}, v[{T+64+2*p}:{T+65+2*p}], s[{S_WS}:{S_WS+1}] offset:{32*p} sc1")
    A(f"s_mov_b64 exec, s[{S_EX}:{S_EX+1}]")


SJ = 200
PA, PB = OPT.get('pa', 2), OPT.get('pb', 5)
def rows16_loads(T, rowreg, ptr):
    A(f"""v_and_b32 v{T+20}, 15, v{VL}
    v_mul_u32_u24 v{T+21}, 1280, v{rowreg}
    v_lshl_add_u32 v{T+21}, v{T+20}, 4, v{T+21}""")
    for i in range(5):
        A(f"global_load_dwordx4 v[{T+4*i}:{T+4*i+3}], v{T+21}, s[{ptr}:{ptr+1}] offset:{256*i}")
def stat_finish(a, q, rowreg, lanereg, lane):
    A(f"""v_mul_f32 v{a}, 0x3acccccd, v{a}      ; mean
    v_mul_f32 v{q}, 0x3acccccd, v{q}
    v_fma_f32 v{q}, -v{a}, v{a}, v{q}
    v_max_f32 v{q}, 0, v{q}
    v_cvt_pk_bf16_f32 v{q}, v{q}, v{q}
    v_lshlrev_b32 v{q}, 16, v{q}
    v_add_f32 v{q}, 0x3727c5ac, v{q}
    v_cvt_pk_bf16_f32 v{q}, v{q}, v{q}
    v_lshlrev_b32 v{q}, 16, v{q}
    v_sqrt_f32 v{q}, v{q}
    v_lshlrev_b32 v{rowreg}, 3, v{rowreg}
    v_add_u32 v{rowreg}, {WS_STAT}, v{rowreg}
    v_cvt_pk_bf16_f32 v{a}, v{a}, v{q}
    v_mov_b32 v{a+1}, s{S_NONCE}
    v_cmp_eq_u32 vcc, {lane}, v{lanereg}""")
def own_rows(dst):
    A(f"""s_lshr_b32 s{dst}, s{S_XCD}, 1
    s_lshl_b32 s{dst}, s{dst}, 2
    s_add_u32 s{dst}, s{dst}, s{S_J}
    s_lshl_b32 s{dst}, s{dst}, 3
    s_lshl_b32 s{dst+1}, s{S_C}, 7
    s_add_u32 s{dst}, s{dst}, s{dst+1}""")
def mlp_rows_loads():
    A(f"""v_lshrrev_b32 v242, 4, v{VL}
    s_lshl_b32 s{S_T0+1}, s{S_WAVE}, 2
    v_add_u32 v242, s{S_T0+1}, v242
    s_sub_u32 s{S_T0}, s{S_IDX}, 8
    s_min_u32 s{S_T0}, s{S_T0}, 19
    s_lshl_b32 s{S_T0}, s{S_T0}, 3
    s_lshr_b32 s{S_T0+1}, s{S_XCD}, 1
    s_mul_i32 s{S_T0+1}, s{S_T0+1}, 160
    s_add_u32 s{S_T0+2}, s{S_T0}, s{S_T0+1}
    s_bitcmp1_b32 s{S_XCD}, 0
    s_cselect_b32 s{S_T0+4}, s{S_BIM}, s{S_BRE}
    s_cselect_b32 s{S_T0+5}, s{S_BIM+1}, s{S_BRE+1}
    s_cselect_b32 s{S_T0+3}, 640, 0
    v_add_u32 v244, s{S_T0+2}, v242
    v_add_u32 v243, s{S_T0+3}, v244""")
    own_rows(S_T0)
    A(f"v_add_u32 v242, s{S_T0}, v242")
    rows16_loads(SJ, 242, S_X)
    rows16_loads(SJ + 20, 244, S_T0 + 4)
def mlp_rows_work():
    a, q, r = 244, 246, 228
    A(f"v_mov_b32 v{a}, 0\nv_mov_b32 v{q}, 0\nv_mov_b32 v{a+1}, 0\nv_mov_b32 v{q+1}, 0\ns_waitcnt vmcnt({2*(PB-PA)})")
    for d in range(20):
        A(f"v_dot2c_f32_bf16 v{a}, s{S_ONES}, v{SJ+d}")
        A(f"v_dot2c_f32_bf16 v{q}, v{SJ+d}, v{SJ+d}")
        A(f"v_dot2c_f32_bf16 v{[a+1, q+1][d % 2]}, s{S_ONES}, v{SJ+20+d}")
    A(f"s_nop 2\nv_add_f32 v{SJ}, v{a+1}, v{q+1}")
    dpp_reduce16([a, q, SJ])
    stat_finish(a, q, 242, SJ + 40, 0)
    A(f"""v_mov_b32 v{SJ+1}, s{S_NONCE}
    v_lshlrev_b32 v243, 3, v243
    v_add_u32 v243, {WS_CSB}, v243
    s_and_saveexec_b64 s[{S_EX}:{S_EX+1}], vcc
    global_store_dwordx2 v242, v[{a}:{a+1}], s[{S_WS}:{S_WS+1}] sc1
    global_store_dwordx2 v243, v[{SJ}:{SJ+1}], s[{S_WS}:{S_WS+1}] sc1
    s_mov_b64 exec, s[{S_EX}:{S_EX+1}]""")
def cs_scalars(wreg, wsub):
    A(f"""s_and_b32 s{S_T0}, s{S_IDX}, 3
    s_lshl_b32 s{S_T0+1}, s{S_CB}, 2
    s_add_u32 s{S_T0+1}, s{S_T0+1}, s{S_T0}
    s_bitcmp1_b32 s{S_IDX}, 2
    s_cselect_b32 s{S_T0}, 48, 0
    s_add_u32 s{S_T0+1}, s{S_T0+1}, s{S_T0}        ; strip : 32 columns of this workgroup's own tile
    s_and_b32 s{S_T0+2}, s{S_XCD}, 1
    s_lshl_b32 s{S_T0+2}, s{S_T0+2}, 1
    s_sub_u32 s{S_T0+5}, s{wreg}, {wsub}
    s_add_u32 s{S_T0+2}, s{S_T0+2}, s{S_T0+5}      ; k quarter
    s_mul_i32 s{S_T0+5}, s{S_T0+5}, 10240
    s_add_u32 s{S_T0+5}, s{S_T0+5}, {SCR}""")
def cs_dma(T, first, n, capped):
    A(f"s_cmp_ge_u32 s{S_T0+1}, 48")
    srd_sel(SRD_T, S_W3, S_W1, 1966080)
    A(f"""s_cselect_b32 s{S_T0+3}, {48*64}, 0
    s_lshl_b32 s{S_T0+4}, s{S_T0+1}, 6
    s_sub_u32 s{S_T0+4}, s{S_T0+4}, s{S_T0+3}
    s_mul_i32 s{S_T0+3}, s{S_T0+2}, {160*3072}
    s_add_u32 s{S_T0+4}, s{S_T0+4}, s{S_T0+3}      ; soffset
    v_lshrrev_b32 v{T}, 2, v{VL}
    v_and_b32 v{T+1}, 3, v{VL}
    v_mul_u32_u24 v{T}, 3072, v{T}
    v_lshl_add_u32 v{T}, v{T+1}, 4, v{T}""")
    if first is not None:
        A(f"""s_mul_i32 s{S_T0+3}, s{first}, {5*16*3072}
        s_add_u32 s{S_T0+4}, s{S_T0+4}, s{S_T0+3}
        s_mul_i32 s{S_T0+3}, s{first}, 5120
        s_add_u32 s{S_T0+5}, s{S_T0+5}, s{S_T0+3}""")
    for i in range(n):
        A(f"s_add_u32 m0, s{S_T0+5}, {1024*i}\ns_add_u32 s{S_T0+7}, s{S_T0+4}, {16*3072*i}")
        if capped:
            cap()
        A(f"buffer_load_dwordx4 v{T}, s[{SRD_T}:{SRD_T+3}], s{S_T0+7} offen lds")
def cs_by_loader():
    A(f"s_lshr_b32 s{S_T0+6}, s{S_LW}, 1")
    cs_scalars(S_T0 + 6, 0)
    A(f"s_and_b32 s{S_T0+6}, s{S_LW}, 1")
    cs_dma(232, S_T0 + 6, 5, True)
CSL = OPT.get("csl", 1)
def mlp_cs_loads():
    T = SJ
    cs_scalars(S_WAVE, 2)
    if not CSL:
        cs_dma(T, None, 10, False)
    A(f"""v_and_b32 v{T+1}, 3, v{VL}
    v_lshrrev_b32 v{T+2}, 4, v{VL}
    v_lshlrev_b32 v{T+3}, 5, v{T+2}
    v_lshlrev_b32 v{T+2}, 9, v{T+2}
    v_bfe_u32 v{T}, v{VL}, 2, 2
    v_lshl_add_u32 v{T+2}, v{T}, 6, v{T+2}
    v_lshl_add_u32 v{T+2}, v{T+1}, 3, v{T+2}
    v_add_u32 v{T+2}, s{S_T0+5}, v{T+2}
    s_mul_i32 s{S_T0+2}, s{S_T0+2}, {3072*8}
    s_lshl_b32 s{S_T0+1}, s{S_T0+1}, 8
    s_add_u32 s{S_T0+2}, s{S_T0+2}, s{S_T0+1}
    s_add_u32 s{S_T0+2}, s{S_T0+2}, {WS_CSW}
    v_add_u32 v249, s{S_T0+2}, v{T+3}
    v_and_b32 v{T+1}, 15, v{VL}""")
    for i in range(4):
        A(f"v_mov_b32 v{T+4+i}, s{S_ONES}")
def mlp_cs_work():
    T = SJ
    F = T + 8
    A(f"s_waitcnt vmcnt({2*(PB-PA)})")
    for u in range(2):
        for ks in range(5):
            b = F + (u * 5 + ks) * 4
            A(f"ds_read_b64_tr_b16 v[{b}:{b+1}], v{T+2} offset:{ks*2048+u*32}")
            A(f"ds_read_b64_tr_b16 v[{b+2}:{b+3}], v{T+2} offset:{ks*2048+u*32+256}")
    A(f"v_cmp_eq_u32 vcc, 0, v{T+1}\ns_waitcnt lgkmcnt(0)")
    D = [T, F]
    for u in range(2):
        for ks in range(5):
            b, d = F + (u * 5 + ks) * 4, D[u]
            cin = "0" if ks == 0 else f"v[{d}:{d+3}]"
            A(f"v_mfma_f32_16x16x32_bf16 v[{d}:{d+3}], v[{b}:{b+3}], v[{T+4}:{T+7}], {cin}")
    A("s_nop 7")
    for u in range(2):
        d, o = D[u], F + 4 + 8 * u
        for r in range(4):
            A(f"v_mov_b32 v{o+2*r}, v{d+r}\nv_mov_b32 v{o+2*r+1}, s{S_NONCE}")
    A(f"s_and_saveexec_b64 s[{S_EX}:{S_EX+1}], vcc")
    for u in range(2):
        for h in range(2):
            o = F + 4 + 8 * u + 4 * h
            A(f"global_store_dwordx4 v249, v[{o}:{o+3}], s[{S_WS}:{S_WS+1}] offset:{u*128+h*16} sc1")
    A(f"s_mov_b64 exec, s[{S_EX}:{S_EX+1}]")
def ssm_rows_loads():
    own_rows(S_T0)
    A(f"""v_lshrrev_b32 v246, 5, v{VL}
    s_lshl_b32 s{S_T0+1}, s{S_WAVE}, 1
    s_add_u32 s{S_T0}, s{S_T0}, s{S_T0+1}
    v_add_u32 v246, s{S_T0}, v246
    v_and_b32 v247, 31, v{VL}
    v_mul_u32_u24 v249, 1280, v246
    v_lshl_add_u32 v249, v247, 3, v249""")
    for i in range(5):
        A(f"global_load_dwordx2 v[{236+2*i}:{237+2*i}], v249, s[{S_X}:{S_X+1}] offset:{256*i}")
def ssm_rows_work():
    A(f"s_waitcnt vmcnt({2*(PB-PA)})\nv_mov_b32 v249, 0\nv_mov_b32 v251, 0")
    for d in range(10):
        A(f"v_dot2c_f32_bf16 v249, s{S_ONES}, v{236+d}")
        A(f"v_dot2c_f32_bf16 v251, v{236+d}, v{236+d}")
    A("s_nop 2\nv_mov_b32 v236, v249")
    reduce32([236, 251])
    stat_finish(236, 251, 246, 247, 16)
    A(f"""s_and_saveexec_b64 s[{S_EX}:{S_EX+1}], vcc
    global_store_dwordx2 v246, v[236:237], s[{S_WS}:{S_WS+1}] sc1
    s_mov_b64 exec, s[{S_EX}:{S_EX+1}]""")
def touch_w2(T, S_WAVE=S_WAVE):
    G = OPT.get("tg", 128)
    sh = G.bit_length() - 1
    n2, nc = 7680 // G, 3200 // G
    if OPT.get("tm", 1):
        A(f"""s_sub_u32 s{S_T0+3}, s2, 64
        s_cmp_lt_u32 s{S_WAVE}, 2
        s_cselect_b32 s{S_T0}, 39, 33
        s_mov_b32 s{S_T0+1}, 4352
        s_cmov_b32 s{S_T0+1}, 10240
        s_cselect_b32 s{S_T0+4}, s{S_W2}, s{S_CRE}
        s_cselect_b32 s{S_T0+5}, s{S_W2+1}, s{S_CRE+1}
        s_mov_b32 s{S_T0+6}, 819196
        s_cmov_b32 s{S_T0+6}, 1966076
        s_cmp_eq_u32 s{S_WAVE}, 3
        s_cselect_b32 s{S_T0+4}, s{S_CIM}, s{S_T0+4}
        s_cselect_b32 s{S_T0+5}, s{S_CIM+1}, s{S_T0+5}
        s_mul_i32 s{S_T0+1}, s{S_T0+1}, s{S_T0+3}
        s_cmp_eq_u32 s{S_WAVE}, 1
        s_cselect_b32 s{S_T0+2}, 5120, 0
        s_add_u32 s{S_T0+1}, s{S_T0+1}, s{S_T0+2}
        v_min_u32 v{T}, s{S_T0}, v{VL}
        v_lshlrev_b32 v{T}, 7, v{T}
        v_add_u32 v{T}, s{S_T0+1}, v{T}
        v_min_u32 v{T}, s{S_T0+6}, v{T}
        global_load_dword v{T}, v{T}, s[{S_T0+4}:{S_T0+5}]""")
        return
    if G == 128:
        l = A.newlabel("L_tw")
        A(f"""s_cmp_eq_u32 s{S_WAVE}, 3
        s_cbranch_scc1 {l}
        s_cmp_eq_u32 s{S_WAVE}, 0
        s_cselect_b32 s{S_T0}, {n2-1}, {nc-1}
        s_mov_b32 s{S_T0+1}, 3200
        s_cmov_b32 s{S_T0+1}, 7680
        s_cselect_b32 s{S_T0+4}, s{S_W2}, s{S_CRE}
        s_cselect_b32 s{S_T0+5}, s{S_W2+1}, s{S_CRE+1}
        s_cmp_eq_u32 s{S_WAVE}, 2
        s_cselect_b32 s{S_T0+4}, s{S_CIM}, s{S_T0+4}
        s_cselect_b32 s{S_T0+5}, s{S_CIM+1}, s{S_T0+5}""")
    else:
        l = A.newlabel("L_tw")
        A(f"""s_cmp_lt_u32 s{S_WAVE}, 2
        s_cselect_b32 s{S_T0}, {n2//2-1}, {nc-1}
        s_mov_b32 s{S_T0+1}, 3200
        s_cmov_b32 s{S_T0+1}, 7680
        s_cselect_b32 s{S_T0+4}, s{S_W2}, s{S_CRE}
        s_cselect_b32 s{S_T0+5}, s{S_W2+1}, s{S_CRE+1}
        s_cmp_eq_u32 s{S_WAVE}, 3
        s_cselect_b32 s{S_T0+4}, s{S_CIM}, s{S_T0+4}
        s_cselect_b32 s{S_T0+5}, s{S_CIM+1}, s{S_T0+5}""")
    A(f"""s_mul_i32 s{S_T0+1}, s{S_T0+1}, s2
    s_cmp_eq_u32 s{S_WAVE}, 1
    s_cselect_b32 s{S_T0+2}, {3840 if G == 64 else 0}, 0
    s_add_u32 s{S_T0+1}, s{S_T0+1}, s{S_T0+2}
    v_min_u32 v{T}, s{S_T0}, v{VL}
    v_lshlrev_b32 v{T}, {sh}, v{T}
    v_add_u32 v{T}, s{S_T0+1}, v{T}
    global_load_dword v{T}, v{T}, s[{S_T0+4}:{S_T0+5}]""")
    A.label(l)
def touch_pages(T, D_):
    l = A.newlabel("L_tp")
    A(f"""s_cmp_lg_u32 s{S_WAVE}, 1
    s_cbranch_scc1 {l}
    s_mul_i32 s{S_T0}, s{S_TG}, {16*2560}
    s_lshl_b32 s{S_T0+1}, s{S_DCOL}, 2
    s_add_u32 s{S_T0}, s{S_T0}, s{S_T0+1}
    v_and_b32 v{T}, 1, v{VL}
    v_mul_u32_u24 v{T}, {31*2560}, v{T}
    v_add_u32 v{T}, s{S_T0}, v{T}
    global_load_dword v{D_}, v{T}, s[{S_OUT}:{S_OUT+1}]
    s_lshl_b32 s{S_T0}, s{S_C}, 1
    s_mul_i32 s{S_T0}, s{S_T0}, 88
    s_lshl_b32 s{S_T0+1}, s{S_CB}, 2
    s_mul_i32 s{S_T0+2}, s{S_CB}, 10
    s_add_u32 s{S_T0+2}, s{S_T0+2}, 48
    s_cmp_eq_u32 s{S_J}, 0
    s_cselect_b32 s{S_T0+1}, s{S_T0+2}, s{S_T0+1}
    s_add_u32 s{S_T0}, s{S_T0}, s{S_T0+1}
    s_lshl_b32 s{S_T0}, s{S_T0}, 12
    s_add_u32 s{S_T0}, s{S_T0}, {WS_ACT}
    v_and_b32 v{T}, 1, v{VL}
    v_mul_u32_u24 v{T}, {88*4096}, v{T}
    v_add_u32 v{T}, s{S_T0}, v{T}
    global_load_dword v{D_}, v{T}, s[{S_WS}:{S_WS+1}]""")
    A.label(l)
def by_wave(lo, hi):
    l1, l2 = A.newlabel("L_bw"), A.newlabel("L_bw")
    A(f"s_cmp_ge_u32 s{S_WAVE}, 2\ns_cbranch_scc1 {l1}")
    lo()
    A(f"s_branch {l2}")
    A.label(l1)
    hi()
    A.label(l2)

def zero_regs(lo, n):
    def f():
        for r in range(lo, lo + n):
            A(f"v_mov_b32 v{r}, 0")
    return f

def rowpat_read(dst, tmp):
    A(f"""v_bfe_u32 v{tmp}, v{VL}, 1, 3
    v_lshrrev_b32 v{dst}, 4, v{VL}
    v_xor_b32 v{tmp}, v{tmp}, v{dst}
    v_and_b32 v{dst}, 15, v{VL}
    v_lshlrev_b32 v{dst}, 7, v{dst}
    v_lshl_add_u32 v{dst}, v{tmp}, 4, v{dst}""")

def touch_inputs(T):
    if not OPT["pf"]:
        return
    G = OPT.get("tg", 64)
    plan = [[(S_X, 10240)], [(S_W1, 7680), (S_BRE, 3200)], [(S_W3, 7680), (S_BIM, 3200)], [(S_W2, 7680), (S_CRE, 3200), (S_CIM, 3200)]]
    done = A.newlabel("L_ti")
    sh = G.bit_length() - 1
    for w, segs in enumerate(plan):
        nx = A.newlabel("L_ti")
        if w < 3:
            A(f"s_cmp_lg_u32 s{S_WAVE}, {w}\ns_cbranch_scc1 {nx}")
        k = 0
        for p, n in segs:
            cnt = n // G
            A(f"s_mul_i32 s{S_T0}, s2, {n}")
            for o in range(0, cnt, 64):
                A(f"""v_add_u32 v{T}, {o}, v{VL}
                v_min_u32 v{T}, {cnt-1}, v{T}
                v_lshlrev_b32 v{T}, {sh}, v{T}
                v_add_u32 v{T}, s{S_T0}, v{T}
                global_load_dword v{244+k}, v{T}, s[{p}:{p+1}]""")
                k += 1
        if w < 3:
            A(f"s_branch {done}")
            A.label(nx)
    A.label(done)
XE = OPT.get("xe", 2)
XL = 131072
XE_X, XE_D = 236, 228
def g2_rows(vT, X, DK, NH=3):
    A(f"""s_and_b32 s{S_T0+4}, s{S_WAVE}, 1
    s_mul_i32 s{S_T0+4}, s{S_T0+4}, {NH}
    s_add_u32 s{S_T0+4}, s{S_T0+4}, s{S_TG}            ; first row tile of this wave
    s_and_b32 s{S_T0+5}, s{S_WAVE}, 2
    s_lshl_b32 s{S_T0}, s{S_T0+4}, 4
    v_and_b32 v{vT}, 15, v{VL}
    v_add_u32 v{vT}, s{S_T0}, v{vT}                    ; row
    v_lshrrev_b32 v{vT+1}, 4, v{VL}
    s_lshl_b32 s{S_T0+1}, s{S_T0+5}, 4
    s_add_u32 s{S_T0+1}, s{S_T0+1}, s{S_DCOL}
    v_lshl_add_u32 v{vT+1}, v{vT+1}, 2, s{S_T0+1}      ; column
    v_mul_u32_u24 v{vT+2}, 640, v{vT}
    v_add_u32 v{vT+2}, v{vT+2}, v{vT+1}
    v_lshlrev_b32 v{vT+3}, 2, v{vT+2}
    v_lshlrev_b32 v{vT+2}, 1, v{vT+2}
    v_lshlrev_b32 v{vT+1}, 1, v{vT+1}
    v_lshlrev_b32 v{vT+4}, 3, v{vT}
    v_add_u32 v{vT+4}, {WS_STAT}, v{vT+4}""")
    if X is None:
        return
    for Tp in range(NH):
        for U in range(2):
            A(f"global_load_dwordx2 v[{X+4*Tp+2*U}:{X+4*Tp+2*U+1}], v{vT+2}, s[{S_X}:{S_X+1}] offset:{32*U}")
        if Tp < NH - 1:
            A(f"v_add_u32 v{vT+2}, {16*1280}, v{vT+2}")
    for U in range(2):
        A(f"global_load_dwordx2 v[{DK+4*U}:{DK+4*U+1}], v{vT+1}, s[{S_DSK}:{S_DSK+1}] offset:{32*U}")

def gemm1_loop(kind):
    mlp = kind == "mlp"
    NB = 8 if mlp else 10
    NS = 5
    SLOT = 16384 if mlp else 20480
    XF = 128 if mlp else 160
    WF = XF + 32
    AX = WF + NB * 4
    AW = AX + 2
    nAW = 4 if mlp else 2
    D = D1 if mlp else OPT["D1S"]
    lg = Queue(A, "lgkmcnt", 15)

    def rd_x(ks, T):
        b = XF + ks * 16 + T * 4
        if OPT["noread"]:
            return
        A(f"ds_read_b128 v[{b}:{b+3}], v{AX+ks} offset:{T*2048}")
        lg.issue(("x", ks))
    def rd_w(j, gen, half=None):
        b = WF + j * 4
        if OPT["noread"]:
            return
        if mlp:
            F, c = j // 2, j % 2
            for h in ((0, 1) if half is None else (half,)):
                A(f"ds_read_b64_tr_b16 v[{b+2*h}:{b+2*h+1}], v{AW+F} offset:{c*8192+1024*h}")
                lg.issue(("w", j, gen))
        else:
            ks, G = j // 5, j % 5
            A(f"ds_read_b128 v[{b}:{b+3}], v{AW+ks} offset:{G*2048}")
            lg.issue(("w", j, gen))
    def mf(j, T, par):
        w = WF + j * 4
        if (OPT["nomfma"] == 1 and T > 0) or OPT["nomfma"] == 2:
            return
        if mlp:
            acc = (j * 4 + T) * 4
            x = XF + par * 16 + T * 4
            A(f"v_mfma_f32_16x16x32_bf16 v[{acc}:{acc+3}], v[{w}:{w+3}], v[{x}:{x+3}], v[{acc}:{acc+3}]")
        else:
            acc = (((j % 5) * 2 + par) * 4 + T) * 4
            x = XF + (j // 5) * 16 + T * 4
            A(f"v_mfma_f32_16x16x32_bf16 v[{acc}:{acc+3}], v[{x}:{x+3}], v[{w}:{w+3}], v[{acc}:{acc+3}]")
    def xreads(par, j):
        k = j + D - NB
        if mlp:
            return [(par ^ 1, T) for T in ([2 * k, 2 * k + 1] if 0 <= k < 2 else [])]
        if par == 1:
            return [(0, T) for T in ([2 * k, 2 * k + 1] if 0 <= k < 2 else [])]
        return [(1, T) for T in ([2 * j, 2 * j + 1] if j < 2 else [])]
    assert mlp or NB - D >= 5

    A(f"s_mov_b32 s{S_SLOT}, 0\ns_mov_b32 s{S_CNT}, 0\ns_mov_b32 s{S_KX}, 0")
    vFP, vFV, vFD = 248, 249, 250
    A(f"s_mov_b32 m0, s{S_FR}\ns_mov_b32 s{S_LMT}, {PA or PB}")
    assert PA
    flag_wait(1, vFD, vFP)
    A(f"v_add_u32 v{vFP}, 4, v{vFP}")
    if TS:
        A("s_mov_b32 s48, 0\ns_mov_b32 s49, 0")
    ts(2, 2)
    tc(12)
    for j in range(D):
        rd_w(j, 0)
        for ks, T in xreads(1, j + NB - D):
            rd_x(ks, T)
    lbl = f"L_g1_{kind}"
    A(f"""s_mov_b32 s{S_T0}, {SLOT}
    s_mov_b32 s{S_T0+1}, {-(NS-1)*SLOT & 0xffffffff}
    s_mov_b32 s{S_T0+2}, 16384
    s_mov_b32 s{S_T0+3}, {-32768 & 0xffffffff}""")
    A.label(lbl)
    entry = list(lg.q)
    ring = [f"s_add_u32 s{S_SLOT}, s{S_SLOT}, 1\ns_cmp_eq_u32 s{S_SLOT}, {NS}",
            f"s_cselect_b32 s{S_DELTA}, s{S_T0+1}, s{S_T0}\ns_cselect_b32 s{S_SLOT}, 0, s{S_SLOT}"]
    xring = [f"s_add_u32 s{S_KX}, s{S_KX}, 1\ns_cmp_eq_u32 s{S_KX}, 3",
             f"s_cselect_b32 s{S_KW}, s{S_T0+3}, s{S_T0+2}\ns_cselect_b32 s{S_KX}, 0, s{S_KX}"]
    def adv(r, d):
        return f"v_add_u32 v{r}, s{d}, v{r}"
    for par in range(2):
        fill = {}
        if mlp:
            assert D == 4
            fill[(0, 2)] = ring[0]; fill[(1, 2)] = ring[1]
            fill[(2, 2)] = adv(AW, S_DELTA) + "\n" + adv(AW + 1, S_DELTA)
            fill[(6, 2)] = adv(AW + 2, S_DELTA) + f"\ns_add_u32 m0, m0, 4"; fill[(7, 2)] = adv(AW + 3, S_DELTA)
            fill[(0, 3)] = f"v_add_u32 v{vFP}, 4, v{vFP}"
            fpos, cpos, wpos = (1, 3), (3, 0), (7, 2)
            if par == 0:
                fill[(3, 2)] = xring[0]; fill[(3, 3)] = xring[1]
            else:
                fill[(3, 2)] = adv(AX, S_KW) + "\n" + adv(AX + 1, S_KW)
                fill[(7, 3)] = f"s_add_u32 s{S_CNT}, s{S_CNT}, 1\ns_cmp_lt_u32 s{S_CNT}, s{S_LMT}"
        else:
            assert D == 5
            fill[(2, 1)] = ring[0]; fill[(2, 2)] = ring[1]
            fill[(3, 1)] = adv(AW, S_DELTA); fill[(7, 1)] = adv(AW + 1, S_DELTA)
            fill[(1, 3)] = f"v_add_u32 v{vFP}, 4, v{vFP}"
            fill[(8, 3)] = f"s_add_u32 m0, m0, 4"
            fpos, cpos, wpos = (2, 3), (4, 2), (9, 2)
            if par == 0:
                fill[(8, 1)] = xring[0]; fill[(8, 2)] = xring[1]
            else:
                fill[(4, 1)] = adv(AX, S_KW) + "\n" + adv(AX + 1, S_KW)
                fill[(9, 1)] = f"s_add_u32 s{S_CNT}, s{S_CNT}, 1\ns_cmp_lt_u32 s{S_CNT}, s{S_LMT}"
        for j in range(NB):
            tags = [("w", j, par)]
            if j == 0:
                tags.append(("x", par if mlp else 0))
            if j == 5 and not mlp:
                tags.append(("x", 1))
            jn = j + D
            if jn == NB - 1:
                tags.append("flag")
            lg.wait(tags)
            acts = {0: [], 1: [], 2: [], 3: []}
            g = 0
            if jn == NB:
                acts[0].append(lambda: flag_test(None, vFD, vFP, 0, acc=48, split=True))
                g = 1
            wj, wg = (jn, par) if jn < NB else (jn - NB, par ^ 1)
            if mlp:
                acts[g].append(lambda wj=wj, wg=wg: rd_w(wj, wg, 0))
                acts[g + 1].append(lambda wj=wj, wg=wg: rd_w(wj, wg, 1))
                g += 2
            else:
                acts[g].append(lambda wj=wj, wg=wg: rd_w(wj, wg, 0))
                g += 1
            for n_, (ks, T) in enumerate(xreads(par, j)):
                acts[min(g + n_, 3)].append(lambda ks=ks, T=T: rd_x(ks, T))
            for T in range(4):
                mf(j, T, par)
                for f in acts[T]:
                    f()
                if (j, T) in fill:
                    A(fill[(j, T)])
                if (j, T) == fpos:
                    A(f"ds_read_b32 v{vFD}, v{vFP}")
                    lg.issue("flag")
                if (j, T) == cpos:
                    A(f"v_cmp_ne_u32 vcc, s{S_K}, v{vFD}")
                if (j, T) == wpos:
                    A(f"buffer_load_dword v{VZ}, s[{SRD_F}:{SRD_F+3}], 0 offen lds")
    A(f"s_cbranch_scc1 {lbl}")
    lfin = A.newlabel("L_g1e")
    A(f"s_cmp_eq_u32 s{S_CNT}, 10\ns_cbranch_scc1 {lfin}")
    if PA:
        lw_ = A.newlabel("L_g1w")
        A(f"s_cmp_lg_u32 s{S_CNT}, {PA}\ns_cbranch_scc1 {lw_}")
        if TS == 1:
            ts(30, 2)
        A(f"s_mov_b32 s{S_FR}, m0")
        nonce_load()
        A(f"s_mov_b64 s[{S_M0}:{S_M0+1}], s[{S_T0}:{S_T0+1}]\ns_mov_b64 s[{S_M1}:{S_M1+1}], s[{S_T0+2}:{S_T0+3}]")
        if OPT.get("tp", 0):
            touch_pages(*((198, 199) if mlp else (249, 251)))
        if OPT.get("tw", 3) == 2 and mlp:
            touch_w2(251)
        if mlp:
            by_wave(mlp_rows_loads, mlp_cs_loads)
        else:
            ssm_rows_loads()
        A(f"""s_mov_b64 s[{S_T0}:{S_T0+1}], s[{S_M0}:{S_M0+1}]
        s_mov_b64 s[{S_T0+2}:{S_T0+3}], s[{S_M1}:{S_M1+1}]
        s_mov_b32 m0, s{S_FR}
        s_mov_b32 s{S_LMT}, {PB}""")
        if TS == 1:
            A(f"s_memrealtime s[{S_TS}:{S_TS+1}]\ns_sleep 2\nv_writelane_b32 v255, s{S_TS}, 31")
        A(f"s_branch {lbl}")
        A.label(lw_)
    if TS == 1:
        ts(32, 2)
    nonce_ready()
    if mlp:
        by_wave(mlp_rows_work, mlp_cs_work)
        if OPT.get("tw", 3) == 3:
            A(f"s_mov_b64 s[{S_M0}:{S_M0+1}], s[{S_T0}:{S_T0+1}]\ns_mov_b64 s[{S_M1}:{S_M1+1}], s[{S_T0+2}:{S_T0+3}]")
            touch_w2(251)
            if XE == 1:
                g2_rows(200, XE_X, XE_D)
            A(f"s_mov_b64 s[{S_T0}:{S_T0+1}], s[{S_M0}:{S_M0+1}]\ns_mov_b64 s[{S_T0+2}:{S_T0+3}], s[{S_M1}:{S_M1+1}]")
    else:
        ssm_rows_work()
    if TS == 1:
        ts(33, 2)
    A(f"s_mov_b32 s{S_LMT}, 10\ns_branch {lbl}")
    A.label(lfin)
    assert lg.q == entry[len(entry) - len(lg.q):]
    return lg, entry, AX, AW

G2_B = 96
G2_A = 128
NS2, SL2 = 9, 16384
def g2slot(s):
    return (s % NS2) * SL2

def rot_next(s, stepA, stepB, baseB):
    if s == 11:
        A(f"s_mul_i32 s{S_KB}, s{S_R2B}, {stepB}")
        if baseB:
            A(f"s_add_u32 s{S_KB}, s{S_KB}, {baseB}")
    elif s < 11:
        A(f"""s_add_u32 s{S_KB}, s{S_KB}, {stepA}
        s_cmp_eq_u32 s{S_KB}, {12*stepA}
        s_cselect_b32 s{S_KB}, 0, s{S_KB}""")
    elif s < 21:
        A(f"""s_add_u32 s{S_KB}, s{S_KB}, {stepB}
        s_cmp_eq_u32 s{S_KB}, {baseB+10*stepB}
        s_cselect_b32 s{S_KB}, {baseB}, s{S_KB}""")

def gemm2_compute(NT):
    NH = NT // 2
    DA = 3 if NT == 6 else OPT.get("DA2", 5)
    RED = 4 * SL2
    GB, GA_ = 48, 112
    vW, vC, vB = 204, 208, 212
    vA = 220
    vT = 196
    vFA, vFP, vFV, vFD, vG = 248, 249, 250, 251, 223
    X, ST, DK, TT = 128, 140, 148, 156
    A(f"""s_lshl_b32 s{S_T0}, s{S_T0}, 5
    s_add_u32 s{S_T0}, s{S_T0}, s{S_T0+1}
    s_lshl_b32 s{S_T0}, s{S_T0}, {FSH}
    s_add_u32 s{S_T0+3}, s{S_T0}, {WS_FLAG}""")
    if XE == 2:
        g2_rows(vT, None, None)
        A(f"""s_and_b32 s{S_T0}, s{S_WAVE}, 1
        s_mul_i32 s{S_T0}, s{S_T0}, {NH*16}
        v_and_b32 v{vT}, 15, v{VL}
        v_add_u32 v{vT}, s{S_T0}, v{vT}
        v_lshrrev_b32 v{vT+1}, 4, v{VL}
        v_lshlrev_b32 v{vT+1}, 3, v{vT+1}
        s_lshl_b32 s{S_T0}, s{S_T0+5}, 5
        s_add_u32 s{S_T0}, s{S_T0}, {XL}
        v_add_u32 v{vT+1}, s{S_T0}, v{vT+1}
        v_lshl_add_u32 v{vT+2}, v{vT}, 7, v{vT+1}
        v_lshlrev_b32 v{vT}, 2, v{vT}
        v_add_u32 v{vT}, {XL+13312}, v{vT}""")
        for Tp in range(NH):
            for U in range(2):
                A(f"ds_read_b64 v[{X+4*Tp+2*U}:{X+4*Tp+2*U+1}], v{vT+2} offset:{2048*Tp+32*U}")
            A(f"ds_read_b32 v{ST+2*Tp}, v{vT} offset:{64*Tp}")
        for U in range(2):
            A(f"ds_read_b64 v[{DK+4*U}:{DK+4*U+1}], v{vT+1} offset:{12288+32*U}")
    elif XE:
        X, DK = XE_X, XE_D
        g2_rows(vT, None, None)
    else:
        g2_rows(vT, X, DK)
    def stat_loads_():
        for Tp in range(NH):
            A(f"global_load_dwordx2 v[{ST+2*Tp}:{ST+2*Tp+1}], v{vT+4}, s[{S_WS}:{S_WS+1}] offset:{128*Tp} sc1")
    if XE != 2:
        stat_loads_()
    A(f"""v_lshrrev_b32 v{vT}, 4, v{VL}               ; q
    v_bfe_u32 v{vT+1}, v{VL}, 2, 2                     ; rr
    v_lshl_add_u32 v{vT+1}, v{vT}, 2, v{vT+1}          ; 4q + rr
    v_bfe_u32 v{vT+5}, v{vT+1}, 1, 2                   ; swizzle
    s_lshl_b32 s{S_T0}, s{S_T0+5}, 5
    v_add_u32 v{vT+1}, s{S_T0}, v{vT+1}
    v_lshlrev_b32 v{vT+1}, 7, v{vT+1}
    v_and_b32 v{vT+2}, 3, v{VL}
    v_lshl_add_u32 v{vT+1}, v{vT+2}, 3, v{vT+1}
    v_and_b32 v{vT+2}, 1, v{vT}
    s_lshl_b32 s{S_T0}, s{S_T0+5}, 1
    v_add_u32 v{vT+2}, s{S_T0}, v{vT+2}
    v_bfe_u32 v{vT+6}, v{VL}, 1, 3
    v_xor_b32 v{vT+2}, v{vT+2}, v{vT+6}
    v_lshrrev_b32 v{vT}, 1, v{vT}
    v_lshlrev_b32 v{vT}, 13, v{vT}
    v_lshl_add_u32 v{vT}, v{vT+2}, 4, v{vT}
    v_and_b32 v{vT+6}, 15, v{VL}
    v_lshl_add_u32 v{vT}, v{vT+6}, 7, v{vT}""")
    for Up in range(4):
        A(f"""s_xor_b32 s{S_T0}, s{S_T0+5}, {Up}
        v_xor_b32 v{vT+2}, s{S_T0}, v{vT+5}
        v_lshl_add_u32 v{vW+Up}, v{vT+2}, 5, v{vT+1}
        s_lshl_b32 s{S_T0}, s{S_T0}, 11
        v_add_u32 v{vC+Up}, s{S_T0}, v{vT}""")
    A(f"v_lshlrev_b32 v{vT}, 4, v{VL}\ns_lshl_b32 s{S_T0+1}, s{S_HB2}, 2\ns_sub_u32 s{S_T0+1}, s{S_T0+4}, s{S_T0+1}")
    for Tp in range(NH):
        A(f"""s_add_u32 s{S_T0}, s{S_T0+1}, {Tp}
        s_lshr_b32 s{S_T0+2}, s{S_T0}, 2
        s_mul_i32 s{S_T0+2}, s{S_T0+2}, {88*4-4}
        s_add_u32 s{S_T0}, s{S_T0}, s{S_T0+2}
        s_lshl_b32 s{S_T0}, s{S_T0}, 10
        v_add_u32 v{vA+Tp}, s{S_T0}, v{vT}""")
    A(f"""s_mul_i32 s{S_T0}, s{S_HB2}, {88*4096}
    s_lshl_b32 s{S_T0+1}, s{S_T0+5}, 12
    s_add_u32 s{S_T0}, s{S_T0}, s{S_T0+1}
    s_add_u32 s{S_T0}, s{S_T0}, {WS_ACT}
    s_add_u32 s{SRD_T}, s{S_WS}, s{S_T0}
    s_addc_u32 s{SRD_T+1}, s{S_WS+1}, 0
    s_mov_b32 s{SRD_T+2}, {(88+86)*4096}
    s_mov_b32 s{SRD_T+3}, 0x20000
    s_lshl_b32 s{S_KB}, s{S_R2A}, 14""")
    lr, lo = A.newlabel("L_fl"), A.newlabel("L_fl")
    A(f"""s_lshl_b32 s{S_T0}, s{S_HB2}, {5+FSH}
    s_add_u32 s{S_T0}, s{S_T0}, {WS_FLAG}
    v_and_b32 v{vFA}, {63 if NT == 6 else 31}, v{VL}
    v_lshlrev_b32 v{vFA}, {FSH}, v{vFA}
    v_add_u32 v{vFA}, s{S_T0}, v{vFA}
    s_lshr_b32 s{S_T0+1}, s{S_WAVE}, 1
    s_lshl_b32 s{S_T0+1}, 0x555555, s{S_T0+1}
""")
    def publish(young):
        A(f"""v_lshlrev_b32 v{vT}, 17, v{VL}
        v_add_u32 v{vT}, s{S_T0+3}, v{vT}
        v_mov_b32 v{vT+1}, s{S_NONCE}
        s_mov_b32 s{S_RP}, 0
        s_waitcnt vmcnt({young})
        s_mov_b64 exec, {(1 << NREP) - 1}
        global_store_dword v{vT}, v{vT+1}, s[{S_WS}:{S_WS+1}] sc1
        s_mov_b64 exec, -1""")
        ts(6, 2)
    LATE = XE == 2 and OPT.get("plate", 0)
    if not LATE:
        publish(0 if XE == 2 else NH if XE else 3 * NH + 2)
    ls, lk = A.newlabel("L_st"), A.newlabel("L_st")
    if XE == 2:
        A(f"s_waitcnt lgkmcnt(0)\nv_mov_b32 v{vFV}, s{S_K}\nds_write_b32 v{VFO}, v{vFV} offset:{4*21}\ns_branch {lk}")
    A("s_waitcnt vmcnt(1)")
    A.label(ls)
    A(f"s_mov_b64 s[{S_M0}:{S_M0+1}], 0")
    for Tp in range(NH):
        A(f"v_cmp_ne_u32 vcc, s{S_NONCE}, v{ST+2*Tp+1}\ns_nop 1\ns_or_b64 s[{S_M0}:{S_M0+1}], s[{S_M0}:{S_M0+1}], vcc")
    A(f"s_cmp_eq_u64 s[{S_M0}:{S_M0+1}], 0\ns_cbranch_scc1 {lk}")
    stat_loads_()
    A("s_waitcnt vmcnt(0)")
    spin_tail(ls, lk, 1)
    A.label(lk)
    def unpack(dst, src):
        A(f"""v_and_b32 v{dst+3}, 0xffff0000, v{src+1}
        v_lshlrev_b32 v{dst+2}, 16, v{src+1}
        v_and_b32 v{dst+1}, 0xffff0000, v{src}
        v_lshlrev_b32 v{dst}, 16, v{src}""")
    def rnd(r, t):
        A(f"""v_cvt_pk_bf16_f32 v{t}, v{r}, v{r+1}
        v_cvt_pk_bf16_f32 v{t+1}, v{r+2}, v{r+3}""")
        unpack(r, t)
    unpack(DK, DK)
    unpack(DK + 4, DK + 4)
    EP = OPT.get("epoll", 9)
    for Tp in range(NH if not OPT.get("nobase", 0) else 0):
        st_ = ST + 2 * Tp
        if Tp == min(EP, NH - 1) and EP < 9:
            A(f"global_load_dword v{vG}, v{vFA}, s[{S_WS}:{S_WS+1}] sc1")
        A(f"""v_and_b32 v{st_+1}, 0xffff0000, v{st_}
        v_lshlrev_b32 v{st_}, 16, v{st_}
        v_rcp_f32 v{st_+1}, v{st_+1}""")
        for U in range(2):
            acc = (U * NH + Tp) * 4
            unpack(acc, X + 4 * Tp + 2 * U)
            for h in (0, 2):
                A(f"v_pk_add_f32 v[{TT+h}:{TT+h+1}], v[{acc+h}:{acc+h+1}], v[{st_}:{st_+1}] op_sel_hi:[1,0] neg_lo:[0,1] neg_hi:[0,1]")
            rnd(TT, TT + 4)
            for h in (0, 2):
                A(f"v_pk_mul_f32 v[{TT+h}:{TT+h+1}], v[{TT+h}:{TT+h+1}], v[{st_}:{st_+1}] op_sel:[0,1] op_sel_hi:[1,1]")
            rnd(TT, TT + 4)
            for h in (0, 2):
                A(f"v_pk_mul_f32 v[{TT+h}:{TT+h+1}], v[{TT+h}:{TT+h+1}], v[{DK+4*U+h}:{DK+4*U+h+1}]")
            rnd(TT, TT + 4)
            for h in (0, 2):
                A(f"v_pk_add_f32 v[{acc+h}:{acc+h+1}], v[{acc+h}:{acc+h+1}], v[{TT+h}:{TT+h+1}]")
    if LATE:
        publish(0)
    if OPT.get("nap0", 0):
        A(f"s_sleep {OPT['nap0']}")
    ONE = OPT.get("one", 1)
    if ONE:
        lw_ = A.newlabel("L_go")
        A(f"""v_mov_b32 v{vFD}, {GO}
        s_cmp_lg_u32 s{S_WAVE}, 0
        s_cbranch_scc1 {lw_}
        s_mov_b32 s{S_T0+1}, 0xffffff""")
    A(f"s_mov_b32 exec_lo, s{S_T0+1}\ns_mov_b32 exec_hi, s{S_T0+1}")
    PP = OPT.get("pp", 0)
    if PP:
        pr = [vG, vB, vB + 1, vB + 2][:PP]
        for r_ in pr[:-1]:
            A(f"global_load_dword v{r_}, v{vFA}, s[{S_WS}:{S_WS+1}] sc1\ns_sleep {OPT.get('pps', 4)}")
        A.label(lr)
        for i_ in range(PP):
            A(f"""global_load_dword v{pr[i_-1]}, v{vFA}, s[{S_WS}:{S_WS+1}] sc1
            s_waitcnt vmcnt({PP-1})
            v_cmp_ne_u32 vcc, s{S_NONCE}, v{pr[i_]}
            s_cbranch_vccz {lo}""")
        A(f"""s_sub_u32 s{S_TO}, s{S_TO}, 1
        s_cmp_lg_u32 s{S_TO}, 0
        s_cbranch_scc1 {lr}
        s_mov_b32 s{S_TO}, 1""")
        A.label(lo)
    else:
        A.label(lr)
        A(f"global_load_dword v{vG}, v{vFA}, s[{S_WS}:{S_WS+1}] sc1")
        A(f"""s_waitcnt vmcnt(0)
        v_cmp_ne_u32 vcc, s{S_NONCE}, v{vG}
        s_cbranch_vccz {lo}""")
        if NREP > 1:
            next_copy(vFA, NREP, REPS, S_RP)
        spin_tail(lr, lo, 2)
        A.label(lo)
    if ONE:
        A(f"s_mov_b64 exec, 1\nds_write_b32 v{vFD}, v{vFD}\ns_branch {lw_}x")
        A.label(lw_)
        A(f"""ds_read_b32 v{vG}, v{vFD}
        s_waitcnt lgkmcnt(0)
        v_cmp_eq_u32 vcc, 0, v{vG}
        s_cbranch_vccz {lw_}x""")
        spin_tail(lw_, None, 1)
        A.label(f"{lw_}x")
    A("s_mov_b64 exec, -1")
    ts(7, 2)
    tc(14)
    if TS:
        A("s_mov_b32 s48, 0\ns_mov_b32 s49, 0")
    vm = Queue(A, "vmcnt", 63)
    A(f"s_add_u32 s{S_T0+4}, s{S_KB}, 4096\nv_lshlrev_b32 v{vFA}, 4, v{VL}\nv_add_u32 v{vFA}, {AUX}, v{vFA}")
    def ldA1(s, i):
        u, Tp = i // NH, i % NH
        b = GA_ + ((s % DA) * NT + i) * 4
        A(f"buffer_load_dwordx4 v[{b}:{b+3}], v{vA+Tp}, s[{SRD_T}:{SRD_T+3}], s{S_T0+4 if u else S_KB} offen sc1")
        vm.issue(("a", s))
        if i == NT - 1:
            rot_next(s, 16384, 16384, 12 * 16384)
            if s < 21:
                A(f"s_add_u32 s{S_T0+4}, s{S_KB}, 4096")
    def ldA(s):
        for i in range(NT):
            ldA1(s, i)
    def rdB(s, j):
        u, U = j // 4, j % 4
        b = GB + (s % 2) * 32 + j * 4
        if s < 12:
            A(f"ds_read_b64_tr_b16 v[{b}:{b+1}], v{vB+U} offset:{4096*u}")
            A(f"ds_read_b64_tr_b16 v[{b+2}:{b+3}], v{vB+U} offset:{4096*u+2048}")
        else:
            A(f"ds_read_b128 v[{b}:{b+3}], v{vB+j}")
    def setB(s, us=range(4)):
        for U in us:
            A(f"v_add_u32 v{vB+U}, {g2slot(s)}, v{(vW if s < 12 else vC)+U}")
    def setB2(s, us=range(4)):
        if s >= 12:
            for U in us:
                A(f"v_xor_b32 v{vB+4+U}, 32, v{vB+U}")
    assert GA_ + DA * NT * 4 <= vW
    peer_addr(vFP, FLG)
    R0 = OPT.get("ramp", 2) if NT == 6 else DA - 1
    st = {"nxt": R0}
    for s in range(R0):
        ldA(s)
    A(f"v_mov_b32 v{vFV}, s{S_K}")
    flag_wait(22, vFD, vFP)
    if OPT.get("pp", 0):
        A(f"s_waitcnt vmcnt({R0*NT})")
    setB(0)
    for j in range(8):
        rdB(0, j)
    A(f"ds_read_b32 v{vFD}, v{vFP} offset:{4*23}")
    GATE = 12 - (DA - 1)
    def stage(s, limit):
        A(f"s_waitcnt lgkmcnt({1 if s else 0})")
        if TS == 2:
            ts(16 + s, 2)
        if TS == 3:
            A(f"s_memtime s[{S_TS}:{S_TS+1}]\ns_waitcnt lgkmcnt(0)\ns_mov_b32 s50, s{S_TS}")
        vm.wait(("a", s))
        if TS == 3:
            A(f"s_memtime s[{S_TS}:{S_TS+1}]\ns_waitcnt lgkmcnt(0)\ns_sub_u32 s50, s{S_TS}, s50\nv_writelane_b32 v255, s50, {16+s}\nv_writelane_b32 v255, s{S_TS}, {40+s}")
        todo = []
        while st["nxt"] <= min(limit, s - 1 + DA, 21) and len(todo) < 2 * NT:
            todo += [(st["nxt"], i) for i in range(NT)]
            st["nxt"] += 1
        acts = []
        if s < 21:
            acts.append(lambda: (A(f"v_cmp_ne_u32 vcc, s{S_K}, v{vFD}"), setB(s + 1, (0,))))
            acts.append(lambda: setB(s + 1, (1, 2)))
            acts.append(lambda: (flag_test(23 + s, vFD, vFP, 4 * (23 + s), split=True, acc=48), setB(s + 1, (3,))))
            for j in range(8):
                acts.append(lambda j=j: (rdB(s + 1, j), setB2(s + 1, (j,)) if j < 4 else None))
        if s < 20:
            acts.append(lambda: A(f"ds_read_b32 v{vFD}, v{vFP} offset:{4*(24+s)}"))
        if s == GATE - 1:
            acts.append(lambda: A(f"ds_read_b32 v{vG}, v{vFA}"))
        acts.append(lambda: A(f"ds_write_b32 v{VFO}, v{vFV} offset:{4*(22+s)}"))
        lds = [lambda x=x: ldA1(*x) for x in todo]
        nm = 4 * NT
        sched = {i: [] for i in range(nm)}
        per = -(-len(acts) // max(nm - 2, 1))
        for i, f in enumerate(acts):
            sched[i // per].append(f)
        first = OPT.get("lf", 12) if NT == 6 else 0
        for i, f in enumerate(lds):
            sched[min(first + i * (nm - first) // len(lds), nm - 1)].append(f)
        n = 0
        for u in range(2):
            for U in range(4):
                for Tp in range(NH):
                    acc = (U * NH + Tp) * 4
                    w = GB + (s % 2) * 32 + (u * 4 + U) * 4
                    a = GA_ + ((s % DA) * NT + u * NH + Tp) * 4
                    cin = "0" if (s == 0 and u == 0 and U >= 2) else f"v[{acc}:{acc+3}]"
                    A(f"v_mfma_f32_16x16x32_bf16 v[{acc}:{acc+3}], v[{w}:{w+3}], v[{a}:{a+3}], {cin}")
                    for f in sched[n]:
                        f()
                    n += 1
    llate, ljoin = A.newlabel("L_late"), A.newlabel("L_join")
    for s in range(22):
        if s == GATE:
            assert st["nxt"] == 12
            A("s_waitcnt lgkmcnt(1)")
            if not OPT.get("nogate", 0):
                A(f"v_cmp_le_u32 vcc, 3, v{vG}\ns_cbranch_vccz {llate}")
            keep = list(vm.q)
            mark = len(A.lines)
            A.label(llate)
            for s2_ in range(GATE, 12):
                stage(s2_, 11)
            lr, lo = A.newlabel("L_fs"), A.newlabel("L_fs")
            A.label(lr)
            A(f"""ds_read_b32 v{vG}, v{vFA}
            s_waitcnt lgkmcnt(0)
            v_cmp_le_u32 vcc, 3, v{vG}
            s_cbranch_vccnz {lo}""")
            spin_tail(lr, lo, 1)
            A.label(lo)
            vm.q = []
            for s2_ in range(12, 12 + DA - 1):
                ldA(s2_)
            A(f"s_branch {ljoin}")
            late_q = list(vm.q)
            SLOW.extend(A.lines[mark:])
            del A.lines[mark:]
            vm.q = keep
            st["nxt"] = 12
        if s == 12:
            A.label(ljoin)
            assert vm.q[-NT*(DA-1):] == late_q and st["nxt"] == 12 + DA - 1
        stage(s, 21)
    ts(8, 2)
    tc(15)
    if TS == 3:
        A("v_writelane_b32 v255, s48, 62\nv_writelane_b32 v255, s49, 63")
    flag_wait(36, vFD, vFP, 2048)
    A(f"""v_lshlrev_b32 v{vB}, 4, v{VL}
    s_mul_i32 s{S_T0}, s{S_WAVE}, {NT*1024}
    s_add_u32 s{S_T0}, s{S_T0}, {RED}
    v_add_u32 v{vB+1}, s{S_T0}, v{vB}
    s_xor_b32 s{S_T0}, s{S_WAVE}, 2
    s_mul_i32 s{S_T0}, s{S_T0}, {NT*1024}
    s_add_u32 s{S_T0}, s{S_T0}, {RED}
    v_add_u32 v{vB}, s{S_T0}, v{vB}""")
    for i in range(NT):
        acc = (NT + i) * 4
        A(f"ds_write_b128 v{vB+1}, v[{acc}:{acc+3}] offset:{i*1024}")
    A("s_waitcnt lgkmcnt(0)\ns_barrier")
    for i in range(NT):
        b = (NT + i) * 4
        A(f"ds_read_b128 v[{b}:{b+3}], v{vB} offset:{i*1024}")
    order = [(Tp, U) for Tp in range(NH) for U in range(2)]
    A("s_waitcnt lgkmcnt(0)")
    for Tp, U in order:
        i = U * NH + Tp
        a0, a1 = i * 4, (NT + i) * 4
        for h in (0, 2):
            A(f"v_pk_add_f32 v[{a0+h}:{a0+h+1}], v[{a0+h}:{a0+h+1}], v[{a1+h}:{a1+h+1}]")
        A(f"global_store_dwordx4 v{vT+3}, v[{a0}:{a0+3}], s[{S_OUT}:{S_OUT+1}] offset:{64*U}{['', ' sc1', ' nt', ' sc0 sc1'][OPT.get('omod', 2)]}")
        if U == 1 and Tp < NH - 1:
            A(f"v_add_u32 v{vT+3}, {16*2560}, v{vT+3}")
    ts(9, 2)
    ts_flush(200)
    A("s_endpgm")
    flush_slow()

def gemm2_small(NT):
    LB = OPT.get("LB", 2)
    G2_B, G2_A = 32, 128
    DA = 3 if NT == 6 else OPT.get("DA2", 6)
    RED = 4 * SL2
    vW, vC, vB = 204, 208, 212
    vA = 216
    vT = 224
    vFA, vFP, vFV, vFD, vG = 232, 233, 234, 235, 236
    X, ST, DK, TT = 180, 184, 188, 192
    A(f"""s_lshl_b32 s{S_T0}, s{S_T0}, 5
    s_add_u32 s{S_T0}, s{S_T0}, s{S_T0+1}
    s_lshl_b32 s{S_T0}, s{S_T0}, {FSH}
    s_add_u32 s{S_T0+3}, s{S_T0}, {WS_FLAG}""")
    A(f"""s_lshl_b32 s{S_T0}, s{S_TG}, 4
    v_and_b32 v{vT}, 15, v{VL}
    v_add_u32 v{vT}, s{S_T0}, v{vT}                    ; row
    v_lshrrev_b32 v{vT+1}, 4, v{VL}
    s_lshl_b32 s{S_T0+1}, s{S_WAVE}, 4
    s_add_u32 s{S_T0+1}, s{S_T0+1}, s{S_DCOL}
    v_lshl_add_u32 v{vT+1}, v{vT+1}, 2, s{S_T0+1}      ; column
    v_mul_u32_u24 v{vT+2}, 640, v{vT}
    v_add_u32 v{vT+2}, v{vT+2}, v{vT+1}
    v_lshlrev_b32 v{vT+3}, 2, v{vT+2}
    v_lshlrev_b32 v{vT+2}, 1, v{vT+2}
    v_lshlrev_b32 v{vT+1}, 1, v{vT+1}
    v_lshlrev_b32 v{vT+4}, 3, v{vT}
    v_add_u32 v{vT+4}, {WS_STAT}, v{vT+4}""")
    for Tp in range(NT):
        A(f"global_load_dwordx2 v[{X+2*Tp}:{X+2*Tp+1}], v{vT+2}, s[{S_X}:{S_X+1}]")
        if Tp < NT - 1:
            A(f"v_add_u32 v{vT+2}, {16*1280}, v{vT+2}")
    A(f"global_load_dwordx2 v[{DK}:{DK+1}], v{vT+1}, s[{S_DSK}:{S_DSK+1}]")
    def stat_loads_():
        for Tp in range(NT):
            A(f"global_load_dwordx2 v[{ST+2*Tp}:{ST+2*Tp+1}], v{vT+4}, s[{S_WS}:{S_WS+1}] offset:{128*Tp} sc1")
    stat_loads_()
    A(f"""v_lshrrev_b32 v{vT}, 4, v{VL}               ; q
    v_bfe_u32 v{vT+1}, v{VL}, 2, 2                     ; rr
    v_lshl_add_u32 v{vT+1}, v{vT}, 2, v{vT+1}          ; 4q + rr
    v_bfe_u32 v{vT+5}, v{vT+1}, 1, 2                   ; swizzle
    s_lshl_b32 s{S_T0}, s{S_WAVE}, 5
    v_add_u32 v{vT+1}, s{S_T0}, v{vT+1}
    v_lshlrev_b32 v{vT+1}, 7, v{vT+1}
    v_and_b32 v{vT+2}, 3, v{VL}
    v_lshl_add_u32 v{vT+1}, v{vT+2}, 3, v{vT+1}
    v_and_b32 v{vT+2}, 1, v{vT}
    s_lshl_b32 s{S_T0}, s{S_WAVE}, 1
    v_add_u32 v{vT+2}, s{S_T0}, v{vT+2}                ; chunk = 2w + (q&1)
    v_bfe_u32 v{vT+6}, v{VL}, 1, 3
    v_xor_b32 v{vT+2}, v{vT+2}, v{vT+6}
    v_lshrrev_b32 v{vT}, 1, v{vT}
    v_lshlrev_b32 v{vT}, 13, v{vT}
    v_lshl_add_u32 v{vT}, v{vT+2}, 4, v{vT}
    v_and_b32 v{vT+6}, 15, v{VL}
    v_lshl_add_u32 v{vT}, v{vT+6}, 7, v{vT}""")
    for Up in range(4):
        A(f"""s_add_u32 s{S_T0}, s{S_WAVE}, {Up}
        s_and_b32 s{S_T0}, s{S_T0}, 3
        v_xor_b32 v{vT+2}, s{S_T0}, v{vT+5}
        v_lshl_add_u32 v{vW+Up}, v{vT+2}, 5, v{vT+1}
        s_lshl_b32 s{S_T0}, s{S_T0}, 11
        v_add_u32 v{vC+Up}, s{S_T0}, v{vT}""")
    A(f"v_lshlrev_b32 v{vT}, 4, v{VL}\ns_and_b32 s{S_T0+1}, s{S_TG}, 3")
    for Tp in range(NT):
        A(f"""s_add_u32 s{S_T0}, s{S_T0+1}, {Tp}
        s_lshr_b32 s{S_T0+2}, s{S_T0}, 2
        s_mul_i32 s{S_T0+2}, s{S_T0+2}, {88*4-4}
        s_add_u32 s{S_T0}, s{S_T0}, s{S_T0+2}
        s_lshl_b32 s{S_T0}, s{S_T0}, 10
        v_add_u32 v{vA+Tp}, s{S_T0}, v{vT}""")
    A(f"""s_mul_i32 s{S_T0}, s{S_HB2}, {88*4096}
    s_lshl_b32 s{S_T0+1}, s{S_WAVE}, 12
    s_add_u32 s{S_T0}, s{S_T0}, s{S_T0+1}
    s_add_u32 s{S_T0}, s{S_T0}, {WS_ACT}
    s_add_u32 s{SRD_T}, s{S_WS}, s{S_T0}
    s_addc_u32 s{SRD_T+1}, s{S_WS+1}, 0
    s_mov_b32 s{SRD_T+2}, {(88+85)*4096}
    s_mov_b32 s{SRD_T+3}, 0x20000
    s_lshl_b32 s{S_KB}, s{S_R2A}, 14""")
    lr, lo = A.newlabel("L_fl"), A.newlabel("L_fl")
    A(f"""s_lshl_b32 s{S_T0}, s{S_HB2}, {5+FSH}
    s_add_u32 s{S_T0}, s{S_T0}, {WS_FLAG}
    v_and_b32 v{vFA}, {63 if NT == 6 else 31}, v{VL}
    v_lshlrev_b32 v{vFA}, {FSH}, v{vFA}
    v_add_u32 v{vFA}, s{S_T0}, v{vFA}
    s_lshr_b32 s{S_T0+1}, s{S_WAVE}, 1
    s_lshl_b32 s{S_T0+1}, 0x555555, s{S_T0+1}
    v_lshlrev_b32 v{vT}, 17, v{VL}
    v_add_u32 v{vT}, s{S_T0+3}, v{vT}
    v_mov_b32 v{vT+1}, s{S_NONCE}
    s_mov_b32 exec_lo, s{S_T0+1}
    s_mov_b32 exec_hi, 0
    global_load_dword v{vG}, v{vFA}, s[{S_WS}:{S_WS+1}] sc1
    s_waitcnt vmcnt({2*NT+2})
    s_mov_b64 exec, {(1 << NREP) - 1}
    global_store_dword v{vT}, v{vT+1}, s[{S_WS}:{S_WS+1}] sc1
    s_mov_b64 exec, -1""")
    ts(6, 2)
    def poll(lr, lo, mask):
        A(f"s_mov_b32 exec_lo, {mask}\ns_mov_b32 exec_hi, 0\ns_waitcnt vmcnt(1)\ns_branch {lr}b")
        A.label(lr)
        A(f"global_load_dword v{vG}, v{vFA}, s[{S_WS}:{S_WS+1}] sc1\ns_waitcnt vmcnt(0)")
        A.label(f"{lr}b")
        A(f"v_cmp_ne_u32 vcc, s{S_NONCE}, v{vG}\ns_cbranch_vccz {lo}")
        spin_tail(lr, lo, 2)
        A.label(lo)
        A("s_mov_b64 exec, -1")
    poll(lr, lo, f"s{S_T0+1}")
    ts(7, 2)
    tc(14)
    if TS:
        A("s_mov_b32 s48, 0\ns_mov_b32 s49, 0")
    vm = Queue(A, "vmcnt", 63)
    def ldA1(s, Tp):
        b = G2_A + (s % DA) * 4 * NT
        A(f"buffer_load_dwordx4 v[{b+4*Tp}:{b+4*Tp+3}], v{vA+Tp}, s[{SRD_T}:{SRD_T+3}], s{S_KB} offen sc1")
        vm.issue(("a", s))
        if Tp == NT - 1:
            rot_next(s, 16384, 16384, 12 * 16384)
    def ldA(s):
        for Tp in range(NT):
            ldA1(s, Tp)
    def rdB(s, U):
        b = G2_B + (s % (LB + 1)) * 16 + U * 4
        if s < 12:
            A(f"ds_read_b64_tr_b16 v[{b}:{b+1}], v{vB+U}")
            A(f"ds_read_b64_tr_b16 v[{b+2}:{b+3}], v{vB+U} offset:2048")
            lq.issue(("b", s))
        else:
            A(f"ds_read_b128 v[{b}:{b+3}], v{vB+U}")
        lq.issue(("b", s))
    def setB(s, us=range(4)):
        for U in us:
            A(f"v_add_u32 v{vB+U}, {g2slot(s)}, v{(vW if s < 12 else vC)+U}")
    assert G2_A + DA * NT * 4 <= 180
    peer_addr(vFP, FLG)
    R0 = OPT.get("ramp", 2) if NT == 6 else DA - 1
    st = {"nxt": R0}
    for s in range(R0):
        ldA(s)
    ls, lk = A.newlabel("L_st"), A.newlabel("L_st")
    A.label(ls)
    A(f"s_mov_b64 s[{S_M0}:{S_M0+1}], 0")
    for Tp in range(NT):
        A(f"v_cmp_ne_u32 vcc, s{S_NONCE}, v{ST+2*Tp+1}\ns_nop 1\ns_or_b64 s[{S_M0}:{S_M0+1}], s[{S_M0}:{S_M0+1}], vcc")
    A(f"s_cmp_eq_u64 s[{S_M0}:{S_M0+1}], 0\ns_cbranch_scc1 {lk}")
    stat_loads_()
    A("s_waitcnt vmcnt(0)")
    spin_tail(ls, lk, 1)
    A.label(lk)
    def unpack(dst, src):
        A(f"""v_and_b32 v{dst+3}, 0xffff0000, v{src+1}
        v_lshlrev_b32 v{dst+2}, 16, v{src+1}
        v_and_b32 v{dst+1}, 0xffff0000, v{src}
        v_lshlrev_b32 v{dst}, 16, v{src}""")
    def rnd(r, t):
        A(f"""v_cvt_pk_bf16_f32 v{t}, v{r}, v{r+1}
        v_cvt_pk_bf16_f32 v{t+1}, v{r+2}, v{r+3}""")
        unpack(r, t)
    unpack(DK, DK)
    for Tp in range(NT):
        st_, acc = ST + 2 * Tp, Tp * 4
        A(f"""v_and_b32 v{st_+1}, 0xffff0000, v{st_}
        v_lshlrev_b32 v{st_}, 16, v{st_}
        v_rcp_f32 v{st_+1}, v{st_+1}""")
        unpack(acc, X + 2 * Tp)
        for h in (0, 2):
            A(f"v_pk_add_f32 v[{TT+h}:{TT+h+1}], v[{acc+h}:{acc+h+1}], v[{st_}:{st_+1}] op_sel_hi:[1,0] neg_lo:[0,1] neg_hi:[0,1]")
        rnd(TT, TT + 4)
        for h in (0, 2):
            A(f"v_pk_mul_f32 v[{TT+h}:{TT+h+1}], v[{TT+h}:{TT+h+1}], v[{st_}:{st_+1}] op_sel:[0,1] op_sel_hi:[1,1]")
        rnd(TT, TT + 4)
        for h in (0, 2):
            A(f"v_pk_mul_f32 v[{TT+h}:{TT+h+1}], v[{TT+h}:{TT+h+1}], v[{DK+h}:{DK+h+1}]")
        rnd(TT, TT + 4)
        for h in (0, 2):
            A(f"v_pk_add_f32 v[{acc+h}:{acc+h+1}], v[{acc+h}:{acc+h+1}], v[{TT+h}:{TT+h+1}]")
    A(f"v_mov_b32 v{vFV}, s{S_K}")
    flag_wait(21 + LB, vFD, vFP)
    lq = Queue(A, "lgkmcnt", 15)
    A(f"v_lshlrev_b32 v{vFA}, 4, v{VL}\nv_add_u32 v{vFA}, {AUX}, v{vFA}")
    A(f"ds_read_b32 v{vFD}, v{vFP} offset:{4*(22+LB)}")
    lq.issue(("f", 0))
    for s in range(LB):
        setB(s)
        for U in range(4):
            rdB(s, U)
    GATE = 12 - (DA - 1)
    def stage(s, limit):
        lq.wait(("b", s))
        if TS == 2:
            ts(16 + s, 2)
        if TS == 3:
            A(f"s_memtime s[{S_TS}:{S_TS+1}]\ns_waitcnt lgkmcnt(0)\ns_mov_b32 s50, s{S_TS}")
        vm.wait(("a", s))
        if TS == 3:
            A(f"s_memtime s[{S_TS}:{S_TS+1}]\ns_waitcnt lgkmcnt(0)\ns_sub_u32 s50, s{S_TS}, s50\nv_writelane_b32 v255, s50, {16+s}\nv_writelane_b32 v255, s{S_TS}, {40+s}")
        todo = []
        while st["nxt"] <= min(limit, s - 1 + DA, 21) and len(todo) < 2 * NT:
            todo += [(st["nxt"], Tp) for Tp in range(NT)]
            st["nxt"] += 1
        acts = []
        def mark():
            A(f"ds_write_b32 v{VFO}, v{vFV} offset:{4*(22+s)}")
            lq.issue("m")
        acts.append(mark)
        n_ = s + LB
        if n_ <= 21:
            acts.append(lambda: (setB(n_), lq.wait(("f", s)), flag_test(22 + n_, vFD, vFP, 4 * (22 + n_), acc=48)))
            if n_ < 21:
                acts.append(lambda: (A(f"ds_read_b32 v{vFD}, v{vFP} offset:{4*(23+n_)}"), lq.issue(("f", s + 1))))
            acts.append(lambda: (rdB(n_, 0), rdB(n_, 1)))
            acts.append(lambda: (rdB(n_, 2), rdB(n_, 3)))
        if s == GATE - 1:
            acts.append(lambda: (A(f"ds_read_b32 v{vG}, v{vFA}"), lq.issue("g")))
        lds = [lambda x=x: ldA1(*x) for x in todo]
        nm = 4 * NT
        sched = {i: [] for i in range(nm)}
        per = -(-len(acts) // max(nm - 2, 1))
        for i, f in enumerate(acts):
            sched[i // per].append(f)
        first = OPT.get("lf", 10) if NT == 6 else 0
        for i, f in enumerate(lds):
            sched[min(first + i * (nm - first) // len(lds), nm - 1)].append(f)
        for U in range(4):
            for Tp in range(NT):
                acc = (U * NT + Tp) * 4
                w = G2_B + (s % (LB + 1)) * 16 + U * 4
                a = G2_A + (s % DA) * 4 * NT + Tp * 4
                cin = "0" if (s == 0 and U != 0) else f"v[{acc}:{acc+3}]"
                A(f"v_mfma_f32_16x16x32_bf16 v[{acc}:{acc+3}], v[{w}:{w+3}], v[{a}:{a+3}], {cin}")
                for f in sched[U * NT + Tp]:
                    f()
    llate, ljoin = A.newlabel("L_late"), A.newlabel("L_join")
    for s in range(22):
        if s == GATE:
            assert st["nxt"] == 12
            lq.wait("g")
            A(f"v_cmp_le_u32 vcc, 3, v{vG}\ns_cbranch_vccz {llate}")
            keep = list(vm.q)
            keepl = list(lq.q)
            mark = len(A.lines)
            A.label(llate)
            for s2_ in range(GATE, 12):
                stage(s2_, 11)
            lr, lo = A.newlabel("L_fs"), A.newlabel("L_fs")
            A.label(lr)
            A(f"""ds_read_b32 v{vG}, v{vFA}
            s_waitcnt lgkmcnt(0)
            v_cmp_le_u32 vcc, 3, v{vG}
            s_cbranch_vccnz {lo}""")
            spin_tail(lr, lo, 1)
            A.label(lo)
            vm.q = []
            for s2_ in range(12, 12 + DA - 1):
                ldA(s2_)
            A(f"s_branch {ljoin}")
            late_q = list(vm.q)
            SLOW.extend(A.lines[mark:])
            del A.lines[mark:]
            vm.q = keep
            lq.q = keepl
            st["nxt"] = 12
        if s == 12:
            A.label(ljoin)
            assert vm.q[-NT*(DA-1):] == late_q and st["nxt"] == 12 + DA - 1
        stage(s, 21)
    ts(8, 2)
    tc(15)
    if TS == 3:
        A("v_writelane_b32 v255, s48, 62\nv_writelane_b32 v255, s49, 63")
    flag_wait(36, vFD, vFP, 2048)
    A(f"v_lshlrev_b32 v{vB}, 4, v{VL}")
    for Up in range(1, 4):
        A(f"""s_add_u32 s{S_T0}, s{S_WAVE}, {Up}
        s_and_b32 s{S_T0}, s{S_T0}, 3
        s_mul_i32 s{S_T0}, s{S_T0}, {3*NT*1024}
        s_add_u32 s{S_T0}, s{S_T0}, {RED + (Up-1)*NT*1024}
        v_add_u32 v{vB+Up}, s{S_T0}, v{vB}""")
    A(f"""s_mul_i32 s{S_T0}, s{S_WAVE}, {3*NT*1024}
    s_add_u32 s{S_T0}, s{S_T0}, {RED}
    v_add_u32 v{vB}, s{S_T0}, v{vB}""")
    for Tp in range(NT):
        for Up in range(1, 4):
            acc = (Up * NT + Tp) * 4
            A(f"ds_write_b128 v{vB+Up}, v[{acc}:{acc+3}] offset:{Tp*1024}")
    A("s_waitcnt lgkmcnt(0)\ns_barrier")
    lg = Queue(A, "lgkmcnt", 15)
    def rdR(Tp):
        for i in range(3):
            b = ((1 + i) * NT + Tp) * 4
            A(f"ds_read_b128 v[{b}:{b+3}], v{vB} offset:{(i*NT+Tp)*1024}")
            lg.issue(("r", Tp))
    for Tp in range(min(NT, 4)):
        rdR(Tp)
    for Tp in range(NT):
        lg.wait(("r", Tp))
        a0, a1, a2, a3 = [(i * NT + Tp) * 4 for i in range(4)]
        for h in (0, 2):
            A(f"v_pk_add_f32 v[{a0+h}:{a0+h+1}], v[{a0+h}:{a0+h+1}], v[{a1+h}:{a1+h+1}]")
            A(f"v_pk_add_f32 v[{a2+h}:{a2+h+1}], v[{a2+h}:{a2+h+1}], v[{a3+h}:{a3+h+1}]")
        for h in (0, 2):
            A(f"v_pk_add_f32 v[{a0+h}:{a0+h+1}], v[{a0+h}:{a0+h+1}], v[{a2+h}:{a2+h+1}]")
        A(f"global_store_dwordx4 v{vT+3}, v[{a0}:{a0+3}], s[{S_OUT}:{S_OUT+1}]{['', ' sc1', ' nt', ' sc0 sc1'][OPT.get('omod', 2)]}")
        if Tp < NT - 1:
            A(f"v_add_u32 v{vT+3}, {16*2560}, v{vT+3}")
        if Tp + 4 < NT:
            rdR(Tp + 4)
    ts(9, 2)
    ts_flush(200)
    A("s_endpgm")
    flush_slow()

def publish_flag(idx_code):
    A(f"""s_lshl_b32 s{S_T0}, s{S_T0}, 5
    s_add_u32 s{S_T0}, s{S_T0}, s{S_T0+1}
    s_lshl_b32 s{S_T0}, s{S_T0}, 2
    s_add_u32 s{S_T0}, s{S_T0}, {WS_FLAG}
    v_mov_b32 v250, s{S_T0}
    v_mov_b32 v251, s{S_NONCE}
    s_waitcnt vmcnt({idx_code})
    s_mov_b64 exec, 1
    global_store_dword v250, v251, s[{S_WS}:{S_WS+1}] sc1
    s_mov_b64 exec, -1""")

A.label("L_compute")
A(f"s_setprio {OPT.get('pc1', 2)}")
if OPT.get("pfc", 1):
    A(f"""s_cmp_lg_u32 s{S_WAVE}, 3
    s_cbranch_scc1 L_pcd
    s_getpc_b64 s[{S_M0}:{S_M0+1}]
    L_pcc:
    s_sub_u32 s{S_M0}, s{S_M0}, L_pcc-L_code_start
    s_subb_u32 s{S_M0+1}, s{S_M0+1}, 0
    s_lshl_b32 s{S_T0}, s{S_IDX}, 11
    v_and_b32 v2, 15, v{VL}
    v_lshlrev_b32 v2, 7, v2
    v_add_u32 v2, s{S_T0}, v2
    v_min_u32 v2, L_code_end-L_code_start-8, v2
    global_load_dword v247, v2, s[{S_M0}:{S_M0+1}]
    L_pcd:""")
A(f"s_waitcnt lgkmcnt(0)\ns_load_dword s{S_K}, s[{S_X}:{S_X+1}], 0")
srd(SRD_F, S_X, 4)
A(f"v_mov_b32 v2, {GO}\nv_mov_b32 v3, 0\nds_write_b32 v2, v3")
flag_init(FREE, S_WAVE, 248, FLG, None)
A(f"s_mov_b32 s{S_FR}, s{S_T0}")
late_scalars()
A(f"s_cmp_eq_u32 s{S_J}, 0\ns_cbranch_scc1 L_ssm_compute")
if OPT.get("tw", 3) == 1:
    touch_w2(251)
A('v_mov_b32 v249, 0')
if PA == 0:
    by_wave(mlp_rows_loads, mlp_cs_loads)
zero_regs(0, 128)()
rowpat_read(192, 198)
A(f"""s_and_b32 s{S_T0}, s{S_WAVE}, 1
s_lshl_b32 s{S_T0}, s{S_T0}, 13
v_add_u32 v192, s{S_T0}, v192
v_xor_b32 v193, 64, v192
v_lshrrev_b32 v198, 4, v{VL}              ; q
v_bfe_u32 v199, v{VL}, 2, 2               ; rr
v_and_b32 v160, 1, v198
v_lshl_add_u32 v160, v160, 2, v199        ; swizzle s
v_lshl_add_u32 v198, v198, 3, v199        ; k row
v_lshlrev_b32 v198, 8, v198
v_and_b32 v199, 3, v{VL}
v_lshl_add_u32 v198, v199, 3, v198
v_add_u32 v198, {WRING}, v198
s_lshr_b32 s{S_T0}, s{S_WAVE}, 1
s_lshl_b32 s{S_T0}, s{S_T0}, 2""")
for F in range(4):
    A(f"""s_add_u32 s{S_T0+1}, s{S_T0}, {F}
    v_xor_b32 v199, s{S_T0+1}, v160
    v_lshl_add_u32 v{194+F}, v199, 5, v198""")
ts(1, 2)
lg, entry, AX, AW = gemm1_loop("mlp")
A("s_waitcnt lgkmcnt(0)")
ts(3, 2)
tc(13)
if TS:
    A("v_writelane_b32 v255, s48, 10\nv_writelane_b32 v255, s49, 11")
if OPT.get("solo", 0):
    ts_flush(100)
    A("s_endpgm")
A(f"s_setprio {OPT.get('pc2', 3)}")
ER = 128
EC = 144
A(f"""s_and_b32 s{S_T0}, s{S_WAVE}, 1
s_lshl_b32 s{S_T0}, s{S_T0}, 10
s_add_u32 s{S_T0}, s{S_T0}, {M_ROW}
v_and_b32 v192, 15, v{VL}
v_lshlrev_b32 v192, 4, v192
v_add_u32 v192, s{S_T0}, v192
s_lshr_b32 s{S_T0}, s{S_WAVE}, 1
s_lshl_b32 s{S_T0}, s{S_T0}, 8
s_add_u32 s{S_T0}, s{S_T0}, {M_CS}
v_lshrrev_b32 v193, 4, v{VL}
v_lshlrev_b32 v193, 4, v193
v_add_u32 v193, s{S_T0}, v193""")
for T in range(4):
    A(f"ds_read_b128 v[{ER+4*T}:{ER+4*T+3}], v192 offset:{256*T}")
for F in range(4):
    for c in range(2):
        b = EC + (F * 2 + c) * 4
        A(f"ds_read_b128 v[{b}:{b+3}], v193 offset:{c*512+F*64}")
A(f"""s_lshl_b32 s{S_T0}, s{S_C}, 1
s_and_b32 s{S_T0+1}, s{S_WAVE}, 1
s_add_u32 s{S_T0}, s{S_T0}, s{S_T0+1}
s_mul_i32 s{S_T0}, s{S_T0}, 88
s_lshl_b32 s{S_T0+1}, s{S_CB}, 2
s_add_u32 s{S_T0}, s{S_T0}, s{S_T0+1}
s_and_b32 s{S_T0+1}, s{S_WAVE}, 2
s_add_u32 s{S_T0}, s{S_T0}, s{S_T0+1}
s_lshl_b32 s{S_T0}, s{S_T0}, 12
s_add_u32 s{S_T0}, s{S_T0}, {WS_ACT}
v_lshlrev_b32 v194, 4, v{VL}
v_add_u32 v194, s{S_T0}, v194
v_add_u32 v195, 4096, v194
s_waitcnt lgkmcnt(0)""")
if TS == 1:
    ts(16, 2)
ET = 176
EO = 184
n = 0
for u in range(2):
    for T in range(4):
        m = ER + 4 * T
        prs = []
        for F in (2 * u, 2 * u + 1):
            for h in (0, 2):
                g = ((F * 2 + 0) * 4 + T) * 4 + h
                up = ((F * 2 + 1) * 4 + T) * 4 + h
                prs.append((g, up, EC + (F * 2) * 4 + h, EC + (F * 2 + 1) * 4 + h))
        for i, (g, up, cg, cu) in enumerate(prs):
            A(f"v_pk_fma_f32 v[{g}:{g+1}], v[{cg}:{cg+1}], v[{m}:{m+1}], v[{g}:{g+1}] op_sel_hi:[1,0,1] neg_lo:[0,1,0] neg_hi:[0,1,0]")
        for i, (g, up, cg, cu) in enumerate(prs):
            e = ET + 2 * i
            A(f"v_pk_mul_f32 v[{e}:{e+1}], v[{g}:{g+1}], v[{m}:{m+1}] op_sel:[0,1] op_sel_hi:[1,1]")
        for i, (g, up, cg, cu) in enumerate(prs):
            e = ET + 2 * i
            A(f"v_exp_f32 v{e}, v{e}\nv_exp_f32 v{e+1}, v{e+1}")
            A(f"v_pk_fma_f32 v[{up}:{up+1}], v[{cu}:{cu+1}], v[{m}:{m+1}], v[{up}:{up+1}] op_sel_hi:[1,0,1] neg_lo:[0,1,0] neg_hi:[0,1,0]")
        for i, (g, up, cg, cu) in enumerate(prs):
            e = ET + 2 * i
            A(f"v_pk_fma_f32 v[{e}:{e+1}], v[{e}:{e+1}], v[{m+2}:{m+3}], v[{m+2}:{m+3}] op_sel_hi:[1,0,0]")
        for i, (g, up, cg, cu) in enumerate(prs):
            e = ET + 2 * i
            A(f"v_rcp_f32 v{e}, v{e}\nv_rcp_f32 v{e+1}, v{e+1}")
            A(f"v_pk_mul_f32 v[{g}:{g+1}], v[{g}:{g+1}], v[{up}:{up+1}]")
        for i, (g, up, cg, cu) in enumerate(prs):
            e = ET + 2 * i
            A(f"v_pk_mul_f32 v[{g}:{g+1}], v[{g}:{g+1}], v[{e}:{e+1}]")
        o = EO + 4 * (n % 2)
        for i, (g, up, cg, cu) in enumerate(prs):
            A(f"v_cvt_pk_bf16_f32 v{o+i}, v{g}, v{g+1}")
        if TS == 1 and n % 2 == 0:
            ts(17 + n, 2)
        if not OPT.get("nost", 0):
            A(f"global_store_dwordx4 v{194+u}, v[{o}:{o+3}], s[{S_WS}:{S_WS+1}] offset:{1024*T} sc1")
        if TS == 1 and n % 2 == 0:
            ts(18 + n, 2)
        n += 1
ts(4, 2)
A(f"""s_lshl_b32 s{S_T0}, s{S_C}, 1
s_and_b32 s{S_T0+1}, s{S_WAVE}, 1
s_add_u32 s{S_T0}, s{S_T0}, s{S_T0+1}
s_lshl_b32 s{S_T0+1}, s{S_CB}, 1
s_lshr_b32 s{S_T0+2}, s{S_WAVE}, 1
s_add_u32 s{S_T0+1}, s{S_T0+1}, s{S_T0+2}""")
gemm2_compute(6)

A.label("L_ssm_compute")
if PA == 0:
    ssm_rows_loads()
zero_regs(0, 160)()
rowpat_read(232, 160)
A(f"""s_lshr_b32 s{S_T0}, s{S_WAVE}, 1
s_mul_i32 s{S_T0}, s{S_T0}, 10240
s_add_u32 s{S_T0}, s{S_T0}, {WRING}
v_add_u32 v234, s{S_T0}, v232
v_xor_b32 v235, 64, v234
s_and_b32 s{S_T0}, s{S_WAVE}, 1
s_lshl_b32 s{S_T0}, s{S_T0}, 13
v_add_u32 v232, s{S_T0}, v232
v_xor_b32 v233, 64, v232""")
ts(1, 2)
lg, entry, AX, AW = gemm1_loop("ssm")
A("s_waitcnt lgkmcnt(0)")
ts(3, 2)
tc(13)
if TS:
    A("v_writelane_b32 v255, s48, 10\nv_writelane_b32 v255, s49, 11")
if OPT.get("solo", 0):
    ts_flush(100)
    A("s_endpgm")
A(f"s_setprio {OPT.get('pc2', 3)}")
def acc(G, c, m, r=0):
    return ((G * 2 + c) * 4 + m) * 4 + r
SM, SR_ = 160, 176
SCS = 192
SLAM = 202
SK = 212
SA = 222
A(f"""s_and_b32 s{S_T0}, s{S_WAVE}, 1
s_lshl_b32 s{S_T0}, s{S_T0}, 8
s_add_u32 s{S_T0}, s{S_T0}, {M_ROW}
v_lshrrev_b32 v{SA}, 4, v{VL}
v_lshlrev_b32 v{SA}, 4, v{SA}
v_add_u32 v{SA}, s{S_T0}, v{SA}
s_lshr_b32 s{S_T0+1}, s{S_WAVE}, 1
s_mul_i32 s{S_T0+1}, s{S_T0+1}, 80
v_and_b32 v{SA+1}, 15, v{VL}
v_add_u32 v{SA+1}, s{S_T0+1}, v{SA+1}
v_lshlrev_b32 v{SA+2}, 2, v{SA+1}
v_add_u32 v{SA+3}, {M_CS}, v{SA+2}
v_lshlrev_b32 v{SA+4}, 3, v{SA+1}
v_add_u32 v{SA+4}, {M_LAM}, v{SA+4}""")
for m in range(4):
    A(f"ds_read_b128 v[{SM+4*m}:{SM+4*m+3}], v{SA} offset:{64*m}")
    A(f"ds_read_b128 v[{SR_+4*m}:{SR_+4*m+3}], v{SA} offset:{512+64*m}")
for G in range(5):
    A(f"ds_read_b32 v{SCS+2*G}, v{SA+3} offset:{64*G}")
    A(f"ds_read_b32 v{SCS+2*G+1}, v{SA+3} offset:{640+64*G}")
for G in range(5):
    A(f"ds_read_b64 v[{SLAM+2*G}:{SLAM+2*G+1}], v{SA+4} offset:{128*G}")
    A(f"ds_read_b64 v[{SK+2*G}:{SK+2*G+1}], v{SA+4} offset:{M_COEF-M_LAM+128*G}")
A(f"""s_and_b32 s{S_T0}, s{S_WAVE}, 1
s_mul_i32 s{S_T0}, s{S_T0}, {8*1280}
s_add_u32 s{S_T0}, s{S_T0}, {E_BASE}
v_lshrrev_b32 v{SA+5}, 4, v{VL}
v_mul_u32_u24 v{SA+5}, 2560, v{SA+5}
v_lshl_add_u32 v{SA+5}, v{SA+2}, 1, v{SA+5}
v_add_u32 v{SA+5}, s{S_T0}, v{SA+5}
v_add_u32 v{SA+7}, 1280, v{SA+5}
s_waitcnt lgkmcnt(0)""")
def pk(op, d, a, b, c=None, sa=None, sb=None, sc=None, neg=None):
    ops = [a, b] + ([c] if c is not None else [])
    sel = [sa, sb] + ([sc] if c is not None else [])
    lo = [0 if s is None else s for s in sel]
    hi = [1 if s is None else s for s in sel]
    t = f"v_pk_{op}_f32 v[{d}:{d+1}], " + ", ".join(f"v[{o}:{o+1}]" for o in ops)
    t += " op_sel:[" + ",".join(map(str, lo)) + "] op_sel_hi:[" + ",".join(map(str, hi)) + "]"
    if neg is not None:
        nn = [1 if i == neg else 0 for i in range(len(ops))]
        t += " neg_lo:[" + ",".join(map(str, nn)) + "] neg_hi:[" + ",".join(map(str, nn)) + "]"
    A(t)
for m in range(4):
    for h in (0, 2):
        for G in range(5):
            for c in range(2):
                a = acc(G, c, m, h)
                pk("fma", a, SM + 4 * m + h, SCS + 2 * G, a, sb=c, neg=1)
        for G in range(5):
            for c in range(2):
                a = acc(G, c, m, h)
                pk("mul", a, a, SR_ + 4 * m + h)
steps = [(m, h) for m in range(4) for h in (0, 2)]
for k in range(1, 8):
    (m, h), (pm, ph) = steps[k], steps[k - 1]
    for G in range(5):
        pk("fma", acc(G, 0, m, h), acc(G, 0, pm, ph), SLAM + 2 * G, acc(G, 0, m, h), sb=0)
        pk("fma", acc(G, 1, m, h), acc(G, 1, pm, ph), SLAM + 2 * G, acc(G, 1, m, h), sb=0)
    for G in range(5):
        pk("fma", acc(G, 0, m, h), acc(G, 1, pm, ph), SLAM + 2 * G, acc(G, 0, m, h), sb=1, neg=1)
        pk("fma", acc(G, 1, m, h), acc(G, 0, pm, ph), SLAM + 2 * G, acc(G, 1, m, h), sb=1)
peer_addr(248, FREE)
flag_wait(18, 250, 248)
for G in range(5):
    for e in range(2):
        A(f"ds_write2_b32 v{SA+5+2*e}, v{acc(G,0,3,2+e)}, v{acc(G,1,3,2+e)} offset0:{32*G} offset1:{32*G+1}")
A("s_waitcnt lgkmcnt(0)\ns_setprio 0\ns_barrier")
ts(4, 2)
for m, h in steps:
    for G in range(5):
        t = SM + 2 * G
        pk("mul", t, acc(G, 0, m, h), SK + 2 * G, sb=1)
    for G in range(5):
        pk("mul", acc(G, 0, m, h), acc(G, 0, m, h), SK + 2 * G, sb=0)
    for G in range(5):
        pk("fma", acc(G, 0, m, h), acc(G, 1, m, h), SK + 2 * G, acc(G, 0, m, h), sb=1)
    for G in range(5):
        t = SM + 2 * G
        pk("fma", acc(G, 1, m, h), acc(G, 1, m, h), SK + 2 * G, t, sb=0, neg=1)
A(f"""s_mul_i32 s{S_T0}, s{S_WAVE}, 12288
s_add_u32 s{S_T0}, s{S_T0}, {TR_BASE}
v_and_b32 v{SA}, 7, v{VL}
v_bfe_u32 v{SA+1}, v{VL}, 3, 1
v_lshlrev_b32 v{SA+1}, 2, v{SA+1}
v_xor_b32 v{SA}, v{SA}, v{SA+1}                ; f
v_lshrrev_b32 v{SA+1}, 4, v{VL}
v_lshlrev_b32 v{SA+1}, 1, v{SA+1}
v_xor_b32 v{SA}, v{SA}, v{SA+1}                ; (2q) ^ f
v_and_b32 v{SA+1}, 15, v{VL}
v_lshlrev_b32 v{SA+1}, 7, v{SA+1}
v_lshl_add_u32 v{SA}, v{SA}, 4, v{SA+1}
v_add_u32 v{SA}, s{S_T0}, v{SA}                ; e = 0
v_xor_b32 v{SA+1}, 16, v{SA}                   ; e = 1
v_lshrrev_b32 v{SA+2}, 4, v{VL}                ; q
v_bfe_u32 v{SA+3}, v{VL}, 2, 2                 ; rr
v_and_b32 v{SA+4}, 1, v{SA+2}
v_lshl_add_u32 v{SA+4}, v{SA+4}, 2, v{SA+3}
v_bfe_u32 v{SA+6}, v{VL}, 1, 1                 ; cc>>1
v_xor_b32 v{SA+4}, v{SA+4}, v{SA+6}
v_lshl_add_u32 v{SA+2}, v{SA+2}, 3, v{SA+3}    ; row
v_lshlrev_b32 v{SA+2}, 7, v{SA+2}
v_lshl_add_u32 v{SA+2}, v{SA+4}, 4, v{SA+2}
v_and_b32 v{SA+3}, 1, v{VL}
v_lshl_add_u32 v{SA+2}, v{SA+3}, 3, v{SA+2}
v_add_u32 v{SA+2}, s{S_T0}, v{SA+2}""")
TA = 176
for Tq in range(4):
    A(f"v_xor_b32 v{TA+2*Tq}, {32*Tq}, v{SA+2}")
    A(f"v_xor_b32 v{TA+2*Tq+1}, {(32*Tq) ^ 64}, v{SA+2}")
A(f"""s_lshl_b32 s{S_T0}, s{S_C}, 1
s_and_b32 s{S_T0+1}, s{S_WAVE}, 1
s_add_u32 s{S_T0}, s{S_T0}, s{S_T0+1}
s_mul_i32 s{S_T0}, s{S_T0}, 88
s_mul_i32 s{S_T0+1}, s{S_CB}, 10
s_add_u32 s{S_T0}, s{S_T0}, s{S_T0+1}
s_lshr_b32 s{S_T0+1}, s{S_WAVE}, 1
s_mul_i32 s{S_T0+1}, s{S_T0+1}, 5
s_add_u32 s{S_T0}, s{S_T0}, s{S_T0+1}
s_add_u32 s{S_T0}, s{S_T0}, 48
s_lshl_b32 s{S_T0}, s{S_T0}, 12
s_add_u32 s{S_T0}, s{S_T0}, {WS_ACT}
v_lshlrev_b32 v{SA+3}, 4, v{VL}
v_add_u32 v{SA+3}, s{S_T0}, v{SA+3}""")
A("s_setprio 3\ns_barrier")
ts(5, 2)
SW = 184
SW = 182
def W(G, c):
    idx = G * 2 + c
    return (160 + 2 * idx) if idx < 8 else (192 + 2 * (idx - 8))
for G in range(5):
    for c in range(2):
        for e in range(2):
            A(f"ds_read_b32 v{W(G,c)+e}, v{SA+5} offset:{e*1280+c*4+128*G}")
A("s_waitcnt lgkmcnt(0)")
lg = Queue(A, "lgkmcnt", 15)
def stores(G):
    for Tq in range(4):
        lg.wait(("t", G, Tq))
        b = G * 32 + 16 + Tq * 4
        A(f"global_store_dwordx4 v{SA+3}, v[{b}:{b+3}], s[{S_WS}:{S_WS+1}] offset:{1024*Tq} sc1")
    if G < 4:
        A(f"v_add_u32 v{SA+3}, 4096, v{SA+3}")
def corr(G):
    out = []
    for k, (m, h) in enumerate(steps):
        for c in range(2):
            out.append(lambda c=c, m=m, h=h: pk("add", acc(G, c, m, h), acc(G, c, m, h), W(G, c)))
        if k < 7:
            out.append(lambda: pk("mul", 196, W(G, 0), SLAM + 2 * G, sb=1))
            out.append(lambda: pk("mul", W(G, 0), W(G, 0), SLAM + 2 * G, sb=0))
            out.append(lambda: pk("fma", W(G, 0), W(G, 1), SLAM + 2 * G, W(G, 0), sb=1))
            out.append(lambda: pk("fma", W(G, 1), W(G, 1), SLAM + 2 * G, 196, sb=0, neg=2))
    return out
def pack(G):
    out = []
    for c in range(2):
        o = (184 if G % 2 else 232) if c == 0 else G * 32
        for e in range(2):
            for m in range(4):
                out.append(lambda o=o, c=c, e=e, m=m: A(f"v_cvt_pk_bf16_f32 v{o+4*e+m}, v{acc(G,c,m,e)}, v{acc(G,c,m,2+e)}"))
            def wr(o=o, c=c, e=e):
                A(f"ds_write_b128 v{SA+e}, v[{o+4*e}:{o+4*e+3}] offset:{(G%3)*4096+c*2048}")
                lg.issue("w")
            out.append(wr)
    for Tq in range(4):
        def rd(Tq=Tq):
            b = G * 32 + 16 + Tq * 4
            A(f"ds_read_b64_tr_b16 v[{b}:{b+1}], v{TA+2*Tq} offset:{(G%3)*4096}")
            A(f"ds_read_b64_tr_b16 v[{b+2}:{b+3}], v{TA+2*Tq+1} offset:{(G%3)*4096+512}")
            lg.issue(("t", G, Tq)); lg.issue(("t", G, Tq))
        out.append(rd)
    return out
def store1(G, Tq):
    lg.wait(("t", G, Tq))
    b = G * 32 + 16 + Tq * 4
    A(f"global_store_dwordx4 v{SA+3}, v[{b}:{b+3}], s[{S_WS}:{S_WS+1}] offset:{1024*Tq} sc1")
    if Tq == 3:
        A(f"v_add_u32 v{SA+3}, 4096, v{SA+3}")
def weave(a, b):
    ia = ib = 0
    while ia < len(a) or ib < len(b):
        if ib >= len(b) or (ia < len(a) and ia * len(b) <= ib * len(a)):
            a[ia](); ia += 1
        else:
            b[ib](); ib += 1
for G in range(6):
    side = pack(G - 1) if G >= 1 else []
    if G >= 2:
        st4 = [lambda Tq=Tq: store1(G - 2, Tq) for Tq in range(4)]
        for i, f in enumerate(st4):
            side.insert(2 + 5 * i, f)
        if TS == 1 and G == 2:
            side.insert(0, lambda: ts(16, 2))
    weave(corr(G) if G < 5 else [], side)
stores(4)
A(f"v_mov_b32 v196, s{S_K}\nds_write_b32 v{VFO}, v196 offset:{4*21}")
if TS == 1:
    ts(17, 2)
A(f"""s_lshl_b32 s{S_T0}, s{S_C}, 1
s_and_b32 s{S_T0+1}, s{S_WAVE}, 1
s_add_u32 s{S_T0}, s{S_T0}, s{S_T0+1}
s_lshl_b32 s{S_T0+1}, s{S_CB}, 1
s_lshr_b32 s{S_T0+2}, s{S_WAVE}, 1
s_add_u32 s{S_T0+1}, s{S_T0+1}, s{S_T0+2}
s_add_u32 s{S_T0+1}, s{S_T0+1}, 24""")
(gemm2_small if OPT.get('small', 1) else gemm2_compute)(2)

def rowpat_load(dst, tmp, ssm):
    A(f"""v_lshrrev_b32 v{tmp}, 4, v{VL}
    v_xor_b32 v{tmp+1}, v{tmp}, v{VL}
    v_and_b32 v{tmp+1}, 7, v{tmp+1}              ; chunk""")
    if ssm:
        A(f"""v_lshrrev_b32 v{tmp}, 5, v{VL}
        v_lshlrev_b32 v{tmp}, 4, v{tmp}
        v_bfe_u32 v{dst}, v{VL}, 3, 1
        v_lshl_add_u32 v{tmp}, v{dst}, 3, v{tmp}
        v_bfe_u32 v{dst}, v{VL}, 4, 1
        v_add_u32 v{tmp}, v{tmp}, v{dst}""")
        up = 32
    else:
        A(f"v_lshrrev_b32 v{tmp}, 3, v{VL}")
        up = 8
    A(f"""v_mul_u32_u24 v{dst}, 1280, v{tmp}
    v_lshl_add_u32 v{dst}, v{tmp+1}, 4, v{dst}
    v_xor_b32 v{dst+1}, 64, v{dst}
    v_add_u32 v{dst+1}, {up*1280-1024}, v{dst+1}""")

LFP, LFV, LFD, LPA, LPD = 240, 241, 242, 243, 244
S_U, S_XS, S_S2 = 83, 84, 87
S_RET, S_SUB = 90, 30
class NoQ:
    def issue(self, t): pass
    def wait(self, t): pass
NOQ = NoQ()
CAP = OPT.get("cap", 9)
def cap(n=None):
    A(f"s_waitcnt vmcnt({CAP if n is None else n})")
class CapQ:
    def issue(self, t):
        cap()
    def wait(self, t): pass
CAPQ = CapQ()
class Jobs:
    def __init__(self):
        self.q = []
    def add(self, g):
        self.q.append(g)
    def step(self, n=1):
        if not self.q:
            return
        A(f"s_setprio {OPT.get('pls', 3)}")
        while n > 0 and self.q:
            try:
                next(self.q[0])
            except StopIteration:
                self.q.pop(0)
            n -= 1
        A("s_setprio 0")
def run(g):
    for _ in g:
        pass

LAX, LFQ = 245, 246
def declare(sreg):
    A(f"""s_lshl_b32 s{sreg}, s{sreg}, 2
    v_add_u32 v{LFQ}, s{sreg}, v{VFO}
    v_mov_b32 v{LFV}, s{S_K}
    ds_write_b32 v{LFQ}, v{LFV}""")
def wait_free(sreg):
    A(f"s_lshl_b32 s{sreg}, s{sreg}, 2\nv_add_u32 v{LFQ}, s{sreg}, v{LFP}")
    flag_wait(0, LFD, LFQ, nap=OPT.get('lnap', 0))
def stamp(idx_sreg, add):
    if TS:
        A(f"""s_memrealtime s[{S_TS}:{S_TS+1}]
        s_add_u32 m0, s{idx_sreg}, {add}
        s_waitcnt lgkmcnt(0)
        v_writelane_b32 v255, s{S_TS}, m0""")

def poll_setup(two):
    A(f"""s_lshl_b32 s{S_T0}, s{S_HB2}, {5+FSH}
    s_add_u32 s{S_T0}, s{S_T0}, {WS_FLAG + (24 << FSH)}
    v_and_b32 v{LPA}, 7, v{VL}
    v_lshlrev_b32 v{LPA}, {FSH}, v{LPA}
    v_add_u32 v{LPA}, s{S_T0}, v{LPA}""")
    if two:
        A(f"v_and_b32 v{LPD}, 8, v{VL}\nv_lshl_add_u32 v{LPA}, v{LPD}, {2+FSH}, v{LPA}")
def poll_issue():
    A(f"global_load_dword v{LPD}, v{LPA}, s[{S_WS}:{S_WS+1}] sc1")
def poll_until():
    if OPT.get("nogate", 0):
        return
    lr, lo = A.newlabel("L_pu"), A.newlabel("L_pu")
    A(f"s_mov_b32 s{S_U}, 0")
    A.label(lr)
    poll_issue()
    A(f"""s_waitcnt vmcnt(0)
    v_cmp_ne_u32 vcc, s{S_NONCE}, v{LPD}
    s_cbranch_vccz {lo}""")
    if NREP > 1:
        next_copy(LPA, NREP, REPS, S_U)
    if OPT.get("pun", 4):
        A(f"s_sleep {OPT.get('pun', 4)}")
    spin_tail(lr, lo, 3)
    A.label(lo)
    A(f"v_mov_b32 v{LFV}, 3\nds_write_b32 v{LAX}, v{LFV}")
def poll_check():
    lo = A.newlabel("L_pk")
    A(f"""v_cmp_ne_u32 vcc, s{S_NONCE}, v{LPD}
    s_cbranch_vccnz {lo}
    v_mov_b32 v{LFV}, 3
    ds_write_b32 v{LAX}, v{LFV}""")
    A.label(lo)

VW2, VC2 = 12, 15
def g2_setup(NT, tmp):
    srd(SRD_W2, S_W2, 1966080)
    srd(SRD_C, S_CRE, 819200)
    srd(SRD_T, S_CIM, 819200)
    A(f"""s_lshl_b32 s{S_T0}, s{S_DCOL}, 1
    v_lshrrev_b32 v{tmp}, 4, v{VL}
    v_lshlrev_b32 v{tmp}, 1, v{tmp}
    v_xor_b32 v{tmp}, v{tmp}, v{VL}
    v_and_b32 v{tmp}, 7, v{tmp}
    v_lshrrev_b32 v{tmp+1}, 3, v{VL}
    v_mul_u32_u24 v{tmp+1}, 1280, v{tmp+1}
    v_lshl_add_u32 v{tmp}, v{tmp}, 4, v{tmp+1}
    v_add_u32 v{VW2}, s{S_T0}, v{tmp}""")
    rowpat_load(VC2, tmp, False)
    A(f"""s_mul_i32 s{S_T0}, s{S_DCOL}, 1280
    v_add_u32 v{VC2}, s{S_T0}, v{VC2}
    v_add_u32 v{VC2+1}, s{S_T0}, v{VC2+1}
    s_add_u32 s{S_S2}, s{S_LW}, 1
    s_and_b32 s{S_S2}, s{S_S2}, 3
    s_add_u32 s{S_KS}, s{S_S2}, s{S_R2A}
    s_cmp_ge_u32 s{S_KS}, 12
    s_cselect_b32 s{S_T0}, 12, 0
    s_sub_u32 s{S_KS}, s{S_KS}, s{S_T0}
    s_mul_i32 s{S_KS}, s{S_KS}, {128*1280}
    v_lshlrev_b32 v236, 4, v{VL}""")
    poll_setup(NT == 6)

def g2_pieces(k):
    out = []
    for i in range(16):
        if k < 3:
            out.append((VW2, SRD_W2, i * 8 * 1280, 0))
        else:
            mat, ii = i // 8, i % 8
            out.append((VC2 + ii % 2, SRD_T if mat else SRD_C, (ii // 2) * 16 * 1280, 1024 * (ii % 2)))
    return out
def g2_next(k):
    if k == 2:
        A(f"""s_and_b32 s{S_KS}, s{S_S2}, 3
        s_add_u32 s{S_KS}, s{S_KS}, s{S_R2B}
        s_cmp_ge_u32 s{S_KS}, 10
        s_cselect_b32 s{S_T0}, 10, 0
        s_sub_u32 s{S_KS}, s{S_KS}, s{S_T0}
        s_lshl_b32 s{S_KS}, s{S_KS}, 7""")
    else:
        step, n = (128 * 1280, 12) if k < 2 else (128, 10)
        A(f"""s_add_u32 s{S_KS}, s{S_KS}, {4*step}
        s_cmp_ge_u32 s{S_KS}, {n*step}
        s_cselect_b32 s{S_T0}, {n*step}, 0
        s_sub_u32 s{S_KS}, s{S_KS}, s{S_T0}""")
THR = OPT.get("thr", 8)
def g2_load(k, base, thr):
    for i, (v, sd, ex, io) in enumerate(g2_pieces(k)):
        if i:
            yield
        A(f"s_add_u32 s{S_T0+7}, s{S_KS}, {ex}\ns_waitcnt vmcnt({thr})")
        A(f"buffer_load_dwordx4 v[{base+4*i}:{base+4*i+3}], v{v}, s[{sd}:{sd+3}], s{S_T0+7} offen offset:{io}")
    g2_next(k)
    ts(48 + k, 2)
def g2_put(k, base, young, lowest, g=None):
    A(f"s_add_u32 s{S_T0+6}, s{S_S2}, {22-NS2}\ns_max_u32 s{S_T0+6}, s{S_T0+6}, {lowest}")
    wait_free(S_T0 + 6)
    A(f"s_waitcnt vmcnt({young})\nv_add_u32 v237, s{S_SLOT}, v236")
    for i in range(16):
        A(f"ds_write_b128 v237, v[{base+4*i}:{base+4*i+3}] offset:{1024*i}")
        if g is not None and i % OPT.get('il', 2) == OPT.get('il', 2) - 1:
            next(g, None)
    A(f"""s_add_u32 s{S_S2}, s{S_S2}, 4
    s_add_u32 s{S_T0+6}, s{S_S2}, 21""")
    declare(S_T0 + 6)
    ts(40 + k, 2)
    A(f"""s_add_u32 s{S_SLOT}, s{S_SLOT}, {4*SL2}
    s_cmp_ge_u32 s{S_SLOT}, {NS2*SL2}
    s_cselect_b32 s{S_T0}, {NS2*SL2}, 0
    s_sub_u32 s{S_SLOT}, s{S_SLOT}, s{S_T0}""")
    if g is not None:
        run(g)
    A("s_waitcnt lgkmcnt(0)")

def bump_epoch(T):
    lr, lo = A.newlabel("L_ep"), A.newlabel("L_ep")
    ld = A.newlabel("L_ep")
    A(f"""s_cmp_lg_u32 s2, 0
    s_cbranch_scc1 {ld}
    s_cmp_lg_u32 s{S_LW}, 2
    s_cbranch_scc1 {ld}
    v_lshrrev_b32 v{T}, 4, v{VL}
    v_lshlrev_b32 v{T}, 6, v{T}
    v_and_b32 v{T+1}, 15, v{VL}
    v_lshl_add_u32 v{T}, v{T+1}, 1, v{T}
    v_lshlrev_b32 v{T}, {FSH}, v{T}""")
    A.label(lr)
    A(f"v_add_u32 v{T+1}, {WS_FLAG}, v{T}")
    for i in range(4):
        A(f"global_load_dword v{T+4+i}, v{T+1}, s[{S_WS}:{S_WS+1}] sc1\nv_add_u32 v{T+1}, {256 << FSH}, v{T+1}")
    A(f"s_waitcnt vmcnt(0)\ns_mov_b64 s[{S_M0}:{S_M0+1}], 0")
    for i in range(4):
        A(f"v_cmp_ne_u32 vcc, s{S_NONCE}, v{T+4+i}\ns_nop 1\ns_or_b64 s[{S_M0}:{S_M0+1}], s[{S_M0}:{S_M0+1}], vcc")
    A(f"s_cmp_eq_u64 s[{S_M0}:{S_M0+1}], 0\ns_cbranch_scc1 {lo}")
    spin_tail(lr, lo, 4)
    A.label(lo)
    A(f"""v_mov_b32 v{T}, {WS_E}
    v_mov_b32 v{T+1}, s{S_NONCE}
    s_mov_b64 exec, 1
    global_store_dword v{T}, v{T+1}, s[{S_WS}:{S_WS+1}] sc1
    s_mov_b64 exec, -1""")
    A.label(ld)

def prefetch(vm, T, tag):
    if not OPT["pf"]:
        return
    if not OPT.get("pfc", 1):
      for i in range(2):
        vm.issue("pf")
      A(f"""s_getpc_b64 s[{S_M0}:{S_M0+1}]
    L_pc{tag}:
    s_sub_u32 s{S_M0}, s{S_M0}, L_pc{tag}-L_code_start
    s_subb_u32 s{S_M0+1}, s{S_M0+1}, 0
    s_lshl_b32 s{S_T0}, s{S_LW}, 13
    v_lshlrev_b32 v{T}, 7, v{VL}
    v_add_u32 v{T}, s{S_T0}, v{T}
    v_add_u32 v{T+1}, 32768, v{T}
    v_min_u32 v{T+1}, L_code_end-L_code_start-8, v{T+1}
    global_load_dword v250, v{T}, s[{S_M0}:{S_M0+1}]
    global_load_dword v249, v{T+1}, s[{S_M0}:{S_M0+1}]""")
    A(f"""s_cmp_ge_u32 s{S_LW}, 2
    s_cselect_b32 s{S_T0}, 49, 59
    s_mov_b32 s{S_T0+1}, 7680
    s_cmov_b32 s{S_T0+1}, 3200
    s_cselect_b32 s{S_T0+4}, s{S_CRE}, s{S_W2}
    s_cselect_b32 s{S_T0+5}, s{S_CRE+1}, s{S_W2+1}
    s_mul_i32 s{S_T0+1}, s{S_T0+1}, s2
    s_cmp_eq_u32 s{S_LW}, 1
    s_cselect_b32 s{S_T0+2}, 3840, 0
    s_add_u32 s{S_T0+1}, s{S_T0+1}, s{S_T0+2}
    s_cmp_eq_u32 s{S_LW}, 3
    s_cselect_b32 s{S_T0+4}, s{S_CIM}, s{S_T0+4}
    s_cselect_b32 s{S_T0+5}, s{S_CIM+1}, s{S_T0+5}
    v_min_u32 v{T}, s{S_T0}, v{VL}
    v_lshlrev_b32 v{T}, 6, v{T}
    v_add_u32 v{T}, s{S_T0+1}, v{T}
    global_load_dword v248, v{T}, s[{S_T0+4}:{S_T0+5}]""")
    vm.issue("pf")


def head_begin():
    return len(A.lines)
def head_end(mark):
    HEADS.extend(A.lines[mark:])
    del A.lines[mark:]

def issue_sub(kind):
    mlp = kind == "mlp"
    SLOT = 16384 if mlp else 20480
    A.label(f"L_sub_{kind}")
    A(f"s_waitcnt lgkmcnt(0)")
    flag_test(None, LFD, LFQ, 0, nap=OPT.get('lnap', 0))
    A.label(f"L_subn_{kind}")
    stamp(S_U, 16)
    lx = A.newlabel("L_is")
    A(f"s_bitcmp1_b32 s{S_U}, 0\ns_cbranch_scc1 {lx}")
    A(f"s_add_u32 m0, s{S_XS}, s{S_T0+9}")
    for h in range(4):
        cap()
        A(f"buffer_load_dwordx4 v{2+h}, s[{SRD_X}:{SRD_X+3}], s{S_KX} offen offset:{1024*h} lds")
    A(f"""s_add_u32 s{S_XS}, s{S_XS}, 16384
    s_cmp_eq_u32 s{S_XS}, {3*16384}
    s_cselect_b32 s{S_XS}, 0, s{S_XS}""")
    if not mlp:
        A(f"s_add_u32 m0, s{S_SLOT}, s{S_T0+8}")
        for h in range(4):
            cap()
            A(f"buffer_load_dwordx4 v{6+h}, s[{SRD_WA}:{SRD_WA+3}], s{S_KX} offen offset:{1024*h} lds")
        A(f"s_add_u32 m0, m0, 4096")
        cap()
        A(f"buffer_load_dwordx4 v10, s[{SRD_WA}:{SRD_WA+3}], s{S_KX} offen lds\ns_branch {lx}b")
    A.label(lx)
    if mlp:
        for mat, sd in enumerate((SRD_WA, SRD_WB)):
            A(f"s_add_u32 m0, s{S_SLOT}, s{S_T0+8}" if mat == 0 else "s_add_u32 m0, m0, 8192")
            for h in range(2):
                cap()
                A(f"buffer_load_dwordx4 v{6+h}, s[{sd}:{sd+3}], s{S_KW} offen offset:{1024*h} lds")
        A(f"""s_add_u32 s{S_KW}, s{S_KW}, {32*3072}
        s_cmp_eq_u32 s{S_KW}, {20*32*3072}
        s_cselect_b32 s{S_KW}, {64*3072 if C0 else 0}, s{S_KW}
        s_bitcmp1_b32 s{S_U}, 0
        s_cbranch_scc0 {lx}b""")
    else:
        A(f"s_add_u32 m0, s{S_SLOT}, s{S_T0+8}")
        for h in range(4):
            cap()
            A(f"buffer_load_dwordx4 v{6+h}, s[{SRD_WB}:{SRD_WB+3}], s{S_KX} offen offset:{1024*h} lds")
        A(f"s_add_u32 m0, m0, 4096")
        cap()
        A(f"buffer_load_dwordx4 v10, s[{SRD_WB}:{SRD_WB+3}], s{S_KX} offen lds")
    A(f"""s_add_u32 s{S_KX}, s{S_KX}, 128
    s_cmp_eq_u32 s{S_KX}, 1280
    s_cselect_b32 s{S_KX}, {128 if C0 else 0}, s{S_KX}""")
    A.label(f"{lx}b")
    A(f"""s_add_u32 s{S_U}, s{S_U}, 1
    s_add_u32 s{S_FM}, s{S_FM}, 4
    v_add_u32 v{LFQ}, 4, v{LFQ}
    s_mov_b32 m0, s{S_FM}
    ds_read_b32 v{LFD}, v{LFQ}
    s_add_u32 s{S_SLOT}, s{S_SLOT}, {SLOT}
    s_cmp_eq_u32 s{S_SLOT}, {5*SLOT}
    s_cselect_b32 s{S_SLOT}, 0, s{S_SLOT}""")
    cap()
    A(f"""buffer_load_dword v{VZ}, s[{SRD_X}:{SRD_X+3}], 0 offen lds
    s_setpc_b64 s[{S_RET}:{S_RET+1}]""")
    flush_slow()
S_FM = 22
def call_sub(check=True):
    if check:
        A(f"s_swappc_b64 s[{S_RET}:{S_RET+1}], s[{S_SUB}:{S_SUB+1}]")
    else:
        A(f"s_swappc_b64 s[{S_RET}:{S_RET+1}], s[{S_SUBN}:{S_SUBN+1}]")
S_SUBN = 32
def declare_dma(sreg=None):
    if sreg is not None:
        A(f"s_lshl_b32 s{sreg}, s{sreg}, 2\ns_add_u32 s{S_FM}, s{S_FM}, s{sreg}")
    A(f"s_mov_b32 m0, s{S_FM}")
    cap()
    A(f"buffer_load_dword v{VZ}, s[{SRD_X}:{SRD_X+3}], 0 offen lds")

def head_rest(kind):
    mlp = kind == "mlp"
    SLOT = 16384 if mlp else 20480
    flag_init(FLG, S_LW, LFP, FREE, LAX)
    A(f"""s_add_u32 s{S_FM}, s{S_T0}, 4
    v_subrev_u32 v{LFQ}, 8, v{LFP}
    s_getpc_b64 s[{S_SUB}:{S_SUB+1}]
    L_gp_{kind}:
    s_add_u32 s{S_SUBN}, s{S_SUB}, L_subn_{kind}-L_gp_{kind}
    s_addc_u32 s{S_SUBN+1}, s{S_SUB+1}, 0
    s_add_u32 s{S_SUB}, s{S_SUB}, L_sub_{kind}-L_gp_{kind}
    s_addc_u32 s{S_SUB+1}, s{S_SUB+1}, 0
    s_mov_b32 s{S_U}, 2
    s_mov_b32 s{S_SLOT}, {2*SLOT}
    s_mov_b32 s{S_XS}, 16384
    s_mov_b32 m0, s{S_FM}
    s_add_u32 s{S_FM}, s{S_FM}, 4
    buffer_load_dword v{VZ}, s[{SRD_X}:{SRD_X+3}], 0 offen lds""")
    if mlp:
        A(f"s_add_u32 s{S_KW}, s{S_KW}, {32*3072}")
        for mat, sd in enumerate((SRD_WA, SRD_WB)):
            A(f"s_add_u32 m0, s{S_T0+8}, {SLOT + mat*8192}\ns_nop 0")
            for h in range(2):
                A(f"buffer_load_dwordx4 v{6+h}, s[{sd}:{sd+3}], s{S_KW} offen offset:{1024*h} lds")
        A(f"""s_add_u32 s{S_KW}, s{S_KW}, {32*3072}
        s_cmp_eq_u32 s{S_KW}, {20*32*3072}
        s_cselect_b32 s{S_KW}, 0, s{S_KW}""")
    else:
        A(f"s_add_u32 m0, s{S_T0+8}, {SLOT}\ns_nop 0")
        for h in range(4):
            A(f"buffer_load_dwordx4 v{6+h}, s[{SRD_WB}:{SRD_WB+3}], s{S_KX} offen offset:{1024*h} lds")
        A(f"s_add_u32 m0, m0, 4096\ns_nop 0\nbuffer_load_dwordx4 v10, s[{SRD_WB}:{SRD_WB+3}], s{S_KX} offen lds")
    A(f"""s_add_u32 s{S_KX}, s{S_KX}, 128
    s_cmp_eq_u32 s{S_KX}, 1280
    s_cselect_b32 s{S_KX}, 0, s{S_KX}""")
    if C0:
        A(f"""s_add_u32 s{S_T0}, s{S_ROT}, 1
        s_lshl_b32 s{S_KX}, s{S_T0}, 7
        s_mul_i32 s{S_KW}, s{S_T0}, {64*3072}""")
    late_scalars()
    declare_dma()
    ts(1, 2)
    for u in range(2, 5):
        call_sub(False)
    nonce_load()
    if OPT.get("solo", 0) >= 2:
        for u in range(5, 20):
            call_sub()
        A(f"s_mov_b32 s{S_T0+6}, 1")
        declare_dma(S_T0 + 6)
        A("s_waitcnt vmcnt(0)")
        ts_flush(100)
        A("s_endpgm")
    A(f"s_branch L_{kind}_loader")
    issue_sub(kind)

GW = OPT.get('gw', 19)
def g1_main(jobs, gran_loads_, gran_work, nstep, early=None):
    for u in range(5, 20):
        if u == GW:
            A(f"s_setprio {OPT.get('pls', 3)}")
            gran_work()
            A("s_setprio 0")
        call_sub()
        if u >= 6 and u % 2 == 0 or u >= 10:
            jobs.step(nstep)
        if early and OPT.get("tw", 3) == 5 and u == OPT.get("twu", 17):
            touch_w2(233, S_LW)
        if early and u >= 20 - early.n:
            early.step()
        if u == GW - 3:
            assert not jobs.q
            gran_loads_()
    A(f"s_add_u32 s{S_T0+6}, s{S_S2}, 1")
    declare_dma(S_T0 + 6)

def finish():
    A("s_barrier")
    bump_epoch(200)
    ts(9, 2)
    ts_flush(100)
    A("s_endpgm")
    flush_slow()

mark = head_begin()
A(f"s_cmp_eq_u32 s{S_J}, 0\ns_cbranch_scc1 L_ssm_head")
rowpat_load(2, 10, False)
A(f"""s_mul_i32 s{S_T0}, s{S_C}, 163840
s_mul_i32 s{S_T0+1}, s{S_LW}, {32*1280}
s_add_u32 s{S_T0}, s{S_T0}, s{S_T0+1}
v_add_u32 v2, s{S_T0}, v2
v_add_u32 v3, s{S_T0}, v3
v_add_u32 v4, {16*1280-2048}, v2
v_add_u32 v5, {16*1280-2048}, v3
v_lshrrev_b32 v10, 4, v{VL}
s_and_b32 s{S_T0}, s{S_LW}, 1
s_lshl_b32 s{S_T0}, s{S_T0}, 2
v_or_b32 v11, s{S_T0}, v10                ; swizzle
v_lshlrev_b32 v11, 1, v11
v_and_b32 v6, 15, v{VL}
v_xor_b32 v11, v11, v6
v_mul_u32_u24 v10, 3072, v10
v_lshl_add_u32 v10, v11, 4, v10
s_mul_i32 s{S_T0}, s{S_LW}, {8*3072}
s_lshl_b32 s{S_T0+1}, s{S_CB}, 8
s_add_u32 s{S_T0}, s{S_T0}, s{S_T0+1}
v_add_u32 v6, s{S_T0}, v10
v_add_u32 v7, {4*3072-1024}, v6
s_mul_i32 s{S_KX}, s{S_ROT}, {0 if C0 else 128}
s_mul_i32 s{S_KW}, s{S_ROT}, {0 if C0 else 64*3072}
s_lshl_b32 s{S_T0+9}, s{S_LW}, 12
s_lshl_b32 s{S_T0+8}, s{S_LW}, 11
s_add_u32 s{S_T0+8}, s{S_T0+8}, {WRING}
s_mov_b32 m0, s{S_T0+9}
s_waitcnt lgkmcnt(0)
s_load_dword s{S_K}, s[{S_X}:{S_X+1}], 0""")
srd(SRD_X, S_X, 2621440)
for h in range(4):
    A(f"buffer_load_dwordx4 v{2+h}, s[{SRD_X}:{SRD_X+3}], s{S_KX} offen offset:{1024*h} lds")
srd(SRD_WA, S_W1, 1966080)
srd(SRD_WB, S_W3, 1966080)
for mat, sd in enumerate((SRD_WA, SRD_WB)):
    A(f"s_add_u32 m0, s{S_T0+8}, {mat*8192}\ns_nop 0")
    for h in range(2):
        A(f"buffer_load_dwordx4 v{6+h}, s[{sd}:{sd+3}], s{S_KW} offen offset:{1024*h} lds")
head_rest("mlp")
head_end(mark)
A.label("L_mlp_loader")
vm = NOQ
GA, GD = 18, 22
def gran_loads():
    for i in range(4):
        cap()
        A(f"global_load_dwordx4 v[{GD+4*i}:{GD+3+4*i}], v{GA+i}, s[{S_WS}:{S_WS+1}] sc1")
def mlp_setup3():
    A(f"""s_mul_i32 s{S_T0}, s{S_LW}, {1536*8}
    s_lshl_b32 s{S_T0+1}, s{S_CB}, 10
    s_add_u32 s{S_T0}, s{S_T0}, s{S_T0+1}
    s_add_u32 s{S_T0}, s{S_T0}, {WS_CSW}
    s_lshl_b32 s{S_T0+1}, s{S_C}, 10
    s_add_u32 s{S_T0+1}, s{S_T0+1}, {WS_STAT}
    s_lshl_b32 s{S_T0+2}, s{S_TG}, 7
    s_add_u32 s{S_T0+2}, s{S_T0+2}, {WS_STAT}
    s_cmp_eq_u32 s{S_LW}, 2
    s_cselect_b32 s{S_T0+1}, s{S_T0+2}, s{S_T0+1}
    s_cmp_ge_u32 s{S_LW}, 2
    s_cselect_b32 s{S_T0}, s{S_T0+1}, s{S_T0}
    s_cselect_b32 s{S_T0+1}, 0, {3072*8}
    v_lshlrev_b32 v{GA}, 4, v{VL}
    v_add_u32 v{GA}, s{S_T0}, v{GA}
    v_add_u32 v{GA+1}, s{S_T0+1}, v{GA}
    v_add_u32 v{GA+2}, s{S_T0+1}, v{GA+1}
    v_add_u32 v{GA+3}, s{S_T0+1}, v{GA+2}""")
def mlp_gran():
    if True:
        vm.wait("gran")
        lr, lo, lskip, lstat = A.newlabel("L_gr"), A.newlabel("L_gr"), A.newlabel("L_gr"), A.newlabel("L_gr")
        A.label(lr)
        A(f"s_mov_b64 s[{S_M0}:{S_M0+1}], 0")
        for i in range(8):
            A(f"v_cmp_ne_u32 vcc, s{S_NONCE}, v{GD+1+2*i}\ns_nop 1\ns_or_b64 s[{S_M0}:{S_M0+1}], s[{S_M0}:{S_M0+1}], vcc")
        A(f"s_cmp_eq_u64 s[{S_M0}:{S_M0+1}], 0\ns_cbranch_scc1 {lo}")
        gran_loads()
        A("s_waitcnt vmcnt(0)")
        spin_tail(lr, lo, 5)
        A.label(lo)
        A(f"s_cmp_eq_u32 s{S_LW}, 3\ns_cbranch_scc1 {lstat}")
        A(f"""s_cmp_lg_u32 s{S_LW}, 2
        s_cbranch_scc1 {lstat}c
        v_lshlrev_b32 v{GD+1}, 3, v{VL}
        v_add_u32 v{GD+1}, {XL+13312}, v{GD+1}
        ds_write2_b32 v{GD+1}, v{GD}, v{GD+2} offset0:0 offset1:1
        s_branch {lskip}""")
        A.label(f"{lstat}c")
        A(f"""v_add_f32 v{GD}, v{GD}, v{GD+4}
        v_add_f32 v{GD+2}, v{GD+2}, v{GD+6}
        v_add_f32 v{GD+8}, v{GD+8}, v{GD+12}
        v_add_f32 v{GD+10}, v{GD+10}, v{GD+14}
        v_add_f32 v{GD}, v{GD}, v{GD+8}
        v_add_f32 v{GD+1}, v{GD+2}, v{GD+10}
        s_lshl_b32 s{S_T0}, s{S_LW}, 9
        s_add_u32 s{S_T0}, s{S_T0}, {M_CS}
        v_lshlrev_b32 v{GD+2}, 3, v{VL}
        v_add_u32 v{GD+2}, s{S_T0}, v{GD+2}
        ds_write_b64 v{GD+2}, v[{GD}:{GD+1}]
        s_branch {lskip}""")
        A.label(lstat)
        for hrow, p in ((0, GD), (1, GD + 2)):
            o = GD + 4 + 4 * hrow
            A(f"""v_and_b32 v{o+2}, 0xffff0000, v{p}
            v_lshlrev_b32 v{o}, 16, v{p}
            v_rcp_f32 v{o+1}, v{o+2}
            v_mul_f32 v{o+2}, v{o+2}, v{o+2}
            v_mul_f32 v{o+1}, {NLOG2E}, v{o+1}""")
        A(f"""v_lshlrev_b32 v{GD+2}, 5, v{VL}
        v_add_u32 v{GD+2}, {M_ROW}, v{GD+2}
        ds_write_b128 v{GD+2}, v[{GD+4}:{GD+7}]
        ds_write_b128 v{GD+2}, v[{GD+8}:{GD+11}] offset:16""")
        A.label(lskip)
        A("s_waitcnt lgkmcnt(0)")

nonce_ready()
def only2(fn):
    l = A.newlabel("L_nc")
    A(f"s_cmp_lg_u32 s{S_LW}, 2\ns_cbranch_scc1 {l}")
    fn()
    A.label(l)
    return
    yield
def one(fn):
    fn()
    return
    yield
jobs = Jobs()
if CSL:
    assert PB >= 4
    jobs.add(one(cs_by_loader))
jobs.add(one(mlp_setup3))
jobs.add(one(lambda: g2_setup(6, 232)))
def x_tile():
    A(f"""s_lshl_b32 s{S_T0}, s{S_TG}, 4
    s_mul_i32 s{S_T0+1}, s{S_LW}, 24
    s_add_u32 s{S_T0}, s{S_T0}, s{S_T0+1}
    s_mul_i32 s{S_T0}, s{S_T0}, 1280
    s_lshl_b32 s{S_T0+1}, s{S_DCOL}, 1
    s_add_u32 s{S_T0}, s{S_T0}, s{S_T0+1}
    v_lshrrev_b32 v232, 3, v{VL}
    v_mul_u32_u24 v232, 1280, v232
    v_and_b32 v233, 7, v{VL}
    v_lshl_add_u32 v232, v233, 4, v232
    s_mul_i32 s{S_T0+2}, s{S_LW}, 3072""")
    for i in range(3):
        A(f"s_add_u32 m0, s{S_T0+2}, {XL+1024*i}\ns_add_u32 s{S_T0+7}, s{S_T0}, {8*1280*i}")
        cap()
        A(f"buffer_load_dwordx4 v232, s[{SRD_X}:{SRD_X+3}], s{S_T0+7} offen lds")
    A(f"""s_mov_b32 s{S_M0}, s{S_DSK}
    s_mov_b32 s{S_M0+1}, s{S_DSK+1}
    s_mov_b32 s{S_M0+2}, 1280
    s_mov_b32 s{S_M0+3}, 0x20000
    s_mov_b32 m0, {XL+12288}
    v_lshlrev_b32 v233, 4, v{VL}
    buffer_load_dwordx4 v233, s[{S_M0}:{S_M0+3}], s{S_T0+1} offen lds""")
def mg():
    mlp_gran()
    if XE == 2:
        x_tile()
MB = [40, 104, 168, 40, 104, 168]
T1 = OPT.get("thr1", CAP)
class Early:
    def __init__(self):
        self.n, self.ch = OPT.get("en", 0), OPT.get("ech", 2)
        def both():
            yield from g2_load(0, MB[0], CAP)
            yield
            yield from g2_load(1, MB[1], CAP)
        self.g = both()
    def step(self):
        for _ in range(self.ch):
            next(self.g, None)
early = Early()
g1_main(jobs, gran_loads, mg, 1, early)
if OPT.get("tw", 3) == 4:
    touch_w2(233, S_LW)
ts(47, 2)
run(early.g)
A(f"s_lshl_b32 s{S_SLOT}, s{S_S2}, 14")
if OPT.get("ord", 0):
    run(g2_load(2, MB[2], T1))
    g2_put(0, MB[0], 32, 20)
else:
    g2_put(0, MB[0], 16, 20, g2_load(2, MB[2], T1))
g2_put(1, MB[1], 16, 20, g2_load(3, MB[3], T1))
run(g2_load(4, MB[4], THR))
g2_put(2, MB[2], 32, 21 if XE == 2 else 20)
la = A.newlabel("L_k")
A(f"s_cmp_ge_u32 s{S_S2}, 14\ns_cbranch_scc1 {la}")
g2_put(3, MB[3], 16, 20, g2_load(5, MB[5], OPT.get('thr5', THR)))
A(f"s_branch {la}b")
A.label(la)
g2_put(3, MB[3], 16, 20)
A.label(f"{la}b")
A(f"s_cmp_lg_u32 s{S_S2}, 19\ns_cbranch_scc1 {la}c")
poll_until()
A.label(f"{la}c")
g2_put(4, MB[4], 0, 20)
A(f"s_cmp_ge_u32 s{S_S2}, 22\ns_cbranch_scc1 {la}x")
g2_put(5, MB[5], 0, 20)
A.label(f"{la}x")
finish()

mark = head_begin()
A.label("L_ssm_head")
rowpat_load(2, 14, True)
rowpat_load(6, 14, False)
A(f"""s_mul_i32 s{S_T0}, s{S_C}, 163840
s_lshr_b32 s{S_T0+1}, s{S_LW}, 1
s_mul_i32 s{S_T0+1}, s{S_T0+1}, {64*1280}
s_add_u32 s{S_T0}, s{S_T0}, s{S_T0+1}
s_and_b32 s{S_T0+1}, s{S_LW}, 1
s_mul_i32 s{S_T0+1}, s{S_T0+1}, {4*1280}
s_add_u32 s{S_T0}, s{S_T0}, s{S_T0+1}
v_add_u32 v2, s{S_T0}, v2
v_add_u32 v3, s{S_T0}, v3
v_add_u32 v4, {2*1280-2048}, v2
v_add_u32 v5, {2*1280-2048}, v3""")
A(f"""v_add_u32 v7, {1024-8*1280 & 0xffffffff}, v7
s_mul_i32 s{S_T0}, s{S_CB}, {160*1280}
s_mul_i32 s{S_T0+1}, s{S_LW}, {40*1280}
s_add_u32 s{S_T0}, s{S_T0}, s{S_T0+1}
s_bitcmp1_b32 s{S_LW}, 0
s_cselect_b64 vcc, -1, 0
v_add_u32 v6, s{S_T0}, v6
v_add_u32 v7, s{S_T0}, v7
v_cndmask_b32 v12, v6, v7, vcc
v_cndmask_b32 v13, v7, v6, vcc
v_mov_b32 v6, v12
v_add_u32 v7, {8*1280-1024}, v13
v_add_u32 v8, {16*1280-2048}, v12
v_add_u32 v9, {24*1280-3072}, v13
v_add_u32 v10, {32*1280}, v12
s_mul_i32 s{S_KX}, s{S_ROT}, {0 if C0 else 128}
s_lshl_b32 s{S_T0+9}, s{S_LW}, 12
s_mul_i32 s{S_T0+8}, s{S_LW}, 5120
s_add_u32 s{S_T0+8}, s{S_T0+8}, {WRING}
s_mov_b32 m0, s{S_T0+9}
s_waitcnt lgkmcnt(0)
s_load_dword s{S_K}, s[{S_X}:{S_X+1}], 0""")
srd(SRD_X, S_X, 2621440)
for h in range(4):
    A(f"buffer_load_dwordx4 v{2+h}, s[{SRD_X}:{SRD_X+3}], s{S_KX} offen offset:{1024*h} lds")
srd(SRD_WA, S_BRE, 819200)
srd(SRD_WB, S_BIM, 819200)
A(f"s_mov_b32 m0, s{S_T0+8}\ns_nop 0")
for h in range(4):
    A(f"buffer_load_dwordx4 v{6+h}, s[{SRD_WA}:{SRD_WA+3}], s{S_KX} offen offset:{1024*h} lds")
A(f"s_add_u32 m0, m0, 4096\ns_nop 0\nbuffer_load_dwordx4 v10, s[{SRD_WA}:{SRD_WA+3}], s{S_KX} offen lds")
head_rest("ssm")
head_end(mark)
A.label("L_ssm_loader")
CN = 212
LR, LI = 214, 215
L8, L128, KL = 216, 218, 220
def const_loads():
    A(f"""s_lshl_b32 s{S_T0}, s{S_LW}, 6
    v_add_u32 v{CN}, s{S_T0}, v{VL}
    v_min_u32 v{CN}, 159, v{CN}
    s_mul_i32 s{S_T0}, s{S_CB}, 160
    v_add_u32 v110, s{S_T0}, v{CN}
    v_lshlrev_b32 v110, 1, v110
    global_load_ushort v111, v110, s[{S_LRE}:{S_LRE+1}]
    global_load_ushort v112, v110, s[{S_LIM}:{S_LIM+1}]
    global_load_ushort v113, v110, s[{S_LDT}:{S_LDT+1}]""")
def ssm_setup3():
  A(f"""v_cmp_le_u32 vcc, 80, v{CN}
v_mov_b32 v41, 0
v_mov_b32 v42, {640-160}
v_cndmask_b32 v41, v41, v42, vcc
v_lshl_add_u32 v41, v{CN}, 1, v41
s_mul_i32 s{S_T0}, s{S_CB}, 160
v_add_u32 v41, s{S_T0}, v41
v_lshlrev_b32 v41, 3, v41
v_add_u32 v41, {WS_CSB}, v41
s_lshl_b32 s{S_T0+1}, s{S_C}, 10
s_add_u32 s{S_T0+1}, s{S_T0+1}, {WS_STAT}
v_lshlrev_b32 v40, 4, v{VL}
v_add_u32 v40, s{S_T0+1}, v40
s_cmp_eq_u32 s{S_LW}, 3
s_cselect_b64 vcc, -1, 0
s_nop 1
v_cndmask_b32 v40, v41, v40, vcc""")
def cmul(d, a, b, t):
    A(f"""v_mul_f32 v{t}, v{a+1}, v{b+1}
    v_mul_f32 v{t+1}, v{a+1}, v{b}
    v_fma_f32 v{t}, v{a}, v{b}, -v{t}
    v_fma_f32 v{d+1}, v{a}, v{b+1}, v{t+1}
    v_mov_b32 v{d}, v{t}""")
def ssm_consts():
    A(f"""v_lshlrev_b32 v111, 16, v111
    v_lshlrev_b32 v112, 16, v112
    v_lshlrev_b32 v113, 16, v113
    v_mul_f32 v113, {LOG2E}, v113
    v_exp_f32 v113, v113
    v_mul_f32 v114, v111, v111
    v_fma_f32 v114, v112, v112, v114
    v_cvt_pk_bf16_f32 v113, v113, v113
    v_lshlrev_b32 v113, 16, v113              ; dt
    v_rcp_f32 v114, v114
    v_mul_f32 v115, v113, v111
    v_mul_f32 v116, v113, v112
    v_mul_f32 v115, {LOG2E}, v115
    v_mul_f32 v116, 0.15915494, v116
    v_exp_f32 v115, v115
    v_rndne_f32 v117, v116
    v_sub_f32 v116, v116, v117
    v_cos_f32 v117, v116
    v_sin_f32 v116, v116
    v_add_f32 v114, v114, v114
    v_mul_f32 v{LR}, v115, v117
    v_mul_f32 v{LI}, v115, v116
    v_add_f32 v115, -1.0, v{LR}
    v_mul_f32 v116, v{LI}, v112
    v_fma_f32 v116, v115, v111, v116
    v_mul_f32 v117, v115, v112
    v_fma_f32 v117, v{LI}, v111, -v117        ; Im
    v_mul_f32 v118, v116, v114
    v_mul_f32 v119, -v117, v114
    v_lshlrev_b32 v120, 3, v{CN}
    v_add_u32 v120, {M_LAM}, v120
    ds_write_b64 v120, v[{LR}:{LI}]
    ds_write_b64 v120, v[118:119] offset:{M_COEF-M_LAM}
    v_mul_f32 v{KL}, v118, v{LR}
    v_fma_f32 v{KL}, v119, v{LI}, v{KL}
    v_mul_f32 v{KL+1}, v119, v{LR}
    v_fma_f32 v{KL+1}, -v118, v{LI}, v{KL+1}""")
    yield
    cmul(L8, LR, LR, 114)
    cmul(L8, L8, L8, 114)
    cmul(L8, L8, L8, 114)
    cmul(L128, L8, L8, 114)
    for i in range(3):
        cmul(L128, L128, L128, 114)
def ssm_gran():
    if True:
        vm.wait("gran")
        lr, lo, lskip, lstat = A.newlabel("L_gr"), A.newlabel("L_gr"), A.newlabel("L_gr"), A.newlabel("L_gr")
        A.label(lr)
        A(f"""v_cmp_ne_u32 vcc, s{S_NONCE}, v45
        v_cmp_ne_u32 s[{S_M0}:{S_M0+1}], s{S_NONCE}, v47
        s_nop 1
        s_or_b64 s[{S_M0}:{S_M0+1}], s[{S_M0}:{S_M0+1}], vcc
        s_cmp_eq_u64 s[{S_M0}:{S_M0+1}], 0
        s_cbranch_scc1 {lo}
        global_load_dwordx4 v[44:47], v40, s[{S_WS}:{S_WS+1}] sc1
        s_waitcnt vmcnt(0)""")
        spin_tail(lr, lo, 6)
        A.label(lo)
        A(f"""s_cmp_eq_u32 s{S_LW}, 3
        s_cbranch_scc1 {lstat}
        v_mov_b32 v45, v46
        v_lshlrev_b32 v46, 3, v{CN}
        v_add_u32 v46, {M_CS}, v46
        ds_write_b64 v46, v[44:45]
        s_branch {lskip}""")
        A.label(lstat)
        A(f"""v_and_b32 v48, 0xffff0000, v44
        v_and_b32 v49, 0xffff0000, v46
        v_rcp_f32 v48, v48
        v_rcp_f32 v49, v49
        v_lshlrev_b32 v44, 16, v44
        v_lshlrev_b32 v46, 16, v46
        v_and_b32 v50, 32, v{VL}
        v_lshlrev_b32 v50, 1, v50
        v_and_b32 v51, 3, v{VL}
        v_lshl_add_u32 v50, v51, 4, v50
        v_bfe_u32 v51, v{VL}, 3, 2
        v_lshl_add_u32 v50, v51, 2, v50
        v_bfe_u32 v51, v{VL}, 2, 1
        v_add_u32 v50, v50, v51
        v_lshlrev_b32 v50, 2, v50
        v_add_u32 v50, {M_ROW}, v50
        ds_write2_b32 v50, v44, v46 offset0:0 offset1:2
        ds_write2_b32 v50, v48, v49 offset0:128 offset1:130""")
        A.label(lskip)
        A("s_waitcnt lgkmcnt(0)")

nonce_ready()
const_loads()
jobs = Jobs()
jobs.add(one(lambda: None))
jobs.add(ssm_consts())
jobs.add(one(ssm_setup3))
jobs.add(one(lambda: g2_setup(2, 232)))
def gs():
    A(f"global_load_dwordx4 v[44:47], v40, s[{S_WS}:{S_WS+1}] sc1")
g1_main(jobs, gs, ssm_gran, 1)
A(f"s_lshl_b32 s{S_SLOT}, s{S_S2}, 14")
SB = [44, 44, 108, 172, 44, 108]
run(g2_load(0, SB[0], CAP))
g2_put(0, SB[0], 0, 20)
if not OPT.get("l1late", 0):
    run(g2_load(1, SB[1], 16))
A("s_setprio 3\ns_barrier")
ts(4, 2)
lmid = A.newlabel("L_mid")
A(f"s_cmp_eq_u32 s{S_LW}, 3\ns_cbranch_scc1 {lmid}")
ME = 112
ML = 144
MT = 204
A(f"""v_lshlrev_b32 v{MT}, 3, v{CN}
v_add_u32 v{MT}, {E_BASE}, v{MT}""")
for j in range(16):
    A(f"ds_read_b64 v[{ME+2*j}:{ME+2*j+1}], v{MT} offset:{j*1280}")
A(f"""s_lshl_b32 s{S_T0}, s{S_CB}, 4
s_mul_i32 s{S_T0}, s{S_T0}, 2560
s_add_u32 s{S_T0}, s{S_T0}, {WS_SCAN}
v_lshlrev_b32 v{MT+1}, 4, v{CN}
v_add_u32 v{MT+1}, s{S_T0}, v{MT+1}
s_mul_i32 s{S_T0}, s{S_C}, 2560
v_add_u32 v{MT+2}, s{S_T0}, v{MT+1}
v_mov_b32 v{MT+5}, s{S_NONCE}
v_mov_b32 v{MT+7}, s{S_NONCE}""")
def cfma(d, a, b, c, conj_a=False, conj_b=False):
    nb = " neg_hi:[0,1,0]" if conj_b else ""
    if c is None:
        A(f"v_pk_mul_f32 v[{d}:{d+1}], v[{a}:{a+1}], v[{b}:{b+1}] op_sel_hi:[0,1]" + (" neg_hi:[0,1]" if conj_b else ""))
        c = d
    else:
        A(f"v_pk_fma_f32 v[{d}:{d+1}], v[{a}:{a+1}], v[{b}:{b+1}], v[{c}:{c+1}] op_sel_hi:[0,1,1]{nb}")
    slo = 1 ^ conj_a ^ conj_b
    shi = int(conj_a)
    A(f"v_pk_fma_f32 v[{d}:{d+1}], v[{a}:{a+1}], v[{b}:{b+1}], v[{d}:{d+1}] op_sel:[1,1,0] op_sel_hi:[1,0,1] neg_lo:[{slo},0,0] neg_hi:[{shi},0,0]")
for j in range(1, 16):
    if j in (1, 5, 9, 13):
        A(f"s_waitcnt lgkmcnt({max(0, 11 - j + 1 - 0) if j < 13 else 0})")
    cfma(ME + 2 * j, L8, ME + 2 * j - 2, ME + 2 * j)
A(f"""v_mov_b32 v{MT+4}, v{ME+30}
v_mov_b32 v{MT+6}, v{ME+31}
s_mov_b32 s{S_U}, 0""")
for r_ in range(NR2):
    A(f"global_store_dwordx4 v{MT+2}, v[{MT+4}:{MT+7}], s[{S_WS}:{S_WS+1}] sc1")
    if r_ < NR2 - 1:
        A(f"v_add_u32 v{MT+2}, 0x40000, v{MT+2}")
ts(5, 2)
lr, lo, lld, lck, lh = [A.newlabel("L_lb") for _ in range(5)]
def lb_loads(lbl):
    A(f"v_mov_b32 v{MT+3}, v{MT+1}")
    for k in range(15):
        A(f"""s_cmp_le_u32 s{S_C}, {k}
        s_cbranch_scc1 {lbl}
        global_load_dwordx4 v[{ML+4*k}:{ML+4*k+3}], v{MT+3}, s[{S_WS}:{S_WS+1}] {['sc1', 'sc0 sc1', 'sc1 nt', 'sc0 sc1 nt'][OPT.get('lbm', 0)]}
        v_add_u32 v{MT+3}, 2560, v{MT+3}""")
    A.label(lbl)
if not OPT.get("lbd", 1):
    lb_loads(lld)
for j in range(15, 0, -1):
    cfma(ME + 2 * j, KL, ME + 2 * j - 2, None, conj_b=True)
MP = 16
A(f"v_mov_b32 v{MP+2}, v{L8}\nv_sub_f32 v{MP+3}, 0, v{L8+1}")
for j in range(2, 14):
    cfma(MP + 2 * j, MP + 2, MP + 2 * j - 2, None)
A(f"v_mov_b32 v{ME}, 0\nv_mov_b32 v{ME+1}, 0")
if OPT.get("lbd", 1):
    if OPT.get("lbd", 1) > 1:
        A(f"s_sleep {OPT['lbd']}")
    lb_loads(lld)
A.label(lr)
A(f"s_waitcnt vmcnt(0)\ns_mov_b64 s[{S_M0}:{S_M0+1}], 0")
for k in range(15):
    A(f"""s_cmp_le_u32 s{S_C}, {k}
    s_cbranch_scc1 {lck}
    v_cmp_ne_u32 vcc, s{S_NONCE}, v{ML+4*k+1}
    v_cmp_ne_u32 s[{S_M1}:{S_M1+1}], s{S_NONCE}, v{ML+4*k+3}
    s_nop 1
    s_or_b64 s[{S_M0}:{S_M0+1}], s[{S_M0}:{S_M0+1}], vcc
    s_or_b64 s[{S_M0}:{S_M0+1}], s[{S_M0}:{S_M0+1}], s[{S_M1}:{S_M1+1}]""")
A.label(lck)
A(f"s_cmp_eq_u64 s[{S_M0}:{S_M0+1}], 0\ns_cbranch_scc1 {lo}")
if NR2 > 1:
    next_copy(MT + 1, NR2, 0x40000, S_U)
lb_loads(A.newlabel("L_lb"))
spin_tail(lr, lo, 7)
A.label(lo)
ts(6, 2)
H = MT + 4
A(f"v_mov_b32 v{H}, 0\nv_mov_b32 v{H+1}, 0")
for k in range(15):
    g = ML + 4 * k
    A(f"""s_cmp_le_u32 s{S_C}, {k}
    s_cbranch_scc1 {lh}
    v_mov_b32 v{g+1}, v{g+2}""")
    cfma(g, L128, H, g)
    A(f"v_mov_b64 v[{H}:{H+1}], v[{g}:{g+1}]")
A.label(lh)
Q = MT + 6
cfma(Q, KL, H, None, conj_b=True)
A(f"v_pk_add_f32 v[{ME}:{ME+1}], v[{ME}:{ME+1}], v[{Q}:{Q+1}]")
A(f"ds_write_b64 v{MT}, v[{ME}:{ME+1}]")
for j in range(1, 16):
    d = ME + 2 * j
    if j == 14:
        cfma(H, MP + 4, Q, None)
    if j < 14:
        cfma(d, MP + 2 * j, Q, d)
    else:
        cfma(d, MP + 2 * (j - 2), H, d)
    A(f"ds_write_b64 v{MT}, v[{d}:{d+1}] offset:{j*1280}")
A("s_waitcnt lgkmcnt(0)")
A.label(lmid)
A("s_setprio 0\ns_barrier")
ts(7, 2)
SC = OPT.get("scap", 4)
if OPT.get("l1late", 0):
    run(g2_load(1, SB[1], SC))
run(g2_load(2, SB[2], SC))
run(g2_load(3, SB[3], OPT.get("scap2", 8)))
A(f"s_cmp_lt_u32 s{S_S2}, 5\ns_cselect_b32 s{S_T0+5}, 20, 21")
g2_put(1, SB[1], 32, f"s{S_T0+5}")
run(g2_load(4, SB[4], 24))
g2_put(2, SB[2], 32, 21)
la = A.newlabel("L_k")
A(f"s_cmp_ge_u32 s{S_S2}, 14\ns_cbranch_scc1 {la}")
run(g2_load(5, SB[5], 24))
g2_put(3, SB[3], 32, 21)
g2_put(4, SB[4], 16, 21)
g2_put(5, SB[5], 0, 21)
A(f"s_branch {la}x")
A.label(la)
A(f"s_cmp_lg_u32 s{S_S2}, 15\ns_cbranch_scc1 {la}p")
poll_until()
A.label(f"{la}p")
g2_put(3, SB[3], 16, 21)
g2_put(4, SB[4], 0, 21)
A.label(f"{la}x")
finish()

A.label("L_end")
A("s_endpgm")
A.label("L_code_end")
A.lines[HEADPOS:HEADPOS] = HEADS
A.lines.insert(0, "L_code_start:")

DOC = """; ---------------------------------------------------------------------------------------------------------
;   GEMM 1 : raw x times [w1 | w3] (192 workgroups, 128 x 256 tiles) or [B_re | B_im] (64 workgroups, 128 x 320).
;            are made once per row / column by side jobs and handed round as {value, tag} granules in d_ws.
;   epilogue : SwiGLU -> H (bf16), or exact chunked scan (local scan, chunk end states exchanged through d_ws,
; ---------------------------------------------------------------------------------------------------------
"""
hdr = open(os.path.join(os.path.dirname(__file__), "header.txt")).read()
print(hdr + f"""; @launch grid=(256,1,1) block=(512,1,1) lds=163840
{DOC}.amdgcn_target "amdgcn-amd-amdhsa--gfx950"
.text
.globl {KNAME}
.p2align 8
.type {KNAME},@function
{KNAME}:""")
print(A.text(), end="")
print(f""".section .rodata,"a"
.p2align 6
.amdhsa_kernel {KNAME}
  .amdhsa_next_free_vgpr 256
  .amdhsa_next_free_sgpr 102
  .amdhsa_accum_offset 256
  .amdhsa_group_segment_fixed_size 0
  .amdhsa_kernarg_size 128
  .amdhsa_user_sgpr_count 2
  .amdhsa_user_sgpr_kernarg_segment_ptr 1
  .amdhsa_system_sgpr_workgroup_id_x 1
.end_amdhsa_kernel""")
```

```python
import sys, os
sys.path.insert(0, os.path.dirname(__file__))
from asmlib import Asm, Queue, vr, sr

OPT = dict(ts=0, stop=0, DA=3, D1=4, D1S=5, timeout=1 << 20, nodma=0, nomfma=0, nobar=0, noread=0, rot=16, rot2=0, pf=0, stash=8, sg1=12, amod=1)
for a in sys.argv[1:]:
    k, v = a.split("=")
    OPT[k] = int(v)
P0 = OPT.get("p0", 3)
TS = OPT["ts"]; STOP = OPT["stop"]; DA = OPT["DA"]; D1 = OPT["D1"]

KNAME = "parallel_sum__ssm_conv_s5__glu_gated_swiglu__prompt_kernel"

WS_E = 0
FSH = OPT.get('fsh', 7)
WS_FLAG = 0xC00000
NREP = OPT.get('nrep', 1)
REPS = 0x20000
NR2 = OPT.get('nr2', 1)
WS_STAT = 0x4000
WS_CSB = 0x8000
WS_CSW = 0x10000
WS_SCAN = 0xD00000
WS_TAB = 0x80000
WS_ACT = 0x100000
WS_TS = 0x1000000

MISC = 151552
WRING = 49152
SCR = 131072
M_ROW = MISC
M_CS = MISC + 2048
M_LAM = MISC + 3584
M_COEF = MISC + 4864
E_BASE = 81920
TR_BASE = 102400

S_X, S_LRE, S_LIM, S_BRE, S_BIM, S_CRE, S_CIM, S_LDT = 4, 6, 8, 10, 12, 14, 16, 18
S_DSK, S_W1, S_W3, S_W2, S_OUT, S_DBG, S_WS = 20, 24, 26, 28, 30, 32, 34
SRD_X, SRD_WA, SRD_WB, SRD_W2, SRD_C, SRD_T = 36, 40, 44, 48, 52, 56
S_XCD, S_IDX, S_C, S_J, S_CB, S_WAVE, S_NONCE = 60, 61, 62, 63, 64, 65, 66
S_HB2, S_DCOL, S_TG = 67, 68, 23
S_ONES = 69
S_T0 = 70
S_SLOT, S_KX, S_KW, S_CNT, S_DELTA = 80, 81, 82, 83, 84
S_AB = 86
S_M0, S_M1 = 88, 90
S_EX = 92
S_TO = 94
S_TS = 96
S_ROT, S_R2A, S_R2B, S_KB, S_KS = 95, 98, 99, 100, 101

A = Asm()
LOG2E = 0x3fb8aa3b
NLOG2E = 0xbfb8aa3b

def ts(idx, vtmp):
    if not TS:
        return

    A(f"""s_memrealtime s[{S_TS}:{S_TS+1}]
    s_waitcnt lgkmcnt(0)
    v_writelane_b32 v255, s{S_TS}, {idx}""")

def tc(idx):
    if not TS:
        return
    A(f"""s_memtime s[{S_TS}:{S_TS+1}]
    s_waitcnt lgkmcnt(0)
    v_writelane_b32 v255, s{S_TS}, {idx}""")

def ts_flush(vtmp):
    if not TS:
        return
    A(f"""s_lshl_b32 s{S_T0}, s2, 3
    s_add_u32 s{S_T0}, s{S_T0}, s{S_WAVE}
    s_lshl_b32 s{S_T0}, s{S_T0}, 8
    s_add_u32 s{S_T0}, s{S_T0}, {WS_TS}
    v_lshlrev_b32 v{vtmp}, 2, v{VL}
    v_add_u32 v{vtmp}, s{S_T0}, v{vtmp}
    global_store_dword v{vtmp}, v255, s[{S_WS}:{S_WS+1}]""")

def srd(d, p, nbytes):
    A(f"""s_mov_b32 s{d}, s{p}
    s_mov_b32 s{d+1}, s{p+1}
    s_mov_b32 s{d+2}, {nbytes}
    s_mov_b32 s{d+3}, 0x20000""")

def srd_sel(d, p1, p0, nbytes):
    A(f"""s_cselect_b32 s{d}, s{p1}, s{p0}
    s_cselect_b32 s{d+1}, s{p1+1}, s{p0+1}
    s_mov_b32 s{d+2}, {nbytes}
    s_mov_b32 s{d+3}, 0x20000""")

def spin_tail(lbl_retry, lbl_ok, code):
    A(f"""s_sleep {OPT.get('nap', 1) if code == 2 else 1}
    s_sub_u32 s{S_TO}, s{S_TO}, 1
    s_cmp_lg_u32 s{S_TO}, 0
    s_cbranch_scc1 {lbl_retry}
    s_mov_b32 s{S_TO}, 1""")

VL = 254
VFO = 253
FLG = MISC + 6144
FREE, AUX, GO = FLG + 2048, FLG + 4096, FLG + 5120
S_K = 3
S_FR = 86
S_LMT = 85
S_RP = 87
SRD_F = 52
VZ = 252
SLOW = []
def flag_test(need, vD, vP, off, pre=None, anylane=False, acc=None, nap=0, split=False):
    ls, lb, lr = A.newlabel("L_sw"), A.newlabel("L_bk"), A.newlabel("L_sr")
    cmp_ = f"v_cmp_ne_u32 vcc, s{S_K}, v{vD}"
    A(f"s_cbranch_vccnz {ls}" if split else f"{cmp_}\ns_cbranch_vccnz {ls}")
    A.label(lb)
    mark = len(A.lines)
    A.label(ls)
    if TS and acc is not None:
        A(f"s_memtime s[{S_TS}:{S_TS+1}]\ns_waitcnt lgkmcnt(0)\ns_sub_u32 s{acc}, s{acc}, s{S_TS}\ns_add_u32 s{acc+1}, s{acc+1}, 1")
        lb2 = lb
        lb = A.newlabel("L_b2")
    A.label(lr)
    if nap:
        A(f"s_sleep {nap}")
    A(f"""ds_read_b32 v{vD}, v{vP} offset:{off}
    s_waitcnt lgkmcnt(0)
    {cmp_}
    s_cbranch_vccz {lb}
    s_sub_u32 s{S_TO}, s{S_TO}, 1
    s_cmp_lg_u32 s{S_TO}, 0
    s_cbranch_scc1 {lr}
    s_mov_b32 s{S_TO}, 1
    s_branch {lb}""")
    if TS and acc is not None:
        A.label(lb)
        A(f"s_memtime s[{S_TS}:{S_TS+1}]\ns_waitcnt lgkmcnt(0)\ns_add_u32 s{acc}, s{acc}, s{S_TS}\ns_branch {lb2}")
    SLOW.extend(A.lines[mark:])
    del A.lines[mark:]
def flag_wait(need, vD, vP, rel=0, nap=0):
    off = rel + 4 * need
    A(f"ds_read_b32 v{vD}, v{vP} offset:{off}\ns_waitcnt lgkmcnt(0)")
    flag_test(need, vD, vP, off, nap=nap)
def next_copy(v, n, step, sreg):
    A(f"""s_add_u32 s{sreg}, s{sreg}, 1
    s_cmp_lt_u32 s{sreg}, {n}
    s_cselect_b32 s{S_T0+7}, {step}, 0
    v_add_u32 v{v}, s{S_T0+7}, v{v}""")
def flush_slow():
    A.lines.extend(SLOW)
    SLOW.clear()
def flag_init(base, wave_sgpr, vP, peer, aux):
    A(f"""s_lshl_b32 s{S_T0}, s{wave_sgpr}, 9
    s_add_u32 s{S_T0}, s{S_T0}, {base}
    v_lshlrev_b32 v{VFO}, 2, v{VL}
    v_add_u32 v{VFO}, s{S_T0}, v{VFO}
    v_mov_b32 v{VZ}, 0
    s_waitcnt lgkmcnt(0)
    v_not_b32 v{vP}, s{S_K}
    ds_write2st64_b32 v{VFO}, v{vP}, v{vP} offset0:0 offset1:1""")
    if aux:
        A(f"""s_lshl_b32 s{S_T0+1}, s{wave_sgpr}, 8
        v_lshlrev_b32 v{aux}, 2, v{VL}
        v_add_u32 v{aux}, s{S_T0+1}, v{aux}
        v_add_u32 v{aux}, {AUX}, v{aux}
        ds_write_b32 v{aux}, v{VZ}""")
    peer_addr(vP, peer)
    A("s_waitcnt lgkmcnt(0)\ns_barrier")
def peer_addr(vP, peer):
    A(f"""v_and_b32 v{vP}, 3, v{VL}
    v_lshlrev_b32 v{vP}, 9, v{vP}
    v_add_u32 v{vP}, {peer + 252}, v{vP}""")


S_LW = 85
A(f"""s_cmp_ge_u32 s2, 256
s_cbranch_scc1 L_end
s_load_dwordx16 s[4:19], s[0:1], 0
s_load_dwordx16 s[20:35], s[0:1], 64
v_lshrrev_b32 v1, 6, v0
v_and_b32 v{VL}, 63, v0
s_and_b32 s{S_XCD}, s2, 7
v_readfirstlane_b32 s{S_WAVE}, v1
s_lshr_b32 s{S_IDX}, s2, 3
s_and_b32 s{S_T0}, s{S_XCD}, 1
s_lshl_b32 s{S_T0}, s{S_T0}, 3
s_and_b32 s{S_T0+1}, s{S_IDX}, 7
s_add_u32 s{S_C}, s{S_T0}, s{S_T0+1}
s_lshr_b32 s{S_J}, s{S_IDX}, 3
s_lshr_b32 s{S_T0+2}, s{S_XCD}, 1
s_mul_i32 s{S_CB}, s{S_T0+2}, 3
s_add_u32 s{S_CB}, s{S_CB}, s{S_J}
s_sub_u32 s{S_CB}, s{S_CB}, 1
s_cmp_eq_u32 s{S_J}, 0
s_cselect_b32 s{S_CB}, s{S_T0+2}, s{S_CB}
""")
if TS:
    A("v_mov_b32 v255, 0")
    ts(0, 2)
RG = OPT["rot"]
C0 = OPT.get("c0", 0)
if RG:
    if RG == 16:
        A(f"""s_lshl_b32 s{S_ROT}, s{S_T0+2}, 2
        s_add_u32 s{S_ROT}, s{S_ROT}, s{S_J}
        s_add_u32 s{S_ROT}, s{S_ROT}, s{S_T0}""")
    else:
        A(f"s_lshl_b32 s{S_ROT}, s{S_J}, {1 if RG == 8 else 0}")
    A(f"""s_add_u32 s{S_ROT}, s{S_T0+1}, s{S_ROT}
    s_and_b32 s{S_ROT}, s{S_ROT}, {RG-1}
    s_mul_i32 s{S_ROT}, s{S_ROT}, {9 if C0 else 10}
    s_lshr_b32 s{S_ROT}, s{S_ROT}, {RG.bit_length()-1}""")
else:
    A(f"s_mov_b32 s{S_ROT}, 0")
A(f"""s_cmp_lt_u32 s{S_WAVE}, 4
s_cbranch_scc1 L_compute
s_sub_u32 s{S_LW}, s{S_WAVE}, 4
s_setprio {OPT.get('pl1', 0)}""")

def nonce_load():
    A(f"s_load_dword s{S_NONCE}, s[{S_WS}:{S_WS+1}], {WS_E}")
def late_scalars():
    A(f"""s_sub_u32 s{S_T0}, s{S_IDX}, 8
    s_mul_i32 s{S_T0+1}, s{S_T0}, 13
    s_lshr_b32 s{S_T0+1}, s{S_T0+1}, 6          ; n/5
    s_mul_i32 s{S_T0+2}, s{S_T0+1}, 5
    s_sub_u32 s{S_T0+2}, s{S_T0}, s{S_T0+2}     ; n%5
    s_mul_i32 s{S_TG}, s{S_T0+2}, 6
    s_lshl_b32 s{S_T0+3}, s{S_IDX}, 1
    s_add_u32 s{S_T0+3}, s{S_T0+3}, 16
    s_cmp_lt_u32 s{S_IDX}, 4
    s_cselect_b32 s{S_T0+3}, 30, s{S_T0+3}
    s_min_u32 s{S_T0}, s{S_IDX}, 4
    s_cmp_eq_u32 s{S_J}, 0
    s_cselect_b32 s{S_TG}, s{S_T0+3}, s{S_TG}
    s_cselect_b32 s{S_T0+1}, s{S_T0}, s{S_T0+1}  ; strip
    s_cselect_b32 s{S_T0+2}, 5, s{S_T0+2}
    s_lshr_b32 s{S_T0}, s{S_XCD}, 1
    s_lshl_b32 s{S_T0}, s{S_T0}, 5
    s_add_u32 s{S_TG}, s{S_TG}, s{S_T0}          ; first 16-row tile
    s_lshr_b32 s{S_HB2}, s{S_TG}, 2
    s_lshl_b32 s{S_DCOL}, s{S_T0+1}, 6
    s_and_b32 s{S_T0}, s{S_XCD}, 1
    s_mul_i32 s{S_T0}, s{S_T0}, 320
    s_add_u32 s{S_DCOL}, s{S_DCOL}, s{S_T0}
    s_mov_b32 s{S_ONES}, 0x3f803f80
    s_mov_b32 s{S_TO}, {OPT['timeout']}""")
    if OPT["rot2"]:
        A({1: f"s_add_u32 s{S_R2B}, s{S_T0+1}, s{S_T0+2}", 2: f"s_mov_b32 s{S_R2B}, s{S_T0+1}", 3: f"s_mov_b32 s{S_R2B}, s{S_T0+2}",
           4: f"s_and_b32 s{S_R2B}, s{S_T0+1}, 1\ns_mul_i32 s{S_R2B}, s{S_R2B}, 3"}[OPT["rot2"]])
        A(f"""s_lshl_b32 s{S_R2A}, s{S_R2B}, 1
        s_cmp_ge_u32 s{S_R2A}, 12
        s_cselect_b32 s{S_T0+3}, 12, 0
        s_sub_u32 s{S_R2A}, s{S_R2A}, s{S_T0+3}
        s_lshl_b32 s{S_R2B}, s{S_R2B}, 1
        s_cmp_ge_u32 s{S_R2B}, 10
        s_cselect_b32 s{S_T0+3}, 10, 0
        s_sub_u32 s{S_R2B}, s{S_R2B}, s{S_T0+3}""")
    else:
        A(f"s_mov_b32 s{S_R2A}, 0\ns_mov_b32 s{S_R2B}, 0")
for n_ in range(24):
    assert (n_ * 13) >> 6 == n_ // 5

HEADPOS = len(A.lines)
HEADS = []

def dpp_reduce16(regs):
    for sh in (8, 4, 2, 1):
        A("s_nop 1")
        for r in regs:
            A(f"v_add_f32_dpp v{r}, v{r}, v{r} row_ror:{sh} row_mask:0xf bank_mask:0xf")

def nonce_ready():
    A(f"""s_waitcnt lgkmcnt(0)
    s_add_u32 s{S_NONCE}, s{S_NONCE}, 1""")

def sum_bf16(regs, acc, sq=None, t=None):
    for k, r in enumerate(regs):
        if k and k % (5 if sq is not None else 8) == 0:
            yield
        A(f"v_lshlrev_b32 v{t}, 16, v{r}")
        A(f"v_and_b32 v{r}, 0xffff0000, v{r}")
        if k == 0:
            A(f"v_mov_b32 v{acc}, v{t}\nv_mov_b32 v{acc+1}, v{r}")
            if sq is not None:
                A(f"v_mul_f32 v{sq}, v{t}, v{t}\nv_mul_f32 v{sq+1}, v{r}, v{r}")
        else:
            A(f"v_add_f32 v{acc}, v{acc}, v{t}\nv_add_f32 v{acc+1}, v{acc+1}, v{r}")
            if sq is not None:
                A(f"v_fmac_f32 v{sq}, v{t}, v{t}\nv_fmac_f32 v{sq+1}, v{r}, v{r}")
    A(f"v_add_f32 v{acc}, v{acc}, v{acc+1}")
    if sq is not None:
        A(f"v_add_f32 v{sq}, v{sq}, v{sq+1}")

def reduce32(regs):
    dpp_reduce16(regs)
    A("s_nop 1")
    for r in regs:
        A(f"v_add_f32_dpp v{r}, v{r}, v{r} row_bcast:15 row_mask:0xa bank_mask:0xf")

def stat_loads(vm, T):
    A(f"""v_lshrrev_b32 v{T+10}, 5, v{VL}
    s_lshl_b32 s{S_T0}, s2, 3
    s_lshl_b32 s{S_T0+1}, s{S_LW}, 1
    s_add_u32 s{S_T0}, s{S_T0}, s{S_T0+1}
    v_add_u32 v{T+10}, s{S_T0}, v{T+10}
    v_and_b32 v{T+11}, 31, v{VL}
    v_mul_u32_u24 v{T+12}, 1280, v{T+10}
    v_lshl_add_u32 v{T+12}, v{T+11}, 3, v{T+12}""")
    for i in range(5):
        A(f"global_load_dwordx2 v[{T+2*i}:{T+2*i+1}], v{T+12}, s[{S_X}:{S_X+1}] offset:{256*i}")
        vm.issue("stat")

def stat_work(vm, T):
    vm.wait("stat")
    a, q = T + 12, T + 14
    yield from sum_bf16(list(range(T, T + 10)), a, q, T + 16)
    yield
    reduce32([a, q])
    yield
    A(f"""v_mul_f32 v{a}, 0x3acccccd, v{a}      ; mean
    v_mul_f32 v{q}, 0x3acccccd, v{q}
    v_fma_f32 v{q}, -v{a}, v{a}, v{q}
    v_max_f32 v{q}, 0, v{q}
    v_cvt_pk_bf16_f32 v{q}, v{q}, v{q}
    v_lshlrev_b32 v{q}, 16, v{q}
    v_add_f32 v{q}, 0x3727c5ac, v{q}
    v_cvt_pk_bf16_f32 v{q}, v{q}, v{q}
    v_lshlrev_b32 v{q}, 16, v{q}
    v_sqrt_f32 v{q}, v{q}
    v_lshlrev_b32 v{T+10}, 3, v{T+10}
    v_add_u32 v{T+10}, {WS_STAT}, v{T+10}
    v_cvt_pk_bf16_f32 v{a}, v{a}, v{q}
    v_mov_b32 v{a+1}, s{S_NONCE}
    v_cmp_eq_u32 vcc, 16, v{T+11}
    s_and_saveexec_b64 s[{S_EX}:{S_EX+1}], vcc
    global_store_dwordx2 v{T+10}, v[{a}:{a+1}], s[{S_WS}:{S_WS+1}] sc1
    s_mov_b64 exec, s[{S_EX}:{S_EX+1}]""")
    vm.issue("pub")

S_CS0 = 86
def colsum_loads(T):
    A(f"""s_mul_i32 s{S_T0}, s{S_C}, 12
    s_add_u32 s{S_T0}, s{S_T0}, s{S_CB}            ; sigma
    s_lshr_b32 s{S_T0+1}, s{S_T0}, 2               ; strip
    s_and_b32 s{S_T0+2}, s{S_T0}, 3                ; k quarter
    s_cmp_ge_u32 s{S_T0+1}, 24""")
    srd_sel(SRD_T, S_W3, S_W1, 1966080)
    A(f"""s_cselect_b32 s{S_T0+3}, {24*128}, 0
    s_lshl_b32 s{S_T0+4}, s{S_T0+1}, 7
    s_sub_u32 s{S_T0+4}, s{S_T0+4}, s{S_T0+3}
    s_mul_i32 s{S_T0+5}, s{S_T0+2}, {160*3072}
    s_add_u32 s{S_T0+4}, s{S_T0+4}, s{S_T0+5}      ; soffset
    s_mul_i32 s{S_CS0}, s{S_T0+2}, {3072*8}
    s_lshl_b32 s{S_T0+1}, s{S_T0+1}, 9
    s_add_u32 s{S_CS0}, s{S_CS0}, s{S_T0+1}
    s_add_u32 s{S_CS0}, s{S_CS0}, {WS_CSW}
    v_lshrrev_b32 v{T}, 3, v{VL}
    v_and_b32 v{T+1}, 7, v{VL}
    v_mul_u32_u24 v{T}, 3072, v{T}
    v_lshl_add_u32 v{T}, v{T+1}, 4, v{T}""")
    for i in range(20):
        if i % 4 == 0:
            A(f"s_mov_b32 m0, {SCR + 1024*i}")
        A(f"""s_add_u32 s{S_T0+7}, s{S_T0+4}, {8*3072*i - 1024*(i%4)}
        s_waitcnt vmcnt({OPT.get("cap", 7)})
        buffer_load_dwordx4 v{T}, s[{SRD_T}:{SRD_T+3}], s{S_T0+7} offen offset:{1024*(i%4)} lds""")

def colsum_work(T):
    A(f"""v_lshrrev_b32 v{T+2}, 4, v{VL}
    v_lshlrev_b32 v{T+3}, 5, v{T+2}
    v_lshlrev_b32 v{T+2}, 10, v{T+2}
    v_bfe_u32 v{T+1}, v{VL}, 2, 2
    v_lshl_add_u32 v{T+2}, v{T+1}, 7, v{T+2}
    v_and_b32 v{T+1}, 3, v{VL}
    v_lshl_add_u32 v{T+2}, v{T+1}, 3, v{T+2}
    v_add_u32 v{T+2}, {SCR}, v{T+2}
    v_add_u32 v{T+3}, s{S_CS0}, v{T+3}""")
    for i in range(4):
        A(f"v_mov_b32 v{T+4+i}, s{S_ONES}")
    F = T + 24
    for u in range(4):
        for ks in range(5):
            b = F + (u * 5 + ks) * 4
            A(f"ds_read_b64_tr_b16 v[{b}:{b+1}], v{T+2} offset:{ks*4096+u*32}")
            A(f"ds_read_b64_tr_b16 v[{b+2}:{b+3}], v{T+2} offset:{ks*4096+u*32+512}")
    A("s_waitcnt lgkmcnt(0)")
    for ks in range(5):
        for u in range(4):
            b = F + (u * 5 + ks) * 4
            d = T + 8 + 4 * u
            cin = "0" if ks == 0 else f"v[{d}:{d+3}]"
            A(f"v_mfma_f32_16x16x32_bf16 v[{d}:{d+3}], v[{b}:{b+3}], v[{T+4}:{T+7}], {cin}")
    A(f"""v_and_b32 v{T+1}, 15, v{VL}
    v_cmp_eq_u32 vcc, 0, v{T+1}
    s_nop 7""")
    for u in range(4):
        for h in range(2):
            o = F + (u * 2 + h) * 4
            A(f"""v_mov_b32 v{o}, v{T+8+4*u+2*h}
            v_mov_b32 v{o+1}, s{S_NONCE}
            v_mov_b32 v{o+2}, v{T+9+4*u+2*h}
            v_mov_b32 v{o+3}, s{S_NONCE}""")
    A(f"s_and_saveexec_b64 s[{S_EX}:{S_EX+1}], vcc")
    for u in range(4):
        for h in range(2):
            o = F + (u * 2 + h) * 4
            A(f"global_store_dwordx4 v{T+3}, v[{o}:{o+3}], s[{S_WS}:{S_WS+1}] offset:{u*128+h*16} sc1")
    A(f"s_mov_b64 exec, s[{S_EX}:{S_EX+1}]")

def rowsum_loads(vm, T):
    A(f"""s_lshl_b32 s{S_T0}, s{S_C}, 2
    s_add_u32 s{S_T0}, s{S_T0}, s{S_CB}            ; sigma'
    s_mul_i32 s{S_T0+1}, s{S_T0}, 20
    s_mul_i32 s{S_T0+2}, s{S_LW}, 5
    s_add_u32 s{S_T0+1}, s{S_T0+1}, s{S_T0+2}
    s_cmp_ge_u32 s{S_T0}, 32
    s_cselect_b32 s{S_T0+4}, s{S_BIM}, s{S_BRE}
    s_cselect_b32 s{S_T0+5}, s{S_BIM+1}, s{S_BRE+1}
    s_cselect_b32 s{S_T0+3}, 640, 0
    s_sub_u32 s{S_T0+1}, s{S_T0+1}, s{S_T0+3}
    v_lshrrev_b32 v{T+33}, 5, v{VL}
    v_add_u32 v{T+33}, s{S_T0+1}, v{T+33}
    v_and_b32 v{T+34}, 31, v{VL}""")
    for p in range(3):
        A(f"""v_add_u32 v{T+30+p}, {2*p}, v{T+33}
        v_min_u32 v{T+30+p}, 639, v{T+30+p}
        v_mul_u32_u24 v{T+35}, 1280, v{T+30+p}
        v_lshl_add_u32 v{T+35}, v{T+34}, 3, v{T+35}
        v_add_u32 v{T+30+p}, s{S_T0+3}, v{T+30+p}""")
        for i in range(5):
            b = T + 10 * p + 2 * i
            A(f"global_load_dwordx2 v[{b}:{b+1}], v{T+35}, s[{S_T0+4}:{S_T0+5}] offset:{256*i}")
            vm.issue("rows")

def rowsum_work(vm, T):
    vm.wait("rows")
    for p in range(3):
        yield from sum_bf16(list(range(T + 10 * p, T + 10 * p + 10)), T + 36 + 2 * p, None, T + 35)
    yield
    reduce32([T + 36, T + 38, T + 40])
    for p in range(3):
        A(f"""v_mov_b32 v{T+37+2*p}, s{S_NONCE}
        v_lshlrev_b32 v{T+30+p}, 3, v{T+30+p}
        v_add_u32 v{T+30+p}, {WS_CSB}, v{T+30+p}""")
    A(f"""v_cmp_eq_u32 vcc, 16, v{T+34}
    s_and_saveexec_b64 s[{S_EX}:{S_EX+1}], vcc""")
    for p in range(3):
        A(f"global_store_dwordx2 v{T+30+p}, v[{T+36+2*p}:{T+37+2*p}], s[{S_WS}:{S_WS+1}] sc1")
        vm.issue("pub")
    A(f"s_mov_b64 exec, s[{S_EX}:{S_EX+1}]")

def side_stats(T, filler):
    A(f"""v_lshrrev_b32 v{T+20}, 4, v{VL}
    s_lshl_b32 s{S_T0}, s2, 3
    s_lshl_b32 s{S_T0+1}, s{S_WAVE}, 2
    s_add_u32 s{S_T0}, s{S_T0}, s{S_T0+1}
    v_add_u32 v{T+20}, s{S_T0}, v{T+20}          ; row
    v_and_b32 v{T+21}, 15, v{VL}
    v_mul_u32_u24 v{T+22}, 1280, v{T+20}
    v_lshl_add_u32 v{T+22}, v{T+21}, 4, v{T+22}""")
    for i in range(5):
        A(f"global_load_dwordx4 v[{T+4*i}:{T+4*i+3}], v{T+22}, s[{S_X}:{S_X+1}] offset:{256*i}")
    filler()
    A(f"""v_mov_b32 v{T+24}, 0
    v_mov_b32 v{T+25}, 0
    v_mov_b32 v{T+26}, 0
    v_mov_b32 v{T+27}, 0""")
    nonce_ready()
    for i in range(5):
        A(f"s_waitcnt vmcnt({4-i})")
        for d in range(4):
            r = T + 4 * i + d
            A(f"v_dot2c_f32_bf16 v{T+24+2*(d&1)}, s{S_ONES}, v{r}")
            A(f"v_dot2c_f32_bf16 v{T+25+2*(d&1)}, v{r}, v{r}")
    A(f"""s_nop 3
    v_add_f32 v{T+24}, v{T+24}, v{T+26}
    v_add_f32 v{T+25}, v{T+25}, v{T+27}""")
    dpp_reduce16([T + 24, T + 25])
    A(f"""v_mul_f32 v{T+24}, 0x3acccccd, v{T+24}      ; mean
    v_mul_f32 v{T+25}, 0x3acccccd, v{T+25}
    v_fma_f32 v{T+25}, -v{T+24}, v{T+24}, v{T+25}
    v_max_f32 v{T+25}, 0, v{T+25}
    v_cvt_pk_bf16_f32 v{T+25}, v{T+25}, v{T+25}
    v_lshlrev_b32 v{T+25}, 16, v{T+25}
    v_add_f32 v{T+25}, 0x3727c5ac, v{T+25}
    v_cvt_pk_bf16_f32 v{T+25}, v{T+25}, v{T+25}
    v_lshlrev_b32 v{T+25}, 16, v{T+25}
    v_sqrt_f32 v{T+25}, v{T+25}
    v_lshlrev_b32 v{T+20}, 3, v{T+20}
    v_add_u32 v{T+20}, {WS_STAT}, v{T+20}
    v_cvt_pk_bf16_f32 v{T+26}, v{T+24}, v{T+25}
    v_mov_b32 v{T+27}, s{S_NONCE}
    v_cmp_eq_u32 vcc, 0, v{T+21}
    s_and_saveexec_b64 s[{S_EX}:{S_EX+1}], vcc
    global_store_dwordx2 v{T+20}, v[{T+26}:{T+27}], s[{S_WS}:{S_WS+1}] sc1
    s_mov_b64 exec, s[{S_EX}:{S_EX+1}]""")

def side_colsum_mlp(T, filler):
    A(f"""s_mul_i32 s{S_T0}, s{S_C}, 12
    s_add_u32 s{S_T0}, s{S_T0}, s{S_CB}            ; sigma
    s_lshr_b32 s{S_T0+1}, s{S_T0}, 1               ; strip
    s_and_b32 s{S_T0+2}, s{S_T0}, 1
    s_lshl_b32 s{S_T0+2}, s{S_T0+2}, 1
    s_add_u32 s{S_T0+2}, s{S_T0+2}, s{S_WAVE}
    s_sub_u32 s{S_T0+2}, s{S_T0+2}, 2              ; k quarter
    s_cmp_ge_u32 s{S_T0+1}, 48""")
    srd_sel(SRD_T, S_W3, S_W1, 1966080)
    A(f"""s_cselect_b32 s{S_T0+3}, 48, 0
    s_cselect_b32 s{S_T0+6}, 1536, 0
    s_sub_u32 s{S_T0+1}, s{S_T0+1}, s{S_T0+3}
    s_lshl_b32 s{S_T0+1}, s{S_T0+1}, 5             ; col0
    s_mul_i32 s{S_T0+4}, s{S_T0+2}, {160*3072}
    s_lshl_b32 s{S_T0+5}, s{S_T0+1}, 1
    s_add_u32 s{S_T0+4}, s{S_T0+4}, s{S_T0+5}      ; soffset
    s_sub_u32 s{S_T0+5}, s{S_WAVE}, 2
    s_mul_i32 s{S_T0+5}, s{S_T0+5}, 10240
    s_add_u32 s{S_T0+5}, s{S_T0+5}, {SCR}
    v_lshrrev_b32 v{T}, 2, v{VL}
    v_and_b32 v{T+1}, 3, v{VL}
    v_mul_u32_u24 v{T}, 3072, v{T}
    v_lshl_add_u32 v{T}, v{T+1}, 4, v{T}""")
    for i in range(10):
        A(f"""s_add_u32 m0, s{S_T0+5}, {1024*i}
        s_add_u32 s{S_T0+7}, s{S_T0+4}, {16*3072*i}
        buffer_load_dwordx4 v{T}, s[{SRD_T}:{SRD_T+3}], s{S_T0+7} offen lds""")
    filler()
    A(f"""v_lshrrev_b32 v{T+2}, 4, v{VL}
    v_lshlrev_b32 v{T+2}, 9, v{T+2}
    v_bfe_u32 v{T+3}, v{VL}, 2, 2
    v_lshl_add_u32 v{T+2}, v{T+3}, 6, v{T+2}
    v_lshl_add_u32 v{T+2}, v{T+1}, 3, v{T+2}
    v_add_u32 v{T+2}, s{S_T0+5}, v{T+2}
    v_mov_b32 v{T+4}, s{S_ONES}
    v_mov_b32 v{T+5}, s{S_ONES}
    v_mov_b32 v{T+6}, s{S_ONES}
    v_mov_b32 v{T+7}, s{S_ONES}""")
    A(f"""s_mul_i32 s{S_T0+2}, s{S_T0+2}, 3072
    s_add_u32 s{S_T0+2}, s{S_T0+2}, s{S_T0+6}
    s_add_u32 s{S_T0+2}, s{S_T0+2}, s{S_T0+1}
    s_lshl_b32 s{S_T0+2}, s{S_T0+2}, 3
    s_add_u32 s{S_T0+2}, s{S_T0+2}, {WS_CSW}
    v_lshrrev_b32 v{T+3}, 4, v{VL}
    v_lshlrev_b32 v{T+3}, 5, v{T+3}
    v_add_u32 v{T+3}, s{S_T0+2}, v{T+3}""")
    nonce_ready()
    A("s_waitcnt vmcnt(0)")
    F = T + 16
    for ks in range(5):
        for u in range(2):
            b = F + (ks * 2 + u) * 4
            A(f"ds_read_b64_tr_b16 v[{b}:{b+1}], v{T+2} offset:{ks*2048+u*32}")
            A(f"ds_read_b64_tr_b16 v[{b+2}:{b+3}], v{T+2} offset:{ks*2048+u*32+256}")
    A("s_waitcnt lgkmcnt(0)")
    for ks in range(5):
        for u in range(2):
            b = F + (ks * 2 + u) * 4
            cin = "0" if ks == 0 else f"v[{T+8+4*u}:{T+11+4*u}]"
            A(f"v_mfma_f32_16x16x32_bf16 v[{T+8+4*u}:{T+11+4*u}], v[{b}:{b+3}], v[{T+4}:{T+7}], {cin}")
    A("s_nop 7\ns_nop 1")
    for u in range(2):
        for h in range(2):
            o = F + (u * 2 + h) * 4
            A(f"""v_mov_b32 v{o}, v{T+8+4*u+2*h}
            v_mov_b32 v{o+1}, s{S_NONCE}
            v_mov_b32 v{o+2}, v{T+9+4*u+2*h}
            v_mov_b32 v{o+3}, s{S_NONCE}""")
    A(f"""v_and_b32 v{T+1}, 15, v{VL}
    v_cmp_eq_u32 vcc, 0, v{T+1}
    s_and_saveexec_b64 s[{S_EX}:{S_EX+1}], vcc""")
    for u in range(2):
        for h in range(2):
            o = F + (u * 2 + h) * 4
            A(f"global_store_dwordx4 v{T+3}, v[{o}:{o+3}], s[{S_WS}:{S_WS+1}] offset:{u*128+h*16} sc1")
    A(f"s_mov_b64 exec, s[{S_EX}:{S_EX+1}]")

def side_rowsum_ssm(T, filler):
    A(f"""s_lshl_b32 s{S_T0}, s{S_C}, 2
    s_add_u32 s{S_T0}, s{S_T0}, s{S_CB}            ; sigma'
    s_mul_i32 s{S_T0+1}, s{S_T0}, 20
    s_sub_u32 s{S_T0+2}, s{S_WAVE}, 2
    s_lshl_b32 s{S_T0+2}, s{S_T0+2}, 3
    s_add_u32 s{S_T0+1}, s{S_T0+1}, s{S_T0+2}
    s_cmp_ge_u32 s{S_T0}, 32
    s_cselect_b32 s{S_T0+4}, s{S_BIM}, s{S_BRE}
    s_cselect_b32 s{S_T0+5}, s{S_BIM+1}, s{S_BRE+1}
    s_cselect_b32 s{S_T0+3}, 640, 0
    s_sub_u32 s{S_T0+3}, s{S_T0+1}, s{S_T0+3}
    v_lshrrev_b32 v{T+60}, 4, v{VL}
    v_and_b32 v{T+61}, 15, v{VL}
    v_add_u32 v{T+62}, s{S_T0+3}, v{T+60}
    v_mul_u32_u24 v{T+62}, 1280, v{T+62}
    v_lshl_add_u32 v{T+62}, v{T+61}, 4, v{T+62}""")
    for p in range(3):
        for i in range(5):
            b = T + 20 * p + 4 * i
            A(f"global_load_dwordx4 v[{b}:{b+3}], v{T+62}, s[{S_T0+4}:{S_T0+5}] offset:{256*i}")
        if p < 2:
            A(f"v_add_u32 v{T+62}, {4*1280}, v{T+62}")
    filler()
    for p in range(3):
        A(f"v_mov_b32 v{T+64+2*p}, 0")
    A(f"""v_add_u32 v{T+60}, s{S_T0+1}, v{T+60}
    v_lshlrev_b32 v{T+60}, 3, v{T+60}
    v_add_u32 v{T+60}, {WS_CSB}, v{T+60}""")
    nonce_ready()
    for p in range(3):
        A(f"s_waitcnt vmcnt({10-5*p})")
        for d in range(20):
            A(f"v_dot2c_f32_bf16 v{T+64+2*p}, s{S_ONES}, v{T+20*p+d}")
    A("s_nop 3")
    dpp_reduce16([T + 64, T + 66, T + 68])
    for p in range(3):
        A(f"v_mov_b32 v{T+65+2*p}, s{S_NONCE}")
    A(f"""v_cmp_eq_u32 vcc, 0, v{T+61}
    s_and_saveexec_b64 s[{S_EX}:{S_EX+1}], vcc""")
    for p in range(3):
        A(f"global_store_dwordx2 v{T+60}, v[{T+64+2*p}:{T+65+2*p}], s[{S_WS}:{S_WS+1}] offset:{32*p} sc1")
    A(f"s_mov_b64 exec, s[{S_EX}:{S_EX+1}]")


SJ = 200
PA, PB = OPT.get('pa', 2), OPT.get('pb', 5)
def rows16_loads(T, rowreg, ptr):
    A(f"""v_and_b32 v{T+20}, 15, v{VL}
    v_mul_u32_u24 v{T+21}, 1280, v{rowreg}
    v_lshl_add_u32 v{T+21}, v{T+20}, 4, v{T+21}""")
    for i in range(5):
        A(f"global_load_dwordx4 v[{T+4*i}:{T+4*i+3}], v{T+21}, s[{ptr}:{ptr+1}] offset:{256*i}")
def stat_finish(a, q, rowreg, lanereg, lane):
    A(f"""v_mul_f32 v{a}, 0x3acccccd, v{a}      ; mean
    v_mul_f32 v{q}, 0x3acccccd, v{q}
    v_fma_f32 v{q}, -v{a}, v{a}, v{q}
    v_max_f32 v{q}, 0, v{q}
    v_cvt_pk_bf16_f32 v{q}, v{q}, v{q}
    v_lshlrev_b32 v{q}, 16, v{q}
    v_add_f32 v{q}, 0x3727c5ac, v{q}
    v_cvt_pk_bf16_f32 v{q}, v{q}, v{q}
    v_lshlrev_b32 v{q}, 16, v{q}
    v_sqrt_f32 v{q}, v{q}
    v_lshlrev_b32 v{rowreg}, 3, v{rowreg}
    v_add_u32 v{rowreg}, {WS_STAT}, v{rowreg}
    v_cvt_pk_bf16_f32 v{a}, v{a}, v{q}
    v_mov_b32 v{a+1}, s{S_NONCE}
    v_cmp_eq_u32 vcc, {lane}, v{lanereg}""")
def own_rows(dst):
    A(f"""s_lshr_b32 s{dst}, s{S_XCD}, 1
    s_lshl_b32 s{dst}, s{dst}, 2
    s_add_u32 s{dst}, s{dst}, s{S_J}
    s_lshl_b32 s{dst}, s{dst}, 3
    s_lshl_b32 s{dst+1}, s{S_C}, 7
    s_add_u32 s{dst}, s{dst}, s{dst+1}""")
def mlp_rows_loads():
    A(f"""v_lshrrev_b32 v242, 4, v{VL}
    s_lshl_b32 s{S_T0+1}, s{S_WAVE}, 2
    v_add_u32 v242, s{S_T0+1}, v242
    s_sub_u32 s{S_T0}, s{S_IDX}, 8
    s_min_u32 s{S_T0}, s{S_T0}, 19
    s_lshl_b32 s{S_T0}, s{S_T0}, 3
    s_lshr_b32 s{S_T0+1}, s{S_XCD}, 1
    s_mul_i32 s{S_T0+1}, s{S_T0+1}, 160
    s_add_u32 s{S_T0+2}, s{S_T0}, s{S_T0+1}
    s_bitcmp1_b32 s{S_XCD}, 0
    s_cselect_b32 s{S_T0+4}, s{S_BIM}, s{S_BRE}
    s_cselect_b32 s{S_T0+5}, s{S_BIM+1}, s{S_BRE+1}
    s_cselect_b32 s{S_T0+3}, 640, 0
    v_add_u32 v244, s{S_T0+2}, v242
    v_add_u32 v243, s{S_T0+3}, v244""")
    own_rows(S_T0)
    A(f"v_add_u32 v242, s{S_T0}, v242")
    rows16_loads(SJ, 242, S_X)
    rows16_loads(SJ + 20, 244, S_T0 + 4)
def mlp_rows_work():
    a, q, r = 244, 246, 228
    A(f"v_mov_b32 v{a}, 0\nv_mov_b32 v{q}, 0\nv_mov_b32 v{a+1}, 0\nv_mov_b32 v{q+1}, 0\ns_waitcnt vmcnt({2*(PB-PA)})")
    for d in range(20):
        A(f"v_dot2c_f32_bf16 v{a}, s{S_ONES}, v{SJ+d}")
        A(f"v_dot2c_f32_bf16 v{q}, v{SJ+d}, v{SJ+d}")
        A(f"v_dot2c_f32_bf16 v{[a+1, q+1][d % 2]}, s{S_ONES}, v{SJ+20+d}")
    A(f"s_nop 2\nv_add_f32 v{SJ}, v{a+1}, v{q+1}")
    dpp_reduce16([a, q, SJ])
    stat_finish(a, q, 242, SJ + 40, 0)
    A(f"""v_mov_b32 v{SJ+1}, s{S_NONCE}
    v_lshlrev_b32 v243, 3, v243
    v_add_u32 v243, {WS_CSB}, v243
    s_and_saveexec_b64 s[{S_EX}:{S_EX+1}], vcc
    global_store_dwordx2 v242, v[{a}:{a+1}], s[{S_WS}:{S_WS+1}] sc1
    global_store_dwordx2 v243, v[{SJ}:{SJ+1}], s[{S_WS}:{S_WS+1}] sc1
    s_mov_b64 exec, s[{S_EX}:{S_EX+1}]""")
def cs_scalars(wreg, wsub):
    A(f"""s_and_b32 s{S_T0}, s{S_IDX}, 3
    s_lshl_b32 s{S_T0+1}, s{S_CB}, 2
    s_add_u32 s{S_T0+1}, s{S_T0+1}, s{S_T0}
    s_bitcmp1_b32 s{S_IDX}, 2
    s_cselect_b32 s{S_T0}, 48, 0
    s_add_u32 s{S_T0+1}, s{S_T0+1}, s{S_T0}        ; strip : 32 columns of this workgroup's own tile
    s_and_b32 s{S_T0+2}, s{S_XCD}, 1
    s_lshl_b32 s{S_T0+2}, s{S_T0+2}, 1
    s_sub_u32 s{S_T0+5}, s{wreg}, {wsub}
    s_add_u32 s{S_T0+2}, s{S_T0+2}, s{S_T0+5}      ; k quarter
    s_mul_i32 s{S_T0+5}, s{S_T0+5}, 10240
    s_add_u32 s{S_T0+5}, s{S_T0+5}, {SCR}""")
def cs_dma(T, first, n, capped):
    A(f"s_cmp_ge_u32 s{S_T0+1}, 48")
    srd_sel(SRD_T, S_W3, S_W1, 1966080)
    A(f"""s_cselect_b32 s{S_T0+3}, {48*64}, 0
    s_lshl_b32 s{S_T0+4}, s{S_T0+1}, 6
    s_sub_u32 s{S_T0+4}, s{S_T0+4}, s{S_T0+3}
    s_mul_i32 s{S_T0+3}, s{S_T0+2}, {160*3072}
    s_add_u32 s{S_T0+4}, s{S_T0+4}, s{S_T0+3}      ; soffset
    v_lshrrev_b32 v{T}, 2, v{VL}
    v_and_b32 v{T+1}, 3, v{VL}
    v_mul_u32_u24 v{T}, 3072, v{T}
    v_lshl_add_u32 v{T}, v{T+1}, 4, v{T}""")
    if first is not None:
        A(f"""s_mul_i32 s{S_T0+3}, s{first}, {5*16*3072}
        s_add_u32 s{S_T0+4}, s{S_T0+4}, s{S_T0+3}
        s_mul_i32 s{S_T0+3}, s{first}, 5120
        s_add_u32 s{S_T0+5}, s{S_T0+5}, s{S_T0+3}""")
    for i in range(n):
        A(f"s_add_u32 m0, s{S_T0+5}, {1024*i}\ns_add_u32 s{S_T0+7}, s{S_T0+4}, {16*3072*i}")
        if capped:
            cap()
        A(f"buffer_load_dwordx4 v{T}, s[{SRD_T}:{SRD_T+3}], s{S_T0+7} offen lds")
def cs_by_loader():
    A(f"s_lshr_b32 s{S_T0+6}, s{S_LW}, 1")
    cs_scalars(S_T0 + 6, 0)
    A(f"s_and_b32 s{S_T0+6}, s{S_LW}, 1")
    cs_dma(232, S_T0 + 6, 5, True)
CSL = OPT.get("csl", 1)
def mlp_cs_loads():
    T = SJ
    cs_scalars(S_WAVE, 2)
    if not CSL:
        cs_dma(T, None, 10, False)
    A(f"""v_and_b32 v{T+1}, 3, v{VL}
    v_lshrrev_b32 v{T+2}, 4, v{VL}
    v_lshlrev_b32 v{T+3}, 5, v{T+2}
    v_lshlrev_b32 v{T+2}, 9, v{T+2}
    v_bfe_u32 v{T}, v{VL}, 2, 2
    v_lshl_add_u32 v{T+2}, v{T}, 6, v{T+2}
    v_lshl_add_u32 v{T+2}, v{T+1}, 3, v{T+2}
    v_add_u32 v{T+2}, s{S_T0+5}, v{T+2}
    s_mul_i32 s{S_T0+2}, s{S_T0+2}, {3072*8}
    s_lshl_b32 s{S_T0+1}, s{S_T0+1}, 8
    s_add_u32 s{S_T0+2}, s{S_T0+2}, s{S_T0+1}
    s_add_u32 s{S_T0+2}, s{S_T0+2}, {WS_CSW}
    v_add_u32 v249, s{S_T0+2}, v{T+3}
    v_and_b32 v{T+1}, 15, v{VL}""")
    for i in range(4):
        A(f"v_mov_b32 v{T+4+i}, s{S_ONES}")
def mlp_cs_work():
    T = SJ
    F = T + 8
    A(f"s_waitcnt vmcnt({2*(PB-PA)})")
    for u in range(2):
        for ks in range(5):
            b = F + (u * 5 + ks) * 4
            A(f"ds_read_b64_tr_b16 v[{b}:{b+1}], v{T+2} offset:{ks*2048+u*32}")
            A(f"ds_read_b64_tr_b16 v[{b+2}:{b+3}], v{T+2} offset:{ks*2048+u*32+256}")
    A(f"v_cmp_eq_u32 vcc, 0, v{T+1}\ns_waitcnt lgkmcnt(0)")
    D = [T, F]
    for u in range(2):
        for ks in range(5):
            b, d = F + (u * 5 + ks) * 4, D[u]
            cin = "0" if ks == 0 else f"v[{d}:{d+3}]"
            A(f"v_mfma_f32_16x16x32_bf16 v[{d}:{d+3}], v[{b}:{b+3}], v[{T+4}:{T+7}], {cin}")
    A("s_nop 7")
    for u in range(2):
        d, o = D[u], F + 4 + 8 * u
        for r in range(4):
            A(f"v_mov_b32 v{o+2*r}, v{d+r}\nv_mov_b32 v{o+2*r+1}, s{S_NONCE}")
    A(f"s_and_saveexec_b64 s[{S_EX}:{S_EX+1}], vcc")
    for u in range(2):
        for h in range(2):
            o = F + 4 + 8 * u + 4 * h
            A(f"global_store_dwordx4 v249, v[{o}:{o+3}], s[{S_WS}:{S_WS+1}] offset:{u*128+h*16} sc1")
    A(f"s_mov_b64 exec, s[{S_EX}:{S_EX+1}]")
def ssm_rows_loads():
    own_rows(S_T0)
    A(f"""v_lshrrev_b32 v246, 5, v{VL}
    s_lshl_b32 s{S_T0+1}, s{S_WAVE}, 1
    s_add_u32 s{S_T0}, s{S_T0}, s{S_T0+1}
    v_add_u32 v246, s{S_T0}, v246
    v_and_b32 v247, 31, v{VL}
    v_mul_u32_u24 v249, 1280, v246
    v_lshl_add_u32 v249, v247, 3, v249""")
    for i in range(5):
        A(f"global_load_dwordx2 v[{236+2*i}:{237+2*i}], v249, s[{S_X}:{S_X+1}] offset:{256*i}")
def ssm_rows_work():
    A(f"s_waitcnt vmcnt({2*(PB-PA)})\nv_mov_b32 v249, 0\nv_mov_b32 v251, 0")
    for d in range(10):
        A(f"v_dot2c_f32_bf16 v249, s{S_ONES}, v{236+d}")
        A(f"v_dot2c_f32_bf16 v251, v{236+d}, v{236+d}")
    A("s_nop 2\nv_mov_b32 v236, v249")
    reduce32([236, 251])
    stat_finish(236, 251, 246, 247, 16)
    A(f"""s_and_saveexec_b64 s[{S_EX}:{S_EX+1}], vcc
    global_store_dwordx2 v246, v[236:237], s[{S_WS}:{S_WS+1}] sc1
    s_mov_b64 exec, s[{S_EX}:{S_EX+1}]""")
def touch_w2(T, S_WAVE=S_WAVE):
    G = OPT.get("tg", 128)
    sh = G.bit_length() - 1
    n2, nc = 7680 // G, 3200 // G
    if OPT.get("tm", 1):
        A(f"""s_sub_u32 s{S_T0+3}, s2, 64
        s_cmp_lt_u32 s{S_WAVE}, 2
        s_cselect_b32 s{S_T0}, 39, 33
        s_mov_b32 s{S_T0+1}, 4352
        s_cmov_b32 s{S_T0+1}, 10240
        s_cselect_b32 s{S_T0+4}, s{S_W2}, s{S_CRE}
        s_cselect_b32 s{S_T0+5}, s{S_W2+1}, s{S_CRE+1}
        s_mov_b32 s{S_T0+6}, 819196
        s_cmov_b32 s{S_T0+6}, 1966076
        s_cmp_eq_u32 s{S_WAVE}, 3
        s_cselect_b32 s{S_T0+4}, s{S_CIM}, s{S_T0+4}
        s_cselect_b32 s{S_T0+5}, s{S_CIM+1}, s{S_T0+5}
        s_mul_i32 s{S_T0+1}, s{S_T0+1}, s{S_T0+3}
        s_cmp_eq_u32 s{S_WAVE}, 1
        s_cselect_b32 s{S_T0+2}, 5120, 0
        s_add_u32 s{S_T0+1}, s{S_T0+1}, s{S_T0+2}
        v_min_u32 v{T}, s{S_T0}, v{VL}
        v_lshlrev_b32 v{T}, 7, v{T}
        v_add_u32 v{T}, s{S_T0+1}, v{T}
        v_min_u32 v{T}, s{S_T0+6}, v{T}
        global_load_dword v{T}, v{T}, s[{S_T0+4}:{S_T0+5}]""")
        return
    if G == 128:
        l = A.newlabel("L_tw")
        A(f"""s_cmp_eq_u32 s{S_WAVE}, 3
        s_cbranch_scc1 {l}
        s_cmp_eq_u32 s{S_WAVE}, 0
        s_cselect_b32 s{S_T0}, {n2-1}, {nc-1}
        s_mov_b32 s{S_T0+1}, 3200
        s_cmov_b32 s{S_T0+1}, 7680
        s_cselect_b32 s{S_T0+4}, s{S_W2}, s{S_CRE}
        s_cselect_b32 s{S_T0+5}, s{S_W2+1}, s{S_CRE+1}
        s_cmp_eq_u32 s{S_WAVE}, 2
        s_cselect_b32 s{S_T0+4}, s{S_CIM}, s{S_T0+4}
        s_cselect_b32 s{S_T0+5}, s{S_CIM+1}, s{S_T0+5}""")
    else:
        l = A.newlabel("L_tw")
        A(f"""s_cmp_lt_u32 s{S_WAVE}, 2
        s_cselect_b32 s{S_T0}, {n2//2-1}, {nc-1}
        s_mov_b32 s{S_T0+1}, 3200
        s_cmov_b32 s{S_T0+1}, 7680
        s_cselect_b32 s{S_T0+4}, s{S_W2}, s{S_CRE}
        s_cselect_b32 s{S_T0+5}, s{S_W2+1}, s{S_CRE+1}
        s_cmp_eq_u32 s{S_WAVE}, 3
        s_cselect_b32 s{S_T0+4}, s{S_CIM}, s{S_T0+4}
        s_cselect_b32 s{S_T0+5}, s{S_CIM+1}, s{S_T0+5}""")
    A(f"""s_mul_i32 s{S_T0+1}, s{S_T0+1}, s2
    s_cmp_eq_u32 s{S_WAVE}, 1
    s_cselect_b32 s{S_T0+2}, {3840 if G == 64 else 0}, 0
    s_add_u32 s{S_T0+1}, s{S_T0+1}, s{S_T0+2}
    v_min_u32 v{T}, s{S_T0}, v{VL}
    v_lshlrev_b32 v{T}, {sh}, v{T}
    v_add_u32 v{T}, s{S_T0+1}, v{T}
    global_load_dword v{T}, v{T}, s[{S_T0+4}:{S_T0+5}]""")
    A.label(l)
def touch_pages(T, D_):
    l = A.newlabel("L_tp")
    A(f"""s_cmp_lg_u32 s{S_WAVE}, 1
    s_cbranch_scc1 {l}
    s_mul_i32 s{S_T0}, s{S_TG}, {16*2560}
    s_lshl_b32 s{S_T0+1}, s{S_DCOL}, 2
    s_add_u32 s{S_T0}, s{S_T0}, s{S_T0+1}
    v_and_b32 v{T}, 1, v{VL}
    v_mul_u32_u24 v{T}, {31*2560}, v{T}
    v_add_u32 v{T}, s{S_T0}, v{T}
    global_load_dword v{D_}, v{T}, s[{S_OUT}:{S_OUT+1}]
    s_lshl_b32 s{S_T0}, s{S_C}, 1
    s_mul_i32 s{S_T0}, s{S_T0}, 88
    s_lshl_b32 s{S_T0+1}, s{S_CB}, 2
    s_mul_i32 s{S_T0+2}, s{S_CB}, 10
    s_add_u32 s{S_T0+2}, s{S_T0+2}, 48
    s_cmp_eq_u32 s{S_J}, 0
    s_cselect_b32 s{S_T0+1}, s{S_T0+2}, s{S_T0+1}
    s_add_u32 s{S_T0}, s{S_T0}, s{S_T0+1}
    s_lshl_b32 s{S_T0}, s{S_T0}, 12
    s_add_u32 s{S_T0}, s{S_T0}, {WS_ACT}
    v_and_b32 v{T}, 1, v{VL}
    v_mul_u32_u24 v{T}, {88*4096}, v{T}
    v_add_u32 v{T}, s{S_T0}, v{T}
    global_load_dword v{D_}, v{T}, s[{S_WS}:{S_WS+1}]""")
    A.label(l)
def by_wave(lo, hi):
    l1, l2 = A.newlabel("L_bw"), A.newlabel("L_bw")
    A(f"s_cmp_ge_u32 s{S_WAVE}, 2\ns_cbranch_scc1 {l1}")
    lo()
    A(f"s_branch {l2}")
    A.label(l1)
    hi()
    A.label(l2)

def zero_regs(lo, n):
    def f():
        for r in range(lo, lo + n):
            A(f"v_mov_b32 v{r}, 0")
    return f

def rowpat_read(dst, tmp):
    A(f"""v_bfe_u32 v{tmp}, v{VL}, 1, 3
    v_lshrrev_b32 v{dst}, 4, v{VL}
    v_xor_b32 v{tmp}, v{tmp}, v{dst}
    v_and_b32 v{dst}, 15, v{VL}
    v_lshlrev_b32 v{dst}, 7, v{dst}
    v_lshl_add_u32 v{dst}, v{tmp}, 4, v{dst}""")

def touch_inputs(T):
    if not OPT["pf"]:
        return
    G = OPT.get("tg", 64)
    plan = [[(S_X, 10240)], [(S_W1, 7680), (S_BRE, 3200)], [(S_W3, 7680), (S_BIM, 3200)], [(S_W2, 7680), (S_CRE, 3200), (S_CIM, 3200)]]
    done = A.newlabel("L_ti")
    sh = G.bit_length() - 1
    for w, segs in enumerate(plan):
        nx = A.newlabel("L_ti")
        if w < 3:
            A(f"s_cmp_lg_u32 s{S_WAVE}, {w}\ns_cbranch_scc1 {nx}")
        k = 0
        for p, n in segs:
            cnt = n // G
            A(f"s_mul_i32 s{S_T0}, s2, {n}")
            for o in range(0, cnt, 64):
                A(f"""v_add_u32 v{T}, {o}, v{VL}
                v_min_u32 v{T}, {cnt-1}, v{T}
                v_lshlrev_b32 v{T}, {sh}, v{T}
                v_add_u32 v{T}, s{S_T0}, v{T}
                global_load_dword v{244+k}, v{T}, s[{p}:{p+1}]""")
                k += 1
        if w < 3:
            A(f"s_branch {done}")
            A.label(nx)
    A.label(done)
XE = OPT.get("xe", 2)
XL = 131072
XE_X, XE_D = 236, 228
def g2_rows(vT, X, DK, NH=3):
    A(f"""s_and_b32 s{S_T0+4}, s{S_WAVE}, 1
    s_mul_i32 s{S_T0+4}, s{S_T0+4}, {NH}
    s_add_u32 s{S_T0+4}, s{S_T0+4}, s{S_TG}            ; first row tile of this wave
    s_and_b32 s{S_T0+5}, s{S_WAVE}, 2
    s_lshl_b32 s{S_T0}, s{S_T0+4}, 4
    v_and_b32 v{vT}, 15, v{VL}
    v_add_u32 v{vT}, s{S_T0}, v{vT}                    ; row
    v_lshrrev_b32 v{vT+1}, 4, v{VL}
    s_lshl_b32 s{S_T0+1}, s{S_T0+5}, 4
    s_add_u32 s{S_T0+1}, s{S_T0+1}, s{S_DCOL}
    v_lshl_add_u32 v{vT+1}, v{vT+1}, 2, s{S_T0+1}      ; column
    v_mul_u32_u24 v{vT+2}, 640, v{vT}
    v_add_u32 v{vT+2}, v{vT+2}, v{vT+1}
    v_lshlrev_b32 v{vT+3}, 2, v{vT+2}
    v_lshlrev_b32 v{vT+2}, 1, v{vT+2}
    v_lshlrev_b32 v{vT+1}, 1, v{vT+1}
    v_lshlrev_b32 v{vT+4}, 3, v{vT}
    v_add_u32 v{vT+4}, {WS_STAT}, v{vT+4}""")
    if X is None:
        return
    for Tp in range(NH):
        for U in range(2):
            A(f"global_load_dwordx2 v[{X+4*Tp+2*U}:{X+4*Tp+2*U+1}], v{vT+2}, s[{S_X}:{S_X+1}] offset:{32*U}")
        if Tp < NH - 1:
            A(f"v_add_u32 v{vT+2}, {16*1280}, v{vT+2}")
    for U in range(2):
        A(f"global_load_dwordx2 v[{DK+4*U}:{DK+4*U+1}], v{vT+1}, s[{S_DSK}:{S_DSK+1}] offset:{32*U}")

def gemm1_loop(kind):
    mlp = kind == "mlp"
    NB = 8 if mlp else 10
    NS = 5
    SLOT = 16384 if mlp else 20480
    XF = 128 if mlp else 160
    WF = XF + 32
    AX = WF + NB * 4
    AW = AX + 2
    nAW = 4 if mlp else 2
    D = D1 if mlp else OPT["D1S"]
    lg = Queue(A, "lgkmcnt", 15)

    def rd_x(ks, T):
        b = XF + ks * 16 + T * 4
        if OPT["noread"]:
            return
        A(f"ds_read_b128 v[{b}:{b+3}], v{AX+ks} offset:{T*2048}")
        lg.issue(("x", ks))
    def rd_w(j, gen, half=None):
        b = WF + j * 4
        if OPT["noread"]:
            return
        if mlp:
            F, c = j // 2, j % 2
            for h in ((0, 1) if half is None else (half,)):
                A(f"ds_read_b64_tr_b16 v[{b+2*h}:{b+2*h+1}], v{AW+F} offset:{c*8192+1024*h}")
                lg.issue(("w", j, gen))
        else:
            ks, G = j // 5, j % 5
            A(f"ds_read_b128 v[{b}:{b+3}], v{AW+ks} offset:{G*2048}")
            lg.issue(("w", j, gen))
    def mf(j, T, par):
        w = WF + j * 4
        if (OPT["nomfma"] == 1 and T > 0) or OPT["nomfma"] == 2:
            return
        if mlp:
            acc = (j * 4 + T) * 4
            x = XF + par * 16 + T * 4
            A(f"v_mfma_f32_16x16x32_bf16 v[{acc}:{acc+3}], v[{w}:{w+3}], v[{x}:{x+3}], v[{acc}:{acc+3}]")
        else:
            acc = (((j % 5) * 2 + par) * 4 + T) * 4
            x = XF + (j // 5) * 16 + T * 4
            A(f"v_mfma_f32_16x16x32_bf16 v[{acc}:{acc+3}], v[{x}:{x+3}], v[{w}:{w+3}], v[{acc}:{acc+3}]")
    def xreads(par, j):
        k = j + D - NB
        if mlp:
            return [(par ^ 1, T) for T in ([2 * k, 2 * k + 1] if 0 <= k < 2 else [])]
        if par == 1:
            return [(0, T) for T in ([2 * k, 2 * k + 1] if 0 <= k < 2 else [])]
        return [(1, T) for T in ([2 * j, 2 * j + 1] if j < 2 else [])]
    assert mlp or NB - D >= 5

    A(f"s_mov_b32 s{S_SLOT}, 0\ns_mov_b32 s{S_CNT}, 0\ns_mov_b32 s{S_KX}, 0")
    vFP, vFV, vFD = 248, 249, 250
    A(f"s_mov_b32 m0, s{S_FR}\ns_mov_b32 s{S_LMT}, {PA or PB}")
    assert PA
    flag_wait(1, vFD, vFP)
    A(f"v_add_u32 v{vFP}, 4, v{vFP}")
    if TS:
        A("s_mov_b32 s48, 0\ns_mov_b32 s49, 0")
    ts(2, 2)
    tc(12)
    for j in range(D):
        rd_w(j, 0)
        for ks, T in xreads(1, j + NB - D):
            rd_x(ks, T)
    lbl = f"L_g1_{kind}"
    A(f"""s_mov_b32 s{S_T0}, {SLOT}
    s_mov_b32 s{S_T0+1}, {-(NS-1)*SLOT & 0xffffffff}
    s_mov_b32 s{S_T0+2}, 16384
    s_mov_b32 s{S_T0+3}, {-32768 & 0xffffffff}""")
    A.label(lbl)
    entry = list(lg.q)
    ring = [f"s_add_u32 s{S_SLOT}, s{S_SLOT}, 1\ns_cmp_eq_u32 s{S_SLOT}, {NS}",
            f"s_cselect_b32 s{S_DELTA}, s{S_T0+1}, s{S_T0}\ns_cselect_b32 s{S_SLOT}, 0, s{S_SLOT}"]
    xring = [f"s_add_u32 s{S_KX}, s{S_KX}, 1\ns_cmp_eq_u32 s{S_KX}, 3",
             f"s_cselect_b32 s{S_KW}, s{S_T0+3}, s{S_T0+2}\ns_cselect_b32 s{S_KX}, 0, s{S_KX}"]
    def adv(r, d):
        return f"v_add_u32 v{r}, s{d}, v{r}"
    for par in range(2):
        fill = {}
        if mlp:
            assert D == 4
            fill[(0, 2)] = ring[0]; fill[(1, 2)] = ring[1]
            fill[(2, 2)] = adv(AW, S_DELTA) + "\n" + adv(AW + 1, S_DELTA)
            fill[(6, 2)] = adv(AW + 2, S_DELTA) + f"\ns_add_u32 m0, m0, 4"; fill[(7, 2)] = adv(AW + 3, S_DELTA)
            fill[(0, 3)] = f"v_add_u32 v{vFP}, 4, v{vFP}"
            fpos, cpos, wpos = (1, 3), (3, 0), (7, 2)
            if par == 0:
                fill[(3, 2)] = xring[0]; fill[(3, 3)] = xring[1]
            else:
                fill[(3, 2)] = adv(AX, S_KW) + "\n" + adv(AX + 1, S_KW)
                fill[(7, 3)] = f"s_add_u32 s{S_CNT}, s{S_CNT}, 1\ns_cmp_lt_u32 s{S_CNT}, s{S_LMT}"
        else:
            assert D == 5
            fill[(2, 1)] = ring[0]; fill[(2, 2)] = ring[1]
            fill[(3, 1)] = adv(AW, S_DELTA); fill[(7, 1)] = adv(AW + 1, S_DELTA)
            fill[(1, 3)] = f"v_add_u32 v{vFP}, 4, v{vFP}"
            fill[(8, 3)] = f"s_add_u32 m0, m0, 4"
            fpos, cpos, wpos = (2, 3), (4, 2), (9, 2)
            if par == 0:
                fill[(8, 1)] = xring[0]; fill[(8, 2)] = xring[1]
            else:
                fill[(4, 1)] = adv(AX, S_KW) + "\n" + adv(AX + 1, S_KW)
                fill[(9, 1)] = f"s_add_u32 s{S_CNT}, s{S_CNT}, 1\ns_cmp_lt_u32 s{S_CNT}, s{S_LMT}"
        for j in range(NB):
            tags = [("w", j, par)]
            if j == 0:
                tags.append(("x", par if mlp else 0))
            if j == 5 and not mlp:
                tags.append(("x", 1))
            jn = j + D
            if jn == NB - 1:
                tags.append("flag")
            lg.wait(tags)
            acts = {0: [], 1: [], 2: [], 3: []}
            g = 0
            if jn == NB:
                acts[0].append(lambda: flag_test(None, vFD, vFP, 0, acc=48, split=True))
                g = 1
            wj, wg = (jn, par) if jn < NB else (jn - NB, par ^ 1)
            if mlp:
                acts[g].append(lambda wj=wj, wg=wg: rd_w(wj, wg, 0))
                acts[g + 1].append(lambda wj=wj, wg=wg: rd_w(wj, wg, 1))
                g += 2
            else:
                acts[g].append(lambda wj=wj, wg=wg: rd_w(wj, wg, 0))
                g += 1
            for n_, (ks, T) in enumerate(xreads(par, j)):
                acts[min(g + n_, 3)].append(lambda ks=ks, T=T: rd_x(ks, T))
            for T in range(4):
                mf(j, T, par)
                for f in acts[T]:
                    f()
                if (j, T) in fill:
                    A(fill[(j, T)])
                if (j, T) == fpos:
                    A(f"ds_read_b32 v{vFD}, v{vFP}")
                    lg.issue("flag")
                if (j, T) == cpos:
                    A(f"v_cmp_ne_u32 vcc, s{S_K}, v{vFD}")
                if (j, T) == wpos:
                    A(f"buffer_load_dword v{VZ}, s[{SRD_F}:{SRD_F+3}], 0 offen lds")
    A(f"s_cbranch_scc1 {lbl}")
    lfin = A.newlabel("L_g1e")
    A(f"s_cmp_eq_u32 s{S_CNT}, 10\ns_cbranch_scc1 {lfin}")
    if PA:
        lw_ = A.newlabel("L_g1w")
        A(f"s_cmp_lg_u32 s{S_CNT}, {PA}\ns_cbranch_scc1 {lw_}")
        if TS == 1:
            ts(30, 2)
        A(f"s_mov_b32 s{S_FR}, m0")
        nonce_load()
        A(f"s_mov_b64 s[{S_M0}:{S_M0+1}], s[{S_T0}:{S_T0+1}]\ns_mov_b64 s[{S_M1}:{S_M1+1}], s[{S_T0+2}:{S_T0+3}]")
        if OPT.get("tp", 0):
            touch_pages(*((198, 199) if mlp else (249, 251)))
        if OPT.get("tw", 3) == 2 and mlp:
            touch_w2(251)
        if mlp:
            by_wave(mlp_rows_loads, mlp_cs_loads)
        else:
            ssm_rows_loads()
        A(f"""s_mov_b64 s[{S_T0}:{S_T0+1}], s[{S_M0}:{S_M0+1}]
        s_mov_b64 s[{S_T0+2}:{S_T0+3}], s[{S_M1}:{S_M1+1}]
        s_mov_b32 m0, s{S_FR}
        s_mov_b32 s{S_LMT}, {PB}""")
        if TS == 1:
            A(f"s_memrealtime s[{S_TS}:{S_TS+1}]\ns_sleep 2\nv_writelane_b32 v255, s{S_TS}, 31")
        A(f"s_branch {lbl}")
        A.label(lw_)
    if TS == 1:
        ts(32, 2)
    nonce_ready()
    if mlp:
        by_wave(mlp_rows_work, mlp_cs_work)
        if OPT.get("tw", 3) == 3:
            A(f"s_mov_b64 s[{S_M0}:{S_M0+1}], s[{S_T0}:{S_T0+1}]\ns_mov_b64 s[{S_M1}:{S_M1+1}], s[{S_T0+2}:{S_T0+3}]")
            touch_w2(251)
            if XE == 1:
                g2_rows(200, XE_X, XE_D)
            A(f"s_mov_b64 s[{S_T0}:{S_T0+1}], s[{S_M0}:{S_M0+1}]\ns_mov_b64 s[{S_T0+2}:{S_T0+3}], s[{S_M1}:{S_M1+1}]")
    else:
        ssm_rows_work()
    if TS == 1:
        ts(33, 2)
    A(f"s_mov_b32 s{S_LMT}, 10\ns_branch {lbl}")
    A.label(lfin)
    assert lg.q == entry[len(entry) - len(lg.q):]
    return lg, entry, AX, AW

G2_B = 96
G2_A = 128
NS2, SL2 = 9, 16384
def g2slot(s):
    return (s % NS2) * SL2

def rot_next(s, stepA, stepB, baseB):
    if s == 11:
        A(f"s_mul_i32 s{S_KB}, s{S_R2B}, {stepB}")
        if baseB:
            A(f"s_add_u32 s{S_KB}, s{S_KB}, {baseB}")
    elif s < 11:
        A(f"""s_add_u32 s{S_KB}, s{S_KB}, {stepA}
        s_cmp_eq_u32 s{S_KB}, {12*stepA}
        s_cselect_b32 s{S_KB}, 0, s{S_KB}""")
    elif s < 21:
        A(f"""s_add_u32 s{S_KB}, s{S_KB}, {stepB}
        s_cmp_eq_u32 s{S_KB}, {baseB+10*stepB}
        s_cselect_b32 s{S_KB}, {baseB}, s{S_KB}""")

def gemm2_compute(NT):
    NH = NT // 2
    DA = 3 if NT == 6 else OPT.get("DA2", 5)
    RED = 4 * SL2
    GB, GA_ = 48, 112
    vW, vC, vB = 204, 208, 212
    vA = 220
    vT = 196
    vFA, vFP, vFV, vFD, vG = 248, 249, 250, 251, 223
    X, ST, DK, TT = 128, 140, 148, 156
    A(f"""s_lshl_b32 s{S_T0}, s{S_T0}, 5
    s_add_u32 s{S_T0}, s{S_T0}, s{S_T0+1}
    s_lshl_b32 s{S_T0}, s{S_T0}, {FSH}
    s_add_u32 s{S_T0+3}, s{S_T0}, {WS_FLAG}""")
    if XE == 2:
        g2_rows(vT, None, None)
        A(f"""s_and_b32 s{S_T0}, s{S_WAVE}, 1
        s_mul_i32 s{S_T0}, s{S_T0}, {NH*16}
        v_and_b32 v{vT}, 15, v{VL}
        v_add_u32 v{vT}, s{S_T0}, v{vT}
        v_lshrrev_b32 v{vT+1}, 4, v{VL}
        v_lshlrev_b32 v{vT+1}, 3, v{vT+1}
        s_lshl_b32 s{S_T0}, s{S_T0+5}, 5
        s_add_u32 s{S_T0}, s{S_T0}, {XL}
        v_add_u32 v{vT+1}, s{S_T0}, v{vT+1}
        v_lshl_add_u32 v{vT+2}, v{vT}, 7, v{vT+1}
        v_lshlrev_b32 v{vT}, 2, v{vT}
        v_add_u32 v{vT}, {XL+13312}, v{vT}""")
        for Tp in range(NH):
            for U in range(2):
                A(f"ds_read_b64 v[{X+4*Tp+2*U}:{X+4*Tp+2*U+1}], v{vT+2} offset:{2048*Tp+32*U}")
            A(f"ds_read_b32 v{ST+2*Tp}, v{vT} offset:{64*Tp}")
        for U in range(2):
            A(f"ds_read_b64 v[{DK+4*U}:{DK+4*U+1}], v{vT+1} offset:{12288+32*U}")
    elif XE:
        X, DK = XE_X, XE_D
        g2_rows(vT, None, None)
    else:
        g2_rows(vT, X, DK)
    def stat_loads_():
        for Tp in range(NH):
            A(f"global_load_dwordx2 v[{ST+2*Tp}:{ST+2*Tp+1}], v{vT+4}, s[{S_WS}:{S_WS+1}] offset:{128*Tp} sc1")
    if XE != 2:
        stat_loads_()
    A(f"""v_lshrrev_b32 v{vT}, 4, v{VL}               ; q
    v_bfe_u32 v{vT+1}, v{VL}, 2, 2                     ; rr
    v_lshl_add_u32 v{vT+1}, v{vT}, 2, v{vT+1}          ; 4q + rr
    v_bfe_u32 v{vT+5}, v{vT+1}, 1, 2                   ; swizzle
    s_lshl_b32 s{S_T0}, s{S_T0+5}, 5
    v_add_u32 v{vT+1}, s{S_T0}, v{vT+1}
    v_lshlrev_b32 v{vT+1}, 7, v{vT+1}
    v_and_b32 v{vT+2}, 3, v{VL}
    v_lshl_add_u32 v{vT+1}, v{vT+2}, 3, v{vT+1}
    v_and_b32 v{vT+2}, 1, v{vT}
    s_lshl_b32 s{S_T0}, s{S_T0+5}, 1
    v_add_u32 v{vT+2}, s{S_T0}, v{vT+2}
    v_bfe_u32 v{vT+6}, v{VL}, 1, 3
    v_xor_b32 v{vT+2}, v{vT+2}, v{vT+6}
    v_lshrrev_b32 v{vT}, 1, v{vT}
    v_lshlrev_b32 v{vT}, 13, v{vT}
    v_lshl_add_u32 v{vT}, v{vT+2}, 4, v{vT}
    v_and_b32 v{vT+6}, 15, v{VL}
    v_lshl_add_u32 v{vT}, v{vT+6}, 7, v{vT}""")
    for Up in range(4):
        A(f"""s_xor_b32 s{S_T0}, s{S_T0+5}, {Up}
        v_xor_b32 v{vT+2}, s{S_T0}, v{vT+5}
        v_lshl_add_u32 v{vW+Up}, v{vT+2}, 5, v{vT+1}
        s_lshl_b32 s{S_T0}, s{S_T0}, 11
        v_add_u32 v{vC+Up}, s{S_T0}, v{vT}""")
    A(f"v_lshlrev_b32 v{vT}, 4, v{VL}\ns_lshl_b32 s{S_T0+1}, s{S_HB2}, 2\ns_sub_u32 s{S_T0+1}, s{S_T0+4}, s{S_T0+1}")
    for Tp in range(NH):
        A(f"""s_add_u32 s{S_T0}, s{S_T0+1}, {Tp}
        s_lshr_b32 s{S_T0+2}, s{S_T0}, 2
        s_mul_i32 s{S_T0+2}, s{S_T0+2}, {88*4-4}
        s_add_u32 s{S_T0}, s{S_T0}, s{S_T0+2}
        s_lshl_b32 s{S_T0}, s{S_T0}, 10
        v_add_u32 v{vA+Tp}, s{S_T0}, v{vT}""")
    A(f"""s_mul_i32 s{S_T0}, s{S_HB2}, {88*4096}
    s_lshl_b32 s{S_T0+1}, s{S_T0+5}, 12
    s_add_u32 s{S_T0}, s{S_T0}, s{S_T0+1}
    s_add_u32 s{S_T0}, s{S_T0}, {WS_ACT}
    s_add_u32 s{SRD_T}, s{S_WS}, s{S_T0}
    s_addc_u32 s{SRD_T+1}, s{S_WS+1}, 0
    s_mov_b32 s{SRD_T+2}, {(88+86)*4096}
    s_mov_b32 s{SRD_T+3}, 0x20000
    s_lshl_b32 s{S_KB}, s{S_R2A}, 14""")
    lr, lo = A.newlabel("L_fl"), A.newlabel("L_fl")
    A(f"""s_lshl_b32 s{S_T0}, s{S_HB2}, {5+FSH}
    s_add_u32 s{S_T0}, s{S_T0}, {WS_FLAG}
    v_and_b32 v{vFA}, {63 if NT == 6 else 31}, v{VL}
    v_lshlrev_b32 v{vFA}, {FSH}, v{vFA}
    v_add_u32 v{vFA}, s{S_T0}, v{vFA}
    s_lshr_b32 s{S_T0+1}, s{S_WAVE}, 1
    s_lshl_b32 s{S_T0+1}, 0x555555, s{S_T0+1}
""")
    def publish(young):
        A(f"""v_lshlrev_b32 v{vT}, 17, v{VL}
        v_add_u32 v{vT}, s{S_T0+3}, v{vT}
        v_mov_b32 v{vT+1}, s{S_NONCE}
        s_mov_b32 s{S_RP}, 0
        s_waitcnt vmcnt({young})
        s_mov_b64 exec, {(1 << NREP) - 1}
        global_store_dword v{vT}, v{vT+1}, s[{S_WS}:{S_WS+1}] sc1
        s_mov_b64 exec, -1""")
        ts(6, 2)
    LATE = XE == 2 and OPT.get("plate", 0)
    if not LATE:
        publish(0 if XE == 2 else NH if XE else 3 * NH + 2)
    ls, lk = A.newlabel("L_st"), A.newlabel("L_st")
    if XE == 2:
        A(f"s_waitcnt lgkmcnt(0)\nv_mov_b32 v{vFV}, s{S_K}\nds_write_b32 v{VFO}, v{vFV} offset:{4*21}\ns_branch {lk}")
    A("s_waitcnt vmcnt(1)")
    A.label(ls)
    A(f"s_mov_b64 s[{S_M0}:{S_M0+1}], 0")
    for Tp in range(NH):
        A(f"v_cmp_ne_u32 vcc, s{S_NONCE}, v{ST+2*Tp+1}\ns_nop 1\ns_or_b64 s[{S_M0}:{S_M0+1}], s[{S_M0}:{S_M0+1}], vcc")
    A(f"s_cmp_eq_u64 s[{S_M0}:{S_M0+1}], 0\ns_cbranch_scc1 {lk}")
    stat_loads_()
    A("s_waitcnt vmcnt(0)")
    spin_tail(ls, lk, 1)
    A.label(lk)
    def unpack(dst, src):
        A(f"""v_and_b32 v{dst+3}, 0xffff0000, v{src+1}
        v_lshlrev_b32 v{dst+2}, 16, v{src+1}
        v_and_b32 v{dst+1}, 0xffff0000, v{src}
        v_lshlrev_b32 v{dst}, 16, v{src}""")
    def rnd(r, t):
        A(f"""v_cvt_pk_bf16_f32 v{t}, v{r}, v{r+1}
        v_cvt_pk_bf16_f32 v{t+1}, v{r+2}, v{r+3}""")
        unpack(r, t)
    unpack(DK, DK)
    unpack(DK + 4, DK + 4)
    EP = OPT.get("epoll", 9)
    for Tp in range(NH if not OPT.get("nobase", 0) else 0):
        st_ = ST + 2 * Tp
        if Tp == min(EP, NH - 1) and EP < 9:
            A(f"global_load_dword v{vG}, v{vFA}, s[{S_WS}:{S_WS+1}] sc1")
        A(f"""v_and_b32 v{st_+1}, 0xffff0000, v{st_}
        v_lshlrev_b32 v{st_}, 16, v{st_}
        v_rcp_f32 v{st_+1}, v{st_+1}""")
        for U in range(2):
            acc = (U * NH + Tp) * 4
            unpack(acc, X + 4 * Tp + 2 * U)
            for h in (0, 2):
                A(f"v_pk_add_f32 v[{TT+h}:{TT+h+1}], v[{acc+h}:{acc+h+1}], v[{st_}:{st_+1}] op_sel_hi:[1,0] neg_lo:[0,1] neg_hi:[0,1]")
            rnd(TT, TT + 4)
            for h in (0, 2):
                A(f"v_pk_mul_f32 v[{TT+h}:{TT+h+1}], v[{TT+h}:{TT+h+1}], v[{st_}:{st_+1}] op_sel:[0,1] op_sel_hi:[1,1]")
            rnd(TT, TT + 4)
            for h in (0, 2):
                A(f"v_pk_mul_f32 v[{TT+h}:{TT+h+1}], v[{TT+h}:{TT+h+1}], v[{DK+4*U+h}:{DK+4*U+h+1}]")
            rnd(TT, TT + 4)
            for h in (0, 2):
                A(f"v_pk_add_f32 v[{acc+h}:{acc+h+1}], v[{acc+h}:{acc+h+1}], v[{TT+h}:{TT+h+1}]")
    if LATE:
        publish(0)
    if OPT.get("nap0", 0):
        A(f"s_sleep {OPT['nap0']}")
    ONE = OPT.get("one", 1)
    if ONE:
        lw_ = A.newlabel("L_go")
        A(f"""v_mov_b32 v{vFD}, {GO}
        s_cmp_lg_u32 s{S_WAVE}, 0
        s_cbranch_scc1 {lw_}
        s_mov_b32 s{S_T0+1}, 0xffffff""")
    A(f"s_mov_b32 exec_lo, s{S_T0+1}\ns_mov_b32 exec_hi, s{S_T0+1}")
    PP = OPT.get("pp", 0)
    if PP:
        pr = [vG, vB, vB + 1, vB + 2][:PP]
        for r_ in pr[:-1]:
            A(f"global_load_dword v{r_}, v{vFA}, s[{S_WS}:{S_WS+1}] sc1\ns_sleep {OPT.get('pps', 4)}")
        A.label(lr)
        for i_ in range(PP):
            A(f"""global_load_dword v{pr[i_-1]}, v{vFA}, s[{S_WS}:{S_WS+1}] sc1
            s_waitcnt vmcnt({PP-1})
            v_cmp_ne_u32 vcc, s{S_NONCE}, v{pr[i_]}
            s_cbranch_vccz {lo}""")
        A(f"""s_sub_u32 s{S_TO}, s{S_TO}, 1
        s_cmp_lg_u32 s{S_TO}, 0
        s_cbranch_scc1 {lr}
        s_mov_b32 s{S_TO}, 1""")
        A.label(lo)
    else:
        A.label(lr)
        A(f"global_load_dword v{vG}, v{vFA}, s[{S_WS}:{S_WS+1}] sc1")
        A(f"""s_waitcnt vmcnt(0)
        v_cmp_ne_u32 vcc, s{S_NONCE}, v{vG}
        s_cbranch_vccz {lo}""")
        if NREP > 1:
            next_copy(vFA, NREP, REPS, S_RP)
        spin_tail(lr, lo, 2)
        A.label(lo)
    if ONE:
        A(f"s_mov_b64 exec, 1\nds_write_b32 v{vFD}, v{vFD}\ns_branch {lw_}x")
        A.label(lw_)
        A(f"""ds_read_b32 v{vG}, v{vFD}
        s_waitcnt lgkmcnt(0)
        v_cmp_eq_u32 vcc, 0, v{vG}
        s_cbranch_vccz {lw_}x""")
        spin_tail(lw_, None, 1)
        A.label(f"{lw_}x")
    A("s_mov_b64 exec, -1")
    ts(7, 2)
    tc(14)
    if TS:
        A("s_mov_b32 s48, 0\ns_mov_b32 s49, 0")
    vm = Queue(A, "vmcnt", 63)
    A(f"s_add_u32 s{S_T0+4}, s{S_KB}, 4096\nv_lshlrev_b32 v{vFA}, 4, v{VL}\nv_add_u32 v{vFA}, {AUX}, v{vFA}")
    def ldA1(s, i):
        u, Tp = i // NH, i % NH
        b = GA_ + ((s % DA) * NT + i) * 4
        A(f"buffer_load_dwordx4 v[{b}:{b+3}], v{vA+Tp}, s[{SRD_T}:{SRD_T+3}], s{S_T0+4 if u else S_KB} offen sc1")
        vm.issue(("a", s))
        if i == NT - 1:
            rot_next(s, 16384, 16384, 12 * 16384)
            if s < 21:
                A(f"s_add_u32 s{S_T0+4}, s{S_KB}, 4096")
    def ldA(s):
        for i in range(NT):
            ldA1(s, i)
    def rdB(s, j):
        u, U = j // 4, j % 4
        b = GB + (s % 2) * 32 + j * 4
        if s < 12:
            A(f"ds_read_b64_tr_b16 v[{b}:{b+1}], v{vB+U} offset:{4096*u}")
            A(f"ds_read_b64_tr_b16 v[{b+2}:{b+3}], v{vB+U} offset:{4096*u+2048}")
        else:
            A(f"ds_read_b128 v[{b}:{b+3}], v{vB+j}")
    def setB(s, us=range(4)):
        for U in us:
            A(f"v_add_u32 v{vB+U}, {g2slot(s)}, v{(vW if s < 12 else vC)+U}")
    def setB2(s, us=range(4)):
        if s >= 12:
            for U in us:
                A(f"v_xor_b32 v{vB+4+U}, 32, v{vB+U}")
    assert GA_ + DA * NT * 4 <= vW
    peer_addr(vFP, FLG)
    R0 = OPT.get("ramp", 2) if NT == 6 else DA - 1
    st = {"nxt": R0}
    for s in range(R0):
        ldA(s)
    A(f"v_mov_b32 v{vFV}, s{S_K}")
    flag_wait(22, vFD, vFP)
    if OPT.get("pp", 0):
        A(f"s_waitcnt vmcnt({R0*NT})")
    setB(0)
    for j in range(8):
        rdB(0, j)
    A(f"ds_read_b32 v{vFD}, v{vFP} offset:{4*23}")
    GATE = 12 - (DA - 1)
    def stage(s, limit):
        A(f"s_waitcnt lgkmcnt({1 if s else 0})")
        if TS == 2:
            ts(16 + s, 2)
        if TS == 3:
            A(f"s_memtime s[{S_TS}:{S_TS+1}]\ns_waitcnt lgkmcnt(0)\ns_mov_b32 s50, s{S_TS}")
        vm.wait(("a", s))
        if TS == 3:
            A(f"s_memtime s[{S_TS}:{S_TS+1}]\ns_waitcnt lgkmcnt(0)\ns_sub_u32 s50, s{S_TS}, s50\nv_writelane_b32 v255, s50, {16+s}\nv_writelane_b32 v255, s{S_TS}, {40+s}")
        todo = []
        while st["nxt"] <= min(limit, s - 1 + DA, 21) and len(todo) < 2 * NT:
            todo += [(st["nxt"], i) for i in range(NT)]
            st["nxt"] += 1
        acts = []
        if s < 21:
            acts.append(lambda: (A(f"v_cmp_ne_u32 vcc, s{S_K}, v{vFD}"), setB(s + 1, (0,))))
            acts.append(lambda: setB(s + 1, (1, 2)))
            acts.append(lambda: (flag_test(23 + s, vFD, vFP, 4 * (23 + s), split=True, acc=48), setB(s + 1, (3,))))
            for j in range(8):
                acts.append(lambda j=j: (rdB(s + 1, j), setB2(s + 1, (j,)) if j < 4 else None))
        if s < 20:
            acts.append(lambda: A(f"ds_read_b32 v{vFD}, v{vFP} offset:{4*(24+s)}"))
        if s == GATE - 1:
            acts.append(lambda: A(f"ds_read_b32 v{vG}, v{vFA}"))
        if s == 21:
            acts.append(lambda: A(f"ds_read_b32 v{vFD}, v{vFP} offset:{2048+4*36}\nv_lshlrev_b32 v{vB}, 4, v{VL}"))
            acts.append(lambda: A(f"s_mul_i32 s{S_T0}, s{S_WAVE}, {NT*1024}\ns_add_u32 s{S_T0}, s{S_T0}, {RED}"))
            acts.append(lambda: A(f"v_add_u32 v{vB+1}, s{S_T0}, v{vB}\ns_xor_b32 s{S_T0+1}, s{S_WAVE}, 2"))
            acts.append(lambda: A(f"s_mul_i32 s{S_T0}, s{S_T0+1}, {NT*1024}\ns_add_u32 s{S_T0}, s{S_T0}, {RED}"))
            acts.append(lambda: A(f"v_add_u32 v{vB}, s{S_T0}, v{vB}\ns_lshl_b32 s{S_T0+1}, s{S_T0+1}, 9"))
            acts.append(lambda: A(f"s_add_u32 s{S_T0+1}, s{S_T0+1}, {FREE+252}\nv_mov_b32 v{vB+2}, s{S_T0+1}"))
        else:
            acts.append(lambda: A(f"ds_write_b32 v{VFO}, v{vFV} offset:{4*(22+s)}"))
        lds = [lambda x=x: ldA1(*x) for x in todo]
        nm = 4 * NT
        sched = {i: [] for i in range(nm)}
        per = -(-len(acts) // max(nm - 2, 1))
        for i, f in enumerate(acts):
            sched[i // per].append(f)
        first = OPT.get("lf", 12) if NT == 6 else 0
        for i, f in enumerate(lds):
            sched[min(first + i * (nm - first) // len(lds), nm - 1)].append(f)
        n = 0
        for u in range(2):
            for U in range(4):
                for Tp in range(NH):
                    acc = (U * NH + Tp) * 4
                    w = GB + (s % 2) * 32 + (u * 4 + U) * 4
                    a = GA_ + ((s % DA) * NT + u * NH + Tp) * 4
                    cin = "0" if (s == 0 and u == 0 and U >= 2) else f"v[{acc}:{acc+3}]"
                    A(f"v_mfma_f32_16x16x32_bf16 v[{acc}:{acc+3}], v[{w}:{w+3}], v[{a}:{a+3}], {cin}")
                    for f in sched[n]:
                        f()
                    n += 1
    llate, ljoin = A.newlabel("L_late"), A.newlabel("L_join")
    for s in range(22):
        if s == GATE:
            assert st["nxt"] == 12
            A("s_waitcnt lgkmcnt(1)")
            if not OPT.get("nogate", 0):
                A(f"v_cmp_le_u32 vcc, 3, v{vG}\ns_cbranch_vccz {llate}")
            keep = list(vm.q)
            mark = len(A.lines)
            A.label(llate)
            for s2_ in range(GATE, 12):
                stage(s2_, 11)
            lr, lo = A.newlabel("L_fs"), A.newlabel("L_fs")
            A.label(lr)
            A(f"""ds_read_b32 v{vG}, v{vFA}
            s_waitcnt lgkmcnt(0)
            v_cmp_le_u32 vcc, 3, v{vG}
            s_cbranch_vccnz {lo}""")
            spin_tail(lr, lo, 1)
            A.label(lo)
            vm.q = []
            for s2_ in range(12, 12 + DA - 1):
                ldA(s2_)
            A(f"s_branch {ljoin}")
            late_q = list(vm.q)
            SLOW.extend(A.lines[mark:])
            del A.lines[mark:]
            vm.q = keep
            st["nxt"] = 12
        if s == 12:
            A.label(ljoin)
            assert vm.q[-NT*(DA-1):] == late_q and st["nxt"] == 12 + DA - 1
        stage(s, 21)
    ts(8, 2)
    tc(15)
    if TS == 3:
        A("v_writelane_b32 v255, s48, 62\nv_writelane_b32 v255, s49, 63")
    A("s_waitcnt lgkmcnt(0)")
    flag_test(36, vFD, vFP, 2048 + 4 * 36)
    A("s_nop 4")
    for i in range(NT):
        acc = (NT + i) * 4
        A(f"ds_write_b128 v{vB+1}, v[{acc}:{acc+3}] offset:{i*1024}")
    A(f"ds_write_b32 v{VFO}, v{vFV} offset:{4*44}")
    flag_wait(44, vFD, vB + 2)
    for i in range(NT):
        b = (NT + i) * 4
        A(f"ds_read_b128 v[{b}:{b+3}], v{vB} offset:{i*1024}")
    order = [(Tp, U) for Tp in range(NH) for U in range(2)]
    A("s_waitcnt lgkmcnt(0)")
    for Tp, U in order:
        i = U * NH + Tp
        a0, a1 = i * 4, (NT + i) * 4
        for h in (0, 2):
            A(f"v_pk_add_f32 v[{a0+h}:{a0+h+1}], v[{a0+h}:{a0+h+1}], v[{a1+h}:{a1+h+1}]")
        A(f"global_store_dwordx4 v{vT+3}, v[{a0}:{a0+3}], s[{S_OUT}:{S_OUT+1}] offset:{64*U}{['', ' sc1', ' nt', ' sc0 sc1'][OPT.get('omod', 2)]}")
        if U == 1 and Tp < NH - 1:
            A(f"v_add_u32 v{vT+3}, {16*2560}, v{vT+3}")
    ts(9, 2)
    ts_flush(200)
    A("s_endpgm")
    flush_slow()

def gemm2_small(NT):
    LB = OPT.get("LB", 2)
    G2_B, G2_A = 32, 128
    DA = 3 if NT == 6 else OPT.get("DA2", 6)
    RED = 4 * SL2
    vW, vC, vB = 204, 208, 212
    vA = 216
    vT = 224
    vFA, vFP, vFV, vFD, vG = 232, 233, 234, 235, 236
    X, ST, DK, TT = 180, 184, 188, 192
    A(f"""s_lshl_b32 s{S_T0}, s{S_T0}, 5
    s_add_u32 s{S_T0}, s{S_T0}, s{S_T0+1}
    s_lshl_b32 s{S_T0}, s{S_T0}, {FSH}
    s_add_u32 s{S_T0+3}, s{S_T0}, {WS_FLAG}""")
    A(f"""s_lshl_b32 s{S_T0}, s{S_TG}, 4
    v_and_b32 v{vT}, 15, v{VL}
    v_add_u32 v{vT}, s{S_T0}, v{vT}                    ; row
    v_lshrrev_b32 v{vT+1}, 4, v{VL}
    s_lshl_b32 s{S_T0+1}, s{S_WAVE}, 4
    s_add_u32 s{S_T0+1}, s{S_T0+1}, s{S_DCOL}
    v_lshl_add_u32 v{vT+1}, v{vT+1}, 2, s{S_T0+1}      ; column
    v_mul_u32_u24 v{vT+2}, 640, v{vT}
    v_add_u32 v{vT+2}, v{vT+2}, v{vT+1}
    v_lshlrev_b32 v{vT+3}, 2, v{vT+2}
    v_lshlrev_b32 v{vT+2}, 1, v{vT+2}
    v_lshlrev_b32 v{vT+1}, 1, v{vT+1}
    v_lshlrev_b32 v{vT+4}, 3, v{vT}
    v_add_u32 v{vT+4}, {WS_STAT}, v{vT+4}""")
    for Tp in range(NT):
        A(f"global_load_dwordx2 v[{X+2*Tp}:{X+2*Tp+1}], v{vT+2}, s[{S_X}:{S_X+1}]")
        if Tp < NT - 1:
            A(f"v_add_u32 v{vT+2}, {16*1280}, v{vT+2}")
    A(f"global_load_dwordx2 v[{DK}:{DK+1}], v{vT+1}, s[{S_DSK}:{S_DSK+1}]")
    def stat_loads_():
        for Tp in range(NT):
            A(f"global_load_dwordx2 v[{ST+2*Tp}:{ST+2*Tp+1}], v{vT+4}, s[{S_WS}:{S_WS+1}] offset:{128*Tp} sc1")
    stat_loads_()
    A(f"""v_lshrrev_b32 v{vT}, 4, v{VL}               ; q
    v_bfe_u32 v{vT+1}, v{VL}, 2, 2                     ; rr
    v_lshl_add_u32 v{vT+1}, v{vT}, 2, v{vT+1}          ; 4q + rr
    v_bfe_u32 v{vT+5}, v{vT+1}, 1, 2                   ; swizzle
    s_lshl_b32 s{S_T0}, s{S_WAVE}, 5
    v_add_u32 v{vT+1}, s{S_T0}, v{vT+1}
    v_lshlrev_b32 v{vT+1}, 7, v{vT+1}
    v_and_b32 v{vT+2}, 3, v{VL}
    v_lshl_add_u32 v{vT+1}, v{vT+2}, 3, v{vT+1}
    v_and_b32 v{vT+2}, 1, v{vT}
    s_lshl_b32 s{S_T0}, s{S_WAVE}, 1
    v_add_u32 v{vT+2}, s{S_T0}, v{vT+2}                ; chunk = 2w + (q&1)
    v_bfe_u32 v{vT+6}, v{VL}, 1, 3
    v_xor_b32 v{vT+2}, v{vT+2}, v{vT+6}
    v_lshrrev_b32 v{vT}, 1, v{vT}
    v_lshlrev_b32 v{vT}, 13, v{vT}
    v_lshl_add_u32 v{vT}, v{vT+2}, 4, v{vT}
    v_and_b32 v{vT+6}, 15, v{VL}
    v_lshl_add_u32 v{vT}, v{vT+6}, 7, v{vT}""")
    for Up in range(4):
        A(f"""s_add_u32 s{S_T0}, s{S_WAVE}, {Up}
        s_and_b32 s{S_T0}, s{S_T0}, 3
        v_xor_b32 v{vT+2}, s{S_T0}, v{vT+5}
        v_lshl_add_u32 v{vW+Up}, v{vT+2}, 5, v{vT+1}
        s_lshl_b32 s{S_T0}, s{S_T0}, 11
        v_add_u32 v{vC+Up}, s{S_T0}, v{vT}""")
    A(f"v_lshlrev_b32 v{vT}, 4, v{VL}\ns_and_b32 s{S_T0+1}, s{S_TG}, 3")
    for Tp in range(NT):
        A(f"""s_add_u32 s{S_T0}, s{S_T0+1}, {Tp}
        s_lshr_b32 s{S_T0+2}, s{S_T0}, 2
        s_mul_i32 s{S_T0+2}, s{S_T0+2}, {88*4-4}
        s_add_u32 s{S_T0}, s{S_T0}, s{S_T0+2}
        s_lshl_b32 s{S_T0}, s{S_T0}, 10
        v_add_u32 v{vA+Tp}, s{S_T0}, v{vT}""")
    A(f"""s_mul_i32 s{S_T0}, s{S_HB2}, {88*4096}
    s_lshl_b32 s{S_T0+1}, s{S_WAVE}, 12
    s_add_u32 s{S_T0}, s{S_T0}, s{S_T0+1}
    s_add_u32 s{S_T0}, s{S_T0}, {WS_ACT}
    s_add_u32 s{SRD_T}, s{S_WS}, s{S_T0}
    s_addc_u32 s{SRD_T+1}, s{S_WS+1}, 0
    s_mov_b32 s{SRD_T+2}, {(88+85)*4096}
    s_mov_b32 s{SRD_T+3}, 0x20000
    s_lshl_b32 s{S_KB}, s{S_R2A}, 14""")
    lr, lo = A.newlabel("L_fl"), A.newlabel("L_fl")
    A(f"""s_lshl_b32 s{S_T0}, s{S_HB2}, {5+FSH}
    s_add_u32 s{S_T0}, s{S_T0}, {WS_FLAG}
    v_and_b32 v{vFA}, {63 if NT == 6 else 31}, v{VL}
    v_lshlrev_b32 v{vFA}, {FSH}, v{vFA}
    v_add_u32 v{vFA}, s{S_T0}, v{vFA}
    s_lshr_b32 s{S_T0+1}, s{S_WAVE}, 1
    s_lshl_b32 s{S_T0+1}, 0x555555, s{S_T0+1}
    v_lshlrev_b32 v{vT}, 17, v{VL}
    v_add_u32 v{vT}, s{S_T0+3}, v{vT}
    v_mov_b32 v{vT+1}, s{S_NONCE}
    s_mov_b32 exec_lo, s{S_T0+1}
    s_mov_b32 exec_hi, 0
    global_load_dword v{vG}, v{vFA}, s[{S_WS}:{S_WS+1}] sc1
    s_waitcnt vmcnt({2*NT+2})
    s_mov_b64 exec, {(1 << NREP) - 1}
    global_store_dword v{vT}, v{vT+1}, s[{S_WS}:{S_WS+1}] sc1
    s_mov_b64 exec, -1""")
    ts(6, 2)
    def poll(lr, lo, mask):
        A(f"s_mov_b32 exec_lo, {mask}\ns_mov_b32 exec_hi, 0\ns_waitcnt vmcnt(1)\ns_branch {lr}b")
        A.label(lr)
        A(f"global_load_dword v{vG}, v{vFA}, s[{S_WS}:{S_WS+1}] sc1\ns_waitcnt vmcnt(0)")
        A.label(f"{lr}b")
        A(f"v_cmp_ne_u32 vcc, s{S_NONCE}, v{vG}\ns_cbranch_vccz {lo}")
        spin_tail(lr, lo, 2)
        A.label(lo)
        A("s_mov_b64 exec, -1")
    poll(lr, lo, f"s{S_T0+1}")
    ts(7, 2)
    tc(14)
    if TS:
        A("s_mov_b32 s48, 0\ns_mov_b32 s49, 0")
    vm = Queue(A, "vmcnt", 63)
    def ldA1(s, Tp):
        b = G2_A + (s % DA) * 4 * NT
        A(f"buffer_load_dwordx4 v[{b+4*Tp}:{b+4*Tp+3}], v{vA+Tp}, s[{SRD_T}:{SRD_T+3}], s{S_KB} offen sc1")
        vm.issue(("a", s))
        if Tp == NT - 1:
            rot_next(s, 16384, 16384, 12 * 16384)
    def ldA(s):
        for Tp in range(NT):
            ldA1(s, Tp)
    def rdB(s, U):
        b = G2_B + (s % (LB + 1)) * 16 + U * 4
        if s < 12:
            A(f"ds_read_b64_tr_b16 v[{b}:{b+1}], v{vB+U}")
            A(f"ds_read_b64_tr_b16 v[{b+2}:{b+3}], v{vB+U} offset:2048")
            lq.issue(("b", s))
        else:
            A(f"ds_read_b128 v[{b}:{b+3}], v{vB+U}")
        lq.issue(("b", s))
    def setB(s, us=range(4)):
        for U in us:
            A(f"v_add_u32 v{vB+U}, {g2slot(s)}, v{(vW if s < 12 else vC)+U}")
    assert G2_A + DA * NT * 4 <= 180
    peer_addr(vFP, FLG)
    R0 = OPT.get("ramp", 2) if NT == 6 else DA - 1
    st = {"nxt": R0}
    for s in range(R0):
        ldA(s)
    ls, lk = A.newlabel("L_st"), A.newlabel("L_st")
    A.label(ls)
    A(f"s_mov_b64 s[{S_M0}:{S_M0+1}], 0")
    for Tp in range(NT):
        A(f"v_cmp_ne_u32 vcc, s{S_NONCE}, v{ST+2*Tp+1}\ns_nop 1\ns_or_b64 s[{S_M0}:{S_M0+1}], s[{S_M0}:{S_M0+1}], vcc")
    A(f"s_cmp_eq_u64 s[{S_M0}:{S_M0+1}], 0\ns_cbranch_scc1 {lk}")
    stat_loads_()
    A("s_waitcnt vmcnt(0)")
    spin_tail(ls, lk, 1)
    A.label(lk)
    def unpack(dst, src):
        A(f"""v_and_b32 v{dst+3}, 0xffff0000, v{src+1}
        v_lshlrev_b32 v{dst+2}, 16, v{src+1}
        v_and_b32 v{dst+1}, 0xffff0000, v{src}
        v_lshlrev_b32 v{dst}, 16, v{src}""")
    def rnd(r, t):
        A(f"""v_cvt_pk_bf16_f32 v{t}, v{r}, v{r+1}
        v_cvt_pk_bf16_f32 v{t+1}, v{r+2}, v{r+3}""")
        unpack(r, t)
    unpack(DK, DK)
    for Tp in range(NT):
        st_, acc = ST + 2 * Tp, Tp * 4
        A(f"""v_and_b32 v{st_+1}, 0xffff0000, v{st_}
        v_lshlrev_b32 v{st_}, 16, v{st_}
        v_rcp_f32 v{st_+1}, v{st_+1}""")
        unpack(acc, X + 2 * Tp)
        for h in (0, 2):
            A(f"v_pk_add_f32 v[{TT+h}:{TT+h+1}], v[{acc+h}:{acc+h+1}], v[{st_}:{st_+1}] op_sel_hi:[1,0] neg_lo:[0,1] neg_hi:[0,1]")
        rnd(TT, TT + 4)
        for h in (0, 2):
            A(f"v_pk_mul_f32 v[{TT+h}:{TT+h+1}], v[{TT+h}:{TT+h+1}], v[{st_}:{st_+1}] op_sel:[0,1] op_sel_hi:[1,1]")
        rnd(TT, TT + 4)
        for h in (0, 2):
            A(f"v_pk_mul_f32 v[{TT+h}:{TT+h+1}], v[{TT+h}:{TT+h+1}], v[{DK+h}:{DK+h+1}]")
        rnd(TT, TT + 4)
        for h in (0, 2):
            A(f"v_pk_add_f32 v[{acc+h}:{acc+h+1}], v[{acc+h}:{acc+h+1}], v[{TT+h}:{TT+h+1}]")
    A(f"v_mov_b32 v{vFV}, s{S_K}")
    flag_wait(21 + LB, vFD, vFP)
    lq = Queue(A, "lgkmcnt", 15)
    A(f"v_lshlrev_b32 v{vFA}, 4, v{VL}\nv_add_u32 v{vFA}, {AUX}, v{vFA}")
    A(f"ds_read_b32 v{vFD}, v{vFP} offset:{4*(22+LB)}")
    lq.issue(("f", 0))
    for s in range(LB):
        setB(s)
        for U in range(4):
            rdB(s, U)
    GATE = 12 - (DA - 1)
    def stage(s, limit):
        lq.wait(("b", s))
        if TS == 2:
            ts(16 + s, 2)
        if TS == 3:
            A(f"s_memtime s[{S_TS}:{S_TS+1}]\ns_waitcnt lgkmcnt(0)\ns_mov_b32 s50, s{S_TS}")
        vm.wait(("a", s))
        if TS == 3:
            A(f"s_memtime s[{S_TS}:{S_TS+1}]\ns_waitcnt lgkmcnt(0)\ns_sub_u32 s50, s{S_TS}, s50\nv_writelane_b32 v255, s50, {16+s}\nv_writelane_b32 v255, s{S_TS}, {40+s}")
        todo = []
        while st["nxt"] <= min(limit, s - 1 + DA, 21) and len(todo) < 2 * NT:
            todo += [(st["nxt"], Tp) for Tp in range(NT)]
            st["nxt"] += 1
        acts = []
        def mark():
            A(f"ds_write_b32 v{VFO}, v{vFV} offset:{4*(22+s)}")
            lq.issue("m")
        acts.append(mark)
        n_ = s + LB
        if n_ <= 21:
            acts.append(lambda: (setB(n_), lq.wait(("f", s)), flag_test(22 + n_, vFD, vFP, 4 * (22 + n_), acc=48)))
            if n_ < 21:
                acts.append(lambda: (A(f"ds_read_b32 v{vFD}, v{vFP} offset:{4*(23+n_)}"), lq.issue(("f", s + 1))))
            acts.append(lambda: (rdB(n_, 0), rdB(n_, 1)))
            acts.append(lambda: (rdB(n_, 2), rdB(n_, 3)))
        if s == GATE - 1:
            acts.append(lambda: (A(f"ds_read_b32 v{vG}, v{vFA}"), lq.issue("g")))
        lds = [lambda x=x: ldA1(*x) for x in todo]
        nm = 4 * NT
        sched = {i: [] for i in range(nm)}
        per = -(-len(acts) // max(nm - 2, 1))
        for i, f in enumerate(acts):
            sched[i // per].append(f)
        first = OPT.get("lf", 10) if NT == 6 else 0
        for i, f in enumerate(lds):
            sched[min(first + i * (nm - first) // len(lds), nm - 1)].append(f)
        for U in range(4):
            for Tp in range(NT):
                acc = (U * NT + Tp) * 4
                w = G2_B + (s % (LB + 1)) * 16 + U * 4
                a = G2_A + (s % DA) * 4 * NT + Tp * 4
                cin = "0" if (s == 0 and U != 0) else f"v[{acc}:{acc+3}]"
                A(f"v_mfma_f32_16x16x32_bf16 v[{acc}:{acc+3}], v[{w}:{w+3}], v[{a}:{a+3}], {cin}")
                for f in sched[U * NT + Tp]:
                    f()
    llate, ljoin = A.newlabel("L_late"), A.newlabel("L_join")
    for s in range(22):
        if s == GATE:
            assert st["nxt"] == 12
            lq.wait("g")
            A(f"v_cmp_le_u32 vcc, 3, v{vG}\ns_cbranch_vccz {llate}")
            keep = list(vm.q)
            keepl = list(lq.q)
            mark = len(A.lines)
            A.label(llate)
            for s2_ in range(GATE, 12):
                stage(s2_, 11)
            lr, lo = A.newlabel("L_fs"), A.newlabel("L_fs")
            A.label(lr)
            A(f"""ds_read_b32 v{vG}, v{vFA}
            s_waitcnt lgkmcnt(0)
            v_cmp_le_u32 vcc, 3, v{vG}
            s_cbranch_vccnz {lo}""")
            spin_tail(lr, lo, 1)
            A.label(lo)
            vm.q = []
            for s2_ in range(12, 12 + DA - 1):
                ldA(s2_)
            A(f"s_branch {ljoin}")
            late_q = list(vm.q)
            SLOW.extend(A.lines[mark:])
            del A.lines[mark:]
            vm.q = keep
            lq.q = keepl
            st["nxt"] = 12
        if s == 12:
            A.label(ljoin)
            assert vm.q[-NT*(DA-1):] == late_q and st["nxt"] == 12 + DA - 1
        stage(s, 21)
    ts(8, 2)
    tc(15)
    if TS == 3:
        A("v_writelane_b32 v255, s48, 62\nv_writelane_b32 v255, s49, 63")
    flag_wait(36, vFD, vFP, 2048)
    A(f"v_lshlrev_b32 v{vB}, 4, v{VL}")
    for Up in range(1, 4):
        A(f"""s_add_u32 s{S_T0}, s{S_WAVE}, {Up}
        s_and_b32 s{S_T0}, s{S_T0}, 3
        s_mul_i32 s{S_T0}, s{S_T0}, {3*NT*1024}
        s_add_u32 s{S_T0}, s{S_T0}, {RED + (Up-1)*NT*1024}
        v_add_u32 v{vB+Up}, s{S_T0}, v{vB}""")
    A(f"""s_mul_i32 s{S_T0}, s{S_WAVE}, {3*NT*1024}
    s_add_u32 s{S_T0}, s{S_T0}, {RED}
    v_add_u32 v{vB}, s{S_T0}, v{vB}""")
    for Tp in range(NT):
        for Up in range(1, 4):
            acc = (Up * NT + Tp) * 4
            A(f"ds_write_b128 v{vB+Up}, v[{acc}:{acc+3}] offset:{Tp*1024}")
    A("s_waitcnt lgkmcnt(0)\ns_barrier")
    lg = Queue(A, "lgkmcnt", 15)
    def rdR(Tp):
        for i in range(3):
            b = ((1 + i) * NT + Tp) * 4
            A(f"ds_read_b128 v[{b}:{b+3}], v{vB} offset:{(i*NT+Tp)*1024}")
            lg.issue(("r", Tp))
    for Tp in range(min(NT, 4)):
        rdR(Tp)
    for Tp in range(NT):
        lg.wait(("r", Tp))
        a0, a1, a2, a3 = [(i * NT + Tp) * 4 for i in range(4)]
        for h in (0, 2):
            A(f"v_pk_add_f32 v[{a0+h}:{a0+h+1}], v[{a0+h}:{a0+h+1}], v[{a1+h}:{a1+h+1}]")
            A(f"v_pk_add_f32 v[{a2+h}:{a2+h+1}], v[{a2+h}:{a2+h+1}], v[{a3+h}:{a3+h+1}]")
        for h in (0, 2):
            A(f"v_pk_add_f32 v[{a0+h}:{a0+h+1}], v[{a0+h}:{a0+h+1}], v[{a2+h}:{a2+h+1}]")
        A(f"global_store_dwordx4 v{vT+3}, v[{a0}:{a0+3}], s[{S_OUT}:{S_OUT+1}]{['', ' sc1', ' nt', ' sc0 sc1'][OPT.get('omod', 2)]}")
        if Tp < NT - 1:
            A(f"v_add_u32 v{vT+3}, {16*2560}, v{vT+3}")
        if Tp + 4 < NT:
            rdR(Tp + 4)
    ts(9, 2)
    ts_flush(200)
    A("s_endpgm")
    flush_slow()

def publish_flag(idx_code):
    A(f"""s_lshl_b32 s{S_T0}, s{S_T0}, 5
    s_add_u32 s{S_T0}, s{S_T0}, s{S_T0+1}
    s_lshl_b32 s{S_T0}, s{S_T0}, 2
    s_add_u32 s{S_T0}, s{S_T0}, {WS_FLAG}
    v_mov_b32 v250, s{S_T0}
    v_mov_b32 v251, s{S_NONCE}
    s_waitcnt vmcnt({idx_code})
    s_mov_b64 exec, 1
    global_store_dword v250, v251, s[{S_WS}:{S_WS+1}] sc1
    s_mov_b64 exec, -1""")

A.label("L_compute")
A(f"s_setprio {OPT.get('pc1', 2)}")
if OPT.get("pfc", 1):
    A(f"""s_cmp_lg_u32 s{S_WAVE}, 3
    s_cbranch_scc1 L_pcd
    s_getpc_b64 s[{S_M0}:{S_M0+1}]
    L_pcc:
    s_sub_u32 s{S_M0}, s{S_M0}, L_pcc-L_code_start
    s_subb_u32 s{S_M0+1}, s{S_M0+1}, 0
    s_lshl_b32 s{S_T0}, s{S_IDX}, 11
    v_and_b32 v2, 15, v{VL}
    v_lshlrev_b32 v2, 7, v2
    v_add_u32 v2, s{S_T0}, v2
    v_min_u32 v2, L_code_end-L_code_start-8, v2
    global_load_dword v247, v2, s[{S_M0}:{S_M0+1}]
    L_pcd:""")
A(f"s_waitcnt lgkmcnt(0)\ns_load_dword s{S_K}, s[{S_X}:{S_X+1}], 0")
srd(SRD_F, S_X, 4)
A(f"v_mov_b32 v2, {GO}\nv_mov_b32 v3, 0\nds_write_b32 v2, v3")
flag_init(FREE, S_WAVE, 248, FLG, None)
A(f"s_mov_b32 s{S_FR}, s{S_T0}")
late_scalars()
A(f"s_cmp_eq_u32 s{S_J}, 0\ns_cbranch_scc1 L_ssm_compute")
if OPT.get("tw", 3) == 1:
    touch_w2(251)
A('v_mov_b32 v249, 0')
if PA == 0:
    by_wave(mlp_rows_loads, mlp_cs_loads)
zero_regs(0, 128)()
rowpat_read(192, 198)
A(f"""s_and_b32 s{S_T0}, s{S_WAVE}, 1
s_lshl_b32 s{S_T0}, s{S_T0}, 13
v_add_u32 v192, s{S_T0}, v192
v_xor_b32 v193, 64, v192
v_lshrrev_b32 v198, 4, v{VL}              ; q
v_bfe_u32 v199, v{VL}, 2, 2               ; rr
v_and_b32 v160, 1, v198
v_lshl_add_u32 v160, v160, 2, v199        ; swizzle s
v_lshl_add_u32 v198, v198, 3, v199        ; k row
v_lshlrev_b32 v198, 8, v198
v_and_b32 v199, 3, v{VL}
v_lshl_add_u32 v198, v199, 3, v198
v_add_u32 v198, {WRING}, v198
s_lshr_b32 s{S_T0}, s{S_WAVE}, 1
s_lshl_b32 s{S_T0}, s{S_T0}, 2""")
for F in range(4):
    A(f"""s_add_u32 s{S_T0+1}, s{S_T0}, {F}
    v_xor_b32 v199, s{S_T0+1}, v160
    v_lshl_add_u32 v{194+F}, v199, 5, v198""")
ts(1, 2)
lg, entry, AX, AW = gemm1_loop("mlp")
A("s_waitcnt lgkmcnt(0)")
ts(3, 2)
tc(13)
if TS:
    A("v_writelane_b32 v255, s48, 10\nv_writelane_b32 v255, s49, 11")
if OPT.get("solo", 0):
    ts_flush(100)
    A("s_endpgm")
A(f"s_setprio {OPT.get('pc2', 3)}")
ER = 128
EC = 144
A(f"""s_and_b32 s{S_T0}, s{S_WAVE}, 1
s_lshl_b32 s{S_T0}, s{S_T0}, 10
s_add_u32 s{S_T0}, s{S_T0}, {M_ROW}
v_and_b32 v192, 15, v{VL}
v_lshlrev_b32 v192, 4, v192
v_add_u32 v192, s{S_T0}, v192
s_lshr_b32 s{S_T0}, s{S_WAVE}, 1
s_lshl_b32 s{S_T0}, s{S_T0}, 8
s_add_u32 s{S_T0}, s{S_T0}, {M_CS}
v_lshrrev_b32 v193, 4, v{VL}
v_lshlrev_b32 v193, 4, v193
v_add_u32 v193, s{S_T0}, v193""")
for T in range(4):
    A(f"ds_read_b128 v[{ER+4*T}:{ER+4*T+3}], v192 offset:{256*T}")
for F in range(4):
    for c in range(2):
        b = EC + (F * 2 + c) * 4
        A(f"ds_read_b128 v[{b}:{b+3}], v193 offset:{c*512+F*64}")
A(f"""s_lshl_b32 s{S_T0}, s{S_C}, 1
s_and_b32 s{S_T0+1}, s{S_WAVE}, 1
s_add_u32 s{S_T0}, s{S_T0}, s{S_T0+1}
s_mul_i32 s{S_T0}, s{S_T0}, 88
s_lshl_b32 s{S_T0+1}, s{S_CB}, 2
s_add_u32 s{S_T0}, s{S_T0}, s{S_T0+1}
s_and_b32 s{S_T0+1}, s{S_WAVE}, 2
s_add_u32 s{S_T0}, s{S_T0}, s{S_T0+1}
s_lshl_b32 s{S_T0}, s{S_T0}, 12
s_add_u32 s{S_T0}, s{S_T0}, {WS_ACT}
v_lshlrev_b32 v194, 4, v{VL}
v_add_u32 v194, s{S_T0}, v194
v_add_u32 v195, 4096, v194
s_waitcnt lgkmcnt(0)""")
if TS == 1:
    ts(16, 2)
ET = 176
EO = 184
n = 0
for u in range(2):
    for T in range(4):
        m = ER + 4 * T
        prs = []
        for F in (2 * u, 2 * u + 1):
            for h in (0, 2):
                g = ((F * 2 + 0) * 4 + T) * 4 + h
                up = ((F * 2 + 1) * 4 + T) * 4 + h
                prs.append((g, up, EC + (F * 2) * 4 + h, EC + (F * 2 + 1) * 4 + h))
        for i, (g, up, cg, cu) in enumerate(prs):
            A(f"v_pk_fma_f32 v[{g}:{g+1}], v[{cg}:{cg+1}], v[{m}:{m+1}], v[{g}:{g+1}] op_sel_hi:[1,0,1] neg_lo:[0,1,0] neg_hi:[0,1,0]")
        for i, (g, up, cg, cu) in enumerate(prs):
            e = ET + 2 * i
            A(f"v_pk_mul_f32 v[{e}:{e+1}], v[{g}:{g+1}], v[{m}:{m+1}] op_sel:[0,1] op_sel_hi:[1,1]")
        for i, (g, up, cg, cu) in enumerate(prs):
            e = ET + 2 * i
            A(f"v_exp_f32 v{e}, v{e}\nv_exp_f32 v{e+1}, v{e+1}")
            A(f"v_pk_fma_f32 v[{up}:{up+1}], v[{cu}:{cu+1}], v[{m}:{m+1}], v[{up}:{up+1}] op_sel_hi:[1,0,1] neg_lo:[0,1,0] neg_hi:[0,1,0]")
        for i, (g, up, cg, cu) in enumerate(prs):
            e = ET + 2 * i
            A(f"v_pk_fma_f32 v[{e}:{e+1}], v[{e}:{e+1}], v[{m+2}:{m+3}], v[{m+2}:{m+3}] op_sel_hi:[1,0,0]")
        for i, (g, up, cg, cu) in enumerate(prs):
            e = ET + 2 * i
            A(f"v_rcp_f32 v{e}, v{e}\nv_rcp_f32 v{e+1}, v{e+1}")
            A(f"v_pk_mul_f32 v[{g}:{g+1}], v[{g}:{g+1}], v[{up}:{up+1}]")
        for i, (g, up, cg, cu) in enumerate(prs):
            e = ET + 2 * i
            A(f"v_pk_mul_f32 v[{g}:{g+1}], v[{g}:{g+1}], v[{e}:{e+1}]")
        o = EO + 4 * (n % 2)
        for i, (g, up, cg, cu) in enumerate(prs):
            A(f"v_cvt_pk_bf16_f32 v{o+i}, v{g}, v{g+1}")
        if TS == 1 and n % 2 == 0:
            ts(17 + n, 2)
        if not OPT.get("nost", 0):
            A(f"global_store_dwordx4 v{194+u}, v[{o}:{o+3}], s[{S_WS}:{S_WS+1}] offset:{1024*T} sc1")
        if TS == 1 and n % 2 == 0:
            ts(18 + n, 2)
        n += 1
ts(4, 2)
A(f"""s_lshl_b32 s{S_T0}, s{S_C}, 1
s_and_b32 s{S_T0+1}, s{S_WAVE}, 1
s_add_u32 s{S_T0}, s{S_T0}, s{S_T0+1}
s_lshl_b32 s{S_T0+1}, s{S_CB}, 1
s_lshr_b32 s{S_T0+2}, s{S_WAVE}, 1
s_add_u32 s{S_T0+1}, s{S_T0+1}, s{S_T0+2}""")
gemm2_compute(6)

A.label("L_ssm_compute")
if PA == 0:
    ssm_rows_loads()
zero_regs(0, 160)()
rowpat_read(232, 160)
A(f"""s_lshr_b32 s{S_T0}, s{S_WAVE}, 1
s_mul_i32 s{S_T0}, s{S_T0}, 10240
s_add_u32 s{S_T0}, s{S_T0}, {WRING}
v_add_u32 v234, s{S_T0}, v232
v_xor_b32 v235, 64, v234
s_and_b32 s{S_T0}, s{S_WAVE}, 1
s_lshl_b32 s{S_T0}, s{S_T0}, 13
v_add_u32 v232, s{S_T0}, v232
v_xor_b32 v233, 64, v232""")
ts(1, 2)
lg, entry, AX, AW = gemm1_loop("ssm")
A("s_waitcnt lgkmcnt(0)")
ts(3, 2)
tc(13)
if TS:
    A("v_writelane_b32 v255, s48, 10\nv_writelane_b32 v255, s49, 11")
if OPT.get("solo", 0):
    ts_flush(100)
    A("s_endpgm")
A(f"s_setprio {OPT.get('pc2', 3)}")
def acc(G, c, m, r=0):
    return ((G * 2 + c) * 4 + m) * 4 + r
SM, SR_ = 160, 176
SCS = 192
SLAM = 202
SK = 212
SA = 222
A(f"""s_and_b32 s{S_T0}, s{S_WAVE}, 1
s_lshl_b32 s{S_T0}, s{S_T0}, 8
s_add_u32 s{S_T0}, s{S_T0}, {M_ROW}
v_lshrrev_b32 v{SA}, 4, v{VL}
v_lshlrev_b32 v{SA}, 4, v{SA}
v_add_u32 v{SA}, s{S_T0}, v{SA}
s_lshr_b32 s{S_T0+1}, s{S_WAVE}, 1
s_mul_i32 s{S_T0+1}, s{S_T0+1}, 80
v_and_b32 v{SA+1}, 15, v{VL}
v_add_u32 v{SA+1}, s{S_T0+1}, v{SA+1}
v_lshlrev_b32 v{SA+2}, 2, v{SA+1}
v_add_u32 v{SA+3}, {M_CS}, v{SA+2}
v_lshlrev_b32 v{SA+4}, 3, v{SA+1}
v_add_u32 v{SA+4}, {M_LAM}, v{SA+4}""")
for m in range(4):
    A(f"ds_read_b128 v[{SM+4*m}:{SM+4*m+3}], v{SA} offset:{64*m}")
    A(f"ds_read_b128 v[{SR_+4*m}:{SR_+4*m+3}], v{SA} offset:{512+64*m}")
for G in range(5):
    A(f"ds_read_b32 v{SCS+2*G}, v{SA+3} offset:{64*G}")
    A(f"ds_read_b32 v{SCS+2*G+1}, v{SA+3} offset:{640+64*G}")
for G in range(5):
    A(f"ds_read_b64 v[{SLAM+2*G}:{SLAM+2*G+1}], v{SA+4} offset:{128*G}")
    A(f"ds_read_b64 v[{SK+2*G}:{SK+2*G+1}], v{SA+4} offset:{M_COEF-M_LAM+128*G}")
A(f"""s_and_b32 s{S_T0}, s{S_WAVE}, 1
s_mul_i32 s{S_T0}, s{S_T0}, {8*1280}
s_add_u32 s{S_T0}, s{S_T0}, {E_BASE}
v_lshrrev_b32 v{SA+5}, 4, v{VL}
v_mul_u32_u24 v{SA+5}, 2560, v{SA+5}
v_lshl_add_u32 v{SA+5}, v{SA+2}, 1, v{SA+5}
v_add_u32 v{SA+5}, s{S_T0}, v{SA+5}
v_add_u32 v{SA+7}, 1280, v{SA+5}
s_waitcnt lgkmcnt(0)""")
def pk(op, d, a, b, c=None, sa=None, sb=None, sc=None, neg=None):
    ops = [a, b] + ([c] if c is not None else [])
    sel = [sa, sb] + ([sc] if c is not None else [])
    lo = [0 if s is None else s for s in sel]
    hi = [1 if s is None else s for s in sel]
    t = f"v_pk_{op}_f32 v[{d}:{d+1}], " + ", ".join(f"v[{o}:{o+1}]" for o in ops)
    t += " op_sel:[" + ",".join(map(str, lo)) + "] op_sel_hi:[" + ",".join(map(str, hi)) + "]"
    if neg is not None:
        nn = [1 if i == neg else 0 for i in range(len(ops))]
        t += " neg_lo:[" + ",".join(map(str, nn)) + "] neg_hi:[" + ",".join(map(str, nn)) + "]"
    A(t)
for m in range(4):
    for h in (0, 2):
        for G in range(5):
            for c in range(2):
                a = acc(G, c, m, h)
                pk("fma", a, SM + 4 * m + h, SCS + 2 * G, a, sb=c, neg=1)
        for G in range(5):
            for c in range(2):
                a = acc(G, c, m, h)
                pk("mul", a, a, SR_ + 4 * m + h)
steps = [(m, h) for m in range(4) for h in (0, 2)]
for k in range(1, 8):
    (m, h), (pm, ph) = steps[k], steps[k - 1]
    for G in range(5):
        pk("fma", acc(G, 0, m, h), acc(G, 0, pm, ph), SLAM + 2 * G, acc(G, 0, m, h), sb=0)
        pk("fma", acc(G, 1, m, h), acc(G, 1, pm, ph), SLAM + 2 * G, acc(G, 1, m, h), sb=0)
    for G in range(5):
        pk("fma", acc(G, 0, m, h), acc(G, 1, pm, ph), SLAM + 2 * G, acc(G, 0, m, h), sb=1, neg=1)
        pk("fma", acc(G, 1, m, h), acc(G, 0, pm, ph), SLAM + 2 * G, acc(G, 1, m, h), sb=1)
peer_addr(248, FREE)
flag_wait(18, 250, 248)
for G in range(5):
    for e in range(2):
        A(f"ds_write2_b32 v{SA+5+2*e}, v{acc(G,0,3,2+e)}, v{acc(G,1,3,2+e)} offset0:{32*G} offset1:{32*G+1}")
A("s_waitcnt lgkmcnt(0)\ns_setprio 0\ns_barrier")
ts(4, 2)
for m, h in steps:
    for G in range(5):
        t = SM + 2 * G
        pk("mul", t, acc(G, 0, m, h), SK + 2 * G, sb=1)
    for G in range(5):
        pk("mul", acc(G, 0, m, h), acc(G, 0, m, h), SK + 2 * G, sb=0)
    for G in range(5):
        pk("fma", acc(G, 0, m, h), acc(G, 1, m, h), SK + 2 * G, acc(G, 0, m, h), sb=1)
    for G in range(5):
        t = SM + 2 * G
        pk("fma", acc(G, 1, m, h), acc(G, 1, m, h), SK + 2 * G, t, sb=0, neg=1)
A(f"""s_mul_i32 s{S_T0}, s{S_WAVE}, 12288
s_add_u32 s{S_T0}, s{S_T0}, {TR_BASE}
v_and_b32 v{SA}, 7, v{VL}
v_bfe_u32 v{SA+1}, v{VL}, 3, 1
v_lshlrev_b32 v{SA+1}, 2, v{SA+1}
v_xor_b32 v{SA}, v{SA}, v{SA+1}                ; f
v_lshrrev_b32 v{SA+1}, 4, v{VL}
v_lshlrev_b32 v{SA+1}, 1, v{SA+1}
v_xor_b32 v{SA}, v{SA}, v{SA+1}                ; (2q) ^ f
v_and_b32 v{SA+1}, 15, v{VL}
v_lshlrev_b32 v{SA+1}, 7, v{SA+1}
v_lshl_add_u32 v{SA}, v{SA}, 4, v{SA+1}
v_add_u32 v{SA}, s{S_T0}, v{SA}                ; e = 0
v_xor_b32 v{SA+1}, 16, v{SA}                   ; e = 1
v_lshrrev_b32 v{SA+2}, 4, v{VL}                ; q
v_bfe_u32 v{SA+3}, v{VL}, 2, 2                 ; rr
v_and_b32 v{SA+4}, 1, v{SA+2}
v_lshl_add_u32 v{SA+4}, v{SA+4}, 2, v{SA+3}
v_bfe_u32 v{SA+6}, v{VL}, 1, 1                 ; cc>>1
v_xor_b32 v{SA+4}, v{SA+4}, v{SA+6}
v_lshl_add_u32 v{SA+2}, v{SA+2}, 3, v{SA+3}    ; row
v_lshlrev_b32 v{SA+2}, 7, v{SA+2}
v_lshl_add_u32 v{SA+2}, v{SA+4}, 4, v{SA+2}
v_and_b32 v{SA+3}, 1, v{VL}
v_lshl_add_u32 v{SA+2}, v{SA+3}, 3, v{SA+2}
v_add_u32 v{SA+2}, s{S_T0}, v{SA+2}""")
TA = 176
for Tq in range(4):
    A(f"v_xor_b32 v{TA+2*Tq}, {32*Tq}, v{SA+2}")
    A(f"v_xor_b32 v{TA+2*Tq+1}, {(32*Tq) ^ 64}, v{SA+2}")
A(f"""s_lshl_b32 s{S_T0}, s{S_C}, 1
s_and_b32 s{S_T0+1}, s{S_WAVE}, 1
s_add_u32 s{S_T0}, s{S_T0}, s{S_T0+1}
s_mul_i32 s{S_T0}, s{S_T0}, 88
s_mul_i32 s{S_T0+1}, s{S_CB}, 10
s_add_u32 s{S_T0}, s{S_T0}, s{S_T0+1}
s_lshr_b32 s{S_T0+1}, s{S_WAVE}, 1
s_mul_i32 s{S_T0+1}, s{S_T0+1}, 5
s_add_u32 s{S_T0}, s{S_T0}, s{S_T0+1}
s_add_u32 s{S_T0}, s{S_T0}, 48
s_lshl_b32 s{S_T0}, s{S_T0}, 12
s_add_u32 s{S_T0}, s{S_T0}, {WS_ACT}
v_lshlrev_b32 v{SA+3}, 4, v{VL}
v_add_u32 v{SA+3}, s{S_T0}, v{SA+3}""")
A("s_setprio 3\ns_barrier")
ts(5, 2)
SW = 184
SW = 182
def W(G, c):
    idx = G * 2 + c
    return (160 + 2 * idx) if idx < 8 else (192 + 2 * (idx - 8))
for G in range(5):
    for c in range(2):
        for e in range(2):
            A(f"ds_read_b32 v{W(G,c)+e}, v{SA+5} offset:{e*1280+c*4+128*G}")
A("s_waitcnt lgkmcnt(0)")
lg = Queue(A, "lgkmcnt", 15)
def stores(G):
    for Tq in range(4):
        lg.wait(("t", G, Tq))
        b = G * 32 + 16 + Tq * 4
        A(f"global_store_dwordx4 v{SA+3}, v[{b}:{b+3}], s[{S_WS}:{S_WS+1}] offset:{1024*Tq} sc1")
    if G < 4:
        A(f"v_add_u32 v{SA+3}, 4096, v{SA+3}")
def corr(G):
    out = []
    for k, (m, h) in enumerate(steps):
        for c in range(2):
            out.append(lambda c=c, m=m, h=h: pk("add", acc(G, c, m, h), acc(G, c, m, h), W(G, c)))
        if k < 7:
            out.append(lambda: pk("mul", 196, W(G, 0), SLAM + 2 * G, sb=1))
            out.append(lambda: pk("mul", W(G, 0), W(G, 0), SLAM + 2 * G, sb=0))
            out.append(lambda: pk("fma", W(G, 0), W(G, 1), SLAM + 2 * G, W(G, 0), sb=1))
            out.append(lambda: pk("fma", W(G, 1), W(G, 1), SLAM + 2 * G, 196, sb=0, neg=2))
    return out
def pack(G):
    out = []
    for c in range(2):
        o = (184 if G % 2 else 232) if c == 0 else G * 32
        for e in range(2):
            for m in range(4):
                out.append(lambda o=o, c=c, e=e, m=m: A(f"v_cvt_pk_bf16_f32 v{o+4*e+m}, v{acc(G,c,m,e)}, v{acc(G,c,m,2+e)}"))
            def wr(o=o, c=c, e=e):
                A(f"ds_write_b128 v{SA+e}, v[{o+4*e}:{o+4*e+3}] offset:{(G%3)*4096+c*2048}")
                lg.issue("w")
            out.append(wr)
    for Tq in range(4):
        def rd(Tq=Tq):
            b = G * 32 + 16 + Tq * 4
            A(f"ds_read_b64_tr_b16 v[{b}:{b+1}], v{TA+2*Tq} offset:{(G%3)*4096}")
            A(f"ds_read_b64_tr_b16 v[{b+2}:{b+3}], v{TA+2*Tq+1} offset:{(G%3)*4096+512}")
            lg.issue(("t", G, Tq)); lg.issue(("t", G, Tq))
        out.append(rd)
    return out
def store1(G, Tq):
    lg.wait(("t", G, Tq))
    b = G * 32 + 16 + Tq * 4
    A(f"global_store_dwordx4 v{SA+3}, v[{b}:{b+3}], s[{S_WS}:{S_WS+1}] offset:{1024*Tq} sc1")
    if Tq == 3:
        A(f"v_add_u32 v{SA+3}, 4096, v{SA+3}")
def weave(a, b):
    ia = ib = 0
    while ia < len(a) or ib < len(b):
        if ib >= len(b) or (ia < len(a) and ia * len(b) <= ib * len(a)):
            a[ia](); ia += 1
        else:
            b[ib](); ib += 1
for G in range(6):
    side = pack(G - 1) if G >= 1 else []
    if G >= 2:
        st4 = [lambda Tq=Tq: store1(G - 2, Tq) for Tq in range(4)]
        for i, f in enumerate(st4):
            side.insert(2 + 5 * i, f)
        if TS == 1 and G == 2:
            side.insert(0, lambda: ts(16, 2))
    weave(corr(G) if G < 5 else [], side)
stores(4)
A(f"v_mov_b32 v196, s{S_K}\nds_write_b32 v{VFO}, v196 offset:{4*21}")
if TS == 1:
    ts(17, 2)
A(f"""s_lshl_b32 s{S_T0}, s{S_C}, 1
s_and_b32 s{S_T0+1}, s{S_WAVE}, 1
s_add_u32 s{S_T0}, s{S_T0}, s{S_T0+1}
s_lshl_b32 s{S_T0+1}, s{S_CB}, 1
s_lshr_b32 s{S_T0+2}, s{S_WAVE}, 1
s_add_u32 s{S_T0+1}, s{S_T0+1}, s{S_T0+2}
s_add_u32 s{S_T0+1}, s{S_T0+1}, 24""")
(gemm2_small if OPT.get('small', 1) else gemm2_compute)(2)

def rowpat_load(dst, tmp, ssm):
    A(f"""v_lshrrev_b32 v{tmp}, 4, v{VL}
    v_xor_b32 v{tmp+1}, v{tmp}, v{VL}
    v_and_b32 v{tmp+1}, 7, v{tmp+1}              ; chunk""")
    if ssm:
        A(f"""v_lshrrev_b32 v{tmp}, 5, v{VL}
        v_lshlrev_b32 v{tmp}, 4, v{tmp}
        v_bfe_u32 v{dst}, v{VL}, 3, 1
        v_lshl_add_u32 v{tmp}, v{dst}, 3, v{tmp}
        v_bfe_u32 v{dst}, v{VL}, 4, 1
        v_add_u32 v{tmp}, v{tmp}, v{dst}""")
        up = 32
    else:
        A(f"v_lshrrev_b32 v{tmp}, 3, v{VL}")
        up = 8
    A(f"""v_mul_u32_u24 v{dst}, 1280, v{tmp}
    v_lshl_add_u32 v{dst}, v{tmp+1}, 4, v{dst}
    v_xor_b32 v{dst+1}, 64, v{dst}
    v_add_u32 v{dst+1}, {up*1280-1024}, v{dst+1}""")

LFP, LFV, LFD, LPA, LPD = 240, 241, 242, 243, 244
S_U, S_XS, S_S2 = 83, 84, 87
S_RET, S_SUB = 90, 30
class NoQ:
    def issue(self, t): pass
    def wait(self, t): pass
NOQ = NoQ()
CAP = OPT.get("cap", 9)
def cap(n=None):
    A(f"s_waitcnt vmcnt({CAP if n is None else n})")
class CapQ:
    def issue(self, t):
        cap()
    def wait(self, t): pass
CAPQ = CapQ()
class Jobs:
    def __init__(self):
        self.q = []
    def add(self, g):
        self.q.append(g)
    def step(self, n=1):
        if not self.q:
            return
        A(f"s_setprio {OPT.get('pls', 3)}")
        while n > 0 and self.q:
            try:
                next(self.q[0])
            except StopIteration:
                self.q.pop(0)
            n -= 1
        A("s_setprio 0")
def run(g):
    for _ in g:
        pass

LAX, LFQ = 245, 246
def declare(sreg):
    A(f"""s_lshl_b32 s{sreg}, s{sreg}, 2
    v_add_u32 v{LFQ}, s{sreg}, v{VFO}
    v_mov_b32 v{LFV}, s{S_K}
    ds_write_b32 v{LFQ}, v{LFV}""")
def wait_free(sreg):
    A(f"s_lshl_b32 s{sreg}, s{sreg}, 2\nv_add_u32 v{LFQ}, s{sreg}, v{LFP}")
    flag_wait(0, LFD, LFQ, nap=OPT.get('lnap', 0))
def stamp(idx_sreg, add):
    if TS:
        A(f"""s_memrealtime s[{S_TS}:{S_TS+1}]
        s_add_u32 m0, s{idx_sreg}, {add}
        s_waitcnt lgkmcnt(0)
        v_writelane_b32 v255, s{S_TS}, m0""")

def poll_setup(two):
    A(f"""s_lshl_b32 s{S_T0}, s{S_HB2}, {5+FSH}
    s_add_u32 s{S_T0}, s{S_T0}, {WS_FLAG + (24 << FSH)}
    v_and_b32 v{LPA}, 7, v{VL}
    v_lshlrev_b32 v{LPA}, {FSH}, v{LPA}
    v_add_u32 v{LPA}, s{S_T0}, v{LPA}""")
    if two:
        A(f"v_and_b32 v{LPD}, 8, v{VL}\nv_lshl_add_u32 v{LPA}, v{LPD}, {2+FSH}, v{LPA}")
def poll_issue():
    A(f"global_load_dword v{LPD}, v{LPA}, s[{S_WS}:{S_WS+1}] sc1")
def poll_until():
    if OPT.get("nogate", 0):
        return
    lr, lo = A.newlabel("L_pu"), A.newlabel("L_pu")
    A(f"s_mov_b32 s{S_U}, 0")
    A.label(lr)
    poll_issue()
    A(f"""s_waitcnt vmcnt(0)
    v_cmp_ne_u32 vcc, s{S_NONCE}, v{LPD}
    s_cbranch_vccz {lo}""")
    if NREP > 1:
        next_copy(LPA, NREP, REPS, S_U)
    if OPT.get("pun", 4):
        A(f"s_sleep {OPT.get('pun', 4)}")
    spin_tail(lr, lo, 3)
    A.label(lo)
    A(f"v_mov_b32 v{LFV}, 3\nds_write_b32 v{LAX}, v{LFV}")
def poll_check():
    lo = A.newlabel("L_pk")
    A(f"""v_cmp_ne_u32 vcc, s{S_NONCE}, v{LPD}
    s_cbranch_vccnz {lo}
    v_mov_b32 v{LFV}, 3
    ds_write_b32 v{LAX}, v{LFV}""")
    A.label(lo)

VW2, VC2 = 12, 15
def g2_setup(NT, tmp):
    srd(SRD_W2, S_W2, 1966080)
    srd(SRD_C, S_CRE, 819200)
    srd(SRD_T, S_CIM, 819200)
    A(f"""s_lshl_b32 s{S_T0}, s{S_DCOL}, 1
    v_lshrrev_b32 v{tmp}, 4, v{VL}
    v_lshlrev_b32 v{tmp}, 1, v{tmp}
    v_xor_b32 v{tmp}, v{tmp}, v{VL}
    v_and_b32 v{tmp}, 7, v{tmp}
    v_lshrrev_b32 v{tmp+1}, 3, v{VL}
    v_mul_u32_u24 v{tmp+1}, 1280, v{tmp+1}
    v_lshl_add_u32 v{tmp}, v{tmp}, 4, v{tmp+1}
    v_add_u32 v{VW2}, s{S_T0}, v{tmp}""")
    rowpat_load(VC2, tmp, False)
    A(f"""s_mul_i32 s{S_T0}, s{S_DCOL}, 1280
    v_add_u32 v{VC2}, s{S_T0}, v{VC2}
    v_add_u32 v{VC2+1}, s{S_T0}, v{VC2+1}
    s_add_u32 s{S_S2}, s{S_LW}, 1
    s_and_b32 s{S_S2}, s{S_S2}, 3
    s_add_u32 s{S_KS}, s{S_S2}, s{S_R2A}
    s_cmp_ge_u32 s{S_KS}, 12
    s_cselect_b32 s{S_T0}, 12, 0
    s_sub_u32 s{S_KS}, s{S_KS}, s{S_T0}
    s_mul_i32 s{S_KS}, s{S_KS}, {128*1280}
    v_lshlrev_b32 v236, 4, v{VL}""")
    poll_setup(NT == 6)

def g2_pieces(k):
    out = []
    for i in range(16):
        if k < 3:
            out.append((VW2, SRD_W2, i * 8 * 1280, 0))
        else:
            mat, ii = i // 8, i % 8
            out.append((VC2 + ii % 2, SRD_T if mat else SRD_C, (ii // 2) * 16 * 1280, 1024 * (ii % 2)))
    return out
def g2_next(k):
    if k == 2:
        A(f"""s_and_b32 s{S_KS}, s{S_S2}, 3
        s_add_u32 s{S_KS}, s{S_KS}, s{S_R2B}
        s_cmp_ge_u32 s{S_KS}, 10
        s_cselect_b32 s{S_T0}, 10, 0
        s_sub_u32 s{S_KS}, s{S_KS}, s{S_T0}
        s_lshl_b32 s{S_KS}, s{S_KS}, 7""")
    else:
        step, n = (128 * 1280, 12) if k < 2 else (128, 10)
        A(f"""s_add_u32 s{S_KS}, s{S_KS}, {4*step}
        s_cmp_ge_u32 s{S_KS}, {n*step}
        s_cselect_b32 s{S_T0}, {n*step}, 0
        s_sub_u32 s{S_KS}, s{S_KS}, s{S_T0}""")
THR = OPT.get("thr", 8)
def g2_load(k, base, thr):
    for i, (v, sd, ex, io) in enumerate(g2_pieces(k)):
        if i:
            yield
        A(f"s_add_u32 s{S_T0+7}, s{S_KS}, {ex}\ns_waitcnt vmcnt({thr})")
        A(f"buffer_load_dwordx4 v[{base+4*i}:{base+4*i+3}], v{v}, s[{sd}:{sd+3}], s{S_T0+7} offen offset:{io}")
    g2_next(k)
    ts(48 + k, 2)
def g2_put(k, base, young, lowest, g=None):
    A(f"s_add_u32 s{S_T0+6}, s{S_S2}, {22-NS2}\ns_max_u32 s{S_T0+6}, s{S_T0+6}, {lowest}")
    wait_free(S_T0 + 6)
    A(f"s_waitcnt vmcnt({young})\nv_add_u32 v237, s{S_SLOT}, v236")
    for i in range(16):
        A(f"ds_write_b128 v237, v[{base+4*i}:{base+4*i+3}] offset:{1024*i}")
        if g is not None and i % OPT.get('il', 2) == OPT.get('il', 2) - 1:
            next(g, None)
    A(f"""s_add_u32 s{S_S2}, s{S_S2}, 4
    s_add_u32 s{S_T0+6}, s{S_S2}, 21""")
    declare(S_T0 + 6)
    ts(40 + k, 2)
    A(f"""s_add_u32 s{S_SLOT}, s{S_SLOT}, {4*SL2}
    s_cmp_ge_u32 s{S_SLOT}, {NS2*SL2}
    s_cselect_b32 s{S_T0}, {NS2*SL2}, 0
    s_sub_u32 s{S_SLOT}, s{S_SLOT}, s{S_T0}""")
    if g is not None:
        run(g)
    A("s_waitcnt lgkmcnt(0)")

def bump_epoch(T):
    lr, lo = A.newlabel("L_ep"), A.newlabel("L_ep")
    ld = A.newlabel("L_ep")
    A(f"""s_cmp_lg_u32 s2, 0
    s_cbranch_scc1 {ld}
    s_cmp_lg_u32 s{S_LW}, 2
    s_cbranch_scc1 {ld}
    v_lshrrev_b32 v{T}, 4, v{VL}
    v_lshlrev_b32 v{T}, 6, v{T}
    v_and_b32 v{T+1}, 15, v{VL}
    v_lshl_add_u32 v{T}, v{T+1}, 1, v{T}
    v_lshlrev_b32 v{T}, {FSH}, v{T}""")
    A.label(lr)
    A(f"v_add_u32 v{T+1}, {WS_FLAG}, v{T}")
    for i in range(4):
        A(f"global_load_dword v{T+4+i}, v{T+1}, s[{S_WS}:{S_WS+1}] sc1\nv_add_u32 v{T+1}, {256 << FSH}, v{T+1}")
    A(f"s_waitcnt vmcnt(0)\ns_mov_b64 s[{S_M0}:{S_M0+1}], 0")
    for i in range(4):
        A(f"v_cmp_ne_u32 vcc, s{S_NONCE}, v{T+4+i}\ns_nop 1\ns_or_b64 s[{S_M0}:{S_M0+1}], s[{S_M0}:{S_M0+1}], vcc")
    A(f"s_cmp_eq_u64 s[{S_M0}:{S_M0+1}], 0\ns_cbranch_scc1 {lo}")
    spin_tail(lr, lo, 4)
    A.label(lo)
    A(f"""v_mov_b32 v{T}, {WS_E}
    v_mov_b32 v{T+1}, s{S_NONCE}
    s_mov_b64 exec, 1
    global_store_dword v{T}, v{T+1}, s[{S_WS}:{S_WS+1}] sc1
    s_mov_b64 exec, -1""")
    A.label(ld)

def prefetch(vm, T, tag):
    if not OPT["pf"]:
        return
    if not OPT.get("pfc", 1):
      for i in range(2):
        vm.issue("pf")
      A(f"""s_getpc_b64 s[{S_M0}:{S_M0+1}]
    L_pc{tag}:
    s_sub_u32 s{S_M0}, s{S_M0}, L_pc{tag}-L_code_start
    s_subb_u32 s{S_M0+1}, s{S_M0+1}, 0
    s_lshl_b32 s{S_T0}, s{S_LW}, 13
    v_lshlrev_b32 v{T}, 7, v{VL}
    v_add_u32 v{T}, s{S_T0}, v{T}
    v_add_u32 v{T+1}, 32768, v{T}
    v_min_u32 v{T+1}, L_code_end-L_code_start-8, v{T+1}
    global_load_dword v250, v{T}, s[{S_M0}:{S_M0+1}]
    global_load_dword v249, v{T+1}, s[{S_M0}:{S_M0+1}]""")
    A(f"""s_cmp_ge_u32 s{S_LW}, 2
    s_cselect_b32 s{S_T0}, 49, 59
    s_mov_b32 s{S_T0+1}, 7680
    s_cmov_b32 s{S_T0+1}, 3200
    s_cselect_b32 s{S_T0+4}, s{S_CRE}, s{S_W2}
    s_cselect_b32 s{S_T0+5}, s{S_CRE+1}, s{S_W2+1}
    s_mul_i32 s{S_T0+1}, s{S_T0+1}, s2
    s_cmp_eq_u32 s{S_LW}, 1
    s_cselect_b32 s{S_T0+2}, 3840, 0
    s_add_u32 s{S_T0+1}, s{S_T0+1}, s{S_T0+2}
    s_cmp_eq_u32 s{S_LW}, 3
    s_cselect_b32 s{S_T0+4}, s{S_CIM}, s{S_T0+4}
    s_cselect_b32 s{S_T0+5}, s{S_CIM+1}, s{S_T0+5}
    v_min_u32 v{T}, s{S_T0}, v{VL}
    v_lshlrev_b32 v{T}, 6, v{T}
    v_add_u32 v{T}, s{S_T0+1}, v{T}
    global_load_dword v248, v{T}, s[{S_T0+4}:{S_T0+5}]""")
    vm.issue("pf")


def head_begin():
    return len(A.lines)
def head_end(mark):
    HEADS.extend(A.lines[mark:])
    del A.lines[mark:]

def issue_sub(kind0, tag, capn):
    mlp = kind0 == "mlp"
    kind = kind0 + tag
    def cap():
        A(f"s_waitcnt vmcnt({capn})")
    SLOT = 16384 if mlp else 20480
    A.label(f"L_sub_{kind}")
    A(f"s_waitcnt lgkmcnt(0)")
    flag_test(None, LFD, LFQ, 0, nap=OPT.get('lnap', 0))
    A.label(f"L_subn_{kind}")
    stamp(S_U, 16)
    lx = A.newlabel("L_is")
    A(f"s_bitcmp1_b32 s{S_U}, 0\ns_cbranch_scc1 {lx}")
    A(f"s_add_u32 m0, s{S_XS}, s{S_T0+9}")
    for h in range(4):
        cap()
        A(f"buffer_load_dwordx4 v{2+h}, s[{SRD_X}:{SRD_X+3}], s{S_KX} offen offset:{1024*h} lds")
    A(f"""s_add_u32 s{S_XS}, s{S_XS}, 16384
    s_cmp_eq_u32 s{S_XS}, {3*16384}
    s_cselect_b32 s{S_XS}, 0, s{S_XS}""")
    if not mlp:
        A(f"s_add_u32 m0, s{S_SLOT}, s{S_T0+8}")
        for h in range(4):
            cap()
            A(f"buffer_load_dwordx4 v{6+h}, s[{SRD_WA}:{SRD_WA+3}], s{S_KX} offen offset:{1024*h} lds")
        A(f"s_add_u32 m0, m0, 4096")
        cap()
        A(f"buffer_load_dwordx4 v10, s[{SRD_WA}:{SRD_WA+3}], s{S_KX} offen lds\ns_branch {lx}b")
    A.label(lx)
    if mlp:
        for mat, sd in enumerate((SRD_WA, SRD_WB)):
            A(f"s_add_u32 m0, s{S_SLOT}, s{S_T0+8}" if mat == 0 else "s_add_u32 m0, m0, 8192")
            for h in range(2):
                cap()
                A(f"buffer_load_dwordx4 v{6+h}, s[{sd}:{sd+3}], s{S_KW} offen offset:{1024*h} lds")
        A(f"""s_add_u32 s{S_KW}, s{S_KW}, {32*3072}
        s_cmp_eq_u32 s{S_KW}, {20*32*3072}
        s_cselect_b32 s{S_KW}, {64*3072 if C0 else 0}, s{S_KW}
        s_bitcmp1_b32 s{S_U}, 0
        s_cbranch_scc0 {lx}b""")
    else:
        A(f"s_add_u32 m0, s{S_SLOT}, s{S_T0+8}")
        for h in range(4):
            cap()
            A(f"buffer_load_dwordx4 v{6+h}, s[{SRD_WB}:{SRD_WB+3}], s{S_KX} offen offset:{1024*h} lds")
        A(f"s_add_u32 m0, m0, 4096")
        cap()
        A(f"buffer_load_dwordx4 v10, s[{SRD_WB}:{SRD_WB+3}], s{S_KX} offen lds")
    A(f"""s_add_u32 s{S_KX}, s{S_KX}, 128
    s_cmp_eq_u32 s{S_KX}, 1280
    s_cselect_b32 s{S_KX}, {128 if C0 else 0}, s{S_KX}""")
    A.label(f"{lx}b")
    A(f"""s_add_u32 s{S_U}, s{S_U}, 1
    s_add_u32 s{S_FM}, s{S_FM}, 4
    v_add_u32 v{LFQ}, 4, v{LFQ}
    s_mov_b32 m0, s{S_FM}
    ds_read_b32 v{LFD}, v{LFQ}
    s_add_u32 s{S_SLOT}, s{S_SLOT}, {SLOT}
    s_cmp_eq_u32 s{S_SLOT}, {5*SLOT}
    s_cselect_b32 s{S_SLOT}, 0, s{S_SLOT}""")
    cap()
    A(f"""buffer_load_dword v{VZ}, s[{SRD_X}:{SRD_X+3}], 0 offen lds
    s_setpc_b64 s[{S_RET}:{S_RET+1}]""")
    flush_slow()
S_FM = 22
def call_sub(check=True):
    if check:
        A(f"s_swappc_b64 s[{S_RET}:{S_RET+1}], s[{S_SUB}:{S_SUB+1}]")
    else:
        A(f"s_swappc_b64 s[{S_RET}:{S_RET+1}], s[{S_SUBN}:{S_SUBN+1}]")
S_SUBN = 32
def declare_dma(sreg=None):
    if sreg is not None:
        A(f"s_lshl_b32 s{sreg}, s{sreg}, 2\ns_add_u32 s{S_FM}, s{S_FM}, s{sreg}")
    A(f"s_mov_b32 m0, s{S_FM}")
    cap()
    A(f"buffer_load_dword v{VZ}, s[{SRD_X}:{SRD_X+3}], 0 offen lds")

def head_rest(kind):
    mlp = kind == "mlp"
    SLOT = 16384 if mlp else 20480
    flag_init(FLG, S_LW, LFP, FREE, LAX)
    A(f"""s_add_u32 s{S_FM}, s{S_T0}, 4
    v_subrev_u32 v{LFQ}, 8, v{LFP}
    s_getpc_b64 s[{S_SUB}:{S_SUB+1}]
    L_gp_{kind}:
    s_add_u32 s{S_SUBN}, s{S_SUB}, L_subn_{kind}-L_gp_{kind}
    s_addc_u32 s{S_SUBN+1}, s{S_SUB+1}, 0
    s_add_u32 s{S_SUB}, s{S_SUB}, L_sub_{kind}-L_gp_{kind}
    s_addc_u32 s{S_SUB+1}, s{S_SUB+1}, 0
    s_mov_b32 s{S_U}, 2
    s_mov_b32 s{S_SLOT}, {2*SLOT}
    s_mov_b32 s{S_XS}, 16384
    s_mov_b32 m0, s{S_FM}
    s_add_u32 s{S_FM}, s{S_FM}, 4
    buffer_load_dword v{VZ}, s[{SRD_X}:{SRD_X+3}], 0 offen lds""")
    if mlp:
        A(f"s_add_u32 s{S_KW}, s{S_KW}, {32*3072}")
        for mat, sd in enumerate((SRD_WA, SRD_WB)):
            A(f"s_add_u32 m0, s{S_T0+8}, {SLOT + mat*8192}\ns_nop 0")
            for h in range(2):
                A(f"buffer_load_dwordx4 v{6+h}, s[{sd}:{sd+3}], s{S_KW} offen offset:{1024*h} lds")
        A(f"""s_add_u32 s{S_KW}, s{S_KW}, {32*3072}
        s_cmp_eq_u32 s{S_KW}, {20*32*3072}
        s_cselect_b32 s{S_KW}, 0, s{S_KW}""")
    else:
        A(f"s_add_u32 m0, s{S_T0+8}, {SLOT}\ns_nop 0")
        for h in range(4):
            A(f"buffer_load_dwordx4 v{6+h}, s[{SRD_WB}:{SRD_WB+3}], s{S_KX} offen offset:{1024*h} lds")
        A(f"s_add_u32 m0, m0, 4096\ns_nop 0\nbuffer_load_dwordx4 v10, s[{SRD_WB}:{SRD_WB+3}], s{S_KX} offen lds")
    A(f"""s_add_u32 s{S_KX}, s{S_KX}, 128
    s_cmp_eq_u32 s{S_KX}, 1280
    s_cselect_b32 s{S_KX}, 0, s{S_KX}""")
    if C0:
        A(f"""s_add_u32 s{S_T0}, s{S_ROT}, 1
        s_lshl_b32 s{S_KX}, s{S_T0}, 7
        s_mul_i32 s{S_KW}, s{S_T0}, {64*3072}""")
    late_scalars()
    declare_dma()
    ts(1, 2)
    for u in range(2, 5):
        call_sub(False)
    nonce_load()
    if OPT.get("solo", 0) >= 2:
        for u in range(5, 20):
            call_sub()
        A(f"s_mov_b32 s{S_T0+6}, 1")
        declare_dma(S_T0 + 6)
        A("s_waitcnt vmcnt(0)")
        ts_flush(100)
        A("s_endpgm")
    A(f"s_branch L_{kind}_loader")
    issue_sub(kind, "", OPT.get("cap0", 12))

GW = OPT.get('gw', 19)
def g1_main(jobs, gran_loads_, gran_work, nstep, early=None):
    kind = "mlp" if early else "ssm"
    for u in range(5, 20):
        if u == OPT.get("capu", 8):
            A(f"""s_getpc_b64 s[{S_SUB}:{S_SUB+1}]
            L_gq_{kind}:
            s_add_u32 s{S_SUB}, s{S_SUB}, L_sub_{kind}2-L_gq_{kind}
            s_addc_u32 s{S_SUB+1}, s{S_SUB+1}, 0""")
        if u == GW:
            A(f"s_setprio {OPT.get('pls', 3)}")
            gran_work()
            A("s_setprio 0")
        call_sub()
        if u >= 6 and u % 2 == 0 or u >= 10:
            jobs.step(nstep)
        if early and OPT.get("tw", 3) == 5 and u == OPT.get("twu", 17):
            touch_w2(233, S_LW)
        if early and u >= 20 - early.n:
            early.step()
        if u == GW - 3:
            assert not jobs.q
            gran_loads_()
    A(f"s_add_u32 s{S_T0+6}, s{S_S2}, 1")
    declare_dma(S_T0 + 6)

def finish(kind):
    if kind == "ssm":
        A("s_barrier")
    bump_epoch(200)
    ts(9, 2)
    ts_flush(100)
    A("s_endpgm")
    flush_slow()
    issue_sub(kind, "2", OPT.get("cap1", 8))

mark = head_begin()
A(f"s_cmp_eq_u32 s{S_J}, 0\ns_cbranch_scc1 L_ssm_head")
rowpat_load(2, 10, False)
A(f"""s_mul_i32 s{S_T0}, s{S_C}, 163840
s_mul_i32 s{S_T0+1}, s{S_LW}, {32*1280}
s_add_u32 s{S_T0}, s{S_T0}, s{S_T0+1}
v_add_u32 v2, s{S_T0}, v2
v_add_u32 v3, s{S_T0}, v3
v_add_u32 v4, {16*1280-2048}, v2
v_add_u32 v5, {16*1280-2048}, v3
v_lshrrev_b32 v10, 4, v{VL}
s_and_b32 s{S_T0}, s{S_LW}, 1
s_lshl_b32 s{S_T0}, s{S_T0}, 2
v_or_b32 v11, s{S_T0}, v10                ; swizzle
v_lshlrev_b32 v11, 1, v11
v_and_b32 v6, 15, v{VL}
v_xor_b32 v11, v11, v6
v_mul_u32_u24 v10, 3072, v10
v_lshl_add_u32 v10, v11, 4, v10
s_mul_i32 s{S_T0}, s{S_LW}, {8*3072}
s_lshl_b32 s{S_T0+1}, s{S_CB}, 8
s_add_u32 s{S_T0}, s{S_T0}, s{S_T0+1}
v_add_u32 v6, s{S_T0}, v10
v_add_u32 v7, {4*3072-1024}, v6
s_mul_i32 s{S_KX}, s{S_ROT}, {0 if C0 else 128}
s_mul_i32 s{S_KW}, s{S_ROT}, {0 if C0 else 64*3072}
s_lshl_b32 s{S_T0+9}, s{S_LW}, 12
s_lshl_b32 s{S_T0+8}, s{S_LW}, 11
s_add_u32 s{S_T0+8}, s{S_T0+8}, {WRING}
s_mov_b32 m0, s{S_T0+9}
s_waitcnt lgkmcnt(0)
s_load_dword s{S_K}, s[{S_X}:{S_X+1}], 0""")
srd(SRD_X, S_X, 2621440)
for h in range(4):
    A(f"buffer_load_dwordx4 v{2+h}, s[{SRD_X}:{SRD_X+3}], s{S_KX} offen offset:{1024*h} lds")
srd(SRD_WA, S_W1, 1966080)
srd(SRD_WB, S_W3, 1966080)
for mat, sd in enumerate((SRD_WA, SRD_WB)):
    A(f"s_add_u32 m0, s{S_T0+8}, {mat*8192}\ns_nop 0")
    for h in range(2):
        A(f"buffer_load_dwordx4 v{6+h}, s[{sd}:{sd+3}], s{S_KW} offen offset:{1024*h} lds")
head_rest("mlp")
head_end(mark)
A.label("L_mlp_loader")
vm = NOQ
GA, GD = 18, 22
def gran_loads():
    for i in range(4):
        cap()
        A(f"global_load_dwordx4 v[{GD+4*i}:{GD+3+4*i}], v{GA+i}, s[{S_WS}:{S_WS+1}] sc1")
def mlp_setup3():
    A(f"""s_mul_i32 s{S_T0}, s{S_LW}, {1536*8}
    s_lshl_b32 s{S_T0+1}, s{S_CB}, 10
    s_add_u32 s{S_T0}, s{S_T0}, s{S_T0+1}
    s_add_u32 s{S_T0}, s{S_T0}, {WS_CSW}
    s_lshl_b32 s{S_T0+1}, s{S_C}, 10
    s_add_u32 s{S_T0+1}, s{S_T0+1}, {WS_STAT}
    s_lshl_b32 s{S_T0+2}, s{S_TG}, 7
    s_add_u32 s{S_T0+2}, s{S_T0+2}, {WS_STAT}
    s_cmp_eq_u32 s{S_LW}, 2
    s_cselect_b32 s{S_T0+1}, s{S_T0+2}, s{S_T0+1}
    s_cmp_ge_u32 s{S_LW}, 2
    s_cselect_b32 s{S_T0}, s{S_T0+1}, s{S_T0}
    s_cselect_b32 s{S_T0+1}, 0, {3072*8}
    v_lshlrev_b32 v{GA}, 4, v{VL}
    v_add_u32 v{GA}, s{S_T0}, v{GA}
    v_add_u32 v{GA+1}, s{S_T0+1}, v{GA}
    v_add_u32 v{GA+2}, s{S_T0+1}, v{GA+1}
    v_add_u32 v{GA+3}, s{S_T0+1}, v{GA+2}""")
def mlp_gran():
    if True:
        vm.wait("gran")
        lr, lo, lskip, lstat = A.newlabel("L_gr"), A.newlabel("L_gr"), A.newlabel("L_gr"), A.newlabel("L_gr")
        A.label(lr)
        A(f"s_mov_b64 s[{S_M0}:{S_M0+1}], 0")
        for i in range(8):
            A(f"v_cmp_ne_u32 vcc, s{S_NONCE}, v{GD+1+2*i}\ns_nop 1\ns_or_b64 s[{S_M0}:{S_M0+1}], s[{S_M0}:{S_M0+1}], vcc")
        A(f"s_cmp_eq_u64 s[{S_M0}:{S_M0+1}], 0\ns_cbranch_scc1 {lo}")
        gran_loads()
        A("s_waitcnt vmcnt(0)")
        spin_tail(lr, lo, 5)
        A.label(lo)
        A(f"s_cmp_eq_u32 s{S_LW}, 3\ns_cbranch_scc1 {lstat}")
        A(f"""s_cmp_lg_u32 s{S_LW}, 2
        s_cbranch_scc1 {lstat}c
        v_lshlrev_b32 v{GD+1}, 3, v{VL}
        v_add_u32 v{GD+1}, {XL+13312}, v{GD+1}
        ds_write2_b32 v{GD+1}, v{GD}, v{GD+2} offset0:0 offset1:1
        s_branch {lskip}""")
        A.label(f"{lstat}c")
        A(f"""v_add_f32 v{GD}, v{GD}, v{GD+4}
        v_add_f32 v{GD+2}, v{GD+2}, v{GD+6}
        v_add_f32 v{GD+8}, v{GD+8}, v{GD+12}
        v_add_f32 v{GD+10}, v{GD+10}, v{GD+14}
        v_add_f32 v{GD}, v{GD}, v{GD+8}
        v_add_f32 v{GD+1}, v{GD+2}, v{GD+10}
        s_lshl_b32 s{S_T0}, s{S_LW}, 9
        s_add_u32 s{S_T0}, s{S_T0}, {M_CS}
        v_lshlrev_b32 v{GD+2}, 3, v{VL}
        v_add_u32 v{GD+2}, s{S_T0}, v{GD+2}
        ds_write_b64 v{GD+2}, v[{GD}:{GD+1}]
        s_branch {lskip}""")
        A.label(lstat)
        for hrow, p in ((0, GD), (1, GD + 2)):
            o = GD + 4 + 4 * hrow
            A(f"""v_and_b32 v{o+2}, 0xffff0000, v{p}
            v_lshlrev_b32 v{o}, 16, v{p}
            v_rcp_f32 v{o+1}, v{o+2}
            v_mul_f32 v{o+2}, v{o+2}, v{o+2}
            v_mul_f32 v{o+1}, {NLOG2E}, v{o+1}""")
        A(f"""v_lshlrev_b32 v{GD+2}, 5, v{VL}
        v_add_u32 v{GD+2}, {M_ROW}, v{GD+2}
        ds_write_b128 v{GD+2}, v[{GD+4}:{GD+7}]
        ds_write_b128 v{GD+2}, v[{GD+8}:{GD+11}] offset:16""")
        A.label(lskip)
        A("s_waitcnt lgkmcnt(0)")

nonce_ready()
def only2(fn):
    l = A.newlabel("L_nc")
    A(f"s_cmp_lg_u32 s{S_LW}, 2\ns_cbranch_scc1 {l}")
    fn()
    A.label(l)
    return
    yield
def one(fn):
    fn()
    return
    yield
jobs = Jobs()
if CSL:
    assert PB >= 4
    jobs.add(one(cs_by_loader))
jobs.add(one(mlp_setup3))
jobs.add(one(lambda: g2_setup(6, 232)))
def x_tile():
    A(f"""s_lshl_b32 s{S_T0}, s{S_TG}, 4
    s_mul_i32 s{S_T0+1}, s{S_LW}, 24
    s_add_u32 s{S_T0}, s{S_T0}, s{S_T0+1}
    s_mul_i32 s{S_T0}, s{S_T0}, 1280
    s_lshl_b32 s{S_T0+1}, s{S_DCOL}, 1
    s_add_u32 s{S_T0}, s{S_T0}, s{S_T0+1}
    v_lshrrev_b32 v232, 3, v{VL}
    v_mul_u32_u24 v232, 1280, v232
    v_and_b32 v233, 7, v{VL}
    v_lshl_add_u32 v232, v233, 4, v232
    s_mul_i32 s{S_T0+2}, s{S_LW}, 3072""")
    for i in range(3):
        A(f"s_add_u32 m0, s{S_T0+2}, {XL+1024*i}\ns_add_u32 s{S_T0+7}, s{S_T0}, {8*1280*i}")
        cap()
        A(f"buffer_load_dwordx4 v232, s[{SRD_X}:{SRD_X+3}], s{S_T0+7} offen lds")
    A(f"""s_mov_b32 s{S_M0}, s{S_DSK}
    s_mov_b32 s{S_M0+1}, s{S_DSK+1}
    s_mov_b32 s{S_M0+2}, 1280
    s_mov_b32 s{S_M0+3}, 0x20000
    s_mov_b32 m0, {XL+12288}
    v_lshlrev_b32 v233, 4, v{VL}
    buffer_load_dwordx4 v233, s[{S_M0}:{S_M0+3}], s{S_T0+1} offen lds""")
def mg():
    mlp_gran()
    if XE == 2:
        x_tile()
MB = [40, 104, 168, 40, 104, 168]
T1 = OPT.get("thr1", CAP)
class Early:
    def __init__(self):
        self.n, self.ch = OPT.get("en", 0), OPT.get("ech", 2)
        def both():
            yield from g2_load(0, MB[0], CAP)
            yield
            yield from g2_load(1, MB[1], CAP)
        self.g = both()
    def step(self):
        for _ in range(self.ch):
            next(self.g, None)
early = Early()
g1_main(jobs, gran_loads, mg, 1, early)
if OPT.get("tw", 3) == 4:
    touch_w2(233, S_LW)
ts(47, 2)
run(early.g)
A(f"s_lshl_b32 s{S_SLOT}, s{S_S2}, 14")
if OPT.get("ord", 0):
    run(g2_load(2, MB[2], T1))
    g2_put(0, MB[0], 32, 20)
else:
    g2_put(0, MB[0], 16, 20, g2_load(2, MB[2], T1))
g2_put(1, MB[1], 16, 20, g2_load(3, MB[3], T1))
run(g2_load(4, MB[4], THR))
g2_put(2, MB[2], 32, 21 if XE == 2 else 20)
la = A.newlabel("L_k")
A(f"s_cmp_ge_u32 s{S_S2}, 14\ns_cbranch_scc1 {la}")
g2_put(3, MB[3], 16, 20, g2_load(5, MB[5], OPT.get('thr5', THR)))
A(f"s_branch {la}b")
A.label(la)
g2_put(3, MB[3], 16, 20)
A.label(f"{la}b")
A(f"s_cmp_lg_u32 s{S_S2}, 19\ns_cbranch_scc1 {la}c")
poll_until()
A.label(f"{la}c")
g2_put(4, MB[4], 0, 20)
A(f"s_cmp_ge_u32 s{S_S2}, 22\ns_cbranch_scc1 {la}x")
g2_put(5, MB[5], 0, 20)
A.label(f"{la}x")
finish("mlp")

mark = head_begin()
A.label("L_ssm_head")
rowpat_load(2, 14, True)
rowpat_load(6, 14, False)
A(f"""s_mul_i32 s{S_T0}, s{S_C}, 163840
s_lshr_b32 s{S_T0+1}, s{S_LW}, 1
s_mul_i32 s{S_T0+1}, s{S_T0+1}, {64*1280}
s_add_u32 s{S_T0}, s{S_T0}, s{S_T0+1}
s_and_b32 s{S_T0+1}, s{S_LW}, 1
s_mul_i32 s{S_T0+1}, s{S_T0+1}, {4*1280}
s_add_u32 s{S_T0}, s{S_T0}, s{S_T0+1}
v_add_u32 v2, s{S_T0}, v2
v_add_u32 v3, s{S_T0}, v3
v_add_u32 v4, {2*1280-2048}, v2
v_add_u32 v5, {2*1280-2048}, v3""")
A(f"""v_add_u32 v7, {1024-8*1280 & 0xffffffff}, v7
s_mul_i32 s{S_T0}, s{S_CB}, {160*1280}
s_mul_i32 s{S_T0+1}, s{S_LW}, {40*1280}
s_add_u32 s{S_T0}, s{S_T0}, s{S_T0+1}
s_bitcmp1_b32 s{S_LW}, 0
s_cselect_b64 vcc, -1, 0
v_add_u32 v6, s{S_T0}, v6
v_add_u32 v7, s{S_T0}, v7
v_cndmask_b32 v12, v6, v7, vcc
v_cndmask_b32 v13, v7, v6, vcc
v_mov_b32 v6, v12
v_add_u32 v7, {8*1280-1024}, v13
v_add_u32 v8, {16*1280-2048}, v12
v_add_u32 v9, {24*1280-3072}, v13
v_add_u32 v10, {32*1280}, v12
s_mul_i32 s{S_KX}, s{S_ROT}, {0 if C0 else 128}
s_lshl_b32 s{S_T0+9}, s{S_LW}, 12
s_mul_i32 s{S_T0+8}, s{S_LW}, 5120
s_add_u32 s{S_T0+8}, s{S_T0+8}, {WRING}
s_mov_b32 m0, s{S_T0+9}
s_waitcnt lgkmcnt(0)
s_load_dword s{S_K}, s[{S_X}:{S_X+1}], 0""")
srd(SRD_X, S_X, 2621440)
for h in range(4):
    A(f"buffer_load_dwordx4 v{2+h}, s[{SRD_X}:{SRD_X+3}], s{S_KX} offen offset:{1024*h} lds")
srd(SRD_WA, S_BRE, 819200)
srd(SRD_WB, S_BIM, 819200)
A(f"s_mov_b32 m0, s{S_T0+8}\ns_nop 0")
for h in range(4):
    A(f"buffer_load_dwordx4 v{6+h}, s[{SRD_WA}:{SRD_WA+3}], s{S_KX} offen offset:{1024*h} lds")
A(f"s_add_u32 m0, m0, 4096\ns_nop 0\nbuffer_load_dwordx4 v10, s[{SRD_WA}:{SRD_WA+3}], s{S_KX} offen lds")
head_rest("ssm")
head_end(mark)
A.label("L_ssm_loader")
CN = 212
LR, LI = 214, 215
L8, L128, KL = 216, 218, 220
def const_loads():
    A(f"""s_lshl_b32 s{S_T0}, s{S_LW}, 6
    v_add_u32 v{CN}, s{S_T0}, v{VL}
    v_min_u32 v{CN}, 159, v{CN}
    s_mul_i32 s{S_T0}, s{S_CB}, 160
    v_add_u32 v110, s{S_T0}, v{CN}
    v_lshlrev_b32 v110, 1, v110
    global_load_ushort v111, v110, s[{S_LRE}:{S_LRE+1}]
    global_load_ushort v112, v110, s[{S_LIM}:{S_LIM+1}]
    global_load_ushort v113, v110, s[{S_LDT}:{S_LDT+1}]""")
def ssm_setup3():
  A(f"""v_cmp_le_u32 vcc, 80, v{CN}
v_mov_b32 v41, 0
v_mov_b32 v42, {640-160}
v_cndmask_b32 v41, v41, v42, vcc
v_lshl_add_u32 v41, v{CN}, 1, v41
s_mul_i32 s{S_T0}, s{S_CB}, 160
v_add_u32 v41, s{S_T0}, v41
v_lshlrev_b32 v41, 3, v41
v_add_u32 v41, {WS_CSB}, v41
s_lshl_b32 s{S_T0+1}, s{S_C}, 10
s_add_u32 s{S_T0+1}, s{S_T0+1}, {WS_STAT}
v_lshlrev_b32 v40, 4, v{VL}
v_add_u32 v40, s{S_T0+1}, v40
s_cmp_eq_u32 s{S_LW}, 3
s_cselect_b64 vcc, -1, 0
s_nop 1
v_cndmask_b32 v40, v41, v40, vcc""")
def cmul(d, a, b, t):
    A(f"""v_mul_f32 v{t}, v{a+1}, v{b+1}
    v_mul_f32 v{t+1}, v{a+1}, v{b}
    v_fma_f32 v{t}, v{a}, v{b}, -v{t}
    v_fma_f32 v{d+1}, v{a}, v{b+1}, v{t+1}
    v_mov_b32 v{d}, v{t}""")
def ssm_consts():
    A(f"""v_lshlrev_b32 v111, 16, v111
    v_lshlrev_b32 v112, 16, v112
    v_lshlrev_b32 v113, 16, v113
    v_mul_f32 v113, {LOG2E}, v113
    v_exp_f32 v113, v113
    v_mul_f32 v114, v111, v111
    v_fma_f32 v114, v112, v112, v114
    v_cvt_pk_bf16_f32 v113, v113, v113
    v_lshlrev_b32 v113, 16, v113              ; dt
    v_rcp_f32 v114, v114
    v_mul_f32 v115, v113, v111
    v_mul_f32 v116, v113, v112
    v_mul_f32 v115, {LOG2E}, v115
    v_mul_f32 v116, 0.15915494, v116
    v_exp_f32 v115, v115
    v_rndne_f32 v117, v116
    v_sub_f32 v116, v116, v117
    v_cos_f32 v117, v116
    v_sin_f32 v116, v116
    v_add_f32 v114, v114, v114
    v_mul_f32 v{LR}, v115, v117
    v_mul_f32 v{LI}, v115, v116
    v_add_f32 v115, -1.0, v{LR}
    v_mul_f32 v116, v{LI}, v112
    v_fma_f32 v116, v115, v111, v116
    v_mul_f32 v117, v115, v112
    v_fma_f32 v117, v{LI}, v111, -v117        ; Im
    v_mul_f32 v118, v116, v114
    v_mul_f32 v119, -v117, v114
    v_lshlrev_b32 v120, 3, v{CN}
    v_add_u32 v120, {M_LAM}, v120
    ds_write_b64 v120, v[{LR}:{LI}]
    ds_write_b64 v120, v[118:119] offset:{M_COEF-M_LAM}
    v_mul_f32 v{KL}, v118, v{LR}
    v_fma_f32 v{KL}, v119, v{LI}, v{KL}
    v_mul_f32 v{KL+1}, v119, v{LR}
    v_fma_f32 v{KL+1}, -v118, v{LI}, v{KL+1}""")
    yield
    cmul(L8, LR, LR, 114)
    cmul(L8, L8, L8, 114)
    cmul(L8, L8, L8, 114)
    cmul(L128, L8, L8, 114)
    for i in range(3):
        cmul(L128, L128, L128, 114)
def ssm_gran():
    if True:
        vm.wait("gran")
        lr, lo, lskip, lstat = A.newlabel("L_gr"), A.newlabel("L_gr"), A.newlabel("L_gr"), A.newlabel("L_gr")
        A.label(lr)
        A(f"""v_cmp_ne_u32 vcc, s{S_NONCE}, v45
        v_cmp_ne_u32 s[{S_M0}:{S_M0+1}], s{S_NONCE}, v47
        s_nop 1
        s_or_b64 s[{S_M0}:{S_M0+1}], s[{S_M0}:{S_M0+1}], vcc
        s_cmp_eq_u64 s[{S_M0}:{S_M0+1}], 0
        s_cbranch_scc1 {lo}
        global_load_dwordx4 v[44:47], v40, s[{S_WS}:{S_WS+1}] sc1
        s_waitcnt vmcnt(0)""")
        spin_tail(lr, lo, 6)
        A.label(lo)
        A(f"""s_cmp_eq_u32 s{S_LW}, 3
        s_cbranch_scc1 {lstat}
        v_mov_b32 v45, v46
        v_lshlrev_b32 v46, 3, v{CN}
        v_add_u32 v46, {M_CS}, v46
        ds_write_b64 v46, v[44:45]
        s_branch {lskip}""")
        A.label(lstat)
        A(f"""v_and_b32 v48, 0xffff0000, v44
        v_and_b32 v49, 0xffff0000, v46
        v_rcp_f32 v48, v48
        v_rcp_f32 v49, v49
        v_lshlrev_b32 v44, 16, v44
        v_lshlrev_b32 v46, 16, v46
        v_and_b32 v50, 32, v{VL}
        v_lshlrev_b32 v50, 1, v50
        v_and_b32 v51, 3, v{VL}
        v_lshl_add_u32 v50, v51, 4, v50
        v_bfe_u32 v51, v{VL}, 3, 2
        v_lshl_add_u32 v50, v51, 2, v50
        v_bfe_u32 v51, v{VL}, 2, 1
        v_add_u32 v50, v50, v51
        v_lshlrev_b32 v50, 2, v50
        v_add_u32 v50, {M_ROW}, v50
        ds_write2_b32 v50, v44, v46 offset0:0 offset1:2
        ds_write2_b32 v50, v48, v49 offset0:128 offset1:130""")
        A.label(lskip)
        A("s_waitcnt lgkmcnt(0)")

nonce_ready()
const_loads()
jobs = Jobs()
jobs.add(one(lambda: None))
jobs.add(ssm_consts())
jobs.add(one(ssm_setup3))
jobs.add(one(lambda: g2_setup(2, 232)))
def gs():
    A(f"global_load_dwordx4 v[44:47], v40, s[{S_WS}:{S_WS+1}] sc1")
g1_main(jobs, gs, ssm_gran, 1)
A(f"s_lshl_b32 s{S_SLOT}, s{S_S2}, 14")
SB = [44, 44, 108, 172, 44, 108]
run(g2_load(0, SB[0], CAP))
g2_put(0, SB[0], 0, 20)
if not OPT.get("l1late", 0):
    run(g2_load(1, SB[1], 16))
A("s_setprio 3\ns_barrier")
ts(4, 2)
lmid = A.newlabel("L_mid")
A(f"s_cmp_eq_u32 s{S_LW}, 3\ns_cbranch_scc1 {lmid}")
ME = 112
ML = 144
MT = 204
A(f"""v_lshlrev_b32 v{MT}, 3, v{CN}
v_add_u32 v{MT}, {E_BASE}, v{MT}""")
for j in range(16):
    A(f"ds_read_b64 v[{ME+2*j}:{ME+2*j+1}], v{MT} offset:{j*1280}")
A(f"""s_lshl_b32 s{S_T0}, s{S_CB}, 4
s_mul_i32 s{S_T0}, s{S_T0}, 2560
s_add_u32 s{S_T0}, s{S_T0}, {WS_SCAN}
v_lshlrev_b32 v{MT+1}, 4, v{CN}
v_add_u32 v{MT+1}, s{S_T0}, v{MT+1}
s_mul_i32 s{S_T0}, s{S_C}, 2560
v_add_u32 v{MT+2}, s{S_T0}, v{MT+1}
v_mov_b32 v{MT+5}, s{S_NONCE}
v_mov_b32 v{MT+7}, s{S_NONCE}""")
def cfma(d, a, b, c, conj_a=False, conj_b=False):
    nb = " neg_hi:[0,1,0]" if conj_b else ""
    if c is None:
        A(f"v_pk_mul_f32 v[{d}:{d+1}], v[{a}:{a+1}], v[{b}:{b+1}] op_sel_hi:[0,1]" + (" neg_hi:[0,1]" if conj_b else ""))
        c = d
    else:
        A(f"v_pk_fma_f32 v[{d}:{d+1}], v[{a}:{a+1}], v[{b}:{b+1}], v[{c}:{c+1}] op_sel_hi:[0,1,1]{nb}")
    slo = 1 ^ conj_a ^ conj_b
    shi = int(conj_a)
    A(f"v_pk_fma_f32 v[{d}:{d+1}], v[{a}:{a+1}], v[{b}:{b+1}], v[{d}:{d+1}] op_sel:[1,1,0] op_sel_hi:[1,0,1] neg_lo:[{slo},0,0] neg_hi:[{shi},0,0]")
for j in range(1, 16):
    if j in (1, 5, 9, 13):
        A(f"s_waitcnt lgkmcnt({max(0, 11 - j + 1 - 0) if j < 13 else 0})")
    cfma(ME + 2 * j, L8, ME + 2 * j - 2, ME + 2 * j)
A(f"""v_mov_b32 v{MT+4}, v{ME+30}
v_mov_b32 v{MT+6}, v{ME+31}
s_mov_b32 s{S_U}, 0""")
for r_ in range(NR2):
    A(f"global_store_dwordx4 v{MT+2}, v[{MT+4}:{MT+7}], s[{S_WS}:{S_WS+1}] sc1")
    if r_ < NR2 - 1:
        A(f"v_add_u32 v{MT+2}, 0x40000, v{MT+2}")
ts(5, 2)
lr, lo, lld, lck, lh = [A.newlabel("L_lb") for _ in range(5)]
def lb_loads(lbl):
    A(f"v_mov_b32 v{MT+3}, v{MT+1}")
    for k in range(15):
        A(f"""s_cmp_le_u32 s{S_C}, {k}
        s_cbranch_scc1 {lbl}
        global_load_dwordx4 v[{ML+4*k}:{ML+4*k+3}], v{MT+3}, s[{S_WS}:{S_WS+1}] {['sc1', 'sc0 sc1', 'sc1 nt', 'sc0 sc1 nt'][OPT.get('lbm', 0)]}
        v_add_u32 v{MT+3}, 2560, v{MT+3}""")
    A.label(lbl)
if not OPT.get("lbd", 1):
    lb_loads(lld)
for j in range(15, 0, -1):
    cfma(ME + 2 * j, KL, ME + 2 * j - 2, None, conj_b=True)
MP = 16
A(f"v_mov_b32 v{MP+2}, v{L8}\nv_sub_f32 v{MP+3}, 0, v{L8+1}")
for j in range(2, 14):
    cfma(MP + 2 * j, MP + 2, MP + 2 * j - 2, None)
A(f"v_mov_b32 v{ME}, 0\nv_mov_b32 v{ME+1}, 0")
if OPT.get("lbd", 1):
    if OPT.get("lbd", 1) > 1:
        A(f"s_sleep {OPT['lbd']}")
    lb_loads(lld)
A.label(lr)
A(f"s_waitcnt vmcnt(0)\ns_mov_b64 s[{S_M0}:{S_M0+1}], 0")
for k in range(15):
    A(f"""s_cmp_le_u32 s{S_C}, {k}
    s_cbranch_scc1 {lck}
    v_cmp_ne_u32 vcc, s{S_NONCE}, v{ML+4*k+1}
    v_cmp_ne_u32 s[{S_M1}:{S_M1+1}], s{S_NONCE}, v{ML+4*k+3}
    s_nop 1
    s_or_b64 s[{S_M0}:{S_M0+1}], s[{S_M0}:{S_M0+1}], vcc
    s_or_b64 s[{S_M0}:{S_M0+1}], s[{S_M0}:{S_M0+1}], s[{S_M1}:{S_M1+1}]""")
A.label(lck)
A(f"s_cmp_eq_u64 s[{S_M0}:{S_M0+1}], 0\ns_cbranch_scc1 {lo}")
if NR2 > 1:
    next_copy(MT + 1, NR2, 0x40000, S_U)
lb_loads(A.newlabel("L_lb"))
spin_tail(lr, lo, 7)
A.label(lo)
ts(6, 2)
H = MT + 4
A(f"v_mov_b32 v{H}, 0\nv_mov_b32 v{H+1}, 0")
for k in range(15):
    g = ML + 4 * k
    A(f"""s_cmp_le_u32 s{S_C}, {k}
    s_cbranch_scc1 {lh}
    v_mov_b32 v{g+1}, v{g+2}""")
    cfma(g, L128, H, g)
    A(f"v_mov_b64 v[{H}:{H+1}], v[{g}:{g+1}]")
A.label(lh)
Q = MT + 6
cfma(Q, KL, H, None, conj_b=True)
A(f"v_pk_add_f32 v[{ME}:{ME+1}], v[{ME}:{ME+1}], v[{Q}:{Q+1}]")
A(f"ds_write_b64 v{MT}, v[{ME}:{ME+1}]")
for j in range(1, 16):
    d = ME + 2 * j
    if j == 14:
        cfma(H, MP + 4, Q, None)
    if j < 14:
        cfma(d, MP + 2 * j, Q, d)
    else:
        cfma(d, MP + 2 * (j - 2), H, d)
    A(f"ds_write_b64 v{MT}, v[{d}:{d+1}] offset:{j*1280}")
A("s_waitcnt lgkmcnt(0)")
A.label(lmid)
A("s_setprio 0\ns_barrier")
ts(7, 2)
SC = OPT.get("scap", 4)
if OPT.get("l1late", 0):
    run(g2_load(1, SB[1], SC))
run(g2_load(2, SB[2], SC))
run(g2_load(3, SB[3], OPT.get("scap2", 8)))
A(f"s_cmp_lt_u32 s{S_S2}, 5\ns_cselect_b32 s{S_T0+5}, 20, 21")
g2_put(1, SB[1], 32, f"s{S_T0+5}")
run(g2_load(4, SB[4], 24))
g2_put(2, SB[2], 32, 21)
la = A.newlabel("L_k")
A(f"s_cmp_ge_u32 s{S_S2}, 14\ns_cbranch_scc1 {la}")
run(g2_load(5, SB[5], 24))
g2_put(3, SB[3], 32, 21)
g2_put(4, SB[4], 16, 21)
g2_put(5, SB[5], 0, 21)
A(f"s_branch {la}x")
A.label(la)
A(f"s_cmp_lg_u32 s{S_S2}, 15\ns_cbranch_scc1 {la}p")
poll_until()
A.label(f"{la}p")
g2_put(3, SB[3], 16, 21)
g2_put(4, SB[4], 0, 21)
A.label(f"{la}x")
finish("ssm")

A.label("L_end")
A("s_endpgm")
A.label("L_code_end")
A.lines[HEADPOS:HEADPOS] = HEADS
A.lines.insert(0, "L_code_start:")

DOC = """; ---------------------------------------------------------------------------------------------------------
;   GEMM 1 : raw x times [w1 | w3] (192 workgroups, 128 x 256 tiles) or [B_re | B_im] (64 workgroups, 128 x 320).
;            are made once per row / column by side jobs and handed round as {value, tag} granules in d_ws.
;   epilogue : SwiGLU -> H (bf16), or exact chunked scan (local scan, chunk end states exchanged through d_ws,
; ---------------------------------------------------------------------------------------------------------
"""
hdr = open(os.path.join(os.path.dirname(__file__), "header.txt")).read()
print(hdr + f"""; @launch grid=(256,1,1) block=(512,1,1) lds=163840
{DOC}.amdgcn_target "amdgcn-amd-amdhsa--gfx950"
.text
.globl {KNAME}
.p2align 8
.type {KNAME},@function
{KNAME}:""")
print(A.text(), end="")
print(f""".section .rodata,"a"
.p2align 6
.amdhsa_kernel {KNAME}
  .amdhsa_next_free_vgpr 256
  .amdhsa_next_free_sgpr 102
  .amdhsa_accum_offset 256
  .amdhsa_group_segment_fixed_size 0
  .amdhsa_kernarg_size 128
  .amdhsa_user_sgpr_count 2
  .amdhsa_user_sgpr_kernarg_segment_ptr 1
  .amdhsa_system_sgpr_workgroup_id_x 1
.end_amdhsa_kernel""")
```
